```python
import torch

def _softmax(x, axis=-1):
    return torch.softmax(x, dim=axis)

def _gelu(x):
    return torch.nn.functional.gelu(x, approximate='tanh')

def _silu(x):
    return torch.nn.functional.silu(x)

def _sigmoid(x):
    return torch.sigmoid(x)

def _layernorm(x, axis=-1, eps=1e-05):
    m = x.mean(dim=axis, keepdim=True)
    v = x.var(dim=axis, keepdim=True, unbiased=False)
    return (x - m) / torch.sqrt(v + eps)

def _scatter_add(tgt, idx, src, axis=0):
    return tgt.clone().index_add_(axis, idx, src)

def _segment_sum(src, seg, n):
    out = torch.zeros((n,) + src.shape[1:], dtype=src.dtype)
    return out.index_add_(0, seg, src)

def _pad(x, pw):
    flat = tuple((v for pair in reversed(pw) for v in pair))
    return torch.nn.functional.pad(x, flat)
kernel_name = 'sequential_preLN__softmax_full_mha__mixer_gmlp__prompt'

def setup_inputs():

    _w = lambda a: (lambda t: t.to(torch.bfloat16) if t.is_floating_point() else t)(torch.as_tensor(a))

    def _A_setup():
        B, S, D = (1, 2048, 512)
        return {'x': _w((lambda *s: torch.randn(*s, dtype=torch.bfloat16) * 0.05)(B, S, D)), 'wqkv': _w((lambda *s: torch.randn(*s, dtype=torch.bfloat16) * 0.05)(D, 3 * D)), 'wo': _w((lambda *s: torch.randn(*s, dtype=torch.bfloat16) * 0.05)(D, D))}
    _A_in = _A_setup()

    def _B_setup():
        B, S, D, F = (1, 2048, 512, 1376)
        Fh = F // 2
        return {'x': _w((lambda *s: torch.randn(*s, dtype=torch.bfloat16) * 0.05)(B, S, D)), 'w_in': _w((lambda *s: torch.randn(*s, dtype=torch.bfloat16) * 0.4)(D, 2 * Fh)), 'w_sp': _w(0.01 * (lambda *s: torch.randn(*s, dtype=torch.bfloat16) * 0.4)(S, S)), 'b_sp': _w(1.0 + 0.01 * (lambda *s: torch.randn(*s, dtype=torch.bfloat16) * 0.05)(S)), 'w_out': _w((lambda *s: torch.randn(*s, dtype=torch.bfloat16) * 0.05)(Fh, D))}
    _B_in = _B_setup()
    return {'A_x': _A_in['x'], 'A_wqkv': _A_in['wqkv'], 'A_wo': _A_in['wo'], 'B_x': _B_in['x'], 'B_w_in': _B_in['w_in'], 'B_w_sp': _B_in['w_sp'], 'B_b_sp': _B_in['b_sp'], 'B_w_out': _B_in['w_out']}

def reference(A_x, A_wqkv, A_wo, B_x, B_w_in, B_w_sp, B_b_sp, B_w_out):

    def _A_ref(x, wqkv, wo):
        B, S, D = x.shape
        H = 32
        Dh = D // H
        qkv = (lambda x, *d: x.permute(*d))((x @ wqkv).reshape(B, S, 3, H, Dh), 2, 0, 3, 1, 4)
        q, k, v = (qkv[0], qkv[1], qkv[2])
        scale = Dh ** (-0.5)
        scores = torch.einsum('bhqd,bhkd->bhqk', q, k) * scale
        p = _softmax(scores, axis=-1)
        o = torch.einsum('bhqk,bhkd->bhqd', p, v)
        return (lambda x, *d: x.permute(*d))(o, 0, 2, 1, 3).reshape(B, S, D) @ wo

    def _B_ref(x, w_in, w_sp, b_sp, w_out):
        B, S, D = x.shape
        F = w_in.shape[-1]
        Fh = F // 2
        z = _gelu(torch.einsum('bsd,df->bsf', x, w_in))
        z1 = z[..., :Fh].clone()
        z2 = _layernorm(z[..., Fh:], axis=-1)
        g = torch.einsum('ts,bsf->btf', w_sp, z2) + b_sp[None, :, None]
        return torch.einsum('bsf,fd->bsd', z1 * g, w_out)
    x = A_x
    h = x + _A_ref(_layernorm(x, axis=-1), A_wqkv, A_wo)
    h2 = h + _B_ref(_layernorm(h, axis=-1), B_w_in, B_w_sp, B_b_sp, B_w_out)
    return h2
```

```python
import re

REG_RE = re.compile(r"\b([vas])\[(\d+):(\d+)\]|\b([vas])(\d+)\b|\b(vcc|exec|m0|scc)\b")
TRANS = ("v_exp_", "v_log_", "v_rcp_", "v_rsq_", "v_sqrt_", "v_sin_", "v_cos_")

def regs_of(tok):
    out = []
    for m in REG_RE.finditer(tok):
        if m.group(1):
            out += [(m.group(1), r) for r in range(int(m.group(2)), int(m.group(3)) + 1)]
        elif m.group(4):
            out.append((m.group(4), int(m.group(5))))
        else:
            n = m.group(6)
            out += {"vcc": [("s", 106), ("s", 107)], "exec": [("s", 126), ("s", 127)], "m0": [("s", 124)], "scc": []}[n]
    return out

def split_ops(s):
    ops, depth, cur = [], 0, ""
    for c in s:
        if c == "[": depth += 1
        if c == "]": depth -= 1
        if c == "," and depth == 0:
            ops.append(cur.strip()); cur = ""
        else:
            cur += c
    if cur.strip(): ops.append(cur.strip())
    return ops

class I:
    __slots__ = ("text", "op", "kind", "w", "r", "passes", "srcc", "srcab", "states", "dpp", "wide_store", "lds_dma")
    def __init__(self, text):
        self.text = text
        t = text.split(";")[0].strip()
        self.op = t.split()[0] if t else ""
        rest = t[len(self.op):].strip()
        ops = split_ops(rest)
        self.w, self.r, self.srcc, self.srcab = set(), set(), set(), set()
        self.passes = 0; self.states = 1; self.dpp = False; self.wide_store = False; self.lds_dma = False
        op = self.op
        if t.endswith(":") or op.startswith("."):
            self.kind = "label" if t.endswith(":") else "dir"; self.states = 0
            return
        first = lambda k: set(regs_of(ops[k].split(" ")[0])) if k < len(ops) else set()
        allr = lambda ks: set().union(*[set(regs_of(ops[k])) for k in ks if k < len(ops)]) if ks else set()
        if op.startswith("v_mfma") or op.startswith("v_smfmac"):
            self.kind = "mfma"
            self.passes = 8 if "32x32" in op else 4
            self.w = first(0)
            if op.startswith("v_smfmac"):
                self.srcc = first(0); self.srcab = allr([1, 2, 3])
            else:
                self.srcc = first(3); self.srcab = allr([1, 2])
            self.r = self.srcc | self.srcab
        elif op.startswith("v_"):
            self.kind = "valu"
            self.dpp = "dpp" in op or "quad_perm" in t or "row_" in t
            if op.startswith("v_cmp"):
                self.w = first(0); self.r = allr(range(1, len(ops)))
            elif op.startswith("v_permlane"):
                self.w = first(0) | first(1); self.r = set(self.w)
            elif op in ("v_add_co_u32", "v_sub_co_u32", "v_addc_co_u32"):
                self.w = first(0) | first(1); self.r = allr(range(2, len(ops)))
            else:
                self.w = first(0); self.r = allr(range(1, len(ops)))
                if op.startswith(("v_fmac", "v_dot2c", "v_pk_fmac")) or self.dpp or "UNUSED_PRESERVE" in t:
                    self.r |= self.w
                if op.startswith("v_cndmask") and len(ops) == 3:
                    self.r |= {("s", 106), ("s", 107)}
        elif op.startswith(("buffer_", "global_")):
            self.kind = "vmem"
            if " lds" in t:
                self.lds_dma = True; self.r = allr(range(len(ops))) | {("s", 124)}
            elif "load" in op:
                self.w = first(0); self.r = allr(range(1, len(ops)))
            else:
                self.r = allr(range(len(ops)))
                self.wide_store = op.endswith(("x3", "x4"))
                if self.wide_store: self.srcab = first(0)
        elif op.startswith("ds_"):
            self.kind = "ds"
            if "read" in op or "bpermute" in op or "swizzle" in op:
                self.w = first(0); self.r = allr(range(1, len(ops)))
            else:
                self.r = allr(range(len(ops)))
        elif op == "s_nop":
            self.kind = "nop"; self.states = int(ops[0]) + 1
        elif op.startswith(("s_waitcnt", "s_barrier", "s_endpgm", "s_sleep", "s_setprio")):
            self.kind = "misc"
        elif op.startswith(("s_cbranch", "s_branch")):
            self.kind = "branch"
        elif op.startswith("s_cmp") or op.startswith("s_bitcmp"):
            self.kind = "salu"; self.r = allr(range(len(ops)))
        else:
            self.kind = "salu"
            self.w = first(0); self.r = allr(range(1, len(ops)))
            if "saveexec" in op: self.w |= {("s", 126), ("s", 127)}

def need(p, c):
    n = 0
    vg = lambda s: {x for x in s if x[0] in "va"}
    sg = lambda s: {x for x in s if x[0] == "s"}
    if p.kind == "valu":
        wv, ws = vg(p.w), sg(p.w)
        if c.kind == "mfma" and wv & c.r: n = max(n, 2)
        if c.kind == "valu":
            if p.op.startswith(TRANS) and not c.op.startswith(TRANS) and wv & (c.r | c.w): n = max(n, 1)
            if c.dpp and wv & c.r: n = max(n, 2)
            if c.op.startswith("v_permlane") and wv & c.r: n = max(n, 2)
            if c.op.startswith(("v_readlane", "v_readfirstlane")) and wv & c.r: n = max(n, 1)
            if ws & c.r: n = max(n, 4 if c.op.startswith(("v_readlane", "v_writelane")) else 2)
            if p.op.startswith("v_dot2") and wv & (c.r | c.w):
                if not (c.op == p.op and not (wv & (c.r - c.w))): n = max(n, 3)
        if p.op.startswith("v_dot2") and c.kind in ("vmem", "ds", "mfma") and wv & c.r: n = max(n, 3)
        if c.kind == "vmem" and ws & c.r: n = max(n, 5)
        if c.kind in ("salu", "branch") and (ws & c.r or (c.kind == "branch" and "vcc" in c.op and ws)): n = max(n, 2)
    if p.kind == "mfma":
        big = p.passes == 8
        if c.kind == "mfma":
            if p.w & c.srcab: n = max(n, 12 if big else 8)
            if p.w & c.srcc and not (p.w == c.srcc and p.passes == c.passes): n = max(n, 10 if big else 6)
            if p.w & c.w and not (p.w & c.srcc): n = max(n, 10 if big else 6)
        elif c.kind in ("valu", "vmem", "ds"):
            if p.w & (c.r | c.w): n = max(n, 12 if big else 8)
            if c.kind == "valu" and p.srcc & c.w: n = max(n, 7 if big else 3)
    if p.kind == "vmem" and p.wide_store and p.srcab & c.w:
        n = max(n, 2 if c.kind == "valu" else 1)
    if p.kind == "salu" and ("s", 124) in p.w and c.kind == "vmem" and c.lds_dma: n = max(n, 1)
    return n

class Asm:
    def __init__(self):
        self.items = []
        self.vm = 0; self.lg = 0
        self.vm_done = 0; self.lg_done = 0
        self.nlabel = 0
    def __call__(self, text, *more):
        for t in (text,) + more:
            for line in t.split("\n"):
                line = line.strip()
                if not line: continue
                ins = I(line)
                self.items.append(ins)
                if ins.kind == "vmem": self.vm += 1
                if ins.kind == "ds": self.lg += 1
        return self
    def label(self, base):
        self.nlabel += 1
        return f"L_{base}_{self.nlabel}"
    def vtok(self): return self.vm
    def ltok(self): return self.lg
    def wait(self, vm=None, lg=None, force=False):
        parts = []
        if vm is not None and (vm > self.vm_done or force):
            n = min(self.vm - vm, 63); parts.append(f"vmcnt({n})"); self.vm_done = max(self.vm_done, self.vm - n)
        if lg is not None and (lg > self.lg_done or force):
            n = min(self.lg - lg, 15); parts.append(f"lgkmcnt({n})"); self.lg_done = max(self.lg_done, self.lg - n)
        if parts: self("s_waitcnt " + " ".join(parts))
    def wait_all(self):
        self.wait(self.vm, self.lg, force=True)
    def finish(self):
        out, win, added = [], [], 0
        for ins in self.items:
            if ins.kind in ("label", "dir"):
                out.append(ins); continue
            req = 0; dist = 0
            for p in reversed(win):
                n = need(p, ins)
                if n > dist: req = max(req, n - dist)
                dist += p.states
                if dist >= 20: break
            if req:
                nop = I(f"s_nop {req - 1}"); out.append(nop); win.append(nop); added += 1
            out.append(ins); win.append(ins)
            if len(win) > 40: win = win[-24:]
        self.nops_added = added
        return "\n".join(("" if i.kind == "label" else "  ") + i.text for i in out) + "\n"
```

```python
import sys, struct
from asmdsl import Asm

NAME = "sequential_preLN__softmax_full_mha__mixer_gmlp__prompt"

WS_EPOCH = 0
WS_F1, WS_F2, WS_F3, WS_F4, WS_F5, WS_F6 = 0x1000, 0x5000, 0x7000, 0x9000, 0xB000, 0xD000
WS_ST3, WS_ST4 = 0x10000, 0x50000
WS_Q, WS_KV, WS_O, WS_H, WS_Z, WS_G = 0x100000, 0x300000, 0x700000, 0x900000, 0xB00000, 0xE00000
WS_DBG = 0x1100000
WS_SIZE = 0x1400000

LA, LC, LB = 0, 65536, 98304
LDS_BYTES = 163840

sX, sWQKV, sWO, sWIN, sWSP, sBSP, sWOUT, sOUT, sWS = ("s[%d:%d]" % (b, b + 3) for b in range(4, 40, 4))
sJ, sRB, sCB, sHEAD, sW, sR0, sRH, sCH, sT0, sCNT5 = ("s%d" % i for i in range(40, 50))
sTAG = "s[50:51]"
sONES, sHIMASK, sCLU, sPOLL = "s52", "s53", "s54", "s55"
T = ["s%d" % i for i in range(56, 64)]
sROT = ["s%d" % i for i in range(64, 72)]
sU = ["s%d" % i for i in range(72, 84)]
STAMP0 = 84

vLANE, vL16, vPAT, vZ = "v0", "v1", "v2", "v3"
vTAG = "v[4:5]"
vFP32, vFP8 = "v6", "v7"
vH = 8
vZ1 = 16

def v(a, n=1): return f"v{a}" if n == 1 else f"v[{a}:{a + n - 1}]"
def ar(a, n=1): return f"a{a}" if n == 1 else f"a[{a}:{a + n - 1}]"
def f2u(x): return "0x%08x" % struct.unpack("<I", struct.pack("<f", x))[0]

def mfma16(d, a, b, c=None):
    return f"v_mfma_f32_16x16x32_bf16 {v(d,4)}, {a}, {b}, {c if c is not None else v(d,4)}"

def interleave(a, mains, fillers, per=1, start=0):
    k = 0
    for i, m in enumerate(mains):
        m() if callable(m) else a(m)
        if i >= start:
            for _ in range(per):
                if k < len(fillers):
                    f = fillers[k]; k += 1
                    f() if callable(f) else a(f)
    while k < len(fillers):
        f = fillers[k]; k += 1
        f() if callable(f) else a(f)

class Gen:
    def __init__(self, stop=None, stamps=False, force_fallback=False):
        self.a = Asm()
        self.stop = stop
        self.stamps = stamps
        self.force_fallback = force_fallback
        self.nstamp = 0
        self.stamp_names = []

    def stamp(self, name):
        if not self.stamps: return
        a = self.a
        a.wait(lg=a.lg)
        a(f"s_memrealtime s[100:101]", "s_waitcnt lgkmcnt(0)", f"s_mov_b32 s{STAMP0 + self.nstamp}, s100")
        self.nstamp += 1; self.stamp_names.append(name)
        assert self.nstamp <= 16

    def maybe_stop(self, name):
        if self.stop == name:
            self.a.wait_all()
            self.a("s_branch L_finish")

    def flag_store(self, soff):
        a = self.a
        a.wait(vm=a.vm, force=True)
        a("s_mov_b64 exec, 1", f"buffer_store_dwordx2 {vTAG}, off, {sWS}, {soff} sc1", "s_mov_b64 exec, -1")

    def poll(self, voff, soff, tmp):
        a = self.a
        L, E = a.label("poll"), a.label("polled")
        a(f"s_mov_b32 {sPOLL}, 0x40000", f"{L}:",
          f"buffer_load_dwordx2 {v(tmp,2)}, {voff}, {sWS}, {soff} offen sc1")
        a.wait(vm=a.vm, force=True)
        a(f"v_cmp_ne_u64 vcc, {sTAG}, {v(tmp,2)}",
          f"s_sub_u32 {sPOLL}, {sPOLL}, 1", f"s_cbranch_scc1 {E}", f"s_cbranch_vccnz {L}", f"{E}:")

    def barrier(self):
        self.a("s_barrier")

    def prologue(self):
        a = self.a
        a("s_cmp_ge_u32 s2, 256", "s_cbranch_scc1 L_exit")
        for d, off, n in self.SRDS: a(f"s_load_dwordx2 s[{d}:{d + 1}], s[0:1], {off}")
        for d, off, n in self.SRDS: a(f"s_mov_b32 s{d + 2}, {n}", f"s_mov_b32 s{d + 3}, 0x00020000")
        a("v_lshrrev_b32 v8, 6, v0", f"v_and_b32 {vLANE}, 63, v0", f"v_readfirstlane_b32 {sW}, v8",
          f"s_and_b32 {sJ}, s2, 7", f"s_lshr_b32 {sHEAD}, s2, 3", f"s_lshr_b32 {sRB}, {sHEAD}, 3", f"s_and_b32 {sCB}, {sHEAD}, 7",
          f"s_lshl_b32 {sR0}, {sJ}, 8", f"s_lshl_b32 {T[0]}, {sRB}, 6", f"s_add_u32 {sR0}, {sR0}, {T[0]}",
          f"s_lshr_b32 {sRH}, {sW}, 1", f"s_and_b32 {sCH}, {sW}, 1",
          f"s_lshl_b32 {sCLU}, {sJ}, 2", f"s_add_u32 {sCLU}, {sCLU}, {sRB}",
          f"s_mov_b32 {sONES}, 0x3f803f80", f"s_mov_b32 {sHIMASK}, 0xffff0000")
        a(f"s_mul_i32 {T[0]}, {sCB}, 5", f"s_min_u32 {T[1]}, {sCB}, 3", f"s_add_u32 {sT0}, {T[0]}, {T[1]}",
          f"s_cmp_ge_u32 {sCB}, 3", f"s_cselect_b32 {sCNT5}, 1, 0")
        a(f"v_lshlrev_b32 {vL16}, 4, {vLANE}", f"v_mov_b32 {vZ}, 0",
          f"v_and_b32 v8, 15, {vLANE}", f"v_lshrrev_b32 v9, 5, {vLANE}", f"v_bfe_u32 v10, {vLANE}, 4, 1",
          f"v_lshlrev_b32 v8, 4, v8", f"v_lshl_add_u32 v8, v10, 3, v8",
          f"v_lshl_add_u32 {vPAT}, v9, 8, v8",
          f"v_lshl_add_u32 v63, v9, 9, v8",
          f"v_and_b32 {vFP32}, 31, {vLANE}", f"v_lshlrev_b32 {vFP32}, 3, {vFP32}",
          f"v_and_b32 {vFP8}, 7, {vLANE}", f"v_lshlrev_b32 {vFP8}, 3, {vFP8}")

    SRDS = [(4, 0, 2048 * 512 * 2), (8, 8, 512 * 1536 * 2), (36, 80, WS_SIZE), (12, 16, 512 * 512 * 2), (16, 32, 512 * 1376 * 2),
            (20, 40, 2048 * 2048 * 2), (24, 48, 2048 * 2), (28, 56, 688 * 512 * 2), (32, 64, 2048 * 512 * 2)]

    def phase_qkv(self):
        a = self.a
        XR, ACC, AF, WF = 64, 128, 176, 208
        vXa, vXb, vW0, vW1, vWrA, vWrB, vXe, vXo, vXw = "v28", "v29", "v30", "v31", "v32", "v33", "v34", "v35", "v36"
        a(f"v_lshrrev_b32 v8, 3, {vLANE}", f"v_and_b32 v9, 7, {vLANE}",
          f"v_lshlrev_b32 v10, 10, v8", f"v_lshl_add_u32 {vXa}, v9, 4, v10",
          f"s_lshl_b32 {T[0]}, {sW}, 4", f"s_add_u32 {T[0]}, {T[0]}, {sR0}", f"s_lshl_b32 {T[0]}, {T[0]}, 10",
          f"v_add_u32 {vXa}, {T[0]}, {vXa}", f"v_add_u32 {vXb}, 0x2000, {vXa}")
        a(f"v_bfe_u32 v10, {vLANE}, 4, 1", "v_lshrrev_b32 v11, 1, v9", "v_xor_b32 v11, v11, v10",
          "v_and_b32 v12, 1, v9", "v_lshl_or_b32 v11, v11, 1, v12", "v_lshlrev_b32 v11, 4, v11",
          "v_mul_u32_u24 v12, 3072, v8", "v_add_u32 v12, v12, v11",
          f"s_mul_i32 {T[0]}, {sW}, {16 * 3072}", f"s_lshl_b32 {T[1]}, {sCB}, 7", f"s_add_u32 {T[0]}, {T[0]}, {T[1]}",
          f"v_add_u32 {vW0}, {T[0]}, v12", f"v_xor_b32 {vW1}, 64, {vW0}", f"v_add_u32 {vW1}, {8 * 3072 - 1024}, {vW1}")
        a(f"v_lshrrev_b32 v10, 4, {vLANE}", f"v_bfe_u32 v11, {vLANE}, 2, 2", f"v_and_b32 v12, 3, {vLANE}",
          "v_lshl_add_u32 v13, v10, 3, v11", "v_lshlrev_b32 v13, 7, v13", "v_lshl_add_u32 v13, v12, 3, v13",
          "v_lshrrev_b32 v11, 1, v11", "v_and_b32 v14, 1, v10", "v_lshl_or_b32 v11, v14, 1, v11",
          f"v_xor_b32 v11, {sW}, v11", f"v_lshl_add_u32 {vWrA}, v11, 5, v13", f"v_add_u32 {vWrB}, {2 * 24576}, {vWrA}")
        a("v_lshrrev_b32 v11, 2, v9", "v_lshlrev_b32 v11, 10, v11", "v_and_b32 v12, 3, v9", "v_lshl_add_u32 v11, v12, 8, v11",
          "v_xor_b32 v12, v8, v9", "v_lshl_add_u32 v11, v12, 4, v11",
          f"s_lshl_b32 {T[0]}, {sW}, 14", f"s_add_u32 {T[0]}, {T[0]}, {LB}", f"v_add_u32 {vXw}, {T[0]}, v11",
          f"v_and_b32 v11, 15, {vLANE}", "v_xor_b32 v11, v11, v10", "v_lshl_add_u32 v11, v10, 4, v11", "v_lshlrev_b32 v11, 4, v11",
          f"v_add_u32 {vXe}, {LB}, v11", f"v_xor_b32 {vXo}, 64, {vXe}")
        for m in range(4):
            a(f"s_add_u32 {T[0]}, {sRB}, {m}", f"s_and_b32 {T[0]}, {T[0]}, 3",
              f"s_lshl_b32 {sROT[m]}, {T[0]}, 8", f"s_mul_i32 {sROT[4 + m]}, {T[0]}, {2 * 64 * 3072}")
        a(f"s_lshl_b32 {sU[0]}, {sW}, 11")
        a("s_waitcnt lgkmcnt(0)")
        self.stamp("start")
        xtok = []
        for t in range(8):
            for g, vx in enumerate((vXa, vXb)):
                a(f"buffer_load_dwordx4 {v(XR + (g * 8 + t) * 4, 4)}, {vx}, {sX}, {sROT[t >> 1]} offen offset:{(t & 1) * 128}")
            xtok.append(a.vtok())
        wtok = {}
        def wdma(t):
            L = []
            slot = t & 3
            for p in range(3):
                L.append(f"s_add_u32 {T[2]}, {sROT[4 + (t >> 1)]}, {(t & 1) * 64 * 3072 + p * 1024}")
                L.append(f"s_add_u32 m0, {sU[0]}, {slot * 24576 + p * 8192}")
                L.append(f"buffer_load_dwordx4 {vW0}, {sWQKV}, {T[2]} offen lds")
                L.append(f"buffer_load_dwordx4 {vW1}, {sWQKV}, {T[2]} offen offset:1024 lds")
            L.append(lambda: wtok.__setitem__(t, a.vtok()))
            return L
        for t in range(4):
            for x in wdma(t): x() if callable(x) else a(x)
        a(f"buffer_load_dwordx2 v[4:5], off, {sWS}, 0 sc1")
        etok = a.vtok()
        for t in range(8):
            a.wait(vm=xtok[t])
            for k in range(4):
                for g in range(2):
                    x = v(XR + (g * 8 + t) * 4 + k)
                    first = t == 0 and k == 0
                    a(f"v_dot2_f32_bf16 v{8 + 2 * g}, {x}, {sONES}, {'0' if first else 'v%d' % (8 + 2 * g)}",
                      f"v_dot2_f32_bf16 v{9 + 2 * g}, {x}, {x}, {'0' if first else 'v%d' % (9 + 2 * g)}")
        for mod in ("quad_perm:[1,0,3,2]", "quad_perm:[2,3,0,1]", "row_half_mirror"):
            for r in range(8, 12):
                a(f"v_add_f32_dpp v{r}, v{r}, v{r} {mod} row_mask:0xf bank_mask:0xf")
        self.ln_finish([(8, 9, 12), (10, 11, 14)], 1.0 / 512)
        n = 0
        for t in range(8):
            for g in range(2):
                b = XR + (g * 8 + t) * 4
                tp = [16 + 2 * ((n + k) % 6) for k in range(4)]; n += 4
                for k in range(4):
                    a(f"v_lshlrev_b32 v{tp[k]}, 16, v{b + k}", f"v_and_b32 v{tp[k] + 1}, {sHIMASK}, v{b + k}")
                for k in range(4):
                    a(f"v_pk_fma_f32 {v(tp[k], 2)}, {v(tp[k], 2)}, {v(12 + 2 * g, 2)}, {v(12 + 2 * g, 2)} op_sel:[0,0,1] op_sel_hi:[1,0,1]")
                for k in range(4):
                    a(f"v_cvt_pk_bf16_f32 v{b + k}, v{tp[k]}, v{tp[k] + 1}")
                a(f"ds_write_b128 {vXw}, {v(b, 4)} offset:{t * 2048 + g * 128}")
        self.stamp("ln1")
        a.wait(vm=wtok[0], lg=a.lg)
        self.barrier()
        def reads(s):
            t, sub = s >> 1, s & 1
            slot = t & 3
            wb = vWrA if slot < 2 else vWrB
            wo = (slot & 1) * 24576 + sub * 4096
            A, W = AF + 16 * (s & 1), WF + 12 * (s & 1)
            L = [f"ds_read_b64_tr_b16 {v(W + 2 * h, 2)}, {wb} offset:{wo + 512 * h}" for h in range(2)]
            L += [f"ds_read_b128 {v(A + 4 * rt, 4)}, {vXo if s & 1 else vXe} offset:{(rt * 16 + s) * 1024}" for rt in range(4)]
            L += [f"ds_read_b64_tr_b16 {v(W + 4 * p + 2 * h, 2)}, {wb} offset:{wo + 8192 * p + 512 * h}" for p in (1, 2) for h in range(2)]
            return L
        for x in reads(0): a(x)
        for s in range(16):
            t = s >> 1
            a.wait(lg=a.lg)
            fill = []
            if s & 1:
                if t < 7: a.wait(vm=wtok[t + 1])
                self.barrier()
            if s < 15: fill += reads(s + 1)
            if s & 1 and t < 4: fill += wdma(t + 4)
            if s == 15: fill += self.const_fill()
            A, W = AF + 16 * (s & 1), WF + 12 * (s & 1)
            ms = []
            for p in range(3):
                for rt in range(4):
                    d = ACC + 16 * p + 4 * rt
                    wv, av = v(W + 4 * p, 4), v(A + 4 * rt, 4)
                    c = "0" if s == 0 else None
                    ms.append(mfma16(d, wv, av, c) if p < 2 else mfma16(d, av, wv, c))
            interleave(a, ms, fill, per=2)
        self.stamp("qkv_gemm")
        a.wait(vm=etok)
        a("v_add_u32 v4, 0x9e3779b9, v4", "v_add_u32 v5, 0x7f4a7c15, v5", "v_readfirstlane_b32 s50, v4", "v_readfirstlane_b32 s51, v5")
        QS = 0.25 * 1.4426950408889634
        a(f"s_mov_b32 {T[0]}, {f2u(QS)}",
          f"s_lshl_b32 {T[1]}, {sCB}, 2", f"s_add_u32 {T[1]}, {T[1]}, {sW}",
          f"s_lshl_b32 {T[2]}, {T[1]}, 16", f"s_lshl_b32 {T[3]}, {sR0}, 5", f"s_add_u32 {T[2]}, {T[2]}, {T[3]}",
          f"s_add_u32 {T[2]}, {T[2]}, {WS_Q}",
          f"s_lshl_b32 {T[4]}, {T[1]}, 17", f"s_lshl_b32 {T[3]}, {sR0}, 6", f"s_add_u32 {T[4]}, {T[4]}, {T[3]}",
          f"s_add_u32 {T[4]}, {T[4]}, {WS_KV}", f"s_add_u32 {T[5]}, {T[4]}, 2048")
        PK = 64
        for p in (1, 2, 0):
            for rt in range(4):
                d = ACC + 16 * p + 4 * rt
                o = PK + 8 * p + 2 * rt
                if p == 0:
                    for k in range(4): a(f"v_mul_f32 v{d + k}, {T[0]}, v{d + k}")
                a(f"v_cvt_pk_bf16_f32 v{o}, v{d}, v{d + 1}", f"v_cvt_pk_bf16_f32 v{o + 1}, v{d + 2}, v{d + 3}")
                if p < 2:
                    a(f"buffer_store_dwordx2 {v(o, 2)}, v63, {sWS}, {T[2] if p == 0 else T[4]} offen offset:{(rt >> 1) * 1024 + (rt & 1) * 256} sc1")
                else:
                    a(f"buffer_store_dwordx2 {v(o, 2)}, {vPAT}, {sWS}, {T[5]} offen offset:{rt * 512} sc1")
        a(f"s_lshl_b32 {T[0]}, {sRB}, 5", f"s_add_u32 {T[0]}, {T[0]}, {T[1]}", f"s_lshl_b32 {T[0]}, {T[0]}, 7",
          f"s_lshl_b32 {T[1]}, {sJ}, 3", f"s_add_u32 {T[0]}, {T[0]}, {T[1]}", f"s_add_u32 {T[0]}, {T[0]}, {WS_F1}")
        self.attn_addresses()
        self.flag_store(T[0])
        self.stamp("qkv_pub")

    def ln_finish(self, chains, inv_n):
        a = self.a
        for s1, s2, d in chains: a(f"v_mul_f32 v{s1}, {f2u(inv_n)}, v{s1}", f"v_mul_f32 v{s2}, {f2u(inv_n)}, v{s2}")
        for s1, s2, d in chains: a(f"v_fma_f32 v{s2}, -v{s1}, v{s1}, v{s2}")
        for s1, s2, d in chains: a(f"v_max_f32 v{s2}, 0, v{s2}")
        for s1, s2, d in chains: a(f"v_add_f32 v{s2}, {f2u(1e-5)}, v{s2}")
        for s1, s2, d in chains: a(f"v_rsq_f32 v{d}, v{s2}")
        for s1, s2, d in chains: a(f"v_mul_f32_e64 v{d + 1}, -v{s1}, v{d}")

    def const_fill(self):
        L = [f"v_and_b32 v8, 27, {vLANE}", "v_cmp_eq_u32 vcc, 1, v8", f"v_mov_b32 v9, {sONES}",
             "v_cndmask_b32 v12, v3, v9, vcc", "v_mov_b32 v13, v12", "v_mov_b32 v14, v12", "v_mov_b32 v15, v12",
             f"s_lshl_b32 {T[3]}, {sW}, 12", f"s_add_u32 {T[3]}, {T[3]}, {LC + 2048}", f"v_add_u32 v9, {T[3]}, {vL16}",
             "ds_write_b128 v9, v[12:15]", "ds_write_b128 v9, v[12:15] offset:1024"]
        return L

    S, OA, NM, QF, KB, VB = 64, 112, 144, 176, 184, 192
    vIDX, vSP0, vKA, vKB2, vVB, vVI, vWD0, vXR = 208, 209, 213, 214, 215, 216, 217, 240

    def attn_addresses(self):
        a = self.a
        a(f"v_and_b32 v8, 15, {vLANE}", f"v_lshrrev_b32 v9, 4, {vLANE}", "v_lshlrev_b32 v10, 12, v8", "v_lshl_add_u32 v10, v9, 4, v10",
          f"s_lshl_b32 {T[6]}, {sR0}, 12", f"s_lshl_b32 {T[7]}, {sW}, 7", f"s_add_u32 {T[6]}, {T[6]}, {T[7]}",
          f"v_add_u32 v{self.vSP0}, {T[6]}, v10")
        for tt in range(1, 4): a(f"v_add_u32 v{self.vSP0 + tt}, {tt * 65536}, v{self.vSP0}")
        a(f"v_mov_b32 v{self.vIDX}, 0xdddddddd", f"v_mov_b32 v{self.vKA}, {vL16}", f"v_add_u32 v{self.vKB2}, {LB}, {vL16}")
        a(f"v_lshrrev_b32 v10, 5, {vLANE}", "v_lshl_add_u32 v10, v10, 4, v8", "v_lshlrev_b32 v10, 4, v10",
          f"v_and_b32 v11, 31, {vLANE}", f"v_bfe_u32 v12, {vLANE}, 2, 2",
          "v_add_u32 v12, -1, v12", "v_cmp_gt_u32 vcc, 2, v12", "v_cndmask_b32_e64 v12, 0, 4, vcc",
          "v_and_b32 v13, 27, v11", "v_cmp_eq_u32 vcc, 16, v13", "v_cndmask_b32_e64 v13, 0, 1, vcc",
          "v_add_u32 v12, v12, v13", "v_lshlrev_b32 v12, 4, v12", f"v_add_u32 v12, {LC}, v12",
          "v_cmp_gt_u32 vcc, 16, v11", f"v_cndmask_b32 v{self.vVB}, v12, v10, vcc",
          f"v_mov_b32 v13, 0x4000", f"v_cndmask_b32 v{self.vVI}, v3, v13, vcc")
        self.w128_addresses(self.vWD0)
        for t in range(8):
            a(f"s_add_u32 {T[6]}, {sJ}, {t}", f"s_and_b32 {sROT[t]}, {T[6]}, 7")
        a(f"s_lshl_b32 {sU[0]}, {sHEAD}, 17", f"s_lshl_b32 {T[6]}, {sW}, 12", f"s_add_u32 {sU[0]}, {sU[0]}, {T[6]}",
          f"s_add_u32 {sU[0]}, {sU[0]}, {WS_KV}", f"s_mov_b32 {sU[1]}, {T[6]}")

    def w128_addresses(self, r):
        a = self.a
        a(f"v_lshrrev_b32 v28, 3, {vLANE}", f"v_and_b32 v29, 7, {vLANE}", f"v_bfe_u32 v30, {vLANE}, 4, 1",
          "v_lshrrev_b32 v31, 1, v29", "v_xor_b32 v31, v31, v30", "v_and_b32 v32, 1, v29", "v_lshl_or_b32 v31, v31, 1, v32",
          "v_lshlrev_b32 v31, 4, v31", "v_lshl_add_u32 v31, v28, 10, v31",
          f"s_lshl_b32 {T[6]}, {sCB}, 7", f"v_add_u32 v{r}, {T[6]}, v31", f"v_xor_b32 v{r + 1}, 64, v{r}",
          f"v_add_u32 v{r + 1}, {7 * 1024}, v{r + 1}", f"v_add_u32 v{r + 2}, {14 * 1024}, v{r}", f"v_add_u32 v{r + 3}, {14 * 1024}, v{r + 1}")

    def w128_dma(self, r, srd, grp, lds0):
        L = [f"s_add_u32 {T[4]}, {sU[2]}, {grp * 32768}", f"s_add_u32 m0, {sU[3]}, {lds0 + grp * 4096}"]
        L += [f"buffer_load_dwordx4 v{r + i}, {srd}, {T[4]} offen offset:{1024 * i} lds" for i in range(4)]
        return L

    def stage_base(self, t): return LA + 16384 * t if t < 4 else LB + 16384 * (t - 4)

    def kv_dma(self, t):
        L = [f"s_lshl_b32 {T[5]}, {sROT[t]}, 14", f"s_add_u32 {T[5]}, {T[5]}, {sU[0]}", f"s_add_u32 m0, {sU[1]}, {self.stage_base(t)}"]
        L += [f"buffer_load_dwordx4 {vL16}, {sWS}, {T[5]} offen offset:{1024 * i} sc1 lds" for i in range(4)]
        return L

    def phase_attn(self):
        a = self.a
        S, OA, NM, QF, KB, VB = self.S, self.OA, self.NM, self.QF, self.KB, self.VB
        a(f"s_lshl_b32 {T[0]}, {sW}, 5", f"s_add_u32 {T[0]}, {T[0]}, {sHEAD}", f"s_lshl_b32 {T[0]}, {T[0]}, 7", f"s_add_u32 {T[0]}, {T[0]}, {WS_F1}",
          f"s_lshl_b32 {T[1]}, {sHEAD}, 16", f"s_lshl_b32 {T[2]}, {sJ}, 13", f"s_add_u32 {T[1]}, {T[1]}, {T[2]}",
          f"s_lshl_b32 {T[2]}, {sW}, 11", f"s_add_u32 {T[1]}, {T[1]}, {T[2]}", f"s_add_u32 {sU[4]}, {T[1]}, {WS_Q}",
          f"s_lshl_b32 {sU[2]}, {sW}, 17", f"s_lshl_b32 {sU[3]}, {sW}, 14")
        self.poll(vFP8, T[0], 8)
        self.stamp("s1")
        for q in range(2):
            a(f"buffer_load_dwordx4 {v(QF + 4 * q, 4)}, {vL16}, {sWS}, {sU[4]} offen offset:{1024 * q} sc1")
        kvtok = {}
        for t in range(2):
            for x in self.kv_dma(t): a(x)
            kvtok[t] = a.vtok()
        for r in range(OA, OA + 32): a(f"v_mov_b32 v{r}, 0")
        a.wait(vm=kvtok[0], lg=a.lg)
        self.barrier()
        def kread(kt):
            t, k = kt >> 3, kt & 7
            base = self.vKA if t < 4 else self.vKB2
            return f"ds_read_b128 {v(KB + 4 * (kt & 1), 4)}, v{base} offset:{16384 * (t & 3) + (k >> 1) * 4096 + (k & 1) * 1024}"
        def vread(kt, hi):
            k = kt & 7
            return f"ds_read_b128 {v(VB + 8 * (kt & 1) + 4 * hi, 4)}, v{self.vVB} offset:{(k >> 1) * 4096 + 2048 + (k & 1) * 1024 + 512 * hi}"
        def qk(n, c=None):
            kt, q = n >> 1, n & 1
            return f"v_mfma_f32_32x32x16_bf16 {v(S + 16 * (n % 3), 16)}, {v(KB + 4 * (kt & 1), 4)}, {v(QF + 4 * q, 4)}, {c if c else v(NM + 16 * q, 16)}"
        def pv(n, hi):
            kt, q = n >> 1, n & 1
            return f"v_smfmac_f32_32x32x32_bf16 {v(OA + 16 * q, 16)}, {v(VB + 8 * (kt & 1) + 4 * hi, 4)}, {v(S + 16 * (n % 3) + 8 * hi, 8)}, v{self.vIDX}"
        a(kread(0), kread(1), vread(0, 0), vread(0, 1))
        a.wait(lg=a.lg)
        a(qk(0, "0"), qk(1, "0"))
        for q in range(2):
            b, m = S + 16 * q, 8 + 2 * q
            a(f"v_max3_f32 v{m}, v{b}, v{b + 1}, v{b + 2}")
            for k in range(3, 15, 2): a(f"v_max3_f32 v{m}, v{m}, v{b + k}, v{b + k + 1}")
            a(f"v_max_f32 v{m}, v{m}, v{b + 15}", f"v_mov_b32 v{m + 1}, v{m}")
        for q in range(2): a(f"v_permlane32_swap_b32 v{8 + 2 * q}, v{9 + 2 * q}")
        for q in range(2):
            m = 8 + 2 * q
            a(f"v_max_f32 v{m}, v{m}, v{m + 1}", f"v_sub_f32 v{m}, 0, v{m}")
            for r in range(16): a(f"v_mov_b32 v{NM + 16 * q + r}, v{m}")
        a(qk(0), qk(1))
        self.stamp("attn_start")
        free = {n: [] for n in range(128)}
        def put(n0, items):
            n = n0
            for it in items:
                while len(free[n]) >= 2: n += 2
                free[n].append(it)
            return n
        for t in range(7):
            n = 2 * (8 * t + 5) + 1
            free[n] = [lambda t=t: a.wait(vm=kvtok[t + 1], force=True), "s_barrier"]
        for t in range(6):
            put(16 * t + 1, self.kv_dma(t + 2) + [lambda t=t: kvtok.__setitem__(t + 2, a.vtok())])
        wotok = [0]
        wo = []
        for g in range(4): wo += self.w128_dma(self.vWD0, sWO, g, LA)
        wo.append(lambda: wotok.__setitem__(0, a.vtok()))
        sp = []
        for t in range(8):
            sp.append(f"s_lshl_b32 {T[7]}, {sROT[t]}, 9")
            for sub in range(2):
                for tt in range(4):
                    sp.append(f"buffer_load_dwordx4 {ar(((2 * t + sub) * 4 + tt) * 4, 4)}, v{self.vSP0 + tt}, {sWSP}, {T[7]} offen offset:{64 * sub}")
        xr = [f"s_lshl_b32 {T[6]}, {sRH}, 15", f"s_lshl_b32 {T[3]}, {sR0}, 10", f"s_add_u32 {T[6]}, {T[6]}, {T[3]}",
              f"s_lshl_b32 {T[3]}, {sCB}, 7", f"s_add_u32 {T[6]}, {T[6]}, {T[3]}", f"s_lshl_b32 {T[3]}, {sCH}, 6", f"s_add_u32 {T[6]}, {T[6]}, {T[3]}",
              f"s_add_u32 {T[3]}, {T[6]}, 0x4000"]
        for rt in range(2):
            for nt in range(2):
                xr.append(f"buffer_load_dwordx2 {v(self.vXR + 4 * rt + 2 * nt, 2)}, v62, {sX}, {T[6] if rt == 0 else T[3]} offen offset:{32 * nt}")
        extra = {n: [] for n in range(128)}
        spread = [(n, sp[(n * len(sp)) // 112:((n + 1) * len(sp)) // 112]) for n in range(112)]
        for n, items in spread: extra[n + 4] += items
        for i, it in enumerate(wo): extra[90 + i].append(it)
        for i, it in enumerate(xr): extra[112 + i].append(it)
        a(f"v_and_b32 v8, 15, {vLANE}", f"v_lshrrev_b32 v9, 4, {vLANE}", "v_lshlrev_b32 v8, 10, v8", "v_lshl_add_u32 v62, v9, 3, v8")
        def emit(items):
            for x in items: x() if callable(x) else a(x)
        for n in range(128):
            kt, q = n >> 1, n & 1
            b = S + 16 * (n % 3)
            E = lambda lo, hi: [a(f"v_exp_f32 v{b + r}, v{b + r}") for r in range(lo, hi)]
            sl = [[], [], []]
            if q == 0:
                if kt + 2 < 64: sl[0].append(kread(kt + 2))
                if kt + 1 < 64:
                    if (kt + 1) & 7 == 0:
                        t = (kt + 1) >> 3
                        inc = f"v_add_u32 v{self.vVB}, v{self.vVB}, v{self.vVI}"
                        sl[0].append(inc)
                        if t == 4: sl[0] += [inc, inc]
                    sl[1].append(vread(kt + 1, 0)); sl[2].append(vread(kt + 1, 1))
            else:
                fr = free[n]
                sl[0] += fr[:1]; sl[1] += fr[1:]
                sl[2].append(lambda: a.wait(lg=a.lg))
            sl[q].extend(extra[n])
            E(0, 2)
            if n > 0: a(pv(n - 1, 1))
            emit(sl[0])
            E(2, 7)
            if n + 2 < 128: a(qk(n + 2))
            emit(sl[1])
            E(7, 12)
            a(pv(n, 0))
            emit(sl[2])
            E(12, 16)
        a.wait(vm=wotok[0], lg=a.lg)
        a(pv(127, 1))
        self.barrier()
        self.stamp("attn_loop")
        for q in range(2):
            o = OA + 16 * q
            a(f"v_pk_add_f32 {v(8 + 4 * q, 2)}, {v(o, 2)}, {v(o + 2, 2)}", f"v_pk_add_f32 {v(10 + 4 * q, 2)}, {v(o + 4, 2)}, {v(o + 6, 2)}")
        for q in range(2): a(f"v_pk_add_f32 {v(8 + 4 * q, 2)}, {v(8 + 4 * q, 2)}, {v(10 + 4 * q, 2)}")
        a("v_add_f32 v8, v8, v9", "v_add_f32 v12, v12, v13", "v_add_f32 v8, v8, v12", f"v_max_f32 v9, v{OA + 8}, v{OA + 24}",
          f"v_add_f32 v10, v{OA + 8}, v{OA + 24}", "v_add_f32 v8, v8, v10",
          f"s_mov_b32 {T[0]}, 0x207", f"v_cmp_class_f32_e64 vcc, v8, {T[0]}",
          f"s_mov_b64 s[60:61], vcc", f"v_cmp_le_f32 vcc, {f2u(2.0 ** 64)}, v9", "s_or_b64 vcc, vcc, s[60:61]")
        if self.force_fallback: a("s_mov_b64 vcc, -1")
        a("s_cbranch_vccnz L_attn_slow", "L_attn_done:")
        for q in range(2): a(f"v_rcp_f32 v{8 + q}, v{OA + 16 * q + 8}")
        a(f"s_lshr_b32 {T[0]}, {sHEAD}, 1", f"s_lshl_b32 {T[0]}, {T[0]}, 10", f"s_and_b32 {T[1]}, {sHEAD}, 1", f"s_lshl_b32 {T[1]}, {T[1]}, 9",
          f"s_add_u32 {T[0]}, {T[0]}, {T[1]}", f"s_lshl_b32 {T[1]}, {sJ}, 18", f"s_add_u32 {T[0]}, {T[0]}, {T[1]}",
          f"s_lshl_b32 {T[1]}, {sW}, 16", f"s_add_u32 {T[0]}, {T[0]}, {T[1]}", f"s_add_u32 {T[0]}, {T[0]}, {WS_O}", f"s_add_u32 {T[1]}, {T[0]}, 0x8000",
          f"v_and_b32 v10, 15, {vLANE}", f"v_bfe_u32 v11, {vLANE}, 4, 1", f"v_lshrrev_b32 v12, 5, {vLANE}",
          "v_lshlrev_b32 v10, 4, v10", "v_lshl_add_u32 v10, v11, 14, v10", "v_lshl_add_u32 v10, v12, 3, v10")
        for q in range(2):
            o = OA + 16 * q
            for k in range(8): a(f"v_mul_f32 v{o + k}, v{o + k}, v{8 + q}")
            for k in range(4): a(f"v_cvt_pk_bf16_f32 v{192 + 4 * q + k}, v{o + 2 * k}, v{o + 2 * k + 1}")
            for hf in range(2):
                a(f"buffer_store_dwordx2 {v(192 + 4 * q + 2 * hf, 2)}, v10, {sWS}, {T[q]} offen offset:{256 * hf} sc1")
        self.w128_read_base(28, 2)
        for nt in range(2):
            for p in range(16):
                for hf in range(2):
                    a(f"ds_read_b64_tr_b16 {v(64 + (nt * 16 + p) * 4 + 2 * hf, 2)}, v{28 + nt} offset:{LA + p * 4096 + hf * 512}")
        a(f"s_lshl_b32 {T[0]}, {sJ}, 2", f"s_add_u32 {T[0]}, {T[0]}, {sW}", f"s_lshl_b32 {T[0]}, {T[0]}, 8",
          f"s_lshl_b32 {T[1]}, {sHEAD}, 3", f"s_add_u32 {T[0]}, {T[0]}, {T[1]}", f"s_add_u32 {T[0]}, {T[0]}, {WS_F2}")
        self.flag_store(T[0])
        self.stamp("attn_pub")

    def w128_read_base(self, b, n):
        a = self.a
        a(f"v_lshrrev_b32 v64, 4, {vLANE}", f"v_bfe_u32 v65, {vLANE}, 2, 2", f"v_and_b32 v66, 3, {vLANE}",
          "v_lshl_add_u32 v67, v64, 3, v65", "v_lshlrev_b32 v67, 7, v67", "v_lshl_add_u32 v67, v66, 3, v67",
          "v_lshrrev_b32 v65, 1, v65", "v_and_b32 v64, 1, v64", "v_lshl_or_b32 v65, v64, 1, v65",
          f"s_lshl_b32 {T[3]}, {sCH}, 1", f"v_xor_b32 v65, {T[3]}, v65", f"v_lshl_add_u32 v{b}, v65, 5, v67")
        for i in range(1, n): a(f"v_xor_b32 v{b + i}, {32 * i}, v{b}")

    def attn_slow(self):
        a = self.a
        S, OA, NM, QF, KB, VB = self.S, self.OA, self.NM, self.QF, self.KB, self.VB
        a.vm_done = a.vm; a.lg_done = a.lg
        a("L_attn_slow:", "s_nop 15", f"s_lshl_b32 {T[0]}, {sHEAD}, 17", f"s_add_u32 {T[0]}, {T[0]}, {WS_KV}",
          f"v_mov_b32 v8, 0xff800000", f"v_mov_b32 v10, 0xff800000", f"s_mov_b32 {T[1]}, 0")
        def kaddr():
            a(f"s_lshr_b32 {T[2]}, {T[1]}, 1", f"s_lshl_b32 {T[2]}, {T[2]}, 12", f"s_and_b32 {T[3]}, {T[1]}, 1", f"s_lshl_b32 {T[3]}, {T[3]}, 10",
              f"s_add_u32 {T[2]}, {T[2]}, {T[3]}", f"s_add_u32 {T[2]}, {T[2]}, {T[0]}")
        a("L_slow_max:"); kaddr()
        a(f"buffer_load_dwordx4 {v(KB, 4)}, {vL16}, {sWS}, {T[2]} offen sc1"); a.wait(vm=a.vm, force=True)
        for q in range(2):
            a(f"v_mfma_f32_32x32x16_bf16 {v(S + 16 * q, 16)}, {v(KB, 4)}, {v(QF + 4 * q, 4)}, 0")
        for q in range(2):
            b, m = S + 16 * q, 8 + 2 * q
            for k in range(0, 16, 2): a(f"v_max3_f32 v{m}, v{m}, v{b + k}, v{b + k + 1}")
        a(f"s_add_u32 {T[1]}, {T[1]}, 1", f"s_cmp_lt_u32 {T[1]}, 64", "s_cbranch_scc1 L_slow_max")
        a("v_mov_b32 v9, v8", "v_mov_b32 v11, v10")
        for q in range(2): a(f"v_permlane32_swap_b32 v{8 + 2 * q}, v{9 + 2 * q}")
        for q in range(2):
            m = 8 + 2 * q
            a(f"v_max_f32 v{m}, v{m}, v{m + 1}", f"v_sub_f32 v{m}, 0, v{m}")
            for r in range(16): a(f"v_mov_b32 v{NM + 16 * q + r}, v{m}")
        for r in range(OA, OA + 32): a(f"v_mov_b32 v{r}, 0")
        a(f"v_and_b32 v8, 27, {vLANE}", "v_cmp_eq_u32 vcc, 16, v8", f"v_mov_b32 v9, {sONES}", "v_cndmask_b32 v9, v3, v9, vcc")
        for r in range(8): a(f"v_mov_b32 v{VB + r}, v9")
        a(f"v_and_b32 v8, 15, {vLANE}", f"v_lshrrev_b32 v10, 5, {vLANE}", "v_lshl_add_u32 v10, v10, 4, v8", "v_lshlrev_b32 v10, 4, v10",
          f"s_mov_b32 {T[1]}, 0", "s_mov_b32 s60, 0x0000ffff", "s_mov_b32 s61, 0x0000ffff")
        a("L_slow_pv:"); kaddr()
        a(f"buffer_load_dwordx4 {v(KB, 4)}, {vL16}, {sWS}, {T[2]} offen sc1", f"s_add_u32 {T[2]}, {T[2]}, 2048", "s_mov_b64 exec, s[60:61]",
          f"buffer_load_dwordx4 {v(VB, 4)}, v10, {sWS}, {T[2]} offen sc1",
          f"buffer_load_dwordx4 {v(VB + 4, 4)}, v10, {sWS}, {T[2]} offen offset:512 sc1", "s_mov_b64 exec, -1")
        a.wait(vm=a.vm, force=True)
        for q in range(2):
            a(f"v_mfma_f32_32x32x16_bf16 {v(S + 16 * q, 16)}, {v(KB, 4)}, {v(QF + 4 * q, 4)}, {v(NM + 16 * q, 16)}")
        for q in range(2):
            for r in range(16): a(f"v_exp_f32 v{S + 16 * q + r}, v{S + 16 * q + r}")
            for hi in range(2):
                a(f"v_smfmac_f32_32x32x32_bf16 {v(OA + 16 * q, 16)}, {v(VB + 4 * hi, 4)}, {v(S + 16 * q + 8 * hi, 8)}, v{self.vIDX}")
        a(f"s_add_u32 {T[1]}, {T[1]}, 1", f"s_cmp_lt_u32 {T[1]}, 64", "s_nop 15", "s_cbranch_scc1 L_slow_pv", "s_nop 15", "s_branch L_attn_done")

    def act_dma(self, ws_off, steps, chunks, lds0):
        a = self.a
        a(f"s_lshr_b32 {T[0]}, {sR0}, 4", f"s_add_u32 {T[0]}, {T[0]}, {sW}", f"s_mul_i32 {T[0]}, {T[0]}, {steps * 1024}",
          f"s_add_u32 {T[0]}, {T[0]}, {ws_off}", f"s_mul_i32 {T[1]}, {sW}, {steps * 1024}", f"s_add_u32 {T[1]}, {T[1]}, {lds0}")
        toks = []; p = 0
        for c in chunks:
            for k in range(c):
                if p % 4 == 0:
                    a(f"s_add_u32 {T[2]}, {T[0]}, {p * 1024}", f"s_add_u32 m0, {T[1]}, {p * 1024}")
                a(f"buffer_load_dwordx4 {vL16}, {sWS}, {T[2]} offen offset:{(p % 4) * 1024} sc1 lds")
                p += 1
            toks.append(a.vtok())
        return toks

    def cluster_flag_off(self, dst, base, own):
        a = self.a
        a(f"s_lshl_b32 {dst}, {sCLU}, 8", f"s_add_u32 {dst}, {dst}, {base}")
        if own:
            a(f"s_lshl_b32 {T[7]}, {sCB}, 2", f"s_add_u32 {T[7]}, {T[7]}, {sW}", f"s_lshl_b32 {T[7]}, {T[7]}, 3", f"s_add_u32 {dst}, {dst}, {T[7]}")

    def stats_publish(self, s, base):
        a = self.a
        a(f"v_permlane32_swap_b32 v{s}, v{s + 1}", f"v_permlane32_swap_b32 v{s + 2}, v{s + 3}",
          f"v_add_f32 v{s}, v{s}, v{s + 1}", f"v_add_f32 v{s + 2}, v{s + 2}, v{s + 3}",
          f"v_permlane16_swap_b32 v{s}, v{s + 2}", f"v_add_f32 v{s}, v{s}, v{s + 2}")
        a(f"s_lshl_b32 {T[4]}, {sCLU}, 13", f"s_add_u32 {T[4]}, {T[4]}, {base}", f"s_lshl_b32 {T[5]}, {sRH}, 7", f"s_add_u32 {T[4]}, {T[4]}, {T[5]}",
          f"s_lshl_b32 {T[5]}, {sCB}, 1", f"s_add_u32 {T[5]}, {T[5]}, {sCH}", f"s_lshl_b32 {T[5]}, {T[5]}, 9", f"s_add_u32 {T[4]}, {T[4]}, {T[5]}",
          f"buffer_store_dword v{s}, v61, {sWS}, {T[4]} offen sc1")

    def stats_load(self, base, r):
        a = self.a
        a(f"s_lshl_b32 {T[4]}, {sCLU}, 13", f"s_add_u32 {T[4]}, {T[4]}, {base}", f"s_lshl_b32 {T[5]}, {sRH}, 7", f"s_add_u32 {T[4]}, {T[4]}, {T[5]}",
          f"s_add_u32 {T[5]}, {T[4]}, 4096")
        for p in range(16):
            a(f"buffer_load_dword v{r + p}, v61, {sWS}, {T[4] if p < 8 else T[5]} offen offset:{(p % 8) * 512} sc1")
        return a.vtok()

    def stats_finish(self, r, inv_n, d):
        a = self.a
        for st in (8, 4, 2):
            for k in range(0, st, 2): a(f"v_pk_add_f32 {v(r + k, 2)}, {v(r + k, 2)}, {v(r + st + k, 2)}")
        a(f"v_add_f32 v{r}, v{r}, v{r + 1}", f"v_mov_b32 v{r + 1}, v{r}", f"v_permlane32_swap_b32 v{r}, v{r + 1}")
        self.ln_finish([(r, r + 1, d)], inv_n)
        a(f"v_mov_b32 v{d + 2}, v{d}", f"v_mov_b32 v{d + 3}, v{d + 1}",
          f"v_permlane16_swap_b32 v{d}, v{d + 2}", f"v_permlane16_swap_b32 v{d + 1}, v{d + 3}")

    def win_addresses(self):
        a = self.a
        for i in range(3):
            a(f"v_add_u32 v16, {64 * i}, {vLANE}", "v_mul_u32_u24 v17, 171, v16", "v_lshrrev_b32 v17, 11, v17",
              "v_mul_u32_u24 v18, 12, v17", "v_sub_u32 v18, v16, v18", "v_bfe_u32 v19, v17, 3, 1", "v_lshlrev_b32 v19, 1, v19",
              "v_xor_b32 v18, v18, v19", "v_mul_u32_u24 v17, 2752, v17", "v_lshl_add_u32 v17, v18, 4, v17",
              f"v_add_u32 v{56 + i}, {-1024 * i}, v17")
        a(f"v_lshrrev_b32 v16, 4, {vLANE}", f"v_bfe_u32 v17, {vLANE}, 2, 2", f"v_and_b32 v18, 3, {vLANE}",
          "v_lshl_add_u32 v19, v16, 3, v17", "v_mul_u32_u24 v19, 192, v19", "v_lshl_add_u32 v19, v18, 3, v19",
          "v_and_b32 v17, 1, v16", f"v_xor_b32 v17, {sCH}, v17", "v_lshl_add_u32 v59, v17, 5, v19", "v_add_u32 v60, 49152, v59",
          f"v_and_b32 v17, 15, {vLANE}", "v_lshlrev_b32 v17, 2, v17", "v_and_b32 v18, 1, v16", "v_lshl_add_u32 v17, v18, 6, v17",
          "v_lshrrev_b32 v16, 1, v16", "v_lshl_add_u32 v61, v16, 8, v17")

    def win_dma(self, half, g0, per_wave):
        L = [f"s_lshl_b32 {sU[5]}, {sT0}, 5", f"s_mul_i32 {sU[6]}, {sW}, {per_wave * 16 * 2752}", f"s_add_u32 {sU[5]}, {sU[5]}, {sU[6]}",
             f"s_mul_i32 {sU[6]}, {sW}, {per_wave * 3072}"]
        for k in range(per_wave):
            L += [f"s_add_u32 {sU[7]}, {sU[5]}, {half * 1376 + (g0 + k) * 16 * 2752}", f"s_add_u32 m0, {sU[6]}, {(g0 + k) * 3072}"]
            L += [f"buffer_load_dwordx4 v{56 + i}, {sWIN}, {sU[7]} offen offset:{1024 * i} lds" for i in range(3)]
        return L

    def emit(self, items):
        for x in items: x() if callable(x) else self.a(x)

    def phase_wo(self):
        a = self.a
        ACC = 192
        self.win_addresses()
        self.emit(self.win_dma(1, 24, 2))
        self.cluster_flag_off(T[3], WS_F2, False)
        a(f"s_lshl_b32 {T[4]}, {sRH}, 15", f"s_add_u32 {T[4]}, {T[4]}, {LB}", f"v_add_u32 v30, {T[4]}, {vL16}")
        self.poll(vFP32, T[3], 32)
        self.stamp("s2")
        toks = self.act_dma(WS_O, 16, [4, 4, 4, 4], LB)
        def buf(c, k, rt):
            if c & 1 == 0: return 208 + (k * 2 + rt) * 4
            return (32 + (k * 2 + rt) * 4) if k < 3 else 248 + rt * 4
        def reads(c):
            return [f"ds_read_b128 {v(buf(c, k, rt), 4)}, v30 offset:{(rt * 16 + 4 * c + k) * 1024}" for k in range(4) for rt in range(2)]
        a.wait(vm=toks[0], lg=a.lg)
        self.barrier()
        self.emit(reads(0))
        self.emit(self.win_dma(1, 0, 3))
        for c in range(4):
            fill = []
            if c < 3:
                a.wait(vm=toks[c + 1], lg=a.lg)
                self.barrier()
                fill = reads(c + 1)
            else:
                a.wait(lg=a.lg)
                self.barrier()
            ms = []
            for k in range(4):
                p = 4 * c + k
                for rt in range(2):
                    for nt in range(2):
                        ms.append(mfma16(ACC + (rt * 2 + nt) * 4, v(64 + (nt * 16 + p) * 4, 4), v(buf(c, k, rt), 4), "0" if p == 0 else None))
            interleave(a, ms, fill)
        self.stamp("wo_gemm")
        XR = self.vXR
        for i in range(4):
            for k in range(2):
                a(f"v_lshlrev_b32 v{32 + 4 * i + 2 * k}, 16, v{XR + 2 * i + k}", f"v_and_b32 v{33 + 4 * i + 2 * k}, {sHIMASK}, v{XR + 2 * i + k}")
        for i in range(4):
            for k in range(2): a(f"v_pk_add_f32 {v(ACC + 4 * i + 2 * k, 2)}, {v(ACC + 4 * i + 2 * k, 2)}, {v(32 + 4 * i + 2 * k, 2)}")
        for i in range(4):
            for k in range(2): a(f"v_cvt_pk_bf16_f32 v{vH + 2 * i + k}, v{ACC + 4 * i + 2 * k}, v{ACC + 4 * i + 2 * k + 1}")
        a(f"s_lshr_b32 {T[0]}, {sR0}, 4", f"s_lshl_b32 {T[1]}, {sRH}, 1", f"s_add_u32 {T[0]}, {T[0]}, {T[1]}", f"s_lshl_b32 {T[0]}, {T[0]}, 14",
          f"s_lshl_b32 {T[1]}, {sCB}, 1", f"s_add_u32 {T[1]}, {T[1]}, {sCH}", f"s_lshl_b32 {T[1]}, {T[1]}, 10", f"s_add_u32 {T[0]}, {T[0]}, {T[1]}",
          f"s_add_u32 {T[0]}, {T[0]}, {WS_H}", f"s_add_u32 {T[1]}, {T[0]}, 0x4000")
        for rt in range(2):
            for nt in range(2):
                a(f"buffer_store_dwordx2 {v(vH + 4 * rt + 2 * nt, 2)}, {vPAT}, {sWS}, {T[rt]} offen offset:{512 * nt} sc1")
        for k in range(4):
            for rt in range(2):
                h = f"v{vH + 4 * rt + k}"
                a(f"v_dot2_f32_bf16 v{32 + 2 * rt}, {h}, {sONES}, {'0' if k == 0 else 'v%d' % (32 + 2 * rt)}",
                  f"v_dot2_f32_bf16 v{33 + 2 * rt}, {h}, {h}, {'0' if k == 0 else 'v%d' % (33 + 2 * rt)}")
        self.stats_publish(32, WS_ST3)
        self.cluster_flag_off(T[0], WS_F3, True)
        self.flag_store(T[0])
        self.stamp("wo_pub")

    HF, ACC2, ACC1, WB, CS = 64, 192, 216, 28, 240

    def win_gemm(self, acc, steps_wait, read_h):
        a = self.a
        HF, WB, CS = self.HF, self.WB, self.CS
        def reads(s):
            L = []
            base = "v59" if s < 8 else "v60"
            for m in range(3):
                for hf in range(2):
                    L.append(f"ds_read_b64_tr_b16 {v(WB + 12 * (s & 1) + 4 * m + 2 * hf, 2)}, {base} offset:{(s & 7) * 6144 + hf * 768 + m * 64}")
                if m == 0 and read_h:
                    L += [f"ds_read_b128 {v(HF + (rt * 16 + s) * 4, 4)}, v55 offset:{(rt * 16 + s) * 1024}" for rt in range(2)]
            return L
        steps_wait[0]()
        self.emit(reads(0))
        for s in range(16):
            a.wait(lg=a.lg)
            if s + 1 in steps_wait: steps_wait[s + 1]()
            fill = reads(s + 1) if s < 15 else []
            ms = []
            for m in range(3):
                wv = v(WB + 12 * (s & 1) + 4 * m, 4)
                for rt in range(2):
                    ms.append(mfma16(acc + (rt * 3 + m) * 4, wv, v(HF + (rt * 16 + s) * 4, 4), "0" if s == 0 else None))
                ms.append(mfma16(CS + 4 * m, wv, "v[252:255]", "0" if s == 0 else None))
            interleave(a, ms, fill, per=2)

    def gelu_block(self, acc, st, tiles):
        a = self.a
        CS = self.CS
        K1 = -2.0 * 1.4426950408889634 * 0.7978845608028654
        K2 = K1 * 0.044715
        a(f"s_mov_b32 s60, {f2u(K2)}", f"s_mov_b32 s61, {f2u(K2)}", f"s_mov_b32 s62, {f2u(K1)}", f"s_mov_b32 s63, {f2u(K1)}",
          f"v_mov_b32 v52, {f2u(K1)}", f"v_mov_b32 v53, {f2u(K1)}")
        for rt, m in tiles:
            x = acc + (rt * 3 + m) * 4
            pr = [x, x + 2]; tm = [28, 30]
            for k in range(2):
                a(f"v_pk_mul_f32 {v(tm[k], 2)}, {v(CS + 4 * m + 2 * k, 2)}, {v(st + 2 * rt, 2)} op_sel:[0,1] op_sel_hi:[1,1]")
            for k in range(2):
                a(f"v_pk_fma_f32 {v(pr[k], 2)}, {v(pr[k], 2)}, {v(st + 2 * rt, 2)}, {v(tm[k], 2)} op_sel:[0,0,0] op_sel_hi:[1,0,1]")
            for k in range(2): a(f"v_pk_mul_f32 {v(tm[k], 2)}, {v(pr[k], 2)}, {v(pr[k], 2)}")
            for k in range(2): a(f"v_pk_fma_f32 {v(tm[k], 2)}, {v(tm[k], 2)}, s[60:61], v[52:53]")
            for k in range(2): a(f"v_pk_mul_f32 {v(tm[k], 2)}, {v(tm[k], 2)}, {v(pr[k], 2)}")
            for k in range(4): a(f"v_exp_f32 v{28 + k}, v{28 + k}")
            for k in range(2): a(f"v_pk_add_f32 {v(tm[k], 2)}, {v(tm[k], 2)}, v[32:33]")
            for k in range(4): a(f"v_rcp_f32 v{28 + k}, v{28 + k}")
            for k in range(2): a(f"v_pk_mul_f32 {v(pr[k], 2)}, {v(pr[k], 2)}, {v(tm[k], 2)}")

    def phase_win(self):
        a = self.a
        HF, ACC2, ACC1, CS = self.HF, self.ACC2, self.ACC1, self.CS
        self.emit(self.win_dma(1, 12, 3))
        self.cluster_flag_off(T[3], WS_F3, False)
        a(f"s_lshl_b32 {T[4]}, {sRH}, 15", f"s_add_u32 {T[4]}, {T[4]}, {LB}", f"v_add_u32 v55, {T[4]}, {vL16}")
        for r in range(252, 256): a(f"v_mov_b32 v{r}, {sONES}")
        self.poll(vFP32, T[3], 32)
        self.stamp("s3")
        toks = self.act_dma(WS_H, 16, [4, 4, 4, 4], LB)
        def w(c):
            def f():
                a.wait(vm=toks[c]); self.barrier()
            return f
        self.win_gemm(ACC2, {0: w(0), 4: w(1), 8: w(2), 12: w(3)}, True)
        self.barrier()
        self.stamp("z2_gemm")
        w1a = self.win_dma(0, 0, 3)
        stok = self.stats_load(WS_ST3, 36)
        self.emit(w1a)
        w1tok = [a.vtok()]
        a.wait(vm=stok)
        self.stats_finish(36, 1.0 / 512, 34)
        a("v_mov_b32 v32, 1.0", "v_mov_b32 v33, 1.0")
        T5 = [(0, 0), (1, 0), (0, 1), (1, 1)]
        self.gelu_block(ACC2, 34, T5 + [(0, 2), (1, 2)])
        for rt in range(2):
            x = ACC2 + rt * 12
            a(f"v_pk_add_f32 {v(40 + 4 * rt, 2)}, {v(x, 2)}, {v(x + 2, 2)}", f"v_pk_mul_f32 {v(42 + 4 * rt, 2)}, {v(x, 2)}, {v(x, 2)}")
            a(f"v_pk_fma_f32 {v(42 + 4 * rt, 2)}, {v(x + 2, 2)}, {v(x + 2, 2)}, {v(42 + 4 * rt, 2)}")
            for k in (4, 6):
                a(f"v_pk_add_f32 {v(40 + 4 * rt, 2)}, {v(40 + 4 * rt, 2)}, {v(x + k, 2)}",
                  f"v_pk_fma_f32 {v(42 + 4 * rt, 2)}, {v(x + k, 2)}, {v(x + k, 2)}, {v(42 + 4 * rt, 2)}")
        a(f"s_and_b32 {sU[8]}, {sCNT5}, {sCH}", f"s_cmp_lg_u32 {sU[8]}, 0", "s_cbranch_scc1 L_skip_st")
        for rt in range(2):
            x = ACC2 + rt * 12
            for k in (8, 10):
                a(f"v_pk_add_f32 {v(40 + 4 * rt, 2)}, {v(40 + 4 * rt, 2)}, {v(x + k, 2)}",
                  f"v_pk_fma_f32 {v(42 + 4 * rt, 2)}, {v(x + k, 2)}, {v(x + k, 2)}, {v(42 + 4 * rt, 2)}")
        a("L_skip_st:", "v_add_f32 v48, v40, v41", "v_add_f32 v49, v42, v43", "v_add_f32 v50, v44, v45", "v_add_f32 v51, v46, v47")
        self.stats_publish(48, WS_ST4)
        self.cluster_flag_off(T[0], WS_F4, True)
        self.flag_store(T[0])
        self.stamp("z2_pub")
        self.emit(self.win_dma(0, 12, 3)); w1tok.append(a.vtok())
        self.emit(self.win_dma(0, 24, 2)); w1tok.append(a.vtok())
        a("v_mov_b32 v16, v34", "v_mov_b32 v17, v35", "v_mov_b32 v18, v36", "v_mov_b32 v19, v37")
        def w1(c):
            def f():
                a.wait(vm=w1tok[c]); self.barrier()
            return f
        self.win_gemm(ACC1, {0: w1(0), 6: w1(1), 12: w1(2)}, False)
        self.barrier()
        self.stamp("z1_gemm")
        self.cluster_flag_off(T[3], WS_F4, False)
        a(f"v_and_b32 v20, 15, {vLANE}", f"v_lshrrev_b32 v21, 4, {vLANE}", "v_lshlrev_b32 v21, 2, v21", "v_sub_u32 v20, v20, v21",
          "v_mov_b32 v21, 0x3f80", "v_mov_b32 v22, 0x3f800000")
        for k, (r, c) in enumerate(((24, 21), (24, 22), (25, 21), (25, 22))):
            a(f"v_cmp_eq_u32 vcc, {k}, v20")
            if k & 1 == 0: a(f"v_cndmask_b32 v{r}, v3, v{c}, vcc")
            else: a(f"v_cndmask_b32 v{r}, v{r}, v{c}, vcc")
        self.poll(vFP32, T[3], 36)
        self.stamp("s4")
        stok = self.stats_load(WS_ST4, 36)
        a.wait(vm=stok)
        self.stats_finish(36, 1.0 / 688, 20)
        a(f"s_add_u32 {T[0]}, {sT0}, {sCH}", f"s_lshl_b32 {T[0]}, {T[0]}, 16", f"s_lshl_b32 {T[1]}, {sR0}, 5", f"s_add_u32 {T[0]}, {T[0]}, {T[1]}",
          f"s_lshl_b32 {T[1]}, {sRH}, 10", f"s_add_u32 {T[0]}, {T[0]}, {T[1]}", f"s_add_u32 {sU[9]}, {T[0]}, {WS_Z}",
          f"s_add_u32 {sU[10]}, {sU[9]}, 0x20000", f"s_add_u32 {sU[11]}, {sU[9]}, 0x40000")
        def znorm(m):
            for rt in range(2):
                x = ACC2 + (rt * 3 + m) * 4
                for k in range(2):
                    a(f"v_pk_fma_f32 {v(x + 2 * k, 2)}, {v(x + 2 * k, 2)}, {v(20 + 2 * rt, 2)}, {v(20 + 2 * rt, 2)} op_sel:[0,0,1] op_sel_hi:[1,0,1]")
            for rt in range(2):
                x = ACC2 + (rt * 3 + m) * 4
                for k in range(2): a(f"v_cvt_pk_bf16_f32 v{x + k}, v{x + 2 * k}, v{x + 2 * k + 1}")
            for rt in range(2):
                x = ACC2 + (rt * 3 + m) * 4
                a(f"v_mfma_f32_16x16x16_bf16 {v(28 + 8 * (m & 1) + 4 * rt, 4)}, {v(x, 2)}, v[24:25], 0")
        def zstore(m):
            for rt in range(2):
                d = 28 + 8 * (m & 1) + 4 * rt
                a(f"v_cvt_pk_bf16_f32 v{d}, v{d}, v{d + 1}", f"v_cvt_pk_bf16_f32 v{d + 1}, v{d + 2}, v{d + 3}",
                  f"buffer_store_dwordx2 {v(d, 2)}, {vPAT}, {sWS}, {sU[9 + m]} offen offset:{512 * rt} sc1")
        znorm(0); znorm(1); zstore(0)
        a(f"s_cmp_lg_u32 {sU[8]}, 0", "s_cbranch_scc1 L_skip_z")
        znorm(2); a("s_nop 7"); zstore(2)
        a("L_skip_z:", "s_nop 7")
        zstore(1)
        a(f"s_lshl_b32 {T[0]}, {sRB}, 3", f"s_add_u32 {T[0]}, {T[0]}, {sCB}", f"s_lshl_b32 {T[0]}, {T[0]}, 8",
          f"s_lshl_b32 {T[1]}, {sJ}, 2", f"s_add_u32 {T[1]}, {T[1]}, {sW}", f"s_lshl_b32 {T[1]}, {T[1]}, 3",
          f"s_add_u32 {T[0]}, {T[0]}, {T[1]}", f"s_add_u32 {T[0]}, {T[0]}, {WS_F5}")
        self.flag_store(T[0])
        self.stamp("z2n_pub")
        self.w128_addresses(self.vWDo)
        a(f"s_mul_i32 {sU[2]}, {sW}, {6 * 32768}", f"s_mul_i32 {sU[3]}, {sW}, {6 * 4096}")
        for g in range(6):
            if g == 4: a(f"s_cmp_eq_u32 {sW}, 3", "s_cbranch_scc1 L_skip_wout")
            self.emit(self.w128_dma(self.vWDo, sWOUT, g, LA))
        a("L_skip_wout:")
        a(f"s_lshl_b32 {T[0]}, {sRH}, 5", f"s_add_u32 {T[0]}, {T[0]}, {sR0}", f"s_lshl_b32 {T[0]}, {T[0]}, 1",
          f"v_and_b32 v20, 15, {vLANE}", "v_lshlrev_b32 v20, 1, v20",
          f"buffer_load_ushort v62, v20, {sBSP}, {T[0]} offen", f"buffer_load_ushort v63, v20, {sBSP}, {T[0]} offen offset:32")
        a("v_mov_b32 v34, v16", "v_mov_b32 v35, v17", "v_mov_b32 v36, v18", "v_mov_b32 v37, v19", "v_mov_b32 v32, 1.0", "v_mov_b32 v33, 1.0")
        self.gelu_block(ACC1, 34, T5 + [(0, 2), (1, 2)])
        for i in range(6):
            for k in range(2): a(f"v_cvt_pk_bf16_f32 v{vZ1 + 2 * i + k}, v{ACC1 + 4 * i + 2 * k}, v{ACC1 + 4 * i + 2 * k + 1}")
        self.stamp("z1_epi")

    vWDo = 56

    def phase_wsp(self):
        a = self.a
        BUF, ACC, RED = 64, 192, 28
        a(f"s_lshl_b32 {T[3]}, {sW}, 3", f"s_add_u32 {T[3]}, {T[3]}, {sCB}", f"s_lshl_b32 {T[3]}, {T[3]}, 8", f"s_add_u32 {T[3]}, {T[3]}, {WS_F5}",
          f"s_lshl_b32 {T[0]}, {sT0}, 16", f"s_lshl_b32 {T[1]}, {sW}, 11", f"s_add_u32 {T[0]}, {T[0]}, {T[1]}", f"s_add_u32 {T[0]}, {T[0]}, {WS_Z}")
        for t in range(8):
            a(f"s_lshl_b32 {T[1]}, {sROT[t]}, 13", f"s_add_u32 {sROT[t]}, {T[1]}, {T[0]}")
        a(f"v_add_u32 v53, 0x10000, {vL16}",
          f"s_lshl_b32 {T[1]}, {sW}, 13", f"s_add_u32 {T[1]}, {T[1]}, {LB}", f"v_add_u32 v54, {T[1]}, {vL16}",
          f"s_lshl_b32 {T[1]}, {sCH}, 12", f"s_lshl_b32 {T[2]}, {sRH}, 11", f"s_add_u32 {T[1]}, {T[1]}, {T[2]}", f"s_add_u32 {T[1]}, {T[1]}, {LB}",
          f"v_add_u32 v55, {T[1]}, {vL16}")
        a(f"s_lshr_b32 {T[1]}, {sR0}, 4", f"s_lshl_b32 {T[2]}, {sRH}, 1", f"s_add_u32 {T[1]}, {T[1]}, {T[2]}", f"s_mul_i32 {T[1]}, {T[1]}, {22 * 1024}",
          f"s_add_u32 {T[2]}, {sT0}, {sCH}", f"s_lshl_b32 {T[2]}, {T[2]}, 9", f"s_add_u32 {T[1]}, {T[1]}, {T[2]}", f"s_add_u32 {sU[9]}, {T[1]}, {WS_G}",
          f"s_add_u32 {sU[10]}, {sU[9]}, {22 * 1024}")
        self.poll(vFP32, T[3], 28)
        self.stamp("s5")
        a("v_lshlrev_b32 v62, 16, v62", "v_lshlrev_b32 v63, 16, v63")
        tok = {}
        def loads(p, u):
            t, sub = u >> 1, u & 1
            L = []
            if sub == 0: L.append(f"s_add_u32 {T[0]}, {sROT[t]}, {p * 0x20000}")
            for f in range(2):
                L.append(f"buffer_load_dwordx4 {v(BUF + (2 * u + f) * 4, 4)}, {vL16 if f == 0 else 'v53'}, {sWS}, {T[0]} offen offset:{1024 * sub} sc1")
            L.append(lambda: tok.__setitem__((p, u), a.vtok()))
            return L
        for u in range(16): self.emit(loads(0, u))
        def red_write(p):
            A = ACC + 32 * (p & 1)
            return [f"ds_write_b128 v54, {v(A + 4 * i, 4)} offset:{(p & 1) * 32768 + i * 1024}" for i in range(8)]
        def red_read(p):
            return [f"ds_read_b128 {v(RED + (sw * 2 + rt) * 4, 4)}, v55 offset:{(p & 1) * 32768 + sw * 8192 + rt * 1024}" for sw in range(3) for rt in range(2)]
        def red_read2(p):
            return [f"ds_read_b128 {v(ACC + 32 * (p & 1) + rt * 4, 4)}, v55 offset:{(p & 1) * 32768 + 3 * 8192 + rt * 1024}" for rt in range(2)]
        def gate(p):
            L = []
            A = ACC + 32 * (p & 1)
            for rt in range(2):
                for k in range(2):
                    o = 4 * rt + 2 * k
                    L += [f"v_pk_add_f32 {v(A + o, 2)}, {v(A + o, 2)}, {v(RED + o, 2)}",
                          f"v_pk_add_f32 {v(RED + 8 + o, 2)}, {v(RED + 8 + o, 2)}, {v(RED + 16 + o, 2)}"]
            for rt in range(2):
                for k in range(2):
                    o = 4 * rt + 2 * k
                    z = vZ1 + (rt * 3 + p) * 2 + k
                    L += [f"v_pk_add_f32 {v(A + o, 2)}, {v(A + o, 2)}, {v(RED + 8 + o, 2)}",
                          f"v_lshlrev_b32 v{RED + o}, 16, v{z}", f"v_and_b32 v{RED + o + 1}, {sHIMASK}, v{z}",
                          f"v_add_f32 v{A + o}, v{A + o}, v{62 + rt}", f"v_add_f32 v{A + o + 1}, v{A + o + 1}, v{62 + rt}",
                          f"v_pk_mul_f32 {v(A + o, 2)}, {v(A + o, 2)}, {v(RED + o, 2)}"]
            for rt in range(2):
                L += [f"v_cvt_pk_bf16_f32 v{RED + 2 * rt + k}, v{A + 4 * rt + 2 * k}, v{A + 4 * rt + 2 * k + 1}" for k in range(2)]
            return L
        def gstore(p):
            L = []
            if p == 2:
                sk, zr = a.label("gskip"), a.label("gstore")
                L.append(lambda: a(f"s_cmp_eq_u32 {sU[8]}, 0", f"s_cbranch_scc1 {zr}", f"s_cmp_eq_u32 {sCB}, 7", f"s_cbranch_scc0 {sk}",
                                   *[f"v_mov_b32 v{RED + k}, 0" for k in range(4)], f"{zr}:"))
            L += [f"buffer_store_dwordx2 {v(RED + 2 * rt, 2)}, {vPAT}, {sWS}, {sU[9 + rt]} offen offset:{1024 * p} sc1" for rt in range(2)]
            if p == 2: L.append(lambda: a(f"{sk}:"))
            return L
        for p in range(3):
            A = ACC + 32 * (p & 1)
            for u in range(16):
                a.wait(vm=tok[(p, u)])
                ms = []
                for f in range(2):
                    for tt in range(4):
                        ms.append(mfma16(A + (f * 4 + tt) * 4, v(BUF + (2 * u + f) * 4, 4), ar((u * 4 + tt) * 4, 4), "0" if u == 0 else None))
                fill = []
                if p > 0:
                    q = p - 1
                    if u in (1, 2): fill += red_write(q)[(u - 1) * 4:(u - 1) * 4 + 4]
                    if u == 4: fill += [lambda: a.wait(lg=a.lg), "s_barrier"]
                    if u == 5: fill += red_read(q) + red_read2(q)
                    if u == 7: fill += [lambda: a.wait(lg=a.lg)]
                    if 7 <= u <= 12:
                        g = gate(q); fill += g[(u - 7) * 6:(u - 7) * 6 + 6]
                    if u == 13: fill += gstore(q)
                ld = loads(p + 1, u) if p < 2 else []
                interleave(a, ms[:6], fill, per=2, start=1)
                a(ms[6]); self.emit(ld[:-2])
                a(ms[7]); self.emit(ld[-2:])
        self.stamp("wsp_gemm")
        self.emit(red_write(2))
        a.wait(lg=a.lg)
        self.barrier()
        self.emit(red_read(2) + red_read2(2))
        self.w128_read_base(56, 2)
        a("v_add_u32 v58, 0x10000, v56", "v_add_u32 v59, 0x10000, v57")
        a.wait(lg=a.lg)
        self.emit(gate(2))
        self.emit(gstore(2))
        for nt in range(2):
            for p in range(22):
                for hf in range(2):
                    base = 56 + nt + (2 if p >= 16 else 0)
                    a(f"ds_read_b64_tr_b16 {ar((nt * 22 + p) * 4 + 2 * hf, 2)}, v{base} offset:{LA + (p & 15) * 4096 + hf * 512}")
        self.cluster_flag_off(T[0], WS_F6, True)
        self.flag_store(T[0])
        self.stamp("g_pub")

    def phase_wout(self):
        a = self.a
        ACC = 192
        self.cluster_flag_off(T[3], WS_F6, False)
        a(f"s_mul_i32 {T[4]}, {sRH}, {2 * 22 * 1024}", f"v_add_u32 v30, {T[4]}, {vL16}")
        a.wait(lg=a.lg)
        self.barrier()
        self.poll(vFP32, T[3], 32)
        self.stamp("s6")
        chunks = [6, 6, 5, 5]
        toks = self.act_dma(WS_G, 22, chunks, LA)
        BUF = [64, 112]
        start = [0, 6, 12, 17]
        def reads(c):
            return [f"ds_read_b128 {v(BUF[c & 1] + (k * 2 + rt) * 4, 4)}, v30 offset:{(rt * 22 + start[c] + k) * 1024}" for k in range(chunks[c]) for rt in range(2)]
        a(f"v_and_b32 v32, 15, {vLANE}", f"v_lshrrev_b32 v33, 4, {vLANE}", "v_lshlrev_b32 v32, 10, v32",
          "v_and_b32 v34, 1, v33", "v_lshl_add_u32 v32, v34, 5, v32", "v_lshrrev_b32 v33, 1, v33", "v_lshl_add_u32 v32, v33, 4, v32",
          f"s_lshl_b32 {T[3]}, {sRH}, 5", f"s_add_u32 {T[3]}, {T[3]}, {sR0}", f"s_lshl_b32 {T[3]}, {T[3]}, 10",
          f"s_lshl_b32 {T[4]}, {sCB}, 7", f"s_add_u32 {T[3]}, {T[3]}, {T[4]}", f"s_lshl_b32 {T[4]}, {sCH}, 6", f"s_add_u32 {sU[9]}, {T[3]}, {T[4]}",
          f"s_add_u32 {sU[10]}, {sU[9]}, 0x4000")
        for i in range(8):
            a(f"v_lshlrev_b32 v{208 + 2 * i}, 16, v{vH + i}", f"v_and_b32 v{209 + 2 * i}, {sHIMASK}, v{vH + i}")
        a.wait(vm=toks[0])
        self.barrier()
        self.emit(reads(0))
        for c in range(4):
            fill = []
            if c < 3:
                a.wait(vm=toks[c + 1], lg=a.lg)
                self.barrier()
                fill = reads(c + 1)
            else:
                a.wait(lg=a.lg)
            ms = []
            for k in range(chunks[c]):
                p = start[c] + k
                for rt in range(2):
                    for nt in range(2):
                        d = ACC + (rt * 2 + nt) * 4
                        ms.append(mfma16(d, ar((nt * 22 + p) * 4, 4), v(BUF[c & 1] + (k * 2 + rt) * 4, 4), v(208 + (rt * 2 + nt) * 4, 4) if p == 0 else None))
            interleave(a, ms, fill)
        self.stamp("wout_gemm")
        for rt in range(2):
            for nt in range(2):
                d = ACC + (rt * 2 + nt) * 4
                for k in range(2): a(f"v_cvt_pk_bf16_f32 v{64 + 4 * rt + 2 * nt + k}, v{d + 2 * k}, v{d + 2 * k + 1}")
        for rt in range(2):
            b = 64 + 4 * rt
            a(f"v_permlane16_swap_b32 v{b}, v{b + 2}", f"v_permlane16_swap_b32 v{b + 1}, v{b + 3}")
            a(f"buffer_store_dwordx4 {v(b, 4)}, v32, {sOUT}, {sU[9 + rt]} offen")

    def epilogue(self):
        a = self.a
        a("L_finish:")
        a("s_cmp_eq_u32 s2, 0", f"s_cselect_b32 {T[0]}, {sW}, 1", f"s_cmp_eq_u32 {T[0]}, 0", "s_cbranch_scc0 L_noepoch",
          "s_mov_b64 exec, 1", f"buffer_store_dwordx2 {vTAG}, off, {sWS}, 0 sc1", "s_mov_b64 exec, -1", "L_noepoch:")
        if self.stamps:
            a("s_waitcnt vmcnt(0)")
            self.stamp("end")
            a(f"s_lshl_b32 {T[0]}, s2, 2", f"s_add_u32 {T[0]}, {T[0]}, {sW}", f"s_lshl_b32 {T[0]}, {T[0]}, 7", f"s_add_u32 {T[0]}, {T[0]}, {WS_DBG}",
              "s_mov_b64 exec, 1")
            for i in range(self.nstamp):
                a(f"v_mov_b32 v8, s{STAMP0 + i}", f"buffer_store_dword v8, off, {sWS}, {T[0]} offset:{4 * i}")
        a("s_waitcnt vmcnt(0)", "L_exit:", "s_endpgm")

    def build(self):
        self.prologue()
        self.phase_qkv(); self.maybe_stop("qkv")
        self.phase_attn(); self.maybe_stop("attn")
        self.phase_wo(); self.maybe_stop("wo")
        self.phase_win(); self.maybe_stop("win")
        self.phase_wsp(); self.maybe_stop("wsp")
        self.phase_wout()
        self.epilogue()
        self.attn_slow()
        body = self.a.finish()
        ref = open(f"cdna_kernels/{NAME}.s.ref").read().split("\n")
        head = [l for l in ref if l.startswith(";") and "@launch" not in l and "Override" not in l and "grid=ceil" not in l]
        head = head[:head.index([l for l in head if "d_ws" in l][0]) + 1]
        return ("\n".join(head) + f"\n; @launch grid=(256,1,1) block=(256,1,1) lds={LDS_BYTES}\n"
                + '.amdgcn_target "amdgcn-amd-amdhsa--gfx950"\n.text\n'
                + f".globl {NAME}_kernel\n.p2align 8\n.type {NAME}_kernel,@function\n{NAME}_kernel:\n" + body
                + f""".section .rodata,"a"
.p2align 6
.amdhsa_kernel {NAME}_kernel
  .amdhsa_next_free_vgpr 512
  .amdhsa_next_free_sgpr 102
  .amdhsa_accum_offset 256
  .amdhsa_group_segment_fixed_size 0
  .amdhsa_kernarg_size 88
  .amdhsa_user_sgpr_count 2
  .amdhsa_user_sgpr_kernarg_segment_ptr 1
  .amdhsa_system_sgpr_workgroup_id_x 1
  .amdhsa_float_denorm_mode_32 3
.end_amdhsa_kernel
""")

if __name__ == "__main__":
    import argparse
    ap = argparse.ArgumentParser()
    ap.add_argument("-o", default=f"cdna_kernels/{NAME}.s")
    ap.add_argument("--stop"); ap.add_argument("--stamps", action="store_true"); ap.add_argument("--slow", action="store_true")
    o = ap.parse_args()
    g = Gen(o.stop, o.stamps, o.slow)
    s = g.build()
    open(o.o, "w").write(s)
    print(f"wrote {o.o}: {len(s)} bytes, {len(g.a.items)} items, {g.a.nops_added} nops; stamps: {g.stamp_names}")
```

```python
import sys, struct
from asmdsl import Asm

NAME = "sequential_preLN__softmax_full_mha__mixer_gmlp__prompt"

WS_EPOCH = 0
WS_F1, WS_F2, WS_F3, WS_F4, WS_F5, WS_F6 = 0x1000, 0x5000, 0x7000, 0x9000, 0xB000, 0xD000
WS_ST3, WS_ST4 = 0x10000, 0x50000
WS_Q, WS_KV, WS_O, WS_H, WS_Z, WS_G = 0x100000, 0x300000, 0x700000, 0x900000, 0xB00000, 0xE00000
WS_DBG = 0x1100000
WS_SIZE = 0x1400000

LA, LC, LB = 0, 65536, 98304
LDS_BYTES = 163840

sX, sWQKV, sWO, sWIN, sWSP, sBSP, sWOUT, sOUT, sWS = ("s[%d:%d]" % (b, b + 3) for b in range(4, 40, 4))
sJ, sRB, sCB, sHEAD, sW, sR0, sRH, sCH, sT0, sCNT5 = ("s%d" % i for i in range(40, 50))
sTAG = "s[50:51]"
sONES, sHIMASK, sCLU, sPOLL = "s52", "s53", "s54", "s55"
T = ["s%d" % i for i in range(56, 64)]
sROT = ["s%d" % i for i in range(64, 72)]
sU = ["s%d" % i for i in range(72, 84)]
STAMP0 = 84

vLANE, vL16, vPAT, vZ = "v0", "v1", "v2", "v3"
vTAG = "v[4:5]"
vFP32, vFP8 = "v6", "v7"
vH = 8
vZ1 = 16

def v(a, n=1): return f"v{a}" if n == 1 else f"v[{a}:{a + n - 1}]"
def ar(a, n=1): return f"a{a}" if n == 1 else f"a[{a}:{a + n - 1}]"
def f2u(x): return "0x%08x" % struct.unpack("<I", struct.pack("<f", x))[0]

def mfma16(d, a, b, c=None):
    return f"v_mfma_f32_16x16x32_bf16 {v(d,4)}, {a}, {b}, {c if c is not None else v(d,4)}"

def interleave(a, mains, fillers, per=1, start=0):
    k = 0
    for i, m in enumerate(mains):
        m() if callable(m) else a(m)
        if i >= start:
            for _ in range(per):
                if k < len(fillers):
                    f = fillers[k]; k += 1
                    f() if callable(f) else a(f)
    while k < len(fillers):
        f = fillers[k]; k += 1
        f() if callable(f) else a(f)

class Gen:
    def __init__(self, stop=None, stamps=False, force_fallback=False):
        self.a = Asm()
        self.stop = stop
        self.stamps = stamps
        self.force_fallback = force_fallback
        self.nstamp = 0
        self.stamp_names = []

    def stamp(self, name):
        if not self.stamps: return
        a = self.a
        a.wait(lg=a.lg)
        a(f"s_memrealtime s[100:101]", "s_waitcnt lgkmcnt(0)")
        n = self.nstamp
        if n == 0:
            a(f"s_mov_b32 s{STAMP0}, s100")
        else:
            r = STAMP0 + 1 + (n - 1) // 2
            a(f"s_sub_u32 s100, s100, s{STAMP0}")
            a(f"s_mov_b32 s{r}, s100" if n & 1 else f"s_pack_ll_b32_b16 s{r}, s{r}, s100")
        self.nstamp += 1; self.stamp_names.append(name)
        assert self.nstamp <= 31

    def maybe_stop(self, name):
        if self.stop == name:
            self.a.wait_all()
            self.a("s_branch L_finish")

    def flag_store(self, soff):
        a = self.a
        a.wait(vm=a.vm, force=True)
        a("s_mov_b64 exec, 1", f"buffer_store_dwordx2 {vTAG}, off, {sWS}, {soff} sc1", "s_mov_b64 exec, -1")

    def poll(self, voff, soff, tmp):
        a = self.a
        L, E = a.label("poll"), a.label("polled")
        a(f"s_mov_b32 {sPOLL}, 0x40000", f"{L}:",
          f"buffer_load_dwordx2 {v(tmp,2)}, {voff}, {sWS}, {soff} offen sc1")
        a.wait(vm=a.vm, force=True)
        a(f"v_cmp_ne_u64 vcc, {sTAG}, {v(tmp,2)}",
          f"s_sub_u32 {sPOLL}, {sPOLL}, 1", f"s_cbranch_scc1 {E}", f"s_cbranch_vccnz {L}", f"{E}:")

    def barrier(self):
        self.a("s_barrier")

    def prologue(self):
        a = self.a
        a("s_cmp_ge_u32 s2, 256", "s_cbranch_scc1 L_exit")
        for d, off, n in self.SRDS: a(f"s_load_dwordx2 s[{d}:{d + 1}], s[0:1], {off}")
        for d, off, n in self.SRDS: a(f"s_mov_b32 s{d + 2}, {n}", f"s_mov_b32 s{d + 3}, 0x00020000")
        a("v_lshrrev_b32 v8, 6, v0", f"v_and_b32 {vLANE}, 63, v0", f"v_readfirstlane_b32 {sW}, v8",
          f"s_and_b32 {sJ}, s2, 7", f"s_lshr_b32 {sHEAD}, s2, 3", f"s_lshr_b32 {sRB}, {sHEAD}, 3", f"s_and_b32 {sCB}, {sHEAD}, 7",
          f"s_lshl_b32 {sR0}, {sJ}, 8", f"s_lshl_b32 {T[0]}, {sRB}, 6", f"s_add_u32 {sR0}, {sR0}, {T[0]}",
          f"s_lshr_b32 {sRH}, {sW}, 1", f"s_and_b32 {sCH}, {sW}, 1",
          f"s_lshl_b32 {sCLU}, {sJ}, 2", f"s_add_u32 {sCLU}, {sCLU}, {sRB}",
          f"s_mov_b32 {sONES}, 0x3f803f80", f"s_mov_b32 {sHIMASK}, 0xffff0000")
        a(f"s_mul_i32 {T[0]}, {sCB}, 5", f"s_min_u32 {T[1]}, {sCB}, 3", f"s_add_u32 {sT0}, {T[0]}, {T[1]}",
          f"s_cmp_ge_u32 {sCB}, 3", f"s_cselect_b32 {sCNT5}, 1, 0")
        a(f"v_lshlrev_b32 {vL16}, 4, {vLANE}", f"v_mov_b32 {vZ}, 0",
          f"v_and_b32 v8, 15, {vLANE}", f"v_lshrrev_b32 v9, 5, {vLANE}", f"v_bfe_u32 v10, {vLANE}, 4, 1",
          f"v_lshlrev_b32 v8, 4, v8", f"v_lshl_add_u32 v8, v10, 3, v8",
          f"v_lshl_add_u32 {vPAT}, v9, 8, v8",
          f"v_lshl_add_u32 v63, v9, 9, v8",
          f"v_and_b32 {vFP32}, 31, {vLANE}", f"v_lshlrev_b32 {vFP32}, 3, {vFP32}",
          f"v_and_b32 {vFP8}, 7, {vLANE}", f"v_lshlrev_b32 {vFP8}, 3, {vFP8}")

    SRDS = [(4, 0, 2048 * 512 * 2), (8, 8, 512 * 1536 * 2), (36, 80, WS_SIZE), (12, 16, 512 * 512 * 2), (16, 32, 512 * 1376 * 2),
            (20, 40, 2048 * 2048 * 2), (24, 48, 2048 * 2), (28, 56, 688 * 512 * 2), (32, 64, 2048 * 512 * 2)]

    def phase_qkv(self):
        a = self.a
        XR, ACC, AF, WF = 64, 128, 176, 208
        vXa, vXb, vW0, vW1, vWrA, vWrB, vXe, vXo, vXw = "v28", "v29", "v30", "v31", "v32", "v33", "v34", "v35", "v36"
        a(f"v_lshrrev_b32 v8, 3, {vLANE}", f"v_and_b32 v9, 7, {vLANE}",
          f"v_lshlrev_b32 v10, 10, v8", f"v_lshl_add_u32 {vXa}, v9, 4, v10",
          f"s_lshl_b32 {T[0]}, {sW}, 4", f"s_add_u32 {T[0]}, {T[0]}, {sR0}", f"s_lshl_b32 {T[0]}, {T[0]}, 10",
          f"v_add_u32 {vXa}, {T[0]}, {vXa}", f"v_add_u32 {vXb}, 0x2000, {vXa}")
        a(f"v_bfe_u32 v10, {vLANE}, 4, 1", "v_lshrrev_b32 v11, 1, v9", "v_xor_b32 v11, v11, v10",
          "v_and_b32 v12, 1, v9", "v_lshl_or_b32 v11, v11, 1, v12", "v_lshlrev_b32 v11, 4, v11",
          "v_mul_u32_u24 v12, 3072, v8", "v_add_u32 v12, v12, v11",
          f"s_mul_i32 {T[0]}, {sW}, {16 * 3072}", f"s_lshl_b32 {T[1]}, {sCB}, 7", f"s_add_u32 {T[0]}, {T[0]}, {T[1]}",
          f"v_add_u32 {vW0}, {T[0]}, v12", f"v_xor_b32 {vW1}, 64, {vW0}", f"v_add_u32 {vW1}, {8 * 3072 - 1024}, {vW1}")
        a(f"v_lshrrev_b32 v10, 4, {vLANE}", f"v_bfe_u32 v11, {vLANE}, 2, 2", f"v_and_b32 v12, 3, {vLANE}",
          "v_lshl_add_u32 v13, v10, 3, v11", "v_lshlrev_b32 v13, 7, v13", "v_lshl_add_u32 v13, v12, 3, v13",
          "v_lshrrev_b32 v11, 1, v11", "v_and_b32 v14, 1, v10", "v_lshl_or_b32 v11, v14, 1, v11",
          f"v_xor_b32 v11, {sW}, v11", f"v_lshl_add_u32 {vWrA}, v11, 5, v13", f"v_add_u32 {vWrB}, {2 * 24576}, {vWrA}")
        a("v_lshrrev_b32 v11, 2, v9", "v_lshlrev_b32 v11, 10, v11", "v_and_b32 v12, 3, v9", "v_lshl_add_u32 v11, v12, 8, v11",
          "v_xor_b32 v12, v8, v9", "v_lshl_add_u32 v11, v12, 4, v11",
          f"s_lshl_b32 {T[0]}, {sW}, 14", f"s_add_u32 {T[0]}, {T[0]}, {LB}", f"v_add_u32 {vXw}, {T[0]}, v11",
          f"v_and_b32 v11, 15, {vLANE}", "v_xor_b32 v11, v11, v10", "v_lshl_add_u32 v11, v10, 4, v11", "v_lshlrev_b32 v11, 4, v11",
          f"v_add_u32 {vXe}, {LB}, v11", f"v_xor_b32 {vXo}, 64, {vXe}")
        for m in range(4):
            a(f"s_add_u32 {T[0]}, {sRB}, {m}", f"s_and_b32 {T[0]}, {T[0]}, 3",
              f"s_lshl_b32 {sROT[m]}, {T[0]}, 8", f"s_mul_i32 {sROT[4 + m]}, {T[0]}, {2 * 64 * 3072}")
        a(f"s_lshl_b32 {sU[0]}, {sW}, 11")
        a("s_waitcnt lgkmcnt(0)")
        self.stamp("start")
        xtok = []
        for t in range(8):
            for g, vx in enumerate((vXa, vXb)):
                a(f"buffer_load_dwordx4 {v(XR + (g * 8 + t) * 4, 4)}, {vx}, {sX}, {sROT[t >> 1]} offen offset:{(t & 1) * 128}")
            xtok.append(a.vtok())
        wtok = {}
        def wdma(t):
            L = []
            slot = t & 3
            for p in range(3):
                L.append(f"s_add_u32 {T[2]}, {sROT[4 + (t >> 1)]}, {(t & 1) * 64 * 3072 + p * 1024}")
                L.append(f"s_add_u32 m0, {sU[0]}, {slot * 24576 + p * 8192}")
                L.append(f"buffer_load_dwordx4 {vW0}, {sWQKV}, {T[2]} offen lds")
                L.append(f"buffer_load_dwordx4 {vW1}, {sWQKV}, {T[2]} offen offset:1024 lds")
            L.append(lambda: wtok.__setitem__(t, a.vtok()))
            return L
        for t in range(4):
            for x in wdma(t): x() if callable(x) else a(x)
        a(f"buffer_load_dwordx2 v[4:5], off, {sWS}, 0 sc1")
        etok = a.vtok()
        for t in range(8):
            a.wait(vm=xtok[t])
            for k in range(4):
                for g in range(2):
                    x = v(XR + (g * 8 + t) * 4 + k)
                    first = t == 0 and k == 0
                    a(f"v_dot2_f32_bf16 v{8 + 2 * g}, {x}, {sONES}, {'0' if first else 'v%d' % (8 + 2 * g)}",
                      f"v_dot2_f32_bf16 v{9 + 2 * g}, {x}, {x}, {'0' if first else 'v%d' % (9 + 2 * g)}")
        for mod in ("quad_perm:[1,0,3,2]", "quad_perm:[2,3,0,1]", "row_half_mirror"):
            for r in range(8, 12):
                a(f"v_add_f32_dpp v{r}, v{r}, v{r} {mod} row_mask:0xf bank_mask:0xf")
        self.ln_finish([(8, 9, 12), (10, 11, 14)], 1.0 / 512)
        n = 0
        for t in range(8):
            for g in range(2):
                b = XR + (g * 8 + t) * 4
                tp = [16 + 2 * ((n + k) % 6) for k in range(4)]; n += 4
                for k in range(4):
                    a(f"v_lshlrev_b32 v{tp[k]}, 16, v{b + k}", f"v_and_b32 v{tp[k] + 1}, {sHIMASK}, v{b + k}")
                for k in range(4):
                    a(f"v_pk_fma_f32 {v(tp[k], 2)}, {v(tp[k], 2)}, {v(12 + 2 * g, 2)}, {v(12 + 2 * g, 2)} op_sel:[0,0,1] op_sel_hi:[1,0,1]")
                for k in range(4):
                    a(f"v_cvt_pk_bf16_f32 v{b + k}, v{tp[k]}, v{tp[k] + 1}")
                a(f"ds_write_b128 {vXw}, {v(b, 4)} offset:{t * 2048 + g * 128}")
        self.stamp("ln1")
        a.wait(vm=wtok[0], lg=a.lg)
        self.barrier()
        def reads(s):
            t, sub = s >> 1, s & 1
            slot = t & 3
            wb = vWrA if slot < 2 else vWrB
            wo = (slot & 1) * 24576 + sub * 4096
            A, W = AF + 16 * (s & 1), WF + 12 * (s & 1)
            L = [f"ds_read_b64_tr_b16 {v(W + 2 * h, 2)}, {wb} offset:{wo + 512 * h}" for h in range(2)]
            L += [f"ds_read_b128 {v(A + 4 * rt, 4)}, {vXo if s & 1 else vXe} offset:{(rt * 16 + s) * 1024}" for rt in range(4)]
            L += [f"ds_read_b64_tr_b16 {v(W + 4 * p + 2 * h, 2)}, {wb} offset:{wo + 8192 * p + 512 * h}" for p in (1, 2) for h in range(2)]
            return L
        for x in reads(0): a(x)
        for s in range(16):
            t = s >> 1
            a.wait(lg=a.lg)
            fill = []
            if s & 1:
                if t < 7: a.wait(vm=wtok[t + 1])
                self.barrier()
            if s < 15: fill += reads(s + 1)
            if s & 1 and t < 4: fill += wdma(t + 4)
            if s == 15: fill += self.const_fill()
            A, W = AF + 16 * (s & 1), WF + 12 * (s & 1)
            ms = []
            for p in range(3):
                for rt in range(4):
                    d = ACC + 16 * p + 4 * rt
                    wv, av = v(W + 4 * p, 4), v(A + 4 * rt, 4)
                    c = "0" if s == 0 else None
                    ms.append(mfma16(d, wv, av, c) if p < 2 else mfma16(d, av, wv, c))
            interleave(a, ms, fill, per=2)
        self.stamp("qkv_gemm")
        a.wait(vm=etok)
        a("v_add_u32 v4, 0x9e3779b9, v4", "v_add_u32 v5, 0x7f4a7c15, v5", "v_readfirstlane_b32 s50, v4", "v_readfirstlane_b32 s51, v5")
        QS = 0.25 * 1.4426950408889634
        a(f"s_mov_b32 {T[0]}, {f2u(QS)}",
          f"s_lshl_b32 {T[1]}, {sCB}, 2", f"s_add_u32 {T[1]}, {T[1]}, {sW}",
          f"s_lshl_b32 {T[2]}, {T[1]}, 16", f"s_lshl_b32 {T[3]}, {sR0}, 5", f"s_add_u32 {T[2]}, {T[2]}, {T[3]}",
          f"s_add_u32 {T[2]}, {T[2]}, {WS_Q}",
          f"s_lshl_b32 {T[4]}, {T[1]}, 17", f"s_lshl_b32 {T[3]}, {sR0}, 6", f"s_add_u32 {T[4]}, {T[4]}, {T[3]}",
          f"s_add_u32 {T[4]}, {T[4]}, {WS_KV}", f"s_add_u32 {T[5]}, {T[4]}, 2048")
        PK = 64
        for p in (1, 2, 0):
            for rt in range(4):
                d = ACC + 16 * p + 4 * rt
                o = PK + 8 * p + 2 * rt
                if p == 0:
                    for k in range(4): a(f"v_mul_f32 v{d + k}, {T[0]}, v{d + k}")
                a(f"v_cvt_pk_bf16_f32 v{o}, v{d}, v{d + 1}", f"v_cvt_pk_bf16_f32 v{o + 1}, v{d + 2}, v{d + 3}")
                if p < 2:
                    a(f"buffer_store_dwordx2 {v(o, 2)}, v63, {sWS}, {T[2] if p == 0 else T[4]} offen offset:{(rt >> 1) * 1024 + (rt & 1) * 256} sc1")
                else:
                    a(f"buffer_store_dwordx2 {v(o, 2)}, {vPAT}, {sWS}, {T[5]} offen offset:{rt * 512} sc1")
        a(f"s_lshl_b32 {T[0]}, {sRB}, 5", f"s_add_u32 {T[0]}, {T[0]}, {T[1]}", f"s_lshl_b32 {T[0]}, {T[0]}, 7",
          f"s_lshl_b32 {T[1]}, {sJ}, 3", f"s_add_u32 {T[0]}, {T[0]}, {T[1]}", f"s_add_u32 {T[0]}, {T[0]}, {WS_F1}")
        self.attn_addresses()
        self.flag_store(T[0])
        self.stamp("qkv_pub")

    def ln_finish(self, chains, inv_n):
        a = self.a
        for s1, s2, d in chains: a(f"v_mul_f32 v{s1}, {f2u(inv_n)}, v{s1}", f"v_mul_f32 v{s2}, {f2u(inv_n)}, v{s2}")
        for s1, s2, d in chains: a(f"v_fma_f32 v{s2}, -v{s1}, v{s1}, v{s2}")
        for s1, s2, d in chains: a(f"v_max_f32 v{s2}, 0, v{s2}")
        for s1, s2, d in chains: a(f"v_add_f32 v{s2}, {f2u(1e-5)}, v{s2}")
        for s1, s2, d in chains: a(f"v_rsq_f32 v{d}, v{s2}")
        for s1, s2, d in chains: a(f"v_mul_f32_e64 v{d + 1}, -v{s1}, v{d}")

    def const_fill(self):
        L = [f"v_and_b32 v8, 27, {vLANE}", "v_cmp_eq_u32 vcc, 1, v8", f"v_mov_b32 v9, {sONES}",
             "v_cndmask_b32 v12, v3, v9, vcc", "v_mov_b32 v13, v12", "v_mov_b32 v14, v12", "v_mov_b32 v15, v12",
             f"s_lshl_b32 {T[3]}, {sW}, 12", f"s_add_u32 {T[3]}, {T[3]}, {LC + 2048}", f"v_add_u32 v9, {T[3]}, {vL16}",
             "ds_write_b128 v9, v[12:15]", "ds_write_b128 v9, v[12:15] offset:1024"]
        return L

    S, OA, NM, QF, KB, VB = 64, 112, 144, 176, 184, 192
    vIDX, vSP0, vKA, vKB2, vVB, vVI, vWD0, vXR = 208, 209, 213, 214, 215, 216, 217, 240

    def attn_addresses(self):
        a = self.a
        a(f"v_and_b32 v8, 15, {vLANE}", f"v_lshrrev_b32 v9, 4, {vLANE}", "v_lshlrev_b32 v10, 12, v8", "v_lshl_add_u32 v10, v9, 4, v10",
          f"s_lshl_b32 {T[6]}, {sR0}, 12", f"s_lshl_b32 {T[7]}, {sW}, 7", f"s_add_u32 {T[6]}, {T[6]}, {T[7]}",
          f"v_add_u32 v{self.vSP0}, {T[6]}, v10")
        for tt in range(1, 4): a(f"v_add_u32 v{self.vSP0 + tt}, {tt * 65536}, v{self.vSP0}")
        a(f"v_mov_b32 v{self.vIDX}, 0xdddddddd", f"v_mov_b32 v{self.vKA}, {vL16}", f"v_add_u32 v{self.vKB2}, {LB}, {vL16}")
        a(f"v_lshrrev_b32 v10, 5, {vLANE}", "v_lshl_add_u32 v10, v10, 4, v8", "v_lshlrev_b32 v10, 4, v10",
          f"v_and_b32 v11, 31, {vLANE}", f"v_bfe_u32 v12, {vLANE}, 2, 2",
          "v_add_u32 v12, -1, v12", "v_cmp_gt_u32 vcc, 2, v12", "v_cndmask_b32_e64 v12, 0, 4, vcc",
          "v_and_b32 v13, 27, v11", "v_cmp_eq_u32 vcc, 16, v13", "v_cndmask_b32_e64 v13, 0, 1, vcc",
          "v_add_u32 v12, v12, v13", "v_lshlrev_b32 v12, 4, v12", f"v_add_u32 v12, {LC}, v12",
          "v_cmp_gt_u32 vcc, 16, v11", f"v_cndmask_b32 v{self.vVB}, v12, v10, vcc",
          f"v_mov_b32 v13, 0x4000", f"v_cndmask_b32 v{self.vVI}, v3, v13, vcc")
        self.w128_addresses(self.vWD0)
        for t in range(8):
            a(f"s_add_u32 {T[6]}, {sJ}, {t}", f"s_and_b32 {sROT[t]}, {T[6]}, 7")
        a(f"s_lshl_b32 {sU[0]}, {sHEAD}, 17", f"s_lshl_b32 {T[6]}, {sW}, 12", f"s_add_u32 {sU[0]}, {sU[0]}, {T[6]}",
          f"s_add_u32 {sU[0]}, {sU[0]}, {WS_KV}", f"s_mov_b32 {sU[1]}, {T[6]}")

    def w128_addresses(self, r):
        a = self.a
        a(f"v_lshrrev_b32 v28, 3, {vLANE}", f"v_and_b32 v29, 7, {vLANE}", f"v_bfe_u32 v30, {vLANE}, 4, 1",
          "v_lshrrev_b32 v31, 1, v29", "v_xor_b32 v31, v31, v30", "v_and_b32 v32, 1, v29", "v_lshl_or_b32 v31, v31, 1, v32",
          "v_lshlrev_b32 v31, 4, v31", "v_lshl_add_u32 v31, v28, 10, v31",
          f"s_lshl_b32 {T[6]}, {sCB}, 7", f"v_add_u32 v{r}, {T[6]}, v31", f"v_xor_b32 v{r + 1}, 64, v{r}",
          f"v_add_u32 v{r + 1}, {7 * 1024}, v{r + 1}", f"v_add_u32 v{r + 2}, {14 * 1024}, v{r}", f"v_add_u32 v{r + 3}, {14 * 1024}, v{r + 1}")

    def w128_dma(self, r, srd, grp, lds0):
        L = [f"s_add_u32 {T[4]}, {sU[2]}, {grp * 32768}", f"s_add_u32 m0, {sU[3]}, {lds0 + grp * 4096}"]
        L += [f"buffer_load_dwordx4 v{r + i}, {srd}, {T[4]} offen offset:{1024 * i} lds" for i in range(4)]
        return L

    def stage_base(self, t): return LA + 16384 * t if t < 4 else LB + 16384 * (t - 4)

    def kv_dma(self, t):
        L = [f"s_lshl_b32 {T[5]}, {sROT[t]}, 14", f"s_add_u32 {T[5]}, {T[5]}, {sU[0]}", f"s_add_u32 m0, {sU[1]}, {self.stage_base(t)}"]
        L += [f"buffer_load_dwordx4 {vL16}, {sWS}, {T[5]} offen offset:{1024 * i} sc1 lds" for i in range(4)]
        return L

    def phase_attn(self):
        a = self.a
        S, OA, NM, QF, KB, VB = self.S, self.OA, self.NM, self.QF, self.KB, self.VB
        a(f"s_lshl_b32 {T[0]}, {sW}, 5", f"s_add_u32 {T[0]}, {T[0]}, {sHEAD}", f"s_lshl_b32 {T[0]}, {T[0]}, 7", f"s_add_u32 {T[0]}, {T[0]}, {WS_F1}",
          f"s_lshl_b32 {T[1]}, {sHEAD}, 16", f"s_lshl_b32 {T[2]}, {sJ}, 13", f"s_add_u32 {T[1]}, {T[1]}, {T[2]}",
          f"s_lshl_b32 {T[2]}, {sW}, 11", f"s_add_u32 {T[1]}, {T[1]}, {T[2]}", f"s_add_u32 {sU[4]}, {T[1]}, {WS_Q}",
          f"s_lshl_b32 {sU[2]}, {sW}, 17", f"s_lshl_b32 {sU[3]}, {sW}, 14")
        self.poll(vFP8, T[0], 8)
        self.stamp("s1")
        for q in range(2):
            a(f"buffer_load_dwordx4 {v(QF + 4 * q, 4)}, {vL16}, {sWS}, {sU[4]} offen offset:{1024 * q} sc1")
        kvtok = {}
        for t in range(2):
            for x in self.kv_dma(t): a(x)
            kvtok[t] = a.vtok()
        for r in range(OA, OA + 32): a(f"v_mov_b32 v{r}, 0")
        a.wait(vm=kvtok[0], lg=a.lg)
        self.barrier()
        def kread(kt):
            t, k = kt >> 3, kt & 7
            base = self.vKA if t < 4 else self.vKB2
            return f"ds_read_b128 {v(KB + 4 * (kt & 1), 4)}, v{base} offset:{16384 * (t & 3) + (k >> 1) * 4096 + (k & 1) * 1024}"
        def vread(kt, hi):
            k = kt & 7
            return f"ds_read_b128 {v(VB + 8 * (kt & 1) + 4 * hi, 4)}, v{self.vVB} offset:{(k >> 1) * 4096 + 2048 + (k & 1) * 1024 + 512 * hi}"
        def qk(n, c=None):
            kt, q = n >> 1, n & 1
            return f"v_mfma_f32_32x32x16_bf16 {v(S + 16 * (n % 3), 16)}, {v(KB + 4 * (kt & 1), 4)}, {v(QF + 4 * q, 4)}, {c if c else v(NM + 16 * q, 16)}"
        def pv(n, hi):
            kt, q = n >> 1, n & 1
            return f"v_smfmac_f32_32x32x32_bf16 {v(OA + 16 * q, 16)}, {v(VB + 8 * (kt & 1) + 4 * hi, 4)}, {v(S + 16 * (n % 3) + 8 * hi, 8)}, v{self.vIDX}"
        a(kread(0), kread(1), vread(0, 0), vread(0, 1))
        a.wait(lg=a.lg)
        a(qk(0, "0"), qk(1, "0"))
        for q in range(2):
            b, m = S + 16 * q, 8 + 2 * q
            a(f"v_max3_f32 v{m}, v{b}, v{b + 1}, v{b + 2}")
            for k in range(3, 15, 2): a(f"v_max3_f32 v{m}, v{m}, v{b + k}, v{b + k + 1}")
            a(f"v_max_f32 v{m}, v{m}, v{b + 15}", f"v_mov_b32 v{m + 1}, v{m}")
        for q in range(2): a(f"v_permlane32_swap_b32 v{8 + 2 * q}, v{9 + 2 * q}")
        for q in range(2):
            m = 8 + 2 * q
            a(f"v_max_f32 v{m}, v{m}, v{m + 1}", f"v_sub_f32 v{m}, 0, v{m}")
            for r in range(16): a(f"v_mov_b32 v{NM + 16 * q + r}, v{m}")
        a(qk(0), qk(1))
        self.stamp("attn_start")
        free = {n: [] for n in range(128)}
        def put(n0, items):
            n = n0
            for it in items:
                while len(free[n]) >= 2: n += 2
                free[n].append(it)
            return n
        for t in range(7):
            n = 2 * (8 * t + 5) + 1
            free[n] = [lambda t=t: a.wait(vm=kvtok[t + 1], force=True), "s_barrier"]
        for t in range(6):
            put(16 * t + 1, self.kv_dma(t + 2) + [lambda t=t: kvtok.__setitem__(t + 2, a.vtok())])
        wotok = [0]
        wo = []
        for g in range(4): wo += self.w128_dma(self.vWD0, sWO, g, LA)
        wo.append(lambda: wotok.__setitem__(0, a.vtok()))
        sp = []
        for t in range(8):
            sp.append(f"s_lshl_b32 {T[7]}, {sROT[t]}, 9")
            for sub in range(2):
                for tt in range(4):
                    sp.append(f"buffer_load_dwordx4 {ar(((2 * t + sub) * 4 + tt) * 4, 4)}, v{self.vSP0 + tt}, {sWSP}, {T[7]} offen offset:{64 * sub}")
        xr = [f"s_lshl_b32 {T[6]}, {sRH}, 15", f"s_lshl_b32 {T[3]}, {sR0}, 10", f"s_add_u32 {T[6]}, {T[6]}, {T[3]}",
              f"s_lshl_b32 {T[3]}, {sCB}, 7", f"s_add_u32 {T[6]}, {T[6]}, {T[3]}", f"s_lshl_b32 {T[3]}, {sCH}, 6", f"s_add_u32 {T[6]}, {T[6]}, {T[3]}",
              f"s_add_u32 {T[3]}, {T[6]}, 0x4000"]
        for rt in range(2):
            for nt in range(2):
                xr.append(f"buffer_load_dwordx2 {v(self.vXR + 4 * rt + 2 * nt, 2)}, v62, {sX}, {T[6] if rt == 0 else T[3]} offen offset:{32 * nt}")
        extra = {n: [] for n in range(128)}
        spread = [(n, sp[(n * len(sp)) // 112:((n + 1) * len(sp)) // 112]) for n in range(112)]
        for n, items in spread: extra[n + 4] += items
        for i, it in enumerate(wo): extra[90 + i].append(it)
        for i, it in enumerate(xr): extra[112 + i].append(it)
        a(f"v_and_b32 v8, 15, {vLANE}", f"v_lshrrev_b32 v9, 4, {vLANE}", "v_lshlrev_b32 v8, 10, v8", "v_lshl_add_u32 v62, v9, 3, v8")
        def emit(items):
            for x in items: x() if callable(x) else a(x)
        for n in range(128):
            kt, q = n >> 1, n & 1
            b = S + 16 * (n % 3)
            E = lambda lo, hi: [a(f"v_exp_f32 v{b + r}, v{b + r}") for r in range(lo, hi)]
            sl = [[], [], []]
            if q == 0:
                if kt + 2 < 64: sl[0].append(kread(kt + 2))
                if kt + 1 < 64:
                    if (kt + 1) & 7 == 0:
                        t = (kt + 1) >> 3
                        inc = f"v_add_u32 v{self.vVB}, v{self.vVB}, v{self.vVI}"
                        sl[0].append(inc)
                        if t == 4: sl[0] += [inc, inc]
                    sl[1].append(vread(kt + 1, 0)); sl[2].append(vread(kt + 1, 1))
            else:
                fr = free[n]
                sl[0] += fr[:1]; sl[1] += fr[1:]
                sl[2].append(lambda: a.wait(lg=a.lg))
            sl[q].extend(extra[n])
            E(0, 2)
            if n > 0: a(pv(n - 1, 1))
            emit(sl[0])
            E(2, 7)
            if n + 2 < 128: a(qk(n + 2))
            emit(sl[1])
            E(7, 12)
            a(pv(n, 0))
            emit(sl[2])
            E(12, 16)
        a.wait(vm=wotok[0], lg=a.lg)
        a(pv(127, 1))
        self.barrier()
        self.stamp("attn_loop")
        for q in range(2):
            o = OA + 16 * q
            a(f"v_pk_add_f32 {v(8 + 4 * q, 2)}, {v(o, 2)}, {v(o + 2, 2)}", f"v_pk_add_f32 {v(10 + 4 * q, 2)}, {v(o + 4, 2)}, {v(o + 6, 2)}")
        for q in range(2): a(f"v_pk_add_f32 {v(8 + 4 * q, 2)}, {v(8 + 4 * q, 2)}, {v(10 + 4 * q, 2)}")
        a("v_add_f32 v8, v8, v9", "v_add_f32 v12, v12, v13", "v_add_f32 v8, v8, v12", f"v_max_f32 v9, v{OA + 8}, v{OA + 24}",
          f"v_add_f32 v10, v{OA + 8}, v{OA + 24}", "v_add_f32 v8, v8, v10",
          f"s_mov_b32 {T[0]}, 0x207", f"v_cmp_class_f32_e64 vcc, v8, {T[0]}",
          f"s_mov_b64 s[60:61], vcc", f"v_cmp_le_f32 vcc, {f2u(2.0 ** 64)}, v9", "s_or_b64 vcc, vcc, s[60:61]")
        if self.force_fallback: a("s_mov_b64 vcc, -1")
        a("s_cbranch_vccnz L_attn_slow", "L_attn_done:")
        for q in range(2): a(f"v_rcp_f32 v{8 + q}, v{OA + 16 * q + 8}")
        a(f"s_lshr_b32 {T[0]}, {sHEAD}, 1", f"s_lshl_b32 {T[0]}, {T[0]}, 10", f"s_and_b32 {T[1]}, {sHEAD}, 1", f"s_lshl_b32 {T[1]}, {T[1]}, 9",
          f"s_add_u32 {T[0]}, {T[0]}, {T[1]}", f"s_lshl_b32 {T[1]}, {sJ}, 18", f"s_add_u32 {T[0]}, {T[0]}, {T[1]}",
          f"s_lshl_b32 {T[1]}, {sW}, 16", f"s_add_u32 {T[0]}, {T[0]}, {T[1]}", f"s_add_u32 {T[0]}, {T[0]}, {WS_O}", f"s_add_u32 {T[1]}, {T[0]}, 0x8000",
          f"v_and_b32 v10, 15, {vLANE}", f"v_bfe_u32 v11, {vLANE}, 4, 1", f"v_lshrrev_b32 v12, 5, {vLANE}",
          "v_lshlrev_b32 v10, 4, v10", "v_lshl_add_u32 v10, v11, 14, v10", "v_lshl_add_u32 v10, v12, 3, v10")
        for q in range(2):
            o = OA + 16 * q
            for k in range(8): a(f"v_mul_f32 v{o + k}, v{o + k}, v{8 + q}")
            for k in range(4): a(f"v_cvt_pk_bf16_f32 v{192 + 4 * q + k}, v{o + 2 * k}, v{o + 2 * k + 1}")
            for hf in range(2):
                a(f"buffer_store_dwordx2 {v(192 + 4 * q + 2 * hf, 2)}, v10, {sWS}, {T[q]} offen offset:{256 * hf} sc1")
        self.w128_read_base(28, 2)
        for nt in range(2):
            for p in range(16):
                for hf in range(2):
                    a(f"ds_read_b64_tr_b16 {v(64 + (nt * 16 + p) * 4 + 2 * hf, 2)}, v{28 + nt} offset:{LA + p * 4096 + hf * 512}")
        a(f"s_lshl_b32 {T[0]}, {sJ}, 2", f"s_add_u32 {T[0]}, {T[0]}, {sW}", f"s_lshl_b32 {T[0]}, {T[0]}, 8",
          f"s_lshl_b32 {T[1]}, {sHEAD}, 3", f"s_add_u32 {T[0]}, {T[0]}, {T[1]}", f"s_add_u32 {T[0]}, {T[0]}, {WS_F2}")
        self.flag_store(T[0])
        self.stamp("attn_pub")

    def w128_read_base(self, b, n):
        a = self.a
        a(f"v_lshrrev_b32 v64, 4, {vLANE}", f"v_bfe_u32 v65, {vLANE}, 2, 2", f"v_and_b32 v66, 3, {vLANE}",
          "v_lshl_add_u32 v67, v64, 3, v65", "v_lshlrev_b32 v67, 7, v67", "v_lshl_add_u32 v67, v66, 3, v67",
          "v_lshrrev_b32 v65, 1, v65", "v_and_b32 v64, 1, v64", "v_lshl_or_b32 v65, v64, 1, v65",
          f"s_lshl_b32 {T[3]}, {sCH}, 1", f"v_xor_b32 v65, {T[3]}, v65", f"v_lshl_add_u32 v{b}, v65, 5, v67")
        for i in range(1, n): a(f"v_xor_b32 v{b + i}, {32 * i}, v{b}")

    def attn_slow(self):
        a = self.a
        S, OA, NM, QF, KB, VB = self.S, self.OA, self.NM, self.QF, self.KB, self.VB
        a.vm_done = a.vm; a.lg_done = a.lg
        a("L_attn_slow:", "s_nop 15", f"s_lshl_b32 {T[0]}, {sHEAD}, 17", f"s_add_u32 {T[0]}, {T[0]}, {WS_KV}",
          f"v_mov_b32 v8, 0xff800000", f"v_mov_b32 v10, 0xff800000", f"s_mov_b32 {T[1]}, 0")
        def kaddr():
            a(f"s_lshr_b32 {T[2]}, {T[1]}, 1", f"s_lshl_b32 {T[2]}, {T[2]}, 12", f"s_and_b32 {T[3]}, {T[1]}, 1", f"s_lshl_b32 {T[3]}, {T[3]}, 10",
              f"s_add_u32 {T[2]}, {T[2]}, {T[3]}", f"s_add_u32 {T[2]}, {T[2]}, {T[0]}")
        a("L_slow_max:"); kaddr()
        a(f"buffer_load_dwordx4 {v(KB, 4)}, {vL16}, {sWS}, {T[2]} offen sc1"); a.wait(vm=a.vm, force=True)
        for q in range(2):
            a(f"v_mfma_f32_32x32x16_bf16 {v(S + 16 * q, 16)}, {v(KB, 4)}, {v(QF + 4 * q, 4)}, 0")
        for q in range(2):
            b, m = S + 16 * q, 8 + 2 * q
            for k in range(0, 16, 2): a(f"v_max3_f32 v{m}, v{m}, v{b + k}, v{b + k + 1}")
        a(f"s_add_u32 {T[1]}, {T[1]}, 1", f"s_cmp_lt_u32 {T[1]}, 64", "s_cbranch_scc1 L_slow_max")
        a("v_mov_b32 v9, v8", "v_mov_b32 v11, v10")
        for q in range(2): a(f"v_permlane32_swap_b32 v{8 + 2 * q}, v{9 + 2 * q}")
        for q in range(2):
            m = 8 + 2 * q
            a(f"v_max_f32 v{m}, v{m}, v{m + 1}", f"v_sub_f32 v{m}, 0, v{m}")
            for r in range(16): a(f"v_mov_b32 v{NM + 16 * q + r}, v{m}")
        for r in range(OA, OA + 32): a(f"v_mov_b32 v{r}, 0")
        a(f"v_and_b32 v8, 27, {vLANE}", "v_cmp_eq_u32 vcc, 16, v8", f"v_mov_b32 v9, {sONES}", "v_cndmask_b32 v9, v3, v9, vcc")
        for r in range(8): a(f"v_mov_b32 v{VB + r}, v9")
        a(f"v_and_b32 v8, 15, {vLANE}", f"v_lshrrev_b32 v10, 5, {vLANE}", "v_lshl_add_u32 v10, v10, 4, v8", "v_lshlrev_b32 v10, 4, v10",
          f"s_mov_b32 {T[1]}, 0", "s_mov_b32 s60, 0x0000ffff", "s_mov_b32 s61, 0x0000ffff")
        a("L_slow_pv:"); kaddr()
        a(f"buffer_load_dwordx4 {v(KB, 4)}, {vL16}, {sWS}, {T[2]} offen sc1", f"s_add_u32 {T[2]}, {T[2]}, 2048", "s_mov_b64 exec, s[60:61]",
          f"buffer_load_dwordx4 {v(VB, 4)}, v10, {sWS}, {T[2]} offen sc1",
          f"buffer_load_dwordx4 {v(VB + 4, 4)}, v10, {sWS}, {T[2]} offen offset:512 sc1", "s_mov_b64 exec, -1")
        a.wait(vm=a.vm, force=True)
        for q in range(2):
            a(f"v_mfma_f32_32x32x16_bf16 {v(S + 16 * q, 16)}, {v(KB, 4)}, {v(QF + 4 * q, 4)}, {v(NM + 16 * q, 16)}")
        for q in range(2):
            for r in range(16): a(f"v_exp_f32 v{S + 16 * q + r}, v{S + 16 * q + r}")
            for hi in range(2):
                a(f"v_smfmac_f32_32x32x32_bf16 {v(OA + 16 * q, 16)}, {v(VB + 4 * hi, 4)}, {v(S + 16 * q + 8 * hi, 8)}, v{self.vIDX}")
        a(f"s_add_u32 {T[1]}, {T[1]}, 1", f"s_cmp_lt_u32 {T[1]}, 64", "s_nop 15", "s_cbranch_scc1 L_slow_pv", "s_nop 15", "s_branch L_attn_done")

    def act_dma(self, ws_off, steps, chunks, lds0):
        a = self.a
        a(f"s_lshr_b32 {T[0]}, {sR0}, 4", f"s_add_u32 {T[0]}, {T[0]}, {sW}", f"s_mul_i32 {T[0]}, {T[0]}, {steps * 1024}",
          f"s_add_u32 {T[0]}, {T[0]}, {ws_off}", f"s_mul_i32 {T[1]}, {sW}, {steps * 1024}", f"s_add_u32 {T[1]}, {T[1]}, {lds0}")
        toks = []; p = 0
        for c in chunks:
            for k in range(c):
                if p % 4 == 0:
                    a(f"s_add_u32 {T[2]}, {T[0]}, {p * 1024}", f"s_add_u32 m0, {T[1]}, {p * 1024}")
                a(f"buffer_load_dwordx4 {vL16}, {sWS}, {T[2]} offen offset:{(p % 4) * 1024} sc1 lds")
                p += 1
            toks.append(a.vtok())
        return toks

    def cluster_flag_off(self, dst, base, own):
        a = self.a
        a(f"s_lshl_b32 {dst}, {sCLU}, 8", f"s_add_u32 {dst}, {dst}, {base}")
        if own:
            a(f"s_lshl_b32 {T[7]}, {sCB}, 2", f"s_add_u32 {T[7]}, {T[7]}, {sW}", f"s_lshl_b32 {T[7]}, {T[7]}, 3", f"s_add_u32 {dst}, {dst}, {T[7]}")

    def stats_publish(self, s, base):
        a = self.a
        a(f"v_permlane32_swap_b32 v{s}, v{s + 1}", f"v_permlane32_swap_b32 v{s + 2}, v{s + 3}",
          f"v_add_f32 v{s}, v{s}, v{s + 1}", f"v_add_f32 v{s + 2}, v{s + 2}, v{s + 3}",
          f"v_permlane16_swap_b32 v{s}, v{s + 2}", f"v_add_f32 v{s}, v{s}, v{s + 2}")
        a(f"s_lshl_b32 {T[4]}, {sCLU}, 13", f"s_add_u32 {T[4]}, {T[4]}, {base}", f"s_lshl_b32 {T[5]}, {sRH}, 7", f"s_add_u32 {T[4]}, {T[4]}, {T[5]}",
          f"s_lshl_b32 {T[5]}, {sCB}, 1", f"s_add_u32 {T[5]}, {T[5]}, {sCH}", f"s_lshl_b32 {T[5]}, {T[5]}, 9", f"s_add_u32 {T[4]}, {T[4]}, {T[5]}",
          f"buffer_store_dword v{s}, v61, {sWS}, {T[4]} offen sc1")

    def stats_load(self, base, r):
        a = self.a
        a(f"s_lshl_b32 {T[4]}, {sCLU}, 13", f"s_add_u32 {T[4]}, {T[4]}, {base}", f"s_lshl_b32 {T[5]}, {sRH}, 7", f"s_add_u32 {T[4]}, {T[4]}, {T[5]}",
          f"s_add_u32 {T[5]}, {T[4]}, 4096")
        for p in range(16):
            a(f"buffer_load_dword v{r + p}, v61, {sWS}, {T[4] if p < 8 else T[5]} offen offset:{(p % 8) * 512} sc1")
        return a.vtok()

    def stats_finish(self, r, inv_n, d):
        a = self.a
        for st in (8, 4, 2):
            for k in range(0, st, 2): a(f"v_pk_add_f32 {v(r + k, 2)}, {v(r + k, 2)}, {v(r + st + k, 2)}")
        a(f"v_add_f32 v{r}, v{r}, v{r + 1}", f"v_mov_b32 v{r + 1}, v{r}", f"v_permlane32_swap_b32 v{r}, v{r + 1}")
        self.ln_finish([(r, r + 1, d)], inv_n)
        a(f"v_mov_b32 v{d + 2}, v{d}", f"v_mov_b32 v{d + 3}, v{d + 1}",
          f"v_permlane16_swap_b32 v{d}, v{d + 2}", f"v_permlane16_swap_b32 v{d + 1}, v{d + 3}")

    def win_addresses(self):
        a = self.a
        for i in range(3):
            a(f"v_add_u32 v16, {64 * i}, {vLANE}", "v_mul_u32_u24 v17, 171, v16", "v_lshrrev_b32 v17, 11, v17",
              "v_mul_u32_u24 v18, 12, v17", "v_sub_u32 v18, v16, v18", "v_bfe_u32 v19, v17, 3, 1", "v_lshlrev_b32 v19, 1, v19",
              "v_xor_b32 v18, v18, v19", "v_mul_u32_u24 v17, 2752, v17", "v_lshl_add_u32 v17, v18, 4, v17",
              f"v_add_u32 v{56 + i}, {-1024 * i}, v17")
        a(f"v_lshrrev_b32 v16, 4, {vLANE}", f"v_bfe_u32 v17, {vLANE}, 2, 2", f"v_and_b32 v18, 3, {vLANE}",
          "v_lshl_add_u32 v19, v16, 3, v17", "v_mul_u32_u24 v19, 192, v19", "v_lshl_add_u32 v19, v18, 3, v19",
          "v_and_b32 v17, 1, v16", f"v_xor_b32 v17, {sCH}, v17", "v_lshl_add_u32 v59, v17, 5, v19", "v_add_u32 v60, 49152, v59",
          f"v_and_b32 v17, 15, {vLANE}", "v_lshlrev_b32 v17, 2, v17", "v_and_b32 v18, 1, v16", "v_lshl_add_u32 v17, v18, 6, v17",
          "v_lshrrev_b32 v16, 1, v16", "v_lshl_add_u32 v61, v16, 8, v17")

    def win_dma(self, half, g0, per_wave):
        L = [f"s_lshl_b32 {sU[5]}, {sT0}, 5", f"s_mul_i32 {sU[6]}, {sW}, {per_wave * 16 * 2752}", f"s_add_u32 {sU[5]}, {sU[5]}, {sU[6]}",
             f"s_mul_i32 {sU[6]}, {sW}, {per_wave * 3072}"]
        for k in range(per_wave):
            L += [f"s_add_u32 {sU[7]}, {sU[5]}, {half * 1376 + (g0 + k) * 16 * 2752}", f"s_add_u32 m0, {sU[6]}, {(g0 + k) * 3072}"]
            L += [f"buffer_load_dwordx4 v{56 + i}, {sWIN}, {sU[7]} offen offset:{1024 * i} lds" for i in range(3)]
        return L

    def emit(self, items):
        for x in items: x() if callable(x) else self.a(x)

    def phase_wo(self):
        a = self.a
        ACC = 192
        self.win_addresses()
        self.emit(self.win_dma(1, 24, 2))
        self.cluster_flag_off(T[3], WS_F2, False)
        a(f"s_lshl_b32 {T[4]}, {sRH}, 15", f"s_add_u32 {T[4]}, {T[4]}, {LB}", f"v_add_u32 v30, {T[4]}, {vL16}")
        self.poll(vFP32, T[3], 32)
        self.stamp("s2")
        toks = self.act_dma(WS_O, 16, [4, 4, 4, 4], LB)
        def buf(c, k, rt):
            if c & 1 == 0: return 208 + (k * 2 + rt) * 4
            return (32 + (k * 2 + rt) * 4) if k < 3 else 248 + rt * 4
        def reads(c):
            return [f"ds_read_b128 {v(buf(c, k, rt), 4)}, v30 offset:{(rt * 16 + 4 * c + k) * 1024}" for k in range(4) for rt in range(2)]
        a.wait(vm=toks[0], lg=a.lg)
        self.barrier()
        self.emit(reads(0))
        self.emit(self.win_dma(1, 0, 3))
        for c in range(4):
            fill = []
            if c < 3:
                a.wait(vm=toks[c + 1], lg=a.lg)
                self.barrier()
                fill = reads(c + 1)
            else:
                a.wait(lg=a.lg)
                self.barrier()
            ms = []
            for k in range(4):
                p = 4 * c + k
                for rt in range(2):
                    for nt in range(2):
                        ms.append(mfma16(ACC + (rt * 2 + nt) * 4, v(64 + (nt * 16 + p) * 4, 4), v(buf(c, k, rt), 4), "0" if p == 0 else None))
            interleave(a, ms, fill)
        self.stamp("wo_gemm")
        XR = self.vXR
        for i in range(4):
            for k in range(2):
                a(f"v_lshlrev_b32 v{32 + 4 * i + 2 * k}, 16, v{XR + 2 * i + k}", f"v_and_b32 v{33 + 4 * i + 2 * k}, {sHIMASK}, v{XR + 2 * i + k}")
        for i in range(4):
            for k in range(2): a(f"v_pk_add_f32 {v(ACC + 4 * i + 2 * k, 2)}, {v(ACC + 4 * i + 2 * k, 2)}, {v(32 + 4 * i + 2 * k, 2)}")
        for i in range(4):
            for k in range(2): a(f"v_cvt_pk_bf16_f32 v{vH + 2 * i + k}, v{ACC + 4 * i + 2 * k}, v{ACC + 4 * i + 2 * k + 1}")
        a(f"s_lshr_b32 {T[0]}, {sR0}, 4", f"s_lshl_b32 {T[1]}, {sRH}, 1", f"s_add_u32 {T[0]}, {T[0]}, {T[1]}", f"s_lshl_b32 {T[0]}, {T[0]}, 14",
          f"s_lshl_b32 {T[1]}, {sCB}, 1", f"s_add_u32 {T[1]}, {T[1]}, {sCH}", f"s_lshl_b32 {T[1]}, {T[1]}, 10", f"s_add_u32 {T[0]}, {T[0]}, {T[1]}",
          f"s_add_u32 {T[0]}, {T[0]}, {WS_H}", f"s_add_u32 {T[1]}, {T[0]}, 0x4000")
        for rt in range(2):
            for nt in range(2):
                a(f"buffer_store_dwordx2 {v(vH + 4 * rt + 2 * nt, 2)}, {vPAT}, {sWS}, {T[rt]} offen offset:{512 * nt} sc1")
        for k in range(4):
            for rt in range(2):
                h = f"v{vH + 4 * rt + k}"
                a(f"v_dot2_f32_bf16 v{32 + 2 * rt}, {h}, {sONES}, {'0' if k == 0 else 'v%d' % (32 + 2 * rt)}",
                  f"v_dot2_f32_bf16 v{33 + 2 * rt}, {h}, {h}, {'0' if k == 0 else 'v%d' % (33 + 2 * rt)}")
        self.stats_publish(32, WS_ST3)
        self.cluster_flag_off(T[0], WS_F3, True)
        self.flag_store(T[0])
        self.stamp("wo_pub")

    HF, ACC2, ACC1, WB, CS = 64, 192, 216, 28, 240

    def win_gemm(self, acc, steps_wait, read_h):
        a = self.a
        HF, WB, CS = self.HF, self.WB, self.CS
        def reads(s):
            L = []
            base = "v59" if s < 8 else "v60"
            for m in range(3):
                for hf in range(2):
                    L.append(f"ds_read_b64_tr_b16 {v(WB + 12 * (s & 1) + 4 * m + 2 * hf, 2)}, {base} offset:{(s & 7) * 6144 + hf * 768 + m * 64}")
                if m == 0 and read_h:
                    L += [f"ds_read_b128 {v(HF + (rt * 16 + s) * 4, 4)}, v55 offset:{(rt * 16 + s) * 1024}" for rt in range(2)]
            return L
        steps_wait[0]()
        self.emit(reads(0))
        for s in range(16):
            a.wait(lg=a.lg)
            if s + 1 in steps_wait: steps_wait[s + 1]()
            fill = reads(s + 1) if s < 15 else []
            ms = []
            for m in range(3):
                wv = v(WB + 12 * (s & 1) + 4 * m, 4)
                for rt in range(2):
                    ms.append(mfma16(acc + (rt * 3 + m) * 4, wv, v(HF + (rt * 16 + s) * 4, 4), "0" if s == 0 else None))
                ms.append(mfma16(CS + 4 * m, wv, "v[252:255]", "0" if s == 0 else None))
            interleave(a, ms, fill, per=2)

    def gelu_block(self, acc, st, tiles):
        a = self.a
        CS = self.CS
        K1 = -2.0 * 1.4426950408889634 * 0.7978845608028654
        K2 = K1 * 0.044715
        a(f"s_mov_b32 s60, {f2u(K2)}", f"s_mov_b32 s61, {f2u(K2)}", f"s_mov_b32 s62, {f2u(K1)}", f"s_mov_b32 s63, {f2u(K1)}",
          f"v_mov_b32 v52, {f2u(K1)}", f"v_mov_b32 v53, {f2u(K1)}")
        for rt, m in tiles:
            x = acc + (rt * 3 + m) * 4
            pr = [x, x + 2]; tm = [28, 30]
            for k in range(2):
                a(f"v_pk_mul_f32 {v(tm[k], 2)}, {v(CS + 4 * m + 2 * k, 2)}, {v(st + 2 * rt, 2)} op_sel:[0,1] op_sel_hi:[1,1]")
            for k in range(2):
                a(f"v_pk_fma_f32 {v(pr[k], 2)}, {v(pr[k], 2)}, {v(st + 2 * rt, 2)}, {v(tm[k], 2)} op_sel:[0,0,0] op_sel_hi:[1,0,1]")
            for k in range(2): a(f"v_pk_mul_f32 {v(tm[k], 2)}, {v(pr[k], 2)}, {v(pr[k], 2)}")
            for k in range(2): a(f"v_pk_fma_f32 {v(tm[k], 2)}, {v(tm[k], 2)}, s[60:61], v[52:53]")
            for k in range(2): a(f"v_pk_mul_f32 {v(tm[k], 2)}, {v(tm[k], 2)}, {v(pr[k], 2)}")
            for k in range(4): a(f"v_exp_f32 v{28 + k}, v{28 + k}")
            for k in range(2): a(f"v_pk_add_f32 {v(tm[k], 2)}, {v(tm[k], 2)}, v[32:33]")
            for k in range(4): a(f"v_rcp_f32 v{28 + k}, v{28 + k}")
            for k in range(2): a(f"v_pk_mul_f32 {v(pr[k], 2)}, {v(pr[k], 2)}, {v(tm[k], 2)}")

    def phase_win(self):
        a = self.a
        HF, ACC2, ACC1, CS = self.HF, self.ACC2, self.ACC1, self.CS
        self.emit(self.win_dma(1, 12, 3))
        self.cluster_flag_off(T[3], WS_F3, False)
        a(f"s_lshl_b32 {T[4]}, {sRH}, 15", f"s_add_u32 {T[4]}, {T[4]}, {LB}", f"v_add_u32 v55, {T[4]}, {vL16}")
        for r in range(252, 256): a(f"v_mov_b32 v{r}, {sONES}")
        self.poll(vFP32, T[3], 32)
        self.stamp("s3")
        toks = self.act_dma(WS_H, 16, [4, 4, 4, 4], LB)
        def w(c):
            def f():
                a.wait(vm=toks[c]); self.barrier()
            return f
        self.win_gemm(ACC2, {0: w(0), 4: w(1), 8: w(2), 12: w(3)}, True)
        self.barrier()
        self.stamp("z2_gemm")
        w1a = self.win_dma(0, 0, 3)
        stok = self.stats_load(WS_ST3, 36)
        self.emit(w1a)
        w1tok = [a.vtok()]
        a.wait(vm=stok)
        self.stats_finish(36, 1.0 / 512, 34)
        a("v_mov_b32 v32, 1.0", "v_mov_b32 v33, 1.0")
        T5 = [(0, 0), (1, 0), (0, 1), (1, 1)]
        self.gelu_block(ACC2, 34, T5 + [(0, 2), (1, 2)])
        for rt in range(2):
            x = ACC2 + rt * 12
            a(f"v_pk_add_f32 {v(40 + 4 * rt, 2)}, {v(x, 2)}, {v(x + 2, 2)}", f"v_pk_mul_f32 {v(42 + 4 * rt, 2)}, {v(x, 2)}, {v(x, 2)}")
            a(f"v_pk_fma_f32 {v(42 + 4 * rt, 2)}, {v(x + 2, 2)}, {v(x + 2, 2)}, {v(42 + 4 * rt, 2)}")
            for k in (4, 6):
                a(f"v_pk_add_f32 {v(40 + 4 * rt, 2)}, {v(40 + 4 * rt, 2)}, {v(x + k, 2)}",
                  f"v_pk_fma_f32 {v(42 + 4 * rt, 2)}, {v(x + k, 2)}, {v(x + k, 2)}, {v(42 + 4 * rt, 2)}")
        a(f"s_and_b32 {sU[8]}, {sCNT5}, {sCH}", f"s_cmp_lg_u32 {sU[8]}, 0", "s_cbranch_scc1 L_skip_st")
        for rt in range(2):
            x = ACC2 + rt * 12
            for k in (8, 10):
                a(f"v_pk_add_f32 {v(40 + 4 * rt, 2)}, {v(40 + 4 * rt, 2)}, {v(x + k, 2)}",
                  f"v_pk_fma_f32 {v(42 + 4 * rt, 2)}, {v(x + k, 2)}, {v(x + k, 2)}, {v(42 + 4 * rt, 2)}")
        a("L_skip_st:", "v_add_f32 v48, v40, v41", "v_add_f32 v49, v42, v43", "v_add_f32 v50, v44, v45", "v_add_f32 v51, v46, v47")
        self.stats_publish(48, WS_ST4)
        self.cluster_flag_off(T[0], WS_F4, True)
        self.flag_store(T[0])
        self.stamp("z2_pub")
        self.emit(self.win_dma(0, 12, 3)); w1tok.append(a.vtok())
        self.emit(self.win_dma(0, 24, 2)); w1tok.append(a.vtok())
        a("v_mov_b32 v16, v34", "v_mov_b32 v17, v35", "v_mov_b32 v18, v36", "v_mov_b32 v19, v37")
        def w1(c):
            def f():
                a.wait(vm=w1tok[c]); self.barrier()
            return f
        self.win_gemm(ACC1, {0: w1(0), 6: w1(1), 12: w1(2)}, False)
        self.barrier()
        self.stamp("z1_gemm")
        self.cluster_flag_off(T[3], WS_F4, False)
        a(f"v_and_b32 v20, 15, {vLANE}", f"v_lshrrev_b32 v21, 4, {vLANE}", "v_lshlrev_b32 v21, 2, v21", "v_sub_u32 v20, v20, v21",
          "v_mov_b32 v21, 0x3f80", "v_mov_b32 v22, 0x3f800000")
        for k, (r, c) in enumerate(((24, 21), (24, 22), (25, 21), (25, 22))):
            a(f"v_cmp_eq_u32 vcc, {k}, v20")
            if k & 1 == 0: a(f"v_cndmask_b32 v{r}, v3, v{c}, vcc")
            else: a(f"v_cndmask_b32 v{r}, v{r}, v{c}, vcc")
        self.poll(vFP32, T[3], 36)
        self.stamp("s4")
        stok = self.stats_load(WS_ST4, 36)
        a.wait(vm=stok)
        self.stats_finish(36, 1.0 / 688, 20)
        a(f"s_add_u32 {T[0]}, {sT0}, {sCH}", f"s_lshl_b32 {T[0]}, {T[0]}, 16", f"s_lshl_b32 {T[1]}, {sR0}, 5", f"s_add_u32 {T[0]}, {T[0]}, {T[1]}",
          f"s_lshl_b32 {T[1]}, {sRH}, 10", f"s_add_u32 {T[0]}, {T[0]}, {T[1]}", f"s_add_u32 {sU[9]}, {T[0]}, {WS_Z}",
          f"s_add_u32 {sU[10]}, {sU[9]}, 0x20000", f"s_add_u32 {sU[11]}, {sU[9]}, 0x40000")
        def znorm(m):
            for rt in range(2):
                x = ACC2 + (rt * 3 + m) * 4
                for k in range(2):
                    a(f"v_pk_fma_f32 {v(x + 2 * k, 2)}, {v(x + 2 * k, 2)}, {v(20 + 2 * rt, 2)}, {v(20 + 2 * rt, 2)} op_sel:[0,0,1] op_sel_hi:[1,0,1]")
            for rt in range(2):
                x = ACC2 + (rt * 3 + m) * 4
                for k in range(2): a(f"v_cvt_pk_bf16_f32 v{x + k}, v{x + 2 * k}, v{x + 2 * k + 1}")
            for rt in range(2):
                x = ACC2 + (rt * 3 + m) * 4
                a(f"v_mfma_f32_16x16x16_bf16 {v(28 + 8 * (m & 1) + 4 * rt, 4)}, {v(x, 2)}, v[24:25], 0")
        def zstore(m):
            for rt in range(2):
                d = 28 + 8 * (m & 1) + 4 * rt
                a(f"v_cvt_pk_bf16_f32 v{d}, v{d}, v{d + 1}", f"v_cvt_pk_bf16_f32 v{d + 1}, v{d + 2}, v{d + 3}",
                  f"buffer_store_dwordx2 {v(d, 2)}, {vPAT}, {sWS}, {sU[9 + m]} offen offset:{512 * rt} sc1")
        znorm(0); znorm(1); zstore(0)
        a(f"s_cmp_lg_u32 {sU[8]}, 0", "s_cbranch_scc1 L_skip_z")
        znorm(2); a("s_nop 7"); zstore(2)
        a("L_skip_z:", "s_nop 7")
        zstore(1)
        a(f"s_lshl_b32 {T[0]}, {sRB}, 3", f"s_add_u32 {T[0]}, {T[0]}, {sCB}", f"s_lshl_b32 {T[0]}, {T[0]}, 8",
          f"s_lshl_b32 {T[1]}, {sJ}, 2", f"s_add_u32 {T[1]}, {T[1]}, {sW}", f"s_lshl_b32 {T[1]}, {T[1]}, 3",
          f"s_add_u32 {T[0]}, {T[0]}, {T[1]}", f"s_add_u32 {T[0]}, {T[0]}, {WS_F5}")
        self.flag_store(T[0])
        self.stamp("z2n_pub")
        self.w128_addresses(self.vWDo)
        a(f"s_mul_i32 {sU[2]}, {sW}, {6 * 32768}", f"s_mul_i32 {sU[3]}, {sW}, {6 * 4096}")
        for g in range(6):
            if g == 4: a(f"s_cmp_eq_u32 {sW}, 3", "s_cbranch_scc1 L_skip_wout")
            self.emit(self.w128_dma(self.vWDo, sWOUT, g, LA))
        a("L_skip_wout:")
        a(f"s_lshl_b32 {T[0]}, {sRH}, 5", f"s_add_u32 {T[0]}, {T[0]}, {sR0}", f"s_lshl_b32 {T[0]}, {T[0]}, 1",
          f"v_and_b32 v20, 15, {vLANE}", "v_lshlrev_b32 v20, 1, v20",
          f"buffer_load_ushort v62, v20, {sBSP}, {T[0]} offen", f"buffer_load_ushort v63, v20, {sBSP}, {T[0]} offen offset:32")
        a("v_mov_b32 v34, v16", "v_mov_b32 v35, v17", "v_mov_b32 v36, v18", "v_mov_b32 v37, v19", "v_mov_b32 v32, 1.0", "v_mov_b32 v33, 1.0")
        self.gelu_block(ACC1, 34, T5 + [(0, 2), (1, 2)])
        for i in range(6):
            for k in range(2): a(f"v_cvt_pk_bf16_f32 v{vZ1 + 2 * i + k}, v{ACC1 + 4 * i + 2 * k}, v{ACC1 + 4 * i + 2 * k + 1}")
        self.stamp("z1_epi")

    vWDo = 56

    def phase_wsp(self):
        a = self.a
        BUF, ACC, RED = 64, 192, 28
        a(f"s_lshl_b32 {T[3]}, {sW}, 3", f"s_add_u32 {T[3]}, {T[3]}, {sCB}", f"s_lshl_b32 {T[3]}, {T[3]}, 8", f"s_add_u32 {T[3]}, {T[3]}, {WS_F5}",
          f"s_lshl_b32 {T[0]}, {sT0}, 16", f"s_lshl_b32 {T[1]}, {sW}, 11", f"s_add_u32 {T[0]}, {T[0]}, {T[1]}", f"s_add_u32 {T[0]}, {T[0]}, {WS_Z}")
        for t in range(8):
            a(f"s_lshl_b32 {T[1]}, {sROT[t]}, 13", f"s_add_u32 {sROT[t]}, {T[1]}, {T[0]}")
        a(f"v_add_u32 v53, 0x10000, {vL16}",
          f"s_lshl_b32 {T[1]}, {sW}, 13", f"s_add_u32 {T[1]}, {T[1]}, {LB}", f"v_add_u32 v54, {T[1]}, {vL16}",
          f"s_lshl_b32 {T[1]}, {sCH}, 12", f"s_lshl_b32 {T[2]}, {sRH}, 11", f"s_add_u32 {T[1]}, {T[1]}, {T[2]}", f"s_add_u32 {T[1]}, {T[1]}, {LB}",
          f"v_add_u32 v55, {T[1]}, {vL16}")
        a(f"s_lshr_b32 {T[1]}, {sR0}, 4", f"s_lshl_b32 {T[2]}, {sRH}, 1", f"s_add_u32 {T[1]}, {T[1]}, {T[2]}", f"s_mul_i32 {T[1]}, {T[1]}, {22 * 1024}",
          f"s_add_u32 {T[2]}, {sT0}, {sCH}", f"s_lshl_b32 {T[2]}, {T[2]}, 9", f"s_add_u32 {T[1]}, {T[1]}, {T[2]}", f"s_add_u32 {sU[9]}, {T[1]}, {WS_G}",
          f"s_add_u32 {sU[10]}, {sU[9]}, {22 * 1024}")
        self.poll(vFP32, T[3], 28)
        self.stamp("s5")
        a("v_lshlrev_b32 v62, 16, v62", "v_lshlrev_b32 v63, 16, v63")
        tok = {}
        def loads(p, u):
            t, sub = u >> 1, u & 1
            L = []
            if sub == 0: L.append(f"s_add_u32 {T[0]}, {sROT[t]}, {p * 0x20000}")
            for f in range(2):
                L.append(f"buffer_load_dwordx4 {v(BUF + (2 * u + f) * 4, 4)}, {vL16 if f == 0 else 'v53'}, {sWS}, {T[0]} offen offset:{1024 * sub} sc1")
            L.append(lambda: tok.__setitem__((p, u), a.vtok()))
            return L
        for u in range(16): self.emit(loads(0, u))
        def red_write(p):
            A = ACC + 32 * (p & 1)
            return [f"ds_write_b128 v54, {v(A + 4 * i, 4)} offset:{(p & 1) * 32768 + i * 1024}" for i in range(8)]
        def red_read(p):
            return [f"ds_read_b128 {v(RED + (sw * 2 + rt) * 4, 4)}, v55 offset:{(p & 1) * 32768 + sw * 8192 + rt * 1024}" for sw in range(3) for rt in range(2)]
        def red_read2(p):
            return [f"ds_read_b128 {v(ACC + 32 * (p & 1) + rt * 4, 4)}, v55 offset:{(p & 1) * 32768 + 3 * 8192 + rt * 1024}" for rt in range(2)]
        def gate(p):
            L = []
            A = ACC + 32 * (p & 1)
            for rt in range(2):
                for k in range(2):
                    o = 4 * rt + 2 * k
                    L += [f"v_pk_add_f32 {v(A + o, 2)}, {v(A + o, 2)}, {v(RED + o, 2)}",
                          f"v_pk_add_f32 {v(RED + 8 + o, 2)}, {v(RED + 8 + o, 2)}, {v(RED + 16 + o, 2)}"]
            for rt in range(2):
                for k in range(2):
                    o = 4 * rt + 2 * k
                    z = vZ1 + (rt * 3 + p) * 2 + k
                    L += [f"v_pk_add_f32 {v(A + o, 2)}, {v(A + o, 2)}, {v(RED + 8 + o, 2)}",
                          f"v_lshlrev_b32 v{RED + o}, 16, v{z}", f"v_and_b32 v{RED + o + 1}, {sHIMASK}, v{z}",
                          f"v_add_f32 v{A + o}, v{A + o}, v{62 + rt}", f"v_add_f32 v{A + o + 1}, v{A + o + 1}, v{62 + rt}",
                          f"v_pk_mul_f32 {v(A + o, 2)}, {v(A + o, 2)}, {v(RED + o, 2)}"]
            for rt in range(2):
                L += [f"v_cvt_pk_bf16_f32 v{RED + 2 * rt + k}, v{A + 4 * rt + 2 * k}, v{A + 4 * rt + 2 * k + 1}" for k in range(2)]
            return L
        def gstore(p):
            L = []
            if p == 2:
                sk, zr = a.label("gskip"), a.label("gstore")
                L.append(lambda: a(f"s_cmp_eq_u32 {sU[8]}, 0", f"s_cbranch_scc1 {zr}", f"s_cmp_eq_u32 {sCB}, 7", f"s_cbranch_scc0 {sk}",
                                   *[f"v_mov_b32 v{RED + k}, 0" for k in range(4)], f"{zr}:"))
            L += [f"buffer_store_dwordx2 {v(RED + 2 * rt, 2)}, {vPAT}, {sWS}, {sU[9 + rt]} offen offset:{1024 * p} sc1" for rt in range(2)]
            if p == 2: L.append(lambda: a(f"{sk}:"))
            return L
        for p in range(3):
            A = ACC + 32 * (p & 1)
            for u in range(16):
                a.wait(vm=tok[(p, u)])
                ms = []
                for f in range(2):
                    for tt in range(4):
                        ms.append(mfma16(A + (f * 4 + tt) * 4, v(BUF + (2 * u + f) * 4, 4), ar((u * 4 + tt) * 4, 4), "0" if u == 0 else None))
                fill = []
                if p > 0:
                    q = p - 1
                    if u in (1, 2): fill += red_write(q)[(u - 1) * 4:(u - 1) * 4 + 4]
                    if u == 4: fill += [lambda: a.wait(lg=a.lg), "s_barrier"]
                    if u == 5: fill += red_read(q) + red_read2(q)
                    if u == 7: fill += [lambda: a.wait(lg=a.lg)]
                    if 7 <= u <= 12:
                        g = gate(q); fill += g[(u - 7) * 6:(u - 7) * 6 + 6]
                    if u == 13: fill += gstore(q)
                ld = loads(p + 1, u) if p < 2 else []
                interleave(a, ms[:6], fill, per=2, start=1)
                a(ms[6]); self.emit(ld[:-2])
                a(ms[7]); self.emit(ld[-2:])
        self.stamp("wsp_gemm")
        self.emit(red_write(2))
        a.wait(lg=a.lg)
        self.barrier()
        self.emit(red_read(2) + red_read2(2))
        self.w128_read_base(56, 2)
        a("v_add_u32 v58, 0x10000, v56", "v_add_u32 v59, 0x10000, v57")
        a.wait(lg=a.lg)
        self.emit(gate(2))
        self.emit(gstore(2))
        for nt in range(2):
            for p in range(22):
                for hf in range(2):
                    base = 56 + nt + (2 if p >= 16 else 0)
                    a(f"ds_read_b64_tr_b16 {ar((nt * 22 + p) * 4 + 2 * hf, 2)}, v{base} offset:{LA + (p & 15) * 4096 + hf * 512}")
        self.cluster_flag_off(T[0], WS_F6, True)
        self.flag_store(T[0])
        self.stamp("g_pub")

    def phase_wout(self):
        a = self.a
        ACC = 192
        self.cluster_flag_off(T[3], WS_F6, False)
        a(f"s_mul_i32 {T[4]}, {sRH}, {2 * 22 * 1024}", f"v_add_u32 v30, {T[4]}, {vL16}")
        a.wait(lg=a.lg)
        self.barrier()
        self.poll(vFP32, T[3], 32)
        self.stamp("s6")
        chunks = [6, 6, 5, 5]
        toks = self.act_dma(WS_G, 22, chunks, LA)
        BUF = [64, 112]
        start = [0, 6, 12, 17]
        def reads(c):
            return [f"ds_read_b128 {v(BUF[c & 1] + (k * 2 + rt) * 4, 4)}, v30 offset:{(rt * 22 + start[c] + k) * 1024}" for k in range(chunks[c]) for rt in range(2)]
        a(f"v_and_b32 v32, 15, {vLANE}", f"v_lshrrev_b32 v33, 4, {vLANE}", "v_lshlrev_b32 v32, 10, v32",
          "v_and_b32 v34, 1, v33", "v_lshl_add_u32 v32, v34, 5, v32", "v_lshrrev_b32 v33, 1, v33", "v_lshl_add_u32 v32, v33, 4, v32",
          f"s_lshl_b32 {T[3]}, {sRH}, 5", f"s_add_u32 {T[3]}, {T[3]}, {sR0}", f"s_lshl_b32 {T[3]}, {T[3]}, 10",
          f"s_lshl_b32 {T[4]}, {sCB}, 7", f"s_add_u32 {T[3]}, {T[3]}, {T[4]}", f"s_lshl_b32 {T[4]}, {sCH}, 6", f"s_add_u32 {sU[9]}, {T[3]}, {T[4]}",
          f"s_add_u32 {sU[10]}, {sU[9]}, 0x4000")
        for i in range(8):
            a(f"v_lshlrev_b32 v{208 + 2 * i}, 16, v{vH + i}", f"v_and_b32 v{209 + 2 * i}, {sHIMASK}, v{vH + i}")
        a.wait(vm=toks[0])
        self.barrier()
        self.emit(reads(0))
        for c in range(4):
            fill = []
            if c < 3:
                a.wait(vm=toks[c + 1], lg=a.lg)
                self.barrier()
                fill = reads(c + 1)
            else:
                a.wait(lg=a.lg)
            ms = []
            for k in range(chunks[c]):
                p = start[c] + k
                for rt in range(2):
                    for nt in range(2):
                        d = ACC + (rt * 2 + nt) * 4
                        ms.append(mfma16(d, ar((nt * 22 + p) * 4, 4), v(BUF[c & 1] + (k * 2 + rt) * 4, 4), v(208 + (rt * 2 + nt) * 4, 4) if p == 0 else None))
            interleave(a, ms, fill)
        self.stamp("wout_gemm")
        for rt in range(2):
            for nt in range(2):
                d = ACC + (rt * 2 + nt) * 4
                for k in range(2): a(f"v_cvt_pk_bf16_f32 v{64 + 4 * rt + 2 * nt + k}, v{d + 2 * k}, v{d + 2 * k + 1}")
        for rt in range(2):
            b = 64 + 4 * rt
            a(f"v_permlane16_swap_b32 v{b}, v{b + 2}", f"v_permlane16_swap_b32 v{b + 1}, v{b + 3}")
            a(f"buffer_store_dwordx4 {v(b, 4)}, v32, {sOUT}, {sU[9 + rt]} offen")

    def epilogue(self):
        a = self.a
        a("L_finish:")
        a("s_cmp_eq_u32 s2, 0", f"s_cselect_b32 {T[0]}, {sW}, 1", f"s_cmp_eq_u32 {T[0]}, 0", "s_cbranch_scc0 L_noepoch",
          "s_mov_b64 exec, 1", f"buffer_store_dwordx2 {vTAG}, off, {sWS}, 0 sc1", "s_mov_b64 exec, -1", "L_noepoch:")
        if self.stamps:
            a("s_waitcnt vmcnt(0)")
            self.stamp("end")
            a(f"s_lshl_b32 {T[0]}, s2, 2", f"s_add_u32 {T[0]}, {T[0]}, {sW}", f"s_lshl_b32 {T[0]}, {T[0]}, 7", f"s_add_u32 {T[0]}, {T[0]}, {WS_DBG}",
              "s_mov_b64 exec, 1")
            for i in range(16):
                a(f"v_mov_b32 v8, s{STAMP0 + i}", f"buffer_store_dword v8, off, {sWS}, {T[0]} offset:{4 * i}")
            a("s_cmp_eq_u32 s2, 100", f"s_cselect_b32 {T[0]}, {sW}, 1", f"s_cmp_eq_u32 {T[0]}, 0", "s_cbranch_scc0 L_nodbg",
              "s_load_dwordx2 s[4:5], s[0:1], 72", "s_mov_b32 s6, 256", "s_waitcnt lgkmcnt(0)")
            for i in range(16):
                a(f"v_mov_b32 v8, s{STAMP0 + i}", f"buffer_store_dword v8, off, {sX}, 0 offset:{4 * i}")
            a("L_nodbg:")
        a("s_waitcnt vmcnt(0)", "L_exit:", "s_endpgm")

    def build(self):
        self.prologue()
        self.phase_qkv(); self.maybe_stop("qkv")
        self.phase_attn(); self.maybe_stop("attn")
        self.phase_wo(); self.maybe_stop("wo")
        self.phase_win(); self.maybe_stop("win")
        self.phase_wsp(); self.maybe_stop("wsp")
        self.phase_wout()
        self.epilogue()
        self.attn_slow()
        body = self.a.finish()
        ref = open(f"cdna_kernels/{NAME}.s.ref").read().split("\n")
        head = [l for l in ref if l.startswith(";") and "@launch" not in l and "Override" not in l and "grid=ceil" not in l]
        head = head[:head.index([l for l in head if "d_ws" in l][0]) + 1]
        return ("\n".join(head) + f"\n; @launch grid=(256,1,1) block=(256,1,1) lds={LDS_BYTES}\n"
                + '.amdgcn_target "amdgcn-amd-amdhsa--gfx950"\n.text\n'
                + f".globl {NAME}_kernel\n.p2align 8\n.type {NAME}_kernel,@function\n{NAME}_kernel:\n" + body
                + f""".section .rodata,"a"
.p2align 6
.amdhsa_kernel {NAME}_kernel
  .amdhsa_next_free_vgpr 512
  .amdhsa_next_free_sgpr 102
  .amdhsa_accum_offset 256
  .amdhsa_group_segment_fixed_size 0
  .amdhsa_kernarg_size 88
  .amdhsa_user_sgpr_count 2
  .amdhsa_user_sgpr_kernarg_segment_ptr 1
  .amdhsa_system_sgpr_workgroup_id_x 1
  .amdhsa_float_denorm_mode_32 3
.end_amdhsa_kernel
""")

if __name__ == "__main__":
    import argparse
    ap = argparse.ArgumentParser()
    ap.add_argument("-o", default=f"cdna_kernels/{NAME}.s")
    ap.add_argument("--stop"); ap.add_argument("--stamps", action="store_true"); ap.add_argument("--slow", action="store_true")
    o = ap.parse_args()
    g = Gen(o.stop, o.stamps, o.slow)
    s = g.build()
    open(o.o, "w").write(s)
    print(f"wrote {o.o}: {len(s)} bytes, {len(g.a.items)} items, {g.a.nops_added} nops; stamps: {g.stamp_names}")
```

```python
import sys, struct
from asmdsl import Asm

NAME = "sequential_preLN__softmax_full_mha__mixer_gmlp__prompt"

WS_EPOCH = 0
WS_F1, WS_F2, WS_F3, WS_F4, WS_F5, WS_F6 = 0x1000, 0x5000, 0x7000, 0x9000, 0xB000, 0xD000
WS_ST3, WS_ST4 = 0x10000, 0x50000
WS_Q, WS_KV, WS_O, WS_H, WS_Z, WS_G = 0x100000, 0x300000, 0x700000, 0x900000, 0xB00000, 0xE00000
WS_DBG = 0x1100000
WS_SIZE = 0x1400000

LA, LC, LB = 0, 65536, 98304
LDS_BYTES = 163840

sX, sWQKV, sWO, sWIN, sWSP, sBSP, sWOUT, sOUT, sWS = ("s[%d:%d]" % (b, b + 3) for b in range(4, 40, 4))
sJ, sRB, sCB, sHEAD, sW, sR0, sRH, sCH, sT0, sCNT5 = ("s%d" % i for i in range(40, 50))
sTAG = "s[50:51]"
sONES, sHIMASK, sCLU, sPOLL = "s52", "s53", "s54", "s55"
T = ["s%d" % i for i in range(56, 64)]
sROT = ["s%d" % i for i in range(64, 72)]
sU = ["s%d" % i for i in range(72, 84)]
STAMP0 = 84

vLANE, vL16, vPAT, vZ = "v0", "v1", "v2", "v3"
vTAG = "v[4:5]"
vFP32, vFP8 = "v6", "v7"
vH = 8
vZ1 = 16

def v(a, n=1): return f"v{a}" if n == 1 else f"v[{a}:{a + n - 1}]"
def ar(a, n=1): return f"a{a}" if n == 1 else f"a[{a}:{a + n - 1}]"
def f2u(x): return "0x%08x" % struct.unpack("<I", struct.pack("<f", x))[0]

def mfma16(d, a, b, c=None):
    return f"v_mfma_f32_16x16x32_bf16 {v(d,4)}, {a}, {b}, {c if c is not None else v(d,4)}"

def interleave(a, mains, fillers, per=1, start=0):
    k = 0
    for i, m in enumerate(mains):
        m() if callable(m) else a(m)
        if i >= start:
            for _ in range(per):
                if k < len(fillers):
                    f = fillers[k]; k += 1
                    f() if callable(f) else a(f)
    while k < len(fillers):
        f = fillers[k]; k += 1
        f() if callable(f) else a(f)

class Gen:
    def __init__(self, stop=None, stamps=False, force_fallback=False, calib=0, **opt):
        self.calib = calib
        self.opt = opt
        self.a = Asm()
        self.stop = stop
        self.stamps = stamps
        self.force_fallback = force_fallback
        self.nstamp = 0
        self.stamp_names = []

    def stamp(self, name):
        if not self.stamps: return
        a = self.a
        a.wait(lg=a.lg)
        a(f"s_memrealtime s[100:101]", "s_waitcnt lgkmcnt(0)")
        n = self.nstamp
        if n == 0:
            a(f"s_mov_b32 s{STAMP0}, s100")
        else:
            r = STAMP0 + 1 + (n - 1) // 2
            a(f"s_sub_u32 s100, s100, s{STAMP0}")
            a(f"s_mov_b32 s{r}, s100" if n & 1 else f"s_pack_ll_b32_b16 s{r}, s{r}, s100")
        self.nstamp += 1; self.stamp_names.append(name)
        assert self.nstamp <= 31

    def maybe_stop(self, name):
        if self.stop == name:
            self.a.wait_all()
            self.a("s_branch L_finish")

    def flag_store(self, soff):
        a = self.a
        a.wait(vm=a.vm, force=True)
        a("s_mov_b64 exec, 1", f"buffer_store_dwordx2 {vTAG}, off, {sWS}, {soff} sc1", "s_mov_b64 exec, -1")

    def poll(self, voff, soff, tmp):
        a = self.a
        L, E = a.label("poll"), a.label("polled")
        a(f"s_mov_b32 {sPOLL}, 0x40000", f"{L}:",
          f"buffer_load_dwordx2 {v(tmp,2)}, {voff}, {sWS}, {soff} offen sc1")
        a.wait(vm=a.vm, force=True)
        a(f"v_cmp_ne_u64 vcc, {sTAG}, {v(tmp,2)}",
          f"s_sub_u32 {sPOLL}, {sPOLL}, 1", f"s_cbranch_scc1 {E}", f"s_cbranch_vccnz {L}", f"{E}:")

    def barrier(self):
        self.a("s_barrier")

    def prologue(self):
        a = self.a
        a("s_cmp_ge_u32 s2, 256", "s_cbranch_scc1 L_exit")
        self.stamp("entry")
        for d, off, n in self.SRDS: a(f"s_load_dwordx2 s[{d}:{d + 1}], s[0:1], {off}")
        for d, off, n in self.SRDS: a(f"s_mov_b32 s{d + 2}, {n}", f"s_mov_b32 s{d + 3}, 0x00020000")
        a("v_lshrrev_b32 v8, 6, v0", f"v_and_b32 {vLANE}, 63, v0", f"v_readfirstlane_b32 {sW}, v8",
          f"s_and_b32 {sJ}, s2, 7", f"s_lshr_b32 {sHEAD}, s2, 3", f"s_lshr_b32 {sRB}, {sHEAD}, 3", f"s_and_b32 {sCB}, {sHEAD}, 7",
          f"s_lshl_b32 {sR0}, {sJ}, 8", f"s_lshl_b32 {T[0]}, {sRB}, 6", f"s_add_u32 {sR0}, {sR0}, {T[0]}",
          f"s_lshr_b32 {sRH}, {sW}, 1", f"s_and_b32 {sCH}, {sW}, 1",
          f"s_lshl_b32 {sCLU}, {sJ}, 2", f"s_add_u32 {sCLU}, {sCLU}, {sRB}",
          f"s_mov_b32 {sONES}, 0x3f803f80", f"s_mov_b32 {sHIMASK}, 0xffff0000")
        a(f"s_mul_i32 {T[0]}, {sCB}, 5", f"s_min_u32 {T[1]}, {sCB}, 3", f"s_add_u32 {sT0}, {T[0]}, {T[1]}",
          f"s_cmp_ge_u32 {sCB}, 3", f"s_cselect_b32 {sCNT5}, 1, 0")
        a(f"v_lshlrev_b32 {vL16}, 4, {vLANE}", f"v_mov_b32 {vZ}, 0",
          f"v_and_b32 v8, 15, {vLANE}", f"v_lshrrev_b32 v9, 5, {vLANE}", f"v_bfe_u32 v10, {vLANE}, 4, 1",
          f"v_lshlrev_b32 v8, 4, v8", f"v_lshl_add_u32 v8, v10, 3, v8",
          f"v_lshl_add_u32 {vPAT}, v9, 8, v8",
          f"v_lshl_add_u32 v63, v9, 9, v8",
          f"v_and_b32 {vFP32}, 31, {vLANE}", f"v_lshlrev_b32 {vFP32}, 3, {vFP32}",
          f"v_and_b32 {vFP8}, 7, {vLANE}", f"v_lshlrev_b32 {vFP8}, 3, {vFP8}")

    SRDS = [(4, 0, 2048 * 512 * 2), (8, 8, 512 * 1536 * 2), (36, 80, WS_SIZE), (12, 16, 512 * 512 * 2), (16, 32, 512 * 1376 * 2),
            (20, 40, 2048 * 2048 * 2), (24, 48, 2048 * 2), (28, 56, 688 * 512 * 2), (32, 64, 2048 * 512 * 2)]

    def phase_qkv(self):
        a = self.a
        XR, ACC, AF, WF = 64, 128, 176, 208
        vXa, vXb, vW0, vW1, vWrA, vWrB, vXe, vXo, vXw = "v28", "v29", "v30", "v31", "v32", "v33", "v34", "v35", "v36"
        a(f"v_lshrrev_b32 v8, 3, {vLANE}", f"v_and_b32 v9, 7, {vLANE}",
          f"v_lshlrev_b32 v10, 10, v8", f"v_lshl_add_u32 {vXa}, v9, 4, v10",
          f"s_lshl_b32 {T[0]}, {sW}, 4", f"s_add_u32 {T[0]}, {T[0]}, {sR0}", f"s_lshl_b32 {T[0]}, {T[0]}, 10",
          f"v_add_u32 {vXa}, {T[0]}, {vXa}", f"v_add_u32 {vXb}, 0x2000, {vXa}")
        a(f"v_bfe_u32 v10, {vLANE}, 4, 1", "v_lshrrev_b32 v11, 1, v9", "v_xor_b32 v11, v11, v10",
          "v_and_b32 v12, 1, v9", "v_lshl_or_b32 v11, v11, 1, v12", "v_lshlrev_b32 v11, 4, v11",
          "v_mul_u32_u24 v12, 3072, v8", "v_add_u32 v12, v12, v11",
          f"s_mul_i32 {T[0]}, {sW}, {16 * 3072}", f"s_lshl_b32 {T[1]}, {sCB}, 7", f"s_add_u32 {T[0]}, {T[0]}, {T[1]}",
          f"v_add_u32 {vW0}, {T[0]}, v12", f"v_xor_b32 {vW1}, 64, {vW0}", f"v_add_u32 {vW1}, {8 * 3072 - 1024}, {vW1}")
        a(f"v_lshrrev_b32 v10, 4, {vLANE}", f"v_bfe_u32 v11, {vLANE}, 2, 2", f"v_and_b32 v12, 3, {vLANE}",
          "v_lshl_add_u32 v13, v10, 3, v11", "v_lshlrev_b32 v13, 7, v13", "v_lshl_add_u32 v13, v12, 3, v13",
          "v_lshrrev_b32 v11, 1, v11", "v_and_b32 v14, 1, v10", "v_lshl_or_b32 v11, v14, 1, v11",
          f"v_xor_b32 v11, {sW}, v11", f"v_lshl_add_u32 {vWrA}, v11, 5, v13", f"v_add_u32 {vWrB}, {2 * 24576}, {vWrA}")
        a("v_lshrrev_b32 v11, 2, v9", "v_lshlrev_b32 v11, 10, v11", "v_and_b32 v12, 3, v9", "v_lshl_add_u32 v11, v12, 8, v11",
          "v_xor_b32 v12, v8, v9", "v_lshl_add_u32 v11, v12, 4, v11",
          f"s_lshl_b32 {T[0]}, {sW}, 14", f"s_add_u32 {T[0]}, {T[0]}, {LB}", f"v_add_u32 {vXw}, {T[0]}, v11",
          f"v_and_b32 v11, 15, {vLANE}", "v_xor_b32 v11, v11, v10", "v_lshl_add_u32 v11, v10, 4, v11", "v_lshlrev_b32 v11, 4, v11",
          f"v_add_u32 {vXe}, {LB}, v11", f"v_xor_b32 {vXo}, 64, {vXe}")
        for m in range(4):
            a(f"s_add_u32 {T[0]}, {sRB}, {m}", f"s_and_b32 {T[0]}, {T[0]}, 3",
              f"s_lshl_b32 {sROT[m]}, {T[0]}, 8", f"s_mul_i32 {sROT[4 + m]}, {T[0]}, {2 * 64 * 3072}")
        a(f"s_lshl_b32 {sU[0]}, {sW}, 11")
        a("s_waitcnt lgkmcnt(0)")
        self.stamp("kernarg")
        xtok = []
        for t in range(8):
            for g, vx in enumerate((vXa, vXb)):
                a(f"buffer_load_dwordx4 {v(XR + (g * 8 + t) * 4, 4)}, {vx}, {sX}, {sROT[t >> 1]} offen offset:{(t & 1) * 128}")
            xtok.append(a.vtok())
        wtok = {}
        def wdma(t):
            L = []
            slot = t & 3
            for p in range(3):
                L.append(f"s_add_u32 {T[2]}, {sROT[4 + (t >> 1)]}, {(t & 1) * 64 * 3072 + p * 1024}")
                L.append(f"s_add_u32 m0, {sU[0]}, {slot * 24576 + p * 8192}")
                L.append(f"buffer_load_dwordx4 {vW0}, {sWQKV}, {T[2]} offen lds")
                L.append(f"buffer_load_dwordx4 {vW1}, {sWQKV}, {T[2]} offen offset:1024 lds")
            L.append(lambda: wtok.__setitem__(t, a.vtok()))
            return L
        for t in range(4):
            for x in wdma(t): x() if callable(x) else a(x)
        a(f"buffer_load_dwordx2 v[4:5], off, {sWS}, 0 sc1")
        etok = a.vtok()
        for t in range(8):
            a.wait(vm=xtok[t])
            for k in range(4):
                for g in range(2):
                    x = v(XR + (g * 8 + t) * 4 + k)
                    first = t == 0 and k == 0
                    a(f"v_dot2_f32_bf16 v{8 + 2 * g}, {x}, {sONES}, {'0' if first else 'v%d' % (8 + 2 * g)}",
                      f"v_dot2_f32_bf16 v{9 + 2 * g}, {x}, {x}, {'0' if first else 'v%d' % (9 + 2 * g)}")
        for mod in ("quad_perm:[1,0,3,2]", "quad_perm:[2,3,0,1]", "row_half_mirror"):
            for r in range(8, 12):
                a(f"v_add_f32_dpp v{r}, v{r}, v{r} {mod} row_mask:0xf bank_mask:0xf")
        self.ln_finish([(8, 9, 12), (10, 11, 14)], 1.0 / 512)
        n = 0
        for t in range(8):
            for g in range(2):
                b = XR + (g * 8 + t) * 4
                tp = [16 + 2 * ((n + k) % 6) for k in range(4)]; n += 4
                for k in range(4):
                    a(f"v_lshlrev_b32 v{tp[k]}, 16, v{b + k}", f"v_and_b32 v{tp[k] + 1}, {sHIMASK}, v{b + k}")
                for k in range(4):
                    a(f"v_pk_fma_f32 {v(tp[k], 2)}, {v(tp[k], 2)}, {v(12 + 2 * g, 2)}, {v(12 + 2 * g, 2)} op_sel:[0,0,1] op_sel_hi:[1,0,1]")
                for k in range(4):
                    a(f"v_cvt_pk_bf16_f32 v{b + k}, v{tp[k]}, v{tp[k] + 1}")
                a(f"ds_write_b128 {vXw}, {v(b, 4)} offset:{t * 2048 + g * 128}")
        self.stamp("ln1")
        a.wait(vm=wtok[0], lg=a.lg)
        self.barrier()
        def reads(s):
            t, sub = s >> 1, s & 1
            slot = t & 3
            wb = vWrA if slot < 2 else vWrB
            wo = (slot & 1) * 24576 + sub * 4096
            A, W = AF + 16 * (s & 1), WF + 12 * (s & 1)
            L = [f"ds_read_b64_tr_b16 {v(W + 2 * h, 2)}, {wb} offset:{wo + 512 * h}" for h in range(2)]
            L += [f"ds_read_b128 {v(A + 4 * rt, 4)}, {vXo if s & 1 else vXe} offset:{(rt * 16 + s) * 1024}" for rt in range(4)]
            L += [f"ds_read_b64_tr_b16 {v(W + 4 * p + 2 * h, 2)}, {wb} offset:{wo + 8192 * p + 512 * h}" for p in (1, 2) for h in range(2)]
            return L
        for x in reads(0): a(x)
        for s in range(16):
            t = s >> 1
            a.wait(lg=a.lg)
            fill = []
            if s & 1:
                if t < 7: a.wait(vm=wtok[t + 1])
                self.barrier()
            if s < 15: fill += reads(s + 1)
            if s & 1 and t < 4: fill += wdma(t + 4)
            if s == 15: fill += self.const_fill()
            A, W = AF + 16 * (s & 1), WF + 12 * (s & 1)
            ms = []
            for p in range(3):
                for rt in range(4):
                    d = ACC + 16 * p + 4 * rt
                    wv, av = v(W + 4 * p, 4), v(A + 4 * rt, 4)
                    c = "0" if s == 0 else None
                    ms.append(mfma16(d, wv, av, c) if p < 2 else mfma16(d, av, wv, c))
            interleave(a, ms, fill, per=2)
        self.stamp("qkv_gemm")
        a.wait(vm=etok)
        a("v_add_u32 v4, 0x9e3779b9, v4", "v_add_u32 v5, 0x7f4a7c15, v5", "v_readfirstlane_b32 s50, v4", "v_readfirstlane_b32 s51, v5")
        QS = 0.25 * 1.4426950408889634
        a(f"s_mov_b32 {T[0]}, {f2u(QS)}",
          f"s_lshl_b32 {T[1]}, {sCB}, 2", f"s_add_u32 {T[1]}, {T[1]}, {sW}",
          f"s_lshl_b32 {T[2]}, {T[1]}, 16", f"s_lshl_b32 {T[3]}, {sR0}, 5", f"s_add_u32 {T[2]}, {T[2]}, {T[3]}",
          f"s_add_u32 {T[2]}, {T[2]}, {WS_Q}",
          f"s_lshl_b32 {T[4]}, {T[1]}, 17", f"s_lshl_b32 {T[3]}, {sR0}, 6", f"s_add_u32 {T[4]}, {T[4]}, {T[3]}",
          f"s_add_u32 {T[4]}, {T[4]}, {WS_KV}", f"s_add_u32 {T[5]}, {T[4]}, 2048")
        PK = 64
        for p in (1, 2, 0):
            for rt in range(4):
                d = ACC + 16 * p + 4 * rt
                o = PK + 8 * p + 2 * rt
                if p == 0:
                    for k in range(4): a(f"v_mul_f32 v{d + k}, {T[0]}, v{d + k}")
                a(f"v_cvt_pk_bf16_f32 v{o}, v{d}, v{d + 1}", f"v_cvt_pk_bf16_f32 v{o + 1}, v{d + 2}, v{d + 3}")
                if p < 2:
                    a(f"buffer_store_dwordx2 {v(o, 2)}, v63, {sWS}, {T[2] if p == 0 else T[4]} offen offset:{(rt >> 1) * 1024 + (rt & 1) * 256} sc1")
                else:
                    a(f"buffer_store_dwordx2 {v(o, 2)}, {vPAT}, {sWS}, {T[5]} offen offset:{rt * 512} sc1")
        a(f"s_lshl_b32 {T[0]}, {sRB}, 5", f"s_add_u32 {T[0]}, {T[0]}, {T[1]}", f"s_lshl_b32 {T[0]}, {T[0]}, 7",
          f"s_lshl_b32 {T[1]}, {sJ}, 3", f"s_add_u32 {T[0]}, {T[0]}, {T[1]}", f"s_add_u32 {T[0]}, {T[0]}, {WS_F1}")
        self.attn_addresses()
        self.flag_store(T[0])
        self.stamp("qkv_pub")

    def ln_finish(self, chains, inv_n):
        a = self.a
        for s1, s2, d in chains: a(f"v_mul_f32 v{s1}, {f2u(inv_n)}, v{s1}", f"v_mul_f32 v{s2}, {f2u(inv_n)}, v{s2}")
        for s1, s2, d in chains: a(f"v_fma_f32 v{s2}, -v{s1}, v{s1}, v{s2}")
        for s1, s2, d in chains: a(f"v_max_f32 v{s2}, 0, v{s2}")
        for s1, s2, d in chains: a(f"v_add_f32 v{s2}, {f2u(1e-5)}, v{s2}")
        for s1, s2, d in chains: a(f"v_rsq_f32 v{d}, v{s2}")
        for s1, s2, d in chains: a(f"v_mul_f32_e64 v{d + 1}, -v{s1}, v{d}")

    def const_fill(self):
        L = [f"v_and_b32 v8, 27, {vLANE}", "v_cmp_eq_u32 vcc, 1, v8", f"v_mov_b32 v9, {sONES}",
             "v_cndmask_b32 v12, v3, v9, vcc", "v_mov_b32 v13, v12", "v_mov_b32 v14, v12", "v_mov_b32 v15, v12",
             f"s_lshl_b32 {T[3]}, {sW}, 12", f"s_add_u32 {T[3]}, {T[3]}, {LC + 2048}", f"v_add_u32 v9, {T[3]}, {vL16}",
             "ds_write_b128 v9, v[12:15]", "ds_write_b128 v9, v[12:15] offset:1024"]
        return L

    S, OA, NM, QF, KB, VB = 64, 112, 144, 176, 184, 192
    vIDX, vSP0, vKA, vKB2, vVB, vVI, vWD0, vXR = 208, 209, 213, 214, 215, 216, 217, 240

    def attn_addresses(self):
        a = self.a
        a(f"v_and_b32 v8, 15, {vLANE}", f"v_lshrrev_b32 v9, 4, {vLANE}", "v_lshlrev_b32 v10, 12, v8", "v_lshl_add_u32 v10, v9, 4, v10",
          f"s_lshl_b32 {T[6]}, {sR0}, 12", f"s_lshl_b32 {T[7]}, {sW}, 7", f"s_add_u32 {T[6]}, {T[6]}, {T[7]}",
          f"v_add_u32 v{self.vSP0}, {T[6]}, v10")
        for tt in range(1, 4): a(f"v_add_u32 v{self.vSP0 + tt}, {tt * 65536}, v{self.vSP0}")
        a(f"v_mov_b32 v{self.vIDX}, 0xdddddddd", f"v_mov_b32 v{self.vKA}, {vL16}", f"v_add_u32 v{self.vKB2}, {LB}, {vL16}")
        a(f"v_lshrrev_b32 v10, 5, {vLANE}", "v_lshl_add_u32 v10, v10, 4, v8", "v_lshlrev_b32 v10, 4, v10",
          f"v_and_b32 v11, 31, {vLANE}", f"v_bfe_u32 v12, {vLANE}, 2, 2",
          "v_add_u32 v12, -1, v12", "v_cmp_gt_u32 vcc, 2, v12", "v_cndmask_b32_e64 v12, 0, 4, vcc",
          "v_and_b32 v13, 27, v11", "v_cmp_eq_u32 vcc, 16, v13", "v_cndmask_b32_e64 v13, 0, 1, vcc",
          "v_add_u32 v12, v12, v13", "v_lshlrev_b32 v12, 4, v12", f"v_add_u32 v12, {LC}, v12",
          "v_cmp_gt_u32 vcc, 16, v11", f"v_cndmask_b32 v{self.vVB}, v12, v10, vcc",
          f"v_mov_b32 v13, 0x4000", f"v_cndmask_b32 v{self.vVI}, v3, v13, vcc")
        self.w128_addresses(self.vWD0)
        for t in range(8):
            a(f"s_add_u32 {T[6]}, {sJ}, {t}", f"s_and_b32 {sROT[t]}, {T[6]}, 7")
        a(f"s_lshl_b32 {sU[0]}, {sHEAD}, 17", f"s_lshl_b32 {T[6]}, {sW}, 12", f"s_add_u32 {sU[0]}, {sU[0]}, {T[6]}",
          f"s_add_u32 {sU[0]}, {sU[0]}, {WS_KV}", f"s_mov_b32 {sU[1]}, {T[6]}")

    def w128_addresses(self, r):
        a = self.a
        a(f"v_lshrrev_b32 v28, 3, {vLANE}", f"v_and_b32 v29, 7, {vLANE}", f"v_bfe_u32 v30, {vLANE}, 4, 1",
          "v_lshrrev_b32 v31, 1, v29", "v_xor_b32 v31, v31, v30", "v_and_b32 v32, 1, v29", "v_lshl_or_b32 v31, v31, 1, v32",
          "v_lshlrev_b32 v31, 4, v31", "v_lshl_add_u32 v31, v28, 10, v31",
          f"s_lshl_b32 {T[6]}, {sCB}, 7", f"v_add_u32 v{r}, {T[6]}, v31", f"v_xor_b32 v{r + 1}, 64, v{r}",
          f"v_add_u32 v{r + 1}, {7 * 1024}, v{r + 1}", f"v_add_u32 v{r + 2}, {14 * 1024}, v{r}", f"v_add_u32 v{r + 3}, {14 * 1024}, v{r + 1}")

    def w128_dma(self, r, srd, grp, lds0):
        L = [f"s_add_u32 {T[4]}, {sU[2]}, {grp * 32768}", f"s_add_u32 m0, {sU[3]}, {lds0 + grp * 4096}"]
        L += [f"buffer_load_dwordx4 v{r + i}, {srd}, {T[4]} offen offset:{1024 * i} lds" for i in range(4)]
        return L

    def stage_base(self, t): return LA + 16384 * t if t < 4 else LB + 16384 * (t - 4)

    def kv_dma(self, t):
        L = [f"s_lshl_b32 {T[5]}, {sROT[t]}, 14", f"s_add_u32 {T[5]}, {T[5]}, {sU[0]}", f"s_add_u32 m0, {sU[1]}, {self.stage_base(t)}"]
        L += [f"buffer_load_dwordx4 {vL16}, {sWS}, {T[5]} offen offset:{1024 * i} sc1 lds" for i in range(4)]
        return L

    def phase_attn(self):
        a = self.a
        S, OA, NM, QF, KB, VB = self.S, self.OA, self.NM, self.QF, self.KB, self.VB
        a(f"s_lshl_b32 {T[0]}, {sW}, 5", f"s_add_u32 {T[0]}, {T[0]}, {sHEAD}", f"s_lshl_b32 {T[0]}, {T[0]}, 7", f"s_add_u32 {T[0]}, {T[0]}, {WS_F1}",
          f"s_lshl_b32 {T[1]}, {sHEAD}, 16", f"s_lshl_b32 {T[2]}, {sJ}, 13", f"s_add_u32 {T[1]}, {T[1]}, {T[2]}",
          f"s_lshl_b32 {T[2]}, {sW}, 11", f"s_add_u32 {T[1]}, {T[1]}, {T[2]}", f"s_add_u32 {sU[4]}, {T[1]}, {WS_Q}",
          f"s_lshl_b32 {sU[2]}, {sW}, 17", f"s_lshl_b32 {sU[3]}, {sW}, 14")
        self.poll(vFP8, T[0], 8)
        self.stamp("s1")
        for q in range(2):
            a(f"buffer_load_dwordx4 {v(QF + 4 * q, 4)}, {vL16}, {sWS}, {sU[4]} offen offset:{1024 * q} sc1")
        kvtok = {}
        for t in range(2):
            for x in self.kv_dma(t): a(x)
            kvtok[t] = a.vtok()
        for r in range(OA, OA + 32): a(f"v_mov_b32 v{r}, 0")
        a.wait(vm=kvtok[0], lg=a.lg)
        self.barrier()
        def kread(kt):
            t, k = kt >> 3, kt & 7
            base = self.vKA if t < 4 else self.vKB2
            return f"ds_read_b128 {v(KB + 4 * (kt & 1), 4)}, v{base} offset:{16384 * (t & 3) + (k >> 1) * 4096 + (k & 1) * 1024}"
        def vread(kt, hi):
            k = kt & 7
            return f"ds_read_b128 {v(VB + 8 * (kt & 1) + 4 * hi, 4)}, v{self.vVB} offset:{(k >> 1) * 4096 + 2048 + (k & 1) * 1024 + 512 * hi}"
        def qk(n, c=None):
            kt, q = n >> 1, n & 1
            return f"v_mfma_f32_32x32x16_bf16 {v(S + 16 * (n % 3), 16)}, {v(KB + 4 * (kt & 1), 4)}, {v(QF + 4 * q, 4)}, {c if c else v(NM + 16 * q, 16)}"
        def pv(n, hi):
            kt, q = n >> 1, n & 1
            return f"v_smfmac_f32_32x32x32_bf16 {v(OA + 16 * q, 16)}, {v(VB + 8 * (kt & 1) + 4 * hi, 4)}, {v(S + 16 * (n % 3) + 8 * hi, 8)}, v{self.vIDX}"
        a(kread(0), kread(1), vread(0, 0), vread(0, 1))
        a.wait(lg=a.lg)
        a(qk(0, "0"), qk(1, "0"))
        for q in range(2):
            b, m = S + 16 * q, 8 + 2 * q
            a(f"v_max3_f32 v{m}, v{b}, v{b + 1}, v{b + 2}")
            for k in range(3, 15, 2): a(f"v_max3_f32 v{m}, v{m}, v{b + k}, v{b + k + 1}")
            a(f"v_max_f32 v{m}, v{m}, v{b + 15}", f"v_mov_b32 v{m + 1}, v{m}")
        for q in range(2): a(f"v_permlane32_swap_b32 v{8 + 2 * q}, v{9 + 2 * q}")
        for q in range(2):
            m = 8 + 2 * q
            a(f"v_max_f32 v{m}, v{m}, v{m + 1}", f"v_sub_f32 v{m}, 0, v{m}")
            for r in range(16): a(f"v_mov_b32 v{NM + 16 * q + r}, v{m}")
        a(qk(0), qk(1))
        self.stamp("attn_start")
        free = {n: [] for n in range(128)}
        def put(n0, items):
            n = n0
            for it in items:
                while len(free[n]) >= 2: n += 2
                free[n].append(it)
            return n
        for t in range(7):
            n = 2 * (8 * t + 5) + 1
            free[n] = [lambda t=t: a.wait(vm=kvtok[t + 1], force=True), "s_barrier"]
        for t in range(6):
            put(16 * t + 1, self.kv_dma(t + 2) + [lambda t=t: kvtok.__setitem__(t + 2, a.vtok())])
        wotok = [0]
        wo = []
        for g in range(4): wo += self.w128_dma(self.vWD0, sWO, g, LA)
        wo.append(lambda: wotok.__setitem__(0, a.vtok()))
        sp = []
        for t in range(8):
            sp.append(f"s_lshl_b32 {T[7]}, {sROT[t]}, 9")
            for sub in range(2):
                for tt in range(4):
                    sp.append(f"buffer_load_dwordx4 {ar(((2 * t + sub) * 4 + tt) * 4, 4)}, v{self.vSP0 + tt}, {sWSP}, {T[7]} offen offset:{64 * sub}")
        xr = [f"s_lshl_b32 {T[6]}, {sRH}, 15", f"s_lshl_b32 {T[3]}, {sR0}, 10", f"s_add_u32 {T[6]}, {T[6]}, {T[3]}",
              f"s_lshl_b32 {T[3]}, {sCB}, 7", f"s_add_u32 {T[6]}, {T[6]}, {T[3]}", f"s_lshl_b32 {T[3]}, {sCH}, 6", f"s_add_u32 {T[6]}, {T[6]}, {T[3]}",
              f"s_add_u32 {T[3]}, {T[6]}, 0x4000"]
        for rt in range(2):
            for nt in range(2):
                xr.append(f"buffer_load_dwordx2 {v(self.vXR + 4 * rt + 2 * nt, 2)}, v62, {sX}, {T[6] if rt == 0 else T[3]} offen offset:{32 * nt}")
        extra = {n: [] for n in range(128)}
        spread = [(n, sp[(n * len(sp)) // 112:((n + 1) * len(sp)) // 112]) for n in range(112)]
        for n, items in spread: extra[n + 4] += items
        for i, it in enumerate(wo): extra[90 + i].append(it)
        for i, it in enumerate(xr): extra[112 + i].append(it)
        a(f"v_and_b32 v8, 15, {vLANE}", f"v_lshrrev_b32 v9, 4, {vLANE}", "v_lshlrev_b32 v8, 10, v8", "v_lshl_add_u32 v62, v9, 3, v8")
        def emit(items):
            for x in items: x() if callable(x) else a(x)
        for n in range(128):
            kt, q = n >> 1, n & 1
            b = S + 16 * (n % 3)
            E = lambda lo, hi: [a(f"v_exp_f32 v{b + r}, v{b + r}") for r in range(lo, hi)]
            sl = [[], [], []]
            if q == 0:
                if kt + 2 < 64: sl[0].append(kread(kt + 2))
                if kt + 1 < 64:
                    if (kt + 1) & 7 == 0:
                        t = (kt + 1) >> 3
                        inc = f"v_add_u32 v{self.vVB}, v{self.vVB}, v{self.vVI}"
                        sl[0].append(inc)
                        if t == 4: sl[0] += [inc, inc]
                    sl[1].append(vread(kt + 1, 0)); sl[2].append(vread(kt + 1, 1))
            else:
                fr = free[n]
                sl[0] += fr[:1]; sl[1] += fr[1:]
                sl[2].append(lambda: a.wait(lg=a.lg))
            sl[q].extend(extra[n])
            E(0, 2)
            if n > 0: a(pv(n - 1, 1))
            emit(sl[0])
            E(2, 7)
            if n + 2 < 128: a(qk(n + 2))
            emit(sl[1])
            E(7, 12)
            a(pv(n, 0))
            emit(sl[2])
            E(12, 16)
        a.wait(vm=wotok[0], lg=a.lg)
        a(pv(127, 1))
        self.barrier()
        self.stamp("attn_loop")
        for q in range(2):
            o = OA + 16 * q
            a(f"v_pk_add_f32 {v(8 + 4 * q, 2)}, {v(o, 2)}, {v(o + 2, 2)}", f"v_pk_add_f32 {v(10 + 4 * q, 2)}, {v(o + 4, 2)}, {v(o + 6, 2)}")
        for q in range(2): a(f"v_pk_add_f32 {v(8 + 4 * q, 2)}, {v(8 + 4 * q, 2)}, {v(10 + 4 * q, 2)}")
        a("v_add_f32 v8, v8, v9", "v_add_f32 v12, v12, v13", "v_add_f32 v8, v8, v12", f"v_max_f32 v9, v{OA + 8}, v{OA + 24}",
          f"v_add_f32 v10, v{OA + 8}, v{OA + 24}", "v_add_f32 v8, v8, v10",
          f"s_mov_b32 {T[0]}, 0x207", f"v_cmp_class_f32_e64 vcc, v8, {T[0]}",
          f"s_mov_b64 s[60:61], vcc", f"v_cmp_le_f32 vcc, {f2u(2.0 ** 64)}, v9", "s_or_b64 vcc, vcc, s[60:61]")
        if self.force_fallback: a("s_mov_b64 vcc, -1")
        a("s_cbranch_vccnz L_attn_slow", "L_attn_done:")
        for q in range(2): a(f"v_rcp_f32 v{8 + q}, v{OA + 16 * q + 8}")
        a(f"s_lshr_b32 {T[0]}, {sHEAD}, 1", f"s_lshl_b32 {T[0]}, {T[0]}, 10", f"s_and_b32 {T[1]}, {sHEAD}, 1", f"s_lshl_b32 {T[1]}, {T[1]}, 9",
          f"s_add_u32 {T[0]}, {T[0]}, {T[1]}", f"s_lshl_b32 {T[1]}, {sJ}, 18", f"s_add_u32 {T[0]}, {T[0]}, {T[1]}",
          f"s_lshl_b32 {T[1]}, {sW}, 16", f"s_add_u32 {T[0]}, {T[0]}, {T[1]}", f"s_add_u32 {T[0]}, {T[0]}, {WS_O}", f"s_add_u32 {T[1]}, {T[0]}, 0x8000",
          f"v_and_b32 v10, 15, {vLANE}", f"v_bfe_u32 v11, {vLANE}, 4, 1", f"v_lshrrev_b32 v12, 5, {vLANE}",
          "v_lshlrev_b32 v10, 4, v10", "v_lshl_add_u32 v10, v11, 14, v10", "v_lshl_add_u32 v10, v12, 3, v10")
        for q in range(2):
            o = OA + 16 * q
            for k in range(8): a(f"v_mul_f32 v{o + k}, v{o + k}, v{8 + q}")
            for k in range(4): a(f"v_cvt_pk_bf16_f32 v{192 + 4 * q + k}, v{o + 2 * k}, v{o + 2 * k + 1}")
            for hf in range(2):
                a(f"buffer_store_dwordx2 {v(192 + 4 * q + 2 * hf, 2)}, v10, {sWS}, {T[q]} offen offset:{256 * hf} sc1")
        self.w128_read_base(28, 2)
        for nt in range(2):
            for p in range(16):
                for hf in range(2):
                    a(f"ds_read_b64_tr_b16 {v(64 + (nt * 16 + p) * 4 + 2 * hf, 2)}, v{28 + nt} offset:{LA + p * 4096 + hf * 512}")
        a(f"s_lshl_b32 {T[0]}, {sJ}, 2", f"s_add_u32 {T[0]}, {T[0]}, {sW}", f"s_lshl_b32 {T[0]}, {T[0]}, 8",
          f"s_lshl_b32 {T[1]}, {sHEAD}, 3", f"s_add_u32 {T[0]}, {T[0]}, {T[1]}", f"s_add_u32 {T[0]}, {T[0]}, {WS_F2}")
        self.flag_store(T[0])
        self.stamp("attn_pub")

    def w128_read_base(self, b, n):
        a = self.a
        a(f"v_lshrrev_b32 v64, 4, {vLANE}", f"v_bfe_u32 v65, {vLANE}, 2, 2", f"v_and_b32 v66, 3, {vLANE}",
          "v_lshl_add_u32 v67, v64, 3, v65", "v_lshlrev_b32 v67, 7, v67", "v_lshl_add_u32 v67, v66, 3, v67",
          "v_lshrrev_b32 v65, 1, v65", "v_and_b32 v64, 1, v64", "v_lshl_or_b32 v65, v64, 1, v65",
          f"s_lshl_b32 {T[3]}, {sCH}, 1", f"v_xor_b32 v65, {T[3]}, v65", f"v_lshl_add_u32 v{b}, v65, 5, v67")
        for i in range(1, n): a(f"v_xor_b32 v{b + i}, {32 * i}, v{b}")

    def attn_slow(self):
        a = self.a
        S, OA, NM, QF, KB, VB = self.S, self.OA, self.NM, self.QF, self.KB, self.VB
        a.vm_done = a.vm; a.lg_done = a.lg
        a("L_attn_slow:", "s_nop 15", f"s_lshl_b32 {T[0]}, {sHEAD}, 17", f"s_add_u32 {T[0]}, {T[0]}, {WS_KV}",
          f"v_mov_b32 v8, 0xff800000", f"v_mov_b32 v10, 0xff800000", f"s_mov_b32 {T[1]}, 0")
        def kaddr():
            a(f"s_lshr_b32 {T[2]}, {T[1]}, 1", f"s_lshl_b32 {T[2]}, {T[2]}, 12", f"s_and_b32 {T[3]}, {T[1]}, 1", f"s_lshl_b32 {T[3]}, {T[3]}, 10",
              f"s_add_u32 {T[2]}, {T[2]}, {T[3]}", f"s_add_u32 {T[2]}, {T[2]}, {T[0]}")
        a("L_slow_max:"); kaddr()
        a(f"buffer_load_dwordx4 {v(KB, 4)}, {vL16}, {sWS}, {T[2]} offen sc1"); a.wait(vm=a.vm, force=True)
        for q in range(2):
            a(f"v_mfma_f32_32x32x16_bf16 {v(S + 16 * q, 16)}, {v(KB, 4)}, {v(QF + 4 * q, 4)}, 0")
        for q in range(2):
            b, m = S + 16 * q, 8 + 2 * q
            for k in range(0, 16, 2): a(f"v_max3_f32 v{m}, v{m}, v{b + k}, v{b + k + 1}")
        a(f"s_add_u32 {T[1]}, {T[1]}, 1", f"s_cmp_lt_u32 {T[1]}, 64", "s_cbranch_scc1 L_slow_max")
        a("v_mov_b32 v9, v8", "v_mov_b32 v11, v10")
        for q in range(2): a(f"v_permlane32_swap_b32 v{8 + 2 * q}, v{9 + 2 * q}")
        for q in range(2):
            m = 8 + 2 * q
            a(f"v_max_f32 v{m}, v{m}, v{m + 1}", f"v_sub_f32 v{m}, 0, v{m}")
            for r in range(16): a(f"v_mov_b32 v{NM + 16 * q + r}, v{m}")
        for r in range(OA, OA + 32): a(f"v_mov_b32 v{r}, 0")
        a(f"v_and_b32 v8, 27, {vLANE}", "v_cmp_eq_u32 vcc, 16, v8", f"v_mov_b32 v9, {sONES}", "v_cndmask_b32 v9, v3, v9, vcc")
        for r in range(8): a(f"v_mov_b32 v{VB + r}, v9")
        a(f"v_and_b32 v8, 15, {vLANE}", f"v_lshrrev_b32 v10, 5, {vLANE}", "v_lshl_add_u32 v10, v10, 4, v8", "v_lshlrev_b32 v10, 4, v10",
          f"s_mov_b32 {T[1]}, 0", "s_mov_b32 s60, 0x0000ffff", "s_mov_b32 s61, 0x0000ffff")
        a("L_slow_pv:"); kaddr()
        a(f"buffer_load_dwordx4 {v(KB, 4)}, {vL16}, {sWS}, {T[2]} offen sc1", f"s_add_u32 {T[2]}, {T[2]}, 2048", "s_mov_b64 exec, s[60:61]",
          f"buffer_load_dwordx4 {v(VB, 4)}, v10, {sWS}, {T[2]} offen sc1",
          f"buffer_load_dwordx4 {v(VB + 4, 4)}, v10, {sWS}, {T[2]} offen offset:512 sc1", "s_mov_b64 exec, -1")
        a.wait(vm=a.vm, force=True)
        for q in range(2):
            a(f"v_mfma_f32_32x32x16_bf16 {v(S + 16 * q, 16)}, {v(KB, 4)}, {v(QF + 4 * q, 4)}, {v(NM + 16 * q, 16)}")
        for q in range(2):
            for r in range(16): a(f"v_exp_f32 v{S + 16 * q + r}, v{S + 16 * q + r}")
            for hi in range(2):
                a(f"v_smfmac_f32_32x32x32_bf16 {v(OA + 16 * q, 16)}, {v(VB + 4 * hi, 4)}, {v(S + 16 * q + 8 * hi, 8)}, v{self.vIDX}")
        a(f"s_add_u32 {T[1]}, {T[1]}, 1", f"s_cmp_lt_u32 {T[1]}, 64", "s_nop 15", "s_cbranch_scc1 L_slow_pv", "s_nop 15", "s_branch L_attn_done")

    def act_dma(self, ws_off, steps, chunks, lds0):
        a = self.a
        a(f"s_lshr_b32 {T[0]}, {sR0}, 4", f"s_add_u32 {T[0]}, {T[0]}, {sW}", f"s_mul_i32 {T[0]}, {T[0]}, {steps * 1024}",
          f"s_add_u32 {T[0]}, {T[0]}, {ws_off}", f"s_mul_i32 {T[1]}, {sW}, {steps * 1024}", f"s_add_u32 {T[1]}, {T[1]}, {lds0}")
        toks = []; p = 0
        for c in chunks:
            for k in range(c):
                if p % 4 == 0:
                    a(f"s_add_u32 {T[2]}, {T[0]}, {p * 1024}", f"s_add_u32 m0, {T[1]}, {p * 1024}")
                a(f"buffer_load_dwordx4 {vL16}, {sWS}, {T[2]} offen offset:{(p % 4) * 1024} sc1 lds")
                p += 1
            toks.append(a.vtok())
        return toks

    def cluster_flag_off(self, dst, base, own):
        a = self.a
        a(f"s_lshl_b32 {dst}, {sCLU}, 8", f"s_add_u32 {dst}, {dst}, {base}")
        if own:
            a(f"s_lshl_b32 {T[7]}, {sCB}, 2", f"s_add_u32 {T[7]}, {T[7]}, {sW}", f"s_lshl_b32 {T[7]}, {T[7]}, 3", f"s_add_u32 {dst}, {dst}, {T[7]}")

    def stats_publish(self, s, base):
        a = self.a
        a(f"v_permlane32_swap_b32 v{s}, v{s + 1}", f"v_permlane32_swap_b32 v{s + 2}, v{s + 3}",
          f"v_add_f32 v{s}, v{s}, v{s + 1}", f"v_add_f32 v{s + 2}, v{s + 2}, v{s + 3}",
          f"v_permlane16_swap_b32 v{s}, v{s + 2}", f"v_add_f32 v{s}, v{s}, v{s + 2}")
        a(f"s_lshl_b32 {T[4]}, {sCLU}, 13", f"s_add_u32 {T[4]}, {T[4]}, {base}", f"s_lshl_b32 {T[5]}, {sRH}, 7", f"s_add_u32 {T[4]}, {T[4]}, {T[5]}",
          f"s_lshl_b32 {T[5]}, {sCB}, 1", f"s_add_u32 {T[5]}, {T[5]}, {sCH}", f"s_lshl_b32 {T[5]}, {T[5]}, 9", f"s_add_u32 {T[4]}, {T[4]}, {T[5]}",
          f"buffer_store_dword v{s}, v61, {sWS}, {T[4]} offen sc1")

    def stats_load(self, base, r):
        a = self.a
        a(f"s_lshl_b32 {T[4]}, {sCLU}, 13", f"s_add_u32 {T[4]}, {T[4]}, {base}", f"s_lshl_b32 {T[5]}, {sRH}, 7", f"s_add_u32 {T[4]}, {T[4]}, {T[5]}",
          f"s_add_u32 {T[5]}, {T[4]}, 4096")
        for p in range(16):
            a(f"buffer_load_dword v{r + p}, v61, {sWS}, {T[4] if p < 8 else T[5]} offen offset:{(p % 8) * 512} sc1")
        return a.vtok()

    def stats_finish(self, r, inv_n, d):
        a = self.a
        for st in (8, 4, 2):
            for k in range(0, st, 2): a(f"v_pk_add_f32 {v(r + k, 2)}, {v(r + k, 2)}, {v(r + st + k, 2)}")
        a(f"v_add_f32 v{r}, v{r}, v{r + 1}", f"v_mov_b32 v{r + 1}, v{r}", f"v_permlane32_swap_b32 v{r}, v{r + 1}")
        self.ln_finish([(r, r + 1, d)], inv_n)
        a(f"v_mov_b32 v{d + 2}, v{d}", f"v_mov_b32 v{d + 3}, v{d + 1}",
          f"v_permlane16_swap_b32 v{d}, v{d + 2}", f"v_permlane16_swap_b32 v{d + 1}, v{d + 3}")

    def win_addresses(self):
        a = self.a
        for i in range(3):
            a(f"v_add_u32 v16, {64 * i}, {vLANE}", "v_mul_u32_u24 v17, 171, v16", "v_lshrrev_b32 v17, 11, v17",
              "v_mul_u32_u24 v18, 12, v17", "v_sub_u32 v18, v16, v18", "v_bfe_u32 v19, v17, 3, 1", "v_lshlrev_b32 v19, 1, v19",
              "v_xor_b32 v18, v18, v19", "v_mul_u32_u24 v17, 2752, v17", "v_lshl_add_u32 v17, v18, 4, v17",
              f"v_add_u32 v{56 + i}, {-1024 * i}, v17")
        a(f"v_lshrrev_b32 v16, 4, {vLANE}", f"v_bfe_u32 v17, {vLANE}, 2, 2", f"v_and_b32 v18, 3, {vLANE}",
          "v_lshl_add_u32 v19, v16, 3, v17", "v_mul_u32_u24 v19, 192, v19", "v_lshl_add_u32 v19, v18, 3, v19",
          "v_and_b32 v17, 1, v16", f"v_xor_b32 v17, {sCH}, v17", "v_lshl_add_u32 v59, v17, 5, v19", "v_add_u32 v60, 49152, v59",
          f"v_and_b32 v17, 15, {vLANE}", "v_lshlrev_b32 v17, 2, v17", "v_and_b32 v18, 1, v16", "v_lshl_add_u32 v17, v18, 6, v17",
          "v_lshrrev_b32 v16, 1, v16", "v_lshl_add_u32 v61, v16, 8, v17")

    def win_dma(self, half, g0, per_wave):
        L = [f"s_lshl_b32 {sU[5]}, {sT0}, 5", f"s_mul_i32 {sU[6]}, {sW}, {per_wave * 16 * 2752}", f"s_add_u32 {sU[5]}, {sU[5]}, {sU[6]}",
             f"s_mul_i32 {sU[6]}, {sW}, {per_wave * 3072}"]
        for k in range(per_wave):
            L += [f"s_add_u32 {sU[7]}, {sU[5]}, {half * 1376 + (g0 + k) * 16 * 2752}", f"s_add_u32 m0, {sU[6]}, {(g0 + k) * 3072}"]
            L += [f"buffer_load_dwordx4 v{56 + i}, {sWIN}, {sU[7]} offen offset:{1024 * i} lds" for i in range(3)]
        return L

    def emit(self, items):
        for x in items: x() if callable(x) else self.a(x)

    def phase_wo(self):
        a = self.a
        ACC = 192
        self.win_addresses()
        self.emit(self.win_dma(1, 24, 2))
        self.cluster_flag_off(T[3], WS_F2, False)
        a(f"s_lshl_b32 {T[4]}, {sRH}, 15", f"s_add_u32 {T[4]}, {T[4]}, {LB}", f"v_add_u32 v30, {T[4]}, {vL16}")
        self.poll(vFP32, T[3], 32)
        self.stamp("s2")
        toks = self.act_dma(WS_O, 16, [4, 4, 4, 4], LB)
        def buf(c, k, rt):
            if c & 1 == 0: return 208 + (k * 2 + rt) * 4
            return (32 + (k * 2 + rt) * 4) if k < 3 else 248 + rt * 4
        def reads(c):
            return [f"ds_read_b128 {v(buf(c, k, rt), 4)}, v30 offset:{(rt * 16 + 4 * c + k) * 1024}" for k in range(4) for rt in range(2)]
        a.wait(vm=toks[0], lg=a.lg)
        self.barrier()
        self.emit(reads(0))
        self.emit(self.win_dma(1, 0, 3))
        for c in range(4):
            fill = []
            if c < 3:
                a.wait(vm=toks[c + 1], lg=a.lg)
                self.barrier()
                fill = reads(c + 1)
            else:
                a.wait(lg=a.lg)
                self.barrier()
            ms = []
            for k in range(4):
                p = 4 * c + k
                for rt in range(2):
                    for nt in range(2):
                        ms.append(mfma16(ACC + (rt * 2 + nt) * 4, v(64 + (nt * 16 + p) * 4, 4), v(buf(c, k, rt), 4), "0" if p == 0 else None))
            interleave(a, ms, fill)
        self.stamp("wo_gemm")
        XR = self.vXR
        for i in range(4):
            for k in range(2):
                a(f"v_lshlrev_b32 v{32 + 4 * i + 2 * k}, 16, v{XR + 2 * i + k}", f"v_and_b32 v{33 + 4 * i + 2 * k}, {sHIMASK}, v{XR + 2 * i + k}")
        for i in range(4):
            for k in range(2): a(f"v_pk_add_f32 {v(ACC + 4 * i + 2 * k, 2)}, {v(ACC + 4 * i + 2 * k, 2)}, {v(32 + 4 * i + 2 * k, 2)}")
        for i in range(4):
            for k in range(2): a(f"v_cvt_pk_bf16_f32 v{vH + 2 * i + k}, v{ACC + 4 * i + 2 * k}, v{ACC + 4 * i + 2 * k + 1}")
        a(f"s_lshr_b32 {T[0]}, {sR0}, 4", f"s_lshl_b32 {T[1]}, {sRH}, 1", f"s_add_u32 {T[0]}, {T[0]}, {T[1]}", f"s_lshl_b32 {T[0]}, {T[0]}, 14",
          f"s_lshl_b32 {T[1]}, {sCB}, 1", f"s_add_u32 {T[1]}, {T[1]}, {sCH}", f"s_lshl_b32 {T[1]}, {T[1]}, 10", f"s_add_u32 {T[0]}, {T[0]}, {T[1]}",
          f"s_add_u32 {T[0]}, {T[0]}, {WS_H}", f"s_add_u32 {T[1]}, {T[0]}, 0x4000")
        for rt in range(2):
            for nt in range(2):
                a(f"buffer_store_dwordx2 {v(vH + 4 * rt + 2 * nt, 2)}, {vPAT}, {sWS}, {T[rt]} offen offset:{512 * nt} sc1")
        for k in range(4):
            for rt in range(2):
                h = f"v{vH + 4 * rt + k}"
                a(f"v_dot2_f32_bf16 v{32 + 2 * rt}, {h}, {sONES}, {'0' if k == 0 else 'v%d' % (32 + 2 * rt)}",
                  f"v_dot2_f32_bf16 v{33 + 2 * rt}, {h}, {h}, {'0' if k == 0 else 'v%d' % (33 + 2 * rt)}")
        self.stats_publish(32, WS_ST3)
        self.cluster_flag_off(T[0], WS_F3, True)
        self.flag_store(T[0])
        self.stamp("wo_pub")

    HF, ACC2, ACC1, WB, CS = 64, 192, 216, 28, 240

    def win_gemm(self, acc, steps_wait, read_h):
        a = self.a
        HF, WB, CS = self.HF, self.WB, self.CS
        def reads(s):
            L = []
            base = "v59" if s < 8 else "v60"
            for m in range(3):
                for hf in range(2):
                    L.append(f"ds_read_b64_tr_b16 {v(WB + 12 * (s & 1) + 4 * m + 2 * hf, 2)}, {base} offset:{(s & 7) * 6144 + hf * 768 + m * 64}")
                if m == 0 and read_h:
                    L += [f"ds_read_b128 {v(HF + (rt * 16 + s) * 4, 4)}, v55 offset:{(rt * 16 + s) * 1024}" for rt in range(2)]
            return L
        steps_wait[0]()
        self.emit(reads(0))
        for s in range(16):
            a.wait(lg=a.lg)
            if s + 1 in steps_wait: steps_wait[s + 1]()
            fill = reads(s + 1) if s < 15 else []
            ms = []
            for m in range(3):
                wv = v(WB + 12 * (s & 1) + 4 * m, 4)
                for rt in range(2):
                    ms.append(mfma16(acc + (rt * 3 + m) * 4, wv, v(HF + (rt * 16 + s) * 4, 4), "0" if s == 0 else None))
                ms.append(mfma16(CS + 4 * m, wv, "v[252:255]", "0" if s == 0 else None))
            interleave(a, ms, fill, per=2)

    def gelu_block(self, acc, st, tiles):
        a = self.a
        CS = self.CS
        K1 = -2.0 * 1.4426950408889634 * 0.7978845608028654
        K2 = K1 * 0.044715
        a(f"s_mov_b32 s60, {f2u(K2)}", f"s_mov_b32 s61, {f2u(K2)}", f"s_mov_b32 s62, {f2u(K1)}", f"s_mov_b32 s63, {f2u(K1)}",
          f"v_mov_b32 v52, {f2u(K1)}", f"v_mov_b32 v53, {f2u(K1)}")
        for rt, m in tiles:
            x = acc + (rt * 3 + m) * 4
            pr = [x, x + 2]; tm = [28, 30]
            for k in range(2):
                a(f"v_pk_mul_f32 {v(tm[k], 2)}, {v(CS + 4 * m + 2 * k, 2)}, {v(st + 2 * rt, 2)} op_sel:[0,1] op_sel_hi:[1,1]")
            for k in range(2):
                a(f"v_pk_fma_f32 {v(pr[k], 2)}, {v(pr[k], 2)}, {v(st + 2 * rt, 2)}, {v(tm[k], 2)} op_sel:[0,0,0] op_sel_hi:[1,0,1]")
            for k in range(2): a(f"v_pk_mul_f32 {v(tm[k], 2)}, {v(pr[k], 2)}, {v(pr[k], 2)}")
            for k in range(2): a(f"v_pk_fma_f32 {v(tm[k], 2)}, {v(tm[k], 2)}, s[60:61], v[52:53]")
            for k in range(2): a(f"v_pk_mul_f32 {v(tm[k], 2)}, {v(tm[k], 2)}, {v(pr[k], 2)}")
            for k in range(4): a(f"v_exp_f32 v{28 + k}, v{28 + k}")
            for k in range(2): a(f"v_pk_add_f32 {v(tm[k], 2)}, {v(tm[k], 2)}, v[32:33]")
            for k in range(4): a(f"v_rcp_f32 v{28 + k}, v{28 + k}")
            for k in range(2): a(f"v_pk_mul_f32 {v(pr[k], 2)}, {v(pr[k], 2)}, {v(tm[k], 2)}")

    def phase_win(self):
        a = self.a
        HF, ACC2, ACC1, CS = self.HF, self.ACC2, self.ACC1, self.CS
        self.emit(self.win_dma(1, 12, 3))
        self.cluster_flag_off(T[3], WS_F3, False)
        a(f"s_lshl_b32 {T[4]}, {sRH}, 15", f"s_add_u32 {T[4]}, {T[4]}, {LB}", f"v_add_u32 v55, {T[4]}, {vL16}")
        for r in range(252, 256): a(f"v_mov_b32 v{r}, {sONES}")
        self.poll(vFP32, T[3], 32)
        self.stamp("s3")
        toks = self.act_dma(WS_H, 16, [4, 4, 4, 4], LB)
        def w(c):
            def f():
                a.wait(vm=toks[c]); self.barrier()
            return f
        self.win_gemm(ACC2, {0: w(0), 4: w(1), 8: w(2), 12: w(3)}, True)
        self.barrier()
        self.stamp("z2_gemm")
        w1a = self.win_dma(0, 0, 3)
        stok = self.stats_load(WS_ST3, 36)
        self.emit(w1a)
        w1tok = [a.vtok()]
        a.wait(vm=stok)
        self.stats_finish(36, 1.0 / 512, 34)
        a("v_mov_b32 v32, 1.0", "v_mov_b32 v33, 1.0")
        T5 = [(0, 0), (1, 0), (0, 1), (1, 1)]
        self.gelu_block(ACC2, 34, T5 + [(0, 2), (1, 2)])
        for rt in range(2):
            x = ACC2 + rt * 12
            a(f"v_pk_add_f32 {v(40 + 4 * rt, 2)}, {v(x, 2)}, {v(x + 2, 2)}", f"v_pk_mul_f32 {v(42 + 4 * rt, 2)}, {v(x, 2)}, {v(x, 2)}")
            a(f"v_pk_fma_f32 {v(42 + 4 * rt, 2)}, {v(x + 2, 2)}, {v(x + 2, 2)}, {v(42 + 4 * rt, 2)}")
            for k in (4, 6):
                a(f"v_pk_add_f32 {v(40 + 4 * rt, 2)}, {v(40 + 4 * rt, 2)}, {v(x + k, 2)}",
                  f"v_pk_fma_f32 {v(42 + 4 * rt, 2)}, {v(x + k, 2)}, {v(x + k, 2)}, {v(42 + 4 * rt, 2)}")
        a(f"s_and_b32 {sU[8]}, {sCNT5}, {sCH}", f"s_cmp_lg_u32 {sU[8]}, 0", "s_cbranch_scc1 L_skip_st")
        for rt in range(2):
            x = ACC2 + rt * 12
            for k in (8, 10):
                a(f"v_pk_add_f32 {v(40 + 4 * rt, 2)}, {v(40 + 4 * rt, 2)}, {v(x + k, 2)}",
                  f"v_pk_fma_f32 {v(42 + 4 * rt, 2)}, {v(x + k, 2)}, {v(x + k, 2)}, {v(42 + 4 * rt, 2)}")
        a("L_skip_st:", "v_add_f32 v48, v40, v41", "v_add_f32 v49, v42, v43", "v_add_f32 v50, v44, v45", "v_add_f32 v51, v46, v47")
        self.stats_publish(48, WS_ST4)
        self.cluster_flag_off(T[0], WS_F4, True)
        self.flag_store(T[0])
        self.stamp("z2_pub")
        self.emit(self.win_dma(0, 12, 3)); w1tok.append(a.vtok())
        self.emit(self.win_dma(0, 24, 2)); w1tok.append(a.vtok())
        a("v_mov_b32 v16, v34", "v_mov_b32 v17, v35", "v_mov_b32 v18, v36", "v_mov_b32 v19, v37")
        def w1(c):
            def f():
                a.wait(vm=w1tok[c]); self.barrier()
            return f
        self.win_gemm(ACC1, {0: w1(0), 6: w1(1), 12: w1(2)}, False)
        self.barrier()
        self.stamp("z1_gemm")
        self.cluster_flag_off(T[3], WS_F4, False)
        a(f"v_and_b32 v20, 15, {vLANE}", f"v_lshrrev_b32 v21, 4, {vLANE}", "v_lshlrev_b32 v21, 2, v21", "v_sub_u32 v20, v20, v21",
          "v_mov_b32 v21, 0x3f80", "v_mov_b32 v22, 0x3f800000")
        for k, (r, c) in enumerate(((24, 21), (24, 22), (25, 21), (25, 22))):
            a(f"v_cmp_eq_u32 vcc, {k}, v20")
            if k & 1 == 0: a(f"v_cndmask_b32 v{r}, v3, v{c}, vcc")
            else: a(f"v_cndmask_b32 v{r}, v{r}, v{c}, vcc")
        self.poll(vFP32, T[3], 36)
        self.stamp("s4")
        stok = self.stats_load(WS_ST4, 36)
        a.wait(vm=stok)
        self.stats_finish(36, 1.0 / 688, 20)
        a(f"s_add_u32 {T[0]}, {sT0}, {sCH}", f"s_lshl_b32 {T[0]}, {T[0]}, 16", f"s_lshl_b32 {T[1]}, {sR0}, 5", f"s_add_u32 {T[0]}, {T[0]}, {T[1]}",
          f"s_lshl_b32 {T[1]}, {sRH}, 10", f"s_add_u32 {T[0]}, {T[0]}, {T[1]}", f"s_add_u32 {sU[9]}, {T[0]}, {WS_Z}",
          f"s_add_u32 {sU[10]}, {sU[9]}, 0x20000", f"s_add_u32 {sU[11]}, {sU[9]}, 0x40000")
        def znorm(m):
            for rt in range(2):
                x = ACC2 + (rt * 3 + m) * 4
                for k in range(2):
                    a(f"v_pk_fma_f32 {v(x + 2 * k, 2)}, {v(x + 2 * k, 2)}, {v(20 + 2 * rt, 2)}, {v(20 + 2 * rt, 2)} op_sel:[0,0,1] op_sel_hi:[1,0,1]")
            for rt in range(2):
                x = ACC2 + (rt * 3 + m) * 4
                for k in range(2): a(f"v_cvt_pk_bf16_f32 v{x + k}, v{x + 2 * k}, v{x + 2 * k + 1}")
            for rt in range(2):
                x = ACC2 + (rt * 3 + m) * 4
                a(f"v_mfma_f32_16x16x16_bf16 {v(28 + 8 * (m & 1) + 4 * rt, 4)}, {v(x, 2)}, v[24:25], 0")
        def zstore(m):
            for rt in range(2):
                d = 28 + 8 * (m & 1) + 4 * rt
                a(f"v_cvt_pk_bf16_f32 v{d}, v{d}, v{d + 1}", f"v_cvt_pk_bf16_f32 v{d + 1}, v{d + 2}, v{d + 3}",
                  f"buffer_store_dwordx2 {v(d, 2)}, {vPAT}, {sWS}, {sU[9 + m]} offen offset:{512 * rt} sc1")
        znorm(0); znorm(1); zstore(0)
        a(f"s_cmp_lg_u32 {sU[8]}, 0", "s_cbranch_scc1 L_skip_z")
        znorm(2); a("s_nop 7"); zstore(2)
        a("L_skip_z:", "s_nop 7")
        zstore(1)
        a(f"s_lshl_b32 {T[0]}, {sRB}, 3", f"s_add_u32 {T[0]}, {T[0]}, {sCB}", f"s_lshl_b32 {T[0]}, {T[0]}, 8",
          f"s_lshl_b32 {T[1]}, {sJ}, 2", f"s_add_u32 {T[1]}, {T[1]}, {sW}", f"s_lshl_b32 {T[1]}, {T[1]}, 3",
          f"s_add_u32 {T[0]}, {T[0]}, {T[1]}", f"s_add_u32 {T[0]}, {T[0]}, {WS_F5}")
        self.flag_store(T[0])
        self.stamp("z2n_pub")
        self.w128_addresses(self.vWDo)
        a(f"s_mul_i32 {sU[2]}, {sW}, {6 * 32768}", f"s_mul_i32 {sU[3]}, {sW}, {6 * 4096}")
        for g in range(6):
            if g == 4: a(f"s_cmp_eq_u32 {sW}, 3", "s_cbranch_scc1 L_skip_wout")
            self.emit(self.w128_dma(self.vWDo, sWOUT, g, LA))
        a("L_skip_wout:")
        a(f"s_lshl_b32 {T[0]}, {sRH}, 5", f"s_add_u32 {T[0]}, {T[0]}, {sR0}", f"s_lshl_b32 {T[0]}, {T[0]}, 1",
          f"v_and_b32 v20, 15, {vLANE}", "v_lshlrev_b32 v20, 1, v20",
          f"buffer_load_ushort v62, v20, {sBSP}, {T[0]} offen", f"buffer_load_ushort v63, v20, {sBSP}, {T[0]} offen offset:32")
        a("v_mov_b32 v34, v16", "v_mov_b32 v35, v17", "v_mov_b32 v36, v18", "v_mov_b32 v37, v19", "v_mov_b32 v32, 1.0", "v_mov_b32 v33, 1.0")
        self.gelu_block(ACC1, 34, T5 + [(0, 2), (1, 2)])
        for i in range(6):
            for k in range(2): a(f"v_cvt_pk_bf16_f32 v{vZ1 + 2 * i + k}, v{ACC1 + 4 * i + 2 * k}, v{ACC1 + 4 * i + 2 * k + 1}")
        self.stamp("z1_epi")

    vWDo = 56

    def phase_wsp(self):
        a = self.a
        BUF, ACC, RED = 64, 192, 28
        a(f"s_lshl_b32 {T[3]}, {sW}, 3", f"s_add_u32 {T[3]}, {T[3]}, {sCB}", f"s_lshl_b32 {T[3]}, {T[3]}, 8", f"s_add_u32 {T[3]}, {T[3]}, {WS_F5}",
          f"s_lshl_b32 {T[0]}, {sT0}, 16", f"s_lshl_b32 {T[1]}, {sW}, 11", f"s_add_u32 {T[0]}, {T[0]}, {T[1]}", f"s_add_u32 {T[0]}, {T[0]}, {WS_Z}")
        for t in range(8):
            a(f"s_lshl_b32 {T[1]}, {sROT[t]}, 13", f"s_add_u32 {sROT[t]}, {T[1]}, {T[0]}")
        a(f"v_add_u32 v53, 0x10000, {vL16}",
          f"s_lshl_b32 {T[1]}, {sW}, 13", f"s_add_u32 {T[1]}, {T[1]}, {LB}", f"v_add_u32 v54, {T[1]}, {vL16}",
          f"s_lshl_b32 {T[1]}, {sCH}, 12", f"s_lshl_b32 {T[2]}, {sRH}, 11", f"s_add_u32 {T[1]}, {T[1]}, {T[2]}", f"s_add_u32 {T[1]}, {T[1]}, {LB}",
          f"v_add_u32 v55, {T[1]}, {vL16}")
        a(f"s_lshr_b32 {T[1]}, {sR0}, 4", f"s_lshl_b32 {T[2]}, {sRH}, 1", f"s_add_u32 {T[1]}, {T[1]}, {T[2]}", f"s_mul_i32 {T[1]}, {T[1]}, {22 * 1024}",
          f"s_add_u32 {T[2]}, {sT0}, {sCH}", f"s_lshl_b32 {T[2]}, {T[2]}, 9", f"s_add_u32 {T[1]}, {T[1]}, {T[2]}", f"s_add_u32 {sU[9]}, {T[1]}, {WS_G}",
          f"s_add_u32 {sU[10]}, {sU[9]}, {22 * 1024}")
        self.poll(vFP32, T[3], 28)
        self.stamp("s5")
        a("v_lshlrev_b32 v62, 16, v62", "v_lshlrev_b32 v63, 16, v63")
        tok = {}
        def loads(p, u):
            t, sub = u >> 1, u & 1
            L = []
            if sub == 0: L.append(f"s_add_u32 {T[0]}, {sROT[t]}, {p * 0x20000}")
            for f in range(2):
                L.append(f"buffer_load_dwordx4 {v(BUF + (2 * u + f) * 4, 4)}, {vL16 if f == 0 else 'v53'}, {sWS}, {T[0]} offen offset:{1024 * sub} sc1")
            L.append(lambda: tok.__setitem__((p, u), a.vtok()))
            return L
        for u in range(16): self.emit(loads(0, u))
        def red_write(p):
            A = ACC + 32 * (p & 1)
            return [f"ds_write_b128 v54, {v(A + 4 * i, 4)} offset:{(p & 1) * 32768 + i * 1024}" for i in range(8)]
        def red_read(p):
            return [f"ds_read_b128 {v(RED + (sw * 2 + rt) * 4, 4)}, v55 offset:{(p & 1) * 32768 + sw * 8192 + rt * 1024}" for sw in range(3) for rt in range(2)]
        def red_read2(p):
            return [f"ds_read_b128 {v(ACC + 32 * (p & 1) + rt * 4, 4)}, v55 offset:{(p & 1) * 32768 + 3 * 8192 + rt * 1024}" for rt in range(2)]
        def gate(p):
            L = []
            A = ACC + 32 * (p & 1)
            for rt in range(2):
                for k in range(2):
                    o = 4 * rt + 2 * k
                    L += [f"v_pk_add_f32 {v(A + o, 2)}, {v(A + o, 2)}, {v(RED + o, 2)}",
                          f"v_pk_add_f32 {v(RED + 8 + o, 2)}, {v(RED + 8 + o, 2)}, {v(RED + 16 + o, 2)}"]
            for rt in range(2):
                for k in range(2):
                    o = 4 * rt + 2 * k
                    z = vZ1 + (rt * 3 + p) * 2 + k
                    L += [f"v_pk_add_f32 {v(A + o, 2)}, {v(A + o, 2)}, {v(RED + 8 + o, 2)}",
                          f"v_lshlrev_b32 v{RED + o}, 16, v{z}", f"v_and_b32 v{RED + o + 1}, {sHIMASK}, v{z}",
                          f"v_add_f32 v{A + o}, v{A + o}, v{62 + rt}", f"v_add_f32 v{A + o + 1}, v{A + o + 1}, v{62 + rt}",
                          f"v_pk_mul_f32 {v(A + o, 2)}, {v(A + o, 2)}, {v(RED + o, 2)}"]
            for rt in range(2):
                L += [f"v_cvt_pk_bf16_f32 v{RED + 2 * rt + k}, v{A + 4 * rt + 2 * k}, v{A + 4 * rt + 2 * k + 1}" for k in range(2)]
            return L
        def gstore(p):
            L = []
            if p == 2:
                sk, zr = a.label("gskip"), a.label("gstore")
                L.append(lambda: a(f"s_cmp_eq_u32 {sU[8]}, 0", f"s_cbranch_scc1 {zr}", f"s_cmp_eq_u32 {sCB}, 7", f"s_cbranch_scc0 {sk}",
                                   *[f"v_mov_b32 v{RED + k}, 0" for k in range(4)], f"{zr}:"))
            L += [f"buffer_store_dwordx2 {v(RED + 2 * rt, 2)}, {vPAT}, {sWS}, {sU[9 + rt]} offen offset:{1024 * p} sc1" for rt in range(2)]
            if p == 2: L.append(lambda: a(f"{sk}:"))
            return L
        for p in range(3):
            A = ACC + 32 * (p & 1)
            for u in range(16):
                a.wait(vm=tok[(p, u)])
                ms = []
                for f in range(2):
                    for tt in range(4):
                        ms.append(mfma16(A + (f * 4 + tt) * 4, v(BUF + (2 * u + f) * 4, 4), ar((u * 4 + tt) * 4, 4), "0" if u == 0 else None))
                fill = []
                if p > 0:
                    q = p - 1
                    if u in (1, 2): fill += red_write(q)[(u - 1) * 4:(u - 1) * 4 + 4]
                    if u == 4: fill += [lambda: a.wait(lg=a.lg), "s_barrier"]
                    if u == 5: fill += red_read(q) + red_read2(q)
                    if u == 7: fill += [lambda: a.wait(lg=a.lg)]
                    if 7 <= u <= 12:
                        g = gate(q); fill += g[(u - 7) * 6:(u - 7) * 6 + 6]
                    if u == 13: fill += gstore(q)
                ld = loads(p + 1, u) if p < 2 else []
                interleave(a, ms[:6], fill, per=2, start=1)
                a(ms[6]); self.emit(ld[:-2])
                a(ms[7]); self.emit(ld[-2:])
        self.stamp("wsp_gemm")
        self.emit(red_write(2))
        a.wait(lg=a.lg)
        self.barrier()
        self.emit(red_read(2) + red_read2(2))
        self.w128_read_base(56, 2)
        a("v_add_u32 v58, 0x10000, v56", "v_add_u32 v59, 0x10000, v57")
        a.wait(lg=a.lg)
        self.emit(gate(2))
        self.emit(gstore(2))
        for nt in range(2):
            for p in range(22):
                for hf in range(2):
                    base = 56 + nt + (2 if p >= 16 else 0)
                    a(f"ds_read_b64_tr_b16 {ar((nt * 22 + p) * 4 + 2 * hf, 2)}, v{base} offset:{LA + (p & 15) * 4096 + hf * 512}")
        self.cluster_flag_off(T[0], WS_F6, True)
        self.flag_store(T[0])
        self.stamp("g_pub")

    def phase_wout(self):
        a = self.a
        ACC = 192
        self.cluster_flag_off(T[3], WS_F6, False)
        a(f"s_mul_i32 {T[4]}, {sRH}, {2 * 22 * 1024}", f"v_add_u32 v30, {T[4]}, {vL16}")
        a.wait(lg=a.lg)
        self.barrier()
        self.poll(vFP32, T[3], 32)
        self.stamp("s6")
        chunks = [6, 6, 5, 5]
        toks = self.act_dma(WS_G, 22, chunks, LA)
        BUF = [64, 112]
        start = [0, 6, 12, 17]
        def reads(c):
            return [f"ds_read_b128 {v(BUF[c & 1] + (k * 2 + rt) * 4, 4)}, v30 offset:{(rt * 22 + start[c] + k) * 1024}" for k in range(chunks[c]) for rt in range(2)]
        a(f"v_and_b32 v32, 15, {vLANE}", f"v_lshrrev_b32 v33, 4, {vLANE}", "v_lshlrev_b32 v32, 10, v32",
          "v_and_b32 v34, 1, v33", "v_lshl_add_u32 v32, v34, 5, v32", "v_lshrrev_b32 v33, 1, v33", "v_lshl_add_u32 v32, v33, 4, v32",
          f"s_lshl_b32 {T[3]}, {sRH}, 5", f"s_add_u32 {T[3]}, {T[3]}, {sR0}", f"s_lshl_b32 {T[3]}, {T[3]}, 10",
          f"s_lshl_b32 {T[4]}, {sCB}, 7", f"s_add_u32 {T[3]}, {T[3]}, {T[4]}", f"s_lshl_b32 {T[4]}, {sCH}, 6", f"s_add_u32 {sU[9]}, {T[3]}, {T[4]}",
          f"s_add_u32 {sU[10]}, {sU[9]}, 0x4000")
        for i in range(8):
            a(f"v_lshlrev_b32 v{208 + 2 * i}, 16, v{vH + i}", f"v_and_b32 v{209 + 2 * i}, {sHIMASK}, v{vH + i}")
        a.wait(vm=toks[0])
        self.barrier()
        self.emit(reads(0))
        for c in range(4):
            fill = []
            if c < 3:
                a.wait(vm=toks[c + 1], lg=a.lg)
                self.barrier()
                fill = reads(c + 1)
            else:
                a.wait(lg=a.lg)
            ms = []
            for k in range(chunks[c]):
                p = start[c] + k
                for rt in range(2):
                    for nt in range(2):
                        d = ACC + (rt * 2 + nt) * 4
                        ms.append(mfma16(d, ar((nt * 22 + p) * 4, 4), v(BUF[c & 1] + (k * 2 + rt) * 4, 4), v(208 + (rt * 2 + nt) * 4, 4) if p == 0 else None))
            interleave(a, ms, fill)
        self.stamp("wout_gemm")
        for rt in range(2):
            for nt in range(2):
                d = ACC + (rt * 2 + nt) * 4
                for k in range(2): a(f"v_cvt_pk_bf16_f32 v{64 + 4 * rt + 2 * nt + k}, v{d + 2 * k}, v{d + 2 * k + 1}")
        for rt in range(2):
            b = 64 + 4 * rt
            a(f"v_permlane16_swap_b32 v{b}, v{b + 2}", f"v_permlane16_swap_b32 v{b + 1}, v{b + 3}")
            a(f"buffer_store_dwordx4 {v(b, 4)}, v32, {sOUT}, {sU[9 + rt]} offen")

    def epilogue(self):
        a = self.a
        a("L_finish:")
        a("s_cmp_eq_u32 s2, 0", f"s_cselect_b32 {T[0]}, {sW}, 1", f"s_cmp_eq_u32 {T[0]}, 0", "s_cbranch_scc0 L_noepoch",
          "s_mov_b64 exec, 1", f"buffer_store_dwordx2 {vTAG}, off, {sWS}, 0 sc1", "s_mov_b64 exec, -1", "L_noepoch:")
        if self.stamps:
            a("s_waitcnt vmcnt(0)")
            self.stamp("end")
            a(f"s_lshl_b32 {T[0]}, s2, 2", f"s_add_u32 {T[0]}, {T[0]}, {sW}", f"s_lshl_b32 {T[0]}, {T[0]}, 7", f"s_add_u32 {T[0]}, {T[0]}, {WS_DBG}",
              "s_mov_b64 exec, 1")
            for i in range(16):
                a(f"v_mov_b32 v8, s{STAMP0 + i}", f"buffer_store_dword v8, off, {sWS}, {T[0]} offset:{4 * i}")
            a("s_cmp_eq_u32 s2, 100", f"s_cselect_b32 {T[0]}, {sW}, 1", f"s_cmp_eq_u32 {T[0]}, 0", "s_cbranch_scc0 L_nodbg",
              "s_load_dwordx2 s[4:5], s[0:1], 72", "s_mov_b32 s6, 256", "s_waitcnt lgkmcnt(0)")
            for i in range(16):
                a(f"v_mov_b32 v8, s{STAMP0 + i}", f"buffer_store_dword v8, off, {sX}, 0 offset:{4 * i}")
            a("L_nodbg:")
        if self.calib:
            a("s_waitcnt vmcnt(0)", "L_calib:", "s_memrealtime s[100:101]", "s_waitcnt lgkmcnt(0)", f"s_sub_u32 s100, s100, s{STAMP0}",
              f"s_cmp_lt_u32 s100, {self.calib}", "s_cbranch_scc1 L_calib")
        a("s_waitcnt vmcnt(0)", "L_exit:", "s_endpgm")

    def build(self):
        self.prologue()
        self.phase_qkv(); self.maybe_stop("qkv")
        self.phase_attn(); self.maybe_stop("attn")
        self.phase_wo(); self.maybe_stop("wo")
        self.phase_win(); self.maybe_stop("win")
        self.phase_wsp(); self.maybe_stop("wsp")
        self.phase_wout()
        self.epilogue()
        self.attn_slow()
        body = self.a.finish()
        ref = open(f"cdna_kernels/{NAME}.s.ref").read().split("\n")
        head = [l for l in ref if l.startswith(";") and "@launch" not in l and "Override" not in l and "grid=ceil" not in l]
        head = head[:head.index([l for l in head if "d_ws" in l][0]) + 1]
        return ("\n".join(head) + f"\n; @launch grid=(256,1,1) block=(256,1,1) lds={LDS_BYTES}\n"
                + '.amdgcn_target "amdgcn-amd-amdhsa--gfx950"\n.text\n'
                + f".globl {NAME}_kernel\n.p2align 8\n.type {NAME}_kernel,@function\n{NAME}_kernel:\n" + body
                + f""".section .rodata,"a"
.p2align 6
.amdhsa_kernel {NAME}_kernel
  .amdhsa_next_free_vgpr 512
  .amdhsa_next_free_sgpr 102
  .amdhsa_accum_offset 256
  .amdhsa_group_segment_fixed_size 0
  .amdhsa_kernarg_size 88
  .amdhsa_user_sgpr_count 2
  .amdhsa_user_sgpr_kernarg_segment_ptr 1
  .amdhsa_system_sgpr_workgroup_id_x 1
  .amdhsa_float_denorm_mode_32 3
.end_amdhsa_kernel
""")

if __name__ == "__main__":
    import argparse
    ap = argparse.ArgumentParser()
    ap.add_argument("-o", default=f"cdna_kernels/{NAME}.s")
    ap.add_argument("--stop"); ap.add_argument("--stamps", action="store_true"); ap.add_argument("--slow", action="store_true")
    ap.add_argument("--opt", action="append", default=[])
    o = ap.parse_args()
    g = Gen(o.stop, o.stamps, o.slow, **{k: int(x) for k, x in (kv.split('=') for kv in o.opt)})
    s = g.build()
    open(o.o, "w").write(s)
    print(f"wrote {o.o}: {len(s)} bytes, {len(g.a.items)} items, {g.a.nops_added} nops; stamps: {g.stamp_names}")
```

```python
import sys, struct
from asmdsl import Asm

NAME = "sequential_preLN__softmax_full_mha__mixer_gmlp__prompt"

WS_EPOCH = 0
WS_F1, WS_F2, WS_F3, WS_F4, WS_F5, WS_F6 = 0x1000, 0x90000, 0x7000, 0x9000, 0xB000, 0xD000
WS_ST3, WS_ST4 = 0x10000, 0x50000
WS_Q, WS_KV, WS_O, WS_H, WS_Z, WS_G = 0x100000, 0x300000, 0x700000, 0x900000, 0xB00000, 0xE00000
WS_DBG = 0x1100000
WS_SIZE = 0x1400000

LA, LC, LB = 0, 65536, 98304
LRED = 24576
LDS_BYTES = 163840

sX, sWQKV, sWO, sWIN, sWSP, sBSP, sWOUT, sOUT, sWS = ("s[%d:%d]" % (b, b + 3) for b in range(4, 40, 4))
sJ, sRB, sCB, sHEAD, sW, sR0, sRH, sCH, sT0, sCNT5 = ("s%d" % i for i in range(40, 50))
sTAG = "s[50:51]"
sONES, sHIMASK, sCLU, sPOLL = "s52", "s53", "s54", "s55"
T = ["s%d" % i for i in range(56, 64)]
sROT = ["s%d" % i for i in range(64, 72)]
sU = ["s%d" % i for i in range(72, 84)]
sSPR = "s3"
STAMP0 = 84

vLANE, vL16, vPAT, vZ = "v0", "v1", "v2", "v3"
vTAG = "v[4:5]"
vFP32, vFP8 = "v6", "v7"
vH = 8
vZ1 = 16

def v(a, n=1): return f"v{a}" if n == 1 else f"v[{a}:{a + n - 1}]"
def ar(a, n=1): return f"a{a}" if n == 1 else f"a[{a}:{a + n - 1}]"
def f2u(x): return "0x%08x" % struct.unpack("<I", struct.pack("<f", x))[0]

def mfma16(d, a, b, c=None):
    return f"v_mfma_f32_16x16x32_bf16 {v(d,4)}, {a}, {b}, {c if c is not None else v(d,4)}"

def interleave(a, mains, fillers, per=1, start=0):
    k = 0
    for i, m in enumerate(mains):
        m() if callable(m) else a(m)
        if i >= start:
            for _ in range(per):
                if k < len(fillers):
                    f = fillers[k]; k += 1
                    f() if callable(f) else a(f)
    while k < len(fillers):
        f = fillers[k]; k += 1
        f() if callable(f) else a(f)

class Gen:
    def __init__(self, stop=None, stamps=False, force_fallback=False, calib=0, **opt):
        self.calib = calib
        self.opt = opt
        self.a = Asm()
        self.stop = stop
        self.stamps = stamps
        self.force_fallback = force_fallback
        self.nstamp = 0
        self.stamp_names = []

    def stamp(self, name):
        if not self.stamps: return
        if name in ("issued", "x_first", "x_last") and not self.opt.get("xstamps"): return
        a = self.a
        a.wait(lg=a.lg)
        cyc = self.opt.get("cyc")
        a(f"{'s_memtime' if cyc else 's_memrealtime'} s[100:101]", "s_waitcnt lgkmcnt(0)")
        n = self.nstamp
        if n == 0:
            a(f"s_mov_b32 s{STAMP0}, s100")
        else:
            r = STAMP0 + 1 + (n - 1) // 2
            if cyc: a(f"s_sub_u32 s101, s100, s{STAMP0}", f"s_mov_b32 s{STAMP0}, s100", "s_mov_b32 s100, s101")
            else: a(f"s_sub_u32 s100, s100, s{STAMP0}")
            a(f"s_mov_b32 s{r}, s100" if n & 1 else f"s_pack_ll_b32_b16 s{r}, s{r}, s100")
        self.nstamp += 1; self.stamp_names.append(name)
        assert self.nstamp <= 29

    def maybe_stop(self, name):
        if self.stop == name:
            self.a.wait_all()
            self.a("s_branch L_finish")

    def flag_store(self, soff):
        a = self.a
        a.wait(vm=a.vm, force=True)
        a("s_mov_b64 exec, 1", f"buffer_store_dwordx2 {vTAG}, off, {sWS}, {soff} sc1", "s_mov_b64 exec, -1")

    def flag_store_wg(self, soff):
        a = self.a
        a.wait(vm=a.vm, force=True)
        self.barrier()
        L = a.label("noflag")
        a(f"s_cmp_lg_u32 {sW}, 0", f"s_cbranch_scc1 {L}",
          "s_mov_b64 exec, 1", f"buffer_store_dwordx2 {vTAG}, off, {sWS}, {soff} sc1", "s_mov_b64 exec, -1", f"{L}:")

    def poll_wg(self, voff, soff, tmp):
        a = self.a
        if self.opt.get("allpoll"):
            self.poll(voff, soff, tmp); return
        a.wait(vm=a.vm, force=True)
        L = a.label("nopoll")
        a(f"s_cmp_lg_u32 {sW}, 0", f"s_cbranch_scc1 {L}")
        self.poll(voff, soff, tmp)
        a(f"{L}:")
        self.barrier()

    def poll(self, voff, soff, tmp):
        a = self.a
        L, E = a.label("poll"), a.label("polled")
        a(f"s_mov_b32 {sPOLL}, 0x40000", f"{L}:",
          f"buffer_load_dwordx2 {v(tmp,2)}, {voff}, {sWS}, {soff} offen sc1")
        a.wait(vm=a.vm, force=True)
        a(f"v_cmp_ne_u64 vcc, {sTAG}, {v(tmp,2)}",
          f"s_sub_u32 {sPOLL}, {sPOLL}, 1", f"s_cbranch_scc1 {E}")
        sl = self.opt.get("sleep", 0)
        if sl: a(f"s_cbranch_vccz {E}", f"s_sleep {sl}", f"s_branch {L}", f"{E}:")
        else: a(f"s_cbranch_vccnz {L}", f"{E}:")

    def barrier(self):
        self.a("s_barrier")

    def prologue(self):
        a = self.a
        a("s_cmp_ge_u32 s2, 256", "s_cbranch_scc1 L_exit")
        self.stamp("entry")
        for d, off, n in self.SRDS: a(f"s_load_dwordx2 s[{d}:{d + 1}], s[0:1], {off}")
        for d, off, n in self.SRDS: a(f"s_mov_b32 s{d + 2}, {n}", f"s_mov_b32 s{d + 3}, 0x00020000")
        a("v_lshrrev_b32 v8, 6, v0", f"v_and_b32 {vLANE}, 63, v0", f"v_readfirstlane_b32 {sW}, v8",
          f"s_and_b32 {sJ}, s2, 7", f"s_lshr_b32 {sHEAD}, s2, 3", f"s_lshr_b32 {sRB}, {sHEAD}, 3", f"s_and_b32 {sCB}, {sHEAD}, 7",
          f"s_lshl_b32 {sR0}, {sJ}, 8", f"s_lshl_b32 {T[0]}, {sRB}, 6", f"s_add_u32 {sR0}, {sR0}, {T[0]}",
          f"s_lshr_b32 {sRH}, {sW}, 1", f"s_and_b32 {sCH}, {sW}, 1",
          f"s_lshl_b32 {sCLU}, {sJ}, 2", f"s_add_u32 {sCLU}, {sCLU}, {sRB}",
          f"s_mov_b32 {sONES}, 0x3f803f80", f"s_mov_b32 {sHIMASK}, 0xffff0000")
        a(f"s_mul_i32 {T[0]}, {sCB}, 5", f"s_min_u32 {T[1]}, {sCB}, 3", f"s_add_u32 {sT0}, {T[0]}, {T[1]}",
          f"s_cmp_ge_u32 {sCB}, 3", f"s_cselect_b32 {sCNT5}, 1, 0")
        a(f"v_lshlrev_b32 {vL16}, 4, {vLANE}", f"v_mov_b32 {vZ}, 0",
          f"v_and_b32 v8, 15, {vLANE}", f"v_lshrrev_b32 v9, 5, {vLANE}", f"v_bfe_u32 v10, {vLANE}, 4, 1",
          f"v_lshlrev_b32 v8, 4, v8", f"v_lshl_add_u32 v8, v10, 3, v8",
          f"v_lshl_add_u32 {vPAT}, v9, 8, v8",
          f"v_lshl_add_u32 v63, v9, 9, v8",
          f"v_and_b32 {vFP32}, 31, {vLANE}", f"v_lshlrev_b32 {vFP32}, 7, {vFP32}",
          f"v_and_b32 {vFP8}, 7, {vLANE}", f"v_lshlrev_b32 {vFP8}, 3, {vFP8}")

    SRDS = [(4, 0, 2048 * 512 * 2), (8, 8, 512 * 1536 * 2), (36, 80, WS_SIZE), (12, 16, 512 * 512 * 2), (16, 32, 512 * 1376 * 2),
            (20, 40, 2048 * 2048 * 2), (24, 48, 2048 * 2), (28, 56, 688 * 512 * 2), (32, 64, 2048 * 512 * 2)]

    def phase_qkv(self):
        a = self.a
        XR, ACC = 64, 128
        vXa, vXb, vW0, vW1, vWrA, vWrB, vXe, vXo, vXw = "v28", "v29", "v30", "v31", "v32", "v33", "v34", "v35", "v36"
        a(f"v_lshrrev_b32 v8, 3, {vLANE}", f"v_and_b32 v9, 7, {vLANE}",
          f"v_lshlrev_b32 v10, 10, v8", f"v_lshl_add_u32 {vXa}, v9, 4, v10",
          f"s_lshl_b32 {T[0]}, {sW}, 4", f"s_add_u32 {T[0]}, {T[0]}, {sR0}", f"s_lshl_b32 {T[0]}, {T[0]}, 10",
          f"v_add_u32 {vXa}, {T[0]}, {vXa}", f"v_add_u32 {vXb}, 0x2000, {vXa}")
        a(f"v_bfe_u32 v10, {vLANE}, 4, 1", "v_lshrrev_b32 v11, 1, v9", "v_xor_b32 v11, v11, v10",
          "v_and_b32 v12, 1, v9", "v_lshl_or_b32 v11, v11, 1, v12", "v_lshlrev_b32 v11, 4, v11",
          "v_mul_u32_u24 v12, 3072, v8", "v_add_u32 v12, v12, v11",
          f"s_mul_i32 {T[0]}, {sW}, {16 * 3072}", f"s_lshl_b32 {T[1]}, {sCB}, 7", f"s_add_u32 {T[0]}, {T[0]}, {T[1]}",
          f"v_add_u32 {vW0}, {T[0]}, v12", f"v_xor_b32 {vW1}, 64, {vW0}", f"v_add_u32 {vW1}, {8 * 3072 - 1024}, {vW1}")
        a(f"v_lshrrev_b32 v10, 4, {vLANE}", f"v_bfe_u32 v11, {vLANE}, 2, 2", f"v_and_b32 v12, 3, {vLANE}",
          "v_lshl_add_u32 v13, v10, 3, v11", "v_lshlrev_b32 v13, 7, v13", "v_lshl_add_u32 v13, v12, 3, v13",
          "v_lshrrev_b32 v11, 1, v11", "v_and_b32 v14, 1, v10", "v_lshl_or_b32 v11, v14, 1, v11",
          f"v_xor_b32 v11, {sW}, v11", f"v_lshl_add_u32 {vWrA}, v11, 5, v13", f"v_add_u32 {vWrB}, {2 * 24576}, {vWrA}")
        a("v_lshrrev_b32 v11, 2, v9", "v_lshlrev_b32 v11, 10, v11", "v_and_b32 v12, 3, v9", "v_lshl_add_u32 v11, v12, 8, v11",
          "v_xor_b32 v12, v8, v9", "v_lshl_add_u32 v11, v12, 4, v11",
          f"s_lshl_b32 {T[0]}, {sW}, 14", f"s_add_u32 {T[0]}, {T[0]}, {LB}", f"v_add_u32 {vXw}, {T[0]}, v11",
          f"v_and_b32 v11, 15, {vLANE}", "v_xor_b32 v11, v11, v10", "v_lshl_add_u32 v11, v10, 4, v11", "v_lshlrev_b32 v11, 4, v11",
          f"v_add_u32 {vXe}, {LB}, v11", f"v_xor_b32 {vXo}, 64, {vXe}")
        for m in range(4):
            a(f"s_add_u32 {T[0]}, {sRB}, {m}", f"s_and_b32 {T[0]}, {T[0]}, 3", f"s_mul_i32 {sU[8 + m]}, {T[0]}, {2 * 64 * 3072}")
        a(f"s_lshl_b32 {T[1]}, {sRB}, 1")
        for i in range(8):
            a(f"s_add_u32 {T[0]}, {sCB}, {i}", f"s_and_b32 {T[0]}, {T[0]}, 7", f"s_lshl_b32 {sROT[i]}, {T[0]}, 7",
              f"s_sub_u32 {T[0]}, {T[0]}, {T[1]}", f"s_and_b32 {T[0]}, {T[0]}, 7", f"s_lshl_b32 {T[0]}, {T[0]}, 11", f"v_add_u32 v{37 + i}, {T[0]}, {vXw}")
        a(f"s_lshl_b32 {sU[0]}, {sW}, 11")
        if self.opt.get("pf0"):
            a(f"s_lshl_b32 {T[0]}, {sRB}, 2", f"s_add_u32 {T[0]}, {T[0]}, {sW}", f"s_mul_i32 {T[0]}, {T[0]}, {32 * 3072}",
              f"s_lshl_b32 {T[1]}, {sCB}, 7", f"s_add_u32 {T[0]}, {T[0]}, {T[1]}",
              f"v_and_b32 v8, 31, {vLANE}", "v_mul_u32_u24 v8, 3072, v8", f"v_add_u32 v48, {T[0]}, v8",
              f"v_lshrrev_b32 v9, 5, {vLANE}", "v_lshl_add_u32 v45, v9, 10, v48")
        a("s_waitcnt lgkmcnt(0)")
        self.stamp("kernarg")
        xtok = []
        wtok = {}
        def wdma(t):
            L = []
            slot = t & 3
            for p in range(3):
                L.append([f"s_add_u32 {T[2]}, {sU[8 + (t >> 1)]}, {(t & 1) * 64 * 3072 + p * 1024}",
                          f"s_add_u32 m0, {sU[0]}, {slot * 24576 + p * 8192}",
                          f"buffer_load_dwordx4 {vW0}, {sWQKV}, {T[2]} offen lds"])
                L.append([f"buffer_load_dwordx4 {vW1}, {sWQKV}, {T[2]} offen offset:1024 lds"])
            L[-1].append(lambda: wtok.__setitem__(t, a.vtok()))
            return L
        wq = [x for t in range(4) for x in wdma(t)]
        def wq_issue(n):
            for _ in range(n):
                if wq: self.emit(wq.pop(0))
        for t in range(8):
            for g, vx in enumerate((vXa, vXb)):
                a(f"buffer_load_dwordx4 {v(XR + (g * 8 + t) * 4, 4)}, {vx}, {sX}, {sROT[t]} offen")
            xtok.append(a.vtok())
            if t == 0: wq_issue(self.opt.get("wpre", 2))
        if not self.opt.get("nocodepf"):
            a(f"s_getpc_b64 s[60:61]", "L_pc:", f"s_sub_u32 s60, s60, L_pc-{NAME}_kernel", "s_subb_u32 s61, s61, 0",
              f"s_mov_b32 s62, L_code_end-{NAME}_kernel", "s_mov_b32 s63, 0x00020000",
              f"s_lshl_b32 {T[0]}, {sHEAD}, 2", f"s_add_u32 {T[0]}, {T[0]}, {sW}", f"s_lshl_b32 {T[0]}, {T[0]}, 9",
              f"v_lshlrev_b32 v46, 3, {vLANE}", f"buffer_load_dwordx2 v[46:47], v46, s[60:63], {T[0]} offen")
        if self.opt.get("tlb"):
            a(f"v_min_u32 v48, 9, {vLANE}", "v_lshlrev_b32 v48, 21, v48", f"buffer_load_dword v48, v48, {sWS}, 0 offen offset:2048")
        self.stamp("issued")
        for t in range(8):
            a.wait(vm=xtok[t])
            if t == 0: self.stamp("x_first")
            if t == 7: self.stamp("x_last")
            if t >= self.opt.get("wstart", 5): wq_issue(1)
            for k in range(4):
                for g in range(2):
                    x = v(XR + (g * 8 + t) * 4 + k)
                    first = t == 0 and k == 0
                    a(f"v_dot2_f32_bf16 v{8 + 2 * g}, {x}, {sONES}, {'0' if first else 'v%d' % (8 + 2 * g)}",
                      f"v_dot2_f32_bf16 v{9 + 2 * g}, {x}, {x}, {'0' if first else 'v%d' % (9 + 2 * g)}")
        for mod in ("quad_perm:[1,0,3,2]", "quad_perm:[2,3,0,1]", "row_half_mirror"):
            for r in range(8, 12):
                a(f"v_add_f32_dpp v{r}, v{r}, v{r} {mod} row_mask:0xf bank_mask:0xf")
        self.ln_finish([(8, 9, 12), (10, 11, 14)], 1.0 / 512)
        n = 0
        for t in range(8):
            for g in range(2):
                b = XR + (g * 8 + t) * 4
                tp = [16 + 2 * ((n + k) % 6) for k in range(4)]; n += 4
                for k in range(4):
                    a(f"v_lshlrev_b32 v{tp[k]}, 16, v{b + k}", f"v_and_b32 v{tp[k] + 1}, {sHIMASK}, v{b + k}")
                for k in range(4):
                    a(f"v_pk_fma_f32 {v(tp[k], 2)}, {v(tp[k], 2)}, {v(12 + 2 * g, 2)}, {v(12 + 2 * g, 2)} op_sel:[0,0,1] op_sel_hi:[1,0,1]")
                for k in range(4):
                    a(f"v_cvt_pk_bf16_f32 v{b + k}, v{tp[k]}, v{tp[k] + 1}")
                a(f"ds_write_b128 v{37 + t}, {v(b, 4)} offset:{g * 128}")
                if 2 * t + g < self.opt.get("wln", 12): wq_issue(1)
        wq_issue(24)
        a(f"buffer_load_dwordx2 v[4:5], off, {sWS}, 0 sc1")
        etok = a.vtok()
        self.stamp("ln1")
        AF, WF = 64, 208
        def abuf(s): return AF + 16 * (s % 3)
        def wbuf(s): return WF + 12 * (s % 3)
        def reads(s):
            t, sub = s >> 1, s & 1
            slot = t & 3
            wb = vWrA if slot < 2 else vWrB
            wo = (slot & 1) * 24576 + sub * 4096
            A, W = abuf(s), wbuf(s)
            L = [f"ds_read_b64_tr_b16 {v(W + 2 * h, 2)}, {wb} offset:{wo + 512 * h}" for h in range(2)]
            L += [f"ds_read_b128 {v(A + 4 * rt, 4)}, {vXo if s & 1 else vXe} offset:{(rt * 16 + s) * 1024}" for rt in range(4)]
            L += [f"ds_read_b64_tr_b16 {v(W + 4 * p + 2 * h, 2)}, {wb} offset:{wo + 8192 * p + 512 * h}" for p in (1, 2) for h in range(2)]
            return L
        def mfmas(s):
            A, W = abuf(s), wbuf(s)
            ms = []
            for p in range(3):
                for rt in range(4):
                    d = ACC + 16 * p + 4 * rt
                    wv, av = v(W + 4 * p, 4), v(A + 4 * rt, 4)
                    c = "0" if s == 0 else None
                    ms.append(mfma16(d, wv, av, c) if p < 2 else mfma16(d, av, wv, c))
            return ms
        def head0():
            a.wait(vm=wtok[0], lg=a.lg); self.barrier(); self.stamp("w0")
        before, late = {}, {}
        for t in range(7):
            def f(t=t):
                a.wait(vm=wtok[t + 1]); self.barrier()
            before[2 * t] = f
        def f14():
            a.wait(lg=a.lg); self.barrier()
        before[15] = f14
        for t in range(4):
            d = wdma(t + 4)
            late[2 * t + 2] = d[:3]; late[2 * t + 3] = d[3:]
        cf = self.const_fill()
        late[15] = [cf[0:4], cf[4:8], cf[8:10], cf[10:]]
        self.kloop(16, reads, mfmas, before, late, {0: head0})
        self.stamp("qkv_gemm")
        a.wait(vm=etok)
        a("v_add_u32 v4, 0x9e3779b9, v4", "v_add_u32 v5, 0x7f4a7c15, v5", "v_readfirstlane_b32 s50, v4", "v_readfirstlane_b32 s51, v5")
        QS = 0.25 * 1.4426950408889634
        a(f"s_mov_b32 {T[0]}, {f2u(QS)}",
          f"s_lshl_b32 {T[1]}, {sCB}, 2", f"s_add_u32 {T[1]}, {T[1]}, {sW}",
          f"s_lshl_b32 {T[2]}, {T[1]}, 16", f"s_lshl_b32 {T[3]}, {sR0}, 5", f"s_add_u32 {T[2]}, {T[2]}, {T[3]}",
          f"s_add_u32 {T[2]}, {T[2]}, {WS_Q}",
          f"s_lshl_b32 {T[4]}, {T[1]}, 17", f"s_lshl_b32 {T[3]}, {sR0}, 6", f"s_add_u32 {T[4]}, {T[4]}, {T[3]}",
          f"s_add_u32 {T[4]}, {T[4]}, {WS_KV}", f"s_add_u32 {T[5]}, {T[4]}, 2048")
        PK = 64
        for p in (1, 2, 0):
            for rt in range(4):
                d = ACC + 16 * p + 4 * rt
                o = PK + 8 * p + 2 * rt
                if p == 0:
                    for k in range(4): a(f"v_mul_f32 v{d + k}, {T[0]}, v{d + k}")
                a(f"v_cvt_pk_bf16_f32 v{o}, v{d}, v{d + 1}", f"v_cvt_pk_bf16_f32 v{o + 1}, v{d + 2}, v{d + 3}")
                if p < 2:
                    a(f"buffer_store_dwordx2 {v(o, 2)}, v63, {sWS}, {T[2] if p == 0 else T[4]} offen offset:{(rt >> 1) * 1024 + (rt & 1) * 256} sc1")
                else:
                    a(f"buffer_store_dwordx2 {v(o, 2)}, {vPAT}, {sWS}, {T[5]} offen offset:{rt * 512} sc1")
        a(f"s_lshl_b32 {T[0]}, {sRB}, 5", f"s_add_u32 {T[0]}, {T[0]}, {T[1]}", f"s_lshl_b32 {T[0]}, {T[0]}, 7",
          f"s_lshl_b32 {T[1]}, {sJ}, 3", f"s_add_u32 {T[0]}, {T[0]}, {T[1]}", f"s_add_u32 {T[0]}, {T[0]}, {WS_F1}")
        self.flag_store(T[0])
        self.stamp("qkv_pub")
        self.attn_addresses()

    def ln_finish(self, chains, inv_n):
        a = self.a
        for s1, s2, d in chains: a(f"v_mul_f32 v{s1}, {f2u(inv_n)}, v{s1}", f"v_mul_f32 v{s2}, {f2u(inv_n)}, v{s2}")
        for s1, s2, d in chains: a(f"v_fma_f32 v{s2}, -v{s1}, v{s1}, v{s2}")
        for s1, s2, d in chains: a(f"v_max_f32 v{s2}, 0, v{s2}")
        for s1, s2, d in chains: a(f"v_add_f32 v{s2}, {f2u(1e-5)}, v{s2}")
        for s1, s2, d in chains: a(f"v_rsq_f32 v{d}, v{s2}")
        for s1, s2, d in chains: a(f"v_mul_f32_e64 v{d + 1}, -v{s1}, v{d}")

    def const_fill(self):
        L = [f"v_and_b32 v8, 27, {vLANE}", "v_cmp_eq_u32 vcc, 1, v8", f"v_mov_b32 v9, {sONES}",
             "v_cndmask_b32 v12, v3, v9, vcc", "v_mov_b32 v13, v12", "v_mov_b32 v14, v12", "v_mov_b32 v15, v12",
             f"s_lshl_b32 {T[3]}, {sW}, 12", f"s_add_u32 {T[3]}, {T[3]}, {LC + 2048}", f"v_add_u32 v9, {T[3]}, {vL16}",
             "ds_write_b128 v9, v[12:15]", "ds_write_b128 v9, v[12:15] offset:1024"]
        return L

    S, OA, NM, QF, KB, VB = 64, 112, 144, 176, 184, 192
    vIDX, vSP0, vKA, vKB2, vVB, vVI, vWD0, vXR = 208, 209, 213, 214, 215, 216, 217, 240

    def attn_addresses(self):
        a = self.a
        a(f"v_and_b32 v8, 15, {vLANE}", f"v_lshrrev_b32 v9, 4, {vLANE}", "v_lshlrev_b32 v10, 12, v8", "v_lshl_add_u32 v10, v9, 4, v10",
          f"s_lshl_b32 {T[6]}, {sR0}, 12", f"s_lshl_b32 {T[7]}, {sW}, 7", f"s_add_u32 {T[6]}, {T[6]}, {T[7]}",
          f"v_add_u32 v{self.vSP0}, {T[6]}, v10")
        for tt in range(1, 4): a(f"v_add_u32 v{self.vSP0 + tt}, {tt * 65536}, v{self.vSP0}")
        a(f"v_mov_b32 v{self.vIDX}, 0xdddddddd", f"v_mov_b32 v{self.vKA}, {vL16}", f"v_add_u32 v{self.vKB2}, {LB}, {vL16}")
        a(f"v_lshrrev_b32 v10, 5, {vLANE}", "v_lshl_add_u32 v10, v10, 4, v8", "v_lshlrev_b32 v10, 4, v10",
          f"v_and_b32 v11, 31, {vLANE}", f"v_bfe_u32 v12, {vLANE}, 2, 2",
          "v_add_u32 v12, -1, v12", "v_cmp_gt_u32 vcc, 2, v12", "v_cndmask_b32_e64 v12, 0, 4, vcc",
          "v_and_b32 v13, 27, v11", "v_cmp_eq_u32 vcc, 16, v13", "v_cndmask_b32_e64 v13, 0, 1, vcc",
          "v_add_u32 v12, v12, v13", "v_lshlrev_b32 v12, 4, v12", f"v_add_u32 v12, {LC}, v12",
          "v_cmp_gt_u32 vcc, 16, v11", f"v_cndmask_b32 v{self.vVB}, v12, v10, vcc",
          f"v_mov_b32 v13, 0x4000", f"v_cndmask_b32 v{self.vVI}, v3, v13, vcc")
        self.w128_addresses(self.vWD0)
        a(f"s_lshl_b32 {T[5]}, {sHEAD}, 17", f"s_lshl_b32 {sU[1]}, {sW}, 12", f"s_add_u32 {T[5]}, {T[5]}, {sU[1]}", f"s_add_u32 {T[5]}, {T[5]}, {WS_KV}")
        for t in range(8):
            a(f"s_add_u32 {T[6]}, {sJ}, {t}", f"s_and_b32 {T[6]}, {T[6]}, 7", f"s_lshl_b32 {T[6]}, {T[6]}, 14", f"s_add_u32 {sROT[t]}, {T[6]}, {T[5]}")
        a(f"s_lshl_b32 {sSPR}, {sRB}, 1", f"s_add_u32 {sSPR}, {sSPR}, {sJ}")
        for t in range(8):
            a(f"s_add_u32 {T[6]}, {sSPR}, {t}", f"s_and_b32 {T[6]}, {T[6]}, 7", f"s_lshl_b32 {sU[4 + t]}, {T[6]}, 9")
        a(f"v_lshrrev_b32 v226, 3, {vLANE}", f"s_lshl_b32 {T[6]}, {sCB}, 3", f"s_add_u32 {T[6]}, {T[6]}, {sR0}", f"v_add_u32 v226, {T[6]}, v226",
          "v_lshlrev_b32 v226, 12, v226", f"v_and_b32 v227, 7, {vLANE}", "v_lshl_add_u32 v226, v227, 4, v226",
          f"s_lshl_b32 {T[6]}, {sW}, 7", f"v_add_u32 v226, {T[6]}, v226")
        a(f"v_and_b32 v8, 15, {vLANE}", f"v_lshrrev_b32 v9, 4, {vLANE}", "v_lshlrev_b32 v8, 10, v8", "v_lshl_add_u32 v62, v9, 3, v8")
        a(f"v_and_b32 v10, 15, {vLANE}", f"v_bfe_u32 v11, {vLANE}, 4, 1", f"v_lshrrev_b32 v12, 5, {vLANE}",
          "v_lshlrev_b32 v10, 4, v10", "v_lshl_add_u32 v10, v11, 14, v10", "v_lshl_add_u32 v63, v12, 3, v10")

    def w128_addresses(self, r, t0=28):
        a = self.a
        p, q, u, x, y = ("v%d" % (t0 + i) for i in range(5))
        a(f"v_lshrrev_b32 {p}, 3, {vLANE}", f"v_and_b32 {q}, 7, {vLANE}", f"v_bfe_u32 {u}, {vLANE}, 4, 1",
          f"v_lshrrev_b32 {x}, 1, {q}", f"v_xor_b32 {x}, {x}, {u}", f"v_and_b32 {y}, 1, {q}", f"v_lshl_or_b32 {x}, {x}, 1, {y}",
          f"v_lshlrev_b32 {x}, 4, {x}", f"v_lshl_add_u32 {x}, {p}, 10, {x}",
          f"s_lshl_b32 {T[6]}, {sCB}, 7", f"v_add_u32 v{r}, {T[6]}, {x}", f"v_xor_b32 v{r + 1}, 64, v{r}",
          f"v_add_u32 v{r + 1}, {7 * 1024}, v{r + 1}", f"v_add_u32 v{r + 2}, {14 * 1024}, v{r}", f"v_add_u32 v{r + 3}, {14 * 1024}, v{r + 1}")

    def w128_dma(self, r, srd, pos, lds, nsteps):
        L = [f"s_lshr_b32 {T[4]}, {pos}, 1", f"s_add_u32 {T[4]}, {T[4]}, {sU[4]}"]
        n = nsteps // 2
        if n & (n - 1) == 0: L.append(f"s_and_b32 {T[4]}, {T[4]}, {n - 1}")
        else: L += [f"s_cmp_ge_u32 {T[4]}, {n}", f"s_cselect_b32 {T[7]}, {n}, 0", f"s_sub_u32 {T[4]}, {T[4]}, {T[7]}"]
        L += [f"s_lshl_b32 {T[4]}, {T[4]}, 1", f"s_and_b32 {T[7]}, {pos}, 1", f"s_add_u32 {T[4]}, {T[4]}, {T[7]}", f"s_lshl_b32 {T[4]}, {T[4]}, 15",
              f"s_mov_b32 m0, {lds}"]
        return L, [f"buffer_load_dwordx4 v{r + i}, {srd}, {T[4]} offen offset:{1024 * i} lds" for i in range(4)]

    def stage_base(self, t): return LA + 16384 * t if t < 4 else LB + 16384 * (t - 4)

    def kv_dma(self, t):
        L = [([f"s_add_u32 m0, {sU[1]}, {self.stage_base(t)}"] if i == 0 else [],
              f"buffer_load_dwordx4 {vL16}, {sWS}, {sROT[t]} offen offset:{1024 * i} sc1 lds") for i in range(4)]
        return L

    def phase_attn(self):
        a = self.a
        S, OA, NM, QF, KB, VB = self.S, self.OA, self.NM, self.QF, self.KB, self.VB
        a(f"s_lshl_b32 {T[0]}, {sW}, 5", f"s_add_u32 {T[0]}, {T[0]}, {sHEAD}", f"s_lshl_b32 {T[0]}, {T[0]}, 7", f"s_add_u32 {T[0]}, {T[0]}, {WS_F1}",
          f"s_lshl_b32 {T[1]}, {sHEAD}, 16", f"s_lshl_b32 {T[2]}, {sJ}, 13", f"s_add_u32 {T[1]}, {T[1]}, {T[2]}",
          f"s_lshl_b32 {T[2]}, {sW}, 11", f"s_add_u32 {T[1]}, {T[1]}, {T[2]}", f"s_add_u32 {T[1]}, {T[1]}, {WS_Q}",
          f"s_lshl_b32 {sU[3]}, {sW}, 14",
          f"s_lshl_b32 {T[3]}, {sJ}, 3", f"v_mov_b32 v13, {T[3]}")
        for r in range(OA, OA + 32): a(f"v_mov_b32 v{r}, 0")
        two = not self.opt.get("s1one")
        self.poll("v13" if two else vFP8, T[0], 8)
        self.stamp("s1")
        for q in range(2):
            a(f"buffer_load_dwordx4 {v(QF + 4 * q, 4)}, {vL16}, {sWS}, {T[1]} offen offset:{1024 * q} sc1")
        kvtok = {}
        def issue(items):
            for pre, ins in items: a(*pre, ins) if pre else a(ins)
        issue(self.kv_dma(0)); kvtok[0] = a.vtok()
        if two: self.poll(vFP8, T[0], 8)
        issue(self.kv_dma(1)); kvtok[1] = a.vtok()
        if not self.opt.get("noahead"): a(f"buffer_load_dwordx4 v[228:231], v226, {sWSP}, {sU[4]} offen")
        a.wait(vm=kvtok[0], lg=a.lg)
        self.barrier()
        def kread(kt):
            t, k = kt >> 3, kt & 7
            base = self.vKA if t < 4 else self.vKB2
            return f"ds_read_b128 {v(KB + 4 * (kt & 1), 4)}, v{base} offset:{16384 * (t & 3) + (k >> 1) * 4096 + (k & 1) * 1024}"
        def vread(kt, hi):
            k = kt & 7
            return f"ds_read_b128 {v(VB + 8 * (kt & 1) + 4 * hi, 4)}, v{self.vVB} offset:{(k >> 1) * 4096 + 2048 + (k & 1) * 1024 + 512 * hi}"
        def qk(n, c=None):
            kt, q = n >> 1, n & 1
            return f"v_mfma_f32_32x32x16_bf16 {v(S + 16 * (n % 3), 16)}, {v(KB + 4 * (kt & 1), 4)}, {v(QF + 4 * q, 4)}, {c if c else v(NM + 16 * q, 16)}"
        def pv(n, hi):
            kt, q = n >> 1, n & 1
            return f"v_smfmac_f32_32x32x32_bf16 {v(OA + 16 * q, 16)}, {v(VB + 8 * (kt & 1) + 4 * hi, 4)}, {v(S + 16 * (n % 3) + 8 * hi, 8)}, v{self.vIDX}"
        a(kread(0), kread(1), vread(0, 0), vread(0, 1))
        a.wait(lg=a.lg)
        a(qk(0, "0"), qk(1, "0"))
        for q in range(2):
            b, m = S + 16 * q, 8 + 2 * q
            a(f"v_max3_f32 v{m}, v{b}, v{b + 1}, v{b + 2}")
            for k in range(3, 15, 2): a(f"v_max3_f32 v{m}, v{m}, v{b + k}, v{b + k + 1}")
            a(f"v_max_f32 v{m}, v{m}, v{b + 15}", f"v_mov_b32 v{m + 1}, v{m}")
        for q in range(2): a(f"v_permlane32_swap_b32 v{8 + 2 * q}, v{9 + 2 * q}")
        for q in range(2):
            m = 8 + 2 * q
            a(f"v_max_f32 v{m}, v{m}, v{m + 1}", f"v_sub_f32 v{m}, 0, v{m}")
            for r in range(16): a(f"v_mov_b32 v{NM + 16 * q + r}, v{m}")
        a(qk(0), qk(1))
        self.stamp("attn_start")
        if self.stamps: a("s_memtime s[100:101]", "s_waitcnt lgkmcnt(0)", "s_mov_b32 s99, s100")
        wotok = [0]
        wo = []
        for g in range(4):
            a(f"s_lshl_b32 {T[4]}, {sW}, 1", f"s_add_u32 {T[4]}, {T[4]}, {g >> 1}", f"s_add_u32 {T[4]}, {T[4]}, {sCB}", f"s_and_b32 {T[4]}, {T[4]}, 7",
              f"s_lshl_b32 {T[4]}, {T[4]}, 16", f"s_add_u32 {T[g]}, {T[4]}, {(g & 1) * 32768}")
            ins = [f"buffer_load_dwordx4 v{self.vWD0 + i}, {sWO}, {T[g]} offen offset:{1024 * i} lds" for i in range(4)]
            wo += [([f"s_add_u32 m0, {sU[3]}, {LA + g * 4096}"], ins[0]), ([], ins[1]), ([], ins[2]), ([], ins[3])]
        a(f"s_lshl_b32 {T[6]}, {sHEAD}, 2", f"s_add_u32 {T[6]}, {T[6]}, {sW}", f"s_mul_i32 {T[6]}, {T[6]}, 11008")
        pfw = [([f"s_add_u32 {T[6]}, {T[6]}, 4096"] if i and i % 4 == 0 else [],
                f"buffer_load_dwordx4 v[228:231], {vL16}, {sWIN}, {T[6]} offen offset:{(i % 4) * 1024}") for i in range(11)]
        if self.opt.get("nopfw"): pfw = []
        post = {}
        slots = []
        for t in range(8):
            st = []
            if t < 6:
                st += self.kv_dma(t + 2); post[st[-1][1]] = (lambda t=t: kvtok.__setitem__(t + 2, a.vtok()))
            if t < 7 and not self.opt.get("noahead"):
                st.append(([], f"buffer_load_dwordx4 v[228:231], v226, {sWSP}, {sU[5 + t]} offen"))
            spl = [([], f"buffer_load_dwordx4 {ar(((2 * t + sub) * 4 + tt) * 4, 4)}, v{self.vSP0 + tt}, {sWSP}, {sU[4 + t]} offen offset:{64 * sub}")
                   for sub in range(2) for tt in range(4)]
            if self.opt.get("nosp"): spl = []
            room = 16 - len(st) - len(spl)
            src = pfw if t < 4 else wo
            if t == 4: room = 0
            ex = [src.pop(0) for _ in range(min(room, len(src)))]
            if t < 4:
                mix = []
                while spl or ex:
                    mix += spl[:3]; spl = spl[3:]; mix += ex[:1]; ex = ex[1:]
                st += mix
            else:
                st += spl + ex
            assert len(st) <= 16
            slots += st + [None] * (16 - len(st))
        assert not wo and not pfw, (len(wo), len(pfw))
        last_wo = [x for x in slots if x and str(sWO) in x[1]][-1][1]
        post[last_wo] = lambda: wotok.__setitem__(0, a.vtok())
        def vm_slot(i):
            if i < len(slots) and slots[i]:
                a(slots[i][1])
                if slots[i][1] in post: post[slots[i][1]]()
        def vm_pre(i):
            if i < len(slots) and slots[i]:
                for x in slots[i][0]: a(x)
        vm_pre(0)
        for n in range(128):
            kt, q = n >> 1, n & 1
            b = S + 16 * (n % 3)
            E = lambda lo, hi: [a(f"v_exp_f32 v{b + r}, v{b + r}") for r in range(lo, hi)]
            E(0, 2)
            if n > 0: a(pv(n - 1, 1))
            if q == 0:
                if kt + 2 < 64: a(kread(kt + 2))
                if (kt + 1) & 7 == 0 and kt + 1 < 64:
                    for _ in range(3 if kt + 1 == 32 else 1): a(f"v_add_u32 v{self.vVB}, v{self.vVB}, v{self.vVI}")
            else:
                vm_slot(2 * kt); vm_pre(2 * kt + 1)
            E(2, 7)
            if n + 2 < 128: a(qk(n + 2))
            if q == 0:
                if kt + 1 < 64: a(vread(kt + 1, 0))
            else:
                vm_slot(2 * kt + 1)
            E(7, 12)
            a(pv(n, 0))
            if q == 0:
                if kt + 1 < 64: a(vread(kt + 1, 1))
                if kt > 0: vm_pre(2 * kt)
            elif kt & 7 == 5 and kt < 56:
                a.wait(vm=kvtok[(kt >> 3) + 1], lg=a.lg); self.barrier()
            else:
                a.wait(lg=a.lg)
            E(12, 16)
        a.wait(vm=wotok[0], lg=a.lg)
        a(pv(127, 1))
        self.barrier()
        self.stamp("attn_loop")
        if self.stamps: a("s_memtime s[100:101]", "s_waitcnt lgkmcnt(0)", "s_sub_u32 s99, s100, s99")
        for q in range(2):
            o = OA + 16 * q
            a(f"v_pk_add_f32 {v(8 + 4 * q, 2)}, {v(o, 2)}, {v(o + 2, 2)}", f"v_pk_add_f32 {v(10 + 4 * q, 2)}, {v(o + 4, 2)}, {v(o + 6, 2)}")
        for q in range(2): a(f"v_pk_add_f32 {v(8 + 4 * q, 2)}, {v(8 + 4 * q, 2)}, {v(10 + 4 * q, 2)}")
        a("v_add_f32 v8, v8, v9", "v_add_f32 v12, v12, v13", "v_add_f32 v8, v8, v12", f"v_max_f32 v9, v{OA + 8}, v{OA + 24}",
          f"v_add_f32 v10, v{OA + 8}, v{OA + 24}", "v_add_f32 v8, v8, v10",
          f"s_mov_b32 {T[0]}, 0x207", f"v_cmp_class_f32_e64 vcc, v8, {T[0]}",
          f"s_mov_b64 s[60:61], vcc", f"v_cmp_le_f32 vcc, {f2u(2.0 ** 64)}, v9", "s_or_b64 vcc, vcc, s[60:61]")
        if self.force_fallback: a("s_mov_b64 vcc, -1")
        a("s_cbranch_vccnz L_attn_slow", "L_attn_done:")
        for q in range(2): a(f"v_rcp_f32 v{8 + q}, v{OA + 16 * q + 8}")
        a(f"s_lshr_b32 {T[0]}, {sHEAD}, 1", f"s_lshl_b32 {T[0]}, {T[0]}, 10", f"s_and_b32 {T[1]}, {sHEAD}, 1", f"s_lshl_b32 {T[1]}, {T[1]}, 9",
          f"s_add_u32 {T[0]}, {T[0]}, {T[1]}", f"s_lshl_b32 {T[1]}, {sJ}, 18", f"s_add_u32 {T[0]}, {T[0]}, {T[1]}",
          f"s_lshl_b32 {T[1]}, {sW}, 16", f"s_add_u32 {T[0]}, {T[0]}, {T[1]}", f"s_add_u32 {T[0]}, {T[0]}, {WS_O}", f"s_add_u32 {T[1]}, {T[0]}, 0x8000",
          )
        for q in range(2):
            o = OA + 16 * q
            for k in range(8): a(f"v_mul_f32 v{o + k}, v{o + k}, v{8 + q}")
            for k in range(4): a(f"v_cvt_pk_bf16_f32 v{192 + 4 * q + k}, v{o + 2 * k}, v{o + 2 * k + 1}")
            for hf in range(2):
                a(f"buffer_store_dwordx2 {v(192 + 4 * q + 2 * hf, 2)}, v63, {sWS}, {T[q]} offen offset:{256 * hf} sc1")
        self.w128_read_base(28, 2)
        rd = [f"ds_read_b64_tr_b16 {v(64 + (nt * 16 + p) * 4 + 2 * hf, 2)}, v{28 + nt} offset:{LA + p * 4096 + hf * 512}"
              for p in range(16) for nt in range(2) for hf in range(2)]
        a(f"s_lshl_b32 {T[0]}, {sJ}, 2", f"s_add_u32 {T[0]}, {T[0]}, {sW}", f"s_lshl_b32 {T[0]}, {T[0]}, 12",
          f"s_lshl_b32 {T[1]}, {sHEAD}, 7", f"s_add_u32 {T[0]}, {T[0]}, {T[1]}", f"s_add_u32 {T[0]}, {T[0]}, {WS_F2}")
        k = self.opt.get("rdpre", 24)
        self.emit(rd[:k])
        self.flag_store(T[0])
        self.stamp("attn_pub")
        self.emit(rd[k:])
        a(f"s_lshl_b32 {T[6]}, {sRH}, 15", f"s_lshl_b32 {T[3]}, {sR0}, 10", f"s_add_u32 {T[6]}, {T[6]}, {T[3]}",
          f"s_lshl_b32 {T[3]}, {sCB}, 7", f"s_add_u32 {T[6]}, {T[6]}, {T[3]}", f"s_lshl_b32 {T[3]}, {sCH}, 6", f"s_add_u32 {T[6]}, {T[6]}, {T[3]}",
          f"s_add_u32 {T[3]}, {T[6]}, 0x4000")
        for rt in range(2):
            for nt in range(2):
                a(f"buffer_load_dwordx2 {v(self.vXR + 4 * rt + 2 * nt, 2)}, v62, {sX}, {T[6] if rt == 0 else T[3]} offen offset:{32 * nt}")

    def w128_read_base(self, b, n):
        a = self.a
        a(f"v_lshrrev_b32 v64, 4, {vLANE}", f"v_bfe_u32 v65, {vLANE}, 2, 2", f"v_and_b32 v66, 3, {vLANE}",
          "v_lshl_add_u32 v67, v64, 3, v65", "v_lshlrev_b32 v67, 7, v67", "v_lshl_add_u32 v67, v66, 3, v67",
          "v_lshrrev_b32 v65, 1, v65", "v_and_b32 v64, 1, v64", "v_lshl_or_b32 v65, v64, 1, v65",
          f"s_lshl_b32 {T[3]}, {sCH}, 1", f"v_xor_b32 v65, {T[3]}, v65", f"v_lshl_add_u32 v{b}, v65, 5, v67")
        for i in range(1, n): a(f"v_xor_b32 v{b + i}, {32 * i}, v{b}")

    def attn_slow(self):
        a = self.a
        S, OA, NM, QF, KB, VB = self.S, self.OA, self.NM, self.QF, self.KB, self.VB
        a.vm_done = a.vm; a.lg_done = a.lg
        a("L_attn_slow:", "s_nop 15", f"s_lshl_b32 {T[0]}, {sHEAD}, 17", f"s_add_u32 {T[0]}, {T[0]}, {WS_KV}",
          f"v_mov_b32 v8, 0xff800000", f"v_mov_b32 v10, 0xff800000", f"s_mov_b32 {T[1]}, 0")
        def kaddr():
            a(f"s_lshr_b32 {T[2]}, {T[1]}, 1", f"s_lshl_b32 {T[2]}, {T[2]}, 12", f"s_and_b32 {T[3]}, {T[1]}, 1", f"s_lshl_b32 {T[3]}, {T[3]}, 10",
              f"s_add_u32 {T[2]}, {T[2]}, {T[3]}", f"s_add_u32 {T[2]}, {T[2]}, {T[0]}")
        a("L_slow_max:"); kaddr()
        a(f"buffer_load_dwordx4 {v(KB, 4)}, {vL16}, {sWS}, {T[2]} offen sc1"); a.wait(vm=a.vm, force=True)
        for q in range(2):
            a(f"v_mfma_f32_32x32x16_bf16 {v(S + 16 * q, 16)}, {v(KB, 4)}, {v(QF + 4 * q, 4)}, 0")
        for q in range(2):
            b, m = S + 16 * q, 8 + 2 * q
            for k in range(0, 16, 2): a(f"v_max3_f32 v{m}, v{m}, v{b + k}, v{b + k + 1}")
        a(f"s_add_u32 {T[1]}, {T[1]}, 1", f"s_cmp_lt_u32 {T[1]}, 64", "s_cbranch_scc1 L_slow_max")
        a("v_mov_b32 v9, v8", "v_mov_b32 v11, v10")
        for q in range(2): a(f"v_permlane32_swap_b32 v{8 + 2 * q}, v{9 + 2 * q}")
        for q in range(2):
            m = 8 + 2 * q
            a(f"v_max_f32 v{m}, v{m}, v{m + 1}", f"v_sub_f32 v{m}, 0, v{m}")
            for r in range(16): a(f"v_mov_b32 v{NM + 16 * q + r}, v{m}")
        for r in range(OA, OA + 32): a(f"v_mov_b32 v{r}, 0")
        a(f"v_and_b32 v8, 27, {vLANE}", "v_cmp_eq_u32 vcc, 16, v8", f"v_mov_b32 v9, {sONES}", "v_cndmask_b32 v9, v3, v9, vcc")
        for r in range(8): a(f"v_mov_b32 v{VB + r}, v9")
        a(f"v_and_b32 v8, 15, {vLANE}", f"v_lshrrev_b32 v10, 5, {vLANE}", "v_lshl_add_u32 v10, v10, 4, v8", "v_lshlrev_b32 v10, 4, v10",
          f"s_mov_b32 {T[1]}, 0", "s_mov_b32 s60, 0x0000ffff", "s_mov_b32 s61, 0x0000ffff")
        a("L_slow_pv:"); kaddr()
        a(f"buffer_load_dwordx4 {v(KB, 4)}, {vL16}, {sWS}, {T[2]} offen sc1", f"s_add_u32 {T[2]}, {T[2]}, 2048", "s_mov_b64 exec, s[60:61]",
          f"buffer_load_dwordx4 {v(VB, 4)}, v10, {sWS}, {T[2]} offen sc1",
          f"buffer_load_dwordx4 {v(VB + 4, 4)}, v10, {sWS}, {T[2]} offen offset:512 sc1", "s_mov_b64 exec, -1")
        a.wait(vm=a.vm, force=True)
        for q in range(2):
            a(f"v_mfma_f32_32x32x16_bf16 {v(S + 16 * q, 16)}, {v(KB, 4)}, {v(QF + 4 * q, 4)}, {v(NM + 16 * q, 16)}")
        for q in range(2):
            for r in range(16): a(f"v_exp_f32 v{S + 16 * q + r}, v{S + 16 * q + r}")
            for hi in range(2):
                a(f"v_smfmac_f32_32x32x32_bf16 {v(OA + 16 * q, 16)}, {v(VB + 4 * hi, 4)}, {v(S + 16 * q + 8 * hi, 8)}, v{self.vIDX}")
        a(f"s_add_u32 {T[1]}, {T[1]}, 1", f"s_cmp_lt_u32 {T[1]}, 64", "s_nop 15", "s_cbranch_scc1 L_slow_pv", "s_nop 15", "s_branch L_attn_done")

    def rot_table(self, npairs, mul):
        a = self.a
        a(f"s_mul_i32 {sU[4]}, {sCB}, {mul}")

    def rot_index(self, dst, pos, npairs):
        L = [f"s_add_u32 {dst}, {sU[4]}, {pos}"]
        if npairs & (npairs - 1) == 0: L.append(f"s_and_b32 {dst}, {dst}, {npairs - 1}")
        else: L += [f"s_cmp_ge_u32 {dst}, {npairs}", f"s_cselect_b32 {T[7]}, {npairs}, 0", f"s_sub_u32 {dst}, {dst}, {T[7]}"]
        return L

    def act_dma(self, ws_off, steps, chunks, lds0):
        a = self.a
        a(f"s_lshr_b32 {T[0]}, {sR0}, 4", f"s_add_u32 {T[0]}, {T[0]}, {sW}", f"s_mul_i32 {T[0]}, {T[0]}, {steps * 1024}",
          f"s_add_u32 {sU[0]}, {T[0]}, {ws_off}", f"s_mul_i32 {T[1]}, {sW}, {steps * 1024}", f"s_add_u32 {sU[1]}, {T[1]}, {lds0}")
        toks = {}
        def group(c):
            p0 = sum(chunks[:c]); L = []
            for k in range(chunks[c]):
                p = p0 + k
                it = []
                if k % 2 == 0:
                    it += self.rot_index(T[2], p >> 1, steps // 2)
                    it += [f"s_lshl_b32 {T[2]}, {T[2]}, 11", f"s_add_u32 {T[2]}, {T[2]}, {sU[0]}", f"s_add_u32 m0, {sU[1]}, {p * 1024}"]
                it.append(f"buffer_load_dwordx4 {vL16}, {sWS}, {T[2]} offen offset:{(k % 2) * 1024} sc1 lds")
                L.append(it)
            L[-1].append(lambda: toks.__setitem__(c, a.vtok()))
            return L
        return group, toks

    def cluster_flag_off(self, dst, base, own, shift=8):
        a = self.a
        a(f"s_lshl_b32 {dst}, {sCLU}, {shift}", f"s_add_u32 {dst}, {dst}, {base}")
        if own: a(f"s_lshl_b32 {T[7]}, {sCB}, 3", f"s_add_u32 {dst}, {dst}, {T[7]}")

    def stats_publish(self, s, base):
        a = self.a
        a(f"v_permlane32_swap_b32 v{s}, v{s + 1}", f"v_permlane32_swap_b32 v{s + 2}, v{s + 3}",
          f"v_add_f32 v{s}, v{s}, v{s + 1}", f"v_add_f32 v{s + 2}, v{s + 2}, v{s + 3}",
          f"v_permlane16_swap_b32 v{s}, v{s + 2}", f"v_add_f32 v{s}, v{s}, v{s + 2}")
        a(f"s_lshl_b32 {T[4]}, {sCLU}, 13", f"s_add_u32 {T[4]}, {T[4]}, {base}", f"s_lshl_b32 {T[5]}, {sRH}, 7", f"s_add_u32 {T[4]}, {T[4]}, {T[5]}",
          f"s_lshl_b32 {T[5]}, {sCB}, 1", f"s_add_u32 {T[5]}, {T[5]}, {sCH}", f"s_lshl_b32 {T[5]}, {T[5]}, 9", f"s_add_u32 {T[4]}, {T[4]}, {T[5]}",
          f"buffer_store_dword v{s}, v61, {sWS}, {T[4]} offen sc1")

    def stats_load(self, base, r):
        a = self.a
        a(f"s_lshl_b32 {T[4]}, {sCLU}, 13", f"s_add_u32 {T[4]}, {T[4]}, {base}", f"s_lshl_b32 {T[5]}, {sRH}, 7", f"s_add_u32 {T[4]}, {T[4]}, {T[5]}",
          f"s_add_u32 {T[5]}, {T[4]}, 4096")
        for p in range(16):
            a(f"buffer_load_dword v{r + p}, v61, {sWS}, {T[4] if p < 8 else T[5]} offen offset:{(p % 8) * 512} sc1")
        return a.vtok()

    STR = 216
    def stats_load_items(self, base, r):
        L = []
        for p in range(16):
            it = []
            if p == 0:
                it += [f"s_lshl_b32 {T[4]}, {sCLU}, 13", f"s_add_u32 {T[4]}, {T[4]}, {base}", f"s_lshl_b32 {T[5]}, {sRH}, 7",
                       f"s_add_u32 {T[4]}, {T[4]}, {T[5]}", f"s_add_u32 {T[5]}, {T[4]}, 4096"]
            it.append(f"buffer_load_dword v{r + p}, v61, {sWS}, {T[4] if p < 8 else T[5]} offen offset:{(p % 8) * 512} sc1")
            L.append(it)
        return L

    def stats_finish(self, r, inv_n, d):
        a = self.a
        for st in (8, 4, 2):
            for k in range(0, st, 2): a(f"v_pk_add_f32 {v(r + k, 2)}, {v(r + k, 2)}, {v(r + st + k, 2)}")
        a(f"v_add_f32 v{r}, v{r}, v{r + 1}", f"v_mov_b32 v{r + 1}, v{r}", f"v_permlane32_swap_b32 v{r}, v{r + 1}")
        self.ln_finish([(r, r + 1, d)], inv_n)
        a(f"v_mov_b32 v{d + 2}, v{d}", f"v_mov_b32 v{d + 3}, v{d + 1}",
          f"v_permlane16_swap_b32 v{d}, v{d + 2}", f"v_permlane16_swap_b32 v{d + 1}, v{d + 3}")

    def win_addresses(self):
        a = self.a
        for i in range(3):
            a(f"v_add_u32 v16, {64 * i}, {vLANE}", "v_mul_u32_u24 v17, 171, v16", "v_lshrrev_b32 v17, 11, v17",
              "v_mul_u32_u24 v18, 12, v17", "v_sub_u32 v18, v16, v18", "v_bfe_u32 v19, v17, 3, 1", "v_lshlrev_b32 v19, 1, v19",
              "v_xor_b32 v18, v18, v19", "v_mul_u32_u24 v17, 2752, v17", "v_lshl_add_u32 v17, v18, 4, v17",
              f"v_add_u32 v{56 + i}, {-1024 * i}, v17")
        a(f"v_lshrrev_b32 v16, 4, {vLANE}", f"v_bfe_u32 v17, {vLANE}, 2, 2", f"v_and_b32 v18, 3, {vLANE}",
          "v_lshl_add_u32 v19, v16, 3, v17", "v_mul_u32_u24 v19, 192, v19", "v_lshl_add_u32 v19, v18, 3, v19",
          "v_and_b32 v17, 1, v16", f"v_xor_b32 v17, {sCH}, v17", "v_lshl_add_u32 v59, v17, 5, v19", "v_add_u32 v60, 49152, v59",
          f"v_and_b32 v17, 15, {vLANE}", "v_lshlrev_b32 v17, 2, v17", "v_and_b32 v18, 1, v16", "v_lshl_add_u32 v17, v18, 6, v17",
          "v_lshrrev_b32 v16, 1, v16", "v_lshl_add_u32 v61, v16, 8, v17")

    def win_dma(self, half, g0, per_wave):
        L = []
        for k in range(per_wave):
            for i in range(3):
                it = []
                if k == 0 and i == 0:
                    it += [f"s_lshl_b32 {sU[5]}, {sT0}, 5", f"s_mul_i32 {sU[6]}, {sW}, {per_wave}", f"s_lshl_b32 {sU[2]}, {sU[4]}, 2",
                           f"s_add_u32 {sU[2]}, {sU[2]}, {sU[6]}", f"s_mul_i32 {sU[6]}, {sU[6]}, 3072"]
                if i == 0:
                    it += [f"s_add_u32 {sU[7]}, {sU[2]}, {g0 + k}", f"s_and_b32 {sU[7]}, {sU[7]}, 31", f"s_mul_i32 {sU[7]}, {sU[7]}, {16 * 2752}",
                           f"s_add_u32 {sU[7]}, {sU[7]}, {sU[5]}"]
                    if half: it.append(f"s_add_u32 {sU[7]}, {sU[7]}, 1376")
                    it.append(f"s_add_u32 m0, {sU[6]}, {(g0 + k) * 3072}")
                it.append(f"buffer_load_dwordx4 v{56 + i}, {sWIN}, {sU[7]} offen offset:{1024 * i} lds")
                L.append(it)
        return L

    def kloop(self, n, reads, mfmas, before={}, late={}, head=None, per=2):
        a = self.a
        tok = {}
        for s in range(min(2, n)):
            if s in (head or {}): head[s]()
            self.emit(reads(s)); tok[s] = a.ltok()
        for s in range(n):
            a.wait(lg=tok[s])
            if s in before: before[s]()
            ms = mfmas(s)
            fill = list(reads(s + 2)) + [lambda s=s: tok.__setitem__(s + 2, a.ltok())] if s + 2 < n else []
            lt = list(late.get(s, []))
            k = len(ms) - len(lt)
            assert k >= 1, (s, len(ms), len(lt))
            interleave(a, ms[:k], fill, per=per)
            for m, it in zip(ms[k:], lt):
                a(m); self.emit(it)

    def emit_all(self, items):
        for it in items: self.emit(it)

    def emit(self, items):
        for x in items: x() if callable(x) else self.a(x)

    def phase_wo(self):
        a = self.a
        ACC = 192
        a(f"s_mov_b32 {sU[4]}, {sCB if not self.opt.get('noarot') else 0}")
        group, toks = self.act_dma(WS_O, 16, [4, 4, 4, 4], LB)
        self.cluster_flag_off(T[3], WS_F2, False, 12)
        a(f"s_lshl_b32 {T[4]}, {sRH}, 15", f"s_add_u32 {T[4]}, {T[4]}, {LB}", f"v_add_u32 v30, {T[4]}, {vL16}")
        self.win_addresses()
        self.poll_wg(vFP32, T[3], 52)
        self.stamp("s2")
        for c in range(2): self.emit_all(group(c))
        def buf(s, rt): return (208 + (s % 4) * 8 + rt * 4)
        def reads(s): return [f"ds_read_b128 {v(buf(s, rt), 4)}, v30 offset:{(rt * 16 + s) * 1024}" for rt in range(2)]
        def mfmas(s):
            return [mfma16(ACC + (rt * 2 + nt) * 4, v(64 + (nt * 16 + s) * 4, 4), v(buf(s, rt), 4), "0" if s == 0 else None) for rt in range(2) for nt in range(2)]
        def w(c):
            def f():
                a.wait(vm=toks[c]); self.barrier()
            return f
        def head0():
            a.wait(vm=toks[0], lg=a.lg); self.barrier()
        g2, g3 = group(2), group(3)
        w2 = self.win_dma(1, 24, 2) + self.win_dma(1, 0, 3)
        late = {0: g2[:2], 1: g2[2:], 2: g3[:2], 3: g3[2:]}
        for i in range(self.opt.get("w2in", 8)): late[5 + i] = [w2.pop(0)]
        self.kloop(16, reads, mfmas, {2: w(1), 6: w(2), 10: w(3)}, late, {0: head0}, per=1)
        self.w2rest = w2
        self.stamp("wo_gemm")
        XR = self.vXR
        for i in range(4):
            for k in range(2):
                a(f"v_lshlrev_b32 v{32 + 4 * i + 2 * k}, 16, v{XR + 2 * i + k}", f"v_and_b32 v{33 + 4 * i + 2 * k}, {sHIMASK}, v{XR + 2 * i + k}")
        for i in range(4):
            for k in range(2): a(f"v_pk_add_f32 {v(ACC + 4 * i + 2 * k, 2)}, {v(ACC + 4 * i + 2 * k, 2)}, {v(32 + 4 * i + 2 * k, 2)}")
        for i in range(4):
            for k in range(2): a(f"v_cvt_pk_bf16_f32 v{vH + 2 * i + k}, v{ACC + 4 * i + 2 * k}, v{ACC + 4 * i + 2 * k + 1}")
        a(f"s_lshr_b32 {T[0]}, {sR0}, 4", f"s_lshl_b32 {T[1]}, {sRH}, 1", f"s_add_u32 {T[0]}, {T[0]}, {T[1]}", f"s_lshl_b32 {T[0]}, {T[0]}, 14",
          f"s_lshl_b32 {T[1]}, {sCB}, 1", f"s_add_u32 {T[1]}, {T[1]}, {sCH}", f"s_lshl_b32 {T[1]}, {T[1]}, 10", f"s_add_u32 {T[0]}, {T[0]}, {T[1]}",
          f"s_add_u32 {T[0]}, {T[0]}, {WS_H}", f"s_add_u32 {T[1]}, {T[0]}, 0x4000")
        for rt in range(2):
            for nt in range(2):
                a(f"buffer_store_dwordx2 {v(vH + 4 * rt + 2 * nt, 2)}, {vPAT}, {sWS}, {T[rt]} offen offset:{512 * nt} sc1")
        for k in range(4):
            for rt in range(2):
                h = f"v{vH + 4 * rt + k}"
                a(f"v_dot2_f32_bf16 v{32 + 2 * rt}, {h}, {sONES}, {'0' if k == 0 else 'v%d' % (32 + 2 * rt)}",
                  f"v_dot2_f32_bf16 v{33 + 2 * rt}, {h}, {h}, {'0' if k == 0 else 'v%d' % (33 + 2 * rt)}")
        self.stats_publish(32, WS_ST3)
        self.cluster_flag_off(T[0], WS_F3, True)
        self.flag_store_wg(T[0])
        self.stamp("wo_pub")

    HF, ACC2, ACC1, WB, CS = 64, 192, 216, 28, 240

    def win_reads(self, s, read_h):
        L = []
        base = "v59" if s < 8 else "v60"
        for m in range(3):
            for hf in range(2):
                L.append(f"ds_read_b64_tr_b16 {v(self.wbuf(s) + 4 * m + 2 * hf, 2)}, {base} offset:{(s & 7) * 6144 + hf * 768 + m * 64}")
            if m == 0 and read_h:
                L += [f"ds_read_b128 {v(self.HF + (rt * 16 + s) * 4, 4)}, v55 offset:{(rt * 16 + s) * 1024}" for rt in range(2)]
        return L

    def wbuf(self, s): return (28, 40, 16)[s % 3]

    def win_gemm(self, acc, before, head, read_h, late={}):
        HF = self.HF
        def mfmas(s):
            return [mfma16(acc + (rt * 3 + m) * 4, v(self.wbuf(s) + 4 * m, 4), v(HF + (rt * 16 + s) * 4, 4), "0" if s == 0 else None)
                    for m in range(3) for rt in range(2)]
        self.kloop(16, lambda s: self.win_reads(s, read_h), mfmas, before, late, head)

    def colsum_pass(self):
        def mfmas(s): return [mfma16(self.CS + 4 * m, v(self.wbuf(s) + 4 * m, 4), "v[252:255]", "0" if s == 0 else None) for m in range(3)]
        self.kloop(16, lambda s: self.win_reads(s, False), mfmas)

    def gelu_block(self, acc, st, tiles):
        a = self.a
        CS = self.CS
        K1 = -2.0 * 1.4426950408889634 * 0.7978845608028654
        K2 = K1 * 0.044715
        a(f"s_mov_b32 s60, {f2u(K2)}", f"s_mov_b32 s61, {f2u(K2)}", f"v_mov_b32 v52, {f2u(K1)}", f"v_mov_b32 v53, {f2u(K1)}")
        for i in range(0, len(tiles), 2):
            prs = [(acc + (rt * 3 + m) * 4 + 2 * k, CS + 4 * m + 2 * k, st + 2 * rt) for rt, m in tiles[i:i + 2] for k in range(2)]
            tm = [40, 42, 44, 46]
            for (x, c, r), t in zip(prs, tm): a(f"v_pk_mul_f32 {v(t, 2)}, {v(c, 2)}, {v(r, 2)} op_sel:[0,1] op_sel_hi:[1,1]")
            for (x, c, r), t in zip(prs, tm): a(f"v_pk_fma_f32 {v(x, 2)}, {v(x, 2)}, {v(r, 2)}, {v(t, 2)} op_sel:[0,0,0] op_sel_hi:[1,0,1]")
            for (x, c, r), t in zip(prs, tm): a(f"v_pk_mul_f32 {v(t, 2)}, {v(x, 2)}, {v(x, 2)}")
            for (x, c, r), t in zip(prs, tm): a(f"v_pk_fma_f32 {v(t, 2)}, {v(t, 2)}, s[60:61], v[52:53]")
            for (x, c, r), t in zip(prs, tm): a(f"v_pk_mul_f32 {v(t, 2)}, {v(t, 2)}, {v(x, 2)}")
            for k in range(8): a(f"v_exp_f32 v{40 + k}, v{40 + k}")
            for (x, c, r), t in zip(prs, tm): a(f"v_pk_add_f32 {v(t, 2)}, {v(t, 2)}, v[32:33]")
            for k in range(8): a(f"v_rcp_f32 v{40 + k}, v{40 + k}")
            for (x, c, r), t in zip(prs, tm): a(f"v_pk_mul_f32 {v(x, 2)}, {v(x, 2)}, {v(t, 2)}")

    def phase_win(self):
        a = self.a
        HF, ACC2, ACC1, CS = self.HF, self.ACC2, self.ACC1, self.CS
        self.emit_all(self.w2rest + self.win_dma(1, 12, 3))
        for r in range(252, 256): a(f"v_mov_b32 v{r}, {sONES}")
        a(f"s_lshl_b32 {T[4]}, {sRH}, 15", f"s_add_u32 {T[4]}, {T[4]}, {LB}", f"v_add_u32 v55, {T[4]}, {vL16}")
        group, toks = self.act_dma(WS_H, 16, [4, 4, 4, 4], LB)
        self.cluster_flag_off(T[3], WS_F3, False)
        a.wait(vm=a.vm)
        self.barrier()
        self.colsum_pass()
        self.stamp("cs2")
        self.poll_wg(vFP8, T[3], 52)
        self.stamp("s3")
        for c in range(2): self.emit_all(group(c))
        def w(c):
            def f():
                a.wait(vm=toks[c]); self.barrier()
            return f
        g2, g3 = group(2), group(3)
        stl = self.stats_load_items(WS_ST3, self.STR)
        late = {0: g2[:2], 1: g2[2:], 2: g3[:2], 3: g3[2:]}
        for i in range(8): late[6 + i] = stl[2 * i:2 * i + 2]
        self.win_gemm(ACC2, {2: w(1), 6: w(2), 10: w(3)}, {0: w(0)}, True, late)
        stok = a.vtok()
        self.barrier()
        self.stamp("z2_gemm")
        w1a = self.win_dma(0, 0, 3)
        a.wait(vm=stok)
        self.emit_all(w1a[:self.opt.get("w1pre", 5)])
        self.stats_finish(self.STR, 1.0 / 512, 34)
        self.emit_all(w1a[self.opt.get("w1pre", 5):])
        w1tok = [a.vtok()]
        a("v_mov_b32 v32, 1.0", "v_mov_b32 v33, 1.0")
        T5 = [(0, 0), (1, 0), (0, 1), (1, 1)]
        self.gelu_block(ACC2, 34, T5 + [(0, 2), (1, 2)])
        for rt in range(2):
            x = ACC2 + rt * 12
            a(f"v_pk_add_f32 {v(40 + 4 * rt, 2)}, {v(x, 2)}, {v(x + 2, 2)}", f"v_pk_mul_f32 {v(42 + 4 * rt, 2)}, {v(x, 2)}, {v(x, 2)}")
            a(f"v_pk_fma_f32 {v(42 + 4 * rt, 2)}, {v(x + 2, 2)}, {v(x + 2, 2)}, {v(42 + 4 * rt, 2)}")
            for k in (4, 6):
                a(f"v_pk_add_f32 {v(40 + 4 * rt, 2)}, {v(40 + 4 * rt, 2)}, {v(x + k, 2)}",
                  f"v_pk_fma_f32 {v(42 + 4 * rt, 2)}, {v(x + k, 2)}, {v(x + k, 2)}, {v(42 + 4 * rt, 2)}")
        a(f"s_and_b32 {sU[8]}, {sCNT5}, {sCH}", f"s_cmp_lg_u32 {sU[8]}, 0", "s_cbranch_scc1 L_skip_st")
        for rt in range(2):
            x = ACC2 + rt * 12
            for k in (8, 10):
                a(f"v_pk_add_f32 {v(40 + 4 * rt, 2)}, {v(40 + 4 * rt, 2)}, {v(x + k, 2)}",
                  f"v_pk_fma_f32 {v(42 + 4 * rt, 2)}, {v(x + k, 2)}, {v(x + k, 2)}, {v(42 + 4 * rt, 2)}")
        a("L_skip_st:", "v_add_f32 v48, v40, v41", "v_add_f32 v49, v42, v43", "v_add_f32 v50, v44, v45", "v_add_f32 v51, v46, v47")
        self.stats_publish(48, WS_ST4)
        self.cluster_flag_off(T[0], WS_F4, True)
        self.flag_store_wg(T[0])
        self.stamp("z2_pub")
        wb, wc = self.win_dma(0, 12, 3), self.win_dma(0, 24, 2)
        w1tok += [0, 0]
        wb[-1].append(lambda: w1tok.__setitem__(1, a.vtok())); wc[-1].append(lambda: w1tok.__setitem__(2, a.vtok()))
        self.emit_all(wb[:4])
        a("v_mov_b32 v52, v34", "v_mov_b32 v53, v35", "v_mov_b32 v62, v36", "v_mov_b32 v63, v37")
        def w1(c):
            def f():
                a.wait(vm=w1tok[c]); self.barrier()
            return f
        self.w128_addresses(self.vWDo, 20)
        wo1 = []
        for g in range(4):
            pre, ins = self.w128_dma(self.vWDo, sWOUT, T[3], T[5], 22)
            pre = [f"s_lshl_b32 {T[3]}, {sW}, 2", f"s_add_u32 {T[3]}, {T[3]}, {g}", f"s_lshl_b32 {T[5]}, {T[3]}, 12", f"s_add_u32 {T[5]}, {T[5]}, {LB}"] + pre
            wo1 += [pre + [ins[0]], [ins[1]], [ins[2]], [ins[3]]]
        rest = wb[4:] + wc + wo1
        late = {i: rest[2 * i:2 * i + 2] for i in range(14)}
        self.win_gemm(ACC1, {4: w1(1), 10: w1(2)}, {0: w1(0)}, False, late)
        self.stamp("z1_gemm")
        self.cluster_flag_off(T[3], WS_F4, False)
        a(f"v_and_b32 v20, 15, {vLANE}", f"v_lshrrev_b32 v21, 4, {vLANE}", "v_lshlrev_b32 v21, 2, v21", "v_sub_u32 v20, v20, v21",
          "v_mov_b32 v21, 0x3f80", "v_mov_b32 v22, 0x3f800000")
        for k, (r, c) in enumerate(((24, 21), (24, 22), (25, 21), (25, 22))):
            a(f"v_cmp_eq_u32 vcc, {k}, v20")
            if k & 1 == 0: a(f"v_cndmask_b32 v{r}, v3, v{c}, vcc")
            else: a(f"v_cndmask_b32 v{r}, v{r}, v{c}, vcc")
        self.poll_wg(vFP8, T[3], 36)
        self.stamp("s4")
        stok = self.stats_load(WS_ST4, 36)
        a.wait(vm=stok)
        self.stats_finish(36, 1.0 / 688, 20)
        a(f"s_add_u32 {T[0]}, {sT0}, {sCH}", f"s_lshl_b32 {T[0]}, {T[0]}, 16", f"s_lshl_b32 {T[1]}, {sR0}, 5", f"s_add_u32 {T[0]}, {T[0]}, {T[1]}",
          f"s_lshl_b32 {T[1]}, {sRH}, 10", f"s_add_u32 {T[0]}, {T[0]}, {T[1]}", f"s_add_u32 {sU[9]}, {T[0]}, {WS_Z}",
          f"s_add_u32 {sU[10]}, {sU[9]}, 0x20000", f"s_add_u32 {sU[11]}, {sU[9]}, 0x40000")
        def znorm(m):
            for rt in range(2):
                x = ACC2 + (rt * 3 + m) * 4
                for k in range(2):
                    a(f"v_pk_fma_f32 {v(x + 2 * k, 2)}, {v(x + 2 * k, 2)}, {v(20 + 2 * rt, 2)}, {v(20 + 2 * rt, 2)} op_sel:[0,0,1] op_sel_hi:[1,0,1]")
            for rt in range(2):
                x = ACC2 + (rt * 3 + m) * 4
                for k in range(2): a(f"v_cvt_pk_bf16_f32 v{x + k}, v{x + 2 * k}, v{x + 2 * k + 1}")
            for rt in range(2):
                x = ACC2 + (rt * 3 + m) * 4
                a(f"v_mfma_f32_16x16x16_bf16 {v(28 + 8 * (m & 1) + 4 * rt, 4)}, {v(x, 2)}, v[24:25], 0")
        def zstore(m):
            for rt in range(2):
                d = 28 + 8 * (m & 1) + 4 * rt
                a(f"v_cvt_pk_bf16_f32 v{d}, v{d}, v{d + 1}", f"v_cvt_pk_bf16_f32 v{d + 1}, v{d + 2}, v{d + 3}",
                  f"buffer_store_dwordx2 {v(d, 2)}, {vPAT}, {sWS}, {sU[9 + m]} offen offset:{512 * rt} sc1")
        znorm(0); znorm(1); zstore(0)
        a(f"s_cmp_lg_u32 {sU[8]}, 0", "s_cbranch_scc1 L_skip_z")
        znorm(2); a("s_nop 7"); zstore(2)
        a("L_skip_z:", "s_nop 7")
        zstore(1)
        a(f"s_lshl_b32 {T[0]}, {sRB}, 3", f"s_add_u32 {T[0]}, {T[0]}, {sCB}", f"s_lshl_b32 {T[0]}, {T[0]}, 8",
          f"s_lshl_b32 {T[1]}, {sJ}, 3", f"s_add_u32 {T[0]}, {T[0]}, {T[1]}", f"s_add_u32 {T[0]}, {T[0]}, {WS_F5}")
        self.flag_store_wg(T[0])
        self.stamp("z2n_pub")
        a("v_mov_b32 v54, v52", "v_mov_b32 v55, v53")
        self.colsum_pass()
        self.barrier()
        self.w128_addresses(56, 28)
        for g in range(2):
            pre, ins = self.w128_dma(56, sWOUT, T[3], T[5], 22)
            if g == 1: a(f"s_cmp_ge_u32 {sW}, 2", "s_cbranch_scc1 L_skip_wout")
            a(f"s_add_u32 {T[3]}, {sW}, {16 + 4 * g}", f"s_lshl_b32 {T[5]}, {sW}, 12", f"s_add_u32 {T[5]}, {T[5]}, {LA + 4 * g * 4096}", *pre, *ins)
        a("L_skip_wout:")
        a("v_mov_b32 v34, v54", "v_mov_b32 v35, v55", "v_mov_b32 v36, v62", "v_mov_b32 v37, v63")
        a(f"s_lshl_b32 {T[0]}, {sRH}, 5", f"s_add_u32 {T[0]}, {T[0]}, {sR0}", f"s_lshl_b32 {T[0]}, {T[0]}, 1",
          f"v_and_b32 v20, 15, {vLANE}", "v_lshlrev_b32 v20, 1, v20",
          f"buffer_load_ushort v62, v20, {sBSP}, {T[0]} offen", f"buffer_load_ushort v63, v20, {sBSP}, {T[0]} offen offset:32")
        a("v_mov_b32 v32, 1.0", "v_mov_b32 v33, 1.0")
        self.gelu_block(ACC1, 34, T5 + [(0, 2), (1, 2)])
        for i in range(6):
            for k in range(2): a(f"v_cvt_pk_bf16_f32 v{vZ1 + 2 * i + k}, v{ACC1 + 4 * i + 2 * k}, v{ACC1 + 4 * i + 2 * k + 1}")
        self.stamp("z1_epi")

    vWDo = 248

    def phase_wsp(self):
        a = self.a
        BUF, ACC, RED = 64, 192, 28
        a(f"s_lshl_b32 {T[3]}, {sW}, 3", f"s_add_u32 {T[3]}, {T[3]}, {sCB}", f"s_lshl_b32 {T[3]}, {T[3]}, 8", f"s_add_u32 {T[3]}, {T[3]}, {WS_F5}",
          f"s_lshl_b32 {T[0]}, {sT0}, 16", f"s_lshl_b32 {T[1]}, {sW}, 11", f"s_add_u32 {T[0]}, {T[0]}, {T[1]}", f"s_add_u32 {T[0]}, {T[0]}, {WS_Z}")
        for t in range(8):
            a(f"s_add_u32 {T[1]}, {sSPR}, {t if not self.opt.get('zlocal') else 0}", f"s_and_b32 {T[1]}, {T[1]}, 7", f"s_lshl_b32 {T[1]}, {T[1]}, 13", f"s_add_u32 {sROT[t]}, {T[1]}, {T[0]}")
        a(f"v_add_u32 v53, 0x10000, {vL16}",
          f"s_lshl_b32 {T[1]}, {sW}, 13", f"s_add_u32 {T[1]}, {T[1]}, {LRED}", f"v_add_u32 v54, {T[1]}, {vL16}",
          f"s_lshl_b32 {T[1]}, {sCH}, 12", f"s_lshl_b32 {T[2]}, {sRH}, 11", f"s_add_u32 {T[1]}, {T[1]}, {T[2]}", f"s_add_u32 {T[1]}, {T[1]}, {LRED}",
          f"v_add_u32 v55, {T[1]}, {vL16}")
        a(f"s_lshr_b32 {T[1]}, {sR0}, 4", f"s_lshl_b32 {T[2]}, {sRH}, 1", f"s_add_u32 {T[1]}, {T[1]}, {T[2]}", f"s_mul_i32 {T[1]}, {T[1]}, {22 * 1024}",
          f"s_add_u32 {T[2]}, {sT0}, {sCH}", f"s_lshl_b32 {T[2]}, {T[2]}, 9", f"s_add_u32 {T[1]}, {T[1]}, {T[2]}", f"s_add_u32 {sU[9]}, {T[1]}, {WS_G}",
          f"s_add_u32 {sU[10]}, {sU[9]}, {22 * 1024}")
        self.poll(vFP8, T[3], 28)
        self.stamp("s5")
        a("v_lshlrev_b32 v62, 16, v62", "v_lshlrev_b32 v63, 16, v63")
        tok = {}
        def loads(p, u):
            t, sub = u >> 1, u & 1
            L = []
            if sub == 0: L.append(f"s_add_u32 {T[0]}, {sROT[t]}, {p * 0x20000}")
            for f in range(2):
                L.append(f"buffer_load_dwordx4 {v(BUF + (2 * u + f) * 4, 4)}, {vL16 if f == 0 else 'v53'}, {sWS}, {T[0]} offen offset:{1024 * sub} sc1")
            L.append(lambda: tok.__setitem__((p, u), a.vtok()))
            return L
        D = self.opt.get("wd", 5)
        seq = [(p, u) for p in range(3) for u in range(16)]
        for p, u in seq[:D]: self.emit(loads(p, u))
        def red_write(p):
            A = ACC + 32 * (p & 1)
            return [f"ds_write_b128 v54, {v(A + 4 * i, 4)} offset:{(p & 1) * 32768 + i * 1024}" for i in range(8)]
        def red_read(p):
            return [f"ds_read_b128 {v(RED + (sw * 2 + rt) * 4, 4)}, v55 offset:{(p & 1) * 32768 + sw * 8192 + rt * 1024}" for sw in range(3) for rt in range(2)]
        def red_read2(p):
            return [f"ds_read_b128 {v(ACC + 32 * (p & 1) + rt * 4, 4)}, v55 offset:{(p & 1) * 32768 + 3 * 8192 + rt * 1024}" for rt in range(2)]
        def gate(p):
            L = []
            A = ACC + 32 * (p & 1)
            for o in range(8): L.append(f"v_add_f32 v{A + o}, v{A + o}, v{RED + o}")
            for o in range(8): L.append(f"v_add_f32 v{RED + 8 + o}, v{RED + 8 + o}, v{RED + 16 + o}")
            for o in range(8): L.append(f"v_add_f32 v{A + o}, v{A + o}, v{62 + (o >> 2)}")
            for o in range(8):
                z = vZ1 + ((o >> 2) * 3 + p) * 2 + ((o >> 1) & 1)
                L.append(f"v_and_b32 v{RED + o}, {sHIMASK}, v{z}" if o & 1 else f"v_lshlrev_b32 v{RED + o}, 16, v{z}")
            for o in range(8): L.append(f"v_add_f32 v{A + o}, v{A + o}, v{RED + 8 + o}")
            for o in range(8): L.append(f"v_mul_f32 v{A + o}, v{A + o}, v{RED + o}")
            for o in range(4): L.append(f"v_cvt_pk_bf16_f32 v{RED + o}, v{A + 2 * o}, v{A + 2 * o + 1}")
            return L
        def gstore(p):
            L = []
            if p == 2:
                sk, zr = a.label("gskip"), a.label("gstore")
                L.append(lambda: a(f"s_cmp_eq_u32 {sU[8]}, 0", f"s_cbranch_scc1 {zr}", f"s_cmp_eq_u32 {sCB}, 7", f"s_cbranch_scc0 {sk}",
                                   *[f"v_mov_b32 v{RED + k}, 0" for k in range(4)], f"{zr}:"))
            L += [f"buffer_store_dwordx2 {v(RED + 2 * rt, 2)}, {vPAT}, {sWS}, {sU[9 + rt]} offen offset:{1024 * p} sc1" for rt in range(2)]
            if p == 2: L.append(lambda: a(f"{sk}:"))
            return L
        for p in range(3):
            A = ACC + 32 * (p & 1)
            for u in range(16):
                if not self.opt.get("w_nowait"): a.wait(vm=tok[(p, u)])
                if self.opt.get("w_stamp") and u == 0: self.stamp(f"wsp_p{p}")
                ms = []
                for f in range(2):
                    for tt in range(4):
                        ms.append(mfma16(A + (f * 4 + tt) * 4, v(BUF + (2 * u + f) * 4, 4), ar((u * 4 + tt) * 4, 4), "0" if u == 0 else None))
                fill = []
                if p > 0 and not self.opt.get("w_nofill"):
                    q = p - 1
                    if 1 <= u <= 4: fill += red_write(q)[(u - 1) * 2:(u - 1) * 2 + 2]
                    if u == 5: fill += [lambda: a.wait(lg=a.lg), "s_barrier"]
                    if u == 6: fill += red_read(q) + red_read2(q)
                    if u == 8: fill += [lambda: a.wait(lg=a.lg)]
                    if 8 <= u <= 14:
                        g = gate(q); fill += g[(u - 8) * 8:(u - 8) * 8 + 8]
                    if u == 15: fill += gstore(q)
                nx = p * 16 + u + D
                ld = loads(*seq[nx]) if nx < 48 else []
                if self.opt.get("w_noload"): ld = ld[-1:]
                interleave(a, ms[:6], fill, per=2, start=1)
                a(ms[6]); self.emit(ld[:-2])
                a(ms[7]); self.emit(ld[-2:])
        self.stamp("wsp_gemm")
        self.emit(red_write(2))
        a.wait(lg=a.lg)
        self.barrier()
        self.emit(red_read(2) + red_read2(2))
        self.w128_read_base(56, 2)
        a(f"v_add_u32 v58, {LB}, v56", f"v_add_u32 v59, {LB}, v57")
        a.wait(lg=a.lg)
        self.emit(gate(2))
        self.emit(gstore(2))
        rd = [f"ds_read_b64_tr_b16 {ar((nt * 22 + p) * 4 + 2 * hf, 2)}, v{56 + nt + (2 if p < 16 else 0)} offset:{(p & 15) * 4096 + hf * 512}"
              for p in range(22) for nt in range(2) for hf in range(2)]
        self.cluster_flag_off(T[0], WS_F6, True)
        k = self.opt.get("rdpre", 24)
        self.emit(rd[:k])
        self.flag_store_wg(T[0])
        self.wout_rd = rd[k:]
        self.stamp("g_pub")
        self.emit(self.wout_rd)

    def phase_wout(self):
        a = self.a
        ACC = 192
        self.cluster_flag_off(T[3], WS_F6, False)
        a(f"s_mul_i32 {T[4]}, {sRH}, {2 * 22 * 1024}", f"v_add_u32 v30, {T[4]}, {vL16}")
        chunks = [4, 4, 6, 8]
        group, toks = self.act_dma(WS_G, 22, chunks, LA)
        a.wait(lg=a.lg)
        self.barrier()
        self.poll_wg(vFP8, T[3], 36)
        self.stamp("s6")
        for c in range(2): self.emit_all(group(c))
        a(f"v_and_b32 v32, 15, {vLANE}", f"v_lshrrev_b32 v33, 4, {vLANE}", "v_lshlrev_b32 v32, 10, v32",
          "v_and_b32 v34, 1, v33", "v_lshl_add_u32 v32, v34, 5, v32", "v_lshrrev_b32 v33, 1, v33", "v_lshl_add_u32 v32, v33, 4, v32",
          f"s_lshl_b32 {T[3]}, {sRH}, 5", f"s_add_u32 {T[3]}, {T[3]}, {sR0}", f"s_lshl_b32 {T[3]}, {T[3]}, 10",
          f"s_lshl_b32 {T[4]}, {sCB}, 7", f"s_add_u32 {T[3]}, {T[3]}, {T[4]}", f"s_lshl_b32 {T[4]}, {sCH}, 6", f"s_add_u32 {sU[9]}, {T[3]}, {T[4]}",
          f"s_add_u32 {sU[10]}, {sU[9]}, 0x4000")
        for i in range(8):
            a(f"v_lshlrev_b32 v{208 + 2 * i}, 16, v{vH + i}", f"v_and_b32 v{209 + 2 * i}, {sHIMASK}, v{vH + i}")
        def buf(s, rt): return 64 + (s % 4) * 8 + rt * 4
        def reads(s): return [f"ds_read_b128 {v(buf(s, rt), 4)}, v30 offset:{(rt * 22 + s) * 1024}" for rt in range(2)]
        def mfmas(s):
            return [mfma16(ACC + (rt * 2 + nt) * 4, ar((nt * 22 + s) * 4, 4), v(buf(s, rt), 4), v(208 + (rt * 2 + nt) * 4, 4) if s == 0 else None)
                    for rt in range(2) for nt in range(2)]
        def w(c):
            def f():
                a.wait(vm=toks[c]); self.barrier()
            return f
        rest = group(2) + group(3)
        late = {i: rest[2 * i:2 * i + 2] for i in range(7)}
        self.kloop(22, reads, mfmas, {2: w(1), 6: w(2), 12: w(3)}, late, {0: w(0)}, per=1)
        self.stamp("wout_gemm")
        for rt in range(2):
            for nt in range(2):
                d = ACC + (rt * 2 + nt) * 4
                for k in range(2): a(f"v_cvt_pk_bf16_f32 v{64 + 4 * rt + 2 * nt + k}, v{d + 2 * k}, v{d + 2 * k + 1}")
        for rt in range(2):
            b = 64 + 4 * rt
            a(f"v_permlane16_swap_b32 v{b}, v{b + 2}", f"v_permlane16_swap_b32 v{b + 1}, v{b + 3}")
            a(f"buffer_store_dwordx4 {v(b, 4)}, v32, {sOUT}, {sU[9 + rt]} offen")

    def epilogue(self):
        a = self.a
        a("L_finish:")
        a("s_cmp_eq_u32 s2, 0", f"s_cselect_b32 {T[0]}, {sW}, 1", f"s_cmp_eq_u32 {T[0]}, 0", "s_cbranch_scc0 L_noepoch",
          "s_mov_b64 exec, 1", f"buffer_store_dwordx2 {vTAG}, off, {sWS}, 0 sc1", "s_mov_b64 exec, -1", "L_noepoch:")
        if self.stamps:
            a("s_waitcnt vmcnt(0)")
            self.stamp("end")
            a(f"s_lshl_b32 {T[0]}, s2, 2", f"s_add_u32 {T[0]}, {T[0]}, {sW}", f"s_lshl_b32 {T[0]}, {T[0]}, 7", f"s_add_u32 {T[0]}, {T[0]}, {WS_DBG}",
              "s_mov_b64 exec, 1")
            for i in range(16):
                a(f"v_mov_b32 v8, s{STAMP0 + i}", f"buffer_store_dword v8, off, {sWS}, {T[0]} offset:{4 * i}")
            a("s_cmp_eq_u32 s2, 100", f"s_cselect_b32 {T[0]}, {sW}, 1", f"s_cmp_eq_u32 {T[0]}, 0", "s_cbranch_scc0 L_nodbg",
              "s_load_dwordx2 s[4:5], s[0:1], 72", "s_mov_b32 s6, 256", "s_waitcnt lgkmcnt(0)")
            for i in range(16):
                a(f"v_mov_b32 v8, s{STAMP0 + i}", f"buffer_store_dword v8, off, {sX}, 0 offset:{4 * i}")
            a("L_nodbg:")
        if self.calib:
            a("s_waitcnt vmcnt(0)", "L_calib:", "s_memrealtime s[100:101]", "s_waitcnt lgkmcnt(0)", f"s_sub_u32 s100, s100, s{STAMP0}",
              f"s_cmp_lt_u32 s100, {self.calib}", "s_cbranch_scc1 L_calib")
        a("s_waitcnt vmcnt(0)", "L_exit:", "s_endpgm")

    def build(self):
        self.prologue()
        self.phase_qkv(); self.maybe_stop("qkv")
        self.phase_attn(); self.maybe_stop("attn")
        self.phase_wo(); self.maybe_stop("wo")
        self.phase_win(); self.maybe_stop("win")
        self.phase_wsp(); self.maybe_stop("wsp")
        self.phase_wout()
        self.epilogue()
        self.attn_slow()
        self.a("L_code_end:")
        body = self.a.finish()
        ref = open(f"cdna_kernels/{NAME}.s.ref").read().split("\n")
        head = [l for l in ref if l.startswith(";") and "@launch" not in l and "Override" not in l and "grid=ceil" not in l]
        head = head[:head.index([l for l in head if "d_ws" in l][0]) + 1]
        return ("\n".join(head) + f"\n; @launch grid=(256,1,1) block=(256,1,1) lds={LDS_BYTES}\n"
                + '.amdgcn_target "amdgcn-amd-amdhsa--gfx950"\n.text\n'
                + f".globl {NAME}_kernel\n.p2align 8\n.type {NAME}_kernel,@function\n{NAME}_kernel:\n" + body
                + f""".section .rodata,"a"
.p2align 6
.amdhsa_kernel {NAME}_kernel
  .amdhsa_next_free_vgpr 512
  .amdhsa_next_free_sgpr 102
  .amdhsa_accum_offset 256
  .amdhsa_group_segment_fixed_size 0
  .amdhsa_kernarg_size 88
  .amdhsa_user_sgpr_count 2
  .amdhsa_user_sgpr_kernarg_segment_ptr 1
  .amdhsa_system_sgpr_workgroup_id_x 1
  .amdhsa_float_denorm_mode_32 3
.end_amdhsa_kernel
""")

if __name__ == "__main__":
    import argparse
    ap = argparse.ArgumentParser()
    ap.add_argument("-o", default=f"cdna_kernels/{NAME}.s")
    ap.add_argument("--stop"); ap.add_argument("--stamps", action="store_true"); ap.add_argument("--slow", action="store_true")
    ap.add_argument("--opt", action="append", default=[])
    o = ap.parse_args()
    g = Gen(o.stop, o.stamps, o.slow, **{k: int(x) for k, x in (kv.split('=') for kv in o.opt)})
    s = g.build()
    open(o.o, "w").write(s)
    print(f"wrote {o.o}: {len(s)} bytes, {len(g.a.items)} items, {g.a.nops_added} nops; stamps: {g.stamp_names}")
```

```python
import sys, struct
from asmdsl import Asm

NAME = "sequential_preLN__softmax_full_mha__mixer_gmlp__prompt"

WS_EPOCH = 0
WS_F1, WS_F2, WS_F3, WS_F4, WS_F5, WS_F6 = 0x1000, 0x90000, 0x7000, 0x9000, 0xB000, 0xD000
WS_ST3, WS_ST4 = 0x10000, 0x10D0000
WS_Q, WS_KV, WS_O, WS_H, WS_Z, WS_G = 0x100000, 0x300000, 0x700000, 0x900000, 0xB00000, 0xE00000
WS_DBG = 0x1200000
WS_SIZE = 0x1400000

LA, LC, LB = 0, 65536, 98304
LRED = 24576
LDS_BYTES = 163840

sX, sWQKV, sWO, sWIN, sWSP, sBSP, sWOUT, sOUT, sWS = ("s[%d:%d]" % (b, b + 3) for b in range(4, 40, 4))
sJ, sRB, sCB, sHEAD, sW, sR0, sRH, sCH, sT0, sCNT5 = ("s%d" % i for i in range(40, 50))
sTAG = "s[50:51]"
sONES, sHIMASK, sCLU, sPOLL = "s52", "s53", "s54", "s55"
T = ["s%d" % i for i in range(56, 64)]
sROT = ["s%d" % i for i in range(64, 72)]
sU = ["s%d" % i for i in range(72, 84)]
sJA, sRB8 = "s0", "s1"
sSPR = "s3"
STAMP0 = 84

vLANE, vL16, vPAT, vZ = "v0", "v1", "v2", "v3"
vTAG = "v[4:5]"
vFP32, vFP8 = "v6", "v7"
vH = 8
vZ1 = 16

def v(a, n=1): return f"v{a}" if n == 1 else f"v[{a}:{a + n - 1}]"
def ar(a, n=1): return f"a{a}" if n == 1 else f"a[{a}:{a + n - 1}]"
def f2u(x): return "0x%08x" % struct.unpack("<I", struct.pack("<f", x))[0]

def mfma16(d, a, b, c=None):
    return f"v_mfma_f32_16x16x32_bf16 {v(d,4)}, {a}, {b}, {c if c is not None else v(d,4)}"

def interleave(a, mains, fillers, per=1, start=0):
    k = 0
    for i, m in enumerate(mains):
        m() if callable(m) else a(m)
        if i >= start:
            for _ in range(per):
                if k < len(fillers):
                    f = fillers[k]; k += 1
                    f() if callable(f) else a(f)
    while k < len(fillers):
        f = fillers[k]; k += 1
        f() if callable(f) else a(f)

class Gen:
    def __init__(self, stop=None, stamps=False, force_fallback=False, calib=0, **opt):
        self.calib = calib
        self.keep = opt.pop("keep", None)
        self.opt = opt
        self.a = Asm()
        self.stop = stop
        self.stamps = stamps
        self.force_fallback = force_fallback
        self.nstamp = 0
        self.stamp_names = []

    def stamp(self, name):
        if not self.stamps: return
        if self.keep is not None:
            if name not in self.keep and name != "entry": return
        elif name in ("issued", "x_first", "x_last", "stats") or name.startswith("wsp_p"): return
        a = self.a
        a.wait(lg=a.lg)
        cyc = self.opt.get("cyc")
        a(f"{'s_memtime' if cyc else 's_memrealtime'} s[100:101]", "s_waitcnt lgkmcnt(0)")
        n = self.nstamp
        if n == 0:
            a(f"s_mov_b32 s{STAMP0}, s100")
        else:
            r = STAMP0 + 1 + (n - 1) // 2
            if cyc: a(f"s_sub_u32 s101, s100, s{STAMP0}", f"s_mov_b32 s{STAMP0}, s100", "s_mov_b32 s100, s101")
            else: a(f"s_sub_u32 s100, s100, s{STAMP0}")
            a(f"s_mov_b32 s{r}, s100" if n & 1 else f"s_pack_ll_b32_b16 s{r}, s{r}, s100")
        self.nstamp += 1; self.stamp_names.append(name)
        assert self.nstamp <= 29

    def maybe_stop(self, name):
        if self.stop == name:
            self.a.wait_all()
            self.a("s_branch L_finish")

    def flag_store(self, soff):
        a = self.a
        a.wait(vm=a.vm, force=True)
        a("s_mov_b64 exec, 1", f"buffer_store_dwordx2 {vTAG}, off, {sWS}, {soff} sc1", "s_mov_b64 exec, -1")

    def flag_store_wg(self, soff):
        a = self.a
        a.wait(vm=a.vm, force=True)
        self.barrier()
        L = a.label("noflag")
        a(f"s_cmp_lg_u32 {sW}, 0", f"s_cbranch_scc1 {L}",
          "s_mov_b64 exec, 1", f"buffer_store_dwordx2 {vTAG}, off, {sWS}, {soff} sc1", "s_mov_b64 exec, -1", f"{L}:")

    def poll_wg(self, voff, soff, tmp, drain=True):
        a = self.a
        if self.opt.get("allpoll"):
            self.poll(voff, soff, tmp); return
        if drain: a.wait(vm=a.vm, force=True)
        done = a.vm_done
        L = a.label("nopoll")
        a(f"s_cmp_lg_u32 {sW}, 0", f"s_cbranch_scc1 {L}")
        self.poll(voff, soff, tmp)
        a(f"{L}:")
        a.vm_done = done
        self.barrier()

    def poll_early(self, voff, soff, tmp):
        return [f"buffer_load_dwordx2 {v(tmp,2)}, {voff}, {sWS}, {soff} offen sc1"]

    def poll_late(self, voff, soff, tmp, tok, wg=True):
        a = self.a
        L = a.label("late")
        done = a.vm_done
        if wg: a(f"s_cmp_lg_u32 {sW}, 0", f"s_cbranch_scc1 {L}")
        a.wait(vm=tok, force=True)
        a(f"v_cmp_ne_u64 vcc, {sTAG}, {v(tmp,2)}", "s_nop 1", f"s_cbranch_vccz {L}")
        self.poll(voff, soff, tmp)
        a(f"{L}:")
        a.vm_done = done if wg else tok
        if wg: self.barrier()

    def poll(self, voff, soff, tmp):
        a = self.a
        L, E = a.label("poll"), a.label("polled")
        a(f"s_mov_b32 {sPOLL}, 0x40000", f"{L}:",
          f"buffer_load_dwordx2 {v(tmp,2)}, {voff}, {sWS}, {soff} offen sc1")
        a.wait(vm=a.vm, force=True)
        a(f"v_cmp_ne_u64 vcc, {sTAG}, {v(tmp,2)}",
          f"s_sub_u32 {sPOLL}, {sPOLL}, 1", f"s_cbranch_scc1 {E}")
        sl = self.opt.get("sleep", 0)
        if sl: a(f"s_cbranch_vccz {E}", f"s_sleep {sl}", f"s_branch {L}", f"{E}:")
        else: a(f"s_cbranch_vccnz {L}", f"{E}:")

    def barrier(self):
        self.a("s_barrier")

    def prologue(self):
        a = self.a
        a("s_cmp_ge_u32 s2, 256", "s_cbranch_scc1 L_exit")
        self.stamp("entry")
        for d, off, n in self.SRDS: a(f"s_load_dwordx2 s[{d}:{d + 1}], s[0:1], {off}")
        for d, off, n in self.SRDS: a(f"s_mov_b32 s{d + 2}, {n}", f"s_mov_b32 s{d + 3}, 0x00020000")
        a("v_lshrrev_b32 v8, 6, v0", f"v_and_b32 {vLANE}, 63, v0", f"v_readfirstlane_b32 {sW}, v8",
          )
        if self.opt.get("map", 1):
            a(f"s_lshr_b32 {T[0]}, s2, 3", f"s_and_b32 {T[1]}, s2, 6", f"s_and_b32 {T[2]}, s2, 1",
              f"s_lshr_b32 {T[3]}, {T[0]}, 4", f"s_add_u32 {sJ}, {T[1]}, {T[3]}",
              f"s_bfe_u32 {sRB}, {T[0]}, 0x20002", f"s_and_b32 {sCB}, {T[0]}, 3", f"s_lshl_b32 {T[4]}, {T[2]}, 2", f"s_add_u32 {sCB}, {sCB}, {T[4]}",
              f"s_and_b32 {sHEAD}, {T[0]}, 15", f"s_lshl_b32 {T[4]}, {T[2]}, 4", f"s_add_u32 {sHEAD}, {sHEAD}, {T[4]}",
              f"s_lshr_b32 {sU[1]}, {T[0]}, 2", f"s_and_b32 {sU[2]}, {sCB}, 3", f"s_lshl_b32 {sU[2]}, {sU[2]}, 1")
        else:
            a(f"s_and_b32 {sJ}, s2, 7", f"s_lshr_b32 {sHEAD}, s2, 3", f"s_lshr_b32 {sRB}, {sHEAD}, 3", f"s_and_b32 {sCB}, {sHEAD}, 7",
              f"s_lshl_b32 {sU[1]}, {sRB}, 1", f"s_mov_b32 {sU[2]}, {sCB}")
        a(
          f"s_lshl_b32 {sR0}, {sJ}, 8", f"s_lshl_b32 {T[0]}, {sRB}, 6", f"s_add_u32 {sR0}, {sR0}, {T[0]}",
          f"s_lshr_b32 {sRH}, {sW}, 1", f"s_and_b32 {sCH}, {sW}, 1",
          f"s_lshl_b32 {sCLU}, {sJ}, 2", f"s_add_u32 {sCLU}, {sCLU}, {sRB}",
          f"s_mov_b32 {sONES}, 0x3f803f80", f"s_mov_b32 {sHIMASK}, 0xffff0000")
        a(f"s_mul_i32 {T[0]}, {sCB}, 5", f"s_min_u32 {T[1]}, {sCB}, 3", f"s_add_u32 {sT0}, {T[0]}, {T[1]}",
          f"s_cmp_ge_u32 {sCB}, 3", f"s_cselect_b32 {sCNT5}, 1, 0")
        a(f"v_lshlrev_b32 {vL16}, 4, {vLANE}", f"v_mov_b32 {vZ}, 0",
          f"v_and_b32 v8, 15, {vLANE}", f"v_lshrrev_b32 v9, 5, {vLANE}", f"v_bfe_u32 v10, {vLANE}, 4, 1",
          f"v_lshlrev_b32 v8, 4, v8", f"v_lshl_add_u32 v8, v10, 3, v8",
          f"v_lshl_add_u32 {vPAT}, v9, 8, v8",
          f"v_lshl_add_u32 v63, v9, 9, v8",
          f"v_and_b32 {vFP32}, 31, {vLANE}", f"v_lshlrev_b32 {vFP32}, 7, {vFP32}",
          f"v_and_b32 {vFP8}, 7, {vLANE}", f"v_lshlrev_b32 {vFP8}, 3, {vFP8}")

    SRDS = [(4, 0, 2048 * 512 * 2), (8, 8, 512 * 1536 * 2), (36, 80, WS_SIZE), (12, 16, 512 * 512 * 2), (16, 32, 512 * 1376 * 2),
            (20, 40, 2048 * 2048 * 2), (24, 48, 2048 * 2), (28, 56, 688 * 512 * 2), (32, 64, 2048 * 512 * 2)]

    def phase_qkv(self):
        a = self.a
        XR, ACC = 64, 128
        vXa, vXb, vW0, vW1, vWrA, vWrB, vXe, vXo, vXw = "v28", "v29", "v30", "v31", "v32", "v33", "v34", "v35", "v36"
        a(f"v_lshrrev_b32 v8, 3, {vLANE}", f"v_and_b32 v9, 7, {vLANE}",
          f"v_lshlrev_b32 v10, 10, v8", f"v_lshl_add_u32 {vXa}, v9, 4, v10",
          f"s_lshl_b32 {T[0]}, {sW}, 4", f"s_add_u32 {T[0]}, {T[0]}, {sR0}", f"s_lshl_b32 {T[0]}, {T[0]}, 10",
          f"v_add_u32 {vXa}, {T[0]}, {vXa}", f"v_add_u32 {vXb}, 0x2000, {vXa}")
        a(f"v_bfe_u32 v10, {vLANE}, 4, 1", "v_lshrrev_b32 v11, 1, v9", "v_xor_b32 v11, v11, v10",
          "v_and_b32 v12, 1, v9", "v_lshl_or_b32 v11, v11, 1, v12", "v_lshlrev_b32 v11, 4, v11",
          "v_mul_u32_u24 v12, 3072, v8", "v_add_u32 v12, v12, v11",
          f"s_mul_i32 {T[0]}, {sW}, {16 * 3072}", f"s_lshl_b32 {T[1]}, {sCB}, 7", f"s_add_u32 {T[0]}, {T[0]}, {T[1]}",
          f"v_add_u32 {vW0}, {T[0]}, v12", f"v_xor_b32 {vW1}, 64, {vW0}", f"v_add_u32 {vW1}, {8 * 3072 - 1024}, {vW1}")
        a(f"v_lshrrev_b32 v10, 4, {vLANE}", f"v_bfe_u32 v11, {vLANE}, 2, 2", f"v_and_b32 v12, 3, {vLANE}",
          "v_lshl_add_u32 v13, v10, 3, v11", "v_lshlrev_b32 v13, 7, v13", "v_lshl_add_u32 v13, v12, 3, v13",
          "v_lshrrev_b32 v11, 1, v11", "v_and_b32 v14, 1, v10", "v_lshl_or_b32 v11, v14, 1, v11",
          f"v_xor_b32 v11, {sW}, v11", f"v_lshl_add_u32 {vWrA}, v11, 5, v13", f"v_add_u32 {vWrB}, {2 * 24576}, {vWrA}")
        a("v_lshrrev_b32 v11, 2, v9", "v_lshlrev_b32 v11, 10, v11", "v_and_b32 v12, 3, v9", "v_lshl_add_u32 v11, v12, 8, v11",
          "v_xor_b32 v12, v8, v9", "v_lshl_add_u32 v11, v12, 4, v11",
          f"s_lshl_b32 {T[0]}, {sW}, 14", f"s_add_u32 {T[0]}, {T[0]}, {LB}", f"v_add_u32 {vXw}, {T[0]}, v11",
          f"v_and_b32 v11, 15, {vLANE}", "v_xor_b32 v11, v11, v10", "v_lshl_add_u32 v11, v10, 4, v11", "v_lshlrev_b32 v11, 4, v11",
          f"v_add_u32 {vXe}, {LB}, v11", f"v_xor_b32 {vXo}, 64, {vXe}")
        for i in range(8):
            a(f"s_add_u32 {T[0]}, {sU[2]}, {i}", f"s_and_b32 {T[0]}, {T[0]}, 7", f"s_lshl_b32 {sROT[i]}, {T[0]}, 7",
              f"s_sub_u32 {T[0]}, {T[0]}, {sU[1]}", f"s_and_b32 {T[0]}, {T[0]}, 7", f"s_lshl_b32 {T[0]}, {T[0]}, 11", f"v_add_u32 v{37 + i}, {T[0]}, {vXw}")
        a(f"s_lshl_b32 {sU[0]}, {sW}, 11")
        if self.opt.get("pf0"):
            a(f"s_lshl_b32 {T[0]}, {sRB}, 2", f"s_add_u32 {T[0]}, {T[0]}, {sW}", f"s_mul_i32 {T[0]}, {T[0]}, {32 * 3072}",
              f"s_lshl_b32 {T[1]}, {sCB}, 7", f"s_add_u32 {T[0]}, {T[0]}, {T[1]}",
              f"v_and_b32 v8, 31, {vLANE}", "v_mul_u32_u24 v8, 3072, v8", f"v_add_u32 v48, {T[0]}, v8",
              f"v_lshrrev_b32 v9, 5, {vLANE}", "v_lshl_add_u32 v45, v9, 10, v48")
        a("s_waitcnt lgkmcnt(0)", f"s_mov_b32 {sJA}, {sJ}", f"s_mov_b32 {sRB8}, {sU[1]}")
        self.stamp("kernarg")
        xtok = []
        wtok = {}
        def wdma(t):
            L = []
            slot = t & 3
            for p in range(3):
                pre = [f"s_add_u32 {T[1]}, {sRB8}, {t}", f"s_and_b32 {T[1]}, {T[1]}, 7",
                       f"s_mul_i32 {T[1]}, {T[1]}, {64 * 3072}"] if p == 0 else []
                L.append(pre + [f"s_add_u32 {T[2]}, {T[1]}, {p * 1024}",
                          f"s_add_u32 m0, {sU[0]}, {slot * 24576 + p * 8192}",
                          f"buffer_load_dwordx4 {vW0}, {sWQKV}, {T[2]} offen lds"])
                L.append([f"buffer_load_dwordx4 {vW1}, {sWQKV}, {T[2]} offen offset:1024 lds"])
            L[-1].append(lambda: wtok.__setitem__(t, a.vtok()))
            return L
        wq = [x for t in range(4) for x in wdma(t)]
        def wq_issue(n):
            for _ in range(n):
                if wq: self.emit(wq.pop(0))
        def xload(t):
            for g, vx in enumerate((vXa, vXb)):
                a(f"buffer_load_dwordx4 {v(XR + (g * 8 + t) * 4, 4)}, {vx}, {sX}, {sROT[t] if t < nb else T[(t - nb) & 3]} offen")
            xtok.append(a.vtok())
        nb = self.opt.get("xb", 2)
        for t in range(nb):
            xload(t)
            if t == 0: wq_issue(self.opt.get("wpre", 0))
        if not self.opt.get("nocodepf"):
            a(f"s_getpc_b64 s[60:61]", "L_pc:", f"s_sub_u32 s60, s60, L_pc-{NAME}_kernel", "s_subb_u32 s61, s61, 0",
              f"s_mov_b32 s62, L_code_end-{NAME}_kernel", "s_mov_b32 s63, 0x00020000",
              f"s_lshr_b32 {T[0]}, s2, 3", f"s_lshl_b32 {T[0]}, {T[0]}, 2", f"s_add_u32 {T[0]}, {T[0]}, {sW}", f"s_lshl_b32 {T[0]}, {T[0]}, 9",
              f"v_lshlrev_b32 v46, 3, {vLANE}", f"buffer_load_dwordx2 v[46:47], v46, s[60:63], {T[0]} offen")
        self.attn_addresses()
        self.stamp("issued")
        for t in range(nb, 8):
            r = T[(t - nb) & 3]
            a(f"s_add_u32 {r}, {sU[2]}, {t}", f"s_and_b32 {r}, {r}, 7", f"s_lshl_b32 {r}, {r}, 7")
            xload(t)
        wq_issue(self.opt.get("wpost", 6))
        if self.opt.get("pfq", 0):
            a(f"s_lshl_b32 {T[0]}, s2, 2", f"s_add_u32 {T[0]}, {T[0]}, {sW}", f"s_mul_i32 {T[0]}, {T[0]}, 1536",
              f"v_min_u32 v49, 31, {vLANE}", "v_lshlrev_b32 v49, 4, v49",
              f"buffer_load_dwordx4 v[248:251], {vL16}, {sWQKV}, {T[0]} offen", f"buffer_load_dwordx4 v[248:251], v49, {sWQKV}, {T[0]} offen offset:1024")
        if self.opt.get("tlb"):
            a(f"v_min_u32 v48, 9, {vLANE}", "v_lshlrev_b32 v48, 21, v48", f"buffer_load_dword v48, v48, {sWS}, 0 offen offset:2048")
        for t in range(8):
            a.wait(vm=xtok[t])
            if t == 0: self.stamp("x_first")
            if t == 7: self.stamp("x_last")
            if t >= self.opt.get("wstart", 8): wq_issue(1)
            for k in range(4):
                for g in range(2):
                    x = v(XR + (g * 8 + t) * 4 + k)
                    first = t == 0 and k == 0
                    a(f"v_dot2_f32_bf16 v{8 + 2 * g}, {x}, {sONES}, {'0' if first else 'v%d' % (8 + 2 * g)}",
                      f"v_dot2_f32_bf16 v{9 + 2 * g}, {x}, {x}, {'0' if first else 'v%d' % (9 + 2 * g)}")
        for mod in ("quad_perm:[1,0,3,2]", "quad_perm:[2,3,0,1]", "row_half_mirror"):
            for r in range(8, 12):
                a(f"v_add_f32_dpp v{r}, v{r}, v{r} {mod} row_mask:0xf bank_mask:0xf")
        self.ln_finish([(8, 9, 12), (10, 11, 14)], 1.0 / 512)
        self.stamp("stats")
        n = 0
        for t in range(8):
            for g in range(2):
                b = XR + (g * 8 + t) * 4
                tp = [16 + 2 * ((n + k) % 6) for k in range(4)]; n += 4
                for k in range(4):
                    a(f"v_lshlrev_b32 v{tp[k]}, 16, v{b + k}", f"v_and_b32 v{tp[k] + 1}, {sHIMASK}, v{b + k}")
                for k in range(4):
                    a(f"v_pk_fma_f32 {v(tp[k], 2)}, {v(tp[k], 2)}, {v(12 + 2 * g, 2)}, {v(12 + 2 * g, 2)} op_sel:[0,0,1] op_sel_hi:[1,0,1]")
                for k in range(4):
                    a(f"v_cvt_pk_bf16_f32 v{b + k}, v{tp[k]}, v{tp[k] + 1}")
                a(f"ds_write_b128 v{37 + t}, {v(b, 4)} offset:{g * 128}")
                if 2 * t + g < self.opt.get("wln", 6): wq_issue(1)
        wq_issue(max(0, len(wq) - self.opt.get("wloop", 12)))
        a(f"buffer_load_dwordx2 v[4:5], off, {sWS}, 0 sc1")
        etok = a.vtok()
        self.stamp("ln1")
        AF = 64
        def abuf(s): return AF + 16 * (s % 3)
        def wbuf(s): return (112, 176, 188)[s % 3]
        def reads(s):
            t, sub = s >> 1, s & 1
            slot = t & 3
            wb = vWrA if slot < 2 else vWrB
            wo = (slot & 1) * 24576 + sub * 4096
            A, W = abuf(s), wbuf(s)
            L = [f"ds_read_b64_tr_b16 {v(W + 2 * h, 2)}, {wb} offset:{wo + 512 * h}" for h in range(2)]
            L += [f"ds_read_b128 {v(A + 4 * rt, 4)}, {vXo if s & 1 else vXe} offset:{(rt * 16 + s) * 1024}" for rt in range(4)]
            L += [f"ds_read_b64_tr_b16 {v(W + 4 * p + 2 * h, 2)}, {wb} offset:{wo + 8192 * p + 512 * h}" for p in (1, 2) for h in range(2)]
            return L
        def mfmas(s):
            A, W = abuf(s), wbuf(s)
            ms = []
            for p in range(3):
                for rt in range(4):
                    d = ACC + 16 * p + 4 * rt
                    wv, av = v(W + 4 * p, 4), v(A + 4 * rt, 4)
                    c = "0" if s == 0 else None
                    ms.append(mfma16(d, wv, av, c) if p < 2 else mfma16(d, av, wv, c))
            return ms
        def head0():
            a.wait(vm=wtok[0], lg=a.lg); self.barrier(); self.stamp("w0")
        before, late = {}, {}
        for t in range(7):
            def f(t=t):
                a.wait(vm=wtok[t + 1]); self.barrier()
            before[2 * t] = f
        def f14():
            a.wait(lg=a.lg); self.barrier()
        before[15] = f14
        for t in range(4):
            d = wdma(t + 4)
            late[2 * t + 2] = d[:3]; late[2 * t + 3] = d[3:]
        if wq: late[0] = wq[:6]; late[1] = wq[6:]
        if self.opt.get("pfsp", 0):
            a(f"s_lshl_b32 {T[3]}, {sCB}, 3", f"s_add_u32 {T[3]}, {T[3]}, {sR0}", f"s_lshl_b32 {T[4]}, {sW}, 1", f"s_add_u32 {T[3]}, {T[3]}, {T[4]}",
              f"s_lshl_b32 {T[3]}, {T[3]}, 12", f"s_add_u32 {T[4]}, {T[3]}, 4096",
              f"s_lshl_b32 {T[5]}, s2, 2", f"s_add_u32 {T[5]}, {T[5]}, {sW}", f"s_mul_i32 {T[6]}, {T[5]}, 1376", f"s_mul_i32 {T[7]}, {T[5]}, 688",
              f"s_lshl_b32 {T[5]}, {T[5]}, 9",
              f"v_min_u32 v50, 42, {vLANE}", "v_lshlrev_b32 v50, 4, v50", f"v_min_u32 v51, 21, {vLANE}", "v_lshlrev_b32 v51, 4, v51",
              f"v_min_u32 v49, 31, {vLANE}", "v_lshlrev_b32 v49, 4, v49")
            J = "v[248:251]"
            pfl = [[f"buffer_load_dwordx4 {J}, v49, {sWO}, {T[5]} offen"], [f"buffer_load_dwordx4 {J}, {vL16}, {sWIN}, {T[6]} offen"],
                   [f"buffer_load_dwordx4 {J}, v51, {sWIN}, {T[6]} offen offset:1024"], [f"buffer_load_dwordx4 {J}, v50, {sWOUT}, {T[7]} offen"]]
            pfl += [[f"buffer_load_dwordx4 {J}, {vL16}, {sWSP}, {T[3 + (i >> 2)]} offen offset:{1024 * (i & 3)}"] for i in range(8)]
            p0 = self.opt.get("pfat", 10)
            if self.opt.get("pfsp", 1) == 1: pfl = pfl[:4]
            for i in range((len(pfl) + 2) // 3): late[p0 + i] = pfl[3 * i:3 * i + 3]
        cf = self.const_fill()
        late[15] = [cf[0:4], cf[4:8], cf[8:10], cf[10:]]
        self.kloop(16, reads, mfmas, before, late, {0: head0})
        self.stamp("qkv_gemm")
        a.wait(vm=etok)
        a("v_add_u32 v4, 0x9e3779b9, v4", "v_add_u32 v5, 0x7f4a7c15, v5", "v_readfirstlane_b32 s50, v4", "v_readfirstlane_b32 s51, v5")
        QS = 0.25 * 1.4426950408889634
        a(f"s_mov_b32 {T[0]}, {f2u(QS)}",
          f"s_lshl_b32 {T[1]}, {sCB}, 2", f"s_add_u32 {T[1]}, {T[1]}, {sW}",
          f"s_lshl_b32 {T[2]}, {T[1]}, 16", f"s_lshl_b32 {T[3]}, {sR0}, 5", f"s_add_u32 {T[2]}, {T[2]}, {T[3]}",
          f"s_add_u32 {T[2]}, {T[2]}, {WS_Q}",
          f"s_lshl_b32 {T[4]}, {T[1]}, 17", f"s_lshl_b32 {T[3]}, {sR0}, 6", f"s_add_u32 {T[4]}, {T[4]}, {T[3]}",
          f"s_add_u32 {T[4]}, {T[4]}, {WS_KV}", f"s_add_u32 {T[5]}, {T[4]}, 2048")
        PK = 64
        for p in (1, 2, 0):
            for rt in range(4):
                d = ACC + 16 * p + 4 * rt
                o = PK + 8 * p + 2 * rt
                if p == 0:
                    for k in range(4): a(f"v_mul_f32 v{d + k}, {T[0]}, v{d + k}")
                a(f"v_cvt_pk_bf16_f32 v{o}, v{d}, v{d + 1}", f"v_cvt_pk_bf16_f32 v{o + 1}, v{d + 2}, v{d + 3}")
                if p < 2:
                    a(f"buffer_store_dwordx2 {v(o, 2)}, v63, {sWS}, {T[2] if p == 0 else T[4]} offen offset:{(rt >> 1) * 1024 + (rt & 1) * 256} sc1")
                else:
                    a(f"buffer_store_dwordx2 {v(o, 2)}, {vPAT}, {sWS}, {T[5]} offen offset:{rt * 512} sc1")
        a(f"s_lshl_b32 {T[0]}, {sRB}, 5", f"s_add_u32 {T[0]}, {T[0]}, {T[1]}", f"s_lshl_b32 {T[0]}, {T[0]}, 7",
          f"s_lshl_b32 {T[1]}, {sJ}, 3", f"s_add_u32 {T[0]}, {T[0]}, {T[1]}", f"s_add_u32 {T[0]}, {T[0]}, {WS_F1}")
        self.flag_store(T[0])
        self.stamp("qkv_pub")

    def ln_finish(self, chains, inv_n):
        a = self.a
        for s1, s2, d in chains: a(f"v_mul_f32 v{s1}, {f2u(inv_n)}, v{s1}", f"v_mul_f32 v{s2}, {f2u(inv_n)}, v{s2}")
        for s1, s2, d in chains: a(f"v_fma_f32 v{s2}, -v{s1}, v{s1}, v{s2}")
        for s1, s2, d in chains: a(f"v_max_f32 v{s2}, 0, v{s2}")
        for s1, s2, d in chains: a(f"v_add_f32 v{s2}, {f2u(1e-5)}, v{s2}")
        for s1, s2, d in chains: a(f"v_rsq_f32 v{d}, v{s2}")
        for s1, s2, d in chains: a(f"v_mul_f32_e64 v{d + 1}, -v{s1}, v{d}")

    def const_fill(self):
        L = [f"v_and_b32 v8, 27, {vLANE}", "v_cmp_eq_u32 vcc, 1, v8", f"v_mov_b32 v9, {sONES}",
             "v_cndmask_b32 v12, v3, v9, vcc", "v_mov_b32 v13, v12", "v_mov_b32 v14, v12", "v_mov_b32 v15, v12",
             f"s_lshl_b32 {T[3]}, {sW}, 12", f"s_add_u32 {T[3]}, {T[3]}, {LC + 2048}", f"v_add_u32 v9, {T[3]}, {vL16}",
             "ds_write_b128 v9, v[12:15]", "ds_write_b128 v9, v[12:15] offset:1024"]
        return L

    S, OA, NM, QF, KB, VB = 64, 112, 144, 176, 184, 192
    vIDX, vSP0, vKA, vKB2, vVB, vVI, vWD0, vXR = 208, 209, 213, 214, 215, 216, 217, 240

    def attn_addresses(self):
        a = self.a
        a(f"v_and_b32 v8, 15, {vLANE}", f"v_lshrrev_b32 v9, 4, {vLANE}", "v_lshlrev_b32 v10, 12, v8", "v_lshl_add_u32 v10, v9, 4, v10",
          f"s_lshl_b32 {T[6]}, {sR0}, 12", f"s_lshl_b32 {T[7]}, {sW}, 7", f"s_add_u32 {T[6]}, {T[6]}, {T[7]}",
          f"v_add_u32 v{self.vSP0}, {T[6]}, v10")
        for tt in range(1, 4): a(f"v_add_u32 v{self.vSP0 + tt}, {tt * 65536}, v{self.vSP0}")
        a(f"v_mov_b32 v{self.vIDX}, 0xdddddddd", f"v_mov_b32 v{self.vKA}, {vL16}", f"v_add_u32 v{self.vKB2}, {LB}, {vL16}")
        a(f"v_lshrrev_b32 v10, 5, {vLANE}", "v_lshl_add_u32 v10, v10, 4, v8", "v_lshlrev_b32 v10, 4, v10",
          f"v_and_b32 v11, 31, {vLANE}", f"v_bfe_u32 v12, {vLANE}, 2, 2",
          "v_add_u32 v12, -1, v12", "v_cmp_gt_u32 vcc, 2, v12", "v_cndmask_b32_e64 v12, 0, 4, vcc",
          "v_and_b32 v13, 27, v11", "v_cmp_eq_u32 vcc, 16, v13", "v_cndmask_b32_e64 v13, 0, 1, vcc",
          "v_add_u32 v12, v12, v13", "v_lshlrev_b32 v12, 4, v12", f"v_add_u32 v12, {LC}, v12",
          "v_cmp_gt_u32 vcc, 16, v11", f"v_cndmask_b32 v{self.vVB}, v12, v10, vcc",
          f"v_mov_b32 v13, 0x4000", f"v_cndmask_b32 v{self.vVI}, v3, v13, vcc")
        self.w128_addresses(self.vWD0, 16)
        self.win_addresses()
        a(f"s_lshl_b32 {T[5]}, {sHEAD}, 17", f"s_lshl_b32 {sU[1]}, {sW}, 12", f"s_add_u32 {T[5]}, {T[5]}, {sU[1]}", f"s_add_u32 {T[5]}, {T[5]}, {WS_KV}")
        for t in range(8):
            a(f"s_add_u32 {T[6]}, {sJ}, {t}", f"s_and_b32 {T[6]}, {T[6]}, 7", f"s_lshl_b32 {T[6]}, {T[6]}, 14", f"s_add_u32 {sROT[t]}, {T[6]}, {T[5]}")
        a(f"s_add_u32 {sSPR}, {sRB8}, {sJ}")
        for t in range(8):
            a(f"s_add_u32 {T[6]}, {sSPR}, {t}", f"s_and_b32 {T[6]}, {T[6]}, 7", f"s_lshl_b32 {sU[4 + t]}, {T[6]}, 9")
        a(f"v_lshrrev_b32 v226, 3, {vLANE}", f"s_lshl_b32 {T[6]}, {sCB}, 3", f"s_add_u32 {T[6]}, {T[6]}, {sR0}", f"v_add_u32 v226, {T[6]}, v226",
          "v_lshlrev_b32 v226, 12, v226", f"v_and_b32 v8, 7, {vLANE}", "v_lshl_add_u32 v226, v8, 4, v226",
          f"s_lshl_b32 {T[6]}, {sW}, 7", f"v_add_u32 v226, {T[6]}, v226")
        a(f"v_and_b32 v8, 15, {vLANE}", f"v_lshrrev_b32 v9, 4, {vLANE}", "v_lshlrev_b32 v8, 10, v8", "v_lshl_add_u32 v62, v9, 3, v8")
        a(f"v_and_b32 v10, 15, {vLANE}", f"v_bfe_u32 v11, {vLANE}, 4, 1", f"v_lshrrev_b32 v12, 5, {vLANE}",
          "v_lshlrev_b32 v10, 4, v10", "v_lshl_add_u32 v10, v11, 14, v10", "v_lshl_add_u32 v227, v12, 3, v10")
        for r in range(self.NM, self.NM + 0): pass

    def w128_addresses(self, r, t0=28):
        a = self.a
        p, q, u, x, y = ("v%d" % (t0 + i) for i in range(5))
        a(f"v_lshrrev_b32 {p}, 3, {vLANE}", f"v_and_b32 {q}, 7, {vLANE}", f"v_bfe_u32 {u}, {vLANE}, 4, 1",
          f"v_lshrrev_b32 {x}, 1, {q}", f"v_xor_b32 {x}, {x}, {u}", f"v_and_b32 {y}, 1, {q}", f"v_lshl_or_b32 {x}, {x}, 1, {y}",
          f"v_lshlrev_b32 {x}, 4, {x}", f"v_lshl_add_u32 {x}, {p}, 10, {x}",
          f"s_lshl_b32 {T[6]}, {sCB}, 7", f"v_add_u32 v{r}, {T[6]}, {x}", f"v_xor_b32 v{r + 1}, 64, v{r}",
          f"v_add_u32 v{r + 1}, {7 * 1024}, v{r + 1}", f"v_add_u32 v{r + 2}, {14 * 1024}, v{r}", f"v_add_u32 v{r + 3}, {14 * 1024}, v{r + 1}")

    def w128_dma(self, r, srd, pos, lds, nsteps):
        L = [f"s_lshr_b32 {T[4]}, {pos}, 1", f"s_add_u32 {T[4]}, {T[4]}, {sU[4]}"]
        n = nsteps // 2
        if n & (n - 1) == 0: L.append(f"s_and_b32 {T[4]}, {T[4]}, {n - 1}")
        else: L += [f"s_cmp_ge_u32 {T[4]}, {n}", f"s_cselect_b32 {T[7]}, {n}, 0", f"s_sub_u32 {T[4]}, {T[4]}, {T[7]}"]
        L += [f"s_lshl_b32 {T[4]}, {T[4]}, 1", f"s_and_b32 {T[7]}, {pos}, 1", f"s_add_u32 {T[4]}, {T[4]}, {T[7]}", f"s_lshl_b32 {T[4]}, {T[4]}, 15",
              f"s_mov_b32 m0, {lds}"]
        return L, [f"buffer_load_dwordx4 v{r + i}, {srd}, {T[4]} offen offset:{1024 * i} lds" for i in range(4)]

    def stage_base(self, t): return LA + 16384 * t if t < 4 else LB + 16384 * (t - 4)

    def kv_dma(self, t):
        L = [([f"s_add_u32 m0, {sU[1]}, {self.stage_base(t)}"] if i == 0 else [],
              f"buffer_load_dwordx4 {vL16}, {sWS}, {sROT[t]} offen offset:{1024 * i} sc1 lds") for i in range(4)]
        return L

    def phase_attn(self):
        a = self.a
        S, OA, NM, QF, KB, VB = self.S, self.OA, self.NM, self.QF, self.KB, self.VB
        a(f"s_lshl_b32 {T[0]}, {sW}, 5", f"s_add_u32 {T[0]}, {T[0]}, {sHEAD}", f"s_lshl_b32 {T[0]}, {T[0]}, 7", f"s_add_u32 {T[0]}, {T[0]}, {WS_F1}",
          f"s_lshl_b32 {T[1]}, {sHEAD}, 16", f"s_lshl_b32 {T[2]}, {sJ}, 13", f"s_add_u32 {T[1]}, {T[1]}, {T[2]}",
          f"s_lshl_b32 {T[2]}, {sW}, 11", f"s_add_u32 {T[1]}, {T[1]}, {T[2]}", f"s_add_u32 {T[1]}, {T[1]}, {WS_Q}",
          f"s_lshl_b32 {sU[3]}, {sW}, 14",
          )
        for r in range(OA, OA + 32): a(f"v_mov_b32 v{r}, 0")
        L, E, F = a.label("s1"), a.label("s1own"), a.label("s1all")
        a(f"s_mov_b32 {sPOLL}, 0x40000", f"s_lshl_b32 {T[2]}, 1, {sJ}", f"{L}:", f"buffer_load_dwordx2 v[8:9], {vFP8}, {sWS}, {T[0]} offen sc1")
        a.wait(vm=a.vm, force=True)
        a(f"v_cmp_ne_u64 vcc, {sTAG}, v[8:9]", f"s_sub_u32 {sPOLL}, {sPOLL}, 1", f"s_cbranch_scc1 {E}",
          f"s_and_b32 {T[3]}, vcc_lo, {T[2]}", f"s_cbranch_scc1 {L}", f"{E}:", "s_mov_b64 s[60:61], vcc")
        self.stamp("s1")
        for q in range(2):
            a(f"buffer_load_dwordx4 {v(QF + 4 * q, 4)}, {vL16}, {sWS}, {T[1]} offen offset:{1024 * q} sc1")
        kvtok = {}
        def issue(items):
            for pre, ins in items: a(*pre, ins) if pre else a(ins)
        issue(self.kv_dma(0)); kvtok[0] = a.vtok()
        done = a.vm_done
        a("s_cmp_eq_u64 s[60:61], 0", f"s_cbranch_scc1 {F}")
        self.poll(vFP8, T[0], 8)
        a(f"{F}:")
        a.vm_done = done
        issue(self.kv_dma(1)); kvtok[1] = a.vtok()
        if self.opt.get("ahead"): a(f"buffer_load_dwordx4 v[228:231], v226, {sWSP}, {sU[4]} offen")
        a.wait(vm=kvtok[0], lg=a.lg)
        self.barrier()
        def kread(kt):
            t, k = kt >> 3, kt & 7
            base = self.vKA if t < 4 else self.vKB2
            return f"ds_read_b128 {v(KB + 4 * (kt & 1), 4)}, v{base} offset:{16384 * (t & 3) + (k >> 1) * 4096 + (k & 1) * 1024}"
        def vread(kt, hi):
            k = kt & 7
            return f"ds_read_b128 {v(VB + 8 * (kt & 1) + 4 * hi, 4)}, v{self.vVB} offset:{(k >> 1) * 4096 + 2048 + (k & 1) * 1024 + 512 * hi}"
        def qk(n, c=None):
            kt, q = n >> 1, n & 1
            return f"v_mfma_f32_32x32x16_bf16 {v(S + 16 * (n % 3), 16)}, {v(KB + 4 * (kt & 1), 4)}, {v(QF + 4 * q, 4)}, {c if c else v(NM + 16 * q, 16)}"
        def pv(n, hi):
            kt, q = n >> 1, n & 1
            return f"v_smfmac_f32_32x32x32_bf16 {v(OA + 16 * q, 16)}, {v(VB + 8 * (kt & 1) + 4 * hi, 4)}, {v(S + 16 * (n % 3) + 8 * hi, 8)}, v{self.vIDX}"
        a(kread(0), kread(1), vread(0, 0), vread(0, 1))
        a.wait(lg=a.lg)
        a(qk(0, "0"), qk(1, "0"))
        for q in range(2):
            b, m = S + 16 * q, 8 + 2 * q
            a(f"v_max3_f32 v{m}, v{b}, v{b + 1}, v{b + 2}")
            for k in range(3, 15, 2): a(f"v_max3_f32 v{m}, v{m}, v{b + k}, v{b + k + 1}")
            a(f"v_max_f32 v{m}, v{m}, v{b + 15}", f"v_mov_b32 v{m + 1}, v{m}")
        for q in range(2): a(f"v_permlane32_swap_b32 v{8 + 2 * q}, v{9 + 2 * q}")
        for q in range(2):
            m = 8 + 2 * q
            a(f"v_max_f32 v{m}, v{m}, v{m + 1}", f"v_sub_f32 v{m}, 0, v{m}")
            for r in range(0, 16, 2): a(f"v_pk_mov_b32 {v(NM + 16 * q + r, 2)}, {v(m, 2)}, {v(m, 2)} op_sel:[0,0]")
            a(qk(q))
        self.stamp("attn_start")
        if self.stamps: a("s_memtime s[100:101]", "s_waitcnt lgkmcnt(0)", "s_mov_b32 s99, s100")
        wotok = [0]
        wo = []
        for g in range(4):
            a(f"s_lshl_b32 {T[4]}, {sW}, 1", f"s_add_u32 {T[4]}, {T[4]}, {g >> 1}", f"s_add_u32 {T[4]}, {T[4]}, {sCB}", f"s_and_b32 {T[4]}, {T[4]}, 7",
              f"s_lshl_b32 {T[4]}, {T[4]}, 16", f"s_add_u32 {T[g]}, {T[4]}, {(g & 1) * 32768}")
            ins = [f"buffer_load_dwordx4 v{self.vWD0 + i}, {sWO}, {T[g]} offen offset:{1024 * i} lds" for i in range(4)]
            wo += [([f"s_add_u32 m0, {sU[3]}, {LA + g * 4096}"], ins[0]), ([], ins[1]), ([], ins[2]), ([], ins[3])]
        a(f"s_lshl_b32 {T[6]}, {sHEAD}, 2", f"s_add_u32 {T[6]}, {T[6]}, {sW}", f"s_mul_i32 {T[6]}, {T[6]}, 11008")
        pfw = [([f"s_add_u32 {T[6]}, {T[6]}, 4096"] if i and i % 4 == 0 else [],
                f"buffer_load_dwordx4 v[228:231], {vL16}, {sWIN}, {T[6]} offen offset:{(i % 4) * 1024}") for i in range(11)]
        if not self.opt.get("pfw"): pfw = []
        a(f"s_mov_b32 {T[7]}, {sU[4]}", f"s_mov_b32 {sU[4]}, {sCB}")
        w2c = self.win_dma(1, 28, 1, (T[4], T[5], sU[2], sU[0]))
        self.emit(w2c[0][:-1]); a(f"s_mov_b32 {T[4]}, m0", f"s_mov_b32 {sU[4]}, {T[7]}")
        pfw += [([f"s_mov_b32 m0, {T[4]}"], w2c[0][-1]), ([], w2c[1][-1]), ([], w2c[2][-1])]
        pf2 = []
        if self.opt.get("pf2", 1):
            a(f"s_lshl_b32 {T[5]}, s2, 2", f"s_add_u32 {T[5]}, {T[5]}, {sW}", f"s_mul_i32 {T[6]}, {T[5]}, 1376", f"s_mul_i32 {T[7]}, {T[5]}, 688",
              f"s_lshl_b32 {T[5]}, {T[5]}, 9",
              f"v_min_u32 v50, 42, {vLANE}", "v_lshlrev_b32 v50, 4, v50", f"v_min_u32 v51, 21, {vLANE}", "v_lshlrev_b32 v51, 4, v51",
              f"v_min_u32 v49, 31, {vLANE}", "v_lshlrev_b32 v49, 4, v49")
            J = "v[228:231]"
            pf2 = [([], f"buffer_load_dwordx4 {J}, v49, {sWO}, {T[5]} offen"), ([], f"buffer_load_dwordx4 {J}, {vL16}, {sWIN}, {T[6]} offen"),
                   ([], f"buffer_load_dwordx4 {J}, v51, {sWIN}, {T[6]} offen offset:1024"), ([], f"buffer_load_dwordx4 {J}, v50, {sWOUT}, {T[7]} offen")]
        post = {}
        slots = []
        even = self.opt.get("even", 1)
        for t in range(8):
            kv = []
            if t < 6:
                kv = self.kv_dma(t + 2); post[kv[-1][1]] = (lambda t=t: kvtok.__setitem__(t + 2, a.vtok()))
            spl = [([], f"buffer_load_dwordx4 {ar(((2 * t + sub) * 4 + tt) * 4, 4)}, v{self.vSP0 + tt}, {sWSP}, {sU[4 + t]} offen offset:{64 * sub}")
                   for sub in range(2) for tt in range(4)]
            if self.opt.get("nosp"): spl = [None] * 8
            if t < 6:
                ex = [pfw.pop(0) for _ in range(min(4, len(pfw)))]
                ex += [None] * (4 - len(ex))
                if t == self.opt.get("pf2at", 1): ex = pf2 + [None] * (4 - len(pf2))
                oth = kv + ex if t == 0 else [x for pair in zip(kv, ex) for x in pair]
            else:
                oth = [wo.pop(0) for _ in range(8)]
            st = [x for pair in zip(oth, spl) for x in pair] if even else oth + spl
            slots += st
        assert not wo and not pfw, (len(wo), len(pfw))
        last_wo = [x for x in slots if x and str(sWO) in x[1]][-1][1]
        post[last_wo] = lambda: wotok.__setitem__(0, a.vtok())
        def vm_slot(i):
            if i < len(slots) and slots[i]:
                a(slots[i][1])
                if slots[i][1] in post: post[slots[i][1]]()
        def vm_pre(i):
            if i < len(slots) and slots[i]:
                for x in slots[i][0]: a(x)
        vm_pre(0)
        for n in range(128):
            kt, q = n >> 1, n & 1
            b = S + 16 * (n % 3)
            E = lambda lo, hi: [a(f"v_exp_f32 v{b + r}, v{b + r}") for r in range(lo, hi)]
            E(0, 2)
            if n > 0: a(pv(n - 1, 1))
            if q == 0:
                if kt + 2 < 64: a(kread(kt + 2))
                if (kt + 1) & 7 == 0 and kt + 1 < 64:
                    for _ in range(3 if kt + 1 == 32 else 1): a(f"v_add_u32 v{self.vVB}, v{self.vVB}, v{self.vVI}")
            else:
                vm_slot(2 * kt); vm_pre(2 * kt + 1)
            E(2, 7)
            if n + 2 < 128: a(qk(n + 2))
            if q == 0:
                if kt + 1 < 64: a(vread(kt + 1, 0))
            else:
                vm_slot(2 * kt + 1)
            E(7, 12)
            a(pv(n, 0))
            if q == 0:
                if kt + 1 < 64: a(vread(kt + 1, 1))
                if kt > 0: vm_pre(2 * kt)
            elif kt & 7 == 5 and kt < 56:
                a.wait(vm=kvtok[(kt >> 3) + 1], lg=a.lg); self.barrier()
            else:
                a.wait(lg=a.lg)
            E(12, 16)
        a.wait(vm=wotok[0], lg=a.lg)
        a(pv(127, 1))
        self.barrier()
        self.stamp("attn_loop")
        if self.stamps: a("s_memtime s[100:101]", "s_waitcnt lgkmcnt(0)", "s_sub_u32 s99, s100, s99")
        for q in range(2):
            o = OA + 16 * q
            a(f"v_pk_add_f32 {v(8 + 4 * q, 2)}, {v(o, 2)}, {v(o + 2, 2)}", f"v_pk_add_f32 {v(10 + 4 * q, 2)}, {v(o + 4, 2)}, {v(o + 6, 2)}")
        for q in range(2): a(f"v_pk_add_f32 {v(8 + 4 * q, 2)}, {v(8 + 4 * q, 2)}, {v(10 + 4 * q, 2)}")
        a("v_add_f32 v8, v8, v9", "v_add_f32 v12, v12, v13", "v_add_f32 v8, v8, v12", f"v_max_f32 v9, v{OA + 8}, v{OA + 24}",
          f"v_add_f32 v10, v{OA + 8}, v{OA + 24}", "v_add_f32 v8, v8, v10",
          f"s_mov_b32 {T[0]}, 0x207", f"v_cmp_class_f32_e64 vcc, v8, {T[0]}",
          f"s_mov_b64 s[60:61], vcc", f"v_cmp_le_f32 vcc, {f2u(2.0 ** 64)}, v9", "s_or_b64 vcc, vcc, s[60:61]")
        if self.force_fallback: a("s_mov_b64 vcc, -1")
        a("s_cbranch_vccnz L_attn_slow", "L_attn_done:")
        for q in range(2): a(f"v_rcp_f32 v{8 + q}, v{OA + 16 * q + 8}")
        a(f"s_lshr_b32 {T[0]}, {sHEAD}, 1", f"s_lshl_b32 {T[0]}, {T[0]}, 10", f"s_and_b32 {T[1]}, {sHEAD}, 1", f"s_lshl_b32 {T[1]}, {T[1]}, 9",
          f"s_add_u32 {T[0]}, {T[0]}, {T[1]}", f"s_lshl_b32 {T[1]}, {sJ}, 18", f"s_add_u32 {T[0]}, {T[0]}, {T[1]}",
          f"s_lshl_b32 {T[1]}, {sW}, 16", f"s_add_u32 {T[0]}, {T[0]}, {T[1]}", f"s_add_u32 {T[0]}, {T[0]}, {WS_O}", f"s_add_u32 {T[1]}, {T[0]}, 0x8000",
          )
        for q in range(2):
            o = OA + 16 * q
            for k in range(8): a(f"v_mul_f32 v{o + k}, v{o + k}, v{8 + q}")
            for k in range(4): a(f"v_cvt_pk_bf16_f32 v{192 + 4 * q + k}, v{o + 2 * k}, v{o + 2 * k + 1}")
            for hf in range(2):
                a(f"buffer_store_dwordx2 {v(192 + 4 * q + 2 * hf, 2)}, v227, {sWS}, {T[q]} offen offset:{256 * hf} sc1")
        self.w128_read_base(28, 2)
        rd = [f"ds_read_b64_tr_b16 {v(64 + (nt * 16 + p) * 4 + 2 * hf, 2)}, v{28 + nt} offset:{LA + p * 4096 + hf * 512}"
              for p in range(16) for nt in range(2) for hf in range(2)]
        a(f"s_lshl_b32 {T[0]}, {sJ}, 2", f"s_add_u32 {T[0]}, {T[0]}, {sW}", f"s_lshl_b32 {T[0]}, {T[0]}, 12",
          f"s_lshl_b32 {T[1]}, {sHEAD}, 7", f"s_add_u32 {T[0]}, {T[0]}, {T[1]}", f"s_add_u32 {T[0]}, {T[0]}, {WS_F2}")
        k = self.opt.get("rdpre", 24)
        self.emit(rd[:k])
        self.flag_store(T[0])
        self.stamp("attn_pub")
        self.emit(rd[k:])
        a(f"s_lshl_b32 {T[6]}, {sRH}, 15", f"s_lshl_b32 {T[3]}, {sR0}, 10", f"s_add_u32 {T[6]}, {T[6]}, {T[3]}",
          f"s_lshl_b32 {T[3]}, {sCB}, 7", f"s_add_u32 {T[6]}, {T[6]}, {T[3]}", f"s_lshl_b32 {T[3]}, {sCH}, 6", f"s_add_u32 {T[6]}, {T[6]}, {T[3]}",
          f"s_add_u32 {T[3]}, {T[6]}, 0x4000")
        for rt in range(2):
            for nt in range(2):
                a(f"buffer_load_dwordx2 {v(self.vXR + 4 * rt + 2 * nt, 2)}, v62, {sX}, {T[6] if rt == 0 else T[3]} offen offset:{32 * nt}")

    def w128_read_base(self, b, n):
        a = self.a
        a(f"v_lshrrev_b32 v64, 4, {vLANE}", f"v_bfe_u32 v65, {vLANE}, 2, 2", f"v_and_b32 v66, 3, {vLANE}",
          "v_lshl_add_u32 v67, v64, 3, v65", "v_lshlrev_b32 v67, 7, v67", "v_lshl_add_u32 v67, v66, 3, v67",
          "v_lshrrev_b32 v65, 1, v65", "v_and_b32 v64, 1, v64", "v_lshl_or_b32 v65, v64, 1, v65",
          f"s_lshl_b32 {T[3]}, {sCH}, 1", f"v_xor_b32 v65, {T[3]}, v65", f"v_lshl_add_u32 v{b}, v65, 5, v67")
        for i in range(1, n): a(f"v_xor_b32 v{b + i}, {32 * i}, v{b}")

    def attn_slow(self):
        a = self.a
        S, OA, NM, QF, KB, VB = self.S, self.OA, self.NM, self.QF, self.KB, self.VB
        a.vm_done = a.vm; a.lg_done = a.lg
        a("L_attn_slow:", "s_nop 15", f"s_lshl_b32 {T[0]}, {sHEAD}, 17", f"s_add_u32 {T[0]}, {T[0]}, {WS_KV}",
          f"v_mov_b32 v8, 0xff800000", f"v_mov_b32 v10, 0xff800000", f"s_mov_b32 {T[1]}, 0")
        def kaddr():
            a(f"s_lshr_b32 {T[2]}, {T[1]}, 1", f"s_lshl_b32 {T[2]}, {T[2]}, 12", f"s_and_b32 {T[3]}, {T[1]}, 1", f"s_lshl_b32 {T[3]}, {T[3]}, 10",
              f"s_add_u32 {T[2]}, {T[2]}, {T[3]}", f"s_add_u32 {T[2]}, {T[2]}, {T[0]}")
        a("L_slow_max:"); kaddr()
        a(f"buffer_load_dwordx4 {v(KB, 4)}, {vL16}, {sWS}, {T[2]} offen sc1"); a.wait(vm=a.vm, force=True)
        for q in range(2):
            a(f"v_mfma_f32_32x32x16_bf16 {v(S + 16 * q, 16)}, {v(KB, 4)}, {v(QF + 4 * q, 4)}, 0")
        for q in range(2):
            b, m = S + 16 * q, 8 + 2 * q
            for k in range(0, 16, 2): a(f"v_max3_f32 v{m}, v{m}, v{b + k}, v{b + k + 1}")
        a(f"s_add_u32 {T[1]}, {T[1]}, 1", f"s_cmp_lt_u32 {T[1]}, 64", "s_cbranch_scc1 L_slow_max")
        a("v_mov_b32 v9, v8", "v_mov_b32 v11, v10")
        for q in range(2): a(f"v_permlane32_swap_b32 v{8 + 2 * q}, v{9 + 2 * q}")
        for q in range(2):
            m = 8 + 2 * q
            a(f"v_max_f32 v{m}, v{m}, v{m + 1}", f"v_sub_f32 v{m}, 0, v{m}")
            for r in range(16): a(f"v_mov_b32 v{NM + 16 * q + r}, v{m}")
        for r in range(OA, OA + 32): a(f"v_mov_b32 v{r}, 0")
        a(f"v_and_b32 v8, 27, {vLANE}", "v_cmp_eq_u32 vcc, 16, v8", f"v_mov_b32 v9, {sONES}", "v_cndmask_b32 v9, v3, v9, vcc")
        for r in range(8): a(f"v_mov_b32 v{VB + r}, v9")
        a(f"v_and_b32 v8, 15, {vLANE}", f"v_lshrrev_b32 v10, 5, {vLANE}", "v_lshl_add_u32 v10, v10, 4, v8", "v_lshlrev_b32 v10, 4, v10",
          f"s_mov_b32 {T[1]}, 0", "s_mov_b32 s60, 0x0000ffff", "s_mov_b32 s61, 0x0000ffff")
        a("L_slow_pv:"); kaddr()
        a(f"buffer_load_dwordx4 {v(KB, 4)}, {vL16}, {sWS}, {T[2]} offen sc1", f"s_add_u32 {T[2]}, {T[2]}, 2048", "s_mov_b64 exec, s[60:61]",
          f"buffer_load_dwordx4 {v(VB, 4)}, v10, {sWS}, {T[2]} offen sc1",
          f"buffer_load_dwordx4 {v(VB + 4, 4)}, v10, {sWS}, {T[2]} offen offset:512 sc1", "s_mov_b64 exec, -1")
        a.wait(vm=a.vm, force=True)
        for q in range(2):
            a(f"v_mfma_f32_32x32x16_bf16 {v(S + 16 * q, 16)}, {v(KB, 4)}, {v(QF + 4 * q, 4)}, {v(NM + 16 * q, 16)}")
        for q in range(2):
            for r in range(16): a(f"v_exp_f32 v{S + 16 * q + r}, v{S + 16 * q + r}")
            for hi in range(2):
                a(f"v_smfmac_f32_32x32x32_bf16 {v(OA + 16 * q, 16)}, {v(VB + 4 * hi, 4)}, {v(S + 16 * q + 8 * hi, 8)}, v{self.vIDX}")
        a(f"s_add_u32 {T[1]}, {T[1]}, 1", f"s_cmp_lt_u32 {T[1]}, 64", "s_nop 15", "s_cbranch_scc1 L_slow_pv", "s_nop 15", "s_branch L_attn_done")

    def rot_table(self, npairs, mul):
        a = self.a
        a(f"s_mul_i32 {sU[4]}, {sCB}, {mul}")

    @staticmethod
    def gpos(p): return LRED + 4096 * p if p < 16 else 4096 * (p - 16)

    def rot_index(self, dst, pos, npairs):
        L = [f"s_add_u32 {dst}, {sU[4]}, {pos}"]
        if npairs & (npairs - 1) == 0: L.append(f"s_and_b32 {dst}, {dst}, {npairs - 1}")
        else: L += [f"s_cmp_ge_u32 {dst}, {npairs}", f"s_cselect_b32 {T[7]}, {npairs}, 0", f"s_sub_u32 {dst}, {dst}, {T[7]}"]
        return L

    def act_dma(self, ws_off, steps, chunks, lds0, gpos=False):
        a = self.a
        a(f"s_lshr_b32 {T[0]}, {sR0}, 4", f"s_add_u32 {T[0]}, {T[0]}, {sW}", f"s_mul_i32 {T[0]}, {T[0]}, {steps * 1024}",
          f"s_add_u32 {sU[0]}, {T[0]}, {ws_off}", f"s_mul_i32 {T[1]}, {sW}, {1024 if gpos else steps * 1024}", f"s_add_u32 {sU[1]}, {T[1]}, {lds0}")
        toks = {}
        def group(c):
            p0 = sum(chunks[:c]); L = []
            for k in range(chunks[c]):
                p = p0 + k
                it = []
                if k % 2 == 0:
                    it += self.rot_index(T[2], p >> 1, steps // 2)
                    it += [f"s_lshl_b32 {T[2]}, {T[2]}, 11", f"s_add_u32 {T[2]}, {T[2]}, {sU[0]}"]
                    if not gpos: it.append(f"s_add_u32 m0, {sU[1]}, {p * 1024}")
                if gpos: it.append(f"s_add_u32 m0, {sU[1]}, {self.gpos(p) - (k % 2) * 1024}")
                it.append(f"buffer_load_dwordx4 {vL16}, {sWS}, {T[2]} offen offset:{(k % 2) * 1024} sc1 lds")
                L.append(it)
            L[-1].append(lambda: toks.__setitem__(c, a.vtok()))
            return L
        return group, toks

    def cluster_flag_off(self, dst, base, own, shift=8):
        a = self.a
        a(f"s_lshl_b32 {dst}, {sCLU}, {shift}", f"s_add_u32 {dst}, {dst}, {base}")
        if own: a(f"s_lshl_b32 {T[7]}, {sCB}, 3", f"s_add_u32 {dst}, {dst}, {T[7]}")

    def stats_publish(self, s, base):
        a = self.a
        a(f"v_permlane32_swap_b32 v{s}, v{s + 1}", f"v_permlane32_swap_b32 v{s + 2}, v{s + 3}",
          f"v_add_f32 v{s}, v{s}, v{s + 1}", f"v_add_f32 v{s + 2}, v{s + 2}, v{s + 3}",
          f"v_permlane16_swap_b32 v{s}, v{s + 2}", f"v_add_f32 v{s}, v{s}, v{s + 2}")
        a(f"s_lshl_b32 {T[4]}, {sCLU}, 13", f"s_add_u32 {T[4]}, {T[4]}, {base}", f"s_lshl_b32 {T[5]}, {sRH}, 7", f"s_add_u32 {T[4]}, {T[4]}, {T[5]}",
          f"s_lshl_b32 {T[5]}, {sCB}, 1", f"s_add_u32 {T[5]}, {T[5]}, {sCH}", f"s_lshl_b32 {T[5]}, {T[5]}, 9", f"s_add_u32 {T[4]}, {T[4]}, {T[5]}",
          f"buffer_store_dword v{s}, v61, {sWS}, {T[4]} offen sc1")

    def stats_load(self, base, r):
        a = self.a
        a(f"s_lshl_b32 {T[4]}, {sCLU}, 13", f"s_add_u32 {T[4]}, {T[4]}, {base}", f"s_lshl_b32 {T[5]}, {sRH}, 7", f"s_add_u32 {T[4]}, {T[4]}, {T[5]}",
          f"s_add_u32 {T[5]}, {T[4]}, 4096")
        for p in range(16):
            a(f"buffer_load_dword v{r + p}, v61, {sWS}, {T[4] if p < 8 else T[5]} offen offset:{(p % 8) * 512} sc1")
        return a.vtok()

    SGR = 64
    def stats_publish_tagged(self, s, base):
        a = self.a
        a(f"v_permlane32_swap_b32 v{s}, v{s + 1}", f"v_permlane32_swap_b32 v{s + 2}, v{s + 3}",
          f"v_add_f32 v{s}, v{s}, v{s + 1}", f"v_add_f32 v{s + 2}, v{s + 2}, v{s + 3}",
          f"v_permlane16_swap_b32 v{s}, v{s + 2}", f"v_add_f32 v{s}, v{s}, v{s + 2}", f"v_mov_b32 v{s + 1}, v{s}",
          f"v_mov_b32 v{s + 2}, v4", f"v_mov_b32 v{s + 3}, v5", f"v_permlane32_swap_b32 v{s}, v{s + 1}")
        a(f"s_lshl_b32 {T[4]}, {sCLU}, 14", f"s_add_u32 {T[4]}, {T[4]}, {base}", f"s_lshl_b32 {T[5]}, {sRH}, 13", f"s_add_u32 {T[4]}, {T[4]}, {T[5]}",
          f"s_lshl_b32 {T[5]}, {sCB}, 1", f"s_add_u32 {T[5]}, {T[5]}, {sCH}", f"s_lshl_b32 {T[5]}, {T[5]}, 9", f"s_add_u32 {T[4]}, {T[4]}, {T[5]}",
          "s_mov_b32 exec_hi, 0", f"buffer_store_dwordx4 {v(s, 4)}, {vL16}, {sWS}, {T[4]} offen sc1", "s_mov_b32 exec_hi, -1")

    def stats_tagged_loads(self, base, r):
        L = [[f"buffer_load_dwordx4 {v(r + 4 * p, 4)}, v61, {sWS}, {sU[3]} offen offset:{512 * p} sc1"] for p in range(8)]
        L[0] = [f"s_lshl_b32 {sU[3]}, {sCLU}, 14", f"s_add_u32 {sU[3]}, {sU[3]}, {base}", f"s_lshl_b32 {T[5]}, {sRH}, 13", f"s_add_u32 {sU[3]}, {sU[3]}, {T[5]}",
                f"v_and_b32 v61, 31, {vLANE}", "v_lshlrev_b32 v61, 4, v61", f"v_lshrrev_b32 v54, 5, {vLANE}", "v_lshl_add_u32 v61, v54, 12, v61"] + L[0]
        return L

    def stats_tagged_finish(self, base, r, inv_n, d):
        a = self.a
        L, E = a.label("st_retry"), a.label("st_ok")
        a(f"s_mov_b32 {sPOLL}, 0x40000", f"{L}:")
        a.wait(vm=a.vm, force=True)
        a(f"v_cmp_ne_u64 s[60:61], {sTAG}, {v(r + 2, 2)}")
        for p in range(1, 8): a(f"v_cmp_ne_u64 vcc, {sTAG}, {v(r + 4 * p + 2, 2)}", "s_or_b64 s[60:61], s[60:61], vcc")
        a("s_cmp_eq_u64 s[60:61], 0", f"s_cbranch_scc1 {E}", f"s_sub_u32 {sPOLL}, {sPOLL}, 1", f"s_cbranch_scc1 {E}")
        for it in self.stats_tagged_loads(base, r)[0][-1:]: a(it)
        for it in self.stats_tagged_loads(base, r)[1:]: self.emit(it)
        a(f"s_branch {L}", f"{E}:")
        a.vm_done = a.vm
        for st in (16, 8, 4):
            for k in range(0, st, 4): a(f"v_pk_add_f32 {v(r + k, 2)}, {v(r + k, 2)}, {v(r + st + k, 2)}")
        a(f"v_mov_b32 v{r + 2}, v{r}", f"v_mov_b32 v{r + 3}, v{r + 1}",
          f"v_permlane32_swap_b32 v{r}, v{r + 2}", f"v_permlane32_swap_b32 v{r + 1}, v{r + 3}",
          f"v_pk_add_f32 {v(r, 2)}, {v(r, 2)}, {v(r + 2, 2)}")
        self.ln_finish([(r, r + 1, d)], inv_n)
        a(f"v_mov_b32 v{d + 2}, v{d}", f"v_mov_b32 v{d + 3}, v{d + 1}",
          f"v_permlane16_swap_b32 v{d}, v{d + 2}", f"v_permlane16_swap_b32 v{d + 1}, v{d + 3}")

    STR = 216
    def stats_load_items(self, base, r):
        L = []
        for p in range(16):
            it = []
            if p == 0:
                it += [f"s_lshl_b32 {T[4]}, {sCLU}, 13", f"s_add_u32 {T[4]}, {T[4]}, {base}", f"s_lshl_b32 {T[5]}, {sRH}, 7",
                       f"s_add_u32 {T[4]}, {T[4]}, {T[5]}", f"s_add_u32 {T[5]}, {T[4]}, 4096"]
            it.append(f"buffer_load_dword v{r + p}, v61, {sWS}, {T[4] if p < 8 else T[5]} offen offset:{(p % 8) * 512} sc1")
            L.append(it)
        return L

    def stats_finish(self, r, inv_n, d):
        a = self.a
        for st in (8, 4, 2):
            for k in range(0, st, 2): a(f"v_pk_add_f32 {v(r + k, 2)}, {v(r + k, 2)}, {v(r + st + k, 2)}")
        a(f"v_add_f32 v{r}, v{r}, v{r + 1}", f"v_mov_b32 v{r + 1}, v{r}", f"v_permlane32_swap_b32 v{r}, v{r + 1}")
        self.ln_finish([(r, r + 1, d)], inv_n)
        a(f"v_mov_b32 v{d + 2}, v{d}", f"v_mov_b32 v{d + 3}, v{d + 1}",
          f"v_permlane16_swap_b32 v{d}, v{d + 2}", f"v_permlane16_swap_b32 v{d + 1}, v{d + 3}")

    def win_addresses(self):
        a = self.a
        for i in range(3):
            a(f"v_add_u32 v16, {64 * i}, {vLANE}", "v_mul_u32_u24 v17, 171, v16", "v_lshrrev_b32 v17, 11, v17",
              "v_mul_u32_u24 v18, 12, v17", "v_sub_u32 v18, v16, v18", "v_bfe_u32 v19, v17, 3, 1", "v_lshlrev_b32 v19, 1, v19",
              "v_xor_b32 v18, v18, v19", "v_mul_u32_u24 v17, 2752, v17", "v_lshl_add_u32 v17, v18, 4, v17",
              f"v_add_u32 v{56 + i}, {-1024 * i}, v17")
        a(f"v_lshrrev_b32 v16, 4, {vLANE}", f"v_bfe_u32 v17, {vLANE}, 2, 2", f"v_and_b32 v18, 3, {vLANE}",
          "v_lshl_add_u32 v19, v16, 3, v17", "v_mul_u32_u24 v19, 192, v19", "v_lshl_add_u32 v19, v18, 3, v19",
          "v_and_b32 v17, 1, v16", f"v_xor_b32 v17, {sCH}, v17", "v_lshl_add_u32 v59, v17, 5, v19", "v_add_u32 v60, 49152, v59",
          f"v_and_b32 v17, 15, {vLANE}", "v_lshlrev_b32 v17, 2, v17", "v_and_b32 v18, 1, v16", "v_lshl_add_u32 v17, v18, 6, v17",
          "v_lshrrev_b32 v16, 1, v16", "v_lshl_add_u32 v61, v16, 8, v17")

    def win_dma(self, half, g0, per_wave, regs=None, wave=sW):
        r5, r6, r2, r7 = regs or (sU[5], sU[6], sU[2], sU[7])
        L = []
        for k in range(per_wave):
            for i in range(3):
                it = []
                if k == 0 and i == 0:
                    it += [f"s_lshl_b32 {r5}, {sT0}, 5", f"s_mul_i32 {r6}, {wave}, {per_wave}", f"s_lshl_b32 {r2}, {sU[4]}, 2",
                           f"s_add_u32 {r2}, {r2}, {r6}", f"s_mul_i32 {r6}, {r6}, 3072"]
                if i == 0:
                    it += [f"s_add_u32 {r7}, {r2}, {g0 + k}", f"s_and_b32 {r7}, {r7}, 31", f"s_mul_i32 {r7}, {r7}, {16 * 2752}",
                           f"s_add_u32 {r7}, {r7}, {r5}"]
                    if half: it.append(f"s_add_u32 {r7}, {r7}, 1376")
                    it.append(f"s_add_u32 m0, {r6}, {(g0 + k) * 3072}")
                it.append(f"buffer_load_dwordx4 v{56 + i}, {sWIN}, {r7} offen offset:{1024 * i} lds")
                L.append(it)
        return L

    def kloop(self, n, reads, mfmas, before={}, late={}, head=None, per=2):
        a = self.a
        tok = {}
        for s in range(min(2, n)):
            if s in (head or {}): head[s]()
            self.emit(reads(s)); tok[s] = a.ltok()
        for s in range(n):
            a.wait(lg=tok[s])
            if s in before: before[s]()
            ms = mfmas(s)
            fill = list(reads(s + 2)) + [lambda s=s: tok.__setitem__(s + 2, a.ltok())] if s + 2 < n else []
            lt = list(late.get(s, []))
            k = len(ms) - len(lt)
            assert k >= 1, (s, len(ms), len(lt))
            interleave(a, ms[:k], fill, per=per)
            for m, it in zip(ms[k:], lt):
                a(m); self.emit(it)

    def emit_all(self, items):
        for it in items: self.emit(it)

    def emit(self, items):
        for x in items: x() if callable(x) else self.a(x)

    def phase_wo(self):
        a = self.a
        ACC = 192
        a(f"s_mov_b32 {sU[4]}, {sCB if not self.opt.get('noarot') else 0}")
        group, toks = self.act_dma(WS_O, 16, [4, 4, 4, 4], LB)
        self.cluster_flag_off(T[3], WS_F2, False, 12)
        a(f"s_lshl_b32 {T[4]}, {sRH}, 15", f"s_add_u32 {T[4]}, {T[4]}, {LB}", f"v_add_u32 v30, {T[4]}, {vL16}")
        a.wait(lg=a.lg)
        self.barrier()
        n2 = 3
        Lp, Le = a.label("s2poll"), a.label("s2end")
        done = a.vm_done
        a(f"s_cmp_eq_u32 {sW}, 0", f"s_cbranch_scc1 {Lp}", f"s_sub_u32 {T[5]}, {sW}, 1")
        self.emit_all(self.win_dma(1, 0, 4, wave=T[5]))
        a(f"s_branch {Le}", f"{Lp}:")
        self.poll(vFP32, T[3], 52)
        a(f"{Le}:")
        a.vm_done = done
        self.barrier()
        self.stamp("s2")
        for c in range(2): self.emit_all(group(c))
        def buf(s, rt): return (208 + (s % 4) * 8 + rt * 4)
        def reads(s): return [f"ds_read_b128 {v(buf(s, rt), 4)}, v30 offset:{(rt * 16 + s) * 1024}" for rt in range(2)]
        def mfmas(s):
            return [mfma16(ACC + (rt * 2 + nt) * 4, v(64 + (nt * 16 + s) * 4, 4), v(buf(s, rt), 4), "0" if s == 0 else None) for rt in range(2) for nt in range(2)]
        def w(c):
            def f():
                a.wait(vm=toks[c]); self.barrier()
            return f
        def head0():
            a.wait(vm=toks[0], lg=a.lg); self.barrier()
        g2, g3 = group(2), group(3)
        w2 = self.win_dma(1, 4 * n2, 7 - n2)
        late = {0: g2[:2], 1: g2[2:], 2: g3[:2], 3: g3[2:]}
        for i in range(min(len(w2), self.opt.get("w2in", 9))): late[5 + i] = [w2.pop(0)]
        self.kloop(16, reads, mfmas, {2: w(1), 6: w(2), 10: w(3)}, late, {0: head0}, per=1)
        self.w2rest = w2
        self.stamp("wo_gemm")
        XR = self.vXR
        for i in range(4):
            for k in range(2):
                a(f"v_lshlrev_b32 v{32 + 4 * i + 2 * k}, 16, v{XR + 2 * i + k}", f"v_and_b32 v{33 + 4 * i + 2 * k}, {sHIMASK}, v{XR + 2 * i + k}")
        for i in range(4):
            for k in range(2): a(f"v_pk_add_f32 {v(ACC + 4 * i + 2 * k, 2)}, {v(ACC + 4 * i + 2 * k, 2)}, {v(32 + 4 * i + 2 * k, 2)}")
        for i in range(4):
            for k in range(2): a(f"v_cvt_pk_bf16_f32 v{vH + 2 * i + k}, v{ACC + 4 * i + 2 * k}, v{ACC + 4 * i + 2 * k + 1}")
        a(f"s_lshr_b32 {T[0]}, {sR0}, 4", f"s_lshl_b32 {T[1]}, {sRH}, 1", f"s_add_u32 {T[0]}, {T[0]}, {T[1]}", f"s_lshl_b32 {T[0]}, {T[0]}, 14",
          f"s_lshl_b32 {T[1]}, {sCB}, 1", f"s_add_u32 {T[1]}, {T[1]}, {sCH}", f"s_lshl_b32 {T[1]}, {T[1]}, 10", f"s_add_u32 {T[0]}, {T[0]}, {T[1]}",
          f"s_add_u32 {T[0]}, {T[0]}, {WS_H}", f"s_add_u32 {T[1]}, {T[0]}, 0x4000")
        for rt in range(2):
            for nt in range(2):
                a(f"buffer_store_dwordx2 {v(vH + 4 * rt + 2 * nt, 2)}, {vPAT}, {sWS}, {T[rt]} offen offset:{512 * nt} sc1")
        for k in range(4):
            for rt in range(2):
                h = f"v{vH + 4 * rt + k}"
                a(f"v_dot2_f32_bf16 v{32 + 2 * rt}, {h}, {sONES}, {'0' if k == 0 else 'v%d' % (32 + 2 * rt)}",
                  f"v_dot2_f32_bf16 v{33 + 2 * rt}, {h}, {h}, {'0' if k == 0 else 'v%d' % (33 + 2 * rt)}")
        self.stats_publish(32, WS_ST3)
        self.cluster_flag_off(T[0], WS_F3, True)
        self.flag_store_wg(T[0])
        self.stamp("wo_pub")

    HF, ACC2, ACC1, WB, CS = 64, 192, 216, 28, 240

    def win_reads(self, s, read_h):
        L = []
        base = "v59" if s < 8 else "v60"
        for m in range(3):
            for hf in range(2):
                L.append(f"ds_read_b64_tr_b16 {v(self.wbuf(s) + 4 * m + 2 * hf, 2)}, {base} offset:{(s & 7) * 6144 + hf * 768 + m * 64}")
            if m == 0 and read_h:
                L += [f"ds_read_b128 {v(self.HF + (rt * 16 + s) * 4, 4)}, v55 offset:{(rt * 16 + s) * 1024}" for rt in range(2)]
        return L

    def wbuf(self, s): return (28, 40, 16)[s % 3]

    def win_gemm(self, acc, before, head, read_h, late={}):
        HF = self.HF
        def mfmas(s):
            return [mfma16(acc + (rt * 3 + m) * 4, v(self.wbuf(s) + 4 * m, 4), v(HF + (rt * 16 + s) * 4, 4), "0" if s == 0 else None)
                    for m in range(3) for rt in range(2)]
        self.kloop(16, lambda s: self.win_reads(s, read_h), mfmas, before, late, head)

    def colsum_pass(self, late={}):
        def mfmas(s): return [mfma16(self.CS + 4 * m, v(self.wbuf(s) + 4 * m, 4), "v[252:255]", "0" if s == 0 else None) for m in range(3)]
        self.kloop(16, lambda s: self.win_reads(s, False), mfmas, {}, late, per=3)

    def gelu_block(self, acc, st, tiles):
        a = self.a
        CS = self.CS
        K1 = -2.0 * 1.4426950408889634 * 0.7978845608028654
        K2 = K1 * 0.044715
        a(f"s_mov_b32 s60, {f2u(K2)}", f"s_mov_b32 s61, {f2u(K2)}", f"v_mov_b32 v52, {f2u(K1)}", f"v_mov_b32 v53, {f2u(K1)}")
        for i in range(0, len(tiles), 2):
            prs = [(acc + (rt * 3 + m) * 4 + 2 * k, CS + 4 * m + 2 * k, st + 2 * rt) for rt, m in tiles[i:i + 2] for k in range(2)]
            tm = [40, 42, 44, 46]
            for (x, c, r), t in zip(prs, tm): a(f"v_pk_mul_f32 {v(t, 2)}, {v(c, 2)}, {v(r, 2)} op_sel:[0,1] op_sel_hi:[1,1]")
            for (x, c, r), t in zip(prs, tm): a(f"v_pk_fma_f32 {v(x, 2)}, {v(x, 2)}, {v(r, 2)}, {v(t, 2)} op_sel:[0,0,0] op_sel_hi:[1,0,1]")
            for (x, c, r), t in zip(prs, tm): a(f"v_pk_mul_f32 {v(t, 2)}, {v(x, 2)}, {v(x, 2)}")
            for (x, c, r), t in zip(prs, tm): a(f"v_pk_fma_f32 {v(t, 2)}, {v(t, 2)}, s[60:61], v[52:53]")
            for (x, c, r), t in zip(prs, tm): a(f"v_pk_mul_f32 {v(t, 2)}, {v(t, 2)}, {v(x, 2)}")
            for k in range(8): a(f"v_exp_f32 v{40 + k}, v{40 + k}")
            for (x, c, r), t in zip(prs, tm): a(f"v_pk_add_f32 {v(t, 2)}, {v(t, 2)}, v[32:33]")
            for k in range(8): a(f"v_rcp_f32 v{40 + k}, v{40 + k}")
            for (x, c, r), t in zip(prs, tm): a(f"v_pk_mul_f32 {v(x, 2)}, {v(x, 2)}, {v(t, 2)}")

    def phase_win(self):
        a = self.a
        HF, ACC2, ACC1, CS = self.HF, self.ACC2, self.ACC1, self.CS
        self.emit_all(self.w2rest)
        for r in range(252, 256): a(f"v_mov_b32 v{r}, {sONES}")
        a(f"s_lshl_b32 {T[4]}, {sRH}, 15", f"s_add_u32 {T[4]}, {T[4]}, {LB}", f"v_add_u32 v55, {T[4]}, {vL16}")
        group, toks = self.act_dma(WS_H, 16, [4, 4, 4, 4], LB)
        self.cluster_flag_off(T[3], WS_F3, False)
        a.wait(vm=a.vm)
        self.barrier()
        ptok = [0]
        self.colsum_pass({self.opt.get("p3at", 12): [self.poll_early(vFP8, T[3], 52) + [lambda: ptok.__setitem__(0, a.vtok())]]})
        self.stamp("cs2")
        self.poll_late(vFP8, T[3], 52, ptok[0])
        self.stamp("s3")
        for c in range(2): self.emit_all(group(c))
        def w(c):
            def f():
                a.wait(vm=toks[c]); self.barrier()
            return f
        g2, g3 = group(2), group(3)
        stl = self.stats_load_items(WS_ST3, self.STR)
        late = {0: g2[:2], 1: g2[2:], 2: g3[:2], 3: g3[2:]}
        for i in range(4): late[4 + i] = stl[4 * i:4 * i + 4]
        w1a = self.win_dma(0, 0, 3)
        for i in range(8): late[8 + i] = w1a[i:i + 1] if i < 7 else w1a[7:]
        stk = [0]
        late[7][-1].append(lambda: stk.__setitem__(0, a.vtok()))
        self.win_gemm(ACC2, {2: w(1), 6: w(2), 10: w(3)}, {0: w(0)}, True, late)
        stok = stk[0]
        self.barrier()
        self.stamp("z2_gemm")
        w1tok = [a.vtok(), 0, 0]
        wb, wc = self.win_dma(0, 12, 3), self.win_dma(0, 24, 2)
        wb[-1].append(lambda: w1tok.__setitem__(1, a.vtok())); wc[-1].append(lambda: w1tok.__setitem__(2, a.vtok()))
        rest = wb + wc
        k = self.opt.get("w1pre", 6)
        a.wait(vm=stok)
        self.emit_all(rest[:k]); rest = rest[k:]
        self.stats_finish(self.STR, 1.0 / 512, 34)
        a("v_mov_b32 v32, 1.0", "v_mov_b32 v33, 1.0")
        T5 = [(0, 0), (1, 0), (0, 1), (1, 1)]
        self.gelu_block(ACC2, 34, T5 + [(0, 2), (1, 2)])
        for rt in range(2):
            x = ACC2 + rt * 12
            a(f"v_pk_add_f32 {v(40 + 4 * rt, 2)}, {v(x, 2)}, {v(x + 2, 2)}", f"v_pk_mul_f32 {v(42 + 4 * rt, 2)}, {v(x, 2)}, {v(x, 2)}")
            a(f"v_pk_fma_f32 {v(42 + 4 * rt, 2)}, {v(x + 2, 2)}, {v(x + 2, 2)}, {v(42 + 4 * rt, 2)}")
            for k in (4, 6):
                a(f"v_pk_add_f32 {v(40 + 4 * rt, 2)}, {v(40 + 4 * rt, 2)}, {v(x + k, 2)}",
                  f"v_pk_fma_f32 {v(42 + 4 * rt, 2)}, {v(x + k, 2)}, {v(x + k, 2)}, {v(42 + 4 * rt, 2)}")
        a(f"s_and_b32 {sU[8]}, {sCNT5}, {sCH}", f"s_cmp_lg_u32 {sU[8]}, 0", "s_cbranch_scc1 L_skip_st")
        for rt in range(2):
            x = ACC2 + rt * 12
            for k in (8, 10):
                a(f"v_pk_add_f32 {v(40 + 4 * rt, 2)}, {v(40 + 4 * rt, 2)}, {v(x + k, 2)}",
                  f"v_pk_fma_f32 {v(42 + 4 * rt, 2)}, {v(x + k, 2)}, {v(x + k, 2)}, {v(42 + 4 * rt, 2)}")
        a("L_skip_st:", "v_add_f32 v48, v40, v41", "v_add_f32 v49, v42, v43", "v_add_f32 v50, v44, v45", "v_add_f32 v51, v46, v47")
        self.stats_publish_tagged(48, WS_ST4)
        self.stamp("z2_pub")
        a("v_mov_b32 v52, v34", "v_mov_b32 v53, v35", "v_mov_b32 v62, v36", "v_mov_b32 v63, v37")
        def w1(c):
            def f():
                a.wait(vm=w1tok[c]); self.barrier()
            return f
        late = {i: rest[2 * i:2 * i + 2] for i in range((len(rest) + 1) // 2)}
        sl = self.stats_tagged_loads(WS_ST4, self.SGR)
        for i in range(4): late[12 + i] = sl[2 * i:2 * i + 2]
        self.win_gemm(ACC1, {4: w1(1), 10: w1(2)}, {0: w1(0)}, False, late)
        self.stamp("z1_gemm")
        a(f"v_and_b32 v20, 15, {vLANE}", f"v_lshrrev_b32 v21, 4, {vLANE}", "v_lshlrev_b32 v21, 2, v21", "v_sub_u32 v20, v20, v21",
          "v_mov_b32 v21, 0x3f80", "v_mov_b32 v22, 0x3f800000")
        for k, (r, c) in enumerate(((24, 21), (24, 22), (25, 21), (25, 22))):
            a(f"v_cmp_eq_u32 vcc, {k}, v20")
            if k & 1 == 0: a(f"v_cndmask_b32 v{r}, v3, v{c}, vcc")
            else: a(f"v_cndmask_b32 v{r}, v{r}, v{c}, vcc")
        self.stats_tagged_finish(WS_ST4, self.SGR, 1.0 / 688, 20)
        self.stamp("s4")
        a(f"s_add_u32 {T[0]}, {sT0}, {sCH}", f"s_lshl_b32 {T[0]}, {T[0]}, 16", f"s_lshl_b32 {T[1]}, {sR0}, 5", f"s_add_u32 {T[0]}, {T[0]}, {T[1]}",
          f"s_lshl_b32 {T[1]}, {sRH}, 10", f"s_add_u32 {T[0]}, {T[0]}, {T[1]}", f"s_add_u32 {sU[9]}, {T[0]}, {WS_Z}",
          f"s_add_u32 {sU[10]}, {sU[9]}, 0x20000", f"s_add_u32 {sU[11]}, {sU[9]}, 0x40000")
        def znorm(m):
            for rt in range(2):
                x = ACC2 + (rt * 3 + m) * 4
                for k in range(2):
                    a(f"v_pk_fma_f32 {v(x + 2 * k, 2)}, {v(x + 2 * k, 2)}, {v(20 + 2 * rt, 2)}, {v(20 + 2 * rt, 2)} op_sel:[0,0,1] op_sel_hi:[1,0,1]")
            for rt in range(2):
                x = ACC2 + (rt * 3 + m) * 4
                for k in range(2): a(f"v_cvt_pk_bf16_f32 v{x + k}, v{x + 2 * k}, v{x + 2 * k + 1}")
            for rt in range(2):
                x = ACC2 + (rt * 3 + m) * 4
                a(f"v_mfma_f32_16x16x16_bf16 {v(28 + 8 * (m & 1) + 4 * rt, 4)}, {v(x, 2)}, v[24:25], 0")
        def zstore(m):
            for rt in range(2):
                d = 28 + 8 * (m & 1) + 4 * rt
                a(f"v_cvt_pk_bf16_f32 v{d}, v{d}, v{d + 1}", f"v_cvt_pk_bf16_f32 v{d + 1}, v{d + 2}, v{d + 3}",
                  f"buffer_store_dwordx2 {v(d, 2)}, {vPAT}, {sWS}, {sU[9 + m]} offen offset:{512 * rt} sc1")
        znorm(0); znorm(1); zstore(0)
        a(f"s_cmp_lg_u32 {sU[8]}, 0", "s_cbranch_scc1 L_skip_z")
        znorm(2); a("s_nop 7"); zstore(2)
        a("L_skip_z:", "s_nop 7")
        zstore(1)
        a(f"s_lshl_b32 {T[0]}, {sRB}, 3", f"s_add_u32 {T[0]}, {T[0]}, {sCB}", f"s_lshl_b32 {T[0]}, {T[0]}, 8",
          f"s_lshl_b32 {T[1]}, {sJ}, 3", f"s_add_u32 {T[0]}, {T[0]}, {T[1]}", f"s_add_u32 {T[0]}, {T[0]}, {WS_F5}")
        self.flag_store_wg(T[0])
        self.stamp("z2n_pub")
        a("v_mov_b32 v54, v52", "v_mov_b32 v55, v53")
        self.w128_addresses(self.vWDo, 64)
        wo1 = []
        for g in range(4):
            pre, ins = self.w128_dma(self.vWDo, sWOUT, T[3], T[5], 22)
            pre = [f"s_lshl_b32 {T[3]}, {sW}, 2", f"s_add_u32 {T[3]}, {T[3]}, {g}", f"s_lshl_b32 {T[5]}, {T[3]}, 12", f"s_add_u32 {T[5]}, {T[5]}, {LB}"] + pre
            wo1 += [pre + [ins[0]], [ins[1]], [ins[2]], [ins[3]]]
        self.colsum_pass({i: [wo1[i]] for i in range(16)})
        self.barrier()
        for g in range(2):
            pre, ins = self.w128_dma(self.vWDo, sWOUT, T[3], T[5], 22)
            if g == 1: a(f"s_cmp_ge_u32 {sW}, 2", "s_cbranch_scc1 L_skip_wout")
            a(f"s_add_u32 {T[3]}, {sW}, {16 + 4 * g}", f"s_lshl_b32 {T[5]}, {sW}, 12", f"s_add_u32 {T[5]}, {T[5]}, {LA + 4 * g * 4096}", *pre, *ins)
        a("L_skip_wout:")
        a("v_mov_b32 v34, v54", "v_mov_b32 v35, v55", "v_mov_b32 v36, v62", "v_mov_b32 v37, v63")
        a(f"s_lshl_b32 {T[0]}, {sRH}, 5", f"s_add_u32 {T[0]}, {T[0]}, {sR0}", f"s_lshl_b32 {T[0]}, {T[0]}, 1",
          f"v_and_b32 v20, 15, {vLANE}", "v_lshlrev_b32 v20, 1, v20",
          f"buffer_load_ushort v62, v20, {sBSP}, {T[0]} offen", f"buffer_load_ushort v63, v20, {sBSP}, {T[0]} offen offset:32")
        a("v_mov_b32 v32, 1.0", "v_mov_b32 v33, 1.0")
        self.wsp_setup()
        self.gelu_block(ACC1, 34, T5[:4])
        self.emit(self.poll_early(vFP8, T[3], 38)); self.p5tok = a.vtok()
        self.gelu_block(ACC1, 34, [(0, 2), (1, 2)])
        for i in range(6):
            for k in range(2): a(f"v_cvt_pk_bf16_f32 v{vZ1 + 2 * i + k}, v{ACC1 + 4 * i + 2 * k}, v{ACC1 + 4 * i + 2 * k + 1}")
        self.stamp("z1_epi")

    vWDo = 72

    def wsp_setup(self):
        a = self.a
        a(f"s_lshl_b32 {T[3]}, {sW}, 3", f"s_add_u32 {T[3]}, {T[3]}, {sCB}", f"s_lshl_b32 {T[3]}, {T[3]}, 8", f"s_add_u32 {T[3]}, {T[3]}, {WS_F5}",
          f"s_lshl_b32 {T[0]}, {sT0}, 16", f"s_lshl_b32 {T[1]}, {sW}, 11", f"s_add_u32 {T[0]}, {T[0]}, {T[1]}", f"s_add_u32 {T[0]}, {T[0]}, {WS_Z}")
        for t in range(8):
            a(f"s_add_u32 {T[1]}, {sSPR}, {t if not self.opt.get('zlocal') else 0}", f"s_and_b32 {T[1]}, {T[1]}, 7", f"s_lshl_b32 {T[1]}, {T[1]}, 13", f"s_add_u32 {sROT[t]}, {T[1]}, {T[0]}")
        a(f"v_add_u32 v60, 0x10000, {vL16}",
          f"s_lshl_b32 {T[1]}, {sW}, 13", f"s_add_u32 {T[1]}, {T[1]}, {LRED}", f"v_add_u32 v54, {T[1]}, {vL16}",
          f"s_lshl_b32 {T[1]}, {sCH}, 12", f"s_lshl_b32 {T[2]}, {sRH}, 11", f"s_add_u32 {T[1]}, {T[1]}, {T[2]}", f"s_add_u32 {T[1]}, {T[1]}, {LRED}",
          f"v_add_u32 v55, {T[1]}, {vL16}")
        a(f"s_lshr_b32 {T[1]}, {sR0}, 4", f"s_lshl_b32 {T[2]}, {sRH}, 1", f"s_add_u32 {T[1]}, {T[1]}, {T[2]}", f"s_mul_i32 {T[1]}, {T[1]}, {22 * 1024}",
          f"s_add_u32 {T[2]}, {sT0}, {sCH}", f"s_lshl_b32 {T[2]}, {T[2]}, 9", f"s_add_u32 {T[1]}, {T[1]}, {T[2]}", f"s_add_u32 {sU[9]}, {T[1]}, {WS_G}",
          f"s_add_u32 {sU[10]}, {sU[9]}, {22 * 1024}")

    def phase_wsp(self):
        a = self.a
        BUF, ACC, RED = 64, 192, 28
        self.poll_late(vFP8, T[3], 38, self.p5tok, wg=False)
        self.stamp("s5")
        a("v_lshlrev_b32 v62, 16, v62", "v_lshlrev_b32 v63, 16, v63")
        tok = {}
        def loads(p, u):
            t, sub = u >> 1, u & 1
            L = []
            if sub == 0: L.append(f"s_add_u32 {T[0]}, {sROT[t]}, {p * 0x20000}")
            for f in range(2):
                L.append(f"buffer_load_dwordx4 {v(BUF + (2 * u + f) * 4, 4)}, {vL16 if f == 0 else 'v60'}, {sWS}, {T[0]} offen offset:{1024 * sub} sc1")
            L.append(lambda: tok.__setitem__((p, u), a.vtok()))
            return L
        D = self.opt.get("wd", 5)
        seq = [(p, u) for p in range(3) for u in range(16)]
        for p, u in seq[:D]: self.emit(loads(p, u))
        def red_write(p):
            A = ACC + 32 * (p & 1)
            return [f"ds_write_b128 v54, {v(A + 4 * i, 4)} offset:{(p & 1) * 32768 + i * 1024}" for i in range(8)]
        def red_read(p):
            return [f"ds_read_b128 {v(RED + (sw * 2 + rt) * 4, 4)}, v55 offset:{(p & 1) * 32768 + sw * 8192 + rt * 1024}" for sw in range(3) for rt in range(2)]
        def red_read2(p):
            return [f"ds_read_b128 {v(ACC + 32 * (p & 1) + rt * 4, 4)}, v55 offset:{(p & 1) * 32768 + 3 * 8192 + rt * 1024}" for rt in range(2)]
        def gate(p):
            L = []
            A = ACC + 32 * (p & 1)
            for o in range(8): L.append(f"v_add_f32 v{A + o}, v{A + o}, v{RED + o}")
            for o in range(8): L.append(f"v_add_f32 v{RED + 8 + o}, v{RED + 8 + o}, v{RED + 16 + o}")
            for o in range(8): L.append(f"v_add_f32 v{A + o}, v{A + o}, v{62 + (o >> 2)}")
            for o in range(8):
                z = vZ1 + ((o >> 2) * 3 + p) * 2 + ((o >> 1) & 1)
                L.append(f"v_and_b32 v{RED + o}, {sHIMASK}, v{z}" if o & 1 else f"v_lshlrev_b32 v{RED + o}, 16, v{z}")
            for o in range(8): L.append(f"v_add_f32 v{A + o}, v{A + o}, v{RED + 8 + o}")
            for o in range(8): L.append(f"v_mul_f32 v{A + o}, v{A + o}, v{RED + o}")
            for o in range(4): L.append(f"v_cvt_pk_bf16_f32 v{RED + o}, v{A + 2 * o}, v{A + 2 * o + 1}")
            return L
        def gstore(p):
            L = []
            if p == 2:
                sk, zr = a.label("gskip"), a.label("gstore")
                L.append(lambda: a(f"s_cmp_eq_u32 {sU[8]}, 0", f"s_cbranch_scc1 {zr}", f"s_cmp_eq_u32 {sCB}, 7", f"s_cbranch_scc0 {sk}",
                                   *[f"v_mov_b32 v{RED + k}, 0" for k in range(4)], f"{zr}:"))
            L += [f"buffer_store_dwordx2 {v(RED + 2 * rt, 2)}, {vPAT}, {sWS}, {sU[9 + rt]} offen offset:{1024 * p} sc1" for rt in range(2)]
            if p == 2: L.append(lambda: a(f"{sk}:"))
            return L
        for p in range(3):
            A = ACC + 32 * (p & 1)
            for u in range(16):
                if not self.opt.get("w_nowait"): a.wait(vm=tok[(p, u)])
                if u == 0: self.stamp(f"wsp_p{p}")
                ms = []
                for f in range(2):
                    for tt in range(4):
                        ms.append(mfma16(A + (f * 4 + tt) * 4, v(BUF + (2 * u + f) * 4, 4), ar((u * 4 + tt) * 4, 4), "0" if u == 0 else None))
                fill = []
                if p > 0 and not self.opt.get("w_nofill"):
                    q = p - 1
                    if 1 <= u <= 4: fill += red_write(q)[(u - 1) * 2:(u - 1) * 2 + 2]
                    if u == 5: fill += [lambda: a.wait(lg=a.lg), "s_barrier"]
                    if u == 6: fill += red_read(q) + red_read2(q)
                    if u == 8: fill += [lambda: a.wait(lg=a.lg)]
                    if 8 <= u <= 14:
                        g = gate(q); fill += g[(u - 8) * 8:(u - 8) * 8 + 8]
                    if u == 15: fill += gstore(q)
                nx = p * 16 + u + D
                ld = loads(*seq[nx]) if nx < 48 else []
                if self.opt.get("w_noload"): ld = ld[-1:]
                interleave(a, ms[:6], fill, per=2, start=1)
                a(ms[6]); self.emit(ld[:-2])
                a(ms[7]); self.emit(ld[-2:])
        self.stamp("wsp_gemm")
        self.emit(red_write(2))
        a.wait(lg=a.lg)
        self.barrier()
        self.emit(red_read(2) + red_read2(2))
        self.w128_read_base(56, 2)
        a(f"v_add_u32 v58, {LB}, v56", f"v_add_u32 v59, {LB}, v57")
        a.wait(lg=a.lg)
        self.emit(gate(2))
        self.emit(gstore(2))
        rd = [f"ds_read_b64_tr_b16 {ar((nt * 22 + p) * 4 + 2 * hf, 2)}, v{56 + nt + (2 if p < 16 else 0)} offset:{(p & 15) * 4096 + hf * 512}"
              for p in list(range(16, 22)) + list(range(16)) for nt in range(2) for hf in range(2)]
        self.cluster_flag_off(T[0], WS_F6, True)
        self.emit(rd[:24])
        a.wait(lg=a.lg)
        self.flag_store_wg(T[0])
        self.wout_rd = rd[24:]
        self.stamp("g_pub")

    def phase_wout(self):
        a = self.a
        ACC = 192
        self.cluster_flag_off(T[3], WS_F6, False)
        a(f"s_lshl_b32 {T[4]}, {sRH}, 11", f"v_add_u32 v31, {T[4]}, {vL16}", f"v_add_u32 v30, {LRED}, v31")
        chunks = [4, 4, 6, 8]
        group, toks = self.act_dma(WS_G, 22, chunks, LA, gpos=True)
        self.emit(self.wout_rd[:32])
        self.emit(self.poll_early(vFP8, T[3], 36)); ptok = a.vtok()
        self.emit(self.wout_rd[32:])
        self.poll_late(vFP8, T[3], 36, ptok)
        self.stamp("s6")
        for c in range(2): self.emit_all(group(c))
        a(f"v_and_b32 v32, 15, {vLANE}", f"v_lshrrev_b32 v33, 4, {vLANE}", "v_lshlrev_b32 v32, 10, v32",
          "v_and_b32 v34, 1, v33", "v_lshl_add_u32 v32, v34, 5, v32", "v_lshrrev_b32 v33, 1, v33", "v_lshl_add_u32 v32, v33, 4, v32",
          f"s_lshl_b32 {T[3]}, {sRH}, 5", f"s_add_u32 {T[3]}, {T[3]}, {sR0}", f"s_lshl_b32 {T[3]}, {T[3]}, 10",
          f"s_lshl_b32 {T[4]}, {sCB}, 7", f"s_add_u32 {T[3]}, {T[3]}, {T[4]}", f"s_lshl_b32 {T[4]}, {sCH}, 6", f"s_add_u32 {sU[9]}, {T[3]}, {T[4]}",
          f"s_add_u32 {sU[10]}, {sU[9]}, 0x4000")
        for i in range(8):
            a(f"v_lshlrev_b32 v{208 + 2 * i}, 16, v{vH + i}", f"v_and_b32 v{209 + 2 * i}, {sHIMASK}, v{vH + i}")
        def buf(s, rt): return 64 + (s % 4) * 8 + rt * 4
        def reads(s): return [f"ds_read_b128 {v(buf(s, rt), 4)}, v{30 if s < 16 else 31} offset:{4096 * (s & 15) + rt * 1024}" for rt in range(2)]
        def mfmas(s):
            return [mfma16(ACC + (rt * 2 + nt) * 4, ar((nt * 22 + s) * 4, 4), v(buf(s, rt), 4), v(208 + (rt * 2 + nt) * 4, 4) if s == 0 else None)
                    for rt in range(2) for nt in range(2)]
        def w(c):
            def f():
                a.wait(vm=toks[c]); self.barrier()
            return f
        rest = group(2) + group(3)
        late = {i: rest[2 * i:2 * i + 2] for i in range(7)}
        def head0():
            a.wait(vm=toks[0], lg=a.lg); self.barrier()
        self.kloop(22, reads, mfmas, {2: w(1), 6: w(2), 12: w(3)}, late, {0: head0}, per=1)
        self.stamp("wout_gemm")
        for rt in range(2):
            for nt in range(2):
                d = ACC + (rt * 2 + nt) * 4
                for k in range(2): a(f"v_cvt_pk_bf16_f32 v{64 + 4 * rt + 2 * nt + k}, v{d + 2 * k}, v{d + 2 * k + 1}")
        for rt in range(2):
            b = 64 + 4 * rt
            a(f"v_permlane16_swap_b32 v{b}, v{b + 2}", f"v_permlane16_swap_b32 v{b + 1}, v{b + 3}")
            a(f"buffer_store_dwordx4 {v(b, 4)}, v32, {sOUT}, {sU[9 + rt]} offen")

    def epilogue(self):
        a = self.a
        a("L_finish:")
        a("s_cmp_eq_u32 s2, 0", f"s_cselect_b32 {T[0]}, {sW}, 1", f"s_cmp_eq_u32 {T[0]}, 0", "s_cbranch_scc0 L_noepoch",
          "s_mov_b64 exec, 1", f"buffer_store_dwordx2 {vTAG}, off, {sWS}, 0 sc1", "s_mov_b64 exec, -1", "L_noepoch:")
        if self.stamps:
            a("s_waitcnt vmcnt(0)")
            self.stamp("end")
            a(f"s_lshl_b32 {T[0]}, s2, 2", f"s_add_u32 {T[0]}, {T[0]}, {sW}", f"s_lshl_b32 {T[0]}, {T[0]}, 7", f"s_add_u32 {T[0]}, {T[0]}, {WS_DBG}",
              "s_mov_b64 exec, 1")
            for i in range(16):
                a(f"v_mov_b32 v8, s{STAMP0 + i}", f"buffer_store_dword v8, off, {sWS}, {T[0]} offset:{4 * i}")
        if self.calib:
            a("s_waitcnt vmcnt(0)", "L_calib:", "s_memrealtime s[100:101]", "s_waitcnt lgkmcnt(0)", f"s_sub_u32 s100, s100, s{STAMP0}",
              f"s_cmp_lt_u32 s100, {self.calib}", "s_cbranch_scc1 L_calib")
        a("s_waitcnt vmcnt(0)", "L_exit:", "s_endpgm")

    def build(self):
        self.prologue()
        self.phase_qkv(); self.maybe_stop("qkv")
        self.phase_attn(); self.maybe_stop("attn")
        self.phase_wo(); self.maybe_stop("wo")
        self.phase_win(); self.maybe_stop("win")
        self.phase_wsp(); self.maybe_stop("wsp")
        self.phase_wout()
        self.epilogue()
        self.attn_slow()
        self.a("L_code_end:")
        body = self.a.finish()
        ref = open(f"cdna_kernels/{NAME}.s.ref").read().split("\n")
        head = [l for l in ref if l.startswith(";") and "@launch" not in l and "Override" not in l and "grid=ceil" not in l]
        head = head[:head.index([l for l in head if "d_ws" in l][0]) + 1]
        return ("\n".join(head) + f"\n; @launch grid=(256,1,1) block=(256,1,1) lds={LDS_BYTES}\n"
                + '.amdgcn_target "amdgcn-amd-amdhsa--gfx950"\n.text\n'
                + f".globl {NAME}_kernel\n.p2align 8\n.type {NAME}_kernel,@function\n{NAME}_kernel:\n" + body
                + f""".section .rodata,"a"
.p2align 6
.amdhsa_kernel {NAME}_kernel
  .amdhsa_next_free_vgpr 512
  .amdhsa_next_free_sgpr 102
  .amdhsa_accum_offset 256
  .amdhsa_group_segment_fixed_size 0
  .amdhsa_kernarg_size 88
  .amdhsa_user_sgpr_count 2
  .amdhsa_user_sgpr_kernarg_segment_ptr 1
  .amdhsa_system_sgpr_workgroup_id_x 1
  .amdhsa_float_denorm_mode_32 3
.end_amdhsa_kernel
""")

if __name__ == "__main__":
    import argparse
    ap = argparse.ArgumentParser()
    ap.add_argument("-o", default=f"cdna_kernels/{NAME}.s")
    ap.add_argument("--stop"); ap.add_argument("--stamps", action="store_true"); ap.add_argument("--slow", action="store_true")
    ap.add_argument("--opt", action="append", default=[])
    o = ap.parse_args()
    g = Gen(o.stop, o.stamps, o.slow, **{k: int(x) for k, x in (kv.split('=') for kv in o.opt)})
    s = g.build()
    open(o.o, "w").write(s)
    print(f"wrote {o.o}: {len(s)} bytes, {len(g.a.items)} items, {g.a.nops_added} nops; stamps: {g.stamp_names}")
```

```python
import re

REG_RE = re.compile(r"\b([vas])\[(\d+):(\d+)\]|\b([vas])(\d+)\b|\b(vcc|exec|m0|scc)\b")
TRANS = ("v_exp_", "v_log_", "v_rcp_", "v_rsq_", "v_sqrt_", "v_sin_", "v_cos_")

def regs_of(tok):
    out = []
    for m in REG_RE.finditer(tok):
        if m.group(1):
            out += [(m.group(1), r) for r in range(int(m.group(2)), int(m.group(3)) + 1)]
        elif m.group(4):
            out.append((m.group(4), int(m.group(5))))
        else:
            n = m.group(6)
            out += {"vcc": [("s", 106), ("s", 107)], "exec": [("s", 126), ("s", 127)], "m0": [("s", 124)], "scc": []}[n]
    return out

def split_ops(s):
    ops, depth, cur = [], 0, ""
    for c in s:
        if c == "[": depth += 1
        if c == "]": depth -= 1
        if c == "," and depth == 0:
            ops.append(cur.strip()); cur = ""
        else:
            cur += c
    if cur.strip(): ops.append(cur.strip())
    return ops

class I:
    __slots__ = ("text", "op", "kind", "w", "r", "passes", "srcc", "srcab", "states", "dpp", "wide_store", "lds_dma")
    def __init__(self, text):
        self.text = text
        t = text.split(";")[0].strip()
        self.op = t.split()[0] if t else ""
        rest = t[len(self.op):].strip()
        ops = split_ops(rest)
        self.w, self.r, self.srcc, self.srcab = set(), set(), set(), set()
        self.passes = 0; self.states = 1; self.dpp = False; self.wide_store = False; self.lds_dma = False
        op = self.op
        if t.endswith(":") or op.startswith("."):
            self.kind = "label" if t.endswith(":") else "dir"; self.states = 0
            return
        first = lambda k: set(regs_of(ops[k].split(" ")[0])) if k < len(ops) else set()
        allr = lambda ks: set().union(*[set(regs_of(ops[k])) for k in ks if k < len(ops)]) if ks else set()
        if op.startswith("v_mfma") or op.startswith("v_smfmac"):
            self.kind = "mfma"
            self.passes = 8 if "32x32" in op else 4
            self.w = first(0)
            if op.startswith("v_smfmac"):
                self.srcc = first(0); self.srcab = allr([1, 2, 3])
            else:
                self.srcc = first(3); self.srcab = allr([1, 2])
            self.r = self.srcc | self.srcab
        elif op.startswith("v_"):
            self.kind = "valu"
            self.dpp = "dpp" in op or "quad_perm" in t or "row_" in t
            if op.startswith("v_cmp"):
                self.w = first(0); self.r = allr(range(1, len(ops)))
            elif op.startswith("v_permlane"):
                self.w = first(0) | first(1); self.r = set(self.w)
            elif op in ("v_add_co_u32", "v_sub_co_u32", "v_addc_co_u32"):
                self.w = first(0) | first(1); self.r = allr(range(2, len(ops)))
            else:
                self.w = first(0); self.r = allr(range(1, len(ops)))
                if op.startswith(("v_fmac", "v_dot2c", "v_pk_fmac")) or self.dpp or "UNUSED_PRESERVE" in t:
                    self.r |= self.w
                if op.startswith("v_cndmask") and len(ops) == 3:
                    self.r |= {("s", 106), ("s", 107)}
        elif op.startswith(("buffer_", "global_")):
            self.kind = "vmem"
            if " lds" in t:
                self.lds_dma = True; self.r = allr(range(len(ops))) | {("s", 124)}
            elif "load" in op:
                self.w = first(0); self.r = allr(range(1, len(ops)))
            else:
                self.r = allr(range(len(ops)))
                self.wide_store = op.endswith(("x3", "x4"))
                if self.wide_store: self.srcab = first(0)
        elif op.startswith("ds_"):
            self.kind = "ds"
            if "read" in op or "bpermute" in op or "swizzle" in op:
                self.w = first(0); self.r = allr(range(1, len(ops)))
            else:
                self.r = allr(range(len(ops)))
        elif op == "s_nop":
            self.kind = "nop"; self.states = int(ops[0]) + 1
        elif op.startswith(("s_waitcnt", "s_barrier", "s_endpgm", "s_sleep", "s_setprio")):
            self.kind = "misc"
        elif op.startswith(("s_cbranch", "s_branch")):
            self.kind = "branch"
        elif op.startswith("s_cmp") or op.startswith("s_bitcmp"):
            self.kind = "salu"; self.r = allr(range(len(ops)))
        else:
            self.kind = "salu"
            self.w = first(0); self.r = allr(range(1, len(ops)))
            if "saveexec" in op: self.w |= {("s", 126), ("s", 127)}

def need(p, c):
    n = 0
    vg = lambda s: {x for x in s if x[0] in "va"}
    sg = lambda s: {x for x in s if x[0] == "s"}
    if p.kind == "valu":
        wv, ws = vg(p.w), sg(p.w)
        if c.kind == "mfma" and wv & c.r: n = max(n, 2)
        if c.kind == "valu":
            if p.op.startswith(TRANS) and not c.op.startswith(TRANS) and wv & (c.r | c.w): n = max(n, 1)
            if c.dpp and wv & c.r: n = max(n, 2)
            if c.op.startswith("v_permlane") and wv & c.r: n = max(n, 2)
            if c.op.startswith(("v_readlane", "v_readfirstlane")) and wv & c.r: n = max(n, 1)
            if ws & c.r: n = max(n, 4 if c.op.startswith(("v_readlane", "v_writelane")) else 2)
            if p.op.startswith("v_dot2") and wv & (c.r | c.w):
                if not (c.op == p.op and not (wv & (c.r - c.w))): n = max(n, 3)
        if p.op.startswith("v_dot2") and c.kind in ("vmem", "ds", "mfma") and wv & c.r: n = max(n, 3)
        if c.kind == "vmem" and ws & c.r: n = max(n, 5)
        if c.kind in ("salu", "branch") and (ws & c.r or (c.kind == "branch" and "vcc" in c.op and ws)): n = max(n, 2)
    if p.kind == "mfma":
        big = p.passes == 8
        if c.kind == "mfma":
            if p.w & c.srcab: n = max(n, 12 if big else 8)
            if p.w & c.srcc and not (p.w == c.srcc and p.passes == c.passes): n = max(n, 10 if big else 6)
            if p.w & c.w and not (p.w & c.srcc): n = max(n, 10 if big else 6)
        elif c.kind in ("valu", "vmem", "ds"):
            if p.w & (c.r | c.w): n = max(n, 12 if big else 8)
            if c.kind == "valu" and p.srcc & c.w: n = max(n, 7 if big else 3)
    if p.kind == "vmem" and p.wide_store and p.srcab & c.w:
        n = max(n, 2 if c.kind == "valu" else 1)
    if p.kind == "salu" and ("s", 124) in p.w and c.kind == "vmem" and c.lds_dma: n = max(n, 1)
    return n

class Asm:
    def __init__(self):
        self.items = []
        self.vm = 0; self.lg = 0
        self.vm_done = 0; self.lg_done = 0
        self.nlabel = 0
        self.maybe = []
        self.cond = 0
    def __call__(self, text, *more):
        for t in (text,) + more:
            for line in t.split("\n"):
                line = line.strip()
                if not line: continue
                ins = I(line)
                self.items.append(ins)
                if ins.kind == "vmem":
                    self.vm += 1
                    if self.cond: self.maybe.append(self.vm)
                if ins.kind == "ds": assert not self.cond, "DS op in a conditional region"
                if ins.kind == "ds": self.lg += 1
        return self
    def label(self, base):
        self.nlabel += 1
        return f"L_{base}_{self.nlabel}"
    def cond_begin(self): self.cond += 1
    def cond_end(self): self.cond -= 1
    def vtok(self): return self.vm
    def ltok(self): return self.lg
    def wait(self, vm=None, lg=None, force=False):
        parts = []
        if vm is not None and (vm > self.vm_done or force):
            n = min(self.vm - vm - sum(1 for k in self.maybe if k > vm), 63)
            parts.append(f"vmcnt({n})"); self.vm_done = max(self.vm_done, vm if n else self.vm)
        if lg is not None and (lg > self.lg_done or force):
            n = min(self.lg - lg, 15); parts.append(f"lgkmcnt({n})"); self.lg_done = max(self.lg_done, self.lg - n)
        if parts: self("s_waitcnt " + " ".join(parts))
    def wait_all(self):
        self.wait(self.vm, self.lg, force=True)
    def finish(self):
        out, win, added = [], [], 0
        for ins in self.items:
            if ins.kind in ("label", "dir"):
                out.append(ins); continue
            req = 0; dist = 0
            for p in reversed(win):
                n = need(p, ins)
                if n > dist: req = max(req, n - dist)
                dist += p.states
                if dist >= 20: break
            if req:
                nop = I(f"s_nop {req - 1}"); out.append(nop); win.append(nop); added += 1
            out.append(ins); win.append(ins)
            if len(win) > 40: win = win[-24:]
        self.nops_added = added
        return "\n".join(("" if i.kind == "label" else "  ") + i.text for i in out) + "\n"
```

```python
import sys, struct
from asmdsl import Asm

NAME = "sequential_preLN__softmax_full_mha__mixer_gmlp__prompt"

WS_EPOCH = 0
WS_F1, WS_F2, WS_F3, WS_F4, WS_F5, WS_F6 = 0x1000, 0x90000, 0x7000, 0x9000, 0xB000, 0xD000
WS_ST3, WS_ST4 = 0x10000, 0x10D0000
WS_Q, WS_KV, WS_O, WS_H, WS_Z, WS_G = 0x100000, 0x300000, 0x700000, 0x900000, 0xB00000, 0xE00000
WS_DBG = 0x1200000
WS_SIZE = 0x1400000

LA, LC, LB = 0, 65536, 98304
LRED = 24576
LDS_BYTES = 163840

sX, sWQKV, sWO, sWIN, sWSP, sBSP, sWOUT, sOUT, sWS = ("s[%d:%d]" % (b, b + 3) for b in range(4, 40, 4))
sJ, sRB, sCB, sHEAD, sW, sR0, sRH, sCH, sT0, sCNT5 = ("s%d" % i for i in range(40, 50))
sTAG = "s[50:51]"
sONES, sHIMASK, sCLU, sPOLL = "s52", "s53", "s54", "s55"
T = ["s%d" % i for i in range(56, 64)]
sROT = ["s%d" % i for i in range(64, 72)]
sU = ["s%d" % i for i in range(72, 84)]
sJA, sRB8 = "s0", "s1"
sSPR = "s3"
STAMP0 = 84

vLANE, vL16, vPAT, vZ = "v0", "v1", "v2", "v3"
vTAG = "v[4:5]"
vFP32, vFP8 = "v6", "v7"
vH = 8
vZ1 = 16

def v(a, n=1): return f"v{a}" if n == 1 else f"v[{a}:{a + n - 1}]"
def ar(a, n=1): return f"a{a}" if n == 1 else f"a[{a}:{a + n - 1}]"
def f2u(x): return "0x%08x" % struct.unpack("<I", struct.pack("<f", x))[0]

def mfma16(d, a, b, c=None):
    return f"v_mfma_f32_16x16x32_bf16 {v(d,4)}, {a}, {b}, {c if c is not None else v(d,4)}"

def interleave(a, mains, fillers, per=1, start=0):
    k = 0
    for i, m in enumerate(mains):
        m() if callable(m) else a(m)
        if i >= start:
            for _ in range(per):
                if k < len(fillers):
                    f = fillers[k]; k += 1
                    f() if callable(f) else a(f)
    while k < len(fillers):
        f = fillers[k]; k += 1
        f() if callable(f) else a(f)

class Gen:
    def __init__(self, stop=None, stamps=False, force_fallback=False, calib=0, **opt):
        self.calib = calib
        self.keep = opt.pop("keep", None)
        self.opt = opt
        self.a = Asm()
        self.stop = stop
        self.stamps = stamps
        self.force_fallback = force_fallback
        self.nstamp = 0
        self.stamp_names = []

    def stamp(self, name):
        if not self.stamps: return
        if self.keep is not None:
            if name not in self.keep and name != "entry": return
        elif name in ("issued", "x_first", "x_last", "stats") or name.startswith("wsp_p"): return
        a = self.a
        a.wait(lg=a.lg)
        cyc = self.opt.get("cyc")
        a(f"{'s_memtime' if cyc else 's_memrealtime'} s[100:101]", "s_waitcnt lgkmcnt(0)")
        n = self.nstamp
        if n == 0:
            a(f"s_mov_b32 s{STAMP0}, s100")
        else:
            r = STAMP0 + 1 + (n - 1) // 2
            if cyc: a(f"s_sub_u32 s101, s100, s{STAMP0}", f"s_mov_b32 s{STAMP0}, s100", "s_mov_b32 s100, s101")
            else: a(f"s_sub_u32 s100, s100, s{STAMP0}")
            a(f"s_mov_b32 s{r}, s100" if n & 1 else f"s_pack_ll_b32_b16 s{r}, s{r}, s100")
        self.nstamp += 1; self.stamp_names.append(name)
        assert self.nstamp <= 29

    def maybe_stop(self, name):
        if self.stop == name:
            self.a.wait_all()
            self.a("s_branch L_finish")

    def flag_store(self, soff):
        a = self.a
        a.wait(vm=a.vm, force=True)
        a("s_mov_b64 exec, 1", f"buffer_store_dwordx2 {vTAG}, off, {sWS}, {soff} sc1", "s_mov_b64 exec, -1")

    def flag_store_wg(self, soff):
        a = self.a
        a.wait(vm=a.vm, force=True)
        self.barrier()
        L = a.label("noflag")
        a.cond_begin()
        a(f"s_cmp_lg_u32 {sW}, 0", f"s_cbranch_scc1 {L}",
          "s_mov_b64 exec, 1", f"buffer_store_dwordx2 {vTAG}, off, {sWS}, {soff} sc1", "s_mov_b64 exec, -1", f"{L}:")
        a.cond_end()

    def poll_wg(self, voff, soff, tmp, drain=True):
        a = self.a
        if self.opt.get("allpoll"):
            self.poll(voff, soff, tmp); return
        if drain: a.wait(vm=a.vm, force=True)
        done = a.vm_done
        L = a.label("nopoll")
        a(f"s_cmp_lg_u32 {sW}, 0", f"s_cbranch_scc1 {L}")
        self.poll(voff, soff, tmp)
        a(f"{L}:")
        a.vm_done = done
        self.barrier()

    def poll_early(self, voff, soff, tmp):
        return [f"buffer_load_dwordx2 {v(tmp,2)}, {voff}, {sWS}, {soff} offen sc1"]

    def poll_late(self, voff, soff, tmp, tok, wg=True):
        a = self.a
        L = a.label("late")
        done = a.vm_done
        if wg: a(f"s_cmp_lg_u32 {sW}, 0", f"s_cbranch_scc1 {L}")
        a.wait(vm=tok, force=True)
        a(f"v_cmp_ne_u64 vcc, {sTAG}, {v(tmp,2)}", "s_nop 1", f"s_cbranch_vccz {L}")
        a.cond_begin(); self.poll(voff, soff, tmp); a.cond_end()
        a(f"{L}:")
        a.vm_done = done if wg else tok
        if wg: self.barrier()

    def poll(self, voff, soff, tmp):
        a = self.a
        L, E = a.label("poll"), a.label("polled")
        a(f"s_mov_b32 {sPOLL}, 0x40000", f"{L}:",
          f"buffer_load_dwordx2 {v(tmp,2)}, {voff}, {sWS}, {soff} offen sc1")
        a.wait(vm=a.vm, force=True)
        a(f"v_cmp_ne_u64 vcc, {sTAG}, {v(tmp,2)}",
          f"s_sub_u32 {sPOLL}, {sPOLL}, 1", f"s_cbranch_scc1 {E}")
        sl = self.opt.get("sleep", 0)
        if sl: a(f"s_cbranch_vccz {E}", f"s_sleep {sl}", f"s_branch {L}", f"{E}:")
        else: a(f"s_cbranch_vccnz {L}", f"{E}:")

    def barrier(self):
        self.a("s_barrier")

    def prologue(self):
        a = self.a
        a("s_cmp_ge_u32 s2, 256", "s_cbranch_scc1 L_exit")
        self.stamp("entry")
        for d, off, n in self.SRDS: a(f"s_load_dwordx2 s[{d}:{d + 1}], s[0:1], {off}")
        for d, off, n in self.SRDS: a(f"s_mov_b32 s{d + 2}, {n}", f"s_mov_b32 s{d + 3}, 0x00020000")
        a("v_lshrrev_b32 v8, 6, v0", f"v_and_b32 {vLANE}, 63, v0", f"v_readfirstlane_b32 {sW}, v8",
          )
        if self.opt.get("map", 1):
            a(f"s_lshr_b32 {T[0]}, s2, 3", f"s_and_b32 {T[1]}, s2, 6", f"s_and_b32 {T[2]}, s2, 1",
              f"s_lshr_b32 {T[3]}, {T[0]}, 4", f"s_add_u32 {sJ}, {T[1]}, {T[3]}",
              f"s_bfe_u32 {sRB}, {T[0]}, 0x20002", f"s_and_b32 {sCB}, {T[0]}, 3", f"s_lshl_b32 {T[4]}, {T[2]}, 2", f"s_add_u32 {sCB}, {sCB}, {T[4]}",
              f"s_and_b32 {sHEAD}, {T[0]}, 15", f"s_lshl_b32 {T[4]}, {T[2]}, 4", f"s_add_u32 {sHEAD}, {sHEAD}, {T[4]}",
              f"s_lshr_b32 {sU[1]}, {T[0]}, 2", f"s_and_b32 {sU[2]}, {sCB}, 3", f"s_lshl_b32 {sU[2]}, {sU[2]}, 1")
        else:
            a(f"s_and_b32 {sJ}, s2, 7", f"s_lshr_b32 {sHEAD}, s2, 3", f"s_lshr_b32 {sRB}, {sHEAD}, 3", f"s_and_b32 {sCB}, {sHEAD}, 7",
              f"s_lshl_b32 {sU[1]}, {sRB}, 1", f"s_mov_b32 {sU[2]}, {sCB}")
        a(
          f"s_lshl_b32 {sR0}, {sJ}, 8", f"s_lshl_b32 {T[0]}, {sRB}, 6", f"s_add_u32 {sR0}, {sR0}, {T[0]}",
          f"s_lshr_b32 {sRH}, {sW}, 1", f"s_and_b32 {sCH}, {sW}, 1",
          f"s_lshl_b32 {sCLU}, {sJ}, 2", f"s_add_u32 {sCLU}, {sCLU}, {sRB}",
          f"s_mov_b32 {sONES}, 0x3f803f80", f"s_mov_b32 {sHIMASK}, 0xffff0000")
        a(f"s_mul_i32 {T[0]}, {sCB}, 5", f"s_min_u32 {T[1]}, {sCB}, 3", f"s_add_u32 {sT0}, {T[0]}, {T[1]}",
          f"s_cmp_ge_u32 {sCB}, 3", f"s_cselect_b32 {sCNT5}, 1, 0")
        a(f"v_lshlrev_b32 {vL16}, 4, {vLANE}", f"v_mov_b32 {vZ}, 0",
          f"v_and_b32 v8, 15, {vLANE}", f"v_lshrrev_b32 v9, 5, {vLANE}", f"v_bfe_u32 v10, {vLANE}, 4, 1",
          f"v_lshlrev_b32 v8, 4, v8", f"v_lshl_add_u32 v8, v10, 3, v8",
          f"v_lshl_add_u32 {vPAT}, v9, 8, v8",
          f"v_lshl_add_u32 v63, v9, 9, v8",
          f"v_and_b32 {vFP32}, 31, {vLANE}", f"v_lshlrev_b32 {vFP32}, 7, {vFP32}",
          f"v_and_b32 {vFP8}, 7, {vLANE}", f"v_lshlrev_b32 {vFP8}, 3, {vFP8}")

    SRDS = [(4, 0, 2048 * 512 * 2), (8, 8, 512 * 1536 * 2), (36, 80, WS_SIZE), (12, 16, 512 * 512 * 2), (16, 32, 512 * 1376 * 2),
            (20, 40, 2048 * 2048 * 2), (24, 48, 2048 * 2), (28, 56, 688 * 512 * 2), (32, 64, 2048 * 512 * 2)]

    def phase_qkv(self):
        a = self.a
        XR, ACC = 64, 128
        vXa, vXb, vW0, vW1, vWrA, vWrB, vXe, vXo, vXw = "v28", "v29", "v30", "v31", "v32", "v33", "v34", "v35", "v36"
        a(f"v_lshrrev_b32 v8, 3, {vLANE}", f"v_and_b32 v9, 7, {vLANE}",
          f"v_lshlrev_b32 v10, 10, v8", f"v_lshl_add_u32 {vXa}, v9, 4, v10",
          f"s_lshl_b32 {T[0]}, {sW}, 4", f"s_add_u32 {T[0]}, {T[0]}, {sR0}", f"s_lshl_b32 {T[0]}, {T[0]}, 10",
          f"v_add_u32 {vXa}, {T[0]}, {vXa}", f"v_add_u32 {vXb}, 0x2000, {vXa}")
        a(f"v_bfe_u32 v10, {vLANE}, 4, 1", "v_lshrrev_b32 v11, 1, v9", "v_xor_b32 v11, v11, v10",
          "v_and_b32 v12, 1, v9", "v_lshl_or_b32 v11, v11, 1, v12", "v_lshlrev_b32 v11, 4, v11",
          "v_mul_u32_u24 v12, 3072, v8", "v_add_u32 v12, v12, v11",
          f"s_mul_i32 {T[0]}, {sW}, {16 * 3072}", f"s_lshl_b32 {T[1]}, {sCB}, 7", f"s_add_u32 {T[0]}, {T[0]}, {T[1]}",
          f"v_add_u32 {vW0}, {T[0]}, v12", f"v_xor_b32 {vW1}, 64, {vW0}", f"v_add_u32 {vW1}, {8 * 3072 - 1024}, {vW1}")
        a(f"v_lshrrev_b32 v10, 4, {vLANE}", f"v_bfe_u32 v11, {vLANE}, 2, 2", f"v_and_b32 v12, 3, {vLANE}",
          "v_lshl_add_u32 v13, v10, 3, v11", "v_lshlrev_b32 v13, 7, v13", "v_lshl_add_u32 v13, v12, 3, v13",
          "v_lshrrev_b32 v11, 1, v11", "v_and_b32 v14, 1, v10", "v_lshl_or_b32 v11, v14, 1, v11",
          f"v_xor_b32 v11, {sW}, v11", f"v_lshl_add_u32 {vWrA}, v11, 5, v13", f"v_add_u32 {vWrB}, {2 * 24576}, {vWrA}")
        a("v_lshrrev_b32 v11, 2, v9", "v_lshlrev_b32 v11, 10, v11", "v_and_b32 v12, 3, v9", "v_lshl_add_u32 v11, v12, 8, v11",
          "v_xor_b32 v12, v8, v9", "v_lshl_add_u32 v11, v12, 4, v11",
          f"s_lshl_b32 {T[0]}, {sW}, 14", f"s_add_u32 {T[0]}, {T[0]}, {LB}", f"v_add_u32 {vXw}, {T[0]}, v11",
          f"v_and_b32 v11, 15, {vLANE}", "v_xor_b32 v11, v11, v10", "v_lshl_add_u32 v11, v10, 4, v11", "v_lshlrev_b32 v11, 4, v11",
          f"v_add_u32 {vXe}, {LB}, v11", f"v_xor_b32 {vXo}, 64, {vXe}")
        for i in range(8):
            a(f"s_add_u32 {T[0]}, {sU[2]}, {i}", f"s_and_b32 {T[0]}, {T[0]}, 7", f"s_lshl_b32 {sROT[i]}, {T[0]}, 7",
              f"s_sub_u32 {T[0]}, {T[0]}, {sU[1]}", f"s_and_b32 {T[0]}, {T[0]}, 7", f"s_lshl_b32 {T[0]}, {T[0]}, 11", f"v_add_u32 v{37 + i}, {T[0]}, {vXw}")
        a(f"s_lshl_b32 {sU[0]}, {sW}, 11")
        if self.opt.get("pf0"):
            a(f"s_lshl_b32 {T[0]}, {sRB}, 2", f"s_add_u32 {T[0]}, {T[0]}, {sW}", f"s_mul_i32 {T[0]}, {T[0]}, {32 * 3072}",
              f"s_lshl_b32 {T[1]}, {sCB}, 7", f"s_add_u32 {T[0]}, {T[0]}, {T[1]}",
              f"v_and_b32 v8, 31, {vLANE}", "v_mul_u32_u24 v8, 3072, v8", f"v_add_u32 v48, {T[0]}, v8",
              f"v_lshrrev_b32 v9, 5, {vLANE}", "v_lshl_add_u32 v45, v9, 10, v48")
        a("s_waitcnt lgkmcnt(0)", f"s_mov_b32 {sJA}, {sJ}", f"s_mov_b32 {sRB8}, {sU[1]}")
        self.stamp("kernarg")
        xtok = []
        wtok = {}
        def wdma(t):
            L = []
            slot = t & 3
            for p in range(3):
                pre = [f"s_add_u32 {T[1]}, {sRB8}, {t}", f"s_and_b32 {T[1]}, {T[1]}, 7",
                       f"s_mul_i32 {T[1]}, {T[1]}, {64 * 3072}"] if p == 0 else []
                L.append(pre + [f"s_add_u32 {T[2]}, {T[1]}, {p * 1024}",
                          f"s_add_u32 m0, {sU[0]}, {slot * 24576 + p * 8192}",
                          f"buffer_load_dwordx4 {vW0}, {sWQKV}, {T[2]} offen lds"])
                L.append([f"buffer_load_dwordx4 {vW1}, {sWQKV}, {T[2]} offen offset:1024 lds"])
            L[-1].append(lambda: wtok.__setitem__(t, a.vtok()))
            return L
        wq = [x for t in range(4) for x in wdma(t)]
        def wq_issue(n):
            for _ in range(n):
                if wq: self.emit(wq.pop(0))
        def xload(t):
            for g, vx in enumerate((vXa, vXb)):
                a(f"buffer_load_dwordx4 {v(XR + (g * 8 + t) * 4, 4)}, {vx}, {sX}, {sROT[t] if t < nb else T[(t - nb) & 3]} offen")
            xtok.append(a.vtok())
        nb = self.opt.get("xb", 2)
        for t in range(nb):
            xload(t)
            if t == 0: wq_issue(self.opt.get("wpre", 0))
        if not self.opt.get("nocodepf"):
            a(f"s_getpc_b64 s[60:61]", "L_pc:", f"s_sub_u32 s60, s60, L_pc-{NAME}_kernel", "s_subb_u32 s61, s61, 0",
              f"s_mov_b32 s62, L_code_end-{NAME}_kernel", "s_mov_b32 s63, 0x00020000",
              f"s_lshr_b32 {T[0]}, s2, 3", f"s_lshl_b32 {T[0]}, {T[0]}, 2", f"s_add_u32 {T[0]}, {T[0]}, {sW}", f"s_lshl_b32 {T[0]}, {T[0]}, 9",
              f"v_lshlrev_b32 v46, 3, {vLANE}", f"buffer_load_dwordx2 v[46:47], v46, s[60:63], {T[0]} offen")
        self.attn_addresses()
        self.stamp("issued")
        for t in range(nb, 8):
            r = T[(t - nb) & 3]
            a(f"s_add_u32 {r}, {sU[2]}, {t}", f"s_and_b32 {r}, {r}, 7", f"s_lshl_b32 {r}, {r}, 7")
            xload(t)
        wq_issue(self.opt.get("wpost", 6))
        if self.opt.get("pfq", 0):
            a(f"s_lshl_b32 {T[0]}, s2, 2", f"s_add_u32 {T[0]}, {T[0]}, {sW}", f"s_mul_i32 {T[0]}, {T[0]}, 1536",
              f"v_min_u32 v49, 31, {vLANE}", "v_lshlrev_b32 v49, 4, v49",
              f"buffer_load_dwordx4 v[248:251], {vL16}, {sWQKV}, {T[0]} offen", f"buffer_load_dwordx4 v[248:251], v49, {sWQKV}, {T[0]} offen offset:1024")
        if self.opt.get("tlb"):
            a(f"v_min_u32 v48, 9, {vLANE}", "v_lshlrev_b32 v48, 21, v48", f"buffer_load_dword v48, v48, {sWS}, 0 offen offset:2048")
        for t in range(8):
            a.wait(vm=xtok[t])
            if t == 0: self.stamp("x_first")
            if t == 7: self.stamp("x_last")
            if t >= self.opt.get("wstart", 8): wq_issue(1)
            for k in range(4):
                for g in range(2):
                    x = v(XR + (g * 8 + t) * 4 + k)
                    first = t == 0 and k == 0
                    a(f"v_dot2_f32_bf16 v{8 + 2 * g}, {x}, {sONES}, {'0' if first else 'v%d' % (8 + 2 * g)}",
                      f"v_dot2_f32_bf16 v{9 + 2 * g}, {x}, {x}, {'0' if first else 'v%d' % (9 + 2 * g)}")
        for mod in ("quad_perm:[1,0,3,2]", "quad_perm:[2,3,0,1]", "row_half_mirror"):
            for r in range(8, 12):
                a(f"v_add_f32_dpp v{r}, v{r}, v{r} {mod} row_mask:0xf bank_mask:0xf")
        self.ln_finish([(8, 9, 12), (10, 11, 14)], 1.0 / 512)
        self.stamp("stats")
        n = 0
        for t in range(8):
            for g in range(2):
                b = XR + (g * 8 + t) * 4
                tp = [16 + 2 * ((n + k) % 6) for k in range(4)]; n += 4
                for k in range(4):
                    a(f"v_lshlrev_b32 v{tp[k]}, 16, v{b + k}", f"v_and_b32 v{tp[k] + 1}, {sHIMASK}, v{b + k}")
                for k in range(4):
                    a(f"v_pk_fma_f32 {v(tp[k], 2)}, {v(tp[k], 2)}, {v(12 + 2 * g, 2)}, {v(12 + 2 * g, 2)} op_sel:[0,0,1] op_sel_hi:[1,0,1]")
                for k in range(4):
                    a(f"v_cvt_pk_bf16_f32 v{b + k}, v{tp[k]}, v{tp[k] + 1}")
                a(f"ds_write_b128 v{37 + t}, {v(b, 4)} offset:{g * 128}")
                if 2 * t + g < self.opt.get("wln", 6): wq_issue(1)
        wq_issue(max(0, len(wq) - self.opt.get("wloop", 12)))
        a(f"buffer_load_dwordx2 v[4:5], off, {sWS}, 0 sc1")
        etok = a.vtok()
        self.stamp("ln1")
        AF = 64
        def abuf(s): return AF + 16 * (s % 3)
        def wbuf(s): return (112, 176, 188)[s % 3]
        def reads(s):
            t, sub = s >> 1, s & 1
            slot = t & 3
            wb = vWrA if slot < 2 else vWrB
            wo = (slot & 1) * 24576 + sub * 4096
            A, W = abuf(s), wbuf(s)
            L = [f"ds_read_b64_tr_b16 {v(W + 2 * h, 2)}, {wb} offset:{wo + 512 * h}" for h in range(2)]
            L += [f"ds_read_b128 {v(A + 4 * rt, 4)}, {vXo if s & 1 else vXe} offset:{(rt * 16 + s) * 1024}" for rt in range(4)]
            L += [f"ds_read_b64_tr_b16 {v(W + 4 * p + 2 * h, 2)}, {wb} offset:{wo + 8192 * p + 512 * h}" for p in (1, 2) for h in range(2)]
            return L
        def mfmas(s):
            A, W = abuf(s), wbuf(s)
            ms = []
            for p in range(3):
                for rt in range(4):
                    d = ACC + 16 * p + 4 * rt
                    wv, av = v(W + 4 * p, 4), v(A + 4 * rt, 4)
                    c = "0" if s == 0 else None
                    ms.append(mfma16(d, wv, av, c) if p < 2 else mfma16(d, av, wv, c))
            return ms
        def head0():
            a.wait(vm=wtok[0], lg=a.lg); self.barrier(); self.stamp("w0")
        before, late = {}, {}
        for t in range(7):
            def f(t=t):
                a.wait(vm=wtok[t + 1]); self.barrier()
            before[2 * t] = f
        def f14():
            a.wait(lg=a.lg); self.barrier()
        before[15] = f14
        for t in range(4):
            d = wdma(t + 4)
            late[2 * t + 2] = d[:3]; late[2 * t + 3] = d[3:]
        if wq: late[0] = wq[:6]; late[1] = wq[6:]
        if self.opt.get("pfsp", 0):
            a(f"s_lshl_b32 {T[3]}, {sCB}, 3", f"s_add_u32 {T[3]}, {T[3]}, {sR0}", f"s_lshl_b32 {T[4]}, {sW}, 1", f"s_add_u32 {T[3]}, {T[3]}, {T[4]}",
              f"s_lshl_b32 {T[3]}, {T[3]}, 12", f"s_add_u32 {T[4]}, {T[3]}, 4096",
              f"s_lshl_b32 {T[5]}, s2, 2", f"s_add_u32 {T[5]}, {T[5]}, {sW}", f"s_mul_i32 {T[6]}, {T[5]}, 1376", f"s_mul_i32 {T[7]}, {T[5]}, 688",
              f"s_lshl_b32 {T[5]}, {T[5]}, 9",
              f"v_min_u32 v50, 42, {vLANE}", "v_lshlrev_b32 v50, 4, v50", f"v_min_u32 v51, 21, {vLANE}", "v_lshlrev_b32 v51, 4, v51",
              f"v_min_u32 v49, 31, {vLANE}", "v_lshlrev_b32 v49, 4, v49")
            J = "v[248:251]"
            pfl = [[f"buffer_load_dwordx4 {J}, v49, {sWO}, {T[5]} offen"], [f"buffer_load_dwordx4 {J}, {vL16}, {sWIN}, {T[6]} offen"],
                   [f"buffer_load_dwordx4 {J}, v51, {sWIN}, {T[6]} offen offset:1024"], [f"buffer_load_dwordx4 {J}, v50, {sWOUT}, {T[7]} offen"]]
            pfl += [[f"buffer_load_dwordx4 {J}, {vL16}, {sWSP}, {T[3 + (i >> 2)]} offen offset:{1024 * (i & 3)}"] for i in range(8)]
            p0 = self.opt.get("pfat", 10)
            if self.opt.get("pfsp", 1) == 1: pfl = pfl[:4]
            for i in range((len(pfl) + 2) // 3): late[p0 + i] = pfl[3 * i:3 * i + 3]
        cf = self.const_fill()
        late[15] = [cf[0:4], cf[4:8], cf[8:10], cf[10:]]
        self.kloop(16, reads, mfmas, before, late, {0: head0})
        self.stamp("qkv_gemm")
        a.wait(vm=etok)
        a("v_add_u32 v4, 0x9e3779b9, v4", "v_add_u32 v5, 0x7f4a7c15, v5", "v_readfirstlane_b32 s50, v4", "v_readfirstlane_b32 s51, v5")
        QS = 0.25 * 1.4426950408889634
        a(f"s_mov_b32 {T[0]}, {f2u(QS)}",
          f"s_lshl_b32 {T[1]}, {sCB}, 2", f"s_add_u32 {T[1]}, {T[1]}, {sW}",
          f"s_lshl_b32 {T[2]}, {T[1]}, 16", f"s_lshl_b32 {T[3]}, {sR0}, 5", f"s_add_u32 {T[2]}, {T[2]}, {T[3]}",
          f"s_add_u32 {T[2]}, {T[2]}, {WS_Q}",
          f"s_lshl_b32 {T[4]}, {T[1]}, 17", f"s_lshl_b32 {T[3]}, {sR0}, 6", f"s_add_u32 {T[4]}, {T[4]}, {T[3]}",
          f"s_add_u32 {T[4]}, {T[4]}, {WS_KV}", f"s_add_u32 {T[5]}, {T[4]}, 2048")
        PK = 64
        for p in (1, 2, 0):
            for rt in range(4):
                d = ACC + 16 * p + 4 * rt
                o = PK + 8 * p + 2 * rt
                if p == 0:
                    for k in range(4): a(f"v_mul_f32 v{d + k}, {T[0]}, v{d + k}")
                a(f"v_cvt_pk_bf16_f32 v{o}, v{d}, v{d + 1}", f"v_cvt_pk_bf16_f32 v{o + 1}, v{d + 2}, v{d + 3}")
                if p < 2:
                    a(f"buffer_store_dwordx2 {v(o, 2)}, v63, {sWS}, {T[2] if p == 0 else T[4]} offen offset:{(rt >> 1) * 1024 + (rt & 1) * 256} sc1")
                else:
                    a(f"buffer_store_dwordx2 {v(o, 2)}, {vPAT}, {sWS}, {T[5]} offen offset:{rt * 512} sc1")
        a(f"s_lshl_b32 {T[0]}, {sRB}, 5", f"s_add_u32 {T[0]}, {T[0]}, {T[1]}", f"s_lshl_b32 {T[0]}, {T[0]}, 7",
          f"s_lshl_b32 {T[1]}, {sJ}, 3", f"s_add_u32 {T[0]}, {T[0]}, {T[1]}", f"s_add_u32 {T[0]}, {T[0]}, {WS_F1}")
        self.flag_store(T[0])
        self.stamp("qkv_pub")

    def ln_finish(self, chains, inv_n):
        a = self.a
        for s1, s2, d in chains: a(f"v_mul_f32 v{s1}, {f2u(inv_n)}, v{s1}", f"v_mul_f32 v{s2}, {f2u(inv_n)}, v{s2}")
        for s1, s2, d in chains: a(f"v_fma_f32 v{s2}, -v{s1}, v{s1}, v{s2}")
        for s1, s2, d in chains: a(f"v_max_f32 v{s2}, 0, v{s2}")
        for s1, s2, d in chains: a(f"v_add_f32 v{s2}, {f2u(1e-5)}, v{s2}")
        for s1, s2, d in chains: a(f"v_rsq_f32 v{d}, v{s2}")
        for s1, s2, d in chains: a(f"v_mul_f32_e64 v{d + 1}, -v{s1}, v{d}")

    def const_fill(self):
        L = [f"v_and_b32 v8, 27, {vLANE}", "v_cmp_eq_u32 vcc, 1, v8", f"v_mov_b32 v9, {sONES}",
             "v_cndmask_b32 v12, v3, v9, vcc", "v_mov_b32 v13, v12", "v_mov_b32 v14, v12", "v_mov_b32 v15, v12",
             f"s_lshl_b32 {T[3]}, {sW}, 12", f"s_add_u32 {T[3]}, {T[3]}, {LC + 2048}", f"v_add_u32 v9, {T[3]}, {vL16}",
             "ds_write_b128 v9, v[12:15]", "ds_write_b128 v9, v[12:15] offset:1024"]
        return L

    S, OA, NM, QF, KB, VB = 64, 112, 144, 176, 184, 192
    vIDX, vSP0, vKA, vKB2, vVB, vVI, vWD0, vXR = 208, 209, 213, 214, 215, 216, 217, 240

    def attn_addresses(self):
        a = self.a
        a(f"v_and_b32 v8, 15, {vLANE}", f"v_lshrrev_b32 v9, 4, {vLANE}", "v_lshlrev_b32 v10, 12, v8", "v_lshl_add_u32 v10, v9, 4, v10",
          f"s_lshl_b32 {T[6]}, {sR0}, 12", f"s_lshl_b32 {T[7]}, {sW}, 7", f"s_add_u32 {T[6]}, {T[6]}, {T[7]}",
          f"v_add_u32 v{self.vSP0}, {T[6]}, v10")
        for tt in range(1, 4): a(f"v_add_u32 v{self.vSP0 + tt}, {tt * 65536}, v{self.vSP0}")
        a(f"v_mov_b32 v{self.vIDX}, 0xdddddddd", f"v_mov_b32 v{self.vKA}, {vL16}", f"v_add_u32 v{self.vKB2}, {LB}, {vL16}")
        a(f"v_lshrrev_b32 v10, 5, {vLANE}", "v_lshl_add_u32 v10, v10, 4, v8", "v_lshlrev_b32 v10, 4, v10",
          f"v_and_b32 v11, 31, {vLANE}", f"v_bfe_u32 v12, {vLANE}, 2, 2",
          "v_add_u32 v12, -1, v12", "v_cmp_gt_u32 vcc, 2, v12", "v_cndmask_b32_e64 v12, 0, 4, vcc",
          "v_and_b32 v13, 27, v11", "v_cmp_eq_u32 vcc, 16, v13", "v_cndmask_b32_e64 v13, 0, 1, vcc",
          "v_add_u32 v12, v12, v13", "v_lshlrev_b32 v12, 4, v12", f"v_add_u32 v12, {LC}, v12",
          "v_cmp_gt_u32 vcc, 16, v11", f"v_cndmask_b32 v{self.vVB}, v12, v10, vcc",
          f"v_mov_b32 v13, 0x4000", f"v_cndmask_b32 v{self.vVI}, v3, v13, vcc")
        self.w128_addresses(self.vWD0, 16)
        self.win_addresses()
        a(f"s_lshl_b32 {T[5]}, {sHEAD}, 17", f"s_lshl_b32 {sU[1]}, {sW}, 12", f"s_add_u32 {T[5]}, {T[5]}, {sU[1]}", f"s_add_u32 {T[5]}, {T[5]}, {WS_KV}")
        for t in range(8):
            a(f"s_add_u32 {T[6]}, {sJ}, {t}", f"s_and_b32 {T[6]}, {T[6]}, 7", f"s_lshl_b32 {T[6]}, {T[6]}, 14", f"s_add_u32 {sROT[t]}, {T[6]}, {T[5]}")
        a(f"s_add_u32 {sSPR}, {sRB8}, {sJ}")
        for t in range(8):
            a(f"s_add_u32 {T[6]}, {sSPR}, {t}", f"s_and_b32 {T[6]}, {T[6]}, 7", f"s_lshl_b32 {sU[4 + t]}, {T[6]}, 9")
        a(f"v_lshrrev_b32 v226, 3, {vLANE}", f"s_lshl_b32 {T[6]}, {sCB}, 3", f"s_add_u32 {T[6]}, {T[6]}, {sR0}", f"v_add_u32 v226, {T[6]}, v226",
          "v_lshlrev_b32 v226, 12, v226", f"v_and_b32 v8, 7, {vLANE}", "v_lshl_add_u32 v226, v8, 4, v226",
          f"s_lshl_b32 {T[6]}, {sW}, 7", f"v_add_u32 v226, {T[6]}, v226")
        a(f"v_and_b32 v8, 15, {vLANE}", f"v_lshrrev_b32 v9, 4, {vLANE}", "v_lshlrev_b32 v8, 10, v8", "v_lshl_add_u32 v62, v9, 3, v8")
        a(f"v_and_b32 v10, 15, {vLANE}", f"v_bfe_u32 v11, {vLANE}, 4, 1", f"v_lshrrev_b32 v12, 5, {vLANE}",
          "v_lshlrev_b32 v10, 4, v10", "v_lshl_add_u32 v10, v11, 14, v10", "v_lshl_add_u32 v227, v12, 3, v10")
        for r in range(self.NM, self.NM + 0): pass

    def w128_addresses(self, r, t0=28):
        a = self.a
        p, q, u, x, y = ("v%d" % (t0 + i) for i in range(5))
        a(f"v_lshrrev_b32 {p}, 3, {vLANE}", f"v_and_b32 {q}, 7, {vLANE}", f"v_bfe_u32 {u}, {vLANE}, 4, 1",
          f"v_lshrrev_b32 {x}, 1, {q}", f"v_xor_b32 {x}, {x}, {u}", f"v_and_b32 {y}, 1, {q}", f"v_lshl_or_b32 {x}, {x}, 1, {y}",
          f"v_lshlrev_b32 {x}, 4, {x}", f"v_lshl_add_u32 {x}, {p}, 10, {x}",
          f"s_lshl_b32 {T[6]}, {sCB}, 7", f"v_add_u32 v{r}, {T[6]}, {x}", f"v_xor_b32 v{r + 1}, 64, v{r}",
          f"v_add_u32 v{r + 1}, {7 * 1024}, v{r + 1}", f"v_add_u32 v{r + 2}, {14 * 1024}, v{r}", f"v_add_u32 v{r + 3}, {14 * 1024}, v{r + 1}")

    def w128_dma(self, r, srd, pos, lds, nsteps):
        L = [f"s_lshr_b32 {T[4]}, {pos}, 1", f"s_add_u32 {T[4]}, {T[4]}, {sU[4]}"]
        n = nsteps // 2
        if n & (n - 1) == 0: L.append(f"s_and_b32 {T[4]}, {T[4]}, {n - 1}")
        else: L += [f"s_cmp_ge_u32 {T[4]}, {n}", f"s_cselect_b32 {T[7]}, {n}, 0", f"s_sub_u32 {T[4]}, {T[4]}, {T[7]}"]
        L += [f"s_lshl_b32 {T[4]}, {T[4]}, 1", f"s_and_b32 {T[7]}, {pos}, 1", f"s_add_u32 {T[4]}, {T[4]}, {T[7]}", f"s_lshl_b32 {T[4]}, {T[4]}, 15",
              f"s_mov_b32 m0, {lds}"]
        return L, [f"buffer_load_dwordx4 v{r + i}, {srd}, {T[4]} offen offset:{1024 * i} lds" for i in range(4)]

    def stage_base(self, t): return LA + 16384 * t if t < 4 else LB + 16384 * (t - 4)

    def kv_dma(self, t):
        L = [([f"s_add_u32 m0, {sU[1]}, {self.stage_base(t)}"] if i == 0 else [],
              f"buffer_load_dwordx4 {vL16}, {sWS}, {sROT[t]} offen offset:{1024 * i} sc1 lds") for i in range(4)]
        return L

    def phase_attn(self):
        a = self.a
        S, OA, NM, QF, KB, VB = self.S, self.OA, self.NM, self.QF, self.KB, self.VB
        a(f"s_lshl_b32 {T[0]}, {sW}, 5", f"s_add_u32 {T[0]}, {T[0]}, {sHEAD}", f"s_lshl_b32 {T[0]}, {T[0]}, 7", f"s_add_u32 {T[0]}, {T[0]}, {WS_F1}",
          f"s_lshl_b32 {T[1]}, {sHEAD}, 16", f"s_lshl_b32 {T[2]}, {sJ}, 13", f"s_add_u32 {T[1]}, {T[1]}, {T[2]}",
          f"s_lshl_b32 {T[2]}, {sW}, 11", f"s_add_u32 {T[1]}, {T[1]}, {T[2]}", f"s_add_u32 {T[1]}, {T[1]}, {WS_Q}",
          f"s_lshl_b32 {sU[3]}, {sW}, 14",
          )
        for r in range(OA, OA + 32): a(f"v_mov_b32 v{r}, 0")
        L, E, F = a.label("s1"), a.label("s1own"), a.label("s1all")
        a(f"s_mov_b32 {sPOLL}, 0x40000", f"s_lshl_b32 {T[2]}, 1, {sJ}", f"{L}:", f"buffer_load_dwordx2 v[8:9], {vFP8}, {sWS}, {T[0]} offen sc1")
        a.wait(vm=a.vm, force=True)
        a(f"v_cmp_ne_u64 vcc, {sTAG}, v[8:9]", f"s_sub_u32 {sPOLL}, {sPOLL}, 1", f"s_cbranch_scc1 {E}",
          f"s_and_b32 {T[3]}, vcc_lo, {T[2]}", f"s_cbranch_scc1 {L}", f"{E}:", "s_mov_b64 s[60:61], vcc")
        self.stamp("s1")
        for q in range(2):
            a(f"buffer_load_dwordx4 {v(QF + 4 * q, 4)}, {vL16}, {sWS}, {T[1]} offen offset:{1024 * q} sc1")
        kvtok = {}
        def issue(items):
            for pre, ins in items: a(*pre, ins) if pre else a(ins)
        issue(self.kv_dma(0)); kvtok[0] = a.vtok()
        done = a.vm_done
        a("s_cmp_eq_u64 s[60:61], 0", f"s_cbranch_scc1 {F}")
        a.cond_begin(); self.poll(vFP8, T[0], 8); a.cond_end()
        a(f"{F}:")
        a.vm_done = done
        issue(self.kv_dma(1)); kvtok[1] = a.vtok()
        if self.opt.get("ahead"): a(f"buffer_load_dwordx4 v[228:231], v226, {sWSP}, {sU[4]} offen")
        a.wait(vm=kvtok[0], lg=a.lg)
        self.barrier()
        def kread(kt):
            t, k = kt >> 3, kt & 7
            base = self.vKA if t < 4 else self.vKB2
            return f"ds_read_b128 {v(KB + 4 * (kt & 1), 4)}, v{base} offset:{16384 * (t & 3) + (k >> 1) * 4096 + (k & 1) * 1024}"
        def vread(kt, hi):
            k = kt & 7
            return f"ds_read_b128 {v(VB + 8 * (kt & 1) + 4 * hi, 4)}, v{self.vVB} offset:{(k >> 1) * 4096 + 2048 + (k & 1) * 1024 + 512 * hi}"
        def qk(n, c=None):
            kt, q = n >> 1, n & 1
            return f"v_mfma_f32_32x32x16_bf16 {v(S + 16 * (n % 3), 16)}, {v(KB + 4 * (kt & 1), 4)}, {v(QF + 4 * q, 4)}, {c if c else v(NM + 16 * q, 16)}"
        def pv(n, hi):
            kt, q = n >> 1, n & 1
            return f"v_smfmac_f32_32x32x32_bf16 {v(OA + 16 * q, 16)}, {v(VB + 8 * (kt & 1) + 4 * hi, 4)}, {v(S + 16 * (n % 3) + 8 * hi, 8)}, v{self.vIDX}"
        a(kread(0), kread(1), vread(0, 0), vread(0, 1))
        a.wait(lg=a.lg)
        a(qk(0, "0"), qk(1, "0"))
        for q in range(2):
            b, m = S + 16 * q, 8 + 2 * q
            a(f"v_max3_f32 v{m}, v{b}, v{b + 1}, v{b + 2}")
            for k in range(3, 15, 2): a(f"v_max3_f32 v{m}, v{m}, v{b + k}, v{b + k + 1}")
            a(f"v_max_f32 v{m}, v{m}, v{b + 15}", f"v_mov_b32 v{m + 1}, v{m}")
        for q in range(2): a(f"v_permlane32_swap_b32 v{8 + 2 * q}, v{9 + 2 * q}")
        for q in range(2):
            m = 8 + 2 * q
            a(f"v_max_f32 v{m}, v{m}, v{m + 1}", f"v_sub_f32 v{m}, 0, v{m}")
            for r in range(0, 16, 2): a(f"v_pk_mov_b32 {v(NM + 16 * q + r, 2)}, {v(m, 2)}, {v(m, 2)} op_sel:[0,0]")
            a(qk(q))
        self.stamp("attn_start")
        if self.stamps: a("s_memtime s[100:101]", "s_waitcnt lgkmcnt(0)", "s_mov_b32 s99, s100")
        wotok = [0]
        wo = []
        for g in range(4):
            a(f"s_lshl_b32 {T[4]}, {sW}, 1", f"s_add_u32 {T[4]}, {T[4]}, {g >> 1}", f"s_add_u32 {T[4]}, {T[4]}, {sCB}", f"s_and_b32 {T[4]}, {T[4]}, 7",
              f"s_lshl_b32 {T[4]}, {T[4]}, 16", f"s_add_u32 {T[g]}, {T[4]}, {(g & 1) * 32768}")
            ins = [f"buffer_load_dwordx4 v{self.vWD0 + i}, {sWO}, {T[g]} offen offset:{1024 * i} lds" for i in range(4)]
            wo += [([f"s_add_u32 m0, {sU[3]}, {LA + g * 4096}"], ins[0]), ([], ins[1]), ([], ins[2]), ([], ins[3])]
        a(f"s_lshl_b32 {T[6]}, {sHEAD}, 2", f"s_add_u32 {T[6]}, {T[6]}, {sW}", f"s_mul_i32 {T[6]}, {T[6]}, 11008")
        pfw = [([f"s_add_u32 {T[6]}, {T[6]}, 4096"] if i and i % 4 == 0 else [],
                f"buffer_load_dwordx4 v[228:231], {vL16}, {sWIN}, {T[6]} offen offset:{(i % 4) * 1024}") for i in range(11)]
        if not self.opt.get("pfw"): pfw = []
        a(f"s_mov_b32 {T[7]}, {sU[4]}", f"s_mov_b32 {sU[4]}, {sCB}")
        w2c = self.win_dma(1, 28, 1, (T[4], T[5], sU[2], sU[0]))
        self.emit(w2c[0][:-1]); a(f"s_mov_b32 {T[4]}, m0", f"s_mov_b32 {sU[4]}, {T[7]}")
        pfw += [([f"s_mov_b32 m0, {T[4]}"], w2c[0][-1]), ([], w2c[1][-1]), ([], w2c[2][-1])]
        pf2 = []
        if self.opt.get("pf2", 1):
            a(f"s_lshl_b32 {T[5]}, s2, 2", f"s_add_u32 {T[5]}, {T[5]}, {sW}", f"s_mul_i32 {T[6]}, {T[5]}, 1376", f"s_mul_i32 {T[7]}, {T[5]}, 688",
              f"s_lshl_b32 {T[5]}, {T[5]}, 9",
              f"v_min_u32 v50, 42, {vLANE}", "v_lshlrev_b32 v50, 4, v50", f"v_min_u32 v51, 21, {vLANE}", "v_lshlrev_b32 v51, 4, v51",
              f"v_min_u32 v49, 31, {vLANE}", "v_lshlrev_b32 v49, 4, v49")
            J = "v[228:231]"
            pf2 = [([], f"buffer_load_dwordx4 {J}, v49, {sWO}, {T[5]} offen"), ([], f"buffer_load_dwordx4 {J}, {vL16}, {sWIN}, {T[6]} offen"),
                   ([], f"buffer_load_dwordx4 {J}, v51, {sWIN}, {T[6]} offen offset:1024"), ([], f"buffer_load_dwordx4 {J}, v50, {sWOUT}, {T[7]} offen")]
        post = {}
        slots = []
        even = self.opt.get("even", 1)
        for t in range(8):
            kv = []
            if t < 6:
                kv = self.kv_dma(t + 2); post[kv[-1][1]] = (lambda t=t: kvtok.__setitem__(t + 2, a.vtok()))
            spl = [([], f"buffer_load_dwordx4 {ar(((2 * t + sub) * 4 + tt) * 4, 4)}, v{self.vSP0 + tt}, {sWSP}, {sU[4 + t]} offen offset:{64 * sub}")
                   for sub in range(2) for tt in range(4)]
            if self.opt.get("nosp"): spl = [None] * 8
            if t < 6:
                ex = [pfw.pop(0) for _ in range(min(4, len(pfw)))]
                ex += [None] * (4 - len(ex))
                if t == self.opt.get("pf2at", 1): ex = pf2 + [None] * (4 - len(pf2))
                oth = kv + ex if t == 0 else [x for pair in zip(kv, ex) for x in pair]
            else:
                oth = [wo.pop(0) for _ in range(8)]
            st = [x for pair in zip(oth, spl) for x in pair] if even else oth + spl
            slots += st
        assert not wo and not pfw, (len(wo), len(pfw))
        last_wo = [x for x in slots if x and str(sWO) in x[1]][-1][1]
        post[last_wo] = lambda: wotok.__setitem__(0, a.vtok())
        def vm_slot(i):
            if i < len(slots) and slots[i]:
                a(slots[i][1])
                if slots[i][1] in post: post[slots[i][1]]()
        def vm_pre(i):
            if i < len(slots) and slots[i]:
                for x in slots[i][0]: a(x)
        vm_pre(0)
        for n in range(128):
            kt, q = n >> 1, n & 1
            b = S + 16 * (n % 3)
            E = lambda lo, hi: [a(f"v_exp_f32 v{b + r}, v{b + r}") for r in range(lo, hi)]
            E(0, 2)
            if n > 0: a(pv(n - 1, 1))
            if q == 0:
                if kt + 2 < 64: a(kread(kt + 2))
                if (kt + 1) & 7 == 0 and kt + 1 < 64:
                    for _ in range(3 if kt + 1 == 32 else 1): a(f"v_add_u32 v{self.vVB}, v{self.vVB}, v{self.vVI}")
            else:
                vm_slot(2 * kt); vm_pre(2 * kt + 1)
            E(2, 7)
            if n + 2 < 128: a(qk(n + 2))
            if q == 0:
                if kt + 1 < 64: a(vread(kt + 1, 0))
            else:
                vm_slot(2 * kt + 1)
            E(7, 12)
            a(pv(n, 0))
            if q == 0:
                if kt + 1 < 64: a(vread(kt + 1, 1))
                if kt > 0: vm_pre(2 * kt)
            elif kt & 7 == 5 and kt < 56:
                a.wait(vm=kvtok[(kt >> 3) + 1], lg=a.lg); self.barrier()
            else:
                a.wait(lg=a.lg)
            E(12, 16)
        a.wait(vm=wotok[0], lg=a.lg)
        a(pv(127, 1))
        self.barrier()
        self.stamp("attn_loop")
        if self.stamps: a("s_memtime s[100:101]", "s_waitcnt lgkmcnt(0)", "s_sub_u32 s99, s100, s99")
        for q in range(2):
            o = OA + 16 * q
            a(f"v_pk_add_f32 {v(8 + 4 * q, 2)}, {v(o, 2)}, {v(o + 2, 2)}", f"v_pk_add_f32 {v(10 + 4 * q, 2)}, {v(o + 4, 2)}, {v(o + 6, 2)}")
        for q in range(2): a(f"v_pk_add_f32 {v(8 + 4 * q, 2)}, {v(8 + 4 * q, 2)}, {v(10 + 4 * q, 2)}")
        a("v_add_f32 v8, v8, v9", "v_add_f32 v12, v12, v13", "v_add_f32 v8, v8, v12", f"v_max_f32 v9, v{OA + 8}, v{OA + 24}",
          f"v_add_f32 v10, v{OA + 8}, v{OA + 24}", "v_add_f32 v8, v8, v10",
          f"s_mov_b32 {T[0]}, 0x207", f"v_cmp_class_f32_e64 vcc, v8, {T[0]}",
          f"s_mov_b64 s[60:61], vcc", f"v_cmp_le_f32 vcc, {f2u(2.0 ** 64)}, v9", "s_or_b64 vcc, vcc, s[60:61]")
        if self.force_fallback: a("s_mov_b64 vcc, -1")
        a("s_cbranch_vccnz L_attn_slow", "L_attn_done:")
        for q in range(2): a(f"v_rcp_f32 v{8 + q}, v{OA + 16 * q + 8}")
        a(f"s_lshr_b32 {T[0]}, {sHEAD}, 1", f"s_lshl_b32 {T[0]}, {T[0]}, 10", f"s_and_b32 {T[1]}, {sHEAD}, 1", f"s_lshl_b32 {T[1]}, {T[1]}, 9",
          f"s_add_u32 {T[0]}, {T[0]}, {T[1]}", f"s_lshl_b32 {T[1]}, {sJ}, 18", f"s_add_u32 {T[0]}, {T[0]}, {T[1]}",
          f"s_lshl_b32 {T[1]}, {sW}, 16", f"s_add_u32 {T[0]}, {T[0]}, {T[1]}", f"s_add_u32 {T[0]}, {T[0]}, {WS_O}", f"s_add_u32 {T[1]}, {T[0]}, 0x8000",
          )
        for q in range(2):
            o = OA + 16 * q
            for k in range(8): a(f"v_mul_f32 v{o + k}, v{o + k}, v{8 + q}")
            for k in range(4): a(f"v_cvt_pk_bf16_f32 v{192 + 4 * q + k}, v{o + 2 * k}, v{o + 2 * k + 1}")
            for hf in range(2):
                a(f"buffer_store_dwordx2 {v(192 + 4 * q + 2 * hf, 2)}, v227, {sWS}, {T[q]} offen offset:{256 * hf} sc1")
        self.w128_read_base(28, 2)
        rd = [f"ds_read_b64_tr_b16 {v(64 + (nt * 16 + p) * 4 + 2 * hf, 2)}, v{28 + nt} offset:{LA + p * 4096 + hf * 512}"
              for p in range(16) for nt in range(2) for hf in range(2)]
        a(f"s_lshl_b32 {T[0]}, {sJ}, 2", f"s_add_u32 {T[0]}, {T[0]}, {sW}", f"s_lshl_b32 {T[0]}, {T[0]}, 12",
          f"s_lshl_b32 {T[1]}, {sHEAD}, 7", f"s_add_u32 {T[0]}, {T[0]}, {T[1]}", f"s_add_u32 {T[0]}, {T[0]}, {WS_F2}")
        k = self.opt.get("rdpre", 24)
        self.emit(rd[:k])
        self.flag_store(T[0])
        self.stamp("attn_pub")
        self.emit(rd[k:])
        a(f"s_lshl_b32 {T[6]}, {sRH}, 15", f"s_lshl_b32 {T[3]}, {sR0}, 10", f"s_add_u32 {T[6]}, {T[6]}, {T[3]}",
          f"s_lshl_b32 {T[3]}, {sCB}, 7", f"s_add_u32 {T[6]}, {T[6]}, {T[3]}", f"s_lshl_b32 {T[3]}, {sCH}, 6", f"s_add_u32 {T[6]}, {T[6]}, {T[3]}",
          f"s_add_u32 {T[3]}, {T[6]}, 0x4000")
        for rt in range(2):
            for nt in range(2):
                a(f"buffer_load_dwordx2 {v(self.vXR + 4 * rt + 2 * nt, 2)}, v62, {sX}, {T[6] if rt == 0 else T[3]} offen offset:{32 * nt}")

    def w128_read_base(self, b, n):
        a = self.a
        a(f"v_lshrrev_b32 v64, 4, {vLANE}", f"v_bfe_u32 v65, {vLANE}, 2, 2", f"v_and_b32 v66, 3, {vLANE}",
          "v_lshl_add_u32 v67, v64, 3, v65", "v_lshlrev_b32 v67, 7, v67", "v_lshl_add_u32 v67, v66, 3, v67",
          "v_lshrrev_b32 v65, 1, v65", "v_and_b32 v64, 1, v64", "v_lshl_or_b32 v65, v64, 1, v65",
          f"s_lshl_b32 {T[3]}, {sCH}, 1", f"v_xor_b32 v65, {T[3]}, v65", f"v_lshl_add_u32 v{b}, v65, 5, v67")
        for i in range(1, n): a(f"v_xor_b32 v{b + i}, {32 * i}, v{b}")

    def attn_slow(self):
        a = self.a
        S, OA, NM, QF, KB, VB = self.S, self.OA, self.NM, self.QF, self.KB, self.VB
        a.vm_done = a.vm; a.lg_done = a.lg
        a("L_attn_slow:", "s_nop 15", f"s_lshl_b32 {T[0]}, {sHEAD}, 17", f"s_add_u32 {T[0]}, {T[0]}, {WS_KV}",
          f"v_mov_b32 v8, 0xff800000", f"v_mov_b32 v10, 0xff800000", f"s_mov_b32 {T[1]}, 0")
        def kaddr():
            a(f"s_lshr_b32 {T[2]}, {T[1]}, 1", f"s_lshl_b32 {T[2]}, {T[2]}, 12", f"s_and_b32 {T[3]}, {T[1]}, 1", f"s_lshl_b32 {T[3]}, {T[3]}, 10",
              f"s_add_u32 {T[2]}, {T[2]}, {T[3]}", f"s_add_u32 {T[2]}, {T[2]}, {T[0]}")
        a("L_slow_max:"); kaddr()
        a(f"buffer_load_dwordx4 {v(KB, 4)}, {vL16}, {sWS}, {T[2]} offen sc1"); a.wait(vm=a.vm, force=True)
        for q in range(2):
            a(f"v_mfma_f32_32x32x16_bf16 {v(S + 16 * q, 16)}, {v(KB, 4)}, {v(QF + 4 * q, 4)}, 0")
        for q in range(2):
            b, m = S + 16 * q, 8 + 2 * q
            for k in range(0, 16, 2): a(f"v_max3_f32 v{m}, v{m}, v{b + k}, v{b + k + 1}")
        a(f"s_add_u32 {T[1]}, {T[1]}, 1", f"s_cmp_lt_u32 {T[1]}, 64", "s_cbranch_scc1 L_slow_max")
        a("v_mov_b32 v9, v8", "v_mov_b32 v11, v10")
        for q in range(2): a(f"v_permlane32_swap_b32 v{8 + 2 * q}, v{9 + 2 * q}")
        for q in range(2):
            m = 8 + 2 * q
            a(f"v_max_f32 v{m}, v{m}, v{m + 1}", f"v_sub_f32 v{m}, 0, v{m}")
            for r in range(16): a(f"v_mov_b32 v{NM + 16 * q + r}, v{m}")
        for r in range(OA, OA + 32): a(f"v_mov_b32 v{r}, 0")
        a(f"v_and_b32 v8, 27, {vLANE}", "v_cmp_eq_u32 vcc, 16, v8", f"v_mov_b32 v9, {sONES}", "v_cndmask_b32 v9, v3, v9, vcc")
        for r in range(8): a(f"v_mov_b32 v{VB + r}, v9")
        a(f"v_and_b32 v8, 15, {vLANE}", f"v_lshrrev_b32 v10, 5, {vLANE}", "v_lshl_add_u32 v10, v10, 4, v8", "v_lshlrev_b32 v10, 4, v10",
          f"s_mov_b32 {T[1]}, 0", "s_mov_b32 s60, 0x0000ffff", "s_mov_b32 s61, 0x0000ffff")
        a("L_slow_pv:"); kaddr()
        a(f"buffer_load_dwordx4 {v(KB, 4)}, {vL16}, {sWS}, {T[2]} offen sc1", f"s_add_u32 {T[2]}, {T[2]}, 2048", "s_mov_b64 exec, s[60:61]",
          f"buffer_load_dwordx4 {v(VB, 4)}, v10, {sWS}, {T[2]} offen sc1",
          f"buffer_load_dwordx4 {v(VB + 4, 4)}, v10, {sWS}, {T[2]} offen offset:512 sc1", "s_mov_b64 exec, -1")
        a.wait(vm=a.vm, force=True)
        for q in range(2):
            a(f"v_mfma_f32_32x32x16_bf16 {v(S + 16 * q, 16)}, {v(KB, 4)}, {v(QF + 4 * q, 4)}, {v(NM + 16 * q, 16)}")
        for q in range(2):
            for r in range(16): a(f"v_exp_f32 v{S + 16 * q + r}, v{S + 16 * q + r}")
            for hi in range(2):
                a(f"v_smfmac_f32_32x32x32_bf16 {v(OA + 16 * q, 16)}, {v(VB + 4 * hi, 4)}, {v(S + 16 * q + 8 * hi, 8)}, v{self.vIDX}")
        a(f"s_add_u32 {T[1]}, {T[1]}, 1", f"s_cmp_lt_u32 {T[1]}, 64", "s_nop 15", "s_cbranch_scc1 L_slow_pv", "s_nop 15", "s_branch L_attn_done")

    def rot_table(self, npairs, mul):
        a = self.a
        a(f"s_mul_i32 {sU[4]}, {sCB}, {mul}")

    @staticmethod
    def gpos(p): return LRED + 4096 * p if p < 16 else 4096 * (p - 16)

    def rot_index(self, dst, pos, npairs):
        L = [f"s_add_u32 {dst}, {sU[4]}, {pos}"]
        if npairs & (npairs - 1) == 0: L.append(f"s_and_b32 {dst}, {dst}, {npairs - 1}")
        else: L += [f"s_cmp_ge_u32 {dst}, {npairs}", f"s_cselect_b32 {T[7]}, {npairs}, 0", f"s_sub_u32 {dst}, {dst}, {T[7]}"]
        return L

    def act_dma(self, ws_off, steps, chunks, lds0, gpos=False):
        a = self.a
        a(f"s_lshr_b32 {T[0]}, {sR0}, 4", f"s_add_u32 {T[0]}, {T[0]}, {sW}", f"s_mul_i32 {T[0]}, {T[0]}, {steps * 1024}",
          f"s_add_u32 {sU[0]}, {T[0]}, {ws_off}", f"s_mul_i32 {T[1]}, {sW}, {1024 if gpos else steps * 1024}", f"s_add_u32 {sU[1]}, {T[1]}, {lds0}")
        toks = {}
        def group(c):
            p0 = sum(chunks[:c]); L = []
            for k in range(chunks[c]):
                p = p0 + k
                it = []
                if k % 2 == 0:
                    it += self.rot_index(T[2], p >> 1, steps // 2)
                    it += [f"s_lshl_b32 {T[2]}, {T[2]}, 11", f"s_add_u32 {T[2]}, {T[2]}, {sU[0]}"]
                    if not gpos: it.append(f"s_add_u32 m0, {sU[1]}, {p * 1024}")
                if gpos: it.append(f"s_add_u32 m0, {sU[1]}, {self.gpos(p) - (k % 2) * 1024}")
                it.append(f"buffer_load_dwordx4 {vL16}, {sWS}, {T[2]} offen offset:{(k % 2) * 1024} sc1 lds")
                L.append(it)
            L[-1].append(lambda: toks.__setitem__(c, a.vtok()))
            return L
        return group, toks

    def cluster_flag_off(self, dst, base, own, shift=8):
        a = self.a
        a(f"s_lshl_b32 {dst}, {sCLU}, {shift}", f"s_add_u32 {dst}, {dst}, {base}")
        if own: a(f"s_lshl_b32 {T[7]}, {sCB}, 3", f"s_add_u32 {dst}, {dst}, {T[7]}")

    def stats_publish(self, s, base):
        a = self.a
        a(f"v_permlane32_swap_b32 v{s}, v{s + 1}", f"v_permlane32_swap_b32 v{s + 2}, v{s + 3}",
          f"v_add_f32 v{s}, v{s}, v{s + 1}", f"v_add_f32 v{s + 2}, v{s + 2}, v{s + 3}",
          f"v_permlane16_swap_b32 v{s}, v{s + 2}", f"v_add_f32 v{s}, v{s}, v{s + 2}")
        a(f"s_lshl_b32 {T[4]}, {sCLU}, 13", f"s_add_u32 {T[4]}, {T[4]}, {base}", f"s_lshl_b32 {T[5]}, {sRH}, 7", f"s_add_u32 {T[4]}, {T[4]}, {T[5]}",
          f"s_lshl_b32 {T[5]}, {sCB}, 1", f"s_add_u32 {T[5]}, {T[5]}, {sCH}", f"s_lshl_b32 {T[5]}, {T[5]}, 9", f"s_add_u32 {T[4]}, {T[4]}, {T[5]}",
          f"buffer_store_dword v{s}, v61, {sWS}, {T[4]} offen sc1")

    def stats_load(self, base, r):
        a = self.a
        a(f"s_lshl_b32 {T[4]}, {sCLU}, 13", f"s_add_u32 {T[4]}, {T[4]}, {base}", f"s_lshl_b32 {T[5]}, {sRH}, 7", f"s_add_u32 {T[4]}, {T[4]}, {T[5]}",
          f"s_add_u32 {T[5]}, {T[4]}, 4096")
        for p in range(16):
            a(f"buffer_load_dword v{r + p}, v61, {sWS}, {T[4] if p < 8 else T[5]} offen offset:{(p % 8) * 512} sc1")
        return a.vtok()

    SGR = 64
    def stats_publish_tagged(self, s, base):
        a = self.a
        a(f"v_permlane32_swap_b32 v{s}, v{s + 1}", f"v_permlane32_swap_b32 v{s + 2}, v{s + 3}",
          f"v_add_f32 v{s}, v{s}, v{s + 1}", f"v_add_f32 v{s + 2}, v{s + 2}, v{s + 3}",
          f"v_permlane16_swap_b32 v{s}, v{s + 2}", f"v_add_f32 v{s}, v{s}, v{s + 2}", f"v_mov_b32 v{s + 1}, v{s}",
          f"v_mov_b32 v{s + 2}, v4", f"v_mov_b32 v{s + 3}, v5", f"v_permlane32_swap_b32 v{s}, v{s + 1}")
        a(f"s_lshl_b32 {T[4]}, {sCLU}, 14", f"s_add_u32 {T[4]}, {T[4]}, {base}", f"s_lshl_b32 {T[5]}, {sRH}, 13", f"s_add_u32 {T[4]}, {T[4]}, {T[5]}",
          f"s_lshl_b32 {T[5]}, {sCB}, 1", f"s_add_u32 {T[5]}, {T[5]}, {sCH}", f"s_lshl_b32 {T[5]}, {T[5]}, 9", f"s_add_u32 {T[4]}, {T[4]}, {T[5]}",
          "s_mov_b32 exec_hi, 0", f"buffer_store_dwordx4 {v(s, 4)}, {vL16}, {sWS}, {T[4]} offen sc1", "s_mov_b32 exec_hi, -1")

    def stats_tagged_loads(self, base, r):
        L = [[f"buffer_load_dwordx4 {v(r + 4 * p, 4)}, v61, {sWS}, {sU[3]} offen offset:{512 * p} sc1"] for p in range(8)]
        L[0] = [f"s_lshl_b32 {sU[3]}, {sCLU}, 14", f"s_add_u32 {sU[3]}, {sU[3]}, {base}", f"s_lshl_b32 {T[5]}, {sRH}, 13", f"s_add_u32 {sU[3]}, {sU[3]}, {T[5]}",
                f"v_and_b32 v61, 31, {vLANE}", "v_lshlrev_b32 v61, 4, v61", f"v_lshrrev_b32 v54, 5, {vLANE}", "v_lshl_add_u32 v61, v54, 12, v61"] + L[0]
        return L

    def stats_tagged_finish(self, base, r, inv_n, d):
        a = self.a
        L, E = a.label("st_retry"), a.label("st_ok")
        a(f"s_mov_b32 {sPOLL}, 0x40000", f"{L}:")
        a.wait(vm=a.vm, force=True)
        a(f"v_cmp_ne_u64 s[60:61], {sTAG}, {v(r + 2, 2)}")
        for p in range(1, 8): a(f"v_cmp_ne_u64 vcc, {sTAG}, {v(r + 4 * p + 2, 2)}", "s_or_b64 s[60:61], s[60:61], vcc")
        a("s_cmp_eq_u64 s[60:61], 0", f"s_cbranch_scc1 {E}", f"s_sub_u32 {sPOLL}, {sPOLL}, 1", f"s_cbranch_scc1 {E}")
        a.cond_begin()
        for it in self.stats_tagged_loads(base, r)[0][-1:]: a(it)
        for it in self.stats_tagged_loads(base, r)[1:]: self.emit(it)
        a.cond_end()
        a(f"s_branch {L}", f"{E}:")
        a.vm_done = a.vm
        for st in (16, 8, 4):
            for k in range(0, st, 4): a(f"v_pk_add_f32 {v(r + k, 2)}, {v(r + k, 2)}, {v(r + st + k, 2)}")
        a(f"v_mov_b32 v{r + 2}, v{r}", f"v_mov_b32 v{r + 3}, v{r + 1}",
          f"v_permlane32_swap_b32 v{r}, v{r + 2}", f"v_permlane32_swap_b32 v{r + 1}, v{r + 3}",
          f"v_pk_add_f32 {v(r, 2)}, {v(r, 2)}, {v(r + 2, 2)}")
        self.ln_finish([(r, r + 1, d)], inv_n)
        a(f"v_mov_b32 v{d + 2}, v{d}", f"v_mov_b32 v{d + 3}, v{d + 1}",
          f"v_permlane16_swap_b32 v{d}, v{d + 2}", f"v_permlane16_swap_b32 v{d + 1}, v{d + 3}")

    STR = 216
    def stats_load_items(self, base, r):
        L = []
        for p in range(16):
            it = []
            if p == 0:
                it += [f"s_lshl_b32 {T[4]}, {sCLU}, 13", f"s_add_u32 {T[4]}, {T[4]}, {base}", f"s_lshl_b32 {T[5]}, {sRH}, 7",
                       f"s_add_u32 {T[4]}, {T[4]}, {T[5]}", f"s_add_u32 {T[5]}, {T[4]}, 4096"]
            it.append(f"buffer_load_dword v{r + p}, v61, {sWS}, {T[4] if p < 8 else T[5]} offen offset:{(p % 8) * 512} sc1")
            L.append(it)
        return L

    def stats_finish(self, r, inv_n, d):
        a = self.a
        for st in (8, 4, 2):
            for k in range(0, st, 2): a(f"v_pk_add_f32 {v(r + k, 2)}, {v(r + k, 2)}, {v(r + st + k, 2)}")
        a(f"v_add_f32 v{r}, v{r}, v{r + 1}", f"v_mov_b32 v{r + 1}, v{r}", f"v_permlane32_swap_b32 v{r}, v{r + 1}")
        self.ln_finish([(r, r + 1, d)], inv_n)
        a(f"v_mov_b32 v{d + 2}, v{d}", f"v_mov_b32 v{d + 3}, v{d + 1}",
          f"v_permlane16_swap_b32 v{d}, v{d + 2}", f"v_permlane16_swap_b32 v{d + 1}, v{d + 3}")

    def win_addresses(self):
        a = self.a
        for i in range(3):
            a(f"v_add_u32 v16, {64 * i}, {vLANE}", "v_mul_u32_u24 v17, 171, v16", "v_lshrrev_b32 v17, 11, v17",
              "v_mul_u32_u24 v18, 12, v17", "v_sub_u32 v18, v16, v18", "v_bfe_u32 v19, v17, 3, 1", "v_lshlrev_b32 v19, 1, v19",
              "v_xor_b32 v18, v18, v19", "v_mul_u32_u24 v17, 2752, v17", "v_lshl_add_u32 v17, v18, 4, v17",
              f"v_add_u32 v{56 + i}, {-1024 * i}, v17")
        a(f"v_lshrrev_b32 v16, 4, {vLANE}", f"v_bfe_u32 v17, {vLANE}, 2, 2", f"v_and_b32 v18, 3, {vLANE}",
          "v_lshl_add_u32 v19, v16, 3, v17", "v_mul_u32_u24 v19, 192, v19", "v_lshl_add_u32 v19, v18, 3, v19",
          "v_and_b32 v17, 1, v16", f"v_xor_b32 v17, {sCH}, v17", "v_lshl_add_u32 v59, v17, 5, v19", "v_add_u32 v60, 49152, v59",
          f"v_and_b32 v17, 15, {vLANE}", "v_lshlrev_b32 v17, 2, v17", "v_and_b32 v18, 1, v16", "v_lshl_add_u32 v17, v18, 6, v17",
          "v_lshrrev_b32 v16, 1, v16", "v_lshl_add_u32 v61, v16, 8, v17")

    def win_dma(self, half, g0, per_wave, regs=None, wave=sW):
        r5, r6, r2, r7 = regs or (sU[5], sU[6], sU[2], sU[7])
        L = []
        for k in range(per_wave):
            for i in range(3):
                it = []
                if k == 0 and i == 0:
                    it += [f"s_lshl_b32 {r5}, {sT0}, 5", f"s_mul_i32 {r6}, {wave}, {per_wave}", f"s_lshl_b32 {r2}, {sU[4]}, 2",
                           f"s_add_u32 {r2}, {r2}, {r6}", f"s_mul_i32 {r6}, {r6}, 3072"]
                if i == 0:
                    it += [f"s_add_u32 {r7}, {r2}, {g0 + k}", f"s_and_b32 {r7}, {r7}, 31", f"s_mul_i32 {r7}, {r7}, {16 * 2752}",
                           f"s_add_u32 {r7}, {r7}, {r5}"]
                    if half: it.append(f"s_add_u32 {r7}, {r7}, 1376")
                    it.append(f"s_add_u32 m0, {r6}, {(g0 + k) * 3072}")
                it.append(f"buffer_load_dwordx4 v{56 + i}, {sWIN}, {r7} offen offset:{1024 * i} lds")
                L.append(it)
        return L

    def kloop(self, n, reads, mfmas, before={}, late={}, head=None, per=2):
        a = self.a
        tok = {}
        for s in range(min(2, n)):
            if s in (head or {}): head[s]()
            self.emit(reads(s)); tok[s] = a.ltok()
        for s in range(n):
            a.wait(lg=tok[s])
            if s in before: before[s]()
            ms = mfmas(s)
            fill = list(reads(s + 2)) + [lambda s=s: tok.__setitem__(s + 2, a.ltok())] if s + 2 < n else []
            lt = list(late.get(s, []))
            k = len(ms) - len(lt)
            assert k >= 1, (s, len(ms), len(lt))
            interleave(a, ms[:k], fill, per=per)
            for m, it in zip(ms[k:], lt):
                a(m); self.emit(it)

    def emit_all(self, items):
        for it in items: self.emit(it)

    def emit(self, items):
        for x in items: x() if callable(x) else self.a(x)

    def phase_wo(self):
        a = self.a
        ACC = 192
        a(f"s_mov_b32 {sU[4]}, {sCB if not self.opt.get('noarot') else 0}")
        group, toks = self.act_dma(WS_O, 16, [4, 4, 4, 4], LB)
        self.cluster_flag_off(T[3], WS_F2, False, 12)
        a(f"s_lshl_b32 {T[4]}, {sRH}, 15", f"s_add_u32 {T[4]}, {T[4]}, {LB}", f"v_add_u32 v30, {T[4]}, {vL16}")
        a.wait(lg=a.lg)
        self.barrier()
        n2 = 3
        Lp, Le = a.label("s2poll"), a.label("s2end")
        done = a.vm_done
        a(f"s_cmp_eq_u32 {sW}, 0", f"s_cbranch_scc1 {Lp}", f"s_sub_u32 {T[5]}, {sW}, 1")
        a.cond_begin()
        self.emit_all(self.win_dma(1, 0, 4, wave=T[5]))
        a(f"s_branch {Le}", f"{Lp}:")
        self.poll(vFP32, T[3], 52)
        a.cond_end()
        a(f"{Le}:")
        a.vm_done = done
        self.barrier()
        self.stamp("s2")
        for c in range(2): self.emit_all(group(c))
        def buf(s, rt): return (208 + (s % 4) * 8 + rt * 4)
        def reads(s): return [f"ds_read_b128 {v(buf(s, rt), 4)}, v30 offset:{(rt * 16 + s) * 1024}" for rt in range(2)]
        def mfmas(s):
            return [mfma16(ACC + (rt * 2 + nt) * 4, v(64 + (nt * 16 + s) * 4, 4), v(buf(s, rt), 4), "0" if s == 0 else None) for rt in range(2) for nt in range(2)]
        def w(c):
            def f():
                a.wait(vm=toks[c]); self.barrier()
            return f
        def head0():
            a.wait(vm=toks[0], lg=a.lg); self.barrier()
        g2, g3 = group(2), group(3)
        w2 = self.win_dma(1, 4 * n2, 7 - n2)
        late = {0: g2[:2], 1: g2[2:], 2: g3[:2], 3: g3[2:]}
        for i in range(min(len(w2), self.opt.get("w2in", 9))): late[5 + i] = [w2.pop(0)]
        self.kloop(16, reads, mfmas, {2: w(1), 6: w(2), 10: w(3)}, late, {0: head0}, per=1)
        self.w2rest = w2
        self.stamp("wo_gemm")
        XR = self.vXR
        for i in range(4):
            for k in range(2):
                a(f"v_lshlrev_b32 v{32 + 4 * i + 2 * k}, 16, v{XR + 2 * i + k}", f"v_and_b32 v{33 + 4 * i + 2 * k}, {sHIMASK}, v{XR + 2 * i + k}")
        for i in range(4):
            for k in range(2): a(f"v_pk_add_f32 {v(ACC + 4 * i + 2 * k, 2)}, {v(ACC + 4 * i + 2 * k, 2)}, {v(32 + 4 * i + 2 * k, 2)}")
        for i in range(4):
            for k in range(2): a(f"v_cvt_pk_bf16_f32 v{vH + 2 * i + k}, v{ACC + 4 * i + 2 * k}, v{ACC + 4 * i + 2 * k + 1}")
        a(f"s_lshr_b32 {T[0]}, {sR0}, 4", f"s_lshl_b32 {T[1]}, {sRH}, 1", f"s_add_u32 {T[0]}, {T[0]}, {T[1]}", f"s_lshl_b32 {T[0]}, {T[0]}, 14",
          f"s_lshl_b32 {T[1]}, {sCB}, 1", f"s_add_u32 {T[1]}, {T[1]}, {sCH}", f"s_lshl_b32 {T[1]}, {T[1]}, 10", f"s_add_u32 {T[0]}, {T[0]}, {T[1]}",
          f"s_add_u32 {T[0]}, {T[0]}, {WS_H}", f"s_add_u32 {T[1]}, {T[0]}, 0x4000")
        for rt in range(2):
            for nt in range(2):
                a(f"buffer_store_dwordx2 {v(vH + 4 * rt + 2 * nt, 2)}, {vPAT}, {sWS}, {T[rt]} offen offset:{512 * nt} sc1")
        for k in range(4):
            for rt in range(2):
                h = f"v{vH + 4 * rt + k}"
                a(f"v_dot2_f32_bf16 v{32 + 2 * rt}, {h}, {sONES}, {'0' if k == 0 else 'v%d' % (32 + 2 * rt)}",
                  f"v_dot2_f32_bf16 v{33 + 2 * rt}, {h}, {h}, {'0' if k == 0 else 'v%d' % (33 + 2 * rt)}")
        self.stats_publish(32, WS_ST3)
        self.cluster_flag_off(T[0], WS_F3, True)
        self.flag_store_wg(T[0])
        self.stamp("wo_pub")

    HF, ACC2, ACC1, WB, CS = 64, 192, 216, 28, 240

    def win_reads(self, s, read_h):
        L = []
        base = "v59" if s < 8 else "v60"
        for m in range(3):
            for hf in range(2):
                L.append(f"ds_read_b64_tr_b16 {v(self.wbuf(s) + 4 * m + 2 * hf, 2)}, {base} offset:{(s & 7) * 6144 + hf * 768 + m * 64}")
            if m == 0 and read_h:
                L += [f"ds_read_b128 {v(self.HF + (rt * 16 + s) * 4, 4)}, v55 offset:{(rt * 16 + s) * 1024}" for rt in range(2)]
        return L

    def wbuf(self, s): return (28, 40, 16)[s % 3]

    def win_gemm(self, acc, before, head, read_h, late={}):
        HF = self.HF
        def mfmas(s):
            return [mfma16(acc + (rt * 3 + m) * 4, v(self.wbuf(s) + 4 * m, 4), v(HF + (rt * 16 + s) * 4, 4), "0" if s == 0 else None)
                    for m in range(3) for rt in range(2)]
        self.kloop(16, lambda s: self.win_reads(s, read_h), mfmas, before, late, head)

    def colsum_pass(self, late={}):
        def mfmas(s): return [mfma16(self.CS + 4 * m, v(self.wbuf(s) + 4 * m, 4), "v[252:255]", "0" if s == 0 else None) for m in range(3)]
        self.kloop(16, lambda s: self.win_reads(s, False), mfmas, {}, late, per=3)

    def gelu_block(self, acc, st, tiles):
        a = self.a
        CS = self.CS
        K1 = -2.0 * 1.4426950408889634 * 0.7978845608028654
        K2 = K1 * 0.044715
        a(f"s_mov_b32 s60, {f2u(K2)}", f"s_mov_b32 s61, {f2u(K2)}", f"v_mov_b32 v52, {f2u(K1)}", f"v_mov_b32 v53, {f2u(K1)}")
        for i in range(0, len(tiles), 2):
            prs = [(acc + (rt * 3 + m) * 4 + 2 * k, CS + 4 * m + 2 * k, st + 2 * rt) for rt, m in tiles[i:i + 2] for k in range(2)]
            tm = [40, 42, 44, 46]
            for (x, c, r), t in zip(prs, tm): a(f"v_pk_mul_f32 {v(t, 2)}, {v(c, 2)}, {v(r, 2)} op_sel:[0,1] op_sel_hi:[1,1]")
            for (x, c, r), t in zip(prs, tm): a(f"v_pk_fma_f32 {v(x, 2)}, {v(x, 2)}, {v(r, 2)}, {v(t, 2)} op_sel:[0,0,0] op_sel_hi:[1,0,1]")
            for (x, c, r), t in zip(prs, tm): a(f"v_pk_mul_f32 {v(t, 2)}, {v(x, 2)}, {v(x, 2)}")
            for (x, c, r), t in zip(prs, tm): a(f"v_pk_fma_f32 {v(t, 2)}, {v(t, 2)}, s[60:61], v[52:53]")
            for (x, c, r), t in zip(prs, tm): a(f"v_pk_mul_f32 {v(t, 2)}, {v(t, 2)}, {v(x, 2)}")
            for k in range(8): a(f"v_exp_f32 v{40 + k}, v{40 + k}")
            for (x, c, r), t in zip(prs, tm): a(f"v_pk_add_f32 {v(t, 2)}, {v(t, 2)}, v[32:33]")
            for k in range(8): a(f"v_rcp_f32 v{40 + k}, v{40 + k}")
            for (x, c, r), t in zip(prs, tm): a(f"v_pk_mul_f32 {v(x, 2)}, {v(x, 2)}, {v(t, 2)}")

    def phase_win(self):
        a = self.a
        HF, ACC2, ACC1, CS = self.HF, self.ACC2, self.ACC1, self.CS
        self.emit_all(self.w2rest)
        for r in range(252, 256): a(f"v_mov_b32 v{r}, {sONES}")
        a(f"s_lshl_b32 {T[4]}, {sRH}, 15", f"s_add_u32 {T[4]}, {T[4]}, {LB}", f"v_add_u32 v55, {T[4]}, {vL16}")
        group, toks = self.act_dma(WS_H, 16, [4, 4, 4, 4], LB)
        self.cluster_flag_off(T[3], WS_F3, False)
        a.wait(vm=a.vm)
        self.barrier()
        ptok = [0]
        self.colsum_pass({self.opt.get("p3at", 12): [self.poll_early(vFP8, T[3], 52) + [lambda: ptok.__setitem__(0, a.vtok())]]})
        self.stamp("cs2")
        self.poll_late(vFP8, T[3], 52, ptok[0])
        self.stamp("s3")
        for c in range(2): self.emit_all(group(c))
        def w(c):
            def f():
                a.wait(vm=toks[c]); self.barrier()
            return f
        g2, g3 = group(2), group(3)
        stl = self.stats_load_items(WS_ST3, self.STR)
        late = {0: g2[:2], 1: g2[2:], 2: g3[:2], 3: g3[2:]}
        for i in range(4): late[4 + i] = stl[4 * i:4 * i + 4]
        w1a = self.win_dma(0, 0, 3)
        for i in range(8): late[8 + i] = w1a[i:i + 1] if i < 7 else w1a[7:]
        stk = [0]
        late[7][-1].append(lambda: stk.__setitem__(0, a.vtok()))
        self.win_gemm(ACC2, {2: w(1), 6: w(2), 10: w(3)}, {0: w(0)}, True, late)
        stok = stk[0]
        self.barrier()
        self.stamp("z2_gemm")
        w1tok = [a.vtok(), 0, 0]
        wb, wc = self.win_dma(0, 12, 3), self.win_dma(0, 24, 2)
        wb[-1].append(lambda: w1tok.__setitem__(1, a.vtok())); wc[-1].append(lambda: w1tok.__setitem__(2, a.vtok()))
        rest = wb + wc
        k = self.opt.get("w1pre", 6)
        a.wait(vm=stok)
        self.emit_all(rest[:k]); rest = rest[k:]
        self.stats_finish(self.STR, 1.0 / 512, 34)
        a("v_mov_b32 v32, 1.0", "v_mov_b32 v33, 1.0")
        T5 = [(0, 0), (1, 0), (0, 1), (1, 1)]
        self.gelu_block(ACC2, 34, T5 + [(0, 2), (1, 2)])
        for rt in range(2):
            x = ACC2 + rt * 12
            a(f"v_pk_add_f32 {v(40 + 4 * rt, 2)}, {v(x, 2)}, {v(x + 2, 2)}", f"v_pk_mul_f32 {v(42 + 4 * rt, 2)}, {v(x, 2)}, {v(x, 2)}")
            a(f"v_pk_fma_f32 {v(42 + 4 * rt, 2)}, {v(x + 2, 2)}, {v(x + 2, 2)}, {v(42 + 4 * rt, 2)}")
            for k in (4, 6):
                a(f"v_pk_add_f32 {v(40 + 4 * rt, 2)}, {v(40 + 4 * rt, 2)}, {v(x + k, 2)}",
                  f"v_pk_fma_f32 {v(42 + 4 * rt, 2)}, {v(x + k, 2)}, {v(x + k, 2)}, {v(42 + 4 * rt, 2)}")
        a(f"s_and_b32 {sU[8]}, {sCNT5}, {sCH}", f"s_cmp_lg_u32 {sU[8]}, 0", "s_cbranch_scc1 L_skip_st")
        for rt in range(2):
            x = ACC2 + rt * 12
            for k in (8, 10):
                a(f"v_pk_add_f32 {v(40 + 4 * rt, 2)}, {v(40 + 4 * rt, 2)}, {v(x + k, 2)}",
                  f"v_pk_fma_f32 {v(42 + 4 * rt, 2)}, {v(x + k, 2)}, {v(x + k, 2)}, {v(42 + 4 * rt, 2)}")
        a("L_skip_st:", "v_add_f32 v48, v40, v41", "v_add_f32 v49, v42, v43", "v_add_f32 v50, v44, v45", "v_add_f32 v51, v46, v47")
        self.stats_publish_tagged(48, WS_ST4)
        self.stamp("z2_pub")
        a("v_mov_b32 v52, v34", "v_mov_b32 v53, v35", "v_mov_b32 v62, v36", "v_mov_b32 v63, v37")
        def w1(c):
            def f():
                a.wait(vm=w1tok[c]); self.barrier()
            return f
        late = {i: rest[2 * i:2 * i + 2] for i in range((len(rest) + 1) // 2)}
        sl = self.stats_tagged_loads(WS_ST4, self.SGR)
        for i in range(4): late[12 + i] = sl[2 * i:2 * i + 2]
        self.win_gemm(ACC1, {4: w1(1), 10: w1(2)}, {0: w1(0)}, False, late)
        self.stamp("z1_gemm")
        a(f"v_and_b32 v20, 15, {vLANE}", f"v_lshrrev_b32 v21, 4, {vLANE}", "v_lshlrev_b32 v21, 2, v21", "v_sub_u32 v20, v20, v21",
          "v_mov_b32 v21, 0x3f80", "v_mov_b32 v22, 0x3f800000")
        for k, (r, c) in enumerate(((24, 21), (24, 22), (25, 21), (25, 22))):
            a(f"v_cmp_eq_u32 vcc, {k}, v20")
            if k & 1 == 0: a(f"v_cndmask_b32 v{r}, v3, v{c}, vcc")
            else: a(f"v_cndmask_b32 v{r}, v{r}, v{c}, vcc")
        self.stats_tagged_finish(WS_ST4, self.SGR, 1.0 / 688, 20)
        self.stamp("s4")
        a(f"s_add_u32 {T[0]}, {sT0}, {sCH}", f"s_lshl_b32 {T[0]}, {T[0]}, 16", f"s_lshl_b32 {T[1]}, {sR0}, 5", f"s_add_u32 {T[0]}, {T[0]}, {T[1]}",
          f"s_lshl_b32 {T[1]}, {sRH}, 10", f"s_add_u32 {T[0]}, {T[0]}, {T[1]}", f"s_add_u32 {sU[9]}, {T[0]}, {WS_Z}",
          f"s_add_u32 {sU[10]}, {sU[9]}, 0x20000", f"s_add_u32 {sU[11]}, {sU[9]}, 0x40000")
        def znorm(m):
            for rt in range(2):
                x = ACC2 + (rt * 3 + m) * 4
                for k in range(2):
                    a(f"v_pk_fma_f32 {v(x + 2 * k, 2)}, {v(x + 2 * k, 2)}, {v(20 + 2 * rt, 2)}, {v(20 + 2 * rt, 2)} op_sel:[0,0,1] op_sel_hi:[1,0,1]")
            for rt in range(2):
                x = ACC2 + (rt * 3 + m) * 4
                for k in range(2): a(f"v_cvt_pk_bf16_f32 v{x + k}, v{x + 2 * k}, v{x + 2 * k + 1}")
            for rt in range(2):
                x = ACC2 + (rt * 3 + m) * 4
                a(f"v_mfma_f32_16x16x16_bf16 {v(28 + 8 * (m & 1) + 4 * rt, 4)}, {v(x, 2)}, v[24:25], 0")
        def zstore(m):
            for rt in range(2):
                d = 28 + 8 * (m & 1) + 4 * rt
                a(f"v_cvt_pk_bf16_f32 v{d}, v{d}, v{d + 1}", f"v_cvt_pk_bf16_f32 v{d + 1}, v{d + 2}, v{d + 3}",
                  f"buffer_store_dwordx2 {v(d, 2)}, {vPAT}, {sWS}, {sU[9 + m]} offen offset:{512 * rt} sc1")
        znorm(0); znorm(1); zstore(0)
        a(f"s_cmp_lg_u32 {sU[8]}, 0", "s_cbranch_scc1 L_skip_z")
        a.cond_begin(); znorm(2); a("s_nop 7"); zstore(2); a.cond_end()
        a("L_skip_z:", "s_nop 7")
        zstore(1)
        a(f"s_lshl_b32 {T[0]}, {sRB}, 3", f"s_add_u32 {T[0]}, {T[0]}, {sCB}", f"s_lshl_b32 {T[0]}, {T[0]}, 8",
          f"s_lshl_b32 {T[1]}, {sJ}, 3", f"s_add_u32 {T[0]}, {T[0]}, {T[1]}", f"s_add_u32 {T[0]}, {T[0]}, {WS_F5}")
        self.flag_store_wg(T[0])
        self.stamp("z2n_pub")
        a("v_mov_b32 v54, v52", "v_mov_b32 v55, v53")
        self.w128_addresses(self.vWDo, 64)
        wo1 = []
        for g in range(4):
            pre, ins = self.w128_dma(self.vWDo, sWOUT, T[3], T[5], 22)
            pre = [f"s_lshl_b32 {T[3]}, {sW}, 2", f"s_add_u32 {T[3]}, {T[3]}, {g}", f"s_lshl_b32 {T[5]}, {T[3]}, 12", f"s_add_u32 {T[5]}, {T[5]}, {LB}"] + pre
            wo1 += [pre + [ins[0]], [ins[1]], [ins[2]], [ins[3]]]
        self.colsum_pass({i: [wo1[i]] for i in range(16)})
        self.barrier()
        for g in range(2):
            pre, ins = self.w128_dma(self.vWDo, sWOUT, T[3], T[5], 22)
            if g == 1: a(f"s_cmp_ge_u32 {sW}, 2", "s_cbranch_scc1 L_skip_wout"); a.cond_begin()
            a(f"s_add_u32 {T[3]}, {sW}, {16 + 4 * g}", f"s_lshl_b32 {T[5]}, {sW}, 12", f"s_add_u32 {T[5]}, {T[5]}, {LA + 4 * g * 4096}", *pre, *ins)
        a("L_skip_wout:"); a.cond_end()
        a("v_mov_b32 v34, v54", "v_mov_b32 v35, v55", "v_mov_b32 v36, v62", "v_mov_b32 v37, v63")
        a(f"s_lshl_b32 {T[0]}, {sRH}, 5", f"s_add_u32 {T[0]}, {T[0]}, {sR0}", f"s_lshl_b32 {T[0]}, {T[0]}, 1",
          f"v_and_b32 v20, 15, {vLANE}", "v_lshlrev_b32 v20, 1, v20",
          f"buffer_load_ushort v62, v20, {sBSP}, {T[0]} offen", f"buffer_load_ushort v63, v20, {sBSP}, {T[0]} offen offset:32")
        a("v_mov_b32 v32, 1.0", "v_mov_b32 v33, 1.0")
        self.wsp_setup()
        self.gelu_block(ACC1, 34, T5[:4])
        self.emit(self.poll_early(vFP8, T[3], 38)); self.p5tok = a.vtok()
        self.gelu_block(ACC1, 34, [(0, 2), (1, 2)])
        for i in range(6):
            for k in range(2): a(f"v_cvt_pk_bf16_f32 v{vZ1 + 2 * i + k}, v{ACC1 + 4 * i + 2 * k}, v{ACC1 + 4 * i + 2 * k + 1}")
        self.stamp("z1_epi")

    vWDo = 72

    def wsp_setup(self):
        a = self.a
        a(f"s_lshl_b32 {T[3]}, {sW}, 3", f"s_add_u32 {T[3]}, {T[3]}, {sCB}", f"s_lshl_b32 {T[3]}, {T[3]}, 8", f"s_add_u32 {T[3]}, {T[3]}, {WS_F5}",
          f"s_lshl_b32 {T[0]}, {sT0}, 16", f"s_lshl_b32 {T[1]}, {sW}, 11", f"s_add_u32 {T[0]}, {T[0]}, {T[1]}", f"s_add_u32 {T[0]}, {T[0]}, {WS_Z}")
        for t in range(8):
            a(f"s_add_u32 {T[1]}, {sSPR}, {t if not self.opt.get('zlocal') else 0}", f"s_and_b32 {T[1]}, {T[1]}, 7", f"s_lshl_b32 {T[1]}, {T[1]}, 13", f"s_add_u32 {sROT[t]}, {T[1]}, {T[0]}")
        a(f"v_add_u32 v60, 0x10000, {vL16}",
          f"s_lshl_b32 {T[1]}, {sW}, 13", f"s_add_u32 {T[1]}, {T[1]}, {LRED}", f"v_add_u32 v54, {T[1]}, {vL16}",
          f"s_lshl_b32 {T[1]}, {sCH}, 12", f"s_lshl_b32 {T[2]}, {sRH}, 11", f"s_add_u32 {T[1]}, {T[1]}, {T[2]}", f"s_add_u32 {T[1]}, {T[1]}, {LRED}",
          f"v_add_u32 v55, {T[1]}, {vL16}")
        a(f"s_lshr_b32 {T[1]}, {sR0}, 4", f"s_lshl_b32 {T[2]}, {sRH}, 1", f"s_add_u32 {T[1]}, {T[1]}, {T[2]}", f"s_mul_i32 {T[1]}, {T[1]}, {22 * 1024}",
          f"s_add_u32 {T[2]}, {sT0}, {sCH}", f"s_lshl_b32 {T[2]}, {T[2]}, 9", f"s_add_u32 {T[1]}, {T[1]}, {T[2]}", f"s_add_u32 {sU[9]}, {T[1]}, {WS_G}",
          f"s_add_u32 {sU[10]}, {sU[9]}, {22 * 1024}")

    def phase_wsp(self):
        a = self.a
        BUF, ACC, RED = 64, 192, 28
        self.poll_late(vFP8, T[3], 38, self.p5tok, wg=False)
        self.stamp("s5")
        a("v_lshlrev_b32 v62, 16, v62", "v_lshlrev_b32 v63, 16, v63")
        tok = {}
        def loads(p, u):
            t, sub = u >> 1, u & 1
            L = []
            if sub == 0: L.append(f"s_add_u32 {T[0]}, {sROT[t]}, {p * 0x20000}")
            for f in range(2):
                L.append(f"buffer_load_dwordx4 {v(BUF + (2 * u + f) * 4, 4)}, {vL16 if f == 0 else 'v60'}, {sWS}, {T[0]} offen offset:{1024 * sub} sc1")
            L.append(lambda: tok.__setitem__((p, u), a.vtok()))
            return L
        D = self.opt.get("wd", 5)
        seq = [(p, u) for p in range(3) for u in range(16)]
        for p, u in seq[:D]: self.emit(loads(p, u))
        def red_write(p):
            A = ACC + 32 * (p & 1)
            return [f"ds_write_b128 v54, {v(A + 4 * i, 4)} offset:{(p & 1) * 32768 + i * 1024}" for i in range(8)]
        def red_read(p):
            return [f"ds_read_b128 {v(RED + (sw * 2 + rt) * 4, 4)}, v55 offset:{(p & 1) * 32768 + sw * 8192 + rt * 1024}" for sw in range(3) for rt in range(2)]
        def red_read2(p):
            return [f"ds_read_b128 {v(ACC + 32 * (p & 1) + rt * 4, 4)}, v55 offset:{(p & 1) * 32768 + 3 * 8192 + rt * 1024}" for rt in range(2)]
        def gate(p):
            L = []
            A = ACC + 32 * (p & 1)
            for o in range(8): L.append(f"v_add_f32 v{A + o}, v{A + o}, v{RED + o}")
            for o in range(8): L.append(f"v_add_f32 v{RED + 8 + o}, v{RED + 8 + o}, v{RED + 16 + o}")
            for o in range(8): L.append(f"v_add_f32 v{A + o}, v{A + o}, v{62 + (o >> 2)}")
            for o in range(8):
                z = vZ1 + ((o >> 2) * 3 + p) * 2 + ((o >> 1) & 1)
                L.append(f"v_and_b32 v{RED + o}, {sHIMASK}, v{z}" if o & 1 else f"v_lshlrev_b32 v{RED + o}, 16, v{z}")
            for o in range(8): L.append(f"v_add_f32 v{A + o}, v{A + o}, v{RED + 8 + o}")
            for o in range(8): L.append(f"v_mul_f32 v{A + o}, v{A + o}, v{RED + o}")
            for o in range(4): L.append(f"v_cvt_pk_bf16_f32 v{RED + o}, v{A + 2 * o}, v{A + 2 * o + 1}")
            return L
        def gstore(p):
            L = []
            if p == 2:
                sk, zr = a.label("gskip"), a.label("gstore")
                L.append(a.cond_begin)
                L.append(lambda: a(f"s_cmp_eq_u32 {sU[8]}, 0", f"s_cbranch_scc1 {zr}", f"s_cmp_eq_u32 {sCB}, 7", f"s_cbranch_scc0 {sk}",
                                   *[f"v_mov_b32 v{RED + k}, 0" for k in range(4)], f"{zr}:"))
            L += [f"buffer_store_dwordx2 {v(RED + 2 * rt, 2)}, {vPAT}, {sWS}, {sU[9 + rt]} offen offset:{1024 * p} sc1" for rt in range(2)]
            if p == 2: L += [lambda: a(f"{sk}:"), a.cond_end]
            return L
        for p in range(3):
            A = ACC + 32 * (p & 1)
            for u in range(16):
                if not self.opt.get("w_nowait"): a.wait(vm=tok[(p, u)])
                if u == 0: self.stamp(f"wsp_p{p}")
                ms = []
                for f in range(2):
                    for tt in range(4):
                        ms.append(mfma16(A + (f * 4 + tt) * 4, v(BUF + (2 * u + f) * 4, 4), ar((u * 4 + tt) * 4, 4), "0" if u == 0 else None))
                fill = []
                if p > 0 and not self.opt.get("w_nofill"):
                    q = p - 1
                    if 1 <= u <= 4: fill += red_write(q)[(u - 1) * 2:(u - 1) * 2 + 2]
                    if u == 5: fill += [lambda: a.wait(lg=a.lg), "s_barrier"]
                    if u == 6: fill += red_read(q) + red_read2(q)
                    if u == 8: fill += [lambda: a.wait(lg=a.lg)]
                    if 8 <= u <= 14:
                        g = gate(q); fill += g[(u - 8) * 8:(u - 8) * 8 + 8]
                    if u == 15: fill += gstore(q)
                nx = p * 16 + u + D
                ld = loads(*seq[nx]) if nx < 48 else []
                if self.opt.get("w_noload"): ld = ld[-1:]
                interleave(a, ms[:6], fill, per=2, start=1)
                a(ms[6]); self.emit(ld[:-2])
                a(ms[7]); self.emit(ld[-2:])
        self.stamp("wsp_gemm")
        self.emit(red_write(2))
        a.wait(lg=a.lg)
        self.barrier()
        self.emit(red_read(2) + red_read2(2))
        self.w128_read_base(56, 2)
        a(f"v_add_u32 v58, {LB}, v56", f"v_add_u32 v59, {LB}, v57")
        a.wait(lg=a.lg)
        self.emit(gate(2))
        self.emit(gstore(2))
        rd = [f"ds_read_b64_tr_b16 {ar((nt * 22 + p) * 4 + 2 * hf, 2)}, v{56 + nt + (2 if p < 16 else 0)} offset:{(p & 15) * 4096 + hf * 512}"
              for p in list(range(16, 22)) + list(range(16)) for nt in range(2) for hf in range(2)]
        self.cluster_flag_off(T[0], WS_F6, True)
        self.emit(rd[:24])
        a.wait(lg=a.lg)
        self.flag_store_wg(T[0])
        self.wout_rd = rd[24:]
        self.stamp("g_pub")

    def phase_wout(self):
        a = self.a
        ACC = 192
        self.cluster_flag_off(T[3], WS_F6, False)
        a(f"s_lshl_b32 {T[4]}, {sRH}, 11", f"v_add_u32 v31, {T[4]}, {vL16}", f"v_add_u32 v30, {LRED}, v31")
        chunks = [4, 4, 6, 8]
        group, toks = self.act_dma(WS_G, 22, chunks, LA, gpos=True)
        self.emit(self.wout_rd[:32])
        self.emit(self.poll_early(vFP8, T[3], 36)); ptok = a.vtok()
        self.emit(self.wout_rd[32:])
        self.poll_late(vFP8, T[3], 36, ptok)
        self.stamp("s6")
        for c in range(2): self.emit_all(group(c))
        a(f"v_and_b32 v32, 15, {vLANE}", f"v_lshrrev_b32 v33, 4, {vLANE}", "v_lshlrev_b32 v32, 10, v32",
          "v_and_b32 v34, 1, v33", "v_lshl_add_u32 v32, v34, 5, v32", "v_lshrrev_b32 v33, 1, v33", "v_lshl_add_u32 v32, v33, 4, v32",
          f"s_lshl_b32 {T[3]}, {sRH}, 5", f"s_add_u32 {T[3]}, {T[3]}, {sR0}", f"s_lshl_b32 {T[3]}, {T[3]}, 10",
          f"s_lshl_b32 {T[4]}, {sCB}, 7", f"s_add_u32 {T[3]}, {T[3]}, {T[4]}", f"s_lshl_b32 {T[4]}, {sCH}, 6", f"s_add_u32 {sU[9]}, {T[3]}, {T[4]}",
          f"s_add_u32 {sU[10]}, {sU[9]}, 0x4000")
        for i in range(8):
            a(f"v_lshlrev_b32 v{208 + 2 * i}, 16, v{vH + i}", f"v_and_b32 v{209 + 2 * i}, {sHIMASK}, v{vH + i}")
        def buf(s, rt): return 64 + (s % 4) * 8 + rt * 4
        def reads(s): return [f"ds_read_b128 {v(buf(s, rt), 4)}, v{30 if s < 16 else 31} offset:{4096 * (s & 15) + rt * 1024}" for rt in range(2)]
        def mfmas(s):
            return [mfma16(ACC + (rt * 2 + nt) * 4, ar((nt * 22 + s) * 4, 4), v(buf(s, rt), 4), v(208 + (rt * 2 + nt) * 4, 4) if s == 0 else None)
                    for rt in range(2) for nt in range(2)]
        def w(c):
            def f():
                a.wait(vm=toks[c]); self.barrier()
            return f
        rest = group(2) + group(3)
        late = {i: rest[2 * i:2 * i + 2] for i in range(7)}
        def head0():
            a.wait(vm=toks[0], lg=a.lg); self.barrier()
        self.kloop(22, reads, mfmas, {2: w(1), 6: w(2), 12: w(3)}, late, {0: head0}, per=1)
        self.stamp("wout_gemm")
        for rt in range(2):
            for nt in range(2):
                d = ACC + (rt * 2 + nt) * 4
                for k in range(2): a(f"v_cvt_pk_bf16_f32 v{64 + 4 * rt + 2 * nt + k}, v{d + 2 * k}, v{d + 2 * k + 1}")
        for rt in range(2):
            b = 64 + 4 * rt
            a(f"v_permlane16_swap_b32 v{b}, v{b + 2}", f"v_permlane16_swap_b32 v{b + 1}, v{b + 3}")
            a(f"buffer_store_dwordx4 {v(b, 4)}, v32, {sOUT}, {sU[9 + rt]} offen")

    def epilogue(self):
        a = self.a
        a("L_finish:")
        a("s_cmp_eq_u32 s2, 0", f"s_cselect_b32 {T[0]}, {sW}, 1", f"s_cmp_eq_u32 {T[0]}, 0", "s_cbranch_scc0 L_noepoch",
          "s_mov_b64 exec, 1", f"buffer_store_dwordx2 {vTAG}, off, {sWS}, 0 sc1", "s_mov_b64 exec, -1", "L_noepoch:")
        if self.stamps:
            a("s_waitcnt vmcnt(0)")
            self.stamp("end")
            a(f"s_lshl_b32 {T[0]}, s2, 2", f"s_add_u32 {T[0]}, {T[0]}, {sW}", f"s_lshl_b32 {T[0]}, {T[0]}, 7", f"s_add_u32 {T[0]}, {T[0]}, {WS_DBG}",
              "s_mov_b64 exec, 1")
            for i in range(16):
                a(f"v_mov_b32 v8, s{STAMP0 + i}", f"buffer_store_dword v8, off, {sWS}, {T[0]} offset:{4 * i}")
        if self.calib:
            a("s_waitcnt vmcnt(0)", "L_calib:", "s_memrealtime s[100:101]", "s_waitcnt lgkmcnt(0)", f"s_sub_u32 s100, s100, s{STAMP0}",
              f"s_cmp_lt_u32 s100, {self.calib}", "s_cbranch_scc1 L_calib")
        a("s_waitcnt vmcnt(0)", "L_exit:", "s_endpgm")

    def build(self):
        self.prologue()
        self.phase_qkv(); self.maybe_stop("qkv")
        self.phase_attn(); self.maybe_stop("attn")
        self.phase_wo(); self.maybe_stop("wo")
        self.phase_win(); self.maybe_stop("win")
        self.phase_wsp(); self.maybe_stop("wsp")
        self.phase_wout()
        self.epilogue()
        self.attn_slow()
        self.a("L_code_end:")
        body = self.a.finish()
        ref = open(f"cdna_kernels/{NAME}.s.ref").read().split("\n")
        head = [l for l in ref if l.startswith(";") and "@launch" not in l and "Override" not in l and "grid=ceil" not in l]
        head = head[:head.index([l for l in head if "d_ws" in l][0]) + 1]
        return ("\n".join(head) + f"\n; @launch grid=(256,1,1) block=(256,1,1) lds={LDS_BYTES}\n"
                + '.amdgcn_target "amdgcn-amd-amdhsa--gfx950"\n.text\n'
                + f".globl {NAME}_kernel\n.p2align 8\n.type {NAME}_kernel,@function\n{NAME}_kernel:\n" + body
                + f""".section .rodata,"a"
.p2align 6
.amdhsa_kernel {NAME}_kernel
  .amdhsa_next_free_vgpr 512
  .amdhsa_next_free_sgpr 102
  .amdhsa_accum_offset 256
  .amdhsa_group_segment_fixed_size 0
  .amdhsa_kernarg_size 88
  .amdhsa_user_sgpr_count 2
  .amdhsa_user_sgpr_kernarg_segment_ptr 1
  .amdhsa_system_sgpr_workgroup_id_x 1
  .amdhsa_float_denorm_mode_32 3
.end_amdhsa_kernel
""")

if __name__ == "__main__":
    import argparse
    ap = argparse.ArgumentParser()
    ap.add_argument("-o", default=f"cdna_kernels/{NAME}.s")
    ap.add_argument("--stop"); ap.add_argument("--stamps", action="store_true"); ap.add_argument("--slow", action="store_true")
    ap.add_argument("--opt", action="append", default=[])
    o = ap.parse_args()
    g = Gen(o.stop, o.stamps, o.slow, **{k: int(x) for k, x in (kv.split('=') for kv in o.opt)})
    s = g.build()
    open(o.o, "w").write(s)
    print(f"wrote {o.o}: {len(s)} bytes, {len(g.a.items)} items, {g.a.nops_added} nops; stamps: {g.stamp_names}")
```

```python
import re

REG_RE = re.compile(r"\b([vas])\[(\d+):(\d+)\]|\b([vas])(\d+)\b|\b(vcc|exec|m0|scc)\b")
TRANS = ("v_exp_", "v_log_", "v_rcp_", "v_rsq_", "v_sqrt_", "v_sin_", "v_cos_")

def regs_of(tok):
    out = []
    for m in REG_RE.finditer(tok):
        if m.group(1):
            out += [(m.group(1), r) for r in range(int(m.group(2)), int(m.group(3)) + 1)]
        elif m.group(4):
            out.append((m.group(4), int(m.group(5))))
        else:
            n = m.group(6)
            out += {"vcc": [("s", 106), ("s", 107)], "exec": [("s", 126), ("s", 127)], "m0": [("s", 124)], "scc": []}[n]
    return out

def split_ops(s):
    ops, depth, cur = [], 0, ""
    for c in s:
        if c == "[": depth += 1
        if c == "]": depth -= 1
        if c == "," and depth == 0:
            ops.append(cur.strip()); cur = ""
        else:
            cur += c
    if cur.strip(): ops.append(cur.strip())
    return ops

class I:
    __slots__ = ("text", "op", "kind", "w", "r", "passes", "srcc", "srcab", "states", "dpp", "wide_store", "lds_dma")
    def __init__(self, text):
        self.text = text
        t = text.split(";")[0].strip()
        self.op = t.split()[0] if t else ""
        rest = t[len(self.op):].strip()
        ops = split_ops(rest)
        self.w, self.r, self.srcc, self.srcab = set(), set(), set(), set()
        self.passes = 0; self.states = 1; self.dpp = False; self.wide_store = False; self.lds_dma = False
        op = self.op
        if t.endswith(":") or op.startswith("."):
            self.kind = "label" if t.endswith(":") else "dir"; self.states = 0
            return
        first = lambda k: set(regs_of(ops[k].split(" ")[0])) if k < len(ops) else set()
        allr = lambda ks: set().union(*[set(regs_of(ops[k])) for k in ks if k < len(ops)]) if ks else set()
        if op.startswith("v_mfma") or op.startswith("v_smfmac"):
            self.kind = "mfma"
            self.passes = 8 if "32x32" in op else 4
            self.w = first(0)
            if op.startswith("v_smfmac"):
                self.srcc = first(0); self.srcab = allr([1, 2, 3])
            else:
                self.srcc = first(3); self.srcab = allr([1, 2])
            self.r = self.srcc | self.srcab
        elif op.startswith("v_"):
            self.kind = "valu"
            self.dpp = "dpp" in op or "quad_perm" in t or "row_" in t
            if op.startswith("v_cmp"):
                self.w = first(0); self.r = allr(range(1, len(ops)))
            elif op.startswith("v_permlane"):
                self.w = first(0) | first(1); self.r = set(self.w)
            elif op in ("v_add_co_u32", "v_sub_co_u32", "v_addc_co_u32"):
                self.w = first(0) | first(1); self.r = allr(range(2, len(ops)))
            else:
                self.w = first(0); self.r = allr(range(1, len(ops)))
                if op.startswith(("v_fmac", "v_dot2c", "v_pk_fmac")) or self.dpp or "UNUSED_PRESERVE" in t:
                    self.r |= self.w
                if op.startswith("v_cndmask") and len(ops) == 3:
                    self.r |= {("s", 106), ("s", 107)}
        elif op.startswith(("buffer_", "global_")):
            self.kind = "vmem"
            if " lds" in t:
                self.lds_dma = True; self.r = allr(range(len(ops))) | {("s", 124)}
            elif "load" in op:
                self.w = first(0); self.r = allr(range(1, len(ops)))
            else:
                self.r = allr(range(len(ops)))
                self.wide_store = op.endswith(("x3", "x4"))
                if self.wide_store: self.srcab = first(0)
        elif op.startswith("ds_"):
            self.kind = "ds"
            if "read" in op or "bpermute" in op or "swizzle" in op:
                self.w = first(0); self.r = allr(range(1, len(ops)))
            else:
                self.r = allr(range(len(ops)))
        elif op == "s_nop":
            self.kind = "nop"; self.states = int(ops[0]) + 1
        elif op.startswith(("s_waitcnt", "s_barrier", "s_endpgm", "s_sleep", "s_setprio")):
            self.kind = "misc"
        elif op.startswith(("s_cbranch", "s_branch")):
            self.kind = "branch"
        elif op.startswith("s_cmp") or op.startswith("s_bitcmp"):
            self.kind = "salu"; self.r = allr(range(len(ops)))
        else:
            self.kind = "salu"
            self.w = first(0); self.r = allr(range(1, len(ops)))
            if "saveexec" in op: self.w |= {("s", 126), ("s", 127)}

def need(p, c):
    n = 0
    vg = lambda s: {x for x in s if x[0] in "va"}
    sg = lambda s: {x for x in s if x[0] == "s"}
    if p.kind == "valu":
        wv, ws = vg(p.w), sg(p.w)
        if c.kind == "mfma" and wv & c.r: n = max(n, 2)
        if c.kind == "valu":
            if p.op.startswith(TRANS) and not c.op.startswith(TRANS) and wv & (c.r | c.w): n = max(n, 1)
            if c.dpp and wv & c.r: n = max(n, 2)
            if c.op.startswith("v_permlane") and wv & c.r: n = max(n, 2)
            if c.op.startswith(("v_readlane", "v_readfirstlane")) and wv & c.r: n = max(n, 1)
            if ws & c.r: n = max(n, 4 if c.op.startswith(("v_readlane", "v_writelane")) else 2)
            if p.op.startswith("v_dot2") and wv & (c.r | c.w):
                if not (c.op == p.op and not (wv & (c.r - c.w))): n = max(n, 3)
        if p.op.startswith("v_dot2") and c.kind in ("vmem", "ds", "mfma") and wv & c.r: n = max(n, 3)
        if c.kind == "vmem" and ws & c.r: n = max(n, 5)
        if c.kind in ("salu", "branch") and (ws & c.r or (c.kind == "branch" and "vcc" in c.op and ws)): n = max(n, 2)
    if p.kind == "mfma":
        big = p.passes == 8
        if c.kind == "mfma":
            if p.w & c.srcab: n = max(n, 12 if big else 8)
            if p.w & c.srcc and not (p.w == c.srcc and p.passes == c.passes): n = max(n, 10 if big else 6)
            if p.w & c.w and not (p.w & c.srcc): n = max(n, 10 if big else 6)
        elif c.kind in ("valu", "vmem", "ds"):
            if p.w & (c.r | c.w): n = max(n, 12 if big else 8)
            if c.kind == "valu" and p.srcc & c.w: n = max(n, 7 if big else 3)
    if p.kind == "vmem" and p.wide_store and p.srcab & c.w:
        n = max(n, 2 if c.kind == "valu" else 1)
    if p.kind == "salu" and ("s", 124) in p.w and c.kind == "vmem" and c.lds_dma: n = max(n, 1)
    return n

class Asm:
    def __init__(self):
        self.items = []
        self.vm = 0; self.lg = 0
        self.vm_done = 0; self.lg_done = 0
        self.nlabel = 0
        self.maybe = []
        self.cond = 0
        self.pend_vm = {}
        self.pend_lg = {}
        self.warnings = []
    def __call__(self, text, *more):
        for t in (text,) + more:
            for line in t.split("\n"):
                line = line.strip()
                if not line: continue
                ins = I(line)
                self.items.append(ins)
                self.check_pending(ins)
                if ins.kind == "vmem":
                    self.vm += 1
                    if self.cond: self.maybe.append(self.vm)
                if ins.kind == "ds": assert not self.cond, "DS op in a conditional region"
                if ins.kind == "ds": self.lg += 1
                if ins.kind == "vmem":
                    for r in ins.w: self.pend_vm[r] = (self.vm, ins.text)
                if ins.kind == "ds":
                    for r in ins.w: self.pend_lg[r] = (self.lg, ins.text)
        return self
    def check_pending(self, ins):
        for r in (ins.r | ins.w):
            for pend, done, kind in ((self.pend_vm, self.vm_done, "vmem"), (self.pend_lg, self.lg_done, "ds")):
                if r in pend and pend[r][0] > done:
                    if ins.kind == kind and r in ins.w and r not in ins.r: continue
                    self.warnings.append(f"{ins.text}   touches {r[0]}{r[1]} pending from: {pend[r][1]}")
                    return
    def label(self, base):
        self.nlabel += 1
        return f"L_{base}_{self.nlabel}"
    def cond_begin(self): self.cond += 1
    def cond_end(self): self.cond -= 1
    def vtok(self): return self.vm
    def ltok(self): return self.lg
    def wait(self, vm=None, lg=None, force=False):
        assert (vm is None or vm >= 0) and (lg is None or lg >= 0), "waiting on a token that has not been issued yet"
        parts = []
        if vm is not None and (vm > self.vm_done or force):
            n = min(self.vm - vm - sum(1 for k in self.maybe if k > vm), 63)
            parts.append(f"vmcnt({n})"); self.vm_done = max(self.vm_done, vm if n else self.vm)
        if lg is not None and (lg > self.lg_done or force):
            n = min(self.lg - lg, 15); parts.append(f"lgkmcnt({n})"); self.lg_done = max(self.lg_done, self.lg - n)
        if parts: self("s_waitcnt " + " ".join(parts))
    def wait_all(self):
        self.wait(self.vm, self.lg, force=True)
    def finish(self):
        out, win, added = [], [], 0
        for ins in self.items:
            if ins.kind in ("label", "dir"):
                out.append(ins); continue
            req = 0; dist = 0
            for p in reversed(win):
                n = need(p, ins)
                if n > dist: req = max(req, n - dist)
                dist += p.states
                if dist >= 20: break
            if req:
                nop = I(f"s_nop {req - 1}"); out.append(nop); win.append(nop); added += 1
            out.append(ins); win.append(ins)
            if len(win) > 40: win = win[-24:]
        self.nops_added = added
        return "\n".join(("" if i.kind == "label" else "  ") + i.text for i in out) + "\n"
```

```python
import sys, struct
from asmdsl import Asm

NAME = "sequential_preLN__softmax_full_mha__mixer_gmlp__prompt"

WS_EPOCH = 0
WS_F1, WS_F2, WS_F3, WS_F4, WS_F5, WS_F6 = 0x1000, 0x90000, 0x7000, 0x9000, 0xB000, 0xD000
WS_ST3, WS_ST4 = 0x10000, 0x10D0000
WS_Q, WS_KV, WS_O, WS_H, WS_Z, WS_G = 0x100000, 0x300000, 0x700000, 0x900000, 0xB00000, 0xE00000
WS_DBG = 0x1200000
WS_SIZE = 0x1400000

LA, LC, LB = 0, 65536, 98304
LRED = 24576
LDS_BYTES = 163840

sX, sWQKV, sWO, sWIN, sWSP, sBSP, sWOUT, sOUT, sWS = ("s[%d:%d]" % (b, b + 3) for b in range(4, 40, 4))
sJ, sRB, sCB, sHEAD, sW, sR0, sRH, sCH, sT0, sCNT5 = ("s%d" % i for i in range(40, 50))
sTAG = "s[50:51]"
sONES, sHIMASK, sCLU, sPOLL = "s52", "s53", "s54", "s55"
T = ["s%d" % i for i in range(56, 64)]
sROT = ["s%d" % i for i in range(64, 72)]
sU = ["s%d" % i for i in range(72, 84)]
sJA, sRB8 = "s0", "s1"
sRC = "s0"
sSPR = "s3"
STAMP0 = 84

vLANE, vL16, vPAT, vZ = "v0", "v1", "v2", "v3"
vTAG = "v[4:5]"
vFP32, vFP8 = "v6", "v7"
vH = 8
vZ1 = 16

def v(a, n=1): return f"v{a}" if n == 1 else f"v[{a}:{a + n - 1}]"
def ar(a, n=1): return f"a{a}" if n == 1 else f"a[{a}:{a + n - 1}]"
def f2u(x): return "0x%08x" % struct.unpack("<I", struct.pack("<f", x))[0]

def mfma16(d, a, b, c=None):
    return f"v_mfma_f32_16x16x32_bf16 {v(d,4)}, {a}, {b}, {c if c is not None else v(d,4)}"

def interleave(a, mains, fillers, per=1, start=0):
    k = 0
    for i, m in enumerate(mains):
        m() if callable(m) else a(m)
        if i >= start:
            for _ in range(per):
                if k < len(fillers):
                    f = fillers[k]; k += 1
                    f() if callable(f) else a(f)
    while k < len(fillers):
        f = fillers[k]; k += 1
        f() if callable(f) else a(f)

class Gen:
    def __init__(self, stop=None, stamps=False, force_fallback=False, calib=0, **opt):
        self.calib = calib
        self.keep = opt.pop("keep", None)
        self.opt = opt
        self.a = Asm()
        self.stop = stop
        self.stamps = stamps
        self.force_fallback = force_fallback
        self.nstamp = 0
        self.stamp_names = []

    def stamp(self, name):
        if not self.stamps: return
        if self.keep is not None:
            if name not in self.keep and name != "entry": return
        elif name in ("issued", "x_first", "x_last", "stats") or name.startswith(("wsp_p", "qc")): return
        a = self.a
        a.wait(lg=a.lg)
        cyc = self.opt.get("cyc")
        a(f"{'s_memtime' if cyc else 's_memrealtime'} s[100:101]", "s_waitcnt lgkmcnt(0)")
        n = self.nstamp
        if n == 0:
            a(f"s_mov_b32 s{STAMP0}, s100")
        else:
            r = STAMP0 + 1 + (n - 1) // 2
            if cyc: a(f"s_sub_u32 s101, s100, s{STAMP0}", f"s_mov_b32 s{STAMP0}, s100", "s_mov_b32 s100, s101")
            else: a(f"s_sub_u32 s100, s100, s{STAMP0}")
            a(f"s_mov_b32 s{r}, s100" if n & 1 else f"s_pack_ll_b32_b16 s{r}, s{r}, s100")
        self.nstamp += 1; self.stamp_names.append(name)
        assert self.nstamp <= 29

    def maybe_stop(self, name):
        if self.stop == name:
            self.a.wait_all()
            self.a("s_branch L_finish")

    def flag_store(self, soff):
        a = self.a
        a.wait(vm=a.vm, force=True)
        a("s_mov_b64 exec, 1", f"buffer_store_dwordx2 {vTAG}, off, {sWS}, {soff} sc1", "s_mov_b64 exec, -1")

    def flag_store_wg(self, soff):
        a = self.a
        a.wait(vm=a.vm, force=True)
        self.barrier()
        L = a.label("noflag")
        a.cond_begin()
        a(f"s_cmp_lg_u32 {sW}, 0", f"s_cbranch_scc1 {L}",
          "s_mov_b64 exec, 1", f"buffer_store_dwordx2 {vTAG}, off, {sWS}, {soff} sc1", "s_mov_b64 exec, -1", f"{L}:")
        a.cond_end()

    def poll_wg(self, voff, soff, tmp, drain=True):
        a = self.a
        if self.opt.get("allpoll"):
            self.poll(voff, soff, tmp); return
        if drain: a.wait(vm=a.vm, force=True)
        done = a.vm_done
        L = a.label("nopoll")
        a(f"s_cmp_lg_u32 {sW}, 0", f"s_cbranch_scc1 {L}")
        self.poll(voff, soff, tmp)
        a(f"{L}:")
        a.vm_done = done
        self.barrier()

    def poll_early(self, voff, soff, tmp):
        return [f"buffer_load_dwordx2 {v(tmp,2)}, {voff}, {sWS}, {soff} offen sc1"]

    def poll_late(self, voff, soff, tmp, tok, wg=True):
        a = self.a
        L = a.label("late")
        done = a.vm_done
        if wg: a(f"s_cmp_lg_u32 {sW}, 0", f"s_cbranch_scc1 {L}")
        a.wait(vm=tok, force=True)
        a(f"v_cmp_ne_u64 vcc, {sTAG}, {v(tmp,2)}", "s_nop 1", f"s_cbranch_vccz {L}")
        a.cond_begin(); self.poll(voff, soff, tmp); a.cond_end()
        a(f"{L}:")
        a.vm_done = done if wg else tok
        if wg: self.barrier()

    def poll(self, voff, soff, tmp):
        a = self.a
        L, E = a.label("poll"), a.label("polled")
        a(f"s_mov_b32 {sPOLL}, 0x40000", f"{L}:",
          f"buffer_load_dwordx2 {v(tmp,2)}, {voff}, {sWS}, {soff} offen sc1")
        a.wait(vm=a.vm, force=True)
        a(f"v_cmp_ne_u64 vcc, {sTAG}, {v(tmp,2)}",
          f"s_sub_u32 {sPOLL}, {sPOLL}, 1", f"s_cbranch_scc1 {E}")
        sl = self.opt.get("sleep", 0)
        if sl: a(f"s_cbranch_vccz {E}", f"s_sleep {sl}", f"s_branch {L}", f"{E}:")
        else: a(f"s_cbranch_vccnz {L}", f"{E}:")
        for r in (tmp, tmp + 1): a.pend_vm.pop(("v", r), None)

    def barrier(self):
        self.a("s_barrier")

    def prologue(self):
        a = self.a
        a("s_cmp_ge_u32 s2, 256", "s_cbranch_scc1 L_exit")
        self.stamp("entry")
        a("s_load_dwordx2 s[4:5], s[0:1], 0", "s_load_dwordx2 s[8:9], s[0:1], 8")
        if not self.opt.get("nocodepf"):
            a(f"s_getpc_b64 s[60:61]", "L_pc:", f"s_sub_u32 s60, s60, L_pc-{NAME}_kernel", "s_subb_u32 s61, s61, 0",
              f"s_mov_b32 s62, L_code_end-{NAME}_kernel", "s_mov_b32 s63, 0x00020000",
              f"s_lshr_b32 {T[0]}, s2, 3", f"s_lshl_b32 {T[0]}, {T[0]}, 11", "v_lshlrev_b32 v250, 3, v0",
              f"buffer_load_dwordx2 v[250:251], v250, s[60:63], {T[0]} offen")
        a(f"s_mov_b32 s6, {2048 * 512 * 2}", "s_mov_b32 s7, 0x00020000", f"s_mov_b32 s10, {512 * 1536 * 2}", "s_mov_b32 s11, 0x00020000")
        a("v_lshrrev_b32 v8, 6, v0", f"v_and_b32 {vLANE}, 63, v0", f"v_readfirstlane_b32 {sW}, v8")
        if self.opt.get("map", 1):
            a(f"s_lshr_b32 {T[0]}, s2, 3", f"s_and_b32 {T[1]}, s2, 6", f"s_and_b32 {T[2]}, s2, 1",
              f"s_lshr_b32 {T[3]}, {T[0]}, 4", f"s_add_u32 {sJ}, {T[1]}, {T[3]}",
              f"s_bfe_u32 {sRB}, {T[0]}, 0x20002", f"s_and_b32 {sCB}, {T[0]}, 3", f"s_lshl_b32 {T[4]}, {T[2]}, 2", f"s_add_u32 {sCB}, {sCB}, {T[4]}",
              f"s_lshr_b32 {sU[1]}, {T[0]}, 2", f"s_and_b32 {sU[2]}, {sCB}, 3", f"s_lshl_b32 {sU[2]}, {sU[2]}, 1")
        else:
            a(f"s_and_b32 {sJ}, s2, 7", f"s_lshr_b32 {sHEAD}, s2, 3", f"s_lshr_b32 {sRB}, {sHEAD}, 3", f"s_and_b32 {sCB}, {sHEAD}, 7",
              f"s_lshl_b32 {sU[1]}, {sRB}, 1", f"s_mov_b32 {sU[2]}, {sCB}")
        a(f"s_lshl_b32 {sR0}, {sJ}, 8", f"s_lshl_b32 {T[0]}, {sRB}, 6", f"s_add_u32 {sR0}, {sR0}, {T[0]}")

    def prologue_rest(self):
        a = self.a
        for d, off, n in self.SRDS[2:]: a(f"s_load_dwordx2 s[{d}:{d + 1}], s[0:1], {off}")
        for d, off, n in self.SRDS[2:]: a(f"s_mov_b32 s{d + 2}, {n}", f"s_mov_b32 s{d + 3}, 0x00020000")
        if self.opt.get("map", 1):
            a(f"s_bfe_u32 {sHEAD}, s2, 0x40003", f"s_and_b32 {T[4]}, s2, 1", f"s_lshl_b32 {T[4]}, {T[4]}, 4", f"s_add_u32 {sHEAD}, {sHEAD}, {T[4]}")
        a(f"s_lshr_b32 {sRH}, {sW}, 1", f"s_and_b32 {sCH}, {sW}, 1",
          f"s_lshl_b32 {sCLU}, {sJ}, 2", f"s_add_u32 {sCLU}, {sCLU}, {sRB}",
          f"s_mov_b32 {sONES}, 0x3f803f80", f"s_mov_b32 {sHIMASK}, 0xffff0000")
        a(f"s_mul_i32 {T[0]}, {sCB}, 5", f"s_min_u32 {T[1]}, {sCB}, 3", f"s_add_u32 {sT0}, {T[0]}, {T[1]}",
          f"s_cmp_ge_u32 {sCB}, 3", f"s_cselect_b32 {sCNT5}, 1, 0")
        a(f"v_lshlrev_b32 {vL16}, 4, {vLANE}", f"v_mov_b32 {vZ}, 0",
          f"v_and_b32 v8, 15, {vLANE}", f"v_lshrrev_b32 v9, 5, {vLANE}", f"v_bfe_u32 v10, {vLANE}, 4, 1",
          f"v_lshlrev_b32 v8, 4, v8", f"v_lshl_add_u32 v8, v10, 3, v8",
          f"v_lshl_add_u32 {vPAT}, v9, 8, v8",
          f"v_lshl_add_u32 v63, v9, 9, v8",
          f"v_and_b32 {vFP32}, 31, {vLANE}", f"v_lshlrev_b32 {vFP32}, 7, {vFP32}",
          f"v_and_b32 {vFP8}, 7, {vLANE}", f"v_lshlrev_b32 {vFP8}, 3, {vFP8}")

    SRDS = [(4, 0, 2048 * 512 * 2), (8, 8, 512 * 1536 * 2), (36, 80, WS_SIZE), (12, 16, 512 * 512 * 2), (16, 32, 512 * 1376 * 2),
            (20, 40, 2048 * 2048 * 2), (24, 48, 2048 * 2), (28, 56, 688 * 512 * 2), (32, 64, 2048 * 512 * 2)]

    def phase_qkv(self):
        a = self.a
        ACC = 128
        CSR = (124, 200, 204)
        vX0, vX1, vW0, vW1, vWrA, vWrB, XA = "v28", "v29", "v30", "v31", "v32", "v33", 34
        STA = LC
        a(f"v_lshrrev_b32 v8, 3, {vLANE}", f"v_and_b32 v9, 7, {vLANE}", "v_lshrrev_b32 v10, 1, v8", "v_xor_b32 v10, v10, v9",
          "v_lshlrev_b32 v10, 4, v10", "v_lshl_add_u32 v10, v8, 10, v10",
          f"s_lshl_b32 {T[0]}, {sW}, 4", f"s_add_u32 {T[0]}, {T[0]}, {sR0}", f"s_lshl_b32 {T[0]}, {T[0]}, 10",
          f"v_add_u32 {vX0}, {T[0]}, v10", f"v_xor_b32 {vX1}, 64, {vX0}", f"v_add_u32 {vX1}, {7 * 1024}, {vX1}")
        a(f"v_bfe_u32 v10, {vLANE}, 4, 1", "v_lshrrev_b32 v11, 1, v9", "v_xor_b32 v11, v11, v10",
          "v_and_b32 v12, 1, v9", "v_lshl_or_b32 v11, v11, 1, v12", "v_lshlrev_b32 v11, 4, v11",
          "v_mul_u32_u24 v12, 3072, v8", "v_add_u32 v12, v12, v11",
          f"s_mul_i32 {T[0]}, {sW}, {16 * 3072}", f"s_lshl_b32 {T[1]}, {sCB}, 7", f"s_add_u32 {T[0]}, {T[0]}, {T[1]}",
          f"v_add_u32 {vW0}, {T[0]}, v12", f"v_xor_b32 {vW1}, 64, {vW0}", f"v_add_u32 {vW1}, {8 * 3072 - 1024}, {vW1}",
          f"s_lshl_b32 {sU[0]}, {sW}, 11", f"s_add_u32 {sU[2]}, {sU[2]}, {sU[1]}")
        if self.opt.get("q_rot", 3) == 0: a(f"s_mov_b32 {sU[2]}, 0")
        if self.opt.get("q_rot", 3) == 3: a(f"s_and_b32 {sU[2]}, {sU[1]}, 1", f"s_lshl_b32 {sU[2]}, {sU[2]}, 2")
        if self.opt.get("q_rot") == 1: a(f"s_mov_b32 {sU[2]}, {sU[1]}")
        if self.opt.get("q_samew"): a(f"v_subrev_u32 {vW0}, {T[1]}, {vW0}", f"v_subrev_u32 {vW1}, {T[1]}, {vW1}")
        if self.opt.get("q_samex"): a(f"v_and_b32 {vX0}, 0xffff, {vX0}", f"v_and_b32 {vX1}, 0x1ffff, {vX1}")
        tok = {}
        def dma(t):
            L = [[f"s_add_u32 {T[1]}, {sU[2]}, {t}", f"s_and_b32 {T[1]}, {T[1]}, 7", f"s_lshl_b32 {T[2]}, {T[1]}, 7",
                  f"s_add_u32 m0, {sU[0]}, {LB + t * 8192}", f"buffer_load_dwordx4 {vX0}, {sX}, {T[2]} offen lds"],
                 [f"buffer_load_dwordx4 {vX1}, {sX}, {T[2]} offen offset:1024 lds"]]
            for p in range(3):
                pre = [f"s_mul_i32 {T[1]}, {T[1]}, {64 * 3072}"] if p == 0 else []
                L.append(pre + [f"s_add_u32 {T[2]}, {T[1]}, {p * 1024}", f"s_add_u32 m0, {sU[0]}, {(t & 3) * 24576 + p * 8192}",
                                f"buffer_load_dwordx4 {vW0}, {sWQKV}, {T[2]} offen lds"])
                L.append([f"buffer_load_dwordx4 {vW1}, {sWQKV}, {T[2]} offen offset:1024 lds"])
            L[-1].append(lambda: tok.__setitem__(t, a.vtok()))
            return L
        a("s_waitcnt lgkmcnt(0)")
        self.stamp("kernarg")
        self.emit_all(dma(0))
        self.prologue_rest()
        a(f"v_lshrrev_b32 v10, 4, {vLANE}", f"v_bfe_u32 v11, {vLANE}, 2, 2", f"v_and_b32 v12, 3, {vLANE}",
          "v_lshl_add_u32 v13, v10, 3, v11", "v_lshlrev_b32 v13, 7, v13", "v_lshl_add_u32 v13, v12, 3, v13",
          "v_lshrrev_b32 v11, 1, v11", "v_and_b32 v14, 1, v10", "v_lshl_or_b32 v11, v14, 1, v11",
          f"v_xor_b32 v11, {sW}, v11", f"v_lshl_add_u32 {vWrA}, v11, 5, v13", f"v_add_u32 {vWrB}, {2 * 24576}, {vWrA}")
        a(f"v_and_b32 v11, 15, {vLANE}", "v_lshrrev_b32 v12, 1, v11", "v_xor_b32 v12, v12, v10", "v_lshlrev_b32 v12, 4, v12",
          "v_lshl_add_u32 v12, v11, 7, v12", f"s_add_u32 {T[0]}, {sU[0]}, {LB}", f"v_add_u32 v{XA}, {T[0]}, v12")
        for k in range(1, 8): a(f"v_xor_b32 v{XA + k}, {((k >> 1) << 11) | ((k & 1) << 6)}, v{XA}")
        for r in range(252, 256): a(f"v_mov_b32 v{r}, {sONES}")
        early = self.opt.get("qearly", 0)
        QS = 0.25 * 1.4426950408889634
        a(f"v_and_b32 v16, 15, {vLANE}", f"v_lshrrev_b32 v17, 4, {vLANE}", f"v_and_b32 v20, 3, {vLANE}", "v_lshrrev_b32 v21, 2, v16",
          f"s_lshl_b32 {T[0]}, {sW}, 6", f"s_add_u32 {T[0]}, {T[0]}, {STA}",
          "v_cmp_eq_u32 vcc, v17, v21", "v_cndmask_b32_e64 v21, 0, -1, vcc",
          "v_lshlrev_b32 v16, 2, v16", f"v_add_u32 v16, {T[0]}, v16", "v_lshlrev_b32 v18, 4, v17", f"v_add_u32 v18, {T[0]}, v18",
          "v_and_b32 v17, 1, v17", "v_lshl_add_u32 v19, v17, 8, v16",
          f"s_and_b32 {T[6]}, {sW}, 1", f"s_lshl_b32 {T[6]}, {T[6]}, 8", f"s_lshr_b32 {T[7]}, {sW}, 1", f"s_lshl_b32 {T[7]}, {T[7]}, 10",
          f"s_or_b32 {T[6]}, {T[6]}, {T[7]}", f"v_or_b32 v42, {T[6]}, v63", f"s_lshl_b32 {T[6]}, {sW}, 9", f"v_or_b32 v46, {T[6]}, {vPAT}",
          f"v_mov_b32 v22, {f2u(QS)}", f"v_mov_b32 v23, {f2u(QS)}")
        self.emit_all(dma(1))
        for r in range(1, 4): a(f"v_xor_b32 v{42 + r}, {((r & 1) << 8) | ((r >> 1) << 10)}, v42", f"v_xor_b32 v{46 + r}, {r << 9}, v46")
        a(f"s_lshl_b32 {T[4]}, {sCB}, 2", f"s_add_u32 {T[4]}, {T[4]}, {sW}",
          f"s_lshl_b32 {sU[5]}, {T[4]}, 16", f"s_lshl_b32 {T[3]}, {sR0}, 5", f"s_add_u32 {sU[5]}, {sU[5]}, {T[3]}",
          f"s_add_u32 {sU[5]}, {sU[5]}, {WS_Q}",
          f"s_lshl_b32 {sU[6]}, {T[4]}, 17", f"s_lshl_b32 {T[3]}, {sR0}, 6", f"s_add_u32 {sU[6]}, {sU[6]}, {T[3]}",
          f"s_add_u32 {sU[6]}, {sU[6]}, {WS_KV}", f"s_add_u32 {sU[7]}, {sU[6]}, 2048",
          f"s_lshl_b32 {T[0]}, {sRB}, 5", f"s_add_u32 {T[0]}, {T[0]}, {T[4]}", f"s_lshl_b32 {T[0]}, {T[0]}, 7",
          f"s_lshl_b32 {T[4]}, {sJ}, 3", f"s_add_u32 {T[0]}, {T[0]}, {T[4]}", f"s_add_u32 {sU[8]}, {T[0]}, {WS_F1}")
        a("s_waitcnt lgkmcnt(0)", f"s_mov_b32 {sRB8}, {sU[1]}")
        a(f"buffer_load_dwordx2 v[4:5], off, {sWS}, 0 sc1")
        etok = a.vtok()
        if not early: self.emit_all(dma(2))
        self.stamp("issued")
        def abuf(s): return 64 + 16 * (s % 3)
        def wbuf(s): return (112, 176, 188)[s % 3]
        def reads(s):
            t, sub = s >> 1, s & 1
            slot = t & 3
            wb = vWrA if slot < 2 else vWrB
            wo = (slot & 1) * 24576 + sub * 4096
            A, W = abuf(s), wbuf(s)
            L = [f"ds_read_b64_tr_b16 {v(W + 2 * h, 2)}, {wb} offset:{wo + 512 * h}" for h in range(2)]
            L += [f"ds_read_b128 {v(A + 4 * r, 4)}, v{XA + 2 * r + sub} offset:{t * 8192}" for r in range(4)]
            L += [f"ds_read_b64_tr_b16 {v(W + 4 * p + 2 * h, 2)}, {wb} offset:{wo + 8192 * p + 512 * h}" for p in (1, 2) for h in range(2)]
            return L
        def mfmas(s):
            A, W = abuf(s), wbuf(s)
            c = "0" if s == 0 else None
            ms = []
            for p in range(3):
                wv = v(W + 4 * p, 4)
                for r in range(4):
                    d, av = ACC + 16 * p + 4 * r, v(A + 4 * r, 4)
                    ms.append(mfma16(d, wv, av, c) if p < 2 else mfma16(d, av, wv, c))
                ms.append(mfma16(CSR[p], wv, "v[252:255]", c) if p < 2 else mfma16(CSR[p], "v[252:255]", wv, c))
                if p == 0: ms.append(mfma16(8, "v[252:255]", v(A, 4), c))
                if p == 1: ms.append(mfma16(24, v(A, 4), v(A, 4), c))
            return ms
        def head0():
            a.wait(vm=tok[0]); self.barrier(); self.stamp("w0")
        before, late = {}, {}
        for t in range(7):
            def f(t=t):
                if not self.opt.get("q_nowait"): a.wait(vm=tok[t + 1])
                self.barrier(); self.stamp(f"qc{t + 1}")
            before[2 * t] = f
        def f15():
            a.wait(lg=a.lg); self.barrier()
        before[15] = f15
        if self.opt.get("q_nodma"):
            dma = lambda t: (tok.__setitem__(t, a.vtok()), [[]] * 8)[1]
        d3 = dma(3)
        late[0], late[1] = d3[:4], d3[4:]
        if early: late[0], late[1] = dma(2), d3
        for t in range(4, 8):
            d = dma(t)
            late[2 * t - 6], late[2 * t - 5] = d[:4], d[4:]
        cf = self.const_fill(52)
        late[15] = [cf[0:4], cf[4:8], cf[8:10], cf[10:]]
        late[12] = [[lambda: a.wait(vm=etok)], ["v_add_u32 v4, 0x9e3779b9, v4"], ["v_add_u32 v5, 0x7f4a7c15, v5"]]
        late[13] = [["v_readfirstlane_b32 s50, v4"], ["v_readfirstlane_b32 s51, v5"]]
        self.kloop(16, reads, mfmas, before, late, {0: head0})
        self.stamp("qkv_gemm")
        a("v_cmp_eq_u32 vcc, 1, v20", "v_cndmask_b32 v9, v24, v25, vcc", "v_cmp_eq_u32 vcc, 3, v20",
          "v_cndmask_b32_e64 v10, v26, v27, vcc", "v_cmp_lt_u32 vcc, 1, v20", "v_cndmask_b32 v9, v9, v10, vcc", "v_and_b32 v9, v9, v21",
          "v_mov_b32 v10, v9", "v_permlane32_swap_b32 v9, v10", "v_add_f32 v9, v9, v10", "v_mov_b32 v10, v9",
          "v_cmp_eq_u32 vcc, 1, v17", "v_permlane16_swap_b32 v9, v10", "v_add_f32 v9, v9, v10")
        self.ln_finish([(8, 9, 10)], 1.0 / 512)
        a("v_cndmask_b32 v10, v10, v11, vcc", "ds_write_b32 v19, v10")
        a.wait(lg=a.lg)
        self.barrier()
        for r in range(4):
            if r: a(f"v_xor_b32 v20, {r << 6}, v16")
            a(f"ds_read2_b32 {v(64 + 2 * r, 2)}, {'v16' if r == 0 else 'v20'} offset1:64")
        qtok = a.ltok()
        for r in range(4):
            if r: a(f"v_xor_b32 v21, {r << 6}, v18")
            p18 = "v18" if r == 0 else "v21"
            a(f"ds_read_b128 {v(80 + 8 * r, 4)}, {p18}", f"ds_read_b128 {v(84 + 8 * r, 4)}, {p18} offset:256")
        a.wait(lg=qtok)
        for p in (1, 2, 0):
            if p == 2:
                a.wait(lg=a.lg)
                for r in range(4): a(f"v_pk_mul_f32 {v(72 + 2 * r, 2)}, {v(64 + 2 * r, 2)}, v[22:23]")
            for r0 in (0, 2):
                work = [(r, k) for r in (r0, r0 + 1) for k in range(2)]
                tm = {w_: 52 + 2 * i for i, w_ in enumerate(work)}
                for r, k in work:
                    c = v(CSR[p] + 2 * k, 2)
                    if p == 2: a(f"v_pk_mul_f32 {v(tm[r, k], 2)}, {c}, {v(84 + 8 * r + 2 * k, 2)}")
                    else: a(f"v_pk_mul_f32 {v(tm[r, k], 2)}, {c}, {v((72 if p == 0 else 64) + 2 * r, 2)} op_sel:[0,1] op_sel_hi:[1,1]")
                for r, k in work:
                    d = v(ACC + 16 * p + 4 * r + 2 * k, 2)
                    if p == 2: a(f"v_pk_fma_f32 {d}, {d}, {v(80 + 8 * r + 2 * k, 2)}, {v(tm[r, k], 2)}")
                    else: a(f"v_pk_fma_f32 {d}, {d}, {v((72 if p == 0 else 64) + 2 * r, 2)}, {v(tm[r, k], 2)} op_sel:[0,0,0] op_sel_hi:[1,0,1]")
                for r, k in work:
                    d = ACC + 16 * p + 4 * r + 2 * k
                    a(f"v_cvt_pk_bf16_f32 v{ACC + 16 * p + 4 * r + k}, v{d}, v{d + 1}")
                for r in (r0, r0 + 1):
                    o = v(ACC + 16 * p + 4 * r, 2)
                    if p < 2: a(f"buffer_store_dwordx2 {o}, v{42 + r}, {sWS}, {sU[5] if p == 0 else sU[6]} offen sc1")
                    else: a(f"buffer_store_dwordx2 {o}, v{46 + r}, {sWS}, {sU[7]} offen sc1")
        self.flag_store(sU[8])
        self.stamp("qkv_pub")
        self.attn_addresses()

    def ln_finish(self, chains, inv_n):
        a = self.a
        for s1, s2, d in chains: a(f"v_mul_f32 v{s1}, {f2u(inv_n)}, v{s1}", f"v_mul_f32 v{s2}, {f2u(inv_n)}, v{s2}")
        for s1, s2, d in chains: a(f"v_fma_f32 v{s2}, -v{s1}, v{s1}, v{s2}")
        for s1, s2, d in chains: a(f"v_max_f32 v{s2}, 0, v{s2}")
        for s1, s2, d in chains: a(f"v_add_f32 v{s2}, {f2u(1e-5)}, v{s2}")
        for s1, s2, d in chains: a(f"v_rsq_f32 v{d}, v{s2}")
        for s1, s2, d in chains: a(f"v_mul_f32_e64 v{d + 1}, -v{s1}, v{d}")

    def const_fill(self, t=8):
        L = [f"v_and_b32 v{t}, 27, {vLANE}", f"v_cmp_eq_u32 vcc, 1, v{t}", f"v_mov_b32 v{t + 1}, {sONES}",
             f"v_cndmask_b32 v{t + 4}, v3, v{t + 1}, vcc", f"v_mov_b32 v{t + 5}, v{t + 4}", f"v_mov_b32 v{t + 6}, v{t + 4}", f"v_mov_b32 v{t + 7}, v{t + 4}",
             f"s_lshl_b32 {T[3]}, {sW}, 12", f"s_add_u32 {T[3]}, {T[3]}, {LC + 2048}", f"v_add_u32 v{t + 1}, {T[3]}, {vL16}",
             f"ds_write_b128 v{t + 1}, {v(t + 4, 4)}", f"ds_write_b128 v{t + 1}, {v(t + 4, 4)} offset:1024"]
        return L

    S, OA, NM, QF, KB, VB = 64, 112, 144, 176, 184, 192
    vIDX, vSP0, vKA, vKB2, vVB, vVI, vWD0, vXR = 208, 209, 213, 214, 215, 216, 217, 240

    def attn_addresses(self):
        a = self.a
        a(f"v_and_b32 v8, 15, {vLANE}", f"v_lshrrev_b32 v9, 4, {vLANE}", "v_lshlrev_b32 v10, 12, v8", "v_lshl_add_u32 v10, v9, 4, v10",
          f"s_lshl_b32 {T[6]}, {sR0}, 12", f"s_lshl_b32 {T[7]}, {sW}, 7", f"s_add_u32 {T[6]}, {T[6]}, {T[7]}",
          f"v_add_u32 v{self.vSP0}, {T[6]}, v10")
        for tt in range(1, 4): a(f"v_add_u32 v{self.vSP0 + tt}, {tt * 65536}, v{self.vSP0}")
        a(f"v_mov_b32 v{self.vIDX}, 0xdddddddd", f"v_mov_b32 v{self.vKA}, {vL16}", f"v_add_u32 v{self.vKB2}, {LB}, {vL16}")
        a(f"v_lshrrev_b32 v10, 5, {vLANE}", "v_lshl_add_u32 v10, v10, 4, v8", "v_lshlrev_b32 v10, 4, v10",
          f"v_and_b32 v11, 31, {vLANE}", f"v_bfe_u32 v12, {vLANE}, 2, 2",
          "v_add_u32 v12, -1, v12", "v_cmp_gt_u32 vcc, 2, v12", "v_cndmask_b32_e64 v12, 0, 4, vcc",
          "v_and_b32 v13, 27, v11", "v_cmp_eq_u32 vcc, 16, v13", "v_cndmask_b32_e64 v13, 0, 1, vcc",
          "v_add_u32 v12, v12, v13", "v_lshlrev_b32 v12, 4, v12", f"v_add_u32 v12, {LC}, v12",
          "v_cmp_gt_u32 vcc, 16, v11", f"v_cndmask_b32 v{self.vVB}, v12, v10, vcc",
          f"v_mov_b32 v13, 0x4000", f"v_cndmask_b32 v{self.vVI}, v3, v13, vcc")
        self.w128_addresses(self.vWD0, 16)
        self.win_addresses()
        a(f"s_lshl_b32 {T[5]}, {sHEAD}, 17", f"s_lshl_b32 {sU[1]}, {sW}, 12", f"s_add_u32 {T[5]}, {T[5]}, {sU[1]}", f"s_add_u32 {T[5]}, {T[5]}, {WS_KV}")
        for t in range(8):
            a(f"s_add_u32 {T[6]}, {sJ}, {t}", f"s_and_b32 {T[6]}, {T[6]}, 7", f"s_lshl_b32 {T[6]}, {T[6]}, 14", f"s_add_u32 {sROT[t]}, {T[6]}, {T[5]}")
        a(f"s_add_u32 {sSPR}, {sRB8}, {sJ}")
        for t in range(8):
            a(f"s_add_u32 {T[6]}, {sSPR}, {t}", f"s_and_b32 {T[6]}, {T[6]}, 7", f"s_lshl_b32 {sU[4 + t]}, {T[6]}, 9")
        a(f"v_lshrrev_b32 v226, 3, {vLANE}", f"s_lshl_b32 {T[6]}, {sCB}, 3", f"s_add_u32 {T[6]}, {T[6]}, {sR0}", f"v_add_u32 v226, {T[6]}, v226",
          "v_lshlrev_b32 v226, 12, v226", f"v_and_b32 v8, 7, {vLANE}", "v_lshl_add_u32 v226, v8, 4, v226",
          f"s_lshl_b32 {T[6]}, {sW}, 7", f"v_add_u32 v226, {T[6]}, v226")
        a(f"v_and_b32 v8, 15, {vLANE}", f"v_lshrrev_b32 v9, 4, {vLANE}", "v_lshlrev_b32 v8, 10, v8", "v_lshl_add_u32 v62, v9, 3, v8")
        a(f"v_and_b32 v10, 15, {vLANE}", f"v_bfe_u32 v11, {vLANE}, 4, 1", f"v_lshrrev_b32 v12, 5, {vLANE}",
          "v_lshlrev_b32 v10, 4, v10", "v_lshl_add_u32 v10, v11, 14, v10", "v_lshl_add_u32 v227, v12, 3, v10")
        for r in range(self.NM, self.NM + 0): pass

    def w128_addresses(self, r, t0=28):
        a = self.a
        p, q, u, x, y = ("v%d" % (t0 + i) for i in range(5))
        a(f"v_lshrrev_b32 {p}, 3, {vLANE}", f"v_and_b32 {q}, 7, {vLANE}", f"v_bfe_u32 {u}, {vLANE}, 4, 1",
          f"v_lshrrev_b32 {x}, 1, {q}", f"v_xor_b32 {x}, {x}, {u}", f"v_and_b32 {y}, 1, {q}", f"v_lshl_or_b32 {x}, {x}, 1, {y}",
          f"v_lshlrev_b32 {x}, 4, {x}", f"v_lshl_add_u32 {x}, {p}, 10, {x}",
          f"s_lshl_b32 {T[6]}, {sCB}, 7", f"v_add_u32 v{r}, {T[6]}, {x}", f"v_xor_b32 v{r + 1}, 64, v{r}",
          f"v_add_u32 v{r + 1}, {7 * 1024}, v{r + 1}", f"v_add_u32 v{r + 2}, {14 * 1024}, v{r}", f"v_add_u32 v{r + 3}, {14 * 1024}, v{r + 1}")

    def w128_dma(self, r, srd, pos, lds, nsteps):
        L = [f"s_lshr_b32 {T[4]}, {pos}, 1", f"s_add_u32 {T[4]}, {T[4]}, {sU[4]}"]
        n = nsteps // 2
        if n & (n - 1) == 0: L.append(f"s_and_b32 {T[4]}, {T[4]}, {n - 1}")
        else: L += [f"s_cmp_ge_u32 {T[4]}, {n}", f"s_cselect_b32 {T[7]}, {n}, 0", f"s_sub_u32 {T[4]}, {T[4]}, {T[7]}"]
        L += [f"s_lshl_b32 {T[4]}, {T[4]}, 1", f"s_and_b32 {T[7]}, {pos}, 1", f"s_add_u32 {T[4]}, {T[4]}, {T[7]}", f"s_lshl_b32 {T[4]}, {T[4]}, 15",
              f"s_mov_b32 m0, {lds}"]
        return L, [f"buffer_load_dwordx4 v{r + i}, {srd}, {T[4]} offen offset:{1024 * i} lds" for i in range(4)]

    def stage_base(self, t): return LA + 16384 * t if t < 4 else LB + 16384 * (t - 4)

    def kv_dma(self, t):
        L = [([f"s_add_u32 m0, {sU[1]}, {self.stage_base(t)}"] if i == 0 else [],
              f"buffer_load_dwordx4 {vL16}, {sWS}, {sROT[t]} offen offset:{1024 * i} sc1 lds") for i in range(4)]
        return L

    def phase_attn(self):
        a = self.a
        S, OA, NM, QF, KB, VB = self.S, self.OA, self.NM, self.QF, self.KB, self.VB
        a(f"s_lshl_b32 {T[0]}, {sW}, 5", f"s_add_u32 {T[0]}, {T[0]}, {sHEAD}", f"s_lshl_b32 {T[0]}, {T[0]}, 7", f"s_add_u32 {T[0]}, {T[0]}, {WS_F1}",
          f"s_lshl_b32 {T[1]}, {sHEAD}, 16", f"s_lshl_b32 {T[2]}, {sJ}, 13", f"s_add_u32 {T[1]}, {T[1]}, {T[2]}",
          f"s_lshl_b32 {T[2]}, {sW}, 11", f"s_add_u32 {T[1]}, {T[1]}, {T[2]}", f"s_add_u32 {T[1]}, {T[1]}, {WS_Q}",
          )
        for r in range(OA, OA + 32): a(f"v_mov_b32 v{r}, 0")
        L, E, F = a.label("s1"), a.label("s1own"), a.label("s1all")
        a(f"s_mov_b32 {sPOLL}, 0x40000", f"s_lshl_b32 {T[2]}, 1, {sJ}", f"{L}:", f"buffer_load_dwordx2 v[8:9], {vFP8}, {sWS}, {T[0]} offen sc1")
        a.wait(vm=a.vm, force=True)
        a(f"v_cmp_ne_u64 vcc, {sTAG}, v[8:9]", f"s_sub_u32 {sPOLL}, {sPOLL}, 1", f"s_cbranch_scc1 {E}",
          f"s_and_b32 {T[3]}, vcc_lo, {T[2]}", f"s_cbranch_scc1 {L}", f"{E}:", "s_mov_b64 s[60:61], vcc")
        self.stamp("s1")
        for q in range(2):
            a(f"buffer_load_dwordx4 {v(QF + 4 * q, 4)}, {vL16}, {sWS}, {T[1]} offen offset:{1024 * q} sc1")
        kvtok = {}
        def issue(items):
            for pre, ins in items: a(*pre, ins) if pre else a(ins)
        issue(self.kv_dma(0)); kvtok[0] = a.vtok()
        a(f"s_and_b32 {sU[3]}, s60, 0xff", f"s_mov_b32 {sU[2]}, {T[0]}")
        def remote_check(t0, t1):
            def f():
                if self.opt.get("norem"): return
                done = a.vm_done
                L, E = a.label("rc"), a.label("rcok")
                m = ((1 << t1) - 1) ^ ((1 << t0) - 1)
                a(f"s_lshl_b32 {sPOLL}, {m * 0x101}, {sJ}", f"s_lshr_b32 {sPOLL}, {sPOLL}, 8", f"s_and_b32 {sPOLL}, {sPOLL}, 0xff",
                  f"s_and_b32 vcc_lo, {sU[3]}, {sPOLL}", f"s_cbranch_scc0 {E}", f"s_mov_b32 {sRC}, {sPOLL}", f"s_mov_b32 {sPOLL}, 0x40000", f"{L}:")
                a.cond_begin()
                a(f"buffer_load_dwordx2 v[8:9], {vFP8}, {sWS}, {sU[2]} offen sc1")
                a.wait(vm=a.vm, force=True)
                a.cond_end()
                a(f"v_cmp_ne_u64 vcc, {sTAG}, v[8:9]", f"s_sub_u32 {sPOLL}, {sPOLL}, 1", f"s_cbranch_scc1 {E}",
                  f"s_and_b32 {sU[3]}, vcc_lo, 0xff", f"s_and_b32 vcc_lo, {sU[3]}, {sRC}", f"s_cbranch_scc1 {L}", f"{E}:")
                a.vm_done = done
            return f
        if self.opt.get("ahead"): a(f"buffer_load_dwordx4 v[228:231], v226, {sWSP}, {sU[4]} offen")
        a.wait(vm=kvtok[0], lg=a.lg)
        self.barrier()
        def kread(kt):
            t, k = kt >> 3, kt & 7
            base = self.vKA if t < 4 else self.vKB2
            return f"ds_read_b128 {v(KB + 4 * (kt & 1), 4)}, v{base} offset:{16384 * (t & 3) + (k >> 1) * 4096 + (k & 1) * 1024}"
        def vread(kt, hi):
            k = kt & 7
            return f"ds_read_b128 {v(VB + 8 * (kt & 1) + 4 * hi, 4)}, v{self.vVB} offset:{(k >> 1) * 4096 + 2048 + (k & 1) * 1024 + 512 * hi}"
        def qk(n, c=None):
            kt, q = n >> 1, n & 1
            return f"v_mfma_f32_32x32x16_bf16 {v(S + 16 * (n % 3), 16)}, {v(KB + 4 * (kt & 1), 4)}, {v(QF + 4 * q, 4)}, {c if c else v(NM + 16 * q, 16)}"
        def pv(n, hi):
            kt, q = n >> 1, n & 1
            return f"v_smfmac_f32_32x32x32_bf16 {v(OA + 16 * q, 16)}, {v(VB + 8 * (kt & 1) + 4 * hi, 4)}, {v(S + 16 * (n % 3) + 8 * hi, 8)}, v{self.vIDX}"
        a(kread(0), kread(1), vread(0, 0), vread(0, 1))
        a.wait(lg=a.lg)
        a(qk(0, "0"), qk(1, "0"))
        for q in range(2):
            b, m = S + 16 * q, 8 + 2 * q
            a(f"v_max3_f32 v{m}, v{b}, v{b + 1}, v{b + 2}")
            for k in range(3, 15, 2): a(f"v_max3_f32 v{m}, v{m}, v{b + k}, v{b + k + 1}")
            a(f"v_max_f32 v{m}, v{m}, v{b + 15}", f"v_mov_b32 v{m + 1}, v{m}")
        for q in range(2): a(f"v_permlane32_swap_b32 v{8 + 2 * q}, v{9 + 2 * q}")
        for q in range(2):
            m = 8 + 2 * q
            a(f"v_max_f32 v{m}, v{m}, v{m + 1}", f"v_sub_f32 v{m}, 0, v{m}")
            for r in range(0, 16, 2): a(f"v_pk_mov_b32 {v(NM + 16 * q + r, 2)}, {v(m, 2)}, {v(m, 2)} op_sel:[0,0]")
            a(qk(q))
        self.stamp("attn_start")
        if self.stamps: a("s_memtime s[100:101]", "s_waitcnt lgkmcnt(0)", "s_mov_b32 s99, s100")
        wotok = [0]
        wo = []
        for g in range(4):
            a(f"s_lshl_b32 {T[4]}, {sW}, 1", f"s_add_u32 {T[4]}, {T[4]}, {g >> 1}", f"s_add_u32 {T[4]}, {T[4]}, {sCB}", f"s_and_b32 {T[4]}, {T[4]}, 7",
              f"s_lshl_b32 {T[4]}, {T[4]}, 16", f"s_add_u32 {T[g]}, {T[4]}, {(g & 1) * 32768}")
            ins = [f"buffer_load_dwordx4 v{self.vWD0 + i}, {sWO}, {T[g]} offen offset:{1024 * i} lds" for i in range(4)]
            wo += [([f"s_lshl_b32 {sU[3]}, {sW}, 14", f"s_add_u32 m0, {sU[3]}, {LA + g * 4096}"], ins[0]), ([], ins[1]), ([], ins[2]), ([], ins[3])]
        a(f"s_lshl_b32 {T[6]}, {sHEAD}, 2", f"s_add_u32 {T[6]}, {T[6]}, {sW}", f"s_mul_i32 {T[6]}, {T[6]}, 11008")
        pfw = [([f"s_add_u32 {T[6]}, {T[6]}, 4096"] if i and i % 4 == 0 else [],
                f"buffer_load_dwordx4 v[228:231], {vL16}, {sWIN}, {T[6]} offen offset:{(i % 4) * 1024}") for i in range(11)]
        if not self.opt.get("pfw"): pfw = []
        a(f"s_mov_b32 {T[7]}, {sU[4]}", f"s_mov_b32 {sU[4]}, {sCB}")
        w2c = self.win_dma(1, 28, 1, (T[4], T[5], T[6], sU[0]))
        self.emit(w2c[0][:-1]); a(f"s_mov_b32 {T[4]}, m0", f"s_mov_b32 {sU[4]}, {T[7]}")
        pfw += [([f"s_mov_b32 m0, {T[4]}"], w2c[0][-1]), ([], w2c[1][-1]), ([], w2c[2][-1])]
        pf2 = []
        if self.opt.get("pf2", 0):
            a(f"s_lshl_b32 {T[5]}, s2, 2", f"s_add_u32 {T[5]}, {T[5]}, {sW}", f"s_mul_i32 {T[6]}, {T[5]}, 1376", f"s_mul_i32 {T[7]}, {T[5]}, 688",
              f"s_lshl_b32 {T[5]}, {T[5]}, 9",
              f"v_min_u32 v50, 42, {vLANE}", "v_lshlrev_b32 v50, 4, v50", f"v_min_u32 v51, 21, {vLANE}", "v_lshlrev_b32 v51, 4, v51",
              f"v_min_u32 v49, 31, {vLANE}", "v_lshlrev_b32 v49, 4, v49")
            J = "v[228:231]"
            pf2 = [([], f"buffer_load_dwordx4 {J}, v49, {sWO}, {T[5]} offen"), ([], f"buffer_load_dwordx4 {J}, {vL16}, {sWIN}, {T[6]} offen"),
                   ([], f"buffer_load_dwordx4 {J}, v51, {sWIN}, {T[6]} offen offset:1024"), ([], f"buffer_load_dwordx4 {J}, v50, {sWOUT}, {T[7]} offen")]
        post = {}
        slots = []
        spl = [([], f"buffer_load_dwordx4 {ar(((2 * t + sub) * 4 + tt) * 4, 4)}, v{self.vSP0 + tt}, {sWSP}, {sU[4 + t]} offen offset:{64 * sub}")
               for t in range(8) for sub in range(2) for tt in range(4)]
        if self.opt.get("nosp"): spl = []
        if self.opt.get("sp_eff"):
            spl = [([], f"buffer_load_dwordx4 {ar(k * 4, 4)}, v226, {sWSP}, {sU[4 + (k >> 3)]} offen offset:{(k & 7) * 512}") for k in range(64)]
            if self.opt.get("sp_eff") == 2:
                a(f"v_and_b32 v226, 0x3ffff, v226")
        slots = [None] * 128
        kv1 = self.kv_dma(1); kv1[0] = ([remote_check(1, 3)] + kv1[0][0], kv1[0][1])
        post[kv1[-1][1]] = lambda: kvtok.__setitem__(1, a.vtok())
        FREE = "free"
        for t in range(8):
            kv = []
            if t < 6:
                kv = self.kv_dma(t + 2); post[kv[-1][1]] = (lambda t=t: kvtok.__setitem__(t + 2, a.vtok()))
                if t == 1: kv[0] = ([remote_check(3, 8)] + kv[0][0], kv[0][1])
            if t == 0:
                st = [None, None] + kv1 + kv + [pfw.pop(0) for _ in range(len(pfw))]
                st += [FREE] * (16 - len(st))
            else:
                if t < 6:
                    ex = pf2 if t == self.opt.get("pf2at", 1) and pf2 else [FREE] * 4
                    oth = [x for pair in zip(kv, ex) for x in pair]
                else:
                    oth = [wo.pop(0) for _ in range(8)]
                st = [x for pair in zip(oth, [FREE] * 8) for x in pair]
            slots[16 * t:16 * t + 16] = st
        if self.opt.get("kvearly", 0):
            kvs = [self.kv_dma(t) for t in range(2, 8)]
            for t, kv in zip(range(2, 8), kvs): post[kv[-1][1]] = (lambda t=t: kvtok.__setitem__(t, a.vtok()))
            w2cs = [x for x in slots[:16] if x and x is not FREE and str(sWIN) in x[1]]
            wos = [x for x in slots if x and x is not FREE and str(sWO) in x[1] and " lds" in x[1]]
            pre0 = [f"s_lshl_b32 {sU[2]}, s2, 2", f"s_add_u32 {sU[2]}, {sU[2]}, {sW}", f"s_lshl_b32 {sU[2]}, {sU[2]}, 13"]
            pfs = [(pre0 if i == 0 else [f"s_add_u32 {sU[2]}, {sU[2]}, 4096"] if i == 4 else [],
                    f"buffer_load_dwordx4 v[228:231], {vL16}, {sWSP}, {sU[2]} offen offset:{1024 * (i & 3)}") for i in range(8)]
            if self.opt.get("nopfs"): pfs = []
            head = [None, None] + kv1 + [x for kv in kvs for x in kv] + w2cs + pf2 + pfs
            q0 = self.opt.get("spstart", 50)
            assert len(head) <= q0
            slots = head + [None] * (q0 - len(head)) + [FREE] * (128 - q0)
            w0 = 128 - 2 * len(wos) - self.opt.get("wogap", 4)
            for i, x in enumerate(wos): slots[w0 + 2 * i] = x
        fr = [i for i, x in enumerate(slots) if x is FREE]
        for i in fr: slots[i] = None
        if self.opt.get("nowo"): slots = [x if not (x and str(sWO) in x[1]) else None for x in slots]; wotok[0] = a.vtok()
        if self.opt.get("nokv"):
            for t in range(1, 8): kvtok[t] = a.vtok()
            slots = [x if not (x and "sc1 lds" in x[1]) else None for x in slots]
        extra2 = {}
        for k, it in enumerate(spl):
            i = fr[(k * len(fr)) // len(spl)]
            if slots[i] is None: slots[i] = it
            else: extra2.setdefault(i, []).append(it[1])
        assert not wo and not pfw, (len(wo), len(pfw))
        last_wo = ([x for x in slots if x and str(sWO) in x[1]] or [(0, "none")])[-1][1]
        post[last_wo] = lambda: wotok.__setitem__(0, a.vtok())
        def vm_slot(i):
            if i < len(slots) and slots[i]:
                a(slots[i][1])
                if slots[i][1] in post: post[slots[i][1]]()
                for x in extra2.get(i, []): a(x)
        def vm_pre(i):
            if i < len(slots) and slots[i]: self.emit(slots[i][0])
        ac = self.opt.get("ac", 1)
        def lds_wait(kt):
            if kt & 7 == 5 and kt < 56:
                a.wait(vm=kvtok[(kt >> 3) + 1] if not self.opt.get("nokvw") else None, lg=a.lg)
                if not self.opt.get("nobar"): self.barrier()
            else:
                a.wait(lg=a.lg)
        vm_pre(0)
        for n in range(128):
            kt, q = n >> 1, n & 1
            b = S + 16 * (n % 3)
            E = lambda lo, hi: [a(f"v_exp_f32 v{b + r}, v{b + r}") for r in range(lo, hi)]
            E(0, 2)
            if n > 0: a(pv(n - 1, 1))
            if q == 0:
                if kt + 2 < 64: a(kread(kt + 2))
                if (kt + 1) & 7 == 0 and kt + 1 < 64:
                    for _ in range(3 if kt + 1 == 32 else 1): a(f"v_add_u32 v{self.vVB}, v{self.vVB}, v{self.vVI}")
            else:
                vm_slot(2 * kt)
                if not ac: vm_pre(2 * kt + 1)
            E(2, 7)
            if n + 2 < 128: a(qk(n + 2))
            if q == 0:
                if kt + 1 < 64: a(vread(kt + 1, 0))
            elif ac:
                lds_wait(kt); vm_pre(2 * kt + 1)
            else:
                vm_slot(2 * kt + 1)
            E(7, 12)
            a(pv(n, 0))
            if q == 0:
                if kt + 1 < 64: a(vread(kt + 1, 1))
                if kt > 0: vm_pre(2 * kt)
            elif ac:
                vm_slot(2 * kt + 1)
            else:
                lds_wait(kt)
            if q == 1 and self.opt.get("sp_ds"): a(f"ds_read_b128 v[228:231], v{self.vKA} offset:{kt * 1024}")
            E(12, 16)
        a.wait(vm=wotok[0], lg=a.lg)
        a(pv(127, 1))
        self.barrier()
        self.stamp("attn_loop")
        if self.stamps: a("s_memtime s[100:101]", "s_waitcnt lgkmcnt(0)", "s_sub_u32 s99, s100, s99")
        for q in range(2):
            o = OA + 16 * q
            a(f"v_pk_add_f32 {v(8 + 4 * q, 2)}, {v(o, 2)}, {v(o + 2, 2)}", f"v_pk_add_f32 {v(10 + 4 * q, 2)}, {v(o + 4, 2)}, {v(o + 6, 2)}")
        for q in range(2): a(f"v_pk_add_f32 {v(8 + 4 * q, 2)}, {v(8 + 4 * q, 2)}, {v(10 + 4 * q, 2)}")
        a("v_add_f32 v8, v8, v9", "v_add_f32 v12, v12, v13", "v_add_f32 v8, v8, v12", f"v_max_f32 v9, v{OA + 8}, v{OA + 24}",
          f"v_add_f32 v10, v{OA + 8}, v{OA + 24}", "v_add_f32 v8, v8, v10",
          f"s_mov_b32 {T[0]}, 0x207", f"v_cmp_class_f32_e64 vcc, v8, {T[0]}",
          f"s_mov_b64 s[60:61], vcc", f"v_cmp_le_f32 vcc, {f2u(2.0 ** 64)}, v9", "s_or_b64 vcc, vcc, s[60:61]")
        if self.force_fallback: a("s_mov_b64 vcc, -1")
        a("s_cbranch_vccnz L_attn_slow", "L_attn_done:")
        for q in range(2): a(f"v_rcp_f32 v{8 + q}, v{OA + 16 * q + 8}")
        a(f"s_lshr_b32 {T[0]}, {sHEAD}, 1", f"s_lshl_b32 {T[0]}, {T[0]}, 10", f"s_and_b32 {T[1]}, {sHEAD}, 1", f"s_lshl_b32 {T[1]}, {T[1]}, 9",
          f"s_add_u32 {T[0]}, {T[0]}, {T[1]}", f"s_lshl_b32 {T[1]}, {sJ}, 18", f"s_add_u32 {T[0]}, {T[0]}, {T[1]}",
          f"s_lshl_b32 {T[1]}, {sW}, 16", f"s_add_u32 {T[0]}, {T[0]}, {T[1]}", f"s_add_u32 {T[0]}, {T[0]}, {WS_O}", f"s_add_u32 {T[1]}, {T[0]}, 0x8000",
          )
        for q in range(2):
            o = OA + 16 * q
            for k in range(8): a(f"v_mul_f32 v{o + k}, v{o + k}, v{8 + q}")
            for k in range(4): a(f"v_cvt_pk_bf16_f32 v{192 + 4 * q + k}, v{o + 2 * k}, v{o + 2 * k + 1}")
            for hf in range(2):
                a(f"buffer_store_dwordx2 {v(192 + 4 * q + 2 * hf, 2)}, v227, {sWS}, {T[q]} offen offset:{256 * hf} sc1")
        self.w128_read_base(28, 2)
        rd = [f"ds_read_b64_tr_b16 {v(64 + (nt * 16 + p) * 4 + 2 * hf, 2)}, v{28 + nt} offset:{LA + p * 4096 + hf * 512}"
              for p in range(16) for nt in range(2) for hf in range(2)]
        a(f"s_lshl_b32 {T[0]}, {sJ}, 2", f"s_add_u32 {T[0]}, {T[0]}, {sW}", f"s_lshl_b32 {T[0]}, {T[0]}, 12",
          f"s_lshl_b32 {T[1]}, {sHEAD}, 7", f"s_add_u32 {T[0]}, {T[0]}, {T[1]}", f"s_add_u32 {T[0]}, {T[0]}, {WS_F2}")
        k = self.opt.get("rdpre", 24)
        self.emit(rd[:k])
        self.flag_store(T[0])
        self.stamp("attn_pub")
        self.emit(rd[k:])
        a(f"s_lshl_b32 {T[6]}, {sRH}, 15", f"s_lshl_b32 {T[3]}, {sR0}, 10", f"s_add_u32 {T[6]}, {T[6]}, {T[3]}",
          f"s_lshl_b32 {T[3]}, {sCB}, 7", f"s_add_u32 {T[6]}, {T[6]}, {T[3]}", f"s_lshl_b32 {T[3]}, {sCH}, 6", f"s_add_u32 {T[6]}, {T[6]}, {T[3]}",
          f"s_add_u32 {T[3]}, {T[6]}, 0x4000")
        for rt in range(2):
            for nt in range(2):
                a(f"buffer_load_dwordx2 {v(self.vXR + 4 * rt + 2 * nt, 2)}, v62, {sX}, {T[6] if rt == 0 else T[3]} offen offset:{32 * nt}")

    def w128_read_base(self, b, n, tmp=(64, 65, 66, 67), b1=None):
        a = self.a
        p, q, r, t = ("v%d" % x for x in tmp)
        a(f"v_lshrrev_b32 {p}, 4, {vLANE}", f"v_bfe_u32 {q}, {vLANE}, 2, 2", f"v_and_b32 {r}, 3, {vLANE}",
          f"v_lshl_add_u32 {t}, {p}, 3, {q}", f"v_lshlrev_b32 {t}, 7, {t}", f"v_lshl_add_u32 {t}, {r}, 3, {t}",
          f"v_lshrrev_b32 {q}, 1, {q}", f"v_and_b32 {p}, 1, {p}", f"v_lshl_or_b32 {q}, {p}, 1, {q}",
          f"s_lshl_b32 {T[3]}, {sCH}, 1", f"v_xor_b32 {q}, {T[3]}, {q}", f"v_lshl_add_u32 v{b}, {q}, 5, {t}")
        a(f"v_xor_b32 v{b1 if b1 else b + 1}, 32, v{b}")

    def attn_slow(self):
        a = self.a
        S, OA, NM, QF, KB, VB = self.S, self.OA, self.NM, self.QF, self.KB, self.VB
        a.vm_done = a.vm; a.lg_done = a.lg
        a("L_attn_slow:", "s_nop 15", f"s_lshl_b32 {T[0]}, {sHEAD}, 17", f"s_add_u32 {T[0]}, {T[0]}, {WS_KV}",
          f"v_mov_b32 v8, 0xff800000", f"v_mov_b32 v10, 0xff800000", f"s_mov_b32 {T[1]}, 0")
        def kaddr():
            a(f"s_lshr_b32 {T[2]}, {T[1]}, 1", f"s_lshl_b32 {T[2]}, {T[2]}, 12", f"s_and_b32 {T[3]}, {T[1]}, 1", f"s_lshl_b32 {T[3]}, {T[3]}, 10",
              f"s_add_u32 {T[2]}, {T[2]}, {T[3]}", f"s_add_u32 {T[2]}, {T[2]}, {T[0]}")
        a("L_slow_max:"); kaddr()
        a(f"buffer_load_dwordx4 {v(KB, 4)}, {vL16}, {sWS}, {T[2]} offen sc1"); a.wait(vm=a.vm, force=True)
        for q in range(2):
            a(f"v_mfma_f32_32x32x16_bf16 {v(S + 16 * q, 16)}, {v(KB, 4)}, {v(QF + 4 * q, 4)}, 0")
        for q in range(2):
            b, m = S + 16 * q, 8 + 2 * q
            for k in range(0, 16, 2): a(f"v_max3_f32 v{m}, v{m}, v{b + k}, v{b + k + 1}")
        a(f"s_add_u32 {T[1]}, {T[1]}, 1", f"s_cmp_lt_u32 {T[1]}, 64", "s_cbranch_scc1 L_slow_max")
        a("v_mov_b32 v9, v8", "v_mov_b32 v11, v10")
        for q in range(2): a(f"v_permlane32_swap_b32 v{8 + 2 * q}, v{9 + 2 * q}")
        for q in range(2):
            m = 8 + 2 * q
            a(f"v_max_f32 v{m}, v{m}, v{m + 1}", f"v_sub_f32 v{m}, 0, v{m}")
            for r in range(16): a(f"v_mov_b32 v{NM + 16 * q + r}, v{m}")
        for r in range(OA, OA + 32): a(f"v_mov_b32 v{r}, 0")
        a(f"v_and_b32 v8, 27, {vLANE}", "v_cmp_eq_u32 vcc, 16, v8", f"v_mov_b32 v9, {sONES}", "v_cndmask_b32 v9, v3, v9, vcc")
        for r in range(8): a(f"v_mov_b32 v{VB + r}, v9")
        a(f"v_and_b32 v8, 15, {vLANE}", f"v_lshrrev_b32 v10, 5, {vLANE}", "v_lshl_add_u32 v10, v10, 4, v8", "v_lshlrev_b32 v10, 4, v10",
          f"s_mov_b32 {T[1]}, 0", "s_mov_b32 s60, 0x0000ffff", "s_mov_b32 s61, 0x0000ffff")
        a("L_slow_pv:"); kaddr()
        a(f"buffer_load_dwordx4 {v(KB, 4)}, {vL16}, {sWS}, {T[2]} offen sc1", f"s_add_u32 {T[2]}, {T[2]}, 2048", "s_mov_b64 exec, s[60:61]",
          f"buffer_load_dwordx4 {v(VB, 4)}, v10, {sWS}, {T[2]} offen sc1",
          f"buffer_load_dwordx4 {v(VB + 4, 4)}, v10, {sWS}, {T[2]} offen offset:512 sc1", "s_mov_b64 exec, -1")
        a.wait(vm=a.vm, force=True)
        for q in range(2):
            a(f"v_mfma_f32_32x32x16_bf16 {v(S + 16 * q, 16)}, {v(KB, 4)}, {v(QF + 4 * q, 4)}, {v(NM + 16 * q, 16)}")
        for q in range(2):
            for r in range(16): a(f"v_exp_f32 v{S + 16 * q + r}, v{S + 16 * q + r}")
            for hi in range(2):
                a(f"v_smfmac_f32_32x32x32_bf16 {v(OA + 16 * q, 16)}, {v(VB + 4 * hi, 4)}, {v(S + 16 * q + 8 * hi, 8)}, v{self.vIDX}")
        a(f"s_add_u32 {T[1]}, {T[1]}, 1", f"s_cmp_lt_u32 {T[1]}, 64", "s_nop 15", "s_cbranch_scc1 L_slow_pv", "s_nop 15", "s_branch L_attn_done")

    def rot_table(self, npairs, mul):
        a = self.a
        a(f"s_mul_i32 {sU[4]}, {sCB}, {mul}")

    @staticmethod
    def gpos(p): return LRED + 4096 * p if p < 16 else 4096 * (p - 16)

    def rot_index(self, dst, pos, npairs):
        L = [f"s_add_u32 {dst}, {sU[4]}, {pos}"]
        if npairs & (npairs - 1) == 0: L.append(f"s_and_b32 {dst}, {dst}, {npairs - 1}")
        else: L += [f"s_cmp_ge_u32 {dst}, {npairs}", f"s_cselect_b32 {T[7]}, {npairs}, 0", f"s_sub_u32 {dst}, {dst}, {T[7]}"]
        return L

    def act_dma(self, ws_off, steps, chunks, lds0, gpos=False):
        a = self.a
        a(f"s_lshr_b32 {T[0]}, {sR0}, 4", f"s_add_u32 {T[0]}, {T[0]}, {sW}", f"s_mul_i32 {T[0]}, {T[0]}, {steps * 1024}",
          f"s_add_u32 {sU[0]}, {T[0]}, {ws_off}", f"s_mul_i32 {T[1]}, {sW}, {1024 if gpos else steps * 1024}", f"s_add_u32 {sU[1]}, {T[1]}, {lds0}")
        toks = {}
        def group(c):
            p0 = sum(chunks[:c]); L = []
            for k in range(chunks[c]):
                p = p0 + k
                it = []
                if k % 2 == 0:
                    it += self.rot_index(T[2], p >> 1, steps // 2)
                    it += [f"s_lshl_b32 {T[2]}, {T[2]}, 11", f"s_add_u32 {T[2]}, {T[2]}, {sU[0]}"]
                    if not gpos: it.append(f"s_add_u32 m0, {sU[1]}, {p * 1024}")
                if gpos: it.append(f"s_add_u32 m0, {sU[1]}, {self.gpos(p) - (k % 2) * 1024}")
                it.append(f"buffer_load_dwordx4 {vL16}, {sWS}, {T[2]} offen offset:{(k % 2) * 1024} sc1 lds")
                L.append(it)
            L[-1].append(lambda: toks.__setitem__(c, a.vtok()))
            return L
        return group, toks

    def cluster_flag_off(self, dst, base, own, shift=8):
        a = self.a
        a(f"s_lshl_b32 {dst}, {sCLU}, {shift}", f"s_add_u32 {dst}, {dst}, {base}")
        if own: a(f"s_lshl_b32 {T[7]}, {sCB}, 3", f"s_add_u32 {dst}, {dst}, {T[7]}")

    def stats_publish(self, s, base):
        a = self.a
        a(f"v_permlane32_swap_b32 v{s}, v{s + 1}", f"v_permlane32_swap_b32 v{s + 2}, v{s + 3}",
          f"v_add_f32 v{s}, v{s}, v{s + 1}", f"v_add_f32 v{s + 2}, v{s + 2}, v{s + 3}",
          f"v_permlane16_swap_b32 v{s}, v{s + 2}", f"v_add_f32 v{s}, v{s}, v{s + 2}")
        a(f"s_lshl_b32 {T[4]}, {sCLU}, 13", f"s_add_u32 {T[4]}, {T[4]}, {base}", f"s_lshl_b32 {T[5]}, {sRH}, 7", f"s_add_u32 {T[4]}, {T[4]}, {T[5]}",
          f"s_lshl_b32 {T[5]}, {sCB}, 1", f"s_add_u32 {T[5]}, {T[5]}, {sCH}", f"s_lshl_b32 {T[5]}, {T[5]}, 9", f"s_add_u32 {T[4]}, {T[4]}, {T[5]}",
          f"buffer_store_dword v{s}, v61, {sWS}, {T[4]} offen sc1")

    def stats_load(self, base, r):
        a = self.a
        a(f"s_lshl_b32 {T[4]}, {sCLU}, 13", f"s_add_u32 {T[4]}, {T[4]}, {base}", f"s_lshl_b32 {T[5]}, {sRH}, 7", f"s_add_u32 {T[4]}, {T[4]}, {T[5]}",
          f"s_add_u32 {T[5]}, {T[4]}, 4096")
        for p in range(16):
            a(f"buffer_load_dword v{r + p}, v61, {sWS}, {T[4] if p < 8 else T[5]} offen offset:{(p % 8) * 512} sc1")
        return a.vtok()

    SGR = 64
    def stats_publish_tagged(self, s, base):
        a = self.a
        a(f"v_permlane32_swap_b32 v{s}, v{s + 1}", f"v_permlane32_swap_b32 v{s + 2}, v{s + 3}",
          f"v_add_f32 v{s}, v{s}, v{s + 1}", f"v_add_f32 v{s + 2}, v{s + 2}, v{s + 3}",
          f"v_permlane16_swap_b32 v{s}, v{s + 2}", f"v_add_f32 v{s}, v{s}, v{s + 2}", f"v_mov_b32 v{s + 1}, v{s}",
          f"v_mov_b32 v{s + 2}, v4", f"v_mov_b32 v{s + 3}, v5", f"v_permlane32_swap_b32 v{s}, v{s + 1}")
        a(f"s_lshl_b32 {T[4]}, {sCLU}, 14", f"s_add_u32 {T[4]}, {T[4]}, {base}", f"s_lshl_b32 {T[5]}, {sRH}, 13", f"s_add_u32 {T[4]}, {T[4]}, {T[5]}",
          f"s_lshl_b32 {T[5]}, {sCB}, 1", f"s_add_u32 {T[5]}, {T[5]}, {sCH}", f"s_lshl_b32 {T[5]}, {T[5]}, 9", f"s_add_u32 {T[4]}, {T[4]}, {T[5]}",
          "s_mov_b32 exec_hi, 0", f"buffer_store_dwordx4 {v(s, 4)}, {vL16}, {sWS}, {T[4]} offen sc1", "s_mov_b32 exec_hi, -1")

    def stats_tagged_loads(self, base, r):
        L = [[f"buffer_load_dwordx4 {v(r + 4 * p, 4)}, v61, {sWS}, {sU[3]} offen offset:{512 * p} sc1"] for p in range(8)]
        L[0] = [f"s_lshl_b32 {sU[3]}, {sCLU}, 14", f"s_add_u32 {sU[3]}, {sU[3]}, {base}", f"s_lshl_b32 {T[5]}, {sRH}, 13", f"s_add_u32 {sU[3]}, {sU[3]}, {T[5]}",
                f"v_and_b32 v61, 31, {vLANE}", "v_lshlrev_b32 v61, 4, v61", f"v_lshrrev_b32 v54, 5, {vLANE}", "v_lshl_add_u32 v61, v54, 12, v61"] + L[0]
        return L

    def stats_tagged_finish(self, base, r, inv_n, d):
        a = self.a
        L, E = a.label("st_retry"), a.label("st_ok")
        a(f"s_mov_b32 {sPOLL}, 0x40000", f"{L}:")
        a.wait(vm=a.vm, force=True)
        a(f"v_cmp_ne_u64 s[60:61], {sTAG}, {v(r + 2, 2)}")
        for p in range(1, 8): a(f"v_cmp_ne_u64 vcc, {sTAG}, {v(r + 4 * p + 2, 2)}", "s_or_b64 s[60:61], s[60:61], vcc")
        a("s_cmp_eq_u64 s[60:61], 0", f"s_cbranch_scc1 {E}", f"s_sub_u32 {sPOLL}, {sPOLL}, 1", f"s_cbranch_scc1 {E}")
        a.cond_begin()
        for it in self.stats_tagged_loads(base, r)[0][-1:]: a(it)
        for it in self.stats_tagged_loads(base, r)[1:]: self.emit(it)
        a.cond_end()
        a(f"s_branch {L}", f"{E}:")
        a.vm_done = a.vm
        for st in (16, 8, 4):
            for k in range(0, st, 4): a(f"v_pk_add_f32 {v(r + k, 2)}, {v(r + k, 2)}, {v(r + st + k, 2)}")
        a(f"v_mov_b32 v{r + 2}, v{r}", f"v_mov_b32 v{r + 3}, v{r + 1}",
          f"v_permlane32_swap_b32 v{r}, v{r + 2}", f"v_permlane32_swap_b32 v{r + 1}, v{r + 3}",
          f"v_pk_add_f32 {v(r, 2)}, {v(r, 2)}, {v(r + 2, 2)}")
        self.ln_finish([(r, r + 1, d)], inv_n)
        a(f"v_mov_b32 v{d + 2}, v{d}", f"v_mov_b32 v{d + 3}, v{d + 1}",
          f"v_permlane16_swap_b32 v{d}, v{d + 2}", f"v_permlane16_swap_b32 v{d + 1}, v{d + 3}")

    STR = 216
    def stats_load_items(self, base, r):
        L = []
        for p in range(16):
            it = []
            if p == 0:
                it += [f"s_lshl_b32 {T[4]}, {sCLU}, 13", f"s_add_u32 {T[4]}, {T[4]}, {base}", f"s_lshl_b32 {T[5]}, {sRH}, 7",
                       f"s_add_u32 {T[4]}, {T[4]}, {T[5]}", f"s_add_u32 {T[5]}, {T[4]}, 4096"]
            it.append(f"buffer_load_dword v{r + p}, v61, {sWS}, {T[4] if p < 8 else T[5]} offen offset:{(p % 8) * 512} sc1")
            L.append(it)
        return L

    def stats_finish(self, r, inv_n, d):
        a = self.a
        for st in (8, 4, 2):
            for k in range(0, st, 2): a(f"v_pk_add_f32 {v(r + k, 2)}, {v(r + k, 2)}, {v(r + st + k, 2)}")
        a(f"v_add_f32 v{r}, v{r}, v{r + 1}", f"v_mov_b32 v{r + 1}, v{r}", f"v_permlane32_swap_b32 v{r}, v{r + 1}")
        self.ln_finish([(r, r + 1, d)], inv_n)
        a(f"v_mov_b32 v{d + 2}, v{d}", f"v_mov_b32 v{d + 3}, v{d + 1}",
          f"v_permlane16_swap_b32 v{d}, v{d + 2}", f"v_permlane16_swap_b32 v{d + 1}, v{d + 3}")

    def win_addresses(self):
        a = self.a
        for i in range(3):
            a(f"v_add_u32 v16, {64 * i}, {vLANE}", "v_mul_u32_u24 v17, 171, v16", "v_lshrrev_b32 v17, 11, v17",
              "v_mul_u32_u24 v18, 12, v17", "v_sub_u32 v18, v16, v18", "v_bfe_u32 v19, v17, 3, 1", "v_lshlrev_b32 v19, 1, v19",
              "v_xor_b32 v18, v18, v19", "v_mul_u32_u24 v17, 2752, v17", "v_lshl_add_u32 v17, v18, 4, v17",
              f"v_add_u32 v{56 + i}, {-1024 * i}, v17")
        a(f"v_lshrrev_b32 v16, 4, {vLANE}", f"v_bfe_u32 v17, {vLANE}, 2, 2", f"v_and_b32 v18, 3, {vLANE}",
          "v_lshl_add_u32 v19, v16, 3, v17", "v_mul_u32_u24 v19, 192, v19", "v_lshl_add_u32 v19, v18, 3, v19",
          "v_and_b32 v17, 1, v16", f"v_xor_b32 v17, {sCH}, v17", "v_lshl_add_u32 v59, v17, 5, v19", "v_add_u32 v60, 49152, v59",
          f"v_and_b32 v17, 15, {vLANE}", "v_lshlrev_b32 v17, 2, v17", "v_and_b32 v18, 1, v16", "v_lshl_add_u32 v17, v18, 6, v17",
          "v_lshrrev_b32 v16, 1, v16", "v_lshl_add_u32 v61, v16, 8, v17")

    def win_dma(self, half, g0, per_wave, regs=None, wave=sW):
        r5, r6, r2, r7 = regs or (sU[5], sU[6], sU[2], sU[7])
        L = []
        for k in range(per_wave):
            for i in range(3):
                it = []
                if k == 0 and i == 0:
                    it += [f"s_lshl_b32 {r5}, {sT0}, 5", f"s_mul_i32 {r6}, {wave}, {per_wave}", f"s_lshl_b32 {r2}, {sU[4]}, 2",
                           f"s_add_u32 {r2}, {r2}, {r6}", f"s_mul_i32 {r6}, {r6}, 3072"]
                if i == 0:
                    it += [f"s_add_u32 {r7}, {r2}, {g0 + k}", f"s_and_b32 {r7}, {r7}, 31", f"s_mul_i32 {r7}, {r7}, {16 * 2752}",
                           f"s_add_u32 {r7}, {r7}, {r5}"]
                    if half: it.append(f"s_add_u32 {r7}, {r7}, 1376")
                    it.append(f"s_add_u32 m0, {r6}, {(g0 + k) * 3072}")
                it.append(f"buffer_load_dwordx4 v{56 + i}, {sWIN}, {r7} offen offset:{1024 * i} lds")
                L.append(it)
        return L

    def kloop(self, n, reads, mfmas, before={}, late={}, head=None, per=2, extra=None):
        a = self.a
        tok = {}
        for s in range(min(2, n)):
            if s in (head or {}): head[s]()
            self.emit(reads(s)); tok[s] = a.ltok()
        for s in range(n):
            a.wait(lg=tok[s])
            if s in before: before[s]()
            ms = mfmas(s)
            fill = list(reads(s + 2)) + [lambda s=s: tok.__setitem__(s + 2, a.ltok())] if s + 2 < n else []
            if extra: fill += extra(s)
            lt = list(late.get(s, []))
            k = len(ms) - len(lt)
            assert k >= 1, (s, len(ms), len(lt))
            interleave(a, ms[:k], fill, per=per)
            for m, it in zip(ms[k:], lt):
                a(m); self.emit(it)

    def emit_all(self, items):
        for it in items: self.emit(it)

    def emit(self, items):
        for x in items: x() if callable(x) else self.a(x)

    def phase_wo(self):
        a = self.a
        ACC = 192
        a(f"s_mov_b32 {sU[4]}, {sCB if not self.opt.get('noarot') else 0}")
        group, toks = self.act_dma(WS_O, 16, [4, 4, 4, 4], LB)
        self.cluster_flag_off(T[3], WS_F2, False, 12)
        a(f"s_lshl_b32 {T[4]}, {sRH}, 15", f"s_add_u32 {T[4]}, {T[4]}, {LB}", f"v_add_u32 v30, {T[4]}, {vL16}")
        a.wait(lg=a.lg)
        self.barrier()
        n2 = 3
        Lp, Le = a.label("s2poll"), a.label("s2end")
        done = a.vm_done
        a(f"s_cmp_eq_u32 {sW}, 0", f"s_cbranch_scc1 {Lp}", f"s_sub_u32 {T[5]}, {sW}, 1")
        a.cond_begin()
        self.emit_all(self.win_dma(1, 0, 4, wave=T[5]))
        a(f"s_branch {Le}", f"{Lp}:")
        self.poll(vFP32, T[3], 52)
        a.cond_end()
        a(f"{Le}:")
        a.vm_done = done
        self.barrier()
        self.stamp("s2")
        for c in range(2): self.emit_all(group(c))
        def buf(s, rt): return (208 + (s % 4) * 8 + rt * 4)
        def reads(s): return [f"ds_read_b128 {v(buf(s, rt), 4)}, v30 offset:{(rt * 16 + s) * 1024}" for rt in range(2)]
        def mfmas(s):
            return [mfma16(ACC + (rt * 2 + nt) * 4, v(64 + (nt * 16 + s) * 4, 4), v(buf(s, rt), 4), v(32 + (rt * 2 + nt) * 4, 4) if s == 0 else None) for rt in range(2) for nt in range(2)]
        def w(c):
            def f():
                a.wait(vm=toks[c]); self.barrier()
            return f
        def head0():
            a.wait(vm=toks[0], lg=a.lg)
            for i in range(8): a(f"v_lshlrev_b32 v{32 + 2 * i}, 16, v{self.vXR + i}", f"v_and_b32 v{33 + 2 * i}, {sHIMASK}, v{self.vXR + i}")
            self.barrier()
        g2, g3 = group(2), group(3)
        w2 = self.win_dma(1, 4 * n2, 7 - n2)
        late = {0: g2[:2], 1: g2[2:], 2: g3[:2], 3: g3[2:]}
        for i in range(min(len(w2), self.opt.get("w2in", 12))): late[self.opt.get("w2at", 3) + i] = late.get(self.opt.get("w2at", 3) + i, []) + [w2.pop(0)]
        late[15] = late.get(15, []) + [[f"s_lshr_b32 {T[0]}, {sR0}, 4", f"s_lshl_b32 {T[1]}, {sRH}, 1", f"s_add_u32 {T[0]}, {T[0]}, {T[1]}", f"s_lshl_b32 {T[0]}, {T[0]}, 14"],
                                       [f"s_lshl_b32 {T[1]}, {sCB}, 1", f"s_add_u32 {T[1]}, {T[1]}, {sCH}", f"s_lshl_b32 {T[1]}, {T[1]}, 10", f"s_add_u32 {T[0]}, {T[0]}, {T[1]}"],
                                       [f"s_add_u32 {T[0]}, {T[0]}, {WS_H}", f"s_add_u32 {T[1]}, {T[0]}, 0x4000"]]
        self.kloop(16, reads, mfmas, {2: w(1), 6: w(2), 10: w(3)}, late, {0: head0}, per=1)
        self.w2rest = w2
        self.stamp("wo_gemm")
        for i in range(4):
            for k in range(2): a(f"v_cvt_pk_bf16_f32 v{vH + 2 * i + k}, v{ACC + 4 * i + 2 * k}, v{ACC + 4 * i + 2 * k + 1}")
        for rt in range(2):
            for nt in range(2):
                a(f"buffer_store_dwordx2 {v(vH + 4 * rt + 2 * nt, 2)}, {vPAT}, {sWS}, {T[rt]} offen offset:{512 * nt} sc1")
        for k in range(4):
            for rt in range(2):
                h = f"v{vH + 4 * rt + k}"
                a(f"v_dot2_f32_bf16 v{32 + 2 * rt}, {h}, {sONES}, {'0' if k == 0 else 'v%d' % (32 + 2 * rt)}",
                  f"v_dot2_f32_bf16 v{33 + 2 * rt}, {h}, {h}, {'0' if k == 0 else 'v%d' % (33 + 2 * rt)}")
        self.stats_publish(32, WS_ST3)
        self.cluster_flag_off(T[0], WS_F3, True)
        self.flag_store_wg(T[0])
        self.stamp("wo_pub")

    HF, ACC2, ACC1, WB, CS = 64, 192, 216, 28, 240

    def win_reads(self, s, read_h):
        L = []
        base = "v59" if s < 8 else "v60"
        for m in range(3):
            for hf in range(2):
                L.append(f"ds_read_b64_tr_b16 {v(self.wbuf(s) + 4 * m + 2 * hf, 2)}, {base} offset:{(s & 7) * 6144 + hf * 768 + m * 64}")
            if m == 0 and read_h:
                L += [f"ds_read_b128 {v(self.HF + (rt * 16 + s) * 4, 4)}, v55 offset:{(rt * 16 + s) * 1024}" for rt in range(2)]
        return L

    def wbuf(self, s): return (28, 40, 16)[s % 3]

    def win_gemm(self, acc, before, head, read_h, late={}):
        HF = self.HF
        def mfmas(s):
            return [mfma16(acc + (rt * 3 + m) * 4, v(self.wbuf(s) + 4 * m, 4), v(HF + (rt * 16 + s) * 4, 4), "0" if s == 0 else None)
                    for m in range(3) for rt in range(2)]
        self.kloop(16, lambda s: self.win_reads(s, read_h), mfmas, before, late, head)

    def colsum_pass(self, late={}, before={}):
        def mfmas(s): return [mfma16(self.CS + 4 * m, v(self.wbuf(s) + 4 * m, 4), "v[252:255]", "0" if s == 0 else None) for m in range(3)]
        self.kloop(16, lambda s: self.win_reads(s, False), mfmas, before, late, per=3)

    def gelu_block(self, acc, st, tiles):
        a = self.a
        CS = self.CS
        K1 = -2.0 * 1.4426950408889634 * 0.7978845608028654
        K2 = K1 * 0.044715
        a(f"s_mov_b32 s60, {f2u(K2)}", f"s_mov_b32 s61, {f2u(K2)}", f"v_mov_b32 v52, {f2u(K1)}", f"v_mov_b32 v53, {f2u(K1)}")
        for i in range(0, len(tiles), 2):
            prs = [(acc + (rt * 3 + m) * 4 + 2 * k, CS + 4 * m + 2 * k, st + 2 * rt) for rt, m in tiles[i:i + 2] for k in range(2)]
            tm = [40, 42, 44, 46]
            for (x, c, r), t in zip(prs, tm): a(f"v_pk_mul_f32 {v(t, 2)}, {v(c, 2)}, {v(r, 2)} op_sel:[0,1] op_sel_hi:[1,1]")
            for (x, c, r), t in zip(prs, tm): a(f"v_pk_fma_f32 {v(x, 2)}, {v(x, 2)}, {v(r, 2)}, {v(t, 2)} op_sel:[0,0,0] op_sel_hi:[1,0,1]")
            for (x, c, r), t in zip(prs, tm): a(f"v_pk_mul_f32 {v(t, 2)}, {v(x, 2)}, {v(x, 2)}")
            for (x, c, r), t in zip(prs, tm): a(f"v_pk_fma_f32 {v(t, 2)}, {v(t, 2)}, s[60:61], v[52:53]")
            for (x, c, r), t in zip(prs, tm): a(f"v_pk_mul_f32 {v(t, 2)}, {v(t, 2)}, {v(x, 2)}")
            for k in range(8): a(f"v_exp_f32 v{40 + k}, v{40 + k}")
            for (x, c, r), t in zip(prs, tm): a(f"v_pk_add_f32 {v(t, 2)}, {v(t, 2)}, v[32:33]")
            for k in range(8): a(f"v_rcp_f32 v{40 + k}, v{40 + k}")
            for (x, c, r), t in zip(prs, tm): a(f"v_pk_mul_f32 {v(x, 2)}, {v(x, 2)}, {v(t, 2)}")

    def phase_win(self):
        a = self.a
        HF, ACC2, ACC1, CS = self.HF, self.ACC2, self.ACC1, self.CS
        self.emit_all(self.w2rest)
        for r in range(252, 256): a(f"v_mov_b32 v{r}, {sONES}")
        a(f"s_lshl_b32 {T[4]}, {sRH}, 15", f"s_add_u32 {T[4]}, {T[4]}, {LB}", f"v_add_u32 v55, {T[4]}, {vL16}")
        group, toks = self.act_dma(WS_H, 16, [4, 4, 4, 4], LB)
        self.cluster_flag_off(T[3], WS_F3, False)
        if self.w2rest:
            a.wait(vm=a.vm)
            self.barrier()
        ptok = [0]
        self.colsum_pass({self.opt.get("p3at", 12): [self.poll_early(vFP8, T[3], 52) + [lambda: ptok.__setitem__(0, a.vtok())]]})
        self.stamp("cs2")
        self.poll_late(vFP8, T[3], 52, ptok[0])
        self.stamp("s3")
        for c in range(2): self.emit_all(group(c))
        def w(c):
            def f():
                a.wait(vm=toks[c]); self.barrier()
            return f
        g2, g3 = group(2), group(3)
        stl = self.stats_load_items(WS_ST3, self.STR)
        late = {0: g2[:2], 1: g2[2:], 2: g3[:2], 3: g3[2:]}
        for i in range(4): late[4 + i] = stl[4 * i:4 * i + 4]
        w1a = self.win_dma(0, 0, 3)
        for i in range(8): late[8 + i] = w1a[i:i + 1] if i < 7 else w1a[7:]
        stk = [0]
        late[7][-1].append(lambda: stk.__setitem__(0, a.vtok()))
        self.win_gemm(ACC2, {2: w(1), 6: w(2), 10: w(3)}, {0: w(0)}, True, late)
        stok = stk[0]
        self.barrier()
        self.stamp("z2_gemm")
        w1tok = [a.vtok(), 0, 0]
        wb, wc = self.win_dma(0, 12, 3), self.win_dma(0, 24, 2)
        wb[-1].append(lambda: w1tok.__setitem__(1, a.vtok())); wc[-1].append(lambda: w1tok.__setitem__(2, a.vtok()))
        rest = wb + wc
        k = self.opt.get("w1pre", 6)
        a.wait(vm=stok)
        self.emit_all(rest[:k]); rest = rest[k:]
        self.stats_finish(self.STR, 1.0 / 512, 34)
        a("v_mov_b32 v32, 1.0", "v_mov_b32 v33, 1.0")
        T5 = [(0, 0), (1, 0), (0, 1), (1, 1)]
        self.gelu_block(ACC2, 34, T5 + [(0, 2), (1, 2)])
        for rt in range(2):
            x = ACC2 + rt * 12
            a(f"v_pk_add_f32 {v(40 + 4 * rt, 2)}, {v(x, 2)}, {v(x + 2, 2)}", f"v_pk_mul_f32 {v(42 + 4 * rt, 2)}, {v(x, 2)}, {v(x, 2)}")
            a(f"v_pk_fma_f32 {v(42 + 4 * rt, 2)}, {v(x + 2, 2)}, {v(x + 2, 2)}, {v(42 + 4 * rt, 2)}")
            for k in (4, 6):
                a(f"v_pk_add_f32 {v(40 + 4 * rt, 2)}, {v(40 + 4 * rt, 2)}, {v(x + k, 2)}",
                  f"v_pk_fma_f32 {v(42 + 4 * rt, 2)}, {v(x + k, 2)}, {v(x + k, 2)}, {v(42 + 4 * rt, 2)}")
        a(f"s_and_b32 {sU[8]}, {sCNT5}, {sCH}", f"s_cmp_lg_u32 {sU[8]}, 0", "s_cbranch_scc1 L_skip_st")
        for rt in range(2):
            x = ACC2 + rt * 12
            for k in (8, 10):
                a(f"v_pk_add_f32 {v(40 + 4 * rt, 2)}, {v(40 + 4 * rt, 2)}, {v(x + k, 2)}",
                  f"v_pk_fma_f32 {v(42 + 4 * rt, 2)}, {v(x + k, 2)}, {v(x + k, 2)}, {v(42 + 4 * rt, 2)}")
        a("L_skip_st:", "v_add_f32 v48, v40, v41", "v_add_f32 v49, v42, v43", "v_add_f32 v50, v44, v45", "v_add_f32 v51, v46, v47")
        self.stats_publish_tagged(48, WS_ST4)
        self.stamp("z2_pub")
        a("v_mov_b32 v52, v34", "v_mov_b32 v53, v35", "v_mov_b32 v62, v36", "v_mov_b32 v63, v37")
        def w1(c):
            def f():
                a.wait(vm=w1tok[c]); self.barrier()
            return f
        late = {i: rest[2 * i:2 * i + 2] for i in range((len(rest) + 1) // 2)}
        sl = self.stats_tagged_loads(WS_ST4, self.SGR)
        for i in range(4): late[12 + i] = sl[2 * i:2 * i + 2]
        self.win_gemm(ACC1, {4: w1(1), 10: w1(2)}, {0: w1(0)}, False, late)
        self.stamp("z1_gemm")
        a(f"v_and_b32 v20, 15, {vLANE}", f"v_lshrrev_b32 v21, 4, {vLANE}", "v_lshlrev_b32 v21, 2, v21", "v_sub_u32 v20, v20, v21",
          "v_mov_b32 v21, 0x3f80", "v_mov_b32 v22, 0x3f800000")
        for k, (r, c) in enumerate(((24, 21), (24, 22), (25, 21), (25, 22))):
            a(f"v_cmp_eq_u32 vcc, {k}, v20")
            if k & 1 == 0: a(f"v_cndmask_b32 v{r}, v3, v{c}, vcc")
            else: a(f"v_cndmask_b32 v{r}, v{r}, v{c}, vcc")
        self.stats_tagged_finish(WS_ST4, self.SGR, 1.0 / 688, 20)
        self.stamp("s4")
        a(f"s_add_u32 {T[0]}, {sT0}, {sCH}", f"s_lshl_b32 {T[0]}, {T[0]}, 16", f"s_lshl_b32 {T[1]}, {sR0}, 5", f"s_add_u32 {T[0]}, {T[0]}, {T[1]}",
          f"s_lshl_b32 {T[1]}, {sRH}, 10", f"s_add_u32 {T[0]}, {T[0]}, {T[1]}", f"s_add_u32 {sU[9]}, {T[0]}, {WS_Z}",
          f"s_add_u32 {sU[10]}, {sU[9]}, 0x20000", f"s_add_u32 {sU[11]}, {sU[9]}, 0x40000")
        def znorm(m):
            for rt in range(2):
                x = ACC2 + (rt * 3 + m) * 4
                for k in range(2):
                    a(f"v_pk_fma_f32 {v(x + 2 * k, 2)}, {v(x + 2 * k, 2)}, {v(20 + 2 * rt, 2)}, {v(20 + 2 * rt, 2)} op_sel:[0,0,1] op_sel_hi:[1,0,1]")
            for rt in range(2):
                x = ACC2 + (rt * 3 + m) * 4
                for k in range(2): a(f"v_cvt_pk_bf16_f32 v{x + k}, v{x + 2 * k}, v{x + 2 * k + 1}")
            for rt in range(2):
                x = ACC2 + (rt * 3 + m) * 4
                a(f"v_mfma_f32_16x16x16_bf16 {v(28 + 8 * (m & 1) + 4 * rt, 4)}, {v(x, 2)}, v[24:25], 0")
        def zstore(m):
            for rt in range(2):
                d = 28 + 8 * (m & 1) + 4 * rt
                a(f"v_cvt_pk_bf16_f32 v{d}, v{d}, v{d + 1}", f"v_cvt_pk_bf16_f32 v{d + 1}, v{d + 2}, v{d + 3}",
                  f"buffer_store_dwordx2 {v(d, 2)}, {vPAT}, {sWS}, {sU[9 + m]} offen offset:{512 * rt} sc1")
        znorm(0); znorm(1); zstore(0)
        a(f"s_cmp_lg_u32 {sU[8]}, 0", "s_cbranch_scc1 L_skip_z")
        a.cond_begin(); znorm(2); a("s_nop 7"); zstore(2); a.cond_end()
        a("L_skip_z:", "s_nop 7")
        zstore(1)
        a(f"s_lshl_b32 {T[0]}, {sRB}, 3", f"s_add_u32 {T[0]}, {T[0]}, {sCB}", f"s_lshl_b32 {T[0]}, {T[0]}, 8",
          f"s_lshl_b32 {T[1]}, {sJ}, 3", f"s_add_u32 {T[0]}, {T[0]}, {T[1]}", f"s_add_u32 {T[0]}, {T[0]}, {WS_F5}")
        a(f"s_mov_b32 {sU[7]}, {T[0]}")
        a("v_mov_b32 v56, v62", "v_mov_b32 v57, v63")
        self.w128_addresses(self.vWDo, 64)
        a(f"s_lshl_b32 {T[0]}, {sRH}, 5", f"s_add_u32 {T[0]}, {T[0]}, {sR0}", f"s_lshl_b32 {sU[6]}, {T[0]}, 1",
          f"v_and_b32 v20, 15, {vLANE}", "v_lshlrev_b32 v20, 1, v20")
        self.wsp_setup()
        self.flag_store_wg(sU[7])
        self.stamp("z2n_pub")
        a(f"buffer_load_ushort v62, v20, {sBSP}, {sU[6]} offen", f"buffer_load_ushort v63, v20, {sBSP}, {sU[6]} offen offset:32")
        wo1 = []
        for g in range(4):
            pre, ins = self.w128_dma(self.vWDo, sWOUT, T[1], T[5], 22)
            pre = [f"s_lshl_b32 {T[1]}, {sW}, 2", f"s_add_u32 {T[1]}, {T[1]}, {g}", f"s_lshl_b32 {T[5]}, {T[1]}, 12", f"s_add_u32 {T[5]}, {T[5]}, {LB}"] + pre
            wo1 += [pre + [ins[0]], [ins[1]], [ins[2]], [ins[3]]]
        wo2 = []
        for g in range(2):
            pre, ins = self.w128_dma(self.vWDo, sWOUT, T[1], T[5], 22)
            p0 = [f"s_add_u32 {T[1]}, {sW}, 16"] if g == 0 else [f"s_cmp_lt_u32 {sW}, 2", f"s_cselect_b32 {T[5]}, 20, 16", f"s_add_u32 {T[1]}, {sW}, {T[5]}"]
            pre = p0 + [f"s_sub_u32 {T[5]}, {T[1]}, 16", f"s_lshl_b32 {T[5]}, {T[5]}, 12"] + pre
            wo2 += [pre + [ins[0]], [ins[1]], [ins[2]], [ins[3]]]
        late = {i: wo1[2 * i:2 * i + 2] for i in range(8)}
        for i in range(4): late[8 + i] = wo2[2 * i:2 * i + 2]
        ptok = [0]
        late[13] = [self.poll_early(vFP8, T[3], 58) + [lambda: ptok.__setitem__(0, a.vtok())]]
        self.colsum_pass(late, {6: self.barrier})
        self.p5tok = ptok[0]
        self.stamp("z1_epi")

    vWDo = 72

    def gelu_items(self, m):
        K1 = -2.0 * 1.4426950408889634 * 0.7978845608028654
        K2 = K1 * 0.044715
        L = []
        if m == 0: L += [f"s_mov_b32 {T[4]}, {f2u(K2)}", f"v_mov_b32 v58, {f2u(K1)}"]
        X = [self.ACC1 + (rt * 3 + m) * 4 + k for rt in range(2) for k in range(4)]
        C = [self.CS + 4 * m + k for rt in range(2) for k in range(4)]
        R = [52 + 4 * rt for rt in range(2) for k in range(4)]
        assert self.opt.get("wd", 7) <= 8
        t = [192 + k for k in range(8)]
        for i in range(8): L.append(f"v_mul_f32 v{t[i]}, v{C[i]}, v{R[i] + 1}")
        for i in range(8): L.append(f"v_fma_f32 v{X[i]}, v{X[i]}, v{R[i]}, v{t[i]}")
        for i in range(8): L.append(f"v_mul_f32 v{t[i]}, v{X[i]}, v{X[i]}")
        for i in range(8): L.append(f"v_fma_f32 v{t[i]}, v{t[i]}, {T[4]}, v58")
        for i in range(8): L.append(f"v_mul_f32 v{t[i]}, v{t[i]}, v{X[i]}")
        for i in range(8): L.append(f"v_exp_f32 v{t[i]}, v{t[i]}")
        for i in range(8): L.append(f"v_add_f32 v{t[i]}, 1.0, v{t[i]}")
        for i in range(8): L.append(f"v_rcp_f32 v{t[i]}, v{t[i]}")
        for i in range(8): L.append(f"v_mul_f32 v{X[i]}, v{X[i]}, v{t[i]}")
        for rt in range(2):
            for k in range(2): L.append(f"v_cvt_pk_bf16_f32 v{vZ1 + (rt * 3 + m) * 2 + k}, v{X[4 * rt + 2 * k]}, v{X[4 * rt + 2 * k + 1]}")
        return L

    def wsp_setup(self):
        a = self.a
        a(f"s_lshl_b32 {T[3]}, {sW}, 3", f"s_add_u32 {T[3]}, {T[3]}, {sCB}", f"s_lshl_b32 {T[3]}, {T[3]}, 8", f"s_add_u32 {T[3]}, {T[3]}, {WS_F5}",
          f"s_lshl_b32 {T[0]}, {sT0}, 16", f"s_lshl_b32 {T[1]}, {sW}, 11", f"s_add_u32 {T[0]}, {T[0]}, {T[1]}", f"s_add_u32 {T[0]}, {T[0]}, {WS_Z}")
        for t in range(8):
            a(f"s_add_u32 {T[1]}, {sSPR}, {t if not self.opt.get('zlocal') else 0}", f"s_and_b32 {T[1]}, {T[1]}, 7", f"s_lshl_b32 {T[1]}, {T[1]}, 13", f"s_add_u32 {sROT[t]}, {T[1]}, {T[0]}")
        a(f"s_lshl_b32 {T[1]}, {sW}, 13", f"s_add_u32 {T[1]}, {T[1]}, {LRED}", f"v_add_u32 v54, {T[1]}, {vL16}",
          f"s_lshl_b32 {T[1]}, {sCH}, 12", f"s_lshl_b32 {T[2]}, {sRH}, 11", f"s_add_u32 {T[1]}, {T[1]}, {T[2]}", f"s_add_u32 {T[1]}, {T[1]}, {LRED}",
          f"v_add_u32 v55, {T[1]}, {vL16}")
        a(f"s_lshr_b32 {T[1]}, {sR0}, 4", f"s_lshl_b32 {T[2]}, {sRH}, 1", f"s_add_u32 {T[1]}, {T[1]}, {T[2]}", f"s_mul_i32 {T[1]}, {T[1]}, {22 * 1024}",
          f"s_add_u32 {T[2]}, {sT0}, {sCH}", f"s_lshl_b32 {T[2]}, {T[2]}, 9", f"s_add_u32 {T[1]}, {T[1]}, {T[2]}", f"s_add_u32 {sU[9]}, {T[1]}, {WS_G}",
          f"s_add_u32 {sU[10]}, {sU[9]}, {22 * 1024}")

    def phase_wsp(self):
        a = self.a
        BUF, ACC, RED, WT = 64, 128, 28, 200
        a(f"v_add_u32 v60, 0x10000, {vL16}")
        self.poll_late(vFP8, T[3], 58, self.p5tok, wg=False)
        self.stamp("s5")
        a("v_lshlrev_b32 v62, 16, v62", "v_lshlrev_b32 v63, 16, v63")
        tok = {}
        def loads(p, u):
            t, sub = u >> 1, u & 1
            L = []
            if sub == 0: L.append(f"s_add_u32 {T[0]}, {sROT[t]}, {p * 0x20000}")
            for f in range(2):
                L.append(f"buffer_load_dwordx4 {v(BUF + (2 * (u & 7) + f) * 4, 4)}, {vL16 if f == 0 else 'v60'}, {sWS}, {T[0]} offen offset:{1024 * sub} sc1")
            L.append(lambda: tok.__setitem__((p, u), a.vtok()))
            return L
        D = self.opt.get("wd", 7)
        assert D <= 8
        gq = [self.gelu_items(0) + self.gelu_items(1), self.gelu_items(2), []]
        self.w128_read_base(59, 2, (192, 193, 194, 195), 61)
        wt = [f"ds_read_b64_tr_b16 {v(WT + (nt * 6 + p) * 4 + 2 * hf, 2)}, v{59 if nt == 0 else 61} offset:{p * 4096 + hf * 512}"
              for p in range(6) for nt in range(2) for hf in range(2)]
        seq = [(p, u) for p in range(3) for u in range(16)]
        for p, u in seq[:D]: self.emit(loads(p, u))
        def red_write(p):
            A = ACC + 32 * (p & 1)
            return [f"ds_write_b128 v54, {v(A + 4 * i, 4)} offset:{(p & 1) * 32768 + i * 1024}" for i in range(8)]
        def red_read(p):
            return [f"ds_read_b128 {v(RED + (sw * 2 + rt) * 4, 4)}, v55 offset:{(p & 1) * 32768 + sw * 8192 + rt * 1024}" for sw in range(3) for rt in range(2)]
        def red_read2(p):
            return [f"ds_read_b128 {v(ACC + 32 * (p & 1) + rt * 4, 4)}, v55 offset:{(p & 1) * 32768 + 3 * 8192 + rt * 1024}" for rt in range(2)]
        def gate(p):
            L = []
            A = ACC + 32 * (p & 1)
            for o in range(8): L.append(f"v_add_f32 v{A + o}, v{A + o}, v{RED + o}")
            for o in range(8): L.append(f"v_add_f32 v{RED + 8 + o}, v{RED + 8 + o}, v{RED + 16 + o}")
            for o in range(8): L.append(f"v_add_f32 v{A + o}, v{A + o}, v{62 + (o >> 2)}")
            for o in range(8):
                z = vZ1 + ((o >> 2) * 3 + p) * 2 + ((o >> 1) & 1)
                L.append(f"v_and_b32 v{RED + o}, {sHIMASK}, v{z}" if o & 1 else f"v_lshlrev_b32 v{RED + o}, 16, v{z}")
            for o in range(8): L.append(f"v_add_f32 v{A + o}, v{A + o}, v{RED + 8 + o}")
            for o in range(8): L.append(f"v_mul_f32 v{A + o}, v{A + o}, v{RED + o}")
            for o in range(4): L.append(f"v_cvt_pk_bf16_f32 v{RED + o}, v{A + 2 * o}, v{A + 2 * o + 1}")
            return L
        def gstore(p):
            L = []
            if p == 2:
                sk, zr = a.label("gskip"), a.label("gstore")
                L.append(a.cond_begin)
                L.append(lambda: a(f"s_cmp_eq_u32 {sU[8]}, 0", f"s_cbranch_scc1 {zr}", f"s_cmp_eq_u32 {sCB}, 7", f"s_cbranch_scc0 {sk}",
                                   *[f"v_mov_b32 v{RED + k}, 0" for k in range(4)], f"{zr}:"))
            L += [f"buffer_store_dwordx2 {v(RED + 2 * rt, 2)}, {vPAT}, {sWS}, {sU[9 + rt]} offen offset:{1024 * p} sc1" for rt in range(2)]
            if p == 2: L += [lambda: a(f"{sk}:"), a.cond_end]
            return L
        for p in range(3):
            A = ACC + 32 * (p & 1)
            for u in range(16):
                if not self.opt.get("w_nowait"): a.wait(vm=tok[(p, u)])
                if u == 0: self.stamp(f"wsp_p{p}")
                ms = []
                for f in range(2):
                    for tt in range(4):
                        ms.append(mfma16(A + (f * 4 + tt) * 4, v(BUF + (2 * (u & 7) + f) * 4, 4), ar((u * 4 + tt) * 4, 4), "0" if u == 0 else None))
                fill = []
                if p > 0 and not self.opt.get("w_nofill"):
                    q = p - 1
                    if u < 8: fill += red_write(q)[u:u + 1]
                    if u == 8: fill += [lambda: a.wait(lg=a.lg), "s_barrier"]
                    if u == 9: fill += red_read(q) + red_read2(q)
                    if u == 11: fill += [lambda: a.wait(lg=a.lg)]
                    if 11 <= u <= 15:
                        g = gate(q); fill += g[(u - 11) * 11:(u - 11) * 11 + 11]
                    if u == 15: fill += gstore(q)
                if p == 0: n = (len(gq[0]) + 15 - u) // (16 - u)
                elif p == 1 and u < 11: n = (len(gq[1]) + 10 - u) // (11 - u)
                else: n = 0
                fill = [gq[p].pop(0) for _ in range(n)] + fill if p == 0 else fill + [gq[p].pop(0) for _ in range(n)]
                if p == 2 and u < 8: fill += wt[3 * u:3 * u + 3]
                if p == 0 and u == 15: fill += ["s_barrier"]
                nx = p * 16 + u + D
                ld = loads(*seq[nx]) if nx < 48 else []
                if self.opt.get("w_noload"): ld = ld[-1:]
                interleave(a, ms[:6], fill, per=2, start=0)
                a(ms[6]); self.emit(ld[:-2])
                a(ms[7]); self.emit(ld[-2:])
        self.stamp("wsp_gemm")
        self.emit(red_write(2))
        a.wait(lg=a.lg)
        self.barrier()
        self.emit(red_read(2) + red_read2(2))
        a(f"v_add_u32 v56, {LB}, v59", f"v_add_u32 v57, {LB}, v61")
        a.wait(lg=a.lg)
        self.emit(gate(2))
        self.emit(gstore(2))
        self.wout_rd = [f"ds_read_b64_tr_b16 {ar((nt * 16 + p) * 4 + 2 * hf, 2)}, v{56 + nt} offset:{p * 4096 + hf * 512}"
                        for p in range(16) for nt in range(2) for hf in range(2)]
        self.cluster_flag_off(T[0], WS_F6, True)
        self.flag_store_wg(T[0])
        self.stamp("g_pub")

    def phase_wout(self):
        a = self.a
        ACC = 128
        self.cluster_flag_off(T[3], WS_F6, False)
        a(f"s_lshl_b32 {T[4]}, {sRH}, 11", f"v_add_u32 v31, {T[4]}, {vL16}", f"v_add_u32 v30, {LRED}, v31")
        chunks = [4, 4, 6, 8]
        group, toks = self.act_dma(WS_G, 22, chunks, LA, gpos=True)
        self.emit(self.wout_rd[:32])
        self.emit(self.poll_early(vFP8, T[3], 36)); ptok = a.vtok()
        self.emit(self.wout_rd[32:])
        self.poll_late(vFP8, T[3], 36, ptok)
        self.stamp("s6")
        for c in range(2): self.emit_all(group(c))
        a(f"v_and_b32 v32, 15, {vLANE}", f"v_lshrrev_b32 v33, 4, {vLANE}", "v_lshlrev_b32 v32, 10, v32",
          "v_and_b32 v34, 1, v33", "v_lshl_add_u32 v32, v34, 5, v32", "v_lshrrev_b32 v33, 1, v33", "v_lshl_add_u32 v32, v33, 4, v32",
          f"s_lshl_b32 {T[3]}, {sRH}, 5", f"s_add_u32 {T[3]}, {T[3]}, {sR0}", f"s_lshl_b32 {T[3]}, {T[3]}, 10",
          f"s_lshl_b32 {T[4]}, {sCB}, 7", f"s_add_u32 {T[3]}, {T[3]}, {T[4]}", f"s_lshl_b32 {T[4]}, {sCH}, 6", f"s_add_u32 {sU[9]}, {T[3]}, {T[4]}",
          f"s_add_u32 {sU[10]}, {sU[9]}, 0x4000")
        for i in range(8):
            a(f"v_lshlrev_b32 v{96 + 2 * i}, 16, v{vH + i}", f"v_and_b32 v{97 + 2 * i}, {sHIMASK}, v{vH + i}")
        def buf(s, rt): return 64 + (s % 4) * 8 + rt * 4
        def reads(s): return [f"ds_read_b128 {v(buf(s, rt), 4)}, v{30 if s < 16 else 31} offset:{4096 * (s & 15) + rt * 1024}" for rt in range(2)]
        def mfmas(s):
            wv = lambda nt: ar((nt * 16 + s) * 4, 4) if s < 16 else v(200 + (nt * 6 + s - 16) * 4, 4)
            return [mfma16(ACC + (rt * 2 + nt) * 4, wv(nt), v(buf(s, rt), 4), v(96 + (rt * 2 + nt) * 4, 4) if s == 0 else None)
                    for rt in range(2) for nt in range(2)]
        def w(c):
            def f():
                a.wait(vm=toks[c]); self.barrier()
            return f
        rest = group(2) + group(3)
        late = {i: rest[2 * i:2 * i + 2] for i in range(7)}
        def head0():
            a.wait(vm=toks[0], lg=a.lg); self.barrier()
        self.kloop(22, reads, mfmas, {2: w(1), 6: w(2), 12: w(3)}, late, {0: head0}, per=1)
        self.stamp("wout_gemm")
        for rt in range(2):
            for nt in range(2):
                d = ACC + (rt * 2 + nt) * 4
                for k in range(2): a(f"v_cvt_pk_bf16_f32 v{64 + 4 * rt + 2 * nt + k}, v{d + 2 * k}, v{d + 2 * k + 1}")
        for rt in range(2):
            b = 64 + 4 * rt
            a(f"v_permlane16_swap_b32 v{b}, v{b + 2}", f"v_permlane16_swap_b32 v{b + 1}, v{b + 3}")
            a(f"buffer_store_dwordx4 {v(b, 4)}, v32, {sOUT}, {sU[9 + rt]} offen")

    def epilogue(self):
        a = self.a
        a("L_finish:")
        a("s_cmp_eq_u32 s2, 0", f"s_cselect_b32 {T[0]}, {sW}, 1", f"s_cmp_eq_u32 {T[0]}, 0", "s_cbranch_scc0 L_noepoch",
          "s_mov_b64 exec, 1", f"buffer_store_dwordx2 {vTAG}, off, {sWS}, 0 sc1", "s_mov_b64 exec, -1", "L_noepoch:")
        if self.stamps:
            a("s_waitcnt vmcnt(0)")
            self.stamp("end")
            a(f"s_lshl_b32 {T[0]}, s2, 2", f"s_add_u32 {T[0]}, {T[0]}, {sW}", f"s_lshl_b32 {T[0]}, {T[0]}, 7", f"s_add_u32 {T[0]}, {T[0]}, {WS_DBG}",
              "s_mov_b64 exec, 1")
            for i in range(16):
                a(f"v_mov_b32 v8, s{STAMP0 + i}", f"buffer_store_dword v8, off, {sWS}, {T[0]} offset:{4 * i}")
        if self.calib:
            a("s_waitcnt vmcnt(0)", "L_calib:", "s_memrealtime s[100:101]", "s_waitcnt lgkmcnt(0)", f"s_sub_u32 s100, s100, s{STAMP0}",
              f"s_cmp_lt_u32 s100, {self.calib}", "s_cbranch_scc1 L_calib")
        a("s_waitcnt vmcnt(0)", "L_exit:", "s_endpgm")

    def build(self):
        self.prologue()
        self.phase_qkv(); self.maybe_stop("qkv")
        self.phase_attn(); self.maybe_stop("attn")
        self.phase_wo(); self.maybe_stop("wo")
        self.phase_win(); self.maybe_stop("win")
        self.phase_wsp(); self.maybe_stop("wsp")
        self.phase_wout()
        self.epilogue()
        self.attn_slow()
        self.a("L_code_end:")
        body = self.a.finish()
        for w in dict.fromkeys(self.a.warnings): print("PENDING-LOAD WARNING:", w, file=sys.stderr)
        ref = open(f"cdna_kernels/{NAME}.s.ref").read().split("\n")
        head = [l for l in ref if l.startswith(";") and "@launch" not in l and "Override" not in l and "grid=ceil" not in l]
        head = head[:head.index([l for l in head if "d_ws" in l][0]) + 1]
        return ("\n".join(head) + f"\n; @launch grid=(256,1,1) block=(256,1,1) lds={LDS_BYTES}\n"
                + '.amdgcn_target "amdgcn-amd-amdhsa--gfx950"\n.text\n'
                + f".globl {NAME}_kernel\n.p2align 8\n.type {NAME}_kernel,@function\n{NAME}_kernel:\n" + body
                + f""".section .rodata,"a"
.p2align 6
.amdhsa_kernel {NAME}_kernel
  .amdhsa_next_free_vgpr 512
  .amdhsa_next_free_sgpr 102
  .amdhsa_accum_offset 256
  .amdhsa_group_segment_fixed_size 0
  .amdhsa_kernarg_size 88
  .amdhsa_user_sgpr_count 2
  .amdhsa_user_sgpr_kernarg_segment_ptr 1
  .amdhsa_system_sgpr_workgroup_id_x 1
  .amdhsa_float_denorm_mode_32 3
.end_amdhsa_kernel
""")

if __name__ == "__main__":
    import argparse
    ap = argparse.ArgumentParser()
    ap.add_argument("-o", default=f"cdna_kernels/{NAME}.s")
    ap.add_argument("--stop"); ap.add_argument("--stamps", action="store_true"); ap.add_argument("--slow", action="store_true")
    ap.add_argument("--opt", action="append", default=[])
    o = ap.parse_args()
    g = Gen(o.stop, o.stamps, o.slow, **{k: int(x) for k, x in (kv.split('=') for kv in o.opt)})
    s = g.build()
    open(o.o, "w").write(s)
    print(f"wrote {o.o}: {len(s)} bytes, {len(g.a.items)} items, {g.a.nops_added} nops; stamps: {g.stamp_names}")
```

```python
import sys, struct
from asmdsl import Asm

NAME = "sequential_preLN__softmax_full_mha__mixer_gmlp__prompt"

WS_EPOCH = 0
WS_F1, WS_F2, WS_F3, WS_F4, WS_F5, WS_F6 = 0x1000, 0x90000, 0x7000, 0x9000, 0xB000, 0xD000
WS_ST3, WS_ST4 = 0x1150000, 0x10D0000
WS_Q, WS_KV, WS_O, WS_H, WS_Z, WS_G = 0x100000, 0x300000, 0x700000, 0x900000, 0xB00000, 0xE00000
WS_DBG = 0x1300000
WS_SIZE = 0x1400000

LA, LC, LB = 0, 65536, 98304
LRED = 24576
LDS_BYTES = 163840

sX, sWQKV, sWO, sWIN, sWSP, sBSP, sWOUT, sOUT, sWS = ("s[%d:%d]" % (b, b + 3) for b in range(4, 40, 4))
sJ, sRB, sCB, sHEAD, sW, sR0, sRH, sCH, sT0, sCNT5 = ("s%d" % i for i in range(40, 50))
sTAG = "s[50:51]"
sONES, sHIMASK, sCLU, sPOLL = "s52", "s53", "s54", "s55"
T = ["s%d" % i for i in range(56, 64)]
sROT = ["s%d" % i for i in range(64, 72)]
sU = ["s%d" % i for i in range(72, 84)]
sJA, sRB8 = "s0", "s1"
sRC = "s0"
sSPR = "s3"
P = ["s%d" % i for i in range(84, 90)]
STAMP0 = 90

vLANE, vL16, vPAT, vZ = "v0", "v1", "v2", "v3"
vTAG = "v[4:5]"
vFP32, vFP8 = "v6", "v7"
vH = 8
vZ1 = 16

def v(a, n=1): return f"v{a}" if n == 1 else f"v[{a}:{a + n - 1}]"
def ar(a, n=1): return f"a{a}" if n == 1 else f"a[{a}:{a + n - 1}]"
def f2u(x): return "0x%08x" % struct.unpack("<I", struct.pack("<f", x))[0]

def mfma16(d, a, b, c=None):
    return f"v_mfma_f32_16x16x32_bf16 {v(d,4)}, {a}, {b}, {c if c is not None else v(d,4)}"

def interleave(a, mains, fillers, per=1, start=0):
    k = 0
    for i, m in enumerate(mains):
        m() if callable(m) else a(m)
        if i >= start:
            for _ in range(per):
                if k < len(fillers):
                    f = fillers[k]; k += 1
                    f() if callable(f) else a(f)
    while k < len(fillers):
        f = fillers[k]; k += 1
        f() if callable(f) else a(f)

class Gen:
    def __init__(self, stop=None, stamps=False, force_fallback=False, calib=0, **opt):
        self.calib = calib
        self.keep = opt.pop("keep", None)
        self.opt = opt
        self.a = Asm()
        self.stop = stop
        self.stamps = stamps
        self.force_fallback = force_fallback
        self.nstamp = 0
        self.stamp_names = []

    def stamp(self, name):
        if not self.stamps: return
        if self.keep is not None:
            if name not in self.keep and name != "entry": return
        elif name not in ("qkv_gemm", "qkv_pub", "attn_start", "attn_loop", "s2", "wo_gemm", "s3", "z2_gemm", "z1_gemm", "z2n_pub", "s5", "wsp_gemm", "s6", "wout_gemm", "end", "entry"): return
        a = self.a
        a.wait(lg=a.lg)
        cyc = self.opt.get("cyc")
        a(f"{'s_memtime' if cyc else 's_memrealtime'} s[100:101]", "s_waitcnt lgkmcnt(0)")
        n = self.nstamp
        if n == 0:
            a(f"s_mov_b32 s{STAMP0}, s100")
        else:
            r = STAMP0 + 1 + (n - 1) // 2
            if cyc: a(f"s_sub_u32 s101, s100, s{STAMP0}", f"s_mov_b32 s{STAMP0}, s100", "s_mov_b32 s100, s101")
            else: a(f"s_sub_u32 s100, s100, s{STAMP0}")
            a(f"s_mov_b32 s{r}, s100" if n & 1 else f"s_pack_ll_b32_b16 s{r}, s{r}, s100")
        self.nstamp += 1; self.stamp_names.append(name)
        assert self.nstamp <= 17

    def maybe_stop(self, name):
        if self.stop == name:
            self.a.wait_all()
            self.a("s_branch L_finish")

    def flag_store(self, soff, tok=None):
        a = self.a
        a.wait(vm=a.vm if tok is None else tok, force=True)
        a("s_mov_b64 exec, 1", f"buffer_store_dwordx2 {vTAG}, off, {sWS}, {soff} sc1", "s_mov_b64 exec, -1")

    def flag_store_wg(self, soff):
        a = self.a
        a.wait(vm=a.vm, force=True)
        self.barrier()
        L = a.label("noflag")
        a.cond_begin()
        a(f"s_cmp_lg_u32 {sW}, 0", f"s_cbranch_scc1 {L}",
          "s_mov_b64 exec, 1", f"buffer_store_dwordx2 {vTAG}, off, {sWS}, {soff} sc1", "s_mov_b64 exec, -1", f"{L}:")
        a.cond_end()

    def poll_wg(self, voff, soff, tmp, drain=True):
        a = self.a
        if self.opt.get("allpoll"):
            self.poll(voff, soff, tmp); return
        if drain: a.wait(vm=a.vm, force=True)
        done = a.vm_done
        L = a.label("nopoll")
        a(f"s_cmp_lg_u32 {sW}, 0", f"s_cbranch_scc1 {L}")
        self.poll(voff, soff, tmp)
        a(f"{L}:")
        a.vm_done = done
        self.barrier()

    def poll_early(self, voff, soff, tmp):
        return [f"buffer_load_dwordx2 {v(tmp,2)}, {voff}, {sWS}, {soff} offen sc1"]

    def poll_late(self, voff, soff, tmp, tok, wg=True):
        a = self.a
        L = a.label("late")
        done = a.vm_done
        if wg: a(f"s_cmp_lg_u32 {sW}, 0", f"s_cbranch_scc1 {L}")
        a.wait(vm=tok, force=True)
        a(f"v_cmp_ne_u64 vcc, {sTAG}, {v(tmp,2)}", "s_nop 1", f"s_cbranch_vccz {L}")
        a.cond_begin(); self.poll(voff, soff, tmp); a.cond_end()
        a(f"{L}:")
        a.vm_done = done if wg else tok
        if wg: self.barrier()

    def mask_check(self, t0, t1, start, soff, pend, tmp):
        a = self.a
        done = a.vm_done
        L, E = a.label("rc"), a.label("rcok")
        m = ((1 << t1) - 1) ^ ((1 << t0) - 1)
        a(f"s_lshl_b32 {sPOLL}, {m * 0x101}, {start}", f"s_lshr_b32 {sPOLL}, {sPOLL}, 8", f"s_and_b32 {sPOLL}, {sPOLL}, 0xff",
          f"s_and_b32 vcc_lo, {pend}, {sPOLL}", f"s_cbranch_scc0 {E}", f"s_mov_b32 {sRC}, {sPOLL}", f"s_mov_b32 {sPOLL}, 0x40000", f"{L}:")
        a.cond_begin()
        a(f"buffer_load_dwordx2 {v(tmp, 2)}, {vFP8}, {sWS}, {soff} offen sc1")
        a.wait(vm=a.vm, force=True)
        a.cond_end()
        a(f"v_cmp_ne_u64 vcc, {sTAG}, {v(tmp, 2)}", f"s_sub_u32 {sPOLL}, {sPOLL}, 1", f"s_cbranch_scc1 {E}",
          f"s_and_b32 {pend}, vcc_lo, 0xff", f"s_and_b32 vcc_lo, {pend}, {sRC}", f"s_cbranch_scc1 {L}", f"{E}:")
        a.vm_done = done
        for r in (tmp, tmp + 1): a.pend_vm.pop(("v", r), None)

    def poll(self, voff, soff, tmp):
        a = self.a
        L, E = a.label("poll"), a.label("polled")
        a(f"s_mov_b32 {sPOLL}, 0x40000", f"{L}:",
          f"buffer_load_dwordx2 {v(tmp,2)}, {voff}, {sWS}, {soff} offen sc1")
        a.wait(vm=a.vm, force=True)
        a(f"v_cmp_ne_u64 vcc, {sTAG}, {v(tmp,2)}",
          f"s_sub_u32 {sPOLL}, {sPOLL}, 1", f"s_cbranch_scc1 {E}")
        sl = self.opt.get("sleep", 0)
        if sl: a(f"s_cbranch_vccz {E}", f"s_sleep {sl}", f"s_branch {L}", f"{E}:")
        else: a(f"s_cbranch_vccnz {L}", f"{E}:")
        for r in (tmp, tmp + 1): a.pend_vm.pop(("v", r), None)

    def barrier(self):
        self.a("s_barrier")

    def prologue(self):
        a = self.a
        a("s_cmp_ge_u32 s2, 256", "s_cbranch_scc1 L_exit")
        self.stamp("entry")
        a("s_load_dwordx2 s[4:5], s[0:1], 0", "s_load_dwordx2 s[8:9], s[0:1], 8")
        if not self.opt.get("nocodepf"):
            a(f"s_getpc_b64 s[60:61]", "L_pc:", f"s_sub_u32 s60, s60, L_pc-{NAME}_kernel", "s_subb_u32 s61, s61, 0",
              f"s_mov_b32 s62, L_code_end-{NAME}_kernel", "s_mov_b32 s63, 0x00020000",
              f"s_lshr_b32 {T[0]}, s2, 3", f"s_lshl_b32 {T[0]}, {T[0]}, 11", "v_lshlrev_b32 v250, 3, v0",
              f"buffer_load_dwordx2 v[250:251], v250, s[60:63], {T[0]} offen")
        a(f"s_mov_b32 s6, {2048 * 512 * 2}", "s_mov_b32 s7, 0x00020000", f"s_mov_b32 s10, {512 * 1536 * 2}", "s_mov_b32 s11, 0x00020000")
        a("v_lshrrev_b32 v8, 6, v0", f"v_and_b32 {vLANE}, 63, v0", f"v_readfirstlane_b32 {sW}, v8")
        if self.opt.get("map", 1):
            a(f"s_lshr_b32 {T[0]}, s2, 3", f"s_and_b32 {T[1]}, s2, 6", f"s_and_b32 {T[2]}, s2, 1",
              f"s_lshr_b32 {T[3]}, {T[0]}, 4", f"s_add_u32 {sJ}, {T[1]}, {T[3]}",
              f"s_bfe_u32 {sRB}, {T[0]}, 0x20002", f"s_and_b32 {sCB}, {T[0]}, 3", f"s_lshl_b32 {T[4]}, {T[2]}, 2", f"s_add_u32 {sCB}, {sCB}, {T[4]}",
              f"s_lshr_b32 {sU[1]}, {T[0]}, 2", f"s_and_b32 {sU[2]}, {sCB}, 3", f"s_lshl_b32 {sU[2]}, {sU[2]}, 1")
        else:
            a(f"s_and_b32 {sJ}, s2, 7", f"s_lshr_b32 {sHEAD}, s2, 3", f"s_lshr_b32 {sRB}, {sHEAD}, 3", f"s_and_b32 {sCB}, {sHEAD}, 7",
              f"s_lshl_b32 {sU[1]}, {sRB}, 1", f"s_mov_b32 {sU[2]}, {sCB}")
        a(f"s_lshl_b32 {sR0}, {sJ}, 8", f"s_lshl_b32 {T[0]}, {sRB}, 6", f"s_add_u32 {sR0}, {sR0}, {T[0]}")

    def prologue_rest(self):
        a = self.a
        for d, off, n in self.SRDS[2:]: a(f"s_load_dwordx2 s[{d}:{d + 1}], s[0:1], {off}")
        for d, off, n in self.SRDS[2:]: a(f"s_mov_b32 s{d + 2}, {n}", f"s_mov_b32 s{d + 3}, 0x00020000")
        if self.opt.get("map", 1):
            a(f"s_bfe_u32 {sHEAD}, s2, 0x40003", f"s_and_b32 {T[4]}, s2, 1", f"s_lshl_b32 {T[4]}, {T[4]}, 4", f"s_add_u32 {sHEAD}, {sHEAD}, {T[4]}")
        a(f"s_lshr_b32 {sRH}, {sW}, 1", f"s_and_b32 {sCH}, {sW}, 1",
          f"s_lshl_b32 {sCLU}, {sJ}, 2", f"s_add_u32 {sCLU}, {sCLU}, {sRB}",
          f"s_mov_b32 {sONES}, 0x3f803f80", f"s_mov_b32 {sHIMASK}, 0xffff0000")
        a(f"s_mul_i32 {T[0]}, {sCB}, 5", f"s_min_u32 {T[1]}, {sCB}, 3", f"s_add_u32 {sT0}, {T[0]}, {T[1]}",
          f"s_cmp_ge_u32 {sCB}, 3", f"s_cselect_b32 {sCNT5}, 1, 0")
        a(f"v_lshlrev_b32 {vL16}, 4, {vLANE}", f"v_mov_b32 {vZ}, 0",
          f"v_and_b32 v8, 15, {vLANE}", f"v_lshrrev_b32 v9, 5, {vLANE}", f"v_bfe_u32 v10, {vLANE}, 4, 1",
          f"v_lshlrev_b32 v8, 4, v8", f"v_lshl_add_u32 v8, v10, 3, v8",
          f"v_lshl_add_u32 {vPAT}, v9, 8, v8",
          f"v_lshl_add_u32 v63, v9, 9, v8",
          f"v_and_b32 {vFP32}, 31, {vLANE}", f"v_lshlrev_b32 {vFP32}, 7, {vFP32}",
          f"v_and_b32 {vFP8}, 7, {vLANE}", f"v_lshlrev_b32 {vFP8}, 3, {vFP8}")

    SRDS = [(4, 0, 2048 * 512 * 2), (8, 8, 512 * 1536 * 2), (36, 80, WS_SIZE), (12, 16, 512 * 512 * 2), (16, 32, 512 * 1376 * 2),
            (20, 40, 2048 * 2048 * 2), (24, 48, 2048 * 2), (28, 56, 688 * 512 * 2), (32, 64, 2048 * 512 * 2)]

    def phase_qkv(self):
        a = self.a
        ACC = 128
        CSR = (124, 200, 204)
        vX0, vX1, vW0, vW1, vWrA, vWrB, XA = "v28", "v29", "v30", "v31", "v32", "v33", 34
        STA = LC
        a(f"v_lshrrev_b32 v8, 3, {vLANE}", f"v_and_b32 v9, 7, {vLANE}", "v_lshrrev_b32 v10, 1, v8", "v_xor_b32 v10, v10, v9",
          "v_lshlrev_b32 v10, 4, v10", "v_lshl_add_u32 v10, v8, 10, v10",
          f"s_lshl_b32 {T[0]}, {sW}, 4", f"s_add_u32 {T[0]}, {T[0]}, {sR0}", f"s_lshl_b32 {T[0]}, {T[0]}, 10",
          f"v_add_u32 {vX0}, {T[0]}, v10", f"v_xor_b32 {vX1}, 64, {vX0}", f"v_add_u32 {vX1}, {7 * 1024}, {vX1}")
        a(f"v_bfe_u32 v10, {vLANE}, 4, 1", "v_lshrrev_b32 v11, 1, v9", "v_xor_b32 v11, v11, v10",
          "v_and_b32 v12, 1, v9", "v_lshl_or_b32 v11, v11, 1, v12", "v_lshlrev_b32 v11, 4, v11",
          "v_mul_u32_u24 v12, 3072, v8", "v_add_u32 v12, v12, v11",
          f"s_mul_i32 {T[0]}, {sW}, {16 * 3072}", f"s_lshl_b32 {T[1]}, {sCB}, 7", f"s_add_u32 {T[0]}, {T[0]}, {T[1]}",
          f"v_add_u32 {vW0}, {T[0]}, v12", f"v_xor_b32 {vW1}, 64, {vW0}", f"v_add_u32 {vW1}, {8 * 3072 - 1024}, {vW1}",
          f"s_lshl_b32 {sU[0]}, {sW}, 11", f"s_add_u32 {sU[2]}, {sU[2]}, {sU[1]}")
        if self.opt.get("q_rot", 3) == 0: a(f"s_mov_b32 {sU[2]}, 0")
        if self.opt.get("q_rot", 3) == 3: a(f"s_and_b32 {sU[2]}, {sU[1]}, 1", f"s_lshl_b32 {sU[2]}, {sU[2]}, 2")
        if self.opt.get("q_rot") == 1: a(f"s_mov_b32 {sU[2]}, {sU[1]}")
        if self.opt.get("q_samew"): a(f"v_subrev_u32 {vW0}, {T[1]}, {vW0}", f"v_subrev_u32 {vW1}, {T[1]}, {vW1}")
        if self.opt.get("q_samex"): a(f"v_and_b32 {vX0}, 0xffff, {vX0}", f"v_and_b32 {vX1}, 0x1ffff, {vX1}")
        tok = {}
        def dma(t):
            L = [[f"s_add_u32 {T[1]}, {sU[2]}, {t}", f"s_and_b32 {T[1]}, {T[1]}, 7", f"s_lshl_b32 {T[2]}, {T[1]}, 7",
                  f"s_add_u32 m0, {sU[0]}, {LB + t * 8192}", f"buffer_load_dwordx4 {vX0}, {sX}, {T[2]} offen lds"],
                 [f"buffer_load_dwordx4 {vX1}, {sX}, {T[2]} offen offset:1024 lds"]]
            for p in range(3):
                pre = [f"s_mul_i32 {T[1]}, {T[1]}, {64 * 3072}"] if p == 0 else []
                L.append(pre + [f"s_add_u32 {T[2]}, {T[1]}, {p * 1024}", f"s_add_u32 m0, {sU[0]}, {(t & 3) * 24576 + p * 8192}",
                                f"buffer_load_dwordx4 {vW0}, {sWQKV}, {T[2]} offen lds"])
                L.append([f"buffer_load_dwordx4 {vW1}, {sWQKV}, {T[2]} offen offset:1024 lds"])
            L[-1].append(lambda: tok.__setitem__(t, a.vtok()))
            return L
        a("s_waitcnt lgkmcnt(0)")
        self.stamp("kernarg")
        self.emit_all(dma(0))
        pq = self.opt.get("pfq2", 0)
        def pfq():
            a(f"s_lshl_b32 {T[3]}, s2, 2", f"s_add_u32 {T[3]}, {T[3]}, {sW}", f"s_lshl_b32 {T[4]}, {T[3]}, 11", f"s_mul_i32 {T[3]}, {T[3]}, 960",
              f"s_add_u32 {T[3]}, {T[3]}, {192 * 3072}", f"v_min_u32 v248, 59, {vLANE}", "v_lshlrev_b32 v248, 4, v248",
              f"buffer_load_dwordx4 v[244:247], v248, {sWQKV}, {T[3]} offen",
              f"buffer_load_dwordx4 v[244:247], {vL16}, {sX}, {T[4]} offen", f"buffer_load_dwordx4 v[244:247], {vL16}, {sX}, {T[4]} offen offset:1024")
        self.prologue_rest()
        if pq == 1: pfq()
        a(f"v_lshrrev_b32 v10, 4, {vLANE}", f"v_bfe_u32 v11, {vLANE}, 2, 2", f"v_and_b32 v12, 3, {vLANE}",
          "v_lshl_add_u32 v13, v10, 3, v11", "v_lshlrev_b32 v13, 7, v13", "v_lshl_add_u32 v13, v12, 3, v13",
          "v_lshrrev_b32 v11, 1, v11", "v_and_b32 v14, 1, v10", "v_lshl_or_b32 v11, v14, 1, v11",
          f"v_xor_b32 v11, {sW}, v11", f"v_lshl_add_u32 {vWrA}, v11, 5, v13", f"v_add_u32 {vWrB}, {2 * 24576}, {vWrA}")
        a(f"v_and_b32 v11, 15, {vLANE}", "v_lshrrev_b32 v12, 1, v11", "v_xor_b32 v12, v12, v10", "v_lshlrev_b32 v12, 4, v12",
          "v_lshl_add_u32 v12, v11, 7, v12", f"s_add_u32 {T[0]}, {sU[0]}, {LB}", f"v_add_u32 v{XA}, {T[0]}, v12")
        for k in range(1, 8): a(f"v_xor_b32 v{XA + k}, {((k >> 1) << 11) | ((k & 1) << 6)}, v{XA}")
        for r in range(252, 256): a(f"v_mov_b32 v{r}, {sONES}")
        early = self.opt.get("qearly", 0)
        QS = 0.25 * 1.4426950408889634
        a(f"v_and_b32 v16, 15, {vLANE}", f"v_lshrrev_b32 v17, 4, {vLANE}", f"v_and_b32 v20, 3, {vLANE}", "v_lshrrev_b32 v21, 2, v16",
          f"s_lshl_b32 {T[0]}, {sW}, 6", f"s_add_u32 {T[0]}, {T[0]}, {STA}",
          "v_cmp_eq_u32 vcc, v17, v21", "v_cndmask_b32_e64 v21, 0, -1, vcc",
          "v_lshlrev_b32 v16, 2, v16", f"v_add_u32 v16, {T[0]}, v16", "v_lshlrev_b32 v18, 4, v17", f"v_add_u32 v18, {T[0]}, v18",
          "v_and_b32 v17, 1, v17", "v_lshl_add_u32 v19, v17, 8, v16",
          f"s_and_b32 {T[6]}, {sW}, 1", f"s_lshl_b32 {T[6]}, {T[6]}, 8", f"s_lshr_b32 {T[7]}, {sW}, 1", f"s_lshl_b32 {T[7]}, {T[7]}, 10",
          f"s_or_b32 {T[6]}, {T[6]}, {T[7]}", f"v_or_b32 v42, {T[6]}, v63", f"s_lshl_b32 {T[6]}, {sW}, 9", f"v_or_b32 v46, {T[6]}, {vPAT}",
          f"v_mov_b32 v22, {f2u(QS)}", f"v_mov_b32 v23, {f2u(QS)}")
        self.emit_all(dma(1))
        if pq == 2: pfq()
        for r in range(1, 4): a(f"v_xor_b32 v{42 + r}, {((r & 1) << 8) | ((r >> 1) << 10)}, v42", f"v_xor_b32 v{46 + r}, {r << 9}, v46")
        a(f"s_lshl_b32 {T[4]}, {sCB}, 2", f"s_add_u32 {T[4]}, {T[4]}, {sW}",
          f"s_lshl_b32 {sU[5]}, {T[4]}, 16", f"s_lshl_b32 {T[3]}, {sR0}, 5", f"s_add_u32 {sU[5]}, {sU[5]}, {T[3]}",
          f"s_add_u32 {sU[5]}, {sU[5]}, {WS_Q}",
          f"s_lshl_b32 {sU[6]}, {T[4]}, 17", f"s_lshl_b32 {T[3]}, {sR0}, 6", f"s_add_u32 {sU[6]}, {sU[6]}, {T[3]}",
          f"s_add_u32 {sU[6]}, {sU[6]}, {WS_KV}", f"s_add_u32 {sU[7]}, {sU[6]}, 2048",
          f"s_lshl_b32 {T[0]}, {sRB}, 5", f"s_add_u32 {T[0]}, {T[0]}, {T[4]}", f"s_lshl_b32 {T[0]}, {T[0]}, 7",
          f"s_lshl_b32 {T[4]}, {sJ}, 3", f"s_add_u32 {T[0]}, {T[0]}, {T[4]}", f"s_add_u32 {sU[8]}, {T[0]}, {WS_F1}")
        a("s_waitcnt lgkmcnt(0)", f"s_mov_b32 {sRB8}, {sU[1]}")
        a(f"buffer_load_dwordx2 v[4:5], off, {sWS}, 0 sc1")
        etok = a.vtok()
        tl = self.opt.get("tlb", 0)
        if tl:
            a(f"v_min_u32 v248, 9, {vLANE}", "v_lshlrev_b32 v248, 21, v248", f"buffer_load_dword v249, v248, {sWS}, 0 offen offset:2048")
            if tl >= 2:
                a(f"buffer_load_dword v249, v248, {sWSP}, 0 offen", f"buffer_load_dword v249, off, {sWO}, 0", f"buffer_load_dword v249, off, {sWIN}, 0",
                  f"buffer_load_dword v249, off, {sWOUT}, 0", f"buffer_load_dword v249, off, {sBSP}, 0")
            if tl >= 3: a(f"buffer_load_dword v249, off, {sOUT}, 0")
        if not early: self.emit_all(dma(2))
        self.stamp("issued")
        def abuf(s): return 64 + 16 * (s % 3)
        def wbuf(s): return (112, 176, 188)[s % 3]
        def reads(s):
            t, sub = s >> 1, s & 1
            slot = t & 3
            wb = vWrA if slot < 2 else vWrB
            wo = (slot & 1) * 24576 + sub * 4096
            A, W = abuf(s), wbuf(s)
            L = [f"ds_read_b64_tr_b16 {v(W + 2 * h, 2)}, {wb} offset:{wo + 512 * h}" for h in range(2)]
            L += [f"ds_read_b128 {v(A + 4 * r, 4)}, v{XA + 2 * r + sub} offset:{t * 8192}" for r in range(4)]
            L += [f"ds_read_b64_tr_b16 {v(W + 4 * p + 2 * h, 2)}, {wb} offset:{wo + 8192 * p + 512 * h}" for p in (1, 2) for h in range(2)]
            return L
        def mfmas(s):
            A, W = abuf(s), wbuf(s)
            c = "0" if s == 0 else None
            ms = []
            for p in range(3):
                wv = v(W + 4 * p, 4)
                for r in range(4):
                    d, av = ACC + 16 * p + 4 * r, v(A + 4 * r, 4)
                    ms.append(mfma16(d, wv, av, c) if p < 2 else mfma16(d, av, wv, c))
                ms.append(mfma16(CSR[p], wv, "v[252:255]", c) if p < 2 else mfma16(CSR[p], "v[252:255]", wv, c))
                if p == 0: ms.append(mfma16(8, "v[252:255]", v(A, 4), c))
                if p == 1: ms.append(mfma16(24, v(A, 4), v(A, 4), c))
            return ms
        def head0():
            a.wait(vm=tok[0]); self.barrier(); self.stamp("w0")
        before, late = {}, {}
        for t in range(7):
            def f(t=t):
                if not self.opt.get("q_nowait"): a.wait(vm=tok[t + 1])
                self.barrier(); self.stamp(f"qc{t + 1}")
            before[2 * t] = f
        def f15():
            a.wait(lg=a.lg); self.barrier()
        before[15] = f15
        if self.opt.get("q_nodma"):
            dma = lambda t: (tok.__setitem__(t, a.vtok()), [[]] * 8)[1]
        d3 = dma(3)
        late[0], late[1] = d3[:4], d3[4:]
        if early: late[0], late[1] = dma(2), d3
        for t in range(4, 8):
            d = dma(t)
            late[2 * t - 6], late[2 * t - 5] = d[:4], d[4:]
        cf = self.const_fill(52)
        late[15] = [cf[0:4], cf[4:8], cf[8:10], cf[10:]]
        late[12] = [[lambda: a.wait(vm=etok)], ["v_add_u32 v4, 0x9e3779b9, v4"], ["v_add_u32 v5, 0x7f4a7c15, v5"]]
        late[13] = [["v_readfirstlane_b32 s50, v4"], ["v_readfirstlane_b32 s51, v5"]]
        self.kloop(16, reads, mfmas, before, late, {0: head0})
        self.stamp("qkv_gemm")
        a("v_cmp_eq_u32 vcc, 1, v20", "v_cndmask_b32 v9, v24, v25, vcc", "v_cmp_eq_u32 vcc, 3, v20",
          "v_cndmask_b32_e64 v10, v26, v27, vcc", "v_cmp_lt_u32 vcc, 1, v20", "v_cndmask_b32 v9, v9, v10, vcc", "v_and_b32 v9, v9, v21",
          "v_mov_b32 v10, v9", "v_permlane32_swap_b32 v9, v10", "v_add_f32 v9, v9, v10", "v_mov_b32 v10, v9",
          "v_cmp_eq_u32 vcc, 1, v17", "v_permlane16_swap_b32 v9, v10", "v_add_f32 v9, v9, v10")
        self.ln_finish([(8, 9, 10)], 1.0 / 512)
        a("v_cndmask_b32 v10, v10, v11, vcc", "ds_write_b32 v19, v10")
        a.wait(lg=a.lg)
        self.barrier()
        for r in range(4):
            if r: a(f"v_xor_b32 v20, {r << 6}, v16")
            a(f"ds_read2_b32 {v(64 + 2 * r, 2)}, {'v16' if r == 0 else 'v20'} offset1:64")
        qtok = a.ltok()
        for r in range(4):
            if r: a(f"v_xor_b32 v21, {r << 6}, v18")
            p18 = "v18" if r == 0 else "v21"
            a(f"ds_read_b128 {v(80 + 8 * r, 4)}, {p18}", f"ds_read_b128 {v(84 + 8 * r, 4)}, {p18} offset:256")
        a.wait(lg=qtok)
        for p in (1, 2, 0):
            if p == 2:
                a.wait(lg=a.lg)
                for r in range(4): a(f"v_pk_mul_f32 {v(72 + 2 * r, 2)}, {v(64 + 2 * r, 2)}, v[22:23]")
            for r0 in (0, 2):
                work = [(r, k) for r in (r0, r0 + 1) for k in range(2)]
                tm = {w_: 52 + 2 * i for i, w_ in enumerate(work)}
                for r, k in work:
                    c = v(CSR[p] + 2 * k, 2)
                    if p == 2: a(f"v_pk_mul_f32 {v(tm[r, k], 2)}, {c}, {v(84 + 8 * r + 2 * k, 2)}")
                    else: a(f"v_pk_mul_f32 {v(tm[r, k], 2)}, {c}, {v((72 if p == 0 else 64) + 2 * r, 2)} op_sel:[0,1] op_sel_hi:[1,1]")
                for r, k in work:
                    d = v(ACC + 16 * p + 4 * r + 2 * k, 2)
                    if p == 2: a(f"v_pk_fma_f32 {d}, {d}, {v(80 + 8 * r + 2 * k, 2)}, {v(tm[r, k], 2)}")
                    else: a(f"v_pk_fma_f32 {d}, {d}, {v((72 if p == 0 else 64) + 2 * r, 2)}, {v(tm[r, k], 2)} op_sel:[0,0,0] op_sel_hi:[1,0,1]")
                for r, k in work:
                    d = ACC + 16 * p + 4 * r + 2 * k
                    a(f"v_cvt_pk_bf16_f32 v{ACC + 16 * p + 4 * r + k}, v{d}, v{d + 1}")
                for r in (r0, r0 + 1):
                    o = v(ACC + 16 * p + 4 * r, 2)
                    if p < 2: a(f"buffer_store_dwordx2 {o}, v{42 + r}, {sWS}, {sU[5] if p == 0 else sU[6]} offen sc1")
                    else: a(f"buffer_store_dwordx2 {o}, v{46 + r}, {sWS}, {sU[7]} offen sc1")
        stok = a.vtok()
        if self.opt.get("pfs2", 0):
            a(f"s_lshl_b32 {T[3]}, s2, 2", f"s_add_u32 {T[3]}, {T[3]}, {sW}", f"s_lshl_b32 {T[3]}, {T[3]}, 13", f"s_add_u32 {T[4]}, {T[3]}, 4096")
            for i in range(4): a(f"buffer_load_dwordx4 v[244:247], {vL16}, {sWSP}, {T[3 + (i >> 1)]} offen offset:{1024 * (i & 1)}")
        self.flag_store(sU[8], stok)
        self.stamp("qkv_pub")
        self.attn_addresses()

    def ln_finish(self, chains, inv_n):
        a = self.a
        for s1, s2, d in chains: a(f"v_mul_f32 v{s1}, {f2u(inv_n)}, v{s1}", f"v_mul_f32 v{s2}, {f2u(inv_n)}, v{s2}")
        for s1, s2, d in chains: a(f"v_fma_f32 v{s2}, -v{s1}, v{s1}, v{s2}")
        for s1, s2, d in chains: a(f"v_max_f32 v{s2}, 0, v{s2}")
        for s1, s2, d in chains: a(f"v_add_f32 v{s2}, {f2u(1e-5)}, v{s2}")
        for s1, s2, d in chains: a(f"v_rsq_f32 v{d}, v{s2}")
        for s1, s2, d in chains: a(f"v_mul_f32_e64 v{d + 1}, -v{s1}, v{d}")

    def const_fill(self, t=8):
        L = [f"v_and_b32 v{t}, 27, {vLANE}", f"v_cmp_eq_u32 vcc, 1, v{t}", f"v_mov_b32 v{t + 1}, {sONES}",
             f"v_cndmask_b32 v{t + 4}, v3, v{t + 1}, vcc", f"v_mov_b32 v{t + 5}, v{t + 4}", f"v_mov_b32 v{t + 6}, v{t + 4}", f"v_mov_b32 v{t + 7}, v{t + 4}",
             f"s_lshl_b32 {T[3]}, {sW}, 12", f"s_add_u32 {T[3]}, {T[3]}, {LC + 2048}", f"v_add_u32 v{t + 1}, {T[3]}, {vL16}",
             f"ds_write_b128 v{t + 1}, {v(t + 4, 4)}", f"ds_write_b128 v{t + 1}, {v(t + 4, 4)} offset:1024"]
        return L

    S, OA, NM, QF, KB, VB = 64, 112, 144, 176, 184, 192
    vIDX, vSP0, vKA, vKB2, vVB, vVI, vWD0, vXR = 208, 209, 213, 214, 215, 216, 217, 240

    def attn_addresses(self):
        a = self.a
        a(f"v_and_b32 v8, 15, {vLANE}", f"v_lshrrev_b32 v9, 4, {vLANE}", "v_lshlrev_b32 v10, 12, v8", "v_lshl_add_u32 v10, v9, 4, v10",
          f"s_lshl_b32 {T[6]}, {sR0}, 12", f"s_lshl_b32 {T[7]}, {sW}, 7", f"s_add_u32 {T[6]}, {T[6]}, {T[7]}",
          f"v_add_u32 v{self.vSP0}, {T[6]}, v10")
        for tt in range(1, 4): a(f"v_add_u32 v{self.vSP0 + tt}, {tt * 65536}, v{self.vSP0}")
        a(f"v_mov_b32 v{self.vIDX}, 0xdddddddd", f"v_mov_b32 v{self.vKA}, {vL16}", f"v_add_u32 v{self.vKB2}, {LB}, {vL16}")
        a(f"v_lshrrev_b32 v10, 5, {vLANE}", "v_lshl_add_u32 v10, v10, 4, v8", "v_lshlrev_b32 v10, 4, v10",
          f"v_and_b32 v11, 31, {vLANE}", f"v_bfe_u32 v12, {vLANE}, 2, 2",
          "v_add_u32 v12, -1, v12", "v_cmp_gt_u32 vcc, 2, v12", "v_cndmask_b32_e64 v12, 0, 4, vcc",
          "v_and_b32 v13, 27, v11", "v_cmp_eq_u32 vcc, 16, v13", "v_cndmask_b32_e64 v13, 0, 1, vcc",
          "v_add_u32 v12, v12, v13", "v_lshlrev_b32 v12, 4, v12", f"v_add_u32 v12, {LC}, v12",
          "v_cmp_gt_u32 vcc, 16, v11", f"v_cndmask_b32 v{self.vVB}, v12, v10, vcc",
          f"v_mov_b32 v13, 0x4000", f"v_cndmask_b32 v{self.vVI}, v3, v13, vcc")
        self.w128_addresses(self.vWD0, 16)
        self.win_addresses()
        a(f"s_lshl_b32 {T[5]}, {sHEAD}, 17", f"s_lshl_b32 {sU[1]}, {sW}, 12", f"s_add_u32 {T[5]}, {T[5]}, {sU[1]}", f"s_add_u32 {T[5]}, {T[5]}, {WS_KV}")
        for t in range(8):
            a(f"s_add_u32 {T[6]}, {sJ}, {t}", f"s_and_b32 {T[6]}, {T[6]}, 7", f"s_lshl_b32 {T[6]}, {T[6]}, 14", f"s_add_u32 {sROT[t]}, {T[6]}, {T[5]}")
        a(f"s_add_u32 {sSPR}, {sRB8}, {sJ}")
        if self.opt.get("s5prog", 0): a(f"s_and_b32 {sSPR}, {sJ}, 6")
        if self.opt.get("pfs2", 0): a(f"s_mov_b32 {sSPR}, 0")
        for t in range(8):
            a(f"s_add_u32 {T[6]}, {sSPR}, {t}", f"s_and_b32 {T[6]}, {T[6]}, 7", f"s_lshl_b32 {sU[4 + t]}, {T[6]}, 9")
        a(f"v_lshrrev_b32 v226, 3, {vLANE}", f"s_lshl_b32 {T[6]}, {sCB}, 3", f"s_add_u32 {T[6]}, {T[6]}, {sR0}", f"v_add_u32 v226, {T[6]}, v226",
          "v_lshlrev_b32 v226, 12, v226", f"v_and_b32 v8, 7, {vLANE}", "v_lshl_add_u32 v226, v8, 4, v226",
          f"s_lshl_b32 {T[6]}, {sW}, 7", f"v_add_u32 v226, {T[6]}, v226")
        a(f"v_and_b32 v8, 15, {vLANE}", f"v_lshrrev_b32 v9, 4, {vLANE}", "v_lshlrev_b32 v8, 10, v8", "v_lshl_add_u32 v62, v9, 3, v8")
        a(f"v_and_b32 v10, 15, {vLANE}", f"v_bfe_u32 v11, {vLANE}, 4, 1", f"v_lshrrev_b32 v12, 5, {vLANE}",
          "v_lshlrev_b32 v10, 4, v10", "v_lshl_add_u32 v10, v11, 14, v10", "v_lshl_add_u32 v227, v12, 3, v10")
        for r in range(self.NM, self.NM + 0): pass

    def w128_addresses(self, r, t0=28):
        a = self.a
        p, q, u, x, y = ("v%d" % (t0 + i) for i in range(5))
        a(f"v_lshrrev_b32 {p}, 3, {vLANE}", f"v_and_b32 {q}, 7, {vLANE}", f"v_bfe_u32 {u}, {vLANE}, 4, 1",
          f"v_lshrrev_b32 {x}, 1, {q}", f"v_xor_b32 {x}, {x}, {u}", f"v_and_b32 {y}, 1, {q}", f"v_lshl_or_b32 {x}, {x}, 1, {y}",
          f"v_lshlrev_b32 {x}, 4, {x}", f"v_lshl_add_u32 {x}, {p}, 10, {x}",
          f"s_lshl_b32 {T[6]}, {sCB}, 7", f"v_add_u32 v{r}, {T[6]}, {x}", f"v_xor_b32 v{r + 1}, 64, v{r}",
          f"v_add_u32 v{r + 1}, {7 * 1024}, v{r + 1}", f"v_add_u32 v{r + 2}, {14 * 1024}, v{r}", f"v_add_u32 v{r + 3}, {14 * 1024}, v{r + 1}")

    def w128_dma(self, r, srd, pos, lds, nsteps):
        L = [f"s_lshr_b32 {T[4]}, {pos}, 1", f"s_add_u32 {T[4]}, {T[4]}, {sU[4]}"]
        n = nsteps // 2
        if n & (n - 1) == 0: L.append(f"s_and_b32 {T[4]}, {T[4]}, {n - 1}")
        else: L += [f"s_cmp_ge_u32 {T[4]}, {n}", f"s_cselect_b32 {T[7]}, {n}, 0", f"s_sub_u32 {T[4]}, {T[4]}, {T[7]}"]
        L += [f"s_lshl_b32 {T[4]}, {T[4]}, 1", f"s_and_b32 {T[7]}, {pos}, 1", f"s_add_u32 {T[4]}, {T[4]}, {T[7]}", f"s_lshl_b32 {T[4]}, {T[4]}, 15",
              f"s_mov_b32 m0, {lds}"]
        return L, [f"buffer_load_dwordx4 v{r + i}, {srd}, {T[4]} offen offset:{1024 * i} lds" for i in range(4)]

    def stage_base(self, t): return LA + 16384 * t if t < 4 else LB + 16384 * (t - 4)

    def kv_dma(self, t):
        L = [([f"s_add_u32 m0, {sU[1]}, {self.stage_base(t)}"] if i == 0 else [],
              f"buffer_load_dwordx4 {vL16}, {sWS}, {sROT[t]} offen offset:{1024 * i} sc1 lds") for i in range(4)]
        return L

    def phase_attn(self):
        a = self.a
        S, OA, NM, QF, KB, VB = self.S, self.OA, self.NM, self.QF, self.KB, self.VB
        a(f"s_lshl_b32 {T[0]}, {sW}, 5", f"s_add_u32 {T[0]}, {T[0]}, {sHEAD}", f"s_lshl_b32 {T[0]}, {T[0]}, 7", f"s_add_u32 {T[0]}, {T[0]}, {WS_F1}",
          f"s_lshl_b32 {T[1]}, {sHEAD}, 16", f"s_lshl_b32 {T[2]}, {sJ}, 13", f"s_add_u32 {T[1]}, {T[1]}, {T[2]}",
          f"s_lshl_b32 {T[2]}, {sW}, 11", f"s_add_u32 {T[1]}, {T[1]}, {T[2]}", f"s_add_u32 {T[1]}, {T[1]}, {WS_Q}",
          )
        for r in range(OA, OA + 32): a(f"v_mov_b32 v{r}, 0")
        a(f"s_lshr_b32 {P[0]}, {sHEAD}, 1", f"s_lshl_b32 {P[0]}, {P[0]}, 10", f"s_and_b32 {P[1]}, {sHEAD}, 1", f"s_lshl_b32 {P[1]}, {P[1]}, 9",
          f"s_add_u32 {P[0]}, {P[0]}, {P[1]}", f"s_lshl_b32 {P[1]}, {sJ}, 18", f"s_add_u32 {P[0]}, {P[0]}, {P[1]}",
          f"s_lshl_b32 {P[1]}, {sW}, 16", f"s_add_u32 {P[0]}, {P[0]}, {P[1]}", f"s_add_u32 {P[0]}, {P[0]}, {WS_O}", f"s_add_u32 {P[1]}, {P[0]}, 0x8000",
          f"s_lshl_b32 {P[2]}, {sJ}, 2", f"s_add_u32 {P[2]}, {P[2]}, {sW}", f"s_lshl_b32 {P[2]}, {P[2]}, 12",
          f"s_lshl_b32 {P[3]}, {sHEAD}, 7", f"s_add_u32 {P[2]}, {P[2]}, {P[3]}", f"s_add_u32 {P[2]}, {P[2]}, {WS_F2}",
          f"s_lshl_b32 {P[3]}, {sRH}, 15", f"s_lshl_b32 {P[4]}, {sR0}, 10", f"s_add_u32 {P[3]}, {P[3]}, {P[4]}",
          f"s_lshl_b32 {P[4]}, {sCB}, 7", f"s_add_u32 {P[3]}, {P[3]}, {P[4]}", f"s_lshl_b32 {P[4]}, {sCH}, 6", f"s_add_u32 {P[3]}, {P[3]}, {P[4]}",
          f"s_add_u32 {P[4]}, {P[3]}, 0x4000")
        self.w128_read_base(28, 2)
        L, E, F = a.label("s1"), a.label("s1own"), a.label("s1all")
        a(f"s_mov_b32 {sPOLL}, 0x40000", f"s_lshl_b32 {T[2]}, 1, {sJ}", f"{L}:", f"buffer_load_dwordx2 v[8:9], {vFP8}, {sWS}, {T[0]} offen sc1")
        a.wait(vm=a.vm, force=True)
        a(f"v_cmp_ne_u64 vcc, {sTAG}, v[8:9]", f"s_sub_u32 {sPOLL}, {sPOLL}, 1", f"s_cbranch_scc1 {E}",
          f"s_and_b32 {T[3]}, vcc_lo, {T[2]}", f"s_cbranch_scc1 {L}", f"{E}:", "s_mov_b64 s[60:61], vcc")
        self.stamp("s1")
        for q in range(2):
            a(f"buffer_load_dwordx4 {v(QF + 4 * q, 4)}, {vL16}, {sWS}, {T[1]} offen offset:{1024 * q} sc1")
        kvtok = {}
        def issue(items):
            for pre, ins in items: a(*pre, ins) if pre else a(ins)
        issue(self.kv_dma(0)); kvtok[0] = a.vtok()
        a(f"s_and_b32 {sU[3]}, s60, 0xff", f"s_mov_b32 {sU[2]}, {T[0]}")
        def remote_check(t0, t1):
            def f():
                if self.opt.get("norem"): return
                self.mask_check(t0, t1, sJ, sU[2], sU[3], 8)
            return f
        if self.opt.get("ahead"): a(f"buffer_load_dwordx4 v[228:231], v226, {sWSP}, {sU[4]} offen")
        a.wait(vm=kvtok[0], lg=a.lg)
        self.barrier()
        def kread(kt):
            t, k = kt >> 3, kt & 7
            base = self.vKA if t < 4 else self.vKB2
            return f"ds_read_b128 {v(KB + 4 * (kt & 1), 4)}, v{base} offset:{16384 * (t & 3) + (k >> 1) * 4096 + (k & 1) * 1024}"
        def vread(kt, hi):
            k = kt & 7
            return f"ds_read_b128 {v(VB + 8 * (kt & 1) + 4 * hi, 4)}, v{self.vVB} offset:{(k >> 1) * 4096 + 2048 + (k & 1) * 1024 + 512 * hi}"
        def qk(n, c=None):
            kt, q = n >> 1, n & 1
            return f"v_mfma_f32_32x32x16_bf16 {v(S + 16 * (n % 3), 16)}, {v(KB + 4 * (kt & 1), 4)}, {v(QF + 4 * q, 4)}, {c if c else v(NM + 16 * q, 16)}"
        def pv(n, hi):
            kt, q = n >> 1, n & 1
            return f"v_smfmac_f32_32x32x32_bf16 {v(OA + 16 * q, 16)}, {v(VB + 8 * (kt & 1) + 4 * hi, 4)}, {v(S + 16 * (n % 3) + 8 * hi, 8)}, v{self.vIDX}"
        a(kread(0), kread(1), vread(0, 0), vread(0, 1))
        a.wait(lg=a.lg)
        a(qk(0, "0"), qk(1, "0"))
        for q in range(2):
            b, m = S + 16 * q, 8 + 2 * q
            a(f"v_max3_f32 v{m}, v{b}, v{b + 1}, v{b + 2}")
            for k in range(3, 15, 2): a(f"v_max3_f32 v{m}, v{m}, v{b + k}, v{b + k + 1}")
            a(f"v_max_f32 v{m}, v{m}, v{b + 15}", f"v_mov_b32 v{m + 1}, v{m}")
        for q in range(2): a(f"v_permlane32_swap_b32 v{8 + 2 * q}, v{9 + 2 * q}")
        for q in range(2):
            m = 8 + 2 * q
            a(f"v_max_f32 v{m}, v{m}, v{m + 1}", f"v_sub_f32 v{m}, 0, v{m}")
            for r in range(0, 16, 2): a(f"v_pk_mov_b32 {v(NM + 16 * q + r, 2)}, {v(m, 2)}, {v(m, 2)} op_sel:[0,0]")
            a(qk(q))
        self.stamp("attn_start")
        if self.stamps: a("s_memtime s[100:101]", "s_waitcnt lgkmcnt(0)", "s_mov_b32 s99, s100")
        wotok = [0]
        wo = []
        for g in range(4):
            a(f"s_lshl_b32 {T[4]}, {sW}, 1", f"s_add_u32 {T[4]}, {T[4]}, {g >> 1}", f"s_add_u32 {T[4]}, {T[4]}, {sCB}", f"s_and_b32 {T[4]}, {T[4]}, 7",
              f"s_lshl_b32 {T[4]}, {T[4]}, 16", f"s_add_u32 {T[g]}, {T[4]}, {(g & 1) * 32768}")
            ins = [f"buffer_load_dwordx4 v{self.vWD0 + i}, {sWO}, {T[g]} offen offset:{1024 * i} lds" for i in range(4)]
            wo += [([f"s_lshl_b32 {sU[3]}, {sW}, 14", f"s_add_u32 m0, {sU[3]}, {LA + g * 4096}"], ins[0]), ([], ins[1]), ([], ins[2]), ([], ins[3])]
        a(f"s_lshl_b32 {T[6]}, {sHEAD}, 2", f"s_add_u32 {T[6]}, {T[6]}, {sW}", f"s_mul_i32 {T[6]}, {T[6]}, 11008")
        pfw = [([f"s_add_u32 {T[6]}, {T[6]}, 4096"] if i and i % 4 == 0 else [],
                f"buffer_load_dwordx4 v[228:231], {vL16}, {sWIN}, {T[6]} offen offset:{(i % 4) * 1024}") for i in range(11)]
        if not self.opt.get("pfw"): pfw = []
        a(f"s_mov_b32 {T[7]}, {sU[4]}", f"s_mov_b32 {sU[4]}, {sCB}")
        w2c = self.win_dma(1, 28, 1, (T[4], T[5], T[6], sU[0]))
        self.emit(w2c[0][:-1]); a(f"s_mov_b32 {T[4]}, m0", f"s_mov_b32 {sU[4]}, {T[7]}")
        pfw += [([f"s_mov_b32 m0, {T[4]}"], w2c[0][-1]), ([], w2c[1][-1]), ([], w2c[2][-1])]
        pf2 = []
        if self.opt.get("pf2", 1):
            a(f"s_lshl_b32 {T[5]}, s2, 2", f"s_add_u32 {T[5]}, {T[5]}, {sW}", f"s_mul_i32 {T[6]}, {T[5]}, 1376", f"s_mul_i32 {T[7]}, {T[5]}, 688",
              f"s_lshl_b32 {T[5]}, {T[5]}, 9",
              f"v_min_u32 v50, 42, {vLANE}", "v_lshlrev_b32 v50, 4, v50", f"v_min_u32 v51, 21, {vLANE}", "v_lshlrev_b32 v51, 4, v51",
              f"v_min_u32 v49, 31, {vLANE}", "v_lshlrev_b32 v49, 4, v49")
            J = "v[228:231]"
            pf2 = [([], f"buffer_load_dwordx4 {J}, v49, {sWO}, {T[5]} offen"), ([], f"buffer_load_dwordx4 {J}, {vL16}, {sWIN}, {T[6]} offen"),
                   ([], f"buffer_load_dwordx4 {J}, v51, {sWIN}, {T[6]} offen offset:1024"), ([], f"buffer_load_dwordx4 {J}, v50, {sWOUT}, {T[7]} offen")]
        if self.opt.get("pfs2", 0) == 1:
            pre0 = [f"s_lshl_b32 {sU[0]}, s2, 2", f"s_add_u32 {sU[0]}, {sU[0]}, {sW}", f"s_lshl_b32 {sU[0]}, {sU[0]}, 13"]
            pf3 = [(pre0 if i == 0 else [f"s_add_u32 {sU[0]}, {sU[0]}, 4096"] if i == 2 else [],
                    f"buffer_load_dwordx4 v[228:231], {vL16}, {sWSP}, {sU[0]} offen offset:{2048 + 1024 * (i & 1)}") for i in range(4)]
        else:
            pf3 = []
        post = {}
        slots = []
        spl = [([], f"buffer_load_dwordx4 {ar(((2 * t + sub) * 4 + tt) * 4, 4)}, v{self.vSP0 + tt}, {sWSP}, {sU[4 + t]} offen offset:{64 * sub}")
               for t in range(8) for sub in range(2) for tt in range(4)]
        lag = self.opt.get("splag", 4)
        if lag:
            first = [x for i, x in enumerate(spl) if (i >> 2) & 1 == 0]
            second = [x for i, x in enumerate(spl) if (i >> 2) & 1 == 1]
            spl = first[:lag]
            for i in range(lag, 32): spl += [first[i], second[i - lag]]
            spl += second[32 - lag:]
        if self.opt.get("nosp"): spl = []
        if self.opt.get("sp_eff"):
            spl = [([], f"buffer_load_dwordx4 {ar(k * 4, 4)}, v226, {sWSP}, {sU[4 + (k >> 3)]} offen offset:{(k & 7) * 512}") for k in range(64)]
            if self.opt.get("sp_eff") == 2:
                a(f"v_and_b32 v226, 0x3ffff, v226")
        slots = [None] * 128
        kv1 = self.kv_dma(1); kv1[0] = ([remote_check(1, 3)] + kv1[0][0], kv1[0][1])
        post[kv1[-1][1]] = lambda: kvtok.__setitem__(1, a.vtok())
        FREE = "free"
        for t in range(8):
            kv = []
            if t < 6:
                kv = self.kv_dma(t + 2); post[kv[-1][1]] = (lambda t=t: kvtok.__setitem__(t + 2, a.vtok()))
                if t == 1: kv[0] = ([remote_check(3, 8)] + kv[0][0], kv[0][1])
            if t == 0:
                st = [None, None] + kv1 + kv + [pfw.pop(0) for _ in range(len(pfw))]
                st += [FREE] * (16 - len(st))
            else:
                if t < 6:
                    ex = pf2 if t == self.opt.get("pf2at", 2) and pf2 else pf3 if t == self.opt.get("pf3at", 1) and pf3 else [FREE] * 4
                    oth = [x for pair in zip(kv, ex) for x in pair]
                else:
                    oth = [wo.pop(0) for _ in range(8)]
                st = [x for pair in zip(oth, [FREE] * 8) for x in pair]
            slots[16 * t:16 * t + 16] = st
        if self.opt.get("kvearly", 0):
            kvs = [self.kv_dma(t) for t in range(2, 8)]
            for t, kv in zip(range(2, 8), kvs): post[kv[-1][1]] = (lambda t=t: kvtok.__setitem__(t, a.vtok()))
            w2cs = [x for x in slots[:16] if x and x is not FREE and str(sWIN) in x[1]]
            wos = [x for x in slots if x and x is not FREE and str(sWO) in x[1] and " lds" in x[1]]
            pre0 = [f"s_lshl_b32 {sU[2]}, s2, 2", f"s_add_u32 {sU[2]}, {sU[2]}, {sW}", f"s_lshl_b32 {sU[2]}, {sU[2]}, 13"]
            pfs = [(pre0 if i == 0 else [f"s_add_u32 {sU[2]}, {sU[2]}, 4096"] if i == 4 else [],
                    f"buffer_load_dwordx4 v[228:231], {vL16}, {sWSP}, {sU[2]} offen offset:{1024 * (i & 3)}") for i in range(8)]
            if self.opt.get("nopfs"): pfs = []
            head = [None, None] + kv1 + [x for kv in kvs for x in kv] + w2cs + pf2 + pfs
            q0 = self.opt.get("spstart", 50)
            assert len(head) <= q0
            slots = head + [None] * (q0 - len(head)) + [FREE] * (128 - q0)
            w0 = 128 - 2 * len(wos) - self.opt.get("wogap", 4)
            for i, x in enumerate(wos): slots[w0 + 2 * i] = x
        fr = [i for i, x in enumerate(slots) if x is FREE]
        for i in fr: slots[i] = None
        if self.opt.get("nowo"): slots = [x if not (x and str(sWO) in x[1]) else None for x in slots]; wotok[0] = a.vtok()
        if self.opt.get("nokv"):
            for t in range(1, 8): kvtok[t] = a.vtok()
            slots = [x if not (x and "sc1 lds" in x[1]) else None for x in slots]
        extra2 = {}
        for k, it in enumerate(spl):
            i = fr[(k * len(fr)) // len(spl)]
            if slots[i] is None: slots[i] = it
            else: extra2.setdefault(i, []).append(it[1])
        assert not wo and not pfw, (len(wo), len(pfw))
        last_wo = ([x for x in slots if x and str(sWO) in x[1]] or [(0, "none")])[-1][1]
        post[last_wo] = lambda: wotok.__setitem__(0, a.vtok())
        def vm_slot(i):
            if i < len(slots) and slots[i]:
                a(slots[i][1])
                if slots[i][1] in post: post[slots[i][1]]()
                for x in extra2.get(i, []): a(x)
        def vm_pre(i):
            if i < len(slots) and slots[i]: self.emit(slots[i][0])
        ac = self.opt.get("ac", 1)
        def lds_wait(kt):
            if kt & 7 == 5 and kt < 56:
                a.wait(vm=kvtok[(kt >> 3) + 1] if not self.opt.get("nokvw") else None, lg=a.lg)
                if not self.opt.get("nobar"): self.barrier()
            else:
                a.wait(lg=a.lg)
        vm_pre(0)
        for n in range(128):
            kt, q = n >> 1, n & 1
            b = S + 16 * (n % 3)
            E = lambda lo, hi: [a(f"v_exp_f32 v{b + r}, v{b + r}") for r in range(lo, hi)]
            E(0, 2)
            if n > 0: a(pv(n - 1, 1))
            if q == 0:
                if kt + 2 < 64: a(kread(kt + 2))
                if (kt + 1) & 7 == 0 and kt + 1 < 64:
                    for _ in range(3 if kt + 1 == 32 else 1): a(f"v_add_u32 v{self.vVB}, v{self.vVB}, v{self.vVI}")
            else:
                vm_slot(2 * kt)
                if not ac: vm_pre(2 * kt + 1)
            E(2, 7)
            if n + 2 < 128: a(qk(n + 2))
            if q == 0:
                if kt + 1 < 64: a(vread(kt + 1, 0))
            elif ac:
                lds_wait(kt); vm_pre(2 * kt + 1)
            else:
                vm_slot(2 * kt + 1)
            E(7, 12)
            a(pv(n, 0))
            if q == 0:
                if kt + 1 < 64: a(vread(kt + 1, 1))
                if kt > 0: vm_pre(2 * kt)
            elif ac:
                vm_slot(2 * kt + 1)
            else:
                lds_wait(kt)
            if q == 1 and self.opt.get("sp_ds"): a(f"ds_read_b128 v[228:231], v{self.vKA} offset:{kt * 1024}")
            E(12, 16)
        a.wait(vm=wotok[0], lg=a.lg)
        a(pv(127, 1))
        self.barrier()
        self.stamp("attn_loop")
        if self.stamps: a("s_memtime s[100:101]", "s_waitcnt lgkmcnt(0)", "s_sub_u32 s99, s100, s99")
        for q in range(2):
            o = OA + 16 * q
            a(f"v_pk_add_f32 {v(8 + 4 * q, 2)}, {v(o, 2)}, {v(o + 2, 2)}", f"v_pk_add_f32 {v(10 + 4 * q, 2)}, {v(o + 4, 2)}, {v(o + 6, 2)}")
        for q in range(2): a(f"v_pk_add_f32 {v(8 + 4 * q, 2)}, {v(8 + 4 * q, 2)}, {v(10 + 4 * q, 2)}")
        a("v_add_f32 v8, v8, v9", "v_add_f32 v12, v12, v13", "v_add_f32 v8, v8, v12", f"v_max_f32 v9, v{OA + 8}, v{OA + 24}",
          f"v_add_f32 v10, v{OA + 8}, v{OA + 24}", "v_add_f32 v8, v8, v10",
          f"s_mov_b32 {T[0]}, 0x207", f"v_cmp_class_f32_e64 vcc, v8, {T[0]}",
          f"s_mov_b64 s[60:61], vcc", f"v_cmp_le_f32 vcc, {f2u(2.0 ** 64)}, v9", "s_or_b64 vcc, vcc, s[60:61]")
        if self.force_fallback: a("s_mov_b64 vcc, -1")
        a("s_cbranch_vccnz L_attn_slow", "L_attn_done:")
        for q in range(2): a(f"v_rcp_f32 v{8 + q}, v{OA + 16 * q + 8}")
        for q in range(2):
            o = OA + 16 * q
            for k in range(8): a(f"v_mul_f32 v{o + k}, v{o + k}, v{8 + q}")
            for k in range(4): a(f"v_cvt_pk_bf16_f32 v{192 + 4 * q + k}, v{o + 2 * k}, v{o + 2 * k + 1}")
            for hf in range(2):
                a(f"buffer_store_dwordx2 {v(192 + 4 * q + 2 * hf, 2)}, v227, {sWS}, {P[q]} offen offset:{256 * hf} sc1")
        rd = [f"ds_read_b64_tr_b16 {v(64 + (nt * 16 + p) * 4 + 2 * hf, 2)}, v{28 + nt} offset:{LA + p * 4096 + hf * 512}"
              for p in range(16) for nt in range(2) for hf in range(2)]
        k = self.opt.get("rdpre", 24)
        self.emit(rd[:k])
        self.flag_store(P[2])
        self.stamp("attn_pub")
        self.emit(rd[k:])
        for rt in range(2):
            for nt in range(2):
                a(f"buffer_load_dwordx2 {v(self.vXR + 4 * rt + 2 * nt, 2)}, v62, {sX}, {P[3 + rt]} offen offset:{32 * nt}")

    def w128_read_base(self, b, n, tmp=(64, 65, 66, 67), b1=None):
        a = self.a
        p, q, r, t = ("v%d" % x for x in tmp)
        a(f"v_lshrrev_b32 {p}, 4, {vLANE}", f"v_bfe_u32 {q}, {vLANE}, 2, 2", f"v_and_b32 {r}, 3, {vLANE}",
          f"v_lshl_add_u32 {t}, {p}, 3, {q}", f"v_lshlrev_b32 {t}, 7, {t}", f"v_lshl_add_u32 {t}, {r}, 3, {t}",
          f"v_lshrrev_b32 {q}, 1, {q}", f"v_and_b32 {p}, 1, {p}", f"v_lshl_or_b32 {q}, {p}, 1, {q}",
          f"s_lshl_b32 {T[3]}, {sCH}, 1", f"v_xor_b32 {q}, {T[3]}, {q}", f"v_lshl_add_u32 v{b}, {q}, 5, {t}")
        a(f"v_xor_b32 v{b1 if b1 else b + 1}, 32, v{b}")

    def attn_slow(self):
        a = self.a
        S, OA, NM, QF, KB, VB = self.S, self.OA, self.NM, self.QF, self.KB, self.VB
        a.vm_done = a.vm; a.lg_done = a.lg
        a("L_attn_slow:", "s_nop 15", f"s_lshl_b32 {T[0]}, {sHEAD}, 17", f"s_add_u32 {T[0]}, {T[0]}, {WS_KV}",
          f"v_mov_b32 v8, 0xff800000", f"v_mov_b32 v10, 0xff800000", f"s_mov_b32 {T[1]}, 0")
        def kaddr():
            a(f"s_lshr_b32 {T[2]}, {T[1]}, 1", f"s_lshl_b32 {T[2]}, {T[2]}, 12", f"s_and_b32 {T[3]}, {T[1]}, 1", f"s_lshl_b32 {T[3]}, {T[3]}, 10",
              f"s_add_u32 {T[2]}, {T[2]}, {T[3]}", f"s_add_u32 {T[2]}, {T[2]}, {T[0]}")
        a("L_slow_max:"); kaddr()
        a(f"buffer_load_dwordx4 {v(KB, 4)}, {vL16}, {sWS}, {T[2]} offen sc1"); a.wait(vm=a.vm, force=True)
        for q in range(2):
            a(f"v_mfma_f32_32x32x16_bf16 {v(S + 16 * q, 16)}, {v(KB, 4)}, {v(QF + 4 * q, 4)}, 0")
        for q in range(2):
            b, m = S + 16 * q, 8 + 2 * q
            for k in range(0, 16, 2): a(f"v_max3_f32 v{m}, v{m}, v{b + k}, v{b + k + 1}")
        a(f"s_add_u32 {T[1]}, {T[1]}, 1", f"s_cmp_lt_u32 {T[1]}, 64", "s_cbranch_scc1 L_slow_max")
        a("v_mov_b32 v9, v8", "v_mov_b32 v11, v10")
        for q in range(2): a(f"v_permlane32_swap_b32 v{8 + 2 * q}, v{9 + 2 * q}")
        for q in range(2):
            m = 8 + 2 * q
            a(f"v_max_f32 v{m}, v{m}, v{m + 1}", f"v_sub_f32 v{m}, 0, v{m}")
            for r in range(16): a(f"v_mov_b32 v{NM + 16 * q + r}, v{m}")
        for r in range(OA, OA + 32): a(f"v_mov_b32 v{r}, 0")
        a(f"v_and_b32 v8, 27, {vLANE}", "v_cmp_eq_u32 vcc, 16, v8", f"v_mov_b32 v9, {sONES}", "v_cndmask_b32 v9, v3, v9, vcc")
        for r in range(8): a(f"v_mov_b32 v{VB + r}, v9")
        a(f"v_and_b32 v8, 15, {vLANE}", f"v_lshrrev_b32 v10, 5, {vLANE}", "v_lshl_add_u32 v10, v10, 4, v8", "v_lshlrev_b32 v10, 4, v10",
          f"s_mov_b32 {T[1]}, 0", "s_mov_b32 s60, 0x0000ffff", "s_mov_b32 s61, 0x0000ffff")
        a("L_slow_pv:"); kaddr()
        a(f"buffer_load_dwordx4 {v(KB, 4)}, {vL16}, {sWS}, {T[2]} offen sc1", f"s_add_u32 {T[2]}, {T[2]}, 2048", "s_mov_b64 exec, s[60:61]",
          f"buffer_load_dwordx4 {v(VB, 4)}, v10, {sWS}, {T[2]} offen sc1",
          f"buffer_load_dwordx4 {v(VB + 4, 4)}, v10, {sWS}, {T[2]} offen offset:512 sc1", "s_mov_b64 exec, -1")
        a.wait(vm=a.vm, force=True)
        for q in range(2):
            a(f"v_mfma_f32_32x32x16_bf16 {v(S + 16 * q, 16)}, {v(KB, 4)}, {v(QF + 4 * q, 4)}, {v(NM + 16 * q, 16)}")
        for q in range(2):
            for r in range(16): a(f"v_exp_f32 v{S + 16 * q + r}, v{S + 16 * q + r}")
            for hi in range(2):
                a(f"v_smfmac_f32_32x32x32_bf16 {v(OA + 16 * q, 16)}, {v(VB + 4 * hi, 4)}, {v(S + 16 * q + 8 * hi, 8)}, v{self.vIDX}")
        a(f"s_add_u32 {T[1]}, {T[1]}, 1", f"s_cmp_lt_u32 {T[1]}, 64", "s_nop 15", "s_cbranch_scc1 L_slow_pv", "s_nop 15", "s_branch L_attn_done")

    def rot_table(self, npairs, mul):
        a = self.a
        a(f"s_mul_i32 {sU[4]}, {sCB}, {mul}")

    @staticmethod
    def gpos(p): return LRED + 4096 * p if p < 16 else 4096 * (p - 16)

    def rot_index(self, dst, pos, npairs):
        L = [f"s_add_u32 {dst}, {sU[4]}, {pos}"]
        if npairs & (npairs - 1) == 0: L.append(f"s_and_b32 {dst}, {dst}, {npairs - 1}")
        else: L += [f"s_cmp_ge_u32 {dst}, {npairs}", f"s_cselect_b32 {T[7]}, {npairs}, 0", f"s_sub_u32 {dst}, {dst}, {T[7]}"]
        return L

    def act_dma(self, ws_off, steps, chunks, lds0, gpos=False):
        a = self.a
        a(f"s_lshr_b32 {T[0]}, {sR0}, 4", f"s_add_u32 {T[0]}, {T[0]}, {sW}", f"s_mul_i32 {T[0]}, {T[0]}, {steps * 1024}",
          f"s_add_u32 {sU[0]}, {T[0]}, {ws_off}", f"s_mul_i32 {T[1]}, {sW}, {1024 if gpos else steps * 1024}", f"s_add_u32 {sU[1]}, {T[1]}, {lds0}")
        toks = {}
        def group(c):
            p0 = sum(chunks[:c]); L = []
            for k in range(chunks[c]):
                p = p0 + k
                it = []
                if k % 2 == 0:
                    it += self.rot_index(T[2], p >> 1, steps // 2)
                    it += [f"s_lshl_b32 {T[2]}, {T[2]}, 11", f"s_add_u32 {T[2]}, {T[2]}, {sU[0]}"]
                    if not gpos: it.append(f"s_add_u32 m0, {sU[1]}, {p * 1024}")
                if gpos: it.append(f"s_add_u32 m0, {sU[1]}, {self.gpos(p) - (k % 2) * 1024}")
                it.append(f"buffer_load_dwordx4 {vL16}, {sWS}, {T[2]} offen offset:{(k % 2) * 1024} sc1 lds")
                L.append(it)
            L[-1].append(lambda: toks.__setitem__(c, a.vtok()))
            return L
        return group, toks

    def cluster_flag_off(self, dst, base, own, shift=8):
        a = self.a
        a(f"s_lshl_b32 {dst}, {sCLU}, {shift}", f"s_add_u32 {dst}, {dst}, {base}")
        if own: a(f"s_lshl_b32 {T[7]}, {sCB}, 3", f"s_add_u32 {dst}, {dst}, {T[7]}")

    def stats_publish(self, s, base):
        a = self.a
        a(f"v_permlane32_swap_b32 v{s}, v{s + 1}", f"v_permlane32_swap_b32 v{s + 2}, v{s + 3}",
          f"v_add_f32 v{s}, v{s}, v{s + 1}", f"v_add_f32 v{s + 2}, v{s + 2}, v{s + 3}",
          f"v_permlane16_swap_b32 v{s}, v{s + 2}", f"v_add_f32 v{s}, v{s}, v{s + 2}")
        a(f"s_lshl_b32 {T[4]}, {sCLU}, 13", f"s_add_u32 {T[4]}, {T[4]}, {base}", f"s_lshl_b32 {T[5]}, {sRH}, 7", f"s_add_u32 {T[4]}, {T[4]}, {T[5]}",
          f"s_lshl_b32 {T[5]}, {sCB}, 1", f"s_add_u32 {T[5]}, {T[5]}, {sCH}", f"s_lshl_b32 {T[5]}, {T[5]}, 9", f"s_add_u32 {T[4]}, {T[4]}, {T[5]}",
          f"buffer_store_dword v{s}, v61, {sWS}, {T[4]} offen sc1")

    def stats_load(self, base, r):
        a = self.a
        a(f"s_lshl_b32 {T[4]}, {sCLU}, 13", f"s_add_u32 {T[4]}, {T[4]}, {base}", f"s_lshl_b32 {T[5]}, {sRH}, 7", f"s_add_u32 {T[4]}, {T[4]}, {T[5]}",
          f"s_add_u32 {T[5]}, {T[4]}, 4096")
        for p in range(16):
            a(f"buffer_load_dword v{r + p}, v61, {sWS}, {T[4] if p < 8 else T[5]} offen offset:{(p % 8) * 512} sc1")
        return a.vtok()

    SGR = 64
    def stats_publish_tagged(self, s, base):
        a = self.a
        a(f"v_permlane32_swap_b32 v{s}, v{s + 1}", f"v_permlane32_swap_b32 v{s + 2}, v{s + 3}",
          f"v_add_f32 v{s}, v{s}, v{s + 1}", f"v_add_f32 v{s + 2}, v{s + 2}, v{s + 3}",
          f"v_permlane16_swap_b32 v{s}, v{s + 2}", f"v_add_f32 v{s}, v{s}, v{s + 2}", f"v_mov_b32 v{s + 1}, v{s}",
          f"v_mov_b32 v{s + 2}, v4", f"v_mov_b32 v{s + 3}, v5", f"v_permlane32_swap_b32 v{s}, v{s + 1}")
        a(f"s_lshl_b32 {T[4]}, {sCLU}, 14", f"s_add_u32 {T[4]}, {T[4]}, {base}", f"s_lshl_b32 {T[5]}, {sRH}, 13", f"s_add_u32 {T[4]}, {T[4]}, {T[5]}",
          f"s_lshl_b32 {T[5]}, {sCB}, 1", f"s_add_u32 {T[5]}, {T[5]}, {sCH}", f"s_lshl_b32 {T[5]}, {T[5]}, 9", f"s_add_u32 {T[4]}, {T[4]}, {T[5]}",
          "s_mov_b32 exec_hi, 0", f"buffer_store_dwordx4 {v(s, 4)}, {vL16}, {sWS}, {T[4]} offen sc1", "s_mov_b32 exec_hi, -1")

    def stats_tagged_loads(self, base, r):
        R = r if isinstance(r, (list, tuple)) else [r + 4 * p for p in range(8)]
        L = [[f"buffer_load_dwordx4 {v(R[p], 4)}, v61, {sWS}, {sU[3]} offen offset:{512 * p} sc1"] for p in range(8)]
        L[0] = [f"s_lshl_b32 {sU[3]}, {sCLU}, 14", f"s_add_u32 {sU[3]}, {sU[3]}, {base}", f"s_lshl_b32 {T[5]}, {sRH}, 13", f"s_add_u32 {sU[3]}, {sU[3]}, {T[5]}",
                f"v_and_b32 v61, 31, {vLANE}", "v_lshlrev_b32 v61, 4, v61", f"v_lshrrev_b32 v54, 5, {vLANE}", "v_lshl_add_u32 v61, v54, 12, v61"] + L[0]
        return L

    def stats_tagged_finish(self, base, r, inv_n, d):
        a = self.a
        L, E = a.label("st_retry"), a.label("st_ok")
        a(f"s_mov_b32 {sPOLL}, 0x40000", f"{L}:")
        a.wait(vm=a.vm, force=True)
        a(f"v_cmp_ne_u64 s[60:61], {sTAG}, {v(r + 2, 2)}")
        for p in range(1, 8): a(f"v_cmp_ne_u64 vcc, {sTAG}, {v(r + 4 * p + 2, 2)}", "s_or_b64 s[60:61], s[60:61], vcc")
        a("s_cmp_eq_u64 s[60:61], 0", f"s_cbranch_scc1 {E}", f"s_sub_u32 {sPOLL}, {sPOLL}, 1", f"s_cbranch_scc1 {E}")
        a.cond_begin()
        for it in self.stats_tagged_loads(base, r)[0][-1:]: a(it)
        for it in self.stats_tagged_loads(base, r)[1:]: self.emit(it)
        a.cond_end()
        a(f"s_branch {L}", f"{E}:")
        a.vm_done = a.vm
        self.stats_sum(r, inv_n, d)

    def stats_sum(self, r, inv_n, d):
        a = self.a
        R = r if isinstance(r, (list, tuple)) else [r + 4 * p for p in range(8)]
        for st in (4, 2, 1):
            for k in range(st): a(f"v_pk_add_f32 {v(R[k], 2)}, {v(R[k], 2)}, {v(R[k + st], 2)}")
        r = R[0]
        a(f"v_mov_b32 v{r + 2}, v{r}", f"v_mov_b32 v{r + 3}, v{r + 1}",
          f"v_permlane32_swap_b32 v{r}, v{r + 2}", f"v_permlane32_swap_b32 v{r + 1}, v{r + 3}",
          f"v_pk_add_f32 {v(r, 2)}, {v(r, 2)}, {v(r + 2, 2)}")
        self.ln_finish([(r, r + 1, d)], inv_n)
        a(f"v_mov_b32 v{d + 2}, v{d}", f"v_mov_b32 v{d + 3}, v{d + 1}",
          f"v_permlane16_swap_b32 v{d}, v{d + 2}", f"v_permlane16_swap_b32 v{d + 1}, v{d + 3}")

    def stats_sum_items(self, R, inv_n):
        L = []
        for st in (4, 2, 1):
            for k in range(st): L += [f"v_add_f32 v{R[k] + e}, v{R[k] + e}, v{R[k + st] + e}" for e in range(2)]
        r, t = R[0], R[1]
        L += [f"v_mov_b32 v{t}, v{r}", f"v_mov_b32 v{t + 1}, v{r + 1}", f"v_permlane32_swap_b32 v{r}, v{t}", f"v_permlane32_swap_b32 v{r + 1}, v{t + 1}",
              f"v_add_f32 v{t}, v{r}, v{t}", f"v_add_f32 v{t + 1}, v{r + 1}, v{t + 1}",
              f"v_mul_f32 v{t}, {f2u(inv_n)}, v{t}", f"v_mul_f32 v{t + 1}, {f2u(inv_n)}, v{t + 1}", f"v_fma_f32 v{t + 1}, -v{t}, v{t}, v{t + 1}",
              f"v_max_f32 v{t + 1}, 0, v{t + 1}", f"v_add_f32 v{t + 1}, {f2u(1e-5)}, v{t + 1}", f"v_rsq_f32 v{r}, v{t + 1}", f"v_mul_f32_e64 v{r + 1}, -v{t}, v{r}",
              f"v_mov_b32 v{r + 2}, v{r}", f"v_mov_b32 v{r + 3}, v{r + 1}", f"v_permlane16_swap_b32 v{r}, v{r + 2}", f"v_permlane16_swap_b32 v{r + 1}, v{r + 3}"]
        return L

    STR2 = [216, 220, 224, 228, 232, 236, 52, 252]
    STR = 216
    def stats_load_items(self, base, r):
        L = []
        for p in range(16):
            it = []
            if p == 0:
                it += [f"s_lshl_b32 {T[4]}, {sCLU}, 13", f"s_add_u32 {T[4]}, {T[4]}, {base}", f"s_lshl_b32 {T[5]}, {sRH}, 7",
                       f"s_add_u32 {T[4]}, {T[4]}, {T[5]}", f"s_add_u32 {T[5]}, {T[4]}, 4096"]
            it.append(f"buffer_load_dword v{r + p}, v61, {sWS}, {T[4] if p < 8 else T[5]} offen offset:{(p % 8) * 512} sc1")
            L.append(it)
        return L

    def stats_finish(self, r, inv_n, d):
        a = self.a
        for st in (8, 4, 2):
            for k in range(0, st, 2): a(f"v_pk_add_f32 {v(r + k, 2)}, {v(r + k, 2)}, {v(r + st + k, 2)}")
        a(f"v_add_f32 v{r}, v{r}, v{r + 1}", f"v_mov_b32 v{r + 1}, v{r}", f"v_permlane32_swap_b32 v{r}, v{r + 1}")
        self.ln_finish([(r, r + 1, d)], inv_n)
        a(f"v_mov_b32 v{d + 2}, v{d}", f"v_mov_b32 v{d + 3}, v{d + 1}",
          f"v_permlane16_swap_b32 v{d}, v{d + 2}", f"v_permlane16_swap_b32 v{d + 1}, v{d + 3}")

    def win_addresses(self):
        a = self.a
        for i in range(3):
            a(f"v_add_u32 v16, {64 * i}, {vLANE}", "v_mul_u32_u24 v17, 171, v16", "v_lshrrev_b32 v17, 11, v17",
              "v_mul_u32_u24 v18, 12, v17", "v_sub_u32 v18, v16, v18", "v_bfe_u32 v19, v17, 3, 1", "v_lshlrev_b32 v19, 1, v19",
              "v_xor_b32 v18, v18, v19", "v_mul_u32_u24 v17, 2752, v17", "v_lshl_add_u32 v17, v18, 4, v17",
              f"v_add_u32 v{56 + i}, {-1024 * i}, v17")
        a(f"v_lshrrev_b32 v16, 4, {vLANE}", f"v_bfe_u32 v17, {vLANE}, 2, 2", f"v_and_b32 v18, 3, {vLANE}",
          "v_lshl_add_u32 v19, v16, 3, v17", "v_mul_u32_u24 v19, 192, v19", "v_lshl_add_u32 v19, v18, 3, v19",
          "v_and_b32 v17, 1, v16", f"v_xor_b32 v17, {sCH}, v17", "v_lshl_add_u32 v59, v17, 5, v19", "v_add_u32 v60, 49152, v59",
          f"v_and_b32 v17, 15, {vLANE}", "v_lshlrev_b32 v17, 2, v17", "v_and_b32 v18, 1, v16", "v_lshl_add_u32 v17, v18, 6, v17",
          "v_lshrrev_b32 v16, 1, v16", "v_lshl_add_u32 v61, v16, 8, v17")

    def win_dma(self, half, g0, per_wave, regs=None, wave=sW):
        r5, r6, r2, r7 = regs or (sU[5], sU[6], sU[2], sU[7])
        L = []
        for k in range(per_wave):
            for i in range(3):
                it = []
                if k == 0 and i == 0:
                    it += [f"s_lshl_b32 {r5}, {sT0}, 5", f"s_mul_i32 {r6}, {wave}, {per_wave}", f"s_lshl_b32 {r2}, {sU[4]}, 2",
                           f"s_add_u32 {r2}, {r2}, {r6}", f"s_mul_i32 {r6}, {r6}, 3072"]
                if i == 0:
                    it += [f"s_add_u32 {r7}, {r2}, {g0 + k}", f"s_and_b32 {r7}, {r7}, 31", f"s_mul_i32 {r7}, {r7}, {16 * 2752}",
                           f"s_add_u32 {r7}, {r7}, {r5}"]
                    if half: it.append(f"s_add_u32 {r7}, {r7}, 1376")
                    it.append(f"s_add_u32 m0, {r6}, {(g0 + k) * 3072}")
                it.append(f"buffer_load_dwordx4 v{56 + i}, {sWIN}, {r7} offen offset:{1024 * i} lds")
                L.append(it)
        return L

    def kloop(self, n, reads, mfmas, before={}, late={}, head=None, per=2, extra=None):
        a = self.a
        tok = {}
        for s in range(min(2, n)):
            if s in (head or {}): head[s]()
            self.emit(reads(s)); tok[s] = a.ltok()
        for s in range(n):
            a.wait(lg=tok[s])
            if s in before: before[s]()
            ms = mfmas(s)
            fill = list(reads(s + 2)) + [lambda s=s: tok.__setitem__(s + 2, a.ltok())] if s + 2 < n else []
            if extra: fill += extra(s)
            lt = list(late.get(s, []))
            k = len(ms) - len(lt)
            assert k >= 1, (s, len(ms), len(lt))
            interleave(a, ms[:k], fill, per=per)
            for m, it in zip(ms[k:], lt):
                a(m); self.emit(it)

    def emit_all(self, items):
        for it in items: self.emit(it)

    def emit(self, items):
        for x in items: x() if callable(x) else self.a(x)

    def phase_wo(self):
        a = self.a
        ACC = 192
        a(f"s_mov_b32 {sU[4]}, {sCB if not self.opt.get('noarot') else 0}")
        group, toks = self.act_dma(WS_O, 16, [4, 4, 4, 4], LB)
        self.cluster_flag_off(T[3], WS_F2, False, 12)
        a(f"s_lshl_b32 {T[4]}, {sRH}, 15", f"s_add_u32 {T[4]}, {T[4]}, {LB}", f"v_add_u32 v30, {T[4]}, {vL16}")
        a.wait(lg=a.lg)
        self.barrier()
        n2 = 3
        Lp, Le = a.label("s2poll"), a.label("s2end")
        done = a.vm_done
        a(f"s_cmp_eq_u32 {sW}, 0", f"s_cbranch_scc1 {Lp}", f"s_sub_u32 {T[5]}, {sW}, 1")
        a.cond_begin()
        self.emit_all(self.win_dma(1, 0, 4, wave=T[5]))
        a(f"s_branch {Le}", f"{Lp}:")
        self.poll(vFP32, T[3], 52)
        a.cond_end()
        a(f"{Le}:")
        a.vm_done = done
        self.barrier()
        self.stamp("s2")
        for c in range(2): self.emit_all(group(c))
        def buf(s, rt): return (208 + (s % 4) * 8 + rt * 4)
        def reads(s): return [f"ds_read_b128 {v(buf(s, rt), 4)}, v30 offset:{(rt * 16 + s) * 1024}" for rt in range(2)]
        def mfmas(s):
            return [mfma16(ACC + (rt * 2 + nt) * 4, v(64 + (nt * 16 + s) * 4, 4), v(buf(s, rt), 4), v(32 + (rt * 2 + nt) * 4, 4) if s == 0 else None) for rt in range(2) for nt in range(2)]
        def w(c):
            def f():
                a.wait(vm=toks[c]); self.barrier()
            return f
        def head0():
            a.wait(vm=toks[0], lg=a.lg)
            for i in range(8): a(f"v_lshlrev_b32 v{32 + 2 * i}, 16, v{self.vXR + i}", f"v_and_b32 v{33 + 2 * i}, {sHIMASK}, v{self.vXR + i}")
            self.barrier()
        g2, g3 = group(2), group(3)
        w2 = self.win_dma(1, 4 * n2, 7 - n2)
        late = {0: g2[:2], 1: g2[2:], 2: g3[:2], 3: g3[2:]}
        for i in range(min(len(w2), self.opt.get("w2in", 12))): late[self.opt.get("w2at", 3) + i] = late.get(self.opt.get("w2at", 3) + i, []) + [w2.pop(0)]
        late[15] = late.get(15, []) + [[f"s_lshr_b32 {T[0]}, {sR0}, 4", f"s_lshl_b32 {T[1]}, {sRH}, 1", f"s_add_u32 {T[0]}, {T[0]}, {T[1]}", f"s_lshl_b32 {T[0]}, {T[0]}, 14"],
                                       [f"s_lshl_b32 {T[1]}, {sCB}, 1", f"s_add_u32 {T[1]}, {T[1]}, {sCH}", f"s_lshl_b32 {T[1]}, {T[1]}, 10", f"s_add_u32 {T[0]}, {T[0]}, {T[1]}"],
                                       [f"s_add_u32 {T[0]}, {T[0]}, {WS_H}", f"s_add_u32 {T[1]}, {T[0]}, 0x4000"]]
        self.kloop(16, reads, mfmas, {2: w(1), 6: w(2), 10: w(3)}, late, {0: head0}, per=1)
        self.w2rest = w2
        self.stamp("wo_gemm")
        for i in range(4):
            for k in range(2): a(f"v_cvt_pk_bf16_f32 v{vH + 2 * i + k}, v{ACC + 4 * i + 2 * k}, v{ACC + 4 * i + 2 * k + 1}")
        for rt in range(2):
            for nt in range(2):
                a(f"buffer_store_dwordx2 {v(vH + 4 * rt + 2 * nt, 2)}, {vPAT}, {sWS}, {T[rt]} offen offset:{512 * nt} sc1")
        for k in range(4):
            for rt in range(2):
                h = f"v{vH + 4 * rt + k}"
                a(f"v_dot2_f32_bf16 v{32 + 2 * rt}, {h}, {sONES}, {'0' if k == 0 else 'v%d' % (32 + 2 * rt)}",
                  f"v_dot2_f32_bf16 v{33 + 2 * rt}, {h}, {h}, {'0' if k == 0 else 'v%d' % (33 + 2 * rt)}")
        self.stats_publish_tagged(32, WS_ST3)
        self.cluster_flag_off(T[0], WS_F3, True)
        self.flag_store_wg(T[0])
        self.stamp("wo_pub")

    HF, ACC2, ACC1, WB, CS = 64, 192, 216, 28, 240

    def win_reads(self, s, read_h):
        L = []
        base = "v59" if s < 8 else "v60"
        for m in range(3):
            for hf in range(2):
                L.append(f"ds_read_b64_tr_b16 {v(self.wbuf(s) + 4 * m + 2 * hf, 2)}, {base} offset:{(s & 7) * 6144 + hf * 768 + m * 64}")
            if m == 0 and read_h:
                L += [f"ds_read_b128 {v(self.HF + (rt * 16 + s) * 4, 4)}, v62 offset:{(rt * 16 + s) * 1024}" for rt in range(2)]
        return L

    def wbuf(self, s): return (28, 40, 16)[s % 3]

    def win_gemm(self, acc, before, head, read_h, late={}, cs=False, extra=None):
        HF = self.HF
        def mfmas(s):
            L = []
            for m in range(3):
                L += [mfma16(acc + (rt * 3 + m) * 4, v(self.wbuf(s) + 4 * m, 4), v(HF + (rt * 16 + s) * 4, 4), "0" if s == 0 else None) for rt in range(2)]
                if cs: L.append(mfma16(self.CS + 4 * m, v(self.wbuf(s) + 4 * m, 4), "v[252:255]", "0" if s == 0 else None))
            return L
        self.kloop(16, lambda s: self.win_reads(s, read_h), mfmas, before, late, head, per=3 if extra else 2, extra=extra)

    def colsum_pass(self, late={}, before={}):
        def mfmas(s): return [mfma16(self.CS + 4 * m, v(self.wbuf(s) + 4 * m, 4), "v[252:255]", "0" if s == 0 else None) for m in range(3)]
        self.kloop(16, lambda s: self.win_reads(s, False), mfmas, before, late, per=3)

    def gelu_block(self, acc, st, tiles):
        a = self.a
        CS = self.CS
        K1 = -2.0 * 1.4426950408889634 * 0.7978845608028654
        K2 = K1 * 0.044715
        a(f"s_mov_b32 s60, {f2u(K2)}", f"s_mov_b32 s61, {f2u(K2)}", f"v_mov_b32 v52, {f2u(K1)}", f"v_mov_b32 v53, {f2u(K1)}")
        for i in range(0, len(tiles), 2):
            prs = [(acc + (rt * 3 + m) * 4 + 2 * k, CS + 4 * m + 2 * k, st + 2 * rt) for rt, m in tiles[i:i + 2] for k in range(2)]
            tm = [40, 42, 44, 46]
            for (x, c, r), t in zip(prs, tm): a(f"v_pk_mul_f32 {v(t, 2)}, {v(c, 2)}, {v(r, 2)} op_sel:[0,1] op_sel_hi:[1,1]")
            for (x, c, r), t in zip(prs, tm): a(f"v_pk_fma_f32 {v(x, 2)}, {v(x, 2)}, {v(r, 2)}, {v(t, 2)} op_sel:[0,0,0] op_sel_hi:[1,0,1]")
            for (x, c, r), t in zip(prs, tm): a(f"v_pk_mul_f32 {v(t, 2)}, {v(x, 2)}, {v(x, 2)}")
            for (x, c, r), t in zip(prs, tm): a(f"v_pk_fma_f32 {v(t, 2)}, {v(t, 2)}, s[60:61], v[52:53]")
            for (x, c, r), t in zip(prs, tm): a(f"v_pk_mul_f32 {v(t, 2)}, {v(t, 2)}, {v(x, 2)}")
            for k in range(8): a(f"v_exp_f32 v{40 + k}, v{40 + k}")
            for (x, c, r), t in zip(prs, tm): a(f"v_pk_add_f32 {v(t, 2)}, {v(t, 2)}, v[32:33]")
            for k in range(8): a(f"v_rcp_f32 v{40 + k}, v{40 + k}")
            for (x, c, r), t in zip(prs, tm): a(f"v_pk_mul_f32 {v(x, 2)}, {v(x, 2)}, {v(t, 2)}")

    def phase_win(self):
        a = self.a
        HF, ACC2, ACC1, CS = self.HF, self.ACC2, self.ACC1, self.CS
        self.emit_all(self.w2rest)
        for r in range(252, 256): a(f"v_mov_b32 v{r}, {sONES}")
        a(f"s_lshl_b32 {T[4]}, {sRH}, 15", f"s_add_u32 {T[4]}, {T[4]}, {LB}", f"v_add_u32 v62, {T[4]}, {vL16}")
        group, toks = self.act_dma(WS_H, 16, [4, 4, 4, 4], LB)
        self.cluster_flag_off(T[3], WS_F3, False)
        if self.w2rest:
            a.wait(vm=a.vm)
            self.barrier()
        ptok = [0]
        self.colsum_pass({self.opt.get("p3at", 12): [self.poll_early(vFP8, T[3], 52) + [lambda: ptok.__setitem__(0, a.vtok())]]})
        self.stamp("cs2")
        self.poll_late(vFP8, T[3], 52, ptok[0])
        self.stamp("s3")
        for c in range(2): self.emit_all(group(c))
        def w(c):
            def f():
                a.wait(vm=toks[c]); self.barrier()
            return f
        g2, g3 = group(2), group(3)
        stl = self.stats_tagged_loads(WS_ST3, self.STR2)
        late = {0: g2[:2], 1: g2[2:], 2: g3[:2], 3: g3[2:]}
        for i in range(4): late[4 + i] = stl[2 * i:2 * i + 2]
        w1a = self.win_dma(0, 0, 3)
        for i in range(8): late[8 + i] = w1a[i:i + 1] if i < 7 else w1a[7:]
        stk = [0]
        late[7][-1].append(lambda: stk.__setitem__(0, a.vtok()))
        ss = self.stats_sum_items(self.STR2, 1.0 / 512)
        def extra(s):
            if s < 12: return []
            n = (len(ss) + 15 - s) // (16 - s)
            return ([lambda: a.wait(vm=stk[0])] if s == 12 else []) + [ss.pop(0) for _ in range(n)]
        self.win_gemm(ACC2, {2: w(1), 6: w(2), 10: w(3)}, {0: w(0)}, True, late, extra=extra)
        self.barrier()
        self.stamp("z2_gemm")
        w1tok = [a.vtok(), 0, 0]
        wb, wc = self.win_dma(0, 12, 3), self.win_dma(0, 24, 2)
        wb[-1].append(lambda: w1tok.__setitem__(1, a.vtok())); wc[-1].append(lambda: w1tok.__setitem__(2, a.vtok()))
        rest = wb + wc
        k = self.opt.get("w1pre", 6)
        self.emit_all(rest[:k]); rest = rest[k:]
        a("v_mov_b32 v34, v216", "v_mov_b32 v35, v217", "v_mov_b32 v36, v218", "v_mov_b32 v37, v219")
        for r in range(252, 256): a(f"v_mov_b32 v{r}, {sONES}")
        a("v_mov_b32 v32, 1.0", "v_mov_b32 v33, 1.0")
        T5 = [(0, 0), (1, 0), (0, 1), (1, 1)]
        self.gelu_block(ACC2, 34, T5 + [(0, 2), (1, 2)])
        for rt in range(2):
            x = ACC2 + rt * 12
            a(f"v_pk_add_f32 {v(40 + 4 * rt, 2)}, {v(x, 2)}, {v(x + 2, 2)}", f"v_pk_mul_f32 {v(42 + 4 * rt, 2)}, {v(x, 2)}, {v(x, 2)}")
            a(f"v_pk_fma_f32 {v(42 + 4 * rt, 2)}, {v(x + 2, 2)}, {v(x + 2, 2)}, {v(42 + 4 * rt, 2)}")
            for k in (4, 6):
                a(f"v_pk_add_f32 {v(40 + 4 * rt, 2)}, {v(40 + 4 * rt, 2)}, {v(x + k, 2)}",
                  f"v_pk_fma_f32 {v(42 + 4 * rt, 2)}, {v(x + k, 2)}, {v(x + k, 2)}, {v(42 + 4 * rt, 2)}")
        a(f"s_and_b32 {sU[8]}, {sCNT5}, {sCH}", f"s_cmp_lg_u32 {sU[8]}, 0", "s_cbranch_scc1 L_skip_st")
        for rt in range(2):
            x = ACC2 + rt * 12
            for k in (8, 10):
                a(f"v_pk_add_f32 {v(40 + 4 * rt, 2)}, {v(40 + 4 * rt, 2)}, {v(x + k, 2)}",
                  f"v_pk_fma_f32 {v(42 + 4 * rt, 2)}, {v(x + k, 2)}, {v(x + k, 2)}, {v(42 + 4 * rt, 2)}")
        a("L_skip_st:", "v_add_f32 v48, v40, v41", "v_add_f32 v49, v42, v43", "v_add_f32 v50, v44, v45", "v_add_f32 v51, v46, v47")
        self.stats_publish_tagged(48, WS_ST4)
        self.stamp("z2_pub")
        a("v_mov_b32 v52, v34", "v_mov_b32 v53, v35", "v_mov_b32 v62, v36", "v_mov_b32 v63, v37")
        def w1(c):
            def f():
                a.wait(vm=w1tok[c]); self.barrier()
            return f
        a(f"v_and_b32 v54, 15, {vLANE}", f"v_lshrrev_b32 v55, 4, {vLANE}", "v_lshlrev_b32 v55, 2, v55", "v_sub_u32 v54, v54, v55",
          "v_mov_b32 v55, 0x3f80", "v_mov_b32 v250, 0x3f800000")
        for k, (r, c) in enumerate(((248, 55), (248, 250), (249, 55), (249, 250))):
            a(f"v_cmp_eq_u32 vcc, {k}, v54")
            a(f"v_cndmask_b32 v{r}, v{3 if k & 1 == 0 else r}, v{c}, vcc")
        a(f"s_add_u32 {T[0]}, {sT0}, {sCH}", f"s_lshl_b32 {T[0]}, {T[0]}, 16", f"s_lshl_b32 {T[1]}, {sR0}, 5", f"s_add_u32 {T[0]}, {T[0]}, {T[1]}",
          f"s_lshl_b32 {T[1]}, {sRH}, 10", f"s_add_u32 {T[0]}, {T[0]}, {T[1]}", f"s_add_u32 {sU[9]}, {T[0]}, {WS_Z}",
          f"s_add_u32 {sU[10]}, {sU[9]}, 0x20000", f"s_add_u32 {sU[11]}, {sU[9]}, 0x40000",
          f"s_lshl_b32 {P[0]}, {sRB}, 3", f"s_add_u32 {P[0]}, {P[0]}, {sCB}", f"s_lshl_b32 {P[0]}, {P[0]}, 8",
          f"s_lshl_b32 {T[1]}, {sJ}, 3", f"s_add_u32 {P[0]}, {P[0]}, {T[1]}", f"s_add_u32 {P[0]}, {P[0]}, {WS_F5}")
        late = {i: rest[2 * i:2 * i + 2] for i in range((len(rest) + 1) // 2)}
        sl = self.stats_tagged_loads(WS_ST4, self.SGR)
        for i in range(4): late[self.opt.get("s4at", 9) + i] = sl[2 * i:2 * i + 2]
        csin = self.opt.get("csin", 0)
        self.win_gemm(ACC1, {4: w1(1), 10: w1(2)}, {0: w1(0)}, False, late, cs=csin)
        self.stamp("z1_gemm")
        self.stats_tagged_finish(WS_ST4, self.SGR, 1.0 / 688, 20)
        self.stamp("s4")
        def znorm(m):
            for rt in range(2):
                x = ACC2 + (rt * 3 + m) * 4
                for k in range(2):
                    a(f"v_pk_fma_f32 {v(x + 2 * k, 2)}, {v(x + 2 * k, 2)}, {v(20 + 2 * rt, 2)}, {v(20 + 2 * rt, 2)} op_sel:[0,0,1] op_sel_hi:[1,0,1]")
            for rt in range(2):
                x = ACC2 + (rt * 3 + m) * 4
                for k in range(2): a(f"v_cvt_pk_bf16_f32 v{x + k}, v{x + 2 * k}, v{x + 2 * k + 1}")
            for rt in range(2):
                x = ACC2 + (rt * 3 + m) * 4
                a(f"v_mfma_f32_16x16x16_bf16 {v(28 + 8 * (m & 1) + 4 * rt, 4)}, {v(x, 2)}, v[248:249], 0")
        def zstore(m):
            for rt in range(2):
                d = 28 + 8 * (m & 1) + 4 * rt
                a(f"v_cvt_pk_bf16_f32 v{d}, v{d}, v{d + 1}", f"v_cvt_pk_bf16_f32 v{d + 1}, v{d + 2}, v{d + 3}",
                  f"buffer_store_dwordx2 {v(d, 2)}, {vPAT}, {sWS}, {sU[9 + m]} offen offset:{512 * rt} sc1")
        znorm(0); znorm(1); zstore(0)
        a(f"s_cmp_lg_u32 {sU[8]}, 0", "s_cbranch_scc1 L_skip_z")
        a.cond_begin(); znorm(2); a("s_nop 7"); zstore(2); a.cond_end()
        a("L_skip_z:", "s_nop 7")
        zstore(1)
        a("v_mov_b32 v56, v62", "v_mov_b32 v57, v63")
        self.w128_addresses(self.vWDo, 64)
        a(f"s_lshl_b32 {T[0]}, {sRH}, 5", f"s_add_u32 {T[0]}, {T[0]}, {sR0}", f"s_lshl_b32 {sU[6]}, {T[0]}, 1",
          f"v_and_b32 v20, 15, {vLANE}", "v_lshlrev_b32 v20, 1, v20")
        self.wsp_setup()
        self.flag_store_wg(P[0])
        self.stamp("z2n_pub")
        a(f"buffer_load_ushort v62, v20, {sBSP}, {sU[6]} offen", f"buffer_load_ushort v63, v20, {sBSP}, {sU[6]} offen offset:32")
        wo1 = []
        for g in range(4):
            pre, ins = self.w128_dma(self.vWDo, sWOUT, T[1], T[5], 22)
            pre = [f"s_lshl_b32 {T[1]}, {sW}, 2", f"s_add_u32 {T[1]}, {T[1]}, {g}", f"s_lshl_b32 {T[5]}, {T[1]}, 12", f"s_add_u32 {T[5]}, {T[5]}, {LB}"] + pre
            wo1 += [pre + [ins[0]], [ins[1]], [ins[2]], [ins[3]]]
        wo2 = []
        for g in range(2):
            pre, ins = self.w128_dma(self.vWDo, sWOUT, T[1], T[5], 22)
            p0 = [f"s_add_u32 {T[1]}, {sW}, 16"] if g == 0 else [f"s_cmp_lt_u32 {sW}, 2", f"s_cselect_b32 {T[5]}, 20, 16", f"s_add_u32 {T[1]}, {sW}, {T[5]}"]
            pre = p0 + [f"s_sub_u32 {T[5]}, {T[1]}, 16", f"s_lshl_b32 {T[5]}, {T[5]}, 12"] + pre
            wo2 += [pre + [ins[0]], [ins[1]], [ins[2]], [ins[3]]]
        late = {i: wo1[2 * i:2 * i + 2] for i in range(8)}
        for i in range(4): late[8 + i] = wo2[2 * i:2 * i + 2]
        ptok = [0]
        late[13] = [self.poll_early(vFP8, T[3], 58) + [lambda: ptok.__setitem__(0, a.vtok())]]
        if csin:
            self.emit_all(wo1 + wo2)
            self.emit(late[13][0])
        else:
            self.colsum_pass(late, {6: self.barrier})
        self.p5tok = ptok[0]
        self.stamp("z1_epi")

    vWDo = 72

    def gelu_items(self, m):
        K1 = -2.0 * 1.4426950408889634 * 0.7978845608028654
        K2 = K1 * 0.044715
        L = []
        if m == 0: L += [f"s_mov_b32 {T[4]}, {f2u(K2)}", f"v_mov_b32 v58, {f2u(K1)}"]
        X = [self.ACC1 + (rt * 3 + m) * 4 + k for rt in range(2) for k in range(4)]
        C = [self.CS + 4 * m + k for rt in range(2) for k in range(4)]
        R = [52 + 4 * rt for rt in range(2) for k in range(4)]
        assert self.opt.get("wd", 7) <= 8
        t = [192 + k for k in range(8)]
        for i in range(8): L.append(f"v_mul_f32 v{t[i]}, v{C[i]}, v{R[i] + 1}")
        for i in range(8): L.append(f"v_fma_f32 v{X[i]}, v{X[i]}, v{R[i]}, v{t[i]}")
        for i in range(8): L.append(f"v_mul_f32 v{t[i]}, v{X[i]}, v{X[i]}")
        for i in range(8): L.append(f"v_fma_f32 v{t[i]}, v{t[i]}, {T[4]}, v58")
        for i in range(8): L.append(f"v_mul_f32 v{t[i]}, v{t[i]}, v{X[i]}")
        for i in range(8): L.append(f"v_exp_f32 v{t[i]}, v{t[i]}")
        for i in range(8): L.append(f"v_add_f32 v{t[i]}, 1.0, v{t[i]}")
        for i in range(8): L.append(f"v_rcp_f32 v{t[i]}, v{t[i]}")
        for i in range(8): L.append(f"v_mul_f32 v{X[i]}, v{X[i]}, v{t[i]}")
        for rt in range(2):
            for k in range(2): L.append(f"v_cvt_pk_bf16_f32 v{vZ1 + (rt * 3 + m) * 2 + k}, v{X[4 * rt + 2 * k]}, v{X[4 * rt + 2 * k + 1]}")
        return L

    def wsp_setup(self):
        a = self.a
        a(f"s_lshl_b32 {T[3]}, {sW}, 3", f"s_add_u32 {T[3]}, {T[3]}, {sCB}", f"s_lshl_b32 {T[3]}, {T[3]}, 8", f"s_add_u32 {T[3]}, {T[3]}, {WS_F5}",
          f"s_lshl_b32 {T[0]}, {sT0}, 16", f"s_lshl_b32 {T[1]}, {sW}, 11", f"s_add_u32 {T[0]}, {T[0]}, {T[1]}", f"s_add_u32 {T[0]}, {T[0]}, {WS_Z}")
        for t in range(8):
            a(f"s_add_u32 {T[1]}, {sSPR}, {t if not self.opt.get('zlocal') else 0}", f"s_and_b32 {T[1]}, {T[1]}, 7", f"s_lshl_b32 {T[1]}, {T[1]}, 13", f"s_add_u32 {sROT[t]}, {T[1]}, {T[0]}")
        a(f"s_lshl_b32 {T[1]}, {sW}, 13", f"s_add_u32 {T[1]}, {T[1]}, {LRED}", f"v_add_u32 v54, {T[1]}, {vL16}",
          f"s_lshl_b32 {T[1]}, {sCH}, 12", f"s_lshl_b32 {T[2]}, {sRH}, 11", f"s_add_u32 {T[1]}, {T[1]}, {T[2]}", f"s_add_u32 {T[1]}, {T[1]}, {LRED}",
          f"v_add_u32 v55, {T[1]}, {vL16}")
        a(f"s_lshr_b32 {T[1]}, {sR0}, 4", f"s_lshl_b32 {T[2]}, {sRH}, 1", f"s_add_u32 {T[1]}, {T[1]}, {T[2]}", f"s_mul_i32 {T[1]}, {T[1]}, {22 * 1024}",
          f"s_add_u32 {T[2]}, {sT0}, {sCH}", f"s_lshl_b32 {T[2]}, {T[2]}, 9", f"s_add_u32 {T[1]}, {T[1]}, {T[2]}", f"s_add_u32 {sU[9]}, {T[1]}, {WS_G}",
          f"s_add_u32 {sU[10]}, {sU[9]}, {22 * 1024}")

    def phase_wsp(self):
        a = self.a
        BUF, ACC, RED, WT = 64, 128, 28, 200
        a(f"v_add_u32 v60, 0x10000, {vL16}")
        prog = self.opt.get("s5prog", 0)
        if prog:
            a.wait(vm=self.p5tok)
            a(f"v_cmp_ne_u64 vcc, {sTAG}, v[58:59]", f"s_mov_b32 {P[2]}, {T[3]}", "s_nop 0", f"s_and_b32 {P[3]}, vcc_lo, 0xff")
            self.mask_check(0, 2, sSPR, P[2], P[3], 58)
        else:
            self.poll_late(vFP8, T[3], 58, self.p5tok, wg=False)
        self.stamp("s5")
        a("v_lshlrev_b32 v62, 16, v62", "v_lshlrev_b32 v63, 16, v63")
        tok = {}
        def loads(p, u):
            t, sub = u >> 1, u & 1
            L = []
            if sub == 0: L.append(f"s_add_u32 {T[0]}, {sROT[t]}, {p * 0x20000}")
            for f in range(2):
                L.append(f"buffer_load_dwordx4 {v(BUF + (2 * (u & 7) + f) * 4, 4)}, {vL16 if f == 0 else 'v60'}, {sWS}, {T[0]} offen offset:{1024 * sub} sc1")
            L.append(lambda: tok.__setitem__((p, u), a.vtok()))
            return L
        D = self.opt.get("wd", 7)
        assert D <= 8
        gq = [self.gelu_items(0) + self.gelu_items(1), self.gelu_items(2), []]
        self.w128_read_base(59, 2, (192, 193, 194, 195), 61)
        wt = [f"ds_read_b64_tr_b16 {v(WT + (nt * 6 + p) * 4 + 2 * hf, 2)}, v{59 if nt == 0 else 61} offset:{p * 4096 + hf * 512}"
              for p in range(6) for nt in range(2) for hf in range(2)]
        seq = [(p, u) for p in range(3) for u in range(16)]
        for p, u in seq[:D]:
            if prog and u == 4: self.mask_check(2, 8, sSPR, P[2], P[3], 192)
            self.emit(loads(p, u))
        def red_write(p):
            A = ACC + 32 * (p & 1)
            return [f"ds_write_b128 v54, {v(A + 4 * i, 4)} offset:{(p & 1) * 32768 + i * 1024}" for i in range(8)]
        def red_read(p):
            return [f"ds_read_b128 {v(RED + (sw * 2 + rt) * 4, 4)}, v55 offset:{(p & 1) * 32768 + sw * 8192 + rt * 1024}" for sw in range(3) for rt in range(2)]
        def red_read2(p):
            return [f"ds_read_b128 {v(ACC + 32 * (p & 1) + rt * 4, 4)}, v55 offset:{(p & 1) * 32768 + 3 * 8192 + rt * 1024}" for rt in range(2)]
        def gate(p):
            L = []
            A = ACC + 32 * (p & 1)
            for o in range(8): L.append(f"v_add_f32 v{A + o}, v{A + o}, v{RED + o}")
            for o in range(8): L.append(f"v_add_f32 v{RED + 8 + o}, v{RED + 8 + o}, v{RED + 16 + o}")
            for o in range(8): L.append(f"v_add_f32 v{A + o}, v{A + o}, v{62 + (o >> 2)}")
            for o in range(8):
                z = vZ1 + ((o >> 2) * 3 + p) * 2 + ((o >> 1) & 1)
                L.append(f"v_and_b32 v{RED + o}, {sHIMASK}, v{z}" if o & 1 else f"v_lshlrev_b32 v{RED + o}, 16, v{z}")
            for o in range(8): L.append(f"v_add_f32 v{A + o}, v{A + o}, v{RED + 8 + o}")
            for o in range(8): L.append(f"v_mul_f32 v{A + o}, v{A + o}, v{RED + o}")
            for o in range(4): L.append(f"v_cvt_pk_bf16_f32 v{RED + o}, v{A + 2 * o}, v{A + 2 * o + 1}")
            return L
        def gstore(p):
            L = []
            if p == 2:
                sk, zr = a.label("gskip"), a.label("gstore")
                L.append(a.cond_begin)
                L.append(lambda: a(f"s_cmp_eq_u32 {sU[8]}, 0", f"s_cbranch_scc1 {zr}", f"s_cmp_eq_u32 {sCB}, 7", f"s_cbranch_scc0 {sk}",
                                   *[f"v_mov_b32 v{RED + k}, 0" for k in range(4)], f"{zr}:"))
            L += [f"buffer_store_dwordx2 {v(RED + 2 * rt, 2)}, {vPAT}, {sWS}, {sU[9 + rt]} offen offset:{1024 * p} sc1" for rt in range(2)]
            if p == 2: L += [lambda: a(f"{sk}:"), a.cond_end]
            return L
        for p in range(3):
            A = ACC + 32 * (p & 1)
            for u in range(16):
                if not self.opt.get("w_nowait"): a.wait(vm=tok[(p, u)])
                if u == 0: self.stamp(f"wsp_p{p}")
                ms = []
                for f in range(2):
                    for tt in range(4):
                        ms.append(mfma16(A + (f * 4 + tt) * 4, v(BUF + (2 * (u & 7) + f) * 4, 4), ar((u * 4 + tt) * 4, 4), "0" if u == 0 else None))
                fill = []
                if p > 0 and not self.opt.get("w_nofill"):
                    q = p - 1
                    if u < 8: fill += red_write(q)[u:u + 1]
                    if u == 8: fill += [lambda: a.wait(lg=a.lg), "s_barrier"]
                    if u == 9: fill += red_read(q) + red_read2(q)
                    if u == 11: fill += [lambda: a.wait(lg=a.lg)]
                    if 11 <= u <= 15:
                        g = gate(q); fill += g[(u - 11) * 11:(u - 11) * 11 + 11]
                    if u == 15: fill += gstore(q)
                if p == 0: n = (len(gq[0]) + 15 - u) // (16 - u)
                elif p == 1 and u < 11: n = (len(gq[1]) + 10 - u) // (11 - u)
                else: n = 0
                fill = [gq[p].pop(0) for _ in range(n)] + fill if p == 0 else fill + [gq[p].pop(0) for _ in range(n)]
                if p == 2 and u < 8: fill += wt[3 * u:3 * u + 3]
                if p == 0 and u == 15: fill += ["s_barrier"]
                nx = p * 16 + u + D
                ld = loads(*seq[nx]) if nx < 48 else []
                if self.opt.get("w_noload"): ld = ld[-1:]
                interleave(a, ms[:6], fill, per=2, start=0)
                a(ms[6]); self.emit(ld[:-2])
                a(ms[7]); self.emit(ld[-2:])
        self.stamp("wsp_gemm")
        self.emit(red_write(2))
        a.wait(lg=a.lg)
        self.barrier()
        self.emit(red_read(2) + red_read2(2))
        a(f"v_add_u32 v56, {LB}, v59", f"v_add_u32 v57, {LB}, v61")
        for o in range(8):
            z = vZ1 + ((o >> 2) * 3 + 2) * 2 + ((o >> 1) & 1)
            a(f"v_and_b32 v{192 + o}, {sHIMASK}, v{z}" if o & 1 else f"v_lshlrev_b32 v{192 + o}, 16, v{z}")
        self.cluster_flag_off(P[1], WS_F6, True)
        a.wait(lg=a.lg)
        A = ACC
        for o in range(0, 8, 2): a(f"v_pk_add_f32 {v(A + o, 2)}, {v(A + o, 2)}, {v(RED + o, 2)}")
        for o in range(0, 8, 2): a(f"v_pk_add_f32 {v(RED + 8 + o, 2)}, {v(RED + 8 + o, 2)}, {v(RED + 16 + o, 2)}")
        for o in range(0, 8, 2): a(f"v_pk_add_f32 {v(A + o, 2)}, {v(A + o, 2)}, v[62:63] op_sel:[0,{o >> 2}] op_sel_hi:[1,{o >> 2}]")
        for o in range(0, 8, 2): a(f"v_pk_add_f32 {v(A + o, 2)}, {v(A + o, 2)}, {v(RED + 8 + o, 2)}")
        for o in range(0, 8, 2): a(f"v_pk_mul_f32 {v(A + o, 2)}, {v(A + o, 2)}, {v(192 + o, 2)}")
        for o in range(4): a(f"v_cvt_pk_bf16_f32 v{RED + o}, v{A + 2 * o}, v{A + 2 * o + 1}")
        self.emit(gstore(2))
        self.wout_rd = [f"ds_read_b64_tr_b16 {ar((nt * 16 + p) * 4 + 2 * hf, 2)}, v{56 + nt} offset:{p * 4096 + hf * 512}"
                        for p in range(16) for nt in range(2) for hf in range(2)]
        self.flag_store_wg(P[1])
        self.stamp("g_pub")

    def phase_wout(self):
        a = self.a
        ACC = 128
        self.cluster_flag_off(T[3], WS_F6, False)
        a(f"s_lshl_b32 {T[4]}, {sRH}, 11", f"v_add_u32 v31, {T[4]}, {vL16}", f"v_add_u32 v30, {LRED}, v31")
        chunks = [4, 4, 6, 8]
        group, toks = self.act_dma(WS_G, 22, chunks, LA, gpos=True)
        self.emit(self.wout_rd[:32])
        self.emit(self.poll_early(vFP8, T[3], 36)); ptok = a.vtok()
        self.emit(self.wout_rd[32:])
        self.poll_late(vFP8, T[3], 36, ptok)
        self.stamp("s6")
        for c in range(2): self.emit_all(group(c))
        a(f"v_and_b32 v32, 15, {vLANE}", f"v_lshrrev_b32 v33, 4, {vLANE}", "v_lshlrev_b32 v32, 10, v32",
          "v_and_b32 v34, 1, v33", "v_lshl_add_u32 v32, v34, 5, v32", "v_lshrrev_b32 v33, 1, v33", "v_lshl_add_u32 v32, v33, 4, v32",
          f"s_lshl_b32 {T[3]}, {sRH}, 5", f"s_add_u32 {T[3]}, {T[3]}, {sR0}", f"s_lshl_b32 {T[3]}, {T[3]}, 10",
          f"s_lshl_b32 {T[4]}, {sCB}, 7", f"s_add_u32 {T[3]}, {T[3]}, {T[4]}", f"s_lshl_b32 {T[4]}, {sCH}, 6", f"s_add_u32 {sU[9]}, {T[3]}, {T[4]}",
          f"s_add_u32 {sU[10]}, {sU[9]}, 0x4000")
        for i in range(8):
            a(f"v_lshlrev_b32 v{96 + 2 * i}, 16, v{vH + i}", f"v_and_b32 v{97 + 2 * i}, {sHIMASK}, v{vH + i}")
        def buf(s, rt): return 64 + (s % 4) * 8 + rt * 4
        def reads(s): return [f"ds_read_b128 {v(buf(s, rt), 4)}, v{30 if s < 16 else 31} offset:{4096 * (s & 15) + rt * 1024}" for rt in range(2)]
        def mfmas(s):
            wv = lambda nt: ar((nt * 16 + s) * 4, 4) if s < 16 else v(200 + (nt * 6 + s - 16) * 4, 4)
            return [mfma16(ACC + (rt * 2 + nt) * 4, wv(nt), v(buf(s, rt), 4), v(96 + (rt * 2 + nt) * 4, 4) if s == 0 else None)
                    for rt in range(2) for nt in range(2)]
        def w(c):
            def f():
                a.wait(vm=toks[c]); self.barrier()
            return f
        rest = group(2) + group(3)
        late = {i: rest[2 * i:2 * i + 2] for i in range(7)}
        def head0():
            a.wait(vm=toks[0], lg=a.lg); self.barrier()
        self.kloop(22, reads, mfmas, {2: w(1), 6: w(2), 12: w(3)}, late, {0: head0}, per=1)
        self.stamp("wout_gemm")
        for rt in range(2):
            for nt in range(2):
                d = ACC + (rt * 2 + nt) * 4
                for k in range(2): a(f"v_cvt_pk_bf16_f32 v{64 + 4 * rt + 2 * nt + k}, v{d + 2 * k}, v{d + 2 * k + 1}")
        for rt in range(2):
            b = 64 + 4 * rt
            a(f"v_permlane16_swap_b32 v{b}, v{b + 2}", f"v_permlane16_swap_b32 v{b + 1}, v{b + 3}")
            a(f"buffer_store_dwordx4 {v(b, 4)}, v32, {sOUT}, {sU[9 + rt]} offen " + ["", "sc1", "nt", "sc0 sc1", "sc1 nt"][self.opt.get("ost", 0)])

    def epilogue(self):
        a = self.a
        a("L_finish:")
        a("s_cmp_eq_u32 s2, 0", f"s_cselect_b32 {T[0]}, {sW}, 1", f"s_cmp_eq_u32 {T[0]}, 0", "s_cbranch_scc0 L_noepoch",
          "s_mov_b64 exec, 1", f"buffer_store_dwordx2 {vTAG}, off, {sWS}, 0 sc1", "s_mov_b64 exec, -1", "L_noepoch:")
        if self.stamps:
            a("s_waitcnt vmcnt(0)")
            self.stamp("end")
            a(f"s_lshl_b32 {T[0]}, s2, 2", f"s_add_u32 {T[0]}, {T[0]}, {sW}", f"s_lshl_b32 {T[0]}, {T[0]}, 7", f"s_add_u32 {T[0]}, {T[0]}, {WS_DBG}",
              "s_mov_b64 exec, 1")
            for i in range(10):
                a(f"v_mov_b32 v8, s{STAMP0 + i}", f"buffer_store_dword v8, off, {sWS}, {T[0]} offset:{4 * i if i < 9 else 60}")
        if self.calib:
            a("s_waitcnt vmcnt(0)", "L_calib:", "s_memrealtime s[100:101]", "s_waitcnt lgkmcnt(0)", f"s_sub_u32 s100, s100, s{STAMP0}",
              f"s_cmp_lt_u32 s100, {self.calib}", "s_cbranch_scc1 L_calib")
        if not self.opt.get("noendwait"): a("s_waitcnt vmcnt(0)")
        a("L_exit:", "s_endpgm")

    def build(self):
        self.prologue()
        self.phase_qkv(); self.maybe_stop("qkv")
        self.phase_attn(); self.maybe_stop("attn")
        self.phase_wo(); self.maybe_stop("wo")
        self.phase_win(); self.maybe_stop("win")
        self.phase_wsp(); self.maybe_stop("wsp")
        self.phase_wout()
        self.epilogue()
        self.attn_slow()
        self.a("L_code_end:")
        body = self.a.finish()
        for w in dict.fromkeys(self.a.warnings): print("PENDING-LOAD WARNING:", w, file=sys.stderr)
        ref = open(f"cdna_kernels/{NAME}.s.ref").read().split("\n")
        head = [l for l in ref if l.startswith(";") and "@launch" not in l and "Override" not in l and "grid=ceil" not in l]
        head = head[:head.index([l for l in head if "d_ws" in l][0]) + 1]
        return ("\n".join(head) + f"\n; @launch grid=(256,1,1) block=(256,1,1) lds={LDS_BYTES}\n"
                + '.amdgcn_target "amdgcn-amd-amdhsa--gfx950"\n.text\n'
                + f".globl {NAME}_kernel\n.p2align 8\n.type {NAME}_kernel,@function\n{NAME}_kernel:\n" + body
                + f""".section .rodata,"a"
.p2align 6
.amdhsa_kernel {NAME}_kernel
  .amdhsa_next_free_vgpr 512
  .amdhsa_next_free_sgpr 102
  .amdhsa_accum_offset 256
  .amdhsa_group_segment_fixed_size 0
  .amdhsa_kernarg_size 88
  .amdhsa_user_sgpr_count 2
  .amdhsa_user_sgpr_kernarg_segment_ptr 1
  .amdhsa_system_sgpr_workgroup_id_x 1
  .amdhsa_float_denorm_mode_32 3
.end_amdhsa_kernel
""")

if __name__ == "__main__":
    import argparse
    ap = argparse.ArgumentParser()
    ap.add_argument("-o", default=f"cdna_kernels/{NAME}.s")
    ap.add_argument("--stop"); ap.add_argument("--stamps", action="store_true"); ap.add_argument("--slow", action="store_true")
    ap.add_argument("--opt", action="append", default=[])
    o = ap.parse_args()
    g = Gen(o.stop, o.stamps, o.slow, **{k: int(x) for k, x in (kv.split('=') for kv in o.opt)})
    s = g.build()
    open(o.o, "w").write(s)
    print(f"wrote {o.o}: {len(s)} bytes, {len(g.a.items)} items, {g.a.nops_added} nops; stamps: {g.stamp_names}")
```

```python
import sys, struct
from asmdsl import Asm

NAME = "sequential_preLN__softmax_full_mha__mixer_gmlp__prompt"

WS_EPOCH = 0
WS_F1, WS_F2, WS_F3, WS_F4, WS_F5, WS_F6 = 0x1000, 0x90000, 0x7000, 0x9000, 0xB000, 0xD000
WS_F6A = 0xF000
GPERM = [0, 3, 6, 9, 14, 19] + [p for p in range(22) if p not in (0, 3, 6, 9, 14, 19)]
WS_ST3, WS_ST4 = 0x1150000, 0x10D0000
WS_Q, WS_KV, WS_O, WS_H, WS_Z, WS_G = 0x100000, 0x300000, 0x700000, 0x900000, 0xB00000, 0xE00000
WS_DBG = 0x1300000
WS_SIZE = 0x1400000

LA, LC, LB = 0, 65536, 98304
LRED = 24576
LDS_BYTES = 163840

sX, sWQKV, sWO, sWIN, sWSP, sBSP, sWOUT, sOUT, sWS = ("s[%d:%d]" % (b, b + 3) for b in range(4, 40, 4))
sJ, sRB, sCB, sHEAD, sW, sR0, sRH, sCH, sT0, sCNT5 = ("s%d" % i for i in range(40, 50))
sTAG = "s[50:51]"
sONES, sHIMASK, sCLU, sPOLL = "s52", "s53", "s54", "s55"
T = ["s%d" % i for i in range(56, 64)]
sROT = ["s%d" % i for i in range(64, 72)]
sU = ["s%d" % i for i in range(72, 84)]
sJA, sRB8 = "s0", "s1"
sRC = "s0"
sSPR = "s3"
P = ["s%d" % i for i in range(84, 90)]
STAMP0 = 90

vLANE, vL16, vPAT, vZ = "v0", "v1", "v2", "v3"
vTAG = "v[4:5]"
vFP32, vFP8 = "v6", "v7"
vH = 8
vZ1 = 16

def v(a, n=1): return f"v{a}" if n == 1 else f"v[{a}:{a + n - 1}]"
def ar(a, n=1): return f"a{a}" if n == 1 else f"a[{a}:{a + n - 1}]"
def f2u(x): return "0x%08x" % struct.unpack("<I", struct.pack("<f", x))[0]

def mfma16(d, a, b, c=None):
    return f"v_mfma_f32_16x16x32_bf16 {v(d,4)}, {a}, {b}, {c if c is not None else v(d,4)}"

def interleave(a, mains, fillers, per=1, start=0):
    k = 0
    for i, m in enumerate(mains):
        m() if callable(m) else a(m)
        if i >= start:
            for _ in range(per):
                if k < len(fillers):
                    f = fillers[k]; k += 1
                    f() if callable(f) else a(f)
    while k < len(fillers):
        f = fillers[k]; k += 1
        f() if callable(f) else a(f)

class Gen:
    def __init__(self, stop=None, stamps=False, force_fallback=False, calib=0, **opt):
        self.calib = calib
        self.keep = opt.pop("keep", None)
        self.opt = opt
        self.a = Asm()
        self.stop = stop
        self.stamps = stamps
        self.force_fallback = force_fallback
        self.nstamp = 0
        self.stamp_names = []

    def stamp(self, name):
        if not self.stamps: return
        if self.keep is not None:
            if name not in self.keep and name != "entry": return
        elif name not in ("qkv_gemm", "qkv_pub", "attn_start", "attn_loop", "s2", "wo_gemm", "s3", "z2_gemm", "z1_gemm", "z2n_pub", "s5", "wsp_gemm", "s6", "wout_gemm", "end", "entry"): return
        a = self.a
        a.wait(lg=a.lg)
        cyc = self.opt.get("cyc")
        a(f"{'s_memtime' if cyc else 's_memrealtime'} s[100:101]", "s_waitcnt lgkmcnt(0)")
        n = self.nstamp
        if n == 0:
            a(f"s_mov_b32 s{STAMP0}, s100")
        else:
            r = STAMP0 + 1 + (n - 1) // 2
            if cyc: a(f"s_sub_u32 s101, s100, s{STAMP0}", f"s_mov_b32 s{STAMP0}, s100", "s_mov_b32 s100, s101")
            else: a(f"s_sub_u32 s100, s100, s{STAMP0}")
            a(f"s_mov_b32 s{r}, s100" if n & 1 else f"s_pack_ll_b32_b16 s{r}, s{r}, s100")
        self.nstamp += 1; self.stamp_names.append(name)
        assert self.nstamp <= 17

    def maybe_stop(self, name):
        if self.stop == name:
            self.a.wait_all()
            self.a("s_branch L_finish")

    def flag_store(self, soff, tok=None):
        a = self.a
        a.wait(vm=a.vm if tok is None else tok, force=True)
        a("s_mov_b64 exec, 1", f"buffer_store_dwordx2 {vTAG}, off, {sWS}, {soff} sc1", "s_mov_b64 exec, -1")

    def g_setup(self):
        a = self.a
        a(f"s_lshr_b32 {T[0]}, {sR0}, 4", f"s_add_u32 {T[0]}, {T[0]}, {sW}", f"s_mul_i32 {T[0]}, {T[0]}, {22 * 1024}",
          f"s_add_u32 {sU[0]}, {T[0]}, {WS_G}", f"s_lshl_b32 {sU[1]}, {sW}, 10")

    def g_dma(self, p):
        return [f"s_add_u32 {T[2]}, {sU[0]}, {GPERM[p] * 1024}", f"s_add_u32 m0, {sU[1]}, {self.gpos2(p)}",
                f"buffer_load_dwordx4 {vL16}, {sWS}, {T[2]} offen sc1 lds"]

    @staticmethod
    def gpos2(p): return LRED + 32768 + 4096 * p if p < 8 else LRED + 4096 * (p - 8) if p < 16 else 4096 * (p - 16)

    def flag_store_wg(self, soff, tok=None):
        a = self.a
        a.wait(vm=a.vm if tok is None else tok, force=True)
        self.barrier()
        L = a.label("noflag")
        a.cond_begin()
        a(f"s_cmp_lg_u32 {sW}, 0", f"s_cbranch_scc1 {L}",
          "s_mov_b64 exec, 1", f"buffer_store_dwordx2 {vTAG}, off, {sWS}, {soff} sc1", "s_mov_b64 exec, -1", f"{L}:")
        a.cond_end()

    def poll_wg(self, voff, soff, tmp, drain=True):
        a = self.a
        if self.opt.get("allpoll"):
            self.poll(voff, soff, tmp); return
        if drain: a.wait(vm=a.vm, force=True)
        done = a.vm_done
        L = a.label("nopoll")
        a(f"s_cmp_lg_u32 {sW}, 0", f"s_cbranch_scc1 {L}")
        self.poll(voff, soff, tmp)
        a(f"{L}:")
        a.vm_done = done
        self.barrier()

    def poll_early(self, voff, soff, tmp):
        return [f"buffer_load_dwordx2 {v(tmp,2)}, {voff}, {sWS}, {soff} offen sc1"]

    def poll_late(self, voff, soff, tmp, tok, wg=True):
        a = self.a
        L = a.label("late")
        done = a.vm_done
        if wg: a(f"s_cmp_lg_u32 {sW}, 0", f"s_cbranch_scc1 {L}")
        a.wait(vm=tok, force=True)
        a(f"v_cmp_ne_u64 vcc, {sTAG}, {v(tmp,2)}", "s_nop 1", f"s_cbranch_vccz {L}")
        a.cond_begin(); self.poll(voff, soff, tmp); a.cond_end()
        a(f"{L}:")
        a.vm_done = done if wg else tok
        if wg: self.barrier()

    def mask_check(self, t0, t1, start, soff, pend, tmp):
        a = self.a
        done = a.vm_done
        L, E = a.label("rc"), a.label("rcok")
        m = ((1 << t1) - 1) ^ ((1 << t0) - 1)
        a(f"s_lshl_b32 {sPOLL}, {m * 0x101}, {start}", f"s_lshr_b32 {sPOLL}, {sPOLL}, 8", f"s_and_b32 {sPOLL}, {sPOLL}, 0xff",
          f"s_and_b32 vcc_lo, {pend}, {sPOLL}", f"s_cbranch_scc0 {E}", f"s_mov_b32 {sRC}, {sPOLL}", f"s_mov_b32 {sPOLL}, 0x40000", f"{L}:")
        a.cond_begin()
        a(f"buffer_load_dwordx2 {v(tmp, 2)}, {vFP8}, {sWS}, {soff} offen sc1")
        a.wait(vm=a.vm, force=True)
        a.cond_end()
        a(f"v_cmp_ne_u64 vcc, {sTAG}, {v(tmp, 2)}", f"s_sub_u32 {sPOLL}, {sPOLL}, 1", f"s_cbranch_scc1 {E}",
          f"s_and_b32 {pend}, vcc_lo, 0xff", f"s_and_b32 vcc_lo, {pend}, {sRC}", f"s_cbranch_scc1 {L}", f"{E}:")
        a.vm_done = done
        for r in (tmp, tmp + 1): a.pend_vm.pop(("v", r), None)

    def poll(self, voff, soff, tmp):
        a = self.a
        L, E = a.label("poll"), a.label("polled")
        a(f"s_mov_b32 {sPOLL}, 0x40000", f"{L}:",
          f"buffer_load_dwordx2 {v(tmp,2)}, {voff}, {sWS}, {soff} offen sc1")
        a.wait(vm=a.vm, force=True)
        a(f"v_cmp_ne_u64 vcc, {sTAG}, {v(tmp,2)}",
          f"s_sub_u32 {sPOLL}, {sPOLL}, 1", f"s_cbranch_scc1 {E}")
        sl = self.opt.get("sleep", 0)
        if sl: a(f"s_cbranch_vccz {E}", f"s_sleep {sl}", f"s_branch {L}", f"{E}:")
        else: a(f"s_cbranch_vccnz {L}", f"{E}:")
        for r in (tmp, tmp + 1): a.pend_vm.pop(("v", r), None)

    def barrier(self):
        self.a("s_barrier")

    def prologue(self):
        a = self.a
        a("s_cmp_ge_u32 s2, 256", "s_cbranch_scc1 L_exit")
        self.stamp("entry")
        a("s_load_dwordx2 s[4:5], s[0:1], 0", "s_load_dwordx2 s[8:9], s[0:1], 8")
        if not self.opt.get("nocodepf"):
            a(f"s_getpc_b64 s[60:61]", "L_pc:", f"s_sub_u32 s60, s60, L_pc-{NAME}_kernel", "s_subb_u32 s61, s61, 0",
              f"s_mov_b32 s62, L_code_end-{NAME}_kernel", "s_mov_b32 s63, 0x00020000",
              f"s_lshr_b32 {T[0]}, s2, 3", f"s_lshl_b32 {T[0]}, {T[0]}, 11", "v_lshlrev_b32 v250, 3, v0",
              f"buffer_load_dwordx2 v[250:251], v250, s[60:63], {T[0]} offen")
        a(f"s_mov_b32 s6, {2048 * 512 * 2}", "s_mov_b32 s7, 0x00020000", f"s_mov_b32 s10, {512 * 1536 * 2}", "s_mov_b32 s11, 0x00020000")
        a("v_lshrrev_b32 v8, 6, v0", f"v_and_b32 {vLANE}, 63, v0", f"v_readfirstlane_b32 {sW}, v8")
        if self.opt.get("map", 1):
            a(f"s_lshr_b32 {T[0]}, s2, 3", f"s_and_b32 {T[1]}, s2, 6", f"s_and_b32 {T[2]}, s2, 1",
              f"s_lshr_b32 {T[3]}, {T[0]}, 4", f"s_add_u32 {sJ}, {T[1]}, {T[3]}",
              f"s_bfe_u32 {sRB}, {T[0]}, 0x20002", f"s_and_b32 {sCB}, {T[0]}, 3", f"s_lshl_b32 {T[4]}, {T[2]}, 2", f"s_add_u32 {sCB}, {sCB}, {T[4]}",
              f"s_lshr_b32 {sU[1]}, {T[0]}, 2", f"s_and_b32 {sU[2]}, {sCB}, 3", f"s_lshl_b32 {sU[2]}, {sU[2]}, 1")
        else:
            a(f"s_and_b32 {sJ}, s2, 7", f"s_lshr_b32 {sHEAD}, s2, 3", f"s_lshr_b32 {sRB}, {sHEAD}, 3", f"s_and_b32 {sCB}, {sHEAD}, 7",
              f"s_lshl_b32 {sU[1]}, {sRB}, 1", f"s_mov_b32 {sU[2]}, {sCB}")
        a(f"s_lshl_b32 {sR0}, {sJ}, 8", f"s_lshl_b32 {T[0]}, {sRB}, 6", f"s_add_u32 {sR0}, {sR0}, {T[0]}")

    def prologue_rest(self):
        a = self.a
        for d, off, n in self.SRDS[2:]: a(f"s_load_dwordx2 s[{d}:{d + 1}], s[0:1], {off}")
        for d, off, n in self.SRDS[2:]: a(f"s_mov_b32 s{d + 2}, {n}", f"s_mov_b32 s{d + 3}, 0x00020000")
        if self.opt.get("map", 1):
            a(f"s_bfe_u32 {sHEAD}, s2, 0x40003", f"s_and_b32 {T[4]}, s2, 1", f"s_lshl_b32 {T[4]}, {T[4]}, 4", f"s_add_u32 {sHEAD}, {sHEAD}, {T[4]}")
        a(f"s_lshr_b32 {sRH}, {sW}, 1", f"s_and_b32 {sCH}, {sW}, 1",
          f"s_lshl_b32 {sCLU}, {sJ}, 2", f"s_add_u32 {sCLU}, {sCLU}, {sRB}",
          f"s_mov_b32 {sONES}, 0x3f803f80", f"s_mov_b32 {sHIMASK}, 0xffff0000")
        a(f"s_mul_i32 {T[0]}, {sCB}, 5", f"s_min_u32 {T[1]}, {sCB}, 3", f"s_add_u32 {sT0}, {T[0]}, {T[1]}",
          f"s_cmp_ge_u32 {sCB}, 3", f"s_cselect_b32 {sCNT5}, 1, 0")
        a(f"v_lshlrev_b32 {vL16}, 4, {vLANE}", f"v_mov_b32 {vZ}, 0",
          f"v_and_b32 v8, 15, {vLANE}", f"v_lshrrev_b32 v9, 5, {vLANE}", f"v_bfe_u32 v10, {vLANE}, 4, 1",
          f"v_lshlrev_b32 v8, 4, v8", f"v_lshl_add_u32 v8, v10, 3, v8",
          f"v_lshl_add_u32 {vPAT}, v9, 8, v8",
          f"v_lshl_add_u32 v63, v9, 9, v8",
          f"v_and_b32 {vFP32}, 31, {vLANE}", f"v_lshlrev_b32 {vFP32}, 7, {vFP32}",
          f"v_and_b32 {vFP8}, 7, {vLANE}", f"v_lshlrev_b32 {vFP8}, 3, {vFP8}")

    SRDS = [(4, 0, 2048 * 512 * 2), (8, 8, 512 * 1536 * 2), (36, 80, WS_SIZE), (12, 16, 512 * 512 * 2), (16, 32, 512 * 1376 * 2),
            (20, 40, 2048 * 2048 * 2), (24, 48, 2048 * 2), (28, 56, 688 * 512 * 2), (32, 64, 2048 * 512 * 2)]

    def phase_qkv(self):
        a = self.a
        ACC = 128
        CSR = (124, 200, 204)
        vX0, vX1, vW0, vW1, vWrA, vWrB, XA = "v28", "v29", "v30", "v31", "v32", "v33", 34
        STA = LC
        a(f"v_lshrrev_b32 v8, 3, {vLANE}", f"v_and_b32 v9, 7, {vLANE}", "v_lshrrev_b32 v10, 1, v8", "v_xor_b32 v10, v10, v9",
          "v_lshlrev_b32 v10, 4, v10", "v_lshl_add_u32 v10, v8, 10, v10",
          f"s_lshl_b32 {T[0]}, {sW}, 4", f"s_add_u32 {T[0]}, {T[0]}, {sR0}", f"s_lshl_b32 {T[0]}, {T[0]}, 10",
          f"v_add_u32 {vX0}, {T[0]}, v10", f"v_xor_b32 {vX1}, 64, {vX0}", f"v_add_u32 {vX1}, {7 * 1024}, {vX1}")
        a(f"v_bfe_u32 v10, {vLANE}, 4, 1", "v_lshrrev_b32 v11, 1, v9", "v_xor_b32 v11, v11, v10",
          "v_and_b32 v12, 1, v9", "v_lshl_or_b32 v11, v11, 1, v12", "v_lshlrev_b32 v11, 4, v11",
          "v_mul_u32_u24 v12, 3072, v8", "v_add_u32 v12, v12, v11",
          f"s_mul_i32 {T[0]}, {sW}, {16 * 3072}", f"s_lshl_b32 {T[1]}, {sCB}, 7", f"s_add_u32 {T[0]}, {T[0]}, {T[1]}",
          f"v_add_u32 {vW0}, {T[0]}, v12", f"v_xor_b32 {vW1}, 64, {vW0}", f"v_add_u32 {vW1}, {8 * 3072 - 1024}, {vW1}",
          f"s_lshl_b32 {sU[0]}, {sW}, 11", f"s_add_u32 {sU[2]}, {sU[2]}, {sU[1]}")
        if self.opt.get("q_rot", 3) == 0: a(f"s_mov_b32 {sU[2]}, 0")
        if self.opt.get("q_rot", 3) == 3: a(f"s_and_b32 {sU[2]}, {sU[1]}, 1", f"s_lshl_b32 {sU[2]}, {sU[2]}, 2")
        if self.opt.get("q_rot") == 1: a(f"s_mov_b32 {sU[2]}, {sU[1]}")
        if self.opt.get("q_samew"): a(f"v_subrev_u32 {vW0}, {T[1]}, {vW0}", f"v_subrev_u32 {vW1}, {T[1]}, {vW1}")
        if self.opt.get("q_samex"): a(f"v_and_b32 {vX0}, 0xffff, {vX0}", f"v_and_b32 {vX1}, 0x1ffff, {vX1}")
        tok = {}
        def dma(t):
            L = [[f"s_add_u32 {T[1]}, {sU[2]}, {t}", f"s_and_b32 {T[1]}, {T[1]}, 7", f"s_lshl_b32 {T[2]}, {T[1]}, 7",
                  f"s_add_u32 m0, {sU[0]}, {LB + t * 8192}", f"buffer_load_dwordx4 {vX0}, {sX}, {T[2]} offen lds"],
                 [f"buffer_load_dwordx4 {vX1}, {sX}, {T[2]} offen offset:1024 lds"]]
            for p in range(3):
                pre = [f"s_mul_i32 {T[1]}, {T[1]}, {64 * 3072}"] if p == 0 else []
                L.append(pre + [f"s_add_u32 {T[2]}, {T[1]}, {p * 1024}", f"s_add_u32 m0, {sU[0]}, {(t & 3) * 24576 + p * 8192}",
                                f"buffer_load_dwordx4 {vW0}, {sWQKV}, {T[2]} offen lds"])
                L.append([f"buffer_load_dwordx4 {vW1}, {sWQKV}, {T[2]} offen offset:1024 lds"])
            L[-1].append(lambda: tok.__setitem__(t, a.vtok()))
            return L
        a("s_waitcnt lgkmcnt(0)")
        self.stamp("kernarg")
        self.emit_all(dma(0))
        pq = self.opt.get("pfq2", 0)
        def pfq():
            a(f"s_lshl_b32 {T[3]}, s2, 2", f"s_add_u32 {T[3]}, {T[3]}, {sW}", f"s_lshl_b32 {T[4]}, {T[3]}, 11", f"s_mul_i32 {T[3]}, {T[3]}, 960",
              f"s_add_u32 {T[3]}, {T[3]}, {192 * 3072}", f"v_min_u32 v248, 59, {vLANE}", "v_lshlrev_b32 v248, 4, v248",
              f"buffer_load_dwordx4 v[244:247], v248, {sWQKV}, {T[3]} offen",
              f"buffer_load_dwordx4 v[244:247], {vL16}, {sX}, {T[4]} offen", f"buffer_load_dwordx4 v[244:247], {vL16}, {sX}, {T[4]} offen offset:1024")
        def pfq3(first):
            wb = (8 - first) * 64 * 3072 // 1024
            a(f"s_lshl_b32 {T[3]}, s2, 2", f"s_add_u32 {T[3]}, {T[3]}, {sW}", f"s_lshl_b32 {T[4]}, {T[3]}, 11", f"s_mul_i32 {T[3]}, {T[3]}, {wb}",
              f"s_add_u32 {T[3]}, {T[3]}, {first * 64 * 3072}", f"v_min_u32 v248, {(8 - first) * 8 - 1}, {vLANE}", "v_lshlrev_b32 v248, 4, v248",
              f"v_lshlrev_b32 v249, 4, {vLANE}", f"v_min_u32 v249, {min(wb, 1024) - 16}, v249",
              f"buffer_load_dwordx4 v[244:247], v248, {sX}, {T[4]} offen offset:{first * 128}",
              f"buffer_load_dwordx4 v[244:247], v248, {sX}, {T[4]} offen offset:{1024 + first * 128}",
              f"buffer_load_dwordx4 v[244:247], v249, {sWQKV}, {T[3]} offen")
            if wb > 1024:
                a(f"v_min_u32 v249, {wb - 1024 - 16}, v249", f"buffer_load_dwordx4 v[244:247], v249, {sWQKV}, {T[3]} offen offset:1024")
        if pq >= 3: pfq3(pq - 1)
        self.prologue_rest()
        if pq == 1: pfq()
        a(f"v_lshrrev_b32 v10, 4, {vLANE}", f"v_bfe_u32 v11, {vLANE}, 2, 2", f"v_and_b32 v12, 3, {vLANE}",
          "v_lshl_add_u32 v13, v10, 3, v11", "v_lshlrev_b32 v13, 7, v13", "v_lshl_add_u32 v13, v12, 3, v13",
          "v_lshrrev_b32 v11, 1, v11", "v_and_b32 v14, 1, v10", "v_lshl_or_b32 v11, v14, 1, v11",
          f"v_xor_b32 v11, {sW}, v11", f"v_lshl_add_u32 {vWrA}, v11, 5, v13", f"v_add_u32 {vWrB}, {2 * 24576}, {vWrA}")
        a(f"v_and_b32 v11, 15, {vLANE}", "v_lshrrev_b32 v12, 1, v11", "v_xor_b32 v12, v12, v10", "v_lshlrev_b32 v12, 4, v12",
          "v_lshl_add_u32 v12, v11, 7, v12", f"s_add_u32 {T[0]}, {sU[0]}, {LB}", f"v_add_u32 v{XA}, {T[0]}, v12")
        for k in range(1, 8): a(f"v_xor_b32 v{XA + k}, {((k >> 1) << 11) | ((k & 1) << 6)}, v{XA}")
        for r in range(252, 256): a(f"v_mov_b32 v{r}, {sONES}")
        early = self.opt.get("qearly", 0)
        QS = 0.25 * 1.4426950408889634
        a(f"v_and_b32 v16, 15, {vLANE}", f"v_lshrrev_b32 v17, 4, {vLANE}", f"v_and_b32 v20, 3, {vLANE}", "v_lshrrev_b32 v21, 2, v16",
          f"s_lshl_b32 {T[0]}, {sW}, 6", f"s_add_u32 {T[0]}, {T[0]}, {STA}",
          "v_cmp_eq_u32 vcc, v17, v21", "v_cndmask_b32_e64 v21, 0, -1, vcc",
          "v_lshlrev_b32 v16, 2, v16", f"v_add_u32 v16, {T[0]}, v16", "v_lshlrev_b32 v18, 4, v17", f"v_add_u32 v18, {T[0]}, v18",
          "v_and_b32 v17, 1, v17", "v_lshl_add_u32 v19, v17, 8, v16",
          f"s_and_b32 {T[6]}, {sW}, 1", f"s_lshl_b32 {T[6]}, {T[6]}, 8", f"s_lshr_b32 {T[7]}, {sW}, 1", f"s_lshl_b32 {T[7]}, {T[7]}, 10",
          f"s_or_b32 {T[6]}, {T[6]}, {T[7]}", f"v_or_b32 v42, {T[6]}, v63", f"s_lshl_b32 {T[6]}, {sW}, 9", f"v_or_b32 v46, {T[6]}, {vPAT}",
          f"v_mov_b32 v22, {f2u(QS)}", f"v_mov_b32 v23, {f2u(QS)}")
        self.emit_all(dma(1))
        if pq == 2: pfq()
        for r in range(1, 4): a(f"v_xor_b32 v{42 + r}, {((r & 1) << 8) | ((r >> 1) << 10)}, v42", f"v_xor_b32 v{46 + r}, {r << 9}, v46")
        a(f"s_lshl_b32 {T[4]}, {sCB}, 2", f"s_add_u32 {T[4]}, {T[4]}, {sW}",
          f"s_lshl_b32 {sU[5]}, {T[4]}, 16", f"s_lshl_b32 {T[3]}, {sR0}, 5", f"s_add_u32 {sU[5]}, {sU[5]}, {T[3]}",
          f"s_add_u32 {sU[5]}, {sU[5]}, {WS_Q}",
          f"s_lshl_b32 {sU[6]}, {T[4]}, 17", f"s_lshl_b32 {T[3]}, {sR0}, 6", f"s_add_u32 {sU[6]}, {sU[6]}, {T[3]}",
          f"s_add_u32 {sU[6]}, {sU[6]}, {WS_KV}", f"s_add_u32 {sU[7]}, {sU[6]}, 2048",
          f"s_lshl_b32 {T[0]}, {sRB}, 5", f"s_add_u32 {T[0]}, {T[0]}, {T[4]}", f"s_lshl_b32 {T[0]}, {T[0]}, 7",
          f"s_lshl_b32 {T[4]}, {sJ}, 3", f"s_add_u32 {T[0]}, {T[0]}, {T[4]}", f"s_add_u32 {sU[8]}, {T[0]}, {WS_F1}")
        a("s_waitcnt lgkmcnt(0)", f"s_mov_b32 {sRB8}, {sU[1]}")
        a(f"buffer_load_dwordx2 v[4:5], off, {sWS}, 0 sc1")
        etok = a.vtok()
        tl = self.opt.get("tlb", 0)
        if tl:
            a(f"v_min_u32 v248, 9, {vLANE}", "v_lshlrev_b32 v248, 21, v248", f"buffer_load_dword v249, v248, {sWS}, 0 offen offset:2048")
            if tl >= 2:
                a(f"buffer_load_dword v249, v248, {sWSP}, 0 offen", f"buffer_load_dword v249, off, {sWO}, 0", f"buffer_load_dword v249, off, {sWIN}, 0",
                  f"buffer_load_dword v249, off, {sWOUT}, 0", f"buffer_load_dword v249, off, {sBSP}, 0")
            if tl >= 3: a(f"buffer_load_dword v249, off, {sOUT}, 0")
        if not early: self.emit_all(dma(2))
        self.stamp("issued")
        def abuf(s): return 64 + 16 * (s % 3)
        def wbuf(s): return (112, 176, 188)[s % 3]
        def reads(s):
            t, sub = s >> 1, s & 1
            slot = t & 3
            wb = vWrA if slot < 2 else vWrB
            wo = (slot & 1) * 24576 + sub * 4096
            A, W = abuf(s), wbuf(s)
            L = [f"ds_read_b64_tr_b16 {v(W + 2 * h, 2)}, {wb} offset:{wo + 512 * h}" for h in range(2)]
            L += [f"ds_read_b128 {v(A + 4 * r, 4)}, v{XA + 2 * r + sub} offset:{t * 8192}" for r in range(4)]
            L += [f"ds_read_b64_tr_b16 {v(W + 4 * p + 2 * h, 2)}, {wb} offset:{wo + 8192 * p + 512 * h}" for p in (1, 2) for h in range(2)]
            return L
        def mfmas(s):
            A, W = abuf(s), wbuf(s)
            c = "0" if s == 0 else None
            ms = []
            for p in range(3):
                wv = v(W + 4 * p, 4)
                for r in range(4):
                    d, av = ACC + 16 * p + 4 * r, v(A + 4 * r, 4)
                    ms.append(mfma16(d, wv, av, c) if p < 2 else mfma16(d, av, wv, c))
                ms.append(mfma16(CSR[p], wv, "v[252:255]", c) if p < 2 else mfma16(CSR[p], "v[252:255]", wv, c))
                if p == 0: ms.append(mfma16(8, "v[252:255]", v(A, 4), c))
                if p == 1: ms.append(mfma16(24, v(A, 4), v(A, 4), c))
            return ms
        def head0():
            a.wait(vm=tok[0]); self.barrier(); self.stamp("w0")
        before, late = {}, {}
        for t in range(7):
            def f(t=t):
                if not self.opt.get("q_nowait"): a.wait(vm=tok[t + 1])
                self.barrier(); self.stamp(f"qc{t + 1}")
            before[2 * t] = f
        def f15():
            a.wait(lg=a.lg); self.barrier()
        before[15] = f15
        if self.opt.get("q_nodma"):
            dma = lambda t: (tok.__setitem__(t, a.vtok()), [[]] * 8)[1]
        d3 = dma(3)
        late[0], late[1] = d3[:4], d3[4:]
        if early: late[0], late[1] = dma(2), d3
        for t in range(4, 8):
            d = dma(t)
            late[2 * t - 6], late[2 * t - 5] = d[:4], d[4:]
        cf = self.const_fill(52)
        late[15] = [cf[0:4], cf[4:8], cf[8:10], cf[10:]]
        late[12] = [[lambda: a.wait(vm=etok)], ["v_add_u32 v4, 0x9e3779b9, v4"], ["v_add_u32 v5, 0x7f4a7c15, v5"]]
        late[13] = [["v_readfirstlane_b32 s50, v4"], ["v_readfirstlane_b32 s51, v5"]]
        self.kloop(16, reads, mfmas, before, late, {0: head0})
        self.stamp("qkv_gemm")
        a("v_cmp_eq_u32 vcc, 1, v20", "v_cndmask_b32 v9, v24, v25, vcc", "v_cmp_eq_u32 vcc, 3, v20",
          "v_cndmask_b32_e64 v10, v26, v27, vcc", "v_cmp_lt_u32 vcc, 1, v20", "v_cndmask_b32 v9, v9, v10, vcc", "v_and_b32 v9, v9, v21",
          "v_mov_b32 v10, v9", "v_permlane32_swap_b32 v9, v10", "v_add_f32 v9, v9, v10", "v_mov_b32 v10, v9",
          "v_cmp_eq_u32 vcc, 1, v17", "v_permlane16_swap_b32 v9, v10", "v_add_f32 v9, v9, v10")
        self.ln_finish([(8, 9, 10)], 1.0 / 512)
        a("v_cndmask_b32 v10, v10, v11, vcc", "ds_write_b32 v19, v10")
        a.wait(lg=a.lg)
        self.barrier()
        for r in range(4):
            if r: a(f"v_xor_b32 v20, {r << 6}, v16")
            a(f"ds_read2_b32 {v(64 + 2 * r, 2)}, {'v16' if r == 0 else 'v20'} offset1:64")
        qtok = a.ltok()
        for r in range(4):
            if r: a(f"v_xor_b32 v21, {r << 6}, v18")
            p18 = "v18" if r == 0 else "v21"
            a(f"ds_read_b128 {v(80 + 8 * r, 4)}, {p18}", f"ds_read_b128 {v(84 + 8 * r, 4)}, {p18} offset:256")
        a.wait(lg=qtok)
        for p in (1, 2, 0):
            if p == 2:
                a.wait(lg=a.lg)
                for r in range(4): a(f"v_pk_mul_f32 {v(72 + 2 * r, 2)}, {v(64 + 2 * r, 2)}, v[22:23]")
            for r0 in (0, 2):
                work = [(r, k) for r in (r0, r0 + 1) for k in range(2)]
                tm = {w_: 52 + 2 * i for i, w_ in enumerate(work)}
                for r, k in work:
                    c = v(CSR[p] + 2 * k, 2)
                    if p == 2: a(f"v_pk_mul_f32 {v(tm[r, k], 2)}, {c}, {v(84 + 8 * r + 2 * k, 2)}")
                    else: a(f"v_pk_mul_f32 {v(tm[r, k], 2)}, {c}, {v((72 if p == 0 else 64) + 2 * r, 2)} op_sel:[0,1] op_sel_hi:[1,1]")
                for r, k in work:
                    d = v(ACC + 16 * p + 4 * r + 2 * k, 2)
                    if p == 2: a(f"v_pk_fma_f32 {d}, {d}, {v(80 + 8 * r + 2 * k, 2)}, {v(tm[r, k], 2)}")
                    else: a(f"v_pk_fma_f32 {d}, {d}, {v((72 if p == 0 else 64) + 2 * r, 2)}, {v(tm[r, k], 2)} op_sel:[0,0,0] op_sel_hi:[1,0,1]")
                for r, k in work:
                    d = ACC + 16 * p + 4 * r + 2 * k
                    a(f"v_cvt_pk_bf16_f32 v{ACC + 16 * p + 4 * r + k}, v{d}, v{d + 1}")
                for r in (r0, r0 + 1):
                    o = v(ACC + 16 * p + 4 * r, 2)
                    if p < 2: a(f"buffer_store_dwordx2 {o}, v{42 + r}, {sWS}, {sU[5] if p == 0 else sU[6]} offen sc1")
                    else: a(f"buffer_store_dwordx2 {o}, v{46 + r}, {sWS}, {sU[7]} offen sc1")
        stok = a.vtok()
        if self.opt.get("pfs2", 0):
            a(f"s_lshl_b32 {T[3]}, s2, 2", f"s_add_u32 {T[3]}, {T[3]}, {sW}", f"s_lshl_b32 {T[3]}, {T[3]}, 13", f"s_add_u32 {T[4]}, {T[3]}, 4096")
            for i in range(4): a(f"buffer_load_dwordx4 v[244:247], {vL16}, {sWSP}, {T[3 + (i >> 1)]} offen offset:{1024 * (i & 1)}")
        self.flag_store(sU[8], stok)
        self.stamp("qkv_pub")
        self.attn_addresses()

    def ln_finish(self, chains, inv_n):
        a = self.a
        for s1, s2, d in chains: a(f"v_mul_f32 v{s1}, {f2u(inv_n)}, v{s1}", f"v_mul_f32 v{s2}, {f2u(inv_n)}, v{s2}")
        for s1, s2, d in chains: a(f"v_fma_f32 v{s2}, -v{s1}, v{s1}, v{s2}")
        for s1, s2, d in chains: a(f"v_max_f32 v{s2}, 0, v{s2}")
        for s1, s2, d in chains: a(f"v_add_f32 v{s2}, {f2u(1e-5)}, v{s2}")
        for s1, s2, d in chains: a(f"v_rsq_f32 v{d}, v{s2}")
        for s1, s2, d in chains: a(f"v_mul_f32_e64 v{d + 1}, -v{s1}, v{d}")

    def const_fill(self, t=8):
        L = [f"v_and_b32 v{t}, 27, {vLANE}", f"v_cmp_eq_u32 vcc, 1, v{t}", f"v_mov_b32 v{t + 1}, {sONES}",
             f"v_cndmask_b32 v{t + 4}, v3, v{t + 1}, vcc", f"v_mov_b32 v{t + 5}, v{t + 4}", f"v_mov_b32 v{t + 6}, v{t + 4}", f"v_mov_b32 v{t + 7}, v{t + 4}",
             f"s_lshl_b32 {T[3]}, {sW}, 12", f"s_add_u32 {T[3]}, {T[3]}, {LC + 2048}", f"v_add_u32 v{t + 1}, {T[3]}, {vL16}",
             f"ds_write_b128 v{t + 1}, {v(t + 4, 4)}", f"ds_write_b128 v{t + 1}, {v(t + 4, 4)} offset:1024"]
        return L

    S, OA, NM, QF, KB, VB = 64, 112, 144, 176, 184, 192
    vIDX, vSP0, vKA, vKB2, vVB, vVI, vWD0, vXR = 208, 209, 213, 214, 215, 216, 217, 240

    def attn_addresses(self):
        a = self.a
        a(f"v_and_b32 v8, 15, {vLANE}", f"v_lshrrev_b32 v9, 4, {vLANE}", "v_lshlrev_b32 v10, 12, v8", "v_lshl_add_u32 v10, v9, 4, v10",
          f"s_lshl_b32 {T[6]}, {sR0}, 12", f"s_lshl_b32 {T[7]}, {sW}, 7", f"s_add_u32 {T[6]}, {T[6]}, {T[7]}",
          f"v_add_u32 v{self.vSP0}, {T[6]}, v10")
        for tt in range(1, 4): a(f"v_add_u32 v{self.vSP0 + tt}, {tt * 65536}, v{self.vSP0}")
        a(f"v_mov_b32 v{self.vIDX}, 0xdddddddd", f"v_mov_b32 v{self.vKA}, {vL16}", f"v_add_u32 v{self.vKB2}, {LB}, {vL16}")
        a(f"v_lshrrev_b32 v10, 5, {vLANE}", "v_lshl_add_u32 v10, v10, 4, v8", "v_lshlrev_b32 v10, 4, v10",
          f"v_and_b32 v11, 31, {vLANE}", f"v_bfe_u32 v12, {vLANE}, 2, 2",
          "v_add_u32 v12, -1, v12", "v_cmp_gt_u32 vcc, 2, v12", "v_cndmask_b32_e64 v12, 0, 4, vcc",
          "v_and_b32 v13, 27, v11", "v_cmp_eq_u32 vcc, 16, v13", "v_cndmask_b32_e64 v13, 0, 1, vcc",
          "v_add_u32 v12, v12, v13", "v_lshlrev_b32 v12, 4, v12", f"v_add_u32 v12, {LC}, v12",
          "v_cmp_gt_u32 vcc, 16, v11", f"v_cndmask_b32 v{self.vVB}, v12, v10, vcc",
          f"v_mov_b32 v13, 0x4000", f"v_cndmask_b32 v{self.vVI}, v3, v13, vcc")
        self.w128_addresses(self.vWD0, 16)
        self.win_addresses()
        a(f"s_lshl_b32 {T[5]}, {sHEAD}, 17", f"s_lshl_b32 {sU[1]}, {sW}, 12", f"s_add_u32 {T[5]}, {T[5]}, {sU[1]}", f"s_add_u32 {T[5]}, {T[5]}, {WS_KV}")
        for t in range(8):
            a(f"s_add_u32 {T[6]}, {sJ}, {t}", f"s_and_b32 {T[6]}, {T[6]}, 7", f"s_lshl_b32 {T[6]}, {T[6]}, 14", f"s_add_u32 {sROT[t]}, {T[6]}, {T[5]}")
        a(f"s_add_u32 {sSPR}, {sRB8}, {sJ}")
        if self.opt.get("s5prog", 0): a(f"s_and_b32 {sSPR}, {sJ}, 6")
        if self.opt.get("pfs2", 0): a(f"s_mov_b32 {sSPR}, 0")
        for t in range(8):
            a(f"s_add_u32 {T[6]}, {sSPR}, {t}", f"s_and_b32 {T[6]}, {T[6]}, 7", f"s_lshl_b32 {sU[4 + t]}, {T[6]}, 9")
        a(f"v_lshrrev_b32 v226, 3, {vLANE}", f"s_lshl_b32 {T[6]}, {sCB}, 3", f"s_add_u32 {T[6]}, {T[6]}, {sR0}", f"v_add_u32 v226, {T[6]}, v226",
          "v_lshlrev_b32 v226, 12, v226", f"v_and_b32 v8, 7, {vLANE}", "v_lshl_add_u32 v226, v8, 4, v226",
          f"s_lshl_b32 {T[6]}, {sW}, 7", f"v_add_u32 v226, {T[6]}, v226")
        a(f"v_and_b32 v8, 15, {vLANE}", f"v_lshrrev_b32 v9, 4, {vLANE}", "v_lshlrev_b32 v8, 10, v8", "v_lshl_add_u32 v62, v9, 3, v8")
        a(f"v_and_b32 v10, 15, {vLANE}", f"v_bfe_u32 v11, {vLANE}, 4, 1", f"v_lshrrev_b32 v12, 5, {vLANE}",
          "v_lshlrev_b32 v10, 4, v10", "v_lshl_add_u32 v10, v11, 14, v10", "v_lshl_add_u32 v227, v12, 3, v10")
        for r in range(self.NM, self.NM + 0): pass

    def w128_addresses(self, r, t0=28):
        a = self.a
        p, q, u, x, y = ("v%d" % (t0 + i) for i in range(5))
        a(f"v_lshrrev_b32 {p}, 3, {vLANE}", f"v_and_b32 {q}, 7, {vLANE}", f"v_bfe_u32 {u}, {vLANE}, 4, 1",
          f"v_lshrrev_b32 {x}, 1, {q}", f"v_xor_b32 {x}, {x}, {u}", f"v_and_b32 {y}, 1, {q}", f"v_lshl_or_b32 {x}, {x}, 1, {y}",
          f"v_lshlrev_b32 {x}, 4, {x}", f"v_lshl_add_u32 {x}, {p}, 10, {x}",
          f"s_lshl_b32 {T[6]}, {sCB}, 7", f"v_add_u32 v{r}, {T[6]}, {x}", f"v_xor_b32 v{r + 1}, 64, v{r}",
          f"v_add_u32 v{r + 1}, {7 * 1024}, v{r + 1}", f"v_add_u32 v{r + 2}, {14 * 1024}, v{r}", f"v_add_u32 v{r + 3}, {14 * 1024}, v{r + 1}")

    def w128_dma(self, r, srd, pos, lds, nsteps):
        L = [f"s_lshr_b32 {T[4]}, {pos}, 1", f"s_add_u32 {T[4]}, {T[4]}, {sU[4]}"]
        n = nsteps // 2
        if n & (n - 1) == 0: L.append(f"s_and_b32 {T[4]}, {T[4]}, {n - 1}")
        else: L += [f"s_cmp_ge_u32 {T[4]}, {n}", f"s_cselect_b32 {T[7]}, {n}, 0", f"s_sub_u32 {T[4]}, {T[4]}, {T[7]}"]
        L += [f"s_lshl_b32 {T[4]}, {T[4]}, 1", f"s_and_b32 {T[7]}, {pos}, 1", f"s_add_u32 {T[4]}, {T[4]}, {T[7]}", f"s_lshl_b32 {T[4]}, {T[4]}, 15",
              f"s_mov_b32 m0, {lds}"]
        return L, [f"buffer_load_dwordx4 v{r + i}, {srd}, {T[4]} offen offset:{1024 * i} lds" for i in range(4)]

    def stage_base(self, t): return LA + 16384 * t if t < 4 else LB + 16384 * (t - 4)

    def kv_dma(self, t):
        L = [([f"s_add_u32 m0, {sU[1]}, {self.stage_base(t)}"] if i == 0 else [],
              f"buffer_load_dwordx4 {vL16}, {sWS}, {sROT[t]} offen offset:{1024 * i} sc1 lds") for i in range(4)]
        return L

    def phase_attn(self):
        a = self.a
        S, OA, NM, QF, KB, VB = self.S, self.OA, self.NM, self.QF, self.KB, self.VB
        a(f"s_lshl_b32 {T[0]}, {sW}, 5", f"s_add_u32 {T[0]}, {T[0]}, {sHEAD}", f"s_lshl_b32 {T[0]}, {T[0]}, 7", f"s_add_u32 {T[0]}, {T[0]}, {WS_F1}",
          f"s_lshl_b32 {T[1]}, {sHEAD}, 16", f"s_lshl_b32 {T[2]}, {sJ}, 13", f"s_add_u32 {T[1]}, {T[1]}, {T[2]}",
          f"s_lshl_b32 {T[2]}, {sW}, 11", f"s_add_u32 {T[1]}, {T[1]}, {T[2]}", f"s_add_u32 {T[1]}, {T[1]}, {WS_Q}",
          )
        for r in range(OA, OA + 32): a(f"v_mov_b32 v{r}, 0")
        a(f"s_lshr_b32 {P[0]}, {sHEAD}, 1", f"s_lshl_b32 {P[0]}, {P[0]}, 10", f"s_and_b32 {P[1]}, {sHEAD}, 1", f"s_lshl_b32 {P[1]}, {P[1]}, 9",
          f"s_add_u32 {P[0]}, {P[0]}, {P[1]}", f"s_lshl_b32 {P[1]}, {sJ}, 18", f"s_add_u32 {P[0]}, {P[0]}, {P[1]}",
          f"s_lshl_b32 {P[1]}, {sW}, 16", f"s_add_u32 {P[0]}, {P[0]}, {P[1]}", f"s_add_u32 {P[0]}, {P[0]}, {WS_O}", f"s_add_u32 {P[1]}, {P[0]}, 0x8000",
          f"s_lshl_b32 {P[2]}, {sJ}, 2", f"s_add_u32 {P[2]}, {P[2]}, {sW}", f"s_lshl_b32 {P[2]}, {P[2]}, 12",
          f"s_lshl_b32 {P[3]}, {sHEAD}, 7", f"s_add_u32 {P[2]}, {P[2]}, {P[3]}", f"s_add_u32 {P[2]}, {P[2]}, {WS_F2}",
          f"s_lshl_b32 {P[3]}, {sRH}, 15", f"s_lshl_b32 {P[4]}, {sR0}, 10", f"s_add_u32 {P[3]}, {P[3]}, {P[4]}",
          f"s_lshl_b32 {P[4]}, {sCB}, 7", f"s_add_u32 {P[3]}, {P[3]}, {P[4]}", f"s_lshl_b32 {P[4]}, {sCH}, 6", f"s_add_u32 {P[3]}, {P[3]}, {P[4]}",
          f"s_add_u32 {P[4]}, {P[3]}, 0x4000")
        self.w128_read_base(28, 2)
        L, E, F = a.label("s1"), a.label("s1own"), a.label("s1all")
        a(f"s_mov_b32 {sPOLL}, 0x40000", f"s_lshl_b32 {T[2]}, 1, {sJ}", f"{L}:", f"buffer_load_dwordx2 v[8:9], {vFP8}, {sWS}, {T[0]} offen sc1")
        a.wait(vm=a.vm, force=True)
        a(f"v_cmp_ne_u64 vcc, {sTAG}, v[8:9]", f"s_sub_u32 {sPOLL}, {sPOLL}, 1", f"s_cbranch_scc1 {E}",
          f"s_and_b32 {T[3]}, vcc_lo, {T[2]}", f"s_cbranch_scc1 {L}", f"{E}:", "s_mov_b64 s[60:61], vcc")
        self.stamp("s1")
        for q in range(2):
            a(f"buffer_load_dwordx4 {v(QF + 4 * q, 4)}, {vL16}, {sWS}, {T[1]} offen offset:{1024 * q} sc1")
        kvtok = {}
        def issue(items):
            for pre, ins in items: a(*pre, ins) if pre else a(ins)
        issue(self.kv_dma(0)); kvtok[0] = a.vtok()
        a(f"s_and_b32 {sU[3]}, s60, 0xff", f"s_mov_b32 {sU[2]}, {T[0]}")
        def remote_check(t0, t1):
            def f():
                if self.opt.get("norem"): return
                self.mask_check(t0, t1, sJ, sU[2], sU[3], 8)
            return f
        if self.opt.get("ahead"): a(f"buffer_load_dwordx4 v[228:231], v226, {sWSP}, {sU[4]} offen")
        a.wait(vm=kvtok[0], lg=a.lg)
        self.barrier()
        def kread(kt):
            t, k = kt >> 3, kt & 7
            base = self.vKA if t < 4 else self.vKB2
            return f"ds_read_b128 {v(KB + 4 * (kt & 1), 4)}, v{base} offset:{16384 * (t & 3) + (k >> 1) * 4096 + (k & 1) * 1024}"
        def vread(kt, hi):
            k = kt & 7
            return f"ds_read_b128 {v(VB + 8 * (kt & 1) + 4 * hi, 4)}, v{self.vVB} offset:{(k >> 1) * 4096 + 2048 + (k & 1) * 1024 + 512 * hi}"
        def qk(n, c=None):
            kt, q = n >> 1, n & 1
            return f"v_mfma_f32_32x32x16_bf16 {v(S + 16 * (n % 3), 16)}, {v(KB + 4 * (kt & 1), 4)}, {v(QF + 4 * q, 4)}, {c if c else v(NM + 16 * q, 16)}"
        def pv(n, hi):
            kt, q = n >> 1, n & 1
            return f"v_smfmac_f32_32x32x32_bf16 {v(OA + 16 * q, 16)}, {v(VB + 8 * (kt & 1) + 4 * hi, 4)}, {v(S + 16 * (n % 3) + 8 * hi, 8)}, v{self.vIDX}"
        a(kread(0), kread(1), vread(0, 0), vread(0, 1))
        a.wait(lg=a.lg)
        a(qk(0, "0"), qk(1, "0"))
        for q in range(2):
            b, m = S + 16 * q, 8 + 2 * q
            a(f"v_max3_f32 v{m}, v{b}, v{b + 1}, v{b + 2}")
            for k in range(3, 15, 2): a(f"v_max3_f32 v{m}, v{m}, v{b + k}, v{b + k + 1}")
            a(f"v_max_f32 v{m}, v{m}, v{b + 15}", f"v_mov_b32 v{m + 1}, v{m}")
        for q in range(2): a(f"v_permlane32_swap_b32 v{8 + 2 * q}, v{9 + 2 * q}")
        for q in range(2):
            m = 8 + 2 * q
            a(f"v_max_f32 v{m}, v{m}, v{m + 1}", f"v_sub_f32 v{m}, 0, v{m}")
            for r in range(0, 16, 2): a(f"v_pk_mov_b32 {v(NM + 16 * q + r, 2)}, {v(m, 2)}, {v(m, 2)} op_sel:[0,0]")
            a(qk(q))
        self.stamp("attn_start")
        if self.stamps: a("s_memtime s[100:101]", "s_waitcnt lgkmcnt(0)", "s_mov_b32 s99, s100")
        wotok = [-1]
        wo = []
        for g in range(4):
            a(f"s_lshl_b32 {T[4]}, {sW}, 1", f"s_add_u32 {T[4]}, {T[4]}, {g >> 1}", f"s_add_u32 {T[4]}, {T[4]}, {sCB}", f"s_and_b32 {T[4]}, {T[4]}, 7",
              f"s_lshl_b32 {T[4]}, {T[4]}, 16", f"s_add_u32 {T[g]}, {T[4]}, {(g & 1) * 32768}")
            ins = [f"buffer_load_dwordx4 v{self.vWD0 + i}, {sWO}, {T[g]} offen offset:{1024 * i} lds" for i in range(4)]
            wo += [([f"s_lshl_b32 {sU[3]}, {sW}, 14", f"s_add_u32 m0, {sU[3]}, {LA + g * 4096}"], ins[0]), ([], ins[1]), ([], ins[2]), ([], ins[3])]
        a(f"s_lshl_b32 {T[6]}, {sHEAD}, 2", f"s_add_u32 {T[6]}, {T[6]}, {sW}", f"s_mul_i32 {T[6]}, {T[6]}, 11008")
        pfw = [([f"s_add_u32 {T[6]}, {T[6]}, 4096"] if i and i % 4 == 0 else [],
                f"buffer_load_dwordx4 v[228:231], {vL16}, {sWIN}, {T[6]} offen offset:{(i % 4) * 1024}") for i in range(11)]
        if not self.opt.get("pfw"): pfw = []
        a(f"s_mov_b32 {T[7]}, {sU[4]}", f"s_mov_b32 {sU[4]}, {sCB}")
        w2c = self.win_dma(1, 28, 1, (T[4], T[5], T[6], sU[0]))
        self.emit(w2c[0][:-1]); a(f"s_mov_b32 {T[4]}, m0", f"s_mov_b32 {sU[4]}, {T[7]}")
        pfw += [([f"s_mov_b32 m0, {T[4]}"], w2c[0][-1]), ([], w2c[1][-1]), ([], w2c[2][-1])]
        pf2 = []
        if self.opt.get("pf2", 1):
            a(f"s_lshl_b32 {T[5]}, s2, 2", f"s_add_u32 {T[5]}, {T[5]}, {sW}", f"s_mul_i32 {T[6]}, {T[5]}, 1376", f"s_mul_i32 {T[7]}, {T[5]}, 688",
              f"s_lshl_b32 {T[5]}, {T[5]}, 9",
              f"v_min_u32 v50, 42, {vLANE}", "v_lshlrev_b32 v50, 4, v50", f"v_min_u32 v51, 21, {vLANE}", "v_lshlrev_b32 v51, 4, v51",
              f"v_min_u32 v49, 31, {vLANE}", "v_lshlrev_b32 v49, 4, v49")
            J = "v[228:231]"
            pf2 = [([], f"buffer_load_dwordx4 {J}, v49, {sWO}, {T[5]} offen"), ([], f"buffer_load_dwordx4 {J}, {vL16}, {sWIN}, {T[6]} offen"),
                   ([], f"buffer_load_dwordx4 {J}, v51, {sWIN}, {T[6]} offen offset:1024"), ([], f"buffer_load_dwordx4 {J}, v50, {sWOUT}, {T[7]} offen")]
        if self.opt.get("pfs2", 0) == 1:
            pre0 = [f"s_lshl_b32 {sU[0]}, s2, 2", f"s_add_u32 {sU[0]}, {sU[0]}, {sW}", f"s_lshl_b32 {sU[0]}, {sU[0]}, 13"]
            pf3 = [(pre0 if i == 0 else [f"s_add_u32 {sU[0]}, {sU[0]}, 4096"] if i == 2 else [],
                    f"buffer_load_dwordx4 v[228:231], {vL16}, {sWSP}, {sU[0]} offen offset:{2048 + 1024 * (i & 1)}") for i in range(4)]
        else:
            pf3 = []
        post = {}
        slots = []
        spl = [([], f"buffer_load_dwordx4 {ar(((2 * t + sub) * 4 + tt) * 4, 4)}, v{self.vSP0 + tt}, {sWSP}, {sU[4 + t]} offen offset:{64 * sub}")
               for t in range(8) for sub in range(2) for tt in range(4)]
        lag = self.opt.get("splag", 4)
        if lag:
            first = [x for i, x in enumerate(spl) if (i >> 2) & 1 == 0]
            second = [x for i, x in enumerate(spl) if (i >> 2) & 1 == 1]
            spl = first[:lag]
            for i in range(lag, 32): spl += [first[i], second[i - lag]]
            spl += second[32 - lag:]
        if self.opt.get("nosp"): spl = []
        if self.opt.get("sp_eff"):
            spl = [([], f"buffer_load_dwordx4 {ar(k * 4, 4)}, v226, {sWSP}, {sU[4 + (k >> 3)]} offen offset:{(k & 7) * 512}") for k in range(64)]
            if self.opt.get("sp_eff") == 2:
                a(f"v_and_b32 v226, 0x3ffff, v226")
        slots = [None] * 128
        kv1 = self.kv_dma(1); kv1[0] = ([remote_check(1, 3)] + kv1[0][0], kv1[0][1])
        post[kv1[-1][1]] = lambda: kvtok.__setitem__(1, a.vtok())
        FREE = "free"
        fewbar = self.opt.get("fewbar", 0)
        for t in range(8):
            kv = []
            if t < 6:
                kv = self.kv_dma(t + 2); post[kv[-1][1]] = (lambda t=t: kvtok.__setitem__(t + 2, a.vtok()))
                if t == 1: kv[0] = ([remote_check(3, 8)] + kv[0][0], kv[0][1])
            if t == 0:
                st = [None, None] + kv1 + kv + [pfw.pop(0) for _ in range(len(pfw))]
                st += [FREE] * (16 - len(st))
            else:
                if t < 6:
                    ex = pf2 if t == self.opt.get("pf2at", 2) and pf2 else pf3 if t == self.opt.get("pf3at", 1) and pf3 else [FREE] * 4
                    oth = [x for pair in zip(kv, ex) for x in pair]
                else:
                    oth = [wo.pop(0) for _ in range(8)]
                st = [x for pair in zip(oth, [FREE] * 8) for x in pair]
            slots[16 * t:16 * t + 16] = st
        if fewbar:
            def kvslots(t): return [i for i, x in enumerate(slots) if x and x is not FREE and f"{sROT[t]} offen" in x[1] and "sc1 lds" in x[1]]
            kvi = {t: [slots[i] for i in kvslots(t)] for t in range(3, 8)}
            for t in range(3, 8):
                for i in kvslots(t): slots[i] = FREE
            plan = {3: [16 + 2 * i for i in range(4)], 4: [32 + 2 * i for i in range(4)], 5: [40 + 2 * i for i in range(4)],
                    6: [64 + 2 * i for i in range(4)], 7: [72 + 2 * i for i in range(4)]}
            for t in range(3, 8):
                for i, x in zip(plan[t], kvi[t]):
                    if slots[i] is not FREE and slots[i] is not None:
                        j = next(k for k in range(i + 1, 128) if slots[k] is FREE); slots[j] = slots[i]
                    slots[i] = x
        if self.opt.get("kvearly", 0):
            kvs = [self.kv_dma(t) for t in range(2, 8)]
            for t, kv in zip(range(2, 8), kvs): post[kv[-1][1]] = (lambda t=t: kvtok.__setitem__(t, a.vtok()))
            w2cs = [x for x in slots[:16] if x and x is not FREE and str(sWIN) in x[1]]
            wos = [x for x in slots if x and x is not FREE and str(sWO) in x[1] and " lds" in x[1]]
            pre0 = [f"s_lshl_b32 {sU[2]}, s2, 2", f"s_add_u32 {sU[2]}, {sU[2]}, {sW}", f"s_lshl_b32 {sU[2]}, {sU[2]}, 13"]
            pfs = [(pre0 if i == 0 else [f"s_add_u32 {sU[2]}, {sU[2]}, 4096"] if i == 4 else [],
                    f"buffer_load_dwordx4 v[228:231], {vL16}, {sWSP}, {sU[2]} offen offset:{1024 * (i & 3)}") for i in range(8)]
            if self.opt.get("nopfs"): pfs = []
            head = [None, None] + kv1 + [x for kv in kvs for x in kv] + w2cs + pf2 + pfs
            q0 = self.opt.get("spstart", 50)
            assert len(head) <= q0
            slots = head + [None] * (q0 - len(head)) + [FREE] * (128 - q0)
            w0 = 128 - 2 * len(wos) - self.opt.get("wogap", 4)
            for i, x in enumerate(wos): slots[w0 + 2 * i] = x
        fr = [i for i, x in enumerate(slots) if x is FREE]
        for i in fr: slots[i] = None
        if self.opt.get("nowo"): slots = [x if not (x and str(sWO) in x[1]) else None for x in slots]; wotok[0] = a.vtok()
        if self.opt.get("nokv"):
            for t in range(1, 8): kvtok[t] = a.vtok()
            slots = [x if not (x and "sc1 lds" in x[1]) else None for x in slots]
        extra2 = {}
        for k, it in enumerate(spl):
            i = fr[(k * len(fr)) // len(spl)]
            if slots[i] is None: slots[i] = it
            else: extra2.setdefault(i, []).append(it[1])
        assert not wo and not pfw, (len(wo), len(pfw))
        last_wo = ([x for x in slots if x and str(sWO) in x[1]] or [(0, "none")])[-1][1]
        post[last_wo] = lambda: wotok.__setitem__(0, a.vtok())
        def vm_slot(i):
            if i < len(slots) and slots[i]:
                a(slots[i][1])
                if slots[i][1] in post: post[slots[i][1]]()
                for x in extra2.get(i, []): a(x)
        def vm_pre(i):
            if i < len(slots) and slots[i]: self.emit(slots[i][0])
        ac = self.opt.get("ac", 1)
        def lds_wait(kt):
            t = kt >> 3
            if kt & 7 == 5 and kt < 56 and fewbar:
                if t in (0, 1, 3, 5):
                    a.wait(vm=kvtok[1 if t == 0 else t + 2], lg=a.lg); self.barrier()
                else:
                    a.wait(lg=a.lg)
            elif kt & 7 == 5 and kt < 56:
                a.wait(vm=kvtok[(kt >> 3) + 1] if not self.opt.get("nokvw") else None, lg=a.lg)
                if not self.opt.get("nobar"): self.barrier()
            else:
                a.wait(lg=a.lg)
        vm_pre(0)
        for n in range(128):
            kt, q = n >> 1, n & 1
            b = S + 16 * (n % 3)
            E = lambda lo, hi: [a(f"v_exp_f32 v{b + r}, v{b + r}") for r in range(lo, hi)]
            E(0, 2)
            if n > 0: a(pv(n - 1, 1))
            if q == 0:
                if kt + 2 < 64: a(kread(kt + 2))
                if (kt + 1) & 7 == 0 and kt + 1 < 64:
                    for _ in range(3 if kt + 1 == 32 else 1): a(f"v_add_u32 v{self.vVB}, v{self.vVB}, v{self.vVI}")
            else:
                vm_slot(2 * kt)
                if not ac: vm_pre(2 * kt + 1)
            E(2, 7)
            if n + 2 < 128: a(qk(n + 2))
            if q == 0:
                if kt + 1 < 64: a(vread(kt + 1, 0))
            elif ac:
                lds_wait(kt); vm_pre(2 * kt + 1)
            else:
                vm_slot(2 * kt + 1)
            E(7, 12)
            a(pv(n, 0))
            if q == 0:
                if kt + 1 < 64: a(vread(kt + 1, 1))
                if kt > 0: vm_pre(2 * kt)
            elif ac:
                vm_slot(2 * kt + 1)
            else:
                lds_wait(kt)
            if q == 1 and self.opt.get("sp_ds"): a(f"ds_read_b128 v[228:231], v{self.vKA} offset:{kt * 1024}")
            E(12, 16)
        a.wait(vm=wotok[0], lg=a.lg)
        a(pv(127, 1))
        self.barrier()
        self.stamp("attn_loop")
        if self.stamps: a("s_memtime s[100:101]", "s_waitcnt lgkmcnt(0)", "s_sub_u32 s99, s100, s99")
        for q in range(2):
            o = OA + 16 * q
            a(f"v_pk_add_f32 {v(8 + 4 * q, 2)}, {v(o, 2)}, {v(o + 2, 2)}", f"v_pk_add_f32 {v(10 + 4 * q, 2)}, {v(o + 4, 2)}, {v(o + 6, 2)}")
        for q in range(2): a(f"v_pk_add_f32 {v(8 + 4 * q, 2)}, {v(8 + 4 * q, 2)}, {v(10 + 4 * q, 2)}")
        a("v_add_f32 v8, v8, v9", "v_add_f32 v12, v12, v13", "v_add_f32 v8, v8, v12", f"v_max_f32 v9, v{OA + 8}, v{OA + 24}",
          f"v_add_f32 v10, v{OA + 8}, v{OA + 24}", "v_add_f32 v8, v8, v10",
          f"s_mov_b32 {T[0]}, 0x207", f"v_cmp_class_f32_e64 vcc, v8, {T[0]}",
          f"s_mov_b64 s[60:61], vcc", f"v_cmp_le_f32 vcc, {f2u(2.0 ** 64)}, v9", "s_or_b64 vcc, vcc, s[60:61]")
        if self.force_fallback: a("s_mov_b64 vcc, -1")
        a("s_cbranch_vccnz L_attn_slow", "L_attn_done:")
        for q in range(2): a(f"v_rcp_f32 v{8 + q}, v{OA + 16 * q + 8}")
        for q in range(2):
            o = OA + 16 * q
            for k in range(8): a(f"v_mul_f32 v{o + k}, v{o + k}, v{8 + q}")
            for k in range(4): a(f"v_cvt_pk_bf16_f32 v{192 + 4 * q + k}, v{o + 2 * k}, v{o + 2 * k + 1}")
            for hf in range(2):
                a(f"buffer_store_dwordx2 {v(192 + 4 * q + 2 * hf, 2)}, v227, {sWS}, {P[q]} offen offset:{256 * hf} sc1")
        rd = [f"ds_read_b64_tr_b16 {v(64 + (nt * 16 + p) * 4 + 2 * hf, 2)}, v{28 + nt} offset:{LA + p * 4096 + hf * 512}"
              for p in range(16) for nt in range(2) for hf in range(2)]
        k = self.opt.get("rdpre", 24)
        self.emit(rd[:k])
        self.flag_store(P[2])
        self.stamp("attn_pub")
        self.emit(rd[k:])
        for rt in range(2):
            for nt in range(2):
                a(f"buffer_load_dwordx2 {v(self.vXR + 4 * rt + 2 * nt, 2)}, v62, {sX}, {P[3 + rt]} offen offset:{32 * nt}")

    def w128_read_base(self, b, n, tmp=(64, 65, 66, 67), b1=None):
        a = self.a
        p, q, r, t = ("v%d" % x for x in tmp)
        a(f"v_lshrrev_b32 {p}, 4, {vLANE}", f"v_bfe_u32 {q}, {vLANE}, 2, 2", f"v_and_b32 {r}, 3, {vLANE}",
          f"v_lshl_add_u32 {t}, {p}, 3, {q}", f"v_lshlrev_b32 {t}, 7, {t}", f"v_lshl_add_u32 {t}, {r}, 3, {t}",
          f"v_lshrrev_b32 {q}, 1, {q}", f"v_and_b32 {p}, 1, {p}", f"v_lshl_or_b32 {q}, {p}, 1, {q}",
          f"s_lshl_b32 {T[3]}, {sCH}, 1", f"v_xor_b32 {q}, {T[3]}, {q}", f"v_lshl_add_u32 v{b}, {q}, 5, {t}")
        a(f"v_xor_b32 v{b1 if b1 else b + 1}, 32, v{b}")

    def attn_slow(self):
        a = self.a
        S, OA, NM, QF, KB, VB = self.S, self.OA, self.NM, self.QF, self.KB, self.VB
        a.vm_done = a.vm; a.lg_done = a.lg
        a("L_attn_slow:", "s_nop 15", f"s_lshl_b32 {T[0]}, {sHEAD}, 17", f"s_add_u32 {T[0]}, {T[0]}, {WS_KV}",
          f"v_mov_b32 v8, 0xff800000", f"v_mov_b32 v10, 0xff800000", f"s_mov_b32 {T[1]}, 0")
        def kaddr():
            a(f"s_lshr_b32 {T[2]}, {T[1]}, 1", f"s_lshl_b32 {T[2]}, {T[2]}, 12", f"s_and_b32 {T[3]}, {T[1]}, 1", f"s_lshl_b32 {T[3]}, {T[3]}, 10",
              f"s_add_u32 {T[2]}, {T[2]}, {T[3]}", f"s_add_u32 {T[2]}, {T[2]}, {T[0]}")
        a("L_slow_max:"); kaddr()
        a(f"buffer_load_dwordx4 {v(KB, 4)}, {vL16}, {sWS}, {T[2]} offen sc1"); a.wait(vm=a.vm, force=True)
        for q in range(2):
            a(f"v_mfma_f32_32x32x16_bf16 {v(S + 16 * q, 16)}, {v(KB, 4)}, {v(QF + 4 * q, 4)}, 0")
        for q in range(2):
            b, m = S + 16 * q, 8 + 2 * q
            for k in range(0, 16, 2): a(f"v_max3_f32 v{m}, v{m}, v{b + k}, v{b + k + 1}")
        a(f"s_add_u32 {T[1]}, {T[1]}, 1", f"s_cmp_lt_u32 {T[1]}, 64", "s_cbranch_scc1 L_slow_max")
        a("v_mov_b32 v9, v8", "v_mov_b32 v11, v10")
        for q in range(2): a(f"v_permlane32_swap_b32 v{8 + 2 * q}, v{9 + 2 * q}")
        for q in range(2):
            m = 8 + 2 * q
            a(f"v_max_f32 v{m}, v{m}, v{m + 1}", f"v_sub_f32 v{m}, 0, v{m}")
            for r in range(16): a(f"v_mov_b32 v{NM + 16 * q + r}, v{m}")
        for r in range(OA, OA + 32): a(f"v_mov_b32 v{r}, 0")
        a(f"v_and_b32 v8, 27, {vLANE}", "v_cmp_eq_u32 vcc, 16, v8", f"v_mov_b32 v9, {sONES}", "v_cndmask_b32 v9, v3, v9, vcc")
        for r in range(8): a(f"v_mov_b32 v{VB + r}, v9")
        a(f"v_and_b32 v8, 15, {vLANE}", f"v_lshrrev_b32 v10, 5, {vLANE}", "v_lshl_add_u32 v10, v10, 4, v8", "v_lshlrev_b32 v10, 4, v10",
          f"s_mov_b32 {T[1]}, 0", "s_mov_b32 s60, 0x0000ffff", "s_mov_b32 s61, 0x0000ffff")
        a("L_slow_pv:"); kaddr()
        a(f"buffer_load_dwordx4 {v(KB, 4)}, {vL16}, {sWS}, {T[2]} offen sc1", f"s_add_u32 {T[2]}, {T[2]}, 2048", "s_mov_b64 exec, s[60:61]",
          f"buffer_load_dwordx4 {v(VB, 4)}, v10, {sWS}, {T[2]} offen sc1",
          f"buffer_load_dwordx4 {v(VB + 4, 4)}, v10, {sWS}, {T[2]} offen offset:512 sc1", "s_mov_b64 exec, -1")
        a.wait(vm=a.vm, force=True)
        for q in range(2):
            a(f"v_mfma_f32_32x32x16_bf16 {v(S + 16 * q, 16)}, {v(KB, 4)}, {v(QF + 4 * q, 4)}, {v(NM + 16 * q, 16)}")
        for q in range(2):
            for r in range(16): a(f"v_exp_f32 v{S + 16 * q + r}, v{S + 16 * q + r}")
            for hi in range(2):
                a(f"v_smfmac_f32_32x32x32_bf16 {v(OA + 16 * q, 16)}, {v(VB + 4 * hi, 4)}, {v(S + 16 * q + 8 * hi, 8)}, v{self.vIDX}")
        a(f"s_add_u32 {T[1]}, {T[1]}, 1", f"s_cmp_lt_u32 {T[1]}, 64", "s_nop 15", "s_cbranch_scc1 L_slow_pv", "s_nop 15", "s_branch L_attn_done")

    def rot_table(self, npairs, mul):
        a = self.a
        a(f"s_mul_i32 {sU[4]}, {sCB}, {mul}")

    @staticmethod
    def gpos(p): return LRED + 4096 * p if p < 16 else 4096 * (p - 16)

    def rot_index(self, dst, pos, npairs):
        L = [f"s_add_u32 {dst}, {sU[4]}, {pos}"]
        if npairs & (npairs - 1) == 0: L.append(f"s_and_b32 {dst}, {dst}, {npairs - 1}")
        else: L += [f"s_cmp_ge_u32 {dst}, {npairs}", f"s_cselect_b32 {T[7]}, {npairs}, 0", f"s_sub_u32 {dst}, {dst}, {T[7]}"]
        return L

    def act_dma(self, ws_off, steps, chunks, lds0, gpos=False):
        a = self.a
        a(f"s_lshr_b32 {T[0]}, {sR0}, 4", f"s_add_u32 {T[0]}, {T[0]}, {sW}", f"s_mul_i32 {T[0]}, {T[0]}, {steps * 1024}",
          f"s_add_u32 {sU[0]}, {T[0]}, {ws_off}", f"s_mul_i32 {T[1]}, {sW}, {1024 if gpos else steps * 1024}", f"s_add_u32 {sU[1]}, {T[1]}, {lds0}")
        toks = {}
        pre4 = self.opt.get("pre4", 1)
        if pre4:
            for q in range(4): a(*self.rot_index(P[2 + q], q, steps // 2), f"s_lshl_b32 {P[2 + q]}, {P[2 + q]}, 11", f"s_add_u32 {P[2 + q]}, {P[2 + q]}, {sU[0]}")
        def group(c):
            p0 = sum(chunks[:c]); L = []
            for k in range(chunks[c]):
                p = p0 + k
                it = []
                so = P[2 + (p >> 1)] if pre4 and p < 8 else T[2]
                if k % 2 == 0:
                    if so == T[2]:
                        it += self.rot_index(T[2], p >> 1, steps // 2)
                        it += [f"s_lshl_b32 {T[2]}, {T[2]}, 11", f"s_add_u32 {T[2]}, {T[2]}, {sU[0]}"]
                    if not gpos: it.append(f"s_add_u32 m0, {sU[1]}, {p * 1024}")
                if gpos: it.append(f"s_add_u32 m0, {sU[1]}, {self.gpos(p) - (k % 2) * 1024}")
                it.append(f"buffer_load_dwordx4 {vL16}, {sWS}, {so} offen offset:{(k % 2) * 1024} sc1 lds")
                L.append(it)
            L[-1].append(lambda: toks.__setitem__(c, a.vtok()))
            return L
        return group, toks

    def cluster_flag_off(self, dst, base, own, shift=8):
        a = self.a
        a(f"s_lshl_b32 {dst}, {sCLU}, {shift}", f"s_add_u32 {dst}, {dst}, {base}")
        if own: a(f"s_lshl_b32 {T[7]}, {sCB}, 3", f"s_add_u32 {dst}, {dst}, {T[7]}")

    def stats_publish(self, s, base):
        a = self.a
        a(f"v_permlane32_swap_b32 v{s}, v{s + 1}", f"v_permlane32_swap_b32 v{s + 2}, v{s + 3}",
          f"v_add_f32 v{s}, v{s}, v{s + 1}", f"v_add_f32 v{s + 2}, v{s + 2}, v{s + 3}",
          f"v_permlane16_swap_b32 v{s}, v{s + 2}", f"v_add_f32 v{s}, v{s}, v{s + 2}")
        a(f"s_lshl_b32 {T[4]}, {sCLU}, 13", f"s_add_u32 {T[4]}, {T[4]}, {base}", f"s_lshl_b32 {T[5]}, {sRH}, 7", f"s_add_u32 {T[4]}, {T[4]}, {T[5]}",
          f"s_lshl_b32 {T[5]}, {sCB}, 1", f"s_add_u32 {T[5]}, {T[5]}, {sCH}", f"s_lshl_b32 {T[5]}, {T[5]}, 9", f"s_add_u32 {T[4]}, {T[4]}, {T[5]}",
          f"buffer_store_dword v{s}, v61, {sWS}, {T[4]} offen sc1")

    def stats_load(self, base, r):
        a = self.a
        a(f"s_lshl_b32 {T[4]}, {sCLU}, 13", f"s_add_u32 {T[4]}, {T[4]}, {base}", f"s_lshl_b32 {T[5]}, {sRH}, 7", f"s_add_u32 {T[4]}, {T[4]}, {T[5]}",
          f"s_add_u32 {T[5]}, {T[4]}, 4096")
        for p in range(16):
            a(f"buffer_load_dword v{r + p}, v61, {sWS}, {T[4] if p < 8 else T[5]} offen offset:{(p % 8) * 512} sc1")
        return a.vtok()

    SGR = 64
    def stats_publish_tagged(self, s, base):
        a = self.a
        a(f"v_permlane32_swap_b32 v{s}, v{s + 1}", f"v_permlane32_swap_b32 v{s + 2}, v{s + 3}",
          f"v_add_f32 v{s}, v{s}, v{s + 1}", f"v_add_f32 v{s + 2}, v{s + 2}, v{s + 3}",
          f"v_permlane16_swap_b32 v{s}, v{s + 2}", f"v_add_f32 v{s}, v{s}, v{s + 2}", f"v_mov_b32 v{s + 1}, v{s}",
          f"v_mov_b32 v{s + 2}, v4", f"v_mov_b32 v{s + 3}, v5", f"v_permlane32_swap_b32 v{s}, v{s + 1}")
        a(f"s_lshl_b32 {T[4]}, {sCLU}, 14", f"s_add_u32 {T[4]}, {T[4]}, {base}", f"s_lshl_b32 {T[5]}, {sRH}, 13", f"s_add_u32 {T[4]}, {T[4]}, {T[5]}",
          f"s_lshl_b32 {T[5]}, {sCB}, 1", f"s_add_u32 {T[5]}, {T[5]}, {sCH}", f"s_lshl_b32 {T[5]}, {T[5]}, 9", f"s_add_u32 {T[4]}, {T[4]}, {T[5]}",
          "s_mov_b32 exec_hi, 0", f"buffer_store_dwordx4 {v(s, 4)}, {vL16}, {sWS}, {T[4]} offen sc1", "s_mov_b32 exec_hi, -1")

    def stats_tagged_loads(self, base, r):
        R = r if isinstance(r, (list, tuple)) else [r + 4 * p for p in range(8)]
        L = [[f"buffer_load_dwordx4 {v(R[p], 4)}, v61, {sWS}, {sU[3]} offen offset:{512 * p} sc1"] for p in range(8)]
        L[0] = [f"s_lshl_b32 {sU[3]}, {sCLU}, 14", f"s_add_u32 {sU[3]}, {sU[3]}, {base}", f"s_lshl_b32 {T[5]}, {sRH}, 13", f"s_add_u32 {sU[3]}, {sU[3]}, {T[5]}",
                f"v_and_b32 v61, 31, {vLANE}", "v_lshlrev_b32 v61, 4, v61", f"v_lshrrev_b32 v54, 5, {vLANE}", "v_lshl_add_u32 v61, v54, 12, v61"] + L[0]
        return L

    def stats_tagged_finish(self, base, r, inv_n, d):
        a = self.a
        L, E = a.label("st_retry"), a.label("st_ok")
        a(f"s_mov_b32 {sPOLL}, 0x40000", f"{L}:")
        a.wait(vm=a.vm, force=True)
        a(f"v_cmp_ne_u64 s[60:61], {sTAG}, {v(r + 2, 2)}")
        for p in range(1, 8): a(f"v_cmp_ne_u64 vcc, {sTAG}, {v(r + 4 * p + 2, 2)}", "s_or_b64 s[60:61], s[60:61], vcc")
        a("s_cmp_eq_u64 s[60:61], 0", f"s_cbranch_scc1 {E}", f"s_sub_u32 {sPOLL}, {sPOLL}, 1", f"s_cbranch_scc1 {E}")
        a.cond_begin()
        for it in self.stats_tagged_loads(base, r)[0][-1:]: a(it)
        for it in self.stats_tagged_loads(base, r)[1:]: self.emit(it)
        a.cond_end()
        a(f"s_branch {L}", f"{E}:")
        a.vm_done = a.vm
        self.stats_sum(r, inv_n, d)

    def stats_sum(self, r, inv_n, d):
        a = self.a
        R = r if isinstance(r, (list, tuple)) else [r + 4 * p for p in range(8)]
        for st in (4, 2, 1):
            for k in range(st): a(f"v_pk_add_f32 {v(R[k], 2)}, {v(R[k], 2)}, {v(R[k + st], 2)}")
        r = R[0]
        a(f"v_mov_b32 v{r + 2}, v{r}", f"v_mov_b32 v{r + 3}, v{r + 1}",
          f"v_permlane32_swap_b32 v{r}, v{r + 2}", f"v_permlane32_swap_b32 v{r + 1}, v{r + 3}",
          f"v_pk_add_f32 {v(r, 2)}, {v(r, 2)}, {v(r + 2, 2)}")
        self.ln_finish([(r, r + 1, d)], inv_n)
        a(f"v_mov_b32 v{d + 2}, v{d}", f"v_mov_b32 v{d + 3}, v{d + 1}",
          f"v_permlane16_swap_b32 v{d}, v{d + 2}", f"v_permlane16_swap_b32 v{d + 1}, v{d + 3}")

    def stats_sum_items(self, R, inv_n):
        L = []
        for st in (4, 2, 1):
            for k in range(st): L += [f"v_add_f32 v{R[k] + e}, v{R[k] + e}, v{R[k + st] + e}" for e in range(2)]
        r, t = R[0], R[1]
        L += [f"v_mov_b32 v{t}, v{r}", f"v_mov_b32 v{t + 1}, v{r + 1}", f"v_permlane32_swap_b32 v{r}, v{t}", f"v_permlane32_swap_b32 v{r + 1}, v{t + 1}",
              f"v_add_f32 v{t}, v{r}, v{t}", f"v_add_f32 v{t + 1}, v{r + 1}, v{t + 1}",
              f"v_mul_f32 v{t}, {f2u(inv_n)}, v{t}", f"v_mul_f32 v{t + 1}, {f2u(inv_n)}, v{t + 1}", f"v_fma_f32 v{t + 1}, -v{t}, v{t}, v{t + 1}",
              f"v_max_f32 v{t + 1}, 0, v{t + 1}", f"v_add_f32 v{t + 1}, {f2u(1e-5)}, v{t + 1}", f"v_rsq_f32 v{r}, v{t + 1}", f"v_mul_f32_e64 v{r + 1}, -v{t}, v{r}",
              f"v_mov_b32 v{r + 2}, v{r}", f"v_mov_b32 v{r + 3}, v{r + 1}", f"v_permlane16_swap_b32 v{r}, v{r + 2}", f"v_permlane16_swap_b32 v{r + 1}, v{r + 3}"]
        return L

    STR2 = [216, 220, 224, 228, 232, 236, 52, 252]
    STR = 216
    def stats_load_items(self, base, r):
        L = []
        for p in range(16):
            it = []
            if p == 0:
                it += [f"s_lshl_b32 {T[4]}, {sCLU}, 13", f"s_add_u32 {T[4]}, {T[4]}, {base}", f"s_lshl_b32 {T[5]}, {sRH}, 7",
                       f"s_add_u32 {T[4]}, {T[4]}, {T[5]}", f"s_add_u32 {T[5]}, {T[4]}, 4096"]
            it.append(f"buffer_load_dword v{r + p}, v61, {sWS}, {T[4] if p < 8 else T[5]} offen offset:{(p % 8) * 512} sc1")
            L.append(it)
        return L

    def stats_finish(self, r, inv_n, d):
        a = self.a
        for st in (8, 4, 2):
            for k in range(0, st, 2): a(f"v_pk_add_f32 {v(r + k, 2)}, {v(r + k, 2)}, {v(r + st + k, 2)}")
        a(f"v_add_f32 v{r}, v{r}, v{r + 1}", f"v_mov_b32 v{r + 1}, v{r}", f"v_permlane32_swap_b32 v{r}, v{r + 1}")
        self.ln_finish([(r, r + 1, d)], inv_n)
        a(f"v_mov_b32 v{d + 2}, v{d}", f"v_mov_b32 v{d + 3}, v{d + 1}",
          f"v_permlane16_swap_b32 v{d}, v{d + 2}", f"v_permlane16_swap_b32 v{d + 1}, v{d + 3}")

    def win_addresses(self):
        a = self.a
        for i in range(3):
            a(f"v_add_u32 v16, {64 * i}, {vLANE}", "v_mul_u32_u24 v17, 171, v16", "v_lshrrev_b32 v17, 11, v17",
              "v_mul_u32_u24 v18, 12, v17", "v_sub_u32 v18, v16, v18", "v_bfe_u32 v19, v17, 3, 1", "v_lshlrev_b32 v19, 1, v19",
              "v_xor_b32 v18, v18, v19", "v_mul_u32_u24 v17, 2752, v17", "v_lshl_add_u32 v17, v18, 4, v17",
              f"v_add_u32 v{56 + i}, {-1024 * i}, v17")
        a(f"v_lshrrev_b32 v16, 4, {vLANE}", f"v_bfe_u32 v17, {vLANE}, 2, 2", f"v_and_b32 v18, 3, {vLANE}",
          "v_lshl_add_u32 v19, v16, 3, v17", "v_mul_u32_u24 v19, 192, v19", "v_lshl_add_u32 v19, v18, 3, v19",
          "v_and_b32 v17, 1, v16", f"v_xor_b32 v17, {sCH}, v17", "v_lshl_add_u32 v59, v17, 5, v19", "v_add_u32 v60, 49152, v59",
          f"v_and_b32 v17, 15, {vLANE}", "v_lshlrev_b32 v17, 2, v17", "v_and_b32 v18, 1, v16", "v_lshl_add_u32 v17, v18, 6, v17",
          "v_lshrrev_b32 v16, 1, v16", "v_lshl_add_u32 v61, v16, 8, v17")

    def win_dma(self, half, g0, per_wave, regs=None, wave=sW):
        r5, r6, r2, r7 = regs or (sU[5], sU[6], sU[2], sU[7])
        L = []
        for k in range(per_wave):
            for i in range(3):
                it = []
                if k == 0 and i == 0:
                    it += [f"s_lshl_b32 {r5}, {sT0}, 5", f"s_mul_i32 {r6}, {wave}, {per_wave}", f"s_lshl_b32 {r2}, {sU[4]}, 2",
                           f"s_add_u32 {r2}, {r2}, {r6}", f"s_mul_i32 {r6}, {r6}, 3072"]
                if i == 0:
                    it += [f"s_add_u32 {r7}, {r2}, {g0 + k}", f"s_and_b32 {r7}, {r7}, 31", f"s_mul_i32 {r7}, {r7}, {16 * 2752}",
                           f"s_add_u32 {r7}, {r7}, {r5}"]
                    if half: it.append(f"s_add_u32 {r7}, {r7}, 1376")
                    it.append(f"s_add_u32 m0, {r6}, {(g0 + k) * 3072}")
                it.append(f"buffer_load_dwordx4 v{56 + i}, {sWIN}, {r7} offen offset:{1024 * i} lds")
                L.append(it)
        return L

    def kloop(self, n, reads, mfmas, before={}, late={}, head=None, per=2, extra=None):
        a = self.a
        tok = {}
        for s in range(min(2, n)):
            if s in (head or {}): head[s]()
            self.emit(reads(s)); tok[s] = a.ltok()
        self.kl = getattr(self, "kl", -1) + 1
        for s in range(n):
            a.wait(lg=tok[s])
            if s in before: before[s]()
            if s % 4 == 0: self.stamp(f"k{self.kl}s{s}")
            ms = mfmas(s)
            fill = list(reads(s + 2)) + [lambda s=s: tok.__setitem__(s + 2, a.ltok())] if s + 2 < n else []
            if extra: fill += extra(s)
            lt = list(late.get(s, []))
            k = len(ms) - len(lt)
            assert k >= 1, (s, len(ms), len(lt))
            interleave(a, ms[:k], fill, per=per)
            for m, it in zip(ms[k:], lt):
                a(m); self.emit(it)

    def emit_all(self, items):
        for it in items: self.emit(it)

    def emit(self, items):
        for x in items: x() if callable(x) else self.a(x)

    def phase_wo(self):
        a = self.a
        ACC = 192
        a(f"s_mov_b32 {sU[4]}, {sCB if not self.opt.get('noarot') else 0}")
        fine = self.opt.get("fine", 1)
        group, toks = self.act_dma(WS_O, 16, [2, 2, 4, 4, 4] if fine else [4, 4, 4, 4], LB)
        self.cluster_flag_off(T[3], WS_F2, False, 12)
        a(f"s_lshl_b32 {T[4]}, {sRH}, 15", f"s_add_u32 {T[4]}, {T[4]}, {LB}", f"v_add_u32 v30, {T[4]}, {vL16}")
        a.wait(lg=a.lg)
        self.barrier()
        n2 = 3
        Lp, Le = a.label("s2poll"), a.label("s2end")
        done = a.vm_done
        a(f"s_cmp_eq_u32 {sW}, 0", f"s_cbranch_scc1 {Lp}", f"s_sub_u32 {T[5]}, {sW}, 1")
        a.cond_begin()
        ng = self.opt.get("w2s2", 4)
        self.emit_all(self.win_dma(1, 0, ng, wave=T[5]))
        a(f"s_branch {Le}", f"{Lp}:")
        self.poll(vFP32, T[3], 52)
        a.cond_end()
        a(f"{Le}:")
        a.vm_done = done
        self.barrier()
        self.stamp("s2")
        for c in range(2 + fine): self.emit_all(group(c))
        def buf(s, rt): return (208 + (s % 4) * 8 + rt * 4)
        def reads(s): return [f"ds_read_b128 {v(buf(s, rt), 4)}, v30 offset:{(rt * 16 + s) * 1024}" for rt in range(2)]
        def mfmas(s):
            return [mfma16(ACC + (rt * 2 + nt) * 4, v(64 + (nt * 16 + s) * 4, 4), v(buf(s, rt), 4), v(32 + (rt * 2 + nt) * 4, 4) if s == 0 else None) for rt in range(2) for nt in range(2)]
        def w(c):
            def f():
                a.wait(vm=toks[c]); self.barrier()
            return f
        def head0():
            a.wait(vm=toks[0], lg=a.lg)
            for i in range(8): a(f"v_lshlrev_b32 v{32 + 2 * i}, 16, v{self.vXR + i}", f"v_and_b32 v{33 + 2 * i}, {sHIMASK}, v{self.vXR + i}")
            self.barrier()
        g2, g3 = group(2 + fine), group(3 + fine)
        pw = (28 - 3 * ng + 3) // 4
        w2 = self.win_dma(1, 28 - 4 * pw, pw)
        late = {0: g2[:2], 1: g2[2:], 2: g3[:2], 3: g3[2:]}
        for i in range(min(len(w2), self.opt.get("w2in", 12))): late[self.opt.get("w2at", 3) + i] = late.get(self.opt.get("w2at", 3) + i, []) + [w2.pop(0)]
        late[15] = late.get(15, []) + [[f"s_lshr_b32 {T[0]}, {sR0}, 4", f"s_lshl_b32 {T[1]}, {sRH}, 1", f"s_add_u32 {T[0]}, {T[0]}, {T[1]}", f"s_lshl_b32 {T[0]}, {T[0]}, 14"],
                                       [f"s_lshl_b32 {T[1]}, {sCB}, 1", f"s_add_u32 {T[1]}, {T[1]}, {sCH}", f"s_lshl_b32 {T[1]}, {T[1]}, 10", f"s_add_u32 {T[0]}, {T[0]}, {T[1]}"],
                                       [f"s_add_u32 {T[0]}, {T[0]}, {WS_H}", f"s_add_u32 {T[1]}, {T[0]}, 0x4000"]]
        self.kloop(16, reads, mfmas, {0: w(1), 2: w(2), 6: w(3), 10: w(4)} if fine else {2: w(1), 6: w(2), 10: w(3)}, late, {0: head0}, per=1)
        self.w2rest = w2
        self.stamp("wo_gemm")
        for i in range(4):
            for k in range(2): a(f"v_cvt_pk_bf16_f32 v{vH + 2 * i + k}, v{ACC + 4 * i + 2 * k}, v{ACC + 4 * i + 2 * k + 1}")
        for rt in range(2):
            for nt in range(2):
                a(f"buffer_store_dwordx2 {v(vH + 4 * rt + 2 * nt, 2)}, {vPAT}, {sWS}, {T[rt]} offen offset:{512 * nt} sc1")
        for k in range(4):
            for rt in range(2):
                h = f"v{vH + 4 * rt + k}"
                a(f"v_dot2_f32_bf16 v{32 + 2 * rt}, {h}, {sONES}, {'0' if k == 0 else 'v%d' % (32 + 2 * rt)}",
                  f"v_dot2_f32_bf16 v{33 + 2 * rt}, {h}, {h}, {'0' if k == 0 else 'v%d' % (33 + 2 * rt)}")
        self.stats_publish_tagged(32, WS_ST3)
        self.cluster_flag_off(T[0], WS_F3, True)
        self.flag_store_wg(T[0])
        self.stamp("wo_pub")

    HF, ACC2, ACC1, WB, CS = 64, 192, 216, 28, 240

    def win_reads(self, s, read_h):
        L = []
        base = "v59" if s < 8 else "v60"
        for m in range(3):
            for hf in range(2):
                L.append(f"ds_read_b64_tr_b16 {v(self.wbuf(s) + 4 * m + 2 * hf, 2)}, {base} offset:{(s & 7) * 6144 + hf * 768 + m * 64}")
            if m == 0 and read_h:
                L += [f"ds_read_b128 {v(self.HF + (rt * 16 + s) * 4, 4)}, v62 offset:{(rt * 16 + s) * 1024}" for rt in range(2)]
        return L

    def wbuf(self, s): return (28, 40, 16)[s % 3]

    def win_gemm(self, acc, before, head, read_h, late={}, cs=False, extra=None):
        HF = self.HF
        def mfmas(s):
            L = []
            for m in range(3):
                L += [mfma16(acc + (rt * 3 + m) * 4, v(self.wbuf(s) + 4 * m, 4), v(HF + (rt * 16 + s) * 4, 4), "0" if s == 0 else None) for rt in range(2)]
                if cs: L.append(mfma16(self.CS + 4 * m, v(self.wbuf(s) + 4 * m, 4), "v[252:255]", "0" if s == 0 else None))
            return L
        self.kloop(16, lambda s: self.win_reads(s, read_h), mfmas, before, late, head, per=3 if extra else 2, extra=extra)

    def colsum_pass(self, late={}, before={}):
        def mfmas(s): return [mfma16(self.CS + 4 * m, v(self.wbuf(s) + 4 * m, 4), "v[252:255]", "0" if s == 0 else None) for m in range(3)]
        self.kloop(16, lambda s: self.win_reads(s, False), mfmas, before, late, per=3)

    def gelu_block(self, acc, st, tiles):
        a = self.a
        CS = self.CS
        K1 = -2.0 * 1.4426950408889634 * 0.7978845608028654
        K2 = K1 * 0.044715
        a(f"s_mov_b32 s60, {f2u(K2)}", f"s_mov_b32 s61, {f2u(K2)}", f"v_mov_b32 v52, {f2u(K1)}", f"v_mov_b32 v53, {f2u(K1)}")
        for i in range(0, len(tiles), 2):
            prs = [(acc + (rt * 3 + m) * 4 + 2 * k, CS + 4 * m + 2 * k, st + 2 * rt) for rt, m in tiles[i:i + 2] for k in range(2)]
            tm = [40, 42, 44, 46]
            for (x, c, r), t in zip(prs, tm): a(f"v_pk_mul_f32 {v(t, 2)}, {v(c, 2)}, {v(r, 2)} op_sel:[0,1] op_sel_hi:[1,1]")
            for (x, c, r), t in zip(prs, tm): a(f"v_pk_fma_f32 {v(x, 2)}, {v(x, 2)}, {v(r, 2)}, {v(t, 2)} op_sel:[0,0,0] op_sel_hi:[1,0,1]")
            for (x, c, r), t in zip(prs, tm): a(f"v_pk_mul_f32 {v(t, 2)}, {v(x, 2)}, {v(x, 2)}")
            for (x, c, r), t in zip(prs, tm): a(f"v_pk_fma_f32 {v(t, 2)}, {v(t, 2)}, s[60:61], v[52:53]")
            for (x, c, r), t in zip(prs, tm): a(f"v_pk_mul_f32 {v(t, 2)}, {v(t, 2)}, {v(x, 2)}")
            for k in range(8): a(f"v_exp_f32 v{40 + k}, v{40 + k}")
            for (x, c, r), t in zip(prs, tm): a(f"v_pk_add_f32 {v(t, 2)}, {v(t, 2)}, v[32:33]")
            for k in range(8): a(f"v_rcp_f32 v{40 + k}, v{40 + k}")
            for (x, c, r), t in zip(prs, tm): a(f"v_pk_mul_f32 {v(x, 2)}, {v(x, 2)}, {v(t, 2)}")

    def phase_win(self):
        a = self.a
        HF, ACC2, ACC1, CS = self.HF, self.ACC2, self.ACC1, self.CS
        self.emit_all(self.w2rest)
        for r in range(252, 256): a(f"v_mov_b32 v{r}, {sONES}")
        a(f"s_lshl_b32 {T[4]}, {sRH}, 15", f"s_add_u32 {T[4]}, {T[4]}, {LB}", f"v_add_u32 v62, {T[4]}, {vL16}")
        fine = self.opt.get("fine", 1)
        group, toks = self.act_dma(WS_H, 16, [2, 2, 4, 4, 4] if fine else [4, 4, 4, 4], LB)
        self.cluster_flag_off(T[3], WS_F3, False)
        if self.w2rest:
            a.wait(vm=a.vm)
            self.barrier()
        ptok = [-1]
        self.colsum_pass({self.opt.get("p3at", 12): [self.poll_early(vFP8, T[3], 52) + [lambda: ptok.__setitem__(0, a.vtok())]]})
        self.stamp("cs2")
        self.poll_late(vFP8, T[3], 52, ptok[0])
        self.stamp("s3")
        for c in range(2 + fine): self.emit_all(group(c))
        def w(c):
            def f():
                a.wait(vm=toks[c]); self.barrier()
            return f
        g2, g3 = group(2 + fine), group(3 + fine)
        stl = self.stats_tagged_loads(WS_ST3, self.STR2)
        late = {0: g2[:2], 1: g2[2:], 2: g3[:2], 3: g3[2:]}
        for i in range(4): late[4 + i] = stl[2 * i:2 * i + 2]
        w1a = self.win_dma(0, 0, 3)
        for i in range(8): late[8 + i] = w1a[i:i + 1] if i < 7 else w1a[7:]
        stk = [-1]
        late[7][-1].append(lambda: stk.__setitem__(0, a.vtok()))
        ss = self.stats_sum_items(self.STR2, 1.0 / 512)
        def extra(s):
            if s < 12: return []
            n = (len(ss) + 15 - s) // (16 - s)
            return ([lambda: a.wait(vm=stk[0])] if s == 12 else []) + [ss.pop(0) for _ in range(n)]
        self.win_gemm(ACC2, {0: w(1), 2: w(2), 6: w(3), 10: w(4)} if fine else {2: w(1), 6: w(2), 10: w(3)}, {0: w(0)}, True, late, extra=extra)
        self.barrier()
        self.stamp("z2_gemm")
        w1tok = [a.vtok(), -1, -1]
        wb, wc = self.win_dma(0, 12, 3), self.win_dma(0, 24, 2)
        wb[-1].append(lambda: w1tok.__setitem__(1, a.vtok())); wc[-1].append(lambda: w1tok.__setitem__(2, a.vtok()))
        rest = wb + wc
        k = self.opt.get("w1pre", 9)
        self.emit_all(rest[:k]); rest = rest[k:]
        a("v_mov_b32 v34, v216", "v_mov_b32 v35, v217", "v_mov_b32 v36, v218", "v_mov_b32 v37, v219")
        for r in range(252, 256): a(f"v_mov_b32 v{r}, {sONES}")
        a("v_mov_b32 v32, 1.0", "v_mov_b32 v33, 1.0")
        T5 = [(0, 0), (1, 0), (0, 1), (1, 1)]
        self.gelu_block(ACC2, 34, T5 + [(0, 2), (1, 2)])
        for rt in range(2):
            x = ACC2 + rt * 12
            a(f"v_pk_add_f32 {v(40 + 4 * rt, 2)}, {v(x, 2)}, {v(x + 2, 2)}", f"v_pk_mul_f32 {v(42 + 4 * rt, 2)}, {v(x, 2)}, {v(x, 2)}")
            a(f"v_pk_fma_f32 {v(42 + 4 * rt, 2)}, {v(x + 2, 2)}, {v(x + 2, 2)}, {v(42 + 4 * rt, 2)}")
            for k in (4, 6):
                a(f"v_pk_add_f32 {v(40 + 4 * rt, 2)}, {v(40 + 4 * rt, 2)}, {v(x + k, 2)}",
                  f"v_pk_fma_f32 {v(42 + 4 * rt, 2)}, {v(x + k, 2)}, {v(x + k, 2)}, {v(42 + 4 * rt, 2)}")
        a(f"s_and_b32 {sU[8]}, {sCNT5}, {sCH}", f"s_cmp_lg_u32 {sU[8]}, 0", "s_cbranch_scc1 L_skip_st")
        for rt in range(2):
            x = ACC2 + rt * 12
            for k in (8, 10):
                a(f"v_pk_add_f32 {v(40 + 4 * rt, 2)}, {v(40 + 4 * rt, 2)}, {v(x + k, 2)}",
                  f"v_pk_fma_f32 {v(42 + 4 * rt, 2)}, {v(x + k, 2)}, {v(x + k, 2)}, {v(42 + 4 * rt, 2)}")
        a("L_skip_st:", "v_add_f32 v48, v40, v41", "v_add_f32 v49, v42, v43", "v_add_f32 v50, v44, v45", "v_add_f32 v51, v46, v47")
        self.stats_publish_tagged(48, WS_ST4)
        self.stamp("z2_pub")
        a("v_mov_b32 v52, v34", "v_mov_b32 v53, v35", "v_mov_b32 v62, v36", "v_mov_b32 v63, v37")
        def w1(c):
            def f():
                a.wait(vm=w1tok[c]); self.barrier()
            return f
        a(f"v_and_b32 v54, 15, {vLANE}", f"v_lshrrev_b32 v55, 4, {vLANE}", "v_lshlrev_b32 v55, 2, v55", "v_sub_u32 v54, v54, v55",
          "v_mov_b32 v55, 0x3f80", "v_mov_b32 v250, 0x3f800000")
        for k, (r, c) in enumerate(((248, 55), (248, 250), (249, 55), (249, 250))):
            a(f"v_cmp_eq_u32 vcc, {k}, v54")
            a(f"v_cndmask_b32 v{r}, v{3 if k & 1 == 0 else r}, v{c}, vcc")
        a(f"s_add_u32 {T[0]}, {sT0}, {sCH}", f"s_lshl_b32 {T[0]}, {T[0]}, 16", f"s_lshl_b32 {T[1]}, {sR0}, 5", f"s_add_u32 {T[0]}, {T[0]}, {T[1]}",
          f"s_lshl_b32 {T[1]}, {sRH}, 10", f"s_add_u32 {T[0]}, {T[0]}, {T[1]}", f"s_add_u32 {sU[9]}, {T[0]}, {WS_Z}",
          f"s_add_u32 {sU[10]}, {sU[9]}, 0x20000", f"s_add_u32 {sU[11]}, {sU[9]}, 0x40000",
          f"s_lshl_b32 {P[0]}, {sRB}, 3", f"s_add_u32 {P[0]}, {P[0]}, {sCB}", f"s_lshl_b32 {P[0]}, {P[0]}, 8",
          f"s_lshl_b32 {T[1]}, {sJ}, 3", f"s_add_u32 {P[0]}, {P[0]}, {T[1]}", f"s_add_u32 {P[0]}, {P[0]}, {WS_F5}")
        late = {i: rest[2 * i:2 * i + 2] for i in range((len(rest) + 1) // 2)}
        sl = self.stats_tagged_loads(WS_ST4, self.SGR)
        for i in range(4): late[self.opt.get("s4at", 9) + i] = sl[2 * i:2 * i + 2]
        csin = self.opt.get("csin", 0)
        self.win_gemm(ACC1, {4: w1(1), 10: w1(2)}, {0: w1(0)}, False, late, cs=csin)
        self.stamp("z1_gemm")
        self.stats_tagged_finish(WS_ST4, self.SGR, 1.0 / 688, 20)
        self.stamp("s4")
        def znorm(m):
            for rt in range(2):
                x = ACC2 + (rt * 3 + m) * 4
                for k in range(2):
                    a(f"v_pk_fma_f32 {v(x + 2 * k, 2)}, {v(x + 2 * k, 2)}, {v(20 + 2 * rt, 2)}, {v(20 + 2 * rt, 2)} op_sel:[0,0,1] op_sel_hi:[1,0,1]")
            for rt in range(2):
                x = ACC2 + (rt * 3 + m) * 4
                for k in range(2): a(f"v_cvt_pk_bf16_f32 v{x + k}, v{x + 2 * k}, v{x + 2 * k + 1}")
            for rt in range(2):
                x = ACC2 + (rt * 3 + m) * 4
                a(f"v_mfma_f32_16x16x16_bf16 {v(28 + 8 * (m & 1) + 4 * rt, 4)}, {v(x, 2)}, v[248:249], 0")
        def zstore(m):
            for rt in range(2):
                d = 28 + 8 * (m & 1) + 4 * rt
                a(f"v_cvt_pk_bf16_f32 v{d}, v{d}, v{d + 1}", f"v_cvt_pk_bf16_f32 v{d + 1}, v{d + 2}, v{d + 3}",
                  f"buffer_store_dwordx2 {v(d, 2)}, {vPAT}, {sWS}, {sU[9 + m]} offen offset:{512 * rt} sc1")
        znorm(0); znorm(1); zstore(0)
        a(f"s_cmp_lg_u32 {sU[8]}, 0", "s_cbranch_scc1 L_skip_z")
        a.cond_begin(); znorm(2); a("s_nop 7"); zstore(2); a.cond_end()
        a("L_skip_z:", "s_nop 7")
        zstore(1)
        a("v_mov_b32 v56, v62", "v_mov_b32 v57, v63")
        self.w128_addresses(self.vWDo, 64)
        a(f"s_lshl_b32 {T[0]}, {sRH}, 5", f"s_add_u32 {T[0]}, {T[0]}, {sR0}", f"s_lshl_b32 {sU[6]}, {T[0]}, 1",
          f"v_and_b32 v20, 15, {vLANE}", "v_lshlrev_b32 v20, 1, v20")
        self.wsp_setup()
        self.flag_store_wg(P[0])
        self.stamp("z2n_pub")
        a(f"buffer_load_ushort v62, v20, {sBSP}, {sU[6]} offen", f"buffer_load_ushort v63, v20, {sBSP}, {sU[6]} offen offset:32")
        eg = self.opt.get("earlyg", 1)
        def src(vals):
            lit = sum(x << (8 * i) for i, x in enumerate(vals))
            return [f"s_lshl_b32 {T[4]}, {sW}, 3", f"s_lshr_b32 {T[4]}, {lit}, {T[4]}", f"s_and_b32 {T[4]}, {T[4]}, 0xff", f"s_lshl_b32 {T[4]}, {T[4]}, 15", f"s_mov_b32 m0, {T[5]}"]
        wo1 = []
        for g in range(4):
            pre, ins = self.w128_dma(self.vWDo, sWOUT, T[1], T[5], 22)
            if eg: pre = src([GPERM[4 * w + g] for w in range(4)])
            pre = [f"s_lshl_b32 {T[1]}, {sW}, 2", f"s_add_u32 {T[1]}, {T[1]}, {g}", f"s_lshl_b32 {T[5]}, {T[1]}, 12", f"s_add_u32 {T[5]}, {T[5]}, {LB}"] + pre
            wo1 += [pre + [ins[0]], [ins[1]], [ins[2]], [ins[3]]]
        wo2 = []
        for g in range(2):
            pre, ins = self.w128_dma(self.vWDo, sWOUT, T[1], T[5], 22)
            if eg: pre = src([GPERM[16 + w + (4 if g and w < 2 else 0)] for w in range(4)])
            p0 = [f"s_add_u32 {T[1]}, {sW}, 16"] if g == 0 else [f"s_cmp_lt_u32 {sW}, 2", f"s_cselect_b32 {T[5]}, 20, 16", f"s_add_u32 {T[1]}, {sW}, {T[5]}"]
            pre = p0 + [f"s_sub_u32 {T[5]}, {T[1]}, 16", f"s_lshl_b32 {T[5]}, {T[5]}, 12"] + pre
            wo2 += [pre + [ins[0]], [ins[1]], [ins[2]], [ins[3]]]
        late = {i: wo1[2 * i:2 * i + 2] for i in range(8)}
        for i in range(4): late[8 + i] = wo2[2 * i:2 * i + 2]
        ptok = [-1]
        late[13] = [self.poll_early(vFP8, T[3], 58) + [lambda: ptok.__setitem__(0, a.vtok())]]
        if csin:
            self.emit_all(wo1 + wo2)
            self.emit(late[13][0])
        else:
            self.colsum_pass(late, {6: self.barrier})
        self.p5tok = ptok[0]
        self.stamp("z1_epi")

    vWDo = 72

    def gelu_items(self, m):
        K1 = -2.0 * 1.4426950408889634 * 0.7978845608028654
        K2 = K1 * 0.044715
        L = []
        if m == 0: L += [f"s_mov_b32 {T[4]}, {f2u(K2)}", f"v_mov_b32 v58, {f2u(K1)}"]
        X = [self.ACC1 + (rt * 3 + m) * 4 + k for rt in range(2) for k in range(4)]
        C = [self.CS + 4 * m + k for rt in range(2) for k in range(4)]
        R = [52 + 4 * rt for rt in range(2) for k in range(4)]
        assert self.opt.get("wd", 7) <= 8
        t = [192 + k for k in range(8)]
        for i in range(8): L.append(f"v_mul_f32 v{t[i]}, v{C[i]}, v{R[i] + 1}")
        for i in range(8): L.append(f"v_fma_f32 v{X[i]}, v{X[i]}, v{R[i]}, v{t[i]}")
        for i in range(8): L.append(f"v_mul_f32 v{t[i]}, v{X[i]}, v{X[i]}")
        for i in range(8): L.append(f"v_fma_f32 v{t[i]}, v{t[i]}, {T[4]}, v58")
        for i in range(8): L.append(f"v_mul_f32 v{t[i]}, v{t[i]}, v{X[i]}")
        for i in range(8): L.append(f"v_exp_f32 v{t[i]}, v{t[i]}")
        for i in range(8): L.append(f"v_add_f32 v{t[i]}, 1.0, v{t[i]}")
        for i in range(8): L.append(f"v_rcp_f32 v{t[i]}, v{t[i]}")
        for i in range(8): L.append(f"v_mul_f32 v{X[i]}, v{X[i]}, v{t[i]}")
        for rt in range(2):
            for k in range(2): L.append(f"v_cvt_pk_bf16_f32 v{vZ1 + (rt * 3 + m) * 2 + k}, v{X[4 * rt + 2 * k]}, v{X[4 * rt + 2 * k + 1]}")
        return L

    def wsp_setup(self):
        a = self.a
        a(f"s_lshl_b32 {T[3]}, {sW}, 3", f"s_add_u32 {T[3]}, {T[3]}, {sCB}", f"s_lshl_b32 {T[3]}, {T[3]}, 8", f"s_add_u32 {T[3]}, {T[3]}, {WS_F5}",
          f"s_lshl_b32 {T[0]}, {sT0}, 16", f"s_lshl_b32 {T[1]}, {sW}, 11", f"s_add_u32 {T[0]}, {T[0]}, {T[1]}", f"s_add_u32 {T[0]}, {T[0]}, {WS_Z}")
        for t in range(8):
            a(f"s_add_u32 {T[1]}, {sSPR}, {t if not self.opt.get('zlocal') else 0}", f"s_and_b32 {T[1]}, {T[1]}, 7", f"s_lshl_b32 {T[1]}, {T[1]}, 13", f"s_add_u32 {sROT[t]}, {T[1]}, {T[0]}")
        a(f"s_lshl_b32 {T[1]}, {sW}, 13", f"s_add_u32 {T[1]}, {T[1]}, {LRED}", f"v_add_u32 v54, {T[1]}, {vL16}",
          f"s_lshl_b32 {T[1]}, {sCH}, 12", f"s_lshl_b32 {T[2]}, {sRH}, 11", f"s_add_u32 {T[1]}, {T[1]}, {T[2]}", f"s_add_u32 {T[1]}, {T[1]}, {LRED}",
          f"v_add_u32 v55, {T[1]}, {vL16}")
        a(f"s_lshr_b32 {T[1]}, {sR0}, 4", f"s_lshl_b32 {T[2]}, {sRH}, 1", f"s_add_u32 {T[1]}, {T[1]}, {T[2]}", f"s_mul_i32 {T[1]}, {T[1]}, {22 * 1024}",
          f"s_add_u32 {T[2]}, {sT0}, {sCH}", f"s_lshl_b32 {T[2]}, {T[2]}, 9", f"s_add_u32 {T[1]}, {T[1]}, {T[2]}", f"s_add_u32 {sU[9]}, {T[1]}, {WS_G}",
          f"s_add_u32 {sU[10]}, {sU[9]}, {22 * 1024}")

    def phase_wsp(self):
        a = self.a
        BUF, ACC, RED, WT = 64, 128, 28, 200
        a(f"v_add_u32 v60, 0x10000, {vL16}")
        prog = self.opt.get("s5prog", 0)
        if prog:
            a.wait(vm=self.p5tok)
            a(f"v_cmp_ne_u64 vcc, {sTAG}, v[58:59]", f"s_mov_b32 {P[2]}, {T[3]}", "s_nop 0", f"s_and_b32 {P[3]}, vcc_lo, 0xff")
            self.mask_check(0, 2, sSPR, P[2], P[3], 58)
        else:
            self.poll_late(vFP8, T[3], 58, self.p5tok, wg=False)
        self.stamp("s5")
        a("v_lshlrev_b32 v62, 16, v62", "v_lshlrev_b32 v63, 16, v63")
        tok = {}
        def loads(p, u):
            t, sub = u >> 1, u & 1
            L = []
            if sub == 0: L.append(f"s_add_u32 {T[0]}, {sROT[t]}, {p * 0x20000}")
            for f in range(2):
                L.append(f"buffer_load_dwordx4 {v(BUF + (2 * (u & 7) + f) * 4, 4)}, {vL16 if f == 0 else 'v60'}, {sWS}, {T[0]} offen offset:{1024 * sub} sc1")
            L.append(lambda: tok.__setitem__((p, u), a.vtok()))
            return L
        D = self.opt.get("wd", 7)
        assert D <= 8
        gq = [self.gelu_items(0) + self.gelu_items(1), self.gelu_items(2), []]
        self.w128_read_base(59, 2, (192, 193, 194, 195), 61)
        wt = [f"ds_read_b64_tr_b16 {v(WT + (nt * 6 + p) * 4 + 2 * hf, 2)}, v{59 if nt == 0 else 61} offset:{p * 4096 + hf * 512}"
              for p in range(6) for nt in range(2) for hf in range(2)]
        seq = [(p, u) for p in range(3) for u in range(16)]
        for p, u in seq[:D]:
            if prog and u == 4: self.mask_check(2, 8, sSPR, P[2], P[3], 192)
            self.emit(loads(p, u))
        def red_write(p):
            A = ACC + 32 * (p & 1)
            return [f"ds_write_b128 v54, {v(A + 4 * i, 4)} offset:{(p & 1) * 32768 + i * 1024}" for i in range(8)]
        def red_read(p):
            return [f"ds_read_b128 {v(RED + (sw * 2 + rt) * 4, 4)}, v55 offset:{(p & 1) * 32768 + sw * 8192 + rt * 1024}" for sw in range(3) for rt in range(2)]
        def red_read2(p):
            return [f"ds_read_b128 {v(ACC + 32 * (p & 1) + rt * 4, 4)}, v55 offset:{(p & 1) * 32768 + 3 * 8192 + rt * 1024}" for rt in range(2)]
        def gate(p):
            L = []
            A = ACC + 32 * (p & 1)
            for o in range(8): L.append(f"v_add_f32 v{A + o}, v{A + o}, v{RED + o}")
            for o in range(8): L.append(f"v_add_f32 v{RED + 8 + o}, v{RED + 8 + o}, v{RED + 16 + o}")
            for o in range(8): L.append(f"v_add_f32 v{A + o}, v{A + o}, v{62 + (o >> 2)}")
            for o in range(8):
                z = vZ1 + ((o >> 2) * 3 + p) * 2 + ((o >> 1) & 1)
                L.append(f"v_and_b32 v{RED + o}, {sHIMASK}, v{z}" if o & 1 else f"v_lshlrev_b32 v{RED + o}, 16, v{z}")
            for o in range(8): L.append(f"v_add_f32 v{A + o}, v{A + o}, v{RED + 8 + o}")
            for o in range(8): L.append(f"v_mul_f32 v{A + o}, v{A + o}, v{RED + o}")
            for o in range(4): L.append(f"v_cvt_pk_bf16_f32 v{RED + o}, v{A + 2 * o}, v{A + 2 * o + 1}")
            return L
        def gstore(p):
            L = []
            if p == 2:
                sk, zr = a.label("gskip"), a.label("gstore")
                L.append(a.cond_begin)
                L.append(lambda: a(f"s_cmp_eq_u32 {sU[8]}, 0", f"s_cbranch_scc1 {zr}", f"s_cmp_eq_u32 {sCB}, 7", f"s_cbranch_scc0 {sk}",
                                   *[f"v_mov_b32 v{RED + k}, 0" for k in range(4)], f"{zr}:"))
            L += [f"buffer_store_dwordx2 {v(RED + 2 * rt, 2)}, {vPAT}, {sWS}, {sU[9 + rt]} offen offset:{1024 * p} sc1" for rt in range(2)]
            if p == 2: L += [lambda: a(f"{sk}:"), a.cond_end]
            return L
        eg = self.opt.get("earlyg", 1)
        etk = [-1]
        def early_flag():
            L = a.label("noflag")
            a.cond_begin()
            a(f"s_cmp_lg_u32 {sW}, 0", f"s_cbranch_scc1 {L}",
              "s_mov_b64 exec, 1", f"buffer_store_dwordx2 {vTAG}, off, {sWS}, {P[4]} sc1", "s_mov_b64 exec, -1", f"{L}:")
            a.cond_end()
        if eg:
            self.cluster_flag_off(P[4], WS_F6A, True); self.cluster_flag_off(P[5], WS_F6A, False)
        for p in range(3):
            A = ACC + 32 * (p & 1)
            for u in range(16):
                if not self.opt.get("w_nowait"): a.wait(vm=tok[(p, u)])
                if u == 0: self.stamp(f"wsp_p{p}")
                ms = []
                for f in range(2):
                    for tt in range(4):
                        ms.append(mfma16(A + (f * 4 + tt) * 4, v(BUF + (2 * (u & 7) + f) * 4, 4), ar((u * 4 + tt) * 4, 4), "0" if u == 0 else None))
                fill = []
                if p > 0 and not self.opt.get("w_nofill"):
                    q = p - 1
                    if u < 8: fill += red_write(q)[u:u + 1]
                    if u == 8: fill += [lambda: a.wait(lg=a.lg), "s_barrier"]
                    if u == 9: fill += red_read(q) + red_read2(q)
                    if u == 11: fill += [lambda: a.wait(lg=a.lg)]
                    if 11 <= u <= 15:
                        g = gate(q); fill += g[(u - 11) * 11:(u - 11) * 11 + 11]
                    if u == 15: fill += gstore(q)
                if p == 0: n = (len(gq[0]) + 15 - u) // (16 - u)
                elif p == 1 and u < 11: n = (len(gq[1]) + 10 - u) // (11 - u)
                else: n = 0
                fill = [gq[p].pop(0) for _ in range(n)] + fill if p == 0 else fill + [gq[p].pop(0) for _ in range(n)]
                if p == 2 and u < 8: fill += wt[3 * u:3 * u + 3]
                if p == 2 and u == 9 and eg: fill.insert(0, early_flag)
                if p == 2 and u == 14 and eg: fill += self.poll_early(vFP8, P[5], 52) + [lambda: etk.__setitem__(0, a.vtok())]
                if p == 0 and u == 15: fill += ["s_barrier"]
                nx = p * 16 + u + D
                ld = loads(*seq[nx]) if nx < 48 else []
                if self.opt.get("w_noload"): ld = ld[-1:]
                interleave(a, ms[:6], fill, per=2, start=0)
                a(ms[6]); self.emit(ld[:-2])
                a(ms[7]); self.emit(ld[-2:])
        self.stamp("wsp_gemm")
        self.emit(red_write(2))
        a.wait(lg=a.lg)
        if eg: self.poll_late(vFP8, P[5], 52, etk[0])
        else: self.barrier()
        self.emit(red_read(2) + red_read2(2))
        a(f"v_add_u32 v56, {LB}, v59", f"v_add_u32 v57, {LB}, v61")
        for o in range(8):
            z = vZ1 + ((o >> 2) * 3 + 2) * 2 + ((o >> 1) & 1)
            a(f"v_and_b32 v{192 + o}, {sHIMASK}, v{z}" if o & 1 else f"v_lshlrev_b32 v{192 + o}, 16, v{z}")
        self.cluster_flag_off(P[1], WS_F6, True)
        a.wait(lg=a.lg)
        A = ACC
        for o in range(0, 8, 2): a(f"v_pk_add_f32 {v(A + o, 2)}, {v(A + o, 2)}, {v(RED + o, 2)}")
        for o in range(0, 8, 2): a(f"v_pk_add_f32 {v(RED + 8 + o, 2)}, {v(RED + 8 + o, 2)}, {v(RED + 16 + o, 2)}")
        for o in range(0, 8, 2): a(f"v_pk_add_f32 {v(A + o, 2)}, {v(A + o, 2)}, v[62:63] op_sel:[0,{o >> 2}] op_sel_hi:[1,{o >> 2}]")
        for o in range(0, 8, 2): a(f"v_pk_add_f32 {v(A + o, 2)}, {v(A + o, 2)}, {v(RED + 8 + o, 2)}")
        for o in range(0, 8, 2): a(f"v_pk_mul_f32 {v(A + o, 2)}, {v(A + o, 2)}, {v(192 + o, 2)}")
        for o in range(4): a(f"v_cvt_pk_bf16_f32 v{RED + o}, v{A + 2 * o}, v{A + 2 * o + 1}")
        self.emit(gstore(2))
        self.wout_rd = [f"ds_read_b64_tr_b16 {ar((nt * 16 + p) * 4 + 2 * hf, 2)}, v{56 + nt} offset:{p * 4096 + hf * 512}"
                        for p in range(16) for nt in range(2) for hf in range(2)]
        gtok = None
        if eg:
            gtok = a.vtok()
            self.g_setup()
            for p in range(6): self.emit(self.g_dma(p))
            self.getok = a.vtok()
        self.flag_store_wg(P[1], gtok)
        self.stamp("g_pub")

    def phase_wout(self):
        a = self.a
        ACC = 128
        self.cluster_flag_off(T[3], WS_F6, False)
        a(f"s_lshl_b32 {T[4]}, {sRH}, 11", f"v_add_u32 v31, {T[4]}, {vL16}", f"v_add_u32 v30, {LRED}, v31")
        fine = self.opt.get("fine", 1)
        eg = self.opt.get("earlyg", 1)
        if not eg:
            chunks = [2, 2, 4, 6, 8] if fine else [4, 4, 6, 8]
            group, toks = self.act_dma(WS_G, 22, chunks, LA, gpos=True)
        self.emit(self.wout_rd[:32])
        self.emit(self.poll_early(vFP8, T[3], 36)); ptok = a.vtok()
        self.emit(self.wout_rd[32:])
        def tail_setup():
            a(f"v_and_b32 v32, 15, {vLANE}", f"v_lshrrev_b32 v33, 4, {vLANE}", "v_lshlrev_b32 v32, 10, v32",
              "v_and_b32 v34, 1, v33", "v_lshl_add_u32 v32, v34, 5, v32", "v_lshrrev_b32 v33, 1, v33", "v_lshl_add_u32 v32, v33, 4, v32",
              f"s_lshl_b32 {T[0]}, {sRH}, 5", f"s_add_u32 {T[0]}, {T[0]}, {sR0}", f"s_lshl_b32 {T[0]}, {T[0]}, 10",
              f"s_lshl_b32 {T[4]}, {sCB}, 7", f"s_add_u32 {T[0]}, {T[0]}, {T[4]}", f"s_lshl_b32 {T[4]}, {sCH}, 6", f"s_add_u32 {sU[9]}, {T[0]}, {T[4]}",
              f"s_add_u32 {sU[10]}, {sU[9]}, 0x4000")
            for i in range(8):
                a(f"v_lshlrev_b32 v{96 + 2 * i}, 16, v{vH + i}", f"v_and_b32 v{97 + 2 * i}, {sHIMASK}, v{vH + i}")
        if eg:
            tail_setup()
            a.wait(vm=self.getok, lg=a.lg)
            self.poll_late(vFP8, T[3], 36, ptok)
            self.stamp("s6")
            toks = {}
            def gd(p0, p1, c):
                L = [self.g_dma(p) for p in range(p0, p1)]
                L[-1].append(lambda: toks.__setitem__(c, a.vtok()))
                return L
            self.emit_all(gd(6, 10, 1) + gd(10, 14, 2))
        else:
            self.poll_late(vFP8, T[3], 36, ptok)
            self.stamp("s6")
            for c in range(2 + fine): self.emit_all(group(c))
            tail_setup()
        def buf(s, rt): return 64 + (s % 4) * 8 + rt * 4
        def reads(s): return [f"ds_read_b128 {v(buf(s, rt), 4)}, v{30 if s < 16 else 31} offset:{(self.gpos2(s) - LRED if eg else 4096 * s) + rt * 1024 if s < 16 else 4096 * (s - 16) + rt * 1024}" for rt in range(2)]
        def mfmas(s):
            wv = lambda nt: ar((nt * 16 + s) * 4, 4) if s < 16 else v(200 + (nt * 6 + s - 16) * 4, 4)
            return [mfma16(ACC + (rt * 2 + nt) * 4, wv(nt), v(buf(s, rt), 4), v(96 + (rt * 2 + nt) * 4, 4) if s == 0 else None)
                    for rt in range(2) for nt in range(2)]
        def w(c):
            def f():
                a.wait(vm=toks[c]); self.barrier()
            return f
        if eg:
            rest = gd(14, 18, 3) + gd(18, 22, 4)
            late = {4 + i: rest[2 * i:2 * i + 2] for i in range(4)}
            self.kloop(22, reads, mfmas, {4: w(1), 8: w(2), 12: w(3), 16: w(4)}, late, {}, per=1)
            rest = None
        else:
            rest = group(2 + fine) + group(3 + fine)
            late = {i: rest[2 * i:2 * i + 2] for i in range(7)}
        def head0():
            a.wait(vm=toks[0], lg=a.lg); self.barrier()
        if not eg: self.kloop(22, reads, mfmas, {0: w(1), 2: w(2), 6: w(3), 12: w(4)} if fine else {2: w(1), 6: w(2), 12: w(3)}, late, {0: head0}, per=1)
        self.stamp("wout_gemm")
        for rt in range(2):
            for nt in range(2):
                d = ACC + (rt * 2 + nt) * 4
                for k in range(2): a(f"v_cvt_pk_bf16_f32 v{64 + 4 * rt + 2 * nt + k}, v{d + 2 * k}, v{d + 2 * k + 1}")
        for rt in range(2):
            b = 64 + 4 * rt
            a(f"v_permlane16_swap_b32 v{b}, v{b + 2}", f"v_permlane16_swap_b32 v{b + 1}, v{b + 3}")
            a(f"buffer_store_dwordx4 {v(b, 4)}, v32, {sOUT}, {sU[9 + rt]} offen " + ["", "sc1", "nt", "sc0 sc1", "sc1 nt"][self.opt.get("ost", 0)])

    def epilogue(self):
        a = self.a
        a("L_finish:")
        a("s_cmp_eq_u32 s2, 0", f"s_cselect_b32 {T[0]}, {sW}, 1", f"s_cmp_eq_u32 {T[0]}, 0", "s_cbranch_scc0 L_noepoch",
          "s_mov_b64 exec, 1", f"buffer_store_dwordx2 {vTAG}, off, {sWS}, 0 sc1", "s_mov_b64 exec, -1", "L_noepoch:")
        if self.stamps:
            a("s_waitcnt vmcnt(0)")
            self.stamp("end")
            a(f"s_lshl_b32 {T[0]}, s2, 2", f"s_add_u32 {T[0]}, {T[0]}, {sW}", f"s_lshl_b32 {T[0]}, {T[0]}, 7", f"s_add_u32 {T[0]}, {T[0]}, {WS_DBG}",
              "s_mov_b64 exec, 1")
            for i in range(10):
                a(f"v_mov_b32 v8, s{STAMP0 + i}", f"buffer_store_dword v8, off, {sWS}, {T[0]} offset:{4 * i if i < 9 else 60}")
        if self.calib:
            a("s_waitcnt vmcnt(0)", "L_calib:", "s_memrealtime s[100:101]", "s_waitcnt lgkmcnt(0)", f"s_sub_u32 s100, s100, s{STAMP0}",
              f"s_cmp_lt_u32 s100, {self.calib}", "s_cbranch_scc1 L_calib")
        if not self.opt.get("noendwait"): a("s_waitcnt vmcnt(0)")
        a("L_exit:", "s_endpgm")

    def build(self):
        self.prologue()
        self.phase_qkv(); self.maybe_stop("qkv")
        self.phase_attn(); self.maybe_stop("attn")
        self.phase_wo(); self.maybe_stop("wo")
        self.phase_win(); self.maybe_stop("win")
        self.phase_wsp(); self.maybe_stop("wsp")
        self.phase_wout()
        self.epilogue()
        self.attn_slow()
        self.a("L_code_end:")
        body = self.a.finish()
        for w in dict.fromkeys(self.a.warnings): print("PENDING-LOAD WARNING:", w, file=sys.stderr)
        ref = open(f"cdna_kernels/{NAME}.s.ref").read().split("\n")
        head = [l for l in ref if l.startswith(";") and "@launch" not in l and "Override" not in l and "grid=ceil" not in l]
        head = head[:head.index([l for l in head if "d_ws" in l][0]) + 1]
        return ("\n".join(head) + f"\n; @launch grid=(256,1,1) block=(256,1,1) lds={LDS_BYTES}\n"
                + '.amdgcn_target "amdgcn-amd-amdhsa--gfx950"\n.text\n'
                + f".globl {NAME}_kernel\n.p2align 8\n.type {NAME}_kernel,@function\n{NAME}_kernel:\n" + body
                + f""".section .rodata,"a"
.p2align 6
.amdhsa_kernel {NAME}_kernel
  .amdhsa_next_free_vgpr 512
  .amdhsa_next_free_sgpr 102
  .amdhsa_accum_offset 256
  .amdhsa_group_segment_fixed_size 0
  .amdhsa_kernarg_size 88
  .amdhsa_user_sgpr_count 2
  .amdhsa_user_sgpr_kernarg_segment_ptr 1
  .amdhsa_system_sgpr_workgroup_id_x 1
  .amdhsa_float_denorm_mode_32 3
.end_amdhsa_kernel
""")

if __name__ == "__main__":
    import argparse
    ap = argparse.ArgumentParser()
    ap.add_argument("-o", default=f"cdna_kernels/{NAME}.s")
    ap.add_argument("--stop"); ap.add_argument("--stamps", action="store_true"); ap.add_argument("--slow", action="store_true")
    ap.add_argument("--opt", action="append", default=[])
    o = ap.parse_args()
    g = Gen(o.stop, o.stamps, o.slow, **{k: int(x) for k, x in (kv.split('=') for kv in o.opt)})
    s = g.build()
    open(o.o, "w").write(s)
    print(f"wrote {o.o}: {len(s)} bytes, {len(g.a.items)} items, {g.a.nops_added} nops; stamps: {g.stamp_names}")
```

```python
import sys, struct
from asmdsl import Asm

NAME = "sequential_preLN__softmax_full_mha__mixer_gmlp__prompt"

WS_EPOCH = 0
WS_F1, WS_F2, WS_F3, WS_F4, WS_F5, WS_F6 = 0x1000, 0x90000, 0x7000, 0x9000, 0xB000, 0xD000
WS_F6A = 0xF000
GPERM = [0, 3, 6, 9, 14, 19] + [p for p in range(22) if p not in (0, 3, 6, 9, 14, 19)]
WS_ST3, WS_ST4 = 0x1150000, 0x10D0000
WS_Q, WS_KV, WS_O, WS_H, WS_Z, WS_G = 0x100000, 0x300000, 0x700000, 0x900000, 0xB00000, 0xE00000
WS_DBG = 0x1300000
WS_SIZE = 0x1400000

LA, LC, LB = 0, 65536, 98304
LRED = 24576
LDS_BYTES = 163840

sX, sWQKV, sWO, sWIN, sWSP, sBSP, sWOUT, sOUT, sWS = ("s[%d:%d]" % (b, b + 3) for b in range(4, 40, 4))
sJ, sRB, sCB, sHEAD, sW, sR0, sRH, sCH, sT0, sCNT5 = ("s%d" % i for i in range(40, 50))
sTAG = "s[50:51]"
sONES, sHIMASK, sCLU, sPOLL = "s52", "s53", "s54", "s55"
T = ["s%d" % i for i in range(56, 64)]
sROT = ["s%d" % i for i in range(64, 72)]
sU = ["s%d" % i for i in range(72, 84)]
sJA, sRB8 = "s0", "s1"
sRC = "s0"
sSPR = "s3"
P = ["s%d" % i for i in range(84, 90)]
STAMP0 = 90

vLANE, vL16, vPAT, vZ = "v0", "v1", "v2", "v3"
vTAG = "v[4:5]"
vFP32, vFP8 = "v6", "v7"
vH = 8
vZ1 = 16

def v(a, n=1): return f"v{a}" if n == 1 else f"v[{a}:{a + n - 1}]"
def ar(a, n=1): return f"a{a}" if n == 1 else f"a[{a}:{a + n - 1}]"
def f2u(x): return "0x%08x" % struct.unpack("<I", struct.pack("<f", x))[0]

def mfma16(d, a, b, c=None):
    return f"v_mfma_f32_16x16x32_bf16 {v(d,4)}, {a}, {b}, {c if c is not None else v(d,4)}"

def interleave(a, mains, fillers, per=1, start=0):
    k = 0
    for i, m in enumerate(mains):
        m() if callable(m) else a(m)
        if i >= start:
            for _ in range(per):
                if k < len(fillers):
                    f = fillers[k]; k += 1
                    f() if callable(f) else a(f)
    while k < len(fillers):
        f = fillers[k]; k += 1
        f() if callable(f) else a(f)

class Gen:
    def __init__(self, stop=None, stamps=False, force_fallback=False, calib=0, **opt):
        self.calib = calib
        self.keep = opt.pop("keep", None)
        self.opt = opt
        self.a = Asm()
        self.stop = stop
        self.stamps = stamps
        self.force_fallback = force_fallback
        self.nstamp = 0
        self.stamp_names = []

    def stamp(self, name):
        if not self.stamps: return
        if self.keep is not None:
            if name not in self.keep and name != "entry": return
        elif name not in ("qkv_gemm", "qkv_pub", "attn_start", "attn_loop", "s2", "wo_gemm", "s3", "z2_gemm", "z1_gemm", "z2n_pub", "s5", "wsp_gemm", "s6", "wout_gemm", "end", "entry"): return
        a = self.a
        a.wait(lg=a.lg)
        cyc = self.opt.get("cyc")
        a(f"{'s_memtime' if cyc else 's_memrealtime'} s[100:101]", "s_waitcnt lgkmcnt(0)")
        n = self.nstamp
        if n == 0:
            a(f"s_mov_b32 s{STAMP0}, s100")
        else:
            r = STAMP0 + 1 + (n - 1) // 2
            if cyc: a(f"s_sub_u32 s101, s100, s{STAMP0}", f"s_mov_b32 s{STAMP0}, s100", "s_mov_b32 s100, s101")
            else: a(f"s_sub_u32 s100, s100, s{STAMP0}")
            a(f"s_mov_b32 s{r}, s100" if n & 1 else f"s_pack_ll_b32_b16 s{r}, s{r}, s100")
        self.nstamp += 1; self.stamp_names.append(name)
        assert self.nstamp <= 17

    def maybe_stop(self, name):
        if self.stop == name:
            self.a.wait_all()
            self.a("s_branch L_finish")

    def flag_store(self, soff, tok=None):
        a = self.a
        a.wait(vm=a.vm if tok is None else tok, force=True)
        a("s_mov_b64 exec, 1", f"buffer_store_dwordx2 {vTAG}, off, {sWS}, {soff} sc1", "s_mov_b64 exec, -1")

    def g_setup(self):
        a = self.a
        a(f"s_lshr_b32 {T[0]}, {sR0}, 4", f"s_add_u32 {T[0]}, {T[0]}, {sW}", f"s_mul_i32 {T[0]}, {T[0]}, {22 * 1024}",
          f"s_add_u32 {sU[0]}, {T[0]}, {WS_G}", f"s_lshl_b32 {sU[1]}, {sW}, 10")

    def g_dma(self, p):
        return [f"s_add_u32 {T[2]}, {sU[0]}, {GPERM[p] * 1024}", f"s_add_u32 m0, {sU[1]}, {self.gpos2(p)}",
                f"buffer_load_dwordx4 {vL16}, {sWS}, {T[2]} offen sc1 lds"]

    @staticmethod
    def gpos2(p): return LRED + 32768 + 4096 * p if p < 8 else LRED + 4096 * (p - 8) if p < 16 else 4096 * (p - 16)

    def flag_store_wg(self, soff, tok=None):
        a = self.a
        a.wait(vm=a.vm if tok is None else tok, force=True)
        self.barrier()
        L = a.label("noflag")
        a.cond_begin()
        a(f"s_cmp_lg_u32 {sW}, 0", f"s_cbranch_scc1 {L}",
          "s_mov_b64 exec, 1", f"buffer_store_dwordx2 {vTAG}, off, {sWS}, {soff} sc1", "s_mov_b64 exec, -1", f"{L}:")
        a.cond_end()

    def poll_wg(self, voff, soff, tmp, drain=True):
        a = self.a
        if self.opt.get("allpoll"):
            self.poll(voff, soff, tmp); return
        if drain: a.wait(vm=a.vm, force=True)
        done = a.vm_done
        L = a.label("nopoll")
        a(f"s_cmp_lg_u32 {sW}, 0", f"s_cbranch_scc1 {L}")
        self.poll(voff, soff, tmp)
        a(f"{L}:")
        a.vm_done = done
        self.barrier()

    def poll_early(self, voff, soff, tmp):
        return [f"buffer_load_dwordx2 {v(tmp,2)}, {voff}, {sWS}, {soff} offen sc1"]

    def poll_late(self, voff, soff, tmp, tok, wg=True):
        a = self.a
        L = a.label("late")
        done = a.vm_done
        if wg: a(f"s_cmp_lg_u32 {sW}, 0", f"s_cbranch_scc1 {L}")
        a.wait(vm=tok, force=True)
        a(f"v_cmp_ne_u64 vcc, {sTAG}, {v(tmp,2)}", "s_nop 1", f"s_cbranch_vccz {L}")
        a.cond_begin(); self.poll(voff, soff, tmp); a.cond_end()
        a(f"{L}:")
        a.vm_done = done if wg else tok
        if wg: self.barrier()

    def mask_check(self, t0, t1, start, soff, pend, tmp):
        a = self.a
        done = a.vm_done
        L, E = a.label("rc"), a.label("rcok")
        m = ((1 << t1) - 1) ^ ((1 << t0) - 1)
        a(f"s_lshl_b32 {sPOLL}, {m * 0x101}, {start}", f"s_lshr_b32 {sPOLL}, {sPOLL}, 8", f"s_and_b32 {sPOLL}, {sPOLL}, 0xff",
          f"s_and_b32 vcc_lo, {pend}, {sPOLL}", f"s_cbranch_scc0 {E}", f"s_mov_b32 {sRC}, {sPOLL}", f"s_mov_b32 {sPOLL}, 0x40000", f"{L}:")
        a.cond_begin()
        a(f"buffer_load_dwordx2 {v(tmp, 2)}, {vFP8}, {sWS}, {soff} offen sc1")
        a.wait(vm=a.vm, force=True)
        a.cond_end()
        a(f"v_cmp_ne_u64 vcc, {sTAG}, {v(tmp, 2)}", f"s_sub_u32 {sPOLL}, {sPOLL}, 1", f"s_cbranch_scc1 {E}",
          f"s_and_b32 {pend}, vcc_lo, 0xff", f"s_and_b32 vcc_lo, {pend}, {sRC}", f"s_cbranch_scc1 {L}", f"{E}:")
        a.vm_done = done
        for r in (tmp, tmp + 1): a.pend_vm.pop(("v", r), None)

    def poll(self, voff, soff, tmp):
        a = self.a
        L, E = a.label("poll"), a.label("polled")
        a(f"s_mov_b32 {sPOLL}, 0x40000", f"{L}:",
          f"buffer_load_dwordx2 {v(tmp,2)}, {voff}, {sWS}, {soff} offen sc1")
        a.wait(vm=a.vm, force=True)
        a(f"v_cmp_ne_u64 vcc, {sTAG}, {v(tmp,2)}",
          f"s_sub_u32 {sPOLL}, {sPOLL}, 1", f"s_cbranch_scc1 {E}")
        sl = self.opt.get("sleep", 0)
        if sl: a(f"s_cbranch_vccz {E}", f"s_sleep {sl}", f"s_branch {L}", f"{E}:")
        else: a(f"s_cbranch_vccnz {L}", f"{E}:")
        for r in (tmp, tmp + 1): a.pend_vm.pop(("v", r), None)

    def barrier(self):
        self.a("s_barrier")

    def prologue(self):
        a = self.a
        a("s_cmp_ge_u32 s2, 256", "s_cbranch_scc1 L_exit")
        self.stamp("entry")
        a("s_load_dwordx2 s[4:5], s[0:1], 0", "s_load_dwordx2 s[8:9], s[0:1], 8")
        if not self.opt.get("nocodepf"):
            a(f"s_getpc_b64 s[60:61]", "L_pc:", f"s_sub_u32 s60, s60, L_pc-{NAME}_kernel", "s_subb_u32 s61, s61, 0",
              f"s_mov_b32 s62, L_code_end-{NAME}_kernel", "s_mov_b32 s63, 0x00020000",
              f"s_lshr_b32 {T[0]}, s2, 3", f"s_lshl_b32 {T[0]}, {T[0]}, 11", "v_lshlrev_b32 v250, 3, v0",
              f"buffer_load_dwordx2 v[250:251], v250, s[60:63], {T[0]} offen")
        a(f"s_mov_b32 s6, {2048 * 512 * 2}", "s_mov_b32 s7, 0x00020000", f"s_mov_b32 s10, {512 * 1536 * 2}", "s_mov_b32 s11, 0x00020000")
        a("v_lshrrev_b32 v8, 6, v0", f"v_and_b32 {vLANE}, 63, v0", f"v_readfirstlane_b32 {sW}, v8")
        if self.opt.get("map", 1):
            a(f"s_lshr_b32 {T[0]}, s2, 3", f"s_and_b32 {T[1]}, s2, 6", f"s_and_b32 {T[2]}, s2, 1",
              f"s_lshr_b32 {T[3]}, {T[0]}, 4", f"s_add_u32 {sJ}, {T[1]}, {T[3]}",
              f"s_bfe_u32 {sRB}, {T[0]}, 0x20002", f"s_and_b32 {sCB}, {T[0]}, 3", f"s_lshl_b32 {T[4]}, {T[2]}, 2", f"s_add_u32 {sCB}, {sCB}, {T[4]}",
              f"s_lshr_b32 {sU[1]}, {T[0]}, 2", f"s_and_b32 {sU[2]}, {sCB}, 3", f"s_lshl_b32 {sU[2]}, {sU[2]}, 1")
        else:
            a(f"s_and_b32 {sJ}, s2, 7", f"s_lshr_b32 {sHEAD}, s2, 3", f"s_lshr_b32 {sRB}, {sHEAD}, 3", f"s_and_b32 {sCB}, {sHEAD}, 7",
              f"s_lshl_b32 {sU[1]}, {sRB}, 1", f"s_mov_b32 {sU[2]}, {sCB}")
        a(f"s_lshl_b32 {sR0}, {sJ}, 8", f"s_lshl_b32 {T[0]}, {sRB}, 6", f"s_add_u32 {sR0}, {sR0}, {T[0]}")

    def prologue_rest(self):
        a = self.a
        for d, off, n in self.SRDS[2:]: a(f"s_load_dwordx2 s[{d}:{d + 1}], s[0:1], {off}")
        for d, off, n in self.SRDS[2:]: a(f"s_mov_b32 s{d + 2}, {n}", f"s_mov_b32 s{d + 3}, 0x00020000")
        if self.opt.get("map", 1):
            a(f"s_bfe_u32 {sHEAD}, s2, 0x40003", f"s_and_b32 {T[4]}, s2, 1", f"s_lshl_b32 {T[4]}, {T[4]}, 4", f"s_add_u32 {sHEAD}, {sHEAD}, {T[4]}")
        a(f"s_lshr_b32 {sRH}, {sW}, 1", f"s_and_b32 {sCH}, {sW}, 1",
          f"s_lshl_b32 {sCLU}, {sJ}, 2", f"s_add_u32 {sCLU}, {sCLU}, {sRB}",
          f"s_mov_b32 {sONES}, 0x3f803f80", f"s_mov_b32 {sHIMASK}, 0xffff0000")
        a(f"s_mul_i32 {T[0]}, {sCB}, 5", f"s_min_u32 {T[1]}, {sCB}, 3", f"s_add_u32 {sT0}, {T[0]}, {T[1]}",
          f"s_cmp_ge_u32 {sCB}, 3", f"s_cselect_b32 {sCNT5}, 1, 0")
        a(f"v_lshlrev_b32 {vL16}, 4, {vLANE}", f"v_mov_b32 {vZ}, 0",
          f"v_and_b32 v8, 15, {vLANE}", f"v_lshrrev_b32 v9, 5, {vLANE}", f"v_bfe_u32 v10, {vLANE}, 4, 1",
          f"v_lshlrev_b32 v8, 4, v8", f"v_lshl_add_u32 v8, v10, 3, v8",
          f"v_lshl_add_u32 {vPAT}, v9, 8, v8",
          f"v_lshl_add_u32 v63, v9, 9, v8",
          f"v_and_b32 {vFP32}, 31, {vLANE}", f"v_lshlrev_b32 {vFP32}, 7, {vFP32}",
          f"v_and_b32 {vFP8}, 7, {vLANE}", f"v_lshlrev_b32 {vFP8}, 3, {vFP8}")

    SRDS = [(4, 0, 2048 * 512 * 2), (8, 8, 512 * 1536 * 2), (36, 80, WS_SIZE), (12, 16, 512 * 512 * 2), (16, 32, 512 * 1376 * 2),
            (20, 40, 2048 * 2048 * 2), (24, 48, 2048 * 2), (28, 56, 688 * 512 * 2), (32, 64, 2048 * 512 * 2)]

    def phase_qkv(self):
        a = self.a
        ACC = 128
        CSR = (124, 200, 204)
        vX0, vX1, vW0, vW1, vWrA, vWrB, XA = "v28", "v29", "v30", "v31", "v32", "v33", 34
        STA = LC
        a(f"v_lshrrev_b32 v8, 3, {vLANE}", f"v_and_b32 v9, 7, {vLANE}", "v_lshrrev_b32 v10, 1, v8", "v_xor_b32 v10, v10, v9",
          "v_lshlrev_b32 v10, 4, v10", "v_lshl_add_u32 v10, v8, 10, v10",
          f"s_lshl_b32 {T[0]}, {sW}, 4", f"s_add_u32 {T[0]}, {T[0]}, {sR0}", f"s_lshl_b32 {T[0]}, {T[0]}, 10",
          f"v_add_u32 {vX0}, {T[0]}, v10", f"v_xor_b32 {vX1}, 64, {vX0}", f"v_add_u32 {vX1}, {7 * 1024}, {vX1}")
        a(f"v_bfe_u32 v10, {vLANE}, 4, 1", "v_lshrrev_b32 v11, 1, v9", "v_xor_b32 v11, v11, v10",
          "v_and_b32 v12, 1, v9", "v_lshl_or_b32 v11, v11, 1, v12", "v_lshlrev_b32 v11, 4, v11",
          "v_mul_u32_u24 v12, 3072, v8", "v_add_u32 v12, v12, v11",
          f"s_mul_i32 {T[0]}, {sW}, {16 * 3072}", f"s_lshl_b32 {T[1]}, {sCB}, 7", f"s_add_u32 {T[0]}, {T[0]}, {T[1]}",
          f"v_add_u32 {vW0}, {T[0]}, v12", f"v_xor_b32 {vW1}, 64, {vW0}", f"v_add_u32 {vW1}, {8 * 3072 - 1024}, {vW1}",
          f"s_lshl_b32 {sU[0]}, {sW}, 11", f"s_add_u32 {sU[2]}, {sU[2]}, {sU[1]}")
        if self.opt.get("q_rot", 3) == 0: a(f"s_mov_b32 {sU[2]}, 0")
        if self.opt.get("q_rot", 3) == 3: a(f"s_and_b32 {sU[2]}, {sU[1]}, 1", f"s_lshl_b32 {sU[2]}, {sU[2]}, 2")
        if self.opt.get("q_rot") == 1: a(f"s_mov_b32 {sU[2]}, {sU[1]}")
        if self.opt.get("q_samew"): a(f"v_subrev_u32 {vW0}, {T[1]}, {vW0}", f"v_subrev_u32 {vW1}, {T[1]}, {vW1}")
        if self.opt.get("q_samex"): a(f"v_and_b32 {vX0}, 0xffff, {vX0}", f"v_and_b32 {vX1}, 0x1ffff, {vX1}")
        tok = {}
        def dma(t):
            L = [[f"s_add_u32 {T[1]}, {sU[2]}, {t}", f"s_and_b32 {T[1]}, {T[1]}, 7", f"s_lshl_b32 {T[2]}, {T[1]}, 7",
                  f"s_add_u32 m0, {sU[0]}, {LB + t * 8192}", f"buffer_load_dwordx4 {vX0}, {sX}, {T[2]} offen lds"],
                 [f"buffer_load_dwordx4 {vX1}, {sX}, {T[2]} offen offset:1024 lds"]]
            for p in range(3):
                pre = [f"s_mul_i32 {T[1]}, {T[1]}, {64 * 3072}"] if p == 0 else []
                L.append(pre + [f"s_add_u32 {T[2]}, {T[1]}, {p * 1024}", f"s_add_u32 m0, {sU[0]}, {(t & 3) * 24576 + p * 8192}",
                                f"buffer_load_dwordx4 {vW0}, {sWQKV}, {T[2]} offen lds"])
                L.append([f"buffer_load_dwordx4 {vW1}, {sWQKV}, {T[2]} offen offset:1024 lds"])
            L[-1].append(lambda: tok.__setitem__(t, a.vtok()))
            return L
        a("s_waitcnt lgkmcnt(0)")
        self.stamp("kernarg")
        self.emit_all(dma(0))
        pq = self.opt.get("pfq2", 0)
        def pfq():
            a(f"s_lshl_b32 {T[3]}, s2, 2", f"s_add_u32 {T[3]}, {T[3]}, {sW}", f"s_lshl_b32 {T[4]}, {T[3]}, 11", f"s_mul_i32 {T[3]}, {T[3]}, 960",
              f"s_add_u32 {T[3]}, {T[3]}, {192 * 3072}", f"v_min_u32 v248, 59, {vLANE}", "v_lshlrev_b32 v248, 4, v248",
              f"buffer_load_dwordx4 v[244:247], v248, {sWQKV}, {T[3]} offen",
              f"buffer_load_dwordx4 v[244:247], {vL16}, {sX}, {T[4]} offen", f"buffer_load_dwordx4 v[244:247], {vL16}, {sX}, {T[4]} offen offset:1024")
        def pfq3(first):
            wb = (8 - first) * 64 * 3072 // 1024
            a(f"s_lshl_b32 {T[3]}, s2, 2", f"s_add_u32 {T[3]}, {T[3]}, {sW}", f"s_lshl_b32 {T[4]}, {T[3]}, 11", f"s_mul_i32 {T[3]}, {T[3]}, {wb}",
              f"s_add_u32 {T[3]}, {T[3]}, {first * 64 * 3072}", f"v_min_u32 v248, {(8 - first) * 8 - 1}, {vLANE}", "v_lshlrev_b32 v248, 4, v248",
              f"v_lshlrev_b32 v249, 4, {vLANE}", f"v_min_u32 v249, {min(wb, 1024) - 16}, v249",
              f"buffer_load_dwordx4 v[244:247], v248, {sX}, {T[4]} offen offset:{first * 128}",
              f"buffer_load_dwordx4 v[244:247], v248, {sX}, {T[4]} offen offset:{1024 + first * 128}",
              f"buffer_load_dwordx4 v[244:247], v249, {sWQKV}, {T[3]} offen")
            if wb > 1024:
                a(f"v_min_u32 v249, {wb - 1024 - 16}, v249", f"buffer_load_dwordx4 v[244:247], v249, {sWQKV}, {T[3]} offen offset:1024")
        if pq >= 3: pfq3(pq - 1)
        self.prologue_rest()
        if pq == 1: pfq()
        a(f"v_lshrrev_b32 v10, 4, {vLANE}", f"v_bfe_u32 v11, {vLANE}, 2, 2", f"v_and_b32 v12, 3, {vLANE}",
          "v_lshl_add_u32 v13, v10, 3, v11", "v_lshlrev_b32 v13, 7, v13", "v_lshl_add_u32 v13, v12, 3, v13",
          "v_lshrrev_b32 v11, 1, v11", "v_and_b32 v14, 1, v10", "v_lshl_or_b32 v11, v14, 1, v11",
          f"v_xor_b32 v11, {sW}, v11", f"v_lshl_add_u32 {vWrA}, v11, 5, v13", f"v_add_u32 {vWrB}, {2 * 24576}, {vWrA}")
        a(f"v_and_b32 v11, 15, {vLANE}", "v_lshrrev_b32 v12, 1, v11", "v_xor_b32 v12, v12, v10", "v_lshlrev_b32 v12, 4, v12",
          "v_lshl_add_u32 v12, v11, 7, v12", f"s_add_u32 {T[0]}, {sU[0]}, {LB}", f"v_add_u32 v{XA}, {T[0]}, v12")
        for k in range(1, 8): a(f"v_xor_b32 v{XA + k}, {((k >> 1) << 11) | ((k & 1) << 6)}, v{XA}")
        for r in range(252, 256): a(f"v_mov_b32 v{r}, {sONES}")
        early = self.opt.get("qearly", 0)
        QS = 0.25 * 1.4426950408889634
        a(f"v_and_b32 v16, 15, {vLANE}", f"v_lshrrev_b32 v17, 4, {vLANE}", f"v_and_b32 v20, 3, {vLANE}", "v_lshrrev_b32 v21, 2, v16",
          f"s_lshl_b32 {T[0]}, {sW}, 6", f"s_add_u32 {T[0]}, {T[0]}, {STA}",
          "v_cmp_eq_u32 vcc, v17, v21", "v_cndmask_b32_e64 v21, 0, -1, vcc",
          "v_lshlrev_b32 v16, 2, v16", f"v_add_u32 v16, {T[0]}, v16", "v_lshlrev_b32 v18, 4, v17", f"v_add_u32 v18, {T[0]}, v18",
          "v_and_b32 v17, 1, v17", "v_lshl_add_u32 v19, v17, 8, v16",
          f"s_and_b32 {T[6]}, {sW}, 1", f"s_lshl_b32 {T[6]}, {T[6]}, 8", f"s_lshr_b32 {T[7]}, {sW}, 1", f"s_lshl_b32 {T[7]}, {T[7]}, 10",
          f"s_or_b32 {T[6]}, {T[6]}, {T[7]}", f"v_or_b32 v42, {T[6]}, v63", f"s_lshl_b32 {T[6]}, {sW}, 9", f"v_or_b32 v46, {T[6]}, {vPAT}",
          f"v_mov_b32 v22, {f2u(QS)}", f"v_mov_b32 v23, {f2u(QS)}")
        self.emit_all(dma(1))
        if pq == 2: pfq()
        for r in range(1, 4): a(f"v_xor_b32 v{42 + r}, {((r & 1) << 8) | ((r >> 1) << 10)}, v42", f"v_xor_b32 v{46 + r}, {r << 9}, v46")
        a(f"s_lshl_b32 {T[4]}, {sCB}, 2", f"s_add_u32 {T[4]}, {T[4]}, {sW}",
          f"s_lshl_b32 {sU[5]}, {T[4]}, 16", f"s_lshl_b32 {T[3]}, {sR0}, 5", f"s_add_u32 {sU[5]}, {sU[5]}, {T[3]}",
          f"s_add_u32 {sU[5]}, {sU[5]}, {WS_Q}",
          f"s_lshl_b32 {sU[6]}, {T[4]}, 17", f"s_lshl_b32 {T[3]}, {sR0}, 6", f"s_add_u32 {sU[6]}, {sU[6]}, {T[3]}",
          f"s_add_u32 {sU[6]}, {sU[6]}, {WS_KV}", f"s_add_u32 {sU[7]}, {sU[6]}, 2048",
          f"s_lshl_b32 {T[0]}, {sRB}, 5", f"s_add_u32 {T[0]}, {T[0]}, {T[4]}", f"s_lshl_b32 {T[0]}, {T[0]}, 7",
          f"s_lshl_b32 {T[4]}, {sJ}, 3", f"s_add_u32 {T[0]}, {T[0]}, {T[4]}", f"s_add_u32 {sU[8]}, {T[0]}, {WS_F1}")
        a("s_waitcnt lgkmcnt(0)", f"s_mov_b32 {sRB8}, {sU[1]}")
        a(f"buffer_load_dwordx2 v[4:5], off, {sWS}, 0 sc1")
        etok = a.vtok()
        tl = self.opt.get("tlb", 0)
        if tl:
            a(f"v_min_u32 v248, 9, {vLANE}", "v_lshlrev_b32 v248, 21, v248", f"buffer_load_dword v249, v248, {sWS}, 0 offen offset:2048")
            if tl >= 2:
                a(f"buffer_load_dword v249, v248, {sWSP}, 0 offen", f"buffer_load_dword v249, off, {sWO}, 0", f"buffer_load_dword v249, off, {sWIN}, 0",
                  f"buffer_load_dword v249, off, {sWOUT}, 0", f"buffer_load_dword v249, off, {sBSP}, 0")
            if tl >= 3: a(f"buffer_load_dword v249, off, {sOUT}, 0")
        if not early: self.emit_all(dma(2))
        self.stamp("issued")
        def abuf(s): return 64 + 16 * (s % 3)
        def wbuf(s): return (112, 176, 188)[s % 3]
        def reads(s):
            t, sub = s >> 1, s & 1
            slot = t & 3
            wb = vWrA if slot < 2 else vWrB
            wo = (slot & 1) * 24576 + sub * 4096
            A, W = abuf(s), wbuf(s)
            L = [f"ds_read_b64_tr_b16 {v(W + 2 * h, 2)}, {wb} offset:{wo + 512 * h}" for h in range(2)]
            L += [f"ds_read_b128 {v(A + 4 * r, 4)}, v{XA + 2 * r + sub} offset:{t * 8192}" for r in range(4)]
            L += [f"ds_read_b64_tr_b16 {v(W + 4 * p + 2 * h, 2)}, {wb} offset:{wo + 8192 * p + 512 * h}" for p in (1, 2) for h in range(2)]
            return L
        def mfmas(s):
            A, W = abuf(s), wbuf(s)
            c = "0" if s == 0 else None
            ms = []
            for p in range(3):
                wv = v(W + 4 * p, 4)
                for r in range(4):
                    d, av = ACC + 16 * p + 4 * r, v(A + 4 * r, 4)
                    ms.append(mfma16(d, wv, av, c) if p < 2 else mfma16(d, av, wv, c))
                ms.append(mfma16(CSR[p], wv, "v[252:255]", c) if p < 2 else mfma16(CSR[p], "v[252:255]", wv, c))
                if p == 0: ms.append(mfma16(8, "v[252:255]", v(A, 4), c))
                if p == 1: ms.append(mfma16(24, v(A, 4), v(A, 4), c))
            return ms
        def head0():
            a.wait(vm=tok[0]); self.barrier(); self.stamp("w0")
        before, late = {}, {}
        for t in range(7):
            def f(t=t):
                if not self.opt.get("q_nowait"): a.wait(vm=tok[t + 1])
                self.barrier(); self.stamp(f"qc{t + 1}")
            before[2 * t] = f
        def f15():
            a.wait(lg=a.lg); self.barrier()
        before[15] = f15
        if self.opt.get("q_nodma"):
            dma = lambda t: (tok.__setitem__(t, a.vtok()), [[]] * 8)[1]
        d3 = dma(3)
        late[0], late[1] = d3[:4], d3[4:]
        if early: late[0], late[1] = dma(2), d3
        for t in range(4, 8):
            d = dma(t)
            late[2 * t - 6], late[2 * t - 5] = d[:4], d[4:]
        cf = self.const_fill(52)
        late[15] = [cf[0:4], cf[4:8], cf[8:10], cf[10:]]
        late[12] = [[lambda: a.wait(vm=etok)], ["v_add_u32 v4, 0x9e3779b9, v4"], ["v_add_u32 v5, 0x7f4a7c15, v5"]]
        late[13] = [["v_readfirstlane_b32 s50, v4"], ["v_readfirstlane_b32 s51, v5"]]
        self.kloop(16, reads, mfmas, before, late, {0: head0})
        self.stamp("qkv_gemm")
        a("v_cmp_eq_u32 vcc, 1, v20", "v_cndmask_b32 v9, v24, v25, vcc", "v_cmp_eq_u32 vcc, 3, v20",
          "v_cndmask_b32_e64 v10, v26, v27, vcc", "v_cmp_lt_u32 vcc, 1, v20", "v_cndmask_b32 v9, v9, v10, vcc", "v_and_b32 v9, v9, v21",
          "v_mov_b32 v10, v9", "v_permlane32_swap_b32 v9, v10", "v_add_f32 v9, v9, v10", "v_mov_b32 v10, v9",
          "v_cmp_eq_u32 vcc, 1, v17", "v_permlane16_swap_b32 v9, v10", "v_add_f32 v9, v9, v10")
        self.ln_finish([(8, 9, 10)], 1.0 / 512)
        a("v_cndmask_b32 v10, v10, v11, vcc", "ds_write_b32 v19, v10")
        a.wait(lg=a.lg)
        self.barrier()
        for r in range(4):
            if r: a(f"v_xor_b32 v20, {r << 6}, v16")
            a(f"ds_read2_b32 {v(64 + 2 * r, 2)}, {'v16' if r == 0 else 'v20'} offset1:64")
        qtok = a.ltok()
        for r in range(4):
            if r: a(f"v_xor_b32 v21, {r << 6}, v18")
            p18 = "v18" if r == 0 else "v21"
            a(f"ds_read_b128 {v(80 + 8 * r, 4)}, {p18}", f"ds_read_b128 {v(84 + 8 * r, 4)}, {p18} offset:256")
        a.wait(lg=qtok)
        for p in (1, 2, 0):
            if p == 2:
                a.wait(lg=a.lg)
                for r in range(4): a(f"v_pk_mul_f32 {v(72 + 2 * r, 2)}, {v(64 + 2 * r, 2)}, v[22:23]")
            for r0 in (0, 2):
                work = [(r, k) for r in (r0, r0 + 1) for k in range(2)]
                tm = {w_: 52 + 2 * i for i, w_ in enumerate(work)}
                for r, k in work:
                    c = v(CSR[p] + 2 * k, 2)
                    if p == 2: a(f"v_pk_mul_f32 {v(tm[r, k], 2)}, {c}, {v(84 + 8 * r + 2 * k, 2)}")
                    else: a(f"v_pk_mul_f32 {v(tm[r, k], 2)}, {c}, {v((72 if p == 0 else 64) + 2 * r, 2)} op_sel:[0,1] op_sel_hi:[1,1]")
                for r, k in work:
                    d = v(ACC + 16 * p + 4 * r + 2 * k, 2)
                    if p == 2: a(f"v_pk_fma_f32 {d}, {d}, {v(80 + 8 * r + 2 * k, 2)}, {v(tm[r, k], 2)}")
                    else: a(f"v_pk_fma_f32 {d}, {d}, {v((72 if p == 0 else 64) + 2 * r, 2)}, {v(tm[r, k], 2)} op_sel:[0,0,0] op_sel_hi:[1,0,1]")
                for r, k in work:
                    d = ACC + 16 * p + 4 * r + 2 * k
                    a(f"v_cvt_pk_bf16_f32 v{ACC + 16 * p + 4 * r + k}, v{d}, v{d + 1}")
                for r in (r0, r0 + 1):
                    o = v(ACC + 16 * p + 4 * r, 2)
                    if p < 2: a(f"buffer_store_dwordx2 {o}, v{42 + r}, {sWS}, {sU[5] if p == 0 else sU[6]} offen sc1")
                    else: a(f"buffer_store_dwordx2 {o}, v{46 + r}, {sWS}, {sU[7]} offen sc1")
        stok = a.vtok()
        if self.opt.get("pfs2", 0):
            a(f"s_lshl_b32 {T[3]}, s2, 2", f"s_add_u32 {T[3]}, {T[3]}, {sW}", f"s_lshl_b32 {T[3]}, {T[3]}, 13", f"s_add_u32 {T[4]}, {T[3]}, 4096")
            for i in range(4): a(f"buffer_load_dwordx4 v[244:247], {vL16}, {sWSP}, {T[3 + (i >> 1)]} offen offset:{1024 * (i & 1)}")
        self.flag_store(sU[8], stok)
        self.stamp("qkv_pub")
        self.attn_addresses()

    def ln_finish(self, chains, inv_n):
        a = self.a
        for s1, s2, d in chains: a(f"v_mul_f32 v{s1}, {f2u(inv_n)}, v{s1}", f"v_mul_f32 v{s2}, {f2u(inv_n)}, v{s2}")
        for s1, s2, d in chains: a(f"v_fma_f32 v{s2}, -v{s1}, v{s1}, v{s2}")
        for s1, s2, d in chains: a(f"v_max_f32 v{s2}, 0, v{s2}")
        for s1, s2, d in chains: a(f"v_add_f32 v{s2}, {f2u(1e-5)}, v{s2}")
        for s1, s2, d in chains: a(f"v_rsq_f32 v{d}, v{s2}")
        for s1, s2, d in chains: a(f"v_mul_f32_e64 v{d + 1}, -v{s1}, v{d}")

    def const_fill(self, t=8):
        L = [f"v_and_b32 v{t}, 27, {vLANE}", f"v_cmp_eq_u32 vcc, 1, v{t}", f"v_mov_b32 v{t + 1}, {sONES}",
             f"v_cndmask_b32 v{t + 4}, v3, v{t + 1}, vcc", f"v_mov_b32 v{t + 5}, v{t + 4}", f"v_mov_b32 v{t + 6}, v{t + 4}", f"v_mov_b32 v{t + 7}, v{t + 4}",
             f"s_lshl_b32 {T[3]}, {sW}, 12", f"s_add_u32 {T[3]}, {T[3]}, {LC + 2048}", f"v_add_u32 v{t + 1}, {T[3]}, {vL16}",
             f"ds_write_b128 v{t + 1}, {v(t + 4, 4)}", f"ds_write_b128 v{t + 1}, {v(t + 4, 4)} offset:1024"]
        return L

    S, OA, NM, QF, KB, VB = 64, 112, 144, 176, 184, 192
    vIDX, vSP0, vKA, vKB2, vVB, vVI, vWD0, vXR = 208, 209, 213, 214, 215, 216, 217, 240

    def attn_addresses(self):
        a = self.a
        a(f"v_and_b32 v8, 15, {vLANE}", f"v_lshrrev_b32 v9, 4, {vLANE}", "v_lshlrev_b32 v10, 12, v8", "v_lshl_add_u32 v10, v9, 4, v10",
          f"s_lshl_b32 {T[6]}, {sR0}, 12", f"s_lshl_b32 {T[7]}, {sW}, 7", f"s_add_u32 {T[6]}, {T[6]}, {T[7]}",
          f"v_add_u32 v{self.vSP0}, {T[6]}, v10")
        for tt in range(1, 4): a(f"v_add_u32 v{self.vSP0 + tt}, {tt * 65536}, v{self.vSP0}")
        a(f"v_mov_b32 v{self.vIDX}, 0xdddddddd", f"v_mov_b32 v{self.vKA}, {vL16}", f"v_add_u32 v{self.vKB2}, {LB}, {vL16}")
        a(f"v_lshrrev_b32 v10, 5, {vLANE}", "v_lshl_add_u32 v10, v10, 4, v8", "v_lshlrev_b32 v10, 4, v10",
          f"v_and_b32 v11, 31, {vLANE}", f"v_bfe_u32 v12, {vLANE}, 2, 2",
          "v_add_u32 v12, -1, v12", "v_cmp_gt_u32 vcc, 2, v12", "v_cndmask_b32_e64 v12, 0, 4, vcc",
          "v_and_b32 v13, 27, v11", "v_cmp_eq_u32 vcc, 16, v13", "v_cndmask_b32_e64 v13, 0, 1, vcc",
          "v_add_u32 v12, v12, v13", "v_lshlrev_b32 v12, 4, v12", f"v_add_u32 v12, {LC}, v12",
          "v_cmp_gt_u32 vcc, 16, v11", f"v_cndmask_b32 v{self.vVB}, v12, v10, vcc",
          f"v_mov_b32 v13, 0x4000", f"v_cndmask_b32 v{self.vVI}, v3, v13, vcc")
        self.w128_addresses(self.vWD0, 16)
        self.win_addresses()
        a(f"s_lshl_b32 {T[5]}, {sHEAD}, 17", f"s_lshl_b32 {sU[1]}, {sW}, 12", f"s_add_u32 {T[5]}, {T[5]}, {sU[1]}", f"s_add_u32 {T[5]}, {T[5]}, {WS_KV}")
        for t in range(8):
            a(f"s_add_u32 {T[6]}, {sJ}, {t}", f"s_and_b32 {T[6]}, {T[6]}, 7", f"s_lshl_b32 {T[6]}, {T[6]}, 14", f"s_add_u32 {sROT[t]}, {T[6]}, {T[5]}")
        a(f"s_add_u32 {sSPR}, {sRB8}, {sJ}")
        if self.opt.get("s5prog", 0): a(f"s_and_b32 {sSPR}, {sJ}, 6")
        spr = self.opt.get("sprot", 4)
        if spr == 1: a(f"s_mov_b32 {sSPR}, {sCB}")
        if spr == 2: a(f"s_add_u32 {sSPR}, {sCB}, {sRB8}")
        if spr == 3: a(f"s_and_b32 {sSPR}, {sCB}, 3", f"s_lshl_b32 {sSPR}, {sSPR}, 1")
        if spr == 5: a(f"s_and_b32 {T[6]}, {sCB}, 4", f"s_add_u32 {sSPR}, {sSPR}, {T[6]}")
        if spr == 6: a(f"s_and_b32 {T[6]}, {sCB}, 4", f"s_add_u32 {sSPR}, {sJ}, {T[6]}")
        if spr == 7: a(f"s_and_b32 {T[6]}, {sCB}, 4", f"s_lshr_b32 {sSPR}, {sJ}, 1", f"s_add_u32 {sSPR}, {sSPR}, {T[6]}")
        if spr == 8: a(f"s_and_b32 {T[6]}, {sCB}, 5", f"s_mov_b32 {sSPR}, {T[6]}")
        if spr == 9: a(f"s_mov_b32 {sSPR}, 0")
        if spr == 4: a(f"s_lshr_b32 {sSPR}, {sCB}, 2", f"s_lshl_b32 {sSPR}, {sSPR}, 2")
        if self.opt.get("pfs2", 0) or self.opt.get("lpf", 0): a(f"s_mov_b32 {sSPR}, 0")
        for t in range(8):
            a(f"s_add_u32 {T[6]}, {sSPR}, {t}", f"s_and_b32 {T[6]}, {T[6]}, 7", f"s_lshl_b32 {sU[4 + t]}, {T[6]}, 9")
        a(f"v_lshrrev_b32 v226, 3, {vLANE}", f"s_lshl_b32 {T[6]}, {sCB}, 3", f"s_add_u32 {T[6]}, {T[6]}, {sR0}", f"v_add_u32 v226, {T[6]}, v226",
          "v_lshlrev_b32 v226, 12, v226", f"v_and_b32 v8, 7, {vLANE}", "v_lshl_add_u32 v226, v8, 4, v226",
          f"s_lshl_b32 {T[6]}, {sW}, 7", f"v_add_u32 v226, {T[6]}, v226")
        a(f"v_and_b32 v8, 15, {vLANE}", f"v_lshrrev_b32 v9, 4, {vLANE}", "v_lshlrev_b32 v8, 10, v8", "v_lshl_add_u32 v62, v9, 3, v8")
        a(f"v_and_b32 v10, 15, {vLANE}", f"v_bfe_u32 v11, {vLANE}, 4, 1", f"v_lshrrev_b32 v12, 5, {vLANE}",
          "v_lshlrev_b32 v10, 4, v10", "v_lshl_add_u32 v10, v11, 14, v10", "v_lshl_add_u32 v227, v12, 3, v10")
        for r in range(self.NM, self.NM + 0): pass

    def w128_addresses(self, r, t0=28):
        a = self.a
        p, q, u, x, y = ("v%d" % (t0 + i) for i in range(5))
        a(f"v_lshrrev_b32 {p}, 3, {vLANE}", f"v_and_b32 {q}, 7, {vLANE}", f"v_bfe_u32 {u}, {vLANE}, 4, 1",
          f"v_lshrrev_b32 {x}, 1, {q}", f"v_xor_b32 {x}, {x}, {u}", f"v_and_b32 {y}, 1, {q}", f"v_lshl_or_b32 {x}, {x}, 1, {y}",
          f"v_lshlrev_b32 {x}, 4, {x}", f"v_lshl_add_u32 {x}, {p}, 10, {x}",
          f"s_lshl_b32 {T[6]}, {sCB}, 7", f"v_add_u32 v{r}, {T[6]}, {x}", f"v_xor_b32 v{r + 1}, 64, v{r}",
          f"v_add_u32 v{r + 1}, {7 * 1024}, v{r + 1}", f"v_add_u32 v{r + 2}, {14 * 1024}, v{r}", f"v_add_u32 v{r + 3}, {14 * 1024}, v{r + 1}")

    def w128_dma(self, r, srd, pos, lds, nsteps):
        L = [f"s_lshr_b32 {T[4]}, {pos}, 1", f"s_add_u32 {T[4]}, {T[4]}, {sU[4]}"]
        n = nsteps // 2
        if n & (n - 1) == 0: L.append(f"s_and_b32 {T[4]}, {T[4]}, {n - 1}")
        else: L += [f"s_cmp_ge_u32 {T[4]}, {n}", f"s_cselect_b32 {T[7]}, {n}, 0", f"s_sub_u32 {T[4]}, {T[4]}, {T[7]}"]
        L += [f"s_lshl_b32 {T[4]}, {T[4]}, 1", f"s_and_b32 {T[7]}, {pos}, 1", f"s_add_u32 {T[4]}, {T[4]}, {T[7]}", f"s_lshl_b32 {T[4]}, {T[4]}, 15",
              f"s_mov_b32 m0, {lds}"]
        return L, [f"buffer_load_dwordx4 v{r + i}, {srd}, {T[4]} offen offset:{1024 * i} lds" for i in range(4)]

    def stage_base(self, t): return LA + 16384 * t if t < 4 else LB + 16384 * (t - 4)

    def kv_dma(self, t):
        L = [([f"s_add_u32 m0, {sU[1]}, {self.stage_base(t)}"] if i == 0 else [],
              f"buffer_load_dwordx4 {vL16}, {sWS}, {sROT[t]} offen offset:{1024 * i} sc1 lds") for i in range(4)]
        return L

    def phase_attn(self):
        a = self.a
        S, OA, NM, QF, KB, VB = self.S, self.OA, self.NM, self.QF, self.KB, self.VB
        a(f"s_lshl_b32 {T[0]}, {sW}, 5", f"s_add_u32 {T[0]}, {T[0]}, {sHEAD}", f"s_lshl_b32 {T[0]}, {T[0]}, 7", f"s_add_u32 {T[0]}, {T[0]}, {WS_F1}",
          f"s_lshl_b32 {T[1]}, {sHEAD}, 16", f"s_lshl_b32 {T[2]}, {sJ}, 13", f"s_add_u32 {T[1]}, {T[1]}, {T[2]}",
          f"s_lshl_b32 {T[2]}, {sW}, 11", f"s_add_u32 {T[1]}, {T[1]}, {T[2]}", f"s_add_u32 {T[1]}, {T[1]}, {WS_Q}",
          )
        for r in range(OA, OA + 32): a(f"v_mov_b32 v{r}, 0")
        a(f"s_lshr_b32 {P[0]}, {sHEAD}, 1", f"s_lshl_b32 {P[0]}, {P[0]}, 10", f"s_and_b32 {P[1]}, {sHEAD}, 1", f"s_lshl_b32 {P[1]}, {P[1]}, 9",
          f"s_add_u32 {P[0]}, {P[0]}, {P[1]}", f"s_lshl_b32 {P[1]}, {sJ}, 18", f"s_add_u32 {P[0]}, {P[0]}, {P[1]}",
          f"s_lshl_b32 {P[1]}, {sW}, 16", f"s_add_u32 {P[0]}, {P[0]}, {P[1]}", f"s_add_u32 {P[0]}, {P[0]}, {WS_O}", f"s_add_u32 {P[1]}, {P[0]}, 0x8000",
          f"s_lshl_b32 {P[2]}, {sJ}, 2", f"s_add_u32 {P[2]}, {P[2]}, {sW}", f"s_lshl_b32 {P[2]}, {P[2]}, 12",
          f"s_lshl_b32 {P[3]}, {sHEAD}, 7", f"s_add_u32 {P[2]}, {P[2]}, {P[3]}", f"s_add_u32 {P[2]}, {P[2]}, {WS_F2}",
          f"s_lshl_b32 {P[3]}, {sRH}, 15", f"s_lshl_b32 {P[4]}, {sR0}, 10", f"s_add_u32 {P[3]}, {P[3]}, {P[4]}",
          f"s_lshl_b32 {P[4]}, {sCB}, 7", f"s_add_u32 {P[3]}, {P[3]}, {P[4]}", f"s_lshl_b32 {P[4]}, {sCH}, 6", f"s_add_u32 {P[3]}, {P[3]}, {P[4]}",
          f"s_add_u32 {P[4]}, {P[3]}, 0x4000")
        self.w128_read_base(28, 2)
        wolate = self.opt.get("wolate", 1)
        if wolate: a(f"v_add_u32 v28, {LB}, v28", f"v_add_u32 v29, {LB}, v29")
        L, E, F = a.label("s1"), a.label("s1own"), a.label("s1all")
        a(f"s_mov_b32 {sPOLL}, 0x40000", f"s_lshl_b32 {T[2]}, 1, {sJ}", f"{L}:", f"buffer_load_dwordx2 v[8:9], {vFP8}, {sWS}, {T[0]} offen sc1")
        a.wait(vm=a.vm, force=True)
        a(f"v_cmp_ne_u64 vcc, {sTAG}, v[8:9]", f"s_sub_u32 {sPOLL}, {sPOLL}, 1", f"s_cbranch_scc1 {E}",
          f"s_and_b32 {T[3]}, vcc_lo, {T[2]}", f"s_cbranch_scc1 {L}", f"{E}:", "s_mov_b64 s[60:61], vcc")
        self.stamp("s1")
        for q in range(2):
            a(f"buffer_load_dwordx4 {v(QF + 4 * q, 4)}, {vL16}, {sWS}, {T[1]} offen offset:{1024 * q} sc1")
        kvtok = {}
        def issue(items):
            for pre, ins in items: a(*pre, ins) if pre else a(ins)
        issue(self.kv_dma(0)); kvtok[0] = a.vtok()
        a(f"s_and_b32 {sU[3]}, s60, 0xff", f"s_mov_b32 {sU[2]}, {T[0]}")
        def remote_check(t0, t1):
            def f():
                if self.opt.get("norem"): return
                self.mask_check(t0, t1, sJ, sU[2], sU[3], 8)
            return f
        if self.opt.get("ahead"): a(f"buffer_load_dwordx4 v[228:231], v226, {sWSP}, {sU[4]} offen")
        a.wait(vm=kvtok[0], lg=a.lg)
        self.barrier()
        def kread(kt):
            t, k = kt >> 3, kt & 7
            base = self.vKA if t < 4 else self.vKB2
            return f"ds_read_b128 {v(KB + 4 * (kt & 1), 4)}, v{base} offset:{16384 * (t & 3) + (k >> 1) * 4096 + (k & 1) * 1024}"
        def vread(kt, hi):
            k = kt & 7
            return f"ds_read_b128 {v(VB + 8 * (kt & 1) + 4 * hi, 4)}, v{self.vVB} offset:{(k >> 1) * 4096 + 2048 + (k & 1) * 1024 + 512 * hi}"
        def qk(n, c=None):
            kt, q = n >> 1, n & 1
            return f"v_mfma_f32_32x32x16_bf16 {v(S + 16 * (n % 3), 16)}, {v(KB + 4 * (kt & 1), 4)}, {v(QF + 4 * q, 4)}, {c if c else v(NM + 16 * q, 16)}"
        def pv(n, hi):
            kt, q = n >> 1, n & 1
            return f"v_smfmac_f32_32x32x32_bf16 {v(OA + 16 * q, 16)}, {v(VB + 8 * (kt & 1) + 4 * hi, 4)}, {v(S + 16 * (n % 3) + 8 * hi, 8)}, v{self.vIDX}"
        a(kread(0), kread(1), vread(0, 0), vread(0, 1))
        a.wait(lg=a.lg)
        a(qk(0, "0"), qk(1, "0"))
        for q in range(2):
            b, m = S + 16 * q, 8 + 2 * q
            a(f"v_max3_f32 v{m}, v{b}, v{b + 1}, v{b + 2}")
            for k in range(3, 15, 2): a(f"v_max3_f32 v{m}, v{m}, v{b + k}, v{b + k + 1}")
            a(f"v_max_f32 v{m}, v{m}, v{b + 15}", f"v_mov_b32 v{m + 1}, v{m}")
        for q in range(2): a(f"v_permlane32_swap_b32 v{8 + 2 * q}, v{9 + 2 * q}")
        for q in range(2):
            m = 8 + 2 * q
            a(f"v_max_f32 v{m}, v{m}, v{m + 1}", f"v_sub_f32 v{m}, 0, v{m}")
            for r in range(0, 16, 2): a(f"v_pk_mov_b32 {v(NM + 16 * q + r, 2)}, {v(m, 2)}, {v(m, 2)} op_sel:[0,0]")
            a(qk(q))
        self.stamp("attn_start")
        if self.stamps: a("s_memtime s[100:101]", "s_waitcnt lgkmcnt(0)", "s_mov_b32 s99, s100")
        wotok = [-1]
        wo = []
        FREE0 = "free"
        for g in range(4):
            a(f"s_lshl_b32 {T[4]}, {sW}, 1", f"s_add_u32 {T[4]}, {T[4]}, {g >> 1}", f"s_add_u32 {T[4]}, {T[4]}, {sCB}", f"s_and_b32 {T[4]}, {T[4]}, 7",
              f"s_lshl_b32 {T[4]}, {T[4]}, 16", f"s_add_u32 {T[g]}, {T[4]}, {(g & 1) * 32768}")
            ins = [f"buffer_load_dwordx4 v{self.vWD0 + i}, {sWO}, {T[g]} offen offset:{1024 * i} lds" for i in range(4)]
            wo += [([f"s_lshl_b32 {sU[3]}, {sW}, 14", f"s_add_u32 m0, {sU[3]}, {(LB if wolate else LA) + g * 4096}"], ins[0]), ([], ins[1]), ([], ins[2]), ([], ins[3])]
        a(f"s_lshl_b32 {T[6]}, {sHEAD}, 2", f"s_add_u32 {T[6]}, {T[6]}, {sW}", f"s_mul_i32 {T[6]}, {T[6]}, 11008")
        pfw = [([f"s_add_u32 {T[6]}, {T[6]}, 4096"] if i and i % 4 == 0 else [],
                f"buffer_load_dwordx4 v[228:231], {vL16}, {sWIN}, {T[6]} offen offset:{(i % 4) * 1024}") for i in range(11)]
        if not self.opt.get("pfw"): pfw = []
        a(f"s_mov_b32 {T[7]}, {sU[4]}", f"s_mov_b32 {sU[4]}, {sCB}")
        w2c = self.win_dma(1, 28, 1, (T[4], T[5], T[6], sU[0]))
        self.emit(w2c[0][:-1]); a(f"s_mov_b32 {T[4]}, m0", f"s_mov_b32 {sU[4]}, {T[7]}")
        pfw += [([f"s_mov_b32 m0, {T[4]}"], w2c[0][-1]), ([], w2c[1][-1]), ([], w2c[2][-1])]
        if wolate:
            wo_late, wo = wo, [FREE0] * 16
        pf2 = []
        if self.opt.get("pf2", 1):
            a(f"s_lshl_b32 {T[5]}, s2, 2", f"s_add_u32 {T[5]}, {T[5]}, {sW}", f"s_mul_i32 {T[6]}, {T[5]}, 1376", f"s_mul_i32 {T[7]}, {T[5]}, 688",
              f"s_lshl_b32 {T[5]}, {T[5]}, 9",
              f"v_min_u32 v50, 42, {vLANE}", "v_lshlrev_b32 v50, 4, v50", f"v_min_u32 v51, 21, {vLANE}", "v_lshlrev_b32 v51, 4, v51",
              f"v_min_u32 v49, 31, {vLANE}", "v_lshlrev_b32 v49, 4, v49")
            J = "v[228:231]"
            pf2 = [([], f"buffer_load_dwordx4 {J}, v49, {sWO}, {T[5]} offen"), ([], f"buffer_load_dwordx4 {J}, {vL16}, {sWIN}, {T[6]} offen"),
                   ([], f"buffer_load_dwordx4 {J}, v51, {sWIN}, {T[6]} offen offset:1024"), ([], f"buffer_load_dwordx4 {J}, v50, {sWOUT}, {T[7]} offen")]
        if self.opt.get("pfs2", 0) == 1:
            pre0 = [f"s_lshl_b32 {sU[0]}, s2, 2", f"s_add_u32 {sU[0]}, {sU[0]}, {sW}", f"s_lshl_b32 {sU[0]}, {sU[0]}, 13"]
            pf3 = [(pre0 if i == 0 else [f"s_add_u32 {sU[0]}, {sU[0]}, 4096"] if i == 2 else [],
                    f"buffer_load_dwordx4 v[228:231], {vL16}, {sWSP}, {sU[0]} offen offset:{2048 + 1024 * (i & 1)}") for i in range(4)]
        else:
            pf3 = []
        post = {}
        slots = []
        spl = [([], f"buffer_load_dwordx4 {ar(((2 * t + sub) * 4 + tt) * 4, 4)}, v{self.vSP0 + tt}, {sWSP}, {sU[4 + t]} offen offset:{64 * sub}")
               for t in range(8) for sub in range(2) for tt in range(4)]
        lag = self.opt.get("splag", 0)
        if lag:
            first = [x for i, x in enumerate(spl) if (i >> 2) & 1 == 0]
            second = [x for i, x in enumerate(spl) if (i >> 2) & 1 == 1]
            spl = first[:lag]
            for i in range(lag, 32): spl += [first[i], second[i - lag]]
            spl += second[32 - lag:]
        if self.opt.get("nosp"): spl = []
        if self.opt.get("sp_eff"):
            spl = [([], f"buffer_load_dwordx4 {ar(k * 4, 4)}, v226, {sWSP}, {sU[4 + (k >> 3)]} offen offset:{(k & 7) * 512}") for k in range(64)]
            if self.opt.get("sp_eff") == 2:
                a(f"v_and_b32 v226, 0x3ffff, v226")
        slots = [None] * 128
        kv1 = self.kv_dma(1); kv1[0] = ([remote_check(1, 3)] + kv1[0][0], kv1[0][1])
        post[kv1[-1][1]] = lambda: kvtok.__setitem__(1, a.vtok())
        FREE = FREE0
        fewbar = self.opt.get("fewbar", 0)
        for t in range(8):
            kv = []
            if t < 6:
                kv = self.kv_dma(t + 2); post[kv[-1][1]] = (lambda t=t: kvtok.__setitem__(t + 2, a.vtok()))
                if t == 1: kv[0] = ([remote_check(3, 8)] + kv[0][0], kv[0][1])
            if t == 0:
                st = [None, None] + kv1 + kv + [pfw.pop(0) for _ in range(len(pfw))]
                st += [FREE] * (16 - len(st))
            else:
                if t < 6:
                    ex = pf2 if t == self.opt.get("pf2at", 2) and pf2 else pf3 if t == self.opt.get("pf3at", 1) and pf3 else [FREE] * 4
                    oth = [x for pair in zip(kv, ex) for x in pair]
                else:
                    oth = [wo.pop(0) for _ in range(8)]
                st = [x for pair in zip(oth, [FREE] * 8) for x in pair]
            slots[16 * t:16 * t + 16] = st
        lpf = self.opt.get("lpf", 0)
        if lpf:
            a(f"s_lshl_b32 {P[5]}, s2, 2", f"s_add_u32 {P[5]}, {P[5]}, {sW}", f"s_lshl_b32 {P[5]}, {P[5]}, 13", f"v_add_u32 v232, 4096, {vL16}")
            pf = [([], f"buffer_load_dwordx4 v[228:231], {vL16 if r == 0 else 'v232'}, {sWSP}, {P[5]} offen offset:{1024 * q}") for q in range(4) for r in range(2)]
            start = self.opt.get("lpfstart", 26)
            for i in range(start):
                if slots[i] is FREE: slots[i] = pf.pop(0) if pf else None
            assert not pf, len(pf)
        if fewbar:
            def kvslots(t): return [i for i, x in enumerate(slots) if x and x is not FREE and f"{sROT[t]} offen" in x[1] and "sc1 lds" in x[1]]
            kvi = {t: [slots[i] for i in kvslots(t)] for t in range(3, 8)}
            for t in range(3, 8):
                for i in kvslots(t): slots[i] = FREE
            plan = {3: [16 + 2 * i for i in range(4)], 4: [32 + 2 * i for i in range(4)], 5: [40 + 2 * i for i in range(4)],
                    6: [64 + 2 * i for i in range(4)], 7: [72 + 2 * i for i in range(4)]}
            for t in range(3, 8):
                for i, x in zip(plan[t], kvi[t]):
                    if slots[i] is not FREE and slots[i] is not None:
                        j = next(k for k in range(i + 1, 128) if slots[k] is FREE); slots[j] = slots[i]
                    slots[i] = x
        if self.opt.get("kvearly", 0):
            kvs = [self.kv_dma(t) for t in range(2, 8)]
            for t, kv in zip(range(2, 8), kvs): post[kv[-1][1]] = (lambda t=t: kvtok.__setitem__(t, a.vtok()))
            w2cs = [x for x in slots[:16] if x and x is not FREE and str(sWIN) in x[1]]
            wos = [x for x in slots if x and x is not FREE and str(sWO) in x[1] and " lds" in x[1]]
            pre0 = [f"s_lshl_b32 {sU[2]}, s2, 2", f"s_add_u32 {sU[2]}, {sU[2]}, {sW}", f"s_lshl_b32 {sU[2]}, {sU[2]}, 13"]
            pfs = [(pre0 if i == 0 else [f"s_add_u32 {sU[2]}, {sU[2]}, 4096"] if i == 4 else [],
                    f"buffer_load_dwordx4 v[228:231], {vL16}, {sWSP}, {sU[2]} offen offset:{1024 * (i & 3)}") for i in range(8)]
            if self.opt.get("nopfs"): pfs = []
            head = [None, None] + kv1 + [x for kv in kvs for x in kv] + w2cs + pf2 + pfs
            q0 = self.opt.get("spstart", 50)
            assert len(head) <= q0
            slots = head + [None] * (q0 - len(head)) + [FREE] * (128 - q0)
            w0 = 128 - 2 * len(wos) - self.opt.get("wogap", 4)
            for i, x in enumerate(wos): slots[w0 + 2 * i] = x
        fr = [i for i, x in enumerate(slots) if x is FREE]
        for i in fr: slots[i] = None
        if self.opt.get("nowo"): slots = [x if not (x and str(sWO) in x[1]) else None for x in slots]; wotok[0] = a.vtok()
        if self.opt.get("nokv"):
            for t in range(1, 8): kvtok[t] = a.vtok()
            slots = [x if not (x and "sc1 lds" in x[1]) else None for x in slots]
        extra2 = {}
        for k, it in enumerate(spl):
            i = fr[(k * len(fr)) // len(spl)]
            if slots[i] is None: slots[i] = it
            else: extra2.setdefault(i, []).append(it[1])
        assert not wo and not pfw, (len(wo), len(pfw))
        last_wo = ([x for x in slots if x and str(sWO) in x[1]] or [(0, "none")])[-1][1]
        post[last_wo] = lambda: wotok.__setitem__(0, a.vtok())
        def vm_slot(i):
            if i < len(slots) and slots[i]:
                a(slots[i][1])
                if slots[i][1] in post: post[slots[i][1]]()
                for x in extra2.get(i, []): a(x)
        def vm_pre(i):
            if i < len(slots) and slots[i]: self.emit(slots[i][0])
        ac = self.opt.get("ac", 1)
        def lds_wait(kt):
            t = kt >> 3
            if kt & 7 == 5 and kt < 56 and fewbar:
                if t in (0, 1, 3, 5):
                    a.wait(vm=kvtok[1 if t == 0 else t + 2], lg=a.lg); self.barrier()
                else:
                    a.wait(lg=a.lg)
            elif kt & 7 == 5 and kt < 56:
                a.wait(vm=kvtok[(kt >> 3) + 1] if not self.opt.get("nokvw") else None, lg=a.lg)
                if not self.opt.get("nobar"): self.barrier()
            else:
                a.wait(lg=a.lg)
        vm_pre(0)
        for n in range(128):
            kt, q = n >> 1, n & 1
            b = S + 16 * (n % 3)
            E = lambda lo, hi: [a(f"v_exp_f32 v{b + r}, v{b + r}") for r in range(lo, hi)]
            E(0, 2)
            if n > 0: a(pv(n - 1, 1))
            if q == 0:
                if kt + 2 < 64: a(kread(kt + 2))
                if (kt + 1) & 7 == 0 and kt + 1 < 64:
                    for _ in range(3 if kt + 1 == 32 else 1): a(f"v_add_u32 v{self.vVB}, v{self.vVB}, v{self.vVI}")
            else:
                vm_slot(2 * kt)
                if not ac: vm_pre(2 * kt + 1)
            E(2, 7)
            if n + 2 < 128: a(qk(n + 2))
            if q == 0:
                if kt + 1 < 64: a(vread(kt + 1, 0))
            elif ac:
                lds_wait(kt); vm_pre(2 * kt + 1)
            else:
                vm_slot(2 * kt + 1)
            E(7, 12)
            a(pv(n, 0))
            if q == 0:
                if kt + 1 < 64: a(vread(kt + 1, 1))
                if kt > 0: vm_pre(2 * kt)
            elif ac:
                vm_slot(2 * kt + 1)
            else:
                lds_wait(kt)
            if q == 1 and self.opt.get("sp_ds"): a(f"ds_read_b128 v[228:231], v{self.vKA} offset:{kt * 1024}")
            E(12, 16)
        a.wait(vm=None if wolate else wotok[0], lg=a.lg)
        a(pv(127, 1))
        self.barrier()
        self.stamp("attn_loop")
        if self.stamps: a("s_memtime s[100:101]", "s_waitcnt lgkmcnt(0)", "s_sub_u32 s99, s100, s99")
        for q in range(2):
            o = OA + 16 * q
            a(f"v_pk_add_f32 {v(8 + 4 * q, 2)}, {v(o, 2)}, {v(o + 2, 2)}", f"v_pk_add_f32 {v(10 + 4 * q, 2)}, {v(o + 4, 2)}, {v(o + 6, 2)}")
        for q in range(2): a(f"v_pk_add_f32 {v(8 + 4 * q, 2)}, {v(8 + 4 * q, 2)}, {v(10 + 4 * q, 2)}")
        a("v_add_f32 v8, v8, v9", "v_add_f32 v12, v12, v13", "v_add_f32 v8, v8, v12", f"v_max_f32 v9, v{OA + 8}, v{OA + 24}",
          f"v_add_f32 v10, v{OA + 8}, v{OA + 24}", "v_add_f32 v8, v8, v10",
          f"s_mov_b32 {T[6]}, 0x207", f"v_cmp_class_f32_e64 vcc, v8, {T[6]}",
          f"s_mov_b64 s[60:61], vcc", f"v_cmp_le_f32 vcc, {f2u(2.0 ** 64)}, v9", "s_or_b64 vcc, vcc, s[60:61]")
        if self.force_fallback: a("s_mov_b64 vcc, -1")
        a("s_cbranch_vccnz L_attn_slow", "L_attn_done:")
        for q in range(2): a(f"v_rcp_f32 v{8 + q}, v{OA + 16 * q + 8}")
        for q in range(2):
            o = OA + 16 * q
            for k in range(8): a(f"v_mul_f32 v{o + k}, v{o + k}, v{8 + q}")
            for k in range(4): a(f"v_cvt_pk_bf16_f32 v{192 + 4 * q + k}, v{o + 2 * k}, v{o + 2 * k + 1}")
            for hf in range(2):
                a(f"buffer_store_dwordx2 {v(192 + 4 * q + 2 * hf, 2)}, v227, {sWS}, {P[q]} offen offset:{256 * hf} sc1")
        rd = [f"ds_read_b64_tr_b16 {v(64 + (nt * 16 + p) * 4 + 2 * hf, 2)}, v{28 + nt} offset:{p * 4096 + hf * 512}"
              for p in range(16) for nt in range(2) for hf in range(2)]
        if wolate:
            otok = a.vtok()
            k = self.opt.get("wopre", 8)
            for pre, ins in wo_late[:k]: a(*pre, ins)
            self.flag_store(P[2], otok)
            self.stamp("attn_pub")
            for pre, ins in wo_late[k:]: a(*pre, ins)
            self.wo_tok, self.wo_rd = a.vtok(), rd
        else:
            k = self.opt.get("rdpre", 24)
            self.emit(rd[:k])
            self.flag_store(P[2])
            self.stamp("attn_pub")
            self.emit(rd[k:])
        for rt in range(2):
            for nt in range(2):
                a(f"buffer_load_dwordx2 {v(self.vXR + 4 * rt + 2 * nt, 2)}, v62, {sX}, {P[3 + rt]} offen offset:{32 * nt}")

    def w128_read_base(self, b, n, tmp=(64, 65, 66, 67), b1=None):
        a = self.a
        p, q, r, t = ("v%d" % x for x in tmp)
        a(f"v_lshrrev_b32 {p}, 4, {vLANE}", f"v_bfe_u32 {q}, {vLANE}, 2, 2", f"v_and_b32 {r}, 3, {vLANE}",
          f"v_lshl_add_u32 {t}, {p}, 3, {q}", f"v_lshlrev_b32 {t}, 7, {t}", f"v_lshl_add_u32 {t}, {r}, 3, {t}",
          f"v_lshrrev_b32 {q}, 1, {q}", f"v_and_b32 {p}, 1, {p}", f"v_lshl_or_b32 {q}, {p}, 1, {q}",
          f"s_lshl_b32 {T[3]}, {sCH}, 1", f"v_xor_b32 {q}, {T[3]}, {q}", f"v_lshl_add_u32 v{b}, {q}, 5, {t}")
        a(f"v_xor_b32 v{b1 if b1 else b + 1}, 32, v{b}")

    def attn_slow(self):
        a = self.a
        S, OA, NM, QF, KB, VB = self.S, self.OA, self.NM, self.QF, self.KB, self.VB
        a.vm_done = a.vm; a.lg_done = a.lg
        a("L_attn_slow:", "s_nop 15", f"s_lshl_b32 {sU[4]}, {sHEAD}, 17", f"s_add_u32 {sU[4]}, {sU[4]}, {WS_KV}",
          f"v_mov_b32 v8, 0xff800000", f"v_mov_b32 v10, 0xff800000", f"s_mov_b32 {sU[5]}, 0")
        def kaddr():
            a(f"s_lshr_b32 {sU[6]}, {sU[5]}, 1", f"s_lshl_b32 {sU[6]}, {sU[6]}, 12", f"s_and_b32 {sU[7]}, {sU[5]}, 1", f"s_lshl_b32 {sU[7]}, {sU[7]}, 10",
              f"s_add_u32 {sU[6]}, {sU[6]}, {sU[7]}", f"s_add_u32 {sU[6]}, {sU[6]}, {sU[4]}")
        a("L_slow_max:"); kaddr()
        a(f"buffer_load_dwordx4 {v(KB, 4)}, {vL16}, {sWS}, {sU[6]} offen sc1"); a.wait(vm=a.vm, force=True)
        for q in range(2):
            a(f"v_mfma_f32_32x32x16_bf16 {v(S + 16 * q, 16)}, {v(KB, 4)}, {v(QF + 4 * q, 4)}, 0")
        for q in range(2):
            b, m = S + 16 * q, 8 + 2 * q
            for k in range(0, 16, 2): a(f"v_max3_f32 v{m}, v{m}, v{b + k}, v{b + k + 1}")
        a(f"s_add_u32 {sU[5]}, {sU[5]}, 1", f"s_cmp_lt_u32 {sU[5]}, 64", "s_cbranch_scc1 L_slow_max")
        a("v_mov_b32 v9, v8", "v_mov_b32 v11, v10")
        for q in range(2): a(f"v_permlane32_swap_b32 v{8 + 2 * q}, v{9 + 2 * q}")
        for q in range(2):
            m = 8 + 2 * q
            a(f"v_max_f32 v{m}, v{m}, v{m + 1}", f"v_sub_f32 v{m}, 0, v{m}")
            for r in range(16): a(f"v_mov_b32 v{NM + 16 * q + r}, v{m}")
        for r in range(OA, OA + 32): a(f"v_mov_b32 v{r}, 0")
        a(f"v_and_b32 v8, 27, {vLANE}", "v_cmp_eq_u32 vcc, 16, v8", f"v_mov_b32 v9, {sONES}", "v_cndmask_b32 v9, v3, v9, vcc")
        for r in range(8): a(f"v_mov_b32 v{VB + r}, v9")
        a(f"v_and_b32 v8, 15, {vLANE}", f"v_lshrrev_b32 v10, 5, {vLANE}", "v_lshl_add_u32 v10, v10, 4, v8", "v_lshlrev_b32 v10, 4, v10",
          f"s_mov_b32 {sU[5]}, 0", "s_mov_b32 s60, 0x0000ffff", "s_mov_b32 s61, 0x0000ffff")
        a("L_slow_pv:"); kaddr()
        a(f"buffer_load_dwordx4 {v(KB, 4)}, {vL16}, {sWS}, {sU[6]} offen sc1", f"s_add_u32 {sU[6]}, {sU[6]}, 2048", "s_mov_b64 exec, s[60:61]",
          f"buffer_load_dwordx4 {v(VB, 4)}, v10, {sWS}, {sU[6]} offen sc1",
          f"buffer_load_dwordx4 {v(VB + 4, 4)}, v10, {sWS}, {sU[6]} offen offset:512 sc1", "s_mov_b64 exec, -1")
        a.wait(vm=a.vm, force=True)
        for q in range(2):
            a(f"v_mfma_f32_32x32x16_bf16 {v(S + 16 * q, 16)}, {v(KB, 4)}, {v(QF + 4 * q, 4)}, {v(NM + 16 * q, 16)}")
        for q in range(2):
            for r in range(16): a(f"v_exp_f32 v{S + 16 * q + r}, v{S + 16 * q + r}")
            for hi in range(2):
                a(f"v_smfmac_f32_32x32x32_bf16 {v(OA + 16 * q, 16)}, {v(VB + 4 * hi, 4)}, {v(S + 16 * q + 8 * hi, 8)}, v{self.vIDX}")
        a(f"s_add_u32 {sU[5]}, {sU[5]}, 1", f"s_cmp_lt_u32 {sU[5]}, 64", "s_nop 15", "s_cbranch_scc1 L_slow_pv", "s_nop 15", "s_branch L_attn_done")

    def rot_table(self, npairs, mul):
        a = self.a
        a(f"s_mul_i32 {sU[4]}, {sCB}, {mul}")

    @staticmethod
    def gpos(p): return LRED + 4096 * p if p < 16 else 4096 * (p - 16)

    def rot_index(self, dst, pos, npairs):
        L = [f"s_add_u32 {dst}, {sU[4]}, {pos}"]
        if npairs & (npairs - 1) == 0: L.append(f"s_and_b32 {dst}, {dst}, {npairs - 1}")
        else: L += [f"s_cmp_ge_u32 {dst}, {npairs}", f"s_cselect_b32 {T[7]}, {npairs}, 0", f"s_sub_u32 {dst}, {dst}, {T[7]}"]
        return L

    def act_dma(self, ws_off, steps, chunks, lds0, gpos=False):
        a = self.a
        a(f"s_lshr_b32 {T[0]}, {sR0}, 4", f"s_add_u32 {T[0]}, {T[0]}, {sW}", f"s_mul_i32 {T[0]}, {T[0]}, {steps * 1024}",
          f"s_add_u32 {sU[0]}, {T[0]}, {ws_off}", f"s_mul_i32 {T[1]}, {sW}, {1024 if gpos else steps * 1024}", f"s_add_u32 {sU[1]}, {T[1]}, {lds0}")
        toks = {}
        pre4 = self.opt.get("pre4", 1)
        if pre4:
            for q in range(4): a(*self.rot_index(P[2 + q], q, steps // 2), f"s_lshl_b32 {P[2 + q]}, {P[2 + q]}, 11", f"s_add_u32 {P[2 + q]}, {P[2 + q]}, {sU[0]}")
        def group(c):
            p0 = sum(chunks[:c]); L = []
            for k in range(chunks[c]):
                p = p0 + k
                it = []
                so = P[2 + (p >> 1)] if pre4 and p < 8 else T[2]
                if k % 2 == 0:
                    if so == T[2]:
                        it += self.rot_index(T[2], p >> 1, steps // 2)
                        it += [f"s_lshl_b32 {T[2]}, {T[2]}, 11", f"s_add_u32 {T[2]}, {T[2]}, {sU[0]}"]
                    if not gpos: it.append(f"s_add_u32 m0, {sU[1]}, {p * 1024}")
                if gpos: it.append(f"s_add_u32 m0, {sU[1]}, {self.gpos(p) - (k % 2) * 1024}")
                it.append(f"buffer_load_dwordx4 {vL16}, {sWS}, {so} offen offset:{(k % 2) * 1024} sc1 lds")
                L.append(it)
            L[-1].append(lambda: toks.__setitem__(c, a.vtok()))
            return L
        return group, toks

    def cluster_flag_off(self, dst, base, own, shift=8):
        a = self.a
        a(f"s_lshl_b32 {dst}, {sCLU}, {shift}", f"s_add_u32 {dst}, {dst}, {base}")
        if own: a(f"s_lshl_b32 {T[7]}, {sCB}, 3", f"s_add_u32 {dst}, {dst}, {T[7]}")

    def stats_publish(self, s, base):
        a = self.a
        a(f"v_permlane32_swap_b32 v{s}, v{s + 1}", f"v_permlane32_swap_b32 v{s + 2}, v{s + 3}",
          f"v_add_f32 v{s}, v{s}, v{s + 1}", f"v_add_f32 v{s + 2}, v{s + 2}, v{s + 3}",
          f"v_permlane16_swap_b32 v{s}, v{s + 2}", f"v_add_f32 v{s}, v{s}, v{s + 2}")
        a(f"s_lshl_b32 {T[4]}, {sCLU}, 13", f"s_add_u32 {T[4]}, {T[4]}, {base}", f"s_lshl_b32 {T[5]}, {sRH}, 7", f"s_add_u32 {T[4]}, {T[4]}, {T[5]}",
          f"s_lshl_b32 {T[5]}, {sCB}, 1", f"s_add_u32 {T[5]}, {T[5]}, {sCH}", f"s_lshl_b32 {T[5]}, {T[5]}, 9", f"s_add_u32 {T[4]}, {T[4]}, {T[5]}",
          f"buffer_store_dword v{s}, v61, {sWS}, {T[4]} offen sc1")

    def stats_load(self, base, r):
        a = self.a
        a(f"s_lshl_b32 {T[4]}, {sCLU}, 13", f"s_add_u32 {T[4]}, {T[4]}, {base}", f"s_lshl_b32 {T[5]}, {sRH}, 7", f"s_add_u32 {T[4]}, {T[4]}, {T[5]}",
          f"s_add_u32 {T[5]}, {T[4]}, 4096")
        for p in range(16):
            a(f"buffer_load_dword v{r + p}, v61, {sWS}, {T[4] if p < 8 else T[5]} offen offset:{(p % 8) * 512} sc1")
        return a.vtok()

    SGR = 64
    def stats_publish_tagged(self, s, base):
        a = self.a
        a(f"v_permlane32_swap_b32 v{s}, v{s + 1}", f"v_permlane32_swap_b32 v{s + 2}, v{s + 3}",
          f"v_add_f32 v{s}, v{s}, v{s + 1}", f"v_add_f32 v{s + 2}, v{s + 2}, v{s + 3}",
          f"v_permlane16_swap_b32 v{s}, v{s + 2}", f"v_add_f32 v{s}, v{s}, v{s + 2}", f"v_mov_b32 v{s + 1}, v{s}",
          f"v_mov_b32 v{s + 2}, v4", f"v_mov_b32 v{s + 3}, v5", f"v_permlane32_swap_b32 v{s}, v{s + 1}")
        a(f"s_lshl_b32 {T[4]}, {sCLU}, 14", f"s_add_u32 {T[4]}, {T[4]}, {base}", f"s_lshl_b32 {T[5]}, {sRH}, 13", f"s_add_u32 {T[4]}, {T[4]}, {T[5]}",
          f"s_lshl_b32 {T[5]}, {sCB}, 1", f"s_add_u32 {T[5]}, {T[5]}, {sCH}", f"s_lshl_b32 {T[5]}, {T[5]}, 9", f"s_add_u32 {T[4]}, {T[4]}, {T[5]}",
          "s_mov_b32 exec_hi, 0", f"buffer_store_dwordx4 {v(s, 4)}, {vL16}, {sWS}, {T[4]} offen sc1", "s_mov_b32 exec_hi, -1")

    def stats_tagged_loads(self, base, r):
        R = r if isinstance(r, (list, tuple)) else [r + 4 * p for p in range(8)]
        L = [[f"buffer_load_dwordx4 {v(R[p], 4)}, v61, {sWS}, {sU[3]} offen offset:{512 * p} sc1"] for p in range(8)]
        L[0] = [f"s_lshl_b32 {sU[3]}, {sCLU}, 14", f"s_add_u32 {sU[3]}, {sU[3]}, {base}", f"s_lshl_b32 {T[5]}, {sRH}, 13", f"s_add_u32 {sU[3]}, {sU[3]}, {T[5]}",
                f"v_and_b32 v61, 31, {vLANE}", "v_lshlrev_b32 v61, 4, v61", f"v_lshrrev_b32 v54, 5, {vLANE}", "v_lshl_add_u32 v61, v54, 12, v61"] + L[0]
        return L

    def stats_tagged_finish(self, base, r, inv_n, d):
        a = self.a
        L, E = a.label("st_retry"), a.label("st_ok")
        a(f"s_mov_b32 {sPOLL}, 0x40000", f"{L}:")
        a.wait(vm=a.vm, force=True)
        a(f"v_cmp_ne_u64 s[60:61], {sTAG}, {v(r + 2, 2)}")
        for p in range(1, 8): a(f"v_cmp_ne_u64 vcc, {sTAG}, {v(r + 4 * p + 2, 2)}", "s_or_b64 s[60:61], s[60:61], vcc")
        a("s_cmp_eq_u64 s[60:61], 0", f"s_cbranch_scc1 {E}", f"s_sub_u32 {sPOLL}, {sPOLL}, 1", f"s_cbranch_scc1 {E}")
        a.cond_begin()
        for it in self.stats_tagged_loads(base, r)[0][-1:]: a(it)
        for it in self.stats_tagged_loads(base, r)[1:]: self.emit(it)
        a.cond_end()
        a(f"s_branch {L}", f"{E}:")
        a.vm_done = a.vm
        self.stats_sum(r, inv_n, d)

    def stats_sum(self, r, inv_n, d):
        a = self.a
        R = r if isinstance(r, (list, tuple)) else [r + 4 * p for p in range(8)]
        for st in (4, 2, 1):
            for k in range(st): a(f"v_pk_add_f32 {v(R[k], 2)}, {v(R[k], 2)}, {v(R[k + st], 2)}")
        r = R[0]
        a(f"v_mov_b32 v{r + 2}, v{r}", f"v_mov_b32 v{r + 3}, v{r + 1}",
          f"v_permlane32_swap_b32 v{r}, v{r + 2}", f"v_permlane32_swap_b32 v{r + 1}, v{r + 3}",
          f"v_pk_add_f32 {v(r, 2)}, {v(r, 2)}, {v(r + 2, 2)}")
        self.ln_finish([(r, r + 1, d)], inv_n)
        a(f"v_mov_b32 v{d + 2}, v{d}", f"v_mov_b32 v{d + 3}, v{d + 1}",
          f"v_permlane16_swap_b32 v{d}, v{d + 2}", f"v_permlane16_swap_b32 v{d + 1}, v{d + 3}")

    def stats_sum_items(self, R, inv_n):
        L = []
        for st in (4, 2, 1):
            for k in range(st): L += [f"v_add_f32 v{R[k] + e}, v{R[k] + e}, v{R[k + st] + e}" for e in range(2)]
        r, t = R[0], R[1]
        L += [f"v_mov_b32 v{t}, v{r}", f"v_mov_b32 v{t + 1}, v{r + 1}", f"v_permlane32_swap_b32 v{r}, v{t}", f"v_permlane32_swap_b32 v{r + 1}, v{t + 1}",
              f"v_add_f32 v{t}, v{r}, v{t}", f"v_add_f32 v{t + 1}, v{r + 1}, v{t + 1}",
              f"v_mul_f32 v{t}, {f2u(inv_n)}, v{t}", f"v_mul_f32 v{t + 1}, {f2u(inv_n)}, v{t + 1}", f"v_fma_f32 v{t + 1}, -v{t}, v{t}, v{t + 1}",
              f"v_max_f32 v{t + 1}, 0, v{t + 1}", f"v_add_f32 v{t + 1}, {f2u(1e-5)}, v{t + 1}", f"v_rsq_f32 v{r}, v{t + 1}", f"v_mul_f32_e64 v{r + 1}, -v{t}, v{r}",
              f"v_mov_b32 v{r + 2}, v{r}", f"v_mov_b32 v{r + 3}, v{r + 1}", f"v_permlane16_swap_b32 v{r}, v{r + 2}", f"v_permlane16_swap_b32 v{r + 1}, v{r + 3}"]
        return L

    STR2 = [216, 220, 224, 228, 232, 236, 52, 252]
    STR = 216
    def stats_load_items(self, base, r):
        L = []
        for p in range(16):
            it = []
            if p == 0:
                it += [f"s_lshl_b32 {T[4]}, {sCLU}, 13", f"s_add_u32 {T[4]}, {T[4]}, {base}", f"s_lshl_b32 {T[5]}, {sRH}, 7",
                       f"s_add_u32 {T[4]}, {T[4]}, {T[5]}", f"s_add_u32 {T[5]}, {T[4]}, 4096"]
            it.append(f"buffer_load_dword v{r + p}, v61, {sWS}, {T[4] if p < 8 else T[5]} offen offset:{(p % 8) * 512} sc1")
            L.append(it)
        return L

    def stats_finish(self, r, inv_n, d):
        a = self.a
        for st in (8, 4, 2):
            for k in range(0, st, 2): a(f"v_pk_add_f32 {v(r + k, 2)}, {v(r + k, 2)}, {v(r + st + k, 2)}")
        a(f"v_add_f32 v{r}, v{r}, v{r + 1}", f"v_mov_b32 v{r + 1}, v{r}", f"v_permlane32_swap_b32 v{r}, v{r + 1}")
        self.ln_finish([(r, r + 1, d)], inv_n)
        a(f"v_mov_b32 v{d + 2}, v{d}", f"v_mov_b32 v{d + 3}, v{d + 1}",
          f"v_permlane16_swap_b32 v{d}, v{d + 2}", f"v_permlane16_swap_b32 v{d + 1}, v{d + 3}")

    def win_addresses(self):
        a = self.a
        for i in range(3):
            a(f"v_add_u32 v16, {64 * i}, {vLANE}", "v_mul_u32_u24 v17, 171, v16", "v_lshrrev_b32 v17, 11, v17",
              "v_mul_u32_u24 v18, 12, v17", "v_sub_u32 v18, v16, v18", "v_bfe_u32 v19, v17, 3, 1", "v_lshlrev_b32 v19, 1, v19",
              "v_xor_b32 v18, v18, v19", "v_mul_u32_u24 v17, 2752, v17", "v_lshl_add_u32 v17, v18, 4, v17",
              f"v_add_u32 v{56 + i}, {-1024 * i}, v17")
        a(f"v_lshrrev_b32 v16, 4, {vLANE}", f"v_bfe_u32 v17, {vLANE}, 2, 2", f"v_and_b32 v18, 3, {vLANE}",
          "v_lshl_add_u32 v19, v16, 3, v17", "v_mul_u32_u24 v19, 192, v19", "v_lshl_add_u32 v19, v18, 3, v19",
          "v_and_b32 v17, 1, v16", f"v_xor_b32 v17, {sCH}, v17", "v_lshl_add_u32 v59, v17, 5, v19", "v_add_u32 v60, 49152, v59",
          f"v_and_b32 v17, 15, {vLANE}", "v_lshlrev_b32 v17, 2, v17", "v_and_b32 v18, 1, v16", "v_lshl_add_u32 v17, v18, 6, v17",
          "v_lshrrev_b32 v16, 1, v16", "v_lshl_add_u32 v61, v16, 8, v17")

    def win_dma(self, half, g0, per_wave, regs=None, wave=sW):
        r5, r6, r2, r7 = regs or (sU[5], sU[6], sU[2], sU[7])
        L = []
        for k in range(per_wave):
            for i in range(3):
                it = []
                if k == 0 and i == 0:
                    it += [f"s_lshl_b32 {r5}, {sT0}, 5", f"s_mul_i32 {r6}, {wave}, {per_wave}", f"s_lshl_b32 {r2}, {sU[4]}, 2",
                           f"s_add_u32 {r2}, {r2}, {r6}", f"s_mul_i32 {r6}, {r6}, 3072"]
                if i == 0:
                    it += [f"s_add_u32 {r7}, {r2}, {g0 + k}", f"s_and_b32 {r7}, {r7}, 31", f"s_mul_i32 {r7}, {r7}, {16 * 2752}",
                           f"s_add_u32 {r7}, {r7}, {r5}"]
                    if half: it.append(f"s_add_u32 {r7}, {r7}, 1376")
                    it.append(f"s_add_u32 m0, {r6}, {(g0 + k) * 3072}")
                it.append(f"buffer_load_dwordx4 v{56 + i}, {sWIN}, {r7} offen offset:{1024 * i} lds")
                L.append(it)
        return L

    def kloop(self, n, reads, mfmas, before={}, late={}, head=None, per=2, extra=None):
        a = self.a
        tok = {}
        for s in range(min(2, n)):
            if s in (head or {}): head[s]()
            self.emit(reads(s)); tok[s] = a.ltok()
        self.kl = getattr(self, "kl", -1) + 1
        for s in range(n):
            a.wait(lg=tok[s])
            if s in before: before[s]()
            if s % 4 == 0: self.stamp(f"k{self.kl}s{s}")
            ms = mfmas(s)
            fill = list(reads(s + 2)) + [lambda s=s: tok.__setitem__(s + 2, a.ltok())] if s + 2 < n else []
            if extra: fill += extra(s)
            lt = list(late.get(s, []))
            k = len(ms) - len(lt)
            assert k >= 1, (s, len(ms), len(lt))
            interleave(a, ms[:k], fill, per=per)
            for m, it in zip(ms[k:], lt):
                a(m); self.emit(it)

    def emit_all(self, items):
        for it in items: self.emit(it)

    def emit(self, items):
        for x in items: x() if callable(x) else self.a(x)

    def phase_wo(self):
        a = self.a
        ACC = 192
        a(f"s_mov_b32 {sU[4]}, {sCB if not self.opt.get('noarot') else 0}")
        fine = self.opt.get("fine", 1)
        group, toks = self.act_dma(WS_O, 16, [2, 2, 4, 4, 4] if fine else [4, 4, 4, 4], LB)
        self.cluster_flag_off(T[3], WS_F2, False, 12)
        a(f"s_lshl_b32 {T[4]}, {sRH}, 15", f"s_add_u32 {T[4]}, {T[4]}, {LB}", f"v_add_u32 v30, {T[4]}, {vL16}")
        n2 = 3
        ng = self.opt.get("w2s2", 4)
        Lp, Le = a.label("s2poll"), a.label("s2end")
        if self.opt.get("wolate", 1):
            done = a.vm_done
            a(f"s_cmp_eq_u32 {sW}, 0", f"s_cbranch_scc1 {Lp}", f"s_sub_u32 {T[5]}, {sW}, 1")
            a.cond_begin()
            if self.opt.get("w2first", 0): self.emit_all(self.win_dma(1, 0, ng, wave=T[5]))
            a.cond_end()
            a(f"{Lp}:")
            a.vm_done = done
            a.wait(vm=self.wo_tok)
            self.barrier()
            self.emit(self.wo_rd)
            Lq = a.label("s2poll")
            done = a.vm_done
            a(f"s_cmp_eq_u32 {sW}, 0", f"s_cbranch_scc1 {Lq}", f"s_sub_u32 {T[5]}, {sW}, 1")
            a.cond_begin()
            if not self.opt.get("w2first", 0): self.emit_all(self.win_dma(1, 0, ng, wave=T[5]))
            a(f"s_branch {Le}", f"{Lq}:")
            self.poll(vFP32, T[3], 52)
            a(f"{Le}:")
            a.cond_end()
            a.vm_done = done
            a.wait(lg=a.lg)
            self.barrier()
        else:
            a.wait(lg=a.lg)
            self.barrier()
            done = a.vm_done
            a(f"s_cmp_eq_u32 {sW}, 0", f"s_cbranch_scc1 {Lp}", f"s_sub_u32 {T[5]}, {sW}, 1")
            a.cond_begin()
            self.emit_all(self.win_dma(1, 0, ng, wave=T[5]))
            a(f"s_branch {Le}", f"{Lp}:")
            self.poll(vFP32, T[3], 52)
            a.cond_end()
            a(f"{Le}:")
            a.vm_done = done
            self.barrier()
        self.stamp("s2")
        for c in range(2 + fine): self.emit_all(group(c))
        def buf(s, rt): return (208 + (s % 4) * 8 + rt * 4)
        def reads(s): return [f"ds_read_b128 {v(buf(s, rt), 4)}, v30 offset:{(rt * 16 + s) * 1024}" for rt in range(2)]
        def mfmas(s):
            return [mfma16(ACC + (rt * 2 + nt) * 4, v(64 + (nt * 16 + s) * 4, 4), v(buf(s, rt), 4), v(32 + (rt * 2 + nt) * 4, 4) if s == 0 else None) for rt in range(2) for nt in range(2)]
        def w(c):
            def f():
                a.wait(vm=toks[c]); self.barrier()
            return f
        def head0():
            a.wait(vm=toks[0], lg=a.lg)
            for i in range(8): a(f"v_lshlrev_b32 v{32 + 2 * i}, 16, v{self.vXR + i}", f"v_and_b32 v{33 + 2 * i}, {sHIMASK}, v{self.vXR + i}")
            self.barrier()
        g2, g3 = group(2 + fine), group(3 + fine)
        pw = (28 - 3 * ng + 3) // 4
        w2 = self.win_dma(1, 28 - 4 * pw, pw)
        late = {0: g2[:2], 1: g2[2:], 2: g3[:2], 3: g3[2:]}
        for i in range(min(len(w2), self.opt.get("w2in", 12))): late[self.opt.get("w2at", 3) + i] = late.get(self.opt.get("w2at", 3) + i, []) + [w2.pop(0)]
        late[15] = late.get(15, []) + [[f"s_lshr_b32 {T[0]}, {sR0}, 4", f"s_lshl_b32 {T[1]}, {sRH}, 1", f"s_add_u32 {T[0]}, {T[0]}, {T[1]}", f"s_lshl_b32 {T[0]}, {T[0]}, 14"],
                                       [f"s_lshl_b32 {T[1]}, {sCB}, 1", f"s_add_u32 {T[1]}, {T[1]}, {sCH}", f"s_lshl_b32 {T[1]}, {T[1]}, 10", f"s_add_u32 {T[0]}, {T[0]}, {T[1]}"],
                                       [f"s_add_u32 {T[0]}, {T[0]}, {WS_H}", f"s_add_u32 {T[1]}, {T[0]}, 0x4000"]]
        self.kloop(16, reads, mfmas, {0: w(1), 2: w(2), 6: w(3), 10: w(4)} if fine else {2: w(1), 6: w(2), 10: w(3)}, late, {0: head0}, per=1)
        self.w2rest = w2
        self.stamp("wo_gemm")
        for i in range(4):
            for k in range(2): a(f"v_cvt_pk_bf16_f32 v{vH + 2 * i + k}, v{ACC + 4 * i + 2 * k}, v{ACC + 4 * i + 2 * k + 1}")
        for rt in range(2):
            for nt in range(2):
                a(f"buffer_store_dwordx2 {v(vH + 4 * rt + 2 * nt, 2)}, {vPAT}, {sWS}, {T[rt]} offen offset:{512 * nt} sc1")
        for k in range(4):
            for rt in range(2):
                h = f"v{vH + 4 * rt + k}"
                a(f"v_dot2_f32_bf16 v{32 + 2 * rt}, {h}, {sONES}, {'0' if k == 0 else 'v%d' % (32 + 2 * rt)}",
                  f"v_dot2_f32_bf16 v{33 + 2 * rt}, {h}, {h}, {'0' if k == 0 else 'v%d' % (33 + 2 * rt)}")
        self.stats_publish_tagged(32, WS_ST3)
        self.cluster_flag_off(T[0], WS_F3, True)
        self.flag_store_wg(T[0])
        self.stamp("wo_pub")

    HF, ACC2, ACC1, WB, CS = 64, 192, 216, 28, 240

    def win_reads(self, s, read_h):
        L = []
        base = "v59" if s < 8 else "v60"
        for m in range(3):
            for hf in range(2):
                L.append(f"ds_read_b64_tr_b16 {v(self.wbuf(s) + 4 * m + 2 * hf, 2)}, {base} offset:{(s & 7) * 6144 + hf * 768 + m * 64}")
            if m == 0 and read_h:
                L += [f"ds_read_b128 {v(self.HF + (rt * 16 + s) * 4, 4)}, v62 offset:{(rt * 16 + s) * 1024}" for rt in range(2)]
        return L

    def wbuf(self, s): return (28, 40, 16)[s % 3]

    def win_gemm(self, acc, before, head, read_h, late={}, cs=False, extra=None):
        HF = self.HF
        def mfmas(s):
            L = []
            for m in range(3):
                L += [mfma16(acc + (rt * 3 + m) * 4, v(self.wbuf(s) + 4 * m, 4), v(HF + (rt * 16 + s) * 4, 4), "0" if s == 0 else None) for rt in range(2)]
                if cs: L.append(mfma16(self.CS + 4 * m, v(self.wbuf(s) + 4 * m, 4), "v[252:255]", "0" if s == 0 else None))
            return L
        self.kloop(16, lambda s: self.win_reads(s, read_h), mfmas, before, late, head, per=3 if extra else 2, extra=extra)

    def colsum_pass(self, late={}, before={}):
        def mfmas(s): return [mfma16(self.CS + 4 * m, v(self.wbuf(s) + 4 * m, 4), "v[252:255]", "0" if s == 0 else None) for m in range(3)]
        self.kloop(16, lambda s: self.win_reads(s, False), mfmas, before, late, per=3)

    def gelu_block(self, acc, st, tiles):
        a = self.a
        CS = self.CS
        K1 = -2.0 * 1.4426950408889634 * 0.7978845608028654
        K2 = K1 * 0.044715
        a(f"s_mov_b32 s60, {f2u(K2)}", f"s_mov_b32 s61, {f2u(K2)}", f"v_mov_b32 v52, {f2u(K1)}", f"v_mov_b32 v53, {f2u(K1)}")
        for i in range(0, len(tiles), 2):
            prs = [(acc + (rt * 3 + m) * 4 + 2 * k, CS + 4 * m + 2 * k, st + 2 * rt) for rt, m in tiles[i:i + 2] for k in range(2)]
            tm = [40, 42, 44, 46]
            for (x, c, r), t in zip(prs, tm): a(f"v_pk_mul_f32 {v(t, 2)}, {v(c, 2)}, {v(r, 2)} op_sel:[0,1] op_sel_hi:[1,1]")
            for (x, c, r), t in zip(prs, tm): a(f"v_pk_fma_f32 {v(x, 2)}, {v(x, 2)}, {v(r, 2)}, {v(t, 2)} op_sel:[0,0,0] op_sel_hi:[1,0,1]")
            for (x, c, r), t in zip(prs, tm): a(f"v_pk_mul_f32 {v(t, 2)}, {v(x, 2)}, {v(x, 2)}")
            for (x, c, r), t in zip(prs, tm): a(f"v_pk_fma_f32 {v(t, 2)}, {v(t, 2)}, s[60:61], v[52:53]")
            for (x, c, r), t in zip(prs, tm): a(f"v_pk_mul_f32 {v(t, 2)}, {v(t, 2)}, {v(x, 2)}")
            for k in range(8): a(f"v_exp_f32 v{40 + k}, v{40 + k}")
            for (x, c, r), t in zip(prs, tm): a(f"v_pk_add_f32 {v(t, 2)}, {v(t, 2)}, v[32:33]")
            for k in range(8): a(f"v_rcp_f32 v{40 + k}, v{40 + k}")
            for (x, c, r), t in zip(prs, tm): a(f"v_pk_mul_f32 {v(x, 2)}, {v(x, 2)}, {v(t, 2)}")

    def phase_win(self):
        a = self.a
        HF, ACC2, ACC1, CS = self.HF, self.ACC2, self.ACC1, self.CS
        self.emit_all(self.w2rest)
        for r in range(252, 256): a(f"v_mov_b32 v{r}, {sONES}")
        a(f"s_lshl_b32 {T[4]}, {sRH}, 15", f"s_add_u32 {T[4]}, {T[4]}, {LB}", f"v_add_u32 v62, {T[4]}, {vL16}")
        fine = self.opt.get("fine", 1)
        group, toks = self.act_dma(WS_H, 16, [2, 2, 4, 4, 4] if fine else [4, 4, 4, 4], LB)
        self.cluster_flag_off(T[3], WS_F3, False)
        if self.w2rest:
            a.wait(vm=a.vm)
            self.barrier()
        ptok = [-1]
        self.colsum_pass({self.opt.get("p3at", 12): [self.poll_early(vFP8, T[3], 52) + [lambda: ptok.__setitem__(0, a.vtok())]]})
        self.stamp("cs2")
        self.poll_late(vFP8, T[3], 52, ptok[0])
        self.stamp("s3")
        for c in range(2 + fine): self.emit_all(group(c))
        def w(c):
            def f():
                a.wait(vm=toks[c]); self.barrier()
            return f
        g2, g3 = group(2 + fine), group(3 + fine)
        stl = self.stats_tagged_loads(WS_ST3, self.STR2)
        late = {0: g2[:2], 1: g2[2:], 2: g3[:2], 3: g3[2:]}
        for i in range(4): late[4 + i] = stl[2 * i:2 * i + 2]
        w1a = self.win_dma(0, 0, 3)
        for i in range(8): late[8 + i] = w1a[i:i + 1] if i < 7 else w1a[7:]
        stk = [-1]
        late[7][-1].append(lambda: stk.__setitem__(0, a.vtok()))
        ss = self.stats_sum_items(self.STR2, 1.0 / 512)
        def extra(s):
            if s < 12: return []
            n = (len(ss) + 15 - s) // (16 - s)
            return ([lambda: a.wait(vm=stk[0])] if s == 12 else []) + [ss.pop(0) for _ in range(n)]
        self.win_gemm(ACC2, {0: w(1), 2: w(2), 6: w(3), 10: w(4)} if fine else {2: w(1), 6: w(2), 10: w(3)}, {0: w(0)}, True, late, extra=extra)
        self.barrier()
        self.stamp("z2_gemm")
        w1tok = [a.vtok(), -1, -1]
        wb, wc = self.win_dma(0, 12, 3), self.win_dma(0, 24, 2)
        wb[-1].append(lambda: w1tok.__setitem__(1, a.vtok())); wc[-1].append(lambda: w1tok.__setitem__(2, a.vtok()))
        rest = wb + wc
        k = self.opt.get("w1pre", 9)
        self.emit_all(rest[:k]); rest = rest[k:]
        a("v_mov_b32 v34, v216", "v_mov_b32 v35, v217", "v_mov_b32 v36, v218", "v_mov_b32 v37, v219")
        for r in range(252, 256): a(f"v_mov_b32 v{r}, {sONES}")
        a("v_mov_b32 v32, 1.0", "v_mov_b32 v33, 1.0")
        T5 = [(0, 0), (1, 0), (0, 1), (1, 1)]
        self.gelu_block(ACC2, 34, T5 + [(0, 2), (1, 2)])
        for rt in range(2):
            x = ACC2 + rt * 12
            a(f"v_pk_add_f32 {v(40 + 4 * rt, 2)}, {v(x, 2)}, {v(x + 2, 2)}", f"v_pk_mul_f32 {v(42 + 4 * rt, 2)}, {v(x, 2)}, {v(x, 2)}")
            a(f"v_pk_fma_f32 {v(42 + 4 * rt, 2)}, {v(x + 2, 2)}, {v(x + 2, 2)}, {v(42 + 4 * rt, 2)}")
            for k in (4, 6):
                a(f"v_pk_add_f32 {v(40 + 4 * rt, 2)}, {v(40 + 4 * rt, 2)}, {v(x + k, 2)}",
                  f"v_pk_fma_f32 {v(42 + 4 * rt, 2)}, {v(x + k, 2)}, {v(x + k, 2)}, {v(42 + 4 * rt, 2)}")
        a(f"s_and_b32 {sU[8]}, {sCNT5}, {sCH}", f"s_cmp_lg_u32 {sU[8]}, 0", "s_cbranch_scc1 L_skip_st")
        for rt in range(2):
            x = ACC2 + rt * 12
            for k in (8, 10):
                a(f"v_pk_add_f32 {v(40 + 4 * rt, 2)}, {v(40 + 4 * rt, 2)}, {v(x + k, 2)}",
                  f"v_pk_fma_f32 {v(42 + 4 * rt, 2)}, {v(x + k, 2)}, {v(x + k, 2)}, {v(42 + 4 * rt, 2)}")
        a("L_skip_st:", "v_add_f32 v48, v40, v41", "v_add_f32 v49, v42, v43", "v_add_f32 v50, v44, v45", "v_add_f32 v51, v46, v47")
        self.stats_publish_tagged(48, WS_ST4)
        self.stamp("z2_pub")
        a("v_mov_b32 v52, v34", "v_mov_b32 v53, v35", "v_mov_b32 v62, v36", "v_mov_b32 v63, v37")
        def w1(c):
            def f():
                a.wait(vm=w1tok[c]); self.barrier()
            return f
        a(f"v_and_b32 v54, 15, {vLANE}", f"v_lshrrev_b32 v55, 4, {vLANE}", "v_lshlrev_b32 v55, 2, v55", "v_sub_u32 v54, v54, v55",
          "v_mov_b32 v55, 0x3f80", "v_mov_b32 v250, 0x3f800000")
        for k, (r, c) in enumerate(((248, 55), (248, 250), (249, 55), (249, 250))):
            a(f"v_cmp_eq_u32 vcc, {k}, v54")
            a(f"v_cndmask_b32 v{r}, v{3 if k & 1 == 0 else r}, v{c}, vcc")
        a(f"s_add_u32 {T[0]}, {sT0}, {sCH}", f"s_lshl_b32 {T[0]}, {T[0]}, 16", f"s_lshl_b32 {T[1]}, {sR0}, 5", f"s_add_u32 {T[0]}, {T[0]}, {T[1]}",
          f"s_lshl_b32 {T[1]}, {sRH}, 10", f"s_add_u32 {T[0]}, {T[0]}, {T[1]}", f"s_add_u32 {sU[9]}, {T[0]}, {WS_Z}",
          f"s_add_u32 {sU[10]}, {sU[9]}, 0x20000", f"s_add_u32 {sU[11]}, {sU[9]}, 0x40000",
          f"s_lshl_b32 {P[0]}, {sRB}, 3", f"s_add_u32 {P[0]}, {P[0]}, {sCB}", f"s_lshl_b32 {P[0]}, {P[0]}, 8",
          f"s_lshl_b32 {T[1]}, {sJ}, 3", f"s_add_u32 {P[0]}, {P[0]}, {T[1]}", f"s_add_u32 {P[0]}, {P[0]}, {WS_F5}")
        late = {i: rest[2 * i:2 * i + 2] for i in range((len(rest) + 1) // 2)}
        sl = self.stats_tagged_loads(WS_ST4, self.SGR)
        for i in range(4): late[self.opt.get("s4at", 9) + i] = sl[2 * i:2 * i + 2]
        csin = self.opt.get("csin", 0)
        self.win_gemm(ACC1, {4: w1(1), 10: w1(2)}, {0: w1(0)}, False, late, cs=csin)
        self.stamp("z1_gemm")
        self.stats_tagged_finish(WS_ST4, self.SGR, 1.0 / 688, 20)
        self.stamp("s4")
        def znorm(m):
            for rt in range(2):
                x = ACC2 + (rt * 3 + m) * 4
                for k in range(2):
                    a(f"v_pk_fma_f32 {v(x + 2 * k, 2)}, {v(x + 2 * k, 2)}, {v(20 + 2 * rt, 2)}, {v(20 + 2 * rt, 2)} op_sel:[0,0,1] op_sel_hi:[1,0,1]")
            for rt in range(2):
                x = ACC2 + (rt * 3 + m) * 4
                for k in range(2): a(f"v_cvt_pk_bf16_f32 v{x + k}, v{x + 2 * k}, v{x + 2 * k + 1}")
            for rt in range(2):
                x = ACC2 + (rt * 3 + m) * 4
                a(f"v_mfma_f32_16x16x16_bf16 {v(28 + 8 * (m & 1) + 4 * rt, 4)}, {v(x, 2)}, v[248:249], 0")
        def zstore(m):
            for rt in range(2):
                d = 28 + 8 * (m & 1) + 4 * rt
                a(f"v_cvt_pk_bf16_f32 v{d}, v{d}, v{d + 1}", f"v_cvt_pk_bf16_f32 v{d + 1}, v{d + 2}, v{d + 3}",
                  f"buffer_store_dwordx2 {v(d, 2)}, {vPAT}, {sWS}, {sU[9 + m]} offen offset:{512 * rt} sc1")
        znorm(0); znorm(1); zstore(0)
        a(f"s_cmp_lg_u32 {sU[8]}, 0", "s_cbranch_scc1 L_skip_z")
        a.cond_begin(); znorm(2); a("s_nop 7"); zstore(2); a.cond_end()
        a("L_skip_z:", "s_nop 7")
        zstore(1)
        a("v_mov_b32 v56, v62", "v_mov_b32 v57, v63")
        self.w128_addresses(self.vWDo, 64)
        a(f"s_lshl_b32 {T[0]}, {sRH}, 5", f"s_add_u32 {T[0]}, {T[0]}, {sR0}", f"s_lshl_b32 {sU[6]}, {T[0]}, 1",
          f"v_and_b32 v20, 15, {vLANE}", "v_lshlrev_b32 v20, 1, v20")
        self.wsp_setup()
        self.flag_store_wg(P[0])
        self.stamp("z2n_pub")
        a(f"buffer_load_ushort v62, v20, {sBSP}, {sU[6]} offen", f"buffer_load_ushort v63, v20, {sBSP}, {sU[6]} offen offset:32")
        eg = self.opt.get("earlyg", 1)
        def src(vals):
            lit = sum(x << (8 * i) for i, x in enumerate(vals))
            return [f"s_lshl_b32 {T[4]}, {sW}, 3", f"s_lshr_b32 {T[4]}, {lit}, {T[4]}", f"s_and_b32 {T[4]}, {T[4]}, 0xff", f"s_lshl_b32 {T[4]}, {T[4]}, 15", f"s_mov_b32 m0, {T[5]}"]
        wo1 = []
        for g in range(4):
            pre, ins = self.w128_dma(self.vWDo, sWOUT, T[1], T[5], 22)
            if eg: pre = src([GPERM[4 * w + g] for w in range(4)])
            pre = [f"s_lshl_b32 {T[1]}, {sW}, 2", f"s_add_u32 {T[1]}, {T[1]}, {g}", f"s_lshl_b32 {T[5]}, {T[1]}, 12", f"s_add_u32 {T[5]}, {T[5]}, {LB}"] + pre
            wo1 += [pre + [ins[0]], [ins[1]], [ins[2]], [ins[3]]]
        wo2 = []
        for g in range(2):
            pre, ins = self.w128_dma(self.vWDo, sWOUT, T[1], T[5], 22)
            if eg: pre = src([GPERM[16 + w + (4 if g and w < 2 else 0)] for w in range(4)])
            p0 = [f"s_add_u32 {T[1]}, {sW}, 16"] if g == 0 else [f"s_cmp_lt_u32 {sW}, 2", f"s_cselect_b32 {T[5]}, 20, 16", f"s_add_u32 {T[1]}, {sW}, {T[5]}"]
            pre = p0 + [f"s_sub_u32 {T[5]}, {T[1]}, 16", f"s_lshl_b32 {T[5]}, {T[5]}, 12"] + pre
            wo2 += [pre + [ins[0]], [ins[1]], [ins[2]], [ins[3]]]
        late = {i: wo1[2 * i:2 * i + 2] for i in range(8)}
        for i in range(4): late[8 + i] = wo2[2 * i:2 * i + 2]
        ptok = [-1]
        late[13] = [self.poll_early(vFP8, T[3], 58) + [lambda: ptok.__setitem__(0, a.vtok())]]
        if csin:
            self.emit_all(wo1 + wo2)
            self.emit(late[13][0])
        else:
            self.colsum_pass(late, {6: self.barrier})
        self.p5tok = ptok[0]
        self.stamp("z1_epi")

    vWDo = 72

    def gelu_items(self, m):
        K1 = -2.0 * 1.4426950408889634 * 0.7978845608028654
        K2 = K1 * 0.044715
        L = []
        if m == 0: L += [f"s_mov_b32 {T[4]}, {f2u(K2)}", f"v_mov_b32 v58, {f2u(K1)}"]
        X = [self.ACC1 + (rt * 3 + m) * 4 + k for rt in range(2) for k in range(4)]
        C = [self.CS + 4 * m + k for rt in range(2) for k in range(4)]
        R = [52 + 4 * rt for rt in range(2) for k in range(4)]
        assert self.opt.get("wd", 7) <= 8
        t = [192 + k for k in range(8)]
        for i in range(8): L.append(f"v_mul_f32 v{t[i]}, v{C[i]}, v{R[i] + 1}")
        for i in range(8): L.append(f"v_fma_f32 v{X[i]}, v{X[i]}, v{R[i]}, v{t[i]}")
        for i in range(8): L.append(f"v_mul_f32 v{t[i]}, v{X[i]}, v{X[i]}")
        for i in range(8): L.append(f"v_fma_f32 v{t[i]}, v{t[i]}, {T[4]}, v58")
        for i in range(8): L.append(f"v_mul_f32 v{t[i]}, v{t[i]}, v{X[i]}")
        for i in range(8): L.append(f"v_exp_f32 v{t[i]}, v{t[i]}")
        for i in range(8): L.append(f"v_add_f32 v{t[i]}, 1.0, v{t[i]}")
        for i in range(8): L.append(f"v_rcp_f32 v{t[i]}, v{t[i]}")
        for i in range(8): L.append(f"v_mul_f32 v{X[i]}, v{X[i]}, v{t[i]}")
        for rt in range(2):
            for k in range(2): L.append(f"v_cvt_pk_bf16_f32 v{vZ1 + (rt * 3 + m) * 2 + k}, v{X[4 * rt + 2 * k]}, v{X[4 * rt + 2 * k + 1]}")
        return L

    def wsp_setup(self):
        a = self.a
        a(f"s_lshl_b32 {T[3]}, {sW}, 3", f"s_add_u32 {T[3]}, {T[3]}, {sCB}", f"s_lshl_b32 {T[3]}, {T[3]}, 8", f"s_add_u32 {T[3]}, {T[3]}, {WS_F5}",
          f"s_lshl_b32 {T[0]}, {sT0}, 16", f"s_lshl_b32 {T[1]}, {sW}, 11", f"s_add_u32 {T[0]}, {T[0]}, {T[1]}", f"s_add_u32 {T[0]}, {T[0]}, {WS_Z}")
        for t in range(8):
            a(f"s_add_u32 {T[1]}, {sSPR}, {t if not self.opt.get('zlocal') else 0}", f"s_and_b32 {T[1]}, {T[1]}, 7", f"s_lshl_b32 {T[1]}, {T[1]}, 13", f"s_add_u32 {sROT[t]}, {T[1]}, {T[0]}")
        a(f"s_lshl_b32 {T[1]}, {sW}, 13", f"s_add_u32 {T[1]}, {T[1]}, {LRED}", f"v_add_u32 v54, {T[1]}, {vL16}",
          f"s_lshl_b32 {T[1]}, {sCH}, 12", f"s_lshl_b32 {T[2]}, {sRH}, 11", f"s_add_u32 {T[1]}, {T[1]}, {T[2]}", f"s_add_u32 {T[1]}, {T[1]}, {LRED}",
          f"v_add_u32 v55, {T[1]}, {vL16}")
        a(f"s_lshr_b32 {T[1]}, {sR0}, 4", f"s_lshl_b32 {T[2]}, {sRH}, 1", f"s_add_u32 {T[1]}, {T[1]}, {T[2]}", f"s_mul_i32 {T[1]}, {T[1]}, {22 * 1024}",
          f"s_add_u32 {T[2]}, {sT0}, {sCH}", f"s_lshl_b32 {T[2]}, {T[2]}, 9", f"s_add_u32 {T[1]}, {T[1]}, {T[2]}", f"s_add_u32 {sU[9]}, {T[1]}, {WS_G}",
          f"s_add_u32 {sU[10]}, {sU[9]}, {22 * 1024}")

    def phase_wsp(self):
        a = self.a
        BUF, ACC, RED, WT = 64, 128, 28, 200
        a(f"v_add_u32 v60, 0x10000, {vL16}")
        prog = self.opt.get("s5prog", 0)
        if prog:
            a.wait(vm=self.p5tok)
            a(f"v_cmp_ne_u64 vcc, {sTAG}, v[58:59]", f"s_mov_b32 {P[2]}, {T[3]}", "s_nop 0", f"s_and_b32 {P[3]}, vcc_lo, 0xff")
            self.mask_check(0, 2, sSPR, P[2], P[3], 58)
        else:
            self.poll_late(vFP8, T[3], 58, self.p5tok, wg=False)
        self.stamp("s5")
        a("v_lshlrev_b32 v62, 16, v62", "v_lshlrev_b32 v63, 16, v63")
        tok = {}
        def loads(p, u):
            t, sub = u >> 1, u & 1
            L = []
            if sub == 0: L.append(f"s_add_u32 {T[0]}, {sROT[t]}, {p * 0x20000}")
            for f in range(2):
                L.append(f"buffer_load_dwordx4 {v(BUF + (2 * (u & 7) + f) * 4, 4)}, {vL16 if f == 0 else 'v60'}, {sWS}, {T[0]} offen offset:{1024 * sub} sc1")
            L.append(lambda: tok.__setitem__((p, u), a.vtok()))
            return L
        D = self.opt.get("wd", 7)
        assert D <= 8
        gq = [self.gelu_items(0) + self.gelu_items(1), self.gelu_items(2), []]
        self.w128_read_base(59, 2, (192, 193, 194, 195), 61)
        wt = [f"ds_read_b64_tr_b16 {v(WT + (nt * 6 + p) * 4 + 2 * hf, 2)}, v{59 if nt == 0 else 61} offset:{p * 4096 + hf * 512}"
              for p in range(6) for nt in range(2) for hf in range(2)]
        seq = [(p, u) for p in range(3) for u in range(16)]
        for p, u in seq[:D]:
            if prog and u == 4: self.mask_check(2, 8, sSPR, P[2], P[3], 192)
            self.emit(loads(p, u))
        def red_write(p):
            A = ACC + 32 * (p & 1)
            return [f"ds_write_b128 v54, {v(A + 4 * i, 4)} offset:{(p & 1) * 32768 + i * 1024}" for i in range(8)]
        def red_read(p):
            return [f"ds_read_b128 {v(RED + (sw * 2 + rt) * 4, 4)}, v55 offset:{(p & 1) * 32768 + sw * 8192 + rt * 1024}" for sw in range(3) for rt in range(2)]
        def red_read2(p):
            return [f"ds_read_b128 {v(ACC + 32 * (p & 1) + rt * 4, 4)}, v55 offset:{(p & 1) * 32768 + 3 * 8192 + rt * 1024}" for rt in range(2)]
        def gate(p):
            L = []
            A = ACC + 32 * (p & 1)
            for o in range(8): L.append(f"v_add_f32 v{A + o}, v{A + o}, v{RED + o}")
            for o in range(8): L.append(f"v_add_f32 v{RED + 8 + o}, v{RED + 8 + o}, v{RED + 16 + o}")
            for o in range(8): L.append(f"v_add_f32 v{A + o}, v{A + o}, v{62 + (o >> 2)}")
            for o in range(8):
                z = vZ1 + ((o >> 2) * 3 + p) * 2 + ((o >> 1) & 1)
                L.append(f"v_and_b32 v{RED + o}, {sHIMASK}, v{z}" if o & 1 else f"v_lshlrev_b32 v{RED + o}, 16, v{z}")
            for o in range(8): L.append(f"v_add_f32 v{A + o}, v{A + o}, v{RED + 8 + o}")
            for o in range(8): L.append(f"v_mul_f32 v{A + o}, v{A + o}, v{RED + o}")
            for o in range(4): L.append(f"v_cvt_pk_bf16_f32 v{RED + o}, v{A + 2 * o}, v{A + 2 * o + 1}")
            return L
        def gstore(p):
            L = []
            if p == 2:
                sk, zr = a.label("gskip"), a.label("gstore")
                L.append(a.cond_begin)
                L.append(lambda: a(f"s_cmp_eq_u32 {sU[8]}, 0", f"s_cbranch_scc1 {zr}", f"s_cmp_eq_u32 {sCB}, 7", f"s_cbranch_scc0 {sk}",
                                   *[f"v_mov_b32 v{RED + k}, 0" for k in range(4)], f"{zr}:"))
            L += [f"buffer_store_dwordx2 {v(RED + 2 * rt, 2)}, {vPAT}, {sWS}, {sU[9 + rt]} offen offset:{1024 * p} sc1" for rt in range(2)]
            if p == 2: L += [lambda: a(f"{sk}:"), a.cond_end]
            return L
        eg = self.opt.get("earlyg", 1)
        etk = [-1]
        def early_flag():
            L = a.label("noflag")
            a.cond_begin()
            a(f"s_cmp_lg_u32 {sW}, 0", f"s_cbranch_scc1 {L}",
              "s_mov_b64 exec, 1", f"buffer_store_dwordx2 {vTAG}, off, {sWS}, {P[4]} sc1", "s_mov_b64 exec, -1", f"{L}:")
            a.cond_end()
        if eg:
            self.cluster_flag_off(P[4], WS_F6A, True); self.cluster_flag_off(P[5], WS_F6A, False)
        for p in range(3):
            A = ACC + 32 * (p & 1)
            for u in range(16):
                if not self.opt.get("w_nowait"): a.wait(vm=tok[(p, u)])
                if u == 0: self.stamp(f"wsp_p{p}")
                ms = []
                for f in range(2):
                    for tt in range(4):
                        ms.append(mfma16(A + (f * 4 + tt) * 4, v(BUF + (2 * (u & 7) + f) * 4, 4), ar((u * 4 + tt) * 4, 4), "0" if u == 0 else None))
                fill = []
                if p > 0 and not self.opt.get("w_nofill"):
                    q = p - 1
                    if u < 8: fill += red_write(q)[u:u + 1]
                    if u == 8: fill += [lambda: a.wait(lg=a.lg), "s_barrier"]
                    if u == 9: fill += red_read(q) + red_read2(q)
                    if u == 11: fill += [lambda: a.wait(lg=a.lg)]
                    if 11 <= u <= 15:
                        g = gate(q); fill += g[(u - 11) * 11:(u - 11) * 11 + 11]
                    if u == 15: fill += gstore(q)
                if p == 0: n = (len(gq[0]) + 15 - u) // (16 - u)
                elif p == 1 and u < 11: n = (len(gq[1]) + 10 - u) // (11 - u)
                else: n = 0
                fill = [gq[p].pop(0) for _ in range(n)] + fill if p == 0 else fill + [gq[p].pop(0) for _ in range(n)]
                if p == 2 and u < 8: fill += wt[3 * u:3 * u + 3]
                if p == 2 and u == 9 and eg: fill.insert(0, early_flag)
                if p == 2 and u == 14 and eg: fill += self.poll_early(vFP8, P[5], 52) + [lambda: etk.__setitem__(0, a.vtok())]
                if p == 0 and u == 15: fill += ["s_barrier"]
                nx = p * 16 + u + D
                ld = loads(*seq[nx]) if nx < 48 else []
                if self.opt.get("w_noload"): ld = ld[-1:]
                interleave(a, ms[:6], fill, per=2, start=0)
                a(ms[6]); self.emit(ld[:-2])
                a(ms[7]); self.emit(ld[-2:])
        self.stamp("wsp_gemm")
        self.emit(red_write(2))
        a.wait(lg=a.lg)
        if eg: self.poll_late(vFP8, P[5], 52, etk[0])
        else: self.barrier()
        self.emit(red_read(2) + red_read2(2))
        a(f"v_add_u32 v56, {LB}, v59", f"v_add_u32 v57, {LB}, v61")
        for o in range(8):
            z = vZ1 + ((o >> 2) * 3 + 2) * 2 + ((o >> 1) & 1)
            a(f"v_and_b32 v{192 + o}, {sHIMASK}, v{z}" if o & 1 else f"v_lshlrev_b32 v{192 + o}, 16, v{z}")
        self.cluster_flag_off(P[1], WS_F6, True)
        a.wait(lg=a.lg)
        A = ACC
        for o in range(0, 8, 2): a(f"v_pk_add_f32 {v(A + o, 2)}, {v(A + o, 2)}, {v(RED + o, 2)}")
        for o in range(0, 8, 2): a(f"v_pk_add_f32 {v(RED + 8 + o, 2)}, {v(RED + 8 + o, 2)}, {v(RED + 16 + o, 2)}")
        for o in range(0, 8, 2): a(f"v_pk_add_f32 {v(A + o, 2)}, {v(A + o, 2)}, v[62:63] op_sel:[0,{o >> 2}] op_sel_hi:[1,{o >> 2}]")
        for o in range(0, 8, 2): a(f"v_pk_add_f32 {v(A + o, 2)}, {v(A + o, 2)}, {v(RED + 8 + o, 2)}")
        for o in range(0, 8, 2): a(f"v_pk_mul_f32 {v(A + o, 2)}, {v(A + o, 2)}, {v(192 + o, 2)}")
        for o in range(4): a(f"v_cvt_pk_bf16_f32 v{RED + o}, v{A + 2 * o}, v{A + 2 * o + 1}")
        self.emit(gstore(2))
        self.wout_rd = [f"ds_read_b64_tr_b16 {ar((nt * 16 + p) * 4 + 2 * hf, 2)}, v{56 + nt} offset:{p * 4096 + hf * 512}"
                        for p in range(16) for nt in range(2) for hf in range(2)]
        gtok = None
        if eg:
            gtok = a.vtok()
            self.g_setup()
            for p in range(6): self.emit(self.g_dma(p))
            self.getok = a.vtok()
        self.flag_store_wg(P[1], gtok)
        self.stamp("g_pub")

    def phase_wout(self):
        a = self.a
        ACC = 128
        self.cluster_flag_off(T[3], WS_F6, False)
        a(f"s_lshl_b32 {T[4]}, {sRH}, 11", f"v_add_u32 v31, {T[4]}, {vL16}", f"v_add_u32 v30, {LRED}, v31")
        fine = self.opt.get("fine", 1)
        eg = self.opt.get("earlyg", 1)
        if not eg:
            chunks = [2, 2, 4, 6, 8] if fine else [4, 4, 6, 8]
            group, toks = self.act_dma(WS_G, 22, chunks, LA, gpos=True)
        self.emit(self.wout_rd[:32])
        self.emit(self.poll_early(vFP8, T[3], 36)); ptok = a.vtok()
        self.emit(self.wout_rd[32:])
        def tail_setup():
            a(f"v_and_b32 v32, 15, {vLANE}", f"v_lshrrev_b32 v33, 4, {vLANE}", "v_lshlrev_b32 v32, 10, v32",
              "v_and_b32 v34, 1, v33", "v_lshl_add_u32 v32, v34, 5, v32", "v_lshrrev_b32 v33, 1, v33", "v_lshl_add_u32 v32, v33, 4, v32",
              f"s_lshl_b32 {T[0]}, {sRH}, 5", f"s_add_u32 {T[0]}, {T[0]}, {sR0}", f"s_lshl_b32 {T[0]}, {T[0]}, 10",
              f"s_lshl_b32 {T[4]}, {sCB}, 7", f"s_add_u32 {T[0]}, {T[0]}, {T[4]}", f"s_lshl_b32 {T[4]}, {sCH}, 6", f"s_add_u32 {sU[9]}, {T[0]}, {T[4]}",
              f"s_add_u32 {sU[10]}, {sU[9]}, 0x4000")
            for i in range(8):
                a(f"v_lshlrev_b32 v{96 + 2 * i}, 16, v{vH + i}", f"v_and_b32 v{97 + 2 * i}, {sHIMASK}, v{vH + i}")
        if eg:
            tail_setup()
            a.wait(vm=self.getok, lg=a.lg)
            self.poll_late(vFP8, T[3], 36, ptok)
            self.stamp("s6")
            toks = {}
            def gd(p0, p1, c):
                L = [self.g_dma(p) for p in range(p0, p1)]
                L[-1].append(lambda: toks.__setitem__(c, a.vtok()))
                return L
            self.emit_all(gd(6, 10, 1) + gd(10, 14, 2))
        else:
            self.poll_late(vFP8, T[3], 36, ptok)
            self.stamp("s6")
            for c in range(2 + fine): self.emit_all(group(c))
            tail_setup()
        def buf(s, rt): return 64 + (s % 4) * 8 + rt * 4
        def reads(s): return [f"ds_read_b128 {v(buf(s, rt), 4)}, v{30 if s < 16 else 31} offset:{(self.gpos2(s) - LRED if eg else 4096 * s) + rt * 1024 if s < 16 else 4096 * (s - 16) + rt * 1024}" for rt in range(2)]
        def mfmas(s):
            wv = lambda nt: ar((nt * 16 + s) * 4, 4) if s < 16 else v(200 + (nt * 6 + s - 16) * 4, 4)
            return [mfma16(ACC + (rt * 2 + nt) * 4, wv(nt), v(buf(s, rt), 4), v(96 + (rt * 2 + nt) * 4, 4) if s == 0 else None)
                    for rt in range(2) for nt in range(2)]
        def w(c):
            def f():
                a.wait(vm=toks[c]); self.barrier()
            return f
        if eg:
            rest = gd(14, 18, 3) + gd(18, 22, 4)
            late = {4 + i: rest[2 * i:2 * i + 2] for i in range(4)}
            self.kloop(22, reads, mfmas, {4: w(1), 8: w(2), 12: w(3), 16: w(4)}, late, {}, per=1)
            rest = None
        else:
            rest = group(2 + fine) + group(3 + fine)
            late = {i: rest[2 * i:2 * i + 2] for i in range(7)}
        def head0():
            a.wait(vm=toks[0], lg=a.lg); self.barrier()
        if not eg: self.kloop(22, reads, mfmas, {0: w(1), 2: w(2), 6: w(3), 12: w(4)} if fine else {2: w(1), 6: w(2), 12: w(3)}, late, {0: head0}, per=1)
        self.stamp("wout_gemm")
        for rt in range(2):
            for nt in range(2):
                d = ACC + (rt * 2 + nt) * 4
                for k in range(2): a(f"v_cvt_pk_bf16_f32 v{64 + 4 * rt + 2 * nt + k}, v{d + 2 * k}, v{d + 2 * k + 1}")
        for rt in range(2):
            b = 64 + 4 * rt
            a(f"v_permlane16_swap_b32 v{b}, v{b + 2}", f"v_permlane16_swap_b32 v{b + 1}, v{b + 3}")
            a(f"buffer_store_dwordx4 {v(b, 4)}, v32, {sOUT}, {sU[9 + rt]} offen " + ["", "sc1", "nt", "sc0 sc1", "sc1 nt"][self.opt.get("ost", 0)])

    def epilogue(self):
        a = self.a
        a("L_finish:")
        a("s_cmp_eq_u32 s2, 0", f"s_cselect_b32 {T[0]}, {sW}, 1", f"s_cmp_eq_u32 {T[0]}, 0", "s_cbranch_scc0 L_noepoch",
          "s_mov_b64 exec, 1", f"buffer_store_dwordx2 {vTAG}, off, {sWS}, 0 sc1", "s_mov_b64 exec, -1", "L_noepoch:")
        if self.stamps:
            a("s_waitcnt vmcnt(0)")
            self.stamp("end")
            a(f"s_lshl_b32 {T[0]}, s2, 2", f"s_add_u32 {T[0]}, {T[0]}, {sW}", f"s_lshl_b32 {T[0]}, {T[0]}, 7", f"s_add_u32 {T[0]}, {T[0]}, {WS_DBG}",
              "s_mov_b64 exec, 1")
            for i in range(10):
                a(f"v_mov_b32 v8, s{STAMP0 + i}", f"buffer_store_dword v8, off, {sWS}, {T[0]} offset:{4 * i if i < 9 else 60}")
        if self.calib:
            a("s_waitcnt vmcnt(0)", "L_calib:", "s_memrealtime s[100:101]", "s_waitcnt lgkmcnt(0)", f"s_sub_u32 s100, s100, s{STAMP0}",
              f"s_cmp_lt_u32 s100, {self.calib}", "s_cbranch_scc1 L_calib")
        if not self.opt.get("noendwait"): a("s_waitcnt vmcnt(0)")
        a("L_exit:", "s_endpgm")

    def build(self):
        self.prologue()
        self.phase_qkv(); self.maybe_stop("qkv")
        self.phase_attn(); self.maybe_stop("attn")
        self.phase_wo(); self.maybe_stop("wo")
        self.phase_win(); self.maybe_stop("win")
        self.phase_wsp(); self.maybe_stop("wsp")
        self.phase_wout()
        self.epilogue()
        self.attn_slow()
        self.a("L_code_end:")
        body = self.a.finish()
        for w in dict.fromkeys(self.a.warnings): print("PENDING-LOAD WARNING:", w, file=sys.stderr)
        ref = open(f"cdna_kernels/{NAME}.s.ref").read().split("\n")
        head = [l for l in ref if l.startswith(";") and "@launch" not in l and "Override" not in l and "grid=ceil" not in l]
        head = head[:head.index([l for l in head if "d_ws" in l][0]) + 1]
        return ("\n".join(head) + f"\n; @launch grid=(256,1,1) block=(256,1,1) lds={LDS_BYTES}\n"
                + '.amdgcn_target "amdgcn-amd-amdhsa--gfx950"\n.text\n'
                + f".globl {NAME}_kernel\n.p2align 8\n.type {NAME}_kernel,@function\n{NAME}_kernel:\n" + body
                + f""".section .rodata,"a"
.p2align 6
.amdhsa_kernel {NAME}_kernel
  .amdhsa_next_free_vgpr 512
  .amdhsa_next_free_sgpr 102
  .amdhsa_accum_offset 256
  .amdhsa_group_segment_fixed_size 0
  .amdhsa_kernarg_size 88
  .amdhsa_user_sgpr_count 2
  .amdhsa_user_sgpr_kernarg_segment_ptr 1
  .amdhsa_system_sgpr_workgroup_id_x 1
  .amdhsa_float_denorm_mode_32 3
.end_amdhsa_kernel
""")

if __name__ == "__main__":
    import argparse
    ap = argparse.ArgumentParser()
    ap.add_argument("-o", default=f"cdna_kernels/{NAME}.s")
    ap.add_argument("--stop"); ap.add_argument("--stamps", action="store_true"); ap.add_argument("--slow", action="store_true")
    ap.add_argument("--opt", action="append", default=[])
    o = ap.parse_args()
    g = Gen(o.stop, o.stamps, o.slow, **{k: int(x) for k, x in (kv.split('=') for kv in o.opt)})
    s = g.build()
    open(o.o, "w").write(s)
    print(f"wrote {o.o}: {len(s)} bytes, {len(g.a.items)} items, {g.a.nops_added} nops; stamps: {g.stamp_names}")
```

```python
import sys, struct
from asmdsl import Asm

NAME = "sequential_preLN__softmax_full_mha__mixer_gmlp__prompt"

WS_EPOCH = 0
WS_F1, WS_F2, WS_F3, WS_F4, WS_F5, WS_F6 = 0x1000, 0x90000, 0x7000, 0x9000, 0xB000, 0xD000
WS_F6A = 0xF000
GPERM = [0, 3, 6, 9, 14, 19] + [p for p in range(22) if p not in (0, 3, 6, 9, 14, 19)]
WS_ST3, WS_ST4 = 0x1150000, 0x10D0000
WS_Q, WS_KV, WS_O, WS_H, WS_Z, WS_G = 0x100000, 0x300000, 0x700000, 0x900000, 0xB00000, 0xE00000
WS_DBG = 0x1300000
WS_SIZE = 0x1400000

LA, LC, LB = 0, 65536, 98304
LRED = 24576
LDS_BYTES = 163840

sX, sWQKV, sWO, sWIN, sWSP, sBSP, sWOUT, sOUT, sWS = ("s[%d:%d]" % (b, b + 3) for b in range(4, 40, 4))
sJ, sRB, sCB, sHEAD, sW, sR0, sRH, sCH, sT0, sCNT5 = ("s%d" % i for i in range(40, 50))
sTAG = "s[50:51]"
sONES, sHIMASK, sCLU, sPOLL = "s52", "s53", "s54", "s55"
T = ["s%d" % i for i in range(56, 64)]
sROT = ["s%d" % i for i in range(64, 72)]
sU = ["s%d" % i for i in range(72, 84)]
sJA, sRB8 = "s0", "s1"
sRC = "s0"
sSPR = "s3"
P = ["s%d" % i for i in range(84, 90)]
STAMP0 = 90

vLANE, vL16, vPAT, vZ = "v0", "v1", "v2", "v3"
vTAG = "v[4:5]"
vFP32, vFP8 = "v6", "v7"
vH = 8
vZ1 = 16

def v(a, n=1): return f"v{a}" if n == 1 else f"v[{a}:{a + n - 1}]"
def ar(a, n=1): return f"a{a}" if n == 1 else f"a[{a}:{a + n - 1}]"
def f2u(x): return "0x%08x" % struct.unpack("<I", struct.pack("<f", x))[0]

def mfma16(d, a, b, c=None):
    return f"v_mfma_f32_16x16x32_bf16 {v(d,4)}, {a}, {b}, {c if c is not None else v(d,4)}"

def interleave(a, mains, fillers, per=1, start=0):
    k = 0
    for i, m in enumerate(mains):
        m() if callable(m) else a(m)
        if i >= start:
            for _ in range(per):
                if k < len(fillers):
                    f = fillers[k]; k += 1
                    f() if callable(f) else a(f)
    while k < len(fillers):
        f = fillers[k]; k += 1
        f() if callable(f) else a(f)

class Gen:
    def __init__(self, stop=None, stamps=False, force_fallback=False, calib=0, **opt):
        self.calib = calib
        self.keep = opt.pop("keep", None)
        self.opt = opt
        self.a = Asm()
        self.stop = stop
        self.stamps = stamps
        self.force_fallback = force_fallback
        self.nstamp = 0
        self.stamp_names = []

    def stamp(self, name):
        if not self.stamps: return
        if self.keep is not None:
            if name not in self.keep and name != "entry": return
        elif name not in ("qkv_gemm", "qkv_pub", "attn_start", "attn_loop", "s2", "wo_gemm", "s3", "z2_gemm", "z1_gemm", "z2n_pub", "s5", "wsp_gemm", "s6", "wout_gemm", "end", "entry"): return
        a = self.a
        a.wait(lg=a.lg)
        cyc = self.opt.get("cyc")
        a(f"{'s_memtime' if cyc else 's_memrealtime'} s[100:101]", "s_waitcnt lgkmcnt(0)")
        n = self.nstamp
        if n == 0:
            a(f"s_mov_b32 s{STAMP0}, s100")
        else:
            r = STAMP0 + 1 + (n - 1) // 2
            if cyc: a(f"s_sub_u32 s101, s100, s{STAMP0}", f"s_mov_b32 s{STAMP0}, s100", "s_mov_b32 s100, s101")
            else: a(f"s_sub_u32 s100, s100, s{STAMP0}")
            a(f"s_mov_b32 s{r}, s100" if n & 1 else f"s_pack_ll_b32_b16 s{r}, s{r}, s100")
        self.nstamp += 1; self.stamp_names.append(name)
        assert self.nstamp <= 17

    def maybe_stop(self, name):
        if self.stop == name:
            self.a.wait_all()
            self.a("s_branch L_finish")

    def flag_store(self, soff, tok=None):
        a = self.a
        a.wait(vm=a.vm if tok is None else tok, force=True)
        a("s_mov_b64 exec, 1", f"buffer_store_dwordx2 {vTAG}, off, {sWS}, {soff} sc1", "s_mov_b64 exec, -1")

    def g_setup(self):
        a = self.a
        a(f"s_lshr_b32 {T[0]}, {sR0}, 4", f"s_add_u32 {T[0]}, {T[0]}, {sW}", f"s_mul_i32 {T[0]}, {T[0]}, {22 * 1024}",
          f"s_add_u32 {sU[0]}, {T[0]}, {WS_G}", f"s_lshl_b32 {sU[1]}, {sW}, 10")

    def g_dma(self, p):
        return [f"s_add_u32 {T[2]}, {sU[0]}, {GPERM[p] * 1024}", f"s_add_u32 m0, {sU[1]}, {self.gpos2(p)}",
                f"buffer_load_dwordx4 {vL16}, {sWS}, {T[2]} offen sc1 lds"]

    @staticmethod
    def gpos2(p): return LRED + 32768 + 4096 * p if p < 8 else LRED + 4096 * (p - 8) if p < 16 else 4096 * (p - 16)

    def flag_store_wg(self, soff, tok=None):
        a = self.a
        a.wait(vm=a.vm if tok is None else tok, force=True)
        self.barrier()
        L = a.label("noflag")
        a.cond_begin()
        a(f"s_cmp_lg_u32 {sW}, 0", f"s_cbranch_scc1 {L}",
          "s_mov_b64 exec, 1", f"buffer_store_dwordx2 {vTAG}, off, {sWS}, {soff} sc1", "s_mov_b64 exec, -1", f"{L}:")
        a.cond_end()

    def poll_wg(self, voff, soff, tmp, drain=True):
        a = self.a
        if self.opt.get("allpoll"):
            self.poll(voff, soff, tmp); return
        if drain: a.wait(vm=a.vm, force=True)
        done = a.vm_done
        L = a.label("nopoll")
        a(f"s_cmp_lg_u32 {sW}, 0", f"s_cbranch_scc1 {L}")
        self.poll(voff, soff, tmp)
        a(f"{L}:")
        a.vm_done = done
        self.barrier()

    def poll_early(self, voff, soff, tmp):
        return [f"buffer_load_dwordx2 {v(tmp,2)}, {voff}, {sWS}, {soff} offen sc1"]

    def poll_late(self, voff, soff, tmp, tok, wg=True):
        a = self.a
        L = a.label("late")
        done = a.vm_done
        if wg: a(f"s_cmp_lg_u32 {sW}, 0", f"s_cbranch_scc1 {L}")
        a.wait(vm=tok, force=True)
        a(f"v_cmp_ne_u64 vcc, {sTAG}, {v(tmp,2)}", "s_nop 1", f"s_cbranch_vccz {L}")
        a.cond_begin(); self.poll(voff, soff, tmp); a.cond_end()
        a(f"{L}:")
        a.vm_done = done if wg else tok
        if wg: self.barrier()

    def mask_check(self, t0, t1, start, soff, pend, tmp):
        a = self.a
        done = a.vm_done
        L, E = a.label("rc"), a.label("rcok")
        m = ((1 << t1) - 1) ^ ((1 << t0) - 1)
        a(f"s_lshl_b32 {sPOLL}, {m * 0x101}, {start}", f"s_lshr_b32 {sPOLL}, {sPOLL}, 8", f"s_and_b32 {sPOLL}, {sPOLL}, 0xff",
          f"s_and_b32 vcc_lo, {pend}, {sPOLL}", f"s_cbranch_scc0 {E}", f"s_mov_b32 {sRC}, {sPOLL}", f"s_mov_b32 {sPOLL}, 0x40000", f"{L}:")
        a.cond_begin()
        a(f"buffer_load_dwordx2 {v(tmp, 2)}, {vFP8}, {sWS}, {soff} offen sc1")
        a.wait(vm=a.vm, force=True)
        a.cond_end()
        a(f"v_cmp_ne_u64 vcc, {sTAG}, {v(tmp, 2)}", f"s_sub_u32 {sPOLL}, {sPOLL}, 1", f"s_cbranch_scc1 {E}",
          f"s_and_b32 {pend}, vcc_lo, 0xff", f"s_and_b32 vcc_lo, {pend}, {sRC}", f"s_cbranch_scc1 {L}", f"{E}:")
        a.vm_done = done
        for r in (tmp, tmp + 1): a.pend_vm.pop(("v", r), None)

    def poll(self, voff, soff, tmp):
        a = self.a
        L, E = a.label("poll"), a.label("polled")
        a(f"s_mov_b32 {sPOLL}, 0x40000", f"{L}:",
          f"buffer_load_dwordx2 {v(tmp,2)}, {voff}, {sWS}, {soff} offen sc1")
        a.wait(vm=a.vm, force=True)
        a(f"v_cmp_ne_u64 vcc, {sTAG}, {v(tmp,2)}",
          f"s_sub_u32 {sPOLL}, {sPOLL}, 1", f"s_cbranch_scc1 {E}")
        sl = self.opt.get("sleep", 0)
        if sl: a(f"s_cbranch_vccz {E}", f"s_sleep {sl}", f"s_branch {L}", f"{E}:")
        else: a(f"s_cbranch_vccnz {L}", f"{E}:")
        for r in (tmp, tmp + 1): a.pend_vm.pop(("v", r), None)

    def barrier(self):
        self.a("s_barrier")

    def prologue(self):
        a = self.a
        a("s_cmp_ge_u32 s2, 256", "s_cbranch_scc1 L_exit")
        self.stamp("entry")
        a("s_load_dwordx2 s[4:5], s[0:1], 0", "s_load_dwordx2 s[8:9], s[0:1], 8")
        if not self.opt.get("nocodepf"):
            a(f"s_getpc_b64 s[60:61]", "L_pc:", f"s_sub_u32 s60, s60, L_pc-{NAME}_kernel", "s_subb_u32 s61, s61, 0",
              f"s_mov_b32 s62, L_code_end-{NAME}_kernel", "s_mov_b32 s63, 0x00020000",
              f"s_lshr_b32 {T[0]}, s2, 3", f"s_lshl_b32 {T[0]}, {T[0]}, 11", "v_lshlrev_b32 v250, 3, v0",
              f"buffer_load_dwordx2 v[250:251], v250, s[60:63], {T[0]} offen")
        a(f"s_mov_b32 s6, {2048 * 512 * 2}", "s_mov_b32 s7, 0x00020000", f"s_mov_b32 s10, {512 * 1536 * 2}", "s_mov_b32 s11, 0x00020000")
        a("v_lshrrev_b32 v8, 6, v0", f"v_and_b32 {vLANE}, 63, v0", f"v_readfirstlane_b32 {sW}, v8")
        if self.opt.get("map", 1):
            a(f"s_lshr_b32 {T[0]}, s2, 3", f"s_and_b32 {T[1]}, s2, 6", f"s_and_b32 {T[2]}, s2, 1",
              f"s_lshr_b32 {T[3]}, {T[0]}, 4", f"s_add_u32 {sJ}, {T[1]}, {T[3]}",
              f"s_bfe_u32 {sRB}, {T[0]}, 0x20002", f"s_and_b32 {sCB}, {T[0]}, 3", f"s_lshl_b32 {T[4]}, {T[2]}, 2", f"s_add_u32 {sCB}, {sCB}, {T[4]}",
              f"s_lshr_b32 {sU[1]}, {T[0]}, 2", f"s_and_b32 {sU[2]}, {sCB}, 3", f"s_lshl_b32 {sU[2]}, {sU[2]}, 1")
        else:
            a(f"s_and_b32 {sJ}, s2, 7", f"s_lshr_b32 {sHEAD}, s2, 3", f"s_lshr_b32 {sRB}, {sHEAD}, 3", f"s_and_b32 {sCB}, {sHEAD}, 7",
              f"s_lshl_b32 {sU[1]}, {sRB}, 1", f"s_mov_b32 {sU[2]}, {sCB}")
        a(f"s_lshl_b32 {sR0}, {sJ}, 8", f"s_lshl_b32 {T[0]}, {sRB}, 6", f"s_add_u32 {sR0}, {sR0}, {T[0]}")

    def prologue_rest(self):
        a = self.a
        for d, off, n in self.SRDS[2:]: a(f"s_load_dwordx2 s[{d}:{d + 1}], s[0:1], {off}")
        for d, off, n in self.SRDS[2:]: a(f"s_mov_b32 s{d + 2}, {n}", f"s_mov_b32 s{d + 3}, 0x00020000")
        if self.opt.get("map", 1):
            a(f"s_bfe_u32 {sHEAD}, s2, 0x40003", f"s_and_b32 {T[4]}, s2, 1", f"s_lshl_b32 {T[4]}, {T[4]}, 4", f"s_add_u32 {sHEAD}, {sHEAD}, {T[4]}")
        a(f"s_lshr_b32 {sRH}, {sW}, 1", f"s_and_b32 {sCH}, {sW}, 1",
          f"s_lshl_b32 {sCLU}, {sJ}, 2", f"s_add_u32 {sCLU}, {sCLU}, {sRB}",
          f"s_mov_b32 {sONES}, 0x3f803f80", f"s_mov_b32 {sHIMASK}, 0xffff0000")
        a(f"s_mul_i32 {T[0]}, {sCB}, 5", f"s_min_u32 {T[1]}, {sCB}, 3", f"s_add_u32 {sT0}, {T[0]}, {T[1]}",
          f"s_cmp_ge_u32 {sCB}, 3", f"s_cselect_b32 {sCNT5}, 1, 0")
        a(f"v_lshlrev_b32 {vL16}, 4, {vLANE}", f"v_mov_b32 {vZ}, 0",
          f"v_and_b32 v8, 15, {vLANE}", f"v_lshrrev_b32 v9, 5, {vLANE}", f"v_bfe_u32 v10, {vLANE}, 4, 1",
          f"v_lshlrev_b32 v8, 4, v8", f"v_lshl_add_u32 v8, v10, 3, v8",
          f"v_lshl_add_u32 {vPAT}, v9, 8, v8",
          f"v_lshl_add_u32 v63, v9, 9, v8",
          f"v_and_b32 {vFP32}, 31, {vLANE}", f"v_lshlrev_b32 {vFP32}, 7, {vFP32}",
          f"v_and_b32 {vFP8}, 7, {vLANE}", f"v_lshlrev_b32 {vFP8}, 3, {vFP8}")

    SRDS = [(4, 0, 2048 * 512 * 2), (8, 8, 512 * 1536 * 2), (36, 80, WS_SIZE), (12, 16, 512 * 512 * 2), (16, 32, 512 * 1376 * 2),
            (20, 40, 2048 * 2048 * 2), (24, 48, 2048 * 2), (28, 56, 688 * 512 * 2), (32, 64, 2048 * 512 * 2)]

    def phase_qkv(self):
        a = self.a
        ACC = 128
        CSR = (124, 200, 204)
        vX0, vX1, vW0, vW1, vWrA, vWrB, XA = "v28", "v29", "v30", "v31", "v32", "v33", 34
        STA = LC
        a(f"v_lshrrev_b32 v8, 3, {vLANE}", f"v_and_b32 v9, 7, {vLANE}", "v_lshrrev_b32 v10, 1, v8", "v_xor_b32 v10, v10, v9",
          "v_lshlrev_b32 v10, 4, v10", "v_lshl_add_u32 v10, v8, 10, v10",
          f"s_lshl_b32 {T[0]}, {sW}, 4", f"s_add_u32 {T[0]}, {T[0]}, {sR0}", f"s_lshl_b32 {T[0]}, {T[0]}, 10",
          f"v_add_u32 {vX0}, {T[0]}, v10", f"v_xor_b32 {vX1}, 64, {vX0}", f"v_add_u32 {vX1}, {7 * 1024}, {vX1}")
        a(f"v_bfe_u32 v10, {vLANE}, 4, 1", "v_lshrrev_b32 v11, 1, v9", "v_xor_b32 v11, v11, v10",
          "v_and_b32 v12, 1, v9", "v_lshl_or_b32 v11, v11, 1, v12", "v_lshlrev_b32 v11, 4, v11",
          "v_mul_u32_u24 v12, 3072, v8", "v_add_u32 v12, v12, v11",
          f"s_mul_i32 {T[0]}, {sW}, {16 * 3072}", f"s_lshl_b32 {T[1]}, {sCB}, 7", f"s_add_u32 {T[0]}, {T[0]}, {T[1]}",
          f"v_add_u32 {vW0}, {T[0]}, v12", f"v_xor_b32 {vW1}, 64, {vW0}", f"v_add_u32 {vW1}, {8 * 3072 - 1024}, {vW1}",
          f"s_lshl_b32 {sU[0]}, {sW}, 11", f"s_add_u32 {sU[2]}, {sU[2]}, {sU[1]}")
        if self.opt.get("q_rot", 3) == 0: a(f"s_mov_b32 {sU[2]}, 0")
        if self.opt.get("q_rot", 3) == 3: a(f"s_and_b32 {sU[2]}, {sU[1]}, 1", f"s_lshl_b32 {sU[2]}, {sU[2]}, 2")
        if self.opt.get("q_rot") == 1: a(f"s_mov_b32 {sU[2]}, {sU[1]}")
        if self.opt.get("q_samew"): a(f"v_subrev_u32 {vW0}, {T[1]}, {vW0}", f"v_subrev_u32 {vW1}, {T[1]}, {vW1}")
        if self.opt.get("q_samex"): a(f"v_and_b32 {vX0}, 0xffff, {vX0}", f"v_and_b32 {vX1}, 0x1ffff, {vX1}")
        tok = {}
        def dma(t):
            L = [[f"s_add_u32 {T[1]}, {sU[2]}, {t}", f"s_and_b32 {T[1]}, {T[1]}, 7", f"s_lshl_b32 {T[2]}, {T[1]}, 7",
                  f"s_add_u32 m0, {sU[0]}, {LB + t * 8192}", f"buffer_load_dwordx4 {vX0}, {sX}, {T[2]} offen lds"],
                 [f"buffer_load_dwordx4 {vX1}, {sX}, {T[2]} offen offset:1024 lds"]]
            for p in range(3):
                pre = [f"s_mul_i32 {T[1]}, {T[1]}, {64 * 3072}"] if p == 0 else []
                L.append(pre + [f"s_add_u32 {T[2]}, {T[1]}, {p * 1024}", f"s_add_u32 m0, {sU[0]}, {(t & 3) * 24576 + p * 8192}",
                                f"buffer_load_dwordx4 {vW0}, {sWQKV}, {T[2]} offen lds"])
                L.append([f"buffer_load_dwordx4 {vW1}, {sWQKV}, {T[2]} offen offset:1024 lds"])
            L[-1].append(lambda: tok.__setitem__(t, a.vtok()))
            return L
        a("s_waitcnt lgkmcnt(0)")
        self.stamp("kernarg")
        self.emit_all(dma(0))
        pq = self.opt.get("pfq2", 0)
        def pfq():
            a(f"s_lshl_b32 {T[3]}, s2, 2", f"s_add_u32 {T[3]}, {T[3]}, {sW}", f"s_lshl_b32 {T[4]}, {T[3]}, 11", f"s_mul_i32 {T[3]}, {T[3]}, 960",
              f"s_add_u32 {T[3]}, {T[3]}, {192 * 3072}", f"v_min_u32 v248, 59, {vLANE}", "v_lshlrev_b32 v248, 4, v248",
              f"buffer_load_dwordx4 v[244:247], v248, {sWQKV}, {T[3]} offen",
              f"buffer_load_dwordx4 v[244:247], {vL16}, {sX}, {T[4]} offen", f"buffer_load_dwordx4 v[244:247], {vL16}, {sX}, {T[4]} offen offset:1024")
        def pfq3(first):
            wb = (8 - first) * 64 * 3072 // 1024
            a(f"s_lshl_b32 {T[3]}, s2, 2", f"s_add_u32 {T[3]}, {T[3]}, {sW}", f"s_lshl_b32 {T[4]}, {T[3]}, 11", f"s_mul_i32 {T[3]}, {T[3]}, {wb}",
              f"s_add_u32 {T[3]}, {T[3]}, {first * 64 * 3072}", f"v_min_u32 v248, {(8 - first) * 8 - 1}, {vLANE}", "v_lshlrev_b32 v248, 4, v248",
              f"v_lshlrev_b32 v249, 4, {vLANE}", f"v_min_u32 v249, {min(wb, 1024) - 16}, v249",
              f"buffer_load_dwordx4 v[244:247], v248, {sX}, {T[4]} offen offset:{first * 128}",
              f"buffer_load_dwordx4 v[244:247], v248, {sX}, {T[4]} offen offset:{1024 + first * 128}",
              f"buffer_load_dwordx4 v[244:247], v249, {sWQKV}, {T[3]} offen")
            if wb > 1024:
                a(f"v_min_u32 v249, {wb - 1024 - 16}, v249", f"buffer_load_dwordx4 v[244:247], v249, {sWQKV}, {T[3]} offen offset:1024")
        if pq >= 3: pfq3(pq - 1)
        self.prologue_rest()
        if pq == 1: pfq()
        a(f"v_lshrrev_b32 v10, 4, {vLANE}", f"v_bfe_u32 v11, {vLANE}, 2, 2", f"v_and_b32 v12, 3, {vLANE}",
          "v_lshl_add_u32 v13, v10, 3, v11", "v_lshlrev_b32 v13, 7, v13", "v_lshl_add_u32 v13, v12, 3, v13",
          "v_lshrrev_b32 v11, 1, v11", "v_and_b32 v14, 1, v10", "v_lshl_or_b32 v11, v14, 1, v11",
          f"v_xor_b32 v11, {sW}, v11", f"v_lshl_add_u32 {vWrA}, v11, 5, v13", f"v_add_u32 {vWrB}, {2 * 24576}, {vWrA}")
        a(f"v_and_b32 v11, 15, {vLANE}", "v_lshrrev_b32 v12, 1, v11", "v_xor_b32 v12, v12, v10", "v_lshlrev_b32 v12, 4, v12",
          "v_lshl_add_u32 v12, v11, 7, v12", f"s_add_u32 {T[0]}, {sU[0]}, {LB}", f"v_add_u32 v{XA}, {T[0]}, v12")
        for k in range(1, 8): a(f"v_xor_b32 v{XA + k}, {((k >> 1) << 11) | ((k & 1) << 6)}, v{XA}")
        for r in range(252, 256): a(f"v_mov_b32 v{r}, {sONES}")
        early = self.opt.get("qearly", 0)
        QS = 0.25 * 1.4426950408889634
        a(f"v_and_b32 v16, 15, {vLANE}", f"v_lshrrev_b32 v17, 4, {vLANE}", f"v_and_b32 v20, 3, {vLANE}", "v_lshrrev_b32 v21, 2, v16",
          f"s_lshl_b32 {T[0]}, {sW}, 6", f"s_add_u32 {T[0]}, {T[0]}, {STA}",
          "v_cmp_eq_u32 vcc, v17, v21", "v_cndmask_b32_e64 v21, 0, -1, vcc",
          "v_lshlrev_b32 v16, 2, v16", f"v_add_u32 v16, {T[0]}, v16", "v_lshlrev_b32 v18, 4, v17", f"v_add_u32 v18, {T[0]}, v18",
          "v_and_b32 v17, 1, v17", "v_lshl_add_u32 v19, v17, 8, v16",
          f"s_and_b32 {T[6]}, {sW}, 1", f"s_lshl_b32 {T[6]}, {T[6]}, 8", f"s_lshr_b32 {T[7]}, {sW}, 1", f"s_lshl_b32 {T[7]}, {T[7]}, 10",
          f"s_or_b32 {T[6]}, {T[6]}, {T[7]}", f"v_or_b32 v42, {T[6]}, v63", f"s_lshl_b32 {T[6]}, {sW}, 9", f"v_or_b32 v46, {T[6]}, {vPAT}",
          f"v_mov_b32 v22, {f2u(QS)}", f"v_mov_b32 v23, {f2u(QS)}")
        self.emit_all(dma(1))
        if pq == 2: pfq()
        for r in range(1, 4): a(f"v_xor_b32 v{42 + r}, {((r & 1) << 8) | ((r >> 1) << 10)}, v42", f"v_xor_b32 v{46 + r}, {r << 9}, v46")
        a(f"s_lshl_b32 {T[4]}, {sCB}, 2", f"s_add_u32 {T[4]}, {T[4]}, {sW}",
          f"s_lshl_b32 {sU[5]}, {T[4]}, 16", f"s_lshl_b32 {T[3]}, {sR0}, 5", f"s_add_u32 {sU[5]}, {sU[5]}, {T[3]}",
          f"s_add_u32 {sU[5]}, {sU[5]}, {WS_Q}",
          f"s_lshl_b32 {sU[6]}, {T[4]}, 17", f"s_lshl_b32 {T[3]}, {sR0}, 6", f"s_add_u32 {sU[6]}, {sU[6]}, {T[3]}",
          f"s_add_u32 {sU[6]}, {sU[6]}, {WS_KV}", f"s_add_u32 {sU[7]}, {sU[6]}, 2048",
          f"s_lshl_b32 {T[0]}, {sRB}, 5", f"s_add_u32 {T[0]}, {T[0]}, {T[4]}", f"s_lshl_b32 {T[0]}, {T[0]}, 7",
          f"s_lshl_b32 {T[4]}, {sJ}, 3", f"s_add_u32 {T[0]}, {T[0]}, {T[4]}", f"s_add_u32 {sU[8]}, {T[0]}, {WS_F1}")
        a("s_waitcnt lgkmcnt(0)", f"s_mov_b32 {sRB8}, {sU[1]}")
        a(f"buffer_load_dwordx2 v[4:5], off, {sWS}, 0 sc1")
        etok = a.vtok()
        tl = self.opt.get("tlb", 0)
        if tl:
            a(f"v_min_u32 v248, 9, {vLANE}", "v_lshlrev_b32 v248, 21, v248", f"buffer_load_dword v249, v248, {sWS}, 0 offen offset:2048")
            if tl >= 2:
                a(f"buffer_load_dword v249, v248, {sWSP}, 0 offen", f"buffer_load_dword v249, off, {sWO}, 0", f"buffer_load_dword v249, off, {sWIN}, 0",
                  f"buffer_load_dword v249, off, {sWOUT}, 0", f"buffer_load_dword v249, off, {sBSP}, 0")
            if tl >= 3: a(f"buffer_load_dword v249, off, {sOUT}, 0")
        if not early: self.emit_all(dma(2))
        self.stamp("issued")
        def abuf(s): return 64 + 16 * (s % 3)
        def wbuf(s): return (112, 176, 188)[s % 3]
        def reads(s):
            t, sub = s >> 1, s & 1
            slot = t & 3
            wb = vWrA if slot < 2 else vWrB
            wo = (slot & 1) * 24576 + sub * 4096
            A, W = abuf(s), wbuf(s)
            L = [f"ds_read_b64_tr_b16 {v(W + 2 * h, 2)}, {wb} offset:{wo + 512 * h}" for h in range(2)]
            L += [f"ds_read_b128 {v(A + 4 * r, 4)}, v{XA + 2 * r + sub} offset:{t * 8192}" for r in range(4)]
            L += [f"ds_read_b64_tr_b16 {v(W + 4 * p + 2 * h, 2)}, {wb} offset:{wo + 8192 * p + 512 * h}" for p in (1, 2) for h in range(2)]
            return L
        def mfmas(s):
            A, W = abuf(s), wbuf(s)
            c = "0" if s == 0 else None
            ms = []
            for p in range(3):
                wv = v(W + 4 * p, 4)
                for r in range(4):
                    d, av = ACC + 16 * p + 4 * r, v(A + 4 * r, 4)
                    ms.append(mfma16(d, wv, av, c) if p < 2 else mfma16(d, av, wv, c))
                ms.append(mfma16(CSR[p], wv, "v[252:255]", c) if p < 2 else mfma16(CSR[p], "v[252:255]", wv, c))
                if p == 0: ms.append(mfma16(8, "v[252:255]", v(A, 4), c))
                if p == 1: ms.append(mfma16(24, v(A, 4), v(A, 4), c))
            return ms
        def head0():
            a.wait(vm=tok[0]); self.barrier(); self.stamp("w0")
        before, late = {}, {}
        for t in range(7):
            def f(t=t):
                if not self.opt.get("q_nowait"): a.wait(vm=tok[t + 1])
                self.barrier(); self.stamp(f"qc{t + 1}")
            before[2 * t] = f
        def f15():
            a.wait(lg=a.lg); self.barrier()
        before[15] = f15
        if self.opt.get("q_nodma"):
            dma = lambda t: (tok.__setitem__(t, a.vtok()), [[]] * 8)[1]
        d3 = dma(3)
        late[0], late[1] = d3[:4], d3[4:]
        if early: late[0], late[1] = dma(2), d3
        for t in range(4, 8):
            d = dma(t)
            late[2 * t - 6], late[2 * t - 5] = d[:4], d[4:]
        cf = self.const_fill(52)
        late[15] = [cf[0:4], cf[4:8], cf[8:10], cf[10:]]
        late[12] = [[lambda: a.wait(vm=etok)], ["v_add_u32 v4, 0x9e3779b9, v4"], ["v_add_u32 v5, 0x7f4a7c15, v5"]]
        late[13] = [["v_readfirstlane_b32 s50, v4"], ["v_readfirstlane_b32 s51, v5"]]
        self.kloop(16, reads, mfmas, before, late, {0: head0})
        self.stamp("qkv_gemm")
        a("v_cmp_eq_u32 vcc, 1, v20", "v_cndmask_b32 v9, v24, v25, vcc", "v_cmp_eq_u32 vcc, 3, v20",
          "v_cndmask_b32_e64 v10, v26, v27, vcc", "v_cmp_lt_u32 vcc, 1, v20", "v_cndmask_b32 v9, v9, v10, vcc", "v_and_b32 v9, v9, v21",
          "v_mov_b32 v10, v9", "v_permlane32_swap_b32 v9, v10", "v_add_f32 v9, v9, v10", "v_mov_b32 v10, v9",
          "v_cmp_eq_u32 vcc, 1, v17", "v_permlane16_swap_b32 v9, v10", "v_add_f32 v9, v9, v10")
        self.ln_finish([(8, 9, 10)], 1.0 / 512)
        a("v_cndmask_b32 v10, v10, v11, vcc", "ds_write_b32 v19, v10")
        a.wait(lg=a.lg)
        self.barrier()
        for r in range(4):
            if r: a(f"v_xor_b32 v20, {r << 6}, v16")
            a(f"ds_read2_b32 {v(64 + 2 * r, 2)}, {'v16' if r == 0 else 'v20'} offset1:64")
        qtok = a.ltok()
        for r in range(4):
            if r: a(f"v_xor_b32 v21, {r << 6}, v18")
            p18 = "v18" if r == 0 else "v21"
            a(f"ds_read_b128 {v(80 + 8 * r, 4)}, {p18}", f"ds_read_b128 {v(84 + 8 * r, 4)}, {p18} offset:256")
        a.wait(lg=qtok)
        for p in (1, 2, 0):
            if p == 2:
                a.wait(lg=a.lg)
                for r in range(4): a(f"v_pk_mul_f32 {v(72 + 2 * r, 2)}, {v(64 + 2 * r, 2)}, v[22:23]")
            for r0 in (0, 2):
                work = [(r, k) for r in (r0, r0 + 1) for k in range(2)]
                tm = {w_: 52 + 2 * i for i, w_ in enumerate(work)}
                for r, k in work:
                    c = v(CSR[p] + 2 * k, 2)
                    if p == 2: a(f"v_pk_mul_f32 {v(tm[r, k], 2)}, {c}, {v(84 + 8 * r + 2 * k, 2)}")
                    else: a(f"v_pk_mul_f32 {v(tm[r, k], 2)}, {c}, {v((72 if p == 0 else 64) + 2 * r, 2)} op_sel:[0,1] op_sel_hi:[1,1]")
                for r, k in work:
                    d = v(ACC + 16 * p + 4 * r + 2 * k, 2)
                    if p == 2: a(f"v_pk_fma_f32 {d}, {d}, {v(80 + 8 * r + 2 * k, 2)}, {v(tm[r, k], 2)}")
                    else: a(f"v_pk_fma_f32 {d}, {d}, {v((72 if p == 0 else 64) + 2 * r, 2)}, {v(tm[r, k], 2)} op_sel:[0,0,0] op_sel_hi:[1,0,1]")
                for r, k in work:
                    d = ACC + 16 * p + 4 * r + 2 * k
                    a(f"v_cvt_pk_bf16_f32 v{ACC + 16 * p + 4 * r + k}, v{d}, v{d + 1}")
                for r in (r0, r0 + 1):
                    o = v(ACC + 16 * p + 4 * r, 2)
                    if p < 2: a(f"buffer_store_dwordx2 {o}, v{42 + r}, {sWS}, {sU[5] if p == 0 else sU[6]} offen sc1")
                    else: a(f"buffer_store_dwordx2 {o}, v{46 + r}, {sWS}, {sU[7]} offen sc1")
        stok = a.vtok()
        if self.opt.get("pfs2", 0):
            a(f"s_lshl_b32 {T[3]}, s2, 2", f"s_add_u32 {T[3]}, {T[3]}, {sW}", f"s_lshl_b32 {T[3]}, {T[3]}, 13", f"s_add_u32 {T[4]}, {T[3]}, 4096")
            for i in range(4): a(f"buffer_load_dwordx4 v[244:247], {vL16}, {sWSP}, {T[3 + (i >> 1)]} offen offset:{1024 * (i & 1)}")
        self.flag_store(sU[8], stok)
        self.stamp("qkv_pub")
        self.attn_addresses()

    def ln_finish(self, chains, inv_n):
        a = self.a
        for s1, s2, d in chains: a(f"v_mul_f32 v{s1}, {f2u(inv_n)}, v{s1}", f"v_mul_f32 v{s2}, {f2u(inv_n)}, v{s2}")
        for s1, s2, d in chains: a(f"v_fma_f32 v{s2}, -v{s1}, v{s1}, v{s2}")
        for s1, s2, d in chains: a(f"v_max_f32 v{s2}, 0, v{s2}")
        for s1, s2, d in chains: a(f"v_add_f32 v{s2}, {f2u(1e-5)}, v{s2}")
        for s1, s2, d in chains: a(f"v_rsq_f32 v{d}, v{s2}")
        for s1, s2, d in chains: a(f"v_mul_f32_e64 v{d + 1}, -v{s1}, v{d}")

    def const_fill(self, t=8):
        L = [f"v_and_b32 v{t}, 27, {vLANE}", f"v_cmp_eq_u32 vcc, 1, v{t}", f"v_mov_b32 v{t + 1}, {sONES}",
             f"v_cndmask_b32 v{t + 4}, v3, v{t + 1}, vcc", f"v_mov_b32 v{t + 5}, v{t + 4}", f"v_mov_b32 v{t + 6}, v{t + 4}", f"v_mov_b32 v{t + 7}, v{t + 4}",
             f"s_lshl_b32 {T[3]}, {sW}, 12", f"s_add_u32 {T[3]}, {T[3]}, {LC + 2048}", f"v_add_u32 v{t + 1}, {T[3]}, {vL16}",
             f"ds_write_b128 v{t + 1}, {v(t + 4, 4)}", f"ds_write_b128 v{t + 1}, {v(t + 4, 4)} offset:1024"]
        return L

    S, OA, NM, QF, KB, VB = 64, 112, 144, 176, 184, 192
    vIDX, vSP0, vKA, vKB2, vVB, vVI, vWD0, vXR = 208, 209, 213, 214, 215, 216, 217, 240

    def attn_addresses(self):
        a = self.a
        a(f"v_and_b32 v8, 15, {vLANE}", f"v_lshrrev_b32 v9, 4, {vLANE}", "v_lshlrev_b32 v10, 12, v8", "v_lshl_add_u32 v10, v9, 4, v10",
          f"s_lshl_b32 {T[6]}, {sR0}, 12", f"s_lshl_b32 {T[7]}, {sW}, 7", f"s_add_u32 {T[6]}, {T[6]}, {T[7]}",
          f"v_add_u32 v{self.vSP0}, {T[6]}, v10")
        for tt in range(1, 4): a(f"v_add_u32 v{self.vSP0 + tt}, {tt * 65536}, v{self.vSP0}")
        a(f"v_mov_b32 v{self.vIDX}, 0xdddddddd", f"v_mov_b32 v{self.vKA}, {vL16}", f"v_add_u32 v{self.vKB2}, {LB}, {vL16}")
        a(f"v_lshrrev_b32 v10, 5, {vLANE}", "v_lshl_add_u32 v10, v10, 4, v8", "v_lshlrev_b32 v10, 4, v10",
          f"v_and_b32 v11, 31, {vLANE}", f"v_bfe_u32 v12, {vLANE}, 2, 2",
          "v_add_u32 v12, -1, v12", "v_cmp_gt_u32 vcc, 2, v12", "v_cndmask_b32_e64 v12, 0, 4, vcc",
          "v_and_b32 v13, 27, v11", "v_cmp_eq_u32 vcc, 16, v13", "v_cndmask_b32_e64 v13, 0, 1, vcc",
          "v_add_u32 v12, v12, v13", "v_lshlrev_b32 v12, 4, v12", f"v_add_u32 v12, {LC}, v12",
          "v_cmp_gt_u32 vcc, 16, v11", f"v_cndmask_b32 v{self.vVB}, v12, v10, vcc",
          f"v_mov_b32 v13, 0x4000", f"v_cndmask_b32 v{self.vVI}, v3, v13, vcc")
        self.w128_addresses(self.vWD0, 16)
        self.win_addresses()
        a(f"s_lshl_b32 {T[5]}, {sHEAD}, 17", f"s_lshl_b32 {sU[1]}, {sW}, 12", f"s_add_u32 {T[5]}, {T[5]}, {sU[1]}", f"s_add_u32 {T[5]}, {T[5]}, {WS_KV}")
        for t in range(8):
            a(f"s_add_u32 {T[6]}, {sJ}, {t}", f"s_and_b32 {T[6]}, {T[6]}, 7", f"s_lshl_b32 {T[6]}, {T[6]}, 14", f"s_add_u32 {sROT[t]}, {T[6]}, {T[5]}")
        a(f"s_add_u32 {sSPR}, {sRB8}, {sJ}")
        if self.opt.get("s5prog", 0): a(f"s_and_b32 {sSPR}, {sJ}, 6")
        spr = self.opt.get("sprot", 4)
        if spr == 1: a(f"s_mov_b32 {sSPR}, {sCB}")
        if spr == 2: a(f"s_add_u32 {sSPR}, {sCB}, {sRB8}")
        if spr == 3: a(f"s_and_b32 {sSPR}, {sCB}, 3", f"s_lshl_b32 {sSPR}, {sSPR}, 1")
        if spr == 5: a(f"s_and_b32 {T[6]}, {sCB}, 4", f"s_add_u32 {sSPR}, {sSPR}, {T[6]}")
        if spr == 6: a(f"s_and_b32 {T[6]}, {sCB}, 4", f"s_add_u32 {sSPR}, {sJ}, {T[6]}")
        if spr == 7: a(f"s_and_b32 {T[6]}, {sCB}, 4", f"s_lshr_b32 {sSPR}, {sJ}, 1", f"s_add_u32 {sSPR}, {sSPR}, {T[6]}")
        if spr == 8: a(f"s_and_b32 {T[6]}, {sCB}, 5", f"s_mov_b32 {sSPR}, {T[6]}")
        if spr == 9: a(f"s_mov_b32 {sSPR}, 0")
        if spr == 4: a(f"s_lshr_b32 {sSPR}, {sCB}, 2", f"s_lshl_b32 {sSPR}, {sSPR}, 2")
        if self.opt.get("pfs2", 0) or self.opt.get("lpf", 0): a(f"s_mov_b32 {sSPR}, 0")
        for t in range(8):
            a(f"s_add_u32 {T[6]}, {sSPR}, {t}", f"s_and_b32 {T[6]}, {T[6]}, 7", f"s_lshl_b32 {sU[4 + t]}, {T[6]}, 9")
        a(f"v_lshrrev_b32 v226, 3, {vLANE}", f"s_lshl_b32 {T[6]}, {sCB}, 3", f"s_add_u32 {T[6]}, {T[6]}, {sR0}", f"v_add_u32 v226, {T[6]}, v226",
          "v_lshlrev_b32 v226, 12, v226", f"v_and_b32 v8, 7, {vLANE}", "v_lshl_add_u32 v226, v8, 4, v226",
          f"s_lshl_b32 {T[6]}, {sW}, 7", f"v_add_u32 v226, {T[6]}, v226")
        a(f"v_and_b32 v8, 15, {vLANE}", f"v_lshrrev_b32 v9, 4, {vLANE}", "v_lshlrev_b32 v8, 10, v8", "v_lshl_add_u32 v62, v9, 3, v8")
        a(f"v_and_b32 v10, 15, {vLANE}", f"v_bfe_u32 v11, {vLANE}, 4, 1", f"v_lshrrev_b32 v12, 5, {vLANE}",
          "v_lshlrev_b32 v10, 4, v10", "v_lshl_add_u32 v10, v11, 14, v10", "v_lshl_add_u32 v227, v12, 3, v10")
        for r in range(self.NM, self.NM + 0): pass

    def w128_addresses(self, r, t0=28):
        a = self.a
        p, q, u, x, y = ("v%d" % (t0 + i) for i in range(5))
        a(f"v_lshrrev_b32 {p}, 3, {vLANE}", f"v_and_b32 {q}, 7, {vLANE}", f"v_bfe_u32 {u}, {vLANE}, 4, 1",
          f"v_lshrrev_b32 {x}, 1, {q}", f"v_xor_b32 {x}, {x}, {u}", f"v_and_b32 {y}, 1, {q}", f"v_lshl_or_b32 {x}, {x}, 1, {y}",
          f"v_lshlrev_b32 {x}, 4, {x}", f"v_lshl_add_u32 {x}, {p}, 10, {x}",
          f"s_lshl_b32 {T[6]}, {sCB}, 7", f"v_add_u32 v{r}, {T[6]}, {x}", f"v_xor_b32 v{r + 1}, 64, v{r}",
          f"v_add_u32 v{r + 1}, {7 * 1024}, v{r + 1}", f"v_add_u32 v{r + 2}, {14 * 1024}, v{r}", f"v_add_u32 v{r + 3}, {14 * 1024}, v{r + 1}")

    def w128_dma(self, r, srd, pos, lds, nsteps):
        L = [f"s_lshr_b32 {T[4]}, {pos}, 1", f"s_add_u32 {T[4]}, {T[4]}, {sU[4]}"]
        n = nsteps // 2
        if n & (n - 1) == 0: L.append(f"s_and_b32 {T[4]}, {T[4]}, {n - 1}")
        else: L += [f"s_cmp_ge_u32 {T[4]}, {n}", f"s_cselect_b32 {T[7]}, {n}, 0", f"s_sub_u32 {T[4]}, {T[4]}, {T[7]}"]
        L += [f"s_lshl_b32 {T[4]}, {T[4]}, 1", f"s_and_b32 {T[7]}, {pos}, 1", f"s_add_u32 {T[4]}, {T[4]}, {T[7]}", f"s_lshl_b32 {T[4]}, {T[4]}, 15",
              f"s_mov_b32 m0, {lds}"]
        return L, [f"buffer_load_dwordx4 v{r + i}, {srd}, {T[4]} offen offset:{1024 * i} lds" for i in range(4)]

    def stage_base(self, t): return LA + 16384 * t if t < 4 else LB + 16384 * (t - 4)

    def kv_dma(self, t):
        L = [([f"s_add_u32 m0, {sU[1]}, {self.stage_base(t)}"] if i == 0 else [],
              f"buffer_load_dwordx4 {vL16}, {sWS}, {sROT[t]} offen offset:{1024 * i} sc1 lds") for i in range(4)]
        return L

    def phase_attn(self):
        a = self.a
        S, OA, NM, QF, KB, VB = self.S, self.OA, self.NM, self.QF, self.KB, self.VB
        a(f"s_lshl_b32 {T[0]}, {sW}, 5", f"s_add_u32 {T[0]}, {T[0]}, {sHEAD}", f"s_lshl_b32 {T[0]}, {T[0]}, 7", f"s_add_u32 {T[0]}, {T[0]}, {WS_F1}",
          f"s_lshl_b32 {T[1]}, {sHEAD}, 16", f"s_lshl_b32 {T[2]}, {sJ}, 13", f"s_add_u32 {T[1]}, {T[1]}, {T[2]}",
          f"s_lshl_b32 {T[2]}, {sW}, 11", f"s_add_u32 {T[1]}, {T[1]}, {T[2]}", f"s_add_u32 {T[1]}, {T[1]}, {WS_Q}",
          )
        for r in range(OA, OA + 32): a(f"v_mov_b32 v{r}, 0")
        a(f"s_lshr_b32 {P[0]}, {sHEAD}, 1", f"s_lshl_b32 {P[0]}, {P[0]}, 10", f"s_and_b32 {P[1]}, {sHEAD}, 1", f"s_lshl_b32 {P[1]}, {P[1]}, 9",
          f"s_add_u32 {P[0]}, {P[0]}, {P[1]}", f"s_lshl_b32 {P[1]}, {sJ}, 18", f"s_add_u32 {P[0]}, {P[0]}, {P[1]}",
          f"s_lshl_b32 {P[1]}, {sW}, 16", f"s_add_u32 {P[0]}, {P[0]}, {P[1]}", f"s_add_u32 {P[0]}, {P[0]}, {WS_O}", f"s_add_u32 {P[1]}, {P[0]}, 0x8000",
          f"s_lshl_b32 {P[2]}, {sJ}, 2", f"s_add_u32 {P[2]}, {P[2]}, {sW}", f"s_lshl_b32 {P[2]}, {P[2]}, 12",
          f"s_lshl_b32 {P[3]}, {sHEAD}, 7", f"s_add_u32 {P[2]}, {P[2]}, {P[3]}", f"s_add_u32 {P[2]}, {P[2]}, {WS_F2}",
          f"s_lshl_b32 {P[3]}, {sRH}, 15", f"s_lshl_b32 {P[4]}, {sR0}, 10", f"s_add_u32 {P[3]}, {P[3]}, {P[4]}",
          f"s_lshl_b32 {P[4]}, {sCB}, 7", f"s_add_u32 {P[3]}, {P[3]}, {P[4]}", f"s_lshl_b32 {P[4]}, {sCH}, 6", f"s_add_u32 {P[3]}, {P[3]}, {P[4]}",
          f"s_add_u32 {P[4]}, {P[3]}, 0x4000")
        self.w128_read_base(28, 2)
        wolate = self.opt.get("wolate", 1)
        if wolate: a(f"v_add_u32 v28, {LB}, v28", f"v_add_u32 v29, {LB}, v29")
        L, E, F = a.label("s1"), a.label("s1own"), a.label("s1all")
        a(f"s_mov_b32 {sPOLL}, 0x40000", f"s_lshl_b32 {T[2]}, 1, {sJ}", f"{L}:", f"buffer_load_dwordx2 v[8:9], {vFP8}, {sWS}, {T[0]} offen sc1")
        a.wait(vm=a.vm, force=True)
        a(f"v_cmp_ne_u64 vcc, {sTAG}, v[8:9]", f"s_sub_u32 {sPOLL}, {sPOLL}, 1", f"s_cbranch_scc1 {E}",
          f"s_and_b32 {T[3]}, vcc_lo, {T[2]}", f"s_cbranch_scc1 {L}", f"{E}:", "s_mov_b64 s[60:61], vcc")
        self.stamp("s1")
        for q in range(2):
            a(f"buffer_load_dwordx4 {v(QF + 4 * q, 4)}, {vL16}, {sWS}, {T[1]} offen offset:{1024 * q} sc1")
        kvtok = {}
        def issue(items):
            for pre, ins in items: a(*pre, ins) if pre else a(ins)
        issue(self.kv_dma(0)); kvtok[0] = a.vtok()
        a(f"s_and_b32 {sU[3]}, s60, 0xff", f"s_mov_b32 {sU[2]}, {T[0]}")
        def remote_check(t0, t1):
            def f():
                if self.opt.get("norem"): return
                self.mask_check(t0, t1, sJ, sU[2], sU[3], 8)
            return f
        if self.opt.get("ahead"): a(f"buffer_load_dwordx4 v[228:231], v226, {sWSP}, {sU[4]} offen")
        a.wait(vm=kvtok[0], lg=a.lg)
        self.barrier()
        def kread(kt):
            t, k = kt >> 3, kt & 7
            base = self.vKA if t < 4 else self.vKB2
            return f"ds_read_b128 {v(KB + 4 * (kt & 1), 4)}, v{base} offset:{16384 * (t & 3) + (k >> 1) * 4096 + (k & 1) * 1024}"
        def vread(kt, hi):
            k = kt & 7
            return f"ds_read_b128 {v(VB + 8 * (kt & 1) + 4 * hi, 4)}, v{self.vVB} offset:{(k >> 1) * 4096 + 2048 + (k & 1) * 1024 + 512 * hi}"
        def qk(n, c=None):
            kt, q = n >> 1, n & 1
            return f"v_mfma_f32_32x32x16_bf16 {v(S + 16 * (n % 3), 16)}, {v(KB + 4 * (kt & 1), 4)}, {v(QF + 4 * q, 4)}, {c if c else v(NM + 16 * q, 16)}"
        def pv(n, hi):
            kt, q = n >> 1, n & 1
            return f"v_smfmac_f32_32x32x32_bf16 {v(OA + 16 * q, 16)}, {v(VB + 8 * (kt & 1) + 4 * hi, 4)}, {v(S + 16 * (n % 3) + 8 * hi, 8)}, v{self.vIDX}"
        a(kread(0), kread(1), vread(0, 0), vread(0, 1))
        a.wait(lg=a.lg)
        a(qk(0, "0"), qk(1, "0"))
        for q in range(2):
            b, m = S + 16 * q, 8 + 2 * q
            a(f"v_max3_f32 v{m}, v{b}, v{b + 1}, v{b + 2}")
            for k in range(3, 15, 2): a(f"v_max3_f32 v{m}, v{m}, v{b + k}, v{b + k + 1}")
            a(f"v_max_f32 v{m}, v{m}, v{b + 15}", f"v_mov_b32 v{m + 1}, v{m}")
        for q in range(2): a(f"v_permlane32_swap_b32 v{8 + 2 * q}, v{9 + 2 * q}")
        for q in range(2):
            m = 8 + 2 * q
            a(f"v_max_f32 v{m}, v{m}, v{m + 1}", f"v_sub_f32 v{m}, 0, v{m}")
            for r in range(0, 16, 2): a(f"v_pk_mov_b32 {v(NM + 16 * q + r, 2)}, {v(m, 2)}, {v(m, 2)} op_sel:[0,0]")
            a(qk(q))
        self.stamp("attn_start")
        if self.stamps: a("s_memtime s[100:101]", "s_waitcnt lgkmcnt(0)", "s_mov_b32 s99, s100")
        wotok = [-1]
        wo = []
        FREE0 = "free"
        for g in range(4):
            a(f"s_lshl_b32 {T[4]}, {sW}, 1", f"s_add_u32 {T[4]}, {T[4]}, {g >> 1}", f"s_add_u32 {T[4]}, {T[4]}, {sCB}", f"s_and_b32 {T[4]}, {T[4]}, 7",
              f"s_lshl_b32 {T[4]}, {T[4]}, 16", f"s_add_u32 {T[g]}, {T[4]}, {(g & 1) * 32768}")
            ins = [f"buffer_load_dwordx4 v{self.vWD0 + i}, {sWO}, {T[g]} offen offset:{1024 * i} lds" for i in range(4)]
            wo += [([f"s_lshl_b32 {sU[3]}, {sW}, 14", f"s_add_u32 m0, {sU[3]}, {(LB if wolate else LA) + g * 4096}"], ins[0]), ([], ins[1]), ([], ins[2]), ([], ins[3])]
        a(f"s_lshl_b32 {T[6]}, {sHEAD}, 2", f"s_add_u32 {T[6]}, {T[6]}, {sW}", f"s_mul_i32 {T[6]}, {T[6]}, 11008")
        pfw = [([f"s_add_u32 {T[6]}, {T[6]}, 4096"] if i and i % 4 == 0 else [],
                f"buffer_load_dwordx4 v[228:231], {vL16}, {sWIN}, {T[6]} offen offset:{(i % 4) * 1024}") for i in range(11)]
        if not self.opt.get("pfw"): pfw = []
        a(f"s_mov_b32 {T[7]}, {sU[4]}", f"s_mov_b32 {sU[4]}, {sCB}")
        w2c = self.win_dma(1, 28, 1, (T[4], T[5], T[6], sU[0]))
        self.emit(w2c[0][:-1]); a(f"s_mov_b32 {T[4]}, m0", f"s_mov_b32 {sU[4]}, {T[7]}")
        pfw += [([f"s_mov_b32 m0, {T[4]}"], w2c[0][-1]), ([], w2c[1][-1]), ([], w2c[2][-1])]
        if wolate:
            wo_late, wo = wo, [FREE0] * 16
        pf2 = []
        if self.opt.get("pf2", 1):
            a(f"s_lshl_b32 {T[5]}, s2, 2", f"s_add_u32 {T[5]}, {T[5]}, {sW}", f"s_mul_i32 {T[6]}, {T[5]}, 1376", f"s_mul_i32 {T[7]}, {T[5]}, 688",
              f"s_lshl_b32 {T[5]}, {T[5]}, 9",
              f"v_min_u32 v50, 42, {vLANE}", "v_lshlrev_b32 v50, 4, v50", f"v_min_u32 v51, 21, {vLANE}", "v_lshlrev_b32 v51, 4, v51",
              f"v_min_u32 v49, 31, {vLANE}", "v_lshlrev_b32 v49, 4, v49")
            J = "v[228:231]"
            pf2 = [([], f"buffer_load_dwordx4 {J}, v49, {sWO}, {T[5]} offen"), ([], f"buffer_load_dwordx4 {J}, {vL16}, {sWIN}, {T[6]} offen"),
                   ([], f"buffer_load_dwordx4 {J}, v51, {sWIN}, {T[6]} offen offset:1024"), ([], f"buffer_load_dwordx4 {J}, v50, {sWOUT}, {T[7]} offen")]
        if self.opt.get("pfs2", 0) == 1:
            pre0 = [f"s_lshl_b32 {sU[0]}, s2, 2", f"s_add_u32 {sU[0]}, {sU[0]}, {sW}", f"s_lshl_b32 {sU[0]}, {sU[0]}, 13"]
            pf3 = [(pre0 if i == 0 else [f"s_add_u32 {sU[0]}, {sU[0]}, 4096"] if i == 2 else [],
                    f"buffer_load_dwordx4 v[228:231], {vL16}, {sWSP}, {sU[0]} offen offset:{2048 + 1024 * (i & 1)}") for i in range(4)]
        else:
            pf3 = []
        post = {}
        slots = []
        spl = [([], f"buffer_load_dwordx4 {ar(((2 * t + sub) * 4 + tt) * 4, 4)}, v{self.vSP0 + tt}, {sWSP}, {sU[4 + t]} offen offset:{64 * sub}")
               for t in range(8) for sub in range(2) for tt in range(4)]
        lag = self.opt.get("splag", 0)
        if lag:
            first = [x for i, x in enumerate(spl) if (i >> 2) & 1 == 0]
            second = [x for i, x in enumerate(spl) if (i >> 2) & 1 == 1]
            spl = first[:lag]
            for i in range(lag, 32): spl += [first[i], second[i - lag]]
            spl += second[32 - lag:]
        if self.opt.get("nosp"): spl = []
        if self.opt.get("sp_eff"):
            spl = [([], f"buffer_load_dwordx4 {ar(k * 4, 4)}, v226, {sWSP}, {sU[4 + (k >> 3)]} offen offset:{(k & 7) * 512}") for k in range(64)]
            if self.opt.get("sp_eff") == 2:
                a(f"v_and_b32 v226, 0x3ffff, v226")
        slots = [None] * 128
        kv1 = self.kv_dma(1); kv1[0] = ([remote_check(1, 3)] + kv1[0][0], kv1[0][1])
        post[kv1[-1][1]] = lambda: kvtok.__setitem__(1, a.vtok())
        FREE = FREE0
        fewbar = self.opt.get("fewbar", 0)
        for t in range(8):
            kv = []
            if t < 6:
                kv = self.kv_dma(t + 2); post[kv[-1][1]] = (lambda t=t: kvtok.__setitem__(t + 2, a.vtok()))
                if t == 1: kv[0] = ([remote_check(3, 8)] + kv[0][0], kv[0][1])
            if t == 0:
                st = [None, None] + kv1 + kv + [pfw.pop(0) for _ in range(len(pfw))]
                st += [FREE] * (16 - len(st))
            else:
                if t < 6:
                    ex = pf2 if t == self.opt.get("pf2at", 2) and pf2 else pf3 if t == self.opt.get("pf3at", 1) and pf3 else [FREE] * 4
                    oth = [x for pair in zip(kv, ex) for x in pair]
                else:
                    oth = [wo.pop(0) for _ in range(8)]
                st = [x for pair in zip(oth, [FREE] * 8) for x in pair]
            slots[16 * t:16 * t + 16] = st
        lpf = self.opt.get("lpf", 0)
        if lpf:
            a(f"s_lshl_b32 {P[5]}, s2, 2", f"s_add_u32 {P[5]}, {P[5]}, {sW}", f"s_lshl_b32 {P[5]}, {P[5]}, 13", f"v_add_u32 v232, 4096, {vL16}")
            pf = [([], f"buffer_load_dwordx4 v[228:231], {vL16 if r == 0 else 'v232'}, {sWSP}, {P[5]} offen offset:{1024 * q}") for q in range(4) for r in range(2)]
            start = self.opt.get("lpfstart", 26)
            for i in range(start):
                if slots[i] is FREE: slots[i] = pf.pop(0) if pf else None
            assert not pf, len(pf)
        if fewbar:
            def kvslots(t): return [i for i, x in enumerate(slots) if x and x is not FREE and f"{sROT[t]} offen" in x[1] and "sc1 lds" in x[1]]
            kvi = {t: [slots[i] for i in kvslots(t)] for t in range(3, 8)}
            for t in range(3, 8):
                for i in kvslots(t): slots[i] = FREE
            plan = {3: [16 + 2 * i for i in range(4)], 4: [32 + 2 * i for i in range(4)], 5: [40 + 2 * i for i in range(4)],
                    6: [64 + 2 * i for i in range(4)], 7: [72 + 2 * i for i in range(4)]}
            for t in range(3, 8):
                for i, x in zip(plan[t], kvi[t]):
                    if slots[i] is not FREE and slots[i] is not None:
                        j = next(k for k in range(i + 1, 128) if slots[k] is FREE); slots[j] = slots[i]
                    slots[i] = x
        if self.opt.get("kvearly", 0):
            kvs = [self.kv_dma(t) for t in range(2, 8)]
            for t, kv in zip(range(2, 8), kvs): post[kv[-1][1]] = (lambda t=t: kvtok.__setitem__(t, a.vtok()))
            w2cs = [x for x in slots[:16] if x and x is not FREE and str(sWIN) in x[1]]
            wos = [x for x in slots if x and x is not FREE and str(sWO) in x[1] and " lds" in x[1]]
            pre0 = [f"s_lshl_b32 {sU[2]}, s2, 2", f"s_add_u32 {sU[2]}, {sU[2]}, {sW}", f"s_lshl_b32 {sU[2]}, {sU[2]}, 13"]
            pfs = [(pre0 if i == 0 else [f"s_add_u32 {sU[2]}, {sU[2]}, 4096"] if i == 4 else [],
                    f"buffer_load_dwordx4 v[228:231], {vL16}, {sWSP}, {sU[2]} offen offset:{1024 * (i & 3)}") for i in range(8)]
            if self.opt.get("nopfs"): pfs = []
            head = [None, None] + kv1 + [x for kv in kvs for x in kv] + w2cs + pf2 + pfs
            q0 = self.opt.get("spstart", 50)
            assert len(head) <= q0
            slots = head + [None] * (q0 - len(head)) + [FREE] * (128 - q0)
            w0 = 128 - 2 * len(wos) - self.opt.get("wogap", 4)
            for i, x in enumerate(wos): slots[w0 + 2 * i] = x
        fr = [i for i, x in enumerate(slots) if x is FREE]
        for i in fr: slots[i] = None
        if self.opt.get("nowo"): slots = [x if not (x and str(sWO) in x[1]) else None for x in slots]; wotok[0] = a.vtok()
        if self.opt.get("nokv"):
            for t in range(1, 8): kvtok[t] = a.vtok()
            slots = [x if not (x and "sc1 lds" in x[1]) else None for x in slots]
        extra2 = {}
        for k, it in enumerate(spl):
            i = fr[(k * len(fr)) // len(spl)]
            if slots[i] is None: slots[i] = it
            else: extra2.setdefault(i, []).append(it[1])
        assert not wo and not pfw, (len(wo), len(pfw))
        last_wo = ([x for x in slots if x and str(sWO) in x[1]] or [(0, "none")])[-1][1]
        post[last_wo] = lambda: wotok.__setitem__(0, a.vtok())
        def vm_slot(i):
            if i < len(slots) and slots[i]:
                a(slots[i][1])
                if slots[i][1] in post: post[slots[i][1]]()
                for x in extra2.get(i, []): a(x)
        def vm_pre(i):
            if i < len(slots) and slots[i]: self.emit(slots[i][0])
        ac = self.opt.get("ac", 1)
        def lds_wait(kt):
            t = kt >> 3
            if kt & 7 == 5 and kt < 56 and fewbar:
                if t in (0, 1, 3, 5):
                    a.wait(vm=kvtok[1 if t == 0 else t + 2], lg=a.lg); self.barrier()
                else:
                    a.wait(lg=a.lg)
            elif kt & 7 == 5 and kt < 56:
                a.wait(vm=kvtok[(kt >> 3) + 1] if not self.opt.get("nokvw") else None, lg=a.lg)
                if not self.opt.get("nobar"): self.barrier()
            else:
                a.wait(lg=a.lg)
        vm_pre(0)
        for n in range(128):
            kt, q = n >> 1, n & 1
            b = S + 16 * (n % 3)
            E = lambda lo, hi: [a(f"v_exp_f32 v{b + r}, v{b + r}") for r in range(lo, hi)]
            E(0, 2)
            if n > 0: a(pv(n - 1, 1))
            if q == 0:
                if kt + 2 < 64: a(kread(kt + 2))
                if (kt + 1) & 7 == 0 and kt + 1 < 64:
                    for _ in range(3 if kt + 1 == 32 else 1): a(f"v_add_u32 v{self.vVB}, v{self.vVB}, v{self.vVI}")
            else:
                vm_slot(2 * kt)
                if not ac: vm_pre(2 * kt + 1)
            E(2, 7)
            if n + 2 < 128: a(qk(n + 2))
            if q == 0:
                if kt + 1 < 64: a(vread(kt + 1, 0))
            elif ac:
                lds_wait(kt); vm_pre(2 * kt + 1)
            else:
                vm_slot(2 * kt + 1)
            E(7, 12)
            a(pv(n, 0))
            if q == 0:
                if kt + 1 < 64: a(vread(kt + 1, 1))
                if kt > 0: vm_pre(2 * kt)
            elif ac:
                vm_slot(2 * kt + 1)
            else:
                lds_wait(kt)
            if q == 1 and self.opt.get("sp_ds"): a(f"ds_read_b128 v[228:231], v{self.vKA} offset:{kt * 1024}")
            E(12, 16)
        a.wait(vm=None if wolate else wotok[0], lg=a.lg)
        a(pv(127, 1))
        self.barrier()
        self.stamp("attn_loop")
        if self.stamps: a("s_memtime s[100:101]", "s_waitcnt lgkmcnt(0)", "s_sub_u32 s99, s100, s99")
        for q in range(2):
            o = OA + 16 * q
            a(f"v_pk_add_f32 {v(8 + 4 * q, 2)}, {v(o, 2)}, {v(o + 2, 2)}", f"v_pk_add_f32 {v(10 + 4 * q, 2)}, {v(o + 4, 2)}, {v(o + 6, 2)}")
        for q in range(2): a(f"v_pk_add_f32 {v(8 + 4 * q, 2)}, {v(8 + 4 * q, 2)}, {v(10 + 4 * q, 2)}")
        a("v_add_f32 v8, v8, v9", "v_add_f32 v12, v12, v13", "v_add_f32 v8, v8, v12", f"v_max_f32 v9, v{OA + 8}, v{OA + 24}",
          f"v_add_f32 v10, v{OA + 8}, v{OA + 24}", "v_add_f32 v8, v8, v10",
          f"s_mov_b32 {T[6]}, 0x207", f"v_cmp_class_f32_e64 vcc, v8, {T[6]}",
          f"s_mov_b64 s[60:61], vcc", f"v_cmp_le_f32 vcc, {f2u(2.0 ** 64)}, v9", "s_or_b64 vcc, vcc, s[60:61]")
        if self.force_fallback: a("s_mov_b64 vcc, -1")
        a("s_cbranch_vccnz L_attn_slow", "L_attn_done:")
        for q in range(2): a(f"v_rcp_f32 v{8 + q}, v{OA + 16 * q + 8}")
        for q in range(2):
            o = OA + 16 * q
            for k in range(8): a(f"v_mul_f32 v{o + k}, v{o + k}, v{8 + q}")
            for k in range(4): a(f"v_cvt_pk_bf16_f32 v{192 + 4 * q + k}, v{o + 2 * k}, v{o + 2 * k + 1}")
            for hf in range(2):
                a(f"buffer_store_dwordx2 {v(192 + 4 * q + 2 * hf, 2)}, v227, {sWS}, {P[q]} offen offset:{256 * hf} sc1")
        rd = [f"ds_read_b64_tr_b16 {v(64 + (nt * 16 + p) * 4 + 2 * hf, 2)}, v{28 + nt} offset:{p * 4096 + hf * 512}"
              for p in range(16) for nt in range(2) for hf in range(2)]
        if wolate:
            otok = a.vtok()
            k = self.opt.get("wopre", 8)
            for pre, ins in wo_late[:k]: a(*pre, ins)
            self.flag_store(P[2], otok)
            self.stamp("attn_pub")
            for pre, ins in wo_late[k:]: a(*pre, ins)
            self.wo_tok, self.wo_rd = a.vtok(), rd
        else:
            k = self.opt.get("rdpre", 24)
            self.emit(rd[:k])
            self.flag_store(P[2])
            self.stamp("attn_pub")
            self.emit(rd[k:])
        for rt in range(2):
            for nt in range(2):
                a(f"buffer_load_dwordx2 {v(self.vXR + 4 * rt + 2 * nt, 2)}, v62, {sX}, {P[3 + rt]} offen offset:{32 * nt}")

    def w128_read_base(self, b, n, tmp=(64, 65, 66, 67), b1=None):
        a = self.a
        p, q, r, t = ("v%d" % x for x in tmp)
        a(f"v_lshrrev_b32 {p}, 4, {vLANE}", f"v_bfe_u32 {q}, {vLANE}, 2, 2", f"v_and_b32 {r}, 3, {vLANE}",
          f"v_lshl_add_u32 {t}, {p}, 3, {q}", f"v_lshlrev_b32 {t}, 7, {t}", f"v_lshl_add_u32 {t}, {r}, 3, {t}",
          f"v_lshrrev_b32 {q}, 1, {q}", f"v_and_b32 {p}, 1, {p}", f"v_lshl_or_b32 {q}, {p}, 1, {q}",
          f"s_lshl_b32 {T[3]}, {sCH}, 1", f"v_xor_b32 {q}, {T[3]}, {q}", f"v_lshl_add_u32 v{b}, {q}, 5, {t}")
        a(f"v_xor_b32 v{b1 if b1 else b + 1}, 32, v{b}")

    def attn_slow(self):
        a = self.a
        S, OA, NM, QF, KB, VB = self.S, self.OA, self.NM, self.QF, self.KB, self.VB
        a.vm_done = a.vm; a.lg_done = a.lg
        a("L_attn_slow:", "s_nop 15", f"s_lshl_b32 {sU[4]}, {sHEAD}, 17", f"s_add_u32 {sU[4]}, {sU[4]}, {WS_KV}",
          f"v_mov_b32 v8, 0xff800000", f"v_mov_b32 v10, 0xff800000", f"s_mov_b32 {sU[5]}, 0")
        def kaddr():
            a(f"s_lshr_b32 {sU[6]}, {sU[5]}, 1", f"s_lshl_b32 {sU[6]}, {sU[6]}, 12", f"s_and_b32 {sU[7]}, {sU[5]}, 1", f"s_lshl_b32 {sU[7]}, {sU[7]}, 10",
              f"s_add_u32 {sU[6]}, {sU[6]}, {sU[7]}", f"s_add_u32 {sU[6]}, {sU[6]}, {sU[4]}")
        a("L_slow_max:"); kaddr()
        a(f"buffer_load_dwordx4 {v(KB, 4)}, {vL16}, {sWS}, {sU[6]} offen sc1"); a.wait(vm=a.vm, force=True)
        for q in range(2):
            a(f"v_mfma_f32_32x32x16_bf16 {v(S + 16 * q, 16)}, {v(KB, 4)}, {v(QF + 4 * q, 4)}, 0")
        for q in range(2):
            b, m = S + 16 * q, 8 + 2 * q
            for k in range(0, 16, 2): a(f"v_max3_f32 v{m}, v{m}, v{b + k}, v{b + k + 1}")
        a(f"s_add_u32 {sU[5]}, {sU[5]}, 1", f"s_cmp_lt_u32 {sU[5]}, 64", "s_cbranch_scc1 L_slow_max")
        a("v_mov_b32 v9, v8", "v_mov_b32 v11, v10")
        for q in range(2): a(f"v_permlane32_swap_b32 v{8 + 2 * q}, v{9 + 2 * q}")
        for q in range(2):
            m = 8 + 2 * q
            a(f"v_max_f32 v{m}, v{m}, v{m + 1}", f"v_sub_f32 v{m}, 0, v{m}")
            for r in range(16): a(f"v_mov_b32 v{NM + 16 * q + r}, v{m}")
        for r in range(OA, OA + 32): a(f"v_mov_b32 v{r}, 0")
        a(f"v_and_b32 v8, 27, {vLANE}", "v_cmp_eq_u32 vcc, 16, v8", f"v_mov_b32 v9, {sONES}", "v_cndmask_b32 v9, v3, v9, vcc")
        for r in range(8): a(f"v_mov_b32 v{VB + r}, v9")
        a(f"v_and_b32 v8, 15, {vLANE}", f"v_lshrrev_b32 v10, 5, {vLANE}", "v_lshl_add_u32 v10, v10, 4, v8", "v_lshlrev_b32 v10, 4, v10",
          f"s_mov_b32 {sU[5]}, 0", "s_mov_b32 s60, 0x0000ffff", "s_mov_b32 s61, 0x0000ffff")
        a("L_slow_pv:"); kaddr()
        a(f"buffer_load_dwordx4 {v(KB, 4)}, {vL16}, {sWS}, {sU[6]} offen sc1", f"s_add_u32 {sU[6]}, {sU[6]}, 2048", "s_mov_b64 exec, s[60:61]",
          f"buffer_load_dwordx4 {v(VB, 4)}, v10, {sWS}, {sU[6]} offen sc1",
          f"buffer_load_dwordx4 {v(VB + 4, 4)}, v10, {sWS}, {sU[6]} offen offset:512 sc1", "s_mov_b64 exec, -1")
        a.wait(vm=a.vm, force=True)
        for q in range(2):
            a(f"v_mfma_f32_32x32x16_bf16 {v(S + 16 * q, 16)}, {v(KB, 4)}, {v(QF + 4 * q, 4)}, {v(NM + 16 * q, 16)}")
        for q in range(2):
            for r in range(16): a(f"v_exp_f32 v{S + 16 * q + r}, v{S + 16 * q + r}")
            for hi in range(2):
                a(f"v_smfmac_f32_32x32x32_bf16 {v(OA + 16 * q, 16)}, {v(VB + 4 * hi, 4)}, {v(S + 16 * q + 8 * hi, 8)}, v{self.vIDX}")
        a(f"s_add_u32 {sU[5]}, {sU[5]}, 1", f"s_cmp_lt_u32 {sU[5]}, 64", "s_nop 15", "s_cbranch_scc1 L_slow_pv", "s_nop 15", "s_branch L_attn_done")

    def rot_table(self, npairs, mul):
        a = self.a
        a(f"s_mul_i32 {sU[4]}, {sCB}, {mul}")

    @staticmethod
    def gpos(p): return LRED + 4096 * p if p < 16 else 4096 * (p - 16)

    def rot_index(self, dst, pos, npairs):
        L = [f"s_add_u32 {dst}, {sU[4]}, {pos}"]
        if npairs & (npairs - 1) == 0: L.append(f"s_and_b32 {dst}, {dst}, {npairs - 1}")
        else: L += [f"s_cmp_ge_u32 {dst}, {npairs}", f"s_cselect_b32 {T[7]}, {npairs}, 0", f"s_sub_u32 {dst}, {dst}, {T[7]}"]
        return L

    def act_dma(self, ws_off, steps, chunks, lds0, gpos=False):
        a = self.a
        a(f"s_lshr_b32 {T[0]}, {sR0}, 4", f"s_add_u32 {T[0]}, {T[0]}, {sW}", f"s_mul_i32 {T[0]}, {T[0]}, {steps * 1024}",
          f"s_add_u32 {sU[0]}, {T[0]}, {ws_off}", f"s_mul_i32 {T[1]}, {sW}, {1024 if gpos else steps * 1024}", f"s_add_u32 {sU[1]}, {T[1]}, {lds0}")
        toks = {}
        pre4 = self.opt.get("pre4", 1)
        if pre4:
            for q in range(4): a(*self.rot_index(P[2 + q], q, steps // 2), f"s_lshl_b32 {P[2 + q]}, {P[2 + q]}, 11", f"s_add_u32 {P[2 + q]}, {P[2 + q]}, {sU[0]}")
        def group(c):
            p0 = sum(chunks[:c]); L = []
            for k in range(chunks[c]):
                p = p0 + k
                it = []
                so = P[2 + (p >> 1)] if pre4 and p < 8 else T[2]
                if k % 2 == 0:
                    if so == T[2]:
                        it += self.rot_index(T[2], p >> 1, steps // 2)
                        it += [f"s_lshl_b32 {T[2]}, {T[2]}, 11", f"s_add_u32 {T[2]}, {T[2]}, {sU[0]}"]
                    if not gpos: it.append(f"s_add_u32 m0, {sU[1]}, {p * 1024}")
                if gpos: it.append(f"s_add_u32 m0, {sU[1]}, {self.gpos(p) - (k % 2) * 1024}")
                it.append(f"buffer_load_dwordx4 {vL16}, {sWS}, {so} offen offset:{(k % 2) * 1024} sc1 lds")
                L.append(it)
            L[-1].append(lambda: toks.__setitem__(c, a.vtok()))
            return L
        return group, toks

    def cluster_flag_off(self, dst, base, own, shift=8):
        a = self.a
        a(f"s_lshl_b32 {dst}, {sCLU}, {shift}", f"s_add_u32 {dst}, {dst}, {base}")
        if own: a(f"s_lshl_b32 {T[7]}, {sCB}, 3", f"s_add_u32 {dst}, {dst}, {T[7]}")

    def stats_publish(self, s, base):
        a = self.a
        a(f"v_permlane32_swap_b32 v{s}, v{s + 1}", f"v_permlane32_swap_b32 v{s + 2}, v{s + 3}",
          f"v_add_f32 v{s}, v{s}, v{s + 1}", f"v_add_f32 v{s + 2}, v{s + 2}, v{s + 3}",
          f"v_permlane16_swap_b32 v{s}, v{s + 2}", f"v_add_f32 v{s}, v{s}, v{s + 2}")
        a(f"s_lshl_b32 {T[4]}, {sCLU}, 13", f"s_add_u32 {T[4]}, {T[4]}, {base}", f"s_lshl_b32 {T[5]}, {sRH}, 7", f"s_add_u32 {T[4]}, {T[4]}, {T[5]}",
          f"s_lshl_b32 {T[5]}, {sCB}, 1", f"s_add_u32 {T[5]}, {T[5]}, {sCH}", f"s_lshl_b32 {T[5]}, {T[5]}, 9", f"s_add_u32 {T[4]}, {T[4]}, {T[5]}",
          f"buffer_store_dword v{s}, v61, {sWS}, {T[4]} offen sc1")

    def stats_load(self, base, r):
        a = self.a
        a(f"s_lshl_b32 {T[4]}, {sCLU}, 13", f"s_add_u32 {T[4]}, {T[4]}, {base}", f"s_lshl_b32 {T[5]}, {sRH}, 7", f"s_add_u32 {T[4]}, {T[4]}, {T[5]}",
          f"s_add_u32 {T[5]}, {T[4]}, 4096")
        for p in range(16):
            a(f"buffer_load_dword v{r + p}, v61, {sWS}, {T[4] if p < 8 else T[5]} offen offset:{(p % 8) * 512} sc1")
        return a.vtok()

    SGR = 64
    def stats_publish_tagged(self, s, base):
        a = self.a
        a(f"v_permlane32_swap_b32 v{s}, v{s + 1}", f"v_permlane32_swap_b32 v{s + 2}, v{s + 3}",
          f"v_add_f32 v{s}, v{s}, v{s + 1}", f"v_add_f32 v{s + 2}, v{s + 2}, v{s + 3}",
          f"v_permlane16_swap_b32 v{s}, v{s + 2}", f"v_add_f32 v{s}, v{s}, v{s + 2}", f"v_mov_b32 v{s + 1}, v{s}",
          f"v_mov_b32 v{s + 2}, v4", f"v_mov_b32 v{s + 3}, v5", f"v_permlane32_swap_b32 v{s}, v{s + 1}")
        a(f"s_lshl_b32 {T[4]}, {sCLU}, 14", f"s_add_u32 {T[4]}, {T[4]}, {base}", f"s_lshl_b32 {T[5]}, {sRH}, 13", f"s_add_u32 {T[4]}, {T[4]}, {T[5]}",
          f"s_lshl_b32 {T[5]}, {sCB}, 1", f"s_add_u32 {T[5]}, {T[5]}, {sCH}", f"s_lshl_b32 {T[5]}, {T[5]}, 9", f"s_add_u32 {T[4]}, {T[4]}, {T[5]}",
          "s_mov_b32 exec_hi, 0", f"buffer_store_dwordx4 {v(s, 4)}, {vL16}, {sWS}, {T[4]} offen sc1", "s_mov_b32 exec_hi, -1")

    def stats_tagged_loads(self, base, r):
        R = r if isinstance(r, (list, tuple)) else [r + 4 * p for p in range(8)]
        L = [[f"buffer_load_dwordx4 {v(R[p], 4)}, v61, {sWS}, {sU[3]} offen offset:{512 * p} sc1"] for p in range(8)]
        L[0] = [f"s_lshl_b32 {sU[3]}, {sCLU}, 14", f"s_add_u32 {sU[3]}, {sU[3]}, {base}", f"s_lshl_b32 {T[5]}, {sRH}, 13", f"s_add_u32 {sU[3]}, {sU[3]}, {T[5]}",
                f"v_and_b32 v61, 31, {vLANE}", "v_lshlrev_b32 v61, 4, v61", f"v_lshrrev_b32 v54, 5, {vLANE}", "v_lshl_add_u32 v61, v54, 12, v61"] + L[0]
        return L

    def stats_tagged_finish(self, base, r, inv_n, d):
        a = self.a
        L, E = a.label("st_retry"), a.label("st_ok")
        a(f"s_mov_b32 {sPOLL}, 0x40000", f"{L}:")
        a.wait(vm=a.vm, force=True)
        a(f"v_cmp_ne_u64 s[60:61], {sTAG}, {v(r + 2, 2)}")
        for p in range(1, 8): a(f"v_cmp_ne_u64 vcc, {sTAG}, {v(r + 4 * p + 2, 2)}", "s_or_b64 s[60:61], s[60:61], vcc")
        a("s_cmp_eq_u64 s[60:61], 0", f"s_cbranch_scc1 {E}", f"s_sub_u32 {sPOLL}, {sPOLL}, 1", f"s_cbranch_scc1 {E}")
        a.cond_begin()
        for it in self.stats_tagged_loads(base, r)[0][-1:]: a(it)
        for it in self.stats_tagged_loads(base, r)[1:]: self.emit(it)
        a.cond_end()
        a(f"s_branch {L}", f"{E}:")
        a.vm_done = a.vm
        self.stats_sum(r, inv_n, d)

    def stats_sum(self, r, inv_n, d):
        a = self.a
        R = r if isinstance(r, (list, tuple)) else [r + 4 * p for p in range(8)]
        for st in (4, 2, 1):
            for k in range(st): a(f"v_pk_add_f32 {v(R[k], 2)}, {v(R[k], 2)}, {v(R[k + st], 2)}")
        r = R[0]
        a(f"v_mov_b32 v{r + 2}, v{r}", f"v_mov_b32 v{r + 3}, v{r + 1}",
          f"v_permlane32_swap_b32 v{r}, v{r + 2}", f"v_permlane32_swap_b32 v{r + 1}, v{r + 3}",
          f"v_pk_add_f32 {v(r, 2)}, {v(r, 2)}, {v(r + 2, 2)}")
        self.ln_finish([(r, r + 1, d)], inv_n)
        a(f"v_mov_b32 v{d + 2}, v{d}", f"v_mov_b32 v{d + 3}, v{d + 1}",
          f"v_permlane16_swap_b32 v{d}, v{d + 2}", f"v_permlane16_swap_b32 v{d + 1}, v{d + 3}")

    def stats_sum_items(self, R, inv_n):
        L = []
        for st in (4, 2, 1):
            for k in range(st): L += [f"v_add_f32 v{R[k] + e}, v{R[k] + e}, v{R[k + st] + e}" for e in range(2)]
        r, t = R[0], R[1]
        L += [f"v_mov_b32 v{t}, v{r}", f"v_mov_b32 v{t + 1}, v{r + 1}", f"v_permlane32_swap_b32 v{r}, v{t}", f"v_permlane32_swap_b32 v{r + 1}, v{t + 1}",
              f"v_add_f32 v{t}, v{r}, v{t}", f"v_add_f32 v{t + 1}, v{r + 1}, v{t + 1}",
              f"v_mul_f32 v{t}, {f2u(inv_n)}, v{t}", f"v_mul_f32 v{t + 1}, {f2u(inv_n)}, v{t + 1}", f"v_fma_f32 v{t + 1}, -v{t}, v{t}, v{t + 1}",
              f"v_max_f32 v{t + 1}, 0, v{t + 1}", f"v_add_f32 v{t + 1}, {f2u(1e-5)}, v{t + 1}", f"v_rsq_f32 v{r}, v{t + 1}", f"v_mul_f32_e64 v{r + 1}, -v{t}, v{r}",
              f"v_mov_b32 v{r + 2}, v{r}", f"v_mov_b32 v{r + 3}, v{r + 1}", f"v_permlane16_swap_b32 v{r}, v{r + 2}", f"v_permlane16_swap_b32 v{r + 1}, v{r + 3}"]
        return L

    STR2 = [216, 220, 224, 228, 232, 236, 52, 252]
    STR = 216
    def stats_load_items(self, base, r):
        L = []
        for p in range(16):
            it = []
            if p == 0:
                it += [f"s_lshl_b32 {T[4]}, {sCLU}, 13", f"s_add_u32 {T[4]}, {T[4]}, {base}", f"s_lshl_b32 {T[5]}, {sRH}, 7",
                       f"s_add_u32 {T[4]}, {T[4]}, {T[5]}", f"s_add_u32 {T[5]}, {T[4]}, 4096"]
            it.append(f"buffer_load_dword v{r + p}, v61, {sWS}, {T[4] if p < 8 else T[5]} offen offset:{(p % 8) * 512} sc1")
            L.append(it)
        return L

    def stats_finish(self, r, inv_n, d):
        a = self.a
        for st in (8, 4, 2):
            for k in range(0, st, 2): a(f"v_pk_add_f32 {v(r + k, 2)}, {v(r + k, 2)}, {v(r + st + k, 2)}")
        a(f"v_add_f32 v{r}, v{r}, v{r + 1}", f"v_mov_b32 v{r + 1}, v{r}", f"v_permlane32_swap_b32 v{r}, v{r + 1}")
        self.ln_finish([(r, r + 1, d)], inv_n)
        a(f"v_mov_b32 v{d + 2}, v{d}", f"v_mov_b32 v{d + 3}, v{d + 1}",
          f"v_permlane16_swap_b32 v{d}, v{d + 2}", f"v_permlane16_swap_b32 v{d + 1}, v{d + 3}")

    def win_addresses(self):
        a = self.a
        for i in range(3):
            a(f"v_add_u32 v16, {64 * i}, {vLANE}", "v_mul_u32_u24 v17, 171, v16", "v_lshrrev_b32 v17, 11, v17",
              "v_mul_u32_u24 v18, 12, v17", "v_sub_u32 v18, v16, v18", "v_bfe_u32 v19, v17, 3, 1", "v_lshlrev_b32 v19, 1, v19",
              "v_xor_b32 v18, v18, v19", "v_mul_u32_u24 v17, 2752, v17", "v_lshl_add_u32 v17, v18, 4, v17",
              f"v_add_u32 v{56 + i}, {-1024 * i}, v17")
        a(f"v_lshrrev_b32 v16, 4, {vLANE}", f"v_bfe_u32 v17, {vLANE}, 2, 2", f"v_and_b32 v18, 3, {vLANE}",
          "v_lshl_add_u32 v19, v16, 3, v17", "v_mul_u32_u24 v19, 192, v19", "v_lshl_add_u32 v19, v18, 3, v19",
          "v_and_b32 v17, 1, v16", f"v_xor_b32 v17, {sCH}, v17", "v_lshl_add_u32 v59, v17, 5, v19", "v_add_u32 v60, 49152, v59",
          f"v_and_b32 v17, 15, {vLANE}", "v_lshlrev_b32 v17, 2, v17", "v_and_b32 v18, 1, v16", "v_lshl_add_u32 v17, v18, 6, v17",
          "v_lshrrev_b32 v16, 1, v16", "v_lshl_add_u32 v61, v16, 8, v17")

    def win_dma(self, half, g0, per_wave, regs=None, wave=sW):
        r5, r6, r2, r7 = regs or (sU[5], sU[6], sU[2], sU[7])
        L = []
        for k in range(per_wave):
            for i in range(3):
                it = []
                if k == 0 and i == 0:
                    it += [f"s_lshl_b32 {r5}, {sT0}, 5", f"s_mul_i32 {r6}, {wave}, {per_wave}", f"s_lshl_b32 {r2}, {sU[4]}, 2",
                           f"s_add_u32 {r2}, {r2}, {r6}", f"s_mul_i32 {r6}, {r6}, 3072"]
                if i == 0:
                    it += [f"s_add_u32 {r7}, {r2}, {g0 + k}", f"s_and_b32 {r7}, {r7}, 31", f"s_mul_i32 {r7}, {r7}, {16 * 2752}",
                           f"s_add_u32 {r7}, {r7}, {r5}"]
                    if half: it.append(f"s_add_u32 {r7}, {r7}, 1376")
                    it.append(f"s_add_u32 m0, {r6}, {(g0 + k) * 3072}")
                it.append(f"buffer_load_dwordx4 v{56 + i}, {sWIN}, {r7} offen offset:{1024 * i} lds")
                L.append(it)
        return L

    def kloop(self, n, reads, mfmas, before={}, late={}, head=None, per=2, extra=None):
        a = self.a
        tok = {}
        for s in range(min(2, n)):
            if s in (head or {}): head[s]()
            self.emit(reads(s)); tok[s] = a.ltok()
        self.kl = getattr(self, "kl", -1) + 1
        for s in range(n):
            a.wait(lg=tok[s])
            if s in before: before[s]()
            if s % 4 == 0: self.stamp(f"k{self.kl}s{s}")
            ms = mfmas(s)
            fill = list(reads(s + 2)) + [lambda s=s: tok.__setitem__(s + 2, a.ltok())] if s + 2 < n else []
            if extra: fill += extra(s)
            lt = list(late.get(s, []))
            k = len(ms) - len(lt)
            assert k >= 1, (s, len(ms), len(lt))
            interleave(a, ms[:k], fill, per=per)
            for m, it in zip(ms[k:], lt):
                a(m); self.emit(it)

    def emit_all(self, items):
        for it in items: self.emit(it)

    def emit(self, items):
        for x in items: x() if callable(x) else self.a(x)

    def phase_wo(self):
        a = self.a
        ACC = 192
        a(f"s_mov_b32 {sU[4]}, {sCB if not self.opt.get('noarot') else 0}")
        fine = self.opt.get("fine", 1)
        group, toks = self.act_dma(WS_O, 16, [2, 2, 4, 4, 4] if fine else [4, 4, 4, 4], LB)
        self.cluster_flag_off(T[3], WS_F2, False, 12)
        a(f"s_lshl_b32 {T[4]}, {sRH}, 15", f"s_add_u32 {T[4]}, {T[4]}, {LB}", f"v_add_u32 v30, {T[4]}, {vL16}")
        n2 = 3
        ng = self.opt.get("w2s2", 4)
        Lp, Le = a.label("s2poll"), a.label("s2end")
        if self.opt.get("wolate", 1):
            done = a.vm_done
            a(f"s_cmp_eq_u32 {sW}, 0", f"s_cbranch_scc1 {Lp}", f"s_sub_u32 {T[5]}, {sW}, 1")
            a.cond_begin()
            if self.opt.get("w2first", 0): self.emit_all(self.win_dma(1, 0, ng, wave=T[5]))
            a.cond_end()
            a(f"{Lp}:")
            a.vm_done = done
            a.wait(vm=self.wo_tok)
            self.barrier()
            self.emit(self.wo_rd)
            Lq = a.label("s2poll")
            done = a.vm_done
            a(f"s_cmp_eq_u32 {sW}, 0", f"s_cbranch_scc1 {Lq}", f"s_sub_u32 {T[5]}, {sW}, 1")
            a.cond_begin()
            if not self.opt.get("w2first", 0): self.emit_all(self.win_dma(1, 0, ng, wave=T[5]))
            a(f"s_branch {Le}", f"{Lq}:")
            self.poll(vFP32, T[3], 52)
            a(f"{Le}:")
            a.cond_end()
            a.vm_done = done
            a.wait(lg=a.lg)
            self.barrier()
        else:
            a.wait(lg=a.lg)
            self.barrier()
            done = a.vm_done
            a(f"s_cmp_eq_u32 {sW}, 0", f"s_cbranch_scc1 {Lp}", f"s_sub_u32 {T[5]}, {sW}, 1")
            a.cond_begin()
            self.emit_all(self.win_dma(1, 0, ng, wave=T[5]))
            a(f"s_branch {Le}", f"{Lp}:")
            self.poll(vFP32, T[3], 52)
            a.cond_end()
            a(f"{Le}:")
            a.vm_done = done
            self.barrier()
        self.stamp("s2")
        for c in range(2 + fine): self.emit_all(group(c))
        def buf(s, rt): return (208 + (s % 4) * 8 + rt * 4)
        def reads(s): return [f"ds_read_b128 {v(buf(s, rt), 4)}, v30 offset:{(rt * 16 + s) * 1024}" for rt in range(2)]
        def mfmas(s):
            return [mfma16(ACC + (rt * 2 + nt) * 4, v(64 + (nt * 16 + s) * 4, 4), v(buf(s, rt), 4), v(32 + (rt * 2 + nt) * 4, 4) if s == 0 else None) for rt in range(2) for nt in range(2)]
        def w(c):
            def f():
                a.wait(vm=toks[c]); self.barrier()
            return f
        def head0():
            a.wait(vm=toks[0], lg=a.lg)
            for i in range(8): a(f"v_lshlrev_b32 v{32 + 2 * i}, 16, v{self.vXR + i}", f"v_and_b32 v{33 + 2 * i}, {sHIMASK}, v{self.vXR + i}")
            self.barrier()
        g2, g3 = group(2 + fine), group(3 + fine)
        pw = (28 - 3 * ng + 3) // 4
        w2 = self.win_dma(1, 28 - 4 * pw, pw)
        late = {0: g2[:2], 1: g2[2:], 2: g3[:2], 3: g3[2:]}
        for i in range(min(len(w2), self.opt.get("w2in", 12))): late[self.opt.get("w2at", 3) + i] = late.get(self.opt.get("w2at", 3) + i, []) + [w2.pop(0)]
        late[15] = late.get(15, []) + [[f"s_lshr_b32 {T[0]}, {sR0}, 4", f"s_lshl_b32 {T[1]}, {sRH}, 1", f"s_add_u32 {T[0]}, {T[0]}, {T[1]}", f"s_lshl_b32 {T[0]}, {T[0]}, 14"],
                                       [f"s_lshl_b32 {T[1]}, {sCB}, 1", f"s_add_u32 {T[1]}, {T[1]}, {sCH}", f"s_lshl_b32 {T[1]}, {T[1]}, 10", f"s_add_u32 {T[0]}, {T[0]}, {T[1]}"],
                                       [f"s_add_u32 {T[0]}, {T[0]}, {WS_H}", f"s_add_u32 {T[1]}, {T[0]}, 0x4000"]]
        self.kloop(16, reads, mfmas, {0: w(1), 2: w(2), 6: w(3), 10: w(4)} if fine else {2: w(1), 6: w(2), 10: w(3)}, late, {0: head0}, per=1)
        self.w2rest = w2
        self.stamp("wo_gemm")
        for i in range(4):
            for k in range(2): a(f"v_cvt_pk_bf16_f32 v{vH + 2 * i + k}, v{ACC + 4 * i + 2 * k}, v{ACC + 4 * i + 2 * k + 1}")
        for rt in range(2):
            for nt in range(2):
                a(f"buffer_store_dwordx2 {v(vH + 4 * rt + 2 * nt, 2)}, {vPAT}, {sWS}, {T[rt]} offen offset:{512 * nt} sc1")
        for k in range(4):
            for rt in range(2):
                h = f"v{vH + 4 * rt + k}"
                a(f"v_dot2_f32_bf16 v{32 + 2 * rt}, {h}, {sONES}, {'0' if k == 0 else 'v%d' % (32 + 2 * rt)}",
                  f"v_dot2_f32_bf16 v{33 + 2 * rt}, {h}, {h}, {'0' if k == 0 else 'v%d' % (33 + 2 * rt)}")
        self.stats_publish_tagged(32, WS_ST3)
        self.cluster_flag_off(T[0], WS_F3, True)
        self.flag_store_wg(T[0])
        self.stamp("wo_pub")

    HF, ACC2, ACC1, WB, CS = 64, 192, 216, 28, 240

    def win_reads(self, s, read_h):
        L = []
        base = "v59" if s < 8 else "v60"
        for m in range(3):
            for hf in range(2):
                L.append(f"ds_read_b64_tr_b16 {v(self.wbuf(s) + 4 * m + 2 * hf, 2)}, {base} offset:{(s & 7) * 6144 + hf * 768 + m * 64}")
            if m == 0 and read_h:
                L += [f"ds_read_b128 {v(self.HF + (rt * 16 + s) * 4, 4)}, v62 offset:{(rt * 16 + s) * 1024}" for rt in range(2)]
        return L

    def wbuf(self, s): return (28, 40, 16)[s % 3]

    def win_gemm(self, acc, before, head, read_h, late={}, cs=False, extra=None):
        HF = self.HF
        def mfmas(s):
            L = []
            for m in range(3):
                L += [mfma16(acc + (rt * 3 + m) * 4, v(self.wbuf(s) + 4 * m, 4), v(HF + (rt * 16 + s) * 4, 4), "0" if s == 0 else None) for rt in range(2)]
                if cs: L.append(mfma16(self.CS + 4 * m, v(self.wbuf(s) + 4 * m, 4), "v[252:255]", "0" if s == 0 else None))
            return L
        self.kloop(16, lambda s: self.win_reads(s, read_h), mfmas, before, late, head, per=3 if extra else 2, extra=extra)

    def colsum_pass(self, late={}, before={}):
        def mfmas(s): return [mfma16(self.CS + 4 * m, v(self.wbuf(s) + 4 * m, 4), "v[252:255]", "0" if s == 0 else None) for m in range(3)]
        self.kloop(16, lambda s: self.win_reads(s, False), mfmas, before, late, per=3)

    def gelu_block(self, acc, st, tiles):
        a = self.a
        CS = self.CS
        K1 = -2.0 * 1.4426950408889634 * 0.7978845608028654
        K2 = K1 * 0.044715
        a(f"s_mov_b32 s60, {f2u(K2)}", f"s_mov_b32 s61, {f2u(K2)}", f"v_mov_b32 v52, {f2u(K1)}", f"v_mov_b32 v53, {f2u(K1)}")
        for i in range(0, len(tiles), 2):
            prs = [(acc + (rt * 3 + m) * 4 + 2 * k, CS + 4 * m + 2 * k, st + 2 * rt) for rt, m in tiles[i:i + 2] for k in range(2)]
            tm = [40, 42, 44, 46]
            for (x, c, r), t in zip(prs, tm): a(f"v_pk_mul_f32 {v(t, 2)}, {v(c, 2)}, {v(r, 2)} op_sel:[0,1] op_sel_hi:[1,1]")
            for (x, c, r), t in zip(prs, tm): a(f"v_pk_fma_f32 {v(x, 2)}, {v(x, 2)}, {v(r, 2)}, {v(t, 2)} op_sel:[0,0,0] op_sel_hi:[1,0,1]")
            for (x, c, r), t in zip(prs, tm): a(f"v_pk_mul_f32 {v(t, 2)}, {v(x, 2)}, {v(x, 2)}")
            for (x, c, r), t in zip(prs, tm): a(f"v_pk_fma_f32 {v(t, 2)}, {v(t, 2)}, s[60:61], v[52:53]")
            for (x, c, r), t in zip(prs, tm): a(f"v_pk_mul_f32 {v(t, 2)}, {v(t, 2)}, {v(x, 2)}")
            for k in range(8): a(f"v_exp_f32 v{40 + k}, v{40 + k}")
            for (x, c, r), t in zip(prs, tm): a(f"v_pk_add_f32 {v(t, 2)}, {v(t, 2)}, v[32:33]")
            for k in range(8): a(f"v_rcp_f32 v{40 + k}, v{40 + k}")
            for (x, c, r), t in zip(prs, tm): a(f"v_pk_mul_f32 {v(x, 2)}, {v(x, 2)}, {v(t, 2)}")

    def phase_win(self):
        a = self.a
        HF, ACC2, ACC1, CS = self.HF, self.ACC2, self.ACC1, self.CS
        self.emit_all(self.w2rest)
        for r in range(252, 256): a(f"v_mov_b32 v{r}, {sONES}")
        a(f"s_lshl_b32 {T[4]}, {sRH}, 15", f"s_add_u32 {T[4]}, {T[4]}, {LB}", f"v_add_u32 v62, {T[4]}, {vL16}")
        fine = self.opt.get("fine", 1)
        group, toks = self.act_dma(WS_H, 16, [2, 2, 4, 4, 4] if fine else [4, 4, 4, 4], LB)
        self.cluster_flag_off(T[3], WS_F3, False)
        if self.w2rest:
            a.wait(vm=a.vm)
            self.barrier()
        ptok = [-1]
        self.colsum_pass({self.opt.get("p3at", 12): [self.poll_early(vFP8, T[3], 52) + [lambda: ptok.__setitem__(0, a.vtok())]]})
        self.stamp("cs2")
        self.poll_late(vFP8, T[3], 52, ptok[0])
        self.stamp("s3")
        for c in range(2 + fine): self.emit_all(group(c))
        def w(c):
            def f():
                a.wait(vm=toks[c]); self.barrier()
            return f
        g2, g3 = group(2 + fine), group(3 + fine)
        stl = self.stats_tagged_loads(WS_ST3, self.STR2)
        late = {0: g2[:2], 1: g2[2:], 2: g3[:2], 3: g3[2:]}
        for i in range(4): late[4 + i] = stl[2 * i:2 * i + 2]
        w1a = self.win_dma(0, 0, 3)
        for i in range(8): late[8 + i] = w1a[i:i + 1] if i < 7 else w1a[7:]
        stk = [-1]
        late[7][-1].append(lambda: stk.__setitem__(0, a.vtok()))
        ss = self.stats_sum_items(self.STR2, 1.0 / 512)
        def extra(s):
            if s < 12: return []
            n = (len(ss) + 15 - s) // (16 - s)
            return ([lambda: a.wait(vm=stk[0])] if s == 12 else []) + [ss.pop(0) for _ in range(n)]
        self.win_gemm(ACC2, {0: w(1), 2: w(2), 6: w(3), 10: w(4)} if fine else {2: w(1), 6: w(2), 10: w(3)}, {0: w(0)}, True, late, extra=extra)
        self.barrier()
        self.stamp("z2_gemm")
        w1tok = [a.vtok(), -1, -1]
        wb, wc = self.win_dma(0, 12, 3), self.win_dma(0, 24, 2)
        wb[-1].append(lambda: w1tok.__setitem__(1, a.vtok())); wc[-1].append(lambda: w1tok.__setitem__(2, a.vtok()))
        rest = wb + wc
        k = self.opt.get("w1pre", 9)
        self.emit_all(rest[:k]); rest = rest[k:]
        a("v_mov_b32 v34, v216", "v_mov_b32 v35, v217", "v_mov_b32 v36, v218", "v_mov_b32 v37, v219")
        for r in range(252, 256): a(f"v_mov_b32 v{r}, {sONES}")
        a("v_mov_b32 v32, 1.0", "v_mov_b32 v33, 1.0")
        T5 = [(0, 0), (1, 0), (0, 1), (1, 1)]
        self.gelu_block(ACC2, 34, T5 + [(0, 2), (1, 2)])
        for rt in range(2):
            x = ACC2 + rt * 12
            a(f"v_pk_add_f32 {v(40 + 4 * rt, 2)}, {v(x, 2)}, {v(x + 2, 2)}", f"v_pk_mul_f32 {v(42 + 4 * rt, 2)}, {v(x, 2)}, {v(x, 2)}")
            a(f"v_pk_fma_f32 {v(42 + 4 * rt, 2)}, {v(x + 2, 2)}, {v(x + 2, 2)}, {v(42 + 4 * rt, 2)}")
            for k in (4, 6):
                a(f"v_pk_add_f32 {v(40 + 4 * rt, 2)}, {v(40 + 4 * rt, 2)}, {v(x + k, 2)}",
                  f"v_pk_fma_f32 {v(42 + 4 * rt, 2)}, {v(x + k, 2)}, {v(x + k, 2)}, {v(42 + 4 * rt, 2)}")
        a(f"s_and_b32 {sU[8]}, {sCNT5}, {sCH}", f"s_cmp_lg_u32 {sU[8]}, 0", "s_cbranch_scc1 L_skip_st")
        for rt in range(2):
            x = ACC2 + rt * 12
            for k in (8, 10):
                a(f"v_pk_add_f32 {v(40 + 4 * rt, 2)}, {v(40 + 4 * rt, 2)}, {v(x + k, 2)}",
                  f"v_pk_fma_f32 {v(42 + 4 * rt, 2)}, {v(x + k, 2)}, {v(x + k, 2)}, {v(42 + 4 * rt, 2)}")
        a("L_skip_st:", "v_add_f32 v48, v40, v41", "v_add_f32 v49, v42, v43", "v_add_f32 v50, v44, v45", "v_add_f32 v51, v46, v47")
        self.stats_publish_tagged(48, WS_ST4)
        self.stamp("z2_pub")
        a("v_mov_b32 v52, v34", "v_mov_b32 v53, v35", "v_mov_b32 v62, v36", "v_mov_b32 v63, v37")
        def w1(c):
            def f():
                a.wait(vm=w1tok[c]); self.barrier()
            return f
        a(f"v_and_b32 v54, 15, {vLANE}", f"v_lshrrev_b32 v55, 4, {vLANE}", "v_lshlrev_b32 v55, 2, v55", "v_sub_u32 v54, v54, v55",
          "v_mov_b32 v55, 0x3f80", "v_mov_b32 v250, 0x3f800000")
        for k, (r, c) in enumerate(((248, 55), (248, 250), (249, 55), (249, 250))):
            a(f"v_cmp_eq_u32 vcc, {k}, v54")
            a(f"v_cndmask_b32 v{r}, v{3 if k & 1 == 0 else r}, v{c}, vcc")
        a(f"s_add_u32 {T[0]}, {sT0}, {sCH}", f"s_lshl_b32 {T[0]}, {T[0]}, 16", f"s_lshl_b32 {T[1]}, {sR0}, 5", f"s_add_u32 {T[0]}, {T[0]}, {T[1]}",
          f"s_lshl_b32 {T[1]}, {sRH}, 10", f"s_add_u32 {T[0]}, {T[0]}, {T[1]}", f"s_add_u32 {sU[9]}, {T[0]}, {WS_Z}",
          f"s_add_u32 {sU[10]}, {sU[9]}, 0x20000", f"s_add_u32 {sU[11]}, {sU[9]}, 0x40000",
          f"s_lshl_b32 {P[0]}, {sRB}, 3", f"s_add_u32 {P[0]}, {P[0]}, {sCB}", f"s_lshl_b32 {P[0]}, {P[0]}, 8",
          f"s_lshl_b32 {T[1]}, {sJ}, 3", f"s_add_u32 {P[0]}, {P[0]}, {T[1]}", f"s_add_u32 {P[0]}, {P[0]}, {WS_F5}")
        late = {i: rest[2 * i:2 * i + 2] for i in range((len(rest) + 1) // 2)}
        sl = self.stats_tagged_loads(WS_ST4, self.SGR)
        for i in range(4): late[self.opt.get("s4at", 9) + i] = sl[2 * i:2 * i + 2]
        csin = self.opt.get("csin", 0)
        self.win_gemm(ACC1, {4: w1(1), 10: w1(2)}, {0: w1(0)}, False, late, cs=csin)
        self.stamp("z1_gemm")
        self.stats_tagged_finish(WS_ST4, self.SGR, 1.0 / 688, 20)
        self.stamp("s4")
        def znorm(m):
            for rt in range(2):
                x = ACC2 + (rt * 3 + m) * 4
                for k in range(2):
                    a(f"v_pk_fma_f32 {v(x + 2 * k, 2)}, {v(x + 2 * k, 2)}, {v(20 + 2 * rt, 2)}, {v(20 + 2 * rt, 2)} op_sel:[0,0,1] op_sel_hi:[1,0,1]")
            for rt in range(2):
                x = ACC2 + (rt * 3 + m) * 4
                for k in range(2): a(f"v_cvt_pk_bf16_f32 v{x + k}, v{x + 2 * k}, v{x + 2 * k + 1}")
            for rt in range(2):
                x = ACC2 + (rt * 3 + m) * 4
                a(f"v_mfma_f32_16x16x16_bf16 {v(28 + 8 * (m & 1) + 4 * rt, 4)}, {v(x, 2)}, v[248:249], 0")
        def zstore(m):
            for rt in range(2):
                d = 28 + 8 * (m & 1) + 4 * rt
                a(f"v_cvt_pk_bf16_f32 v{d}, v{d}, v{d + 1}", f"v_cvt_pk_bf16_f32 v{d + 1}, v{d + 2}, v{d + 3}",
                  f"buffer_store_dwordx2 {v(d, 2)}, {vPAT}, {sWS}, {sU[9 + m]} offen offset:{512 * rt} sc1")
        znorm(0); znorm(1); zstore(0)
        a(f"s_cmp_lg_u32 {sU[8]}, 0", "s_cbranch_scc1 L_skip_z")
        a.cond_begin(); znorm(2); a("s_nop 7"); zstore(2); a.cond_end()
        a("L_skip_z:", "s_nop 7")
        zstore(1)
        a("v_mov_b32 v56, v62", "v_mov_b32 v57, v63")
        self.w128_addresses(self.vWDo, 64)
        a(f"s_lshl_b32 {T[0]}, {sRH}, 5", f"s_add_u32 {T[0]}, {T[0]}, {sR0}", f"s_lshl_b32 {sU[6]}, {T[0]}, 1",
          f"v_and_b32 v20, 15, {vLANE}", "v_lshlrev_b32 v20, 1, v20")
        self.wsp_setup()
        self.flag_store_wg(P[0])
        self.stamp("z2n_pub")
        a(f"buffer_load_ushort v62, v20, {sBSP}, {sU[6]} offen", f"buffer_load_ushort v63, v20, {sBSP}, {sU[6]} offen offset:32")
        eg = self.opt.get("earlyg", 1)
        def src(vals):
            lit = sum(x << (8 * i) for i, x in enumerate(vals))
            return [f"s_lshl_b32 {T[4]}, {sW}, 3", f"s_lshr_b32 {T[4]}, {lit}, {T[4]}", f"s_and_b32 {T[4]}, {T[4]}, 0xff", f"s_lshl_b32 {T[4]}, {T[4]}, 15", f"s_mov_b32 m0, {T[5]}"]
        wo1 = []
        for g in range(4):
            pre, ins = self.w128_dma(self.vWDo, sWOUT, T[1], T[5], 22)
            if eg: pre = src([GPERM[4 * w + g] for w in range(4)])
            pre = [f"s_lshl_b32 {T[1]}, {sW}, 2", f"s_add_u32 {T[1]}, {T[1]}, {g}", f"s_lshl_b32 {T[5]}, {T[1]}, 12", f"s_add_u32 {T[5]}, {T[5]}, {LB}"] + pre
            wo1 += [pre + [ins[0]], [ins[1]], [ins[2]], [ins[3]]]
        wo2 = []
        for g in range(2):
            pre, ins = self.w128_dma(self.vWDo, sWOUT, T[1], T[5], 22)
            if eg: pre = src([GPERM[16 + w + (4 if g and w < 2 else 0)] for w in range(4)])
            p0 = [f"s_add_u32 {T[1]}, {sW}, 16"] if g == 0 else [f"s_cmp_lt_u32 {sW}, 2", f"s_cselect_b32 {T[5]}, 20, 16", f"s_add_u32 {T[1]}, {sW}, {T[5]}"]
            pre = p0 + [f"s_sub_u32 {T[5]}, {T[1]}, 16", f"s_lshl_b32 {T[5]}, {T[5]}, 12"] + pre
            wo2 += [pre + [ins[0]], [ins[1]], [ins[2]], [ins[3]]]
        late = {i: wo1[2 * i:2 * i + 2] for i in range(8)}
        for i in range(4): late[8 + i] = wo2[2 * i:2 * i + 2]
        ptok = [-1]
        late[13] = [self.poll_early(vFP8, T[3], 58) + [lambda: ptok.__setitem__(0, a.vtok())]]
        if csin:
            self.emit_all(wo1 + wo2)
            self.emit(late[13][0])
        else:
            self.colsum_pass(late, {6: self.barrier})
        self.p5tok = ptok[0]
        self.stamp("z1_epi")

    vWDo = 72

    def gelu_items(self, m):
        K1 = -2.0 * 1.4426950408889634 * 0.7978845608028654
        K2 = K1 * 0.044715
        L = []
        if m == 0: L += [f"s_mov_b32 {T[4]}, {f2u(K2)}", f"v_mov_b32 v58, {f2u(K1)}"]
        X = [self.ACC1 + (rt * 3 + m) * 4 + k for rt in range(2) for k in range(4)]
        C = [self.CS + 4 * m + k for rt in range(2) for k in range(4)]
        R = [52 + 4 * rt for rt in range(2) for k in range(4)]
        assert self.opt.get("wd", 7) <= 8
        t = [192 + k for k in range(8)]
        for i in range(8): L.append(f"v_mul_f32 v{t[i]}, v{C[i]}, v{R[i] + 1}")
        for i in range(8): L.append(f"v_fma_f32 v{X[i]}, v{X[i]}, v{R[i]}, v{t[i]}")
        for i in range(8): L.append(f"v_mul_f32 v{t[i]}, v{X[i]}, v{X[i]}")
        for i in range(8): L.append(f"v_fma_f32 v{t[i]}, v{t[i]}, {T[4]}, v58")
        for i in range(8): L.append(f"v_mul_f32 v{t[i]}, v{t[i]}, v{X[i]}")
        for i in range(8): L.append(f"v_exp_f32 v{t[i]}, v{t[i]}")
        for i in range(8): L.append(f"v_add_f32 v{t[i]}, 1.0, v{t[i]}")
        for i in range(8): L.append(f"v_rcp_f32 v{t[i]}, v{t[i]}")
        for i in range(8): L.append(f"v_mul_f32 v{X[i]}, v{X[i]}, v{t[i]}")
        for rt in range(2):
            for k in range(2): L.append(f"v_cvt_pk_bf16_f32 v{vZ1 + (rt * 3 + m) * 2 + k}, v{X[4 * rt + 2 * k]}, v{X[4 * rt + 2 * k + 1]}")
        return L

    def wsp_setup(self):
        a = self.a
        a(f"s_lshl_b32 {T[3]}, {sW}, 3", f"s_add_u32 {T[3]}, {T[3]}, {sCB}", f"s_lshl_b32 {T[3]}, {T[3]}, 8", f"s_add_u32 {T[3]}, {T[3]}, {WS_F5}",
          f"s_lshl_b32 {T[0]}, {sT0}, 16", f"s_lshl_b32 {T[1]}, {sW}, 11", f"s_add_u32 {T[0]}, {T[0]}, {T[1]}", f"s_add_u32 {T[0]}, {T[0]}, {WS_Z}")
        for t in range(8):
            a(f"s_add_u32 {T[1]}, {sSPR}, {t if not self.opt.get('zlocal') else 0}", f"s_and_b32 {T[1]}, {T[1]}, 7", f"s_lshl_b32 {T[1]}, {T[1]}, 13", f"s_add_u32 {sROT[t]}, {T[1]}, {T[0]}")
        a(f"s_lshl_b32 {T[1]}, {sW}, 13", f"s_add_u32 {T[1]}, {T[1]}, {LRED}", f"v_add_u32 v54, {T[1]}, {vL16}",
          f"s_lshl_b32 {T[1]}, {sCH}, 12", f"s_lshl_b32 {T[2]}, {sRH}, 11", f"s_add_u32 {T[1]}, {T[1]}, {T[2]}", f"s_add_u32 {T[1]}, {T[1]}, {LRED}",
          f"v_add_u32 v55, {T[1]}, {vL16}")
        a(f"s_lshr_b32 {T[1]}, {sR0}, 4", f"s_lshl_b32 {T[2]}, {sRH}, 1", f"s_add_u32 {T[1]}, {T[1]}, {T[2]}", f"s_mul_i32 {T[1]}, {T[1]}, {22 * 1024}",
          f"s_add_u32 {T[2]}, {sT0}, {sCH}", f"s_lshl_b32 {T[2]}, {T[2]}, 9", f"s_add_u32 {T[1]}, {T[1]}, {T[2]}", f"s_add_u32 {sU[9]}, {T[1]}, {WS_G}",
          f"s_add_u32 {sU[10]}, {sU[9]}, {22 * 1024}")

    def phase_wsp(self):
        a = self.a
        BUF, ACC, RED, WT = 64, 128, 28, 200
        a(f"v_add_u32 v60, 0x10000, {vL16}")
        prog = self.opt.get("s5prog", 0)
        if prog:
            a.wait(vm=self.p5tok)
            a(f"v_cmp_ne_u64 vcc, {sTAG}, v[58:59]", f"s_mov_b32 {P[2]}, {T[3]}", "s_nop 0", f"s_and_b32 {P[3]}, vcc_lo, 0xff")
            self.mask_check(0, 2, sSPR, P[2], P[3], 58)
        else:
            self.poll_late(vFP8, T[3], 58, self.p5tok, wg=False)
        self.stamp("s5")
        a("v_lshlrev_b32 v62, 16, v62", "v_lshlrev_b32 v63, 16, v63")
        tok = {}
        def loads(p, u):
            t, sub = u >> 1, u & 1
            L = []
            if sub == 0: L.append(f"s_add_u32 {T[0]}, {sROT[t]}, {p * 0x20000}")
            for f in range(2):
                L.append(f"buffer_load_dwordx4 {v(BUF + (2 * (u & 7) + f) * 4, 4)}, {vL16 if f == 0 else 'v60'}, {sWS}, {T[0]} offen offset:{1024 * sub} sc1")
            L.append(lambda: tok.__setitem__((p, u), a.vtok()))
            return L
        D = self.opt.get("wd", 7)
        assert D <= 8
        gq = [self.gelu_items(0) + self.gelu_items(1), self.gelu_items(2), []]
        self.w128_read_base(59, 2, (192, 193, 194, 195), 61)
        wt = [f"ds_read_b64_tr_b16 {v(WT + (nt * 6 + p) * 4 + 2 * hf, 2)}, v{59 if nt == 0 else 61} offset:{p * 4096 + hf * 512}"
              for p in range(6) for nt in range(2) for hf in range(2)]
        seq = [(p, u) for p in range(3) for u in range(16)]
        for p, u in seq[:D]:
            if prog and u == 4: self.mask_check(2, 8, sSPR, P[2], P[3], 192)
            self.emit(loads(p, u))
        def red_write(p):
            A = ACC + 32 * (p & 1)
            return [f"ds_write_b128 v54, {v(A + 4 * i, 4)} offset:{(p & 1) * 32768 + i * 1024}" for i in range(8)]
        def red_read(p):
            return [f"ds_read_b128 {v(RED + (sw * 2 + rt) * 4, 4)}, v55 offset:{(p & 1) * 32768 + sw * 8192 + rt * 1024}" for sw in range(3) for rt in range(2)]
        def red_read2(p):
            return [f"ds_read_b128 {v(ACC + 32 * (p & 1) + rt * 4, 4)}, v55 offset:{(p & 1) * 32768 + 3 * 8192 + rt * 1024}" for rt in range(2)]
        def gate(p):
            L = []
            A = ACC + 32 * (p & 1)
            for o in range(8): L.append(f"v_add_f32 v{A + o}, v{A + o}, v{RED + o}")
            for o in range(8): L.append(f"v_add_f32 v{RED + 8 + o}, v{RED + 8 + o}, v{RED + 16 + o}")
            for o in range(8): L.append(f"v_add_f32 v{A + o}, v{A + o}, v{62 + (o >> 2)}")
            for o in range(8):
                z = vZ1 + ((o >> 2) * 3 + p) * 2 + ((o >> 1) & 1)
                L.append(f"v_and_b32 v{RED + o}, {sHIMASK}, v{z}" if o & 1 else f"v_lshlrev_b32 v{RED + o}, 16, v{z}")
            for o in range(8): L.append(f"v_add_f32 v{A + o}, v{A + o}, v{RED + 8 + o}")
            for o in range(8): L.append(f"v_mul_f32 v{A + o}, v{A + o}, v{RED + o}")
            for o in range(4): L.append(f"v_cvt_pk_bf16_f32 v{RED + o}, v{A + 2 * o}, v{A + 2 * o + 1}")
            return L
        def gstore(p):
            L = []
            if p == 2:
                sk, zr = a.label("gskip"), a.label("gstore")
                L.append(a.cond_begin)
                L.append(lambda: a(f"s_cmp_eq_u32 {sU[8]}, 0", f"s_cbranch_scc1 {zr}", f"s_cmp_eq_u32 {sCB}, 7", f"s_cbranch_scc0 {sk}",
                                   *[f"v_mov_b32 v{RED + k}, 0" for k in range(4)], f"{zr}:"))
            L += [f"buffer_store_dwordx2 {v(RED + 2 * rt, 2)}, {vPAT}, {sWS}, {sU[9 + rt]} offen offset:{1024 * p} sc1" for rt in range(2)]
            if p == 2: L += [lambda: a(f"{sk}:"), a.cond_end]
            return L
        eg = self.opt.get("earlyg", 1)
        etk = [-1]
        def early_flag():
            L = a.label("noflag")
            a.cond_begin()
            a(f"s_cmp_lg_u32 {sW}, 0", f"s_cbranch_scc1 {L}",
              "s_mov_b64 exec, 1", f"buffer_store_dwordx2 {vTAG}, off, {sWS}, {P[4]} sc1", "s_mov_b64 exec, -1", f"{L}:")
            a.cond_end()
        if eg:
            self.cluster_flag_off(P[4], WS_F6A, True); self.cluster_flag_off(P[5], WS_F6A, False)
        for p in range(3):
            A = ACC + 32 * (p & 1)
            for u in range(16):
                if not self.opt.get("w_nowait"): a.wait(vm=tok[(p, u)])
                if u == 0: self.stamp(f"wsp_p{p}")
                ms = []
                for f in range(2):
                    for tt in range(4):
                        ms.append(mfma16(A + (f * 4 + tt) * 4, v(BUF + (2 * (u & 7) + f) * 4, 4), ar((u * 4 + tt) * 4, 4), "0" if u == 0 else None))
                fill = []
                if p > 0 and not self.opt.get("w_nofill"):
                    q = p - 1
                    if u < 8: fill += red_write(q)[u:u + 1]
                    if u == 8: fill += [lambda: a.wait(lg=a.lg), "s_barrier"]
                    if u == 9: fill += red_read(q) + red_read2(q)
                    if u == 11: fill += [lambda: a.wait(lg=a.lg)]
                    if 11 <= u <= 15:
                        g = gate(q); fill += g[(u - 11) * 11:(u - 11) * 11 + 11]
                    if u == 15: fill += gstore(q)
                if p == 0: n = (len(gq[0]) + 15 - u) // (16 - u)
                elif p == 1 and u < 11: n = (len(gq[1]) + 10 - u) // (11 - u)
                else: n = 0
                fill = [gq[p].pop(0) for _ in range(n)] + fill if p == 0 else fill + [gq[p].pop(0) for _ in range(n)]
                if p == 2 and u < 8: fill += wt[3 * u:3 * u + 3]
                if p == 2 and u == 9 and eg: fill.insert(0, early_flag)
                if p == 2 and u == 14 and eg: fill += self.poll_early(vFP8, P[5], 52) + [lambda: etk.__setitem__(0, a.vtok())]
                if p == 0 and u == 15: fill += ["s_barrier"]
                nx = p * 16 + u + D
                ld = loads(*seq[nx]) if nx < 48 else []
                if self.opt.get("w_noload"): ld = ld[-1:]
                interleave(a, ms[:6], fill, per=2, start=0)
                a(ms[6]); self.emit(ld[:-2])
                a(ms[7]); self.emit(ld[-2:])
        self.stamp("wsp_gemm")
        self.emit(red_write(2))
        a.wait(lg=a.lg)
        if eg: self.poll_late(vFP8, P[5], 52, etk[0])
        else: self.barrier()
        self.emit(red_read(2) + red_read2(2))
        a(f"v_add_u32 v56, {LB}, v59", f"v_add_u32 v57, {LB}, v61")
        for o in range(8):
            z = vZ1 + ((o >> 2) * 3 + 2) * 2 + ((o >> 1) & 1)
            a(f"v_and_b32 v{192 + o}, {sHIMASK}, v{z}" if o & 1 else f"v_lshlrev_b32 v{192 + o}, 16, v{z}")
        self.cluster_flag_off(P[1], WS_F6, True)
        a.wait(lg=a.lg)
        A = ACC
        for o in range(0, 8, 2): a(f"v_pk_add_f32 {v(A + o, 2)}, {v(A + o, 2)}, {v(RED + o, 2)}")
        for o in range(0, 8, 2): a(f"v_pk_add_f32 {v(RED + 8 + o, 2)}, {v(RED + 8 + o, 2)}, {v(RED + 16 + o, 2)}")
        for o in range(0, 8, 2): a(f"v_pk_add_f32 {v(A + o, 2)}, {v(A + o, 2)}, v[62:63] op_sel:[0,{o >> 2}] op_sel_hi:[1,{o >> 2}]")
        for o in range(0, 8, 2): a(f"v_pk_add_f32 {v(A + o, 2)}, {v(A + o, 2)}, {v(RED + 8 + o, 2)}")
        for o in range(0, 8, 2): a(f"v_pk_mul_f32 {v(A + o, 2)}, {v(A + o, 2)}, {v(192 + o, 2)}")
        for o in range(4): a(f"v_cvt_pk_bf16_f32 v{RED + o}, v{A + 2 * o}, v{A + 2 * o + 1}")
        self.emit(gstore(2))
        self.wout_rd = [f"ds_read_b64_tr_b16 {ar((nt * 16 + p) * 4 + 2 * hf, 2)}, v{56 + nt} offset:{p * 4096 + hf * 512}"
                        for p in range(16) for nt in range(2) for hf in range(2)]
        gtok = None
        if eg:
            gtok = a.vtok()
            self.g_setup()
            for p in range(6): self.emit(self.g_dma(p))
            self.getok = a.vtok()
        self.flag_store_wg(P[1], gtok)
        self.stamp("g_pub")

    def phase_wout(self):
        a = self.a
        ACC = 128
        self.cluster_flag_off(T[3], WS_F6, False)
        a(f"s_lshl_b32 {T[4]}, {sRH}, 11", f"v_add_u32 v31, {T[4]}, {vL16}", f"v_add_u32 v30, {LRED}, v31")
        fine = self.opt.get("fine", 1)
        eg = self.opt.get("earlyg", 1)
        if not eg:
            chunks = [2, 2, 4, 6, 8] if fine else [4, 4, 6, 8]
            group, toks = self.act_dma(WS_G, 22, chunks, LA, gpos=True)
        self.emit(self.wout_rd[:32])
        self.emit(self.poll_early(vFP8, T[3], 36)); ptok = a.vtok()
        self.emit(self.wout_rd[32:])
        def tail_setup():
            a(f"v_and_b32 v32, 15, {vLANE}", f"v_lshrrev_b32 v33, 4, {vLANE}", "v_lshlrev_b32 v32, 10, v32",
              "v_and_b32 v34, 1, v33", "v_lshl_add_u32 v32, v34, 5, v32", "v_lshrrev_b32 v33, 1, v33", "v_lshl_add_u32 v32, v33, 4, v32",
              f"s_lshl_b32 {T[0]}, {sRH}, 5", f"s_add_u32 {T[0]}, {T[0]}, {sR0}", f"s_lshl_b32 {T[0]}, {T[0]}, 10",
              f"s_lshl_b32 {T[4]}, {sCB}, 7", f"s_add_u32 {T[0]}, {T[0]}, {T[4]}", f"s_lshl_b32 {T[4]}, {sCH}, 6", f"s_add_u32 {sU[9]}, {T[0]}, {T[4]}",
              f"s_add_u32 {sU[10]}, {sU[9]}, 0x4000")
            for i in range(8):
                a(f"v_lshlrev_b32 v{96 + 2 * i}, 16, v{vH + i}", f"v_and_b32 v{97 + 2 * i}, {sHIMASK}, v{vH + i}")
        if eg:
            tail_setup()
            a.wait(vm=self.getok, lg=a.lg)
            self.poll_late(vFP8, T[3], 36, ptok)
            self.stamp("s6")
            toks = {}
            def gd(p0, p1, c):
                L = [self.g_dma(p) for p in range(p0, p1)]
                L[-1].append(lambda: toks.__setitem__(c, a.vtok()))
                return L
            self.emit_all(gd(6, 10, 1) + gd(10, 14, 2))
        else:
            self.poll_late(vFP8, T[3], 36, ptok)
            self.stamp("s6")
            for c in range(2 + fine): self.emit_all(group(c))
            tail_setup()
        def buf(s, rt): return 64 + (s % 4) * 8 + rt * 4
        def reads(s): return [f"ds_read_b128 {v(buf(s, rt), 4)}, v{30 if s < 16 else 31} offset:{(self.gpos2(s) - LRED if eg else 4096 * s) + rt * 1024 if s < 16 else 4096 * (s - 16) + rt * 1024}" for rt in range(2)]
        def mfmas(s):
            wv = lambda nt: ar((nt * 16 + s) * 4, 4) if s < 16 else v(200 + (nt * 6 + s - 16) * 4, 4)
            return [mfma16(ACC + (rt * 2 + nt) * 4, wv(nt), v(buf(s, rt), 4), v(96 + (rt * 2 + nt) * 4, 4) if s == 0 else None)
                    for rt in range(2) for nt in range(2)]
        def w(c):
            def f():
                a.wait(vm=toks[c]); self.barrier()
            return f
        if eg:
            rest = gd(14, 18, 3) + gd(18, 22, 4)
            late = {4 + i: rest[2 * i:2 * i + 2] for i in range(4)}
            self.kloop(22, reads, mfmas, {4: w(1), 8: w(2), 12: w(3), 16: w(4)}, late, {}, per=1)
            rest = None
        else:
            rest = group(2 + fine) + group(3 + fine)
            late = {i: rest[2 * i:2 * i + 2] for i in range(7)}
        def head0():
            a.wait(vm=toks[0], lg=a.lg); self.barrier()
        if not eg: self.kloop(22, reads, mfmas, {0: w(1), 2: w(2), 6: w(3), 12: w(4)} if fine else {2: w(1), 6: w(2), 12: w(3)}, late, {0: head0}, per=1)
        self.stamp("wout_gemm")
        for rt in range(2):
            for nt in range(2):
                d = ACC + (rt * 2 + nt) * 4
                for k in range(2): a(f"v_cvt_pk_bf16_f32 v{64 + 4 * rt + 2 * nt + k}, v{d + 2 * k}, v{d + 2 * k + 1}")
        for rt in range(2):
            b = 64 + 4 * rt
            a(f"v_permlane16_swap_b32 v{b}, v{b + 2}", f"v_permlane16_swap_b32 v{b + 1}, v{b + 3}")
            a(f"buffer_store_dwordx4 {v(b, 4)}, v32, {sOUT}, {sU[9 + rt]} offen " + ["", "sc1", "nt", "sc0 sc1", "sc1 nt"][self.opt.get("ost", 0)])

    def epilogue(self):
        a = self.a
        a("L_finish:")
        a("s_cmp_eq_u32 s2, 0", f"s_cselect_b32 {T[0]}, {sW}, 1", f"s_cmp_eq_u32 {T[0]}, 0", "s_cbranch_scc0 L_noepoch",
          "s_mov_b64 exec, 1", f"buffer_store_dwordx2 {vTAG}, off, {sWS}, 0 sc1", "s_mov_b64 exec, -1", "L_noepoch:")
        if self.stamps:
            a("s_waitcnt vmcnt(0)")
            self.stamp("end")
            a(f"s_lshl_b32 {T[0]}, s2, 2", f"s_add_u32 {T[0]}, {T[0]}, {sW}", f"s_lshl_b32 {T[0]}, {T[0]}, 7", f"s_add_u32 {T[0]}, {T[0]}, {WS_DBG}",
              "s_mov_b64 exec, 1")
            for i in range(10):
                a(f"v_mov_b32 v8, s{STAMP0 + i}", f"buffer_store_dword v8, off, {sWS}, {T[0]} offset:{4 * i if i < 9 else 60}")
        if self.calib:
            a(f"s_and_b32 s98, s{STAMP0 + 1}, 0xffff", "s_lshl_b32 s98, s98, 1", f"s_add_u32 s98, s98, {self.calib}")
            if self.nstamp < 3: a(f"s_mov_b32 s98, {self.calib}")
            a("s_waitcnt vmcnt(0)", "L_calib:", "s_memrealtime s[100:101]", "s_waitcnt lgkmcnt(0)", f"s_sub_u32 s100, s100, s{STAMP0}",
              f"s_cmp_lt_u32 s100, s98", "s_cbranch_scc1 L_calib")
        if not self.opt.get("noendwait"): a("s_waitcnt vmcnt(0)")
        a("L_exit:", "s_endpgm")

    def build(self):
        self.prologue()
        self.phase_qkv(); self.maybe_stop("qkv")
        self.phase_attn(); self.maybe_stop("attn")
        self.phase_wo(); self.maybe_stop("wo")
        self.phase_win(); self.maybe_stop("win")
        self.phase_wsp(); self.maybe_stop("wsp")
        self.phase_wout()
        self.epilogue()
        self.attn_slow()
        self.a("L_code_end:")
        body = self.a.finish()
        for w in dict.fromkeys(self.a.warnings): print("PENDING-LOAD WARNING:", w, file=sys.stderr)
        ref = open(f"cdna_kernels/{NAME}.s.ref").read().split("\n")
        head = [l for l in ref if l.startswith(";") and "@launch" not in l and "Override" not in l and "grid=ceil" not in l]
        head = head[:head.index([l for l in head if "d_ws" in l][0]) + 1]
        return ("\n".join(head) + f"\n; @launch grid=(256,1,1) block=(256,1,1) lds={LDS_BYTES}\n"
                + '.amdgcn_target "amdgcn-amd-amdhsa--gfx950"\n.text\n'
                + f".globl {NAME}_kernel\n.p2align 8\n.type {NAME}_kernel,@function\n{NAME}_kernel:\n" + body
                + f""".section .rodata,"a"
.p2align 6
.amdhsa_kernel {NAME}_kernel
  .amdhsa_next_free_vgpr 512
  .amdhsa_next_free_sgpr 102
  .amdhsa_accum_offset 256
  .amdhsa_group_segment_fixed_size 0
  .amdhsa_kernarg_size 88
  .amdhsa_user_sgpr_count 2
  .amdhsa_user_sgpr_kernarg_segment_ptr 1
  .amdhsa_system_sgpr_workgroup_id_x 1
  .amdhsa_float_denorm_mode_32 3
.end_amdhsa_kernel
""")

if __name__ == "__main__":
    import argparse
    ap = argparse.ArgumentParser()
    ap.add_argument("-o", default=f"cdna_kernels/{NAME}.s")
    ap.add_argument("--stop"); ap.add_argument("--stamps", action="store_true"); ap.add_argument("--slow", action="store_true")
    ap.add_argument("--opt", action="append", default=[]); ap.add_argument("--keep")
    o = ap.parse_args()
    g = Gen(o.stop, o.stamps, o.slow, keep=o.keep.split(",") if o.keep else None, **{k: int(x) for k, x in (kv.split('=') for kv in o.opt)})
    s = g.build()
    open(o.o, "w").write(s)
    print(f"wrote {o.o}: {len(s)} bytes, {len(g.a.items)} items, {g.a.nops_added} nops; stamps: {g.stamp_names}")
```

```python
import sys, struct
from asmdsl import Asm

NAME = "sequential_preLN__softmax_full_mha__mixer_gmlp__prompt"

WS_EPOCH = 0
WS_F1, WS_F2, WS_F3, WS_F4, WS_F5, WS_F6 = 0x1000, 0x90000, 0x7000, 0x9000, 0xB000, 0xD000
WS_F6A = 0xF000
GPERM = [0, 3, 6, 9, 14, 19] + [p for p in range(22) if p not in (0, 3, 6, 9, 14, 19)]
WS_ST3, WS_ST4 = 0x1150000, 0x10D0000
WS_Q, WS_KV, WS_O, WS_H, WS_Z, WS_G = 0x100000, 0x300000, 0x700000, 0x900000, 0xB00000, 0xE00000
WS_DBG = 0x1300000
WS_SIZE = 0x1400000

LA, LC, LB = 0, 65536, 98304
LRED = 24576
LDS_BYTES = 163840

sX, sWQKV, sWO, sWIN, sWSP, sBSP, sWOUT, sOUT, sWS = ("s[%d:%d]" % (b, b + 3) for b in range(4, 40, 4))
sJ, sRB, sCB, sHEAD, sW, sR0, sRH, sCH, sT0, sCNT5 = ("s%d" % i for i in range(40, 50))
sTAG = "s[50:51]"
sONES, sHIMASK, sCLU, sPOLL = "s52", "s53", "s54", "s55"
T = ["s%d" % i for i in range(56, 64)]
sROT = ["s%d" % i for i in range(64, 72)]
sU = ["s%d" % i for i in range(72, 84)]
sJA, sRB8 = "s0", "s1"
sRC = "s0"
sSPR = "s3"
P = ["s%d" % i for i in range(84, 90)]
STAMP0 = 90

vLANE, vL16, vPAT, vZ = "v0", "v1", "v2", "v3"
vTAG = "v[4:5]"
vFP32, vFP8 = "v6", "v7"
vH = 8
vZ1 = 16

def v(a, n=1): return f"v{a}" if n == 1 else f"v[{a}:{a + n - 1}]"
def ar(a, n=1): return f"a{a}" if n == 1 else f"a[{a}:{a + n - 1}]"
def f2u(x): return "0x%08x" % struct.unpack("<I", struct.pack("<f", x))[0]

def mfma16(d, a, b, c=None):
    return f"v_mfma_f32_16x16x32_bf16 {v(d,4)}, {a}, {b}, {c if c is not None else v(d,4)}"

def interleave(a, mains, fillers, per=1, start=0):
    k = 0
    for i, m in enumerate(mains):
        m() if callable(m) else a(m)
        if i >= start:
            for _ in range(per):
                if k < len(fillers):
                    f = fillers[k]; k += 1
                    f() if callable(f) else a(f)
    while k < len(fillers):
        f = fillers[k]; k += 1
        f() if callable(f) else a(f)

class Gen:
    def __init__(self, stop=None, stamps=False, force_fallback=False, calib=0, **opt):
        self.calib = calib
        self.keep = opt.pop("keep", None)
        self.opt = opt
        self.a = Asm()
        self.stop = stop
        self.stamps = stamps
        self.force_fallback = force_fallback
        self.nstamp = 0
        self.stamp_names = []

    def stamp(self, name):
        if not self.stamps: return
        if self.keep is not None:
            if name not in self.keep and name != "entry": return
        elif name not in ("qkv_gemm", "qkv_pub", "attn_start", "attn_loop", "s2", "wo_gemm", "s3", "z2_gemm", "z1_gemm", "z2n_pub", "s5", "wsp_gemm", "s6", "wout_gemm", "end", "entry"): return
        a = self.a
        a.wait(lg=a.lg)
        cyc = self.opt.get("cyc")
        a(f"{'s_memtime' if cyc else 's_memrealtime'} s[100:101]", "s_waitcnt lgkmcnt(0)")
        n = self.nstamp
        if n == 0:
            a(f"s_mov_b32 s{STAMP0}, s100")
        else:
            r = STAMP0 + 1 + (n - 1) // 2
            if cyc: a(f"s_sub_u32 s101, s100, s{STAMP0}", f"s_mov_b32 s{STAMP0}, s100", "s_mov_b32 s100, s101")
            else: a(f"s_sub_u32 s100, s100, s{STAMP0}")
            a(f"s_mov_b32 s{r}, s100" if n & 1 else f"s_pack_ll_b32_b16 s{r}, s{r}, s100")
        self.nstamp += 1; self.stamp_names.append(name)
        assert self.nstamp <= 17

    def maybe_stop(self, name):
        if self.stop == name:
            self.a.wait_all()
            self.a("s_branch L_finish")

    def flag_store(self, soff, tok=None):
        a = self.a
        a.wait(vm=a.vm if tok is None else tok, force=True)
        a("s_mov_b64 exec, 1", f"buffer_store_dwordx2 {vTAG}, off, {sWS}, {soff} sc1", "s_mov_b64 exec, -1")

    def g_setup(self):
        a = self.a
        a(f"s_lshr_b32 {T[0]}, {sR0}, 4", f"s_add_u32 {T[0]}, {T[0]}, {sW}", f"s_mul_i32 {T[0]}, {T[0]}, {22 * 1024}",
          f"s_add_u32 {sU[0]}, {T[0]}, {WS_G}", f"s_lshl_b32 {sU[1]}, {sW}, 10")

    def g_dma(self, p):
        return [f"s_add_u32 {T[2]}, {sU[0]}, {GPERM[p] * 1024}", f"s_add_u32 m0, {sU[1]}, {self.gpos2(p)}",
                f"buffer_load_dwordx4 {vL16}, {sWS}, {T[2]} offen sc1 lds"]

    @staticmethod
    def gpos2(p): return LRED + 32768 + 4096 * p if p < 8 else LRED + 4096 * (p - 8) if p < 16 else 4096 * (p - 16)

    def flag_store_wg(self, soff, tok=None):
        a = self.a
        a.wait(vm=a.vm if tok is None else tok, force=True)
        self.barrier()
        L = a.label("noflag")
        a.cond_begin()
        a(f"s_cmp_lg_u32 {sW}, 0", f"s_cbranch_scc1 {L}",
          "s_mov_b64 exec, 1", f"buffer_store_dwordx2 {vTAG}, off, {sWS}, {soff} sc1", "s_mov_b64 exec, -1", f"{L}:")
        a.cond_end()

    def poll_wg(self, voff, soff, tmp, drain=True):
        a = self.a
        if self.opt.get("allpoll"):
            self.poll(voff, soff, tmp); return
        if drain: a.wait(vm=a.vm, force=True)
        done = a.vm_done
        L = a.label("nopoll")
        a(f"s_cmp_lg_u32 {sW}, 0", f"s_cbranch_scc1 {L}")
        self.poll(voff, soff, tmp)
        a(f"{L}:")
        a.vm_done = done
        self.barrier()

    def poll_early(self, voff, soff, tmp):
        return [f"buffer_load_dwordx2 {v(tmp,2)}, {voff}, {sWS}, {soff} offen sc1"]

    def poll_late(self, voff, soff, tmp, tok, wg=True):
        a = self.a
        L = a.label("late")
        done = a.vm_done
        if wg: a(f"s_cmp_lg_u32 {sW}, 0", f"s_cbranch_scc1 {L}")
        a.wait(vm=tok, force=True)
        a(f"v_cmp_ne_u64 vcc, {sTAG}, {v(tmp,2)}", "s_nop 1", f"s_cbranch_vccz {L}")
        a.cond_begin(); self.poll(voff, soff, tmp); a.cond_end()
        a(f"{L}:")
        a.vm_done = done if wg else tok
        if wg: self.barrier()

    def mask_check(self, t0, t1, start, soff, pend, tmp):
        a = self.a
        done = a.vm_done
        L, E = a.label("rc"), a.label("rcok")
        m = ((1 << t1) - 1) ^ ((1 << t0) - 1)
        a(f"s_lshl_b32 {sPOLL}, {m * 0x101}, {start}", f"s_lshr_b32 {sPOLL}, {sPOLL}, 8", f"s_and_b32 {sPOLL}, {sPOLL}, 0xff",
          f"s_and_b32 vcc_lo, {pend}, {sPOLL}", f"s_cbranch_scc0 {E}", f"s_mov_b32 {sRC}, {sPOLL}", f"s_mov_b32 {sPOLL}, 0x40000", f"{L}:")
        a.cond_begin()
        a(f"buffer_load_dwordx2 {v(tmp, 2)}, {vFP8}, {sWS}, {soff} offen sc1")
        a.wait(vm=a.vm, force=True)
        a.cond_end()
        a(f"v_cmp_ne_u64 vcc, {sTAG}, {v(tmp, 2)}", f"s_sub_u32 {sPOLL}, {sPOLL}, 1", f"s_cbranch_scc1 {E}",
          f"s_and_b32 {pend}, vcc_lo, 0xff", f"s_and_b32 vcc_lo, {pend}, {sRC}", f"s_cbranch_scc1 {L}", f"{E}:")
        a.vm_done = done
        for r in (tmp, tmp + 1): a.pend_vm.pop(("v", r), None)

    def poll(self, voff, soff, tmp):
        a = self.a
        L, E = a.label("poll"), a.label("polled")
        a(f"s_mov_b32 {sPOLL}, 0x40000", f"{L}:",
          f"buffer_load_dwordx2 {v(tmp,2)}, {voff}, {sWS}, {soff} offen sc1")
        a.wait(vm=a.vm, force=True)
        a(f"v_cmp_ne_u64 vcc, {sTAG}, {v(tmp,2)}",
          f"s_sub_u32 {sPOLL}, {sPOLL}, 1", f"s_cbranch_scc1 {E}")
        sl = self.opt.get("sleep", 0)
        if sl: a(f"s_cbranch_vccz {E}", f"s_sleep {sl}", f"s_branch {L}", f"{E}:")
        else: a(f"s_cbranch_vccnz {L}", f"{E}:")
        for r in (tmp, tmp + 1): a.pend_vm.pop(("v", r), None)

    def barrier(self):
        self.a("s_barrier")

    def prologue(self):
        a = self.a
        a("s_cmp_ge_u32 s2, 256", "s_cbranch_scc1 L_exit")
        self.stamp("entry")
        a("s_load_dwordx2 s[4:5], s[0:1], 0", "s_load_dwordx2 s[8:9], s[0:1], 8")
        if not self.opt.get("nocodepf"):
            a(f"s_getpc_b64 s[60:61]", "L_pc:", f"s_sub_u32 s60, s60, L_pc-{NAME}_kernel", "s_subb_u32 s61, s61, 0",
              f"s_mov_b32 s62, L_code_end-{NAME}_kernel", "s_mov_b32 s63, 0x00020000",
              f"s_lshr_b32 {T[0]}, s2, 3", f"s_lshl_b32 {T[0]}, {T[0]}, 11", "v_lshlrev_b32 v250, 3, v0",
              f"buffer_load_dwordx2 v[250:251], v250, s[60:63], {T[0]} offen")
        a(f"s_mov_b32 s6, {2048 * 512 * 2}", "s_mov_b32 s7, 0x00020000", f"s_mov_b32 s10, {512 * 1536 * 2}", "s_mov_b32 s11, 0x00020000")
        a("v_lshrrev_b32 v8, 6, v0", f"v_and_b32 {vLANE}, 63, v0", f"v_readfirstlane_b32 {sW}, v8")
        if self.opt.get("map", 1):
            a(f"s_lshr_b32 {T[0]}, s2, 3", f"s_and_b32 {T[1]}, s2, 6", f"s_and_b32 {T[2]}, s2, 1",
              f"s_lshr_b32 {T[3]}, {T[0]}, 4", f"s_add_u32 {sJ}, {T[1]}, {T[3]}",
              f"s_bfe_u32 {sRB}, {T[0]}, 0x20002", f"s_and_b32 {sCB}, {T[0]}, 3", f"s_lshl_b32 {T[4]}, {T[2]}, 2", f"s_add_u32 {sCB}, {sCB}, {T[4]}",
              f"s_lshr_b32 {sU[1]}, {T[0]}, 2", f"s_and_b32 {sU[2]}, {sCB}, 3", f"s_lshl_b32 {sU[2]}, {sU[2]}, 1")
        else:
            a(f"s_and_b32 {sJ}, s2, 7", f"s_lshr_b32 {sHEAD}, s2, 3", f"s_lshr_b32 {sRB}, {sHEAD}, 3", f"s_and_b32 {sCB}, {sHEAD}, 7",
              f"s_lshl_b32 {sU[1]}, {sRB}, 1", f"s_mov_b32 {sU[2]}, {sCB}")
        a(f"s_lshl_b32 {sR0}, {sJ}, 8", f"s_lshl_b32 {T[0]}, {sRB}, 6", f"s_add_u32 {sR0}, {sR0}, {T[0]}")

    def prologue_rest(self):
        a = self.a
        for d, off, n in self.SRDS[2:]: a(f"s_load_dwordx2 s[{d}:{d + 1}], s[0:1], {off}")
        for d, off, n in self.SRDS[2:]: a(f"s_mov_b32 s{d + 2}, {n}", f"s_mov_b32 s{d + 3}, 0x00020000")
        if self.opt.get("map", 1):
            a(f"s_bfe_u32 {sHEAD}, s2, 0x40003", f"s_and_b32 {T[4]}, s2, 1", f"s_lshl_b32 {T[4]}, {T[4]}, 4", f"s_add_u32 {sHEAD}, {sHEAD}, {T[4]}")
        a(f"s_lshr_b32 {sRH}, {sW}, 1", f"s_and_b32 {sCH}, {sW}, 1",
          f"s_lshl_b32 {sCLU}, {sJ}, 2", f"s_add_u32 {sCLU}, {sCLU}, {sRB}",
          f"s_mov_b32 {sONES}, 0x3f803f80", f"s_mov_b32 {sHIMASK}, 0xffff0000")
        a(f"s_mul_i32 {T[0]}, {sCB}, 5", f"s_min_u32 {T[1]}, {sCB}, 3", f"s_add_u32 {sT0}, {T[0]}, {T[1]}",
          f"s_cmp_ge_u32 {sCB}, 3", f"s_cselect_b32 {sCNT5}, 1, 0")
        a(f"v_lshlrev_b32 {vL16}, 4, {vLANE}", f"v_mov_b32 {vZ}, 0",
          f"v_and_b32 v8, 15, {vLANE}", f"v_lshrrev_b32 v9, 5, {vLANE}", f"v_bfe_u32 v10, {vLANE}, 4, 1",
          f"v_lshlrev_b32 v8, 4, v8", f"v_lshl_add_u32 v8, v10, 3, v8",
          f"v_lshl_add_u32 {vPAT}, v9, 8, v8",
          f"v_lshl_add_u32 v63, v9, 9, v8",
          f"v_and_b32 {vFP32}, 31, {vLANE}", f"v_lshlrev_b32 {vFP32}, 7, {vFP32}",
          f"v_and_b32 {vFP8}, 7, {vLANE}", f"v_lshlrev_b32 {vFP8}, 3, {vFP8}")

    SRDS = [(4, 0, 2048 * 512 * 2), (8, 8, 512 * 1536 * 2), (36, 80, WS_SIZE), (12, 16, 512 * 512 * 2), (16, 32, 512 * 1376 * 2),
            (20, 40, 2048 * 2048 * 2), (24, 48, 2048 * 2), (28, 56, 688 * 512 * 2), (32, 64, 2048 * 512 * 2)]

    def phase_qkv(self):
        a = self.a
        ACC = 128
        CSR = (124, 200, 204)
        vX0, vX1, vW0, vW1, vWrA, vWrB, XA = "v28", "v29", "v30", "v31", "v32", "v33", 34
        STA = LC
        a(f"v_lshrrev_b32 v8, 3, {vLANE}", f"v_and_b32 v9, 7, {vLANE}", "v_lshrrev_b32 v10, 1, v8", "v_xor_b32 v10, v10, v9",
          "v_lshlrev_b32 v10, 4, v10", "v_lshl_add_u32 v10, v8, 10, v10",
          f"s_lshl_b32 {T[0]}, {sW}, 4", f"s_add_u32 {T[0]}, {T[0]}, {sR0}", f"s_lshl_b32 {T[0]}, {T[0]}, 10",
          f"v_add_u32 {vX0}, {T[0]}, v10", f"v_xor_b32 {vX1}, 64, {vX0}", f"v_add_u32 {vX1}, {7 * 1024}, {vX1}")
        a(f"v_bfe_u32 v10, {vLANE}, 4, 1", "v_lshrrev_b32 v11, 1, v9", "v_xor_b32 v11, v11, v10",
          "v_and_b32 v12, 1, v9", "v_lshl_or_b32 v11, v11, 1, v12", "v_lshlrev_b32 v11, 4, v11",
          "v_mul_u32_u24 v12, 3072, v8", "v_add_u32 v12, v12, v11",
          f"s_mul_i32 {T[0]}, {sW}, {16 * 3072}", f"s_lshl_b32 {T[1]}, {sCB}, 7", f"s_add_u32 {T[0]}, {T[0]}, {T[1]}",
          f"v_add_u32 {vW0}, {T[0]}, v12", f"v_xor_b32 {vW1}, 64, {vW0}", f"v_add_u32 {vW1}, {8 * 3072 - 1024}, {vW1}",
          f"s_lshl_b32 {sU[0]}, {sW}, 11", f"s_add_u32 {sU[2]}, {sU[2]}, {sU[1]}")
        if self.opt.get("q_rot", 3) == 0: a(f"s_mov_b32 {sU[2]}, 0")
        if self.opt.get("q_rot", 3) == 3: a(f"s_and_b32 {sU[2]}, {sU[1]}, 1", f"s_lshl_b32 {sU[2]}, {sU[2]}, 2")
        if self.opt.get("q_rot") == 1: a(f"s_mov_b32 {sU[2]}, {sU[1]}")
        if self.opt.get("q_samew"): a(f"v_subrev_u32 {vW0}, {T[1]}, {vW0}", f"v_subrev_u32 {vW1}, {T[1]}, {vW1}")
        if self.opt.get("q_samex"): a(f"v_and_b32 {vX0}, 0xffff, {vX0}", f"v_and_b32 {vX1}, 0x1ffff, {vX1}")
        tok = {}
        def dma(t):
            L = [[f"s_add_u32 {T[1]}, {sU[2]}, {t}", f"s_and_b32 {T[1]}, {T[1]}, 7", f"s_lshl_b32 {T[2]}, {T[1]}, 7",
                  f"s_add_u32 m0, {sU[0]}, {LB + t * 8192}", f"buffer_load_dwordx4 {vX0}, {sX}, {T[2]} offen lds"],
                 [f"buffer_load_dwordx4 {vX1}, {sX}, {T[2]} offen offset:1024 lds"]]
            for p in range(3):
                pre = [f"s_mul_i32 {T[1]}, {T[1]}, {64 * 3072}"] if p == 0 else []
                L.append(pre + [f"s_add_u32 {T[2]}, {T[1]}, {p * 1024}", f"s_add_u32 m0, {sU[0]}, {(t & 3) * 24576 + p * 8192}",
                                f"buffer_load_dwordx4 {vW0}, {sWQKV}, {T[2]} offen lds"])
                L.append([f"buffer_load_dwordx4 {vW1}, {sWQKV}, {T[2]} offen offset:1024 lds"])
            L[-1].append(lambda: tok.__setitem__(t, a.vtok()))
            return L
        a("s_waitcnt lgkmcnt(0)")
        self.stamp("kernarg")
        self.emit_all(dma(0))
        pq = self.opt.get("pfq2", 0)
        def pfq():
            a(f"s_lshl_b32 {T[3]}, s2, 2", f"s_add_u32 {T[3]}, {T[3]}, {sW}", f"s_lshl_b32 {T[4]}, {T[3]}, 11", f"s_mul_i32 {T[3]}, {T[3]}, 960",
              f"s_add_u32 {T[3]}, {T[3]}, {192 * 3072}", f"v_min_u32 v248, 59, {vLANE}", "v_lshlrev_b32 v248, 4, v248",
              f"buffer_load_dwordx4 v[244:247], v248, {sWQKV}, {T[3]} offen",
              f"buffer_load_dwordx4 v[244:247], {vL16}, {sX}, {T[4]} offen", f"buffer_load_dwordx4 v[244:247], {vL16}, {sX}, {T[4]} offen offset:1024")
        def pfq3(first):
            wb = (8 - first) * 64 * 3072 // 1024
            a(f"s_lshl_b32 {T[3]}, s2, 2", f"s_add_u32 {T[3]}, {T[3]}, {sW}", f"s_lshl_b32 {T[4]}, {T[3]}, 11", f"s_mul_i32 {T[3]}, {T[3]}, {wb}",
              f"s_add_u32 {T[3]}, {T[3]}, {first * 64 * 3072}", f"v_min_u32 v248, {(8 - first) * 8 - 1}, {vLANE}", "v_lshlrev_b32 v248, 4, v248",
              f"v_lshlrev_b32 v249, 4, {vLANE}", f"v_min_u32 v249, {min(wb, 1024) - 16}, v249",
              f"buffer_load_dwordx4 v[244:247], v248, {sX}, {T[4]} offen offset:{first * 128}",
              f"buffer_load_dwordx4 v[244:247], v248, {sX}, {T[4]} offen offset:{1024 + first * 128}",
              f"buffer_load_dwordx4 v[244:247], v249, {sWQKV}, {T[3]} offen")
            if wb > 1024:
                a(f"v_min_u32 v249, {wb - 1024 - 16}, v249", f"buffer_load_dwordx4 v[244:247], v249, {sWQKV}, {T[3]} offen offset:1024")
        if pq >= 3: pfq3(pq - 1)
        self.prologue_rest()
        if pq == 1: pfq()
        a(f"v_lshrrev_b32 v10, 4, {vLANE}", f"v_bfe_u32 v11, {vLANE}, 2, 2", f"v_and_b32 v12, 3, {vLANE}",
          "v_lshl_add_u32 v13, v10, 3, v11", "v_lshlrev_b32 v13, 7, v13", "v_lshl_add_u32 v13, v12, 3, v13",
          "v_lshrrev_b32 v11, 1, v11", "v_and_b32 v14, 1, v10", "v_lshl_or_b32 v11, v14, 1, v11",
          f"v_xor_b32 v11, {sW}, v11", f"v_lshl_add_u32 {vWrA}, v11, 5, v13", f"v_add_u32 {vWrB}, {2 * 24576}, {vWrA}")
        a(f"v_and_b32 v11, 15, {vLANE}", "v_lshrrev_b32 v12, 1, v11", "v_xor_b32 v12, v12, v10", "v_lshlrev_b32 v12, 4, v12",
          "v_lshl_add_u32 v12, v11, 7, v12", f"s_add_u32 {T[0]}, {sU[0]}, {LB}", f"v_add_u32 v{XA}, {T[0]}, v12")
        for k in range(1, 8): a(f"v_xor_b32 v{XA + k}, {((k >> 1) << 11) | ((k & 1) << 6)}, v{XA}")
        for r in range(252, 256): a(f"v_mov_b32 v{r}, {sONES}")
        early = self.opt.get("qearly", 0)
        QS = 0.25 * 1.4426950408889634
        a(f"v_and_b32 v16, 15, {vLANE}", f"v_lshrrev_b32 v17, 4, {vLANE}", f"v_and_b32 v20, 3, {vLANE}", "v_lshrrev_b32 v21, 2, v16",
          f"s_lshl_b32 {T[0]}, {sW}, 6", f"s_add_u32 {T[0]}, {T[0]}, {STA}",
          "v_cmp_eq_u32 vcc, v17, v21", "v_cndmask_b32_e64 v21, 0, -1, vcc",
          "v_lshlrev_b32 v16, 2, v16", f"v_add_u32 v16, {T[0]}, v16", "v_lshlrev_b32 v18, 4, v17", f"v_add_u32 v18, {T[0]}, v18",
          "v_and_b32 v17, 1, v17", "v_lshl_add_u32 v19, v17, 8, v16",
          f"s_and_b32 {T[6]}, {sW}, 1", f"s_lshl_b32 {T[6]}, {T[6]}, 8", f"s_lshr_b32 {T[7]}, {sW}, 1", f"s_lshl_b32 {T[7]}, {T[7]}, 10",
          f"s_or_b32 {T[6]}, {T[6]}, {T[7]}", f"v_or_b32 v42, {T[6]}, v63", f"s_lshl_b32 {T[6]}, {sW}, 9", f"v_or_b32 v46, {T[6]}, {vPAT}",
          f"v_mov_b32 v22, {f2u(QS)}", f"v_mov_b32 v23, {f2u(QS)}")
        self.emit_all(dma(1))
        if pq == 2: pfq()
        for r in range(1, 4): a(f"v_xor_b32 v{42 + r}, {((r & 1) << 8) | ((r >> 1) << 10)}, v42", f"v_xor_b32 v{46 + r}, {r << 9}, v46")
        a(f"s_lshl_b32 {T[4]}, {sCB}, 2", f"s_add_u32 {T[4]}, {T[4]}, {sW}",
          f"s_lshl_b32 {sU[5]}, {T[4]}, 16", f"s_lshl_b32 {T[3]}, {sR0}, 5", f"s_add_u32 {sU[5]}, {sU[5]}, {T[3]}",
          f"s_add_u32 {sU[5]}, {sU[5]}, {WS_Q}",
          f"s_lshl_b32 {sU[6]}, {T[4]}, 17", f"s_lshl_b32 {T[3]}, {sR0}, 6", f"s_add_u32 {sU[6]}, {sU[6]}, {T[3]}",
          f"s_add_u32 {sU[6]}, {sU[6]}, {WS_KV}", f"s_add_u32 {sU[7]}, {sU[6]}, 2048",
          f"s_lshl_b32 {T[0]}, {sRB}, 5", f"s_add_u32 {T[0]}, {T[0]}, {T[4]}", f"s_lshl_b32 {T[0]}, {T[0]}, 7",
          f"s_lshl_b32 {T[4]}, {sJ}, 3", f"s_add_u32 {T[0]}, {T[0]}, {T[4]}", f"s_add_u32 {sU[8]}, {T[0]}, {WS_F1}")
        a("s_waitcnt lgkmcnt(0)", f"s_mov_b32 {sRB8}, {sU[1]}")
        a(f"buffer_load_dwordx2 v[4:5], off, {sWS}, 0 sc1")
        etok = a.vtok()
        tl = self.opt.get("tlb", 0)
        if tl:
            a(f"v_min_u32 v248, 9, {vLANE}", "v_lshlrev_b32 v248, 21, v248", f"buffer_load_dword v249, v248, {sWS}, 0 offen offset:2048")
            if tl >= 2:
                a(f"buffer_load_dword v249, v248, {sWSP}, 0 offen", f"buffer_load_dword v249, off, {sWO}, 0", f"buffer_load_dword v249, off, {sWIN}, 0",
                  f"buffer_load_dword v249, off, {sWOUT}, 0", f"buffer_load_dword v249, off, {sBSP}, 0")
            if tl >= 3: a(f"buffer_load_dword v249, off, {sOUT}, 0")
        if not early: self.emit_all(dma(2))
        self.stamp("issued")
        def abuf(s): return 64 + 16 * (s % 3)
        def wbuf(s): return (112, 176, 188)[s % 3]
        def reads(s):
            t, sub = s >> 1, s & 1
            slot = t & 3
            wb = vWrA if slot < 2 else vWrB
            wo = (slot & 1) * 24576 + sub * 4096
            A, W = abuf(s), wbuf(s)
            L = [f"ds_read_b64_tr_b16 {v(W + 2 * h, 2)}, {wb} offset:{wo + 512 * h}" for h in range(2)]
            L += [f"ds_read_b128 {v(A + 4 * r, 4)}, v{XA + 2 * r + sub} offset:{t * 8192}" for r in range(4)]
            L += [f"ds_read_b64_tr_b16 {v(W + 4 * p + 2 * h, 2)}, {wb} offset:{wo + 8192 * p + 512 * h}" for p in (1, 2) for h in range(2)]
            return L
        def mfmas(s):
            A, W = abuf(s), wbuf(s)
            c = "0" if s == 0 else None
            ms = []
            for p in range(3):
                wv = v(W + 4 * p, 4)
                for r in range(4):
                    d, av = ACC + 16 * p + 4 * r, v(A + 4 * r, 4)
                    ms.append(mfma16(d, wv, av, c) if p < 2 else mfma16(d, av, wv, c))
                ms.append(mfma16(CSR[p], wv, "v[252:255]", c) if p < 2 else mfma16(CSR[p], "v[252:255]", wv, c))
                if p == 0: ms.append(mfma16(8, "v[252:255]", v(A, 4), c))
                if p == 1: ms.append(mfma16(24, v(A, 4), v(A, 4), c))
            return ms
        def head0():
            a.wait(vm=tok[0]); self.barrier(); self.stamp("w0")
        before, late = {}, {}
        for t in range(7):
            def f(t=t):
                if not self.opt.get("q_nowait"): a.wait(vm=tok[t + 1])
                self.barrier(); self.stamp(f"qc{t + 1}")
            before[2 * t] = f
        def f15():
            a.wait(lg=a.lg); self.barrier()
        before[15] = f15
        if self.opt.get("q_nodma"):
            dma = lambda t: (tok.__setitem__(t, a.vtok()), [[]] * 8)[1]
        d3 = dma(3)
        late[0], late[1] = d3[:4], d3[4:]
        if early: late[0], late[1] = dma(2), d3
        for t in range(4, 8):
            d = dma(t)
            late[2 * t - 6], late[2 * t - 5] = d[:4], d[4:]
        cf = self.const_fill(52)
        late[15] = [cf[0:4], cf[4:8], cf[8:10], cf[10:]]
        late[12] = [[lambda: a.wait(vm=etok)], ["v_add_u32 v4, 0x9e3779b9, v4"], ["v_add_u32 v5, 0x7f4a7c15, v5"]]
        late[13] = [["v_readfirstlane_b32 s50, v4"], ["v_readfirstlane_b32 s51, v5"]]
        self.kloop(16, reads, mfmas, before, late, {0: head0})
        self.stamp("qkv_gemm")
        a("v_cmp_eq_u32 vcc, 1, v20", "v_cndmask_b32 v9, v24, v25, vcc", "v_cmp_eq_u32 vcc, 3, v20",
          "v_cndmask_b32_e64 v10, v26, v27, vcc", "v_cmp_lt_u32 vcc, 1, v20", "v_cndmask_b32 v9, v9, v10, vcc", "v_and_b32 v9, v9, v21",
          "v_mov_b32 v10, v9", "v_permlane32_swap_b32 v9, v10", "v_add_f32 v9, v9, v10", "v_mov_b32 v10, v9",
          "v_cmp_eq_u32 vcc, 1, v17", "v_permlane16_swap_b32 v9, v10", "v_add_f32 v9, v9, v10")
        self.ln_finish([(8, 9, 10)], 1.0 / 512)
        a("v_cndmask_b32 v10, v10, v11, vcc", "ds_write_b32 v19, v10")
        a.wait(lg=a.lg)
        self.barrier()
        for r in range(4):
            if r: a(f"v_xor_b32 v20, {r << 6}, v16")
            a(f"ds_read2_b32 {v(64 + 2 * r, 2)}, {'v16' if r == 0 else 'v20'} offset1:64")
        qtok = a.ltok()
        for r in range(4):
            if r: a(f"v_xor_b32 v21, {r << 6}, v18")
            p18 = "v18" if r == 0 else "v21"
            a(f"ds_read_b128 {v(80 + 8 * r, 4)}, {p18}", f"ds_read_b128 {v(84 + 8 * r, 4)}, {p18} offset:256")
        a.wait(lg=qtok)
        for p in (1, 2, 0):
            if p == 2:
                a.wait(lg=a.lg)
                for r in range(4): a(f"v_pk_mul_f32 {v(72 + 2 * r, 2)}, {v(64 + 2 * r, 2)}, v[22:23]")
            for r0 in (0, 2):
                work = [(r, k) for r in (r0, r0 + 1) for k in range(2)]
                tm = {w_: 52 + 2 * i for i, w_ in enumerate(work)}
                for r, k in work:
                    c = v(CSR[p] + 2 * k, 2)
                    if p == 2: a(f"v_pk_mul_f32 {v(tm[r, k], 2)}, {c}, {v(84 + 8 * r + 2 * k, 2)}")
                    else: a(f"v_pk_mul_f32 {v(tm[r, k], 2)}, {c}, {v((72 if p == 0 else 64) + 2 * r, 2)} op_sel:[0,1] op_sel_hi:[1,1]")
                for r, k in work:
                    d = v(ACC + 16 * p + 4 * r + 2 * k, 2)
                    if p == 2: a(f"v_pk_fma_f32 {d}, {d}, {v(80 + 8 * r + 2 * k, 2)}, {v(tm[r, k], 2)}")
                    else: a(f"v_pk_fma_f32 {d}, {d}, {v((72 if p == 0 else 64) + 2 * r, 2)}, {v(tm[r, k], 2)} op_sel:[0,0,0] op_sel_hi:[1,0,1]")
                for r, k in work:
                    d = ACC + 16 * p + 4 * r + 2 * k
                    a(f"v_cvt_pk_bf16_f32 v{ACC + 16 * p + 4 * r + k}, v{d}, v{d + 1}")
                for r in (r0, r0 + 1):
                    o = v(ACC + 16 * p + 4 * r, 2)
                    if p < 2: a(f"buffer_store_dwordx2 {o}, v{42 + r}, {sWS}, {sU[5] if p == 0 else sU[6]} offen sc1")
                    else: a(f"buffer_store_dwordx2 {o}, v{46 + r}, {sWS}, {sU[7]} offen sc1")
        stok = a.vtok()
        if self.opt.get("pfs2", 0):
            a(f"s_lshl_b32 {T[3]}, s2, 2", f"s_add_u32 {T[3]}, {T[3]}, {sW}", f"s_lshl_b32 {T[3]}, {T[3]}, 13", f"s_add_u32 {T[4]}, {T[3]}, 4096")
            for i in range(4): a(f"buffer_load_dwordx4 v[244:247], {vL16}, {sWSP}, {T[3 + (i >> 1)]} offen offset:{1024 * (i & 1)}")
        self.flag_store(sU[8], stok)
        self.stamp("qkv_pub")
        self.attn_addresses()

    def ln_finish(self, chains, inv_n):
        a = self.a
        for s1, s2, d in chains: a(f"v_mul_f32 v{s1}, {f2u(inv_n)}, v{s1}", f"v_mul_f32 v{s2}, {f2u(inv_n)}, v{s2}")
        for s1, s2, d in chains: a(f"v_fma_f32 v{s2}, -v{s1}, v{s1}, v{s2}")
        for s1, s2, d in chains: a(f"v_max_f32 v{s2}, 0, v{s2}")
        for s1, s2, d in chains: a(f"v_add_f32 v{s2}, {f2u(1e-5)}, v{s2}")
        for s1, s2, d in chains: a(f"v_rsq_f32 v{d}, v{s2}")
        for s1, s2, d in chains: a(f"v_mul_f32_e64 v{d + 1}, -v{s1}, v{d}")

    def const_fill(self, t=8):
        L = [f"v_and_b32 v{t}, 27, {vLANE}", f"v_cmp_eq_u32 vcc, 1, v{t}", f"v_mov_b32 v{t + 1}, {sONES}",
             f"v_cndmask_b32 v{t + 4}, v3, v{t + 1}, vcc", f"v_mov_b32 v{t + 5}, v{t + 4}", f"v_mov_b32 v{t + 6}, v{t + 4}", f"v_mov_b32 v{t + 7}, v{t + 4}",
             f"s_lshl_b32 {T[3]}, {sW}, 12", f"s_add_u32 {T[3]}, {T[3]}, {LC + 2048}", f"v_add_u32 v{t + 1}, {T[3]}, {vL16}",
             f"ds_write_b128 v{t + 1}, {v(t + 4, 4)}", f"ds_write_b128 v{t + 1}, {v(t + 4, 4)} offset:1024"]
        return L

    S, OA, NM, QF, KB, VB = 64, 112, 144, 176, 184, 192
    vIDX, vSP0, vKA, vKB2, vVB, vVI, vWD0, vXR = 208, 209, 213, 214, 215, 216, 217, 240

    def attn_addresses(self):
        a = self.a
        a(f"v_and_b32 v8, 15, {vLANE}", f"v_lshrrev_b32 v9, 4, {vLANE}", "v_lshlrev_b32 v10, 12, v8", "v_lshl_add_u32 v10, v9, 4, v10",
          f"s_lshl_b32 {T[6]}, {sR0}, 12", f"s_lshl_b32 {T[7]}, {sW}, 7", f"s_add_u32 {T[6]}, {T[6]}, {T[7]}",
          f"v_add_u32 v{self.vSP0}, {T[6]}, v10")
        for tt in range(1, 4): a(f"v_add_u32 v{self.vSP0 + tt}, {tt * 65536}, v{self.vSP0}")
        a(f"v_mov_b32 v{self.vIDX}, 0xdddddddd", f"v_mov_b32 v{self.vKA}, {vL16}", f"v_add_u32 v{self.vKB2}, {LB}, {vL16}")
        a(f"v_lshrrev_b32 v10, 5, {vLANE}", "v_lshl_add_u32 v10, v10, 4, v8", "v_lshlrev_b32 v10, 4, v10",
          f"v_and_b32 v11, 31, {vLANE}", f"v_bfe_u32 v12, {vLANE}, 2, 2",
          "v_add_u32 v12, -1, v12", "v_cmp_gt_u32 vcc, 2, v12", "v_cndmask_b32_e64 v12, 0, 4, vcc",
          "v_and_b32 v13, 27, v11", "v_cmp_eq_u32 vcc, 16, v13", "v_cndmask_b32_e64 v13, 0, 1, vcc",
          "v_add_u32 v12, v12, v13", "v_lshlrev_b32 v12, 4, v12", f"v_add_u32 v12, {LC}, v12",
          "v_cmp_gt_u32 vcc, 16, v11", f"v_cndmask_b32 v{self.vVB}, v12, v10, vcc",
          f"v_mov_b32 v13, 0x4000", f"v_cndmask_b32 v{self.vVI}, v3, v13, vcc")
        self.w128_addresses(self.vWD0, 16)
        self.win_addresses()
        a(f"s_lshl_b32 {T[5]}, {sHEAD}, 17", f"s_lshl_b32 {sU[1]}, {sW}, 12", f"s_add_u32 {T[5]}, {T[5]}, {sU[1]}", f"s_add_u32 {T[5]}, {T[5]}, {WS_KV}")
        for t in range(8):
            a(f"s_add_u32 {T[6]}, {sJ}, {t}", f"s_and_b32 {T[6]}, {T[6]}, 7", f"s_lshl_b32 {T[6]}, {T[6]}, 14", f"s_add_u32 {sROT[t]}, {T[6]}, {T[5]}")
        a(f"s_add_u32 {sSPR}, {sRB8}, {sJ}")
        if self.opt.get("s5prog", 0): a(f"s_and_b32 {sSPR}, {sJ}, 6")
        spr = self.opt.get("sprot", 4)
        if spr == 1: a(f"s_mov_b32 {sSPR}, {sCB}")
        if spr == 2: a(f"s_add_u32 {sSPR}, {sCB}, {sRB8}")
        if spr == 3: a(f"s_and_b32 {sSPR}, {sCB}, 3", f"s_lshl_b32 {sSPR}, {sSPR}, 1")
        if spr == 5: a(f"s_and_b32 {T[6]}, {sCB}, 4", f"s_add_u32 {sSPR}, {sSPR}, {T[6]}")
        if spr == 6: a(f"s_and_b32 {T[6]}, {sCB}, 4", f"s_add_u32 {sSPR}, {sJ}, {T[6]}")
        if spr == 7: a(f"s_and_b32 {T[6]}, {sCB}, 4", f"s_lshr_b32 {sSPR}, {sJ}, 1", f"s_add_u32 {sSPR}, {sSPR}, {T[6]}")
        if spr == 8: a(f"s_and_b32 {T[6]}, {sCB}, 5", f"s_mov_b32 {sSPR}, {T[6]}")
        if spr == 9: a(f"s_mov_b32 {sSPR}, 0")
        if spr == 4: a(f"s_lshr_b32 {sSPR}, {sCB}, 2", f"s_lshl_b32 {sSPR}, {sSPR}, 2")
        if self.opt.get("pfs2", 0) or self.opt.get("lpf", 0): a(f"s_mov_b32 {sSPR}, 0")
        for t in range(8):
            a(f"s_add_u32 {T[6]}, {sSPR}, {t}", f"s_and_b32 {T[6]}, {T[6]}, 7", f"s_lshl_b32 {sU[4 + t]}, {T[6]}, 9")
        a(f"v_lshrrev_b32 v226, 3, {vLANE}", f"s_lshl_b32 {T[6]}, {sCB}, 3", f"s_add_u32 {T[6]}, {T[6]}, {sR0}", f"v_add_u32 v226, {T[6]}, v226",
          "v_lshlrev_b32 v226, 12, v226", f"v_and_b32 v8, 7, {vLANE}", "v_lshl_add_u32 v226, v8, 4, v226",
          f"s_lshl_b32 {T[6]}, {sW}, 7", f"v_add_u32 v226, {T[6]}, v226")
        a(f"v_and_b32 v8, 15, {vLANE}", f"v_lshrrev_b32 v9, 4, {vLANE}", "v_lshlrev_b32 v8, 10, v8", "v_lshl_add_u32 v62, v9, 3, v8")
        a(f"v_and_b32 v10, 15, {vLANE}", f"v_bfe_u32 v11, {vLANE}, 4, 1", f"v_lshrrev_b32 v12, 5, {vLANE}",
          "v_lshlrev_b32 v10, 4, v10", "v_lshl_add_u32 v10, v11, 14, v10", "v_lshl_add_u32 v227, v12, 3, v10")
        for r in range(self.NM, self.NM + 0): pass

    def w128_addresses(self, r, t0=28):
        a = self.a
        p, q, u, x, y = ("v%d" % (t0 + i) for i in range(5))
        a(f"v_lshrrev_b32 {p}, 3, {vLANE}", f"v_and_b32 {q}, 7, {vLANE}", f"v_bfe_u32 {u}, {vLANE}, 4, 1",
          f"v_lshrrev_b32 {x}, 1, {q}", f"v_xor_b32 {x}, {x}, {u}", f"v_and_b32 {y}, 1, {q}", f"v_lshl_or_b32 {x}, {x}, 1, {y}",
          f"v_lshlrev_b32 {x}, 4, {x}", f"v_lshl_add_u32 {x}, {p}, 10, {x}",
          f"s_lshl_b32 {T[6]}, {sCB}, 7", f"v_add_u32 v{r}, {T[6]}, {x}", f"v_xor_b32 v{r + 1}, 64, v{r}",
          f"v_add_u32 v{r + 1}, {7 * 1024}, v{r + 1}", f"v_add_u32 v{r + 2}, {14 * 1024}, v{r}", f"v_add_u32 v{r + 3}, {14 * 1024}, v{r + 1}")

    def w128_dma(self, r, srd, pos, lds, nsteps):
        L = [f"s_lshr_b32 {T[4]}, {pos}, 1", f"s_add_u32 {T[4]}, {T[4]}, {sU[4]}"]
        n = nsteps // 2
        if n & (n - 1) == 0: L.append(f"s_and_b32 {T[4]}, {T[4]}, {n - 1}")
        else: L += [f"s_cmp_ge_u32 {T[4]}, {n}", f"s_cselect_b32 {T[7]}, {n}, 0", f"s_sub_u32 {T[4]}, {T[4]}, {T[7]}"]
        L += [f"s_lshl_b32 {T[4]}, {T[4]}, 1", f"s_and_b32 {T[7]}, {pos}, 1", f"s_add_u32 {T[4]}, {T[4]}, {T[7]}", f"s_lshl_b32 {T[4]}, {T[4]}, 15",
              f"s_mov_b32 m0, {lds}"]
        return L, [f"buffer_load_dwordx4 v{r + i}, {srd}, {T[4]} offen offset:{1024 * i} lds" for i in range(4)]

    def stage_base(self, t): return LA + 16384 * t if t < 4 else LB + 16384 * (t - 4)

    def kv_dma(self, t):
        L = [([f"s_add_u32 m0, {sU[1]}, {self.stage_base(t)}"] if i == 0 else [],
              f"buffer_load_dwordx4 {vL16}, {sWS}, {sROT[t]} offen offset:{1024 * i} sc1 lds") for i in range(4)]
        return L

    def phase_attn(self):
        a = self.a
        S, OA, NM, QF, KB, VB = self.S, self.OA, self.NM, self.QF, self.KB, self.VB
        a(f"s_lshl_b32 {T[0]}, {sW}, 5", f"s_add_u32 {T[0]}, {T[0]}, {sHEAD}", f"s_lshl_b32 {T[0]}, {T[0]}, 7", f"s_add_u32 {T[0]}, {T[0]}, {WS_F1}",
          f"s_lshl_b32 {T[1]}, {sHEAD}, 16", f"s_lshl_b32 {T[2]}, {sJ}, 13", f"s_add_u32 {T[1]}, {T[1]}, {T[2]}",
          f"s_lshl_b32 {T[2]}, {sW}, 11", f"s_add_u32 {T[1]}, {T[1]}, {T[2]}", f"s_add_u32 {T[1]}, {T[1]}, {WS_Q}",
          )
        for r in range(OA, OA + 32): a(f"v_mov_b32 v{r}, 0")
        a(f"s_lshr_b32 {P[0]}, {sHEAD}, 1", f"s_lshl_b32 {P[0]}, {P[0]}, 10", f"s_and_b32 {P[1]}, {sHEAD}, 1", f"s_lshl_b32 {P[1]}, {P[1]}, 9",
          f"s_add_u32 {P[0]}, {P[0]}, {P[1]}", f"s_lshl_b32 {P[1]}, {sJ}, 18", f"s_add_u32 {P[0]}, {P[0]}, {P[1]}",
          f"s_lshl_b32 {P[1]}, {sW}, 16", f"s_add_u32 {P[0]}, {P[0]}, {P[1]}", f"s_add_u32 {P[0]}, {P[0]}, {WS_O}", f"s_add_u32 {P[1]}, {P[0]}, 0x8000",
          f"s_lshl_b32 {P[2]}, {sJ}, 2", f"s_add_u32 {P[2]}, {P[2]}, {sW}", f"s_lshl_b32 {P[2]}, {P[2]}, 12",
          f"s_lshl_b32 {P[3]}, {sHEAD}, 7", f"s_add_u32 {P[2]}, {P[2]}, {P[3]}", f"s_add_u32 {P[2]}, {P[2]}, {WS_F2}",
          f"s_lshl_b32 {P[3]}, {sRH}, 15", f"s_lshl_b32 {P[4]}, {sR0}, 10", f"s_add_u32 {P[3]}, {P[3]}, {P[4]}",
          f"s_lshl_b32 {P[4]}, {sCB}, 7", f"s_add_u32 {P[3]}, {P[3]}, {P[4]}", f"s_lshl_b32 {P[4]}, {sCH}, 6", f"s_add_u32 {P[3]}, {P[3]}, {P[4]}",
          f"s_add_u32 {P[4]}, {P[3]}, 0x4000")
        self.w128_read_base(28, 2)
        wolate = self.opt.get("wolate", 1)
        if wolate: a(f"v_add_u32 v28, {LB}, v28", f"v_add_u32 v29, {LB}, v29")
        L, E, F = a.label("s1"), a.label("s1own"), a.label("s1all")
        a(f"s_mov_b32 {sPOLL}, 0x40000", f"s_lshl_b32 {T[2]}, 1, {sJ}", f"{L}:", f"buffer_load_dwordx2 v[8:9], {vFP8}, {sWS}, {T[0]} offen sc1")
        a.wait(vm=a.vm, force=True)
        a(f"v_cmp_ne_u64 vcc, {sTAG}, v[8:9]", f"s_sub_u32 {sPOLL}, {sPOLL}, 1", f"s_cbranch_scc1 {E}",
          f"s_and_b32 {T[3]}, vcc_lo, {T[2]}", f"s_cbranch_scc1 {L}", f"{E}:", "s_mov_b64 s[60:61], vcc")
        self.stamp("s1")
        for q in range(2):
            a(f"buffer_load_dwordx4 {v(QF + 4 * q, 4)}, {vL16}, {sWS}, {T[1]} offen offset:{1024 * q} sc1")
        kvtok = {}
        def issue(items):
            for pre, ins in items: a(*pre, ins) if pre else a(ins)
        issue(self.kv_dma(0)); kvtok[0] = a.vtok()
        a(f"s_and_b32 {sU[3]}, s60, 0xff", f"s_mov_b32 {sU[2]}, {T[0]}")
        def remote_check(t0, t1):
            def f():
                if self.opt.get("norem"): return
                self.mask_check(t0, t1, sJ, sU[2], sU[3], 8)
            return f
        if self.opt.get("ahead"): a(f"buffer_load_dwordx4 v[228:231], v226, {sWSP}, {sU[4]} offen")
        a.wait(vm=kvtok[0], lg=a.lg)
        self.barrier()
        def kread(kt):
            t, k = kt >> 3, kt & 7
            base = self.vKA if t < 4 else self.vKB2
            return f"ds_read_b128 {v(KB + 4 * (kt & 1), 4)}, v{base} offset:{16384 * (t & 3) + (k >> 1) * 4096 + (k & 1) * 1024}"
        def vread(kt, hi):
            k = kt & 7
            return f"ds_read_b128 {v(VB + 8 * (kt & 1) + 4 * hi, 4)}, v{self.vVB} offset:{(k >> 1) * 4096 + 2048 + (k & 1) * 1024 + 512 * hi}"
        def qk(n, c=None):
            kt, q = n >> 1, n & 1
            return f"v_mfma_f32_32x32x16_bf16 {v(S + 16 * (n % 3), 16)}, {v(KB + 4 * (kt & 1), 4)}, {v(QF + 4 * q, 4)}, {c if c else v(NM + 16 * q, 16)}"
        def pv(n, hi):
            kt, q = n >> 1, n & 1
            return f"v_smfmac_f32_32x32x32_bf16 {v(OA + 16 * q, 16)}, {v(VB + 8 * (kt & 1) + 4 * hi, 4)}, {v(S + 16 * (n % 3) + 8 * hi, 8)}, v{self.vIDX}"
        a(kread(0), kread(1), vread(0, 0), vread(0, 1))
        a.wait(lg=a.lg)
        a(qk(0, "0"), qk(1, "0"))
        for q in range(2):
            b, m = S + 16 * q, 8 + 2 * q
            a(f"v_max3_f32 v{m}, v{b}, v{b + 1}, v{b + 2}")
            for k in range(3, 15, 2): a(f"v_max3_f32 v{m}, v{m}, v{b + k}, v{b + k + 1}")
            a(f"v_max_f32 v{m}, v{m}, v{b + 15}", f"v_mov_b32 v{m + 1}, v{m}")
        for q in range(2): a(f"v_permlane32_swap_b32 v{8 + 2 * q}, v{9 + 2 * q}")
        for q in range(2):
            m = 8 + 2 * q
            a(f"v_max_f32 v{m}, v{m}, v{m + 1}", f"v_sub_f32 v{m}, 0, v{m}")
            for r in range(0, 16, 2): a(f"v_pk_mov_b32 {v(NM + 16 * q + r, 2)}, {v(m, 2)}, {v(m, 2)} op_sel:[0,0]")
            a(qk(q))
        self.stamp("attn_start")
        if self.stamps: a("s_memtime s[100:101]", "s_waitcnt lgkmcnt(0)", "s_mov_b32 s99, s100")
        wotok = [-1]
        wo = []
        FREE0 = "free"
        for g in range(4):
            a(f"s_lshl_b32 {T[4]}, {sW}, 1", f"s_add_u32 {T[4]}, {T[4]}, {g >> 1}", f"s_add_u32 {T[4]}, {T[4]}, {sCB}", f"s_and_b32 {T[4]}, {T[4]}, 7",
              f"s_lshl_b32 {T[4]}, {T[4]}, 16", f"s_add_u32 {T[g]}, {T[4]}, {(g & 1) * 32768}")
            ins = [f"buffer_load_dwordx4 v{self.vWD0 + i}, {sWO}, {T[g]} offen offset:{1024 * i} lds" for i in range(4)]
            wo += [([f"s_lshl_b32 {sU[3]}, {sW}, 14", f"s_add_u32 m0, {sU[3]}, {(LB if wolate else LA) + g * 4096}"], ins[0]), ([], ins[1]), ([], ins[2]), ([], ins[3])]
        a(f"s_lshl_b32 {T[6]}, {sHEAD}, 2", f"s_add_u32 {T[6]}, {T[6]}, {sW}", f"s_mul_i32 {T[6]}, {T[6]}, 11008")
        pfw = [([f"s_add_u32 {T[6]}, {T[6]}, 4096"] if i and i % 4 == 0 else [],
                f"buffer_load_dwordx4 v[228:231], {vL16}, {sWIN}, {T[6]} offen offset:{(i % 4) * 1024}") for i in range(11)]
        if not self.opt.get("pfw"): pfw = []
        a(f"s_mov_b32 {T[7]}, {sU[4]}", f"s_mov_b32 {sU[4]}, {sCB}")
        w2c = self.win_dma(1, 28, 1, (T[4], T[5], T[6], sU[0]))
        self.emit(w2c[0][:-1]); a(f"s_mov_b32 {T[4]}, m0", f"s_mov_b32 {sU[4]}, {T[7]}")
        pfw += [([f"s_mov_b32 m0, {T[4]}"], w2c[0][-1]), ([], w2c[1][-1]), ([], w2c[2][-1])]
        if wolate:
            wo_late, wo = wo, [FREE0] * 16
        pf2 = []
        if self.opt.get("pf2", 1):
            a(f"s_lshl_b32 {T[5]}, s2, 2", f"s_add_u32 {T[5]}, {T[5]}, {sW}", f"s_mul_i32 {T[6]}, {T[5]}, 1376", f"s_mul_i32 {T[7]}, {T[5]}, 688",
              f"s_lshl_b32 {T[5]}, {T[5]}, 9",
              f"v_min_u32 v50, 42, {vLANE}", "v_lshlrev_b32 v50, 4, v50", f"v_min_u32 v51, 21, {vLANE}", "v_lshlrev_b32 v51, 4, v51",
              f"v_min_u32 v49, 31, {vLANE}", "v_lshlrev_b32 v49, 4, v49")
            J = "v[228:231]"
            pf2 = [([], f"buffer_load_dwordx4 {J}, v49, {sWO}, {T[5]} offen"), ([], f"buffer_load_dwordx4 {J}, {vL16}, {sWIN}, {T[6]} offen"),
                   ([], f"buffer_load_dwordx4 {J}, v51, {sWIN}, {T[6]} offen offset:1024"), ([], f"buffer_load_dwordx4 {J}, v50, {sWOUT}, {T[7]} offen")]
        if self.opt.get("pfs2", 0) == 1:
            pre0 = [f"s_lshl_b32 {sU[0]}, s2, 2", f"s_add_u32 {sU[0]}, {sU[0]}, {sW}", f"s_lshl_b32 {sU[0]}, {sU[0]}, 13"]
            pf3 = [(pre0 if i == 0 else [f"s_add_u32 {sU[0]}, {sU[0]}, 4096"] if i == 2 else [],
                    f"buffer_load_dwordx4 v[228:231], {vL16}, {sWSP}, {sU[0]} offen offset:{2048 + 1024 * (i & 1)}") for i in range(4)]
        else:
            pf3 = []
        post = {}
        slots = []
        spl = [([], f"buffer_load_dwordx4 {ar(((2 * t + sub) * 4 + tt) * 4, 4)}, v{self.vSP0 + tt}, {sWSP}, {sU[4 + t]} offen offset:{64 * sub}")
               for t in range(8) for sub in range(2) for tt in range(4)]
        lag = self.opt.get("splag", 0)
        if lag:
            first = [x for i, x in enumerate(spl) if (i >> 2) & 1 == 0]
            second = [x for i, x in enumerate(spl) if (i >> 2) & 1 == 1]
            spl = first[:lag]
            for i in range(lag, 32): spl += [first[i], second[i - lag]]
            spl += second[32 - lag:]
        if self.opt.get("nosp"): spl = []
        if self.opt.get("sp_eff"):
            spl = [([], f"buffer_load_dwordx4 {ar(k * 4, 4)}, v226, {sWSP}, {sU[4 + (k >> 3)]} offen offset:{(k & 7) * 512}") for k in range(64)]
            if self.opt.get("sp_eff") == 2:
                a(f"v_and_b32 v226, 0x3ffff, v226")
        slots = [None] * 128
        kv1 = self.kv_dma(1); kv1[0] = ([remote_check(1, 3)] + kv1[0][0], kv1[0][1])
        post[kv1[-1][1]] = lambda: kvtok.__setitem__(1, a.vtok())
        FREE = FREE0
        fewbar = self.opt.get("fewbar", 0)
        for t in range(8):
            kv = []
            if t < 6:
                kv = self.kv_dma(t + 2); post[kv[-1][1]] = (lambda t=t: kvtok.__setitem__(t + 2, a.vtok()))
                if t == 1: kv[0] = ([remote_check(3, 8)] + kv[0][0], kv[0][1])
            if t == 0:
                st = [None, None] + kv1 + kv + [pfw.pop(0) for _ in range(len(pfw))]
                st += [FREE] * (16 - len(st))
            else:
                if t < 6:
                    ex = pf2 if t == self.opt.get("pf2at", 2) and pf2 else pf3 if t == self.opt.get("pf3at", 1) and pf3 else [FREE] * 4
                    oth = [x for pair in zip(kv, ex) for x in pair]
                else:
                    oth = [wo.pop(0) for _ in range(8)]
                st = [x for pair in zip(oth, [FREE] * 8) for x in pair]
            slots[16 * t:16 * t + 16] = st
        lpf = self.opt.get("lpf", 0)
        if lpf:
            a(f"s_lshl_b32 {P[5]}, s2, 2", f"s_add_u32 {P[5]}, {P[5]}, {sW}", f"s_lshl_b32 {P[5]}, {P[5]}, 13", f"v_add_u32 v232, 4096, {vL16}")
            pf = [([], f"buffer_load_dwordx4 v[228:231], {vL16 if r == 0 else 'v232'}, {sWSP}, {P[5]} offen offset:{1024 * q}") for q in range(4) for r in range(2)]
            start = self.opt.get("lpfstart", 26)
            for i in range(start):
                if slots[i] is FREE: slots[i] = pf.pop(0) if pf else None
            assert not pf, len(pf)
        if fewbar:
            def kvslots(t): return [i for i, x in enumerate(slots) if x and x is not FREE and f"{sROT[t]} offen" in x[1] and "sc1 lds" in x[1]]
            kvi = {t: [slots[i] for i in kvslots(t)] for t in range(3, 8)}
            for t in range(3, 8):
                for i in kvslots(t): slots[i] = FREE
            plan = {3: [16 + 2 * i for i in range(4)], 4: [32 + 2 * i for i in range(4)], 5: [40 + 2 * i for i in range(4)],
                    6: [64 + 2 * i for i in range(4)], 7: [72 + 2 * i for i in range(4)]}
            for t in range(3, 8):
                for i, x in zip(plan[t], kvi[t]):
                    if slots[i] is not FREE and slots[i] is not None:
                        j = next(k for k in range(i + 1, 128) if slots[k] is FREE); slots[j] = slots[i]
                    slots[i] = x
        if self.opt.get("kvearly", 0):
            kvs = [self.kv_dma(t) for t in range(2, 8)]
            for t, kv in zip(range(2, 8), kvs): post[kv[-1][1]] = (lambda t=t: kvtok.__setitem__(t, a.vtok()))
            w2cs = [x for x in slots[:16] if x and x is not FREE and str(sWIN) in x[1]]
            wos = [x for x in slots if x and x is not FREE and str(sWO) in x[1] and " lds" in x[1]]
            pre0 = [f"s_lshl_b32 {sU[2]}, s2, 2", f"s_add_u32 {sU[2]}, {sU[2]}, {sW}", f"s_lshl_b32 {sU[2]}, {sU[2]}, 13"]
            pfs = [(pre0 if i == 0 else [f"s_add_u32 {sU[2]}, {sU[2]}, 4096"] if i == 4 else [],
                    f"buffer_load_dwordx4 v[228:231], {vL16}, {sWSP}, {sU[2]} offen offset:{1024 * (i & 3)}") for i in range(8)]
            if self.opt.get("nopfs"): pfs = []
            head = [None, None] + kv1 + [x for kv in kvs for x in kv] + w2cs + pf2 + pfs
            q0 = self.opt.get("spstart", 50)
            assert len(head) <= q0
            slots = head + [None] * (q0 - len(head)) + [FREE] * (128 - q0)
            w0 = 128 - 2 * len(wos) - self.opt.get("wogap", 4)
            for i, x in enumerate(wos): slots[w0 + 2 * i] = x
        fr = [i for i, x in enumerate(slots) if x is FREE]
        for i in fr: slots[i] = None
        if self.opt.get("nowo"): slots = [x if not (x and str(sWO) in x[1]) else None for x in slots]; wotok[0] = a.vtok()
        if self.opt.get("nokv"):
            for t in range(1, 8): kvtok[t] = a.vtok()
            slots = [x if not (x and "sc1 lds" in x[1]) else None for x in slots]
        extra2 = {}
        for k, it in enumerate(spl):
            i = fr[(k * len(fr)) // len(spl)]
            if slots[i] is None: slots[i] = it
            else: extra2.setdefault(i, []).append(it[1])
        assert not wo and not pfw, (len(wo), len(pfw))
        last_wo = ([x for x in slots if x and str(sWO) in x[1]] or [(0, "none")])[-1][1]
        post[last_wo] = lambda: wotok.__setitem__(0, a.vtok())
        def vm_slot(i):
            if i < len(slots) and slots[i]:
                a(slots[i][1])
                if slots[i][1] in post: post[slots[i][1]]()
                for x in extra2.get(i, []): a(x)
        def vm_pre(i):
            if i < len(slots) and slots[i]: self.emit(slots[i][0])
        ac = self.opt.get("ac", 1)
        def lds_wait(kt):
            t = kt >> 3
            if kt & 7 == 5 and kt < 56 and fewbar:
                if t in (0, 1, 3, 5):
                    a.wait(vm=kvtok[1 if t == 0 else t + 2], lg=a.lg); self.barrier()
                else:
                    a.wait(lg=a.lg)
            elif kt & 7 == 5 and kt < 56:
                a.wait(vm=kvtok[(kt >> 3) + 1] if not self.opt.get("nokvw") else None, lg=a.lg)
                if not self.opt.get("nobar"): self.barrier()
            else:
                a.wait(lg=a.lg)
        vm_pre(0)
        for n in range(128):
            kt, q = n >> 1, n & 1
            b = S + 16 * (n % 3)
            E = lambda lo, hi: [a(f"v_exp_f32 v{b + r}, v{b + r}") for r in range(lo, hi)]
            E(0, 2)
            if n > 0: a(pv(n - 1, 1))
            if q == 0:
                if kt + 2 < 64: a(kread(kt + 2))
                if (kt + 1) & 7 == 0 and kt + 1 < 64:
                    for _ in range(3 if kt + 1 == 32 else 1): a(f"v_add_u32 v{self.vVB}, v{self.vVB}, v{self.vVI}")
            else:
                vm_slot(2 * kt)
                if not ac: vm_pre(2 * kt + 1)
            E(2, 7)
            if n + 2 < 128: a(qk(n + 2))
            if q == 0:
                if kt + 1 < 64: a(vread(kt + 1, 0))
            elif ac:
                lds_wait(kt); vm_pre(2 * kt + 1)
            else:
                vm_slot(2 * kt + 1)
            E(7, 12)
            a(pv(n, 0))
            if q == 0:
                if kt + 1 < 64: a(vread(kt + 1, 1))
                if kt > 0: vm_pre(2 * kt)
            elif ac:
                vm_slot(2 * kt + 1)
            else:
                lds_wait(kt)
            if q == 1 and self.opt.get("sp_ds"): a(f"ds_read_b128 v[228:231], v{self.vKA} offset:{kt * 1024}")
            E(12, 16)
        a.wait(vm=None if wolate else wotok[0], lg=a.lg)
        a(pv(127, 1))
        self.barrier()
        self.stamp("attn_loop")
        if self.stamps: a("s_memtime s[100:101]", "s_waitcnt lgkmcnt(0)", "s_sub_u32 s99, s100, s99")
        for q in range(2):
            o = OA + 16 * q
            a(f"v_pk_add_f32 {v(8 + 4 * q, 2)}, {v(o, 2)}, {v(o + 2, 2)}", f"v_pk_add_f32 {v(10 + 4 * q, 2)}, {v(o + 4, 2)}, {v(o + 6, 2)}")
        for q in range(2): a(f"v_pk_add_f32 {v(8 + 4 * q, 2)}, {v(8 + 4 * q, 2)}, {v(10 + 4 * q, 2)}")
        a("v_add_f32 v8, v8, v9", "v_add_f32 v12, v12, v13", "v_add_f32 v8, v8, v12", f"v_max_f32 v9, v{OA + 8}, v{OA + 24}",
          f"v_add_f32 v10, v{OA + 8}, v{OA + 24}", "v_add_f32 v8, v8, v10",
          f"s_mov_b32 {T[6]}, 0x207", f"v_cmp_class_f32_e64 vcc, v8, {T[6]}",
          f"s_mov_b64 s[60:61], vcc", f"v_cmp_le_f32 vcc, {f2u(2.0 ** 64)}, v9", "s_or_b64 vcc, vcc, s[60:61]")
        if self.force_fallback: a("s_mov_b64 vcc, -1")
        a("s_cbranch_vccnz L_attn_slow", "L_attn_done:")
        for q in range(2): a(f"v_rcp_f32 v{8 + q}, v{OA + 16 * q + 8}")
        for q in range(2):
            o = OA + 16 * q
            for k in range(8): a(f"v_mul_f32 v{o + k}, v{o + k}, v{8 + q}")
            for k in range(4): a(f"v_cvt_pk_bf16_f32 v{192 + 4 * q + k}, v{o + 2 * k}, v{o + 2 * k + 1}")
            for hf in range(2):
                a(f"buffer_store_dwordx2 {v(192 + 4 * q + 2 * hf, 2)}, v227, {sWS}, {P[q]} offen offset:{256 * hf} sc1")
        rd = [f"ds_read_b64_tr_b16 {v(64 + (nt * 16 + p) * 4 + 2 * hf, 2)}, v{28 + nt} offset:{p * 4096 + hf * 512}"
              for p in range(16) for nt in range(2) for hf in range(2)]
        if wolate:
            otok = a.vtok()
            k = self.opt.get("wopre", 8)
            for pre, ins in wo_late[:k]: a(*pre, ins)
            self.flag_store(P[2], otok)
            self.stamp("attn_pub")
            for pre, ins in wo_late[k:]: a(*pre, ins)
            self.wo_tok, self.wo_rd = a.vtok(), rd
        else:
            k = self.opt.get("rdpre", 24)
            self.emit(rd[:k])
            self.flag_store(P[2])
            self.stamp("attn_pub")
            self.emit(rd[k:])
        for rt in range(2):
            for nt in range(2):
                a(f"buffer_load_dwordx2 {v(self.vXR + 4 * rt + 2 * nt, 2)}, v62, {sX}, {P[3 + rt]} offen offset:{32 * nt}")

    def w128_read_base(self, b, n, tmp=(64, 65, 66, 67), b1=None):
        a = self.a
        p, q, r, t = ("v%d" % x for x in tmp)
        a(f"v_lshrrev_b32 {p}, 4, {vLANE}", f"v_bfe_u32 {q}, {vLANE}, 2, 2", f"v_and_b32 {r}, 3, {vLANE}",
          f"v_lshl_add_u32 {t}, {p}, 3, {q}", f"v_lshlrev_b32 {t}, 7, {t}", f"v_lshl_add_u32 {t}, {r}, 3, {t}",
          f"v_lshrrev_b32 {q}, 1, {q}", f"v_and_b32 {p}, 1, {p}", f"v_lshl_or_b32 {q}, {p}, 1, {q}",
          f"s_lshl_b32 {T[3]}, {sCH}, 1", f"v_xor_b32 {q}, {T[3]}, {q}", f"v_lshl_add_u32 v{b}, {q}, 5, {t}")
        a(f"v_xor_b32 v{b1 if b1 else b + 1}, 32, v{b}")

    def attn_slow(self):
        a = self.a
        S, OA, NM, QF, KB, VB = self.S, self.OA, self.NM, self.QF, self.KB, self.VB
        a.vm_done = a.vm; a.lg_done = a.lg
        a("L_attn_slow:", "s_nop 15", f"s_lshl_b32 {sU[4]}, {sHEAD}, 17", f"s_add_u32 {sU[4]}, {sU[4]}, {WS_KV}",
          f"v_mov_b32 v8, 0xff800000", f"v_mov_b32 v10, 0xff800000", f"s_mov_b32 {sU[5]}, 0")
        def kaddr():
            a(f"s_lshr_b32 {sU[6]}, {sU[5]}, 1", f"s_lshl_b32 {sU[6]}, {sU[6]}, 12", f"s_and_b32 {sU[7]}, {sU[5]}, 1", f"s_lshl_b32 {sU[7]}, {sU[7]}, 10",
              f"s_add_u32 {sU[6]}, {sU[6]}, {sU[7]}", f"s_add_u32 {sU[6]}, {sU[6]}, {sU[4]}")
        a("L_slow_max:"); kaddr()
        a(f"buffer_load_dwordx4 {v(KB, 4)}, {vL16}, {sWS}, {sU[6]} offen sc1"); a.wait(vm=a.vm, force=True)
        for q in range(2):
            a(f"v_mfma_f32_32x32x16_bf16 {v(S + 16 * q, 16)}, {v(KB, 4)}, {v(QF + 4 * q, 4)}, 0")
        for q in range(2):
            b, m = S + 16 * q, 8 + 2 * q
            for k in range(0, 16, 2): a(f"v_max3_f32 v{m}, v{m}, v{b + k}, v{b + k + 1}")
        a(f"s_add_u32 {sU[5]}, {sU[5]}, 1", f"s_cmp_lt_u32 {sU[5]}, 64", "s_cbranch_scc1 L_slow_max")
        a("v_mov_b32 v9, v8", "v_mov_b32 v11, v10")
        for q in range(2): a(f"v_permlane32_swap_b32 v{8 + 2 * q}, v{9 + 2 * q}")
        for q in range(2):
            m = 8 + 2 * q
            a(f"v_max_f32 v{m}, v{m}, v{m + 1}", f"v_sub_f32 v{m}, 0, v{m}")
            for r in range(16): a(f"v_mov_b32 v{NM + 16 * q + r}, v{m}")
        for r in range(OA, OA + 32): a(f"v_mov_b32 v{r}, 0")
        a(f"v_and_b32 v8, 27, {vLANE}", "v_cmp_eq_u32 vcc, 16, v8", f"v_mov_b32 v9, {sONES}", "v_cndmask_b32 v9, v3, v9, vcc")
        for r in range(8): a(f"v_mov_b32 v{VB + r}, v9")
        a(f"v_and_b32 v8, 15, {vLANE}", f"v_lshrrev_b32 v10, 5, {vLANE}", "v_lshl_add_u32 v10, v10, 4, v8", "v_lshlrev_b32 v10, 4, v10",
          f"s_mov_b32 {sU[5]}, 0", "s_mov_b32 s60, 0x0000ffff", "s_mov_b32 s61, 0x0000ffff")
        a("L_slow_pv:"); kaddr()
        a(f"buffer_load_dwordx4 {v(KB, 4)}, {vL16}, {sWS}, {sU[6]} offen sc1", f"s_add_u32 {sU[6]}, {sU[6]}, 2048", "s_mov_b64 exec, s[60:61]",
          f"buffer_load_dwordx4 {v(VB, 4)}, v10, {sWS}, {sU[6]} offen sc1",
          f"buffer_load_dwordx4 {v(VB + 4, 4)}, v10, {sWS}, {sU[6]} offen offset:512 sc1", "s_mov_b64 exec, -1")
        a.wait(vm=a.vm, force=True)
        for q in range(2):
            a(f"v_mfma_f32_32x32x16_bf16 {v(S + 16 * q, 16)}, {v(KB, 4)}, {v(QF + 4 * q, 4)}, {v(NM + 16 * q, 16)}")
        for q in range(2):
            for r in range(16): a(f"v_exp_f32 v{S + 16 * q + r}, v{S + 16 * q + r}")
            for hi in range(2):
                a(f"v_smfmac_f32_32x32x32_bf16 {v(OA + 16 * q, 16)}, {v(VB + 4 * hi, 4)}, {v(S + 16 * q + 8 * hi, 8)}, v{self.vIDX}")
        a(f"s_add_u32 {sU[5]}, {sU[5]}, 1", f"s_cmp_lt_u32 {sU[5]}, 64", "s_nop 15", "s_cbranch_scc1 L_slow_pv", "s_nop 15", "s_branch L_attn_done")

    def rot_table(self, npairs, mul):
        a = self.a
        a(f"s_mul_i32 {sU[4]}, {sCB}, {mul}")

    @staticmethod
    def gpos(p): return LRED + 4096 * p if p < 16 else 4096 * (p - 16)

    def rot_index(self, dst, pos, npairs):
        L = [f"s_add_u32 {dst}, {sU[4]}, {pos}"]
        if npairs & (npairs - 1) == 0: L.append(f"s_and_b32 {dst}, {dst}, {npairs - 1}")
        else: L += [f"s_cmp_ge_u32 {dst}, {npairs}", f"s_cselect_b32 {T[7]}, {npairs}, 0", f"s_sub_u32 {dst}, {dst}, {T[7]}"]
        return L

    def act_dma(self, ws_off, steps, chunks, lds0, gpos=False):
        a = self.a
        a(f"s_lshr_b32 {T[0]}, {sR0}, 4", f"s_add_u32 {T[0]}, {T[0]}, {sW}", f"s_mul_i32 {T[0]}, {T[0]}, {steps * 1024}",
          f"s_add_u32 {sU[0]}, {T[0]}, {ws_off}", f"s_mul_i32 {T[1]}, {sW}, {1024 if gpos else steps * 1024}", f"s_add_u32 {sU[1]}, {T[1]}, {lds0}")
        toks = {}
        pre4 = self.opt.get("pre4", 1)
        if pre4:
            for q in range(4): a(*self.rot_index(P[2 + q], q, steps // 2), f"s_lshl_b32 {P[2 + q]}, {P[2 + q]}, 11", f"s_add_u32 {P[2 + q]}, {P[2 + q]}, {sU[0]}")
        def group(c):
            p0 = sum(chunks[:c]); L = []
            for k in range(chunks[c]):
                p = p0 + k
                it = []
                so = P[2 + (p >> 1)] if pre4 and p < 8 else T[2]
                if k % 2 == 0:
                    if so == T[2]:
                        it += self.rot_index(T[2], p >> 1, steps // 2)
                        it += [f"s_lshl_b32 {T[2]}, {T[2]}, 11", f"s_add_u32 {T[2]}, {T[2]}, {sU[0]}"]
                    if not gpos: it.append(f"s_add_u32 m0, {sU[1]}, {p * 1024}")
                if gpos: it.append(f"s_add_u32 m0, {sU[1]}, {self.gpos(p) - (k % 2) * 1024}")
                it.append(f"buffer_load_dwordx4 {vL16}, {sWS}, {so} offen offset:{(k % 2) * 1024} sc1 lds")
                L.append(it)
            L[-1].append(lambda: toks.__setitem__(c, a.vtok()))
            return L
        return group, toks

    def cluster_flag_off(self, dst, base, own, shift=8):
        a = self.a
        a(f"s_lshl_b32 {dst}, {sCLU}, {shift}", f"s_add_u32 {dst}, {dst}, {base}")
        if own: a(f"s_lshl_b32 {T[7]}, {sCB}, 3", f"s_add_u32 {dst}, {dst}, {T[7]}")

    def stats_publish(self, s, base):
        a = self.a
        a(f"v_permlane32_swap_b32 v{s}, v{s + 1}", f"v_permlane32_swap_b32 v{s + 2}, v{s + 3}",
          f"v_add_f32 v{s}, v{s}, v{s + 1}", f"v_add_f32 v{s + 2}, v{s + 2}, v{s + 3}",
          f"v_permlane16_swap_b32 v{s}, v{s + 2}", f"v_add_f32 v{s}, v{s}, v{s + 2}")
        a(f"s_lshl_b32 {T[4]}, {sCLU}, 13", f"s_add_u32 {T[4]}, {T[4]}, {base}", f"s_lshl_b32 {T[5]}, {sRH}, 7", f"s_add_u32 {T[4]}, {T[4]}, {T[5]}",
          f"s_lshl_b32 {T[5]}, {sCB}, 1", f"s_add_u32 {T[5]}, {T[5]}, {sCH}", f"s_lshl_b32 {T[5]}, {T[5]}, 9", f"s_add_u32 {T[4]}, {T[4]}, {T[5]}",
          f"buffer_store_dword v{s}, v61, {sWS}, {T[4]} offen sc1")

    def stats_load(self, base, r):
        a = self.a
        a(f"s_lshl_b32 {T[4]}, {sCLU}, 13", f"s_add_u32 {T[4]}, {T[4]}, {base}", f"s_lshl_b32 {T[5]}, {sRH}, 7", f"s_add_u32 {T[4]}, {T[4]}, {T[5]}",
          f"s_add_u32 {T[5]}, {T[4]}, 4096")
        for p in range(16):
            a(f"buffer_load_dword v{r + p}, v61, {sWS}, {T[4] if p < 8 else T[5]} offen offset:{(p % 8) * 512} sc1")
        return a.vtok()

    SGR = 64
    def stats_publish_tagged(self, s, base):
        a = self.a
        a(f"v_permlane32_swap_b32 v{s}, v{s + 1}", f"v_permlane32_swap_b32 v{s + 2}, v{s + 3}",
          f"v_add_f32 v{s}, v{s}, v{s + 1}", f"v_add_f32 v{s + 2}, v{s + 2}, v{s + 3}",
          f"v_permlane16_swap_b32 v{s}, v{s + 2}", f"v_add_f32 v{s}, v{s}, v{s + 2}", f"v_mov_b32 v{s + 1}, v{s}",
          f"v_mov_b32 v{s + 2}, v4", f"v_mov_b32 v{s + 3}, v5", f"v_permlane32_swap_b32 v{s}, v{s + 1}")
        a(f"s_lshl_b32 {T[4]}, {sCLU}, 14", f"s_add_u32 {T[4]}, {T[4]}, {base}", f"s_lshl_b32 {T[5]}, {sRH}, 13", f"s_add_u32 {T[4]}, {T[4]}, {T[5]}",
          f"s_lshl_b32 {T[5]}, {sCB}, 1", f"s_add_u32 {T[5]}, {T[5]}, {sCH}", f"s_lshl_b32 {T[5]}, {T[5]}, 9", f"s_add_u32 {T[4]}, {T[4]}, {T[5]}",
          "s_mov_b32 exec_hi, 0", f"buffer_store_dwordx4 {v(s, 4)}, {vL16}, {sWS}, {T[4]} offen sc1", "s_mov_b32 exec_hi, -1")

    def stats_tagged_loads(self, base, r):
        R = r if isinstance(r, (list, tuple)) else [r + 4 * p for p in range(8)]
        L = [[f"buffer_load_dwordx4 {v(R[p], 4)}, v61, {sWS}, {sU[3]} offen offset:{512 * p} sc1"] for p in range(8)]
        L[0] = [f"s_lshl_b32 {sU[3]}, {sCLU}, 14", f"s_add_u32 {sU[3]}, {sU[3]}, {base}", f"s_lshl_b32 {T[5]}, {sRH}, 13", f"s_add_u32 {sU[3]}, {sU[3]}, {T[5]}",
                f"v_and_b32 v61, 31, {vLANE}", "v_lshlrev_b32 v61, 4, v61", f"v_lshrrev_b32 v54, 5, {vLANE}", "v_lshl_add_u32 v61, v54, 12, v61"] + L[0]
        return L

    def stats_tagged_finish(self, base, r, inv_n, d):
        a = self.a
        L, E = a.label("st_retry"), a.label("st_ok")
        a(f"s_mov_b32 {sPOLL}, 0x40000", f"{L}:")
        a.wait(vm=a.vm, force=True)
        a(f"v_cmp_ne_u64 s[60:61], {sTAG}, {v(r + 2, 2)}")
        for p in range(1, 8): a(f"v_cmp_ne_u64 vcc, {sTAG}, {v(r + 4 * p + 2, 2)}", "s_or_b64 s[60:61], s[60:61], vcc")
        a("s_cmp_eq_u64 s[60:61], 0", f"s_cbranch_scc1 {E}", f"s_sub_u32 {sPOLL}, {sPOLL}, 1", f"s_cbranch_scc1 {E}")
        a.cond_begin()
        for it in self.stats_tagged_loads(base, r)[0][-1:]: a(it)
        for it in self.stats_tagged_loads(base, r)[1:]: self.emit(it)
        a.cond_end()
        a(f"s_branch {L}", f"{E}:")
        a.vm_done = a.vm
        self.stats_sum(r, inv_n, d)

    def stats_sum(self, r, inv_n, d):
        a = self.a
        R = r if isinstance(r, (list, tuple)) else [r + 4 * p for p in range(8)]
        for st in (4, 2, 1):
            for k in range(st): a(f"v_pk_add_f32 {v(R[k], 2)}, {v(R[k], 2)}, {v(R[k + st], 2)}")
        r = R[0]
        a(f"v_mov_b32 v{r + 2}, v{r}", f"v_mov_b32 v{r + 3}, v{r + 1}",
          f"v_permlane32_swap_b32 v{r}, v{r + 2}", f"v_permlane32_swap_b32 v{r + 1}, v{r + 3}",
          f"v_pk_add_f32 {v(r, 2)}, {v(r, 2)}, {v(r + 2, 2)}")
        self.ln_finish([(r, r + 1, d)], inv_n)
        a(f"v_mov_b32 v{d + 2}, v{d}", f"v_mov_b32 v{d + 3}, v{d + 1}",
          f"v_permlane16_swap_b32 v{d}, v{d + 2}", f"v_permlane16_swap_b32 v{d + 1}, v{d + 3}")

    def stats_sum_items(self, R, inv_n):
        L = []
        for st in (4, 2, 1):
            for k in range(st): L += [f"v_add_f32 v{R[k] + e}, v{R[k] + e}, v{R[k + st] + e}" for e in range(2)]
        r, t = R[0], R[1]
        L += [f"v_mov_b32 v{t}, v{r}", f"v_mov_b32 v{t + 1}, v{r + 1}", f"v_permlane32_swap_b32 v{r}, v{t}", f"v_permlane32_swap_b32 v{r + 1}, v{t + 1}",
              f"v_add_f32 v{t}, v{r}, v{t}", f"v_add_f32 v{t + 1}, v{r + 1}, v{t + 1}",
              f"v_mul_f32 v{t}, {f2u(inv_n)}, v{t}", f"v_mul_f32 v{t + 1}, {f2u(inv_n)}, v{t + 1}", f"v_fma_f32 v{t + 1}, -v{t}, v{t}, v{t + 1}",
              f"v_max_f32 v{t + 1}, 0, v{t + 1}", f"v_add_f32 v{t + 1}, {f2u(1e-5)}, v{t + 1}", f"v_rsq_f32 v{r}, v{t + 1}", f"v_mul_f32_e64 v{r + 1}, -v{t}, v{r}",
              f"v_mov_b32 v{r + 2}, v{r}", f"v_mov_b32 v{r + 3}, v{r + 1}", f"v_permlane16_swap_b32 v{r}, v{r + 2}", f"v_permlane16_swap_b32 v{r + 1}, v{r + 3}"]
        return L

    STR2 = [216, 220, 224, 228, 232, 236, 52, 252]
    STR = 216
    def stats_load_items(self, base, r):
        L = []
        for p in range(16):
            it = []
            if p == 0:
                it += [f"s_lshl_b32 {T[4]}, {sCLU}, 13", f"s_add_u32 {T[4]}, {T[4]}, {base}", f"s_lshl_b32 {T[5]}, {sRH}, 7",
                       f"s_add_u32 {T[4]}, {T[4]}, {T[5]}", f"s_add_u32 {T[5]}, {T[4]}, 4096"]
            it.append(f"buffer_load_dword v{r + p}, v61, {sWS}, {T[4] if p < 8 else T[5]} offen offset:{(p % 8) * 512} sc1")
            L.append(it)
        return L

    def stats_finish(self, r, inv_n, d):
        a = self.a
        for st in (8, 4, 2):
            for k in range(0, st, 2): a(f"v_pk_add_f32 {v(r + k, 2)}, {v(r + k, 2)}, {v(r + st + k, 2)}")
        a(f"v_add_f32 v{r}, v{r}, v{r + 1}", f"v_mov_b32 v{r + 1}, v{r}", f"v_permlane32_swap_b32 v{r}, v{r + 1}")
        self.ln_finish([(r, r + 1, d)], inv_n)
        a(f"v_mov_b32 v{d + 2}, v{d}", f"v_mov_b32 v{d + 3}, v{d + 1}",
          f"v_permlane16_swap_b32 v{d}, v{d + 2}", f"v_permlane16_swap_b32 v{d + 1}, v{d + 3}")

    def win_addresses(self):
        a = self.a
        for i in range(3):
            a(f"v_add_u32 v16, {64 * i}, {vLANE}", "v_mul_u32_u24 v17, 171, v16", "v_lshrrev_b32 v17, 11, v17",
              "v_mul_u32_u24 v18, 12, v17", "v_sub_u32 v18, v16, v18", "v_bfe_u32 v19, v17, 3, 1", "v_lshlrev_b32 v19, 1, v19",
              "v_xor_b32 v18, v18, v19", "v_mul_u32_u24 v17, 2752, v17", "v_lshl_add_u32 v17, v18, 4, v17",
              f"v_add_u32 v{56 + i}, {-1024 * i}, v17")
        a(f"v_lshrrev_b32 v16, 4, {vLANE}", f"v_bfe_u32 v17, {vLANE}, 2, 2", f"v_and_b32 v18, 3, {vLANE}",
          "v_lshl_add_u32 v19, v16, 3, v17", "v_mul_u32_u24 v19, 192, v19", "v_lshl_add_u32 v19, v18, 3, v19",
          "v_and_b32 v17, 1, v16", f"v_xor_b32 v17, {sCH}, v17", "v_lshl_add_u32 v59, v17, 5, v19", "v_add_u32 v60, 49152, v59",
          f"v_and_b32 v17, 15, {vLANE}", "v_lshlrev_b32 v17, 2, v17", "v_and_b32 v18, 1, v16", "v_lshl_add_u32 v17, v18, 6, v17",
          "v_lshrrev_b32 v16, 1, v16", "v_lshl_add_u32 v61, v16, 8, v17")

    def win_dma(self, half, g0, per_wave, regs=None, wave=sW):
        r5, r6, r2, r7 = regs or (sU[5], sU[6], sU[2], sU[7])
        L = []
        for k in range(per_wave):
            for i in range(3):
                it = []
                if k == 0 and i == 0:
                    it += [f"s_lshl_b32 {r5}, {sT0}, 5", f"s_mul_i32 {r6}, {wave}, {per_wave}", f"s_lshl_b32 {r2}, {sU[4]}, 2",
                           f"s_add_u32 {r2}, {r2}, {r6}", f"s_mul_i32 {r6}, {r6}, 3072"]
                if i == 0:
                    it += [f"s_add_u32 {r7}, {r2}, {g0 + k}", f"s_and_b32 {r7}, {r7}, 31", f"s_mul_i32 {r7}, {r7}, {16 * 2752}",
                           f"s_add_u32 {r7}, {r7}, {r5}"]
                    if half: it.append(f"s_add_u32 {r7}, {r7}, 1376")
                    it.append(f"s_add_u32 m0, {r6}, {(g0 + k) * 3072}")
                it.append(f"buffer_load_dwordx4 v{56 + i}, {sWIN}, {r7} offen offset:{1024 * i} lds")
                L.append(it)
        return L

    def kloop(self, n, reads, mfmas, before={}, late={}, head=None, per=2, extra=None):
        a = self.a
        tok = {}
        for s in range(min(2, n)):
            if s in (head or {}): head[s]()
            self.emit(reads(s)); tok[s] = a.ltok()
        self.kl = getattr(self, "kl", -1) + 1
        for s in range(n):
            a.wait(lg=tok[s])
            if s in before: before[s]()
            if s % 4 == 0: self.stamp(f"k{self.kl}s{s}")
            ms = mfmas(s)
            fill = list(reads(s + 2)) + [lambda s=s: tok.__setitem__(s + 2, a.ltok())] if s + 2 < n else []
            if extra: fill += extra(s)
            lt = list(late.get(s, []))
            k = len(ms) - len(lt)
            assert k >= 1, (s, len(ms), len(lt))
            interleave(a, ms[:k], fill, per=per)
            for m, it in zip(ms[k:], lt):
                a(m); self.emit(it)

    def emit_all(self, items):
        for it in items: self.emit(it)

    def emit(self, items):
        for x in items: x() if callable(x) else self.a(x)

    def phase_wo(self):
        a = self.a
        ACC = 192
        a(f"s_mov_b32 {sU[4]}, {sCB if not self.opt.get('noarot') else 0}")
        fine = self.opt.get("fine", 1)
        group, toks = self.act_dma(WS_O, 16, [2, 2, 4, 4, 4] if fine else [4, 4, 4, 4], LB)
        self.cluster_flag_off(T[3], WS_F2, False, 12)
        a(f"s_lshl_b32 {T[4]}, {sRH}, 15", f"s_add_u32 {T[4]}, {T[4]}, {LB}", f"v_add_u32 v30, {T[4]}, {vL16}")
        n2 = 3
        ng = self.opt.get("w2s2", 4)
        Lp, Le = a.label("s2poll"), a.label("s2end")
        if self.opt.get("wolate", 1):
            done = a.vm_done
            a(f"s_cmp_eq_u32 {sW}, 0", f"s_cbranch_scc1 {Lp}", f"s_sub_u32 {T[5]}, {sW}, 1")
            a.cond_begin()
            if self.opt.get("w2first", 0): self.emit_all(self.win_dma(1, 0, ng, wave=T[5]))
            a.cond_end()
            a(f"{Lp}:")
            a.vm_done = done
            a.wait(vm=self.wo_tok)
            self.barrier()
            self.emit(self.wo_rd)
            Lq = a.label("s2poll")
            done = a.vm_done
            a(f"s_cmp_eq_u32 {sW}, 0", f"s_cbranch_scc1 {Lq}", f"s_sub_u32 {T[5]}, {sW}, 1")
            a.cond_begin()
            if not self.opt.get("w2first", 0): self.emit_all(self.win_dma(1, 0, ng, wave=T[5]))
            a(f"s_branch {Le}", f"{Lq}:")
            self.poll(vFP32, T[3], 52)
            a(f"{Le}:")
            a.cond_end()
            a.vm_done = done
            a.wait(lg=a.lg)
            self.barrier()
        else:
            a.wait(lg=a.lg)
            self.barrier()
            done = a.vm_done
            a(f"s_cmp_eq_u32 {sW}, 0", f"s_cbranch_scc1 {Lp}", f"s_sub_u32 {T[5]}, {sW}, 1")
            a.cond_begin()
            self.emit_all(self.win_dma(1, 0, ng, wave=T[5]))
            a(f"s_branch {Le}", f"{Lp}:")
            self.poll(vFP32, T[3], 52)
            a.cond_end()
            a(f"{Le}:")
            a.vm_done = done
            self.barrier()
        self.stamp("s2")
        for c in range(2 + fine): self.emit_all(group(c))
        def buf(s, rt): return (208 + (s % 4) * 8 + rt * 4)
        def reads(s): return [f"ds_read_b128 {v(buf(s, rt), 4)}, v30 offset:{(rt * 16 + s) * 1024}" for rt in range(2)]
        def mfmas(s):
            return [mfma16(ACC + (rt * 2 + nt) * 4, v(64 + (nt * 16 + s) * 4, 4), v(buf(s, rt), 4), v(32 + (rt * 2 + nt) * 4, 4) if s == 0 else None) for rt in range(2) for nt in range(2)]
        def w(c):
            def f():
                a.wait(vm=toks[c]); self.barrier()
            return f
        def head0():
            a.wait(vm=toks[0], lg=a.lg)
            for i in range(8): a(f"v_lshlrev_b32 v{32 + 2 * i}, 16, v{self.vXR + i}", f"v_and_b32 v{33 + 2 * i}, {sHIMASK}, v{self.vXR + i}")
            self.barrier()
        g2, g3 = group(2 + fine), group(3 + fine)
        pw = (28 - 3 * ng + 3) // 4
        w2 = self.win_dma(1, 28 - 4 * pw, pw)
        late = {0: g2[:2], 1: g2[2:], 2: g3[:2], 3: g3[2:]}
        for i in range(min(len(w2), self.opt.get("w2in", 12))): late[self.opt.get("w2at", 3) + i] = late.get(self.opt.get("w2at", 3) + i, []) + [w2.pop(0)]
        late[15] = late.get(15, []) + [[f"s_lshr_b32 {T[0]}, {sR0}, 4", f"s_lshl_b32 {T[1]}, {sRH}, 1", f"s_add_u32 {T[0]}, {T[0]}, {T[1]}", f"s_lshl_b32 {T[0]}, {T[0]}, 14"],
                                       [f"s_lshl_b32 {T[1]}, {sCB}, 1", f"s_add_u32 {T[1]}, {T[1]}, {sCH}", f"s_lshl_b32 {T[1]}, {T[1]}, 10", f"s_add_u32 {T[0]}, {T[0]}, {T[1]}"],
                                       [f"s_add_u32 {T[0]}, {T[0]}, {WS_H}", f"s_add_u32 {T[1]}, {T[0]}, 0x4000"]]
        self.kloop(16, reads, mfmas, {0: w(1), 2: w(2), 6: w(3), 10: w(4)} if fine else {2: w(1), 6: w(2), 10: w(3)}, late, {0: head0}, per=1)
        self.w2rest = w2
        self.stamp("wo_gemm")
        for i in range(4):
            for k in range(2): a(f"v_cvt_pk_bf16_f32 v{vH + 2 * i + k}, v{ACC + 4 * i + 2 * k}, v{ACC + 4 * i + 2 * k + 1}")
        for rt in range(2):
            for nt in range(2):
                a(f"buffer_store_dwordx2 {v(vH + 4 * rt + 2 * nt, 2)}, {vPAT}, {sWS}, {T[rt]} offen offset:{512 * nt} sc1")
        for k in range(4):
            for rt in range(2):
                h = f"v{vH + 4 * rt + k}"
                a(f"v_dot2_f32_bf16 v{32 + 2 * rt}, {h}, {sONES}, {'0' if k == 0 else 'v%d' % (32 + 2 * rt)}",
                  f"v_dot2_f32_bf16 v{33 + 2 * rt}, {h}, {h}, {'0' if k == 0 else 'v%d' % (33 + 2 * rt)}")
        self.stats_publish_tagged(32, WS_ST3)
        self.cluster_flag_off(T[0], WS_F3, True)
        self.flag_store_wg(T[0])
        self.stamp("wo_pub")

    HF, ACC2, ACC1, WB, CS = 64, 192, 216, 28, 240

    def win_reads(self, s, read_h):
        L = []
        base = "v59" if s < 8 else "v60"
        for m in range(3):
            for hf in range(2):
                L.append(f"ds_read_b64_tr_b16 {v(self.wbuf(s) + 4 * m + 2 * hf, 2)}, {base} offset:{(s & 7) * 6144 + hf * 768 + m * 64}")
            if m == 0 and read_h:
                L += [f"ds_read_b128 {v(self.HF + (rt * 16 + s) * 4, 4)}, v62 offset:{(rt * 16 + s) * 1024}" for rt in range(2)]
        return L

    def wbuf(self, s): return (28, 40, 16)[s % 3]

    def win_gemm(self, acc, before, head, read_h, late={}, cs=False, extra=None):
        HF = self.HF
        def mfmas(s):
            L = []
            for m in range(3):
                L += [mfma16(acc + (rt * 3 + m) * 4, v(self.wbuf(s) + 4 * m, 4), v(HF + (rt * 16 + s) * 4, 4), "0" if s == 0 else None) for rt in range(2)]
                if cs: L.append(mfma16(self.CS + 4 * m, v(self.wbuf(s) + 4 * m, 4), "v[252:255]", "0" if s == 0 else None))
            return L
        self.kloop(16, lambda s: self.win_reads(s, read_h), mfmas, before, late, head, per=3 if extra else 2, extra=extra)

    def colsum_pass(self, late={}, before={}):
        def mfmas(s): return [mfma16(self.CS + 4 * m, v(self.wbuf(s) + 4 * m, 4), "v[252:255]", "0" if s == 0 else None) for m in range(3)]
        self.kloop(16, lambda s: self.win_reads(s, False), mfmas, before, late, per=3)

    def gelu_block(self, acc, st, tiles):
        a = self.a
        CS = self.CS
        K1 = -2.0 * 1.4426950408889634 * 0.7978845608028654
        K2 = K1 * 0.044715
        a(f"s_mov_b32 s60, {f2u(K2)}", f"s_mov_b32 s61, {f2u(K2)}", f"v_mov_b32 v52, {f2u(K1)}", f"v_mov_b32 v53, {f2u(K1)}")
        for i in range(0, len(tiles), 2):
            prs = [(acc + (rt * 3 + m) * 4 + 2 * k, CS + 4 * m + 2 * k, st + 2 * rt) for rt, m in tiles[i:i + 2] for k in range(2)]
            tm = [40, 42, 44, 46]
            for (x, c, r), t in zip(prs, tm): a(f"v_pk_mul_f32 {v(t, 2)}, {v(c, 2)}, {v(r, 2)} op_sel:[0,1] op_sel_hi:[1,1]")
            for (x, c, r), t in zip(prs, tm): a(f"v_pk_fma_f32 {v(x, 2)}, {v(x, 2)}, {v(r, 2)}, {v(t, 2)} op_sel:[0,0,0] op_sel_hi:[1,0,1]")
            for (x, c, r), t in zip(prs, tm): a(f"v_pk_mul_f32 {v(t, 2)}, {v(x, 2)}, {v(x, 2)}")
            for (x, c, r), t in zip(prs, tm): a(f"v_pk_fma_f32 {v(t, 2)}, {v(t, 2)}, s[60:61], v[52:53]")
            for (x, c, r), t in zip(prs, tm): a(f"v_pk_mul_f32 {v(t, 2)}, {v(t, 2)}, {v(x, 2)}")
            for k in range(8): a(f"v_exp_f32 v{40 + k}, v{40 + k}")
            for (x, c, r), t in zip(prs, tm): a(f"v_pk_add_f32 {v(t, 2)}, {v(t, 2)}, v[32:33]")
            for k in range(8): a(f"v_rcp_f32 v{40 + k}, v{40 + k}")
            for (x, c, r), t in zip(prs, tm): a(f"v_pk_mul_f32 {v(x, 2)}, {v(x, 2)}, {v(t, 2)}")

    def phase_win(self):
        a = self.a
        HF, ACC2, ACC1, CS = self.HF, self.ACC2, self.ACC1, self.CS
        self.emit_all(self.w2rest)
        for r in range(252, 256): a(f"v_mov_b32 v{r}, {sONES}")
        a(f"s_lshl_b32 {T[4]}, {sRH}, 15", f"s_add_u32 {T[4]}, {T[4]}, {LB}", f"v_add_u32 v62, {T[4]}, {vL16}")
        fine = self.opt.get("fine", 1)
        group, toks = self.act_dma(WS_H, 16, [2, 2, 4, 4, 4] if fine else [4, 4, 4, 4], LB)
        self.cluster_flag_off(T[3], WS_F3, False)
        if self.w2rest:
            a.wait(vm=a.vm)
            self.barrier()
        ptok = [-1]
        self.colsum_pass({self.opt.get("p3at", 12): [self.poll_early(vFP8, T[3], 52) + [lambda: ptok.__setitem__(0, a.vtok())]]})
        self.stamp("cs2")
        self.poll_late(vFP8, T[3], 52, ptok[0])
        self.stamp("s3")
        for c in range(2 + fine): self.emit_all(group(c))
        def w(c):
            def f():
                a.wait(vm=toks[c]); self.barrier()
            return f
        g2, g3 = group(2 + fine), group(3 + fine)
        stl = self.stats_tagged_loads(WS_ST3, self.STR2)
        late = {0: g2[:2], 1: g2[2:], 2: g3[:2], 3: g3[2:]}
        for i in range(4): late[4 + i] = stl[2 * i:2 * i + 2]
        w1a = self.win_dma(0, 0, 3)
        for i in range(8): late[8 + i] = w1a[i:i + 1] if i < 7 else w1a[7:]
        stk = [-1]
        late[7][-1].append(lambda: stk.__setitem__(0, a.vtok()))
        ss = self.stats_sum_items(self.STR2, 1.0 / 512)
        def extra(s):
            if s < 12: return []
            n = (len(ss) + 15 - s) // (16 - s)
            return ([lambda: a.wait(vm=stk[0])] if s == 12 else []) + [ss.pop(0) for _ in range(n)]
        self.win_gemm(ACC2, {0: w(1), 2: w(2), 6: w(3), 10: w(4)} if fine else {2: w(1), 6: w(2), 10: w(3)}, {0: w(0)}, True, late, extra=extra)
        self.barrier()
        self.stamp("z2_gemm")
        w1tok = [a.vtok(), -1, -1]
        wb, wc = self.win_dma(0, 12, 3), self.win_dma(0, 24, 2)
        wb[-1].append(lambda: w1tok.__setitem__(1, a.vtok())); wc[-1].append(lambda: w1tok.__setitem__(2, a.vtok()))
        rest = wb + wc
        k = self.opt.get("w1pre", 9)
        self.emit_all(rest[:k]); rest = rest[k:]
        a("v_mov_b32 v34, v216", "v_mov_b32 v35, v217", "v_mov_b32 v36, v218", "v_mov_b32 v37, v219")
        for r in range(252, 256): a(f"v_mov_b32 v{r}, {sONES}")
        a("v_mov_b32 v32, 1.0", "v_mov_b32 v33, 1.0")
        T5 = [(0, 0), (1, 0), (0, 1), (1, 1)]
        self.gelu_block(ACC2, 34, T5 + [(0, 2), (1, 2)])
        for rt in range(2):
            x = ACC2 + rt * 12
            a(f"v_pk_add_f32 {v(40 + 4 * rt, 2)}, {v(x, 2)}, {v(x + 2, 2)}", f"v_pk_mul_f32 {v(42 + 4 * rt, 2)}, {v(x, 2)}, {v(x, 2)}")
            a(f"v_pk_fma_f32 {v(42 + 4 * rt, 2)}, {v(x + 2, 2)}, {v(x + 2, 2)}, {v(42 + 4 * rt, 2)}")
            for k in (4, 6):
                a(f"v_pk_add_f32 {v(40 + 4 * rt, 2)}, {v(40 + 4 * rt, 2)}, {v(x + k, 2)}",
                  f"v_pk_fma_f32 {v(42 + 4 * rt, 2)}, {v(x + k, 2)}, {v(x + k, 2)}, {v(42 + 4 * rt, 2)}")
        a(f"s_and_b32 {sU[8]}, {sCNT5}, {sCH}", f"s_cmp_lg_u32 {sU[8]}, 0", "s_cbranch_scc1 L_skip_st")
        for rt in range(2):
            x = ACC2 + rt * 12
            for k in (8, 10):
                a(f"v_pk_add_f32 {v(40 + 4 * rt, 2)}, {v(40 + 4 * rt, 2)}, {v(x + k, 2)}",
                  f"v_pk_fma_f32 {v(42 + 4 * rt, 2)}, {v(x + k, 2)}, {v(x + k, 2)}, {v(42 + 4 * rt, 2)}")
        a("L_skip_st:", "v_add_f32 v48, v40, v41", "v_add_f32 v49, v42, v43", "v_add_f32 v50, v44, v45", "v_add_f32 v51, v46, v47")
        self.stats_publish_tagged(48, WS_ST4)
        self.stamp("z2_pub")
        a("v_mov_b32 v52, v34", "v_mov_b32 v53, v35", "v_mov_b32 v62, v36", "v_mov_b32 v63, v37")
        def w1(c):
            def f():
                a.wait(vm=w1tok[c]); self.barrier()
            return f
        a(f"v_and_b32 v54, 15, {vLANE}", f"v_lshrrev_b32 v55, 4, {vLANE}", "v_lshlrev_b32 v55, 2, v55", "v_sub_u32 v54, v54, v55",
          "v_mov_b32 v55, 0x3f80", "v_mov_b32 v250, 0x3f800000")
        for k, (r, c) in enumerate(((248, 55), (248, 250), (249, 55), (249, 250))):
            a(f"v_cmp_eq_u32 vcc, {k}, v54")
            a(f"v_cndmask_b32 v{r}, v{3 if k & 1 == 0 else r}, v{c}, vcc")
        a(f"s_add_u32 {T[0]}, {sT0}, {sCH}", f"s_lshl_b32 {T[0]}, {T[0]}, 16", f"s_lshl_b32 {T[1]}, {sR0}, 5", f"s_add_u32 {T[0]}, {T[0]}, {T[1]}",
          f"s_lshl_b32 {T[1]}, {sRH}, 10", f"s_add_u32 {T[0]}, {T[0]}, {T[1]}", f"s_add_u32 {sU[9]}, {T[0]}, {WS_Z}",
          f"s_add_u32 {sU[10]}, {sU[9]}, 0x20000", f"s_add_u32 {sU[11]}, {sU[9]}, 0x40000",
          f"s_lshl_b32 {P[0]}, {sRB}, 3", f"s_add_u32 {P[0]}, {P[0]}, {sCB}", f"s_lshl_b32 {P[0]}, {P[0]}, 8",
          f"s_lshl_b32 {T[1]}, {sJ}, 3", f"s_add_u32 {P[0]}, {P[0]}, {T[1]}", f"s_add_u32 {P[0]}, {P[0]}, {WS_F5}")
        late = {i: rest[2 * i:2 * i + 2] for i in range((len(rest) + 1) // 2)}
        sl = self.stats_tagged_loads(WS_ST4, self.SGR)
        for i in range(4): late[self.opt.get("s4at", 9) + i] = sl[2 * i:2 * i + 2]
        csin = self.opt.get("csin", 0)
        self.win_gemm(ACC1, {4: w1(1), 10: w1(2)}, {0: w1(0)}, False, late, cs=csin)
        self.stamp("z1_gemm")
        self.stats_tagged_finish(WS_ST4, self.SGR, 1.0 / 688, 20)
        self.stamp("s4")
        def znorm(m):
            for rt in range(2):
                x = ACC2 + (rt * 3 + m) * 4
                for k in range(2):
                    a(f"v_pk_fma_f32 {v(x + 2 * k, 2)}, {v(x + 2 * k, 2)}, {v(20 + 2 * rt, 2)}, {v(20 + 2 * rt, 2)} op_sel:[0,0,1] op_sel_hi:[1,0,1]")
            for rt in range(2):
                x = ACC2 + (rt * 3 + m) * 4
                for k in range(2): a(f"v_cvt_pk_bf16_f32 v{x + k}, v{x + 2 * k}, v{x + 2 * k + 1}")
            for rt in range(2):
                x = ACC2 + (rt * 3 + m) * 4
                a(f"v_mfma_f32_16x16x16_bf16 {v(28 + 8 * (m & 1) + 4 * rt, 4)}, {v(x, 2)}, v[248:249], 0")
        def zstore(m):
            for rt in range(2):
                d = 28 + 8 * (m & 1) + 4 * rt
                a(f"v_cvt_pk_bf16_f32 v{d}, v{d}, v{d + 1}", f"v_cvt_pk_bf16_f32 v{d + 1}, v{d + 2}, v{d + 3}",
                  f"buffer_store_dwordx2 {v(d, 2)}, {vPAT}, {sWS}, {sU[9 + m]} offen offset:{512 * rt} sc1")
        znorm(0); znorm(1); zstore(0)
        a(f"s_cmp_lg_u32 {sU[8]}, 0", "s_cbranch_scc1 L_skip_z")
        a.cond_begin(); znorm(2); a("s_nop 7"); zstore(2); a.cond_end()
        a("L_skip_z:", "s_nop 7")
        zstore(1)
        eg = self.opt.get("earlyg", 1)
        def src(vals):
            lit = sum(x << (8 * i) for i, x in enumerate(vals))
            return [f"s_lshl_b32 {T[4]}, {sW}, 3", f"s_lshr_b32 {T[4]}, {lit}, {T[4]}", f"s_and_b32 {T[4]}, {T[4]}, 0xff", f"s_lshl_b32 {T[4]}, {T[4]}, 15", f"s_mov_b32 m0, {T[5]}"]
        wo1 = []
        for g in range(4):
            pre, ins = self.w128_dma(self.vWDo, sWOUT, T[1], T[5], 22)
            if eg: pre = src([GPERM[4 * w + g] for w in range(4)])
            pre = [f"s_lshl_b32 {T[1]}, {sW}, 2", f"s_add_u32 {T[1]}, {T[1]}, {g}", f"s_lshl_b32 {T[5]}, {T[1]}, 12", f"s_add_u32 {T[5]}, {T[5]}, {LB}"] + pre
            wo1 += [pre + [ins[0]], [ins[1]], [ins[2]], [ins[3]]]
        wo2 = []
        for g in range(2):
            pre, ins = self.w128_dma(self.vWDo, sWOUT, T[1], T[5], 22)
            if eg: pre = src([GPERM[16 + w + (4 if g and w < 2 else 0)] for w in range(4)])
            p0 = [f"s_add_u32 {T[1]}, {sW}, 16"] if g == 0 else [f"s_cmp_lt_u32 {sW}, 2", f"s_cselect_b32 {T[5]}, 20, 16", f"s_add_u32 {T[1]}, {sW}, {T[5]}"]
            pre = p0 + [f"s_sub_u32 {T[5]}, {T[1]}, 16", f"s_lshl_b32 {T[5]}, {T[5]}, 12"] + pre
            wo2 += [pre + [ins[0]], [ins[1]], [ins[2]], [ins[3]]]
        ztok = a.vtok()
        a("v_mov_b32 v56, v62", "v_mov_b32 v57, v63")
        self.w128_addresses(self.vWDo, 64)
        npre = self.opt.get("wopre2", 8)
        self.emit_all(wo1[:npre]); wo1 = wo1[npre:]
        a(f"s_lshl_b32 {T[0]}, {sRH}, 5", f"s_add_u32 {T[0]}, {T[0]}, {sR0}", f"s_lshl_b32 {sU[6]}, {T[0]}, 1",
          f"v_and_b32 v20, 15, {vLANE}", "v_lshlrev_b32 v20, 1, v20")
        self.wsp_setup()
        self.flag_store_wg(P[0], ztok)
        self.stamp("z2n_pub")
        a(f"buffer_load_ushort v62, v20, {sBSP}, {sU[6]} offen", f"buffer_load_ushort v63, v20, {sBSP}, {sU[6]} offen offset:32")
        per = 2 if npre == 0 else 1
        late = {i: wo1[per * i:per * i + per] for i in range(8) if wo1[per * i:per * i + per]}
        for i in range(4): late[8 + i] = wo2[2 * i:2 * i + 2]
        ptok = [-1]
        late[self.opt.get("p5at", 12)] = [self.poll_early(vFP8, T[3], 58) + [lambda: ptok.__setitem__(0, a.vtok())]]
        self.ztok = {}
        self.s5in = self.opt.get("s5in", 0)
        if self.s5in:
            pa, ca = self.opt.get("s5p", 9), self.opt.get("s5c", 11)
            late = {i: wo1[2 * i:2 * i + 2] for i in range((len(wo1) + 1) // 2)}
            late[pa] = [self.poll_early(vFP8, T[3], 54) + [lambda: ptok.__setitem__(0, a.vtok())]]
            D = self.opt.get("wd", 7)
            a(f"v_add_u32 v61, 0x10000, {vL16}")
            steps = list(range(D)); n = 16 - ca
            for i in range(n):
                mine = steps[(i * D) // n:((i + 1) * D) // n]
                late[ca + i] = [sum((self.z_loads(0, u) for u in mine), [])]
            def chk():
                self.poll_late(vFP8, T[3], 54, ptok[0], wg=False); self.stamp("s5")
            self.wo2 = wo2
            self.colsum_pass(late, {6: self.barrier, ca: chk})
        elif csin:
            self.emit_all(wo1 + wo2)
            self.emit(late[self.opt.get("p5at", 12)][0])
        else:
            self.colsum_pass(late, {6: self.barrier})
        self.p5tok = ptok[0]
        self.stamp("z1_epi")

    vWDo = 200

    def gelu_items(self, m):
        K1 = -2.0 * 1.4426950408889634 * 0.7978845608028654
        K2 = K1 * 0.044715
        L = []
        if m == 0: L += [f"s_mov_b32 {P[2]}, {f2u(K2)}", f"v_mov_b32 v58, {f2u(K1)}"]
        X = [self.ACC1 + (rt * 3 + m) * 4 + k for rt in range(2) for k in range(4)]
        C = [self.CS + 4 * m + k for rt in range(2) for k in range(4)]
        R = [52 + 4 * rt for rt in range(2) for k in range(4)]
        assert self.opt.get("wd", 7) <= 8
        t = [192 + k for k in range(8)]
        for i in range(8): L.append(f"v_mul_f32 v{t[i]}, v{C[i]}, v{R[i] + 1}")
        for i in range(8): L.append(f"v_fma_f32 v{X[i]}, v{X[i]}, v{R[i]}, v{t[i]}")
        for i in range(8): L.append(f"v_mul_f32 v{t[i]}, v{X[i]}, v{X[i]}")
        for i in range(8): L.append(f"v_fma_f32 v{t[i]}, v{t[i]}, {P[2]}, v58")
        for i in range(8): L.append(f"v_mul_f32 v{t[i]}, v{t[i]}, v{X[i]}")
        for i in range(8): L.append(f"v_exp_f32 v{t[i]}, v{t[i]}")
        for i in range(8): L.append(f"v_add_f32 v{t[i]}, 1.0, v{t[i]}")
        for i in range(8): L.append(f"v_rcp_f32 v{t[i]}, v{t[i]}")
        for i in range(8): L.append(f"v_mul_f32 v{X[i]}, v{X[i]}, v{t[i]}")
        for rt in range(2):
            for k in range(2): L.append(f"v_cvt_pk_bf16_f32 v{vZ1 + (rt * 3 + m) * 2 + k}, v{X[4 * rt + 2 * k]}, v{X[4 * rt + 2 * k + 1]}")
        return L

    def z_loads(self, p, u):
        a = self.a
        t, sub = u >> 1, u & 1
        L = []
        if sub == 0: L.append(f"s_add_u32 {T[0]}, {sROT[t]}, {p * 0x20000}")
        for f in range(2):
            L.append(f"buffer_load_dwordx4 {v(64 + (2 * (u & 7) + f) * 4, 4)}, {vL16 if f == 0 else 'v61'}, {sWS}, {T[0]} offen offset:{1024 * sub} sc1")
        L.append(lambda: self.ztok.__setitem__((p, u), a.vtok()))
        return L

    def wsp_setup(self):
        a = self.a
        a(f"s_lshl_b32 {T[3]}, {sW}, 3", f"s_add_u32 {T[3]}, {T[3]}, {sCB}", f"s_lshl_b32 {T[3]}, {T[3]}, 8", f"s_add_u32 {T[3]}, {T[3]}, {WS_F5}",
          f"s_lshl_b32 {T[0]}, {sT0}, 16", f"s_lshl_b32 {T[1]}, {sW}, 11", f"s_add_u32 {T[0]}, {T[0]}, {T[1]}", f"s_add_u32 {T[0]}, {T[0]}, {WS_Z}")
        for t in range(8):
            a(f"s_add_u32 {T[1]}, {sSPR}, {t if not self.opt.get('zlocal') else 0}", f"s_and_b32 {T[1]}, {T[1]}, 7", f"s_lshl_b32 {T[1]}, {T[1]}, 13", f"s_add_u32 {sROT[t]}, {T[1]}, {T[0]}")
        a(f"s_lshl_b32 {P[2]}, {sW}, 13", f"s_add_u32 {P[2]}, {P[2]}, {LRED}",
          f"s_lshl_b32 {P[3]}, {sCH}, 12", f"s_lshl_b32 {T[2]}, {sRH}, 11", f"s_add_u32 {P[3]}, {P[3]}, {T[2]}", f"s_add_u32 {P[3]}, {P[3]}, {LRED}")
        a(f"s_lshr_b32 {T[1]}, {sR0}, 4", f"s_lshl_b32 {T[2]}, {sRH}, 1", f"s_add_u32 {T[1]}, {T[1]}, {T[2]}", f"s_mul_i32 {T[1]}, {T[1]}, {22 * 1024}",
          f"s_add_u32 {T[2]}, {sT0}, {sCH}", f"s_lshl_b32 {T[2]}, {T[2]}, 9", f"s_add_u32 {T[1]}, {T[1]}, {T[2]}", f"s_add_u32 {sU[9]}, {T[1]}, {WS_G}",
          f"s_add_u32 {sU[10]}, {sU[9]}, {22 * 1024}")

    def phase_wsp(self):
        a = self.a
        BUF, ACC, RED, WT = 64, 128, 28, 200
        prog = self.opt.get("s5prog", 0)
        if self.s5in:
            pass
        elif prog:
            a.wait(vm=self.p5tok)
            a(f"v_cmp_ne_u64 vcc, {sTAG}, v[58:59]", f"s_mov_b32 {P[2]}, {T[3]}", "s_nop 0", f"s_and_b32 {P[3]}, vcc_lo, 0xff")
            self.mask_check(0, 2, sSPR, P[2], P[3], 58)
        else:
            a(f"v_add_u32 v61, 0x10000, {vL16}")
            self.poll_late(vFP8, T[3], 58, self.p5tok, wg=False)
        if not self.s5in: self.stamp("s5")
        a("v_lshlrev_b32 v62, 16, v62", "v_lshlrev_b32 v63, 16, v63")
        a(f"v_add_u32 v54, {P[2]}, {vL16}", f"v_add_u32 v55, {P[3]}, {vL16}")
        tok = self.ztok
        loads = self.z_loads
        D = self.opt.get("wd", 7)
        assert D <= 8
        gq = [self.gelu_items(0) + self.gelu_items(1), self.gelu_items(2), []]
        self.w128_read_base(59, 2, (192, 193, 194, 195), 60)
        wt = [f"ds_read_b64_tr_b16 {v(WT + (nt * 6 + p) * 4 + 2 * hf, 2)}, v{59 + nt} offset:{p * 4096 + hf * 512}"
              for p in range(6) for nt in range(2) for hf in range(2)]
        seq = [(p, u) for p in range(3) for u in range(16)]
        for p, u in ([] if self.s5in else seq[:D]):
            if prog and u == 4: self.mask_check(2, 8, sSPR, P[2], P[3], 192)
            self.emit(loads(p, u))
        def red_write(p):
            A = ACC + 32 * (p & 1)
            return [f"ds_write_b128 v54, {v(A + 4 * i, 4)} offset:{(p & 1) * 32768 + i * 1024}" for i in range(8)]
        def red_read(p):
            return [f"ds_read_b128 {v(RED + (sw * 2 + rt) * 4, 4)}, v55 offset:{(p & 1) * 32768 + sw * 8192 + rt * 1024}" for sw in range(3) for rt in range(2)]
        def red_read2(p):
            return [f"ds_read_b128 {v(ACC + 32 * (p & 1) + rt * 4, 4)}, v55 offset:{(p & 1) * 32768 + 3 * 8192 + rt * 1024}" for rt in range(2)]
        def gate(p):
            L = []
            A = ACC + 32 * (p & 1)
            for o in range(8): L.append(f"v_add_f32 v{A + o}, v{A + o}, v{RED + o}")
            for o in range(8): L.append(f"v_add_f32 v{RED + 8 + o}, v{RED + 8 + o}, v{RED + 16 + o}")
            for o in range(8): L.append(f"v_add_f32 v{A + o}, v{A + o}, v{62 + (o >> 2)}")
            for o in range(8):
                z = vZ1 + ((o >> 2) * 3 + p) * 2 + ((o >> 1) & 1)
                L.append(f"v_and_b32 v{RED + o}, {sHIMASK}, v{z}" if o & 1 else f"v_lshlrev_b32 v{RED + o}, 16, v{z}")
            for o in range(8): L.append(f"v_add_f32 v{A + o}, v{A + o}, v{RED + 8 + o}")
            for o in range(8): L.append(f"v_mul_f32 v{A + o}, v{A + o}, v{RED + o}")
            for o in range(4): L.append(f"v_cvt_pk_bf16_f32 v{RED + o}, v{A + 2 * o}, v{A + 2 * o + 1}")
            return L
        def gstore(p):
            L = []
            if p == 2:
                sk, zr = a.label("gskip"), a.label("gstore")
                L.append(a.cond_begin)
                L.append(lambda: a(f"s_cmp_eq_u32 {sU[8]}, 0", f"s_cbranch_scc1 {zr}", f"s_cmp_eq_u32 {sCB}, 7", f"s_cbranch_scc0 {sk}",
                                   *[f"v_mov_b32 v{RED + k}, 0" for k in range(4)], f"{zr}:"))
            L += [f"buffer_store_dwordx2 {v(RED + 2 * rt, 2)}, {vPAT}, {sWS}, {sU[9 + rt]} offen offset:{1024 * p} sc1" for rt in range(2)]
            if p == 2: L += [lambda: a(f"{sk}:"), a.cond_end]
            return L
        eg = self.opt.get("earlyg", 1)
        etk = [-1]
        def early_flag():
            L = a.label("noflag")
            a.cond_begin()
            a(f"s_cmp_lg_u32 {sW}, 0", f"s_cbranch_scc1 {L}",
              "s_mov_b64 exec, 1", f"buffer_store_dwordx2 {vTAG}, off, {sWS}, {P[4]} sc1", "s_mov_b64 exec, -1", f"{L}:")
            a.cond_end()
        if eg:
            self.cluster_flag_off(P[4], WS_F6A, True); self.cluster_flag_off(P[5], WS_F6A, False)
        for p in range(3):
            A = ACC + 32 * (p & 1)
            for u in range(16):
                if not self.opt.get("w_nowait"): a.wait(vm=tok[(p, u)])
                if u == 0: self.stamp(f"wsp_p{p}")
                ms = []
                for f in range(2):
                    for tt in range(4):
                        ms.append(mfma16(A + (f * 4 + tt) * 4, v(BUF + (2 * (u & 7) + f) * 4, 4), ar((u * 4 + tt) * 4, 4), "0" if u == 0 else None))
                fill = []
                if p > 0 and not self.opt.get("w_nofill"):
                    q = p - 1
                    if u < 8: fill += red_write(q)[u:u + 1]
                    if u == 8: fill += [lambda: a.wait(lg=a.lg), "s_barrier"]
                    if u == 9: fill += red_read(q) + red_read2(q)
                    if u == 11: fill += [lambda: a.wait(lg=a.lg)]
                    if 11 <= u <= 15:
                        g = gate(q); fill += g[(u - 11) * 11:(u - 11) * 11 + 11]
                    if u == 15: fill += gstore(q)
                if p == 0: n = (len(gq[0]) + 15 - u) // (16 - u)
                elif p == 1 and u < 11: n = (len(gq[1]) + 10 - u) // (11 - u)
                else: n = 0
                fill = [gq[p].pop(0) for _ in range(n)] + fill if p == 0 else fill + [gq[p].pop(0) for _ in range(n)]
                if p == 2 and u < 8: fill += wt[3 * u:3 * u + 3]
                if p == 2 and u == 9 and eg: fill.insert(0, early_flag)
                if p == 2 and u == 14 and eg: fill += self.poll_early(vFP8, P[5], 52) + [lambda: etk.__setitem__(0, a.vtok())]
                if p == 0 and u == 15: fill += ["s_barrier"]
                nx = p * 16 + u + D
                ld = loads(*seq[nx]) if nx < 48 else []
                if self.opt.get("w_noload"): ld = ld[-1:]
                interleave(a, ms[:6], fill, per=2, start=0)
                if self.s5in and p == 0 and 2 <= u < 10: ld = self.wo2[u - 2] + ld
                a(ms[6]); self.emit(ld[:-2])
                a(ms[7]); self.emit(ld[-2:])
        self.stamp("wsp_gemm")
        self.emit(red_write(2))
        a.wait(lg=a.lg)
        if eg: self.poll_late(vFP8, P[5], 52, etk[0])
        else: self.barrier()
        self.emit(red_read(2) + red_read2(2))
        a(f"v_add_u32 v56, {LB}, v59", f"v_add_u32 v57, {LB}, v60")
        for o in range(8):
            z = vZ1 + ((o >> 2) * 3 + 2) * 2 + ((o >> 1) & 1)
            a(f"v_and_b32 v{192 + o}, {sHIMASK}, v{z}" if o & 1 else f"v_lshlrev_b32 v{192 + o}, 16, v{z}")
        self.cluster_flag_off(P[1], WS_F6, True)
        a.wait(lg=a.lg)
        A = ACC
        for o in range(0, 8, 2): a(f"v_pk_add_f32 {v(A + o, 2)}, {v(A + o, 2)}, {v(RED + o, 2)}")
        for o in range(0, 8, 2): a(f"v_pk_add_f32 {v(RED + 8 + o, 2)}, {v(RED + 8 + o, 2)}, {v(RED + 16 + o, 2)}")
        for o in range(0, 8, 2): a(f"v_pk_add_f32 {v(A + o, 2)}, {v(A + o, 2)}, v[62:63] op_sel:[0,{o >> 2}] op_sel_hi:[1,{o >> 2}]")
        for o in range(0, 8, 2): a(f"v_pk_add_f32 {v(A + o, 2)}, {v(A + o, 2)}, {v(RED + 8 + o, 2)}")
        for o in range(0, 8, 2): a(f"v_pk_mul_f32 {v(A + o, 2)}, {v(A + o, 2)}, {v(192 + o, 2)}")
        for o in range(4): a(f"v_cvt_pk_bf16_f32 v{RED + o}, v{A + 2 * o}, v{A + 2 * o + 1}")
        self.emit(gstore(2))
        self.wout_rd = [f"ds_read_b64_tr_b16 {ar((nt * 16 + p) * 4 + 2 * hf, 2)}, v{56 + nt} offset:{p * 4096 + hf * 512}"
                        for p in range(16) for nt in range(2) for hf in range(2)]
        gtok = None
        if eg:
            gtok = a.vtok()
            self.g_setup()
            for p in range(6): self.emit(self.g_dma(p))
            self.getok = a.vtok()
        self.flag_store_wg(P[1], gtok)
        self.stamp("g_pub")

    def phase_wout(self):
        a = self.a
        ACC = 128
        self.cluster_flag_off(T[3], WS_F6, False)
        a(f"s_lshl_b32 {T[4]}, {sRH}, 11", f"v_add_u32 v31, {T[4]}, {vL16}", f"v_add_u32 v30, {LRED}, v31")
        fine = self.opt.get("fine", 1)
        eg = self.opt.get("earlyg", 1)
        if not eg:
            chunks = [2, 2, 4, 6, 8] if fine else [4, 4, 6, 8]
            group, toks = self.act_dma(WS_G, 22, chunks, LA, gpos=True)
        self.emit(self.wout_rd[:32])
        self.emit(self.poll_early(vFP8, T[3], 36)); ptok = a.vtok()
        self.emit(self.wout_rd[32:])
        def tail_setup():
            a(f"v_and_b32 v32, 15, {vLANE}", f"v_lshrrev_b32 v33, 4, {vLANE}", "v_lshlrev_b32 v32, 10, v32",
              "v_and_b32 v34, 1, v33", "v_lshl_add_u32 v32, v34, 5, v32", "v_lshrrev_b32 v33, 1, v33", "v_lshl_add_u32 v32, v33, 4, v32",
              f"s_lshl_b32 {T[0]}, {sRH}, 5", f"s_add_u32 {T[0]}, {T[0]}, {sR0}", f"s_lshl_b32 {T[0]}, {T[0]}, 10",
              f"s_lshl_b32 {T[4]}, {sCB}, 7", f"s_add_u32 {T[0]}, {T[0]}, {T[4]}", f"s_lshl_b32 {T[4]}, {sCH}, 6", f"s_add_u32 {sU[9]}, {T[0]}, {T[4]}",
              f"s_add_u32 {sU[10]}, {sU[9]}, 0x4000")
            for i in range(8):
                a(f"v_lshlrev_b32 v{96 + 2 * i}, 16, v{vH + i}", f"v_and_b32 v{97 + 2 * i}, {sHIMASK}, v{vH + i}")
        if eg:
            tail_setup()
            a.wait(vm=self.getok, lg=a.lg)
            self.poll_late(vFP8, T[3], 36, ptok)
            self.stamp("s6")
            toks = {}
            def gd(p0, p1, c):
                L = [self.g_dma(p) for p in range(p0, p1)]
                L[-1].append(lambda: toks.__setitem__(c, a.vtok()))
                return L
            self.emit_all(gd(6, 10, 1) + gd(10, 14, 2))
        else:
            self.poll_late(vFP8, T[3], 36, ptok)
            self.stamp("s6")
            for c in range(2 + fine): self.emit_all(group(c))
            tail_setup()
        def buf(s, rt): return 64 + (s % 4) * 8 + rt * 4
        def reads(s): return [f"ds_read_b128 {v(buf(s, rt), 4)}, v{30 if s < 16 else 31} offset:{(self.gpos2(s) - LRED if eg else 4096 * s) + rt * 1024 if s < 16 else 4096 * (s - 16) + rt * 1024}" for rt in range(2)]
        def mfmas(s):
            wv = lambda nt: ar((nt * 16 + s) * 4, 4) if s < 16 else v(200 + (nt * 6 + s - 16) * 4, 4)
            return [mfma16(ACC + (rt * 2 + nt) * 4, wv(nt), v(buf(s, rt), 4), v(96 + (rt * 2 + nt) * 4, 4) if s == 0 else None)
                    for rt in range(2) for nt in range(2)]
        def w(c):
            def f():
                a.wait(vm=toks[c]); self.barrier()
            return f
        if eg:
            rest = gd(14, 18, 3) + gd(18, 22, 4)
            late = {4 + i: rest[2 * i:2 * i + 2] for i in range(4)}
            self.kloop(22, reads, mfmas, {4: w(1), 8: w(2), 12: w(3), 16: w(4)}, late, {}, per=1)
            rest = None
        else:
            rest = group(2 + fine) + group(3 + fine)
            late = {i: rest[2 * i:2 * i + 2] for i in range(7)}
        def head0():
            a.wait(vm=toks[0], lg=a.lg); self.barrier()
        if not eg: self.kloop(22, reads, mfmas, {0: w(1), 2: w(2), 6: w(3), 12: w(4)} if fine else {2: w(1), 6: w(2), 12: w(3)}, late, {0: head0}, per=1)
        self.stamp("wout_gemm")
        for rt in range(2):
            for nt in range(2):
                d = ACC + (rt * 2 + nt) * 4
                for k in range(2): a(f"v_cvt_pk_bf16_f32 v{64 + 4 * rt + 2 * nt + k}, v{d + 2 * k}, v{d + 2 * k + 1}")
        for rt in range(2):
            b = 64 + 4 * rt
            a(f"v_permlane16_swap_b32 v{b}, v{b + 2}", f"v_permlane16_swap_b32 v{b + 1}, v{b + 3}")
            a(f"buffer_store_dwordx4 {v(b, 4)}, v32, {sOUT}, {sU[9 + rt]} offen " + ["", "sc1", "nt", "sc0 sc1", "sc1 nt"][self.opt.get("ost", 0)])

    def epilogue(self):
        a = self.a
        a("L_finish:")
        a("s_cmp_eq_u32 s2, 0", f"s_cselect_b32 {T[0]}, {sW}, 1", f"s_cmp_eq_u32 {T[0]}, 0", "s_cbranch_scc0 L_noepoch",
          "s_mov_b64 exec, 1", f"buffer_store_dwordx2 {vTAG}, off, {sWS}, 0 sc1", "s_mov_b64 exec, -1", "L_noepoch:")
        if self.stamps:
            a("s_waitcnt vmcnt(0)")
            self.stamp("end")
            a(f"s_lshl_b32 {T[0]}, s2, 2", f"s_add_u32 {T[0]}, {T[0]}, {sW}", f"s_lshl_b32 {T[0]}, {T[0]}, 7", f"s_add_u32 {T[0]}, {T[0]}, {WS_DBG}",
              "s_mov_b64 exec, 1")
            for i in range(10):
                a(f"v_mov_b32 v8, s{STAMP0 + i}", f"buffer_store_dword v8, off, {sWS}, {T[0]} offset:{4 * i if i < 9 else 60}")
        if self.calib:
            a(f"s_and_b32 s98, s{STAMP0 + 1}, 0xffff", "s_lshl_b32 s98, s98, 1", f"s_add_u32 s98, s98, {self.calib}")
            if self.nstamp < 3: a(f"s_mov_b32 s98, {self.calib}")
            a("s_waitcnt vmcnt(0)", "L_calib:", "s_memrealtime s[100:101]", "s_waitcnt lgkmcnt(0)", f"s_sub_u32 s100, s100, s{STAMP0}",
              f"s_cmp_lt_u32 s100, s98", "s_cbranch_scc1 L_calib")
        if not self.opt.get("noendwait"): a("s_waitcnt vmcnt(0)")
        a("L_exit:", "s_endpgm")

    def build(self):
        self.prologue()
        self.phase_qkv(); self.maybe_stop("qkv")
        self.phase_attn(); self.maybe_stop("attn")
        self.phase_wo(); self.maybe_stop("wo")
        self.phase_win(); self.maybe_stop("win")
        self.phase_wsp(); self.maybe_stop("wsp")
        self.phase_wout()
        self.epilogue()
        self.attn_slow()
        self.a("L_code_end:")
        body = self.a.finish()
        for w in dict.fromkeys(self.a.warnings): print("PENDING-LOAD WARNING:", w, file=sys.stderr)
        ref = open(f"cdna_kernels/{NAME}.s.ref").read().split("\n")
        head = [l for l in ref if l.startswith(";") and "@launch" not in l and "Override" not in l and "grid=ceil" not in l]
        head = head[:head.index([l for l in head if "d_ws" in l][0]) + 1]
        return ("\n".join(head) + f"\n; @launch grid=(256,1,1) block=(256,1,1) lds={LDS_BYTES}\n"
                + '.amdgcn_target "amdgcn-amd-amdhsa--gfx950"\n.text\n'
                + f".globl {NAME}_kernel\n.p2align 8\n.type {NAME}_kernel,@function\n{NAME}_kernel:\n" + body
                + f""".section .rodata,"a"
.p2align 6
.amdhsa_kernel {NAME}_kernel
  .amdhsa_next_free_vgpr 512
  .amdhsa_next_free_sgpr 102
  .amdhsa_accum_offset 256
  .amdhsa_group_segment_fixed_size 0
  .amdhsa_kernarg_size 88
  .amdhsa_user_sgpr_count 2
  .amdhsa_user_sgpr_kernarg_segment_ptr 1
  .amdhsa_system_sgpr_workgroup_id_x 1
  .amdhsa_float_denorm_mode_32 3
.end_amdhsa_kernel
""")

if __name__ == "__main__":
    import argparse
    ap = argparse.ArgumentParser()
    ap.add_argument("-o", default=f"cdna_kernels/{NAME}.s")
    ap.add_argument("--stop"); ap.add_argument("--stamps", action="store_true"); ap.add_argument("--slow", action="store_true")
    ap.add_argument("--opt", action="append", default=[]); ap.add_argument("--keep")
    o = ap.parse_args()
    g = Gen(o.stop, o.stamps, o.slow, keep=o.keep.split(",") if o.keep else None, **{k: int(x) for k, x in (kv.split('=') for kv in o.opt)})
    s = g.build()
    open(o.o, "w").write(s)
    print(f"wrote {o.o}: {len(s)} bytes, {len(g.a.items)} items, {g.a.nops_added} nops; stamps: {g.stamp_names}")
```

```python
import sys, struct
from asmdsl import Asm

NAME = "sequential_preLN__softmax_full_mha__mixer_gmlp__prompt"

WS_EPOCH = 0
WS_F1, WS_F2, WS_F3, WS_F4, WS_F5, WS_F6 = 0x1000, 0x90000, 0x7000, 0x9000, 0xB000, 0xD000
WS_F6A = 0xF000
GPERM = [0, 3, 6, 9, 14, 19] + [p for p in range(22) if p not in (0, 3, 6, 9, 14, 19)]
WS_ST3, WS_ST4 = 0x1150000, 0x10D0000
WS_Q, WS_KV, WS_O, WS_H, WS_Z, WS_G = 0x100000, 0x300000, 0x700000, 0x900000, 0xB00000, 0xE00000
WS_DBG = 0x1300000
WS_SIZE = 0x1400000

LA, LC, LB = 0, 65536, 98304
LRED = 24576
LDS_BYTES = 163840

sX, sWQKV, sWO, sWIN, sWSP, sBSP, sWOUT, sOUT, sWS = ("s[%d:%d]" % (b, b + 3) for b in range(4, 40, 4))
sJ, sRB, sCB, sHEAD, sW, sR0, sRH, sCH, sT0, sCNT5 = ("s%d" % i for i in range(40, 50))
sTAG = "s[50:51]"
sONES, sHIMASK, sCLU, sPOLL = "s52", "s53", "s54", "s55"
T = ["s%d" % i for i in range(56, 64)]
sROT = ["s%d" % i for i in range(64, 72)]
sU = ["s%d" % i for i in range(72, 84)]
sJA, sRB8 = "s0", "s1"
sRC = "s0"
sSPR = "s3"
P = ["s%d" % i for i in range(84, 90)]
STAMP0 = 90

vLANE, vL16, vPAT, vZ = "v0", "v1", "v2", "v3"
vTAG = "v[4:5]"
vFP32, vFP8 = "v6", "v7"
vH = 8
vZ1 = 16

def v(a, n=1): return f"v{a}" if n == 1 else f"v[{a}:{a + n - 1}]"
def ar(a, n=1): return f"a{a}" if n == 1 else f"a[{a}:{a + n - 1}]"
def f2u(x): return "0x%08x" % struct.unpack("<I", struct.pack("<f", x))[0]

def mfma16(d, a, b, c=None):
    return f"v_mfma_f32_16x16x32_bf16 {v(d,4)}, {a}, {b}, {c if c is not None else v(d,4)}"

def interleave(a, mains, fillers, per=1, start=0):
    k = 0
    for i, m in enumerate(mains):
        m() if callable(m) else a(m)
        if i >= start:
            for _ in range(per):
                if k < len(fillers):
                    f = fillers[k]; k += 1
                    f() if callable(f) else a(f)
    while k < len(fillers):
        f = fillers[k]; k += 1
        f() if callable(f) else a(f)

class Gen:
    def __init__(self, stop=None, stamps=False, force_fallback=False, calib=0, **opt):
        self.calib = calib
        self.keep = opt.pop("keep", None)
        self.opt = opt
        self.a = Asm()
        self.stop = stop
        self.stamps = stamps
        self.force_fallback = force_fallback
        self.nstamp = 0
        self.stamp_names = []

    def stamp(self, name):
        if not self.stamps: return
        if self.keep is not None:
            if name not in self.keep and name != "entry": return
        elif name not in ("qkv_gemm", "qkv_pub", "attn_start", "attn_loop", "s2", "wo_gemm", "s3", "z2_gemm", "z1_gemm", "z2n_pub", "s5", "wsp_gemm", "s6", "wout_gemm", "end", "entry"): return
        a = self.a
        a.wait(lg=a.lg)
        cyc = self.opt.get("cyc")
        a(f"{'s_memtime' if cyc else 's_memrealtime'} s[100:101]", "s_waitcnt lgkmcnt(0)")
        n = self.nstamp
        if n == 0:
            a(f"s_mov_b32 s{STAMP0}, s100")
        else:
            r = STAMP0 + 1 + (n - 1) // 2
            if cyc: a(f"s_sub_u32 s101, s100, s{STAMP0}", f"s_mov_b32 s{STAMP0}, s100", "s_mov_b32 s100, s101")
            else: a(f"s_sub_u32 s100, s100, s{STAMP0}")
            a(f"s_mov_b32 s{r}, s100" if n & 1 else f"s_pack_ll_b32_b16 s{r}, s{r}, s100")
        self.nstamp += 1; self.stamp_names.append(name)
        assert self.nstamp <= 17

    def maybe_stop(self, name):
        if self.stop == name:
            self.a.wait_all()
            self.a("s_branch L_finish")

    def flag_store(self, soff, tok=None):
        a = self.a
        a.wait(vm=a.vm if tok is None else tok, force=True)
        a("s_mov_b64 exec, 1", f"buffer_store_dwordx2 {vTAG}, off, {sWS}, {soff} sc1", "s_mov_b64 exec, -1")

    def g_setup(self):
        a = self.a
        a(f"s_lshr_b32 {T[0]}, {sR0}, 4", f"s_add_u32 {T[0]}, {T[0]}, {sW}", f"s_mul_i32 {T[0]}, {T[0]}, {22 * 1024}",
          f"s_add_u32 {sU[0]}, {T[0]}, {WS_G}", f"s_lshl_b32 {sU[1]}, {sW}, 10")

    def g_dma(self, p):
        return [f"s_add_u32 {T[2]}, {sU[0]}, {GPERM[p] * 1024}", f"s_add_u32 m0, {sU[1]}, {self.gpos2(p)}",
                f"buffer_load_dwordx4 {vL16}, {sWS}, {T[2]} offen sc1 lds"]

    @staticmethod
    def gpos2(p): return LRED + 32768 + 4096 * p if p < 8 else LRED + 4096 * (p - 8) if p < 16 else 4096 * (p - 16)

    def flag_store_wg(self, soff, tok=None):
        a = self.a
        a.wait(vm=a.vm if tok is None else tok, force=True)
        self.barrier()
        L = a.label("noflag")
        a.cond_begin()
        a(f"s_cmp_lg_u32 {sW}, 0", f"s_cbranch_scc1 {L}",
          "s_mov_b64 exec, 1", f"buffer_store_dwordx2 {vTAG}, off, {sWS}, {soff} sc1", "s_mov_b64 exec, -1", f"{L}:")
        a.cond_end()

    def poll_wg(self, voff, soff, tmp, drain=True):
        a = self.a
        if self.opt.get("allpoll"):
            self.poll(voff, soff, tmp); return
        if drain: a.wait(vm=a.vm, force=True)
        done = a.vm_done
        L = a.label("nopoll")
        a(f"s_cmp_lg_u32 {sW}, 0", f"s_cbranch_scc1 {L}")
        self.poll(voff, soff, tmp)
        a(f"{L}:")
        a.vm_done = done
        self.barrier()

    def poll_early(self, voff, soff, tmp):
        return [f"buffer_load_dwordx2 {v(tmp,2)}, {voff}, {sWS}, {soff} offen sc1"]

    def poll_late(self, voff, soff, tmp, tok, wg=True):
        a = self.a
        L = a.label("late")
        done = a.vm_done
        if wg: a(f"s_cmp_lg_u32 {sW}, 0", f"s_cbranch_scc1 {L}")
        a.wait(vm=tok, force=True)
        a(f"v_cmp_ne_u64 vcc, {sTAG}, {v(tmp,2)}", "s_nop 1", f"s_cbranch_vccz {L}")
        a.cond_begin(); self.poll(voff, soff, tmp); a.cond_end()
        a(f"{L}:")
        a.vm_done = done if wg else tok
        if wg: self.barrier()

    def mask_check(self, t0, t1, start, soff, pend, tmp):
        a = self.a
        done = a.vm_done
        L, E = a.label("rc"), a.label("rcok")
        m = ((1 << t1) - 1) ^ ((1 << t0) - 1)
        a(f"s_lshl_b32 {sPOLL}, {m * 0x101}, {start}", f"s_lshr_b32 {sPOLL}, {sPOLL}, 8", f"s_and_b32 {sPOLL}, {sPOLL}, 0xff",
          f"s_and_b32 vcc_lo, {pend}, {sPOLL}", f"s_cbranch_scc0 {E}", f"s_mov_b32 {sRC}, {sPOLL}", f"s_mov_b32 {sPOLL}, 0x40000", f"{L}:")
        a.cond_begin()
        a(f"buffer_load_dwordx2 {v(tmp, 2)}, {vFP8}, {sWS}, {soff} offen sc1")
        a.wait(vm=a.vm, force=True)
        a.cond_end()
        a(f"v_cmp_ne_u64 vcc, {sTAG}, {v(tmp, 2)}", f"s_sub_u32 {sPOLL}, {sPOLL}, 1", f"s_cbranch_scc1 {E}",
          f"s_and_b32 {pend}, vcc_lo, 0xff", f"s_and_b32 vcc_lo, {pend}, {sRC}", f"s_cbranch_scc1 {L}", f"{E}:")
        a.vm_done = done
        for r in (tmp, tmp + 1): a.pend_vm.pop(("v", r), None)

    def poll(self, voff, soff, tmp):
        a = self.a
        L, E = a.label("poll"), a.label("polled")
        a(f"s_mov_b32 {sPOLL}, 0x40000", f"{L}:",
          f"buffer_load_dwordx2 {v(tmp,2)}, {voff}, {sWS}, {soff} offen sc1")
        a.wait(vm=a.vm, force=True)
        a(f"v_cmp_ne_u64 vcc, {sTAG}, {v(tmp,2)}",
          f"s_sub_u32 {sPOLL}, {sPOLL}, 1", f"s_cbranch_scc1 {E}")
        sl = self.opt.get("sleep", 0)
        if sl: a(f"s_cbranch_vccz {E}", f"s_sleep {sl}", f"s_branch {L}", f"{E}:")
        else: a(f"s_cbranch_vccnz {L}", f"{E}:")
        for r in (tmp, tmp + 1): a.pend_vm.pop(("v", r), None)

    def barrier(self):
        self.a("s_barrier")

    def prologue(self):
        a = self.a
        a("s_cmp_ge_u32 s2, 256", "s_cbranch_scc1 L_exit")
        self.stamp("entry")
        a("s_load_dwordx2 s[4:5], s[0:1], 0", "s_load_dwordx2 s[8:9], s[0:1], 8")
        if not self.opt.get("nocodepf"):
            a(f"s_getpc_b64 s[60:61]", "L_pc:", f"s_sub_u32 s60, s60, L_pc-{NAME}_kernel", "s_subb_u32 s61, s61, 0",
              f"s_mov_b32 s62, L_code_end-{NAME}_kernel", "s_mov_b32 s63, 0x00020000",
              f"s_lshr_b32 {T[0]}, s2, 3", f"s_lshl_b32 {T[0]}, {T[0]}, 11", "v_lshlrev_b32 v250, 3, v0",
              f"buffer_load_dwordx2 v[250:251], v250, s[60:63], {T[0]} offen")
        a(f"s_mov_b32 s6, {2048 * 512 * 2}", "s_mov_b32 s7, 0x00020000", f"s_mov_b32 s10, {512 * 1536 * 2}", "s_mov_b32 s11, 0x00020000")
        a("v_lshrrev_b32 v8, 6, v0", f"v_and_b32 {vLANE}, 63, v0", f"v_readfirstlane_b32 {sW}, v8")
        if self.opt.get("map", 1):
            a(f"s_lshr_b32 {T[0]}, s2, 3", f"s_and_b32 {T[1]}, s2, 6", f"s_and_b32 {T[2]}, s2, 1",
              f"s_lshr_b32 {T[3]}, {T[0]}, 4", f"s_add_u32 {sJ}, {T[1]}, {T[3]}",
              f"s_bfe_u32 {sRB}, {T[0]}, 0x20002", f"s_and_b32 {sCB}, {T[0]}, 3", f"s_lshl_b32 {T[4]}, {T[2]}, 2", f"s_add_u32 {sCB}, {sCB}, {T[4]}",
              f"s_lshr_b32 {sU[1]}, {T[0]}, 2", f"s_and_b32 {sU[2]}, {sCB}, 3", f"s_lshl_b32 {sU[2]}, {sU[2]}, 1")
        else:
            a(f"s_and_b32 {sJ}, s2, 7", f"s_lshr_b32 {sHEAD}, s2, 3", f"s_lshr_b32 {sRB}, {sHEAD}, 3", f"s_and_b32 {sCB}, {sHEAD}, 7",
              f"s_lshl_b32 {sU[1]}, {sRB}, 1", f"s_mov_b32 {sU[2]}, {sCB}")
        a(f"s_lshl_b32 {sR0}, {sJ}, 8", f"s_lshl_b32 {T[0]}, {sRB}, 6", f"s_add_u32 {sR0}, {sR0}, {T[0]}")

    def prologue_rest(self):
        a = self.a
        for d, off, n in self.SRDS[2:]: a(f"s_load_dwordx2 s[{d}:{d + 1}], s[0:1], {off}")
        for d, off, n in self.SRDS[2:]: a(f"s_mov_b32 s{d + 2}, {n}", f"s_mov_b32 s{d + 3}, 0x00020000")
        if self.opt.get("map", 1):
            a(f"s_bfe_u32 {sHEAD}, s2, 0x40003", f"s_and_b32 {T[4]}, s2, 1", f"s_lshl_b32 {T[4]}, {T[4]}, 4", f"s_add_u32 {sHEAD}, {sHEAD}, {T[4]}")
        a(f"s_lshr_b32 {sRH}, {sW}, 1", f"s_and_b32 {sCH}, {sW}, 1",
          f"s_lshl_b32 {sCLU}, {sJ}, 2", f"s_add_u32 {sCLU}, {sCLU}, {sRB}",
          f"s_mov_b32 {sONES}, 0x3f803f80", f"s_mov_b32 {sHIMASK}, 0xffff0000")
        a(f"s_mul_i32 {T[0]}, {sCB}, 5", f"s_min_u32 {T[1]}, {sCB}, 3", f"s_add_u32 {sT0}, {T[0]}, {T[1]}",
          f"s_cmp_ge_u32 {sCB}, 3", f"s_cselect_b32 {sCNT5}, 1, 0")
        a(f"v_lshlrev_b32 {vL16}, 4, {vLANE}", f"v_mov_b32 {vZ}, 0",
          f"v_and_b32 v8, 15, {vLANE}", f"v_lshrrev_b32 v9, 5, {vLANE}", f"v_bfe_u32 v10, {vLANE}, 4, 1",
          f"v_lshlrev_b32 v8, 4, v8", f"v_lshl_add_u32 v8, v10, 3, v8",
          f"v_lshl_add_u32 {vPAT}, v9, 8, v8",
          f"v_lshl_add_u32 v63, v9, 9, v8",
          f"v_and_b32 {vFP32}, 31, {vLANE}", f"v_lshlrev_b32 {vFP32}, 7, {vFP32}",
          f"v_and_b32 {vFP8}, 7, {vLANE}", f"v_lshlrev_b32 {vFP8}, 3, {vFP8}")

    SRDS = [(4, 0, 2048 * 512 * 2), (8, 8, 512 * 1536 * 2), (36, 80, WS_SIZE), (12, 16, 512 * 512 * 2), (16, 32, 512 * 1376 * 2),
            (20, 40, 2048 * 2048 * 2), (24, 48, 2048 * 2), (28, 56, 688 * 512 * 2), (32, 64, 2048 * 512 * 2)]

    def phase_qkv(self):
        a = self.a
        ACC = 128
        CSR = (124, 200, 204)
        vX0, vX1, vW0, vW1, vWrA, vWrB, XA = "v28", "v29", "v30", "v31", "v32", "v33", 34
        STA = LC
        a(f"v_lshrrev_b32 v8, 3, {vLANE}", f"v_and_b32 v9, 7, {vLANE}", "v_lshrrev_b32 v10, 1, v8", "v_xor_b32 v10, v10, v9",
          "v_lshlrev_b32 v10, 4, v10", "v_lshl_add_u32 v10, v8, 10, v10",
          f"s_lshl_b32 {T[0]}, {sW}, 4", f"s_add_u32 {T[0]}, {T[0]}, {sR0}", f"s_lshl_b32 {T[0]}, {T[0]}, 10",
          f"v_add_u32 {vX0}, {T[0]}, v10", f"v_xor_b32 {vX1}, 64, {vX0}", f"v_add_u32 {vX1}, {7 * 1024}, {vX1}")
        a(f"v_bfe_u32 v10, {vLANE}, 4, 1", "v_lshrrev_b32 v11, 1, v9", "v_xor_b32 v11, v11, v10",
          "v_and_b32 v12, 1, v9", "v_lshl_or_b32 v11, v11, 1, v12", "v_lshlrev_b32 v11, 4, v11",
          "v_mul_u32_u24 v12, 3072, v8", "v_add_u32 v12, v12, v11",
          f"s_mul_i32 {T[0]}, {sW}, {16 * 3072}", f"s_lshl_b32 {T[1]}, {sCB}, 7", f"s_add_u32 {T[0]}, {T[0]}, {T[1]}",
          f"v_add_u32 {vW0}, {T[0]}, v12", f"v_xor_b32 {vW1}, 64, {vW0}", f"v_add_u32 {vW1}, {8 * 3072 - 1024}, {vW1}",
          f"s_lshl_b32 {sU[0]}, {sW}, 11", f"s_add_u32 {sU[2]}, {sU[2]}, {sU[1]}")
        if self.opt.get("q_rot", 3) == 0: a(f"s_mov_b32 {sU[2]}, 0")
        if self.opt.get("q_rot", 3) == 3: a(f"s_and_b32 {sU[2]}, {sU[1]}, 1", f"s_lshl_b32 {sU[2]}, {sU[2]}, 2")
        if self.opt.get("q_rot") == 1: a(f"s_mov_b32 {sU[2]}, {sU[1]}")
        if self.opt.get("q_samew"): a(f"v_subrev_u32 {vW0}, {T[1]}, {vW0}", f"v_subrev_u32 {vW1}, {T[1]}, {vW1}")
        if self.opt.get("q_samex"): a(f"v_and_b32 {vX0}, 0xffff, {vX0}", f"v_and_b32 {vX1}, 0x1ffff, {vX1}")
        tok = {}
        def dma(t):
            L = [[f"s_add_u32 {T[1]}, {sU[2]}, {t}", f"s_and_b32 {T[1]}, {T[1]}, 7", f"s_lshl_b32 {T[2]}, {T[1]}, 7",
                  f"s_add_u32 m0, {sU[0]}, {LB + t * 8192}", f"buffer_load_dwordx4 {vX0}, {sX}, {T[2]} offen lds"],
                 [f"buffer_load_dwordx4 {vX1}, {sX}, {T[2]} offen offset:1024 lds"]]
            for p in range(3):
                pre = [f"s_mul_i32 {T[1]}, {T[1]}, {64 * 3072}"] if p == 0 else []
                L.append(pre + [f"s_add_u32 {T[2]}, {T[1]}, {p * 1024}", f"s_add_u32 m0, {sU[0]}, {(t & 3) * 24576 + p * 8192}",
                                f"buffer_load_dwordx4 {vW0}, {sWQKV}, {T[2]} offen lds"])
                L.append([f"buffer_load_dwordx4 {vW1}, {sWQKV}, {T[2]} offen offset:1024 lds"])
            L[-1].append(lambda: tok.__setitem__(t, a.vtok()))
            return L
        a("s_waitcnt lgkmcnt(0)")
        self.stamp("kernarg")
        self.emit_all(dma(0))
        pq = self.opt.get("pfq2", 0)
        def pfq():
            a(f"s_lshl_b32 {T[3]}, s2, 2", f"s_add_u32 {T[3]}, {T[3]}, {sW}", f"s_lshl_b32 {T[4]}, {T[3]}, 11", f"s_mul_i32 {T[3]}, {T[3]}, 960",
              f"s_add_u32 {T[3]}, {T[3]}, {192 * 3072}", f"v_min_u32 v248, 59, {vLANE}", "v_lshlrev_b32 v248, 4, v248",
              f"buffer_load_dwordx4 v[244:247], v248, {sWQKV}, {T[3]} offen",
              f"buffer_load_dwordx4 v[244:247], {vL16}, {sX}, {T[4]} offen", f"buffer_load_dwordx4 v[244:247], {vL16}, {sX}, {T[4]} offen offset:1024")
        def pfq3(first):
            wb = (8 - first) * 64 * 3072 // 1024
            a(f"s_lshl_b32 {T[3]}, s2, 2", f"s_add_u32 {T[3]}, {T[3]}, {sW}", f"s_lshl_b32 {T[4]}, {T[3]}, 11", f"s_mul_i32 {T[3]}, {T[3]}, {wb}",
              f"s_add_u32 {T[3]}, {T[3]}, {first * 64 * 3072}", f"v_min_u32 v248, {(8 - first) * 8 - 1}, {vLANE}", "v_lshlrev_b32 v248, 4, v248",
              f"v_lshlrev_b32 v249, 4, {vLANE}", f"v_min_u32 v249, {min(wb, 1024) - 16}, v249",
              f"buffer_load_dwordx4 v[244:247], v248, {sX}, {T[4]} offen offset:{first * 128}",
              f"buffer_load_dwordx4 v[244:247], v248, {sX}, {T[4]} offen offset:{1024 + first * 128}",
              f"buffer_load_dwordx4 v[244:247], v249, {sWQKV}, {T[3]} offen")
            if wb > 1024:
                a(f"v_min_u32 v249, {wb - 1024 - 16}, v249", f"buffer_load_dwordx4 v[244:247], v249, {sWQKV}, {T[3]} offen offset:1024")
        if pq >= 3: pfq3(pq - 1)
        self.prologue_rest()
        if pq == 1: pfq()
        a(f"v_lshrrev_b32 v10, 4, {vLANE}", f"v_bfe_u32 v11, {vLANE}, 2, 2", f"v_and_b32 v12, 3, {vLANE}",
          "v_lshl_add_u32 v13, v10, 3, v11", "v_lshlrev_b32 v13, 7, v13", "v_lshl_add_u32 v13, v12, 3, v13",
          "v_lshrrev_b32 v11, 1, v11", "v_and_b32 v14, 1, v10", "v_lshl_or_b32 v11, v14, 1, v11",
          f"v_xor_b32 v11, {sW}, v11", f"v_lshl_add_u32 {vWrA}, v11, 5, v13", f"v_add_u32 {vWrB}, {2 * 24576}, {vWrA}")
        a(f"v_and_b32 v11, 15, {vLANE}", "v_lshrrev_b32 v12, 1, v11", "v_xor_b32 v12, v12, v10", "v_lshlrev_b32 v12, 4, v12",
          "v_lshl_add_u32 v12, v11, 7, v12", f"s_add_u32 {T[0]}, {sU[0]}, {LB}", f"v_add_u32 v{XA}, {T[0]}, v12")
        for k in range(1, 8): a(f"v_xor_b32 v{XA + k}, {((k >> 1) << 11) | ((k & 1) << 6)}, v{XA}")
        for r in range(252, 256): a(f"v_mov_b32 v{r}, {sONES}")
        early = self.opt.get("qearly", 0)
        QS = 0.25 * 1.4426950408889634
        a(f"v_and_b32 v16, 15, {vLANE}", f"v_lshrrev_b32 v17, 4, {vLANE}", f"v_and_b32 v20, 3, {vLANE}", "v_lshrrev_b32 v21, 2, v16",
          f"s_lshl_b32 {T[0]}, {sW}, 6", f"s_add_u32 {T[0]}, {T[0]}, {STA}",
          "v_cmp_eq_u32 vcc, v17, v21", "v_cndmask_b32_e64 v21, 0, -1, vcc",
          "v_lshlrev_b32 v16, 2, v16", f"v_add_u32 v16, {T[0]}, v16", "v_lshlrev_b32 v18, 4, v17", f"v_add_u32 v18, {T[0]}, v18",
          "v_and_b32 v17, 1, v17", "v_lshl_add_u32 v19, v17, 8, v16",
          f"s_and_b32 {T[6]}, {sW}, 1", f"s_lshl_b32 {T[6]}, {T[6]}, 8", f"s_lshr_b32 {T[7]}, {sW}, 1", f"s_lshl_b32 {T[7]}, {T[7]}, 10",
          f"s_or_b32 {T[6]}, {T[6]}, {T[7]}", f"v_or_b32 v42, {T[6]}, v63", f"s_lshl_b32 {T[6]}, {sW}, 9", f"v_or_b32 v46, {T[6]}, {vPAT}",
          f"v_mov_b32 v22, {f2u(QS)}", f"v_mov_b32 v23, {f2u(QS)}")
        self.emit_all(dma(1))
        if pq == 2: pfq()
        for r in range(1, 4): a(f"v_xor_b32 v{42 + r}, {((r & 1) << 8) | ((r >> 1) << 10)}, v42", f"v_xor_b32 v{46 + r}, {r << 9}, v46")
        a(f"s_lshl_b32 {T[4]}, {sCB}, 2", f"s_add_u32 {T[4]}, {T[4]}, {sW}",
          f"s_lshl_b32 {sU[5]}, {T[4]}, 16", f"s_lshl_b32 {T[3]}, {sR0}, 5", f"s_add_u32 {sU[5]}, {sU[5]}, {T[3]}",
          f"s_add_u32 {sU[5]}, {sU[5]}, {WS_Q}",
          f"s_lshl_b32 {sU[6]}, {T[4]}, 17", f"s_lshl_b32 {T[3]}, {sR0}, 6", f"s_add_u32 {sU[6]}, {sU[6]}, {T[3]}",
          f"s_add_u32 {sU[6]}, {sU[6]}, {WS_KV}", f"s_add_u32 {sU[7]}, {sU[6]}, 2048",
          f"s_lshl_b32 {T[0]}, {sRB}, 5", f"s_add_u32 {T[0]}, {T[0]}, {T[4]}", f"s_lshl_b32 {T[0]}, {T[0]}, 7",
          f"s_lshl_b32 {T[4]}, {sJ}, 3", f"s_add_u32 {T[0]}, {T[0]}, {T[4]}", f"s_add_u32 {sU[8]}, {T[0]}, {WS_F1}")
        a("s_waitcnt lgkmcnt(0)", f"s_mov_b32 {sRB8}, {sU[1]}")
        a(f"buffer_load_dwordx2 v[4:5], off, {sWS}, 0 sc1")
        etok = a.vtok()
        tl = self.opt.get("tlb", 0)
        if tl:
            a(f"v_min_u32 v248, 9, {vLANE}", "v_lshlrev_b32 v248, 21, v248", f"buffer_load_dword v249, v248, {sWS}, 0 offen offset:2048")
            if tl >= 2:
                a(f"buffer_load_dword v249, v248, {sWSP}, 0 offen", f"buffer_load_dword v249, off, {sWO}, 0", f"buffer_load_dword v249, off, {sWIN}, 0",
                  f"buffer_load_dword v249, off, {sWOUT}, 0", f"buffer_load_dword v249, off, {sBSP}, 0")
            if tl >= 3: a(f"buffer_load_dword v249, off, {sOUT}, 0")
        if not early: self.emit_all(dma(2))
        self.stamp("issued")
        def abuf(s): return 64 + 16 * (s % 3)
        def wbuf(s): return (112, 176, 188)[s % 3]
        def reads(s):
            t, sub = s >> 1, s & 1
            slot = t & 3
            wb = vWrA if slot < 2 else vWrB
            wo = (slot & 1) * 24576 + sub * 4096
            A, W = abuf(s), wbuf(s)
            L = [f"ds_read_b64_tr_b16 {v(W + 2 * h, 2)}, {wb} offset:{wo + 512 * h}" for h in range(2)]
            L += [f"ds_read_b128 {v(A + 4 * r, 4)}, v{XA + 2 * r + sub} offset:{t * 8192}" for r in range(4)]
            L += [f"ds_read_b64_tr_b16 {v(W + 4 * p + 2 * h, 2)}, {wb} offset:{wo + 8192 * p + 512 * h}" for p in (1, 2) for h in range(2)]
            return L
        def mfmas(s):
            A, W = abuf(s), wbuf(s)
            c = "0" if s == 0 else None
            ms = []
            for p in range(3):
                wv = v(W + 4 * p, 4)
                for r in range(4):
                    d, av = ACC + 16 * p + 4 * r, v(A + 4 * r, 4)
                    ms.append(mfma16(d, wv, av, c) if p < 2 else mfma16(d, av, wv, c))
                ms.append(mfma16(CSR[p], wv, "v[252:255]", c) if p < 2 else mfma16(CSR[p], "v[252:255]", wv, c))
                if p == 0: ms.append(mfma16(8, "v[252:255]", v(A, 4), c))
                if p == 1: ms.append(mfma16(24, v(A, 4), v(A, 4), c))
            return ms
        def head0():
            a.wait(vm=tok[0]); self.barrier(); self.stamp("w0")
        before, late = {}, {}
        for t in range(7):
            def f(t=t):
                if not self.opt.get("q_nowait"): a.wait(vm=tok[t + 1])
                self.barrier(); self.stamp(f"qc{t + 1}")
            before[2 * t] = f
        def f15():
            a.wait(lg=a.lg); self.barrier()
        before[15] = f15
        if self.opt.get("q_nodma"):
            dma = lambda t: (tok.__setitem__(t, a.vtok()), [[]] * 8)[1]
        d3 = dma(3)
        late[0], late[1] = d3[:4], d3[4:]
        if early: late[0], late[1] = dma(2), d3
        for t in range(4, 8):
            d = dma(t)
            late[2 * t - 6], late[2 * t - 5] = d[:4], d[4:]
        cf = self.const_fill(52)
        late[15] = [cf[0:4], cf[4:8], cf[8:10], cf[10:]]
        late[12] = [[lambda: a.wait(vm=etok)], ["v_add_u32 v4, 0x9e3779b9, v4"], ["v_add_u32 v5, 0x7f4a7c15, v5"]]
        late[13] = [["v_readfirstlane_b32 s50, v4"], ["v_readfirstlane_b32 s51, v5"]]
        self.kloop(16, reads, mfmas, before, late, {0: head0})
        self.stamp("qkv_gemm")
        a("v_cmp_eq_u32 vcc, 1, v20", "v_cndmask_b32 v9, v24, v25, vcc", "v_cmp_eq_u32 vcc, 3, v20",
          "v_cndmask_b32_e64 v10, v26, v27, vcc", "v_cmp_lt_u32 vcc, 1, v20", "v_cndmask_b32 v9, v9, v10, vcc", "v_and_b32 v9, v9, v21",
          "v_mov_b32 v10, v9", "v_permlane32_swap_b32 v9, v10", "v_add_f32 v9, v9, v10", "v_mov_b32 v10, v9",
          "v_cmp_eq_u32 vcc, 1, v17", "v_permlane16_swap_b32 v9, v10", "v_add_f32 v9, v9, v10")
        self.ln_finish([(8, 9, 10)], 1.0 / 512)
        a("v_cndmask_b32 v10, v10, v11, vcc", "ds_write_b32 v19, v10")
        a.wait(lg=a.lg)
        self.barrier()
        for r in range(4):
            if r: a(f"v_xor_b32 v20, {r << 6}, v16")
            a(f"ds_read2_b32 {v(64 + 2 * r, 2)}, {'v16' if r == 0 else 'v20'} offset1:64")
        qtok = a.ltok()
        for r in range(4):
            if r: a(f"v_xor_b32 v21, {r << 6}, v18")
            p18 = "v18" if r == 0 else "v21"
            a(f"ds_read_b128 {v(80 + 8 * r, 4)}, {p18}", f"ds_read_b128 {v(84 + 8 * r, 4)}, {p18} offset:256")
        a.wait(lg=qtok)
        for p in (1, 2, 0):
            if p == 2:
                a.wait(lg=a.lg)
                for r in range(4): a(f"v_pk_mul_f32 {v(72 + 2 * r, 2)}, {v(64 + 2 * r, 2)}, v[22:23]")
            for r0 in (0, 2):
                work = [(r, k) for r in (r0, r0 + 1) for k in range(2)]
                tm = {w_: 52 + 2 * i for i, w_ in enumerate(work)}
                for r, k in work:
                    c = v(CSR[p] + 2 * k, 2)
                    if p == 2: a(f"v_pk_mul_f32 {v(tm[r, k], 2)}, {c}, {v(84 + 8 * r + 2 * k, 2)}")
                    else: a(f"v_pk_mul_f32 {v(tm[r, k], 2)}, {c}, {v((72 if p == 0 else 64) + 2 * r, 2)} op_sel:[0,1] op_sel_hi:[1,1]")
                for r, k in work:
                    d = v(ACC + 16 * p + 4 * r + 2 * k, 2)
                    if p == 2: a(f"v_pk_fma_f32 {d}, {d}, {v(80 + 8 * r + 2 * k, 2)}, {v(tm[r, k], 2)}")
                    else: a(f"v_pk_fma_f32 {d}, {d}, {v((72 if p == 0 else 64) + 2 * r, 2)}, {v(tm[r, k], 2)} op_sel:[0,0,0] op_sel_hi:[1,0,1]")
                for r, k in work:
                    d = ACC + 16 * p + 4 * r + 2 * k
                    a(f"v_cvt_pk_bf16_f32 v{ACC + 16 * p + 4 * r + k}, v{d}, v{d + 1}")
                for r in (r0, r0 + 1):
                    o = v(ACC + 16 * p + 4 * r, 2)
                    if p < 2: a(f"buffer_store_dwordx2 {o}, v{42 + r}, {sWS}, {sU[5] if p == 0 else sU[6]} offen sc1")
                    else: a(f"buffer_store_dwordx2 {o}, v{46 + r}, {sWS}, {sU[7]} offen sc1")
        stok = a.vtok()
        if self.opt.get("pfs2", 0):
            a(f"s_lshl_b32 {T[3]}, s2, 2", f"s_add_u32 {T[3]}, {T[3]}, {sW}", f"s_lshl_b32 {T[3]}, {T[3]}, 13", f"s_add_u32 {T[4]}, {T[3]}, 4096")
            for i in range(4): a(f"buffer_load_dwordx4 v[244:247], {vL16}, {sWSP}, {T[3 + (i >> 1)]} offen offset:{1024 * (i & 1)}")
        self.flag_store(sU[8], stok)
        self.stamp("qkv_pub")
        self.attn_addresses()

    def ln_finish(self, chains, inv_n):
        a = self.a
        for s1, s2, d in chains: a(f"v_mul_f32 v{s1}, {f2u(inv_n)}, v{s1}", f"v_mul_f32 v{s2}, {f2u(inv_n)}, v{s2}")
        for s1, s2, d in chains: a(f"v_fma_f32 v{s2}, -v{s1}, v{s1}, v{s2}")
        for s1, s2, d in chains: a(f"v_max_f32 v{s2}, 0, v{s2}")
        for s1, s2, d in chains: a(f"v_add_f32 v{s2}, {f2u(1e-5)}, v{s2}")
        for s1, s2, d in chains: a(f"v_rsq_f32 v{d}, v{s2}")
        for s1, s2, d in chains: a(f"v_mul_f32_e64 v{d + 1}, -v{s1}, v{d}")

    def const_fill(self, t=8):
        L = [f"v_and_b32 v{t}, 27, {vLANE}", f"v_cmp_eq_u32 vcc, 1, v{t}", f"v_mov_b32 v{t + 1}, {sONES}",
             f"v_cndmask_b32 v{t + 4}, v3, v{t + 1}, vcc", f"v_mov_b32 v{t + 5}, v{t + 4}", f"v_mov_b32 v{t + 6}, v{t + 4}", f"v_mov_b32 v{t + 7}, v{t + 4}",
             f"s_lshl_b32 {T[3]}, {sW}, 12", f"s_add_u32 {T[3]}, {T[3]}, {LC + 2048}", f"v_add_u32 v{t + 1}, {T[3]}, {vL16}",
             f"ds_write_b128 v{t + 1}, {v(t + 4, 4)}", f"ds_write_b128 v{t + 1}, {v(t + 4, 4)} offset:1024"]
        return L

    S, OA, NM, QF, KB, VB = 64, 112, 144, 176, 184, 192
    vIDX, vSP0, vKA, vKB2, vVB, vVI, vWD0, vXR = 208, 209, 213, 214, 215, 216, 217, 240

    def attn_addresses(self):
        a = self.a
        a(f"v_and_b32 v8, 15, {vLANE}", f"v_lshrrev_b32 v9, 4, {vLANE}", "v_lshlrev_b32 v10, 12, v8", "v_lshl_add_u32 v10, v9, 4, v10",
          f"s_lshl_b32 {T[6]}, {sR0}, 12", f"s_lshl_b32 {T[7]}, {sW}, 7", f"s_add_u32 {T[6]}, {T[6]}, {T[7]}",
          f"v_add_u32 v{self.vSP0}, {T[6]}, v10")
        for tt in range(1, 4): a(f"v_add_u32 v{self.vSP0 + tt}, {tt * 65536}, v{self.vSP0}")
        a(f"v_mov_b32 v{self.vIDX}, 0xdddddddd", f"v_mov_b32 v{self.vKA}, {vL16}", f"v_add_u32 v{self.vKB2}, {LB}, {vL16}")
        a(f"v_lshrrev_b32 v10, 5, {vLANE}", "v_lshl_add_u32 v10, v10, 4, v8", "v_lshlrev_b32 v10, 4, v10",
          f"v_and_b32 v11, 31, {vLANE}", f"v_bfe_u32 v12, {vLANE}, 2, 2",
          "v_add_u32 v12, -1, v12", "v_cmp_gt_u32 vcc, 2, v12", "v_cndmask_b32_e64 v12, 0, 4, vcc",
          "v_and_b32 v13, 27, v11", "v_cmp_eq_u32 vcc, 16, v13", "v_cndmask_b32_e64 v13, 0, 1, vcc",
          "v_add_u32 v12, v12, v13", "v_lshlrev_b32 v12, 4, v12", f"v_add_u32 v12, {LC}, v12",
          "v_cmp_gt_u32 vcc, 16, v11", f"v_cndmask_b32 v{self.vVB}, v12, v10, vcc",
          f"v_mov_b32 v13, 0x4000", f"v_cndmask_b32 v{self.vVI}, v3, v13, vcc")
        self.w128_addresses(self.vWD0, 16)
        self.win_addresses()
        a(f"s_lshl_b32 {T[5]}, {sHEAD}, 17", f"s_lshl_b32 {sU[1]}, {sW}, 12", f"s_add_u32 {T[5]}, {T[5]}, {sU[1]}", f"s_add_u32 {T[5]}, {T[5]}, {WS_KV}")
        for t in range(8):
            a(f"s_add_u32 {T[6]}, {sJ}, {t}", f"s_and_b32 {T[6]}, {T[6]}, 7", f"s_lshl_b32 {T[6]}, {T[6]}, 14", f"s_add_u32 {sROT[t]}, {T[6]}, {T[5]}")
        a(f"s_add_u32 {sSPR}, {sRB8}, {sJ}")
        if self.opt.get("s5prog", 0): a(f"s_and_b32 {sSPR}, {sJ}, 6")
        spr = self.opt.get("sprot", 4)
        if spr == 1: a(f"s_mov_b32 {sSPR}, {sCB}")
        if spr == 2: a(f"s_add_u32 {sSPR}, {sCB}, {sRB8}")
        if spr == 3: a(f"s_and_b32 {sSPR}, {sCB}, 3", f"s_lshl_b32 {sSPR}, {sSPR}, 1")
        if spr == 5: a(f"s_and_b32 {T[6]}, {sCB}, 4", f"s_add_u32 {sSPR}, {sSPR}, {T[6]}")
        if spr == 6: a(f"s_and_b32 {T[6]}, {sCB}, 4", f"s_add_u32 {sSPR}, {sJ}, {T[6]}")
        if spr == 7: a(f"s_and_b32 {T[6]}, {sCB}, 4", f"s_lshr_b32 {sSPR}, {sJ}, 1", f"s_add_u32 {sSPR}, {sSPR}, {T[6]}")
        if spr == 8: a(f"s_and_b32 {T[6]}, {sCB}, 5", f"s_mov_b32 {sSPR}, {T[6]}")
        if spr == 9: a(f"s_mov_b32 {sSPR}, 0")
        if spr == 4: a(f"s_lshr_b32 {sSPR}, {sCB}, 2", f"s_lshl_b32 {sSPR}, {sSPR}, 2")
        if self.opt.get("pfs2", 0) or self.opt.get("lpf", 0): a(f"s_mov_b32 {sSPR}, 0")
        for t in range(8):
            a(f"s_add_u32 {T[6]}, {sSPR}, {t}", f"s_and_b32 {T[6]}, {T[6]}, 7", f"s_lshl_b32 {sU[4 + t]}, {T[6]}, 9")
        a(f"v_lshrrev_b32 v226, 3, {vLANE}", f"s_lshl_b32 {T[6]}, {sCB}, 3", f"s_add_u32 {T[6]}, {T[6]}, {sR0}", f"v_add_u32 v226, {T[6]}, v226",
          "v_lshlrev_b32 v226, 12, v226", f"v_and_b32 v8, 7, {vLANE}", "v_lshl_add_u32 v226, v8, 4, v226",
          f"s_lshl_b32 {T[6]}, {sW}, 7", f"v_add_u32 v226, {T[6]}, v226")
        a(f"v_and_b32 v8, 15, {vLANE}", f"v_lshrrev_b32 v9, 4, {vLANE}", "v_lshlrev_b32 v8, 10, v8", "v_lshl_add_u32 v62, v9, 3, v8")
        a(f"v_and_b32 v10, 15, {vLANE}", f"v_bfe_u32 v11, {vLANE}, 4, 1", f"v_lshrrev_b32 v12, 5, {vLANE}",
          "v_lshlrev_b32 v10, 4, v10", "v_lshl_add_u32 v10, v11, 14, v10", "v_lshl_add_u32 v227, v12, 3, v10")
        for r in range(self.NM, self.NM + 0): pass

    def w128_addresses(self, r, t0=28):
        a = self.a
        p, q, u, x, y = ("v%d" % (t0 + i) for i in range(5))
        a(f"v_lshrrev_b32 {p}, 3, {vLANE}", f"v_and_b32 {q}, 7, {vLANE}", f"v_bfe_u32 {u}, {vLANE}, 4, 1",
          f"v_lshrrev_b32 {x}, 1, {q}", f"v_xor_b32 {x}, {x}, {u}", f"v_and_b32 {y}, 1, {q}", f"v_lshl_or_b32 {x}, {x}, 1, {y}",
          f"v_lshlrev_b32 {x}, 4, {x}", f"v_lshl_add_u32 {x}, {p}, 10, {x}",
          f"s_lshl_b32 {T[6]}, {sCB}, 7", f"v_add_u32 v{r}, {T[6]}, {x}", f"v_xor_b32 v{r + 1}, 64, v{r}",
          f"v_add_u32 v{r + 1}, {7 * 1024}, v{r + 1}", f"v_add_u32 v{r + 2}, {14 * 1024}, v{r}", f"v_add_u32 v{r + 3}, {14 * 1024}, v{r + 1}")

    def w128_dma(self, r, srd, pos, lds, nsteps):
        L = [f"s_lshr_b32 {T[4]}, {pos}, 1", f"s_add_u32 {T[4]}, {T[4]}, {sU[4]}"]
        n = nsteps // 2
        if n & (n - 1) == 0: L.append(f"s_and_b32 {T[4]}, {T[4]}, {n - 1}")
        else: L += [f"s_cmp_ge_u32 {T[4]}, {n}", f"s_cselect_b32 {T[7]}, {n}, 0", f"s_sub_u32 {T[4]}, {T[4]}, {T[7]}"]
        L += [f"s_lshl_b32 {T[4]}, {T[4]}, 1", f"s_and_b32 {T[7]}, {pos}, 1", f"s_add_u32 {T[4]}, {T[4]}, {T[7]}", f"s_lshl_b32 {T[4]}, {T[4]}, 15",
              f"s_mov_b32 m0, {lds}"]
        return L, [f"buffer_load_dwordx4 v{r + i}, {srd}, {T[4]} offen offset:{1024 * i} lds" for i in range(4)]

    def stage_base(self, t): return LA + 16384 * t if t < 4 else LB + 16384 * (t - 4)

    def kv_dma(self, t):
        L = [([f"s_add_u32 m0, {sU[1]}, {self.stage_base(t)}"] if i == 0 else [],
              f"buffer_load_dwordx4 {vL16}, {sWS}, {sROT[t]} offen offset:{1024 * i} sc1 lds") for i in range(4)]
        return L

    def phase_attn(self):
        a = self.a
        S, OA, NM, QF, KB, VB = self.S, self.OA, self.NM, self.QF, self.KB, self.VB
        a(f"s_lshl_b32 {T[0]}, {sW}, 5", f"s_add_u32 {T[0]}, {T[0]}, {sHEAD}", f"s_lshl_b32 {T[0]}, {T[0]}, 7", f"s_add_u32 {T[0]}, {T[0]}, {WS_F1}",
          f"s_lshl_b32 {T[1]}, {sHEAD}, 16", f"s_lshl_b32 {T[2]}, {sJ}, 13", f"s_add_u32 {T[1]}, {T[1]}, {T[2]}",
          f"s_lshl_b32 {T[2]}, {sW}, 11", f"s_add_u32 {T[1]}, {T[1]}, {T[2]}", f"s_add_u32 {T[1]}, {T[1]}, {WS_Q}",
          )
        for r in range(OA, OA + 32): a(f"v_mov_b32 v{r}, 0")
        a(f"s_lshr_b32 {P[0]}, {sHEAD}, 1", f"s_lshl_b32 {P[0]}, {P[0]}, 10", f"s_and_b32 {P[1]}, {sHEAD}, 1", f"s_lshl_b32 {P[1]}, {P[1]}, 9",
          f"s_add_u32 {P[0]}, {P[0]}, {P[1]}", f"s_lshl_b32 {P[1]}, {sJ}, 18", f"s_add_u32 {P[0]}, {P[0]}, {P[1]}",
          f"s_lshl_b32 {P[1]}, {sW}, 16", f"s_add_u32 {P[0]}, {P[0]}, {P[1]}", f"s_add_u32 {P[0]}, {P[0]}, {WS_O}", f"s_add_u32 {P[1]}, {P[0]}, 0x8000",
          f"s_lshl_b32 {P[2]}, {sJ}, 2", f"s_add_u32 {P[2]}, {P[2]}, {sW}", f"s_lshl_b32 {P[2]}, {P[2]}, 12",
          f"s_lshl_b32 {P[3]}, {sHEAD}, 7", f"s_add_u32 {P[2]}, {P[2]}, {P[3]}", f"s_add_u32 {P[2]}, {P[2]}, {WS_F2}",
          f"s_lshl_b32 {P[3]}, {sRH}, 15", f"s_lshl_b32 {P[4]}, {sR0}, 10", f"s_add_u32 {P[3]}, {P[3]}, {P[4]}",
          f"s_lshl_b32 {P[4]}, {sCB}, 7", f"s_add_u32 {P[3]}, {P[3]}, {P[4]}", f"s_lshl_b32 {P[4]}, {sCH}, 6", f"s_add_u32 {P[3]}, {P[3]}, {P[4]}",
          f"s_add_u32 {P[4]}, {P[3]}, 0x4000")
        self.w128_read_base(28, 2)
        wolate = self.opt.get("wolate", 1)
        if wolate: a(f"v_add_u32 v28, {LB}, v28", f"v_add_u32 v29, {LB}, v29")
        L, E, F = a.label("s1"), a.label("s1own"), a.label("s1all")
        a(f"s_mov_b32 {sPOLL}, 0x40000", f"s_lshl_b32 {T[2]}, 1, {sJ}", f"{L}:", f"buffer_load_dwordx2 v[8:9], {vFP8}, {sWS}, {T[0]} offen sc1")
        a.wait(vm=a.vm, force=True)
        a(f"v_cmp_ne_u64 vcc, {sTAG}, v[8:9]", f"s_sub_u32 {sPOLL}, {sPOLL}, 1", f"s_cbranch_scc1 {E}",
          f"s_and_b32 {T[3]}, vcc_lo, {T[2]}", f"s_cbranch_scc1 {L}", f"{E}:", "s_mov_b64 s[60:61], vcc")
        self.stamp("s1")
        for q in range(2):
            a(f"buffer_load_dwordx4 {v(QF + 4 * q, 4)}, {vL16}, {sWS}, {T[1]} offen offset:{1024 * q} sc1")
        kvtok = {}
        def issue(items):
            for pre, ins in items: a(*pre, ins) if pre else a(ins)
        issue(self.kv_dma(0)); kvtok[0] = a.vtok()
        a(f"s_and_b32 {sU[3]}, s60, 0xff", f"s_mov_b32 {sU[2]}, {T[0]}")
        def remote_check(t0, t1):
            def f():
                if self.opt.get("norem"): return
                self.mask_check(t0, t1, sJ, sU[2], sU[3], 8)
            return f
        if self.opt.get("ahead"): a(f"buffer_load_dwordx4 v[228:231], v226, {sWSP}, {sU[4]} offen")
        a.wait(vm=kvtok[0], lg=a.lg)
        self.barrier()
        def kread(kt):
            t, k = kt >> 3, kt & 7
            base = self.vKA if t < 4 else self.vKB2
            return f"ds_read_b128 {v(KB + 4 * (kt & 1), 4)}, v{base} offset:{16384 * (t & 3) + (k >> 1) * 4096 + (k & 1) * 1024}"
        def vread(kt, hi):
            k = kt & 7
            return f"ds_read_b128 {v(VB + 8 * (kt & 1) + 4 * hi, 4)}, v{self.vVB} offset:{(k >> 1) * 4096 + 2048 + (k & 1) * 1024 + 512 * hi}"
        def qk(n, c=None):
            kt, q = n >> 1, n & 1
            return f"v_mfma_f32_32x32x16_bf16 {v(S + 16 * (n % 3), 16)}, {v(KB + 4 * (kt & 1), 4)}, {v(QF + 4 * q, 4)}, {c if c else v(NM + 16 * q, 16)}"
        def pv(n, hi):
            kt, q = n >> 1, n & 1
            return f"v_smfmac_f32_32x32x32_bf16 {v(OA + 16 * q, 16)}, {v(VB + 8 * (kt & 1) + 4 * hi, 4)}, {v(S + 16 * (n % 3) + 8 * hi, 8)}, v{self.vIDX}"
        a(kread(0), kread(1), vread(0, 0), vread(0, 1))
        a.wait(lg=a.lg)
        a(qk(0, "0"), qk(1, "0"))
        for q in range(2):
            b, m = S + 16 * q, 8 + 2 * q
            a(f"v_max3_f32 v{m}, v{b}, v{b + 1}, v{b + 2}")
            for k in range(3, 15, 2): a(f"v_max3_f32 v{m}, v{m}, v{b + k}, v{b + k + 1}")
            a(f"v_max_f32 v{m}, v{m}, v{b + 15}", f"v_mov_b32 v{m + 1}, v{m}")
        for q in range(2): a(f"v_permlane32_swap_b32 v{8 + 2 * q}, v{9 + 2 * q}")
        for q in range(2):
            m = 8 + 2 * q
            a(f"v_max_f32 v{m}, v{m}, v{m + 1}", f"v_sub_f32 v{m}, 0, v{m}")
            for r in range(0, 16, 2): a(f"v_pk_mov_b32 {v(NM + 16 * q + r, 2)}, {v(m, 2)}, {v(m, 2)} op_sel:[0,0]")
            a(qk(q))
        self.stamp("attn_start")
        if self.stamps: a("s_memtime s[100:101]", "s_waitcnt lgkmcnt(0)", "s_mov_b32 s99, s100")
        wotok = [-1]
        wo = []
        FREE0 = "free"
        for g in range(4):
            a(f"s_lshl_b32 {T[4]}, {sW}, 1", f"s_add_u32 {T[4]}, {T[4]}, {g >> 1}", f"s_add_u32 {T[4]}, {T[4]}, {sCB}", f"s_and_b32 {T[4]}, {T[4]}, 7",
              f"s_lshl_b32 {T[4]}, {T[4]}, 16", f"s_add_u32 {T[g]}, {T[4]}, {(g & 1) * 32768}")
            ins = [f"buffer_load_dwordx4 v{self.vWD0 + i}, {sWO}, {T[g]} offen offset:{1024 * i} lds" for i in range(4)]
            wo += [([f"s_lshl_b32 {sU[3]}, {sW}, 14", f"s_add_u32 m0, {sU[3]}, {(LB if wolate else LA) + g * 4096}"], ins[0]), ([], ins[1]), ([], ins[2]), ([], ins[3])]
        a(f"s_lshl_b32 {T[6]}, {sHEAD}, 2", f"s_add_u32 {T[6]}, {T[6]}, {sW}", f"s_mul_i32 {T[6]}, {T[6]}, 11008")
        pfw = [([f"s_add_u32 {T[6]}, {T[6]}, 4096"] if i and i % 4 == 0 else [],
                f"buffer_load_dwordx4 v[228:231], {vL16}, {sWIN}, {T[6]} offen offset:{(i % 4) * 1024}") for i in range(11)]
        if not self.opt.get("pfw"): pfw = []
        a(f"s_mov_b32 {T[7]}, {sU[4]}", f"s_mov_b32 {sU[4]}, {sCB}")
        w2c = self.win_dma(1, 28, 1, (T[4], T[5], T[6], sU[0]))
        self.emit(w2c[0][:-1]); a(f"s_mov_b32 {T[4]}, m0", f"s_mov_b32 {sU[4]}, {T[7]}")
        pfw += [([f"s_mov_b32 m0, {T[4]}"], w2c[0][-1]), ([], w2c[1][-1]), ([], w2c[2][-1])]
        if wolate:
            wo_late, wo = wo, [FREE0] * 16
        pf2 = []
        if self.opt.get("pf2", 1):
            a(f"s_lshl_b32 {T[5]}, s2, 2", f"s_add_u32 {T[5]}, {T[5]}, {sW}", f"s_mul_i32 {T[6]}, {T[5]}, 1376", f"s_mul_i32 {T[7]}, {T[5]}, 688",
              f"s_lshl_b32 {T[5]}, {T[5]}, 9",
              f"v_min_u32 v50, 42, {vLANE}", "v_lshlrev_b32 v50, 4, v50", f"v_min_u32 v51, 21, {vLANE}", "v_lshlrev_b32 v51, 4, v51",
              f"v_min_u32 v49, 31, {vLANE}", "v_lshlrev_b32 v49, 4, v49")
            J = "v[228:231]"
            pf2 = [([], f"buffer_load_dwordx4 {J}, v49, {sWO}, {T[5]} offen"), ([], f"buffer_load_dwordx4 {J}, {vL16}, {sWIN}, {T[6]} offen"),
                   ([], f"buffer_load_dwordx4 {J}, v51, {sWIN}, {T[6]} offen offset:1024"), ([], f"buffer_load_dwordx4 {J}, v50, {sWOUT}, {T[7]} offen")]
        if self.opt.get("pfb", 1):
            a(f"v_lshlrev_b32 v234, 6, {vLANE}")
            pf4 = [([], f"buffer_load_dword v228, v234, {sBSP}, 0 offen")]
            if self.opt.get("pfb", 1) >= 2:
                a(f"v_min_u32 v233, 9, {vLANE}", "v_lshlrev_b32 v233, 21, v233", "v_add_u32 v233, 0x700000, v233")
                pf4.append(([], f"buffer_load_dword v228, v233, {sWS}, 0 offen"))
            if self.opt.get("pfb", 1) >= 3:
                pf4.append(([], f"buffer_load_dword v228, off, {sOUT}, 0"))
            pf4 += ["free"] * (4 - len(pf4))
        else:
            pf4 = []
        if self.opt.get("pfs2", 0) == 1:
            pre0 = [f"s_lshl_b32 {sU[0]}, s2, 2", f"s_add_u32 {sU[0]}, {sU[0]}, {sW}", f"s_lshl_b32 {sU[0]}, {sU[0]}, 13"]
            pf3 = [(pre0 if i == 0 else [f"s_add_u32 {sU[0]}, {sU[0]}, 4096"] if i == 2 else [],
                    f"buffer_load_dwordx4 v[228:231], {vL16}, {sWSP}, {sU[0]} offen offset:{2048 + 1024 * (i & 1)}") for i in range(4)]
        else:
            pf3 = []
        post = {}
        slots = []
        spl = [([], f"buffer_load_dwordx4 {ar(((2 * t + sub) * 4 + tt) * 4, 4)}, v{self.vSP0 + tt}, {sWSP}, {sU[4 + t]} offen offset:{64 * sub}")
               for t in range(8) for sub in range(2) for tt in range(4)]
        lag = self.opt.get("splag", 0)
        if lag:
            first = [x for i, x in enumerate(spl) if (i >> 2) & 1 == 0]
            second = [x for i, x in enumerate(spl) if (i >> 2) & 1 == 1]
            spl = first[:lag]
            for i in range(lag, 32): spl += [first[i], second[i - lag]]
            spl += second[32 - lag:]
        if self.opt.get("nosp"): spl = []
        if self.opt.get("sp_eff"):
            spl = [([], f"buffer_load_dwordx4 {ar(k * 4, 4)}, v226, {sWSP}, {sU[4 + (k >> 3)]} offen offset:{(k & 7) * 512}") for k in range(64)]
            if self.opt.get("sp_eff") == 2:
                a(f"v_and_b32 v226, 0x3ffff, v226")
        slots = [None] * 128
        kv1 = self.kv_dma(1); kv1[0] = ([remote_check(1, 3)] + kv1[0][0], kv1[0][1])
        post[kv1[-1][1]] = lambda: kvtok.__setitem__(1, a.vtok())
        FREE = FREE0
        fewbar = self.opt.get("fewbar", 0)
        for t in range(8):
            kv = []
            if t < 6:
                kv = self.kv_dma(t + 2); post[kv[-1][1]] = (lambda t=t: kvtok.__setitem__(t + 2, a.vtok()))
                if t == 1: kv[0] = ([remote_check(3, 8)] + kv[0][0], kv[0][1])
            if t == 0:
                st = [None, None] + kv1 + kv + [pfw.pop(0) for _ in range(len(pfw))]
                st += [FREE] * (16 - len(st))
            else:
                if t < 6:
                    ex = pf2 if t == self.opt.get("pf2at", 2) and pf2 else pf3 if t == self.opt.get("pf3at", 1) and pf3 else pf4 if t == 3 and pf4 else [FREE] * 4
                    oth = [x for pair in zip(kv, ex) for x in pair]
                else:
                    oth = [wo.pop(0) for _ in range(8)]
                st = [x for pair in zip(oth, [FREE] * 8) for x in pair]
            slots[16 * t:16 * t + 16] = st
        lpf = self.opt.get("lpf", 0)
        if lpf:
            a(f"s_lshl_b32 {P[5]}, s2, 2", f"s_add_u32 {P[5]}, {P[5]}, {sW}", f"s_lshl_b32 {P[5]}, {P[5]}, 13", f"v_add_u32 v232, 4096, {vL16}")
            pf = [([], f"buffer_load_dwordx4 v[228:231], {vL16 if r == 0 else 'v232'}, {sWSP}, {P[5]} offen offset:{1024 * q}") for q in range(4) for r in range(2)]
            start = self.opt.get("lpfstart", 26)
            for i in range(start):
                if slots[i] is FREE: slots[i] = pf.pop(0) if pf else None
            assert not pf, len(pf)
        if fewbar:
            def kvslots(t): return [i for i, x in enumerate(slots) if x and x is not FREE and f"{sROT[t]} offen" in x[1] and "sc1 lds" in x[1]]
            kvi = {t: [slots[i] for i in kvslots(t)] for t in range(3, 8)}
            for t in range(3, 8):
                for i in kvslots(t): slots[i] = FREE
            plan = {3: [16 + 2 * i for i in range(4)], 4: [32 + 2 * i for i in range(4)], 5: [40 + 2 * i for i in range(4)],
                    6: [64 + 2 * i for i in range(4)], 7: [72 + 2 * i for i in range(4)]}
            for t in range(3, 8):
                for i, x in zip(plan[t], kvi[t]):
                    if slots[i] is not FREE and slots[i] is not None:
                        j = next(k for k in range(i + 1, 128) if slots[k] is FREE); slots[j] = slots[i]
                    slots[i] = x
        if self.opt.get("kvearly", 0):
            kvs = [self.kv_dma(t) for t in range(2, 8)]
            for t, kv in zip(range(2, 8), kvs): post[kv[-1][1]] = (lambda t=t: kvtok.__setitem__(t, a.vtok()))
            w2cs = [x for x in slots[:16] if x and x is not FREE and str(sWIN) in x[1]]
            wos = [x for x in slots if x and x is not FREE and str(sWO) in x[1] and " lds" in x[1]]
            pre0 = [f"s_lshl_b32 {sU[2]}, s2, 2", f"s_add_u32 {sU[2]}, {sU[2]}, {sW}", f"s_lshl_b32 {sU[2]}, {sU[2]}, 13"]
            pfs = [(pre0 if i == 0 else [f"s_add_u32 {sU[2]}, {sU[2]}, 4096"] if i == 4 else [],
                    f"buffer_load_dwordx4 v[228:231], {vL16}, {sWSP}, {sU[2]} offen offset:{1024 * (i & 3)}") for i in range(8)]
            if self.opt.get("nopfs"): pfs = []
            head = [None, None] + kv1 + [x for kv in kvs for x in kv] + w2cs + pf2 + pfs
            q0 = self.opt.get("spstart", 50)
            assert len(head) <= q0
            slots = head + [None] * (q0 - len(head)) + [FREE] * (128 - q0)
            w0 = 128 - 2 * len(wos) - self.opt.get("wogap", 4)
            for i, x in enumerate(wos): slots[w0 + 2 * i] = x
        fr = [i for i, x in enumerate(slots) if x is FREE]
        for i in fr: slots[i] = None
        if self.opt.get("nowo"): slots = [x if not (x and str(sWO) in x[1]) else None for x in slots]; wotok[0] = a.vtok()
        if self.opt.get("nokv"):
            for t in range(1, 8): kvtok[t] = a.vtok()
            slots = [x if not (x and "sc1 lds" in x[1]) else None for x in slots]
        extra2 = {}
        for k, it in enumerate(spl):
            i = fr[(k * len(fr)) // len(spl)]
            if slots[i] is None: slots[i] = it
            else: extra2.setdefault(i, []).append(it[1])
        assert not wo and not pfw, (len(wo), len(pfw))
        last_wo = ([x for x in slots if x and str(sWO) in x[1]] or [(0, "none")])[-1][1]
        post[last_wo] = lambda: wotok.__setitem__(0, a.vtok())
        def vm_slot(i):
            if i < len(slots) and slots[i]:
                a(slots[i][1])
                if slots[i][1] in post: post[slots[i][1]]()
                for x in extra2.get(i, []): a(x)
        def vm_pre(i):
            if i < len(slots) and slots[i]: self.emit(slots[i][0])
        ac = self.opt.get("ac", 1)
        def lds_wait(kt):
            t = kt >> 3
            if kt & 7 == 5 and kt < 56 and fewbar:
                if t in (0, 1, 3, 5):
                    a.wait(vm=kvtok[1 if t == 0 else t + 2], lg=a.lg); self.barrier()
                else:
                    a.wait(lg=a.lg)
            elif kt & 7 == 5 and kt < 56:
                a.wait(vm=kvtok[(kt >> 3) + 1] if not self.opt.get("nokvw") else None, lg=a.lg)
                if not self.opt.get("nobar"): self.barrier()
            else:
                a.wait(lg=a.lg)
        vm_pre(0)
        for n in range(128):
            kt, q = n >> 1, n & 1
            b = S + 16 * (n % 3)
            E = lambda lo, hi: [a(f"v_exp_f32 v{b + r}, v{b + r}") for r in range(lo, hi)]
            E(0, 2)
            if n > 0: a(pv(n - 1, 1))
            if q == 0:
                if kt + 2 < 64: a(kread(kt + 2))
                if (kt + 1) & 7 == 0 and kt + 1 < 64:
                    for _ in range(3 if kt + 1 == 32 else 1): a(f"v_add_u32 v{self.vVB}, v{self.vVB}, v{self.vVI}")
            else:
                vm_slot(2 * kt)
                if not ac: vm_pre(2 * kt + 1)
            E(2, 7)
            if n + 2 < 128: a(qk(n + 2))
            if q == 0:
                if kt + 1 < 64: a(vread(kt + 1, 0))
            elif ac:
                lds_wait(kt); vm_pre(2 * kt + 1)
            else:
                vm_slot(2 * kt + 1)
            E(7, 12)
            a(pv(n, 0))
            if q == 0:
                if kt + 1 < 64: a(vread(kt + 1, 1))
                if kt > 0: vm_pre(2 * kt)
            elif ac:
                vm_slot(2 * kt + 1)
            else:
                lds_wait(kt)
            if q == 1 and self.opt.get("sp_ds"): a(f"ds_read_b128 v[228:231], v{self.vKA} offset:{kt * 1024}")
            E(12, 16)
        a.wait(vm=None if wolate else wotok[0], lg=a.lg)
        a(pv(127, 1))
        self.barrier()
        self.stamp("attn_loop")
        if self.stamps: a("s_memtime s[100:101]", "s_waitcnt lgkmcnt(0)", "s_sub_u32 s99, s100, s99")
        for q in range(2):
            o = OA + 16 * q
            a(f"v_pk_add_f32 {v(8 + 4 * q, 2)}, {v(o, 2)}, {v(o + 2, 2)}", f"v_pk_add_f32 {v(10 + 4 * q, 2)}, {v(o + 4, 2)}, {v(o + 6, 2)}")
        for q in range(2): a(f"v_pk_add_f32 {v(8 + 4 * q, 2)}, {v(8 + 4 * q, 2)}, {v(10 + 4 * q, 2)}")
        a("v_add_f32 v8, v8, v9", "v_add_f32 v12, v12, v13", "v_add_f32 v8, v8, v12", f"v_max_f32 v9, v{OA + 8}, v{OA + 24}",
          f"v_add_f32 v10, v{OA + 8}, v{OA + 24}", "v_add_f32 v8, v8, v10",
          f"s_mov_b32 {T[6]}, 0x207", f"v_cmp_class_f32_e64 vcc, v8, {T[6]}",
          f"s_mov_b64 s[60:61], vcc", f"v_cmp_le_f32 vcc, {f2u(2.0 ** 64)}, v9", "s_or_b64 vcc, vcc, s[60:61]")
        if self.force_fallback: a("s_mov_b64 vcc, -1")
        a("s_cbranch_vccnz L_attn_slow", "L_attn_done:")
        for q in range(2): a(f"v_rcp_f32 v{8 + q}, v{OA + 16 * q + 8}")
        for q in range(2):
            o = OA + 16 * q
            for k in range(8): a(f"v_mul_f32 v{o + k}, v{o + k}, v{8 + q}")
            for k in range(4): a(f"v_cvt_pk_bf16_f32 v{192 + 4 * q + k}, v{o + 2 * k}, v{o + 2 * k + 1}")
            for hf in range(2):
                a(f"buffer_store_dwordx2 {v(192 + 4 * q + 2 * hf, 2)}, v227, {sWS}, {P[q]} offen offset:{256 * hf} sc1")
        rd = [f"ds_read_b64_tr_b16 {v(64 + (nt * 16 + p) * 4 + 2 * hf, 2)}, v{28 + nt} offset:{p * 4096 + hf * 512}"
              for p in range(16) for nt in range(2) for hf in range(2)]
        if wolate:
            otok = a.vtok()
            k = self.opt.get("wopre", 8)
            for pre, ins in wo_late[:k]: a(*pre, ins)
            self.flag_store(P[2], otok)
            self.stamp("attn_pub")
            for pre, ins in wo_late[k:]: a(*pre, ins)
            self.wo_tok, self.wo_rd = a.vtok(), rd
        else:
            k = self.opt.get("rdpre", 24)
            self.emit(rd[:k])
            self.flag_store(P[2])
            self.stamp("attn_pub")
            self.emit(rd[k:])
        for rt in range(2):
            for nt in range(2):
                a(f"buffer_load_dwordx2 {v(self.vXR + 4 * rt + 2 * nt, 2)}, v62, {sX}, {P[3 + rt]} offen offset:{32 * nt}")

    def w128_read_base(self, b, n, tmp=(64, 65, 66, 67), b1=None):
        a = self.a
        p, q, r, t = ("v%d" % x for x in tmp)
        a(f"v_lshrrev_b32 {p}, 4, {vLANE}", f"v_bfe_u32 {q}, {vLANE}, 2, 2", f"v_and_b32 {r}, 3, {vLANE}",
          f"v_lshl_add_u32 {t}, {p}, 3, {q}", f"v_lshlrev_b32 {t}, 7, {t}", f"v_lshl_add_u32 {t}, {r}, 3, {t}",
          f"v_lshrrev_b32 {q}, 1, {q}", f"v_and_b32 {p}, 1, {p}", f"v_lshl_or_b32 {q}, {p}, 1, {q}",
          f"s_lshl_b32 {T[3]}, {sCH}, 1", f"v_xor_b32 {q}, {T[3]}, {q}", f"v_lshl_add_u32 v{b}, {q}, 5, {t}")
        a(f"v_xor_b32 v{b1 if b1 else b + 1}, 32, v{b}")

    def attn_slow(self):
        a = self.a
        S, OA, NM, QF, KB, VB = self.S, self.OA, self.NM, self.QF, self.KB, self.VB
        a.vm_done = a.vm; a.lg_done = a.lg
        a("L_attn_slow:", "s_nop 15", f"s_lshl_b32 {sU[4]}, {sHEAD}, 17", f"s_add_u32 {sU[4]}, {sU[4]}, {WS_KV}",
          f"v_mov_b32 v8, 0xff800000", f"v_mov_b32 v10, 0xff800000", f"s_mov_b32 {sU[5]}, 0")
        def kaddr():
            a(f"s_lshr_b32 {sU[6]}, {sU[5]}, 1", f"s_lshl_b32 {sU[6]}, {sU[6]}, 12", f"s_and_b32 {sU[7]}, {sU[5]}, 1", f"s_lshl_b32 {sU[7]}, {sU[7]}, 10",
              f"s_add_u32 {sU[6]}, {sU[6]}, {sU[7]}", f"s_add_u32 {sU[6]}, {sU[6]}, {sU[4]}")
        a("L_slow_max:"); kaddr()
        a(f"buffer_load_dwordx4 {v(KB, 4)}, {vL16}, {sWS}, {sU[6]} offen sc1"); a.wait(vm=a.vm, force=True)
        for q in range(2):
            a(f"v_mfma_f32_32x32x16_bf16 {v(S + 16 * q, 16)}, {v(KB, 4)}, {v(QF + 4 * q, 4)}, 0")
        for q in range(2):
            b, m = S + 16 * q, 8 + 2 * q
            for k in range(0, 16, 2): a(f"v_max3_f32 v{m}, v{m}, v{b + k}, v{b + k + 1}")
        a(f"s_add_u32 {sU[5]}, {sU[5]}, 1", f"s_cmp_lt_u32 {sU[5]}, 64", "s_cbranch_scc1 L_slow_max")
        a("v_mov_b32 v9, v8", "v_mov_b32 v11, v10")
        for q in range(2): a(f"v_permlane32_swap_b32 v{8 + 2 * q}, v{9 + 2 * q}")
        for q in range(2):
            m = 8 + 2 * q
            a(f"v_max_f32 v{m}, v{m}, v{m + 1}", f"v_sub_f32 v{m}, 0, v{m}")
            for r in range(16): a(f"v_mov_b32 v{NM + 16 * q + r}, v{m}")
        for r in range(OA, OA + 32): a(f"v_mov_b32 v{r}, 0")
        a(f"v_and_b32 v8, 27, {vLANE}", "v_cmp_eq_u32 vcc, 16, v8", f"v_mov_b32 v9, {sONES}", "v_cndmask_b32 v9, v3, v9, vcc")
        for r in range(8): a(f"v_mov_b32 v{VB + r}, v9")
        a(f"v_and_b32 v8, 15, {vLANE}", f"v_lshrrev_b32 v10, 5, {vLANE}", "v_lshl_add_u32 v10, v10, 4, v8", "v_lshlrev_b32 v10, 4, v10",
          f"s_mov_b32 {sU[5]}, 0", "s_mov_b32 s60, 0x0000ffff", "s_mov_b32 s61, 0x0000ffff")
        a("L_slow_pv:"); kaddr()
        a(f"buffer_load_dwordx4 {v(KB, 4)}, {vL16}, {sWS}, {sU[6]} offen sc1", f"s_add_u32 {sU[6]}, {sU[6]}, 2048", "s_mov_b64 exec, s[60:61]",
          f"buffer_load_dwordx4 {v(VB, 4)}, v10, {sWS}, {sU[6]} offen sc1",
          f"buffer_load_dwordx4 {v(VB + 4, 4)}, v10, {sWS}, {sU[6]} offen offset:512 sc1", "s_mov_b64 exec, -1")
        a.wait(vm=a.vm, force=True)
        for q in range(2):
            a(f"v_mfma_f32_32x32x16_bf16 {v(S + 16 * q, 16)}, {v(KB, 4)}, {v(QF + 4 * q, 4)}, {v(NM + 16 * q, 16)}")
        for q in range(2):
            for r in range(16): a(f"v_exp_f32 v{S + 16 * q + r}, v{S + 16 * q + r}")
            for hi in range(2):
                a(f"v_smfmac_f32_32x32x32_bf16 {v(OA + 16 * q, 16)}, {v(VB + 4 * hi, 4)}, {v(S + 16 * q + 8 * hi, 8)}, v{self.vIDX}")
        a(f"s_add_u32 {sU[5]}, {sU[5]}, 1", f"s_cmp_lt_u32 {sU[5]}, 64", "s_nop 15", "s_cbranch_scc1 L_slow_pv", "s_nop 15", "s_branch L_attn_done")

    def rot_table(self, npairs, mul):
        a = self.a
        a(f"s_mul_i32 {sU[4]}, {sCB}, {mul}")

    @staticmethod
    def gpos(p): return LRED + 4096 * p if p < 16 else 4096 * (p - 16)

    def rot_index(self, dst, pos, npairs):
        L = [f"s_add_u32 {dst}, {sU[4]}, {pos}"]
        if npairs & (npairs - 1) == 0: L.append(f"s_and_b32 {dst}, {dst}, {npairs - 1}")
        else: L += [f"s_cmp_ge_u32 {dst}, {npairs}", f"s_cselect_b32 {T[7]}, {npairs}, 0", f"s_sub_u32 {dst}, {dst}, {T[7]}"]
        return L

    def act_dma(self, ws_off, steps, chunks, lds0, gpos=False):
        a = self.a
        a(f"s_lshr_b32 {T[0]}, {sR0}, 4", f"s_add_u32 {T[0]}, {T[0]}, {sW}", f"s_mul_i32 {T[0]}, {T[0]}, {steps * 1024}",
          f"s_add_u32 {sU[0]}, {T[0]}, {ws_off}", f"s_mul_i32 {T[1]}, {sW}, {1024 if gpos else steps * 1024}", f"s_add_u32 {sU[1]}, {T[1]}, {lds0}")
        toks = {}
        pre4 = self.opt.get("pre4", 1)
        if pre4:
            for q in range(4): a(*self.rot_index(P[2 + q], q, steps // 2), f"s_lshl_b32 {P[2 + q]}, {P[2 + q]}, 11", f"s_add_u32 {P[2 + q]}, {P[2 + q]}, {sU[0]}")
        def group(c):
            p0 = sum(chunks[:c]); L = []
            for k in range(chunks[c]):
                p = p0 + k
                it = []
                so = P[2 + (p >> 1)] if pre4 and p < 8 else T[2]
                if k % 2 == 0:
                    if so == T[2]:
                        it += self.rot_index(T[2], p >> 1, steps // 2)
                        it += [f"s_lshl_b32 {T[2]}, {T[2]}, 11", f"s_add_u32 {T[2]}, {T[2]}, {sU[0]}"]
                    if not gpos: it.append(f"s_add_u32 m0, {sU[1]}, {p * 1024}")
                if gpos: it.append(f"s_add_u32 m0, {sU[1]}, {self.gpos(p) - (k % 2) * 1024}")
                it.append(f"buffer_load_dwordx4 {vL16}, {sWS}, {so} offen offset:{(k % 2) * 1024} sc1 lds")
                L.append(it)
            L[-1].append(lambda: toks.__setitem__(c, a.vtok()))
            return L
        return group, toks

    def cluster_flag_off(self, dst, base, own, shift=8):
        a = self.a
        a(f"s_lshl_b32 {dst}, {sCLU}, {shift}", f"s_add_u32 {dst}, {dst}, {base}")
        if own: a(f"s_lshl_b32 {T[7]}, {sCB}, 3", f"s_add_u32 {dst}, {dst}, {T[7]}")

    def stats_publish(self, s, base):
        a = self.a
        a(f"v_permlane32_swap_b32 v{s}, v{s + 1}", f"v_permlane32_swap_b32 v{s + 2}, v{s + 3}",
          f"v_add_f32 v{s}, v{s}, v{s + 1}", f"v_add_f32 v{s + 2}, v{s + 2}, v{s + 3}",
          f"v_permlane16_swap_b32 v{s}, v{s + 2}", f"v_add_f32 v{s}, v{s}, v{s + 2}")
        a(f"s_lshl_b32 {T[4]}, {sCLU}, 13", f"s_add_u32 {T[4]}, {T[4]}, {base}", f"s_lshl_b32 {T[5]}, {sRH}, 7", f"s_add_u32 {T[4]}, {T[4]}, {T[5]}",
          f"s_lshl_b32 {T[5]}, {sCB}, 1", f"s_add_u32 {T[5]}, {T[5]}, {sCH}", f"s_lshl_b32 {T[5]}, {T[5]}, 9", f"s_add_u32 {T[4]}, {T[4]}, {T[5]}",
          f"buffer_store_dword v{s}, v61, {sWS}, {T[4]} offen sc1")

    def stats_load(self, base, r):
        a = self.a
        a(f"s_lshl_b32 {T[4]}, {sCLU}, 13", f"s_add_u32 {T[4]}, {T[4]}, {base}", f"s_lshl_b32 {T[5]}, {sRH}, 7", f"s_add_u32 {T[4]}, {T[4]}, {T[5]}",
          f"s_add_u32 {T[5]}, {T[4]}, 4096")
        for p in range(16):
            a(f"buffer_load_dword v{r + p}, v61, {sWS}, {T[4] if p < 8 else T[5]} offen offset:{(p % 8) * 512} sc1")
        return a.vtok()

    SGR = 64
    def stats_publish_tagged(self, s, base):
        a = self.a
        a(f"v_permlane32_swap_b32 v{s}, v{s + 1}", f"v_permlane32_swap_b32 v{s + 2}, v{s + 3}",
          f"v_add_f32 v{s}, v{s}, v{s + 1}", f"v_add_f32 v{s + 2}, v{s + 2}, v{s + 3}",
          f"v_permlane16_swap_b32 v{s}, v{s + 2}", f"v_add_f32 v{s}, v{s}, v{s + 2}", f"v_mov_b32 v{s + 1}, v{s}",
          f"v_mov_b32 v{s + 2}, v4", f"v_mov_b32 v{s + 3}, v5", f"v_permlane32_swap_b32 v{s}, v{s + 1}")
        a(f"s_lshl_b32 {T[4]}, {sCLU}, 14", f"s_add_u32 {T[4]}, {T[4]}, {base}", f"s_lshl_b32 {T[5]}, {sRH}, 13", f"s_add_u32 {T[4]}, {T[4]}, {T[5]}",
          f"s_lshl_b32 {T[5]}, {sCB}, 1", f"s_add_u32 {T[5]}, {T[5]}, {sCH}", f"s_lshl_b32 {T[5]}, {T[5]}, 9", f"s_add_u32 {T[4]}, {T[4]}, {T[5]}",
          "s_mov_b32 exec_hi, 0", f"buffer_store_dwordx4 {v(s, 4)}, {vL16}, {sWS}, {T[4]} offen sc1", "s_mov_b32 exec_hi, -1")

    def stats_tagged_loads(self, base, r):
        R = r if isinstance(r, (list, tuple)) else [r + 4 * p for p in range(8)]
        L = [[f"buffer_load_dwordx4 {v(R[p], 4)}, v61, {sWS}, {sU[3]} offen offset:{512 * p} sc1"] for p in range(8)]
        L[0] = [f"s_lshl_b32 {sU[3]}, {sCLU}, 14", f"s_add_u32 {sU[3]}, {sU[3]}, {base}", f"s_lshl_b32 {T[5]}, {sRH}, 13", f"s_add_u32 {sU[3]}, {sU[3]}, {T[5]}",
                f"v_and_b32 v61, 31, {vLANE}", "v_lshlrev_b32 v61, 4, v61", f"v_lshrrev_b32 v54, 5, {vLANE}", "v_lshl_add_u32 v61, v54, 12, v61"] + L[0]
        return L

    def stats_tagged_finish(self, base, r, inv_n, d):
        a = self.a
        L, E = a.label("st_retry"), a.label("st_ok")
        a(f"s_mov_b32 {sPOLL}, 0x40000", f"{L}:")
        a.wait(vm=a.vm, force=True)
        a(f"v_cmp_ne_u64 s[60:61], {sTAG}, {v(r + 2, 2)}")
        for p in range(1, 8): a(f"v_cmp_ne_u64 vcc, {sTAG}, {v(r + 4 * p + 2, 2)}", "s_or_b64 s[60:61], s[60:61], vcc")
        a("s_cmp_eq_u64 s[60:61], 0", f"s_cbranch_scc1 {E}", f"s_sub_u32 {sPOLL}, {sPOLL}, 1", f"s_cbranch_scc1 {E}")
        a.cond_begin()
        for it in self.stats_tagged_loads(base, r)[0][-1:]: a(it)
        for it in self.stats_tagged_loads(base, r)[1:]: self.emit(it)
        a.cond_end()
        a(f"s_branch {L}", f"{E}:")
        a.vm_done = a.vm
        self.stats_sum(r, inv_n, d)

    def stats_sum(self, r, inv_n, d):
        a = self.a
        R = r if isinstance(r, (list, tuple)) else [r + 4 * p for p in range(8)]
        for st in (4, 2, 1):
            for k in range(st): a(f"v_pk_add_f32 {v(R[k], 2)}, {v(R[k], 2)}, {v(R[k + st], 2)}")
        r = R[0]
        a(f"v_mov_b32 v{r + 2}, v{r}", f"v_mov_b32 v{r + 3}, v{r + 1}",
          f"v_permlane32_swap_b32 v{r}, v{r + 2}", f"v_permlane32_swap_b32 v{r + 1}, v{r + 3}",
          f"v_pk_add_f32 {v(r, 2)}, {v(r, 2)}, {v(r + 2, 2)}")
        self.ln_finish([(r, r + 1, d)], inv_n)
        a(f"v_mov_b32 v{d + 2}, v{d}", f"v_mov_b32 v{d + 3}, v{d + 1}",
          f"v_permlane16_swap_b32 v{d}, v{d + 2}", f"v_permlane16_swap_b32 v{d + 1}, v{d + 3}")

    def stats_sum_items(self, R, inv_n):
        L = []
        for st in (4, 2, 1):
            for k in range(st): L += [f"v_add_f32 v{R[k] + e}, v{R[k] + e}, v{R[k + st] + e}" for e in range(2)]
        r, t = R[0], R[1]
        L += [f"v_mov_b32 v{t}, v{r}", f"v_mov_b32 v{t + 1}, v{r + 1}", f"v_permlane32_swap_b32 v{r}, v{t}", f"v_permlane32_swap_b32 v{r + 1}, v{t + 1}",
              f"v_add_f32 v{t}, v{r}, v{t}", f"v_add_f32 v{t + 1}, v{r + 1}, v{t + 1}",
              f"v_mul_f32 v{t}, {f2u(inv_n)}, v{t}", f"v_mul_f32 v{t + 1}, {f2u(inv_n)}, v{t + 1}", f"v_fma_f32 v{t + 1}, -v{t}, v{t}, v{t + 1}",
              f"v_max_f32 v{t + 1}, 0, v{t + 1}", f"v_add_f32 v{t + 1}, {f2u(1e-5)}, v{t + 1}", f"v_rsq_f32 v{r}, v{t + 1}", f"v_mul_f32_e64 v{r + 1}, -v{t}, v{r}",
              f"v_mov_b32 v{r + 2}, v{r}", f"v_mov_b32 v{r + 3}, v{r + 1}", f"v_permlane16_swap_b32 v{r}, v{r + 2}", f"v_permlane16_swap_b32 v{r + 1}, v{r + 3}"]
        return L

    STR2 = [216, 220, 224, 228, 232, 236, 52, 252]
    STR = 216
    def stats_load_items(self, base, r):
        L = []
        for p in range(16):
            it = []
            if p == 0:
                it += [f"s_lshl_b32 {T[4]}, {sCLU}, 13", f"s_add_u32 {T[4]}, {T[4]}, {base}", f"s_lshl_b32 {T[5]}, {sRH}, 7",
                       f"s_add_u32 {T[4]}, {T[4]}, {T[5]}", f"s_add_u32 {T[5]}, {T[4]}, 4096"]
            it.append(f"buffer_load_dword v{r + p}, v61, {sWS}, {T[4] if p < 8 else T[5]} offen offset:{(p % 8) * 512} sc1")
            L.append(it)
        return L

    def stats_finish(self, r, inv_n, d):
        a = self.a
        for st in (8, 4, 2):
            for k in range(0, st, 2): a(f"v_pk_add_f32 {v(r + k, 2)}, {v(r + k, 2)}, {v(r + st + k, 2)}")
        a(f"v_add_f32 v{r}, v{r}, v{r + 1}", f"v_mov_b32 v{r + 1}, v{r}", f"v_permlane32_swap_b32 v{r}, v{r + 1}")
        self.ln_finish([(r, r + 1, d)], inv_n)
        a(f"v_mov_b32 v{d + 2}, v{d}", f"v_mov_b32 v{d + 3}, v{d + 1}",
          f"v_permlane16_swap_b32 v{d}, v{d + 2}", f"v_permlane16_swap_b32 v{d + 1}, v{d + 3}")

    def win_addresses(self):
        a = self.a
        for i in range(3):
            a(f"v_add_u32 v16, {64 * i}, {vLANE}", "v_mul_u32_u24 v17, 171, v16", "v_lshrrev_b32 v17, 11, v17",
              "v_mul_u32_u24 v18, 12, v17", "v_sub_u32 v18, v16, v18", "v_bfe_u32 v19, v17, 3, 1", "v_lshlrev_b32 v19, 1, v19",
              "v_xor_b32 v18, v18, v19", "v_mul_u32_u24 v17, 2752, v17", "v_lshl_add_u32 v17, v18, 4, v17",
              f"v_add_u32 v{56 + i}, {-1024 * i}, v17")
        a(f"v_lshrrev_b32 v16, 4, {vLANE}", f"v_bfe_u32 v17, {vLANE}, 2, 2", f"v_and_b32 v18, 3, {vLANE}",
          "v_lshl_add_u32 v19, v16, 3, v17", "v_mul_u32_u24 v19, 192, v19", "v_lshl_add_u32 v19, v18, 3, v19",
          "v_and_b32 v17, 1, v16", f"v_xor_b32 v17, {sCH}, v17", "v_lshl_add_u32 v59, v17, 5, v19", "v_add_u32 v60, 49152, v59",
          f"v_and_b32 v17, 15, {vLANE}", "v_lshlrev_b32 v17, 2, v17", "v_and_b32 v18, 1, v16", "v_lshl_add_u32 v17, v18, 6, v17",
          "v_lshrrev_b32 v16, 1, v16", "v_lshl_add_u32 v61, v16, 8, v17")

    def win_dma(self, half, g0, per_wave, regs=None, wave=sW):
        r5, r6, r2, r7 = regs or (sU[5], sU[6], sU[2], sU[7])
        L = []
        for k in range(per_wave):
            for i in range(3):
                it = []
                if k == 0 and i == 0:
                    it += [f"s_lshl_b32 {r5}, {sT0}, 5", f"s_mul_i32 {r6}, {wave}, {per_wave}", f"s_lshl_b32 {r2}, {sU[4]}, 2",
                           f"s_add_u32 {r2}, {r2}, {r6}", f"s_mul_i32 {r6}, {r6}, 3072"]
                if i == 0:
                    it += [f"s_add_u32 {r7}, {r2}, {g0 + k}", f"s_and_b32 {r7}, {r7}, 31", f"s_mul_i32 {r7}, {r7}, {16 * 2752}",
                           f"s_add_u32 {r7}, {r7}, {r5}"]
                    if half: it.append(f"s_add_u32 {r7}, {r7}, 1376")
                    it.append(f"s_add_u32 m0, {r6}, {(g0 + k) * 3072}")
                it.append(f"buffer_load_dwordx4 v{56 + i}, {sWIN}, {r7} offen offset:{1024 * i} lds")
                L.append(it)
        return L

    def kloop(self, n, reads, mfmas, before={}, late={}, head=None, per=2, extra=None):
        a = self.a
        tok = {}
        for s in range(min(2, n)):
            if s in (head or {}): head[s]()
            self.emit(reads(s)); tok[s] = a.ltok()
        self.kl = getattr(self, "kl", -1) + 1
        for s in range(n):
            a.wait(lg=tok[s])
            if s in before: before[s]()
            if s % 4 == 0: self.stamp(f"k{self.kl}s{s}")
            ms = mfmas(s)
            fill = list(reads(s + 2)) + [lambda s=s: tok.__setitem__(s + 2, a.ltok())] if s + 2 < n else []
            if extra: fill += extra(s)
            lt = list(late.get(s, []))
            k = len(ms) - len(lt)
            assert k >= 1, (s, len(ms), len(lt))
            interleave(a, ms[:k], fill, per=per)
            for m, it in zip(ms[k:], lt):
                a(m); self.emit(it)

    def emit_all(self, items):
        for it in items: self.emit(it)

    def emit(self, items):
        for x in items: x() if callable(x) else self.a(x)

    def phase_wo(self):
        a = self.a
        ACC = 192
        a(f"s_mov_b32 {sU[4]}, {sCB if not self.opt.get('noarot') else 0}")
        fine = self.opt.get("fine", 1)
        group, toks = self.act_dma(WS_O, 16, [2, 2, 4, 4, 4] if fine else [4, 4, 4, 4], LB)
        self.cluster_flag_off(T[3], WS_F2, False, 12)
        a(f"s_lshl_b32 {T[4]}, {sRH}, 15", f"s_add_u32 {T[4]}, {T[4]}, {LB}", f"v_add_u32 v30, {T[4]}, {vL16}")
        n2 = 3
        ng = self.opt.get("w2s2", 4)
        Lp, Le = a.label("s2poll"), a.label("s2end")
        if self.opt.get("wolate", 1):
            done = a.vm_done
            a(f"s_cmp_eq_u32 {sW}, 0", f"s_cbranch_scc1 {Lp}", f"s_sub_u32 {T[5]}, {sW}, 1")
            a.cond_begin()
            if self.opt.get("w2first", 0): self.emit_all(self.win_dma(1, 0, ng, wave=T[5]))
            a.cond_end()
            a(f"{Lp}:")
            a.vm_done = done
            a.wait(vm=self.wo_tok)
            self.barrier()
            self.emit(self.wo_rd)
            Lq = a.label("s2poll")
            done = a.vm_done
            a(f"s_cmp_eq_u32 {sW}, 0", f"s_cbranch_scc1 {Lq}", f"s_sub_u32 {T[5]}, {sW}, 1")
            a.cond_begin()
            if not self.opt.get("w2first", 0): self.emit_all(self.win_dma(1, 0, ng, wave=T[5]))
            a(f"s_branch {Le}", f"{Lq}:")
            self.poll(vFP32, T[3], 52)
            a(f"{Le}:")
            a.cond_end()
            a.vm_done = done
            a.wait(lg=a.lg)
            self.barrier()
        else:
            a.wait(lg=a.lg)
            self.barrier()
            done = a.vm_done
            a(f"s_cmp_eq_u32 {sW}, 0", f"s_cbranch_scc1 {Lp}", f"s_sub_u32 {T[5]}, {sW}, 1")
            a.cond_begin()
            self.emit_all(self.win_dma(1, 0, ng, wave=T[5]))
            a(f"s_branch {Le}", f"{Lp}:")
            self.poll(vFP32, T[3], 52)
            a.cond_end()
            a(f"{Le}:")
            a.vm_done = done
            self.barrier()
        self.stamp("s2")
        for c in range(2 + fine): self.emit_all(group(c))
        def buf(s, rt): return (208 + (s % 4) * 8 + rt * 4)
        def reads(s): return [f"ds_read_b128 {v(buf(s, rt), 4)}, v30 offset:{(rt * 16 + s) * 1024}" for rt in range(2)]
        def mfmas(s):
            return [mfma16(ACC + (rt * 2 + nt) * 4, v(64 + (nt * 16 + s) * 4, 4), v(buf(s, rt), 4), v(32 + (rt * 2 + nt) * 4, 4) if s == 0 else None) for rt in range(2) for nt in range(2)]
        def w(c):
            def f():
                a.wait(vm=toks[c]); self.barrier()
            return f
        def head0():
            a.wait(vm=toks[0], lg=a.lg)
            for i in range(8): a(f"v_lshlrev_b32 v{32 + 2 * i}, 16, v{self.vXR + i}", f"v_and_b32 v{33 + 2 * i}, {sHIMASK}, v{self.vXR + i}")
            self.barrier()
        g2, g3 = group(2 + fine), group(3 + fine)
        pw = (28 - 3 * ng + 3) // 4
        w2 = self.win_dma(1, 28 - 4 * pw, pw)
        late = {0: g2[:2], 1: g2[2:], 2: g3[:2], 3: g3[2:]}
        for i in range(min(len(w2), self.opt.get("w2in", 12))): late[self.opt.get("w2at", 3) + i] = late.get(self.opt.get("w2at", 3) + i, []) + [w2.pop(0)]
        late[15] = late.get(15, []) + [[f"s_lshr_b32 {T[0]}, {sR0}, 4", f"s_lshl_b32 {T[1]}, {sRH}, 1", f"s_add_u32 {T[0]}, {T[0]}, {T[1]}", f"s_lshl_b32 {T[0]}, {T[0]}, 14"],
                                       [f"s_lshl_b32 {T[1]}, {sCB}, 1", f"s_add_u32 {T[1]}, {T[1]}, {sCH}", f"s_lshl_b32 {T[1]}, {T[1]}, 10", f"s_add_u32 {T[0]}, {T[0]}, {T[1]}"],
                                       [f"s_add_u32 {T[0]}, {T[0]}, {WS_H}", f"s_add_u32 {T[1]}, {T[0]}, 0x4000"]]
        self.kloop(16, reads, mfmas, {0: w(1), 2: w(2), 6: w(3), 10: w(4)} if fine else {2: w(1), 6: w(2), 10: w(3)}, late, {0: head0}, per=1)
        self.w2rest = w2
        self.stamp("wo_gemm")
        for i in range(4):
            for k in range(2): a(f"v_cvt_pk_bf16_f32 v{vH + 2 * i + k}, v{ACC + 4 * i + 2 * k}, v{ACC + 4 * i + 2 * k + 1}")
        for rt in range(2):
            for nt in range(2):
                a(f"buffer_store_dwordx2 {v(vH + 4 * rt + 2 * nt, 2)}, {vPAT}, {sWS}, {T[rt]} offen offset:{512 * nt} sc1")
        for k in range(4):
            for rt in range(2):
                h = f"v{vH + 4 * rt + k}"
                a(f"v_dot2_f32_bf16 v{32 + 2 * rt}, {h}, {sONES}, {'0' if k == 0 else 'v%d' % (32 + 2 * rt)}",
                  f"v_dot2_f32_bf16 v{33 + 2 * rt}, {h}, {h}, {'0' if k == 0 else 'v%d' % (33 + 2 * rt)}")
        self.stats_publish_tagged(32, WS_ST3)
        self.cluster_flag_off(T[0], WS_F3, True)
        self.flag_store_wg(T[0])
        self.stamp("wo_pub")

    HF, ACC2, ACC1, WB, CS = 64, 192, 216, 28, 240

    def win_reads(self, s, read_h):
        L = []
        base = "v59" if s < 8 else "v60"
        for m in range(3):
            for hf in range(2):
                L.append(f"ds_read_b64_tr_b16 {v(self.wbuf(s) + 4 * m + 2 * hf, 2)}, {base} offset:{(s & 7) * 6144 + hf * 768 + m * 64}")
            if m == 0 and read_h:
                L += [f"ds_read_b128 {v(self.HF + (rt * 16 + s) * 4, 4)}, v62 offset:{(rt * 16 + s) * 1024}" for rt in range(2)]
        return L

    def wbuf(self, s): return (28, 40, 16)[s % 3]

    def win_gemm(self, acc, before, head, read_h, late={}, cs=False, extra=None):
        HF = self.HF
        def mfmas(s):
            L = []
            for m in range(3):
                L += [mfma16(acc + (rt * 3 + m) * 4, v(self.wbuf(s) + 4 * m, 4), v(HF + (rt * 16 + s) * 4, 4), "0" if s == 0 else None) for rt in range(2)]
                if cs: L.append(mfma16(self.CS + 4 * m, v(self.wbuf(s) + 4 * m, 4), "v[252:255]", "0" if s == 0 else None))
            return L
        self.kloop(16, lambda s: self.win_reads(s, read_h), mfmas, before, late, head, per=3 if extra else 2, extra=extra)

    def colsum_pass(self, late={}, before={}):
        def mfmas(s): return [mfma16(self.CS + 4 * m, v(self.wbuf(s) + 4 * m, 4), "v[252:255]", "0" if s == 0 else None) for m in range(3)]
        self.kloop(16, lambda s: self.win_reads(s, False), mfmas, before, late, per=3)

    def gelu_block(self, acc, st, tiles):
        a = self.a
        CS = self.CS
        K1 = -2.0 * 1.4426950408889634 * 0.7978845608028654
        K2 = K1 * 0.044715
        a(f"s_mov_b32 s60, {f2u(K2)}", f"s_mov_b32 s61, {f2u(K2)}", f"v_mov_b32 v52, {f2u(K1)}", f"v_mov_b32 v53, {f2u(K1)}")
        for i in range(0, len(tiles), 2):
            prs = [(acc + (rt * 3 + m) * 4 + 2 * k, CS + 4 * m + 2 * k, st + 2 * rt) for rt, m in tiles[i:i + 2] for k in range(2)]
            tm = [40, 42, 44, 46]
            for (x, c, r), t in zip(prs, tm): a(f"v_pk_mul_f32 {v(t, 2)}, {v(c, 2)}, {v(r, 2)} op_sel:[0,1] op_sel_hi:[1,1]")
            for (x, c, r), t in zip(prs, tm): a(f"v_pk_fma_f32 {v(x, 2)}, {v(x, 2)}, {v(r, 2)}, {v(t, 2)} op_sel:[0,0,0] op_sel_hi:[1,0,1]")
            for (x, c, r), t in zip(prs, tm): a(f"v_pk_mul_f32 {v(t, 2)}, {v(x, 2)}, {v(x, 2)}")
            for (x, c, r), t in zip(prs, tm): a(f"v_pk_fma_f32 {v(t, 2)}, {v(t, 2)}, s[60:61], v[52:53]")
            for (x, c, r), t in zip(prs, tm): a(f"v_pk_mul_f32 {v(t, 2)}, {v(t, 2)}, {v(x, 2)}")
            for k in range(8): a(f"v_exp_f32 v{40 + k}, v{40 + k}")
            for (x, c, r), t in zip(prs, tm): a(f"v_pk_add_f32 {v(t, 2)}, {v(t, 2)}, v[32:33]")
            for k in range(8): a(f"v_rcp_f32 v{40 + k}, v{40 + k}")
            for (x, c, r), t in zip(prs, tm): a(f"v_pk_mul_f32 {v(x, 2)}, {v(x, 2)}, {v(t, 2)}")

    def phase_win(self):
        a = self.a
        HF, ACC2, ACC1, CS = self.HF, self.ACC2, self.ACC1, self.CS
        self.emit_all(self.w2rest)
        for r in range(252, 256): a(f"v_mov_b32 v{r}, {sONES}")
        a(f"s_lshl_b32 {T[4]}, {sRH}, 15", f"s_add_u32 {T[4]}, {T[4]}, {LB}", f"v_add_u32 v62, {T[4]}, {vL16}")
        fine = self.opt.get("fine", 1)
        group, toks = self.act_dma(WS_H, 16, [2, 2, 4, 4, 4] if fine else [4, 4, 4, 4], LB)
        self.cluster_flag_off(T[3], WS_F3, False)
        if self.w2rest:
            a.wait(vm=a.vm)
            self.barrier()
        ptok = [-1]
        self.colsum_pass({self.opt.get("p3at", 12): [self.poll_early(vFP8, T[3], 52) + [lambda: ptok.__setitem__(0, a.vtok())]]})
        self.stamp("cs2")
        self.poll_late(vFP8, T[3], 52, ptok[0])
        self.stamp("s3")
        for c in range(2 + fine): self.emit_all(group(c))
        def w(c):
            def f():
                a.wait(vm=toks[c]); self.barrier()
            return f
        g2, g3 = group(2 + fine), group(3 + fine)
        stl = self.stats_tagged_loads(WS_ST3, self.STR2)
        late = {0: g2[:2], 1: g2[2:], 2: g3[:2], 3: g3[2:]}
        for i in range(4): late[4 + i] = stl[2 * i:2 * i + 2]
        w1a = self.win_dma(0, 0, 3)
        for i in range(8): late[8 + i] = w1a[i:i + 1] if i < 7 else w1a[7:]
        stk = [-1]
        late[7][-1].append(lambda: stk.__setitem__(0, a.vtok()))
        ss = self.stats_sum_items(self.STR2, 1.0 / 512)
        def extra(s):
            if s < 12: return []
            n = (len(ss) + 15 - s) // (16 - s)
            return ([lambda: a.wait(vm=stk[0])] if s == 12 else []) + [ss.pop(0) for _ in range(n)]
        self.win_gemm(ACC2, {0: w(1), 2: w(2), 6: w(3), 10: w(4)} if fine else {2: w(1), 6: w(2), 10: w(3)}, {0: w(0)}, True, late, extra=extra)
        self.barrier()
        self.stamp("z2_gemm")
        w1tok = [a.vtok(), -1, -1]
        wb, wc = self.win_dma(0, 12, 3), self.win_dma(0, 24, 2)
        wb[-1].append(lambda: w1tok.__setitem__(1, a.vtok())); wc[-1].append(lambda: w1tok.__setitem__(2, a.vtok()))
        rest = wb + wc
        k = self.opt.get("w1pre", 9)
        self.emit_all(rest[:k]); rest = rest[k:]
        a("v_mov_b32 v34, v216", "v_mov_b32 v35, v217", "v_mov_b32 v36, v218", "v_mov_b32 v37, v219")
        for r in range(252, 256): a(f"v_mov_b32 v{r}, {sONES}")
        a("v_mov_b32 v32, 1.0", "v_mov_b32 v33, 1.0")
        T5 = [(0, 0), (1, 0), (0, 1), (1, 1)]
        self.gelu_block(ACC2, 34, T5 + [(0, 2), (1, 2)])
        for rt in range(2):
            x = ACC2 + rt * 12
            a(f"v_pk_add_f32 {v(40 + 4 * rt, 2)}, {v(x, 2)}, {v(x + 2, 2)}", f"v_pk_mul_f32 {v(42 + 4 * rt, 2)}, {v(x, 2)}, {v(x, 2)}")
            a(f"v_pk_fma_f32 {v(42 + 4 * rt, 2)}, {v(x + 2, 2)}, {v(x + 2, 2)}, {v(42 + 4 * rt, 2)}")
            for k in (4, 6):
                a(f"v_pk_add_f32 {v(40 + 4 * rt, 2)}, {v(40 + 4 * rt, 2)}, {v(x + k, 2)}",
                  f"v_pk_fma_f32 {v(42 + 4 * rt, 2)}, {v(x + k, 2)}, {v(x + k, 2)}, {v(42 + 4 * rt, 2)}")
        a(f"s_and_b32 {sU[8]}, {sCNT5}, {sCH}", f"s_cmp_lg_u32 {sU[8]}, 0", "s_cbranch_scc1 L_skip_st")
        for rt in range(2):
            x = ACC2 + rt * 12
            for k in (8, 10):
                a(f"v_pk_add_f32 {v(40 + 4 * rt, 2)}, {v(40 + 4 * rt, 2)}, {v(x + k, 2)}",
                  f"v_pk_fma_f32 {v(42 + 4 * rt, 2)}, {v(x + k, 2)}, {v(x + k, 2)}, {v(42 + 4 * rt, 2)}")
        a("L_skip_st:", "v_add_f32 v48, v40, v41", "v_add_f32 v49, v42, v43", "v_add_f32 v50, v44, v45", "v_add_f32 v51, v46, v47")
        self.stats_publish_tagged(48, WS_ST4)
        self.stamp("z2_pub")
        a("v_mov_b32 v52, v34", "v_mov_b32 v53, v35", "v_mov_b32 v62, v36", "v_mov_b32 v63, v37")
        def w1(c):
            def f():
                a.wait(vm=w1tok[c]); self.barrier()
            return f
        a(f"v_and_b32 v54, 15, {vLANE}", f"v_lshrrev_b32 v55, 4, {vLANE}", "v_lshlrev_b32 v55, 2, v55", "v_sub_u32 v54, v54, v55",
          "v_mov_b32 v55, 0x3f80", "v_mov_b32 v250, 0x3f800000")
        for k, (r, c) in enumerate(((248, 55), (248, 250), (249, 55), (249, 250))):
            a(f"v_cmp_eq_u32 vcc, {k}, v54")
            a(f"v_cndmask_b32 v{r}, v{3 if k & 1 == 0 else r}, v{c}, vcc")
        a(f"s_add_u32 {T[0]}, {sT0}, {sCH}", f"s_lshl_b32 {T[0]}, {T[0]}, 16", f"s_lshl_b32 {T[1]}, {sR0}, 5", f"s_add_u32 {T[0]}, {T[0]}, {T[1]}",
          f"s_lshl_b32 {T[1]}, {sRH}, 10", f"s_add_u32 {T[0]}, {T[0]}, {T[1]}", f"s_add_u32 {sU[9]}, {T[0]}, {WS_Z}",
          f"s_add_u32 {sU[10]}, {sU[9]}, 0x20000", f"s_add_u32 {sU[11]}, {sU[9]}, 0x40000",
          f"s_lshl_b32 {P[0]}, {sRB}, 3", f"s_add_u32 {P[0]}, {P[0]}, {sCB}", f"s_lshl_b32 {P[0]}, {P[0]}, 8",
          f"s_lshl_b32 {T[1]}, {sJ}, 3", f"s_add_u32 {P[0]}, {P[0]}, {T[1]}", f"s_add_u32 {P[0]}, {P[0]}, {WS_F5}")
        late = {i: rest[2 * i:2 * i + 2] for i in range((len(rest) + 1) // 2)}
        sl = self.stats_tagged_loads(WS_ST4, self.SGR)
        for i in range(4): late[self.opt.get("s4at", 9) + i] = sl[2 * i:2 * i + 2]
        csin = self.opt.get("csin", 0)
        self.win_gemm(ACC1, {4: w1(1), 10: w1(2)}, {0: w1(0)}, False, late, cs=csin)
        self.stamp("z1_gemm")
        self.stats_tagged_finish(WS_ST4, self.SGR, 1.0 / 688, 20)
        self.stamp("s4")
        def znorm(m):
            for rt in range(2):
                x = ACC2 + (rt * 3 + m) * 4
                for k in range(2):
                    a(f"v_pk_fma_f32 {v(x + 2 * k, 2)}, {v(x + 2 * k, 2)}, {v(20 + 2 * rt, 2)}, {v(20 + 2 * rt, 2)} op_sel:[0,0,1] op_sel_hi:[1,0,1]")
            for rt in range(2):
                x = ACC2 + (rt * 3 + m) * 4
                for k in range(2): a(f"v_cvt_pk_bf16_f32 v{x + k}, v{x + 2 * k}, v{x + 2 * k + 1}")
            for rt in range(2):
                x = ACC2 + (rt * 3 + m) * 4
                a(f"v_mfma_f32_16x16x16_bf16 {v(28 + 8 * (m & 1) + 4 * rt, 4)}, {v(x, 2)}, v[248:249], 0")
        def zstore(m):
            for rt in range(2):
                d = 28 + 8 * (m & 1) + 4 * rt
                a(f"v_cvt_pk_bf16_f32 v{d}, v{d}, v{d + 1}", f"v_cvt_pk_bf16_f32 v{d + 1}, v{d + 2}, v{d + 3}",
                  f"buffer_store_dwordx2 {v(d, 2)}, {vPAT}, {sWS}, {sU[9 + m]} offen offset:{512 * rt} sc1")
        znorm(0); znorm(1); zstore(0)
        a(f"s_cmp_lg_u32 {sU[8]}, 0", "s_cbranch_scc1 L_skip_z")
        a.cond_begin(); znorm(2); a("s_nop 7"); zstore(2); a.cond_end()
        a("L_skip_z:", "s_nop 7")
        zstore(1)
        eg = self.opt.get("earlyg", 1)
        def src(vals):
            lit = sum(x << (8 * i) for i, x in enumerate(vals))
            return [f"s_lshl_b32 {T[4]}, {sW}, 3", f"s_lshr_b32 {T[4]}, {lit}, {T[4]}", f"s_and_b32 {T[4]}, {T[4]}, 0xff", f"s_lshl_b32 {T[4]}, {T[4]}, 15", f"s_mov_b32 m0, {T[5]}"]
        wo1 = []
        for g in range(4):
            pre, ins = self.w128_dma(self.vWDo, sWOUT, T[1], T[5], 22)
            if eg: pre = src([GPERM[4 * w + g] for w in range(4)])
            pre = [f"s_lshl_b32 {T[1]}, {sW}, 2", f"s_add_u32 {T[1]}, {T[1]}, {g}", f"s_lshl_b32 {T[5]}, {T[1]}, 12", f"s_add_u32 {T[5]}, {T[5]}, {LB}"] + pre
            wo1 += [pre + [ins[0]], [ins[1]], [ins[2]], [ins[3]]]
        wo2 = []
        for g in range(2):
            pre, ins = self.w128_dma(self.vWDo, sWOUT, T[1], T[5], 22)
            if eg: pre = src([GPERM[16 + w + (4 if g and w < 2 else 0)] for w in range(4)])
            p0 = [f"s_add_u32 {T[1]}, {sW}, 16"] if g == 0 else [f"s_cmp_lt_u32 {sW}, 2", f"s_cselect_b32 {T[5]}, 20, 16", f"s_add_u32 {T[1]}, {sW}, {T[5]}"]
            pre = p0 + [f"s_sub_u32 {T[5]}, {T[1]}, 16", f"s_lshl_b32 {T[5]}, {T[5]}, 12"] + pre
            wo2 += [pre + [ins[0]], [ins[1]], [ins[2]], [ins[3]]]
        ztok = a.vtok()
        a("v_mov_b32 v56, v62", "v_mov_b32 v57, v63")
        self.w128_addresses(self.vWDo, 64)
        npre = self.opt.get("wopre2", 8)
        self.emit_all(wo1[:npre]); wo1 = wo1[npre:]
        a(f"s_lshl_b32 {T[0]}, {sRH}, 5", f"s_add_u32 {T[0]}, {T[0]}, {sR0}", f"s_lshl_b32 {sU[6]}, {T[0]}, 1",
          f"v_and_b32 v20, 15, {vLANE}", "v_lshlrev_b32 v20, 1, v20")
        self.wsp_setup()
        self.flag_store_wg(P[0], ztok)
        self.stamp("z2n_pub")
        a(f"buffer_load_ushort v62, v20, {sBSP}, {sU[6]} offen", f"buffer_load_ushort v63, v20, {sBSP}, {sU[6]} offen offset:32")
        per = 2 if npre == 0 else 1
        late = {i: wo1[per * i:per * i + per] for i in range(8) if wo1[per * i:per * i + per]}
        for i in range(4): late[8 + i] = wo2[2 * i:2 * i + 2]
        ptok = [-1]
        late[self.opt.get("p5at", 12)] = [self.poll_early(vFP8, T[3], 58) + [lambda: ptok.__setitem__(0, a.vtok())]]
        self.ztok = {}
        self.s5in = self.opt.get("s5in", 0)
        if self.s5in:
            pa, ca = self.opt.get("s5p", 9), self.opt.get("s5c", 11)
            late = {i: wo1[2 * i:2 * i + 2] for i in range((len(wo1) + 1) // 2)}
            late[pa] = [self.poll_early(vFP8, T[3], 54) + [lambda: ptok.__setitem__(0, a.vtok())]]
            D = self.opt.get("wd", 7)
            a(f"v_add_u32 v61, 0x10000, {vL16}")
            steps = list(range(D)); n = 16 - ca
            for i in range(n):
                mine = steps[(i * D) // n:((i + 1) * D) // n]
                late[ca + i] = [sum((self.z_loads(0, u) for u in mine), [])]
            def chk():
                self.poll_late(vFP8, T[3], 54, ptok[0], wg=False); self.stamp("s5")
            self.wo2 = wo2
            self.colsum_pass(late, {6: self.barrier, ca: chk})
        elif csin:
            self.emit_all(wo1 + wo2)
            self.emit(late[self.opt.get("p5at", 12)][0])
        else:
            self.colsum_pass(late, {6: self.barrier})
        self.p5tok = ptok[0]
        self.stamp("z1_epi")

    vWDo = 200

    def gelu_items(self, m):
        K1 = -2.0 * 1.4426950408889634 * 0.7978845608028654
        K2 = K1 * 0.044715
        L = []
        if m == 0: L += [f"s_mov_b32 {P[2]}, {f2u(K2)}", f"v_mov_b32 v58, {f2u(K1)}"]
        X = [self.ACC1 + (rt * 3 + m) * 4 + k for rt in range(2) for k in range(4)]
        C = [self.CS + 4 * m + k for rt in range(2) for k in range(4)]
        R = [52 + 4 * rt for rt in range(2) for k in range(4)]
        assert self.opt.get("wd", 7) <= 8
        t = [192 + k for k in range(8)]
        for i in range(8): L.append(f"v_mul_f32 v{t[i]}, v{C[i]}, v{R[i] + 1}")
        for i in range(8): L.append(f"v_fma_f32 v{X[i]}, v{X[i]}, v{R[i]}, v{t[i]}")
        for i in range(8): L.append(f"v_mul_f32 v{t[i]}, v{X[i]}, v{X[i]}")
        for i in range(8): L.append(f"v_fma_f32 v{t[i]}, v{t[i]}, {P[2]}, v58")
        for i in range(8): L.append(f"v_mul_f32 v{t[i]}, v{t[i]}, v{X[i]}")
        for i in range(8): L.append(f"v_exp_f32 v{t[i]}, v{t[i]}")
        for i in range(8): L.append(f"v_add_f32 v{t[i]}, 1.0, v{t[i]}")
        for i in range(8): L.append(f"v_rcp_f32 v{t[i]}, v{t[i]}")
        for i in range(8): L.append(f"v_mul_f32 v{X[i]}, v{X[i]}, v{t[i]}")
        for rt in range(2):
            for k in range(2): L.append(f"v_cvt_pk_bf16_f32 v{vZ1 + (rt * 3 + m) * 2 + k}, v{X[4 * rt + 2 * k]}, v{X[4 * rt + 2 * k + 1]}")
        return L

    def z_loads(self, p, u):
        a = self.a
        t, sub = u >> 1, u & 1
        L = []
        if sub == 0: L.append(f"s_add_u32 {T[0]}, {sROT[t]}, {p * 0x20000}")
        for f in range(2):
            L.append(f"buffer_load_dwordx4 {v(64 + (2 * (u & 7) + f) * 4, 4)}, {vL16 if f == 0 else 'v61'}, {sWS}, {T[0]} offen offset:{1024 * sub} sc1")
        L.append(lambda: self.ztok.__setitem__((p, u), a.vtok()))
        return L

    def wsp_setup(self):
        a = self.a
        a(f"s_lshl_b32 {T[3]}, {sW}, 3", f"s_add_u32 {T[3]}, {T[3]}, {sCB}", f"s_lshl_b32 {T[3]}, {T[3]}, 8", f"s_add_u32 {T[3]}, {T[3]}, {WS_F5}",
          f"s_lshl_b32 {T[0]}, {sT0}, 16", f"s_lshl_b32 {T[1]}, {sW}, 11", f"s_add_u32 {T[0]}, {T[0]}, {T[1]}", f"s_add_u32 {T[0]}, {T[0]}, {WS_Z}")
        for t in range(8):
            a(f"s_add_u32 {T[1]}, {sSPR}, {t if not self.opt.get('zlocal') else 0}", f"s_and_b32 {T[1]}, {T[1]}, 7", f"s_lshl_b32 {T[1]}, {T[1]}, 13", f"s_add_u32 {sROT[t]}, {T[1]}, {T[0]}")
        a(f"s_lshl_b32 {P[2]}, {sW}, 13", f"s_add_u32 {P[2]}, {P[2]}, {LRED}",
          f"s_lshl_b32 {P[3]}, {sCH}, 12", f"s_lshl_b32 {T[2]}, {sRH}, 11", f"s_add_u32 {P[3]}, {P[3]}, {T[2]}", f"s_add_u32 {P[3]}, {P[3]}, {LRED}")
        a(f"s_lshr_b32 {T[1]}, {sR0}, 4", f"s_lshl_b32 {T[2]}, {sRH}, 1", f"s_add_u32 {T[1]}, {T[1]}, {T[2]}", f"s_mul_i32 {T[1]}, {T[1]}, {22 * 1024}",
          f"s_add_u32 {T[2]}, {sT0}, {sCH}", f"s_lshl_b32 {T[2]}, {T[2]}, 9", f"s_add_u32 {T[1]}, {T[1]}, {T[2]}", f"s_add_u32 {sU[9]}, {T[1]}, {WS_G}",
          f"s_add_u32 {sU[10]}, {sU[9]}, {22 * 1024}")

    def phase_wsp(self):
        a = self.a
        BUF, ACC, RED, WT = 64, 128, 28, 200
        prog = self.opt.get("s5prog", 0)
        if self.s5in:
            pass
        elif prog:
            a.wait(vm=self.p5tok)
            a(f"v_cmp_ne_u64 vcc, {sTAG}, v[58:59]", f"s_mov_b32 {P[2]}, {T[3]}", "s_nop 0", f"s_and_b32 {P[3]}, vcc_lo, 0xff")
            self.mask_check(0, 2, sSPR, P[2], P[3], 58)
        else:
            a(f"v_add_u32 v61, 0x10000, {vL16}")
            self.poll_late(vFP8, T[3], 58, self.p5tok, wg=False)
        if not self.s5in: self.stamp("s5")
        a("v_lshlrev_b32 v62, 16, v62", "v_lshlrev_b32 v63, 16, v63")
        a(f"v_add_u32 v54, {P[2]}, {vL16}", f"v_add_u32 v55, {P[3]}, {vL16}")
        tok = self.ztok
        loads = self.z_loads
        D = self.opt.get("wd", 7)
        assert D <= 8
        gq = [self.gelu_items(0) + self.gelu_items(1), self.gelu_items(2), []]
        self.w128_read_base(59, 2, (192, 193, 194, 195), 60)
        wt = [f"ds_read_b64_tr_b16 {v(WT + (nt * 6 + p) * 4 + 2 * hf, 2)}, v{59 + nt} offset:{p * 4096 + hf * 512}"
              for p in range(6) for nt in range(2) for hf in range(2)]
        seq = [(p, u) for p in range(3) for u in range(16)]
        for p, u in ([] if self.s5in else seq[:D]):
            if prog and u == 4: self.mask_check(2, 8, sSPR, P[2], P[3], 192)
            self.emit(loads(p, u))
        def red_write(p):
            A = ACC + 32 * (p & 1)
            return [f"ds_write_b128 v54, {v(A + 4 * i, 4)} offset:{(p & 1) * 32768 + i * 1024}" for i in range(8)]
        def red_read(p):
            return [f"ds_read_b128 {v(RED + (sw * 2 + rt) * 4, 4)}, v55 offset:{(p & 1) * 32768 + sw * 8192 + rt * 1024}" for sw in range(3) for rt in range(2)]
        def red_read2(p):
            return [f"ds_read_b128 {v(ACC + 32 * (p & 1) + rt * 4, 4)}, v55 offset:{(p & 1) * 32768 + 3 * 8192 + rt * 1024}" for rt in range(2)]
        def gate(p):
            L = []
            A = ACC + 32 * (p & 1)
            for o in range(8): L.append(f"v_add_f32 v{A + o}, v{A + o}, v{RED + o}")
            for o in range(8): L.append(f"v_add_f32 v{RED + 8 + o}, v{RED + 8 + o}, v{RED + 16 + o}")
            for o in range(8): L.append(f"v_add_f32 v{A + o}, v{A + o}, v{62 + (o >> 2)}")
            for o in range(8):
                z = vZ1 + ((o >> 2) * 3 + p) * 2 + ((o >> 1) & 1)
                L.append(f"v_and_b32 v{RED + o}, {sHIMASK}, v{z}" if o & 1 else f"v_lshlrev_b32 v{RED + o}, 16, v{z}")
            for o in range(8): L.append(f"v_add_f32 v{A + o}, v{A + o}, v{RED + 8 + o}")
            for o in range(8): L.append(f"v_mul_f32 v{A + o}, v{A + o}, v{RED + o}")
            for o in range(4): L.append(f"v_cvt_pk_bf16_f32 v{RED + o}, v{A + 2 * o}, v{A + 2 * o + 1}")
            return L
        def gstore(p):
            L = []
            if p == 2:
                sk, zr = a.label("gskip"), a.label("gstore")
                L.append(a.cond_begin)
                L.append(lambda: a(f"s_cmp_eq_u32 {sU[8]}, 0", f"s_cbranch_scc1 {zr}", f"s_cmp_eq_u32 {sCB}, 7", f"s_cbranch_scc0 {sk}",
                                   *[f"v_mov_b32 v{RED + k}, 0" for k in range(4)], f"{zr}:"))
            L += [f"buffer_store_dwordx2 {v(RED + 2 * rt, 2)}, {vPAT}, {sWS}, {sU[9 + rt]} offen offset:{1024 * p} sc1" for rt in range(2)]
            if p == 2: L += [lambda: a(f"{sk}:"), a.cond_end]
            return L
        eg = self.opt.get("earlyg", 1)
        etk = [-1]
        def early_flag():
            L = a.label("noflag")
            a.cond_begin()
            a(f"s_cmp_lg_u32 {sW}, 0", f"s_cbranch_scc1 {L}",
              "s_mov_b64 exec, 1", f"buffer_store_dwordx2 {vTAG}, off, {sWS}, {P[4]} sc1", "s_mov_b64 exec, -1", f"{L}:")
            a.cond_end()
        if eg:
            self.cluster_flag_off(P[4], WS_F6A, True); self.cluster_flag_off(P[5], WS_F6A, False)
        for p in range(3):
            A = ACC + 32 * (p & 1)
            for u in range(16):
                if not self.opt.get("w_nowait"): a.wait(vm=tok[(p, u)])
                if u == 0: self.stamp(f"wsp_p{p}")
                ms = []
                for f in range(2):
                    for tt in range(4):
                        ms.append(mfma16(A + (f * 4 + tt) * 4, v(BUF + (2 * (u & 7) + f) * 4, 4), ar((u * 4 + tt) * 4, 4), "0" if u == 0 else None))
                fill = []
                if p > 0 and not self.opt.get("w_nofill"):
                    q = p - 1
                    if u < 8: fill += red_write(q)[u:u + 1]
                    if u == 8: fill += [lambda: a.wait(lg=a.lg), "s_barrier"]
                    if u == 9: fill += red_read(q) + red_read2(q)
                    if u == 11: fill += [lambda: a.wait(lg=a.lg)]
                    if 11 <= u <= 15:
                        g = gate(q); fill += g[(u - 11) * 11:(u - 11) * 11 + 11]
                    if u == 15: fill += gstore(q)
                if p == 0: n = (len(gq[0]) + 15 - u) // (16 - u)
                elif p == 1 and u < 11: n = (len(gq[1]) + 10 - u) // (11 - u)
                else: n = 0
                fill = [gq[p].pop(0) for _ in range(n)] + fill if p == 0 else fill + [gq[p].pop(0) for _ in range(n)]
                if p == 2 and u < 8: fill += wt[3 * u:3 * u + 3]
                if p == 2 and u == 9 and eg: fill.insert(0, early_flag)
                if p == 2 and u == 14 and eg: fill += self.poll_early(vFP8, P[5], 52) + [lambda: etk.__setitem__(0, a.vtok())]
                if p == 0 and u == 15: fill += ["s_barrier"]
                nx = p * 16 + u + D
                ld = loads(*seq[nx]) if nx < 48 else []
                if self.opt.get("w_noload"): ld = ld[-1:]
                interleave(a, ms[:6], fill, per=2, start=0)
                if self.s5in and p == 0 and 2 <= u < 10: ld = self.wo2[u - 2] + ld
                a(ms[6]); self.emit(ld[:-2])
                a(ms[7]); self.emit(ld[-2:])
        self.stamp("wsp_gemm")
        self.emit(red_write(2))
        a.wait(lg=a.lg)
        if eg: self.poll_late(vFP8, P[5], 52, etk[0])
        else: self.barrier()
        self.emit(red_read(2) + red_read2(2))
        a(f"v_add_u32 v56, {LB}, v59", f"v_add_u32 v57, {LB}, v60")
        for o in range(8):
            z = vZ1 + ((o >> 2) * 3 + 2) * 2 + ((o >> 1) & 1)
            a(f"v_and_b32 v{192 + o}, {sHIMASK}, v{z}" if o & 1 else f"v_lshlrev_b32 v{192 + o}, 16, v{z}")
        self.cluster_flag_off(P[1], WS_F6, True)
        a.wait(lg=a.lg)
        A = ACC
        for o in range(0, 8, 2): a(f"v_pk_add_f32 {v(A + o, 2)}, {v(A + o, 2)}, {v(RED + o, 2)}")
        for o in range(0, 8, 2): a(f"v_pk_add_f32 {v(RED + 8 + o, 2)}, {v(RED + 8 + o, 2)}, {v(RED + 16 + o, 2)}")
        for o in range(0, 8, 2): a(f"v_pk_add_f32 {v(A + o, 2)}, {v(A + o, 2)}, v[62:63] op_sel:[0,{o >> 2}] op_sel_hi:[1,{o >> 2}]")
        for o in range(0, 8, 2): a(f"v_pk_add_f32 {v(A + o, 2)}, {v(A + o, 2)}, {v(RED + 8 + o, 2)}")
        for o in range(0, 8, 2): a(f"v_pk_mul_f32 {v(A + o, 2)}, {v(A + o, 2)}, {v(192 + o, 2)}")
        for o in range(4): a(f"v_cvt_pk_bf16_f32 v{RED + o}, v{A + 2 * o}, v{A + 2 * o + 1}")
        self.emit(gstore(2))
        self.wout_rd = [f"ds_read_b64_tr_b16 {ar((nt * 16 + p) * 4 + 2 * hf, 2)}, v{56 + nt} offset:{p * 4096 + hf * 512}"
                        for p in range(16) for nt in range(2) for hf in range(2)]
        gtok = None
        if eg:
            gtok = a.vtok()
            self.g_setup()
            for p in range(6): self.emit(self.g_dma(p))
            self.getok = a.vtok()
        self.flag_store_wg(P[1], gtok)
        self.stamp("g_pub")

    def phase_wout(self):
        a = self.a
        ACC = 128
        self.cluster_flag_off(T[3], WS_F6, False)
        a(f"s_lshl_b32 {T[4]}, {sRH}, 11", f"v_add_u32 v31, {T[4]}, {vL16}", f"v_add_u32 v30, {LRED}, v31")
        fine = self.opt.get("fine", 1)
        eg = self.opt.get("earlyg", 1)
        if not eg:
            chunks = [2, 2, 4, 6, 8] if fine else [4, 4, 6, 8]
            group, toks = self.act_dma(WS_G, 22, chunks, LA, gpos=True)
        self.emit(self.wout_rd[:32])
        self.emit(self.poll_early(vFP8, T[3], 36)); ptok = a.vtok()
        self.emit(self.wout_rd[32:])
        def tail_setup():
            a(f"v_and_b32 v32, 15, {vLANE}", f"v_lshrrev_b32 v33, 4, {vLANE}", "v_lshlrev_b32 v32, 10, v32",
              "v_and_b32 v34, 1, v33", "v_lshl_add_u32 v32, v34, 5, v32", "v_lshrrev_b32 v33, 1, v33", "v_lshl_add_u32 v32, v33, 4, v32",
              f"s_lshl_b32 {T[0]}, {sRH}, 5", f"s_add_u32 {T[0]}, {T[0]}, {sR0}", f"s_lshl_b32 {T[0]}, {T[0]}, 10",
              f"s_lshl_b32 {T[4]}, {sCB}, 7", f"s_add_u32 {T[0]}, {T[0]}, {T[4]}", f"s_lshl_b32 {T[4]}, {sCH}, 6", f"s_add_u32 {sU[9]}, {T[0]}, {T[4]}",
              f"s_add_u32 {sU[10]}, {sU[9]}, 0x4000")
            for i in range(8):
                a(f"v_lshlrev_b32 v{96 + 2 * i}, 16, v{vH + i}", f"v_and_b32 v{97 + 2 * i}, {sHIMASK}, v{vH + i}")
        if eg:
            tail_setup()
            a.wait(vm=self.getok, lg=a.lg)
            self.poll_late(vFP8, T[3], 36, ptok)
            self.stamp("s6")
            toks = {}
            def gd(p0, p1, c):
                L = [self.g_dma(p) for p in range(p0, p1)]
                L[-1].append(lambda: toks.__setitem__(c, a.vtok()))
                return L
            self.emit_all(gd(6, 10, 1) + gd(10, 14, 2))
        else:
            self.poll_late(vFP8, T[3], 36, ptok)
            self.stamp("s6")
            for c in range(2 + fine): self.emit_all(group(c))
            tail_setup()
        def buf(s, rt): return 64 + (s % 4) * 8 + rt * 4
        def reads(s): return [f"ds_read_b128 {v(buf(s, rt), 4)}, v{30 if s < 16 else 31} offset:{(self.gpos2(s) - LRED if eg else 4096 * s) + rt * 1024 if s < 16 else 4096 * (s - 16) + rt * 1024}" for rt in range(2)]
        def mfmas(s):
            wv = lambda nt: ar((nt * 16 + s) * 4, 4) if s < 16 else v(200 + (nt * 6 + s - 16) * 4, 4)
            return [mfma16(ACC + (rt * 2 + nt) * 4, wv(nt), v(buf(s, rt), 4), v(96 + (rt * 2 + nt) * 4, 4) if s == 0 else None)
                    for rt in range(2) for nt in range(2)]
        def w(c):
            def f():
                a.wait(vm=toks[c]); self.barrier()
            return f
        if eg:
            rest = gd(14, 18, 3) + gd(18, 22, 4)
            late = {4 + i: rest[2 * i:2 * i + 2] for i in range(4)}
            self.kloop(22, reads, mfmas, {4: w(1), 8: w(2), 12: w(3), 16: w(4)}, late, {}, per=1)
            rest = None
        else:
            rest = group(2 + fine) + group(3 + fine)
            late = {i: rest[2 * i:2 * i + 2] for i in range(7)}
        def head0():
            a.wait(vm=toks[0], lg=a.lg); self.barrier()
        if not eg: self.kloop(22, reads, mfmas, {0: w(1), 2: w(2), 6: w(3), 12: w(4)} if fine else {2: w(1), 6: w(2), 12: w(3)}, late, {0: head0}, per=1)
        self.stamp("wout_gemm")
        for rt in range(2):
            for nt in range(2):
                d = ACC + (rt * 2 + nt) * 4
                for k in range(2): a(f"v_cvt_pk_bf16_f32 v{64 + 4 * rt + 2 * nt + k}, v{d + 2 * k}, v{d + 2 * k + 1}")
        for rt in range(2):
            b = 64 + 4 * rt
            a(f"v_permlane16_swap_b32 v{b}, v{b + 2}", f"v_permlane16_swap_b32 v{b + 1}, v{b + 3}")
            a(f"buffer_store_dwordx4 {v(b, 4)}, v32, {sOUT}, {sU[9 + rt]} offen " + ["", "sc1", "nt", "sc0 sc1", "sc1 nt"][self.opt.get("ost", 0)])

    def epilogue(self):
        a = self.a
        a("L_finish:")
        a("s_cmp_eq_u32 s2, 0", f"s_cselect_b32 {T[0]}, {sW}, 1", f"s_cmp_eq_u32 {T[0]}, 0", "s_cbranch_scc0 L_noepoch",
          "s_mov_b64 exec, 1", f"buffer_store_dwordx2 {vTAG}, off, {sWS}, 0 sc1", "s_mov_b64 exec, -1", "L_noepoch:")
        if self.stamps:
            a("s_waitcnt vmcnt(0)")
            self.stamp("end")
            a(f"s_lshl_b32 {T[0]}, s2, 2", f"s_add_u32 {T[0]}, {T[0]}, {sW}", f"s_lshl_b32 {T[0]}, {T[0]}, 7", f"s_add_u32 {T[0]}, {T[0]}, {WS_DBG}",
              "s_mov_b64 exec, 1")
            for i in range(10):
                a(f"v_mov_b32 v8, s{STAMP0 + i}", f"buffer_store_dword v8, off, {sWS}, {T[0]} offset:{4 * i if i < 9 else 60}")
        if self.calib:
            a(f"s_and_b32 s98, s{STAMP0 + 1}, 0xffff", "s_lshl_b32 s98, s98, 1", f"s_add_u32 s98, s98, {self.calib}")
            if self.nstamp < 3: a(f"s_mov_b32 s98, {self.calib}")
            a("s_waitcnt vmcnt(0)", "L_calib:", "s_memrealtime s[100:101]", "s_waitcnt lgkmcnt(0)", f"s_sub_u32 s100, s100, s{STAMP0}",
              f"s_cmp_lt_u32 s100, s98", "s_cbranch_scc1 L_calib")
        if not self.opt.get("noendwait"): a("s_waitcnt vmcnt(0)")
        a("L_exit:", "s_endpgm")

    def build(self):
        self.prologue()
        self.phase_qkv(); self.maybe_stop("qkv")
        self.phase_attn(); self.maybe_stop("attn")
        self.phase_wo(); self.maybe_stop("wo")
        self.phase_win(); self.maybe_stop("win")
        self.phase_wsp(); self.maybe_stop("wsp")
        self.phase_wout()
        self.epilogue()
        self.attn_slow()
        self.a("L_code_end:")
        body = self.a.finish()
        for w in dict.fromkeys(self.a.warnings): print("PENDING-LOAD WARNING:", w, file=sys.stderr)
        ref = open(f"cdna_kernels/{NAME}.s.ref").read().split("\n")
        head = [l for l in ref if l.startswith(";") and "@launch" not in l and "Override" not in l and "grid=ceil" not in l]
        head = head[:head.index([l for l in head if "d_ws" in l][0]) + 1]
        return ("\n".join(head) + f"\n; @launch grid=(256,1,1) block=(256,1,1) lds={LDS_BYTES}\n"
                + '.amdgcn_target "amdgcn-amd-amdhsa--gfx950"\n.text\n'
                + f".globl {NAME}_kernel\n.p2align 8\n.type {NAME}_kernel,@function\n{NAME}_kernel:\n" + body
                + f""".section .rodata,"a"
.p2align 6
.amdhsa_kernel {NAME}_kernel
  .amdhsa_next_free_vgpr 512
  .amdhsa_next_free_sgpr 102
  .amdhsa_accum_offset 256
  .amdhsa_group_segment_fixed_size 0
  .amdhsa_kernarg_size 88
  .amdhsa_user_sgpr_count 2
  .amdhsa_user_sgpr_kernarg_segment_ptr 1
  .amdhsa_system_sgpr_workgroup_id_x 1
  .amdhsa_float_denorm_mode_32 3
.end_amdhsa_kernel
""")

if __name__ == "__main__":
    import argparse
    ap = argparse.ArgumentParser()
    ap.add_argument("-o", default=f"cdna_kernels/{NAME}.s")
    ap.add_argument("--stop"); ap.add_argument("--stamps", action="store_true"); ap.add_argument("--slow", action="store_true")
    ap.add_argument("--opt", action="append", default=[]); ap.add_argument("--keep")
    o = ap.parse_args()
    g = Gen(o.stop, o.stamps, o.slow, keep=o.keep.split(",") if o.keep else None, **{k: int(x) for k, x in (kv.split('=') for kv in o.opt)})
    s = g.build()
    open(o.o, "w").write(s)
    print(f"wrote {o.o}: {len(s)} bytes, {len(g.a.items)} items, {g.a.nops_added} nops; stamps: {g.stamp_names}")
```

```python
import sys, struct
from asmdsl import Asm

NAME = "sequential_preLN__softmax_full_mha__mixer_gmlp__prompt"

WS_EPOCH = 0
WS_F1, WS_F2, WS_F3, WS_F4, WS_F5, WS_F6 = 0x1000, 0x90000, 0x7000, 0x9000, 0xB000, 0xD000
WS_F6A = 0xF000
GPERM = [0, 3, 6, 9, 14, 19] + [p for p in range(22) if p not in (0, 3, 6, 9, 14, 19)]
WS_ST3, WS_ST4 = 0x1150000, 0x10D0000
WS_Q, WS_KV, WS_O, WS_H, WS_Z, WS_G = 0x100000, 0x300000, 0x700000, 0x900000, 0xB00000, 0xE00000
WS_DBG = 0x1300000
WS_SIZE = 0x1400000

LA, LC, LB = 0, 65536, 98304
LRED = 24576
LDS_BYTES = 163840

sX, sWQKV, sWO, sWIN, sWSP, sBSP, sWOUT, sOUT, sWS = ("s[%d:%d]" % (b, b + 3) for b in range(4, 40, 4))
sJ, sRB, sCB, sHEAD, sW, sR0, sRH, sCH, sT0, sCNT5 = ("s%d" % i for i in range(40, 50))
sTAG = "s[50:51]"
sONES, sHIMASK, sCLU, sPOLL = "s52", "s53", "s54", "s55"
T = ["s%d" % i for i in range(56, 64)]
sROT = ["s%d" % i for i in range(64, 72)]
sU = ["s%d" % i for i in range(72, 84)]
sJA, sRB8 = "s0", "s1"
sRC = "s0"
sSPR = "s3"
P = ["s%d" % i for i in range(84, 90)]
STAMP0 = 90

vLANE, vL16, vPAT, vZ = "v0", "v1", "v2", "v3"
vTAG = "v[4:5]"
vFP32, vFP8 = "v6", "v7"
vH = 8
vZ1 = 16

def v(a, n=1): return f"v{a}" if n == 1 else f"v[{a}:{a + n - 1}]"
def ar(a, n=1): return f"a{a}" if n == 1 else f"a[{a}:{a + n - 1}]"
def f2u(x): return "0x%08x" % struct.unpack("<I", struct.pack("<f", x))[0]

def mfma16(d, a, b, c=None):
    return f"v_mfma_f32_16x16x32_bf16 {v(d,4)}, {a}, {b}, {c if c is not None else v(d,4)}"

def interleave(a, mains, fillers, per=1, start=0):
    k = 0
    for i, m in enumerate(mains):
        m() if callable(m) else a(m)
        if i >= start:
            for _ in range(per):
                if k < len(fillers):
                    f = fillers[k]; k += 1
                    f() if callable(f) else a(f)
    while k < len(fillers):
        f = fillers[k]; k += 1
        f() if callable(f) else a(f)

class Gen:
    def __init__(self, stop=None, stamps=False, force_fallback=False, calib=0, **opt):
        self.calib = calib
        self.keep = opt.pop("keep", None)
        self.opt = opt
        self.a = Asm()
        self.stop = stop
        self.stamps = stamps
        self.force_fallback = force_fallback
        self.nstamp = 0
        self.stamp_names = []

    def stamp(self, name):
        if not self.stamps: return
        if self.keep is not None:
            if name not in self.keep and name != "entry": return
        elif name not in ("qkv_gemm", "qkv_pub", "attn_start", "attn_loop", "s2", "wo_gemm", "s3", "z2_gemm", "z1_gemm", "z2n_pub", "s5", "wsp_gemm", "s6", "wout_gemm", "end", "entry"): return
        a = self.a
        a.wait(lg=a.lg)
        cyc = self.opt.get("cyc")
        a(f"{'s_memtime' if cyc else 's_memrealtime'} s[100:101]", "s_waitcnt lgkmcnt(0)")
        n = self.nstamp
        if n == 0:
            a(f"s_mov_b32 s{STAMP0}, s100")
        else:
            r = STAMP0 + 1 + (n - 1) // 2
            if cyc: a(f"s_sub_u32 s101, s100, s{STAMP0}", f"s_mov_b32 s{STAMP0}, s100", "s_mov_b32 s100, s101")
            else: a(f"s_sub_u32 s100, s100, s{STAMP0}")
            a(f"s_mov_b32 s{r}, s100" if n & 1 else f"s_pack_ll_b32_b16 s{r}, s{r}, s100")
        self.nstamp += 1; self.stamp_names.append(name)
        assert self.nstamp <= 17

    def maybe_stop(self, name):
        if self.stop == name:
            self.a.wait_all()
            self.a("s_branch L_finish")

    def flag_store(self, soff, tok=None):
        a = self.a
        a.wait(vm=a.vm if tok is None else tok, force=True)
        a("s_mov_b64 exec, 1", f"buffer_store_dwordx2 {vTAG}, off, {sWS}, {soff} sc1", "s_mov_b64 exec, -1")

    def g_setup(self):
        a = self.a
        a(f"s_lshr_b32 {T[0]}, {sR0}, 4", f"s_add_u32 {T[0]}, {T[0]}, {sW}", f"s_mul_i32 {T[0]}, {T[0]}, {22 * 1024}",
          f"s_add_u32 {sU[0]}, {T[0]}, {WS_G}", f"s_lshl_b32 {sU[1]}, {sW}, 10")

    def g_dma(self, p):
        return [f"s_add_u32 {T[2]}, {sU[0]}, {GPERM[p] * 1024}", f"s_add_u32 m0, {sU[1]}, {self.gpos2(p)}",
                f"buffer_load_dwordx4 {vL16}, {sWS}, {T[2]} offen sc1 lds"]

    @staticmethod
    def gpos2(p): return LRED + 32768 + 4096 * p if p < 8 else LRED + 4096 * (p - 8) if p < 16 else 4096 * (p - 16)

    def flag_store_wg(self, soff, tok=None):
        a = self.a
        a.wait(vm=a.vm if tok is None else tok, force=True)
        self.barrier()
        L = a.label("noflag")
        a.cond_begin()
        a(f"s_cmp_lg_u32 {sW}, 0", f"s_cbranch_scc1 {L}",
          "s_mov_b64 exec, 1", f"buffer_store_dwordx2 {vTAG}, off, {sWS}, {soff} sc1", "s_mov_b64 exec, -1", f"{L}:")
        a.cond_end()

    def poll_wg(self, voff, soff, tmp, drain=True):
        a = self.a
        if self.opt.get("allpoll"):
            self.poll(voff, soff, tmp); return
        if drain: a.wait(vm=a.vm, force=True)
        done = a.vm_done
        L = a.label("nopoll")
        a(f"s_cmp_lg_u32 {sW}, 0", f"s_cbranch_scc1 {L}")
        self.poll(voff, soff, tmp)
        a(f"{L}:")
        a.vm_done = done
        self.barrier()

    def poll_early(self, voff, soff, tmp):
        return [f"buffer_load_dwordx2 {v(tmp,2)}, {voff}, {sWS}, {soff} offen sc1"]

    def poll_late(self, voff, soff, tmp, tok, wg=True):
        a = self.a
        L = a.label("late")
        done = a.vm_done
        if wg: a(f"s_cmp_lg_u32 {sW}, 0", f"s_cbranch_scc1 {L}")
        a.wait(vm=tok, force=True)
        a(f"v_cmp_ne_u64 vcc, {sTAG}, {v(tmp,2)}", "s_nop 1", f"s_cbranch_vccz {L}")
        a.cond_begin(); self.poll(voff, soff, tmp); a.cond_end()
        a(f"{L}:")
        a.vm_done = done if wg else tok
        if wg: self.barrier()

    def mask_check(self, t0, t1, start, soff, pend, tmp):
        a = self.a
        done = a.vm_done
        L, E = a.label("rc"), a.label("rcok")
        m = ((1 << t1) - 1) ^ ((1 << t0) - 1)
        a(f"s_lshl_b32 {sPOLL}, {m * 0x101}, {start}", f"s_lshr_b32 {sPOLL}, {sPOLL}, 8", f"s_and_b32 {sPOLL}, {sPOLL}, 0xff",
          f"s_and_b32 vcc_lo, {pend}, {sPOLL}", f"s_cbranch_scc0 {E}", f"s_mov_b32 {sRC}, {sPOLL}", f"s_mov_b32 {sPOLL}, 0x40000", f"{L}:")
        a.cond_begin()
        a(f"buffer_load_dwordx2 {v(tmp, 2)}, {vFP8}, {sWS}, {soff} offen sc1")
        a.wait(vm=a.vm, force=True)
        a.cond_end()
        a(f"v_cmp_ne_u64 vcc, {sTAG}, {v(tmp, 2)}", f"s_sub_u32 {sPOLL}, {sPOLL}, 1", f"s_cbranch_scc1 {E}",
          f"s_and_b32 {pend}, vcc_lo, 0xff", f"s_and_b32 vcc_lo, {pend}, {sRC}", f"s_cbranch_scc1 {L}", f"{E}:")
        a.vm_done = done
        for r in (tmp, tmp + 1): a.pend_vm.pop(("v", r), None)

    def poll(self, voff, soff, tmp):
        a = self.a
        L, E = a.label("poll"), a.label("polled")
        a(f"s_mov_b32 {sPOLL}, 0x40000", f"{L}:",
          f"buffer_load_dwordx2 {v(tmp,2)}, {voff}, {sWS}, {soff} offen sc1")
        a.wait(vm=a.vm, force=True)
        a(f"v_cmp_ne_u64 vcc, {sTAG}, {v(tmp,2)}",
          f"s_sub_u32 {sPOLL}, {sPOLL}, 1", f"s_cbranch_scc1 {E}")
        sl = self.opt.get("sleep", 0)
        if sl: a(f"s_cbranch_vccz {E}", f"s_sleep {sl}", f"s_branch {L}", f"{E}:")
        else: a(f"s_cbranch_vccnz {L}", f"{E}:")
        for r in (tmp, tmp + 1): a.pend_vm.pop(("v", r), None)

    def barrier(self):
        self.a("s_barrier")

    def prologue(self):
        a = self.a
        a("s_cmp_ge_u32 s2, 256", "s_cbranch_scc1 L_exit")
        self.stamp("entry")
        a("s_load_dwordx2 s[4:5], s[0:1], 0", "s_load_dwordx2 s[8:9], s[0:1], 8")
        if not self.opt.get("nocodepf"):
            a(f"s_getpc_b64 s[60:61]", "L_pc:", f"s_sub_u32 s60, s60, L_pc-{NAME}_kernel", "s_subb_u32 s61, s61, 0",
              f"s_mov_b32 s62, L_code_end-{NAME}_kernel", "s_mov_b32 s63, 0x00020000",
              f"s_lshr_b32 {T[0]}, s2, 3", f"s_lshl_b32 {T[0]}, {T[0]}, 11", "v_lshlrev_b32 v250, 3, v0",
              f"buffer_load_dwordx2 v[250:251], v250, s[60:63], {T[0]} offen")
        a(f"s_mov_b32 s6, {2048 * 512 * 2}", "s_mov_b32 s7, 0x00020000", f"s_mov_b32 s10, {512 * 1536 * 2}", "s_mov_b32 s11, 0x00020000")
        a("v_lshrrev_b32 v8, 6, v0", f"v_and_b32 {vLANE}, 63, v0", f"v_readfirstlane_b32 {sW}, v8")
        if self.opt.get("map", 1):
            a(f"s_lshr_b32 {T[0]}, s2, 3", f"s_and_b32 {T[1]}, s2, 6", f"s_and_b32 {T[2]}, s2, 1",
              f"s_lshr_b32 {T[3]}, {T[0]}, 4", f"s_add_u32 {sJ}, {T[1]}, {T[3]}",
              f"s_bfe_u32 {sRB}, {T[0]}, 0x20002", f"s_and_b32 {sCB}, {T[0]}, 3", f"s_lshl_b32 {T[4]}, {T[2]}, 2", f"s_add_u32 {sCB}, {sCB}, {T[4]}",
              f"s_lshr_b32 {sU[1]}, {T[0]}, 2", f"s_and_b32 {sU[2]}, {sCB}, 3", f"s_lshl_b32 {sU[2]}, {sU[2]}, 1")
        else:
            a(f"s_and_b32 {sJ}, s2, 7", f"s_lshr_b32 {sHEAD}, s2, 3", f"s_lshr_b32 {sRB}, {sHEAD}, 3", f"s_and_b32 {sCB}, {sHEAD}, 7",
              f"s_lshl_b32 {sU[1]}, {sRB}, 1", f"s_mov_b32 {sU[2]}, {sCB}")
        a(f"s_lshl_b32 {sR0}, {sJ}, 8", f"s_lshl_b32 {T[0]}, {sRB}, 6", f"s_add_u32 {sR0}, {sR0}, {T[0]}")

    def prologue_rest(self):
        a = self.a
        for d, off, n in self.SRDS[2:]: a(f"s_load_dwordx2 s[{d}:{d + 1}], s[0:1], {off}")
        for d, off, n in self.SRDS[2:]: a(f"s_mov_b32 s{d + 2}, {n}", f"s_mov_b32 s{d + 3}, 0x00020000")
        if self.opt.get("map", 1):
            a(f"s_bfe_u32 {sHEAD}, s2, 0x40003", f"s_and_b32 {T[4]}, s2, 1", f"s_lshl_b32 {T[4]}, {T[4]}, 4", f"s_add_u32 {sHEAD}, {sHEAD}, {T[4]}")
        a(f"s_lshr_b32 {sRH}, {sW}, 1", f"s_and_b32 {sCH}, {sW}, 1",
          f"s_lshl_b32 {sCLU}, {sJ}, 2", f"s_add_u32 {sCLU}, {sCLU}, {sRB}",
          f"s_mov_b32 {sONES}, 0x3f803f80", f"s_mov_b32 {sHIMASK}, 0xffff0000")
        a(f"s_mul_i32 {T[0]}, {sCB}, 5", f"s_min_u32 {T[1]}, {sCB}, 3", f"s_add_u32 {sT0}, {T[0]}, {T[1]}",
          f"s_cmp_ge_u32 {sCB}, 3", f"s_cselect_b32 {sCNT5}, 1, 0")
        a(f"v_lshlrev_b32 {vL16}, 4, {vLANE}", f"v_mov_b32 {vZ}, 0",
          f"v_and_b32 v8, 15, {vLANE}", f"v_lshrrev_b32 v9, 5, {vLANE}", f"v_bfe_u32 v10, {vLANE}, 4, 1",
          f"v_lshlrev_b32 v8, 4, v8", f"v_lshl_add_u32 v8, v10, 3, v8",
          f"v_lshl_add_u32 {vPAT}, v9, 8, v8",
          f"v_lshl_add_u32 v63, v9, 9, v8",
          f"v_and_b32 {vFP32}, 31, {vLANE}", f"v_lshlrev_b32 {vFP32}, 7, {vFP32}",
          f"v_and_b32 {vFP8}, 7, {vLANE}", f"v_lshlrev_b32 {vFP8}, 3, {vFP8}")

    SRDS = [(4, 0, 2048 * 512 * 2), (8, 8, 512 * 1536 * 2), (36, 80, WS_SIZE), (12, 16, 512 * 512 * 2), (16, 32, 512 * 1376 * 2),
            (20, 40, 2048 * 2048 * 2), (24, 48, 2048 * 2), (28, 56, 688 * 512 * 2), (32, 64, 2048 * 512 * 2)]

    def phase_qkv(self):
        a = self.a
        ACC = 128
        CSR = (124, 200, 204)
        vX0, vX1, vW0, vW1, vWrA, vWrB, XA = "v28", "v29", "v30", "v31", "v32", "v33", 34
        STA = LC
        a(f"v_lshrrev_b32 v8, 3, {vLANE}", f"v_and_b32 v9, 7, {vLANE}", "v_lshrrev_b32 v10, 1, v8", "v_xor_b32 v10, v10, v9",
          "v_lshlrev_b32 v10, 4, v10", "v_lshl_add_u32 v10, v8, 10, v10",
          f"s_lshl_b32 {T[0]}, {sW}, 4", f"s_add_u32 {T[0]}, {T[0]}, {sR0}", f"s_lshl_b32 {T[0]}, {T[0]}, 10",
          f"v_add_u32 {vX0}, {T[0]}, v10", f"v_xor_b32 {vX1}, 64, {vX0}", f"v_add_u32 {vX1}, {7 * 1024}, {vX1}")
        a(f"v_bfe_u32 v10, {vLANE}, 4, 1", "v_lshrrev_b32 v11, 1, v9", "v_xor_b32 v11, v11, v10",
          "v_and_b32 v12, 1, v9", "v_lshl_or_b32 v11, v11, 1, v12", "v_lshlrev_b32 v11, 4, v11",
          "v_mul_u32_u24 v12, 3072, v8", "v_add_u32 v12, v12, v11",
          f"s_mul_i32 {T[0]}, {sW}, {16 * 3072}", f"s_lshl_b32 {T[1]}, {sCB}, 7", f"s_add_u32 {T[0]}, {T[0]}, {T[1]}",
          f"v_add_u32 {vW0}, {T[0]}, v12", f"v_xor_b32 {vW1}, 64, {vW0}", f"v_add_u32 {vW1}, {8 * 3072 - 1024}, {vW1}",
          f"s_lshl_b32 {sU[0]}, {sW}, 11", f"s_add_u32 {sU[2]}, {sU[2]}, {sU[1]}")
        if self.opt.get("q_rot", 3) == 0: a(f"s_mov_b32 {sU[2]}, 0")
        if self.opt.get("q_rot", 3) == 3: a(f"s_and_b32 {sU[2]}, {sU[1]}, 1", f"s_lshl_b32 {sU[2]}, {sU[2]}, 2")
        if self.opt.get("q_rot") == 1: a(f"s_mov_b32 {sU[2]}, {sU[1]}")
        if self.opt.get("q_samew"): a(f"v_subrev_u32 {vW0}, {T[1]}, {vW0}", f"v_subrev_u32 {vW1}, {T[1]}, {vW1}")
        if self.opt.get("q_samex"): a(f"v_and_b32 {vX0}, 0xffff, {vX0}", f"v_and_b32 {vX1}, 0x1ffff, {vX1}")
        tok = {}
        def dma(t):
            L = [[f"s_add_u32 {T[1]}, {sU[2]}, {t}", f"s_and_b32 {T[1]}, {T[1]}, 7", f"s_lshl_b32 {T[2]}, {T[1]}, 7",
                  f"s_add_u32 m0, {sU[0]}, {LB + t * 8192}", f"buffer_load_dwordx4 {vX0}, {sX}, {T[2]} offen lds"],
                 [f"buffer_load_dwordx4 {vX1}, {sX}, {T[2]} offen offset:1024 lds"]]
            for p in range(3):
                pre = [f"s_mul_i32 {T[1]}, {T[1]}, {64 * 3072}"] if p == 0 else []
                L.append(pre + [f"s_add_u32 {T[2]}, {T[1]}, {p * 1024}", f"s_add_u32 m0, {sU[0]}, {(t & 3) * 24576 + p * 8192}",
                                f"buffer_load_dwordx4 {vW0}, {sWQKV}, {T[2]} offen lds"])
                L.append([f"buffer_load_dwordx4 {vW1}, {sWQKV}, {T[2]} offen offset:1024 lds"])
            L[-1].append(lambda: tok.__setitem__(t, a.vtok()))
            return L
        a("s_waitcnt lgkmcnt(0)")
        self.stamp("kernarg")
        self.emit_all(dma(0))
        pq = self.opt.get("pfq2", 0)
        def pfq():
            a(f"s_lshl_b32 {T[3]}, s2, 2", f"s_add_u32 {T[3]}, {T[3]}, {sW}", f"s_lshl_b32 {T[4]}, {T[3]}, 11", f"s_mul_i32 {T[3]}, {T[3]}, 960",
              f"s_add_u32 {T[3]}, {T[3]}, {192 * 3072}", f"v_min_u32 v248, 59, {vLANE}", "v_lshlrev_b32 v248, 4, v248",
              f"buffer_load_dwordx4 v[244:247], v248, {sWQKV}, {T[3]} offen",
              f"buffer_load_dwordx4 v[244:247], {vL16}, {sX}, {T[4]} offen", f"buffer_load_dwordx4 v[244:247], {vL16}, {sX}, {T[4]} offen offset:1024")
        def pfq3(first):
            wb = (8 - first) * 64 * 3072 // 1024
            a(f"s_lshl_b32 {T[3]}, s2, 2", f"s_add_u32 {T[3]}, {T[3]}, {sW}", f"s_lshl_b32 {T[4]}, {T[3]}, 11", f"s_mul_i32 {T[3]}, {T[3]}, {wb}",
              f"s_add_u32 {T[3]}, {T[3]}, {first * 64 * 3072}", f"v_min_u32 v248, {(8 - first) * 8 - 1}, {vLANE}", "v_lshlrev_b32 v248, 4, v248",
              f"v_lshlrev_b32 v249, 4, {vLANE}", f"v_min_u32 v249, {min(wb, 1024) - 16}, v249",
              f"buffer_load_dwordx4 v[244:247], v248, {sX}, {T[4]} offen offset:{first * 128}",
              f"buffer_load_dwordx4 v[244:247], v248, {sX}, {T[4]} offen offset:{1024 + first * 128}",
              f"buffer_load_dwordx4 v[244:247], v249, {sWQKV}, {T[3]} offen")
            if wb > 1024:
                a(f"v_min_u32 v249, {wb - 1024 - 16}, v249", f"buffer_load_dwordx4 v[244:247], v249, {sWQKV}, {T[3]} offen offset:1024")
        if pq >= 3: pfq3(pq - 1)
        self.prologue_rest()
        if pq == 1: pfq()
        a(f"v_lshrrev_b32 v10, 4, {vLANE}", f"v_bfe_u32 v11, {vLANE}, 2, 2", f"v_and_b32 v12, 3, {vLANE}",
          "v_lshl_add_u32 v13, v10, 3, v11", "v_lshlrev_b32 v13, 7, v13", "v_lshl_add_u32 v13, v12, 3, v13",
          "v_lshrrev_b32 v11, 1, v11", "v_and_b32 v14, 1, v10", "v_lshl_or_b32 v11, v14, 1, v11",
          f"v_xor_b32 v11, {sW}, v11", f"v_lshl_add_u32 {vWrA}, v11, 5, v13", f"v_add_u32 {vWrB}, {2 * 24576}, {vWrA}")
        a(f"v_and_b32 v11, 15, {vLANE}", "v_lshrrev_b32 v12, 1, v11", "v_xor_b32 v12, v12, v10", "v_lshlrev_b32 v12, 4, v12",
          "v_lshl_add_u32 v12, v11, 7, v12", f"s_add_u32 {T[0]}, {sU[0]}, {LB}", f"v_add_u32 v{XA}, {T[0]}, v12")
        for k in range(1, 8): a(f"v_xor_b32 v{XA + k}, {((k >> 1) << 11) | ((k & 1) << 6)}, v{XA}")
        for r in range(252, 256): a(f"v_mov_b32 v{r}, {sONES}")
        early = self.opt.get("qearly", 0)
        QS = 0.25 * 1.4426950408889634
        a(f"v_and_b32 v16, 15, {vLANE}", f"v_lshrrev_b32 v17, 4, {vLANE}", f"v_and_b32 v20, 3, {vLANE}", "v_lshrrev_b32 v21, 2, v16",
          f"s_lshl_b32 {T[0]}, {sW}, 6", f"s_add_u32 {T[0]}, {T[0]}, {STA}",
          "v_cmp_eq_u32 vcc, v17, v21", "v_cndmask_b32_e64 v21, 0, -1, vcc",
          "v_lshlrev_b32 v16, 2, v16", f"v_add_u32 v16, {T[0]}, v16", "v_lshlrev_b32 v18, 4, v17", f"v_add_u32 v18, {T[0]}, v18",
          "v_and_b32 v17, 1, v17", "v_lshl_add_u32 v19, v17, 8, v16",
          f"s_and_b32 {T[6]}, {sW}, 1", f"s_lshl_b32 {T[6]}, {T[6]}, 8", f"s_lshr_b32 {T[7]}, {sW}, 1", f"s_lshl_b32 {T[7]}, {T[7]}, 10",
          f"s_or_b32 {T[6]}, {T[6]}, {T[7]}", f"v_or_b32 v42, {T[6]}, v63", f"s_lshl_b32 {T[6]}, {sW}, 9", f"v_or_b32 v46, {T[6]}, {vPAT}",
          f"v_mov_b32 v22, {f2u(QS)}", f"v_mov_b32 v23, {f2u(QS)}")
        self.emit_all(dma(1))
        if pq == 2: pfq()
        for r in range(1, 4): a(f"v_xor_b32 v{42 + r}, {((r & 1) << 8) | ((r >> 1) << 10)}, v42", f"v_xor_b32 v{46 + r}, {r << 9}, v46")
        a(f"s_lshl_b32 {T[4]}, {sCB}, 2", f"s_add_u32 {T[4]}, {T[4]}, {sW}",
          f"s_lshl_b32 {sU[5]}, {T[4]}, 16", f"s_lshl_b32 {T[3]}, {sR0}, 5", f"s_add_u32 {sU[5]}, {sU[5]}, {T[3]}",
          f"s_add_u32 {sU[5]}, {sU[5]}, {WS_Q}",
          f"s_lshl_b32 {sU[6]}, {T[4]}, 17", f"s_lshl_b32 {T[3]}, {sR0}, 6", f"s_add_u32 {sU[6]}, {sU[6]}, {T[3]}",
          f"s_add_u32 {sU[6]}, {sU[6]}, {WS_KV}", f"s_add_u32 {sU[7]}, {sU[6]}, 2048",
          f"s_lshl_b32 {T[0]}, {sRB}, 5", f"s_add_u32 {T[0]}, {T[0]}, {T[4]}", f"s_lshl_b32 {T[0]}, {T[0]}, 7",
          f"s_lshl_b32 {T[4]}, {sJ}, 3", f"s_add_u32 {T[0]}, {T[0]}, {T[4]}", f"s_add_u32 {sU[8]}, {T[0]}, {WS_F1}")
        a("s_waitcnt lgkmcnt(0)", f"s_mov_b32 {sRB8}, {sU[1]}")
        a(f"buffer_load_dwordx2 v[4:5], off, {sWS}, 0 sc1")
        etok = a.vtok()
        tl = self.opt.get("tlb", 0)
        if tl:
            a(f"v_min_u32 v248, 9, {vLANE}", "v_lshlrev_b32 v248, 21, v248", f"buffer_load_dword v249, v248, {sWS}, 0 offen offset:2048")
            if tl >= 2:
                a(f"buffer_load_dword v249, v248, {sWSP}, 0 offen", f"buffer_load_dword v249, off, {sWO}, 0", f"buffer_load_dword v249, off, {sWIN}, 0",
                  f"buffer_load_dword v249, off, {sWOUT}, 0", f"buffer_load_dword v249, off, {sBSP}, 0")
            if tl >= 3: a(f"buffer_load_dword v249, off, {sOUT}, 0")
        if not early: self.emit_all(dma(2))
        self.stamp("issued")
        def abuf(s): return 64 + 16 * (s % 3)
        def wbuf(s): return (112, 176, 188)[s % 3]
        def reads(s):
            t, sub = s >> 1, s & 1
            slot = t & 3
            wb = vWrA if slot < 2 else vWrB
            wo = (slot & 1) * 24576 + sub * 4096
            A, W = abuf(s), wbuf(s)
            L = [f"ds_read_b64_tr_b16 {v(W + 2 * h, 2)}, {wb} offset:{wo + 512 * h}" for h in range(2)]
            L += [f"ds_read_b128 {v(A + 4 * r, 4)}, v{XA + 2 * r + sub} offset:{t * 8192}" for r in range(4)]
            L += [f"ds_read_b64_tr_b16 {v(W + 4 * p + 2 * h, 2)}, {wb} offset:{wo + 8192 * p + 512 * h}" for p in (1, 2) for h in range(2)]
            return L
        def mfmas(s):
            A, W = abuf(s), wbuf(s)
            c = "0" if s == 0 else None
            ms = []
            for p in range(3):
                wv = v(W + 4 * p, 4)
                for r in range(4):
                    d, av = ACC + 16 * p + 4 * r, v(A + 4 * r, 4)
                    ms.append(mfma16(d, wv, av, c) if p < 2 else mfma16(d, av, wv, c))
                ms.append(mfma16(CSR[p], wv, "v[252:255]", c) if p < 2 else mfma16(CSR[p], "v[252:255]", wv, c))
                if p == 0: ms.append(mfma16(8, "v[252:255]", v(A, 4), c))
                if p == 1: ms.append(mfma16(24, v(A, 4), v(A, 4), c))
            if s == 15 and stin: ms = [ms[11], ms[5]] + [m for i, m in enumerate(ms) if i not in (5, 11)]
            return ms
        stin = self.opt.get("stin", 1)
        inv = f2u(1.0 / 512)
        chain = ["v_cmp_eq_u32 vcc, 1, v20", "v_cndmask_b32 v9, v24, v25, vcc", "v_cmp_eq_u32 vcc, 3, v20", f"v_mul_f32 v8, {inv}, v8",
                 "v_cndmask_b32_e64 v10, v26, v27, vcc", "v_cmp_lt_u32 vcc, 1, v20", "v_mul_f32 v12, v8, v8", "v_cndmask_b32 v9, v9, v10, vcc",
                 "v_and_b32 v9, v9, v21", "v_mov_b32 v10, v9", "v_cmp_eq_u32 vcc, 1, v17", "v_permlane32_swap_b32 v9, v10", "v_add_f32 v9, v9, v10",
                 "v_mov_b32 v10, v9", "v_permlane16_swap_b32 v9, v10", "v_add_f32 v9, v9, v10",
                 f"v_fma_f32 v9, v9, {T[5]}, -v12", "v_max_f32 v9, 0, v9", f"v_add_f32 v9, {f2u(1e-5)}, v9", "v_rsq_f32 v10, v9",
                 "v_mul_f32_e64 v11, -v8, v10", "v_cndmask_b32 v10, v10, v11, vcc", "ds_write_b32 v19, v10"]
        def extra(s):
            return [f"s_mov_b32 {T[5]}, {inv}"] + [lambda: None] * 9 + chain if s == 15 and stin else []
        def head0():
            a.wait(vm=tok[0]); self.barrier(); self.stamp("w0")
        before, late = {}, {}
        for t in range(7):
            def f(t=t):
                if not self.opt.get("q_nowait"): a.wait(vm=tok[t + 1])
                self.barrier(); self.stamp(f"qc{t + 1}")
            before[2 * t] = f
        def f15():
            a.wait(lg=a.lg); self.barrier()
        before[15] = f15
        if self.opt.get("q_nodma"):
            dma = lambda t: (tok.__setitem__(t, a.vtok()), [[]] * 8)[1]
        d3 = dma(3)
        late[0], late[1] = d3[:4], d3[4:]
        if early: late[0], late[1] = dma(2), d3
        for t in range(4, 8):
            d = dma(t)
            late[2 * t - 6], late[2 * t - 5] = d[:4], d[4:]
        cf = self.const_fill(52)
        late[15] = [cf[0:4], cf[4:8], cf[8:10], cf[10:]]
        if stin: late[14] = [cf[0:4], cf[4:8], cf[8:10]]; late[15] = [cf[10:]]
        late[12] = [[lambda: a.wait(vm=etok)], ["v_add_u32 v4, 0x9e3779b9, v4"], ["v_add_u32 v5, 0x7f4a7c15, v5"]]
        late[13] = [["v_readfirstlane_b32 s50, v4"], ["v_readfirstlane_b32 s51, v5"]]
        self.kloop(16, reads, mfmas, before, late, {0: head0}, extra=extra)
        self.stamp("qkv_gemm")
        if not stin:
            a("v_cmp_eq_u32 vcc, 1, v20", "v_cndmask_b32 v9, v24, v25, vcc", "v_cmp_eq_u32 vcc, 3, v20",
              "v_cndmask_b32_e64 v10, v26, v27, vcc", "v_cmp_lt_u32 vcc, 1, v20", "v_cndmask_b32 v9, v9, v10, vcc", "v_and_b32 v9, v9, v21",
              "v_mov_b32 v10, v9", "v_permlane32_swap_b32 v9, v10", "v_add_f32 v9, v9, v10", "v_mov_b32 v10, v9",
              "v_cmp_eq_u32 vcc, 1, v17", "v_permlane16_swap_b32 v9, v10", "v_add_f32 v9, v9, v10")
            self.ln_finish([(8, 9, 10)], 1.0 / 512)
            a("v_cndmask_b32 v10, v10, v11, vcc", "ds_write_b32 v19, v10")
        a.wait(lg=a.lg)
        self.barrier()
        for r in range(4):
            if r: a(f"v_xor_b32 v20, {r << 6}, v16")
            a(f"ds_read2_b32 {v(64 + 2 * r, 2)}, {'v16' if r == 0 else 'v20'} offset1:64")
        qtok = a.ltok()
        for r in range(4):
            if r: a(f"v_xor_b32 v21, {r << 6}, v18")
            p18 = "v18" if r == 0 else "v21"
            a(f"ds_read_b128 {v(80 + 8 * r, 4)}, {p18}", f"ds_read_b128 {v(84 + 8 * r, 4)}, {p18} offset:256")
        a.wait(lg=qtok)
        for p in (1, 2, 0):
            if p == 2:
                a.wait(lg=a.lg)
                for r in range(4): a(f"v_pk_mul_f32 {v(72 + 2 * r, 2)}, {v(64 + 2 * r, 2)}, v[22:23]")
            for r0 in (0, 2):
                work = [(r, k) for r in (r0, r0 + 1) for k in range(2)]
                tm = {w_: 52 + 2 * i for i, w_ in enumerate(work)}
                for r, k in work:
                    c = v(CSR[p] + 2 * k, 2)
                    if p == 2: a(f"v_pk_mul_f32 {v(tm[r, k], 2)}, {c}, {v(84 + 8 * r + 2 * k, 2)}")
                    else: a(f"v_pk_mul_f32 {v(tm[r, k], 2)}, {c}, {v((72 if p == 0 else 64) + 2 * r, 2)} op_sel:[0,1] op_sel_hi:[1,1]")
                for r, k in work:
                    d = v(ACC + 16 * p + 4 * r + 2 * k, 2)
                    if p == 2: a(f"v_pk_fma_f32 {d}, {d}, {v(80 + 8 * r + 2 * k, 2)}, {v(tm[r, k], 2)}")
                    else: a(f"v_pk_fma_f32 {d}, {d}, {v((72 if p == 0 else 64) + 2 * r, 2)}, {v(tm[r, k], 2)} op_sel:[0,0,0] op_sel_hi:[1,0,1]")
                for r, k in work:
                    d = ACC + 16 * p + 4 * r + 2 * k
                    a(f"v_cvt_pk_bf16_f32 v{ACC + 16 * p + 4 * r + k}, v{d}, v{d + 1}")
                for r in (r0, r0 + 1):
                    o = v(ACC + 16 * p + 4 * r, 2)
                    if p < 2: a(f"buffer_store_dwordx2 {o}, v{42 + r}, {sWS}, {sU[5] if p == 0 else sU[6]} offen sc1")
                    else: a(f"buffer_store_dwordx2 {o}, v{46 + r}, {sWS}, {sU[7]} offen sc1")
        stok = a.vtok()
        if self.opt.get("pfs2", 0):
            a(f"s_lshl_b32 {T[3]}, s2, 2", f"s_add_u32 {T[3]}, {T[3]}, {sW}", f"s_lshl_b32 {T[3]}, {T[3]}, 13", f"s_add_u32 {T[4]}, {T[3]}, 4096")
            for i in range(4): a(f"buffer_load_dwordx4 v[244:247], {vL16}, {sWSP}, {T[3 + (i >> 1)]} offen offset:{1024 * (i & 1)}")
        self.flag_store(sU[8], stok)
        self.stamp("qkv_pub")
        self.attn_addresses()

    def ln_finish(self, chains, inv_n):
        a = self.a
        for s1, s2, d in chains: a(f"v_mul_f32 v{s1}, {f2u(inv_n)}, v{s1}", f"v_mul_f32 v{s2}, {f2u(inv_n)}, v{s2}")
        for s1, s2, d in chains: a(f"v_fma_f32 v{s2}, -v{s1}, v{s1}, v{s2}")
        for s1, s2, d in chains: a(f"v_max_f32 v{s2}, 0, v{s2}")
        for s1, s2, d in chains: a(f"v_add_f32 v{s2}, {f2u(1e-5)}, v{s2}")
        for s1, s2, d in chains: a(f"v_rsq_f32 v{d}, v{s2}")
        for s1, s2, d in chains: a(f"v_mul_f32_e64 v{d + 1}, -v{s1}, v{d}")

    def const_fill(self, t=8):
        L = [f"v_and_b32 v{t}, 27, {vLANE}", f"v_cmp_eq_u32 vcc, 1, v{t}", f"v_mov_b32 v{t + 1}, {sONES}",
             f"v_cndmask_b32 v{t + 4}, v3, v{t + 1}, vcc", f"v_mov_b32 v{t + 5}, v{t + 4}", f"v_mov_b32 v{t + 6}, v{t + 4}", f"v_mov_b32 v{t + 7}, v{t + 4}",
             f"s_lshl_b32 {T[3]}, {sW}, 12", f"s_add_u32 {T[3]}, {T[3]}, {LC + 2048}", f"v_add_u32 v{t + 1}, {T[3]}, {vL16}",
             f"ds_write_b128 v{t + 1}, {v(t + 4, 4)}", f"ds_write_b128 v{t + 1}, {v(t + 4, 4)} offset:1024"]
        return L

    S, OA, NM, QF, KB, VB = 64, 112, 144, 176, 184, 192
    vIDX, vSP0, vKA, vKB2, vVB, vVI, vWD0, vXR = 208, 209, 213, 214, 215, 216, 217, 240

    def attn_addresses(self):
        a = self.a
        a(f"v_and_b32 v8, 15, {vLANE}", f"v_lshrrev_b32 v9, 4, {vLANE}", "v_lshlrev_b32 v10, 12, v8", "v_lshl_add_u32 v10, v9, 4, v10",
          f"s_lshl_b32 {T[6]}, {sR0}, 12", f"s_lshl_b32 {T[7]}, {sW}, 7", f"s_add_u32 {T[6]}, {T[6]}, {T[7]}",
          f"v_add_u32 v{self.vSP0}, {T[6]}, v10")
        for tt in range(1, 4): a(f"v_add_u32 v{self.vSP0 + tt}, {tt * 65536}, v{self.vSP0}")
        a(f"v_mov_b32 v{self.vIDX}, 0xdddddddd", f"v_mov_b32 v{self.vKA}, {vL16}", f"v_add_u32 v{self.vKB2}, {LB}, {vL16}")
        a(f"v_lshrrev_b32 v10, 5, {vLANE}", "v_lshl_add_u32 v10, v10, 4, v8", "v_lshlrev_b32 v10, 4, v10",
          f"v_and_b32 v11, 31, {vLANE}", f"v_bfe_u32 v12, {vLANE}, 2, 2",
          "v_add_u32 v12, -1, v12", "v_cmp_gt_u32 vcc, 2, v12", "v_cndmask_b32_e64 v12, 0, 4, vcc",
          "v_and_b32 v13, 27, v11", "v_cmp_eq_u32 vcc, 16, v13", "v_cndmask_b32_e64 v13, 0, 1, vcc",
          "v_add_u32 v12, v12, v13", "v_lshlrev_b32 v12, 4, v12", f"v_add_u32 v12, {LC}, v12",
          "v_cmp_gt_u32 vcc, 16, v11", f"v_cndmask_b32 v{self.vVB}, v12, v10, vcc",
          f"v_mov_b32 v13, 0x4000", f"v_cndmask_b32 v{self.vVI}, v3, v13, vcc")
        self.w128_addresses(self.vWD0, 16)
        self.win_addresses()
        a(f"s_lshl_b32 {T[5]}, {sHEAD}, 17", f"s_lshl_b32 {sU[1]}, {sW}, 12", f"s_add_u32 {T[5]}, {T[5]}, {sU[1]}", f"s_add_u32 {T[5]}, {T[5]}, {WS_KV}")
        for t in range(8):
            a(f"s_add_u32 {T[6]}, {sJ}, {t}", f"s_and_b32 {T[6]}, {T[6]}, 7", f"s_lshl_b32 {T[6]}, {T[6]}, 14", f"s_add_u32 {sROT[t]}, {T[6]}, {T[5]}")
        a(f"s_add_u32 {sSPR}, {sRB8}, {sJ}")
        if self.opt.get("s5prog", 0): a(f"s_and_b32 {sSPR}, {sJ}, 6")
        spr = self.opt.get("sprot", 4)
        if spr == 1: a(f"s_mov_b32 {sSPR}, {sCB}")
        if spr == 2: a(f"s_add_u32 {sSPR}, {sCB}, {sRB8}")
        if spr == 3: a(f"s_and_b32 {sSPR}, {sCB}, 3", f"s_lshl_b32 {sSPR}, {sSPR}, 1")
        if spr == 5: a(f"s_and_b32 {T[6]}, {sCB}, 4", f"s_add_u32 {sSPR}, {sSPR}, {T[6]}")
        if spr == 6: a(f"s_and_b32 {T[6]}, {sCB}, 4", f"s_add_u32 {sSPR}, {sJ}, {T[6]}")
        if spr == 7: a(f"s_and_b32 {T[6]}, {sCB}, 4", f"s_lshr_b32 {sSPR}, {sJ}, 1", f"s_add_u32 {sSPR}, {sSPR}, {T[6]}")
        if spr == 8: a(f"s_and_b32 {T[6]}, {sCB}, 5", f"s_mov_b32 {sSPR}, {T[6]}")
        if spr == 9: a(f"s_mov_b32 {sSPR}, 0")
        if spr == 4: a(f"s_lshr_b32 {sSPR}, {sCB}, 2", f"s_lshl_b32 {sSPR}, {sSPR}, 2")
        if self.opt.get("pfs2", 0) or self.opt.get("lpf", 0): a(f"s_mov_b32 {sSPR}, 0")
        for t in range(8):
            a(f"s_add_u32 {T[6]}, {sSPR}, {t}", f"s_and_b32 {T[6]}, {T[6]}, 7", f"s_lshl_b32 {sU[4 + t]}, {T[6]}, 9")
        a(f"v_lshrrev_b32 v226, 3, {vLANE}", f"s_lshl_b32 {T[6]}, {sCB}, 3", f"s_add_u32 {T[6]}, {T[6]}, {sR0}", f"v_add_u32 v226, {T[6]}, v226",
          "v_lshlrev_b32 v226, 12, v226", f"v_and_b32 v8, 7, {vLANE}", "v_lshl_add_u32 v226, v8, 4, v226",
          f"s_lshl_b32 {T[6]}, {sW}, 7", f"v_add_u32 v226, {T[6]}, v226")
        a(f"v_and_b32 v8, 15, {vLANE}", f"v_lshrrev_b32 v9, 4, {vLANE}", "v_lshlrev_b32 v8, 10, v8", "v_lshl_add_u32 v62, v9, 3, v8")
        a(f"v_and_b32 v10, 15, {vLANE}", f"v_bfe_u32 v11, {vLANE}, 4, 1", f"v_lshrrev_b32 v12, 5, {vLANE}",
          "v_lshlrev_b32 v10, 4, v10", "v_lshl_add_u32 v10, v11, 14, v10", "v_lshl_add_u32 v227, v12, 3, v10")
        for r in range(self.NM, self.NM + 0): pass

    def w128_addresses(self, r, t0=28):
        a = self.a
        p, q, u, x, y = ("v%d" % (t0 + i) for i in range(5))
        a(f"v_lshrrev_b32 {p}, 3, {vLANE}", f"v_and_b32 {q}, 7, {vLANE}", f"v_bfe_u32 {u}, {vLANE}, 4, 1",
          f"v_lshrrev_b32 {x}, 1, {q}", f"v_xor_b32 {x}, {x}, {u}", f"v_and_b32 {y}, 1, {q}", f"v_lshl_or_b32 {x}, {x}, 1, {y}",
          f"v_lshlrev_b32 {x}, 4, {x}", f"v_lshl_add_u32 {x}, {p}, 10, {x}",
          f"s_lshl_b32 {T[6]}, {sCB}, 7", f"v_add_u32 v{r}, {T[6]}, {x}", f"v_xor_b32 v{r + 1}, 64, v{r}",
          f"v_add_u32 v{r + 1}, {7 * 1024}, v{r + 1}", f"v_add_u32 v{r + 2}, {14 * 1024}, v{r}", f"v_add_u32 v{r + 3}, {14 * 1024}, v{r + 1}")

    def w128_dma(self, r, srd, pos, lds, nsteps):
        L = [f"s_lshr_b32 {T[4]}, {pos}, 1", f"s_add_u32 {T[4]}, {T[4]}, {sU[4]}"]
        n = nsteps // 2
        if n & (n - 1) == 0: L.append(f"s_and_b32 {T[4]}, {T[4]}, {n - 1}")
        else: L += [f"s_cmp_ge_u32 {T[4]}, {n}", f"s_cselect_b32 {T[7]}, {n}, 0", f"s_sub_u32 {T[4]}, {T[4]}, {T[7]}"]
        L += [f"s_lshl_b32 {T[4]}, {T[4]}, 1", f"s_and_b32 {T[7]}, {pos}, 1", f"s_add_u32 {T[4]}, {T[4]}, {T[7]}", f"s_lshl_b32 {T[4]}, {T[4]}, 15",
              f"s_mov_b32 m0, {lds}"]
        return L, [f"buffer_load_dwordx4 v{r + i}, {srd}, {T[4]} offen offset:{1024 * i} lds" for i in range(4)]

    def stage_base(self, t): return LA + 16384 * t if t < 4 else LB + 16384 * (t - 4)

    def kv_dma(self, t):
        L = [([f"s_add_u32 m0, {sU[1]}, {self.stage_base(t)}"] if i == 0 else [],
              f"buffer_load_dwordx4 {vL16}, {sWS}, {sROT[t]} offen offset:{1024 * i} sc1 lds") for i in range(4)]
        return L

    def phase_attn(self):
        a = self.a
        S, OA, NM, QF, KB, VB = self.S, self.OA, self.NM, self.QF, self.KB, self.VB
        a(f"s_lshl_b32 {T[0]}, {sW}, 5", f"s_add_u32 {T[0]}, {T[0]}, {sHEAD}", f"s_lshl_b32 {T[0]}, {T[0]}, 7", f"s_add_u32 {T[0]}, {T[0]}, {WS_F1}",
          f"s_lshl_b32 {T[1]}, {sHEAD}, 16", f"s_lshl_b32 {T[2]}, {sJ}, 13", f"s_add_u32 {T[1]}, {T[1]}, {T[2]}",
          f"s_lshl_b32 {T[2]}, {sW}, 11", f"s_add_u32 {T[1]}, {T[1]}, {T[2]}", f"s_add_u32 {T[1]}, {T[1]}, {WS_Q}",
          )
        for r in range(OA, OA + 32): a(f"v_mov_b32 v{r}, 0")
        a(f"s_lshr_b32 {P[0]}, {sHEAD}, 1", f"s_lshl_b32 {P[0]}, {P[0]}, 10", f"s_and_b32 {P[1]}, {sHEAD}, 1", f"s_lshl_b32 {P[1]}, {P[1]}, 9",
          f"s_add_u32 {P[0]}, {P[0]}, {P[1]}", f"s_lshl_b32 {P[1]}, {sJ}, 18", f"s_add_u32 {P[0]}, {P[0]}, {P[1]}",
          f"s_lshl_b32 {P[1]}, {sW}, 16", f"s_add_u32 {P[0]}, {P[0]}, {P[1]}", f"s_add_u32 {P[0]}, {P[0]}, {WS_O}", f"s_add_u32 {P[1]}, {P[0]}, 0x8000",
          f"s_lshl_b32 {P[2]}, {sJ}, 2", f"s_add_u32 {P[2]}, {P[2]}, {sW}", f"s_lshl_b32 {P[2]}, {P[2]}, 12",
          f"s_lshl_b32 {P[3]}, {sHEAD}, 7", f"s_add_u32 {P[2]}, {P[2]}, {P[3]}", f"s_add_u32 {P[2]}, {P[2]}, {WS_F2}",
          f"s_lshl_b32 {P[3]}, {sRH}, 15", f"s_lshl_b32 {P[4]}, {sR0}, 10", f"s_add_u32 {P[3]}, {P[3]}, {P[4]}",
          f"s_lshl_b32 {P[4]}, {sCB}, 7", f"s_add_u32 {P[3]}, {P[3]}, {P[4]}", f"s_lshl_b32 {P[4]}, {sCH}, 6", f"s_add_u32 {P[3]}, {P[3]}, {P[4]}",
          f"s_add_u32 {P[4]}, {P[3]}, 0x4000")
        self.w128_read_base(28, 2)
        wolate = self.opt.get("wolate", 1)
        if wolate: a(f"v_add_u32 v28, {LB}, v28", f"v_add_u32 v29, {LB}, v29")
        L, E, F = a.label("s1"), a.label("s1own"), a.label("s1all")
        a(f"s_mov_b32 {sPOLL}, 0x40000", f"s_lshl_b32 {T[2]}, 1, {sJ}", f"{L}:", f"buffer_load_dwordx2 v[8:9], {vFP8}, {sWS}, {T[0]} offen sc1")
        a.wait(vm=a.vm, force=True)
        a(f"v_cmp_ne_u64 vcc, {sTAG}, v[8:9]", f"s_sub_u32 {sPOLL}, {sPOLL}, 1", f"s_cbranch_scc1 {E}",
          f"s_and_b32 {T[3]}, vcc_lo, {T[2]}", f"s_cbranch_scc1 {L}", f"{E}:", "s_mov_b64 s[60:61], vcc")
        self.stamp("s1")
        for q in range(2):
            a(f"buffer_load_dwordx4 {v(QF + 4 * q, 4)}, {vL16}, {sWS}, {T[1]} offen offset:{1024 * q} sc1")
        kvtok = {}
        def issue(items):
            for pre, ins in items: a(*pre, ins) if pre else a(ins)
        issue(self.kv_dma(0)); kvtok[0] = a.vtok()
        a(f"s_and_b32 {sU[3]}, s60, 0xff", f"s_mov_b32 {sU[2]}, {T[0]}")
        def remote_check(t0, t1):
            def f():
                if self.opt.get("norem"): return
                self.mask_check(t0, t1, sJ, sU[2], sU[3], 8)
            return f
        if self.opt.get("ahead"): a(f"buffer_load_dwordx4 v[228:231], v226, {sWSP}, {sU[4]} offen")
        a.wait(vm=kvtok[0], lg=a.lg)
        self.barrier()
        def kread(kt):
            t, k = kt >> 3, kt & 7
            base = self.vKA if t < 4 else self.vKB2
            return f"ds_read_b128 {v(KB + 4 * (kt & 1), 4)}, v{base} offset:{16384 * (t & 3) + (k >> 1) * 4096 + (k & 1) * 1024}"
        def vread(kt, hi):
            k = kt & 7
            return f"ds_read_b128 {v(VB + 8 * (kt & 1) + 4 * hi, 4)}, v{self.vVB} offset:{(k >> 1) * 4096 + 2048 + (k & 1) * 1024 + 512 * hi}"
        def qk(n, c=None):
            kt, q = n >> 1, n & 1
            return f"v_mfma_f32_32x32x16_bf16 {v(S + 16 * (n % 3), 16)}, {v(KB + 4 * (kt & 1), 4)}, {v(QF + 4 * q, 4)}, {c if c else v(NM + 16 * q, 16)}"
        def pv(n, hi):
            kt, q = n >> 1, n & 1
            return f"v_smfmac_f32_32x32x32_bf16 {v(OA + 16 * q, 16)}, {v(VB + 8 * (kt & 1) + 4 * hi, 4)}, {v(S + 16 * (n % 3) + 8 * hi, 8)}, v{self.vIDX}"
        a(kread(0), kread(1), vread(0, 0), vread(0, 1))
        a.wait(lg=a.lg)
        a(qk(0, "0"), qk(1, "0"))
        for q in range(2):
            b, m = S + 16 * q, 8 + 2 * q
            a(f"v_max3_f32 v{m}, v{b}, v{b + 1}, v{b + 2}")
            for k in range(3, 15, 2): a(f"v_max3_f32 v{m}, v{m}, v{b + k}, v{b + k + 1}")
            a(f"v_max_f32 v{m}, v{m}, v{b + 15}", f"v_mov_b32 v{m + 1}, v{m}")
        for q in range(2): a(f"v_permlane32_swap_b32 v{8 + 2 * q}, v{9 + 2 * q}")
        for q in range(2):
            m = 8 + 2 * q
            a(f"v_max_f32 v{m}, v{m}, v{m + 1}", f"v_sub_f32 v{m}, 0, v{m}")
            for r in range(0, 16, 2): a(f"v_pk_mov_b32 {v(NM + 16 * q + r, 2)}, {v(m, 2)}, {v(m, 2)} op_sel:[0,0]")
            a(qk(q))
        self.stamp("attn_start")
        if self.stamps: a("s_memtime s[100:101]", "s_waitcnt lgkmcnt(0)", "s_mov_b32 s99, s100")
        wotok = [-1]
        wo = []
        FREE0 = "free"
        for g in range(4):
            a(f"s_lshl_b32 {T[4]}, {sW}, 1", f"s_add_u32 {T[4]}, {T[4]}, {g >> 1}", f"s_add_u32 {T[4]}, {T[4]}, {sCB}", f"s_and_b32 {T[4]}, {T[4]}, 7",
              f"s_lshl_b32 {T[4]}, {T[4]}, 16", f"s_add_u32 {T[g]}, {T[4]}, {(g & 1) * 32768}")
            ins = [f"buffer_load_dwordx4 v{self.vWD0 + i}, {sWO}, {T[g]} offen offset:{1024 * i} lds" for i in range(4)]
            wo += [([f"s_lshl_b32 {sU[3]}, {sW}, 14", f"s_add_u32 m0, {sU[3]}, {(LB if wolate else LA) + g * 4096}"], ins[0]), ([], ins[1]), ([], ins[2]), ([], ins[3])]
        a(f"s_lshl_b32 {T[6]}, {sHEAD}, 2", f"s_add_u32 {T[6]}, {T[6]}, {sW}", f"s_mul_i32 {T[6]}, {T[6]}, 11008")
        pfw = [([f"s_add_u32 {T[6]}, {T[6]}, 4096"] if i and i % 4 == 0 else [],
                f"buffer_load_dwordx4 v[228:231], {vL16}, {sWIN}, {T[6]} offen offset:{(i % 4) * 1024}") for i in range(11)]
        if not self.opt.get("pfw"): pfw = []
        a(f"s_mov_b32 {T[7]}, {sU[4]}", f"s_mov_b32 {sU[4]}, {sCB}")
        w2c = self.win_dma(1, 28, 1, (T[4], T[5], T[6], sU[0]))
        self.emit(w2c[0][:-1]); a(f"s_mov_b32 {T[4]}, m0", f"s_mov_b32 {sU[4]}, {T[7]}")
        pfw += [([f"s_mov_b32 m0, {T[4]}"], w2c[0][-1]), ([], w2c[1][-1]), ([], w2c[2][-1])]
        if wolate:
            wo_late, wo = wo, [FREE0] * 16
        pf2 = []
        if self.opt.get("pf2", 1):
            a(f"s_lshl_b32 {T[5]}, s2, 2", f"s_add_u32 {T[5]}, {T[5]}, {sW}", f"s_mul_i32 {T[6]}, {T[5]}, 1376", f"s_mul_i32 {T[7]}, {T[5]}, 688",
              f"s_lshl_b32 {T[5]}, {T[5]}, 9",
              f"v_min_u32 v50, 42, {vLANE}", "v_lshlrev_b32 v50, 4, v50", f"v_min_u32 v51, 21, {vLANE}", "v_lshlrev_b32 v51, 4, v51",
              f"v_min_u32 v49, 31, {vLANE}", "v_lshlrev_b32 v49, 4, v49")
            J = "v[228:231]"
            pf2 = [([], f"buffer_load_dwordx4 {J}, v49, {sWO}, {T[5]} offen"), ([], f"buffer_load_dwordx4 {J}, {vL16}, {sWIN}, {T[6]} offen"),
                   ([], f"buffer_load_dwordx4 {J}, v51, {sWIN}, {T[6]} offen offset:1024"), ([], f"buffer_load_dwordx4 {J}, v50, {sWOUT}, {T[7]} offen")]
        if self.opt.get("pfb", 1):
            a(f"v_lshlrev_b32 v234, 6, {vLANE}")
            pf4 = [([], f"buffer_load_dword v228, v234, {sBSP}, 0 offen")]
            if self.opt.get("pfb", 1) >= 2:
                a(f"v_min_u32 v233, 9, {vLANE}", "v_lshlrev_b32 v233, 21, v233", "v_add_u32 v233, 0x700000, v233")
                pf4.append(([], f"buffer_load_dword v228, v233, {sWS}, 0 offen"))
            if self.opt.get("pfb", 1) >= 3:
                pf4.append(([], f"buffer_load_dword v228, off, {sOUT}, 0"))
            pf4 += ["free"] * (4 - len(pf4))
        else:
            pf4 = []
        if self.opt.get("pfs2", 0) == 1:
            pre0 = [f"s_lshl_b32 {sU[0]}, s2, 2", f"s_add_u32 {sU[0]}, {sU[0]}, {sW}", f"s_lshl_b32 {sU[0]}, {sU[0]}, 13"]
            pf3 = [(pre0 if i == 0 else [f"s_add_u32 {sU[0]}, {sU[0]}, 4096"] if i == 2 else [],
                    f"buffer_load_dwordx4 v[228:231], {vL16}, {sWSP}, {sU[0]} offen offset:{2048 + 1024 * (i & 1)}") for i in range(4)]
        else:
            pf3 = []
        post = {}
        slots = []
        spl = [([], f"buffer_load_dwordx4 {ar(((2 * t + sub) * 4 + tt) * 4, 4)}, v{self.vSP0 + tt}, {sWSP}, {sU[4 + t]} offen offset:{64 * sub}")
               for t in range(8) for sub in range(2) for tt in range(4)]
        lag = self.opt.get("splag", 0)
        if lag:
            first = [x for i, x in enumerate(spl) if (i >> 2) & 1 == 0]
            second = [x for i, x in enumerate(spl) if (i >> 2) & 1 == 1]
            spl = first[:lag]
            for i in range(lag, 32): spl += [first[i], second[i - lag]]
            spl += second[32 - lag:]
        if self.opt.get("nosp"): spl = []
        if self.opt.get("sp_eff"):
            spl = [([], f"buffer_load_dwordx4 {ar(k * 4, 4)}, v226, {sWSP}, {sU[4 + (k >> 3)]} offen offset:{(k & 7) * 512}") for k in range(64)]
            if self.opt.get("sp_eff") == 2:
                a(f"v_and_b32 v226, 0x3ffff, v226")
        slots = [None] * 128
        kv1 = self.kv_dma(1); kv1[0] = ([remote_check(1, 3)] + kv1[0][0], kv1[0][1])
        post[kv1[-1][1]] = lambda: kvtok.__setitem__(1, a.vtok())
        FREE = FREE0
        fewbar = self.opt.get("fewbar", 0)
        for t in range(8):
            kv = []
            if t < 6:
                kv = self.kv_dma(t + 2); post[kv[-1][1]] = (lambda t=t: kvtok.__setitem__(t + 2, a.vtok()))
                if t == 1: kv[0] = ([remote_check(3, 8)] + kv[0][0], kv[0][1])
            if t == 0:
                st = [None, None] + kv1 + kv + [pfw.pop(0) for _ in range(len(pfw))]
                st += [FREE] * (16 - len(st))
            else:
                if t < 6:
                    ex = pf2 if t == self.opt.get("pf2at", 2) and pf2 else pf3 if t == self.opt.get("pf3at", 1) and pf3 else pf4 if t == 3 and pf4 else [FREE] * 4
                    oth = [x for pair in zip(kv, ex) for x in pair]
                else:
                    oth = [wo.pop(0) for _ in range(8)]
                    if t == self.opt.get("pf2at", 2) and pf2: oth[0:8:2] = pf2
                st = [x for pair in zip(oth, [FREE] * 8) for x in pair]
            slots[16 * t:16 * t + 16] = st
        lpf = self.opt.get("lpf", 0)
        if lpf:
            a(f"s_lshl_b32 {P[5]}, s2, 2", f"s_add_u32 {P[5]}, {P[5]}, {sW}", f"s_lshl_b32 {P[5]}, {P[5]}, 13", f"v_add_u32 v232, 4096, {vL16}")
            pf = [([], f"buffer_load_dwordx4 v[228:231], {vL16 if r == 0 else 'v232'}, {sWSP}, {P[5]} offen offset:{1024 * q}") for q in range(4) for r in range(2)]
            start = self.opt.get("lpfstart", 26)
            for i in range(start):
                if slots[i] is FREE: slots[i] = pf.pop(0) if pf else None
            assert not pf, len(pf)
        if fewbar:
            def kvslots(t): return [i for i, x in enumerate(slots) if x and x is not FREE and f"{sROT[t]} offen" in x[1] and "sc1 lds" in x[1]]
            kvi = {t: [slots[i] for i in kvslots(t)] for t in range(3, 8)}
            for t in range(3, 8):
                for i in kvslots(t): slots[i] = FREE
            plan = {3: [16 + 2 * i for i in range(4)], 4: [32 + 2 * i for i in range(4)], 5: [40 + 2 * i for i in range(4)],
                    6: [64 + 2 * i for i in range(4)], 7: [72 + 2 * i for i in range(4)]}
            for t in range(3, 8):
                for i, x in zip(plan[t], kvi[t]):
                    if slots[i] is not FREE and slots[i] is not None:
                        j = next(k for k in range(i + 1, 128) if slots[k] is FREE); slots[j] = slots[i]
                    slots[i] = x
        if self.opt.get("kvearly", 0):
            kvs = [self.kv_dma(t) for t in range(2, 8)]
            for t, kv in zip(range(2, 8), kvs): post[kv[-1][1]] = (lambda t=t: kvtok.__setitem__(t, a.vtok()))
            w2cs = [x for x in slots[:16] if x and x is not FREE and str(sWIN) in x[1]]
            wos = [x for x in slots if x and x is not FREE and str(sWO) in x[1] and " lds" in x[1]]
            pre0 = [f"s_lshl_b32 {sU[2]}, s2, 2", f"s_add_u32 {sU[2]}, {sU[2]}, {sW}", f"s_lshl_b32 {sU[2]}, {sU[2]}, 13"]
            pfs = [(pre0 if i == 0 else [f"s_add_u32 {sU[2]}, {sU[2]}, 4096"] if i == 4 else [],
                    f"buffer_load_dwordx4 v[228:231], {vL16}, {sWSP}, {sU[2]} offen offset:{1024 * (i & 3)}") for i in range(8)]
            if self.opt.get("nopfs"): pfs = []
            head = [None, None] + kv1 + [x for kv in kvs for x in kv] + w2cs + pf2 + pfs
            q0 = self.opt.get("spstart", 50)
            assert len(head) <= q0
            slots = head + [None] * (q0 - len(head)) + [FREE] * (128 - q0)
            w0 = 128 - 2 * len(wos) - self.opt.get("wogap", 4)
            for i, x in enumerate(wos): slots[w0 + 2 * i] = x
        fr = [i for i, x in enumerate(slots) if x is FREE]
        for i in fr: slots[i] = None
        if self.opt.get("nowo"): slots = [x if not (x and str(sWO) in x[1]) else None for x in slots]; wotok[0] = a.vtok()
        if self.opt.get("nokv"):
            for t in range(1, 8): kvtok[t] = a.vtok()
            slots = [x if not (x and "sc1 lds" in x[1]) else None for x in slots]
        extra2 = {}
        for k, it in enumerate(spl):
            i = fr[(k * len(fr)) // len(spl)]
            if slots[i] is None: slots[i] = it
            else: extra2.setdefault(i, []).append(it[1])
        assert not wo and not pfw, (len(wo), len(pfw))
        last_wo = ([x for x in slots if x and str(sWO) in x[1]] or [(0, "none")])[-1][1]
        post[last_wo] = lambda: wotok.__setitem__(0, a.vtok())
        def vm_slot(i):
            if i < len(slots) and slots[i]:
                a(slots[i][1])
                if slots[i][1] in post: post[slots[i][1]]()
                for x in extra2.get(i, []): a(x)
        def vm_pre(i):
            if i < len(slots) and slots[i]: self.emit(slots[i][0])
        ac = self.opt.get("ac", 1)
        def lds_wait(kt):
            t = kt >> 3
            if kt & 7 == 5 and kt < 56 and fewbar:
                if t in (0, 1, 3, 5):
                    a.wait(vm=kvtok[1 if t == 0 else t + 2], lg=a.lg); self.barrier()
                else:
                    a.wait(lg=a.lg)
            elif kt & 7 == 5 and kt < 56:
                a.wait(vm=kvtok[(kt >> 3) + 1] if not self.opt.get("nokvw") else None, lg=a.lg)
                if not self.opt.get("nobar"): self.barrier()
            else:
                a.wait(lg=a.lg)
        vm_pre(0)
        for n in range(128):
            kt, q = n >> 1, n & 1
            b = S + 16 * (n % 3)
            E = lambda lo, hi: [a(f"v_exp_f32 v{b + r}, v{b + r}") for r in range(lo, hi)]
            E(0, 2)
            if n > 0: a(pv(n - 1, 1))
            if q == 0:
                if kt + 2 < 64: a(kread(kt + 2))
                if (kt + 1) & 7 == 0 and kt + 1 < 64:
                    for _ in range(3 if kt + 1 == 32 else 1): a(f"v_add_u32 v{self.vVB}, v{self.vVB}, v{self.vVI}")
            else:
                vm_slot(2 * kt)
                if not ac: vm_pre(2 * kt + 1)
            E(2, 7)
            if n + 2 < 128: a(qk(n + 2))
            if q == 0:
                if kt + 1 < 64: a(vread(kt + 1, 0))
            elif ac:
                lds_wait(kt); vm_pre(2 * kt + 1)
            else:
                vm_slot(2 * kt + 1)
            E(7, 12)
            a(pv(n, 0))
            if q == 0:
                if kt + 1 < 64: a(vread(kt + 1, 1))
                if kt > 0: vm_pre(2 * kt)
            elif ac:
                vm_slot(2 * kt + 1)
            else:
                lds_wait(kt)
            if q == 1 and self.opt.get("sp_ds"): a(f"ds_read_b128 v[228:231], v{self.vKA} offset:{kt * 1024}")
            E(12, 16)
        a.wait(vm=None if wolate else wotok[0], lg=a.lg)
        a(pv(127, 1))
        self.barrier()
        self.stamp("attn_loop")
        if self.stamps: a("s_memtime s[100:101]", "s_waitcnt lgkmcnt(0)", "s_sub_u32 s99, s100, s99")
        for q in range(2):
            o = OA + 16 * q
            a(f"v_pk_add_f32 {v(8 + 4 * q, 2)}, {v(o, 2)}, {v(o + 2, 2)}", f"v_pk_add_f32 {v(10 + 4 * q, 2)}, {v(o + 4, 2)}, {v(o + 6, 2)}")
        for q in range(2): a(f"v_pk_add_f32 {v(8 + 4 * q, 2)}, {v(8 + 4 * q, 2)}, {v(10 + 4 * q, 2)}")
        a("v_add_f32 v8, v8, v9", "v_add_f32 v12, v12, v13", "v_add_f32 v8, v8, v12", f"v_max_f32 v9, v{OA + 8}, v{OA + 24}",
          f"v_add_f32 v10, v{OA + 8}, v{OA + 24}", "v_add_f32 v8, v8, v10",
          f"s_mov_b32 {T[6]}, 0x207", f"v_cmp_class_f32_e64 vcc, v8, {T[6]}",
          f"s_mov_b64 s[60:61], vcc", f"v_cmp_le_f32 vcc, {f2u(2.0 ** 64)}, v9", "s_or_b64 vcc, vcc, s[60:61]")
        if self.force_fallback: a("s_mov_b64 vcc, -1")
        a("s_cbranch_vccnz L_attn_slow", "L_attn_done:")
        for q in range(2): a(f"v_rcp_f32 v{8 + q}, v{OA + 16 * q + 8}")
        for q in range(2):
            o = OA + 16 * q
            for k in range(8): a(f"v_mul_f32 v{o + k}, v{o + k}, v{8 + q}")
            for k in range(4): a(f"v_cvt_pk_bf16_f32 v{192 + 4 * q + k}, v{o + 2 * k}, v{o + 2 * k + 1}")
            for hf in range(2):
                a(f"buffer_store_dwordx2 {v(192 + 4 * q + 2 * hf, 2)}, v227, {sWS}, {P[q]} offen offset:{256 * hf} sc1")
        rd = [f"ds_read_b64_tr_b16 {v(64 + (nt * 16 + p) * 4 + 2 * hf, 2)}, v{28 + nt} offset:{p * 4096 + hf * 512}"
              for p in range(16) for nt in range(2) for hf in range(2)]
        if wolate:
            otok = a.vtok()
            k = self.opt.get("wopre", 8)
            for pre, ins in wo_late[:k]: a(*pre, ins)
            self.flag_store(P[2], otok)
            self.stamp("attn_pub")
            for pre, ins in wo_late[k:]: a(*pre, ins)
            self.wo_tok, self.wo_rd = a.vtok(), rd
        else:
            k = self.opt.get("rdpre", 24)
            self.emit(rd[:k])
            self.flag_store(P[2])
            self.stamp("attn_pub")
            self.emit(rd[k:])
        for rt in range(2):
            for nt in range(2):
                a(f"buffer_load_dwordx2 {v(self.vXR + 4 * rt + 2 * nt, 2)}, v62, {sX}, {P[3 + rt]} offen offset:{32 * nt}")

    def w128_read_base(self, b, n, tmp=(64, 65, 66, 67), b1=None):
        a = self.a
        p, q, r, t = ("v%d" % x for x in tmp)
        a(f"v_lshrrev_b32 {p}, 4, {vLANE}", f"v_bfe_u32 {q}, {vLANE}, 2, 2", f"v_and_b32 {r}, 3, {vLANE}",
          f"v_lshl_add_u32 {t}, {p}, 3, {q}", f"v_lshlrev_b32 {t}, 7, {t}", f"v_lshl_add_u32 {t}, {r}, 3, {t}",
          f"v_lshrrev_b32 {q}, 1, {q}", f"v_and_b32 {p}, 1, {p}", f"v_lshl_or_b32 {q}, {p}, 1, {q}",
          f"s_lshl_b32 {T[3]}, {sCH}, 1", f"v_xor_b32 {q}, {T[3]}, {q}", f"v_lshl_add_u32 v{b}, {q}, 5, {t}")
        a(f"v_xor_b32 v{b1 if b1 else b + 1}, 32, v{b}")

    def attn_slow(self):
        a = self.a
        S, OA, NM, QF, KB, VB = self.S, self.OA, self.NM, self.QF, self.KB, self.VB
        a.vm_done = a.vm; a.lg_done = a.lg
        a("L_attn_slow:", "s_nop 15", f"s_lshl_b32 {sU[4]}, {sHEAD}, 17", f"s_add_u32 {sU[4]}, {sU[4]}, {WS_KV}",
          f"v_mov_b32 v8, 0xff800000", f"v_mov_b32 v10, 0xff800000", f"s_mov_b32 {sU[5]}, 0")
        def kaddr():
            a(f"s_lshr_b32 {sU[6]}, {sU[5]}, 1", f"s_lshl_b32 {sU[6]}, {sU[6]}, 12", f"s_and_b32 {sU[7]}, {sU[5]}, 1", f"s_lshl_b32 {sU[7]}, {sU[7]}, 10",
              f"s_add_u32 {sU[6]}, {sU[6]}, {sU[7]}", f"s_add_u32 {sU[6]}, {sU[6]}, {sU[4]}")
        a("L_slow_max:"); kaddr()
        a(f"buffer_load_dwordx4 {v(KB, 4)}, {vL16}, {sWS}, {sU[6]} offen sc1"); a.wait(vm=a.vm, force=True)
        for q in range(2):
            a(f"v_mfma_f32_32x32x16_bf16 {v(S + 16 * q, 16)}, {v(KB, 4)}, {v(QF + 4 * q, 4)}, 0")
        for q in range(2):
            b, m = S + 16 * q, 8 + 2 * q
            for k in range(0, 16, 2): a(f"v_max3_f32 v{m}, v{m}, v{b + k}, v{b + k + 1}")
        a(f"s_add_u32 {sU[5]}, {sU[5]}, 1", f"s_cmp_lt_u32 {sU[5]}, 64", "s_cbranch_scc1 L_slow_max")
        a("v_mov_b32 v9, v8", "v_mov_b32 v11, v10")
        for q in range(2): a(f"v_permlane32_swap_b32 v{8 + 2 * q}, v{9 + 2 * q}")
        for q in range(2):
            m = 8 + 2 * q
            a(f"v_max_f32 v{m}, v{m}, v{m + 1}", f"v_sub_f32 v{m}, 0, v{m}")
            for r in range(16): a(f"v_mov_b32 v{NM + 16 * q + r}, v{m}")
        for r in range(OA, OA + 32): a(f"v_mov_b32 v{r}, 0")
        a(f"v_and_b32 v8, 27, {vLANE}", "v_cmp_eq_u32 vcc, 16, v8", f"v_mov_b32 v9, {sONES}", "v_cndmask_b32 v9, v3, v9, vcc")
        for r in range(8): a(f"v_mov_b32 v{VB + r}, v9")
        a(f"v_and_b32 v8, 15, {vLANE}", f"v_lshrrev_b32 v10, 5, {vLANE}", "v_lshl_add_u32 v10, v10, 4, v8", "v_lshlrev_b32 v10, 4, v10",
          f"s_mov_b32 {sU[5]}, 0", "s_mov_b32 s60, 0x0000ffff", "s_mov_b32 s61, 0x0000ffff")
        a("L_slow_pv:"); kaddr()
        a(f"buffer_load_dwordx4 {v(KB, 4)}, {vL16}, {sWS}, {sU[6]} offen sc1", f"s_add_u32 {sU[6]}, {sU[6]}, 2048", "s_mov_b64 exec, s[60:61]",
          f"buffer_load_dwordx4 {v(VB, 4)}, v10, {sWS}, {sU[6]} offen sc1",
          f"buffer_load_dwordx4 {v(VB + 4, 4)}, v10, {sWS}, {sU[6]} offen offset:512 sc1", "s_mov_b64 exec, -1")
        a.wait(vm=a.vm, force=True)
        for q in range(2):
            a(f"v_mfma_f32_32x32x16_bf16 {v(S + 16 * q, 16)}, {v(KB, 4)}, {v(QF + 4 * q, 4)}, {v(NM + 16 * q, 16)}")
        for q in range(2):
            for r in range(16): a(f"v_exp_f32 v{S + 16 * q + r}, v{S + 16 * q + r}")
            for hi in range(2):
                a(f"v_smfmac_f32_32x32x32_bf16 {v(OA + 16 * q, 16)}, {v(VB + 4 * hi, 4)}, {v(S + 16 * q + 8 * hi, 8)}, v{self.vIDX}")
        a(f"s_add_u32 {sU[5]}, {sU[5]}, 1", f"s_cmp_lt_u32 {sU[5]}, 64", "s_nop 15", "s_cbranch_scc1 L_slow_pv", "s_nop 15", "s_branch L_attn_done")

    def rot_table(self, npairs, mul):
        a = self.a
        a(f"s_mul_i32 {sU[4]}, {sCB}, {mul}")

    @staticmethod
    def gpos(p): return LRED + 4096 * p if p < 16 else 4096 * (p - 16)

    def rot_index(self, dst, pos, npairs):
        L = [f"s_add_u32 {dst}, {sU[4]}, {pos}"]
        if npairs & (npairs - 1) == 0: L.append(f"s_and_b32 {dst}, {dst}, {npairs - 1}")
        else: L += [f"s_cmp_ge_u32 {dst}, {npairs}", f"s_cselect_b32 {T[7]}, {npairs}, 0", f"s_sub_u32 {dst}, {dst}, {T[7]}"]
        return L

    def act_dma(self, ws_off, steps, chunks, lds0, gpos=False):
        a = self.a
        a(f"s_lshr_b32 {T[0]}, {sR0}, 4", f"s_add_u32 {T[0]}, {T[0]}, {sW}", f"s_mul_i32 {T[0]}, {T[0]}, {steps * 1024}",
          f"s_add_u32 {sU[0]}, {T[0]}, {ws_off}", f"s_mul_i32 {T[1]}, {sW}, {1024 if gpos else steps * 1024}", f"s_add_u32 {sU[1]}, {T[1]}, {lds0}")
        toks = {}
        pre4 = self.opt.get("pre4", 1)
        if pre4:
            for q in range(4): a(*self.rot_index(P[2 + q], q, steps // 2), f"s_lshl_b32 {P[2 + q]}, {P[2 + q]}, 11", f"s_add_u32 {P[2 + q]}, {P[2 + q]}, {sU[0]}")
        def group(c):
            p0 = sum(chunks[:c]); L = []
            for k in range(chunks[c]):
                p = p0 + k
                it = []
                so = P[2 + (p >> 1)] if pre4 and p < 8 else T[2]
                if k % 2 == 0:
                    if so == T[2]:
                        it += self.rot_index(T[2], p >> 1, steps // 2)
                        it += [f"s_lshl_b32 {T[2]}, {T[2]}, 11", f"s_add_u32 {T[2]}, {T[2]}, {sU[0]}"]
                    if not gpos: it.append(f"s_add_u32 m0, {sU[1]}, {p * 1024}")
                if gpos: it.append(f"s_add_u32 m0, {sU[1]}, {self.gpos(p) - (k % 2) * 1024}")
                it.append(f"buffer_load_dwordx4 {vL16}, {sWS}, {so} offen offset:{(k % 2) * 1024} sc1 lds")
                L.append(it)
            L[-1].append(lambda: toks.__setitem__(c, a.vtok()))
            return L
        return group, toks

    def cluster_flag_off(self, dst, base, own, shift=8):
        a = self.a
        a(f"s_lshl_b32 {dst}, {sCLU}, {shift}", f"s_add_u32 {dst}, {dst}, {base}")
        if own: a(f"s_lshl_b32 {T[7]}, {sCB}, 3", f"s_add_u32 {dst}, {dst}, {T[7]}")

    def stats_publish(self, s, base):
        a = self.a
        a(f"v_permlane32_swap_b32 v{s}, v{s + 1}", f"v_permlane32_swap_b32 v{s + 2}, v{s + 3}",
          f"v_add_f32 v{s}, v{s}, v{s + 1}", f"v_add_f32 v{s + 2}, v{s + 2}, v{s + 3}",
          f"v_permlane16_swap_b32 v{s}, v{s + 2}", f"v_add_f32 v{s}, v{s}, v{s + 2}")
        a(f"s_lshl_b32 {T[4]}, {sCLU}, 13", f"s_add_u32 {T[4]}, {T[4]}, {base}", f"s_lshl_b32 {T[5]}, {sRH}, 7", f"s_add_u32 {T[4]}, {T[4]}, {T[5]}",
          f"s_lshl_b32 {T[5]}, {sCB}, 1", f"s_add_u32 {T[5]}, {T[5]}, {sCH}", f"s_lshl_b32 {T[5]}, {T[5]}, 9", f"s_add_u32 {T[4]}, {T[4]}, {T[5]}",
          f"buffer_store_dword v{s}, v61, {sWS}, {T[4]} offen sc1")

    def stats_load(self, base, r):
        a = self.a
        a(f"s_lshl_b32 {T[4]}, {sCLU}, 13", f"s_add_u32 {T[4]}, {T[4]}, {base}", f"s_lshl_b32 {T[5]}, {sRH}, 7", f"s_add_u32 {T[4]}, {T[4]}, {T[5]}",
          f"s_add_u32 {T[5]}, {T[4]}, 4096")
        for p in range(16):
            a(f"buffer_load_dword v{r + p}, v61, {sWS}, {T[4] if p < 8 else T[5]} offen offset:{(p % 8) * 512} sc1")
        return a.vtok()

    SGR = 64
    def stats_publish_tagged(self, s, base):
        a = self.a
        a(f"v_permlane32_swap_b32 v{s}, v{s + 1}", f"v_permlane32_swap_b32 v{s + 2}, v{s + 3}",
          f"v_add_f32 v{s}, v{s}, v{s + 1}", f"v_add_f32 v{s + 2}, v{s + 2}, v{s + 3}",
          f"v_permlane16_swap_b32 v{s}, v{s + 2}", f"v_add_f32 v{s}, v{s}, v{s + 2}", f"v_mov_b32 v{s + 1}, v{s}",
          f"v_mov_b32 v{s + 2}, v4", f"v_mov_b32 v{s + 3}, v5", f"v_permlane32_swap_b32 v{s}, v{s + 1}")
        a(f"s_lshl_b32 {T[4]}, {sCLU}, 14", f"s_add_u32 {T[4]}, {T[4]}, {base}", f"s_lshl_b32 {T[5]}, {sRH}, 13", f"s_add_u32 {T[4]}, {T[4]}, {T[5]}",
          f"s_lshl_b32 {T[5]}, {sCB}, 1", f"s_add_u32 {T[5]}, {T[5]}, {sCH}", f"s_lshl_b32 {T[5]}, {T[5]}, 9", f"s_add_u32 {T[4]}, {T[4]}, {T[5]}",
          "s_mov_b32 exec_hi, 0", f"buffer_store_dwordx4 {v(s, 4)}, {vL16}, {sWS}, {T[4]} offen sc1", "s_mov_b32 exec_hi, -1")

    def stats_tagged_loads(self, base, r):
        R = r if isinstance(r, (list, tuple)) else [r + 4 * p for p in range(8)]
        L = [[f"buffer_load_dwordx4 {v(R[p], 4)}, v61, {sWS}, {sU[3]} offen offset:{512 * p} sc1"] for p in range(8)]
        L[0] = [f"s_lshl_b32 {sU[3]}, {sCLU}, 14", f"s_add_u32 {sU[3]}, {sU[3]}, {base}", f"s_lshl_b32 {T[5]}, {sRH}, 13", f"s_add_u32 {sU[3]}, {sU[3]}, {T[5]}",
                f"v_and_b32 v61, 31, {vLANE}", "v_lshlrev_b32 v61, 4, v61", f"v_lshrrev_b32 v54, 5, {vLANE}", "v_lshl_add_u32 v61, v54, 12, v61"] + L[0]
        return L

    def stats_tagged_finish(self, base, r, inv_n, d):
        a = self.a
        L, E = a.label("st_retry"), a.label("st_ok")
        a(f"s_mov_b32 {sPOLL}, 0x40000", f"{L}:")
        a.wait(vm=a.vm, force=True)
        a(f"v_cmp_ne_u64 s[60:61], {sTAG}, {v(r + 2, 2)}")
        for p in range(1, 8): a(f"v_cmp_ne_u64 vcc, {sTAG}, {v(r + 4 * p + 2, 2)}", "s_or_b64 s[60:61], s[60:61], vcc")
        a("s_cmp_eq_u64 s[60:61], 0", f"s_cbranch_scc1 {E}", f"s_sub_u32 {sPOLL}, {sPOLL}, 1", f"s_cbranch_scc1 {E}")
        a.cond_begin()
        for it in self.stats_tagged_loads(base, r)[0][-1:]: a(it)
        for it in self.stats_tagged_loads(base, r)[1:]: self.emit(it)
        a.cond_end()
        a(f"s_branch {L}", f"{E}:")
        a.vm_done = a.vm
        self.stats_sum(r, inv_n, d)

    def stats_sum(self, r, inv_n, d):
        a = self.a
        R = r if isinstance(r, (list, tuple)) else [r + 4 * p for p in range(8)]
        for st in (4, 2, 1):
            for k in range(st): a(f"v_pk_add_f32 {v(R[k], 2)}, {v(R[k], 2)}, {v(R[k + st], 2)}")
        r = R[0]
        a(f"v_mov_b32 v{r + 2}, v{r}", f"v_mov_b32 v{r + 3}, v{r + 1}",
          f"v_permlane32_swap_b32 v{r}, v{r + 2}", f"v_permlane32_swap_b32 v{r + 1}, v{r + 3}",
          f"v_pk_add_f32 {v(r, 2)}, {v(r, 2)}, {v(r + 2, 2)}")
        self.ln_finish([(r, r + 1, d)], inv_n)
        a(f"v_mov_b32 v{d + 2}, v{d}", f"v_mov_b32 v{d + 3}, v{d + 1}",
          f"v_permlane16_swap_b32 v{d}, v{d + 2}", f"v_permlane16_swap_b32 v{d + 1}, v{d + 3}")

    def stats_sum_items(self, R, inv_n):
        L = []
        for st in (4, 2, 1):
            for k in range(st): L += [f"v_add_f32 v{R[k] + e}, v{R[k] + e}, v{R[k + st] + e}" for e in range(2)]
        r, t = R[0], R[1]
        L += [f"v_mov_b32 v{t}, v{r}", f"v_mov_b32 v{t + 1}, v{r + 1}", f"v_permlane32_swap_b32 v{r}, v{t}", f"v_permlane32_swap_b32 v{r + 1}, v{t + 1}",
              f"v_add_f32 v{t}, v{r}, v{t}", f"v_add_f32 v{t + 1}, v{r + 1}, v{t + 1}",
              f"v_mul_f32 v{t}, {f2u(inv_n)}, v{t}", f"v_mul_f32 v{t + 1}, {f2u(inv_n)}, v{t + 1}", f"v_fma_f32 v{t + 1}, -v{t}, v{t}, v{t + 1}",
              f"v_max_f32 v{t + 1}, 0, v{t + 1}", f"v_add_f32 v{t + 1}, {f2u(1e-5)}, v{t + 1}", f"v_rsq_f32 v{r}, v{t + 1}", f"v_mul_f32_e64 v{r + 1}, -v{t}, v{r}",
              f"v_mov_b32 v{r + 2}, v{r}", f"v_mov_b32 v{r + 3}, v{r + 1}", f"v_permlane16_swap_b32 v{r}, v{r + 2}", f"v_permlane16_swap_b32 v{r + 1}, v{r + 3}"]
        return L

    STR2 = [216, 220, 224, 228, 232, 236, 52, 252]
    STR = 216
    def stats_load_items(self, base, r):
        L = []
        for p in range(16):
            it = []
            if p == 0:
                it += [f"s_lshl_b32 {T[4]}, {sCLU}, 13", f"s_add_u32 {T[4]}, {T[4]}, {base}", f"s_lshl_b32 {T[5]}, {sRH}, 7",
                       f"s_add_u32 {T[4]}, {T[4]}, {T[5]}", f"s_add_u32 {T[5]}, {T[4]}, 4096"]
            it.append(f"buffer_load_dword v{r + p}, v61, {sWS}, {T[4] if p < 8 else T[5]} offen offset:{(p % 8) * 512} sc1")
            L.append(it)
        return L

    def stats_finish(self, r, inv_n, d):
        a = self.a
        for st in (8, 4, 2):
            for k in range(0, st, 2): a(f"v_pk_add_f32 {v(r + k, 2)}, {v(r + k, 2)}, {v(r + st + k, 2)}")
        a(f"v_add_f32 v{r}, v{r}, v{r + 1}", f"v_mov_b32 v{r + 1}, v{r}", f"v_permlane32_swap_b32 v{r}, v{r + 1}")
        self.ln_finish([(r, r + 1, d)], inv_n)
        a(f"v_mov_b32 v{d + 2}, v{d}", f"v_mov_b32 v{d + 3}, v{d + 1}",
          f"v_permlane16_swap_b32 v{d}, v{d + 2}", f"v_permlane16_swap_b32 v{d + 1}, v{d + 3}")

    def win_addresses(self):
        a = self.a
        for i in range(3):
            a(f"v_add_u32 v16, {64 * i}, {vLANE}", "v_mul_u32_u24 v17, 171, v16", "v_lshrrev_b32 v17, 11, v17",
              "v_mul_u32_u24 v18, 12, v17", "v_sub_u32 v18, v16, v18", "v_bfe_u32 v19, v17, 3, 1", "v_lshlrev_b32 v19, 1, v19",
              "v_xor_b32 v18, v18, v19", "v_mul_u32_u24 v17, 2752, v17", "v_lshl_add_u32 v17, v18, 4, v17",
              f"v_add_u32 v{56 + i}, {-1024 * i}, v17")
        a(f"v_lshrrev_b32 v16, 4, {vLANE}", f"v_bfe_u32 v17, {vLANE}, 2, 2", f"v_and_b32 v18, 3, {vLANE}",
          "v_lshl_add_u32 v19, v16, 3, v17", "v_mul_u32_u24 v19, 192, v19", "v_lshl_add_u32 v19, v18, 3, v19",
          "v_and_b32 v17, 1, v16", f"v_xor_b32 v17, {sCH}, v17", "v_lshl_add_u32 v59, v17, 5, v19", "v_add_u32 v60, 49152, v59",
          f"v_and_b32 v17, 15, {vLANE}", "v_lshlrev_b32 v17, 2, v17", "v_and_b32 v18, 1, v16", "v_lshl_add_u32 v17, v18, 6, v17",
          "v_lshrrev_b32 v16, 1, v16", "v_lshl_add_u32 v61, v16, 8, v17")

    def win_dma(self, half, g0, per_wave, regs=None, wave=sW):
        r5, r6, r2, r7 = regs or (sU[5], sU[6], sU[2], sU[7])
        L = []
        for k in range(per_wave):
            for i in range(3):
                it = []
                if k == 0 and i == 0:
                    it += [f"s_lshl_b32 {r5}, {sT0}, 5", f"s_mul_i32 {r6}, {wave}, {per_wave}", f"s_lshl_b32 {r2}, {sU[4]}, 2",
                           f"s_add_u32 {r2}, {r2}, {r6}", f"s_mul_i32 {r6}, {r6}, 3072"]
                if i == 0:
                    it += [f"s_add_u32 {r7}, {r2}, {g0 + k}", f"s_and_b32 {r7}, {r7}, 31", f"s_mul_i32 {r7}, {r7}, {16 * 2752}",
                           f"s_add_u32 {r7}, {r7}, {r5}"]
                    if half: it.append(f"s_add_u32 {r7}, {r7}, 1376")
                    it.append(f"s_add_u32 m0, {r6}, {(g0 + k) * 3072}")
                it.append(f"buffer_load_dwordx4 v{56 + i}, {sWIN}, {r7} offen offset:{1024 * i} lds")
                L.append(it)
        return L

    def kloop(self, n, reads, mfmas, before={}, late={}, head=None, per=2, extra=None):
        a = self.a
        tok = {}
        for s in range(min(2, n)):
            if s in (head or {}): head[s]()
            self.emit(reads(s)); tok[s] = a.ltok()
        self.kl = getattr(self, "kl", -1) + 1
        for s in range(n):
            a.wait(lg=tok[s])
            if s in before: before[s]()
            if s % 4 == 0: self.stamp(f"k{self.kl}s{s}")
            ms = mfmas(s)
            fill = list(reads(s + 2)) + [lambda s=s: tok.__setitem__(s + 2, a.ltok())] if s + 2 < n else []
            if extra: fill += extra(s)
            lt = list(late.get(s, []))
            k = len(ms) - len(lt)
            assert k >= 1, (s, len(ms), len(lt))
            interleave(a, ms[:k], fill, per=per)
            for m, it in zip(ms[k:], lt):
                a(m); self.emit(it)

    def emit_all(self, items):
        for it in items: self.emit(it)

    def emit(self, items):
        for x in items: x() if callable(x) else self.a(x)

    def phase_wo(self):
        a = self.a
        ACC = 192
        a(f"s_mov_b32 {sU[4]}, {sCB if not self.opt.get('noarot') else 0}")
        fine = self.opt.get("fine", 1)
        group, toks = self.act_dma(WS_O, 16, [2, 2, 4, 4, 4] if fine else [4, 4, 4, 4], LB)
        self.cluster_flag_off(T[3], WS_F2, False, 12)
        a(f"s_lshl_b32 {T[4]}, {sRH}, 15", f"s_add_u32 {T[4]}, {T[4]}, {LB}", f"v_add_u32 v30, {T[4]}, {vL16}")
        n2 = 3
        ng = self.opt.get("w2s2", 4)
        Lp, Le = a.label("s2poll"), a.label("s2end")
        if self.opt.get("wolate", 1):
            done = a.vm_done
            a(f"s_cmp_eq_u32 {sW}, 0", f"s_cbranch_scc1 {Lp}", f"s_sub_u32 {T[5]}, {sW}, 1")
            a.cond_begin()
            if self.opt.get("w2first", 0): self.emit_all(self.win_dma(1, 0, ng, wave=T[5]))
            a.cond_end()
            a(f"{Lp}:")
            a.vm_done = done
            a.wait(vm=self.wo_tok)
            self.barrier()
            self.emit(self.wo_rd)
            Lq = a.label("s2poll")
            done = a.vm_done
            a(f"s_cmp_eq_u32 {sW}, 0", f"s_cbranch_scc1 {Lq}", f"s_sub_u32 {T[5]}, {sW}, 1")
            a.cond_begin()
            if not self.opt.get("w2first", 0): self.emit_all(self.win_dma(1, 0, ng, wave=T[5]))
            a(f"s_branch {Le}", f"{Lq}:")
            self.poll(vFP32, T[3], 52)
            a(f"{Le}:")
            a.cond_end()
            a.vm_done = done
            a.wait(lg=a.lg)
            self.barrier()
        else:
            a.wait(lg=a.lg)
            self.barrier()
            done = a.vm_done
            a(f"s_cmp_eq_u32 {sW}, 0", f"s_cbranch_scc1 {Lp}", f"s_sub_u32 {T[5]}, {sW}, 1")
            a.cond_begin()
            self.emit_all(self.win_dma(1, 0, ng, wave=T[5]))
            a(f"s_branch {Le}", f"{Lp}:")
            self.poll(vFP32, T[3], 52)
            a.cond_end()
            a(f"{Le}:")
            a.vm_done = done
            self.barrier()
        self.stamp("s2")
        for c in range(2 + fine): self.emit_all(group(c))
        def buf(s, rt): return (208 + (s % 4) * 8 + rt * 4)
        def reads(s): return [f"ds_read_b128 {v(buf(s, rt), 4)}, v30 offset:{(rt * 16 + s) * 1024}" for rt in range(2)]
        def mfmas(s):
            return [mfma16(ACC + (rt * 2 + nt) * 4, v(64 + (nt * 16 + s) * 4, 4), v(buf(s, rt), 4), v(32 + (rt * 2 + nt) * 4, 4) if s == 0 else None) for rt in range(2) for nt in range(2)]
        def w(c):
            def f():
                a.wait(vm=toks[c]); self.barrier()
            return f
        def head0():
            a.wait(vm=toks[0], lg=a.lg)
            for i in range(8): a(f"v_lshlrev_b32 v{32 + 2 * i}, 16, v{self.vXR + i}", f"v_and_b32 v{33 + 2 * i}, {sHIMASK}, v{self.vXR + i}")
            self.barrier()
        g2, g3 = group(2 + fine), group(3 + fine)
        pw = (28 - 3 * ng + 3) // 4
        w2 = self.win_dma(1, 28 - 4 * pw, pw)
        late = {0: g2[:2], 1: g2[2:], 2: g3[:2], 3: g3[2:]}
        for i in range(min(len(w2), self.opt.get("w2in", 12))): late[self.opt.get("w2at", 3) + i] = late.get(self.opt.get("w2at", 3) + i, []) + [w2.pop(0)]
        late[15] = late.get(15, []) + [[f"s_lshr_b32 {T[0]}, {sR0}, 4", f"s_lshl_b32 {T[1]}, {sRH}, 1", f"s_add_u32 {T[0]}, {T[0]}, {T[1]}", f"s_lshl_b32 {T[0]}, {T[0]}, 14"],
                                       [f"s_lshl_b32 {T[1]}, {sCB}, 1", f"s_add_u32 {T[1]}, {T[1]}, {sCH}", f"s_lshl_b32 {T[1]}, {T[1]}, 10", f"s_add_u32 {T[0]}, {T[0]}, {T[1]}"],
                                       [f"s_add_u32 {T[0]}, {T[0]}, {WS_H}", f"s_add_u32 {T[1]}, {T[0]}, 0x4000"]]
        self.kloop(16, reads, mfmas, {0: w(1), 2: w(2), 6: w(3), 10: w(4)} if fine else {2: w(1), 6: w(2), 10: w(3)}, late, {0: head0}, per=1)
        self.w2rest = w2
        self.stamp("wo_gemm")
        for i in range(4):
            for k in range(2): a(f"v_cvt_pk_bf16_f32 v{vH + 2 * i + k}, v{ACC + 4 * i + 2 * k}, v{ACC + 4 * i + 2 * k + 1}")
        for rt in range(2):
            for nt in range(2):
                a(f"buffer_store_dwordx2 {v(vH + 4 * rt + 2 * nt, 2)}, {vPAT}, {sWS}, {T[rt]} offen offset:{512 * nt} sc1")
        for k in range(4):
            for rt in range(2):
                h = f"v{vH + 4 * rt + k}"
                a(f"v_dot2_f32_bf16 v{32 + 2 * rt}, {h}, {sONES}, {'0' if k == 0 else 'v%d' % (32 + 2 * rt)}",
                  f"v_dot2_f32_bf16 v{33 + 2 * rt}, {h}, {h}, {'0' if k == 0 else 'v%d' % (33 + 2 * rt)}")
        self.stats_publish_tagged(32, WS_ST3)
        self.cluster_flag_off(T[0], WS_F3, True)
        self.flag_store_wg(T[0])
        self.stamp("wo_pub")

    HF, ACC2, ACC1, WB, CS = 64, 192, 216, 28, 240

    def win_reads(self, s, read_h):
        L = []
        base = "v59" if s < 8 else "v60"
        for m in range(3):
            for hf in range(2):
                L.append(f"ds_read_b64_tr_b16 {v(self.wbuf(s) + 4 * m + 2 * hf, 2)}, {base} offset:{(s & 7) * 6144 + hf * 768 + m * 64}")
            if m == 0 and read_h:
                L += [f"ds_read_b128 {v(self.HF + (rt * 16 + s) * 4, 4)}, v62 offset:{(rt * 16 + s) * 1024}" for rt in range(2)]
        return L

    def wbuf(self, s): return (28, 40, 16)[s % 3]

    def win_gemm(self, acc, before, head, read_h, late={}, cs=False, extra=None):
        HF = self.HF
        def mfmas(s):
            L = []
            for m in range(3):
                L += [mfma16(acc + (rt * 3 + m) * 4, v(self.wbuf(s) + 4 * m, 4), v(HF + (rt * 16 + s) * 4, 4), "0" if s == 0 else None) for rt in range(2)]
                if cs: L.append(mfma16(self.CS + 4 * m, v(self.wbuf(s) + 4 * m, 4), "v[252:255]", "0" if s == 0 else None))
            return L
        self.kloop(16, lambda s: self.win_reads(s, read_h), mfmas, before, late, head, per=3 if extra else 2, extra=extra)

    def colsum_pass(self, late={}, before={}):
        def mfmas(s): return [mfma16(self.CS + 4 * m, v(self.wbuf(s) + 4 * m, 4), "v[252:255]", "0" if s == 0 else None) for m in range(3)]
        self.kloop(16, lambda s: self.win_reads(s, False), mfmas, before, late, per=3)

    def gelu_block(self, acc, st, tiles):
        a = self.a
        CS = self.CS
        K1 = -2.0 * 1.4426950408889634 * 0.7978845608028654
        K2 = K1 * 0.044715
        a(f"s_mov_b32 s60, {f2u(K2)}", f"s_mov_b32 s61, {f2u(K2)}", f"v_mov_b32 v52, {f2u(K1)}", f"v_mov_b32 v53, {f2u(K1)}")
        for i in range(0, len(tiles), 2):
            prs = [(acc + (rt * 3 + m) * 4 + 2 * k, CS + 4 * m + 2 * k, st + 2 * rt) for rt, m in tiles[i:i + 2] for k in range(2)]
            tm = [40, 42, 44, 46]
            for (x, c, r), t in zip(prs, tm): a(f"v_pk_mul_f32 {v(t, 2)}, {v(c, 2)}, {v(r, 2)} op_sel:[0,1] op_sel_hi:[1,1]")
            for (x, c, r), t in zip(prs, tm): a(f"v_pk_fma_f32 {v(x, 2)}, {v(x, 2)}, {v(r, 2)}, {v(t, 2)} op_sel:[0,0,0] op_sel_hi:[1,0,1]")
            for (x, c, r), t in zip(prs, tm): a(f"v_pk_mul_f32 {v(t, 2)}, {v(x, 2)}, {v(x, 2)}")
            for (x, c, r), t in zip(prs, tm): a(f"v_pk_fma_f32 {v(t, 2)}, {v(t, 2)}, s[60:61], v[52:53]")
            for (x, c, r), t in zip(prs, tm): a(f"v_pk_mul_f32 {v(t, 2)}, {v(t, 2)}, {v(x, 2)}")
            for k in range(8): a(f"v_exp_f32 v{40 + k}, v{40 + k}")
            for (x, c, r), t in zip(prs, tm): a(f"v_pk_add_f32 {v(t, 2)}, {v(t, 2)}, v[32:33]")
            for k in range(8): a(f"v_rcp_f32 v{40 + k}, v{40 + k}")
            for (x, c, r), t in zip(prs, tm): a(f"v_pk_mul_f32 {v(x, 2)}, {v(x, 2)}, {v(t, 2)}")

    def phase_win(self):
        a = self.a
        HF, ACC2, ACC1, CS = self.HF, self.ACC2, self.ACC1, self.CS
        self.emit_all(self.w2rest)
        for r in range(252, 256): a(f"v_mov_b32 v{r}, {sONES}")
        a(f"s_lshl_b32 {T[4]}, {sRH}, 15", f"s_add_u32 {T[4]}, {T[4]}, {LB}", f"v_add_u32 v62, {T[4]}, {vL16}")
        fine = self.opt.get("fine", 1)
        group, toks = self.act_dma(WS_H, 16, [2, 2, 4, 4, 4] if fine else [4, 4, 4, 4], LB)
        self.cluster_flag_off(T[3], WS_F3, False)
        if self.w2rest:
            a.wait(vm=a.vm)
            self.barrier()
        ptok = [-1]
        self.colsum_pass({self.opt.get("p3at", 12): [self.poll_early(vFP8, T[3], 52) + [lambda: ptok.__setitem__(0, a.vtok())]]})
        self.stamp("cs2")
        self.poll_late(vFP8, T[3], 52, ptok[0])
        self.stamp("s3")
        for c in range(2 + fine): self.emit_all(group(c))
        def w(c):
            def f():
                a.wait(vm=toks[c]); self.barrier()
            return f
        g2, g3 = group(2 + fine), group(3 + fine)
        stl = self.stats_tagged_loads(WS_ST3, self.STR2)
        late = {0: g2[:2], 1: g2[2:], 2: g3[:2], 3: g3[2:]}
        for i in range(4): late[4 + i] = stl[2 * i:2 * i + 2]
        w1a = self.win_dma(0, 0, 3)
        for i in range(8): late[8 + i] = w1a[i:i + 1] if i < 7 else w1a[7:]
        stk = [-1]
        late[7][-1].append(lambda: stk.__setitem__(0, a.vtok()))
        ss = self.stats_sum_items(self.STR2, 1.0 / 512)
        def extra(s):
            if s < 12: return []
            n = (len(ss) + 15 - s) // (16 - s)
            return ([lambda: a.wait(vm=stk[0])] if s == 12 else []) + [ss.pop(0) for _ in range(n)]
        self.win_gemm(ACC2, {0: w(1), 2: w(2), 6: w(3), 10: w(4)} if fine else {2: w(1), 6: w(2), 10: w(3)}, {0: w(0)}, True, late, extra=extra)
        self.barrier()
        self.stamp("z2_gemm")
        w1tok = [a.vtok(), -1, -1]
        wb, wc = self.win_dma(0, 12, 3), self.win_dma(0, 24, 2)
        wb[-1].append(lambda: w1tok.__setitem__(1, a.vtok())); wc[-1].append(lambda: w1tok.__setitem__(2, a.vtok()))
        rest = wb + wc
        k = self.opt.get("w1pre", 9)
        self.emit_all(rest[:k]); rest = rest[k:]
        a("v_mov_b32 v34, v216", "v_mov_b32 v35, v217", "v_mov_b32 v36, v218", "v_mov_b32 v37, v219")
        for r in range(252, 256): a(f"v_mov_b32 v{r}, {sONES}")
        a("v_mov_b32 v32, 1.0", "v_mov_b32 v33, 1.0")
        T5 = [(0, 0), (1, 0), (0, 1), (1, 1)]
        self.gelu_block(ACC2, 34, T5 + [(0, 2), (1, 2)])
        for rt in range(2):
            x = ACC2 + rt * 12
            a(f"v_pk_add_f32 {v(40 + 4 * rt, 2)}, {v(x, 2)}, {v(x + 2, 2)}", f"v_pk_mul_f32 {v(42 + 4 * rt, 2)}, {v(x, 2)}, {v(x, 2)}")
            a(f"v_pk_fma_f32 {v(42 + 4 * rt, 2)}, {v(x + 2, 2)}, {v(x + 2, 2)}, {v(42 + 4 * rt, 2)}")
            for k in (4, 6):
                a(f"v_pk_add_f32 {v(40 + 4 * rt, 2)}, {v(40 + 4 * rt, 2)}, {v(x + k, 2)}",
                  f"v_pk_fma_f32 {v(42 + 4 * rt, 2)}, {v(x + k, 2)}, {v(x + k, 2)}, {v(42 + 4 * rt, 2)}")
        a(f"s_and_b32 {sU[8]}, {sCNT5}, {sCH}", f"s_cmp_lg_u32 {sU[8]}, 0", "s_cbranch_scc1 L_skip_st")
        for rt in range(2):
            x = ACC2 + rt * 12
            for k in (8, 10):
                a(f"v_pk_add_f32 {v(40 + 4 * rt, 2)}, {v(40 + 4 * rt, 2)}, {v(x + k, 2)}",
                  f"v_pk_fma_f32 {v(42 + 4 * rt, 2)}, {v(x + k, 2)}, {v(x + k, 2)}, {v(42 + 4 * rt, 2)}")
        a("L_skip_st:", "v_add_f32 v48, v40, v41", "v_add_f32 v49, v42, v43", "v_add_f32 v50, v44, v45", "v_add_f32 v51, v46, v47")
        self.stats_publish_tagged(48, WS_ST4)
        self.stamp("z2_pub")
        a("v_mov_b32 v52, v34", "v_mov_b32 v53, v35", "v_mov_b32 v62, v36", "v_mov_b32 v63, v37")
        def w1(c):
            def f():
                a.wait(vm=w1tok[c]); self.barrier()
            return f
        a(f"v_and_b32 v54, 15, {vLANE}", f"v_lshrrev_b32 v55, 4, {vLANE}", "v_lshlrev_b32 v55, 2, v55", "v_sub_u32 v54, v54, v55",
          "v_mov_b32 v55, 0x3f80", "v_mov_b32 v250, 0x3f800000")
        for k, (r, c) in enumerate(((248, 55), (248, 250), (249, 55), (249, 250))):
            a(f"v_cmp_eq_u32 vcc, {k}, v54")
            a(f"v_cndmask_b32 v{r}, v{3 if k & 1 == 0 else r}, v{c}, vcc")
        a(f"s_add_u32 {T[0]}, {sT0}, {sCH}", f"s_lshl_b32 {T[0]}, {T[0]}, 16", f"s_lshl_b32 {T[1]}, {sR0}, 5", f"s_add_u32 {T[0]}, {T[0]}, {T[1]}",
          f"s_lshl_b32 {T[1]}, {sRH}, 10", f"s_add_u32 {T[0]}, {T[0]}, {T[1]}", f"s_add_u32 {sU[9]}, {T[0]}, {WS_Z}",
          f"s_add_u32 {sU[10]}, {sU[9]}, 0x20000", f"s_add_u32 {sU[11]}, {sU[9]}, 0x40000",
          f"s_lshl_b32 {P[0]}, {sRB}, 3", f"s_add_u32 {P[0]}, {P[0]}, {sCB}", f"s_lshl_b32 {P[0]}, {P[0]}, 8",
          f"s_lshl_b32 {T[1]}, {sJ}, 3", f"s_add_u32 {P[0]}, {P[0]}, {T[1]}", f"s_add_u32 {P[0]}, {P[0]}, {WS_F5}")
        late = {i: rest[2 * i:2 * i + 2] for i in range((len(rest) + 1) // 2)}
        sl = self.stats_tagged_loads(WS_ST4, self.SGR)
        for i in range(4): late[self.opt.get("s4at", 9) + i] = sl[2 * i:2 * i + 2]
        csin = self.opt.get("csin", 0)
        self.win_gemm(ACC1, {4: w1(1), 10: w1(2)}, {0: w1(0)}, False, late, cs=csin)
        self.stamp("z1_gemm")
        self.stats_tagged_finish(WS_ST4, self.SGR, 1.0 / 688, 20)
        self.stamp("s4")
        def znorm(m):
            for rt in range(2):
                x = ACC2 + (rt * 3 + m) * 4
                for k in range(2):
                    a(f"v_pk_fma_f32 {v(x + 2 * k, 2)}, {v(x + 2 * k, 2)}, {v(20 + 2 * rt, 2)}, {v(20 + 2 * rt, 2)} op_sel:[0,0,1] op_sel_hi:[1,0,1]")
            for rt in range(2):
                x = ACC2 + (rt * 3 + m) * 4
                for k in range(2): a(f"v_cvt_pk_bf16_f32 v{x + k}, v{x + 2 * k}, v{x + 2 * k + 1}")
            for rt in range(2):
                x = ACC2 + (rt * 3 + m) * 4
                a(f"v_mfma_f32_16x16x16_bf16 {v(28 + 8 * (m & 1) + 4 * rt, 4)}, {v(x, 2)}, v[248:249], 0")
        def zstore(m):
            for rt in range(2):
                d = 28 + 8 * (m & 1) + 4 * rt
                a(f"v_cvt_pk_bf16_f32 v{d}, v{d}, v{d + 1}", f"v_cvt_pk_bf16_f32 v{d + 1}, v{d + 2}, v{d + 3}",
                  f"buffer_store_dwordx2 {v(d, 2)}, {vPAT}, {sWS}, {sU[9 + m]} offen offset:{512 * rt} sc1")
        znorm(0); znorm(1); zstore(0)
        a(f"s_cmp_lg_u32 {sU[8]}, 0", "s_cbranch_scc1 L_skip_z")
        a.cond_begin(); znorm(2); a("s_nop 7"); zstore(2); a.cond_end()
        a("L_skip_z:", "s_nop 7")
        zstore(1)
        eg = self.opt.get("earlyg", 1)
        def src(vals):
            lit = sum(x << (8 * i) for i, x in enumerate(vals))
            return [f"s_lshl_b32 {T[4]}, {sW}, 3", f"s_lshr_b32 {T[4]}, {lit}, {T[4]}", f"s_and_b32 {T[4]}, {T[4]}, 0xff", f"s_lshl_b32 {T[4]}, {T[4]}, 15", f"s_mov_b32 m0, {T[5]}"]
        wo1 = []
        for g in range(4):
            pre, ins = self.w128_dma(self.vWDo, sWOUT, T[1], T[5], 22)
            if eg: pre = src([GPERM[4 * w + g] for w in range(4)])
            pre = [f"s_lshl_b32 {T[1]}, {sW}, 2", f"s_add_u32 {T[1]}, {T[1]}, {g}", f"s_lshl_b32 {T[5]}, {T[1]}, 12", f"s_add_u32 {T[5]}, {T[5]}, {LB}"] + pre
            wo1 += [pre + [ins[0]], [ins[1]], [ins[2]], [ins[3]]]
        wo2 = []
        for g in range(2):
            pre, ins = self.w128_dma(self.vWDo, sWOUT, T[1], T[5], 22)
            if eg: pre = src([GPERM[16 + w + (4 if g and w < 2 else 0)] for w in range(4)])
            p0 = [f"s_add_u32 {T[1]}, {sW}, 16"] if g == 0 else [f"s_cmp_lt_u32 {sW}, 2", f"s_cselect_b32 {T[5]}, 20, 16", f"s_add_u32 {T[1]}, {sW}, {T[5]}"]
            pre = p0 + [f"s_sub_u32 {T[5]}, {T[1]}, 16", f"s_lshl_b32 {T[5]}, {T[5]}, 12"] + pre
            wo2 += [pre + [ins[0]], [ins[1]], [ins[2]], [ins[3]]]
        ztok = a.vtok()
        a("v_mov_b32 v56, v62", "v_mov_b32 v57, v63")
        self.w128_addresses(self.vWDo, 64)
        npre = self.opt.get("wopre2", 8)
        self.emit_all(wo1[:npre]); wo1 = wo1[npre:]
        a(f"s_lshl_b32 {T[0]}, {sRH}, 5", f"s_add_u32 {T[0]}, {T[0]}, {sR0}", f"s_lshl_b32 {sU[6]}, {T[0]}, 1",
          f"v_and_b32 v20, 15, {vLANE}", "v_lshlrev_b32 v20, 1, v20")
        self.wsp_setup()
        self.flag_store_wg(P[0], ztok)
        self.stamp("z2n_pub")
        a(f"buffer_load_ushort v62, v20, {sBSP}, {sU[6]} offen", f"buffer_load_ushort v63, v20, {sBSP}, {sU[6]} offen offset:32")
        per = 2 if npre == 0 else 1
        late = {i: wo1[per * i:per * i + per] for i in range(8) if wo1[per * i:per * i + per]}
        for i in range(4): late[8 + i] = wo2[2 * i:2 * i + 2]
        ptok = [-1]
        late[self.opt.get("p5at", 12)] = [self.poll_early(vFP8, T[3], 58) + [lambda: ptok.__setitem__(0, a.vtok())]]
        self.ztok = {}
        self.s5in = self.opt.get("s5in", 0)
        if self.s5in:
            pa, ca = self.opt.get("s5p", 9), self.opt.get("s5c", 11)
            late = {i: wo1[2 * i:2 * i + 2] for i in range((len(wo1) + 1) // 2)}
            late[pa] = [self.poll_early(vFP8, T[3], 54) + [lambda: ptok.__setitem__(0, a.vtok())]]
            D = self.opt.get("wd", 7)
            a(f"v_add_u32 v61, 0x10000, {vL16}")
            steps = list(range(D)); n = 16 - ca
            for i in range(n):
                mine = steps[(i * D) // n:((i + 1) * D) // n]
                late[ca + i] = [sum((self.z_loads(0, u) for u in mine), [])]
            def chk():
                self.poll_late(vFP8, T[3], 54, ptok[0], wg=False); self.stamp("s5")
            self.wo2 = wo2
            self.colsum_pass(late, {6: self.barrier, ca: chk})
        elif csin:
            self.emit_all(wo1 + wo2)
            self.emit(late[self.opt.get("p5at", 12)][0])
        else:
            self.colsum_pass(late, {6: self.barrier})
        self.p5tok = ptok[0]
        self.stamp("z1_epi")

    vWDo = 200

    def gelu_items(self, m):
        K1 = -2.0 * 1.4426950408889634 * 0.7978845608028654
        K2 = K1 * 0.044715
        L = []
        if m == 0: L += [f"s_mov_b32 {P[2]}, {f2u(K2)}", f"v_mov_b32 v58, {f2u(K1)}"]
        X = [self.ACC1 + (rt * 3 + m) * 4 + k for rt in range(2) for k in range(4)]
        C = [self.CS + 4 * m + k for rt in range(2) for k in range(4)]
        R = [52 + 4 * rt for rt in range(2) for k in range(4)]
        assert self.opt.get("wd", 7) <= 8
        t = [192 + k for k in range(8)]
        for i in range(8): L.append(f"v_mul_f32 v{t[i]}, v{C[i]}, v{R[i] + 1}")
        for i in range(8): L.append(f"v_fma_f32 v{X[i]}, v{X[i]}, v{R[i]}, v{t[i]}")
        for i in range(8): L.append(f"v_mul_f32 v{t[i]}, v{X[i]}, v{X[i]}")
        for i in range(8): L.append(f"v_fma_f32 v{t[i]}, v{t[i]}, {P[2]}, v58")
        for i in range(8): L.append(f"v_mul_f32 v{t[i]}, v{t[i]}, v{X[i]}")
        for i in range(8): L.append(f"v_exp_f32 v{t[i]}, v{t[i]}")
        for i in range(8): L.append(f"v_add_f32 v{t[i]}, 1.0, v{t[i]}")
        for i in range(8): L.append(f"v_rcp_f32 v{t[i]}, v{t[i]}")
        for i in range(8): L.append(f"v_mul_f32 v{X[i]}, v{X[i]}, v{t[i]}")
        for rt in range(2):
            for k in range(2): L.append(f"v_cvt_pk_bf16_f32 v{vZ1 + (rt * 3 + m) * 2 + k}, v{X[4 * rt + 2 * k]}, v{X[4 * rt + 2 * k + 1]}")
        return L

    def z_loads(self, p, u):
        a = self.a
        t, sub = u >> 1, u & 1
        L = []
        if sub == 0: L.append(f"s_add_u32 {T[0]}, {sROT[t]}, {p * 0x20000}")
        for f in range(2):
            L.append(f"buffer_load_dwordx4 {v(64 + (2 * (u & 7) + f) * 4, 4)}, {vL16 if f == 0 else 'v61'}, {sWS}, {T[0]} offen offset:{1024 * sub} sc1")
        L.append(lambda: self.ztok.__setitem__((p, u), a.vtok()))
        return L

    def wsp_setup(self):
        a = self.a
        a(f"s_lshl_b32 {T[3]}, {sW}, 3", f"s_add_u32 {T[3]}, {T[3]}, {sCB}", f"s_lshl_b32 {T[3]}, {T[3]}, 8", f"s_add_u32 {T[3]}, {T[3]}, {WS_F5}",
          f"s_lshl_b32 {T[0]}, {sT0}, 16", f"s_lshl_b32 {T[1]}, {sW}, 11", f"s_add_u32 {T[0]}, {T[0]}, {T[1]}", f"s_add_u32 {T[0]}, {T[0]}, {WS_Z}")
        for t in range(8):
            a(f"s_add_u32 {T[1]}, {sSPR}, {t if not self.opt.get('zlocal') else 0}", f"s_and_b32 {T[1]}, {T[1]}, 7", f"s_lshl_b32 {T[1]}, {T[1]}, 13", f"s_add_u32 {sROT[t]}, {T[1]}, {T[0]}")
        a(f"s_lshl_b32 {P[2]}, {sW}, 13", f"s_add_u32 {P[2]}, {P[2]}, {LRED}",
          f"s_lshl_b32 {P[3]}, {sCH}, 12", f"s_lshl_b32 {T[2]}, {sRH}, 11", f"s_add_u32 {P[3]}, {P[3]}, {T[2]}", f"s_add_u32 {P[3]}, {P[3]}, {LRED}")
        a(f"s_lshr_b32 {T[1]}, {sR0}, 4", f"s_lshl_b32 {T[2]}, {sRH}, 1", f"s_add_u32 {T[1]}, {T[1]}, {T[2]}", f"s_mul_i32 {T[1]}, {T[1]}, {22 * 1024}",
          f"s_add_u32 {T[2]}, {sT0}, {sCH}", f"s_lshl_b32 {T[2]}, {T[2]}, 9", f"s_add_u32 {T[1]}, {T[1]}, {T[2]}", f"s_add_u32 {sU[9]}, {T[1]}, {WS_G}",
          f"s_add_u32 {sU[10]}, {sU[9]}, {22 * 1024}")

    def phase_wsp(self):
        a = self.a
        BUF, ACC, RED, WT = 64, 128, 28, 200
        prog = self.opt.get("s5prog", 0)
        if self.s5in:
            pass
        elif prog:
            a.wait(vm=self.p5tok)
            a(f"v_cmp_ne_u64 vcc, {sTAG}, v[58:59]", f"s_mov_b32 {P[2]}, {T[3]}", "s_nop 0", f"s_and_b32 {P[3]}, vcc_lo, 0xff")
            self.mask_check(0, 2, sSPR, P[2], P[3], 58)
        else:
            a(f"v_add_u32 v61, 0x10000, {vL16}")
            self.poll_late(vFP8, T[3], 58, self.p5tok, wg=False)
        if not self.s5in: self.stamp("s5")
        a("v_lshlrev_b32 v62, 16, v62", "v_lshlrev_b32 v63, 16, v63")
        a(f"v_add_u32 v54, {P[2]}, {vL16}", f"v_add_u32 v55, {P[3]}, {vL16}")
        tok = self.ztok
        loads = self.z_loads
        D = self.opt.get("wd", 7)
        assert D <= 8
        gq = [self.gelu_items(0) + self.gelu_items(1), self.gelu_items(2), []]
        self.w128_read_base(59, 2, (192, 193, 194, 195), 60)
        wt = [f"ds_read_b64_tr_b16 {v(WT + (nt * 6 + p) * 4 + 2 * hf, 2)}, v{59 + nt} offset:{p * 4096 + hf * 512}"
              for p in range(6) for nt in range(2) for hf in range(2)]
        seq = [(p, u) for p in range(3) for u in range(16)]
        for p, u in ([] if self.s5in else seq[:D]):
            if prog and u == 4: self.mask_check(2, 8, sSPR, P[2], P[3], 192)
            self.emit(loads(p, u))
        def red_write(p):
            A = ACC + 32 * (p & 1)
            return [f"ds_write_b128 v54, {v(A + 4 * i, 4)} offset:{(p & 1) * 32768 + i * 1024}" for i in range(8)]
        def red_read(p):
            return [f"ds_read_b128 {v(RED + (sw * 2 + rt) * 4, 4)}, v55 offset:{(p & 1) * 32768 + sw * 8192 + rt * 1024}" for sw in range(3) for rt in range(2)]
        def red_read2(p):
            return [f"ds_read_b128 {v(ACC + 32 * (p & 1) + rt * 4, 4)}, v55 offset:{(p & 1) * 32768 + 3 * 8192 + rt * 1024}" for rt in range(2)]
        def gate(p):
            L = []
            A = ACC + 32 * (p & 1)
            for o in range(8): L.append(f"v_add_f32 v{A + o}, v{A + o}, v{RED + o}")
            for o in range(8): L.append(f"v_add_f32 v{RED + 8 + o}, v{RED + 8 + o}, v{RED + 16 + o}")
            for o in range(8): L.append(f"v_add_f32 v{A + o}, v{A + o}, v{62 + (o >> 2)}")
            for o in range(8):
                z = vZ1 + ((o >> 2) * 3 + p) * 2 + ((o >> 1) & 1)
                L.append(f"v_and_b32 v{RED + o}, {sHIMASK}, v{z}" if o & 1 else f"v_lshlrev_b32 v{RED + o}, 16, v{z}")
            for o in range(8): L.append(f"v_add_f32 v{A + o}, v{A + o}, v{RED + 8 + o}")
            for o in range(8): L.append(f"v_mul_f32 v{A + o}, v{A + o}, v{RED + o}")
            for o in range(4): L.append(f"v_cvt_pk_bf16_f32 v{RED + o}, v{A + 2 * o}, v{A + 2 * o + 1}")
            return L
        def gstore(p):
            L = []
            if p == 2:
                sk, zr = a.label("gskip"), a.label("gstore")
                L.append(a.cond_begin)
                L.append(lambda: a(f"s_cmp_eq_u32 {sU[8]}, 0", f"s_cbranch_scc1 {zr}", f"s_cmp_eq_u32 {sCB}, 7", f"s_cbranch_scc0 {sk}",
                                   *[f"v_mov_b32 v{RED + k}, 0" for k in range(4)], f"{zr}:"))
            L += [f"buffer_store_dwordx2 {v(RED + 2 * rt, 2)}, {vPAT}, {sWS}, {sU[9 + rt]} offen offset:{1024 * p} sc1" for rt in range(2)]
            if p == 2: L += [lambda: a(f"{sk}:"), a.cond_end]
            return L
        eg = self.opt.get("earlyg", 1)
        etk = [-1]
        def early_flag():
            L = a.label("noflag")
            a.cond_begin()
            a(f"s_cmp_lg_u32 {sW}, 0", f"s_cbranch_scc1 {L}",
              "s_mov_b64 exec, 1", f"buffer_store_dwordx2 {vTAG}, off, {sWS}, {P[4]} sc1", "s_mov_b64 exec, -1", f"{L}:")
            a.cond_end()
        if eg:
            self.cluster_flag_off(P[4], WS_F6A, True); self.cluster_flag_off(P[5], WS_F6A, False)
        for p in range(3):
            A = ACC + 32 * (p & 1)
            for u in range(16):
                if not self.opt.get("w_nowait"): a.wait(vm=tok[(p, u)])
                if u == 0: self.stamp(f"wsp_p{p}")
                ms = []
                for f in range(2):
                    for tt in range(4):
                        ms.append(mfma16(A + (f * 4 + tt) * 4, v(BUF + (2 * (u & 7) + f) * 4, 4), ar((u * 4 + tt) * 4, 4), "0" if u == 0 else None))
                fill = []
                if p > 0 and not self.opt.get("w_nofill"):
                    q = p - 1
                    if u < 8: fill += red_write(q)[u:u + 1]
                    if u == 8: fill += [lambda: a.wait(lg=a.lg), "s_barrier"]
                    if u == 9: fill += red_read(q) + red_read2(q)
                    if u == 11: fill += [lambda: a.wait(lg=a.lg)]
                    if 11 <= u <= 15:
                        g = gate(q); fill += g[(u - 11) * 11:(u - 11) * 11 + 11]
                    if u == 15: fill += gstore(q)
                if p == 0: n = (len(gq[0]) + 15 - u) // (16 - u)
                elif p == 1 and u < 11: n = (len(gq[1]) + 10 - u) // (11 - u)
                else: n = 0
                fill = [gq[p].pop(0) for _ in range(n)] + fill if p == 0 else fill + [gq[p].pop(0) for _ in range(n)]
                if p == 2 and u < 8: fill += wt[3 * u:3 * u + 3]
                if p == 2 and u == 9 and eg: fill.insert(0, early_flag)
                if p == 2 and u == 14 and eg: fill += self.poll_early(vFP8, P[5], 52) + [lambda: etk.__setitem__(0, a.vtok())]
                if p == 0 and u == 15: fill += ["s_barrier"]
                nx = p * 16 + u + D
                ld = loads(*seq[nx]) if nx < 48 else []
                if self.opt.get("w_noload"): ld = ld[-1:]
                interleave(a, ms[:6], fill, per=2, start=0)
                if self.s5in and p == 0 and 2 <= u < 10: ld = self.wo2[u - 2] + ld
                a(ms[6]); self.emit(ld[:-2])
                a(ms[7]); self.emit(ld[-2:])
        self.stamp("wsp_gemm")
        self.emit(red_write(2))
        a.wait(lg=a.lg)
        if eg: self.poll_late(vFP8, P[5], 52, etk[0])
        else: self.barrier()
        self.emit(red_read(2) + red_read2(2))
        a(f"v_add_u32 v56, {LB}, v59", f"v_add_u32 v57, {LB}, v60")
        for o in range(8):
            z = vZ1 + ((o >> 2) * 3 + 2) * 2 + ((o >> 1) & 1)
            a(f"v_and_b32 v{192 + o}, {sHIMASK}, v{z}" if o & 1 else f"v_lshlrev_b32 v{192 + o}, 16, v{z}")
        self.cluster_flag_off(P[1], WS_F6, True)
        a.wait(lg=a.lg)
        A = ACC
        for o in range(0, 8, 2): a(f"v_pk_add_f32 {v(A + o, 2)}, {v(A + o, 2)}, {v(RED + o, 2)}")
        for o in range(0, 8, 2): a(f"v_pk_add_f32 {v(RED + 8 + o, 2)}, {v(RED + 8 + o, 2)}, {v(RED + 16 + o, 2)}")
        for o in range(0, 8, 2): a(f"v_pk_add_f32 {v(A + o, 2)}, {v(A + o, 2)}, v[62:63] op_sel:[0,{o >> 2}] op_sel_hi:[1,{o >> 2}]")
        for o in range(0, 8, 2): a(f"v_pk_add_f32 {v(A + o, 2)}, {v(A + o, 2)}, {v(RED + 8 + o, 2)}")
        for o in range(0, 8, 2): a(f"v_pk_mul_f32 {v(A + o, 2)}, {v(A + o, 2)}, {v(192 + o, 2)}")
        for o in range(4): a(f"v_cvt_pk_bf16_f32 v{RED + o}, v{A + 2 * o}, v{A + 2 * o + 1}")
        self.emit(gstore(2))
        self.wout_rd = [f"ds_read_b64_tr_b16 {ar((nt * 16 + p) * 4 + 2 * hf, 2)}, v{56 + nt} offset:{p * 4096 + hf * 512}"
                        for p in range(16) for nt in range(2) for hf in range(2)]
        gtok = None
        if eg:
            gtok = a.vtok()
            self.g_setup()
            for p in range(6): self.emit(self.g_dma(p))
            self.getok = a.vtok()
        self.flag_store_wg(P[1], gtok)
        self.stamp("g_pub")

    def phase_wout(self):
        a = self.a
        ACC = 128
        self.cluster_flag_off(T[3], WS_F6, False)
        a(f"s_lshl_b32 {T[4]}, {sRH}, 11", f"v_add_u32 v31, {T[4]}, {vL16}", f"v_add_u32 v30, {LRED}, v31")
        fine = self.opt.get("fine", 1)
        eg = self.opt.get("earlyg", 1)
        if not eg:
            chunks = [2, 2, 4, 6, 8] if fine else [4, 4, 6, 8]
            group, toks = self.act_dma(WS_G, 22, chunks, LA, gpos=True)
        self.emit(self.wout_rd[:32])
        self.emit(self.poll_early(vFP8, T[3], 36)); ptok = a.vtok()
        self.emit(self.wout_rd[32:])
        def tail_setup():
            a(f"v_and_b32 v32, 15, {vLANE}", f"v_lshrrev_b32 v33, 4, {vLANE}", "v_lshlrev_b32 v32, 10, v32",
              "v_and_b32 v34, 1, v33", "v_lshl_add_u32 v32, v34, 5, v32", "v_lshrrev_b32 v33, 1, v33", "v_lshl_add_u32 v32, v33, 4, v32",
              f"s_lshl_b32 {T[0]}, {sRH}, 5", f"s_add_u32 {T[0]}, {T[0]}, {sR0}", f"s_lshl_b32 {T[0]}, {T[0]}, 10",
              f"s_lshl_b32 {T[4]}, {sCB}, 7", f"s_add_u32 {T[0]}, {T[0]}, {T[4]}", f"s_lshl_b32 {T[4]}, {sCH}, 6", f"s_add_u32 {sU[9]}, {T[0]}, {T[4]}",
              f"s_add_u32 {sU[10]}, {sU[9]}, 0x4000")
            for i in range(8):
                a(f"v_lshlrev_b32 v{96 + 2 * i}, 16, v{vH + i}", f"v_and_b32 v{97 + 2 * i}, {sHIMASK}, v{vH + i}")
        if eg:
            tail_setup()
            a.wait(vm=self.getok, lg=a.lg)
            self.poll_late(vFP8, T[3], 36, ptok)
            self.stamp("s6")
            toks = {}
            def gd(p0, p1, c):
                L = [self.g_dma(p) for p in range(p0, p1)]
                L[-1].append(lambda: toks.__setitem__(c, a.vtok()))
                return L
            self.emit_all(gd(6, 10, 1) + gd(10, 14, 2))
        else:
            self.poll_late(vFP8, T[3], 36, ptok)
            self.stamp("s6")
            for c in range(2 + fine): self.emit_all(group(c))
            tail_setup()
        def buf(s, rt): return 64 + (s % 4) * 8 + rt * 4
        def reads(s): return [f"ds_read_b128 {v(buf(s, rt), 4)}, v{30 if s < 16 else 31} offset:{(self.gpos2(s) - LRED if eg else 4096 * s) + rt * 1024 if s < 16 else 4096 * (s - 16) + rt * 1024}" for rt in range(2)]
        def mfmas(s):
            wv = lambda nt: ar((nt * 16 + s) * 4, 4) if s < 16 else v(200 + (nt * 6 + s - 16) * 4, 4)
            return [mfma16(ACC + (rt * 2 + nt) * 4, wv(nt), v(buf(s, rt), 4), v(96 + (rt * 2 + nt) * 4, 4) if s == 0 else None)
                    for rt in range(2) for nt in range(2)]
        def w(c):
            def f():
                a.wait(vm=toks[c]); self.barrier()
            return f
        if eg:
            rest = gd(14, 18, 3) + gd(18, 22, 4)
            late = {4 + i: rest[2 * i:2 * i + 2] for i in range(4)}
            self.kloop(22, reads, mfmas, {4: w(1), 8: w(2), 12: w(3), 16: w(4)}, late, {}, per=1)
            rest = None
        else:
            rest = group(2 + fine) + group(3 + fine)
            late = {i: rest[2 * i:2 * i + 2] for i in range(7)}
        def head0():
            a.wait(vm=toks[0], lg=a.lg); self.barrier()
        if not eg: self.kloop(22, reads, mfmas, {0: w(1), 2: w(2), 6: w(3), 12: w(4)} if fine else {2: w(1), 6: w(2), 12: w(3)}, late, {0: head0}, per=1)
        self.stamp("wout_gemm")
        for rt in range(2):
            for nt in range(2):
                d = ACC + (rt * 2 + nt) * 4
                for k in range(2): a(f"v_cvt_pk_bf16_f32 v{64 + 4 * rt + 2 * nt + k}, v{d + 2 * k}, v{d + 2 * k + 1}")
        for rt in range(2):
            b = 64 + 4 * rt
            a(f"v_permlane16_swap_b32 v{b}, v{b + 2}", f"v_permlane16_swap_b32 v{b + 1}, v{b + 3}")
            a(f"buffer_store_dwordx4 {v(b, 4)}, v32, {sOUT}, {sU[9 + rt]} offen " + ["", "sc1", "nt", "sc0 sc1", "sc1 nt"][self.opt.get("ost", 0)])

    def epilogue(self):
        a = self.a
        a("L_finish:")
        a("s_cmp_eq_u32 s2, 0", f"s_cselect_b32 {T[0]}, {sW}, 1", f"s_cmp_eq_u32 {T[0]}, 0", "s_cbranch_scc0 L_noepoch",
          "s_mov_b64 exec, 1", f"buffer_store_dwordx2 {vTAG}, off, {sWS}, 0 sc1", "s_mov_b64 exec, -1", "L_noepoch:")
        if self.stamps:
            a("s_waitcnt vmcnt(0)")
            self.stamp("end")
            a(f"s_lshl_b32 {T[0]}, s2, 2", f"s_add_u32 {T[0]}, {T[0]}, {sW}", f"s_lshl_b32 {T[0]}, {T[0]}, 7", f"s_add_u32 {T[0]}, {T[0]}, {WS_DBG}",
              "s_mov_b64 exec, 1")
            for i in range(10):
                a(f"v_mov_b32 v8, s{STAMP0 + i}", f"buffer_store_dword v8, off, {sWS}, {T[0]} offset:{4 * i if i < 9 else 60}")
        if self.calib:
            a(f"s_and_b32 s98, s{STAMP0 + 1}, 0xffff", "s_lshl_b32 s98, s98, 1", f"s_add_u32 s98, s98, {self.calib}")
            if self.nstamp < 3: a(f"s_mov_b32 s98, {self.calib}")
            a("s_waitcnt vmcnt(0)", "L_calib:", "s_memrealtime s[100:101]", "s_waitcnt lgkmcnt(0)", f"s_sub_u32 s100, s100, s{STAMP0}",
              f"s_cmp_lt_u32 s100, s98", "s_cbranch_scc1 L_calib")
        if not self.opt.get("noendwait"): a("s_waitcnt vmcnt(0)")
        a("L_exit:", "s_endpgm")

    def build(self):
        self.prologue()
        self.phase_qkv(); self.maybe_stop("qkv")
        self.phase_attn(); self.maybe_stop("attn")
        self.phase_wo(); self.maybe_stop("wo")
        self.phase_win(); self.maybe_stop("win")
        self.phase_wsp(); self.maybe_stop("wsp")
        self.phase_wout()
        self.epilogue()
        self.attn_slow()
        self.a("L_code_end:")
        body = self.a.finish()
        for w in dict.fromkeys(self.a.warnings): print("PENDING-LOAD WARNING:", w, file=sys.stderr)
        ref = open(f"cdna_kernels/{NAME}.s.ref").read().split("\n")
        head = [l for l in ref if l.startswith(";") and "@launch" not in l and "Override" not in l and "grid=ceil" not in l]
        head = head[:head.index([l for l in head if "d_ws" in l][0]) + 1]
        return ("\n".join(head) + f"\n; @launch grid=(256,1,1) block=(256,1,1) lds={LDS_BYTES}\n"
                + '.amdgcn_target "amdgcn-amd-amdhsa--gfx950"\n.text\n'
                + f".globl {NAME}_kernel\n.p2align 8\n.type {NAME}_kernel,@function\n{NAME}_kernel:\n" + body
                + f""".section .rodata,"a"
.p2align 6
.amdhsa_kernel {NAME}_kernel
  .amdhsa_next_free_vgpr 512
  .amdhsa_next_free_sgpr 102
  .amdhsa_accum_offset 256
  .amdhsa_group_segment_fixed_size 0
  .amdhsa_kernarg_size 88
  .amdhsa_user_sgpr_count 2
  .amdhsa_user_sgpr_kernarg_segment_ptr 1
  .amdhsa_system_sgpr_workgroup_id_x 1
  .amdhsa_float_denorm_mode_32 3
.end_amdhsa_kernel
""")

if __name__ == "__main__":
    import argparse
    ap = argparse.ArgumentParser()
    ap.add_argument("-o", default=f"cdna_kernels/{NAME}.s")
    ap.add_argument("--stop"); ap.add_argument("--stamps", action="store_true"); ap.add_argument("--slow", action="store_true")
    ap.add_argument("--opt", action="append", default=[]); ap.add_argument("--keep")
    o = ap.parse_args()
    g = Gen(o.stop, o.stamps, o.slow, keep=o.keep.split(",") if o.keep else None, **{k: int(x) for k, x in (kv.split('=') for kv in o.opt)})
    s = g.build()
    open(o.o, "w").write(s)
    print(f"wrote {o.o}: {len(s)} bytes, {len(g.a.items)} items, {g.a.nops_added} nops; stamps: {g.stamp_names}")
```

```python
import sys, struct
from asmdsl import Asm

NAME = "sequential_preLN__softmax_full_mha__mixer_gmlp__prompt"

WS_EPOCH = 0
WS_F1, WS_F2, WS_F3, WS_F4, WS_F5, WS_F6 = 0x1000, 0x90000, 0x7000, 0x9000, 0xB000, 0xD000
WS_F6A = 0xF000
GPERM = [0, 3, 6, 9, 14, 19] + [p for p in range(22) if p not in (0, 3, 6, 9, 14, 19)]
WS_ST3, WS_ST4 = 0x1150000, 0x10D0000
WS_Q, WS_KV, WS_O, WS_H, WS_Z, WS_G = 0x100000, 0x300000, 0x700000, 0x900000, 0xB00000, 0xE00000
WS_DBG = 0x1300000
WS_SIZE = 0x1400000

LA, LC, LB = 0, 65536, 98304
LRED = 24576
LDS_BYTES = 163840

sX, sWQKV, sWO, sWIN, sWSP, sBSP, sWOUT, sOUT, sWS = ("s[%d:%d]" % (b, b + 3) for b in range(4, 40, 4))
sJ, sRB, sCB, sHEAD, sW, sR0, sRH, sCH, sT0, sCNT5 = ("s%d" % i for i in range(40, 50))
sTAG = "s[50:51]"
sONES, sHIMASK, sCLU, sPOLL = "s52", "s53", "s54", "s55"
T = ["s%d" % i for i in range(56, 64)]
sROT = ["s%d" % i for i in range(64, 72)]
sU = ["s%d" % i for i in range(72, 84)]
sJA, sRB8 = "s0", "s1"
sRC = "s0"
sSPR = "s3"
P = ["s%d" % i for i in range(84, 90)]
STAMP0 = 90

vLANE, vL16, vPAT, vZ = "v0", "v1", "v2", "v3"
vTAG = "v[4:5]"
vFP32, vFP8 = "v6", "v7"
vH = 8
vZ1 = 16

def v(a, n=1): return f"v{a}" if n == 1 else f"v[{a}:{a + n - 1}]"
def ar(a, n=1): return f"a{a}" if n == 1 else f"a[{a}:{a + n - 1}]"
def f2u(x): return "0x%08x" % struct.unpack("<I", struct.pack("<f", x))[0]

def mfma16(d, a, b, c=None):
    return f"v_mfma_f32_16x16x32_bf16 {v(d,4)}, {a}, {b}, {c if c is not None else v(d,4)}"

def interleave(a, mains, fillers, per=1, start=0):
    k = 0
    for i, m in enumerate(mains):
        m() if callable(m) else a(m)
        if i >= start:
            for _ in range(per):
                if k < len(fillers):
                    f = fillers[k]; k += 1
                    f() if callable(f) else a(f)
    while k < len(fillers):
        f = fillers[k]; k += 1
        f() if callable(f) else a(f)

class Gen:
    def __init__(self, stop=None, stamps=False, force_fallback=False, calib=0, **opt):
        self.calib = calib
        self.keep = opt.pop("keep", None)
        self.opt = opt
        self.a = Asm()
        self.stop = stop
        self.stamps = stamps
        self.force_fallback = force_fallback
        self.nstamp = 0
        self.stamp_names = []

    def stamp(self, name):
        if not self.stamps: return
        if self.keep is not None:
            if name not in self.keep and name != "entry": return
        elif name not in ("qkv_gemm", "qkv_pub", "attn_start", "attn_loop", "s2", "wo_gemm", "s3", "z2_gemm", "z1_gemm", "z2n_pub", "s5", "wsp_gemm", "s6", "wout_gemm", "end", "entry"): return
        a = self.a
        a.wait(lg=a.lg)
        cyc = self.opt.get("cyc")
        a(f"{'s_memtime' if cyc else 's_memrealtime'} s[100:101]", "s_waitcnt lgkmcnt(0)")
        n = self.nstamp
        if n == 0:
            a(f"s_mov_b32 s{STAMP0}, s100")
        else:
            r = STAMP0 + 1 + (n - 1) // 2
            if cyc: a(f"s_sub_u32 s101, s100, s{STAMP0}", f"s_mov_b32 s{STAMP0}, s100", "s_mov_b32 s100, s101")
            else: a(f"s_sub_u32 s100, s100, s{STAMP0}")
            a(f"s_mov_b32 s{r}, s100" if n & 1 else f"s_pack_ll_b32_b16 s{r}, s{r}, s100")
        self.nstamp += 1; self.stamp_names.append(name)
        assert self.nstamp <= 17

    def maybe_stop(self, name):
        if self.stop == name:
            self.a.wait_all()
            self.a("s_branch L_finish")

    def flag_store(self, soff, tok=None):
        a = self.a
        a.wait(vm=a.vm if tok is None else tok, force=True)
        a("s_mov_b64 exec, 1", f"buffer_store_dwordx2 {vTAG}, off, {sWS}, {soff} sc1", "s_mov_b64 exec, -1")

    def g_setup(self):
        a = self.a
        a(f"s_lshr_b32 {T[0]}, {sR0}, 4", f"s_add_u32 {T[0]}, {T[0]}, {sW}", f"s_mul_i32 {T[0]}, {T[0]}, {22 * 1024}",
          f"s_add_u32 {sU[0]}, {T[0]}, {WS_G}", f"s_lshl_b32 {sU[1]}, {sW}, 10")

    def g_dma(self, p):
        return [f"s_add_u32 {T[2]}, {sU[0]}, {GPERM[p] * 1024}", f"s_add_u32 m0, {sU[1]}, {self.gpos2(p)}",
                f"buffer_load_dwordx4 {vL16}, {sWS}, {T[2]} offen sc1 lds"]

    @staticmethod
    def gpos2(p): return LRED + 32768 + 4096 * p if p < 8 else LRED + 4096 * (p - 8) if p < 16 else 4096 * (p - 16)

    def flag_store_wg(self, soff, tok=None):
        a = self.a
        a.wait(vm=a.vm if tok is None else tok, force=True)
        self.barrier()
        L = a.label("noflag")
        a.cond_begin()
        a(f"s_cmp_lg_u32 {sW}, 0", f"s_cbranch_scc1 {L}",
          "s_mov_b64 exec, 1", f"buffer_store_dwordx2 {vTAG}, off, {sWS}, {soff} sc1", "s_mov_b64 exec, -1", f"{L}:")
        a.cond_end()

    def poll_wg(self, voff, soff, tmp, drain=True):
        a = self.a
        if self.opt.get("allpoll"):
            self.poll(voff, soff, tmp); return
        if drain: a.wait(vm=a.vm, force=True)
        done = a.vm_done
        L = a.label("nopoll")
        a(f"s_cmp_lg_u32 {sW}, 0", f"s_cbranch_scc1 {L}")
        self.poll(voff, soff, tmp)
        a(f"{L}:")
        a.vm_done = done
        self.barrier()

    def poll_early(self, voff, soff, tmp):
        return [f"buffer_load_dwordx2 {v(tmp,2)}, {voff}, {sWS}, {soff} offen sc1"]

    def poll_late(self, voff, soff, tmp, tok, wg=True):
        a = self.a
        L = a.label("late")
        done = a.vm_done
        if wg: a(f"s_cmp_lg_u32 {sW}, 0", f"s_cbranch_scc1 {L}")
        a.wait(vm=tok, force=True)
        a(f"v_cmp_ne_u64 vcc, {sTAG}, {v(tmp,2)}", "s_nop 1", f"s_cbranch_vccz {L}")
        a.cond_begin(); self.poll(voff, soff, tmp); a.cond_end()
        a(f"{L}:")
        a.vm_done = done if wg else tok
        if wg: self.barrier()

    def mask_check(self, t0, t1, start, soff, pend, tmp):
        a = self.a
        done = a.vm_done
        L, E = a.label("rc"), a.label("rcok")
        m = ((1 << t1) - 1) ^ ((1 << t0) - 1)
        a(f"s_lshl_b32 {sPOLL}, {m * 0x101}, {start}", f"s_lshr_b32 {sPOLL}, {sPOLL}, 8", f"s_and_b32 {sPOLL}, {sPOLL}, 0xff",
          f"s_and_b32 vcc_lo, {pend}, {sPOLL}", f"s_cbranch_scc0 {E}", f"s_mov_b32 {sRC}, {sPOLL}", f"s_mov_b32 {sPOLL}, 0x40000", f"{L}:")
        a.cond_begin()
        a(f"buffer_load_dwordx2 {v(tmp, 2)}, {vFP8}, {sWS}, {soff} offen sc1")
        a.wait(vm=a.vm, force=True)
        a.cond_end()
        a(f"v_cmp_ne_u64 vcc, {sTAG}, {v(tmp, 2)}", f"s_sub_u32 {sPOLL}, {sPOLL}, 1", f"s_cbranch_scc1 {E}",
          f"s_and_b32 {pend}, vcc_lo, 0xff", f"s_and_b32 vcc_lo, {pend}, {sRC}", f"s_cbranch_scc1 {L}", f"{E}:")
        a.vm_done = done
        for r in (tmp, tmp + 1): a.pend_vm.pop(("v", r), None)

    def poll(self, voff, soff, tmp):
        a = self.a
        L, E = a.label("poll"), a.label("polled")
        a(f"s_mov_b32 {sPOLL}, 0x40000", f"{L}:",
          f"buffer_load_dwordx2 {v(tmp,2)}, {voff}, {sWS}, {soff} offen sc1")
        a.wait(vm=a.vm, force=True)
        a(f"v_cmp_ne_u64 vcc, {sTAG}, {v(tmp,2)}",
          f"s_sub_u32 {sPOLL}, {sPOLL}, 1", f"s_cbranch_scc1 {E}")
        sl = self.opt.get("sleep", 0)
        if sl: a(f"s_cbranch_vccz {E}", f"s_sleep {sl}", f"s_branch {L}", f"{E}:")
        else: a(f"s_cbranch_vccnz {L}", f"{E}:")
        for r in (tmp, tmp + 1): a.pend_vm.pop(("v", r), None)

    def barrier(self):
        self.a("s_barrier")

    def prologue(self):
        a = self.a
        a("s_cmp_ge_u32 s2, 256", "s_cbranch_scc1 L_exit")
        self.stamp("entry")
        a("s_load_dwordx2 s[4:5], s[0:1], 0", "s_load_dwordx2 s[8:9], s[0:1], 8")
        if not self.opt.get("nocodepf"):
            a(f"s_getpc_b64 s[60:61]", "L_pc:", f"s_sub_u32 s60, s60, L_pc-{NAME}_kernel", "s_subb_u32 s61, s61, 0",
              f"s_mov_b32 s62, L_code_end-{NAME}_kernel", "s_mov_b32 s63, 0x00020000",
              f"s_lshr_b32 {T[0]}, s2, 3", f"s_lshl_b32 {T[0]}, {T[0]}, 11", "v_lshlrev_b32 v250, 3, v0",
              f"buffer_load_dwordx2 v[250:251], v250, s[60:63], {T[0]} offen")
        a(f"s_mov_b32 s6, {2048 * 512 * 2}", "s_mov_b32 s7, 0x00020000", f"s_mov_b32 s10, {512 * 1536 * 2}", "s_mov_b32 s11, 0x00020000")
        a("v_lshrrev_b32 v8, 6, v0", f"v_and_b32 {vLANE}, 63, v0", f"v_readfirstlane_b32 {sW}, v8")
        if self.opt.get("map", 1):
            a(f"s_lshr_b32 {T[0]}, s2, 3", f"s_and_b32 {T[1]}, s2, 6", f"s_and_b32 {T[2]}, s2, 1",
              f"s_lshr_b32 {T[3]}, {T[0]}, 4", f"s_add_u32 {sJ}, {T[1]}, {T[3]}",
              f"s_bfe_u32 {sRB}, {T[0]}, 0x20002", f"s_and_b32 {sCB}, {T[0]}, 3", f"s_lshl_b32 {T[4]}, {T[2]}, 2", f"s_add_u32 {sCB}, {sCB}, {T[4]}",
              f"s_lshr_b32 {sU[1]}, {T[0]}, 2", f"s_and_b32 {sU[2]}, {sCB}, 3", f"s_lshl_b32 {sU[2]}, {sU[2]}, 1")
        else:
            a(f"s_and_b32 {sJ}, s2, 7", f"s_lshr_b32 {sHEAD}, s2, 3", f"s_lshr_b32 {sRB}, {sHEAD}, 3", f"s_and_b32 {sCB}, {sHEAD}, 7",
              f"s_lshl_b32 {sU[1]}, {sRB}, 1", f"s_mov_b32 {sU[2]}, {sCB}")
        a(f"s_lshl_b32 {sR0}, {sJ}, 8", f"s_lshl_b32 {T[0]}, {sRB}, 6", f"s_add_u32 {sR0}, {sR0}, {T[0]}")

    def prologue_rest(self):
        a = self.a
        for d, off, n in self.SRDS[2:]: a(f"s_load_dwordx2 s[{d}:{d + 1}], s[0:1], {off}")
        for d, off, n in self.SRDS[2:]: a(f"s_mov_b32 s{d + 2}, {n}", f"s_mov_b32 s{d + 3}, 0x00020000")
        if self.opt.get("map", 1):
            a(f"s_bfe_u32 {sHEAD}, s2, 0x40003", f"s_and_b32 {T[4]}, s2, 1", f"s_lshl_b32 {T[4]}, {T[4]}, 4", f"s_add_u32 {sHEAD}, {sHEAD}, {T[4]}")
        a(f"s_lshr_b32 {sRH}, {sW}, 1", f"s_and_b32 {sCH}, {sW}, 1",
          f"s_lshl_b32 {sCLU}, {sJ}, 2", f"s_add_u32 {sCLU}, {sCLU}, {sRB}",
          f"s_mov_b32 {sONES}, 0x3f803f80", f"s_mov_b32 {sHIMASK}, 0xffff0000")
        a(f"s_mul_i32 {T[0]}, {sCB}, 5", f"s_min_u32 {T[1]}, {sCB}, 3", f"s_add_u32 {sT0}, {T[0]}, {T[1]}",
          f"s_cmp_ge_u32 {sCB}, 3", f"s_cselect_b32 {sCNT5}, 1, 0")
        a(f"v_lshlrev_b32 {vL16}, 4, {vLANE}", f"v_mov_b32 {vZ}, 0",
          f"v_and_b32 v8, 15, {vLANE}", f"v_lshrrev_b32 v9, 5, {vLANE}", f"v_bfe_u32 v10, {vLANE}, 4, 1",
          f"v_lshlrev_b32 v8, 4, v8", f"v_lshl_add_u32 v8, v10, 3, v8",
          f"v_lshl_add_u32 {vPAT}, v9, 8, v8",
          f"v_lshl_add_u32 v63, v9, 9, v8",
          f"v_and_b32 {vFP32}, 31, {vLANE}", f"v_lshlrev_b32 {vFP32}, 7, {vFP32}",
          f"v_and_b32 {vFP8}, 7, {vLANE}", f"v_lshlrev_b32 {vFP8}, 3, {vFP8}")

    SRDS = [(4, 0, 2048 * 512 * 2), (8, 8, 512 * 1536 * 2), (36, 80, WS_SIZE), (12, 16, 512 * 512 * 2), (16, 32, 512 * 1376 * 2),
            (20, 40, 2048 * 2048 * 2), (24, 48, 2048 * 2), (28, 56, 688 * 512 * 2), (32, 64, 2048 * 512 * 2)]

    def phase_qkv(self):
        a = self.a
        ACC = 128
        CSR = (124, 200, 204)
        vX0, vX1, vW0, vW1, vWrA, vWrB, XA = "v28", "v29", "v30", "v31", "v32", "v33", 34
        STA = LC
        a(f"v_lshrrev_b32 v8, 3, {vLANE}", f"v_and_b32 v9, 7, {vLANE}", "v_lshrrev_b32 v10, 1, v8", "v_xor_b32 v10, v10, v9",
          "v_lshlrev_b32 v10, 4, v10", "v_lshl_add_u32 v10, v8, 10, v10",
          f"s_lshl_b32 {T[0]}, {sW}, 4", f"s_add_u32 {T[0]}, {T[0]}, {sR0}", f"s_lshl_b32 {T[0]}, {T[0]}, 10",
          f"v_add_u32 {vX0}, {T[0]}, v10", f"v_xor_b32 {vX1}, 64, {vX0}", f"v_add_u32 {vX1}, {7 * 1024}, {vX1}")
        a(f"v_bfe_u32 v10, {vLANE}, 4, 1", "v_lshrrev_b32 v11, 1, v9", "v_xor_b32 v11, v11, v10",
          "v_and_b32 v12, 1, v9", "v_lshl_or_b32 v11, v11, 1, v12", "v_lshlrev_b32 v11, 4, v11",
          "v_mul_u32_u24 v12, 3072, v8", "v_add_u32 v12, v12, v11",
          f"s_mul_i32 {T[0]}, {sW}, {16 * 3072}", f"s_lshl_b32 {T[1]}, {sCB}, 7", f"s_add_u32 {T[0]}, {T[0]}, {T[1]}",
          f"v_add_u32 {vW0}, {T[0]}, v12", f"v_xor_b32 {vW1}, 64, {vW0}", f"v_add_u32 {vW1}, {8 * 3072 - 1024}, {vW1}",
          f"s_lshl_b32 {sU[0]}, {sW}, 11", f"s_add_u32 {sU[2]}, {sU[2]}, {sU[1]}")
        if self.opt.get("q_rot", 3) == 0: a(f"s_mov_b32 {sU[2]}, 0")
        if self.opt.get("q_rot", 3) == 3: a(f"s_and_b32 {sU[2]}, {sU[1]}, 1", f"s_lshl_b32 {sU[2]}, {sU[2]}, 2")
        if self.opt.get("q_rot") == 1: a(f"s_mov_b32 {sU[2]}, {sU[1]}")
        if self.opt.get("q_samew"): a(f"v_subrev_u32 {vW0}, {T[1]}, {vW0}", f"v_subrev_u32 {vW1}, {T[1]}, {vW1}")
        if self.opt.get("q_samex"): a(f"v_and_b32 {vX0}, 0xffff, {vX0}", f"v_and_b32 {vX1}, 0x1ffff, {vX1}")
        tok = {}
        def dma(t):
            L = [[f"s_add_u32 {T[1]}, {sU[2]}, {t}", f"s_and_b32 {T[1]}, {T[1]}, 7", f"s_lshl_b32 {T[2]}, {T[1]}, 7",
                  f"s_add_u32 m0, {sU[0]}, {LB + t * 8192}", f"buffer_load_dwordx4 {vX0}, {sX}, {T[2]} offen lds"],
                 [f"buffer_load_dwordx4 {vX1}, {sX}, {T[2]} offen offset:1024 lds"]]
            for p in range(3):
                pre = [f"s_mul_i32 {T[1]}, {T[1]}, {64 * 3072}"] if p == 0 else []
                L.append(pre + [f"s_add_u32 {T[2]}, {T[1]}, {p * 1024}", f"s_add_u32 m0, {sU[0]}, {(t & 3) * 24576 + p * 8192}",
                                f"buffer_load_dwordx4 {vW0}, {sWQKV}, {T[2]} offen lds"])
                L.append([f"buffer_load_dwordx4 {vW1}, {sWQKV}, {T[2]} offen offset:1024 lds"])
            L[-1].append(lambda: tok.__setitem__(t, a.vtok()))
            return L
        a("s_waitcnt lgkmcnt(0)")
        self.stamp("kernarg")
        self.emit_all(dma(0))
        pq = self.opt.get("pfq2", 0)
        def pfq():
            a(f"s_lshl_b32 {T[3]}, s2, 2", f"s_add_u32 {T[3]}, {T[3]}, {sW}", f"s_lshl_b32 {T[4]}, {T[3]}, 11", f"s_mul_i32 {T[3]}, {T[3]}, 960",
              f"s_add_u32 {T[3]}, {T[3]}, {192 * 3072}", f"v_min_u32 v248, 59, {vLANE}", "v_lshlrev_b32 v248, 4, v248",
              f"buffer_load_dwordx4 v[244:247], v248, {sWQKV}, {T[3]} offen",
              f"buffer_load_dwordx4 v[244:247], {vL16}, {sX}, {T[4]} offen", f"buffer_load_dwordx4 v[244:247], {vL16}, {sX}, {T[4]} offen offset:1024")
        def pfq3(first):
            wb = (8 - first) * 64 * 3072 // 1024
            a(f"s_lshl_b32 {T[3]}, s2, 2", f"s_add_u32 {T[3]}, {T[3]}, {sW}", f"s_lshl_b32 {T[4]}, {T[3]}, 11", f"s_mul_i32 {T[3]}, {T[3]}, {wb}",
              f"s_add_u32 {T[3]}, {T[3]}, {first * 64 * 3072}", f"v_min_u32 v248, {(8 - first) * 8 - 1}, {vLANE}", "v_lshlrev_b32 v248, 4, v248",
              f"v_lshlrev_b32 v249, 4, {vLANE}", f"v_min_u32 v249, {min(wb, 1024) - 16}, v249",
              f"buffer_load_dwordx4 v[244:247], v248, {sX}, {T[4]} offen offset:{first * 128}",
              f"buffer_load_dwordx4 v[244:247], v248, {sX}, {T[4]} offen offset:{1024 + first * 128}",
              f"buffer_load_dwordx4 v[244:247], v249, {sWQKV}, {T[3]} offen")
            if wb > 1024:
                a(f"v_min_u32 v249, {wb - 1024 - 16}, v249", f"buffer_load_dwordx4 v[244:247], v249, {sWQKV}, {T[3]} offen offset:1024")
        if pq >= 3: pfq3(pq - 1)
        self.prologue_rest()
        if pq == 1: pfq()
        a(f"v_lshrrev_b32 v10, 4, {vLANE}", f"v_bfe_u32 v11, {vLANE}, 2, 2", f"v_and_b32 v12, 3, {vLANE}",
          "v_lshl_add_u32 v13, v10, 3, v11", "v_lshlrev_b32 v13, 7, v13", "v_lshl_add_u32 v13, v12, 3, v13",
          "v_lshrrev_b32 v11, 1, v11", "v_and_b32 v14, 1, v10", "v_lshl_or_b32 v11, v14, 1, v11",
          f"v_xor_b32 v11, {sW}, v11", f"v_lshl_add_u32 {vWrA}, v11, 5, v13", f"v_add_u32 {vWrB}, {2 * 24576}, {vWrA}")
        a(f"v_and_b32 v11, 15, {vLANE}", "v_lshrrev_b32 v12, 1, v11", "v_xor_b32 v12, v12, v10", "v_lshlrev_b32 v12, 4, v12",
          "v_lshl_add_u32 v12, v11, 7, v12", f"s_add_u32 {T[0]}, {sU[0]}, {LB}", f"v_add_u32 v{XA}, {T[0]}, v12")
        for k in range(1, 8): a(f"v_xor_b32 v{XA + k}, {((k >> 1) << 11) | ((k & 1) << 6)}, v{XA}")
        for r in range(252, 256): a(f"v_mov_b32 v{r}, {sONES}")
        early = self.opt.get("qearly", 0)
        QS = 0.25 * 1.4426950408889634
        a(f"v_and_b32 v16, 15, {vLANE}", f"v_lshrrev_b32 v17, 4, {vLANE}", f"v_and_b32 v20, 3, {vLANE}", "v_lshrrev_b32 v21, 2, v16",
          f"s_lshl_b32 {T[0]}, {sW}, 6", f"s_add_u32 {T[0]}, {T[0]}, {STA}",
          "v_cmp_eq_u32 vcc, v17, v21", "v_cndmask_b32_e64 v21, 0, -1, vcc",
          "v_lshlrev_b32 v16, 2, v16", f"v_add_u32 v16, {T[0]}, v16", "v_lshlrev_b32 v18, 4, v17", f"v_add_u32 v18, {T[0]}, v18",
          "v_and_b32 v17, 1, v17", "v_lshl_add_u32 v19, v17, 8, v16",
          f"s_and_b32 {T[6]}, {sW}, 1", f"s_lshl_b32 {T[6]}, {T[6]}, 8", f"s_lshr_b32 {T[7]}, {sW}, 1", f"s_lshl_b32 {T[7]}, {T[7]}, 10",
          f"s_or_b32 {T[6]}, {T[6]}, {T[7]}", f"v_or_b32 v42, {T[6]}, v63", f"s_lshl_b32 {T[6]}, {sW}, 9", f"v_or_b32 v46, {T[6]}, {vPAT}",
          f"v_mov_b32 v22, {f2u(QS)}", f"v_mov_b32 v23, {f2u(QS)}")
        self.emit_all(dma(1))
        if pq == 2: pfq()
        for r in range(1, 4): a(f"v_xor_b32 v{42 + r}, {((r & 1) << 8) | ((r >> 1) << 10)}, v42", f"v_xor_b32 v{46 + r}, {r << 9}, v46")
        a(f"s_lshl_b32 {T[4]}, {sCB}, 2", f"s_add_u32 {T[4]}, {T[4]}, {sW}",
          f"s_lshl_b32 {sU[5]}, {T[4]}, 16", f"s_lshl_b32 {T[3]}, {sR0}, 5", f"s_add_u32 {sU[5]}, {sU[5]}, {T[3]}",
          f"s_add_u32 {sU[5]}, {sU[5]}, {WS_Q}",
          f"s_lshl_b32 {sU[6]}, {T[4]}, 17", f"s_lshl_b32 {T[3]}, {sR0}, 6", f"s_add_u32 {sU[6]}, {sU[6]}, {T[3]}",
          f"s_add_u32 {sU[6]}, {sU[6]}, {WS_KV}", f"s_add_u32 {sU[7]}, {sU[6]}, 2048",
          f"s_lshl_b32 {T[0]}, {sRB}, 5", f"s_add_u32 {T[0]}, {T[0]}, {T[4]}", f"s_lshl_b32 {T[0]}, {T[0]}, 7",
          f"s_lshl_b32 {T[4]}, {sJ}, 3", f"s_add_u32 {T[0]}, {T[0]}, {T[4]}", f"s_add_u32 {sU[8]}, {T[0]}, {WS_F1}")
        a("s_waitcnt lgkmcnt(0)", f"s_mov_b32 {sRB8}, {sU[1]}")
        a(f"buffer_load_dwordx2 v[4:5], off, {sWS}, 0 sc1")
        etok = a.vtok()
        tl = self.opt.get("tlb", 0)
        if tl:
            a(f"v_min_u32 v248, 9, {vLANE}", "v_lshlrev_b32 v248, 21, v248", f"buffer_load_dword v249, v248, {sWS}, 0 offen offset:2048")
            if tl >= 2:
                a(f"buffer_load_dword v249, v248, {sWSP}, 0 offen", f"buffer_load_dword v249, off, {sWO}, 0", f"buffer_load_dword v249, off, {sWIN}, 0",
                  f"buffer_load_dword v249, off, {sWOUT}, 0", f"buffer_load_dword v249, off, {sBSP}, 0")
            if tl >= 3: a(f"buffer_load_dword v249, off, {sOUT}, 0")
        if not early: self.emit_all(dma(2))
        self.stamp("issued")
        def abuf(s): return 64 + 16 * (s % 3)
        def wbuf(s): return (112, 176, 188)[s % 3]
        def reads(s):
            t, sub = s >> 1, s & 1
            slot = t & 3
            wb = vWrA if slot < 2 else vWrB
            wo = (slot & 1) * 24576 + sub * 4096
            A, W = abuf(s), wbuf(s)
            L = [f"ds_read_b64_tr_b16 {v(W + 2 * h, 2)}, {wb} offset:{wo + 512 * h}" for h in range(2)]
            L += [f"ds_read_b128 {v(A + 4 * r, 4)}, v{XA + 2 * r + sub} offset:{t * 8192}" for r in range(4)]
            L += [f"ds_read_b64_tr_b16 {v(W + 4 * p + 2 * h, 2)}, {wb} offset:{wo + 8192 * p + 512 * h}" for p in (1, 2) for h in range(2)]
            return L
        def mfmas(s):
            A, W = abuf(s), wbuf(s)
            c = "0" if s == 0 else None
            ms = []
            for p in range(3):
                wv = v(W + 4 * p, 4)
                for r in range(4):
                    d, av = ACC + 16 * p + 4 * r, v(A + 4 * r, 4)
                    ms.append(mfma16(d, wv, av, c) if p < 2 else mfma16(d, av, wv, c))
                ms.append(mfma16(CSR[p], wv, "v[252:255]", c) if p < 2 else mfma16(CSR[p], "v[252:255]", wv, c))
                if p == 0: ms.append(mfma16(8, "v[252:255]", v(A, 4), c))
                if p == 1: ms.append(mfma16(24, v(A, 4), v(A, 4), c))
            if s == 15 and stin: ms = [ms[11], ms[5]] + [m for i, m in enumerate(ms) if i not in (5, 11)]
            return ms
        stin = self.opt.get("stin", 1)
        inv = f2u(1.0 / 512)
        chain = ["v_cmp_eq_u32 vcc, 1, v20", "v_cndmask_b32 v9, v24, v25, vcc", "v_cmp_eq_u32 vcc, 3, v20", f"v_mul_f32 v8, {inv}, v8",
                 "v_cndmask_b32_e64 v10, v26, v27, vcc", "v_cmp_lt_u32 vcc, 1, v20", "v_mul_f32 v12, v8, v8", "v_cndmask_b32 v9, v9, v10, vcc",
                 "v_and_b32 v9, v9, v21", "v_mov_b32 v10, v9", "v_cmp_eq_u32 vcc, 1, v17", "v_permlane32_swap_b32 v9, v10", "v_add_f32 v9, v9, v10",
                 "v_mov_b32 v10, v9", "v_permlane16_swap_b32 v9, v10", "v_add_f32 v9, v9, v10",
                 f"v_fma_f32 v9, v9, {T[5]}, -v12", "v_max_f32 v9, 0, v9", f"v_add_f32 v9, {f2u(1e-5)}, v9", "v_rsq_f32 v10, v9",
                 "v_mul_f32_e64 v11, -v8, v10", "v_cndmask_b32 v10, v10, v11, vcc", "ds_write_b32 v19, v10"]
        def extra(s):
            return [f"s_mov_b32 {T[5]}, {inv}"] + [lambda: None] * 9 + chain if s == 15 and stin else []
        def head0():
            a.wait(vm=tok[0]); self.barrier(); self.stamp("w0")
        before, late = {}, {}
        for t in range(7):
            def f(t=t):
                if not self.opt.get("q_nowait"): a.wait(vm=tok[t + 1])
                self.barrier(); self.stamp(f"qc{t + 1}")
            before[2 * t] = f
        def f15():
            a.wait(lg=a.lg); self.barrier()
        before[15] = f15
        if self.opt.get("q_nodma"):
            dma = lambda t: (tok.__setitem__(t, a.vtok()), [[]] * 8)[1]
        d3 = dma(3)
        late[0], late[1] = d3[:4], d3[4:]
        if early: late[0], late[1] = dma(2), d3
        for t in range(4, 8):
            d = dma(t)
            late[2 * t - 6], late[2 * t - 5] = d[:4], d[4:]
        cf = self.const_fill(52)
        late[15] = [cf[0:4], cf[4:8], cf[8:10], cf[10:]]
        if stin: late[14] = [cf[0:4], cf[4:8], cf[8:10]]; late[15] = [cf[10:]]
        late[12] = [[lambda: a.wait(vm=etok)], ["v_add_u32 v4, 0x9e3779b9, v4"], ["v_add_u32 v5, 0x7f4a7c15, v5"]]
        late[13] = [["v_readfirstlane_b32 s50, v4"], ["v_readfirstlane_b32 s51, v5"]]
        self.kloop(16, reads, mfmas, before, late, {0: head0}, extra=extra)
        self.stamp("qkv_gemm")
        if not stin:
            a("v_cmp_eq_u32 vcc, 1, v20", "v_cndmask_b32 v9, v24, v25, vcc", "v_cmp_eq_u32 vcc, 3, v20",
              "v_cndmask_b32_e64 v10, v26, v27, vcc", "v_cmp_lt_u32 vcc, 1, v20", "v_cndmask_b32 v9, v9, v10, vcc", "v_and_b32 v9, v9, v21",
              "v_mov_b32 v10, v9", "v_permlane32_swap_b32 v9, v10", "v_add_f32 v9, v9, v10", "v_mov_b32 v10, v9",
              "v_cmp_eq_u32 vcc, 1, v17", "v_permlane16_swap_b32 v9, v10", "v_add_f32 v9, v9, v10")
            self.ln_finish([(8, 9, 10)], 1.0 / 512)
            a("v_cndmask_b32 v10, v10, v11, vcc", "ds_write_b32 v19, v10")
        a.wait(lg=a.lg)
        self.barrier()
        for r in range(4):
            if r: a(f"v_xor_b32 v20, {r << 6}, v16")
            a(f"ds_read2_b32 {v(64 + 2 * r, 2)}, {'v16' if r == 0 else 'v20'} offset1:64")
        qtok = a.ltok()
        for r in range(4):
            if r: a(f"v_xor_b32 v21, {r << 6}, v18")
            p18 = "v18" if r == 0 else "v21"
            a(f"ds_read_b128 {v(80 + 8 * r, 4)}, {p18}", f"ds_read_b128 {v(84 + 8 * r, 4)}, {p18} offset:256")
        a.wait(lg=qtok)
        for p in (1, 2, 0):
            if p == 2:
                a.wait(lg=a.lg)
                for r in range(4): a(f"v_pk_mul_f32 {v(72 + 2 * r, 2)}, {v(64 + 2 * r, 2)}, v[22:23]")
            for r0 in (0, 2):
                work = [(r, k) for r in (r0, r0 + 1) for k in range(2)]
                tm = {w_: 52 + 2 * i for i, w_ in enumerate(work)}
                for r, k in work:
                    c = v(CSR[p] + 2 * k, 2)
                    if p == 2: a(f"v_pk_mul_f32 {v(tm[r, k], 2)}, {c}, {v(84 + 8 * r + 2 * k, 2)}")
                    else: a(f"v_pk_mul_f32 {v(tm[r, k], 2)}, {c}, {v((72 if p == 0 else 64) + 2 * r, 2)} op_sel:[0,1] op_sel_hi:[1,1]")
                for r, k in work:
                    d = v(ACC + 16 * p + 4 * r + 2 * k, 2)
                    if p == 2: a(f"v_pk_fma_f32 {d}, {d}, {v(80 + 8 * r + 2 * k, 2)}, {v(tm[r, k], 2)}")
                    else: a(f"v_pk_fma_f32 {d}, {d}, {v((72 if p == 0 else 64) + 2 * r, 2)}, {v(tm[r, k], 2)} op_sel:[0,0,0] op_sel_hi:[1,0,1]")
                for r, k in work:
                    d = ACC + 16 * p + 4 * r + 2 * k
                    a(f"v_cvt_pk_bf16_f32 v{ACC + 16 * p + 4 * r + k}, v{d}, v{d + 1}")
                for r in (r0, r0 + 1):
                    o = v(ACC + 16 * p + 4 * r, 2)
                    if p < 2: a(f"buffer_store_dwordx2 {o}, v{42 + r}, {sWS}, {sU[5] if p == 0 else sU[6]} offen sc1")
                    else: a(f"buffer_store_dwordx2 {o}, v{46 + r}, {sWS}, {sU[7]} offen sc1")
        stok = a.vtok()
        if self.opt.get("pfs2", 0):
            a(f"s_lshl_b32 {T[3]}, s2, 2", f"s_add_u32 {T[3]}, {T[3]}, {sW}", f"s_lshl_b32 {T[3]}, {T[3]}, 13", f"s_add_u32 {T[4]}, {T[3]}, 4096")
            for i in range(4): a(f"buffer_load_dwordx4 v[244:247], {vL16}, {sWSP}, {T[3 + (i >> 1)]} offen offset:{1024 * (i & 1)}")
        self.flag_store(sU[8], stok)
        self.stamp("qkv_pub")
        self.attn_addresses()

    def ln_finish(self, chains, inv_n):
        a = self.a
        for s1, s2, d in chains: a(f"v_mul_f32 v{s1}, {f2u(inv_n)}, v{s1}", f"v_mul_f32 v{s2}, {f2u(inv_n)}, v{s2}")
        for s1, s2, d in chains: a(f"v_fma_f32 v{s2}, -v{s1}, v{s1}, v{s2}")
        for s1, s2, d in chains: a(f"v_max_f32 v{s2}, 0, v{s2}")
        for s1, s2, d in chains: a(f"v_add_f32 v{s2}, {f2u(1e-5)}, v{s2}")
        for s1, s2, d in chains: a(f"v_rsq_f32 v{d}, v{s2}")
        for s1, s2, d in chains: a(f"v_mul_f32_e64 v{d + 1}, -v{s1}, v{d}")

    def const_fill(self, t=8):
        L = [f"v_and_b32 v{t}, 27, {vLANE}", f"v_cmp_eq_u32 vcc, 1, v{t}", f"v_mov_b32 v{t + 1}, {sONES}",
             f"v_cndmask_b32 v{t + 4}, v3, v{t + 1}, vcc", f"v_mov_b32 v{t + 5}, v{t + 4}", f"v_mov_b32 v{t + 6}, v{t + 4}", f"v_mov_b32 v{t + 7}, v{t + 4}",
             f"s_lshl_b32 {T[3]}, {sW}, 12", f"s_add_u32 {T[3]}, {T[3]}, {LC + 2048}", f"v_add_u32 v{t + 1}, {T[3]}, {vL16}",
             f"ds_write_b128 v{t + 1}, {v(t + 4, 4)}", f"ds_write_b128 v{t + 1}, {v(t + 4, 4)} offset:1024"]
        return L

    S, OA, NM, QF, KB, VB = 64, 112, 144, 176, 184, 192
    vIDX, vSP0, vKA, vKB2, vVB, vVI, vWD0, vXR = 208, 209, 213, 214, 215, 216, 217, 240

    def attn_addresses(self):
        a = self.a
        a(f"v_and_b32 v8, 15, {vLANE}", f"v_lshrrev_b32 v9, 4, {vLANE}", "v_lshlrev_b32 v10, 12, v8", "v_lshl_add_u32 v10, v9, 4, v10",
          f"s_lshl_b32 {T[6]}, {sR0}, 12", f"s_lshl_b32 {T[7]}, {sW}, 7", f"s_add_u32 {T[6]}, {T[6]}, {T[7]}",
          f"v_add_u32 v{self.vSP0}, {T[6]}, v10")
        for tt in range(1, 4): a(f"v_add_u32 v{self.vSP0 + tt}, {tt * 65536}, v{self.vSP0}")
        a(f"v_mov_b32 v{self.vIDX}, 0xdddddddd", f"v_mov_b32 v{self.vKA}, {vL16}", f"v_add_u32 v{self.vKB2}, {LB}, {vL16}")
        a(f"v_lshrrev_b32 v10, 5, {vLANE}", "v_lshl_add_u32 v10, v10, 4, v8", "v_lshlrev_b32 v10, 4, v10",
          f"v_and_b32 v11, 31, {vLANE}", f"v_bfe_u32 v12, {vLANE}, 2, 2",
          "v_add_u32 v12, -1, v12", "v_cmp_gt_u32 vcc, 2, v12", "v_cndmask_b32_e64 v12, 0, 4, vcc",
          "v_and_b32 v13, 27, v11", "v_cmp_eq_u32 vcc, 16, v13", "v_cndmask_b32_e64 v13, 0, 1, vcc",
          "v_add_u32 v12, v12, v13", "v_lshlrev_b32 v12, 4, v12", f"v_add_u32 v12, {LC}, v12",
          "v_cmp_gt_u32 vcc, 16, v11", f"v_cndmask_b32 v{self.vVB}, v12, v10, vcc",
          f"v_mov_b32 v13, 0x4000", f"v_cndmask_b32 v{self.vVI}, v3, v13, vcc")
        self.w128_addresses(self.vWD0, 16)
        self.win_addresses()
        a(f"s_lshl_b32 {T[5]}, {sHEAD}, 17", f"s_lshl_b32 {sU[1]}, {sW}, 12", f"s_add_u32 {T[5]}, {T[5]}, {sU[1]}", f"s_add_u32 {T[5]}, {T[5]}, {WS_KV}")
        for t in range(8):
            a(f"s_add_u32 {T[6]}, {sJ}, {t}", f"s_and_b32 {T[6]}, {T[6]}, 7", f"s_lshl_b32 {T[6]}, {T[6]}, 14", f"s_add_u32 {sROT[t]}, {T[6]}, {T[5]}")
        a(f"s_add_u32 {sSPR}, {sRB8}, {sJ}")
        if self.opt.get("s5prog", 0): a(f"s_and_b32 {sSPR}, {sJ}, 6")
        spr = self.opt.get("sprot", 4)
        if spr == 1: a(f"s_mov_b32 {sSPR}, {sCB}")
        if spr == 2: a(f"s_add_u32 {sSPR}, {sCB}, {sRB8}")
        if spr == 3: a(f"s_and_b32 {sSPR}, {sCB}, 3", f"s_lshl_b32 {sSPR}, {sSPR}, 1")
        if spr == 5: a(f"s_and_b32 {T[6]}, {sCB}, 4", f"s_add_u32 {sSPR}, {sSPR}, {T[6]}")
        if spr == 6: a(f"s_and_b32 {T[6]}, {sCB}, 4", f"s_add_u32 {sSPR}, {sJ}, {T[6]}")
        if spr == 7: a(f"s_and_b32 {T[6]}, {sCB}, 4", f"s_lshr_b32 {sSPR}, {sJ}, 1", f"s_add_u32 {sSPR}, {sSPR}, {T[6]}")
        if spr == 8: a(f"s_and_b32 {T[6]}, {sCB}, 5", f"s_mov_b32 {sSPR}, {T[6]}")
        if spr == 9: a(f"s_mov_b32 {sSPR}, 0")
        if spr == 4: a(f"s_lshr_b32 {sSPR}, {sCB}, 2", f"s_lshl_b32 {sSPR}, {sSPR}, 2")
        if self.opt.get("pfs2", 0) or self.opt.get("lpf", 0): a(f"s_mov_b32 {sSPR}, 0")
        for t in range(8):
            a(f"s_add_u32 {T[6]}, {sSPR}, {t}", f"s_and_b32 {T[6]}, {T[6]}, 7", f"s_lshl_b32 {sU[4 + t]}, {T[6]}, 9")
        a(f"v_lshrrev_b32 v226, 3, {vLANE}", f"s_lshl_b32 {T[6]}, {sCB}, 3", f"s_add_u32 {T[6]}, {T[6]}, {sR0}", f"v_add_u32 v226, {T[6]}, v226",
          "v_lshlrev_b32 v226, 12, v226", f"v_and_b32 v8, 7, {vLANE}", "v_lshl_add_u32 v226, v8, 4, v226",
          f"s_lshl_b32 {T[6]}, {sW}, 7", f"v_add_u32 v226, {T[6]}, v226")
        a(f"v_and_b32 v8, 15, {vLANE}", f"v_lshrrev_b32 v9, 4, {vLANE}", "v_lshlrev_b32 v8, 10, v8", "v_lshl_add_u32 v62, v9, 3, v8")
        a(f"v_and_b32 v10, 15, {vLANE}", f"v_bfe_u32 v11, {vLANE}, 4, 1", f"v_lshrrev_b32 v12, 5, {vLANE}",
          "v_lshlrev_b32 v10, 4, v10", "v_lshl_add_u32 v10, v11, 14, v10", "v_lshl_add_u32 v227, v12, 3, v10")
        for r in range(self.NM, self.NM + 0): pass

    def w128_addresses(self, r, t0=28):
        a = self.a
        p, q, u, x, y = ("v%d" % (t0 + i) for i in range(5))
        a(f"v_lshrrev_b32 {p}, 3, {vLANE}", f"v_and_b32 {q}, 7, {vLANE}", f"v_bfe_u32 {u}, {vLANE}, 4, 1",
          f"v_lshrrev_b32 {x}, 1, {q}", f"v_xor_b32 {x}, {x}, {u}", f"v_and_b32 {y}, 1, {q}", f"v_lshl_or_b32 {x}, {x}, 1, {y}",
          f"v_lshlrev_b32 {x}, 4, {x}", f"v_lshl_add_u32 {x}, {p}, 10, {x}",
          f"s_lshl_b32 {T[6]}, {sCB}, 7", f"v_add_u32 v{r}, {T[6]}, {x}", f"v_xor_b32 v{r + 1}, 64, v{r}",
          f"v_add_u32 v{r + 1}, {7 * 1024}, v{r + 1}", f"v_add_u32 v{r + 2}, {14 * 1024}, v{r}", f"v_add_u32 v{r + 3}, {14 * 1024}, v{r + 1}")

    def w128_dma(self, r, srd, pos, lds, nsteps):
        L = [f"s_lshr_b32 {T[4]}, {pos}, 1", f"s_add_u32 {T[4]}, {T[4]}, {sU[4]}"]
        n = nsteps // 2
        if n & (n - 1) == 0: L.append(f"s_and_b32 {T[4]}, {T[4]}, {n - 1}")
        else: L += [f"s_cmp_ge_u32 {T[4]}, {n}", f"s_cselect_b32 {T[7]}, {n}, 0", f"s_sub_u32 {T[4]}, {T[4]}, {T[7]}"]
        L += [f"s_lshl_b32 {T[4]}, {T[4]}, 1", f"s_and_b32 {T[7]}, {pos}, 1", f"s_add_u32 {T[4]}, {T[4]}, {T[7]}", f"s_lshl_b32 {T[4]}, {T[4]}, 15",
              f"s_mov_b32 m0, {lds}"]
        return L, [f"buffer_load_dwordx4 v{r + i}, {srd}, {T[4]} offen offset:{1024 * i} lds" for i in range(4)]

    def stage_base(self, t): return LA + 16384 * t if t < 4 else LB + 16384 * (t - 4)

    def kv_dma(self, t):
        L = [([f"s_add_u32 m0, {sU[1]}, {self.stage_base(t)}"] if i == 0 else [],
              f"buffer_load_dwordx4 {vL16}, {sWS}, {sROT[t]} offen offset:{1024 * i} sc1 lds") for i in range(4)]
        return L

    def phase_attn(self):
        a = self.a
        S, OA, NM, QF, KB, VB = self.S, self.OA, self.NM, self.QF, self.KB, self.VB
        a(f"s_lshl_b32 {T[0]}, {sW}, 5", f"s_add_u32 {T[0]}, {T[0]}, {sHEAD}", f"s_lshl_b32 {T[0]}, {T[0]}, 7", f"s_add_u32 {T[0]}, {T[0]}, {WS_F1}",
          f"s_lshl_b32 {T[1]}, {sHEAD}, 16", f"s_lshl_b32 {T[2]}, {sJ}, 13", f"s_add_u32 {T[1]}, {T[1]}, {T[2]}",
          f"s_lshl_b32 {T[2]}, {sW}, 11", f"s_add_u32 {T[1]}, {T[1]}, {T[2]}", f"s_add_u32 {T[1]}, {T[1]}, {WS_Q}",
          )
        for r in range(OA, OA + 32): a(f"v_mov_b32 v{r}, 0")
        a(f"s_lshr_b32 {P[0]}, {sHEAD}, 1", f"s_lshl_b32 {P[0]}, {P[0]}, 10", f"s_and_b32 {P[1]}, {sHEAD}, 1", f"s_lshl_b32 {P[1]}, {P[1]}, 9",
          f"s_add_u32 {P[0]}, {P[0]}, {P[1]}", f"s_lshl_b32 {P[1]}, {sJ}, 18", f"s_add_u32 {P[0]}, {P[0]}, {P[1]}",
          f"s_lshl_b32 {P[1]}, {sW}, 16", f"s_add_u32 {P[0]}, {P[0]}, {P[1]}", f"s_add_u32 {P[0]}, {P[0]}, {WS_O}", f"s_add_u32 {P[1]}, {P[0]}, 0x8000",
          f"s_lshl_b32 {P[2]}, {sJ}, 2", f"s_add_u32 {P[2]}, {P[2]}, {sW}", f"s_lshl_b32 {P[2]}, {P[2]}, 12",
          f"s_lshl_b32 {P[3]}, {sHEAD}, 7", f"s_add_u32 {P[2]}, {P[2]}, {P[3]}", f"s_add_u32 {P[2]}, {P[2]}, {WS_F2}",
          f"s_lshl_b32 {P[3]}, {sRH}, 15", f"s_lshl_b32 {P[4]}, {sR0}, 10", f"s_add_u32 {P[3]}, {P[3]}, {P[4]}",
          f"s_lshl_b32 {P[4]}, {sCB}, 7", f"s_add_u32 {P[3]}, {P[3]}, {P[4]}", f"s_lshl_b32 {P[4]}, {sCH}, 6", f"s_add_u32 {P[3]}, {P[3]}, {P[4]}",
          f"s_add_u32 {P[4]}, {P[3]}, 0x4000")
        self.w128_read_base(28, 2)
        wolate = self.opt.get("wolate", 1)
        if wolate: a(f"v_add_u32 v28, {LB}, v28", f"v_add_u32 v29, {LB}, v29")
        L, E, F = a.label("s1"), a.label("s1own"), a.label("s1all")
        a(f"s_mov_b32 {sPOLL}, 0x40000", f"s_lshl_b32 {T[2]}, 1, {sJ}", f"{L}:", f"buffer_load_dwordx2 v[8:9], {vFP8}, {sWS}, {T[0]} offen sc1")
        a.wait(vm=a.vm, force=True)
        a(f"v_cmp_ne_u64 vcc, {sTAG}, v[8:9]", f"s_sub_u32 {sPOLL}, {sPOLL}, 1", f"s_cbranch_scc1 {E}",
          f"s_and_b32 {T[3]}, vcc_lo, {T[2]}", f"s_cbranch_scc1 {L}", f"{E}:", "s_mov_b64 s[60:61], vcc")
        self.stamp("s1")
        for q in range(2):
            a(f"buffer_load_dwordx4 {v(QF + 4 * q, 4)}, {vL16}, {sWS}, {T[1]} offen offset:{1024 * q} sc1")
        kvtok = {}
        def issue(items):
            for pre, ins in items: a(*pre, ins) if pre else a(ins)
        issue(self.kv_dma(0)); kvtok[0] = a.vtok()
        a(f"s_and_b32 {sU[3]}, s60, 0xff", f"s_mov_b32 {sU[2]}, {T[0]}")
        def remote_check(t0, t1):
            def f():
                if self.opt.get("norem"): return
                self.mask_check(t0, t1, sJ, sU[2], sU[3], 8)
            return f
        if self.opt.get("ahead"): a(f"buffer_load_dwordx4 v[228:231], v226, {sWSP}, {sU[4]} offen")
        a.wait(vm=kvtok[0], lg=a.lg)
        self.barrier()
        def kread(kt):
            t, k = kt >> 3, kt & 7
            base = self.vKA if t < 4 else self.vKB2
            return f"ds_read_b128 {v(KB + 4 * (kt & 1), 4)}, v{base} offset:{16384 * (t & 3) + (k >> 1) * 4096 + (k & 1) * 1024}"
        def vread(kt, hi):
            k = kt & 7
            return f"ds_read_b128 {v(VB + 8 * (kt & 1) + 4 * hi, 4)}, v{self.vVB} offset:{(k >> 1) * 4096 + 2048 + (k & 1) * 1024 + 512 * hi}"
        def qk(n, c=None):
            kt, q = n >> 1, n & 1
            return f"v_mfma_f32_32x32x16_bf16 {v(S + 16 * (n % 3), 16)}, {v(KB + 4 * (kt & 1), 4)}, {v(QF + 4 * q, 4)}, {c if c else v(NM + 16 * q, 16)}"
        def pv(n, hi):
            kt, q = n >> 1, n & 1
            return f"v_smfmac_f32_32x32x32_bf16 {v(OA + 16 * q, 16)}, {v(VB + 8 * (kt & 1) + 4 * hi, 4)}, {v(S + 16 * (n % 3) + 8 * hi, 8)}, v{self.vIDX}"
        a(kread(0), kread(1), vread(0, 0), vread(0, 1))
        a.wait(lg=a.lg)
        a(qk(0, "0"), qk(1, "0"))
        for q in range(2):
            b, m = S + 16 * q, 8 + 2 * q
            a(f"v_max3_f32 v{m}, v{b}, v{b + 1}, v{b + 2}")
            for k in range(3, 15, 2): a(f"v_max3_f32 v{m}, v{m}, v{b + k}, v{b + k + 1}")
            a(f"v_max_f32 v{m}, v{m}, v{b + 15}", f"v_mov_b32 v{m + 1}, v{m}")
        for q in range(2): a(f"v_permlane32_swap_b32 v{8 + 2 * q}, v{9 + 2 * q}")
        for q in range(2):
            m = 8 + 2 * q
            a(f"v_max_f32 v{m}, v{m}, v{m + 1}", f"v_sub_f32 v{m}, 0, v{m}")
            for r in range(0, 16, 2): a(f"v_pk_mov_b32 {v(NM + 16 * q + r, 2)}, {v(m, 2)}, {v(m, 2)} op_sel:[0,0]")
            a(qk(q))
        self.stamp("attn_start")
        if self.stamps: a("s_memtime s[100:101]", "s_waitcnt lgkmcnt(0)", "s_mov_b32 s99, s100")
        wotok = [-1]
        wo = []
        FREE0 = "free"
        for g in range(4):
            a(f"s_lshl_b32 {T[4]}, {sW}, 1", f"s_add_u32 {T[4]}, {T[4]}, {g >> 1}", f"s_add_u32 {T[4]}, {T[4]}, {sCB}", f"s_and_b32 {T[4]}, {T[4]}, 7",
              f"s_lshl_b32 {T[4]}, {T[4]}, 16", f"s_add_u32 {T[g]}, {T[4]}, {(g & 1) * 32768}")
            ins = [f"buffer_load_dwordx4 v{self.vWD0 + i}, {sWO}, {T[g]} offen offset:{1024 * i} lds" for i in range(4)]
            wo += [([f"s_lshl_b32 {sU[3]}, {sW}, 14", f"s_add_u32 m0, {sU[3]}, {(LB if wolate else LA) + g * 4096}"], ins[0]), ([], ins[1]), ([], ins[2]), ([], ins[3])]
        a(f"s_lshl_b32 {T[6]}, {sHEAD}, 2", f"s_add_u32 {T[6]}, {T[6]}, {sW}", f"s_mul_i32 {T[6]}, {T[6]}, 11008")
        pfw = [([f"s_add_u32 {T[6]}, {T[6]}, 4096"] if i and i % 4 == 0 else [],
                f"buffer_load_dwordx4 v[228:231], {vL16}, {sWIN}, {T[6]} offen offset:{(i % 4) * 1024}") for i in range(11)]
        if not self.opt.get("pfw"): pfw = []
        a(f"s_mov_b32 {T[7]}, {sU[4]}", f"s_mov_b32 {sU[4]}, {sCB}")
        w2c = self.win_dma(1, 28, 1, (T[4], T[5], T[6], sU[0]))
        self.emit(w2c[0][:-1]); a(f"s_mov_b32 {T[4]}, m0", f"s_mov_b32 {sU[4]}, {T[7]}")
        pfw += [([f"s_mov_b32 m0, {T[4]}"], w2c[0][-1]), ([], w2c[1][-1]), ([], w2c[2][-1])]
        if wolate:
            wo_late, wo = wo, [FREE0] * 16
        pf2 = []
        if self.opt.get("pf2", 1):
            a(f"s_lshl_b32 {T[5]}, s2, 2", f"s_add_u32 {T[5]}, {T[5]}, {sW}", f"s_mul_i32 {T[6]}, {T[5]}, 1376", f"s_mul_i32 {T[7]}, {T[5]}, 688",
              f"s_lshl_b32 {T[5]}, {T[5]}, 9",
              f"v_min_u32 v50, 42, {vLANE}", "v_lshlrev_b32 v50, 4, v50", f"v_min_u32 v51, 21, {vLANE}", "v_lshlrev_b32 v51, 4, v51",
              f"v_min_u32 v49, 31, {vLANE}", "v_lshlrev_b32 v49, 4, v49")
            J = "v[228:231]"
            pf2 = [([], f"buffer_load_dwordx4 {J}, v49, {sWO}, {T[5]} offen"), ([], f"buffer_load_dwordx4 {J}, {vL16}, {sWIN}, {T[6]} offen"),
                   ([], f"buffer_load_dwordx4 {J}, v51, {sWIN}, {T[6]} offen offset:1024"), ([], f"buffer_load_dwordx4 {J}, v50, {sWOUT}, {T[7]} offen")]
        if self.opt.get("pfb", 1):
            a(f"v_lshlrev_b32 v234, 6, {vLANE}")
            pf4 = [([], f"buffer_load_dword v228, v234, {sBSP}, 0 offen")]
            if self.opt.get("pfb", 1) >= 2:
                a(f"v_min_u32 v233, 9, {vLANE}", "v_lshlrev_b32 v233, 21, v233", "v_add_u32 v233, 0x700000, v233")
                pf4.append(([], f"buffer_load_dword v228, v233, {sWS}, 0 offen"))
            if self.opt.get("pfb", 1) >= 3:
                pf4.append(([], f"buffer_load_dword v228, off, {sOUT}, 0"))
            pf4 += ["free"] * (4 - len(pf4))
        else:
            pf4 = []
        if self.opt.get("pfs2", 0) == 1:
            pre0 = [f"s_lshl_b32 {sU[0]}, s2, 2", f"s_add_u32 {sU[0]}, {sU[0]}, {sW}", f"s_lshl_b32 {sU[0]}, {sU[0]}, 13"]
            pf3 = [(pre0 if i == 0 else [f"s_add_u32 {sU[0]}, {sU[0]}, 4096"] if i == 2 else [],
                    f"buffer_load_dwordx4 v[228:231], {vL16}, {sWSP}, {sU[0]} offen offset:{2048 + 1024 * (i & 1)}") for i in range(4)]
        else:
            pf3 = []
        post = {}
        slots = []
        spl = [([], f"buffer_load_dwordx4 {ar(((2 * t + sub) * 4 + tt) * 4, 4)}, v{self.vSP0 + tt}, {sWSP}, {sU[4 + t]} offen offset:{64 * sub}")
               for t in range(8) for sub in range(2) for tt in range(4)]
        lag = self.opt.get("splag", 0)
        if lag:
            first = [x for i, x in enumerate(spl) if (i >> 2) & 1 == 0]
            second = [x for i, x in enumerate(spl) if (i >> 2) & 1 == 1]
            spl = first[:lag]
            for i in range(lag, 32): spl += [first[i], second[i - lag]]
            spl += second[32 - lag:]
        if self.opt.get("nosp"): spl = []
        if self.opt.get("sp_eff"):
            spl = [([], f"buffer_load_dwordx4 {ar(k * 4, 4)}, v226, {sWSP}, {sU[4 + (k >> 3)]} offen offset:{(k & 7) * 512}") for k in range(64)]
            if self.opt.get("sp_eff") == 2:
                a(f"v_and_b32 v226, 0x3ffff, v226")
        slots = [None] * 128
        kv1 = self.kv_dma(1); kv1[0] = ([remote_check(1, 3)] + kv1[0][0], kv1[0][1])
        post[kv1[-1][1]] = lambda: kvtok.__setitem__(1, a.vtok())
        FREE = FREE0
        fewbar = self.opt.get("fewbar", 0)
        for t in range(8):
            kv = []
            if t < 6:
                kv = self.kv_dma(t + 2); post[kv[-1][1]] = (lambda t=t: kvtok.__setitem__(t + 2, a.vtok()))
                if t == 1: kv[0] = ([remote_check(3, 8)] + kv[0][0], kv[0][1])
            if t == 0:
                st = [None, None] + kv1 + kv + [pfw.pop(0) for _ in range(len(pfw))]
                st += [FREE] * (16 - len(st))
            else:
                if t < 6:
                    ex = pf2 if t == self.opt.get("pf2at", 2) and pf2 else pf3 if t == self.opt.get("pf3at", 1) and pf3 else pf4 if t == 3 and pf4 else [FREE] * 4
                    oth = [x for pair in zip(kv, ex) for x in pair]
                else:
                    oth = [wo.pop(0) for _ in range(8)]
                    if t == self.opt.get("pf2at", 2) and pf2: oth[0:8:2] = pf2
                st = [x for pair in zip(oth, [FREE] * 8) for x in pair]
            slots[16 * t:16 * t + 16] = st
        lpf = self.opt.get("lpf", 0)
        if lpf:
            a(f"s_lshl_b32 {P[5]}, s2, 2", f"s_add_u32 {P[5]}, {P[5]}, {sW}", f"s_lshl_b32 {P[5]}, {P[5]}, 13", f"v_add_u32 v232, 4096, {vL16}")
            pf = [([], f"buffer_load_dwordx4 v[228:231], {vL16 if r == 0 else 'v232'}, {sWSP}, {P[5]} offen offset:{1024 * q}") for q in range(4) for r in range(2)]
            start = self.opt.get("lpfstart", 26)
            for i in range(start):
                if slots[i] is FREE: slots[i] = pf.pop(0) if pf else None
            assert not pf, len(pf)
        if fewbar:
            def kvslots(t): return [i for i, x in enumerate(slots) if x and x is not FREE and f"{sROT[t]} offen" in x[1] and "sc1 lds" in x[1]]
            kvi = {t: [slots[i] for i in kvslots(t)] for t in range(3, 8)}
            for t in range(3, 8):
                for i in kvslots(t): slots[i] = FREE
            plan = {3: [16 + 2 * i for i in range(4)], 4: [32 + 2 * i for i in range(4)], 5: [40 + 2 * i for i in range(4)],
                    6: [64 + 2 * i for i in range(4)], 7: [72 + 2 * i for i in range(4)]}
            for t in range(3, 8):
                for i, x in zip(plan[t], kvi[t]):
                    if slots[i] is not FREE and slots[i] is not None:
                        j = next(k for k in range(i + 1, 128) if slots[k] is FREE); slots[j] = slots[i]
                    slots[i] = x
        if self.opt.get("kvearly", 0):
            kvs = [self.kv_dma(t) for t in range(2, 8)]
            for t, kv in zip(range(2, 8), kvs): post[kv[-1][1]] = (lambda t=t: kvtok.__setitem__(t, a.vtok()))
            w2cs = [x for x in slots[:16] if x and x is not FREE and str(sWIN) in x[1]]
            wos = [x for x in slots if x and x is not FREE and str(sWO) in x[1] and " lds" in x[1]]
            pre0 = [f"s_lshl_b32 {sU[2]}, s2, 2", f"s_add_u32 {sU[2]}, {sU[2]}, {sW}", f"s_lshl_b32 {sU[2]}, {sU[2]}, 13"]
            pfs = [(pre0 if i == 0 else [f"s_add_u32 {sU[2]}, {sU[2]}, 4096"] if i == 4 else [],
                    f"buffer_load_dwordx4 v[228:231], {vL16}, {sWSP}, {sU[2]} offen offset:{1024 * (i & 3)}") for i in range(8)]
            if self.opt.get("nopfs"): pfs = []
            head = [None, None] + kv1 + [x for kv in kvs for x in kv] + w2cs + pf2 + pfs
            q0 = self.opt.get("spstart", 50)
            assert len(head) <= q0
            slots = head + [None] * (q0 - len(head)) + [FREE] * (128 - q0)
            w0 = 128 - 2 * len(wos) - self.opt.get("wogap", 4)
            for i, x in enumerate(wos): slots[w0 + 2 * i] = x
        fr = [i for i, x in enumerate(slots) if x is FREE]
        for i in fr: slots[i] = None
        if self.opt.get("nowo"): slots = [x if not (x and str(sWO) in x[1]) else None for x in slots]; wotok[0] = a.vtok()
        if self.opt.get("nokv"):
            for t in range(1, 8): kvtok[t] = a.vtok()
            slots = [x if not (x and "sc1 lds" in x[1]) else None for x in slots]
        extra2 = {}
        for k, it in enumerate(spl):
            i = fr[(k * len(fr)) // len(spl)]
            if slots[i] is None: slots[i] = it
            else: extra2.setdefault(i, []).append(it[1])
        assert not wo and not pfw, (len(wo), len(pfw))
        last_wo = ([x for x in slots if x and str(sWO) in x[1]] or [(0, "none")])[-1][1]
        post[last_wo] = lambda: wotok.__setitem__(0, a.vtok())
        def vm_slot(i):
            if i < len(slots) and slots[i]:
                a(slots[i][1])
                if slots[i][1] in post: post[slots[i][1]]()
                for x in extra2.get(i, []): a(x)
        def vm_pre(i):
            if i < len(slots) and slots[i]: self.emit(slots[i][0])
        ac = self.opt.get("ac", 1)
        def lds_wait(kt):
            t = kt >> 3
            if kt & 7 == 5 and kt < 56 and fewbar:
                if t in (0, 1, 3, 5):
                    a.wait(vm=kvtok[1 if t == 0 else t + 2], lg=a.lg); self.barrier()
                else:
                    a.wait(lg=a.lg)
            elif kt & 7 == 5 and kt < 56:
                a.wait(vm=kvtok[(kt >> 3) + 1] if not self.opt.get("nokvw") else None, lg=a.lg)
                if not self.opt.get("nobar"): self.barrier()
            else:
                a.wait(lg=a.lg)
        vm_pre(0)
        for n in range(128):
            kt, q = n >> 1, n & 1
            b = S + 16 * (n % 3)
            E = lambda lo, hi: [a(f"v_exp_f32 v{b + r}, v{b + r}") for r in range(lo, hi)]
            E(0, 2)
            if n > 0: a(pv(n - 1, 1))
            if q == 0:
                if kt + 2 < 64: a(kread(kt + 2))
                if (kt + 1) & 7 == 0 and kt + 1 < 64:
                    for _ in range(3 if kt + 1 == 32 else 1): a(f"v_add_u32 v{self.vVB}, v{self.vVB}, v{self.vVI}")
            else:
                vm_slot(2 * kt)
                if not ac: vm_pre(2 * kt + 1)
            E(2, 7)
            if n + 2 < 128: a(qk(n + 2))
            if q == 0:
                if kt + 1 < 64: a(vread(kt + 1, 0))
            elif ac:
                lds_wait(kt); vm_pre(2 * kt + 1)
            else:
                vm_slot(2 * kt + 1)
            E(7, 12)
            a(pv(n, 0))
            if q == 0:
                if kt + 1 < 64: a(vread(kt + 1, 1))
                if kt > 0: vm_pre(2 * kt)
            elif ac:
                vm_slot(2 * kt + 1)
            else:
                lds_wait(kt)
            if q == 1 and self.opt.get("sp_ds"): a(f"ds_read_b128 v[228:231], v{self.vKA} offset:{kt * 1024}")
            E(12, 16)
        a.wait(vm=None if wolate else wotok[0], lg=a.lg)
        a(pv(127, 1))
        self.barrier()
        self.stamp("attn_loop")
        if self.stamps: a("s_memtime s[100:101]", "s_waitcnt lgkmcnt(0)", "s_sub_u32 s99, s100, s99")
        for q in range(2):
            o = OA + 16 * q
            a(f"v_pk_add_f32 {v(8 + 4 * q, 2)}, {v(o, 2)}, {v(o + 2, 2)}", f"v_pk_add_f32 {v(10 + 4 * q, 2)}, {v(o + 4, 2)}, {v(o + 6, 2)}")
        for q in range(2): a(f"v_pk_add_f32 {v(8 + 4 * q, 2)}, {v(8 + 4 * q, 2)}, {v(10 + 4 * q, 2)}")
        a("v_add_f32 v8, v8, v9", "v_add_f32 v12, v12, v13", "v_add_f32 v8, v8, v12", f"v_max_f32 v9, v{OA + 8}, v{OA + 24}",
          f"v_add_f32 v10, v{OA + 8}, v{OA + 24}", "v_add_f32 v8, v8, v10",
          f"s_mov_b32 {T[6]}, 0x207", f"v_cmp_class_f32_e64 vcc, v8, {T[6]}",
          f"s_mov_b64 s[60:61], vcc", f"v_cmp_le_f32 vcc, {f2u(2.0 ** 64)}, v9", "s_or_b64 vcc, vcc, s[60:61]")
        if self.force_fallback: a("s_mov_b64 vcc, -1")
        a("s_cbranch_vccnz L_attn_slow", "L_attn_done:")
        for q in range(2): a(f"v_rcp_f32 v{8 + q}, v{OA + 16 * q + 8}")
        for q in range(2):
            o = OA + 16 * q
            for k in range(8): a(f"v_mul_f32 v{o + k}, v{o + k}, v{8 + q}")
            for k in range(4): a(f"v_cvt_pk_bf16_f32 v{192 + 4 * q + k}, v{o + 2 * k}, v{o + 2 * k + 1}")
            for hf in range(2):
                a(f"buffer_store_dwordx2 {v(192 + 4 * q + 2 * hf, 2)}, v227, {sWS}, {P[q]} offen offset:{256 * hf} sc1")
        rd = [f"ds_read_b64_tr_b16 {v(64 + (nt * 16 + p) * 4 + 2 * hf, 2)}, v{28 + nt} offset:{p * 4096 + hf * 512}"
              for p in range(16) for nt in range(2) for hf in range(2)]
        if wolate:
            otok = a.vtok()
            k = self.opt.get("wopre", 8)
            for pre, ins in wo_late[:k]: a(*pre, ins)
            self.flag_store(P[2], otok)
            self.stamp("attn_pub")
            for pre, ins in wo_late[k:]: a(*pre, ins)
            self.wo_tok, self.wo_rd = a.vtok(), rd
        else:
            k = self.opt.get("rdpre", 24)
            self.emit(rd[:k])
            self.flag_store(P[2])
            self.stamp("attn_pub")
            self.emit(rd[k:])
        for rt in range(2):
            for nt in range(2):
                a(f"buffer_load_dwordx2 {v(self.vXR + 4 * rt + 2 * nt, 2)}, v62, {sX}, {P[3 + rt]} offen offset:{32 * nt}")

    def w128_read_base(self, b, n, tmp=(64, 65, 66, 67), b1=None):
        a = self.a
        p, q, r, t = ("v%d" % x for x in tmp)
        a(f"v_lshrrev_b32 {p}, 4, {vLANE}", f"v_bfe_u32 {q}, {vLANE}, 2, 2", f"v_and_b32 {r}, 3, {vLANE}",
          f"v_lshl_add_u32 {t}, {p}, 3, {q}", f"v_lshlrev_b32 {t}, 7, {t}", f"v_lshl_add_u32 {t}, {r}, 3, {t}",
          f"v_lshrrev_b32 {q}, 1, {q}", f"v_and_b32 {p}, 1, {p}", f"v_lshl_or_b32 {q}, {p}, 1, {q}",
          f"s_lshl_b32 {T[3]}, {sCH}, 1", f"v_xor_b32 {q}, {T[3]}, {q}", f"v_lshl_add_u32 v{b}, {q}, 5, {t}")
        a(f"v_xor_b32 v{b1 if b1 else b + 1}, 32, v{b}")

    def attn_slow(self):
        a = self.a
        S, OA, NM, QF, KB, VB = self.S, self.OA, self.NM, self.QF, self.KB, self.VB
        a.vm_done = a.vm; a.lg_done = a.lg
        a("L_attn_slow:", "s_nop 15", f"s_lshl_b32 {sU[4]}, {sHEAD}, 17", f"s_add_u32 {sU[4]}, {sU[4]}, {WS_KV}",
          f"v_mov_b32 v8, 0xff800000", f"v_mov_b32 v10, 0xff800000", f"s_mov_b32 {sU[5]}, 0")
        def kaddr():
            a(f"s_lshr_b32 {sU[6]}, {sU[5]}, 1", f"s_lshl_b32 {sU[6]}, {sU[6]}, 12", f"s_and_b32 {sU[7]}, {sU[5]}, 1", f"s_lshl_b32 {sU[7]}, {sU[7]}, 10",
              f"s_add_u32 {sU[6]}, {sU[6]}, {sU[7]}", f"s_add_u32 {sU[6]}, {sU[6]}, {sU[4]}")
        a("L_slow_max:"); kaddr()
        a(f"buffer_load_dwordx4 {v(KB, 4)}, {vL16}, {sWS}, {sU[6]} offen sc1"); a.wait(vm=a.vm, force=True)
        for q in range(2):
            a(f"v_mfma_f32_32x32x16_bf16 {v(S + 16 * q, 16)}, {v(KB, 4)}, {v(QF + 4 * q, 4)}, 0")
        for q in range(2):
            b, m = S + 16 * q, 8 + 2 * q
            for k in range(0, 16, 2): a(f"v_max3_f32 v{m}, v{m}, v{b + k}, v{b + k + 1}")
        a(f"s_add_u32 {sU[5]}, {sU[5]}, 1", f"s_cmp_lt_u32 {sU[5]}, 64", "s_cbranch_scc1 L_slow_max")
        a("v_mov_b32 v9, v8", "v_mov_b32 v11, v10")
        for q in range(2): a(f"v_permlane32_swap_b32 v{8 + 2 * q}, v{9 + 2 * q}")
        for q in range(2):
            m = 8 + 2 * q
            a(f"v_max_f32 v{m}, v{m}, v{m + 1}", f"v_sub_f32 v{m}, 0, v{m}")
            for r in range(16): a(f"v_mov_b32 v{NM + 16 * q + r}, v{m}")
        for r in range(OA, OA + 32): a(f"v_mov_b32 v{r}, 0")
        a(f"v_and_b32 v8, 27, {vLANE}", "v_cmp_eq_u32 vcc, 16, v8", f"v_mov_b32 v9, {sONES}", "v_cndmask_b32 v9, v3, v9, vcc")
        for r in range(8): a(f"v_mov_b32 v{VB + r}, v9")
        a(f"v_and_b32 v8, 15, {vLANE}", f"v_lshrrev_b32 v10, 5, {vLANE}", "v_lshl_add_u32 v10, v10, 4, v8", "v_lshlrev_b32 v10, 4, v10",
          f"s_mov_b32 {sU[5]}, 0", "s_mov_b32 s60, 0x0000ffff", "s_mov_b32 s61, 0x0000ffff")
        a("L_slow_pv:"); kaddr()
        a(f"buffer_load_dwordx4 {v(KB, 4)}, {vL16}, {sWS}, {sU[6]} offen sc1", f"s_add_u32 {sU[6]}, {sU[6]}, 2048", "s_mov_b64 exec, s[60:61]",
          f"buffer_load_dwordx4 {v(VB, 4)}, v10, {sWS}, {sU[6]} offen sc1",
          f"buffer_load_dwordx4 {v(VB + 4, 4)}, v10, {sWS}, {sU[6]} offen offset:512 sc1", "s_mov_b64 exec, -1")
        a.wait(vm=a.vm, force=True)
        for q in range(2):
            a(f"v_mfma_f32_32x32x16_bf16 {v(S + 16 * q, 16)}, {v(KB, 4)}, {v(QF + 4 * q, 4)}, {v(NM + 16 * q, 16)}")
        for q in range(2):
            for r in range(16): a(f"v_exp_f32 v{S + 16 * q + r}, v{S + 16 * q + r}")
            for hi in range(2):
                a(f"v_smfmac_f32_32x32x32_bf16 {v(OA + 16 * q, 16)}, {v(VB + 4 * hi, 4)}, {v(S + 16 * q + 8 * hi, 8)}, v{self.vIDX}")
        a(f"s_add_u32 {sU[5]}, {sU[5]}, 1", f"s_cmp_lt_u32 {sU[5]}, 64", "s_nop 15", "s_cbranch_scc1 L_slow_pv", "s_nop 15", "s_branch L_attn_done")

    def rot_table(self, npairs, mul):
        a = self.a
        a(f"s_mul_i32 {sU[4]}, {sCB}, {mul}")

    @staticmethod
    def gpos(p): return LRED + 4096 * p if p < 16 else 4096 * (p - 16)

    def rot_index(self, dst, pos, npairs):
        L = [f"s_add_u32 {dst}, {sU[4]}, {pos}"]
        if npairs & (npairs - 1) == 0: L.append(f"s_and_b32 {dst}, {dst}, {npairs - 1}")
        else: L += [f"s_cmp_ge_u32 {dst}, {npairs}", f"s_cselect_b32 {T[7]}, {npairs}, 0", f"s_sub_u32 {dst}, {dst}, {T[7]}"]
        return L

    def act_dma(self, ws_off, steps, chunks, lds0, gpos=False):
        a = self.a
        a(f"s_lshr_b32 {T[0]}, {sR0}, 4", f"s_add_u32 {T[0]}, {T[0]}, {sW}", f"s_mul_i32 {T[0]}, {T[0]}, {steps * 1024}",
          f"s_add_u32 {sU[0]}, {T[0]}, {ws_off}", f"s_mul_i32 {T[1]}, {sW}, {1024 if gpos else steps * 1024}", f"s_add_u32 {sU[1]}, {T[1]}, {lds0}")
        toks = {}
        pre4 = self.opt.get("pre4", 1)
        if pre4:
            for q in range(4): a(*self.rot_index(P[2 + q], q, steps // 2), f"s_lshl_b32 {P[2 + q]}, {P[2 + q]}, 11", f"s_add_u32 {P[2 + q]}, {P[2 + q]}, {sU[0]}")
        def group(c):
            p0 = sum(chunks[:c]); L = []
            for k in range(chunks[c]):
                p = p0 + k
                it = []
                so = P[2 + (p >> 1)] if pre4 and p < 8 else T[2]
                if k % 2 == 0:
                    if so == T[2]:
                        it += self.rot_index(T[2], p >> 1, steps // 2)
                        it += [f"s_lshl_b32 {T[2]}, {T[2]}, 11", f"s_add_u32 {T[2]}, {T[2]}, {sU[0]}"]
                    if not gpos: it.append(f"s_add_u32 m0, {sU[1]}, {p * 1024}")
                if gpos: it.append(f"s_add_u32 m0, {sU[1]}, {self.gpos(p) - (k % 2) * 1024}")
                it.append(f"buffer_load_dwordx4 {vL16}, {sWS}, {so} offen offset:{(k % 2) * 1024} sc1 lds")
                L.append(it)
            L[-1].append(lambda: toks.__setitem__(c, a.vtok()))
            return L
        return group, toks

    def cluster_flag_off(self, dst, base, own, shift=8):
        a = self.a
        a(f"s_lshl_b32 {dst}, {sCLU}, {shift}", f"s_add_u32 {dst}, {dst}, {base}")
        if own: a(f"s_lshl_b32 {T[7]}, {sCB}, 3", f"s_add_u32 {dst}, {dst}, {T[7]}")

    def stats_publish(self, s, base):
        a = self.a
        a(f"v_permlane32_swap_b32 v{s}, v{s + 1}", f"v_permlane32_swap_b32 v{s + 2}, v{s + 3}",
          f"v_add_f32 v{s}, v{s}, v{s + 1}", f"v_add_f32 v{s + 2}, v{s + 2}, v{s + 3}",
          f"v_permlane16_swap_b32 v{s}, v{s + 2}", f"v_add_f32 v{s}, v{s}, v{s + 2}")
        a(f"s_lshl_b32 {T[4]}, {sCLU}, 13", f"s_add_u32 {T[4]}, {T[4]}, {base}", f"s_lshl_b32 {T[5]}, {sRH}, 7", f"s_add_u32 {T[4]}, {T[4]}, {T[5]}",
          f"s_lshl_b32 {T[5]}, {sCB}, 1", f"s_add_u32 {T[5]}, {T[5]}, {sCH}", f"s_lshl_b32 {T[5]}, {T[5]}, 9", f"s_add_u32 {T[4]}, {T[4]}, {T[5]}",
          f"buffer_store_dword v{s}, v61, {sWS}, {T[4]} offen sc1")

    def stats_load(self, base, r):
        a = self.a
        a(f"s_lshl_b32 {T[4]}, {sCLU}, 13", f"s_add_u32 {T[4]}, {T[4]}, {base}", f"s_lshl_b32 {T[5]}, {sRH}, 7", f"s_add_u32 {T[4]}, {T[4]}, {T[5]}",
          f"s_add_u32 {T[5]}, {T[4]}, 4096")
        for p in range(16):
            a(f"buffer_load_dword v{r + p}, v61, {sWS}, {T[4] if p < 8 else T[5]} offen offset:{(p % 8) * 512} sc1")
        return a.vtok()

    SGR = 64
    def stats_publish_tagged(self, s, base):
        a = self.a
        a(f"v_permlane32_swap_b32 v{s}, v{s + 1}", f"v_permlane32_swap_b32 v{s + 2}, v{s + 3}",
          f"v_add_f32 v{s}, v{s}, v{s + 1}", f"v_add_f32 v{s + 2}, v{s + 2}, v{s + 3}",
          f"v_permlane16_swap_b32 v{s}, v{s + 2}", f"v_add_f32 v{s}, v{s}, v{s + 2}", f"v_mov_b32 v{s + 1}, v{s}",
          f"v_mov_b32 v{s + 2}, v4", f"v_mov_b32 v{s + 3}, v5", f"v_permlane32_swap_b32 v{s}, v{s + 1}")
        a(f"s_lshl_b32 {T[4]}, {sCLU}, 14", f"s_add_u32 {T[4]}, {T[4]}, {base}", f"s_lshl_b32 {T[5]}, {sRH}, 13", f"s_add_u32 {T[4]}, {T[4]}, {T[5]}",
          f"s_lshl_b32 {T[5]}, {sCB}, 1", f"s_add_u32 {T[5]}, {T[5]}, {sCH}", f"s_lshl_b32 {T[5]}, {T[5]}, 9", f"s_add_u32 {T[4]}, {T[4]}, {T[5]}",
          "s_mov_b32 exec_hi, 0", f"buffer_store_dwordx4 {v(s, 4)}, {vL16}, {sWS}, {T[4]} offen sc1", "s_mov_b32 exec_hi, -1")

    def stats_tagged_loads(self, base, r):
        R = r if isinstance(r, (list, tuple)) else [r + 4 * p for p in range(8)]
        L = [[f"buffer_load_dwordx4 {v(R[p], 4)}, v61, {sWS}, {sU[3]} offen offset:{512 * p} sc1"] for p in range(8)]
        L[0] = [f"s_lshl_b32 {sU[3]}, {sCLU}, 14", f"s_add_u32 {sU[3]}, {sU[3]}, {base}", f"s_lshl_b32 {T[5]}, {sRH}, 13", f"s_add_u32 {sU[3]}, {sU[3]}, {T[5]}",
                f"v_and_b32 v61, 31, {vLANE}", "v_lshlrev_b32 v61, 4, v61", f"v_lshrrev_b32 v54, 5, {vLANE}", "v_lshl_add_u32 v61, v54, 12, v61"] + L[0]
        return L

    def stats_tagged_finish(self, base, r, inv_n, d):
        a = self.a
        L, E = a.label("st_retry"), a.label("st_ok")
        a(f"s_mov_b32 {sPOLL}, 0x40000", f"{L}:")
        a.wait(vm=a.vm, force=True)
        a(f"v_cmp_ne_u64 s[60:61], {sTAG}, {v(r + 2, 2)}")
        for p in range(1, 8): a(f"v_cmp_ne_u64 vcc, {sTAG}, {v(r + 4 * p + 2, 2)}", "s_or_b64 s[60:61], s[60:61], vcc")
        a("s_cmp_eq_u64 s[60:61], 0", f"s_cbranch_scc1 {E}", f"s_sub_u32 {sPOLL}, {sPOLL}, 1", f"s_cbranch_scc1 {E}")
        a.cond_begin()
        for it in self.stats_tagged_loads(base, r)[0][-1:]: a(it)
        for it in self.stats_tagged_loads(base, r)[1:]: self.emit(it)
        a.cond_end()
        a(f"s_branch {L}", f"{E}:")
        a.vm_done = a.vm
        self.stats_sum(r, inv_n, d)

    def stats_sum(self, r, inv_n, d):
        a = self.a
        R = r if isinstance(r, (list, tuple)) else [r + 4 * p for p in range(8)]
        for st in (4, 2, 1):
            for k in range(st): a(f"v_pk_add_f32 {v(R[k], 2)}, {v(R[k], 2)}, {v(R[k + st], 2)}")
        r = R[0]
        a(f"v_mov_b32 v{r + 2}, v{r}", f"v_mov_b32 v{r + 3}, v{r + 1}",
          f"v_permlane32_swap_b32 v{r}, v{r + 2}", f"v_permlane32_swap_b32 v{r + 1}, v{r + 3}",
          f"v_pk_add_f32 {v(r, 2)}, {v(r, 2)}, {v(r + 2, 2)}")
        self.ln_finish([(r, r + 1, d)], inv_n)
        a(f"v_mov_b32 v{d + 2}, v{d}", f"v_mov_b32 v{d + 3}, v{d + 1}",
          f"v_permlane16_swap_b32 v{d}, v{d + 2}", f"v_permlane16_swap_b32 v{d + 1}, v{d + 3}")

    def stats_sum_items(self, R, inv_n):
        L = []
        for st in (4, 2, 1):
            for k in range(st): L += [f"v_add_f32 v{R[k] + e}, v{R[k] + e}, v{R[k + st] + e}" for e in range(2)]
        r, t = R[0], R[1]
        L += [f"v_mov_b32 v{t}, v{r}", f"v_mov_b32 v{t + 1}, v{r + 1}", f"v_permlane32_swap_b32 v{r}, v{t}", f"v_permlane32_swap_b32 v{r + 1}, v{t + 1}",
              f"v_add_f32 v{t}, v{r}, v{t}", f"v_add_f32 v{t + 1}, v{r + 1}, v{t + 1}",
              f"v_mul_f32 v{t}, {f2u(inv_n)}, v{t}", f"v_mul_f32 v{t + 1}, {f2u(inv_n)}, v{t + 1}", f"v_fma_f32 v{t + 1}, -v{t}, v{t}, v{t + 1}",
              f"v_max_f32 v{t + 1}, 0, v{t + 1}", f"v_add_f32 v{t + 1}, {f2u(1e-5)}, v{t + 1}", f"v_rsq_f32 v{r}, v{t + 1}", f"v_mul_f32_e64 v{r + 1}, -v{t}, v{r}",
              f"v_mov_b32 v{r + 2}, v{r}", f"v_mov_b32 v{r + 3}, v{r + 1}", f"v_permlane16_swap_b32 v{r}, v{r + 2}", f"v_permlane16_swap_b32 v{r + 1}, v{r + 3}"]
        return L

    STR2 = [216, 220, 224, 228, 232, 236, 52, 252]
    STR = 216
    def stats_load_items(self, base, r):
        L = []
        for p in range(16):
            it = []
            if p == 0:
                it += [f"s_lshl_b32 {T[4]}, {sCLU}, 13", f"s_add_u32 {T[4]}, {T[4]}, {base}", f"s_lshl_b32 {T[5]}, {sRH}, 7",
                       f"s_add_u32 {T[4]}, {T[4]}, {T[5]}", f"s_add_u32 {T[5]}, {T[4]}, 4096"]
            it.append(f"buffer_load_dword v{r + p}, v61, {sWS}, {T[4] if p < 8 else T[5]} offen offset:{(p % 8) * 512} sc1")
            L.append(it)
        return L

    def stats_finish(self, r, inv_n, d):
        a = self.a
        for st in (8, 4, 2):
            for k in range(0, st, 2): a(f"v_pk_add_f32 {v(r + k, 2)}, {v(r + k, 2)}, {v(r + st + k, 2)}")
        a(f"v_add_f32 v{r}, v{r}, v{r + 1}", f"v_mov_b32 v{r + 1}, v{r}", f"v_permlane32_swap_b32 v{r}, v{r + 1}")
        self.ln_finish([(r, r + 1, d)], inv_n)
        a(f"v_mov_b32 v{d + 2}, v{d}", f"v_mov_b32 v{d + 3}, v{d + 1}",
          f"v_permlane16_swap_b32 v{d}, v{d + 2}", f"v_permlane16_swap_b32 v{d + 1}, v{d + 3}")

    def win_addresses(self):
        a = self.a
        for i in range(3):
            a(f"v_add_u32 v16, {64 * i}, {vLANE}", "v_mul_u32_u24 v17, 171, v16", "v_lshrrev_b32 v17, 11, v17",
              "v_mul_u32_u24 v18, 12, v17", "v_sub_u32 v18, v16, v18", "v_bfe_u32 v19, v17, 3, 1", "v_lshlrev_b32 v19, 1, v19",
              "v_xor_b32 v18, v18, v19", "v_mul_u32_u24 v17, 2752, v17", "v_lshl_add_u32 v17, v18, 4, v17",
              f"v_add_u32 v{56 + i}, {-1024 * i}, v17")
        a(f"v_lshrrev_b32 v16, 4, {vLANE}", f"v_bfe_u32 v17, {vLANE}, 2, 2", f"v_and_b32 v18, 3, {vLANE}",
          "v_lshl_add_u32 v19, v16, 3, v17", "v_mul_u32_u24 v19, 192, v19", "v_lshl_add_u32 v19, v18, 3, v19",
          "v_and_b32 v17, 1, v16", f"v_xor_b32 v17, {sCH}, v17", "v_lshl_add_u32 v59, v17, 5, v19", "v_add_u32 v60, 49152, v59",
          f"v_and_b32 v17, 15, {vLANE}", "v_lshlrev_b32 v17, 2, v17", "v_and_b32 v18, 1, v16", "v_lshl_add_u32 v17, v18, 6, v17",
          "v_lshrrev_b32 v16, 1, v16", "v_lshl_add_u32 v61, v16, 8, v17")

    def win_dma(self, half, g0, per_wave, regs=None, wave=sW):
        r5, r6, r2, r7 = regs or (sU[5], sU[6], sU[2], sU[7])
        L = []
        for k in range(per_wave):
            for i in range(3):
                it = []
                if k == 0 and i == 0:
                    it += [f"s_lshl_b32 {r5}, {sT0}, 5", f"s_mul_i32 {r6}, {wave}, {per_wave}", f"s_lshl_b32 {r2}, {sU[4]}, 2",
                           f"s_add_u32 {r2}, {r2}, {r6}", f"s_mul_i32 {r6}, {r6}, 3072"]
                if i == 0:
                    it += [f"s_add_u32 {r7}, {r2}, {g0 + k}", f"s_and_b32 {r7}, {r7}, 31", f"s_mul_i32 {r7}, {r7}, {16 * 2752}",
                           f"s_add_u32 {r7}, {r7}, {r5}"]
                    if half: it.append(f"s_add_u32 {r7}, {r7}, 1376")
                    it.append(f"s_add_u32 m0, {r6}, {(g0 + k) * 3072}")
                it.append(f"buffer_load_dwordx4 v{56 + i}, {sWIN}, {r7} offen offset:{1024 * i} lds")
                L.append(it)
        return L

    def kloop(self, n, reads, mfmas, before={}, late={}, head=None, per=2, extra=None):
        a = self.a
        tok = {}
        for s in range(min(2, n)):
            if s in (head or {}): head[s]()
            self.emit(reads(s)); tok[s] = a.ltok()
        self.kl = getattr(self, "kl", -1) + 1
        for s in range(n):
            a.wait(lg=tok[s])
            if s in before: before[s]()
            if s % 4 == 0: self.stamp(f"k{self.kl}s{s}")
            ms = mfmas(s)
            fill = list(reads(s + 2)) + [lambda s=s: tok.__setitem__(s + 2, a.ltok())] if s + 2 < n else []
            if extra: fill += extra(s)
            lt = list(late.get(s, []))
            k = len(ms) - len(lt)
            assert k >= 1, (s, len(ms), len(lt))
            interleave(a, ms[:k], fill, per=per)
            for m, it in zip(ms[k:], lt):
                a(m); self.emit(it)

    def emit_all(self, items):
        for it in items: self.emit(it)

    def emit(self, items):
        for x in items: x() if callable(x) else self.a(x)

    def phase_wo(self):
        a = self.a
        ACC = 192
        a(f"s_mov_b32 {sU[4]}, {sCB if not self.opt.get('noarot') else 0}")
        fine = self.opt.get("fine", 1)
        group, toks = self.act_dma(WS_O, 16, [2, 2, 4, 4, 4] if fine else [4, 4, 4, 4], LB)
        self.cluster_flag_off(T[3], WS_F2, False, 12)
        a(f"s_lshl_b32 {T[4]}, {sRH}, 15", f"s_add_u32 {T[4]}, {T[4]}, {LB}", f"v_add_u32 v30, {T[4]}, {vL16}")
        n2 = 3
        ng = self.opt.get("w2s2", 4)
        Lp, Le = a.label("s2poll"), a.label("s2end")
        if self.opt.get("wolate", 1):
            done = a.vm_done
            a(f"s_cmp_eq_u32 {sW}, 0", f"s_cbranch_scc1 {Lp}", f"s_sub_u32 {T[5]}, {sW}, 1")
            a.cond_begin()
            if self.opt.get("w2first", 0): self.emit_all(self.win_dma(1, 0, ng, wave=T[5]))
            a.cond_end()
            a(f"{Lp}:")
            a.vm_done = done
            a.wait(vm=self.wo_tok)
            self.barrier()
            self.emit(self.wo_rd)
            Lq = a.label("s2poll")
            done = a.vm_done
            a(f"s_cmp_eq_u32 {sW}, 0", f"s_cbranch_scc1 {Lq}", f"s_sub_u32 {T[5]}, {sW}, 1")
            a.cond_begin()
            if not self.opt.get("w2first", 0): self.emit_all(self.win_dma(1, 0, ng, wave=T[5]))
            a(f"s_branch {Le}", f"{Lq}:")
            self.poll(vFP32, T[3], 52)
            a(f"{Le}:")
            a.cond_end()
            a.vm_done = done
            a.wait(lg=a.lg)
            self.barrier()
        else:
            a.wait(lg=a.lg)
            self.barrier()
            done = a.vm_done
            a(f"s_cmp_eq_u32 {sW}, 0", f"s_cbranch_scc1 {Lp}", f"s_sub_u32 {T[5]}, {sW}, 1")
            a.cond_begin()
            self.emit_all(self.win_dma(1, 0, ng, wave=T[5]))
            a(f"s_branch {Le}", f"{Lp}:")
            self.poll(vFP32, T[3], 52)
            a.cond_end()
            a(f"{Le}:")
            a.vm_done = done
            self.barrier()
        self.stamp("s2")
        for c in range(2 + fine): self.emit_all(group(c))
        def buf(s, rt): return (208 + (s % 4) * 8 + rt * 4)
        def reads(s): return [f"ds_read_b128 {v(buf(s, rt), 4)}, v30 offset:{(rt * 16 + s) * 1024}" for rt in range(2)]
        def mfmas(s):
            return [mfma16(ACC + (rt * 2 + nt) * 4, v(64 + (nt * 16 + s) * 4, 4), v(buf(s, rt), 4), v(32 + (rt * 2 + nt) * 4, 4) if s == 0 else None) for rt in range(2) for nt in range(2)]
        def w(c):
            def f():
                a.wait(vm=toks[c]); self.barrier()
            return f
        def head0():
            a.wait(vm=toks[0], lg=a.lg)
            for i in range(8): a(f"v_lshlrev_b32 v{32 + 2 * i}, 16, v{self.vXR + i}", f"v_and_b32 v{33 + 2 * i}, {sHIMASK}, v{self.vXR + i}")
            self.barrier()
        g2, g3 = group(2 + fine), group(3 + fine)
        pw = (28 - 3 * ng + 3) // 4
        w2 = self.win_dma(1, 28 - 4 * pw, pw)
        late = {0: g2[:2], 1: g2[2:], 2: g3[:2], 3: g3[2:]}
        for i in range(min(len(w2), self.opt.get("w2in", 12))): late[self.opt.get("w2at", 3) + i] = late.get(self.opt.get("w2at", 3) + i, []) + [w2.pop(0)]
        late[15] = late.get(15, []) + [[f"s_lshr_b32 {T[0]}, {sR0}, 4", f"s_lshl_b32 {T[1]}, {sRH}, 1", f"s_add_u32 {T[0]}, {T[0]}, {T[1]}", f"s_lshl_b32 {T[0]}, {T[0]}, 14"],
                                       [f"s_lshl_b32 {T[1]}, {sCB}, 1", f"s_add_u32 {T[1]}, {T[1]}, {sCH}", f"s_lshl_b32 {T[1]}, {T[1]}, 10", f"s_add_u32 {T[0]}, {T[0]}, {T[1]}"],
                                       [f"s_add_u32 {T[0]}, {T[0]}, {WS_H}", f"s_add_u32 {T[1]}, {T[0]}, 0x4000"]]
        self.kloop(16, reads, mfmas, {0: w(1), 2: w(2), 6: w(3), 10: w(4)} if fine else {2: w(1), 6: w(2), 10: w(3)}, late, {0: head0}, per=1)
        self.w2rest = w2
        self.stamp("wo_gemm")
        for i in range(4):
            for k in range(2): a(f"v_cvt_pk_bf16_f32 v{vH + 2 * i + k}, v{ACC + 4 * i + 2 * k}, v{ACC + 4 * i + 2 * k + 1}")
        for rt in range(2):
            for nt in range(2):
                a(f"buffer_store_dwordx2 {v(vH + 4 * rt + 2 * nt, 2)}, {vPAT}, {sWS}, {T[rt]} offen offset:{512 * nt} sc1")
        for k in range(4):
            for rt in range(2):
                h = f"v{vH + 4 * rt + k}"
                a(f"v_dot2_f32_bf16 v{32 + 2 * rt}, {h}, {sONES}, {'0' if k == 0 else 'v%d' % (32 + 2 * rt)}",
                  f"v_dot2_f32_bf16 v{33 + 2 * rt}, {h}, {h}, {'0' if k == 0 else 'v%d' % (33 + 2 * rt)}")
        self.stats_publish_tagged(32, WS_ST3)
        self.cluster_flag_off(T[0], WS_F3, True)
        self.flag_store_wg(T[0])
        self.stamp("wo_pub")

    HF, ACC2, ACC1, WB, CS = 64, 192, 216, 28, 240

    def win_reads(self, s, read_h):
        L = []
        base = "v59" if s < 8 else "v60"
        for m in range(3):
            for hf in range(2):
                L.append(f"ds_read_b64_tr_b16 {v(self.wbuf(s) + 4 * m + 2 * hf, 2)}, {base} offset:{(s & 7) * 6144 + hf * 768 + m * 64}")
            if m == 0 and read_h:
                L += [f"ds_read_b128 {v(self.HF + (rt * 16 + s) * 4, 4)}, v62 offset:{(rt * 16 + s) * 1024}" for rt in range(2)]
        return L

    def wbuf(self, s): return (28, 40, 16)[s % 3]

    def win_gemm(self, acc, before, head, read_h, late={}, cs=False, extra=None):
        HF = self.HF
        def mfmas(s):
            L = []
            for m in range(3):
                L += [mfma16(acc + (rt * 3 + m) * 4, v(self.wbuf(s) + 4 * m, 4), v(HF + (rt * 16 + s) * 4, 4), "0" if s == 0 else None) for rt in range(2)]
                if cs: L.append(mfma16(self.CS + 4 * m, v(self.wbuf(s) + 4 * m, 4), "v[252:255]", "0" if s == 0 else None))
            return L
        self.kloop(16, lambda s: self.win_reads(s, read_h), mfmas, before, late, head, per=3 if extra else 2, extra=extra)

    def colsum_pass(self, late={}, before={}):
        def mfmas(s): return [mfma16(self.CS + 4 * m, v(self.wbuf(s) + 4 * m, 4), "v[252:255]", "0" if s == 0 else None) for m in range(3)]
        self.kloop(16, lambda s: self.win_reads(s, False), mfmas, before, late, per=3)

    def gelu_block(self, acc, st, tiles):
        a = self.a
        CS = self.CS
        K1 = -2.0 * 1.4426950408889634 * 0.7978845608028654
        K2 = K1 * 0.044715
        a(f"s_mov_b32 s60, {f2u(K2)}", f"s_mov_b32 s61, {f2u(K2)}", f"v_mov_b32 v52, {f2u(K1)}", f"v_mov_b32 v53, {f2u(K1)}")
        for i in range(0, len(tiles), 2):
            prs = [(acc + (rt * 3 + m) * 4 + 2 * k, CS + 4 * m + 2 * k, st + 2 * rt) for rt, m in tiles[i:i + 2] for k in range(2)]
            tm = [40, 42, 44, 46]
            for (x, c, r), t in zip(prs, tm): a(f"v_pk_mul_f32 {v(t, 2)}, {v(c, 2)}, {v(r, 2)} op_sel:[0,1] op_sel_hi:[1,1]")
            for (x, c, r), t in zip(prs, tm): a(f"v_pk_fma_f32 {v(x, 2)}, {v(x, 2)}, {v(r, 2)}, {v(t, 2)} op_sel:[0,0,0] op_sel_hi:[1,0,1]")
            for (x, c, r), t in zip(prs, tm): a(f"v_pk_mul_f32 {v(t, 2)}, {v(x, 2)}, {v(x, 2)}")
            for (x, c, r), t in zip(prs, tm): a(f"v_pk_fma_f32 {v(t, 2)}, {v(t, 2)}, s[60:61], v[52:53]")
            for (x, c, r), t in zip(prs, tm): a(f"v_pk_mul_f32 {v(t, 2)}, {v(t, 2)}, {v(x, 2)}")
            for k in range(8): a(f"v_exp_f32 v{40 + k}, v{40 + k}")
            for (x, c, r), t in zip(prs, tm): a(f"v_pk_add_f32 {v(t, 2)}, {v(t, 2)}, v[32:33]")
            for k in range(8): a(f"v_rcp_f32 v{40 + k}, v{40 + k}")
            for (x, c, r), t in zip(prs, tm): a(f"v_pk_mul_f32 {v(x, 2)}, {v(x, 2)}, {v(t, 2)}")

    def wout_dma_items(self, r):
        eg = self.opt.get("earlyg", 1)
        def src(vals):
            lit = sum(x << (8 * i) for i, x in enumerate(vals))
            return [f"s_lshl_b32 {T[4]}, {sW}, 3", f"s_lshr_b32 {T[4]}, {lit}, {T[4]}", f"s_and_b32 {T[4]}, {T[4]}, 0xff", f"s_lshl_b32 {T[4]}, {T[4]}, 15", f"s_mov_b32 m0, {T[5]}"]
        wo1 = []
        for g in range(4):
            pre, ins = self.w128_dma(r, sWOUT, T[1], T[5], 22)
            if eg: pre = src([GPERM[4 * w + g] for w in range(4)])
            pre = [f"s_lshl_b32 {T[1]}, {sW}, 2", f"s_add_u32 {T[1]}, {T[1]}, {g}", f"s_lshl_b32 {T[5]}, {T[1]}, 12", f"s_add_u32 {T[5]}, {T[5]}, {LB}"] + pre
            wo1 += [pre + [ins[0]], [ins[1]], [ins[2]], [ins[3]]]
        wo2 = []
        for g in range(2):
            pre, ins = self.w128_dma(r, sWOUT, T[1], T[5], 22)
            if eg: pre = src([GPERM[16 + w + (4 if g and w < 2 else 0)] for w in range(4)])
            p0 = [f"s_add_u32 {T[1]}, {sW}, 16"] if g == 0 else [f"s_cmp_lt_u32 {sW}, 2", f"s_cselect_b32 {T[5]}, 20, 16", f"s_add_u32 {T[1]}, {sW}, {T[5]}"]
            pre = p0 + [f"s_sub_u32 {T[5]}, {T[1]}, 16", f"s_lshl_b32 {T[5]}, {T[5]}, 12"] + pre
            wo2 += [pre + [ins[0]], [ins[1]], [ins[2]], [ins[3]]]
        return wo1, wo2

    def phase_win_fused(self, w1tok, wc):
        a = self.a
        ACC2, ACC1 = self.ACC2, self.ACC1
        a("v_mov_b32 v52, v216", "v_mov_b32 v53, v217", "v_mov_b32 v62, v218", "v_mov_b32 v63, v219",
          f"s_and_b32 {sU[8]}, {sCNT5}, {sCH}", f"s_cmp_eq_u32 {sU[8]}, 0", "s_cselect_b64 s[62:63], -1, 0")
        self.stamp("z2_gemm")
        def w1(c):
            def f():
                a.wait(vm=w1tok[c]); self.barrier()
            return f
        items = self.z2_items()
        last = self.opt.get("fzlast", 13)
        def extra(s):
            if s >= last: return []
            n = (len(items) + last - 1 - s) // (last - s)
            return [items.pop(0) for _ in range(n)]
        late = {0: wc[:3], 1: wc[3:]}
        HF = self.HF
        def mfmas(s):
            return [mfma16(ACC1 + (rt * 3 + m) * 4, v(self.wbuf(s) + 4 * m, 4), v(HF + (rt * 16 + s) * 4, 4), "0" if s == 0 else None) for m in range(3) for rt in range(2)]
        self.kloop(16, lambda s: self.win_reads(s, False), mfmas, {4: w1(1), 10: w1(2)}, late, {0: w1(0)}, per=self.opt.get("fzper", 6), extra=extra)
        self.stamp("z1_gemm")
        self.emit_all(self.stats_tagged_loads(WS_ST4, self.SGR))
        for r in range(252, 256): a(f"v_mov_b32 v{r}, {sONES}")
        a(f"v_and_b32 v56, 15, {vLANE}", f"v_lshrrev_b32 v57, 4, {vLANE}", "v_lshlrev_b32 v57, 2, v57", "v_sub_u32 v56, v56, v57",
          "v_mov_b32 v57, 0x3f80", "v_mov_b32 v58, 0x3f800000")
        for k, (r, c) in enumerate(((54, 57), (54, 58), (55, 57), (55, 58))):
            a(f"v_cmp_eq_u32 vcc, {k}, v56")
            a(f"v_cndmask_b32 v{r}, v{3 if k & 1 == 0 else r}, v{c}, vcc")
        a(f"s_add_u32 {T[0]}, {sT0}, {sCH}", f"s_lshl_b32 {T[0]}, {T[0]}, 16", f"s_lshl_b32 {T[1]}, {sR0}, 5", f"s_add_u32 {T[0]}, {T[0]}, {T[1]}",
          f"s_lshl_b32 {T[1]}, {sRH}, 10", f"s_add_u32 {T[0]}, {T[0]}, {T[1]}", f"s_add_u32 {sU[9]}, {T[0]}, {WS_Z}",
          f"s_add_u32 {sU[10]}, {sU[9]}, 0x20000", f"s_add_u32 {sU[11]}, {sU[9]}, 0x40000",
          f"s_lshl_b32 {P[0]}, {sRB}, 3", f"s_add_u32 {P[0]}, {P[0]}, {sCB}", f"s_lshl_b32 {P[0]}, {P[0]}, 8",
          f"s_lshl_b32 {T[1]}, {sJ}, 3", f"s_add_u32 {P[0]}, {P[0]}, {T[1]}", f"s_add_u32 {P[0]}, {P[0]}, {WS_F5}")
        WD = 96
        self.w128_addresses(WD, 100)
        wo1, wo2 = self.wout_dma_items(WD)
        n1 = self.opt.get("fzwo", 4)
        self.colsum_pass({i: [wo1[i]] for i in range(n1)})
        self.stamp("cs1")
        self.stats_tagged_finish(WS_ST4, self.SGR, 1.0 / 688, 20)
        self.stamp("s4")
        def znorm(m):
            for rt in range(2):
                x = ACC2 + (rt * 3 + m) * 4
                for k in range(2):
                    a(f"v_pk_fma_f32 {v(x + 2 * k, 2)}, {v(x + 2 * k, 2)}, {v(20 + 2 * rt, 2)}, {v(20 + 2 * rt, 2)} op_sel:[0,0,1] op_sel_hi:[1,0,1]")
            for rt in range(2):
                x = ACC2 + (rt * 3 + m) * 4
                for k in range(2): a(f"v_cvt_pk_bf16_f32 v{x + k}, v{x + 2 * k}, v{x + 2 * k + 1}")
            for rt in range(2):
                x = ACC2 + (rt * 3 + m) * 4
                a(f"v_mfma_f32_16x16x16_bf16 {v(28 + 8 * (m & 1) + 4 * rt, 4)}, {v(x, 2)}, v[54:55], 0")
        def zstore(m):
            for rt in range(2):
                d = 28 + 8 * (m & 1) + 4 * rt
                a(f"v_cvt_pk_bf16_f32 v{d}, v{d}, v{d + 1}", f"v_cvt_pk_bf16_f32 v{d + 1}, v{d + 2}, v{d + 3}",
                  f"buffer_store_dwordx2 {v(d, 2)}, {vPAT}, {sWS}, {sU[9 + m]} offen offset:{512 * rt} sc1")
        znorm(0); znorm(1); zstore(0)
        a(f"s_cmp_lg_u32 {sU[8]}, 0", "s_cbranch_scc1 L_skip_z")
        a.cond_begin(); znorm(2); a("s_nop 7"); zstore(2); a.cond_end()
        a("L_skip_z:", "s_nop 7")
        zstore(1)
        ztok = a.vtok()
        a("v_mov_b32 v56, v62", "v_mov_b32 v57, v63")
        n2 = n1 + 8
        self.emit_all(wo1[n1:n2])
        a(f"s_lshl_b32 {T[0]}, {sRH}, 5", f"s_add_u32 {T[0]}, {T[0]}, {sR0}", f"s_lshl_b32 {sU[6]}, {T[0]}, 1",
          f"v_and_b32 v20, 15, {vLANE}", "v_lshlrev_b32 v20, 1, v20")
        self.wsp_setup()
        self.flag_store_wg(P[0], ztok)
        self.stamp("z2n_pub")
        a(f"buffer_load_ushort v62, v20, {sBSP}, {sU[6]} offen", f"buffer_load_ushort v63, v20, {sBSP}, {sU[6]} offen offset:32")
        self.emit_all(wo1[n2:] + wo2)
        self.emit(self.poll_early(vFP8, T[3], 58)); self.p5tok = a.vtok()
        self.ztok = {}
        self.s5in = 0
        self.stamp("z1_epi")

    def z2_items(self):
        K1 = -2.0 * 1.4426950408889634 * 0.7978845608028654
        K2 = K1 * 0.044715
        t = [252, 253, 254, 255]
        L = [f"s_mov_b32 {P[1]}, {f2u(K2)}", f"v_mov_b32 v61, {f2u(K1)}", "v_mov_b32 v54, 0", "v_mov_b32 v55, 0"]
        for n, (rt, m) in enumerate([(0, 0), (1, 0), (0, 1), (1, 1), (0, 2), (1, 2)]):
            X = [self.ACC2 + (rt * 3 + m) * 4 + k for k in range(4)]
            C = [self.CS + 4 * m + k for k in range(4)]
            r, nb = (52, 53) if rt == 0 else (62, 63)
            s1, s2 = (54, 55) if rt == 0 else (56, 57)
            L += [f"v_mul_f32 v{t[i]}, v{C[i]}, v{nb}" for i in range(4)]
            L += [f"v_fma_f32 v{X[i]}, v{X[i]}, v{r}, v{t[i]}" for i in range(4)]
            L += [f"v_mul_f32 v{t[i]}, v{X[i]}, v{X[i]}" for i in range(4)]
            L += [f"v_fma_f32 v{t[i]}, v{t[i]}, {P[1]}, v61" for i in range(4)]
            L += [f"v_mul_f32 v{t[i]}, v{t[i]}, v{X[i]}" for i in range(4)]
            L += [f"v_exp_f32 v{t[i]}, v{t[i]}" for i in range(4)]
            L += [f"v_add_f32 v{t[i]}, 1.0, v{t[i]}" for i in range(4)]
            L += [f"v_rcp_f32 v{t[i]}, v{t[i]}" for i in range(4)]
            L += [f"v_mul_f32 v{X[i]}, v{X[i]}, v{t[i]}" for i in range(4)]
            Y = X
            if m == 2:
                L += [f"v_cndmask_b32_e64 v{t[i]}, 0, v{X[i]}, s[62:63]" for i in range(4)]; Y = t
            if n == 1: L += ["v_mov_b32 v56, 0", "v_mov_b32 v57, 0"]
            for i in range(4): L += [f"v_add_f32 v{s1}, v{s1}, v{Y[i]}", f"v_fma_f32 v{s2}, v{Y[i]}, v{Y[i]}, v{s2}"]
        p = 252
        L += [f"v_mov_b32 v{p + i}, v{54 + i}" for i in range(4)]
        L += [f"v_permlane32_swap_b32 v{p}, v{p + 1}", f"v_permlane32_swap_b32 v{p + 2}, v{p + 3}",
              f"v_add_f32 v{p}, v{p}, v{p + 1}", f"v_add_f32 v{p + 2}, v{p + 2}, v{p + 3}",
              f"s_lshl_b32 {T[4]}, {sCLU}, 14", f"s_add_u32 {T[4]}, {T[4]}, {WS_ST4}",
              f"v_permlane16_swap_b32 v{p}, v{p + 2}", f"s_lshl_b32 {T[5]}, {sRH}, 13", f"v_add_f32 v{p}, v{p}, v{p + 2}", f"s_add_u32 {T[4]}, {T[4]}, {T[5]}",
              f"v_mov_b32 v{p + 1}, v{p}", f"v_mov_b32 v{p + 2}, v4", f"v_mov_b32 v{p + 3}, v5",
              f"s_lshl_b32 {T[5]}, {sCB}, 1", f"v_permlane32_swap_b32 v{p}, v{p + 1}", f"s_add_u32 {T[5]}, {T[5]}, {sCH}",
              f"s_lshl_b32 {T[5]}, {T[5]}, 9", f"s_add_u32 {T[4]}, {T[4]}, {T[5]}",
              f"s_mov_b32 exec_hi, 0\nbuffer_store_dwordx4 {v(p, 4)}, {vL16}, {sWS}, {T[4]} offen sc1\ns_mov_b32 exec_hi, -1"]
        return L

    def phase_win(self):
        a = self.a
        fuse = self.opt.get("fuse", 0)
        HF, ACC2, ACC1, CS = self.HF, self.ACC2, self.ACC1, self.CS
        self.emit_all(self.w2rest)
        for r in range(252, 256): a(f"v_mov_b32 v{r}, {sONES}")
        a(f"s_lshl_b32 {T[4]}, {sRH}, 15", f"s_add_u32 {T[4]}, {T[4]}, {LB}", f"v_add_u32 v62, {T[4]}, {vL16}")
        fine = self.opt.get("fine", 1)
        group, toks = self.act_dma(WS_H, 16, [2, 2, 4, 4, 4] if fine else [4, 4, 4, 4], LB)
        self.cluster_flag_off(T[3], WS_F3, False)
        if self.w2rest:
            a.wait(vm=a.vm)
            self.barrier()
        ptok = [-1]
        self.colsum_pass({self.opt.get("p3at", 12): [self.poll_early(vFP8, T[3], 52) + [lambda: ptok.__setitem__(0, a.vtok())]]})
        self.stamp("cs2")
        self.poll_late(vFP8, T[3], 52, ptok[0])
        self.stamp("s3")
        for c in range(2 + fine): self.emit_all(group(c))
        def w(c):
            def f():
                a.wait(vm=toks[c]); self.barrier()
            return f
        g2, g3 = group(2 + fine), group(3 + fine)
        stl = self.stats_tagged_loads(WS_ST3, self.STR2)
        late = {0: g2[:2], 1: g2[2:], 2: g3[:2], 3: g3[2:]}
        for i in range(4): late[4 + i] = stl[2 * i:2 * i + 2]
        w1a = self.win_dma(0, 0, 3)
        for i in range(8): late[8 + i] = w1a[i:i + 1] if i < 7 else w1a[7:]
        w1tok = [-1, -1, -1]
        wb, wc = self.win_dma(0, 12, 3), self.win_dma(0, 24, 2)
        wb[-1].append(lambda: w1tok.__setitem__(1, a.vtok())); wc[-1].append(lambda: w1tok.__setitem__(2, a.vtok()))
        if fuse:
            w1a[-1].append(lambda: w1tok.__setitem__(0, a.vtok()))
            for i in range(5): late[8 + i] = w1a[2 * i:2 * i + 2]
            for i in range(3): late[13 + i] = wb[3 * i:3 * i + 3]
        stk = [-1]
        late[7][-1].append(lambda: stk.__setitem__(0, a.vtok()))
        ss = self.stats_sum_items(self.STR2, 1.0 / 512)
        def extra(s):
            if s < 12: return []
            n = (len(ss) + 15 - s) // (16 - s)
            return ([lambda: a.wait(vm=stk[0])] if s == 12 else []) + [ss.pop(0) for _ in range(n)]
        bef = {0: w(1), 2: w(2), 6: w(3), 10: w(4)} if fine else {2: w(1), 6: w(2), 10: w(3)}
        if fuse: bef[12] = self.barrier
        self.win_gemm(ACC2, bef, {0: w(0)}, True, late, extra=extra)
        if fuse:
            self.phase_win_fused(w1tok, wc)
            return
        self.barrier()
        self.stamp("z2_gemm")
        w1tok[0] = a.vtok()
        rest = wb + wc
        k = self.opt.get("w1pre", 9)
        self.emit_all(rest[:k]); rest = rest[k:]
        a("v_mov_b32 v34, v216", "v_mov_b32 v35, v217", "v_mov_b32 v36, v218", "v_mov_b32 v37, v219")
        for r in range(252, 256): a(f"v_mov_b32 v{r}, {sONES}")
        a("v_mov_b32 v32, 1.0", "v_mov_b32 v33, 1.0")
        T5 = [(0, 0), (1, 0), (0, 1), (1, 1)]
        self.gelu_block(ACC2, 34, T5 + [(0, 2), (1, 2)])
        for rt in range(2):
            x = ACC2 + rt * 12
            a(f"v_pk_add_f32 {v(40 + 4 * rt, 2)}, {v(x, 2)}, {v(x + 2, 2)}", f"v_pk_mul_f32 {v(42 + 4 * rt, 2)}, {v(x, 2)}, {v(x, 2)}")
            a(f"v_pk_fma_f32 {v(42 + 4 * rt, 2)}, {v(x + 2, 2)}, {v(x + 2, 2)}, {v(42 + 4 * rt, 2)}")
            for k in (4, 6):
                a(f"v_pk_add_f32 {v(40 + 4 * rt, 2)}, {v(40 + 4 * rt, 2)}, {v(x + k, 2)}",
                  f"v_pk_fma_f32 {v(42 + 4 * rt, 2)}, {v(x + k, 2)}, {v(x + k, 2)}, {v(42 + 4 * rt, 2)}")
        a(f"s_and_b32 {sU[8]}, {sCNT5}, {sCH}", f"s_cmp_lg_u32 {sU[8]}, 0", "s_cbranch_scc1 L_skip_st")
        for rt in range(2):
            x = ACC2 + rt * 12
            for k in (8, 10):
                a(f"v_pk_add_f32 {v(40 + 4 * rt, 2)}, {v(40 + 4 * rt, 2)}, {v(x + k, 2)}",
                  f"v_pk_fma_f32 {v(42 + 4 * rt, 2)}, {v(x + k, 2)}, {v(x + k, 2)}, {v(42 + 4 * rt, 2)}")
        a("L_skip_st:", "v_add_f32 v48, v40, v41", "v_add_f32 v49, v42, v43", "v_add_f32 v50, v44, v45", "v_add_f32 v51, v46, v47")
        self.stats_publish_tagged(48, WS_ST4)
        self.stamp("z2_pub")
        a("v_mov_b32 v52, v34", "v_mov_b32 v53, v35", "v_mov_b32 v62, v36", "v_mov_b32 v63, v37")
        def w1(c):
            def f():
                a.wait(vm=w1tok[c]); self.barrier()
            return f
        a(f"v_and_b32 v54, 15, {vLANE}", f"v_lshrrev_b32 v55, 4, {vLANE}", "v_lshlrev_b32 v55, 2, v55", "v_sub_u32 v54, v54, v55",
          "v_mov_b32 v55, 0x3f80", "v_mov_b32 v250, 0x3f800000")
        for k, (r, c) in enumerate(((248, 55), (248, 250), (249, 55), (249, 250))):
            a(f"v_cmp_eq_u32 vcc, {k}, v54")
            a(f"v_cndmask_b32 v{r}, v{3 if k & 1 == 0 else r}, v{c}, vcc")
        a(f"s_add_u32 {T[0]}, {sT0}, {sCH}", f"s_lshl_b32 {T[0]}, {T[0]}, 16", f"s_lshl_b32 {T[1]}, {sR0}, 5", f"s_add_u32 {T[0]}, {T[0]}, {T[1]}",
          f"s_lshl_b32 {T[1]}, {sRH}, 10", f"s_add_u32 {T[0]}, {T[0]}, {T[1]}", f"s_add_u32 {sU[9]}, {T[0]}, {WS_Z}",
          f"s_add_u32 {sU[10]}, {sU[9]}, 0x20000", f"s_add_u32 {sU[11]}, {sU[9]}, 0x40000",
          f"s_lshl_b32 {P[0]}, {sRB}, 3", f"s_add_u32 {P[0]}, {P[0]}, {sCB}", f"s_lshl_b32 {P[0]}, {P[0]}, 8",
          f"s_lshl_b32 {T[1]}, {sJ}, 3", f"s_add_u32 {P[0]}, {P[0]}, {T[1]}", f"s_add_u32 {P[0]}, {P[0]}, {WS_F5}")
        late = {i: rest[2 * i:2 * i + 2] for i in range((len(rest) + 1) // 2)}
        sl = self.stats_tagged_loads(WS_ST4, self.SGR)
        for i in range(4): late[self.opt.get("s4at", 9) + i] = sl[2 * i:2 * i + 2]
        csin = self.opt.get("csin", 0)
        self.win_gemm(ACC1, {4: w1(1), 10: w1(2)}, {0: w1(0)}, False, late, cs=csin)
        self.stamp("z1_gemm")
        self.stats_tagged_finish(WS_ST4, self.SGR, 1.0 / 688, 20)
        self.stamp("s4")
        def znorm(m):
            for rt in range(2):
                x = ACC2 + (rt * 3 + m) * 4
                for k in range(2):
                    a(f"v_pk_fma_f32 {v(x + 2 * k, 2)}, {v(x + 2 * k, 2)}, {v(20 + 2 * rt, 2)}, {v(20 + 2 * rt, 2)} op_sel:[0,0,1] op_sel_hi:[1,0,1]")
            for rt in range(2):
                x = ACC2 + (rt * 3 + m) * 4
                for k in range(2): a(f"v_cvt_pk_bf16_f32 v{x + k}, v{x + 2 * k}, v{x + 2 * k + 1}")
            for rt in range(2):
                x = ACC2 + (rt * 3 + m) * 4
                a(f"v_mfma_f32_16x16x16_bf16 {v(28 + 8 * (m & 1) + 4 * rt, 4)}, {v(x, 2)}, v[248:249], 0")
        def zstore(m):
            for rt in range(2):
                d = 28 + 8 * (m & 1) + 4 * rt
                a(f"v_cvt_pk_bf16_f32 v{d}, v{d}, v{d + 1}", f"v_cvt_pk_bf16_f32 v{d + 1}, v{d + 2}, v{d + 3}",
                  f"buffer_store_dwordx2 {v(d, 2)}, {vPAT}, {sWS}, {sU[9 + m]} offen offset:{512 * rt} sc1")
        znorm(0); znorm(1); zstore(0)
        a(f"s_cmp_lg_u32 {sU[8]}, 0", "s_cbranch_scc1 L_skip_z")
        a.cond_begin(); znorm(2); a("s_nop 7"); zstore(2); a.cond_end()
        a("L_skip_z:", "s_nop 7")
        zstore(1)
        wo1, wo2 = self.wout_dma_items(self.vWDo)
        eg = self.opt.get("earlyg", 1)
        ztok = a.vtok()
        a("v_mov_b32 v56, v62", "v_mov_b32 v57, v63")
        self.w128_addresses(self.vWDo, 64)
        npre = self.opt.get("wopre2", 8)
        self.emit_all(wo1[:npre]); wo1 = wo1[npre:]
        a(f"s_lshl_b32 {T[0]}, {sRH}, 5", f"s_add_u32 {T[0]}, {T[0]}, {sR0}", f"s_lshl_b32 {sU[6]}, {T[0]}, 1",
          f"v_and_b32 v20, 15, {vLANE}", "v_lshlrev_b32 v20, 1, v20")
        self.wsp_setup()
        self.flag_store_wg(P[0], ztok)
        self.stamp("z2n_pub")
        a(f"buffer_load_ushort v62, v20, {sBSP}, {sU[6]} offen", f"buffer_load_ushort v63, v20, {sBSP}, {sU[6]} offen offset:32")
        per = 2 if npre == 0 else 1
        late = {i: wo1[per * i:per * i + per] for i in range(8) if wo1[per * i:per * i + per]}
        for i in range(4): late[8 + i] = wo2[2 * i:2 * i + 2]
        ptok = [-1]
        late[self.opt.get("p5at", 12)] = [self.poll_early(vFP8, T[3], 58) + [lambda: ptok.__setitem__(0, a.vtok())]]
        self.ztok = {}
        self.s5in = self.opt.get("s5in", 0)
        if self.s5in:
            pa, ca = self.opt.get("s5p", 9), self.opt.get("s5c", 11)
            late = {i: wo1[2 * i:2 * i + 2] for i in range((len(wo1) + 1) // 2)}
            late[pa] = [self.poll_early(vFP8, T[3], 54) + [lambda: ptok.__setitem__(0, a.vtok())]]
            D = self.opt.get("wd", 7)
            a(f"v_add_u32 v61, 0x10000, {vL16}")
            steps = list(range(D)); n = 16 - ca
            for i in range(n):
                mine = steps[(i * D) // n:((i + 1) * D) // n]
                late[ca + i] = [sum((self.z_loads(0, u) for u in mine), [])]
            def chk():
                self.poll_late(vFP8, T[3], 54, ptok[0], wg=False); self.stamp("s5")
            self.wo2 = wo2
            self.colsum_pass(late, {6: self.barrier, ca: chk})
        elif csin:
            self.emit_all(wo1 + wo2)
            self.emit(late[self.opt.get("p5at", 12)][0])
        else:
            self.colsum_pass(late, {6: self.barrier})
        self.p5tok = ptok[0]
        self.stamp("z1_epi")

    vWDo = 200

    def gelu_items(self, m):
        K1 = -2.0 * 1.4426950408889634 * 0.7978845608028654
        K2 = K1 * 0.044715
        L = []
        if m == 0: L += [f"s_mov_b32 {P[2]}, {f2u(K2)}", f"v_mov_b32 v58, {f2u(K1)}"]
        X = [self.ACC1 + (rt * 3 + m) * 4 + k for rt in range(2) for k in range(4)]
        C = [self.CS + 4 * m + k for rt in range(2) for k in range(4)]
        R = [52 + 4 * rt for rt in range(2) for k in range(4)]
        assert self.opt.get("wd", 7) <= 8
        t = [192 + k for k in range(8)]
        for i in range(8): L.append(f"v_mul_f32 v{t[i]}, v{C[i]}, v{R[i] + 1}")
        for i in range(8): L.append(f"v_fma_f32 v{X[i]}, v{X[i]}, v{R[i]}, v{t[i]}")
        for i in range(8): L.append(f"v_mul_f32 v{t[i]}, v{X[i]}, v{X[i]}")
        for i in range(8): L.append(f"v_fma_f32 v{t[i]}, v{t[i]}, {P[2]}, v58")
        for i in range(8): L.append(f"v_mul_f32 v{t[i]}, v{t[i]}, v{X[i]}")
        for i in range(8): L.append(f"v_exp_f32 v{t[i]}, v{t[i]}")
        for i in range(8): L.append(f"v_add_f32 v{t[i]}, 1.0, v{t[i]}")
        for i in range(8): L.append(f"v_rcp_f32 v{t[i]}, v{t[i]}")
        for i in range(8): L.append(f"v_mul_f32 v{X[i]}, v{X[i]}, v{t[i]}")
        for rt in range(2):
            for k in range(2): L.append(f"v_cvt_pk_bf16_f32 v{vZ1 + (rt * 3 + m) * 2 + k}, v{X[4 * rt + 2 * k]}, v{X[4 * rt + 2 * k + 1]}")
        return L

    def z_loads(self, p, u):
        a = self.a
        t, sub = u >> 1, u & 1
        L = []
        if sub == 0: L.append(f"s_add_u32 {T[0]}, {sROT[t]}, {p * 0x20000}")
        for f in range(2):
            L.append(f"buffer_load_dwordx4 {v(64 + (2 * (u & 7) + f) * 4, 4)}, {vL16 if f == 0 else 'v61'}, {sWS}, {T[0]} offen offset:{1024 * sub} sc1")
        L.append(lambda: self.ztok.__setitem__((p, u), a.vtok()))
        return L

    def wsp_setup(self):
        a = self.a
        a(f"s_lshl_b32 {T[3]}, {sW}, 3", f"s_add_u32 {T[3]}, {T[3]}, {sCB}", f"s_lshl_b32 {T[3]}, {T[3]}, 8", f"s_add_u32 {T[3]}, {T[3]}, {WS_F5}",
          f"s_lshl_b32 {T[0]}, {sT0}, 16", f"s_lshl_b32 {T[1]}, {sW}, 11", f"s_add_u32 {T[0]}, {T[0]}, {T[1]}", f"s_add_u32 {T[0]}, {T[0]}, {WS_Z}")
        for t in range(8):
            a(f"s_add_u32 {T[1]}, {sSPR}, {t if not self.opt.get('zlocal') else 0}", f"s_and_b32 {T[1]}, {T[1]}, 7", f"s_lshl_b32 {T[1]}, {T[1]}, 13", f"s_add_u32 {sROT[t]}, {T[1]}, {T[0]}")
        a(f"s_lshl_b32 {P[2]}, {sW}, 13", f"s_add_u32 {P[2]}, {P[2]}, {LRED}",
          f"s_lshl_b32 {P[3]}, {sCH}, 12", f"s_lshl_b32 {T[2]}, {sRH}, 11", f"s_add_u32 {P[3]}, {P[3]}, {T[2]}", f"s_add_u32 {P[3]}, {P[3]}, {LRED}")
        a(f"s_lshr_b32 {T[1]}, {sR0}, 4", f"s_lshl_b32 {T[2]}, {sRH}, 1", f"s_add_u32 {T[1]}, {T[1]}, {T[2]}", f"s_mul_i32 {T[1]}, {T[1]}, {22 * 1024}",
          f"s_add_u32 {T[2]}, {sT0}, {sCH}", f"s_lshl_b32 {T[2]}, {T[2]}, 9", f"s_add_u32 {T[1]}, {T[1]}, {T[2]}", f"s_add_u32 {sU[9]}, {T[1]}, {WS_G}",
          f"s_add_u32 {sU[10]}, {sU[9]}, {22 * 1024}")

    def phase_wsp(self):
        a = self.a
        BUF, ACC, RED, WT = 64, 128, 28, 200
        prog = self.opt.get("s5prog", 0)
        if self.s5in:
            pass
        elif prog:
            a.wait(vm=self.p5tok)
            a(f"v_cmp_ne_u64 vcc, {sTAG}, v[58:59]", f"s_mov_b32 {P[2]}, {T[3]}", "s_nop 0", f"s_and_b32 {P[3]}, vcc_lo, 0xff")
            self.mask_check(0, 2, sSPR, P[2], P[3], 58)
        else:
            a(f"v_add_u32 v61, 0x10000, {vL16}")
            self.poll_late(vFP8, T[3], 58, self.p5tok, wg=False)
        if not self.s5in: self.stamp("s5")
        a("v_lshlrev_b32 v62, 16, v62", "v_lshlrev_b32 v63, 16, v63")
        a(f"v_add_u32 v54, {P[2]}, {vL16}", f"v_add_u32 v55, {P[3]}, {vL16}")
        tok = self.ztok
        loads = self.z_loads
        D = self.opt.get("wd", 7)
        assert D <= 8
        gq = [self.gelu_items(0) + self.gelu_items(1), self.gelu_items(2), []]
        self.w128_read_base(59, 2, (192, 193, 194, 195), 60)
        wt = [f"ds_read_b64_tr_b16 {v(WT + (nt * 6 + p) * 4 + 2 * hf, 2)}, v{59 + nt} offset:{p * 4096 + hf * 512}"
              for p in range(6) for nt in range(2) for hf in range(2)]
        seq = [(p, u) for p in range(3) for u in range(16)]
        for p, u in ([] if self.s5in else seq[:D]):
            if prog and u == 4: self.mask_check(2, 8, sSPR, P[2], P[3], 192)
            self.emit(loads(p, u))
        def red_write(p):
            A = ACC + 32 * (p & 1)
            return [f"ds_write_b128 v54, {v(A + 4 * i, 4)} offset:{(p & 1) * 32768 + i * 1024}" for i in range(8)]
        def red_read(p):
            return [f"ds_read_b128 {v(RED + (sw * 2 + rt) * 4, 4)}, v55 offset:{(p & 1) * 32768 + sw * 8192 + rt * 1024}" for sw in range(3) for rt in range(2)]
        def red_read2(p):
            return [f"ds_read_b128 {v(ACC + 32 * (p & 1) + rt * 4, 4)}, v55 offset:{(p & 1) * 32768 + 3 * 8192 + rt * 1024}" for rt in range(2)]
        def gate(p):
            L = []
            A = ACC + 32 * (p & 1)
            for o in range(8): L.append(f"v_add_f32 v{A + o}, v{A + o}, v{RED + o}")
            for o in range(8): L.append(f"v_add_f32 v{RED + 8 + o}, v{RED + 8 + o}, v{RED + 16 + o}")
            for o in range(8): L.append(f"v_add_f32 v{A + o}, v{A + o}, v{62 + (o >> 2)}")
            for o in range(8):
                z = vZ1 + ((o >> 2) * 3 + p) * 2 + ((o >> 1) & 1)
                L.append(f"v_and_b32 v{RED + o}, {sHIMASK}, v{z}" if o & 1 else f"v_lshlrev_b32 v{RED + o}, 16, v{z}")
            for o in range(8): L.append(f"v_add_f32 v{A + o}, v{A + o}, v{RED + 8 + o}")
            for o in range(8): L.append(f"v_mul_f32 v{A + o}, v{A + o}, v{RED + o}")
            for o in range(4): L.append(f"v_cvt_pk_bf16_f32 v{RED + o}, v{A + 2 * o}, v{A + 2 * o + 1}")
            return L
        def gstore(p):
            L = []
            if p == 2:
                sk, zr = a.label("gskip"), a.label("gstore")
                L.append(a.cond_begin)
                L.append(lambda: a(f"s_cmp_eq_u32 {sU[8]}, 0", f"s_cbranch_scc1 {zr}", f"s_cmp_eq_u32 {sCB}, 7", f"s_cbranch_scc0 {sk}",
                                   *[f"v_mov_b32 v{RED + k}, 0" for k in range(4)], f"{zr}:"))
            L += [f"buffer_store_dwordx2 {v(RED + 2 * rt, 2)}, {vPAT}, {sWS}, {sU[9 + rt]} offen offset:{1024 * p} sc1" for rt in range(2)]
            if p == 2: L += [lambda: a(f"{sk}:"), a.cond_end]
            return L
        eg = self.opt.get("earlyg", 1)
        etk = [-1]
        def early_flag():
            L = a.label("noflag")
            a.cond_begin()
            a(f"s_cmp_lg_u32 {sW}, 0", f"s_cbranch_scc1 {L}",
              "s_mov_b64 exec, 1", f"buffer_store_dwordx2 {vTAG}, off, {sWS}, {P[4]} sc1", "s_mov_b64 exec, -1", f"{L}:")
            a.cond_end()
        if eg:
            self.cluster_flag_off(P[4], WS_F6A, True); self.cluster_flag_off(P[5], WS_F6A, False)
        for p in range(3):
            A = ACC + 32 * (p & 1)
            for u in range(16):
                if not self.opt.get("w_nowait"): a.wait(vm=tok[(p, u)])
                if u == 0: self.stamp(f"wsp_p{p}")
                ms = []
                for f in range(2):
                    for tt in range(4):
                        ms.append(mfma16(A + (f * 4 + tt) * 4, v(BUF + (2 * (u & 7) + f) * 4, 4), ar((u * 4 + tt) * 4, 4), "0" if u == 0 else None))
                fill = []
                if p > 0 and not self.opt.get("w_nofill"):
                    q = p - 1
                    if u < 8: fill += red_write(q)[u:u + 1]
                    if u == 8: fill += [lambda: a.wait(lg=a.lg), "s_barrier"]
                    if u == 9: fill += red_read(q) + red_read2(q)
                    if u == 11: fill += [lambda: a.wait(lg=a.lg)]
                    if 11 <= u <= 15:
                        g = gate(q); fill += g[(u - 11) * 11:(u - 11) * 11 + 11]
                    if u == 15: fill += gstore(q)
                if p == 0: n = (len(gq[0]) + 15 - u) // (16 - u)
                elif p == 1 and u < 11: n = (len(gq[1]) + 10 - u) // (11 - u)
                else: n = 0
                fill = [gq[p].pop(0) for _ in range(n)] + fill if p == 0 else fill + [gq[p].pop(0) for _ in range(n)]
                if p == 2 and u < 8: fill += wt[3 * u:3 * u + 3]
                if p == 2 and u == 9 and eg: fill.insert(0, early_flag)
                if p == 2 and u == 14 and eg: fill += self.poll_early(vFP8, P[5], 52) + [lambda: etk.__setitem__(0, a.vtok())]
                if p == 0 and u == 15: fill += ["s_barrier"]
                nx = p * 16 + u + D
                ld = loads(*seq[nx]) if nx < 48 else []
                if self.opt.get("w_noload"): ld = ld[-1:]
                interleave(a, ms[:6], fill, per=2, start=0)
                if self.s5in and p == 0 and 2 <= u < 10: ld = self.wo2[u - 2] + ld
                a(ms[6]); self.emit(ld[:-2])
                a(ms[7]); self.emit(ld[-2:])
        self.stamp("wsp_gemm")
        self.emit(red_write(2))
        a.wait(lg=a.lg)
        if eg: self.poll_late(vFP8, P[5], 52, etk[0])
        else: self.barrier()
        self.emit(red_read(2) + red_read2(2))
        a(f"v_add_u32 v56, {LB}, v59", f"v_add_u32 v57, {LB}, v60")
        for o in range(8):
            z = vZ1 + ((o >> 2) * 3 + 2) * 2 + ((o >> 1) & 1)
            a(f"v_and_b32 v{192 + o}, {sHIMASK}, v{z}" if o & 1 else f"v_lshlrev_b32 v{192 + o}, 16, v{z}")
        self.cluster_flag_off(P[1], WS_F6, True)
        a.wait(lg=a.lg)
        A = ACC
        for o in range(0, 8, 2): a(f"v_pk_add_f32 {v(A + o, 2)}, {v(A + o, 2)}, {v(RED + o, 2)}")
        for o in range(0, 8, 2): a(f"v_pk_add_f32 {v(RED + 8 + o, 2)}, {v(RED + 8 + o, 2)}, {v(RED + 16 + o, 2)}")
        for o in range(0, 8, 2): a(f"v_pk_add_f32 {v(A + o, 2)}, {v(A + o, 2)}, v[62:63] op_sel:[0,{o >> 2}] op_sel_hi:[1,{o >> 2}]")
        for o in range(0, 8, 2): a(f"v_pk_add_f32 {v(A + o, 2)}, {v(A + o, 2)}, {v(RED + 8 + o, 2)}")
        for o in range(0, 8, 2): a(f"v_pk_mul_f32 {v(A + o, 2)}, {v(A + o, 2)}, {v(192 + o, 2)}")
        for o in range(4): a(f"v_cvt_pk_bf16_f32 v{RED + o}, v{A + 2 * o}, v{A + 2 * o + 1}")
        self.emit(gstore(2))
        self.wout_rd = [f"ds_read_b64_tr_b16 {ar((nt * 16 + p) * 4 + 2 * hf, 2)}, v{56 + nt} offset:{p * 4096 + hf * 512}"
                        for p in range(16) for nt in range(2) for hf in range(2)]
        gtok = None
        if eg:
            gtok = a.vtok()
            self.g_setup()
            for p in range(6): self.emit(self.g_dma(p))
            self.getok = a.vtok()
        self.flag_store_wg(P[1], gtok)
        self.stamp("g_pub")

    def phase_wout(self):
        a = self.a
        ACC = 128
        self.cluster_flag_off(T[3], WS_F6, False)
        a(f"s_lshl_b32 {T[4]}, {sRH}, 11", f"v_add_u32 v31, {T[4]}, {vL16}", f"v_add_u32 v30, {LRED}, v31")
        fine = self.opt.get("fine", 1)
        eg = self.opt.get("earlyg", 1)
        if not eg:
            chunks = [2, 2, 4, 6, 8] if fine else [4, 4, 6, 8]
            group, toks = self.act_dma(WS_G, 22, chunks, LA, gpos=True)
        self.emit(self.wout_rd[:32])
        self.emit(self.poll_early(vFP8, T[3], 36)); ptok = a.vtok()
        self.emit(self.wout_rd[32:])
        def tail_setup():
            a(f"v_and_b32 v32, 15, {vLANE}", f"v_lshrrev_b32 v33, 4, {vLANE}", "v_lshlrev_b32 v32, 10, v32",
              "v_and_b32 v34, 1, v33", "v_lshl_add_u32 v32, v34, 5, v32", "v_lshrrev_b32 v33, 1, v33", "v_lshl_add_u32 v32, v33, 4, v32",
              f"s_lshl_b32 {T[0]}, {sRH}, 5", f"s_add_u32 {T[0]}, {T[0]}, {sR0}", f"s_lshl_b32 {T[0]}, {T[0]}, 10",
              f"s_lshl_b32 {T[4]}, {sCB}, 7", f"s_add_u32 {T[0]}, {T[0]}, {T[4]}", f"s_lshl_b32 {T[4]}, {sCH}, 6", f"s_add_u32 {sU[9]}, {T[0]}, {T[4]}",
              f"s_add_u32 {sU[10]}, {sU[9]}, 0x4000")
            for i in range(8):
                a(f"v_lshlrev_b32 v{96 + 2 * i}, 16, v{vH + i}", f"v_and_b32 v{97 + 2 * i}, {sHIMASK}, v{vH + i}")
        if eg:
            tail_setup()
            a.wait(vm=self.getok, lg=a.lg)
            self.poll_late(vFP8, T[3], 36, ptok)
            self.stamp("s6")
            toks = {}
            def gd(p0, p1, c):
                L = [self.g_dma(p) for p in range(p0, p1)]
                L[-1].append(lambda: toks.__setitem__(c, a.vtok()))
                return L
            self.emit_all(gd(6, 10, 1) + gd(10, 14, 2))
        else:
            self.poll_late(vFP8, T[3], 36, ptok)
            self.stamp("s6")
            for c in range(2 + fine): self.emit_all(group(c))
            tail_setup()
        def buf(s, rt): return 64 + (s % 4) * 8 + rt * 4
        def reads(s): return [f"ds_read_b128 {v(buf(s, rt), 4)}, v{30 if s < 16 else 31} offset:{(self.gpos2(s) - LRED if eg else 4096 * s) + rt * 1024 if s < 16 else 4096 * (s - 16) + rt * 1024}" for rt in range(2)]
        def mfmas(s):
            wv = lambda nt: ar((nt * 16 + s) * 4, 4) if s < 16 else v(200 + (nt * 6 + s - 16) * 4, 4)
            return [mfma16(ACC + (rt * 2 + nt) * 4, wv(nt), v(buf(s, rt), 4), v(96 + (rt * 2 + nt) * 4, 4) if s == 0 else None)
                    for rt in range(2) for nt in range(2)]
        def w(c):
            def f():
                a.wait(vm=toks[c]); self.barrier()
            return f
        if eg:
            rest = gd(14, 18, 3) + gd(18, 22, 4)
            late = {4 + i: rest[2 * i:2 * i + 2] for i in range(4)}
            self.kloop(22, reads, mfmas, {4: w(1), 8: w(2), 12: w(3), 16: w(4)}, late, {}, per=1)
            rest = None
        else:
            rest = group(2 + fine) + group(3 + fine)
            late = {i: rest[2 * i:2 * i + 2] for i in range(7)}
        def head0():
            a.wait(vm=toks[0], lg=a.lg); self.barrier()
        if not eg: self.kloop(22, reads, mfmas, {0: w(1), 2: w(2), 6: w(3), 12: w(4)} if fine else {2: w(1), 6: w(2), 12: w(3)}, late, {0: head0}, per=1)
        self.stamp("wout_gemm")
        for rt in range(2):
            for nt in range(2):
                d = ACC + (rt * 2 + nt) * 4
                for k in range(2): a(f"v_cvt_pk_bf16_f32 v{64 + 4 * rt + 2 * nt + k}, v{d + 2 * k}, v{d + 2 * k + 1}")
        for rt in range(2):
            b = 64 + 4 * rt
            a(f"v_permlane16_swap_b32 v{b}, v{b + 2}", f"v_permlane16_swap_b32 v{b + 1}, v{b + 3}")
            a(f"buffer_store_dwordx4 {v(b, 4)}, v32, {sOUT}, {sU[9 + rt]} offen " + ["", "sc1", "nt", "sc0 sc1", "sc1 nt"][self.opt.get("ost", 0)])

    def epilogue(self):
        a = self.a
        a("L_finish:")
        a("s_cmp_eq_u32 s2, 0", f"s_cselect_b32 {T[0]}, {sW}, 1", f"s_cmp_eq_u32 {T[0]}, 0", "s_cbranch_scc0 L_noepoch",
          "s_mov_b64 exec, 1", f"buffer_store_dwordx2 {vTAG}, off, {sWS}, 0 sc1", "s_mov_b64 exec, -1", "L_noepoch:")
        if self.stamps:
            a("s_waitcnt vmcnt(0)")
            self.stamp("end")
            a(f"s_lshl_b32 {T[0]}, s2, 2", f"s_add_u32 {T[0]}, {T[0]}, {sW}", f"s_lshl_b32 {T[0]}, {T[0]}, 7", f"s_add_u32 {T[0]}, {T[0]}, {WS_DBG}",
              "s_mov_b64 exec, 1")
            for i in range(10):
                a(f"v_mov_b32 v8, s{STAMP0 + i}", f"buffer_store_dword v8, off, {sWS}, {T[0]} offset:{4 * i if i < 9 else 60}")
        if self.calib:
            a(f"s_and_b32 s98, s{STAMP0 + 1}, 0xffff", "s_lshl_b32 s98, s98, 1", f"s_add_u32 s98, s98, {self.calib}")
            if self.nstamp < 3: a(f"s_mov_b32 s98, {self.calib}")
            a("s_waitcnt vmcnt(0)", "L_calib:", "s_memrealtime s[100:101]", "s_waitcnt lgkmcnt(0)", f"s_sub_u32 s100, s100, s{STAMP0}",
              f"s_cmp_lt_u32 s100, s98", "s_cbranch_scc1 L_calib")
        if not self.opt.get("noendwait"): a("s_waitcnt vmcnt(0)")
        a("L_exit:", "s_endpgm")

    def build(self):
        self.prologue()
        self.phase_qkv(); self.maybe_stop("qkv")
        self.phase_attn(); self.maybe_stop("attn")
        self.phase_wo(); self.maybe_stop("wo")
        self.phase_win(); self.maybe_stop("win")
        self.phase_wsp(); self.maybe_stop("wsp")
        self.phase_wout()
        self.epilogue()
        self.attn_slow()
        self.a("L_code_end:")
        body = self.a.finish()
        for w in dict.fromkeys(self.a.warnings): print("PENDING-LOAD WARNING:", w, file=sys.stderr)
        ref = open(f"cdna_kernels/{NAME}.s.ref").read().split("\n")
        head = [l for l in ref if l.startswith(";") and "@launch" not in l and "Override" not in l and "grid=ceil" not in l]
        head = head[:head.index([l for l in head if "d_ws" in l][0]) + 1]
        return ("\n".join(head) + f"\n; @launch grid=(256,1,1) block=(256,1,1) lds={LDS_BYTES}\n"
                + '.amdgcn_target "amdgcn-amd-amdhsa--gfx950"\n.text\n'
                + f".globl {NAME}_kernel\n.p2align 8\n.type {NAME}_kernel,@function\n{NAME}_kernel:\n" + body
                + f""".section .rodata,"a"
.p2align 6
.amdhsa_kernel {NAME}_kernel
  .amdhsa_next_free_vgpr 512
  .amdhsa_next_free_sgpr 102
  .amdhsa_accum_offset 256
  .amdhsa_group_segment_fixed_size 0
  .amdhsa_kernarg_size 88
  .amdhsa_user_sgpr_count 2
  .amdhsa_user_sgpr_kernarg_segment_ptr 1
  .amdhsa_system_sgpr_workgroup_id_x 1
  .amdhsa_float_denorm_mode_32 3
.end_amdhsa_kernel
""")

if __name__ == "__main__":
    import argparse
    ap = argparse.ArgumentParser()
    ap.add_argument("-o", default=f"cdna_kernels/{NAME}.s")
    ap.add_argument("--stop"); ap.add_argument("--stamps", action="store_true"); ap.add_argument("--slow", action="store_true")
    ap.add_argument("--opt", action="append", default=[]); ap.add_argument("--keep")
    o = ap.parse_args()
    g = Gen(o.stop, o.stamps, o.slow, keep=o.keep.split(",") if o.keep else None, **{k: int(x) for k, x in (kv.split('=') for kv in o.opt)})
    s = g.build()
    open(o.o, "w").write(s)
    print(f"wrote {o.o}: {len(s)} bytes, {len(g.a.items)} items, {g.a.nops_added} nops; stamps: {g.stamp_names}")
```
